```python
import torch

def _softmax(x, axis=-1):
    return torch.softmax(x, dim=axis)
def _gelu(x):
    return torch.nn.functional.gelu(x, approximate="tanh")
def _silu(x):
    return torch.nn.functional.silu(x)
def _sigmoid(x):
    return torch.sigmoid(x)
def _layernorm(x, axis=-1, eps=1e-5):
    m = x.mean(dim=axis, keepdim=True)
    v = x.var(dim=axis, keepdim=True, unbiased=False)
    return (x - m) / torch.sqrt(v + eps)
def _scatter_add(tgt, idx, src, axis=0):
    return tgt.clone().index_add_(axis, idx, src)
def _segment_sum(src, seg, n):
    out = torch.zeros((n,) + src.shape[1:], dtype=src.dtype)
    return out.index_add_(0, seg, src)
def _pad(x, pw):
    flat = tuple(v for pair in reversed(pw) for v in pair)
    return torch.nn.functional.pad(x, flat)

kernel_name = 'standalone__kv_cache_quant_int4_int2_kv_with_per_channel_or_per_token_scales__sampling'

def setup_inputs():

    _w = (lambda a: (lambda t: t.to(torch.bfloat16) if t.is_floating_point() else t)(torch.as_tensor(a)))
    B = 8
    Sq = 4
    Skv = 4096
    Hq = 32
    Hkv = 32
    Dh = 192
    bits = 2
    G = 64
    if G <= 0 or G >= Skv:
        G = max(1, Skv // 2)
    Skv = (Skv // G) * G
    ngk = Skv // G
    qmax = (1 << bits) - 1
    return {
        "q": _w((lambda *s: torch.randn(*s, dtype=torch.bfloat16) * 3.2)(B, Hq, Sq, Dh)),
        "qk": _w(torch.randint(0, qmax + 1, (B, Hkv, Skv, Dh)).to(torch.int32)),
        "qv": _w(torch.randint(0, qmax + 1, (B, Hkv, Skv, Dh)).to(torch.int32)),
        "k_scales": _w(torch.abs((lambda *s: torch.randn(*s, dtype=torch.bfloat16) * 3.2)(B, Hkv, ngk, Dh)) * 0.05 + 0.02),
        "k_zeros": _w((lambda *s: torch.randn(*s, dtype=torch.bfloat16) * 3.2)(B, Hkv, ngk, Dh) + float(qmax) / 2.0),
        "v_scales": _w(torch.abs((lambda *s: torch.randn(*s, dtype=torch.bfloat16) * 0.05)(B, Hkv, Skv, 1)) * 0.05 + 0.02),
        "v_zeros": _w((lambda *s: torch.randn(*s, dtype=torch.bfloat16) * 0.05)(B, Hkv, Skv, 1) + float(qmax) / 2.0),
    }

def reference(q, qk, qv, k_scales, k_zeros, v_scales, v_zeros):
    B, Hq, Sq, Dh = q.shape
    Hkv, Skv = qk.shape[1], qk.shape[2]
    ngk = k_scales.shape[2]
    G = Skv // ngk
    ks = (lambda x, n, axis: torch.repeat_interleave(x, n, dim=axis))(k_scales, G, axis=2)
    kz = (lambda x, n, axis: torch.repeat_interleave(x, n, dim=axis))(k_zeros, G, axis=2)
    k = ((lambda x, dt: x.to(dt))(qk, q.dtype) - kz) * ks
    v = ((lambda x, dt: x.to(dt))(qv, q.dtype) - v_zeros) * v_scales
    rep = Hq // Hkv
    if rep > 1:
        k = (lambda x, n, axis: torch.repeat_interleave(x, n, dim=axis))(k, rep, axis=1)
        v = (lambda x, n, axis: torch.repeat_interleave(x, n, dim=axis))(v, rep, axis=1)
    scale = float(Dh) ** -0.5
    logits = torch.einsum("bhqd,bhkd->bhqk", q, k) * scale
    p = _softmax(logits, axis=-1)
    o = torch.einsum("bhqk,bhkd->bhqd", p, v)
    return o
```

```python
import re

REG = re.compile(r'(?<![\w.])([vsa])(\d+)\b|(?<![\w.])([vsa])\[(\d+):(\d+)\]')
TRANS = ('v_exp_f32', 'v_log_f32', 'v_rcp_f32', 'v_rsq_f32', 'v_sqrt_f32', 'v_sin_f32', 'v_cos_f32')

def regs_of(tok):
    out = set()
    for m in REG.finditer(tok):
        if m.group(1):
            out.add((m.group(1), int(m.group(2))))
        else:
            for k in range(int(m.group(4)), int(m.group(5)) + 1):
                out.add((m.group(3), k))
    if re.search(r'\bvcc\b', tok):
        out.add(('s', 106)); out.add(('s', 107))
    if re.search(r'\bexec\b', tok):
        out.add(('s', 126)); out.add(('s', 127))
    if re.search(r'\bm0\b', tok):
        out.add(('s', 124))
    return out

def split_ops(text):
    text = text.split(';')[0].strip()
    parts = text.split(None, 1)
    op = parts[0]
    rest = parts[1] if len(parts) > 1 else ''
    ops, depth, cur = [], 0, ''
    for ch in rest:
        if ch == '[': depth += 1
        if ch == ']': depth -= 1
        if ch == ',' and depth == 0:
            ops.append(cur.strip()); cur = ''
        else:
            cur += ch
    if cur.strip(): ops.append(cur.strip())
    return op, ops

class Ins:
    def __init__(self, text):
        self.text = text
        t = text.split(';')[0].strip()
        self.label = t.endswith(':')
        self.directive = t.startswith('.') or not t
        self.op, self.ops = ('', []) if (self.label or self.directive) else split_ops(t)
        op = self.op
        self.mfma = op.startswith('v_mfma')
        self.valu = op.startswith('v_') and not self.mfma
        self.vmem = op.startswith(('buffer_', 'global_', 'flat_'))
        self.ds = op.startswith('ds_')
        self.dpp = '_dpp' in op or 'row_newbcast' in t or 'quad_perm' in t
        self.trans = op.replace('_e32', '').replace('_e64', '') in TRANS
        self.permlane = op.startswith('v_permlane')
        self.readlane = op.startswith(('v_readlane', 'v_readfirstlane'))
        self.defs, self.uses = set(), set()
        self.srcc = set(); self.srcab = set()
        o = self.ops
        if self.mfma:
            self.defs = regs_of(o[0]); self.srcab = regs_of(o[1]) | regs_of(o[2]); self.srcc = regs_of(o[3].split()[0])
            self.uses = self.srcab | self.srcc
            self.passes = 2 if '4x4x4' in op else (4 if '16x16' in op else 8)
        elif self.valu:
            self.defs = regs_of(o[0])
            k = 1
            if op.startswith(('v_add_co', 'v_sub_co', 'v_addc_co', 'v_subb_co', 'v_div_scale')):
                self.defs |= regs_of(o[1]); k = 2
            for x in o[k:]: self.uses |= regs_of(x)
            if self.permlane:
                self.defs |= regs_of(o[1]); self.uses |= regs_of(o[0])
            if op.startswith(('v_fmac', 'v_dot2c', 'v_writelane')) or self.dpp:
                self.uses |= regs_of(o[0]) if op.startswith(('v_fmac', 'v_dot2c', 'v_writelane')) else set()
            if op.startswith('v_cmpx'):
                self.defs |= {('s', 126), ('s', 127)}
        elif self.vmem:
            store = 'store' in op or ('atomic' in op)
            lds = t.endswith(' lds') or ' lds ' in t
            if op.startswith('buffer_'):
                if store or lds:
                    for x in o: self.uses |= regs_of(x)
                    if 'atomic' in op and ' sc0' in t: self.defs = regs_of(o[0])
                else:
                    self.defs = regs_of(o[0])
                    for x in o[1:]: self.uses |= regs_of(x)
                self.data = regs_of(o[0]) if store else set()
            else:
                if store and not ('atomic' in op and ' sc0' in t):
                    for x in o: self.uses |= regs_of(x)
                    self.data = regs_of(o[1])
                else:
                    self.defs = regs_of(o[0])
                    for x in o[1:]: self.uses |= regs_of(x)
                    self.data = set()
            self.widestore = store and ('x3' in op or 'x4' in op)
        elif self.ds:
            if op.startswith(('ds_read', 'ds_bpermute', 'ds_permute', 'ds_swizzle')) or '_rtn' in op:
                self.defs = regs_of(o[0])
                for x in o[1:]: self.uses |= regs_of(x)
            else:
                for x in o: self.uses |= regs_of(x)
        elif op.startswith('s_') and o:
            if op.startswith(('s_cmp', 's_cbranch', 's_branch', 's_waitcnt', 's_nop', 's_setprio', 's_sleep', 's_barrier')):
                for x in o: self.uses |= regs_of(x)
            else:
                self.defs = regs_of(o[0])
                for x in o[1:]: self.uses |= regs_of(x)
    def states(self):
        if self.label or self.directive: return 0
        if self.op == 's_nop': return int(self.ops[0], 0) + 1
        return 1

def vonly(s): return {r for r in s if r[0] in 'va'}
def sonly(s): return {r for r in s if r[0] == 's'}

def need(p, c):
    n = 0
    if p.valu:
        vd = vonly(p.defs); sd = sonly(p.defs)
        if c.mfma and vd & c.uses: n = max(n, 2)
        if c.valu and c.dpp and vd & c.uses: n = max(n, 2)
        if c.permlane and vd & c.uses: n = max(n, 2)
        if c.readlane and vd & c.uses: n = max(n, 1)
        if p.trans and (c.valu or c.mfma or c.vmem or c.ds) and vd & c.uses: n = max(n, 1)
        if ('sdwa' in p.op or ('op_sel' in p.text and not p.op.startswith('v_pk_'))) and c.valu and vd & (c.uses | c.defs): n = max(n, 1)
        if sd:
            if c.vmem and sd & c.uses: n = max(n, 5)
            if c.valu and sd & c.uses: n = max(n, 4 if c.op.startswith(('v_readlane', 'v_writelane')) else 2)
            if c.op.startswith('s_') and sd & c.uses: n = max(n, 2)
            if ('s', 126) in sd and (c.dpp or c.mfma or c.readlane or c.permlane): n = max(n, 5)
    if p.mfma:
        k = {2: 0, 4: 1, 8: 2}[p.passes]
        if c.mfma:
            if p.defs & c.srcab: n = max(n, (5, 8, 12)[k])
            if p.defs & c.srcc:
                n = max(n, (2, 0, 0)[k] if (p.defs == c.srcc and p.passes == c.passes) else (4, 6, 10)[k])
            elif p.defs & c.defs:
                n = max(n, (5, 8, 12)[k])
        elif (c.valu or c.vmem or c.ds) and p.defs & (c.uses | c.defs):
            n = max(n, (5, 8, 12)[k])
        if c.valu and p.srcc & c.defs: n = max(n, (1, 3, 7)[k])
    if p.vmem and p.widestore and p.data & c.defs: n = max(n, 2)
    if p.op.startswith('s_') and ('s', 124) in p.defs and c.vmem and 'lds' in c.text: n = max(n, 1)
    return n

WINDOW = 14

def pad(lines):
    ins = [Ins(l) for l in lines]
    changed = True
    while changed:
        changed = False
        labels = {i.text.split(';')[0].strip()[:-1]: k for k, i in enumerate(ins) if i.label}
        preds = {k: [] for k in range(len(ins))}
        for k, i in enumerate(ins):
            if i.op.startswith(('s_cbranch', 's_branch')):
                preds[labels[i.ops[0]]].append(k)
            if k + 1 < len(ins) and i.op not in ('s_branch', 's_endpgm'):
                preds[k + 1].append(k)
        for k, c in enumerate(ins):
            if c.label or c.directive: continue
            worst = 0
            stack = [(p, 0) for p in preds[k]]
            seen = set()
            while stack:
                p, d = stack.pop()
                if (p, d) in seen: continue
                seen.add((p, d))
                pi = ins[p]
                if not (pi.label or pi.directive):
                    worst = max(worst, need(pi, c) - d)
                d2 = d + pi.states()
                if d2 < WINDOW:
                    stack += [(q, d2) for q in preds[p]]
            if worst > 0:
                ins.insert(k, Ins(f'  s_nop {worst - 1}'))
                changed = True
                break
    return [i.text for i in ins]
```

```python
import sys, os
sys.path.insert(0, os.path.dirname(os.path.abspath(__file__)))
from asmlib import pad
NAME = 'standalone__kv_cache_quant_int4_int2_kv_with_per_channel_or_per_token_scales__sampling_kernel'
HEAD = 4096 * 768
TOTAL = 256 * HEAD
HDR = open(os.path.join(os.path.dirname(os.path.abspath(__file__)), 'header.txt')).read()

class Alloc:
    def __init__(self, start): self.n = start
    def __call__(self, k, align=1):
        self.n = (self.n + align - 1) // align * align
        r = self.n; self.n += k
        return r

def v(r, k=1): return f'v{r}' if k == 1 else f'v[{r}:{r+k-1}]'
def s(r, k=1): return f's{r}' if k == 1 else f's[{r}:{r+k-1}]'

def merge(main, side, every):
    out = []; side = list(side); c = 0
    for m in main:
        out.append(m); c += 1
        if side and c % every == 0: out.append(side.pop(0))
    return out + side

def gen(D=6, R=8, W=4, tokmap='4s', stamps=False, sf='nt'):
    assert 24 % R == 0 and D <= R
    sf = sf.replace('-', '')
    NU = 128 // W
    L = []
    A = L.append
    va = Alloc(1)
    RING = va(4 * R, 4); VOFF = va(8); VOFFV = va(8)
    VKS = va(1); VVS = va(1); VLDS = va(1); VBP = va(1)
    T = va(4, 2); P = va(2); ZN = va(1); SN = va(1); ZC = va(1); SC = va(1); ZS = va(2, 2)
    LG = va(4, 4); ACC = va(12, 4); M = va(1); NB = va(2, 2); LS = NB + 1
    X0 = va(1); X1 = va(1); AL = va(1); ALQ = va(1); E = va(8); PP = va(4)
    base = va.n
    QB = va(6, 4); KSR = va(6, 2); KZR = va(6, 2); KS = va(12, 2); KZ = va(12, 2); KA = va(6, 4); SD = va(4, 4); S = va(2, 2)
    kend = va.n
    va.n = base
    AJ = va(16, 4); TV = va(12, 2); BV = va(48, 4)
    nv = max(va.n, kend)
    SK, SV, SI, SKS, SKZ, SVS, SVZ, SQ, SO = 8, 12, 16, 20, 24, 28, 32, 36, 40
    PT = 44
    sCUR, sNXT, sKSO, sVSO, sCNT, sMSK, sL2E, sSCL, sFIRST, sT = 60, 61, 62, 63, 64, 65, 66, 68, 67, 70
    sMJ = 72
    LDS_ACC = 32768; LDS_ST = LDS_ACC + W * 3072
    lds = 87040

    A(f'{NAME}:')
    A('  s_cmp_ge_u32 s2, 256')
    A('  s_cbranch_scc1 L_end')
    A(f'  s_load_dwordx16 {s(PT,16)}, s[0:1], 0')
    if stamps:
        A('  s_load_dwordx2 s[84:85], s[0:1], 72')
        A('  s_memrealtime s[80:81]')
    A('  v_lshrrev_b32 v1, 6, v0')
    A('  v_and_b32 v0, 63, v0')
    A('  v_readfirstlane_b32 s3, v1')
    cls, a, g, n = T, T + 1, T + 2, T + 3
    A(f'  v_and_b32 {v(cls)}, 3, v0')
    A(f'  v_bfe_u32 {v(a)}, v0, 2, 2')
    A(f'  v_lshrrev_b32 {v(g)}, 4, v0')
    A(f'  v_and_b32 {v(n)}, 15, v0')
    astr, sstr = (1, 4) if tokmap == '4s' else (8, 1)
    A(f'  v_lshlrev_b32 {v(X0)}, 4, {v(cls)}')
    A(f'  v_lshl_add_u32 {v(X0)}, {v(g)}, 6, {v(X0)}')
    A(f'  v_lshrrev_b32 {v(VKS)}, 1, {v(X0)}')
    A(f'  v_mul_u32_u24 {v(X1)}, {768 * astr}, {v(a)}')
    A(f'  v_add_u32 {v(VOFF)}, {v(X0)}, {v(X1)}')
    A(f'  v_mul_u32_u24 {v(X1)}, {768 * astr}, {v(g)}')
    A(f'  v_lshl_add_u32 {v(VOFFV)}, {v(n)}, 4, {v(X1)}')
    for k in range(1, 8):
        A(f'  v_add_u32 {v(VOFF+k)}, {768 * sstr * k}, {v(VOFF)}')
        A(f'  v_add_u32 {v(VOFFV+k)}, {768 * sstr * k}, {v(VOFFV)}')
    A(f'  v_and_b32 {v(X1)}, 7, v0')
    A(f'  v_mul_u32_u24 {v(X1)}, {2 * sstr}, {v(X1)}')
    A(f'  v_mul_u32_u24 {v(VVS)}, {2 * astr}, {v(g)}')
    A(f'  v_add_u32 {v(VVS)}, {v(VVS)}, {v(X1)}')
    A(f'  v_mul_u32_u24 {v(X1)}, 384, {v(a)}')
    A(f'  v_add_u32 {v(X1)}, {v(X1)}, {v(VKS)}')
    A(f'  v_lshlrev_b32 {v(VBP)}, 4, {v(g)}')
    A(f'  v_lshrrev_b32 {v(VLDS)}, 2, v0')
    A(f'  v_lshlrev_b32 {v(VLDS)}, 4, {v(VLDS)}')
    A(f'  s_mul_i32 {s(sT)}, s3, {NU * 256}')
    A(f'  v_add_u32 {v(VLDS)}, {s(sT)}, {v(VLDS)}')
    A(f'  v_mov_b32 {v(ZN)}, 0')
    A(f'  v_mov_b32 {v(SN)}, 0')
    A(f'  s_mov_b32 {s(sMSK)}, 0xffff0000')
    A(f'  s_mov_b32 {s(sL2E)}, 0x3fb8aa3b')
    A(f'  s_mov_b32 {s(sSCL)}, 0x3d93cd3a')
    A(f'  s_mov_b32 {s(sSCL+1)}, 0x3d93cd3a')
    for j in range(4):
        A(f'  s_mov_b32 {s(sMJ+2*j)}, {hex(0x11111111 << j)}')
        A(f'  s_mov_b32 {s(sMJ+2*j+1)}, {hex(0x11111111 << j)}')
    A(f'  s_mul_i32 {s(sCUR)}, s2, {HEAD}')
    A(f'  s_mul_i32 {s(sT)}, s3, 24576')
    A(f'  s_add_u32 {s(sCUR)}, {s(sCUR)}, {s(sT)}')
    A(f'  s_mov_b32 {s(sFIRST)}, {s(sCUR)}')
    A(f'  s_lshl_b32 {s(sKSO)}, s2, 6')
    A(f'  s_lshr_b32 {s(sT)}, s3, 1')
    A(f'  s_add_u32 {s(sKSO)}, {s(sKSO)}, {s(sT)}')
    A(f'  s_mul_i32 {s(sKSO)}, {s(sKSO)}, 384')
    A(f'  s_lshl_b32 {s(sVSO)}, s2, 13')
    A(f'  s_lshl_b32 {s(sT)}, s3, 6')
    A(f'  s_add_u32 {s(sVSO)}, {s(sVSO)}, {s(sT)}')
    A(f'  s_mul_i32 {s(sT)}, s2, 1536')
    A('  s_waitcnt lgkmcnt(0)')
    for srd, p, nb in ((SQ, 0, 256 * 1536), (SK, 1, TOTAL), (SI, 1, TOTAL), (SV, 2, TOTAL), (SKS, 3, 256 * 24576), (SKZ, 4, 256 * 24576),
                       (SVS, 5, 256 * 8192), (SVZ, 6, 256 * 8192), (SO, 7, 256 * 1536)):
        A(f'  s_mov_b32 {s(srd)}, {s(PT+2*p)}')
        A(f'  s_and_b32 {s(srd+1)}, {s(PT+2*p+1)}, 0xffff')
        A(f'  s_mov_b32 {s(srd+2)}, {nb}')
        A(f'  s_mov_b32 {s(srd+3)}, 0x20000')
    def slot(k): return RING + 4 * (k % R)
    def main_load(k, srd, so):
        ss, i = divmod(k % 24, 3)
        return f'  buffer_load_dwordx4 {v(slot(k),4)}, {v(VOFF+ss)}, {s(srd,4)}, {s(so)} offen offset:{256*i} nt'
    def kscale_loads():
        r = []
        for i in range(3):
            r.append(f'  buffer_load_dwordx2 {v(KSR+2*i,2)}, {v(VKS)}, {s(SKS,4)}, {s(sKSO)} offen offset:{128*i} {sf}')
            r.append(f'  buffer_load_dwordx2 {v(KZR+2*i,2)}, {v(VKS)}, {s(SKZ,4)}, {s(sKSO)} offen offset:{128*i} {sf}')
        return r
    def vscale_loads():
        return [f'  buffer_load_short_d16_hi {v(ZN)}, {v(VVS)}, {s(SVZ,4)}, {s(sVSO)} offen {sf}',
                f'  buffer_load_short_d16_hi {v(SN)}, {v(VVS)}, {s(SVS,4)}, {s(sVSO)} offen {sf}']
    for x in kscale_loads(): A(x)
    for i in range(3):
        A(f'  buffer_load_dwordx2 {v(QB+2*i,2)}, {v(X1)}, {s(SQ,4)}, {s(sT)} offen offset:{128*i}')
    for x in vscale_loads(): A(x)
    for k in range(D): A(main_load(k, SK, sCUR))
    for k in range(12): A(f'  v_mov_b32 {v(ACC+k)}, 0')
    A(f'  v_mov_b32 {v(M)}, 0xff800000')
    A(f'  v_mov_b32 {v(NB)}, 0x7f800000')
    A(f'  v_mov_b32 {v(LS)}, 0')
    A(f'  s_mov_b32 {s(sCNT)}, {NU}')

    SW = 24 - D
    PSMALL = 3
    assert PSMALL < SW
    def waits(nsmall):
        w = []
        for k in range(24):
            c = D - 1
            issued_at = k - D
            if issued_at <= PSMALL < k: c += nsmall
            w.append(c)
        return w
    def dequant(X, src, z, sc, zmod, smod):
        r = [f'  v_cvt_f32_i32 {v(X+j)}, {v(src+j)}' for j in range(4)]
        r2 = [f'  v_pk_add_f32 {v(X,2)}, {v(X,2)}, {z[0]} {zmod}neg_lo:[0,1] neg_hi:[0,1]',
              f'  v_pk_add_f32 {v(X+2,2)}, {v(X+2,2)}, {z[1]} {zmod}neg_lo:[0,1] neg_hi:[0,1]',
              f'  v_cvt_pk_bf16_f32 {v(P)}, {v(X)}, {v(X+1)}',
              f'  v_cvt_pk_bf16_f32 {v(P+1)}, {v(X+2)}, {v(X+3)}',
              f'  v_lshlrev_b32 {v(X)}, 16, {v(P)}',
              f'  v_and_b32 {v(X+1)}, {s(sMSK)}, {v(P)}',
              f'  v_lshlrev_b32 {v(X+2)}, 16, {v(P+1)}',
              f'  v_and_b32 {v(X+3)}, {s(sMSK)}, {v(P+1)}',
              f'  v_pk_mul_f32 {v(X,2)}, {v(X,2)}, {sc[0]} {smod}'.rstrip(),
              f'  v_pk_mul_f32 {v(X+2,2)}, {v(X+2,2)}, {sc[1]} {smod}'.rstrip()]
        return r, r2
    def kreduce(ss):
        d = S + (ss & 1)
        q = lambda j: f'quad_perm:[{j},{j},{j},{j}] row_mask:0xf bank_mask:0xf'
        r = [f'  v_mov_b32_dpp {v(X0)}, {v(SD)} {q(0)}',
             f'  v_mov_b32_dpp {v(X1)}, {v(SD+2)} {q(2)}',
             f'  v_add_f32_dpp {v(X0)}, {v(SD+1)}, {v(X0)} {q(1)}',
             f'  v_add_f32_dpp {v(X1)}, {v(SD+3)}, {v(X1)} {q(3)}',
             f'  v_add_f32 {v(d)}, {v(X0)}, {v(X1)}']
        if ss & 1:
            r += [f'  v_cvt_pk_bf16_f32 {v(X0)}, {v(S)}, {v(S+1)}',
                  f'  v_lshlrev_b32 {v(S)}, 16, {v(X0)}',
                  f'  v_and_b32 {v(S+1)}, {s(sMSK)}, {v(X0)}',
                  f'  v_pk_mul_f32 {v(S,2)}, {v(S,2)}, {s(sSCL,2)}',
                  f'  v_cvt_pk_bf16_f32 {v(LG+(ss>>1))}, {v(S)}, {v(S+1)}']
        return r

    A('L_k:')
    wk = waits(6)
    for k in range(24):
        ss, i = divmod(k, 3)
        if k == SW:
            A(f'  s_add_u32 {s(sNXT)}, {s(sCUR)}, {24576 * W}')
            A(f'  s_cmp_lg_u32 {s(sCNT)}, 1')
            A('  s_cbranch_scc1 L_k_keep')
            A(f'  s_mov_b32 {s(sNXT)}, {s(sFIRST)}')
            A(f'  s_mov_b32 {s(SI)}, {s(SV)}')
            A(f'  s_mov_b32 {s(SI+1)}, {s(SV+1)}')
            for j in range(8): A(f'  v_mov_b32 {v(VOFF+j)}, {v(VOFFV+j)}')
            A('L_k_keep:')
        ld = main_load(k + D, SK, sCUR) if k < SW else main_load(k + D, SI, sNXT)
        A(f'  s_waitcnt vmcnt({wk[k]})')
        if D < R: A(ld)
        c, rest = dequant(T, slot(k), (v(KZ+4*i,2), v(KZ+4*i+2,2)), (v(KS+4*i,2), v(KS+4*i+2,2)), '', '')
        for x in c: A(x)
        if D == R: A(ld)
        if k == PSMALL:
            A(f'  s_add_u32 {s(sKSO)}, {s(sKSO)}, {384 * W // 2}')
            for x in kscale_loads(): A(x)
        if ss == 0:
            for raw, dst in ((KZR, KZ), (KSR, KS)):
                for h in range(2):
                    A(f'  v_lshlrev_b32 {v(dst+4*i+2*h)}, 16, {v(raw+2*i+h)}')
                    A(f'  v_and_b32 {v(dst+4*i+2*h+1)}, {s(sMSK)}, {v(raw+2*i+h)}')
        rest += [f'  v_cvt_pk_bf16_f32 {v(KA+2*i)}, {v(T)}, {v(T+1)}',
                 f'  v_cvt_pk_bf16_f32 {v(KA+2*i+1)}, {v(T+2)}, {v(T+3)}']
        if i == 0 and ss > 0:
            r = kreduce(ss - 1)
            rest = rest[:2] + merge(rest[2:], r[:5], 2)
            pend = r[5:]
        elif i == 1 and ss > 0:
            rest = merge(rest, pend, 2)
        for x in rest: A(x)
        if i == 1: A(f'  v_mfma_f32_16x16x32_bf16 {v(SD,4)}, {v(KA,4)}, {v(QB,4)}, 0')
        if i == 2: A(f'  v_mfma_f32_16x16x16_bf16 {v(SD,4)}, {v(KA+4,2)}, {v(QB+4,2)}, {v(SD,4)}')
    A(f'  s_mov_b32 {s(sCUR)}, {s(sNXT)}')
    A(f'  s_sub_u32 {s(sCNT)}, {s(sCNT)}, 1')
    for x in kreduce(7): A(x)
    A(f'  ds_write_b128 {v(VLDS)}, {v(LG,4)}')
    A(f'  v_add_u32 {v(VLDS)}, 256, {v(VLDS)}')
    A(f'  s_cmp_lg_u32 {s(sCNT)}, 0')
    A('  s_cbranch_scc1 L_k')

    A(f'  v_subrev_u32 {v(VLDS)}, {NU * 256}, {v(VLDS)}')
    A(f'  s_mov_b32 {s(sCNT)}, {NU}')
    A('  s_waitcnt lgkmcnt(0)')
    A(f'  ds_read_b128 {v(LG,4)}, {v(VLDS)}')
    A('L_v:')
    prep = ['  s_waitcnt lgkmcnt(0)']
    for k in range(4):
        prep += [f'  v_lshlrev_b32 {v(E+2*k)}, 16, {v(LG+k)}', f'  v_and_b32 {v(E+2*k+1)}, {s(sMSK)}, {v(LG+k)}']
    prep += [f'  v_add_u32 {v(VLDS)}, 256, {v(VLDS)}',
             f'  v_max3_f32 {v(X0)}, {v(E)}, {v(E+1)}, {v(E+2)}',
             f'  ds_read_b128 {v(LG,4)}, {v(VLDS)}',
             f'  v_max3_f32 {v(X1)}, {v(E+3)}, {v(E+4)}, {v(E+5)}',
             f'  v_max3_f32 {v(X0)}, {v(X0)}, {v(E+6)}, {v(E+7)}',
             f'  v_max3_f32 {v(X0)}, {v(X0)}, {v(X1)}, {v(M)}',
             f'  v_mov_b32 {v(X1)}, {v(X0)}',
             f'  v_permlane32_swap_b32 {v(X0)}, {v(X1)}',
             f'  v_max_f32 {v(X0)}, {v(X0)}, {v(X1)}',
             f'  v_mov_b32 {v(X1)}, {v(X0)}',
             f'  v_permlane16_swap_b32 {v(X0)}, {v(X1)}',
             f'  v_max_f32 {v(M)}, {v(X0)}, {v(X1)}',
             f'  v_mul_f32 {v(X0)}, {s(sL2E)}, {v(M)}',
             f'  v_add_f32 {v(AL)}, {v(X0)}, {v(NB)}',
             f'  v_sub_f32 {v(NB)}, 0, {v(X0)}',
             f'  v_exp_f32 {v(AL)}, -{v(AL)}',
             f'  ds_bpermute_b32 {v(ALQ)}, {v(VBP)}, {v(AL)}']
    for k in range(8):
        prep += [f'  v_fma_f32 {v(E+k)}, {v(E+k)}, {s(sL2E)}, {v(NB)}', f'  v_exp_f32 {v(E+k)}, {v(E+k)}']
    prep += [f'  v_add_f32 {v(X0)}, {v(E)}, {v(E+1)}', f'  v_add_f32 {v(X1)}, {v(E+2)}, {v(E+3)}',
             f'  v_add_f32 {v(X0)}, {v(X0)}, {v(E+4)}', f'  v_add_f32 {v(X1)}, {v(X1)}, {v(E+5)}',
             f'  v_add_f32 {v(X0)}, {v(X0)}, {v(E+6)}', f'  v_add_f32 {v(X1)}, {v(X1)}, {v(E+7)}',
             f'  v_add_f32 {v(X0)}, {v(X0)}, {v(X1)}',
             f'  v_fma_f32 {v(LS)}, {v(LS)}, {v(AL)}, {v(X0)}']
    for k in range(4):
        prep.append(f'  v_cvt_pk_bf16_f32 {v(PP+k)}, {v(E+2*k)}, {v(E+2*k+1)}')
    for j in range(4):
        for k in range(4):
            prep.append(f'  v_cndmask_b32 {v(AJ+4*j+k)}, 0, {v(PP+k)}, {s(sMJ+2*j,2)}')
    prep.append('  s_waitcnt lgkmcnt(0)')
    for k in range(12):
        prep.append(f'  v_mul_f32 {v(ACC+k)}, {v(ALQ)}, {v(ACC+k)}')
    per = 5
    wv = waits(2)
    for k in range(24):
        ss, i = divmod(k, 3)
        if k == SW:
            A(f'  s_add_u32 {s(sNXT)}, {s(sCUR)}, {24576 * W}')
            A(f'  s_cmp_lg_u32 {s(sCNT)}, 1')
            A(f'  s_cselect_b32 {s(sNXT)}, {s(sNXT)}, {TOTAL}')
        ld = main_load(k + D, SV, sCUR if k < SW else sNXT)
        A(f'  s_waitcnt vmcnt({wv[k]})')
        if D < R: A(ld)
        if k == 0:
            A(f'  v_mov_b32 {v(ZC)}, {v(ZN)}')
            A(f'  v_mov_b32 {v(SC)}, {v(SN)}')
        X = TV + 4 * i if ss % 2 == 0 else T
        c, rest = dequant(X, slot(k), (v(ZS,2), v(ZS,2)), (v(ZS,2), v(ZS,2)), 'op_sel_hi:[1,0] ', 'op_sel:[0,1]')
        for x in c: A(x)
        if D == R: A(ld)
        if k == PSMALL:
            A(f'  s_add_u32 {s(sVSO)}, {s(sVSO)}, {64 * W}')
            for x in vscale_loads(): A(x)
        if i == 0:
            A(f'  v_mov_b32_dpp {v(ZS)}, {v(ZC)} row_newbcast:{ss} row_mask:0xf bank_mask:0xf')
            A(f'  v_mov_b32_dpp {v(ZS+1)}, {v(SC)} row_newbcast:{ss} row_mask:0xf bank_mask:0xf')
        if ss % 2 == 1:
            rest += [f'  v_cvt_pk_bf16_f32 {v(BV+16*i+4*j+(ss>>1))}, {v(TV+4*i+j)}, {v(T+j)}' for j in range(4)]
        side, prep = prep[:per], prep[per:]
        if k == 20:
            side += prep; prep = []
        for x in merge(rest, side, 2): A(x)
        if ss == 7:
            for j in range(4):
                A(f'  v_mfma_f32_16x16x32_bf16 {v(ACC+4*i,4)}, {v(AJ+4*j,4)}, {v(BV+16*i+4*j,4)}, {v(ACC+4*i,4)}')
    A(f'  s_mov_b32 {s(sCUR)}, {s(sNXT)}')
    A(f'  s_sub_u32 {s(sCNT)}, {s(sCNT)}, 1')
    A(f'  s_cmp_lg_u32 {s(sCNT)}, 0')
    A('  s_cbranch_scc1 L_v')

    A(f'  v_mov_b32 {v(X1)}, {v(LS)}')
    A(f'  v_permlane32_swap_b32 {v(LS)}, {v(X1)}')
    A(f'  v_add_f32 {v(LS)}, {v(LS)}, {v(X1)}')
    A(f'  v_mov_b32 {v(X1)}, {v(LS)}')
    A(f'  v_permlane16_swap_b32 {v(LS)}, {v(X1)}')
    A(f'  v_add_f32 {v(LS)}, {v(LS)}, {v(X1)}')
    A(f'  v_bfe_u32 {v(X0)}, v0, 2, 2')
    A(f'  v_lshlrev_b32 {v(X0)}, 3, {v(X0)}')
    A(f'  s_lshl_b32 {s(sT)}, s3, 5')
    A(f'  v_add_u32 {v(X0)}, {s(sT)}, {v(X0)}')
    A(f'  ds_write_b64 {v(X0)}, {v(NB,2)} offset:{LDS_ST}')
    A(f'  s_mul_i32 {s(sT)}, s3, 3072')
    A(f'  v_lshl_add_u32 {v(X0)}, v0, 4, {s(sT)}')
    for i in range(3):
        A(f'  ds_write_b128 {v(X0)}, {v(ACC+4*i,4)} offset:{LDS_ACC + 1024*i}')
    A('  s_waitcnt lgkmcnt(0)')
    A('  s_barrier')
    A('  s_cmp_ge_u32 s3, 3')
    A('  s_cbranch_scc1 L_fin')
    ST = base; AC = base + 2 * W
    AC = (AC + 3) // 4 * 4
    assert AC + 4 * W <= nv
    A(f'  v_lshrrev_b32 {v(X0)}, 1, {v(VBP)}')
    for w in range(W):
        A(f'  ds_read_b64 {v(ST+2*w,2)}, {v(X0)} offset:{LDS_ST + 32*w}')
    A(f'  s_lshl_b32 {s(sT)}, s3, 10')
    A(f'  v_lshl_add_u32 {v(X0)}, v0, 4, {s(sT)}')
    for w in range(W):
        A(f'  ds_read_b128 {v(AC+4*w,4)}, {v(X0)} offset:{LDS_ACC + 3072*w}')
    A('  s_waitcnt lgkmcnt(0)')
    A(f'  v_min_f32 {v(X0)}, {v(ST)}, {v(ST+2)}')
    for w in range(2, W): A(f'  v_min_f32 {v(X0)}, {v(X0)}, {v(ST+2*w)}')
    for w in range(W): A(f'  v_sub_f32 {v(ST+2*w)}, {v(X0)}, {v(ST+2*w)}')
    for w in range(W): A(f'  v_exp_f32 {v(ST+2*w)}, {v(ST+2*w)}')
    A(f'  v_mul_f32 {v(X1)}, {v(ST)}, {v(ST+1)}')
    for w in range(1, W): A(f'  v_fma_f32 {v(X1)}, {v(ST+2*w)}, {v(ST+2*w+1)}, {v(X1)}')
    A(f'  v_rcp_f32 {v(X1)}, {v(X1)}')
    for j in range(4):
        A(f'  v_mul_f32 {v(T+j)}, {v(ST)}, {v(AC+j)}')
        for w in range(1, W): A(f'  v_fma_f32 {v(T+j)}, {v(ST+2*w)}, {v(AC+4*w+j)}, {v(T+j)}')
    for j in range(4): A(f'  v_mul_f32 {v(T+j)}, {v(X1)}, {v(T+j)}')
    A(f'  v_cvt_pk_bf16_f32 {v(T)}, {v(T)}, {v(T+1)}')
    A(f'  v_cvt_pk_bf16_f32 {v(T+1)}, {v(T+2)}, {v(T+3)}')
    A(f'  v_mul_u32_u24 {v(X0)}, 24, {v(VBP)}')
    A(f'  v_and_b32 {v(X1)}, 15, v0')
    A(f'  v_lshl_add_u32 {v(X0)}, {v(X1)}, 3, {v(X0)}')
    A(f'  s_mul_i32 {s(sT)}, s2, 1536')
    A(f'  s_lshl_b32 {s(sT+1)}, s3, 7')
    A(f'  s_add_u32 {s(sT)}, {s(sT)}, {s(sT+1)}')
    A(f'  buffer_store_dwordx2 {v(T,2)}, {v(X0)}, {s(SO,4)}, {s(sT)} offen')
    A('L_fin:')
    if stamps:
        A('  s_waitcnt vmcnt(0)')
        A('  s_memrealtime s[82:83]')
        A('  s_getreg_b32 s86, hwreg(HW_REG_XCC_ID)')
        A(f'  s_mul_i32 s87, s2, {W}')
        A('  s_add_u32 s87, s87, s3')
        A('  s_lshl_b32 s87, s87, 4')
        A('  s_waitcnt lgkmcnt(0)')
        A(f'  v_mov_b32 {v(RING)}, s80')
        A(f'  v_mov_b32 {v(RING+1)}, s82')
        A(f'  v_mov_b32 {v(RING+2)}, s86')
        A(f'  v_mov_b32 {v(RING+3)}, s86')
        A(f'  v_mov_b32 {v(X0)}, s87')
        A('  s_mov_b64 exec, 1')
        A(f'  global_store_dwordx4 {v(X0)}, {v(RING,4)}, s[84:85]')
    A('L_end:')
    A('  s_endpgm')
    body = pad(L)
    nva = (nv + 7) // 8 * 8
    out = HDR + f'; @launch grid=(256,1,1) block=({64*W},1,1) lds={lds}\n'
    out += '.amdgcn_target "amdgcn-amd-amdhsa--gfx950"\n.text\n'
    out += f'.globl {NAME}\n.p2align 8\n.type {NAME},@function\n'
    out += '\n'.join(body) + '\n'
    out += f'''.section .rodata,"a"
.p2align 6
.amdhsa_kernel {NAME}
  .amdhsa_next_free_vgpr {nva}
  .amdhsa_next_free_sgpr 96
  .amdhsa_accum_offset {nva}
  .amdhsa_group_segment_fixed_size 0
  .amdhsa_kernarg_size 80
  .amdhsa_user_sgpr_count 2
  .amdhsa_user_sgpr_kernarg_segment_ptr 1
  .amdhsa_system_sgpr_workgroup_id_x 1
  .amdhsa_float_denorm_mode_32 3
.end_amdhsa_kernel
'''
    return out

if __name__ == '__main__':
    kw = {}
    for x in sys.argv[2:]:
        k, val = x.split('=')
        kw[k] = int(val) if val.lstrip('-').isdigit() else val
    open(sys.argv[1], 'w').write(gen(**kw))
```

```python
import sys, os
sys.path.insert(0, os.path.dirname(os.path.abspath(__file__)))
from asmlib import pad
NAME = 'standalone__kv_cache_quant_int4_int2_kv_with_per_channel_or_per_token_scales__sampling_kernel'
NAME2 = 'merge_partials_kernel'
HEAD = 4096 * 768
TOTAL = 256 * HEAD
REC = 3328
WSOFF = 1 << 20
HDR = open(os.path.join(os.path.dirname(os.path.abspath(__file__)), 'header.txt')).read()

class Alloc:
    def __init__(self, start): self.n = start
    def __call__(self, k, align=1):
        self.n = (self.n + align - 1) // align * align
        r = self.n; self.n += k
        return r

def v(r, k=1): return f'v{r}' if k == 1 else f'v[{r}:{r+k-1}]'
def s(r, k=1): return f's{r}' if k == 1 else f's[{r}:{r+k-1}]'

def merge(main, side, every):
    out = []; side = list(side); c = 0
    for m in main:
        out.append(m); c += 1
        if side and c % every == 0: out.append(side.pop(0))
    return out + side

def combine(A, n, ST, AC, npiece, X0, X1, OUT):
    A(f'  v_min_f32 {v(X0)}, {v(ST)}, {v(ST+2)}')
    for w in range(2, n): A(f'  v_min_f32 {v(X0)}, {v(X0)}, {v(ST+2*w)}')
    for w in range(n): A(f'  v_sub_f32 {v(ST+2*w)}, {v(X0)}, {v(ST+2*w)}')
    for w in range(n): A(f'  v_exp_f32 {v(ST+2*w)}, {v(ST+2*w)}')
    A(f'  v_mul_f32 {v(X1)}, {v(ST)}, {v(ST+1)}')
    for w in range(1, n): A(f'  v_fma_f32 {v(X1)}, {v(ST+2*w)}, {v(ST+2*w+1)}, {v(X1)}')
    for i in range(npiece):
        for j in range(4):
            A(f'  v_mul_f32 {v(OUT+4*i+j)}, {v(ST)}, {v(AC+4*i+j)}')
            for w in range(1, n):
                A(f'  v_fma_f32 {v(OUT+4*i+j)}, {v(ST+2*w)}, {v(AC+4*(npiece*w+i)+j)}, {v(OUT+4*i+j)}')

def gen(D=6, R=8, W=4, tokmap='4s', stamps=False, sf='nt', stf='-', ldf='-', DV=0):
    DK = D; DV = DV or D
    assert 24 % R == 0 and DK <= R and DV <= R and DV >= DK
    fl = lambda x: x.replace('-', '').replace('+', ' ')
    sf, stf, ldf = fl(sf), fl(stf), fl(ldf)
    NU = 128 // W
    L = []
    A = L.append
    va = Alloc(1)
    RING = va(4 * R, 4); VOFF = va(8); VOFFV = va(8)
    VKS = va(1); VQ = va(1); VVS = va(1); VLDS = va(1); VBP = va(1); VFL = va(1); VST = va(1)
    T = va(4, 2); P = va(2); ZN = va(1); SN = va(1); ZC = va(1); SC = va(1); ZS = va(2, 2)
    LG = va(4, 4); ACC = va(12, 4); M = va(1); NB = va(2, 2); LS = NB + 1
    X0 = va(2, 2); X1 = X0 + 1; AL = va(1); ALQ = va(1); E = va(8); PP = va(4)
    base = va.n
    QB = va(6, 4); QN = va(6, 2); KSR = va(6, 2); KZR = va(6, 2); KS = va(12, 2); KZ = va(12, 2); KA = va(6, 4); SD = va(4, 4); S = va(2, 2)
    kend = va.n
    va.n = base
    AJ = va(16, 4); TV = va(12, 2); BV = va(48, 4)
    nv = max(va.n, kend)
    SK, SV, SI, SKS, SKZ, SVS, SVZ, SQ, SW_ = 8, 12, 16, 20, 24, 28, 32, 36, 40
    PT = 44
    sCUR, sNXT, sKSO, sVSO, sF, sMSK, sL2E, sFIRST, sSCL, sT = 60, 61, 62, 63, 64, 65, 66, 67, 68, 70
    sMJ = 72
    sB1, sB2, sBA, sHC, sHN, sUN = 88, 89, 90, 93, 94, 95
    SEG = W * 3072 + W * 32
    LDS_ACC = 32768
    lds = 87040 if W == 4 else LDS_ACC + 3 * SEG
    assert LDS_ACC + 3 * SEG <= lds

    A(f'{NAME}:')
    A('  s_cmp_ge_u32 s2, 256')
    A('  s_cbranch_scc1 L_end')
    A(f'  s_load_dwordx16 {s(PT,16)}, s[0:1], 0')
    A('  s_load_dwordx2 s[84:85], s[0:1], 72')
    if stamps:
        A('  s_memrealtime s[80:81]')
    A('  v_lshrrev_b32 v1, 6, v0')
    A('  v_and_b32 v0, 63, v0')
    A('  v_readfirstlane_b32 s3, v1')
    cls, a, g, n = T, T + 1, T + 2, T + 3
    A(f'  v_and_b32 {v(cls)}, 3, v0')
    A(f'  v_bfe_u32 {v(a)}, v0, 2, 2')
    A(f'  v_lshrrev_b32 {v(g)}, 4, v0')
    A(f'  v_and_b32 {v(n)}, 15, v0')
    astr, sstr = (1, 4) if tokmap == '4s' else (8, 1)
    A(f'  v_lshlrev_b32 {v(X0)}, 4, {v(cls)}')
    A(f'  v_lshl_add_u32 {v(X0)}, {v(g)}, 6, {v(X0)}')
    A(f'  v_lshrrev_b32 {v(VKS)}, 1, {v(X0)}')
    A(f'  v_mul_u32_u24 {v(X1)}, {768 * astr}, {v(a)}')
    A(f'  v_add_u32 {v(VOFF)}, {v(X0)}, {v(X1)}')
    A(f'  v_mul_u32_u24 {v(X1)}, {768 * astr}, {v(g)}')
    A(f'  v_lshl_add_u32 {v(VOFFV)}, {v(n)}, 4, {v(X1)}')
    for k in range(1, 8):
        A(f'  v_add_u32 {v(VOFF+k)}, {768 * sstr * k}, {v(VOFF)}')
        A(f'  v_add_u32 {v(VOFFV+k)}, {768 * sstr * k}, {v(VOFFV)}')
    A(f'  v_and_b32 {v(X1)}, 7, v0')
    A(f'  v_mul_u32_u24 {v(X1)}, {2 * sstr}, {v(X1)}')
    A(f'  v_mul_u32_u24 {v(VVS)}, {2 * astr}, {v(g)}')
    A(f'  v_add_u32 {v(VVS)}, {v(VVS)}, {v(X1)}')
    A(f'  v_mul_u32_u24 {v(X1)}, 384, {v(a)}')
    A(f'  v_add_u32 {v(VQ)}, {v(X1)}, {v(VKS)}')
    A(f'  v_lshlrev_b32 {v(VBP)}, 4, {v(g)}')
    A(f'  v_lshrrev_b32 {v(VLDS)}, 2, v0')
    A(f'  v_lshlrev_b32 {v(VLDS)}, 4, {v(VLDS)}')
    A(f'  s_mul_i32 {s(sT)}, s3, {NU * 256}')
    A(f'  v_add_u32 {v(VLDS)}, {s(sT)}, {v(VLDS)}')
    A(f'  s_mul_i32 {s(sT)}, s3, 3072')
    A(f'  s_add_u32 {s(sT)}, {s(sT)}, {LDS_ACC}')
    A(f'  v_lshl_add_u32 {v(VFL)}, v0, 4, {s(sT)}')
    A(f'  s_lshl_b32 {s(sT)}, s3, 5')
    A(f'  s_add_u32 {s(sT)}, {s(sT)}, {LDS_ACC + W * 3072}')
    A(f'  v_lshl_add_u32 {v(VST)}, {v(a)}, 3, {s(sT)}')
    A(f'  v_mov_b32 {v(ZN)}, 0')
    A(f'  v_mov_b32 {v(SN)}, 0')
    A(f'  s_mov_b32 {s(sMSK)}, 0xffff0000')
    A(f'  s_mov_b32 {s(sL2E)}, 0x3fb8aa3b')
    A(f'  s_mov_b32 {s(sSCL)}, 0x3d93cd3a')
    A(f'  s_mov_b32 {s(sSCL+1)}, 0x3d93cd3a')
    for j in range(4):
        A(f'  s_mov_b32 {s(sMJ+2*j)}, {hex(0x11111111 << j)}')
        A(f'  s_mov_b32 {s(sMJ+2*j+1)}, {hex(0x11111111 << j)}')
    A(f'  s_mov_b32 {s(sT+1)}, 0xaaaaaaab')
    def start(dst, j, plus):
        A(f'  s_lshl_b32 {s(sT)}, s2, 7')
        A(f'  s_add_u32 {s(sT)}, {s(sT)}, {128 * (256 * j + plus) + 1}')
        A(f'  s_mul_hi_u32 {s(dst)}, {s(sT)}, {s(sT+1)}')
        A(f'  s_lshr_b32 {s(dst)}, {s(dst)}, 1')
    start(sBA, 0, 0); start(sB1, 0, 1)
    A(f'  s_sub_u32 {s(sB1)}, {s(sB1)}, {s(sBA)}')
    start(sBA + 1, 1, 0); start(sB2, 1, 1)
    A(f'  s_sub_u32 {s(sB2)}, {s(sB2)}, {s(sBA+1)}')
    A(f'  s_add_u32 {s(sB2)}, {s(sB2)}, {s(sB1)}')
    start(sBA + 2, 2, 0)
    A(f'  s_sub_u32 {s(sBA+1)}, {s(sBA+1)}, {s(sB1)}')
    A(f'  s_sub_u32 {s(sBA+2)}, {s(sBA+2)}, {s(sB2)}')
    A(f'  s_mov_b32 {s(sF)}, s3')
    A(f'  s_add_u32 {s(sUN)}, {s(sBA)}, s3')
    A(f'  s_mul_i32 {s(sCUR)}, {s(sUN)}, 24576')
    A(f'  s_mov_b32 {s(sFIRST)}, {s(sCUR)}')
    A(f'  s_lshr_b32 {s(sT)}, {s(sUN)}, 1')
    A(f'  s_mul_i32 {s(sKSO)}, {s(sT)}, 384')
    A(f'  s_lshl_b32 {s(sVSO)}, {s(sUN)}, 6')
    A(f'  s_lshr_b32 {s(sHC)}, {s(sUN)}, 7')
    A(f'  s_mul_i32 {s(sT)}, {s(sHC)}, 1536')
    A('  s_waitcnt lgkmcnt(0)')
    for srd, p, nb in ((SQ, PT, 256 * 1536), (SK, PT + 2, TOTAL), (SI, PT + 2, TOTAL), (SV, PT + 4, TOTAL), (SKS, PT + 6, 256 * 24576),
                       (SKZ, PT + 8, 256 * 24576), (SVS, PT + 10, 256 * 8192), (SVZ, PT + 12, 256 * 8192), (SW_, 84, WSOFF + 768 * REC)):
        A(f'  s_mov_b32 {s(srd)}, {s(p)}')
        A(f'  s_and_b32 {s(srd+1)}, {s(p+1)}, 0xffff')
        A(f'  s_mov_b32 {s(srd+2)}, {nb}')
        A(f'  s_mov_b32 {s(srd+3)}, 0x20000')
    def slot(k): return RING + 4 * (k % R)
    def main_load(k, srd, so):
        ss, i = divmod(k % 24, 3)
        return f'  buffer_load_dwordx4 {v(slot(k),4)}, {v(VOFF+ss)}, {s(srd,4)}, {s(so)} offen offset:{256*i} nt'
    def kscale_loads():
        r = []
        for i in range(3):
            r.append(f'  buffer_load_dwordx2 {v(KSR+2*i,2)}, {v(VKS)}, {s(SKS,4)}, {s(sKSO)} offen offset:{128*i} {sf}')
            r.append(f'  buffer_load_dwordx2 {v(KZR+2*i,2)}, {v(VKS)}, {s(SKZ,4)}, {s(sKSO)} offen offset:{128*i} {sf}')
        return r
    def vscale_loads():
        return [f'  buffer_load_short_d16_hi {v(ZN)}, {v(VVS)}, {s(SVZ,4)}, {s(sVSO)} offen {sf}',
                f'  buffer_load_short_d16_hi {v(SN)}, {v(VVS)}, {s(SVS,4)}, {s(sVSO)} offen {sf}']
    def q_loads():
        return [f'  buffer_load_dwordx2 {v(QN+2*i,2)}, {v(VQ)}, {s(SQ,4)}, {s(sT)} offen offset:{128*i} {sf}' for i in range(3)]
    def next_unit():
        A(f'  s_add_u32 {s(sF)}, {s(sF)}, {W}')
        A(f'  s_cmp_ge_u32 {s(sF)}, {s(sB1)}')
        A(f'  s_cselect_b32 {s(sT)}, {s(sBA+1)}, {s(sBA)}')
        A(f'  s_cmp_ge_u32 {s(sF)}, {s(sB2)}')
        A(f'  s_cselect_b32 {s(sT)}, {s(sBA+2)}, {s(sT)}')
        A(f'  s_add_u32 {s(sUN)}, {s(sF)}, {s(sT)}')
        A(f'  s_mul_i32 {s(sNXT)}, {s(sUN)}, 24576')
        A(f'  s_lshr_b32 {s(sHN)}, {s(sUN)}, 7')
    def reset_state():
        for k in range(12): A(f'  v_mov_b32 {v(ACC+k)}, 0')
        A(f'  v_mov_b32 {v(M)}, 0xff800000')
        A(f'  v_mov_b32 {v(NB)}, 0x7f800000')
        A(f'  v_mov_b32 {v(LS)}, 0')
    for x in kscale_loads(): A(x)
    for x in q_loads(): A(x)
    for x in vscale_loads(): A(x)
    for k in range(DK): A(main_load(k, SK, sCUR))
    reset_state()

    PSMALL = 3
    def waits(nsmall, D):
        assert PSMALL < 24 - D
        return [D - 1 + (nsmall if k - D <= PSMALL < k else 0) for k in range(24)]
    def dequant(X, src, z, sc, zmod, smod):
        r = [f'  v_cvt_f32_i32 {v(X+j)}, {v(src+j)}' for j in range(4)]
        r2 = [f'  v_pk_add_f32 {v(X,2)}, {v(X,2)}, {z[0]} {zmod}neg_lo:[0,1] neg_hi:[0,1]',
              f'  v_pk_add_f32 {v(X+2,2)}, {v(X+2,2)}, {z[1]} {zmod}neg_lo:[0,1] neg_hi:[0,1]',
              f'  v_cvt_pk_bf16_f32 {v(P)}, {v(X)}, {v(X+1)}',
              f'  v_cvt_pk_bf16_f32 {v(P+1)}, {v(X+2)}, {v(X+3)}',
              f'  v_lshlrev_b32 {v(X)}, 16, {v(P)}',
              f'  v_and_b32 {v(X+1)}, {s(sMSK)}, {v(P)}',
              f'  v_lshlrev_b32 {v(X+2)}, 16, {v(P+1)}',
              f'  v_and_b32 {v(X+3)}, {s(sMSK)}, {v(P+1)}',
              f'  v_pk_mul_f32 {v(X,2)}, {v(X,2)}, {sc[0]} {smod}'.rstrip(),
              f'  v_pk_mul_f32 {v(X+2,2)}, {v(X+2,2)}, {sc[1]} {smod}'.rstrip()]
        return r, r2
    def kreduce(ss):
        d = S + (ss & 1)
        q = lambda j: f'quad_perm:[{j},{j},{j},{j}] row_mask:0xf bank_mask:0xf'
        r = [f'  v_mov_b32_dpp {v(X0)}, {v(SD)} {q(0)}',
             f'  v_mov_b32_dpp {v(X1)}, {v(SD+2)} {q(2)}',
             f'  v_add_f32_dpp {v(X0)}, {v(SD+1)}, {v(X0)} {q(1)}',
             f'  v_add_f32_dpp {v(X1)}, {v(SD+3)}, {v(X1)} {q(3)}',
             f'  v_add_f32 {v(d)}, {v(X0)}, {v(X1)}']
        if ss & 1:
            r += [f'  v_cvt_pk_bf16_f32 {v(X0)}, {v(S)}, {v(S+1)}',
                  f'  v_lshlrev_b32 {v(S)}, 16, {v(X0)}',
                  f'  v_and_b32 {v(S+1)}, {s(sMSK)}, {v(X0)}',
                  f'  v_pk_mul_f32 {v(S,2)}, {v(S,2)}, {s(sSCL,2)}',
                  f'  v_cvt_pk_bf16_f32 {v(LG+(ss>>1))}, {v(S)}, {v(S+1)}']
        return r

    D = DK; SW = 24 - D
    A('L_k:')
    next_unit()
    wk = waits(6, D)
    for k in range(24):
        ss, i = divmod(k, 3)
        if k == SW:
            A(f'  s_cmp_lt_u32 {s(sF)}, 128')
            A('  s_cbranch_scc1 L_k_keep')
            A(f'  s_mov_b32 {s(sNXT)}, {s(sFIRST)}')
            A(f'  s_mov_b32 {s(SI)}, {s(SV)}')
            A(f'  s_mov_b32 {s(SI+1)}, {s(SV+1)}')
            for j in range(8): A(f'  v_mov_b32 {v(VOFF+j)}, {v(VOFFV+j)}')
            A('L_k_keep:')
        ld = main_load(k + D, SK, sCUR) if k < SW else main_load(k + D, SI, sNXT)
        A(f'  s_waitcnt vmcnt({wk[k]})')
        if D < R: A(ld)
        c, rest = dequant(T, slot(k), (v(KZ+4*i,2), v(KZ+4*i+2,2)), (v(KS+4*i,2), v(KS+4*i+2,2)), '', '')
        for x in c: A(x)
        if D == R: A(ld)
        if k == PSMALL:
            A(f'  s_cmp_eq_u32 {s(sHN)}, {s(sHC)}')
            A('  s_cbranch_scc1 L_k_sameq')
            A(f'  s_mul_i32 {s(sT)}, {s(sHN)}, 1536')
            for x in q_loads(): A(x)
            A(f'  s_mov_b32 {s(sHC)}, {s(sHN)}')
            A('L_k_sameq:')
            A(f'  s_lshr_b32 {s(sT)}, {s(sUN)}, 1')
            A(f'  s_mul_i32 {s(sKSO)}, {s(sT)}, 384')
            for x in kscale_loads(): A(x)
        if ss == 0:
            for raw, dst in ((KZR, KZ), (KSR, KS)):
                for h in range(2):
                    A(f'  v_lshlrev_b32 {v(dst+4*i+2*h)}, 16, {v(raw+2*i+h)}')
                    A(f'  v_and_b32 {v(dst+4*i+2*h+1)}, {s(sMSK)}, {v(raw+2*i+h)}')
            for h in range(2): A(f'  v_mov_b32 {v(QB+2*i+h)}, {v(QN+2*i+h)}')
        rest += [f'  v_cvt_pk_bf16_f32 {v(KA+2*i)}, {v(T)}, {v(T+1)}',
                 f'  v_cvt_pk_bf16_f32 {v(KA+2*i+1)}, {v(T+2)}, {v(T+3)}']
        if i == 0 and ss > 0:
            r = kreduce(ss - 1)
            rest = rest[:2] + merge(rest[2:], r[:5], 2)
            pend = r[5:]
        elif i == 1 and ss > 0:
            rest = merge(rest, pend, 2)
        for x in rest: A(x)
        if i == 1: A(f'  v_mfma_f32_16x16x32_bf16 {v(SD,4)}, {v(KA,4)}, {v(QB,4)}, 0')
        if i == 2: A(f'  v_mfma_f32_16x16x16_bf16 {v(SD,4)}, {v(KA+4,2)}, {v(QB+4,2)}, {v(SD,4)}')
    A(f'  s_mov_b32 {s(sCUR)}, {s(sNXT)}')
    for x in kreduce(7): A(x)
    A(f'  ds_write_b128 {v(VLDS)}, {v(LG,4)}')
    A(f'  v_add_u32 {v(VLDS)}, 256, {v(VLDS)}')
    A(f'  s_cmp_lt_u32 {s(sF)}, 128')
    A('  s_cbranch_scc1 L_k')

    def flush():
        A(f'  v_mov_b32 {v(X1)}, {v(LS)}')
        A(f'  v_permlane32_swap_b32 {v(LS)}, {v(X1)}')
        A(f'  v_add_f32 {v(LS)}, {v(LS)}, {v(X1)}')
        A(f'  v_mov_b32 {v(X1)}, {v(LS)}')
        A(f'  v_permlane16_swap_b32 {v(LS)}, {v(X1)}')
        A(f'  v_add_f32 {v(LS)}, {v(LS)}, {v(X1)}')
        A(f'  ds_write_b64 {v(VST)}, {v(NB,2)}')
        for i in range(3):
            A(f'  ds_write_b128 {v(VFL)}, {v(ACC+4*i,4)} offset:{1024*i}')
        A('  s_waitcnt lgkmcnt(0)')

    D = DV; SW = 24 - D
    for k in range(DK, DV): A(main_load(k, SV, sCUR))
    A(f'  v_subrev_u32 {v(VLDS)}, {NU * 256}, {v(VLDS)}')
    A(f'  s_mov_b32 {s(sF)}, s3')
    A(f'  s_add_u32 {s(sT)}, {s(sBA)}, s3')
    A(f'  s_lshr_b32 {s(sHC)}, {s(sT)}, 7')
    A('  s_waitcnt lgkmcnt(0)')
    A(f'  ds_read_b128 {v(LG,4)}, {v(VLDS)}')
    A('L_v:')
    next_unit()
    A(f'  s_cmp_lt_u32 {s(sF)}, 128')
    A(f'  s_cselect_b32 {s(sNXT)}, {s(sNXT)}, {TOTAL}')
    prep = ['  s_waitcnt lgkmcnt(0)']
    for k in range(4):
        prep += [f'  v_lshlrev_b32 {v(E+2*k)}, 16, {v(LG+k)}', f'  v_and_b32 {v(E+2*k+1)}, {s(sMSK)}, {v(LG+k)}']
    prep += [f'  v_add_u32 {v(VLDS)}, 256, {v(VLDS)}',
             f'  v_max3_f32 {v(X0)}, {v(E)}, {v(E+1)}, {v(E+2)}',
             f'  ds_read_b128 {v(LG,4)}, {v(VLDS)}',
             f'  v_max3_f32 {v(X1)}, {v(E+3)}, {v(E+4)}, {v(E+5)}',
             f'  v_max3_f32 {v(X0)}, {v(X0)}, {v(E+6)}, {v(E+7)}',
             f'  v_max3_f32 {v(X0)}, {v(X0)}, {v(X1)}, {v(M)}',
             f'  v_mov_b32 {v(X1)}, {v(X0)}',
             f'  v_permlane32_swap_b32 {v(X0)}, {v(X1)}',
             f'  v_max_f32 {v(X0)}, {v(X0)}, {v(X1)}',
             f'  v_mov_b32 {v(X1)}, {v(X0)}',
             f'  v_permlane16_swap_b32 {v(X0)}, {v(X1)}',
             f'  v_max_f32 {v(M)}, {v(X0)}, {v(X1)}',
             f'  v_mul_f32 {v(X0)}, {s(sL2E)}, {v(M)}',
             f'  v_add_f32 {v(AL)}, {v(X0)}, {v(NB)}',
             f'  v_sub_f32 {v(NB)}, 0, {v(X0)}',
             f'  v_exp_f32 {v(AL)}, -{v(AL)}',
             f'  ds_bpermute_b32 {v(ALQ)}, {v(VBP)}, {v(AL)}']
    for k in range(8):
        prep += [f'  v_fma_f32 {v(E+k)}, {v(E+k)}, {s(sL2E)}, {v(NB)}', f'  v_exp_f32 {v(E+k)}, {v(E+k)}']
    prep += [f'  v_add_f32 {v(X0)}, {v(E)}, {v(E+1)}', f'  v_add_f32 {v(X1)}, {v(E+2)}, {v(E+3)}',
             f'  v_add_f32 {v(X0)}, {v(X0)}, {v(E+4)}', f'  v_add_f32 {v(X1)}, {v(X1)}, {v(E+5)}',
             f'  v_add_f32 {v(X0)}, {v(X0)}, {v(E+6)}', f'  v_add_f32 {v(X1)}, {v(X1)}, {v(E+7)}',
             f'  v_add_f32 {v(X0)}, {v(X0)}, {v(X1)}',
             f'  v_fma_f32 {v(LS)}, {v(LS)}, {v(AL)}, {v(X0)}']
    for k in range(4):
        prep.append(f'  v_cvt_pk_bf16_f32 {v(PP+k)}, {v(E+2*k)}, {v(E+2*k+1)}')
    for j in range(4):
        for k in range(4):
            prep.append(f'  v_cndmask_b32 {v(AJ+4*j+k)}, 0, {v(PP+k)}, {s(sMJ+2*j,2)}')
    prep.append('  s_waitcnt lgkmcnt(0)')
    for k in range(12):
        prep.append(f'  v_mul_f32 {v(ACC+k)}, {v(ALQ)}, {v(ACC+k)}')
    per = 5
    wv = waits(2, D)
    for k in range(24):
        ss, i = divmod(k, 3)
        ld = main_load(k + D, SV, sCUR if k < SW else sNXT)
        A(f'  s_waitcnt vmcnt({wv[k]})')
        if D < R: A(ld)
        if k == 0:
            A(f'  v_mov_b32 {v(ZC)}, {v(ZN)}')
            A(f'  v_mov_b32 {v(SC)}, {v(SN)}')
        X = TV + 4 * i if ss % 2 == 0 else T
        c, rest = dequant(X, slot(k), (v(ZS,2), v(ZS,2)), (v(ZS,2), v(ZS,2)), 'op_sel_hi:[1,0] ', 'op_sel:[0,1]')
        for x in c: A(x)
        if D == R: A(ld)
        if k == PSMALL:
            A(f'  s_lshl_b32 {s(sVSO)}, {s(sUN)}, 6')
            for x in vscale_loads(): A(x)
        if i == 0:
            A(f'  v_mov_b32_dpp {v(ZS)}, {v(ZC)} row_newbcast:{ss} row_mask:0xf bank_mask:0xf')
            A(f'  v_mov_b32_dpp {v(ZS+1)}, {v(SC)} row_newbcast:{ss} row_mask:0xf bank_mask:0xf')
        if ss % 2 == 1:
            rest += [f'  v_cvt_pk_bf16_f32 {v(BV+16*i+4*j+(ss>>1))}, {v(TV+4*i+j)}, {v(T+j)}' for j in range(4)]
        side, prep = prep[:per], prep[per:]
        if k == 20:
            side += prep; prep = []
        for x in merge(rest, side, 2): A(x)
        if ss == 7:
            for j in range(4):
                A(f'  v_mfma_f32_16x16x32_bf16 {v(ACC+4*i,4)}, {v(AJ+4*j,4)}, {v(BV+16*i+4*j,4)}, {v(ACC+4*i,4)}')
    A(f'  s_mov_b32 {s(sCUR)}, {s(sNXT)}')
    A(f'  s_cmp_ge_u32 {s(sF)}, 128')
    A('  s_cbranch_scc1 L_v_done')
    A(f'  s_cmp_eq_u32 {s(sHN)}, {s(sHC)}')
    A('  s_cbranch_scc1 L_v')
    A(f'  s_mov_b32 {s(sHC)}, {s(sHN)}')
    flush()
    A(f'  v_add_u32 {v(VFL)}, {SEG}, {v(VFL)}')
    A(f'  v_add_u32 {v(VST)}, {SEG}, {v(VST)}')
    reset_state()
    A('  s_branch L_v')
    A('L_v_done:')
    flush()

    A('  s_barrier')
    A('  s_cmp_ge_u32 s3, 3')
    A('  s_cbranch_scc1 L_fin')
    ST = RING; AC = base
    AC = (AC + 3) // 4 * 4
    nv = max(nv, AC + 12 * W)
    assert 2 * W <= 4 * R
    A(f'  s_mul_i32 {s(sT)}, s3, {SEG}')
    A(f'  s_add_u32 {s(sT)}, {s(sT)}, {LDS_ACC}')
    A(f'  v_lshrrev_b32 {v(AL)}, 1, {v(VBP)}')
    A(f'  v_add_u32 {v(X0)}, {s(sT)}, {v(AL)}')
    for w in range(W):
        A(f'  ds_read_b64 {v(ST+2*w,2)}, {v(X0)} offset:{W*3072 + 32*w}')
    A(f'  v_lshl_add_u32 {v(X0)}, v0, 4, {s(sT)}')
    for w in range(W):
        for i in range(3):
            A(f'  ds_read_b128 {v(AC+12*w+4*i,4)}, {v(X0)} offset:{3072*w + 1024*i}')
    A(f'  s_lshl_b32 {s(sT)}, s3, 8')
    A(f'  s_add_u32 {s(sT)}, {s(sT)}, s2')
    A(f'  s_mul_i32 {s(sT)}, {s(sT)}, {REC}')
    A(f'  s_add_u32 {s(sT)}, {s(sT)}, {WSOFF}')
    A(f'  v_lshlrev_b32 {v(ALQ)}, 4, v0')
    A('  s_waitcnt lgkmcnt(0)')
    combine(A, W, ST, AC, 3, X0, X1, ACC)
    for i in range(3):
        A(f'  buffer_store_dwordx4 {v(ACC+4*i,4)}, {v(ALQ)}, {s(SW_,4)}, {s(sT)} offen offset:{1024*i} {stf}')
    A(f'  buffer_store_dwordx2 {v(X0,2)}, {v(AL)}, {s(SW_,4)}, {s(sT)} offen offset:3072 {stf}')
    A('L_fin:')
    if stamps:
        A('  s_waitcnt vmcnt(0)')
        A('  s_memrealtime s[82:83]')
        A('  s_getreg_b32 s86, hwreg(HW_REG_XCC_ID)')
        A(f'  s_mul_i32 s87, s2, {W}')
        A('  s_add_u32 s87, s87, s3')
        A('  s_lshl_b32 s87, s87, 4')
        A('  s_waitcnt lgkmcnt(0)')
        A(f'  v_mov_b32 {v(RING)}, s80')
        A(f'  v_mov_b32 {v(RING+1)}, s82')
        A(f'  v_mov_b32 {v(RING+2)}, s86')
        A(f'  v_mov_b32 {v(RING+3)}, s86')
        A(f'  v_mov_b32 {v(X0)}, s87')
        A('  s_mov_b64 exec, 1')
        A(f'  global_store_dwordx4 {v(X0)}, {v(RING,4)}, s[84:85]')
    A('L_end:')
    A('  s_endpgm')
    body = pad(L)

    L = []
    A = L.append
    A(f'{NAME2}:')
    A('  s_cmp_ge_u32 s2, 256')
    A('  s_cbranch_scc1 L2_end')
    A('  s_load_dwordx2 s[4:5], s[0:1], 56')
    A('  s_load_dwordx2 s[8:9], s[0:1], 72')
    A('  v_lshlrev_b32 v1, 4, v0')
    A('  v_lshrrev_b32 v2, 4, v0')
    A('  v_lshlrev_b32 v3, 3, v2')
    A('  v_mul_u32_u24 v2, 384, v2')
    A('  v_and_b32 v4, 15, v0')
    A('  v_lshl_add_u32 v2, v4, 3, v2')
    A(f'  s_mul_i32 s12, s2, {3 * REC}')
    A(f'  s_add_u32 s12, s12, {WSOFF}')
    A(f'  s_add_u32 s13, s12, {REC}')
    A(f'  s_add_u32 s14, s13, {REC}')
    A('  s_mul_i32 s15, s2, 1536')
    A(f'  s_mov_b32 s6, {256 * 1536}')
    A('  s_mov_b32 s7, 0x20000')
    A(f'  s_mov_b32 s10, {WSOFF + 768 * REC}')
    A('  s_mov_b32 s11, 0x20000')
    A('  s_waitcnt lgkmcnt(0)')
    A('  s_and_b32 s5, s5, 0xffff')
    A('  s_and_b32 s9, s9, 0xffff')
    for w in range(3):
        A(f'  buffer_load_dwordx2 {v(8+2*w,2)}, v3, s[8:11], s{12+w} offen offset:3072 {ldf}')
        for i in range(3):
            A(f'  buffer_load_dwordx4 {v(16+12*w+4*i,4)}, v1, s[8:11], s{12+w} offen offset:{1024*i} {ldf}')
    A('  s_waitcnt vmcnt(0)')
    combine(A, 3, 8, 16, 3, 6, 7, 52)
    A('  v_rcp_f32 v7, v7')
    for k in range(12): A(f'  v_mul_f32 {v(52+k)}, v7, {v(52+k)}')
    for i in range(3):
        A(f'  v_cvt_pk_bf16_f32 {v(52+4*i)}, {v(52+4*i)}, {v(53+4*i)}')
        A(f'  v_cvt_pk_bf16_f32 {v(53+4*i)}, {v(54+4*i)}, {v(55+4*i)}')
        A(f'  buffer_store_dwordx2 {v(52+4*i,2)}, v2, s[4:7], s15 offen offset:{128*i}')
    A('L2_end:')
    A('  s_endpgm')
    body2 = pad(L)

    nva = (nv + 7) // 8 * 8
    out = HDR + f'; @launch kernel={NAME} grid=(256,1,1) block=({64*W},1,1) lds={lds}\n'
    out += f'; @launch kernel={NAME2} grid=(256,1,1) block=(64,1,1) lds=0\n'
    out += '.amdgcn_target "amdgcn-amd-amdhsa--gfx950"\n.text\n'
    out += f'.globl {NAME}\n.p2align 8\n.type {NAME},@function\n'
    out += '\n'.join(body) + '\n'
    out += f'.globl {NAME2}\n.p2align 8\n.type {NAME2},@function\n'
    out += '\n'.join(body2) + '\n'
    out += '.section .rodata,"a"\n'
    for nm, nvv, nss in ((NAME, nva, 96), (NAME2, 64, 24)):
        out += f'''.p2align 6
.amdhsa_kernel {nm}
  .amdhsa_next_free_vgpr {nvv}
  .amdhsa_next_free_sgpr {nss}
  .amdhsa_accum_offset {nvv}
  .amdhsa_group_segment_fixed_size 0
  .amdhsa_kernarg_size 80
  .amdhsa_user_sgpr_count 2
  .amdhsa_user_sgpr_kernarg_segment_ptr 1
  .amdhsa_system_sgpr_workgroup_id_x 1
  .amdhsa_float_denorm_mode_32 3
.end_amdhsa_kernel
'''
    return out

if __name__ == '__main__':
    kw = {}
    for x in sys.argv[2:]:
        k, val = x.split('=')
        kw[k] = int(val) if val.lstrip('-').isdigit() else val
    open(sys.argv[1], 'w').write(gen(**kw))
```

```python
import sys, os
sys.path.insert(0, os.path.dirname(os.path.abspath(__file__)))
from asmlib import pad
NAME = 'standalone__kv_cache_quant_int4_int2_kv_with_per_channel_or_per_token_scales__sampling_kernel'
NAME2 = 'merge_partials_kernel'
HEAD = 4096 * 768
TOTAL = 256 * HEAD
REC = 3328
WSOFF = 1 << 20
HDR = open(os.path.join(os.path.dirname(os.path.abspath(__file__)), 'header.txt')).read()

class Alloc:
    def __init__(self, start): self.n = start
    def __call__(self, k, align=1):
        self.n = (self.n + align - 1) // align * align
        r = self.n; self.n += k
        return r

def v(r, k=1): return f'v{r}' if k == 1 else f'v[{r}:{r+k-1}]'
def s(r, k=1): return f's{r}' if k == 1 else f's[{r}:{r+k-1}]'

def merge(main, side, every):
    out = []; side = list(side); c = 0
    for m in main:
        out.append(m); c += 1
        if side and c % every == 0: out.append(side.pop(0))
    return out + side

def combine(A, n, ST, AC, npiece, X0, X1, OUT):
    A(f'  v_min_f32 {v(X0)}, {v(ST)}, {v(ST+2)}')
    for w in range(2, n): A(f'  v_min_f32 {v(X0)}, {v(X0)}, {v(ST+2*w)}')
    for w in range(n): A(f'  v_sub_f32 {v(ST+2*w)}, {v(X0)}, {v(ST+2*w)}')
    for w in range(n): A(f'  v_exp_f32 {v(ST+2*w)}, {v(ST+2*w)}')
    A(f'  v_mul_f32 {v(X1)}, {v(ST)}, {v(ST+1)}')
    for w in range(1, n): A(f'  v_fma_f32 {v(X1)}, {v(ST+2*w)}, {v(ST+2*w+1)}, {v(X1)}')
    for i in range(npiece):
        for j in range(4):
            A(f'  v_mul_f32 {v(OUT+4*i+j)}, {v(ST)}, {v(AC+4*i+j)}')
            for w in range(1, n):
                A(f'  v_fma_f32 {v(OUT+4*i+j)}, {v(ST+2*w)}, {v(AC+4*(npiece*w+i)+j)}, {v(OUT+4*i+j)}')

def gen(D=6, R=8, W=4, tokmap='4s', stamps=False, sf='nt', stf='-', ldf='-', DV=0, tl=0):
    DK = D; DV = DV or D
    assert 24 % R == 0 and DK <= R and DV <= R and DV >= DK
    fl = lambda x: x.replace('-', '').replace('+', ' ')
    sf, stf, ldf = fl(sf), fl(stf), fl(ldf)
    NU = 128 // W
    L = []
    A = L.append
    va = Alloc(1)
    RING = va(4 * R, 4); VOFF = va(8); VOFFV = va(8)
    VKS = va(1); VQ = va(1); VVS = va(1); VLDS = va(1); VBP = va(1); VFL = va(1); VST = va(1)
    T = va(4, 2); P = va(2); ZN = va(1); SN = va(1); ZC = va(1); SC = va(1); ZS = va(2, 2)
    LG = va(4, 4); ACC = va(12, 4); M = va(1); NB = va(2, 2); LS = NB + 1
    X0 = va(2, 2); X1 = X0 + 1; AL = va(1); ALQ = va(1); E = va(8); PP = va(4)
    TL = va(1)
    base = va.n
    QB = va(6, 4); QN = va(6, 2); KSR = va(6, 2); KZR = va(6, 2); KS = va(12, 2); KZ = va(12, 2); KA = va(6, 4); SD = va(4, 4); S = va(2, 2)
    kend = va.n
    va.n = base
    AJ = va(16, 4); TV = va(12, 2); BV = va(48, 4)
    nv = max(va.n, kend)
    SK, SV, SI, SKS, SKZ, SVS, SVZ, SQ, SW_ = 8, 12, 16, 20, 24, 28, 32, 36, 40
    PT = 44
    sCUR, sNXT, sKSO, sVSO, sF, sMSK, sL2E, sFIRST, sSCL, sT = 60, 61, 62, 63, 64, 65, 66, 67, 68, 70
    sMJ = 72
    sB1, sB2, sBA, sHC, sHN, sUN = 88, 89, 90, 93, 94, 95
    SEG = W * 3072 + W * 32
    LDS_ACC = 32768
    lds = 87040 if W == 4 else LDS_ACC + 3 * SEG
    assert LDS_ACC + 3 * SEG <= lds

    A(f'{NAME}:')
    A('  s_cmp_ge_u32 s2, 256')
    A('  s_cbranch_scc1 L_end')
    A(f'  s_load_dwordx16 {s(PT,16)}, s[0:1], 0')
    A('  s_load_dwordx2 s[84:85], s[0:1], 72')
    if stamps:
        A('  s_memrealtime s[80:81]')
    A('  v_lshrrev_b32 v1, 6, v0')
    A('  v_and_b32 v0, 63, v0')
    A('  v_readfirstlane_b32 s3, v1')
    cls, a, g, n = T, T + 1, T + 2, T + 3
    A(f'  v_and_b32 {v(cls)}, 3, v0')
    A(f'  v_bfe_u32 {v(a)}, v0, 2, 2')
    A(f'  v_lshrrev_b32 {v(g)}, 4, v0')
    A(f'  v_and_b32 {v(n)}, 15, v0')
    astr, sstr, xstr = {'4s': (1, 4, 32), '8a': (8, 1, 32), '16a': (16, 1, 8), '16i': (16, 2, 1), '8s': (1, 8, 4), '2a': (2, 8, 1)}[tokmap]
    def unit_tok(dst, src, mul):
        A(f'  s_lshr_b32 {s(sT)}, {s(src)}, 1')
        A(f'  s_lshl_b32 {s(sT)}, {s(sT)}, 6')
        A(f'  s_and_b32 {s(dst)}, {s(src)}, 1')
        A(f'  s_mul_i32 {s(dst)}, {s(dst)}, {xstr}')
        A(f'  s_add_u32 {s(dst)}, {s(dst)}, {s(sT)}')
        A(f'  s_mul_i32 {s(dst)}, {s(dst)}, {mul}')
    A(f'  v_lshlrev_b32 {v(X0)}, 4, {v(cls)}')
    A(f'  v_lshl_add_u32 {v(X0)}, {v(g)}, 6, {v(X0)}')
    A(f'  v_lshrrev_b32 {v(VKS)}, 1, {v(X0)}')
    A(f'  v_mul_u32_u24 {v(X1)}, {768 * astr}, {v(a)}')
    A(f'  v_add_u32 {v(VOFF)}, {v(X0)}, {v(X1)}')
    A(f'  v_mul_u32_u24 {v(X1)}, {768 * astr}, {v(g)}')
    A(f'  v_lshl_add_u32 {v(VOFFV)}, {v(n)}, 4, {v(X1)}')
    for k in range(1, 8):
        A(f'  v_add_u32 {v(VOFF+k)}, {768 * sstr * k}, {v(VOFF)}')
        A(f'  v_add_u32 {v(VOFFV+k)}, {768 * sstr * k}, {v(VOFFV)}')
    A(f'  v_and_b32 {v(X1)}, 7, v0')
    A(f'  v_mul_u32_u24 {v(X1)}, {2 * sstr}, {v(X1)}')
    A(f'  v_mul_u32_u24 {v(VVS)}, {2 * astr}, {v(g)}')
    A(f'  v_add_u32 {v(VVS)}, {v(VVS)}, {v(X1)}')
    A(f'  v_mul_u32_u24 {v(X1)}, 384, {v(a)}')
    A(f'  v_add_u32 {v(VQ)}, {v(X1)}, {v(VKS)}')
    A(f'  v_lshlrev_b32 {v(VBP)}, 4, {v(g)}')
    A(f'  v_lshrrev_b32 {v(VLDS)}, 2, v0')
    A(f'  v_lshlrev_b32 {v(VLDS)}, 4, {v(VLDS)}')
    A(f'  s_mul_i32 {s(sT)}, s3, {NU * 256}')
    A(f'  v_add_u32 {v(VLDS)}, {s(sT)}, {v(VLDS)}')
    A(f'  s_mul_i32 {s(sT)}, s3, 3072')
    A(f'  s_add_u32 {s(sT)}, {s(sT)}, {LDS_ACC}')
    A(f'  v_lshl_add_u32 {v(VFL)}, v0, 4, {s(sT)}')
    A(f'  s_lshl_b32 {s(sT)}, s3, 5')
    A(f'  s_add_u32 {s(sT)}, {s(sT)}, {LDS_ACC + W * 3072}')
    A(f'  v_lshl_add_u32 {v(VST)}, {v(a)}, 3, {s(sT)}')
    A(f'  v_mov_b32 {v(ZN)}, 0')
    A(f'  v_mov_b32 {v(SN)}, 0')
    A(f'  s_mov_b32 {s(sMSK)}, 0xffff0000')
    A(f'  s_mov_b32 {s(sL2E)}, 0x3fb8aa3b')
    A(f'  s_mov_b32 {s(sSCL)}, 0x3d93cd3a')
    A(f'  s_mov_b32 {s(sSCL+1)}, 0x3d93cd3a')
    for j in range(4):
        A(f'  s_mov_b32 {s(sMJ+2*j)}, {hex(0x11111111 << j)}')
        A(f'  s_mov_b32 {s(sMJ+2*j+1)}, {hex(0x11111111 << j)}')
    A(f'  s_mov_b32 {s(sT+1)}, 0xaaaaaaab')
    def start(dst, j, plus):
        A(f'  s_lshl_b32 {s(sT)}, s2, 7')
        A(f'  s_add_u32 {s(sT)}, {s(sT)}, {128 * (256 * j + plus) + 1}')
        A(f'  s_mul_hi_u32 {s(dst)}, {s(sT)}, {s(sT+1)}')
        A(f'  s_lshr_b32 {s(dst)}, {s(dst)}, 1')
    start(sBA, 0, 0); start(sB1, 0, 1)
    A(f'  s_sub_u32 {s(sB1)}, {s(sB1)}, {s(sBA)}')
    start(sBA + 1, 1, 0); start(sB2, 1, 1)
    A(f'  s_sub_u32 {s(sB2)}, {s(sB2)}, {s(sBA+1)}')
    A(f'  s_add_u32 {s(sB2)}, {s(sB2)}, {s(sB1)}')
    start(sBA + 2, 2, 0)
    A(f'  s_sub_u32 {s(sBA+1)}, {s(sBA+1)}, {s(sB1)}')
    A(f'  s_sub_u32 {s(sBA+2)}, {s(sBA+2)}, {s(sB2)}')
    A(f'  s_mov_b32 {s(sF)}, s3')
    A(f'  s_add_u32 {s(sUN)}, {s(sBA)}, s3')
    unit_tok(sCUR, sUN, 768)
    A(f'  s_mov_b32 {s(sFIRST)}, {s(sCUR)}')
    A(f'  s_lshr_b32 {s(sT)}, {s(sUN)}, 1')
    A(f'  s_mul_i32 {s(sKSO)}, {s(sT)}, 384')
    unit_tok(sVSO, sUN, 2)
    A(f'  s_lshr_b32 {s(sHC)}, {s(sUN)}, 7')
    A(f'  s_mul_i32 {s(sT)}, {s(sHC)}, 1536')
    A('  s_waitcnt lgkmcnt(0)')
    for srd, p, nb in ((SQ, PT, 256 * 1536), (SK, PT + 2, TOTAL), (SI, PT + 2, TOTAL), (SV, PT + 4, TOTAL), (SKS, PT + 6, 256 * 24576),
                       (SKZ, PT + 8, 256 * 24576), (SVS, PT + 10, 256 * 8192), (SVZ, PT + 12, 256 * 8192), (SW_, 84, WSOFF + 768 * REC)):
        A(f'  s_mov_b32 {s(srd)}, {s(p)}')
        A(f'  s_and_b32 {s(srd+1)}, {s(p+1)}, 0xffff')
        A(f'  s_mov_b32 {s(srd+2)}, {nb}')
        A(f'  s_mov_b32 {s(srd+3)}, 0x20000')
    def slot(k): return RING + 4 * (k % R)
    def main_load(k, srd, so):
        ss, i = divmod(k % 24, 3)
        return f'  buffer_load_dwordx4 {v(slot(k),4)}, {v(VOFF+ss)}, {s(srd,4)}, {s(so)} offen offset:{256*i} nt'
    def kscale_loads():
        r = []
        for i in range(3):
            r.append(f'  buffer_load_dwordx2 {v(KSR+2*i,2)}, {v(VKS)}, {s(SKS,4)}, {s(sKSO)} offen offset:{128*i} {sf}')
            r.append(f'  buffer_load_dwordx2 {v(KZR+2*i,2)}, {v(VKS)}, {s(SKZ,4)}, {s(sKSO)} offen offset:{128*i} {sf}')
        return r
    def vscale_loads():
        return [f'  buffer_load_short_d16_hi {v(ZN)}, {v(VVS)}, {s(SVZ,4)}, {s(sVSO)} offen {sf}',
                f'  buffer_load_short_d16_hi {v(SN)}, {v(VVS)}, {s(SVS,4)}, {s(sVSO)} offen {sf}']
    def q_loads():
        return [f'  buffer_load_dwordx2 {v(QN+2*i,2)}, {v(VQ)}, {s(SQ,4)}, {s(sT)} offen offset:{128*i} {sf}' for i in range(3)]
    def next_unit():
        if tl:
            A('  s_memrealtime s[82:83]')
            A('  s_waitcnt lgkmcnt(0)')
            A('  s_mov_b32 m0, s86')
            A(f'  v_writelane_b32 {v(TL)}, s82, m0')
            A('  s_add_u32 s86, s86, 1')
        A(f'  s_add_u32 {s(sF)}, {s(sF)}, {W}')
        A(f'  s_cmp_ge_u32 {s(sF)}, {s(sB1)}')
        A(f'  s_cselect_b32 {s(sT)}, {s(sBA+1)}, {s(sBA)}')
        A(f'  s_cmp_ge_u32 {s(sF)}, {s(sB2)}')
        A(f'  s_cselect_b32 {s(sT)}, {s(sBA+2)}, {s(sT)}')
        A(f'  s_add_u32 {s(sUN)}, {s(sF)}, {s(sT)}')
        unit_tok(sNXT, sUN, 768)
        A(f'  s_lshr_b32 {s(sHN)}, {s(sUN)}, 7')
    def reset_state():
        for k in range(12): A(f'  v_mov_b32 {v(ACC+k)}, 0')
        A(f'  v_mov_b32 {v(M)}, 0xff800000')
        A(f'  v_mov_b32 {v(NB)}, 0x7f800000')
        A(f'  v_mov_b32 {v(LS)}, 0')
    for x in kscale_loads(): A(x)
    for x in q_loads(): A(x)
    for x in vscale_loads(): A(x)
    for k in range(DK): A(main_load(k, SK, sCUR))
    reset_state()
    if tl:
        A('  s_mov_b32 s86, 0')
        A(f'  v_mov_b32 {v(TL)}, 0')

    PSMALL = 3
    def waits(nsmall, D):
        assert PSMALL < 24 - D
        return [D - 1 + (nsmall if k - D <= PSMALL < k else 0) for k in range(24)]
    def dequant(X, src, z, sc, zmod, smod):
        r = [f'  v_cvt_f32_i32 {v(X+j)}, {v(src+j)}' for j in range(4)]
        r2 = [f'  v_pk_add_f32 {v(X,2)}, {v(X,2)}, {z[0]} {zmod}neg_lo:[0,1] neg_hi:[0,1]',
              f'  v_pk_add_f32 {v(X+2,2)}, {v(X+2,2)}, {z[1]} {zmod}neg_lo:[0,1] neg_hi:[0,1]',
              f'  v_cvt_pk_bf16_f32 {v(P)}, {v(X)}, {v(X+1)}',
              f'  v_cvt_pk_bf16_f32 {v(P+1)}, {v(X+2)}, {v(X+3)}',
              f'  v_lshlrev_b32 {v(X)}, 16, {v(P)}',
              f'  v_and_b32 {v(X+1)}, {s(sMSK)}, {v(P)}',
              f'  v_lshlrev_b32 {v(X+2)}, 16, {v(P+1)}',
              f'  v_and_b32 {v(X+3)}, {s(sMSK)}, {v(P+1)}',
              f'  v_pk_mul_f32 {v(X,2)}, {v(X,2)}, {sc[0]} {smod}'.rstrip(),
              f'  v_pk_mul_f32 {v(X+2,2)}, {v(X+2,2)}, {sc[1]} {smod}'.rstrip()]
        return r, r2
    def kreduce(ss):
        d = S + (ss & 1)
        q = lambda j: f'quad_perm:[{j},{j},{j},{j}] row_mask:0xf bank_mask:0xf'
        r = [f'  v_mov_b32_dpp {v(X0)}, {v(SD)} {q(0)}',
             f'  v_mov_b32_dpp {v(X1)}, {v(SD+2)} {q(2)}',
             f'  v_add_f32_dpp {v(X0)}, {v(SD+1)}, {v(X0)} {q(1)}',
             f'  v_add_f32_dpp {v(X1)}, {v(SD+3)}, {v(X1)} {q(3)}',
             f'  v_add_f32 {v(d)}, {v(X0)}, {v(X1)}']
        if ss & 1:
            r += [f'  v_cvt_pk_bf16_f32 {v(X0)}, {v(S)}, {v(S+1)}',
                  f'  v_lshlrev_b32 {v(S)}, 16, {v(X0)}',
                  f'  v_and_b32 {v(S+1)}, {s(sMSK)}, {v(X0)}',
                  f'  v_pk_mul_f32 {v(S,2)}, {v(S,2)}, {s(sSCL,2)}',
                  f'  v_cvt_pk_bf16_f32 {v(LG+(ss>>1))}, {v(S)}, {v(S+1)}']
        return r

    D = DK; SW = 24 - D
    A('L_k:')
    next_unit()
    wk = waits(6, D)
    for k in range(24):
        ss, i = divmod(k, 3)
        if k == SW:
            A(f'  s_cmp_lt_u32 {s(sF)}, 128')
            A('  s_cbranch_scc1 L_k_keep')
            A(f'  s_mov_b32 {s(sNXT)}, {s(sFIRST)}')
            A(f'  s_mov_b32 {s(SI)}, {s(SV)}')
            A(f'  s_mov_b32 {s(SI+1)}, {s(SV+1)}')
            for j in range(8): A(f'  v_mov_b32 {v(VOFF+j)}, {v(VOFFV+j)}')
            A('L_k_keep:')
        ld = main_load(k + D, SK, sCUR) if k < SW else main_load(k + D, SI, sNXT)
        A(f'  s_waitcnt vmcnt({wk[k]})')
        if D < R: A(ld)
        c, rest = dequant(T, slot(k), (v(KZ+4*i,2), v(KZ+4*i+2,2)), (v(KS+4*i,2), v(KS+4*i+2,2)), '', '')
        for x in c: A(x)
        if D == R: A(ld)
        if k == PSMALL:
            A(f'  s_cmp_eq_u32 {s(sHN)}, {s(sHC)}')
            A('  s_cbranch_scc1 L_k_sameq')
            A(f'  s_mul_i32 {s(sT)}, {s(sHN)}, 1536')
            for x in q_loads(): A(x)
            A(f'  s_mov_b32 {s(sHC)}, {s(sHN)}')
            A('L_k_sameq:')
            A(f'  s_lshr_b32 {s(sT)}, {s(sUN)}, 1')
            A(f'  s_mul_i32 {s(sKSO)}, {s(sT)}, 384')
            for x in kscale_loads(): A(x)
        if ss == 0:
            for raw, dst in ((KZR, KZ), (KSR, KS)):
                for h in range(2):
                    A(f'  v_lshlrev_b32 {v(dst+4*i+2*h)}, 16, {v(raw+2*i+h)}')
                    A(f'  v_and_b32 {v(dst+4*i+2*h+1)}, {s(sMSK)}, {v(raw+2*i+h)}')
            for h in range(2): A(f'  v_mov_b32 {v(QB+2*i+h)}, {v(QN+2*i+h)}')
        rest += [f'  v_cvt_pk_bf16_f32 {v(KA+2*i)}, {v(T)}, {v(T+1)}',
                 f'  v_cvt_pk_bf16_f32 {v(KA+2*i+1)}, {v(T+2)}, {v(T+3)}']
        if i == 0 and ss > 0:
            r = kreduce(ss - 1)
            rest = rest[:2] + merge(rest[2:], r[:5], 2)
            pend = r[5:]
        elif i == 1 and ss > 0:
            rest = merge(rest, pend, 2)
        for x in rest: A(x)
        if i == 1: A(f'  v_mfma_f32_16x16x32_bf16 {v(SD,4)}, {v(KA,4)}, {v(QB,4)}, 0')
        if i == 2: A(f'  v_mfma_f32_16x16x16_bf16 {v(SD,4)}, {v(KA+4,2)}, {v(QB+4,2)}, {v(SD,4)}')
    A(f'  s_mov_b32 {s(sCUR)}, {s(sNXT)}')
    for x in kreduce(7): A(x)
    A(f'  ds_write_b128 {v(VLDS)}, {v(LG,4)}')
    A(f'  v_add_u32 {v(VLDS)}, 256, {v(VLDS)}')
    A(f'  s_cmp_lt_u32 {s(sF)}, 128')
    A('  s_cbranch_scc1 L_k')

    def flush():
        A(f'  v_mov_b32 {v(X1)}, {v(LS)}')
        A(f'  v_permlane32_swap_b32 {v(LS)}, {v(X1)}')
        A(f'  v_add_f32 {v(LS)}, {v(LS)}, {v(X1)}')
        A(f'  v_mov_b32 {v(X1)}, {v(LS)}')
        A(f'  v_permlane16_swap_b32 {v(LS)}, {v(X1)}')
        A(f'  v_add_f32 {v(LS)}, {v(LS)}, {v(X1)}')
        A(f'  ds_write_b64 {v(VST)}, {v(NB,2)}')
        for i in range(3):
            A(f'  ds_write_b128 {v(VFL)}, {v(ACC+4*i,4)} offset:{1024*i}')
        A('  s_waitcnt lgkmcnt(0)')

    D = DV; SW = 24 - D
    for k in range(DK, DV): A(main_load(k, SV, sCUR))
    A(f'  v_subrev_u32 {v(VLDS)}, {NU * 256}, {v(VLDS)}')
    A(f'  s_mov_b32 {s(sF)}, s3')
    A(f'  s_add_u32 {s(sT)}, {s(sBA)}, s3')
    A(f'  s_lshr_b32 {s(sHC)}, {s(sT)}, 7')
    A('  s_waitcnt lgkmcnt(0)')
    A(f'  ds_read_b128 {v(LG,4)}, {v(VLDS)}')
    A('L_v:')
    next_unit()
    A(f'  s_cmp_lt_u32 {s(sF)}, 128')
    A(f'  s_cselect_b32 {s(sNXT)}, {s(sNXT)}, {TOTAL}')
    prep = ['  s_waitcnt lgkmcnt(0)']
    for k in range(4):
        prep += [f'  v_lshlrev_b32 {v(E+2*k)}, 16, {v(LG+k)}', f'  v_and_b32 {v(E+2*k+1)}, {s(sMSK)}, {v(LG+k)}']
    prep += [f'  v_add_u32 {v(VLDS)}, 256, {v(VLDS)}',
             f'  v_max3_f32 {v(X0)}, {v(E)}, {v(E+1)}, {v(E+2)}',
             f'  ds_read_b128 {v(LG,4)}, {v(VLDS)}',
             f'  v_max3_f32 {v(X1)}, {v(E+3)}, {v(E+4)}, {v(E+5)}',
             f'  v_max3_f32 {v(X0)}, {v(X0)}, {v(E+6)}, {v(E+7)}',
             f'  v_max3_f32 {v(X0)}, {v(X0)}, {v(X1)}, {v(M)}',
             f'  v_mov_b32 {v(X1)}, {v(X0)}',
             f'  v_permlane32_swap_b32 {v(X0)}, {v(X1)}',
             f'  v_max_f32 {v(X0)}, {v(X0)}, {v(X1)}',
             f'  v_mov_b32 {v(X1)}, {v(X0)}',
             f'  v_permlane16_swap_b32 {v(X0)}, {v(X1)}',
             f'  v_max_f32 {v(M)}, {v(X0)}, {v(X1)}',
             f'  v_mul_f32 {v(X0)}, {s(sL2E)}, {v(M)}',
             f'  v_add_f32 {v(AL)}, {v(X0)}, {v(NB)}',
             f'  v_sub_f32 {v(NB)}, 0, {v(X0)}',
             f'  v_exp_f32 {v(AL)}, -{v(AL)}',
             f'  ds_bpermute_b32 {v(ALQ)}, {v(VBP)}, {v(AL)}']
    for k in range(8):
        prep += [f'  v_fma_f32 {v(E+k)}, {v(E+k)}, {s(sL2E)}, {v(NB)}', f'  v_exp_f32 {v(E+k)}, {v(E+k)}']
    prep += [f'  v_add_f32 {v(X0)}, {v(E)}, {v(E+1)}', f'  v_add_f32 {v(X1)}, {v(E+2)}, {v(E+3)}',
             f'  v_add_f32 {v(X0)}, {v(X0)}, {v(E+4)}', f'  v_add_f32 {v(X1)}, {v(X1)}, {v(E+5)}',
             f'  v_add_f32 {v(X0)}, {v(X0)}, {v(E+6)}', f'  v_add_f32 {v(X1)}, {v(X1)}, {v(E+7)}',
             f'  v_add_f32 {v(X0)}, {v(X0)}, {v(X1)}',
             f'  v_fma_f32 {v(LS)}, {v(LS)}, {v(AL)}, {v(X0)}']
    for k in range(4):
        prep.append(f'  v_cvt_pk_bf16_f32 {v(PP+k)}, {v(E+2*k)}, {v(E+2*k+1)}')
    for j in range(4):
        for k in range(4):
            prep.append(f'  v_cndmask_b32 {v(AJ+4*j+k)}, 0, {v(PP+k)}, {s(sMJ+2*j,2)}')
    prep.append('  s_waitcnt lgkmcnt(0)')
    for k in range(12):
        prep.append(f'  v_mul_f32 {v(ACC+k)}, {v(ALQ)}, {v(ACC+k)}')
    per = 5
    wv = waits(2, D)
    for k in range(24):
        ss, i = divmod(k, 3)
        ld = main_load(k + D, SV, sCUR if k < SW else sNXT)
        A(f'  s_waitcnt vmcnt({wv[k]})')
        if D < R: A(ld)
        if k == 0:
            A(f'  v_mov_b32 {v(ZC)}, {v(ZN)}')
            A(f'  v_mov_b32 {v(SC)}, {v(SN)}')
        X = TV + 4 * i if ss % 2 == 0 else T
        c, rest = dequant(X, slot(k), (v(ZS,2), v(ZS,2)), (v(ZS,2), v(ZS,2)), 'op_sel_hi:[1,0] ', 'op_sel:[0,1]')
        for x in c: A(x)
        if D == R: A(ld)
        if k == PSMALL:
            unit_tok(sVSO, sUN, 2)
            for x in vscale_loads(): A(x)
        if i == 0:
            A(f'  v_mov_b32_dpp {v(ZS)}, {v(ZC)} row_newbcast:{ss} row_mask:0xf bank_mask:0xf')
            A(f'  v_mov_b32_dpp {v(ZS+1)}, {v(SC)} row_newbcast:{ss} row_mask:0xf bank_mask:0xf')
        if ss % 2 == 1:
            rest += [f'  v_cvt_pk_bf16_f32 {v(BV+16*i+4*j+(ss>>1))}, {v(TV+4*i+j)}, {v(T+j)}' for j in range(4)]
        side, prep = prep[:per], prep[per:]
        if k == 20:
            side += prep; prep = []
        for x in merge(rest, side, 2): A(x)
        if ss == 7:
            for j in range(4):
                A(f'  v_mfma_f32_16x16x32_bf16 {v(ACC+4*i,4)}, {v(AJ+4*j,4)}, {v(BV+16*i+4*j,4)}, {v(ACC+4*i,4)}')
    A(f'  s_mov_b32 {s(sCUR)}, {s(sNXT)}')
    A(f'  s_cmp_ge_u32 {s(sF)}, 128')
    A('  s_cbranch_scc1 L_v_done')
    A(f'  s_cmp_eq_u32 {s(sHN)}, {s(sHC)}')
    A('  s_cbranch_scc1 L_v')
    A(f'  s_mov_b32 {s(sHC)}, {s(sHN)}')
    flush()
    A(f'  v_add_u32 {v(VFL)}, {SEG}, {v(VFL)}')
    A(f'  v_add_u32 {v(VST)}, {SEG}, {v(VST)}')
    reset_state()
    A('  s_branch L_v')
    A('L_v_done:')
    flush()

    A('  s_barrier')
    A('  s_cmp_ge_u32 s3, 3')
    A('  s_cbranch_scc1 L_fin')
    ST = RING; AC = base
    AC = (AC + 3) // 4 * 4
    nv = max(nv, AC + 12 * W)
    assert 2 * W <= 4 * R
    A(f'  s_mul_i32 {s(sT)}, s3, {SEG}')
    A(f'  s_add_u32 {s(sT)}, {s(sT)}, {LDS_ACC}')
    A(f'  v_lshrrev_b32 {v(AL)}, 1, {v(VBP)}')
    A(f'  v_add_u32 {v(X0)}, {s(sT)}, {v(AL)}')
    for w in range(W):
        A(f'  ds_read_b64 {v(ST+2*w,2)}, {v(X0)} offset:{W*3072 + 32*w}')
    A(f'  v_lshl_add_u32 {v(X0)}, v0, 4, {s(sT)}')
    for w in range(W):
        for i in range(3):
            A(f'  ds_read_b128 {v(AC+12*w+4*i,4)}, {v(X0)} offset:{3072*w + 1024*i}')
    A(f'  s_lshl_b32 {s(sT)}, s3, 8')
    A(f'  s_add_u32 {s(sT)}, {s(sT)}, s2')
    A(f'  s_mul_i32 {s(sT)}, {s(sT)}, {REC}')
    A(f'  s_add_u32 {s(sT)}, {s(sT)}, {WSOFF}')
    A(f'  v_lshlrev_b32 {v(ALQ)}, 4, v0')
    A('  s_waitcnt lgkmcnt(0)')
    combine(A, W, ST, AC, 3, X0, X1, ACC)
    for i in range(3):
        A(f'  buffer_store_dwordx4 {v(ACC+4*i,4)}, {v(ALQ)}, {s(SW_,4)}, {s(sT)} offen offset:{1024*i} {stf}')
    A(f'  buffer_store_dwordx2 {v(X0,2)}, {v(AL)}, {s(SW_,4)}, {s(sT)} offen offset:3072 {stf}')
    A('L_fin:')
    if tl:
        A(f'  s_mul_i32 s87, s2, {W}')
        A('  s_add_u32 s87, s87, s3')
        A('  s_lshl_b32 s87, s87, 8')
        A('  s_add_u32 s87, s87, 0x10000')
        A(f'  v_lshl_add_u32 {v(X0)}, v0, 2, s87')
        A(f'  global_store_dword {v(X0)}, {v(TL)}, s[84:85]')
    if stamps:
        A('  s_waitcnt vmcnt(0)')
        A('  s_memrealtime s[82:83]')
        A('  s_getreg_b32 s86, hwreg(HW_REG_XCC_ID)')
        A(f'  s_mul_i32 s87, s2, {W}')
        A('  s_add_u32 s87, s87, s3')
        A('  s_lshl_b32 s87, s87, 4')
        A('  s_waitcnt lgkmcnt(0)')
        A(f'  v_mov_b32 {v(RING)}, s80')
        A(f'  v_mov_b32 {v(RING+1)}, s82')
        A(f'  v_mov_b32 {v(RING+2)}, s86')
        A(f'  v_mov_b32 {v(RING+3)}, s86')
        A(f'  v_mov_b32 {v(X0)}, s87')
        A('  s_mov_b64 exec, 1')
        A(f'  global_store_dwordx4 {v(X0)}, {v(RING,4)}, s[84:85]')
    A('L_end:')
    A('  s_endpgm')
    body = pad(L)

    L = []
    A = L.append
    A(f'{NAME2}:')
    A('  s_cmp_ge_u32 s2, 256')
    A('  s_cbranch_scc1 L2_end')
    A('  s_load_dwordx2 s[4:5], s[0:1], 56')
    A('  s_load_dwordx2 s[8:9], s[0:1], 72')
    A('  v_lshlrev_b32 v1, 4, v0')
    A('  v_lshrrev_b32 v2, 4, v0')
    A('  v_lshlrev_b32 v3, 3, v2')
    A('  v_mul_u32_u24 v2, 384, v2')
    A('  v_and_b32 v4, 15, v0')
    A('  v_lshl_add_u32 v2, v4, 3, v2')
    A(f'  s_mul_i32 s12, s2, {3 * REC}')
    A(f'  s_add_u32 s12, s12, {WSOFF}')
    A(f'  s_add_u32 s13, s12, {REC}')
    A(f'  s_add_u32 s14, s13, {REC}')
    A('  s_mul_i32 s15, s2, 1536')
    A(f'  s_mov_b32 s6, {256 * 1536}')
    A('  s_mov_b32 s7, 0x20000')
    A(f'  s_mov_b32 s10, {WSOFF + 768 * REC}')
    A('  s_mov_b32 s11, 0x20000')
    A('  s_waitcnt lgkmcnt(0)')
    A('  s_and_b32 s5, s5, 0xffff')
    A('  s_and_b32 s9, s9, 0xffff')
    for w in range(3):
        A(f'  buffer_load_dwordx2 {v(8+2*w,2)}, v3, s[8:11], s{12+w} offen offset:3072 {ldf}')
        for i in range(3):
            A(f'  buffer_load_dwordx4 {v(16+12*w+4*i,4)}, v1, s[8:11], s{12+w} offen offset:{1024*i} {ldf}')
    A('  s_waitcnt vmcnt(0)')
    combine(A, 3, 8, 16, 3, 6, 7, 52)
    A('  v_rcp_f32 v7, v7')
    for k in range(12): A(f'  v_mul_f32 {v(52+k)}, v7, {v(52+k)}')
    for i in range(3):
        A(f'  v_cvt_pk_bf16_f32 {v(52+4*i)}, {v(52+4*i)}, {v(53+4*i)}')
        A(f'  v_cvt_pk_bf16_f32 {v(53+4*i)}, {v(54+4*i)}, {v(55+4*i)}')
        A(f'  buffer_store_dwordx2 {v(52+4*i,2)}, v2, s[4:7], s15 offen offset:{128*i}')
    A('L2_end:')
    A('  s_endpgm')
    body2 = pad(L)

    nva = (nv + 7) // 8 * 8
    out = HDR + f'; @launch kernel={NAME} grid=(256,1,1) block=({64*W},1,1) lds={lds}\n'
    out += f'; @launch kernel={NAME2} grid=(256,1,1) block=(64,1,1) lds=0\n'
    out += '.amdgcn_target "amdgcn-amd-amdhsa--gfx950"\n.text\n'
    out += f'.globl {NAME}\n.p2align 8\n.type {NAME},@function\n'
    out += '\n'.join(body) + '\n'
    out += f'.globl {NAME2}\n.p2align 8\n.type {NAME2},@function\n'
    out += '\n'.join(body2) + '\n'
    out += '.section .rodata,"a"\n'
    for nm, nvv, nss in ((NAME, nva, 96), (NAME2, 64, 24)):
        out += f'''.p2align 6
.amdhsa_kernel {nm}
  .amdhsa_next_free_vgpr {nvv}
  .amdhsa_next_free_sgpr {nss}
  .amdhsa_accum_offset {nvv}
  .amdhsa_group_segment_fixed_size 0
  .amdhsa_kernarg_size 80
  .amdhsa_user_sgpr_count 2
  .amdhsa_user_sgpr_kernarg_segment_ptr 1
  .amdhsa_system_sgpr_workgroup_id_x 1
  .amdhsa_float_denorm_mode_32 3
.end_amdhsa_kernel
'''
    return out

if __name__ == '__main__':
    kw = {}
    for x in sys.argv[2:]:
        k, val = x.split('=')
        kw[k] = int(val) if val.lstrip('-').isdigit() else val
    open(sys.argv[1], 'w').write(gen(**kw))
```

```python
import sys, os
sys.path.insert(0, os.path.dirname(os.path.abspath(__file__)))
from asmlib import pad
NAME = 'standalone__kv_cache_quant_int4_int2_kv_with_per_channel_or_per_token_scales__sampling_kernel'
NAME2 = 'merge_partials_kernel'
HEAD = 4096 * 768
TOTAL = 256 * HEAD
REC = 3328
WSOFF = 1 << 20
WSX = 8 << 20
IMG = 96 * 384
WSEND = WSX + (16 << 20)
OOB = 0x7ffffff0
HDR = open(os.path.join(os.path.dirname(os.path.abspath(__file__)), 'header.txt')).read()
assert all(((32 * c + 1) * 21846) >> 16 == (32 * c + 1) // 3 for c in range(25))
assert all((c * 43) >> 8 == c // 6 for c in range(24))

class Alloc:
    def __init__(self, start): self.n = start
    def __call__(self, k, align=1):
        self.n = (self.n + align - 1) // align * align
        r = self.n; self.n += k
        return r

def v(r, k=1): return f'v{r}' if k == 1 else f'v[{r}:{r+k-1}]'
def s(r, k=1): return f's{r}' if k == 1 else f's[{r}:{r+k-1}]'

def merge(main, side, every):
    out = []; side = list(side); c = 0
    for m in main:
        out.append(m); c += 1
        if side and c % every == 0: out.append(side.pop(0))
    return out + side

def combine(A, n, ST, AC, npiece, X0, X1, OUT):
    A(f'  v_min_f32 {v(X0)}, {v(ST)}, {v(ST+2)}')
    for w in range(2, n): A(f'  v_min_f32 {v(X0)}, {v(X0)}, {v(ST+2*w)}')
    for w in range(n): A(f'  v_sub_f32 {v(ST+2*w)}, {v(X0)}, {v(ST+2*w)}')
    for w in range(n): A(f'  v_exp_f32 {v(ST+2*w)}, {v(ST+2*w)}')
    A(f'  v_mul_f32 {v(X1)}, {v(ST)}, {v(ST+1)}')
    for w in range(1, n): A(f'  v_fma_f32 {v(X1)}, {v(ST+2*w)}, {v(ST+2*w+1)}, {v(X1)}')
    for i in range(npiece):
        for j in range(4):
            A(f'  v_mul_f32 {v(OUT+4*i+j)}, {v(ST)}, {v(AC+4*i+j)}')
            for w in range(1, n):
                A(f'  v_fma_f32 {v(OUT+4*i+j)}, {v(ST+2*w)}, {v(AC+4*(npiece*w+i)+j)}, {v(OUT+4*i+j)}')

def gen(D=6, W=4, stamps=False, sf='-', stf='sc1', ldf='-', tl=0, NWU=16, NS=2, pf=8, force=-1, THR=12, safe=0, PW=0, burst=1, xf='sc1', noexp=0, noimp=0):
    R = 11; NST = 33; NF = 96
    assert D <= R and NWU % 8 == 0 and W in (2, 4)
    PW = PW or NWU - 2 * W
    fl = lambda x: x.replace('-', '').replace('+', ' ')
    sf, stf, ldf = fl(sf), fl(stf), fl(ldf)
    L = []
    A = L.append
    va = Alloc(1)
    RING = va(4 * R, 4); VO = va(4)
    IUP = va(1); IOWN = va(1); ICON = va(1); DUP = va(1); DOWN = va(1); DCON = va(1); ICV = va(1); TU = va(1)
    VKS0 = va(1); VKS = va(1); VQ = va(1); VVS = va(1); VL1 = va(1); VL2 = va(1); VBP = va(1); VFL = va(1); VST = va(1); VPR = va(1)
    VOOB = va(1); VNI = va(1)
    T = va(4, 2); P = va(2); ZN = va(1); SN = va(1); ZC = va(1); SC = va(1); ZS = va(2, 2)
    LG = va(6, 4); ACC = va(12, 4); M = va(1); NB = va(2, 2); LS = NB + 1
    X0 = va(2, 2); X1 = X0 + 1; AL = va(1); ALQ = va(1); E = va(11); PP = va(6); TL = va(1)
    base = va.n
    QB = va(6, 4); QN = va(6, 2); KSR = va(6, 2); KZR = va(6, 2); KS = va(12, 2); KZ = va(12, 2); KA = va(6, 4); SD = va(4, 4); S = va(2, 2)
    kend = va.n
    va.n = base
    AJ = va(16, 4); AK = va(8, 2); TV = va(12, 2); BV = va(48, 4)
    nv = max(va.n, kend)
    sRO, sPB = 4, 5
    SK, SV, SI, SKS, SKZ, SVS, SVZ, SQ, SW_ = 8, 12, 16, 20, 24, 28, 32, 36, 40
    PT = 44
    sREC, sL0, sL10, sM0, sM10, sLOW = 44, 48, 50, 52, 54, 56
    sCUR, sNXT, sSO, sF, sMSK, sL2E, sTL, s768, sSCL, sT = 60, 61, 62, 64, 65, 66, 67, 63, 68, 70
    sMJ = 72
    sDBG, sWS = 80, 82
    sQ3, sC, sQC, sCC, sHC, sHN, sDIV, sSH = 84, 85, 86, 87, 88, 89, 90, 91
    sDEC, sLIM, sGATE, sSEG = 96, 97, 99, 100
    sU = 92
    SEG = W * 3072 + W * 32
    LDS_ACC = IMG
    LDS_F = LDS_ACC + 4 * SEG
    F_DEC, F_IMP, F_PRG = LDS_F, LDS_F + 4, LDS_F + 16
    lds = 87040
    assert LDS_F + 32 <= lds

    A(f'{NAME}:')
    A('  s_cmp_ge_u32 s2, 256')
    A('  s_cbranch_scc1 L_end')
    A(f'  s_load_dwordx16 {s(PT,16)}, s[0:1], 0')
    A(f'  s_load_dwordx4 {s(sDBG,4)}, s[0:1], 64')
    if stamps:
        A('  s_memrealtime s[6:7]')
    A('  v_lshrrev_b32 v1, 6, v0')
    A('  v_and_b32 v0, 63, v0')
    A('  v_readfirstlane_b32 s3, v1')
    A(f'  s_bfe_u32 {s(sRO)}, s2, 0x10002')
    A(f'  s_lshr_b32 {s(sPB)}, s2, 3')
    A(f'  s_lshl_b32 {s(sPB)}, {s(sPB)}, 2')
    A(f'  s_and_b32 {s(sT)}, s2, 3')
    A(f'  s_add_u32 {s(sPB)}, {s(sPB)}, {s(sT)}')
    A(f'  s_lshl_b32 {s(sPB)}, {s(sPB)}, 5')
    def make_srds():
        A('  s_waitcnt lgkmcnt(0)')
        for srd, p, nb in ((SK, PT + 2, TOTAL), (SKS, PT + 6, 256 * 24576), (SKZ, PT + 8, 256 * 24576), (SQ, PT, 256 * 1536),
                           (SI, PT + 2, TOTAL), (SV, PT + 4, TOTAL), (SVS, PT + 10, 256 * 8192), (SVZ, PT + 12, 256 * 8192), (SW_, sWS, WSEND)):
            A(f'  s_mov_b32 {s(srd)}, {s(p)}')
            A(f'  s_and_b32 {s(srd+1)}, {s(p+1)}, 0xffff')
            A(f'  s_mov_b32 {s(srd+2)}, {nb}')
            A(f'  s_mov_b32 {s(srd+3)}, 0x20000')
    A(f'  s_cmp_eq_u32 s3, {W}')
    A('  s_cbranch_scc1 L_helper')

    cls, a, g, n = T, T + 1, T + 2, T + 3
    A(f'  v_and_b32 {v(cls)}, 3, v0')
    A(f'  v_bfe_u32 {v(a)}, v0, 2, 2')
    A(f'  v_lshrrev_b32 {v(g)}, 4, v0')
    A(f'  v_and_b32 {v(n)}, 15, v0')
    def stream_consts(x, up, own, con, lanepart):
        A(f'  v_and_b32 {v(own)}, 2, {v(x)}')
        A(f'  v_lshlrev_b32 {v(up)}, 5, {v(own)}')
        A(f'  v_add_u32 {v(up)}, 129, {v(up)}')
        A(f'  v_and_b32 {v(X1)}, 1, {v(x)}')
        A(f'  v_lshl_add_u32 {v(own)}, {v(X1)}, 2, {v(own)}')
        A(f'  v_mul_u32_u24 {v(X1)}, {43 * 768}, {v(X1)}')
        A(f'  v_add_u32 {v(con)}, {v(lanepart)}, {v(X1)}')
        A(f'  v_subrev_u32 {v(con)}, {43 * 768}, {v(con)}')
    A(f'  v_lshlrev_b32 {v(X0)}, 4, {v(cls)}')
    A(f'  v_lshl_add_u32 {v(X0)}, {v(g)}, 6, {v(X0)}')
    A(f'  v_lshrrev_b32 {v(VKS0)}, 1, {v(X0)}')
    stream_consts(a, IUP, IOWN, ICON, X0)
    A(f'  v_mul_u32_u24 {v(X1)}, 384, {v(a)}')
    A(f'  v_add_u32 {v(VQ)}, {v(X1)}, {v(VKS0)}')
    A(f'  v_mov_b32 {v(VOOB)}, {OOB}')
    A(f'  s_mov_b32 {s(sDIV)}, 0xaaaaaaab')
    A(f'  s_mov_b32 {s(sSH)}, 0x492492')
    A(f'  s_movk_i32 {s(s768)}, 768')
    def slot(k): return RING + 4 * (k % R)
    def main_load(k, srd, so):
        ss, i = divmod(k % NST, 3)
        r, k0 = (0, 0) if ss == 0 else (1, 1) if ss <= 5 else (2, 6) if ss <= 9 else (3, 10)
        return f'  buffer_load_dwordx4 {v(slot(k),4)}, {v(VO+r)}, {s(srd,4)}, {s(so)} offen offset:{768*(ss-k0) + 256*i} nt'
    def kscale_loads():
        r = [f'  s_mul_i32 {s(sSO)}, {s(sQ3)}, 1536']
        for i in range(3):
            r.append(f'  buffer_load_dwordx2 {v(KSR+2*i,2)}, {v(VKS)}, {s(SKS,4)}, {s(sSO)} offen offset:{128*i} {sf}')
            r.append(f'  buffer_load_dwordx2 {v(KZR+2*i,2)}, {v(VKS)}, {s(SKZ,4)}, {s(sSO)} offen offset:{128*i} {sf}')
        return r
    def vscale_loads():
        return [f'  s_lshl_b32 {s(sSO)}, {s(sQ3)}, 9',
                f'  v_lshl_add_u32 {v(VVS)}, {v(TU)}, 1, {v(ICV)}',
                f'  buffer_load_short_d16_hi {v(ZN)}, {v(VVS)}, {s(SVZ,4)}, {s(sSO)} offen {sf}',
                f'  buffer_load_short_d16_hi {v(SN)}, {v(VVS)}, {s(SVS,4)}, {s(sSO)} offen {sf}']
    def q_loads():
        return [f'  s_mul_i32 {s(sT)}, {s(sHN)}, 1536'] + \
               [f'  buffer_load_dwordx2 {v(QN+2*i,2)}, {v(VQ)}, {s(SQ,4)}, {s(sT)} offen offset:{128*i} {sf}' for i in range(3)]
    def short_masks(own, c, m0, m10, low):
        A(f'  v_add_u32 {v(X0)}, {s(c)}, {v(own)}')
        A(f'  v_lshrrev_b32 {v(X1)}, {v(X0)}, {s(sSH)}')
        A(f'  v_and_b32 {v(X1)}, 1, {v(X1)}')
        A(f'  v_cmp_eq_u32 vcc, 1, {v(X1)}')
        A(f'  s_and_b64 {s(m0,2)}, vcc, {low}')
        A(f'  s_andn2_b64 {s(m10,2)}, vcc, {low}')
    def map_unit(f, isv):
        A(f'  s_andn2_b32 {s(sT)}, {s(f)}, 1')
        A(f'  s_or_b32 {s(sT)}, {s(sT)}, {s(sRO)}')
        A(f'  s_lshr_b32 {s(sT+1)}, {s(f)}, 5')
        A(f'  s_lshr_b32 {s(sC)}, {s(sDEC)}, {s(sT+1)}')
        if isv: A(f'  s_lshr_b32 {s(sC)}, {s(sC)}, 3')
        A(f'  s_cmp_lt_u32 {s(f)}, {s(sLIM)}')
        A(f'  s_cselect_b32 {s(sT)}, {s(sT)}, {s(f)}')
        A(f'  s_cselect_b32 {s(sC)}, {s(f)}, {s(sC)}')
        A(f'  s_and_b32 {s(sC)}, {s(sC)}, 1')
        A(f'  s_mul_i32 {s(sT+1)}, {s(sT+1)}, {4096 - 32}')
        A(f'  s_add_u32 {s(sT)}, {s(sT)}, {s(sT+1)}')
        A(f'  s_add_u32 {s(sT)}, {s(sT)}, {s(sPB)}')
        A(f'  s_mul_hi_u32 {s(sQ3)}, {s(sT)}, {s(sDIV)}')
        A(f'  s_lshr_b32 {s(sQ3)}, {s(sQ3)}, 1')
        A(f'  s_mul_i32 {s(sT+1)}, {s(sQ3)}, 3')
        A(f'  s_sub_u32 {s(sT)}, {s(sT)}, {s(sT+1)}')
        A(f'  s_lshl3_add_u32 {s(sC)}, {s(sT)}, {s(sC)}')
        A(f'  s_mul_i32 {s(sNXT)}, {s(sQ3)}, 196608')
        A(f'  s_lshr_b32 {s(sHN)}, {s(sQ3)}, 4')
        A(f'  s_lshl_b32 {s(sT)}, {s(sC)}, 5')
        A(f'  v_add_u32 {v(TU)}, {s(sT)}, {v(DUP if isv else IUP)}')
        A(f'  v_mul_u32_u24 {v(TU)}, 21846, {v(TU)}')
        A(f'  v_lshrrev_b32 {v(TU)}, 16, {v(TU)}')
        short_masks(DOWN if isv else IOWN, sC, sM0, sM10, s(sLOW + 2 * isv, 2))
        if not isv:
            A(f'  v_mul_u32_u24 {v(X0)}, 43, {v(X0)}')
            A(f'  v_lshrrev_b32 {v(X0)}, 8, {v(X0)}')
            A(f'  v_mul_u32_u24 {v(X0)}, 384, {v(X0)}')
            A(f'  v_add_u32 {v(VKS)}, {v(X0)}, {v(VKS0)}')
    def offsets(con):
        A(f'  v_mad_u32_u24 {v(VO)}, {v(TU)}, {s(s768)}, {v(con)}')
        A(f'  v_add_u32 {v(VO+1)}, 768, {v(VO)}')
        A(f'  v_add_u32 {v(VO+2)}, {6 * 768}, {v(VO)}')
        A(f'  v_add_u32 {v(VO+3)}, {10 * 768}, {v(VO)}')
        A(f'  v_cndmask_b32 {v(VO)}, {v(VO)}, {v(VOOB)}, {s(sM0,2)}')
        A(f'  v_cndmask_b32 {v(VO+3)}, {v(VO+3)}, {v(VOOB)}, {s(sM10,2)}')
    def stamp():
        if tl:
            A(f'  s_memrealtime {s(sT,2)}')
            A('  s_waitcnt lgkmcnt(0)')
            A(f'  s_min_u32 m0, {s(sTL)}, 63')
            A(f'  v_writelane_b32 {v(TL)}, {s(sT)}, m0')
            A(f'  s_add_u32 {s(sTL)}, {s(sTL)}, 1')
    def reset_state():
        for k in range(12): A(f'  v_mov_b32 {v(ACC+k)}, 0')
        A(f'  v_mov_b32 {v(M)}, 0xff800000')
        A(f'  v_mov_b32 {v(NB)}, 0x7f800000')
        A(f'  v_mov_b32 {v(LS)}, 0')
    A(f'  s_mov_b32 {s(sF)}, s3')
    A(f'  s_mov_b32 {s(sLIM)}, {NWU}')
    A(f'  s_mov_b32 {s(sGATE)}, {NWU}')
    A(f'  s_mov_b32 {s(sDEC)}, 0')
    make_srds()
    A(f'  s_mov_b32 {s(sLOW)}, 0x0f0f0f0f')
    A(f'  s_mov_b32 {s(sLOW+1)}, 0x0f0f0f0f')
    A(f'  s_mov_b32 {s(sLOW+2)}, 0xffff')
    A(f'  s_mov_b32 {s(sLOW+3)}, 0xffff')
    map_unit(sF, 0)
    offsets(ICON)
    A(f'  s_mov_b32 {s(sCUR)}, {s(sNXT)}')
    A(f'  s_mov_b32 {s(sHC)}, {s(sHN)}')
    for x in kscale_loads(): A(x)
    for x in q_loads(): A(x)
    for k in range(D): A(main_load(k, SK, sCUR))
    A(f'  v_lshlrev_b32 {v(X0)}, 4, {v(n)}')
    stream_consts(g, DUP, DOWN, DCON, X0)
    A(f'  v_and_b32 {v(X1)}, 1, {v(g)}')
    A(f'  v_mul_u32_u24 {v(X1)}, 86, {v(X1)}')
    A(f'  v_lshl_add_u32 {v(ICV)}, {v(n)}, 1, {v(X1)}')
    A(f'  v_subrev_u32 {v(ICV)}, 86, {v(ICV)}')
    A(f'  v_lshlrev_b32 {v(VBP)}, 4, {v(g)}')
    A(f'  v_lshrrev_b32 {v(X0)}, 2, v0')
    A(f'  s_mul_i32 {s(sT)}, s3, 384')
    A(f'  v_lshl_add_u32 {v(VL1)}, {v(X0)}, 4, {s(sT)}')
    A(f'  v_lshl_add_u32 {v(VL2)}, {v(X0)}, 3, {s(sT)}')
    A(f'  s_mul_i32 {s(sT)}, s3, 3072')
    A(f'  s_add_u32 {s(sT)}, {s(sT)}, {LDS_ACC}')
    A(f'  v_lshl_add_u32 {v(VFL)}, v0, 4, {s(sT)}')
    A(f'  s_lshl_b32 {s(sT)}, s3, 5')
    A(f'  s_add_u32 {s(sT)}, {s(sT)}, {LDS_ACC + W * 3072}')
    A(f'  v_lshl_add_u32 {v(VST)}, {v(a)}, 3, {s(sT)}')
    A(f'  s_lshl_b32 {s(sT)}, s3, 2')
    A(f'  s_add_u32 {s(sT)}, {s(sT)}, {F_PRG}')
    A(f'  v_mov_b32 {v(VPR)}, {s(sT)}')
    A(f'  v_mov_b32 {v(ZN)}, 0')
    A(f'  v_mov_b32 {v(SN)}, 0')
    A(f'  v_mov_b32 {v(VNI)}, 0xff800000')
    A(f'  s_mov_b32 {s(sMSK)}, 0xffff0000')
    A(f'  s_mov_b32 {s(sL2E)}, 0x3fb8aa3b')
    A(f'  s_mov_b32 {s(sSCL)}, 0x3d93cd3a')
    A(f'  s_mov_b32 {s(sSCL+1)}, 0x3d93cd3a')
    for j in range(4):
        A(f'  s_mov_b32 {s(sMJ+2*j)}, {hex(0x11111111 << j)}')
        A(f'  s_mov_b32 {s(sMJ+2*j+1)}, {hex(0x11111111 << j)}')
        A(f'  s_mov_b32 {s(sREC+j)}, 0')
    A(f'  s_mov_b32 {s(sSEG)}, 0')
    reset_state()
    if tl:
        A(f'  s_mov_b32 {s(sTL)}, 0')
        A(f'  v_mov_b32 {v(TL)}, 0')
    A('  s_barrier')

    PSMALL = 3
    def issues(k):
        if burst == 1: return [k + D]
        return list(range(k + D, k + D + burst)) if (k + D) % burst == 0 else []
    assert NST % burst == 0 and D % burst == 0 and D + burst - 1 <= R
    late = (D + burst - 1 == R)
    SW = NST - D
    def waits(nsmall):
        assert PSMALL < SW
        w = []
        for k in range(NST):
            newest = max(j for kk in range(k - burst, k) for j in issues(kk))
            at = [kk for kk in range(k - D - burst, k) if k in issues(kk)][0]
            w.append(newest - k + (nsmall if at <= PSMALL < k else 0))
        return w
    def dequant(X, src, z, sc, zmod, smod):
        r = [f'  v_cvt_f32_i32 {v(X+j)}, {v(src+j)}' for j in range(4)]
        r2 = [f'  v_pk_add_f32 {v(X,2)}, {v(X,2)}, {z[0]} {zmod}neg_lo:[0,1] neg_hi:[0,1]',
              f'  v_pk_add_f32 {v(X+2,2)}, {v(X+2,2)}, {z[1]} {zmod}neg_lo:[0,1] neg_hi:[0,1]',
              f'  v_cvt_pk_bf16_f32 {v(P)}, {v(X)}, {v(X+1)}',
              f'  v_cvt_pk_bf16_f32 {v(P+1)}, {v(X+2)}, {v(X+3)}',
              f'  v_lshlrev_b32 {v(X)}, 16, {v(P)}',
              f'  v_and_b32 {v(X+1)}, {s(sMSK)}, {v(P)}',
              f'  v_lshlrev_b32 {v(X+2)}, 16, {v(P+1)}',
              f'  v_and_b32 {v(X+3)}, {s(sMSK)}, {v(P+1)}',
              f'  v_pk_mul_f32 {v(X,2)}, {v(X,2)}, {sc[0]} {smod}'.rstrip(),
              f'  v_pk_mul_f32 {v(X+2,2)}, {v(X+2,2)}, {sc[1]} {smod}'.rstrip()]
        return r, r2
    def kreduce(ss):
        d = S + (ss & 1)
        q = lambda j: f'quad_perm:[{j},{j},{j},{j}] row_mask:0xf bank_mask:0xf'
        r = [f'  v_mov_b32_dpp {v(X0)}, {v(SD)} {q(0)}',
             f'  v_mov_b32_dpp {v(X1)}, {v(SD+2)} {q(2)}',
             f'  v_add_f32_dpp {v(X0)}, {v(SD+1)}, {v(X0)} {q(1)}',
             f'  v_add_f32_dpp {v(X1)}, {v(SD+3)}, {v(X1)} {q(3)}',
             f'  v_add_f32 {v(d)}, {v(X0)}, {v(X1)}']
        if ss == 0: r.append(f'  v_cndmask_b32 {v(d)}, {v(d)}, {v(VNI)}, {s(sL0,2)}')
        if ss == 10: r.append(f'  v_cndmask_b32 {v(d)}, {v(d)}, {v(VNI)}, {s(sL10,2)}')
        if ss & 1 or ss == 10:
            r += [f'  v_cvt_pk_bf16_f32 {v(X0)}, {v(S)}, {v(S+1)}',
                  f'  v_lshlrev_b32 {v(S)}, 16, {v(X0)}',
                  f'  v_and_b32 {v(S+1)}, {s(sMSK)}, {v(X0)}',
                  f'  v_pk_mul_f32 {v(S,2)}, {v(S,2)}, {s(sSCL,2)}',
                  f'  v_cvt_pk_bf16_f32 {v(LG+(ss>>1))}, {v(S)}, {v(S+1)}']
        return r
    def lds_word(dst, addr):
        A(f'  v_mov_b32 {v(X0)}, {addr}')
        A(f'  ds_read_b32 {v(X0)}, {v(X0)}')
        A('  s_waitcnt lgkmcnt(0)')
        A(f'  v_readfirstlane_b32 {s(dst)}, {v(X0)}')

    A('L_k:')
    stamp()
    short_masks(DOWN, sC, sL0, sL10, s(sLOW + 2, 2))
    A(f'  s_add_u32 {s(sF)}, {s(sF)}, {W}')
    A(f'  s_cmp_lt_u32 {s(sF)}, {s(sGATE)}')
    A('  s_cbranch_scc1 L_k_known')
    A('L_k_spin:')
    lds_word(sDEC, F_DEC)
    A(f'  s_cmp_eq_u32 {s(sDEC)}, 0')
    A('  s_cbranch_scc1 L_k_spin')
    A(f'  s_mov_b32 {s(sGATE)}, -1')
    A(f'  s_bitcmp1_b32 {s(sDEC)}, 6')
    A(f'  s_cselect_b32 {s(sLIM)}, 255, {s(sLIM)}')
    A('L_k_known:')
    map_unit(sF, 0)
    wk = waits(6)
    for k in range(NST):
        ss, i = divmod(k, 3)
        if k == SW:
            A(f'  s_cmp_lt_u32 {s(sF)}, {NF}')
            A('  s_cbranch_scc1 L_k_keep')
            A(f'  s_bitcmp1_b32 {s(sDEC)}, 6')
            A(f'  s_cselect_b32 {s(sLIM)}, 255, 0')
            A(f'  v_mov_b32 {v(E)}, {v(X0)}')
            A(f'  v_mov_b32 {v(E+1)}, {v(X1)}')
            map_unit(3, 1)
            A(f'  v_mov_b32 {v(X0)}, {v(E)}')
            A(f'  v_mov_b32 {v(X1)}, {v(E+1)}')
            A(f'  s_mov_b32 {s(SI)}, {s(SV)}')
            A(f'  s_mov_b32 {s(SI+1)}, {s(SV+1)}')
            for x in vscale_loads(): A(x)
            A(f'  v_mov_b32 {v(ICON)}, {v(DCON)}')
            A('L_k_keep:')
            offsets(ICON)
        lds_ = [main_load(j, SK, sCUR) if k < SW else main_load(j, SI, sNXT) for j in issues(k)]
        A(f'  s_waitcnt vmcnt({wk[k]})')
        if not late:
            for x in lds_: A(x)
        c, rest = dequant(T, slot(k), (v(KZ+4*i,2), v(KZ+4*i+2,2)), (v(KS+4*i,2), v(KS+4*i+2,2)), '', '')
        for x in c: A(x)
        if late:
            for x in lds_: A(x)
        if k == PSMALL:
            A(f'  s_cmp_eq_u32 {s(sHN)}, {s(sHC)}')
            A('  s_cbranch_scc1 L_k_sameq')
            for x in q_loads(): A(x)
            A(f'  s_mov_b32 {s(sHC)}, {s(sHN)}')
            A('L_k_sameq:')
            for x in kscale_loads(): A(x)
        if ss == 0:
            for raw, dst in ((KZR, KZ), (KSR, KS)):
                for h in range(2):
                    A(f'  v_lshlrev_b32 {v(dst+4*i+2*h)}, 16, {v(raw+2*i+h)}')
                    A(f'  v_and_b32 {v(dst+4*i+2*h+1)}, {s(sMSK)}, {v(raw+2*i+h)}')
            for h in range(2): A(f'  v_mov_b32 {v(QB+2*i+h)}, {v(QN+2*i+h)}')
        rest += [f'  v_cvt_pk_bf16_f32 {v(KA+2*i)}, {v(T)}, {v(T+1)}',
                 f'  v_cvt_pk_bf16_f32 {v(KA+2*i+1)}, {v(T+2)}, {v(T+3)}']
        if i == 0 and ss > 0:
            r = kreduce(ss - 1)
            rest = rest[:2] + merge(rest[2:], r[:5], 2)
            pend = r[5:]
        elif i == 1 and ss > 0:
            rest = merge(rest, pend, 2)
        for x in rest: A(x)
        if i == 1: A(f'  v_mfma_f32_16x16x32_bf16 {v(SD,4)}, {v(KA,4)}, {v(QB,4)}, 0')
        if i == 2: A(f'  v_mfma_f32_16x16x16_bf16 {v(SD,4)}, {v(KA+4,2)}, {v(QB+4,2)}, {v(SD,4)}')
    A(f'  s_mov_b32 {s(sCUR)}, {s(sNXT)}')
    A(f'  v_mov_b32 {v(AL)}, {s(sF)}')
    A(f'  ds_write_b128 {v(VL1)}, {v(LG,4)}')
    A(f'  v_add_u32 {v(VL1)}, {384 * W}, {v(VL1)}')
    for x in kreduce(10): A(x)
    A(f'  ds_write_b64 {v(VL2)}, {v(LG+4,2)} offset:256')
    A(f'  ds_write_b32 {v(VPR)}, {v(AL)}')
    A(f'  v_add_u32 {v(VL2)}, {384 * W}, {v(VL2)}')
    A(f'  s_cmp_lt_u32 {s(sF)}, {NF}')
    A('  s_cbranch_scc1 L_k')

    def flush():
        A(f'  v_mov_b32 {v(X1)}, {v(LS)}')
        A(f'  v_permlane32_swap_b32 {v(LS)}, {v(X1)}')
        A(f'  v_add_f32 {v(LS)}, {v(LS)}, {v(X1)}')
        A(f'  v_mov_b32 {v(X1)}, {v(LS)}')
        A(f'  v_permlane16_swap_b32 {v(LS)}, {v(X1)}')
        A(f'  v_add_f32 {v(LS)}, {v(LS)}, {v(X1)}')
        A(f'  ds_write_b64 {v(VST)}, {v(NB,2)}')
        for i in range(3):
            A(f'  ds_write_b128 {v(VFL)}, {v(ACC+4*i,4)} offset:{1024*i}')
        A(f'  s_and_b32 {s(sT)}, {s(sQC)}, 15')
        A(f'  s_cmp_ge_u32 {s(sT)}, 12')
        A(f'  s_cselect_b32 {s(sT)}, 2, 0')
        A(f'  s_and_b32 {s(sT+1)}, {s(sCC)}, 1')
        A(f'  s_bitcmp1_b32 {s(sDEC)}, 6')
        A(f'  s_cselect_b32 {s(sT+1)}, {s(sRO)}, {s(sT+1)}')
        A(f'  s_add_u32 {s(sT)}, {s(sT)}, {s(sT+1)}')
        A(f'  s_lshr_b32 {s(sT+1)}, {s(sQC)}, 4')
        A(f'  s_lshl2_add_u32 {s(sT)}, {s(sT+1)}, {s(sT)}')
        for j in range(4 // W):
            A(f'  s_add_u32 {s(sT+1)}, s3, {W * j}')
            A(f'  s_cmp_eq_u32 {s(sSEG)}, {s(sT+1)}')
            A(f'  s_cselect_b32 {s(sREC+j)}, {s(sT)}, {s(sREC+j)}')
        A(f'  s_add_u32 {s(sSEG)}, {s(sSEG)}, 1')
        A('  s_waitcnt lgkmcnt(0)')
    def import_gate(tag):
        A(f'  s_cmp_lt_u32 {s(sF)}, {s(sGATE)}')
        A(f'  s_cbranch_scc1 L_{tag}_ok')
        A(f'L_{tag}_spin:')
        lds_word(sGATE, F_IMP)
        A(f'  s_cmp_lt_u32 {s(sF)}, {s(sGATE)}')
        A(f'  s_cbranch_scc0 L_{tag}_spin')
        A(f'L_{tag}_ok:')

    A(f'  v_subrev_u32 {v(VL1)}, {IMG}, {v(VL1)}')
    A(f'  v_subrev_u32 {v(VL2)}, {IMG}, {v(VL2)}')
    A(f'  s_mov_b32 {s(sF)}, s3')
    A(f'  s_mov_b32 {s(sHC)}, {s(sHN)}')
    A(f'  s_mov_b32 {s(sGATE)}, 0')
    import_gate('v0')
    A(f'  ds_read_b128 {v(LG,4)}, {v(VL1)}')
    A(f'  ds_read_b64 {v(LG+4,2)}, {v(VL2)} offset:256')
    A('L_v:')
    stamp()
    A(f'  s_mov_b32 {s(sQC)}, {s(sQ3)}')
    A(f'  s_mov_b32 {s(sCC)}, {s(sC)}')
    A(f'  s_add_u32 {s(sF)}, {s(sF)}, {W}')
    import_gate('v1')
    map_unit(sF, 1)
    A(f'  s_cmp_lt_u32 {s(sF)}, {NF}')
    A(f'  s_cselect_b32 {s(sNXT)}, {s(sNXT)}, {TOTAL}')
    prep = ['  s_waitcnt lgkmcnt(0)']
    for k in range(11):
        prep.append(f'  v_lshlrev_b32 {v(E+k)}, 16, {v(LG+k//2)}' if k % 2 == 0 else f'  v_and_b32 {v(E+k)}, {s(sMSK)}, {v(LG+k//2)}')
    prep += [f'  v_add_u32 {v(VL1)}, {384 * W}, {v(VL1)}',
             f'  v_add_u32 {v(VL2)}, {384 * W}, {v(VL2)}',
             f'  v_max3_f32 {v(X0)}, {v(E)}, {v(E+1)}, {v(E+2)}',
             f'  ds_read_b128 {v(LG,4)}, {v(VL1)}',
             f'  ds_read_b64 {v(LG+4,2)}, {v(VL2)} offset:256',
             f'  v_max3_f32 {v(X1)}, {v(E+3)}, {v(E+4)}, {v(E+5)}',
             f'  v_max3_f32 {v(X0)}, {v(X0)}, {v(E+6)}, {v(E+7)}',
             f'  v_max3_f32 {v(X1)}, {v(X1)}, {v(E+8)}, {v(E+9)}',
             f'  v_max3_f32 {v(X0)}, {v(X0)}, {v(E+10)}, {v(M)}',
             f'  v_max_f32 {v(X0)}, {v(X0)}, {v(X1)}',
             f'  v_mov_b32 {v(X1)}, {v(X0)}',
             f'  v_permlane32_swap_b32 {v(X0)}, {v(X1)}',
             f'  v_max_f32 {v(X0)}, {v(X0)}, {v(X1)}',
             f'  v_mov_b32 {v(X1)}, {v(X0)}',
             f'  v_permlane16_swap_b32 {v(X0)}, {v(X1)}',
             f'  v_max_f32 {v(M)}, {v(X0)}, {v(X1)}',
             f'  v_mul_f32 {v(X0)}, {s(sL2E)}, {v(M)}',
             f'  v_add_f32 {v(AL)}, {v(X0)}, {v(NB)}',
             f'  v_sub_f32 {v(NB)}, 0, {v(X0)}',
             f'  v_exp_f32 {v(AL)}, -{v(AL)}',
             f'  ds_bpermute_b32 {v(ALQ)}, {v(VBP)}, {v(AL)}']
    for k in range(11):
        prep += [f'  v_fma_f32 {v(E+k)}, {v(E+k)}, {s(sL2E)}, {v(NB)}', f'  v_exp_f32 {v(E+k)}, {v(E+k)}']
    prep += [f'  v_add_f32 {v(X0)}, {v(E)}, {v(E+1)}', f'  v_add_f32 {v(X1)}, {v(E+2)}, {v(E+3)}']
    for k in range(4, 11):
        x = X0 if k % 2 == 0 else X1
        prep.append(f'  v_add_f32 {v(x)}, {v(x)}, {v(E+k)}')
    prep += [f'  v_add_f32 {v(X0)}, {v(X0)}, {v(X1)}',
             f'  v_fma_f32 {v(LS)}, {v(LS)}, {v(AL)}, {v(X0)}']
    for k in range(6):
        prep.append(f'  v_cvt_pk_bf16_f32 {v(PP+k)}, {v(E+2*k)}, {v(E+2*k+1) if k < 5 else 0}')
    for j in range(4):
        for k in range(4):
            prep.append(f'  v_cndmask_b32 {v(AJ+4*j+k)}, 0, {v(PP+k)}, {s(sMJ+2*j,2)}')
    prep.append('  s_waitcnt lgkmcnt(0)')
    for k in range(12):
        prep.append(f'  v_mul_f32 {v(ACC+k)}, {v(ALQ)}, {v(ACC+k)}')
    prep2 = [f'  v_cndmask_b32 {v(AK+2*j+k)}, 0, {v(PP+4+k)}, {s(sMJ+2*j,2)}' for j in range(4) for k in range(2)]
    per = 5
    wv = waits(2)
    for k in range(NST):
        ss, i = divmod(k, 3)
        if k == SW: offsets(DCON)
        lds_ = [main_load(j, SV, sCUR if k < SW else sNXT) for j in issues(k)]
        A(f'  s_waitcnt vmcnt({wv[k]})')
        if not late:
            for x in lds_: A(x)
        if k == 0:
            A(f'  v_mov_b32 {v(ZC)}, {v(ZN)}')
            A(f'  v_mov_b32 {v(SC)}, {v(SN)}')
        X = TV + 4 * i if ss % 2 == 0 else T
        c, rest = dequant(X, slot(k), (v(ZS,2), v(ZS,2)), (v(ZS,2), v(ZS,2)), 'op_sel_hi:[1,0] ', 'op_sel:[0,1]')
        for x in c: A(x)
        if late:
            for x in lds_: A(x)
        if k == PSMALL:
            for x in vscale_loads(): A(x)
        if i == 0:
            A(f'  v_mov_b32_dpp {v(ZS)}, {v(ZC)} row_newbcast:{ss} row_mask:0xf bank_mask:0xf')
            A(f'  v_mov_b32_dpp {v(ZS+1)}, {v(SC)} row_newbcast:{ss} row_mask:0xf bank_mask:0xf')
        if ss % 2 == 1:
            rest += [f'  v_cvt_pk_bf16_f32 {v(BV+16*i+4*j+((ss>>1)&3))}, {v(TV+4*i+j)}, {v(T+j)}' for j in range(4)]
        if ss == 10:
            rest += [f'  v_cvt_pk_bf16_f32 {v(BV+16*i+4*j+1)}, {v(TV+4*i+j)}, 0' for j in range(4)]
        side, prep = prep[:per], prep[per:]
        if k == 20:
            side += prep; prep = []
        if k == 23: prep = prep2
        for x in merge(rest, side, 2): A(x)
        if ss == 7:
            for j in range(4):
                A(f'  v_mfma_f32_16x16x32_bf16 {v(ACC+4*i,4)}, {v(AJ+4*j,4)}, {v(BV+16*i+4*j,4)}, {v(ACC+4*i,4)}')
        if ss == 10:
            assert not prep
            for j in range(4):
                A(f'  v_mfma_f32_16x16x16_bf16 {v(ACC+4*i,4)}, {v(AK+2*j,2)}, {v(BV+16*i+4*j,2)}, {v(ACC+4*i,4)}')
    A(f'  s_mov_b32 {s(sCUR)}, {s(sNXT)}')
    A(f'  s_cmp_ge_u32 {s(sF)}, {NF}')
    A('  s_cbranch_scc1 L_v_done')
    A(f'  s_cmp_eq_u32 {s(sHN)}, {s(sHC)}')
    A('  s_cbranch_scc1 L_v')
    A(f'  s_mov_b32 {s(sHC)}, {s(sHN)}')
    flush()
    A(f'  v_add_u32 {v(VFL)}, {SEG}, {v(VFL)}')
    A(f'  v_add_u32 {v(VST)}, {SEG}, {v(VST)}')
    reset_state()
    A('  s_branch L_v')
    A('L_v_done:')
    flush()
    A('  s_waitcnt vmcnt(0)')

    A('  s_barrier')
    ST = RING; AC = (base + 3) // 4 * 4
    nv = max(nv, AC + 48)
    A(f'  v_lshrrev_b32 {v(AL)}, 1, {v(VBP)}')
    A(f'  v_lshlrev_b32 {v(ALQ)}, 4, v0')
    for j in range(4 // W):
        A(f'  s_mul_i32 {s(sT)}, s3, {SEG}')
        A(f'  s_add_u32 {s(sT)}, {s(sT)}, {LDS_ACC + W * j * SEG}')
        A(f'  v_add_u32 {v(X0)}, {s(sT)}, {v(AL)}')
        for w in range(W):
            A(f'  ds_read_b64 {v(ST+2*(W*j+w),2)}, {v(X0)} offset:{W*3072 + 32*w}')
        A(f'  v_add_u32 {v(X0)}, {s(sT)}, {v(ALQ)}')
        for w in range(W):
            for i in range(3):
                A(f'  ds_read_b128 {v(AC+12*(W*j+w)+4*i,4)}, {v(X0)} offset:{3072*w + 1024*i}')
    A('  s_waitcnt lgkmcnt(0)')
    for j in range(4 // W):
        OUT = ACC if j == 0 else RING + 12
        XX = X0 if j == 0 else ZS
        A(f'  s_mul_i32 {s(sT)}, {s(sREC+j)}, {REC}')
        A(f'  s_add_u32 {s(sT)}, {s(sT)}, {WSOFF}')
        combine(A, W, ST + 2 * W * j, AC + 12 * W * j, 3, XX, XX + 1, OUT)
        for i in range(3):
            A(f'  buffer_store_dwordx4 {v(OUT+4*i,4)}, {v(ALQ)}, {s(SW_,4)}, {s(sT)} offen offset:{1024*i} {stf}')
        A(f'  buffer_store_dwordx2 {v(XX,2)}, {v(AL)}, {s(SW_,4)}, {s(sT)} offen offset:3072 {stf}')
    A('L_fin:')
    if tl:
        A(f'  s_mul_i32 {s(sT)}, s2, {W+1}')
        A(f'  s_add_u32 {s(sT)}, {s(sT)}, s3')
        A(f'  s_lshl_b32 {s(sT)}, {s(sT)}, 8')
        A(f'  s_add_u32 {s(sT)}, {s(sT)}, 0x10000')
        A(f'  v_lshl_add_u32 {v(E)}, v0, 2, {s(sT)}')
        A(f'  global_store_dword {v(E)}, {v(TL)}, {s(sWS,2)}')
    if stamps:
        A('  s_waitcnt vmcnt(0)')
        A(f'  s_memrealtime {s(sU,2)}')
        A(f'  s_getreg_b32 {s(sU+2)}, hwreg(HW_REG_XCC_ID)')
        A(f'  s_mul_i32 {s(sT)}, s2, {W+1}')
        A(f'  s_add_u32 {s(sT)}, {s(sT)}, s3')
        A(f'  s_lshl_b32 {s(sT)}, {s(sT)}, 4')
        A('  s_waitcnt lgkmcnt(0)')
        A(f'  v_mov_b32 {v(RING)}, s6')
        A(f'  v_mov_b32 {v(RING+1)}, {s(sU)}')
        A(f'  v_mov_b32 {v(RING+2)}, {s(sU+2)}')
        A(f'  v_mov_b32 {v(RING+3)}, {s(sDEC)}')
        A(f'  v_mov_b32 {v(X0)}, {s(sT)}')
        A('  s_mov_b64 exec, 1')
        A(f'  global_store_dwordx4 {v(X0)}, {v(RING,4)}, {s(sWS,2)}')
    A('L_end:')
    A('  s_endpgm')

    A('L_helper:')
    if tl:
        A(f'  s_mov_b32 {s(sTL)}, 0')
        A(f'  v_mov_b32 {v(TL)}, 0')
    hA, hZ, hO, h1, h2, h3, hD = 1, 2, 3, 4, 5, 6, 8
    assert hD + 96 <= TL
    A(f'  v_lshlrev_b32 {v(hA)}, 2, v0')
    A(f'  v_add_u32 {v(hA)}, {LDS_F}, {v(hA)}')
    A(f'  v_mov_b32 {v(hZ)}, 0')
    A('  s_mov_b64 exec, 0xff')
    A(f'  ds_write_b32 {v(hA)}, {v(hZ)}')
    A('  s_mov_b64 exec, -1')
    make_srds()
    A('  s_barrier')
    sOF, sN0, sV0, sJ, sSF, sA, sB, sX, sFA, sFS, sME, sPA = 44, 45, 48, 50, 52, 54, 56, 58, 62, 63, 60, 61
    sQD = 64
    A('  s_bitcmp1_b32 s2, 3')
    A(f'  s_cselect_b32 {s(SI)}, {s(SV)}, {s(SK)}')
    A(f'  s_cselect_b32 {s(SI+1)}, {s(SV+1)}, {s(SK+1)}')
    A(f'  s_cselect_b32 {s(sSF)}, 24, 0')
    A(f'  s_lshl_b32 {s(sOF)}, {s(sPB)}, 16')
    A(f'  s_lshl_b32 {s(sT)}, {s(sRO)}, 16')
    A(f'  s_add_u32 {s(sOF)}, {s(sOF)}, {s(sT)}')
    A(f'  s_add_u32 {s(sOF)}, {s(sOF)}, 0x1c0000')
    A(f'  s_bfe_u32 {s(sT)}, s2, 0x40004')
    A(f'  s_mul_i32 {s(sT)}, {s(sT)}, 0x4a80')
    A(f'  s_and_b32 {s(sT)}, {s(sT)}, 0x5f80')
    A(f'  s_add_u32 {s(sOF)}, {s(sOF)}, {s(sT)}')
    A(f'  s_mov_b32 {s(sV0)}, 0')
    A(f'  s_mov_b32 {s(sV0+1)}, 0x1000000')
    A(f'  s_mov_b32 {s(sJ)}, 0')
    A('L_h_page:')
    A(f'  s_add_u32 {s(sT)}, {s(sOF)}, 0x8000')
    A(f'  s_buffer_load_dword {s(sX)}, {s(SI,4)}, {s(sT)}')
    A(f'  s_mov_b32 {s(sN0)}, -1')
    A(f'  s_mov_b32 {s(sN0+1)}, -1')
    A('  s_waitcnt lgkmcnt(0)')
    for k in range(NS):
        for c in range(2):
            o = (((k & 1) << 14) | ((k >> 1 & 1) << 12) | ((k * 0x380) & 0xfff)) ^ (c << 13)
            A(f'  s_xor_b32 {s(sT)}, {s(sOF)}, {o}')
            A(f'  s_memtime {s(sA,2)}')
            A('  s_waitcnt lgkmcnt(0)')
            A(f'  s_buffer_load_dword {s(sX)}, {s(SI,4)}, {s(sT)}')
            A('  s_waitcnt lgkmcnt(0)')
            A(f'  s_memtime {s(sB,2)}')
            A('  s_waitcnt lgkmcnt(0)')
            A(f'  s_sub_u32 {s(sB)}, {s(sB)}, {s(sA)}')
            A(f'  s_min_u32 {s(sN0+c)}, {s(sN0+c)}, {s(sB)}')
    A(f'  s_cmp_lt_u32 {s(sN0+1)}, {s(sN0)}')
    A(f'  s_cselect_b32 {s(sA)}, 1, 0')
    A(f'  s_xor_b32 {s(sA)}, {s(sA)}, {s(sRO)}')
    A(f'  s_mov_b32 {s(sA+1)}, 0')
    A(f'  s_lshl_b64 {s(sA,2)}, {s(sA,2)}, {s(sSF)}')
    A(f'  s_or_b64 {s(sV0,2)}, {s(sV0,2)}, {s(sA,2)}')
    A(f'  s_add_u32 {s(sSF)}, {s(sSF)}, 8')
    A(f'  s_add_u32 {s(sOF)}, {s(sOF)}, 0x10000000')
    A(f'  s_add_u32 {s(sJ)}, {s(sJ)}, 1')
    A(f'  s_cmp_lt_u32 {s(sJ)}, 3')
    A('  s_cbranch_scc1 L_h_page')
    stamp()
    A(f'  s_and_b32 {s(sT)}, s2, 3')
    A(f'  s_lshl_b32 {s(sFA)}, {s(sT)}, 6')
    A(f'  s_atomic_add_x2 {s(sV0,2)}, {s(sDBG,2)}, {s(sFA)}')
    A('  s_waitcnt lgkmcnt(0)')
    def wait_progress(tag, lim, slp):
        A(f'  v_mov_b32 {v(hA)}, {F_PRG}')
        A(f'L_h_prog{tag}:')
        A(f'  s_sleep {slp}')
        A(f'  ds_read_b128 {v(hD,4)}, {v(hA)}')
        A('  s_waitcnt lgkmcnt(0)')
        A(f'  v_min_u32 {v(hD)}, {v(hD)}, {v(hD+1)}')
        if W == 4: A(f'  v_min3_u32 {v(hD)}, {v(hD)}, {v(hD+2)}, {v(hD+3)}')
        A(f'  v_readfirstlane_b32 {s(sA)}, {v(hD)}')
        A(f'  s_cmp_lt_u32 {s(sA)}, {lim}')
        A(f'  s_cbranch_scc1 L_h_prog{tag}')
    wait_progress('v', PW, 8)
    A(f'  s_load_dwordx2 {s(sV0,2)}, {s(sDBG,2)}, {s(sFA)}')
    if safe: A('  s_mov_b32 s59, 0')
    A('L_h_votes:')
    A('  s_waitcnt lgkmcnt(0)')
    A(f'  s_lshr_b32 {s(sT)}, {s(sV0+1)}, 24')
    A(f'  s_cmp_eq_u32 {s(sT)}, 64')
    A('  s_cbranch_scc1 L_h_votes_done')
    if safe:
        A('  s_add_u32 s59, s59, 1')
        A('  s_cmp_gt_u32 s59, 2000')
        A('  s_cbranch_scc1 L_h_votes_done')
    A('  s_sleep 64')
    A(f'  s_mov_b64 {s(sV0,2)}, 0')
    A(f'  s_atomic_or_x2 {s(sV0,2)}, {s(sDBG,2)}, {s(sFA)} glc')
    A('  s_branch L_h_votes')
    A('L_h_votes_done:')
    A(f'  s_mov_b32 {s(sDEC)}, 0x80')
    for j in range(6):
        A(f'  s_bfe_u32 {s(sA)}, {s(sV0 + j // 4)}, {hex(0x80000 | (8 * (j % 4)))}')
        A(f'  s_cmp_gt_u32 {s(sA)}, 16')
        A(f'  s_cselect_b32 {s(sB)}, {1 << j}, 0')
        A(f'  s_or_b32 {s(sDEC)}, {s(sDEC)}, {s(sB)}')
        A(f'  s_sub_u32 {s(sA)}, {s(sA)}, {THR + 1}')
        A(f'  s_cmp_lt_u32 {s(sA)}, {32 - 2 * THR - 1}')
        A(f'  s_cselect_b32 {s(sB)}, 64, 0')
        A(f'  s_or_b32 {s(sDEC)}, {s(sDEC)}, {s(sB)}')
    if force >= 0:
        A(f'  s_mov_b32 {s(sDEC)}, {0x80 | force}')
    A(f'  s_mul_i32 {s(sA)}, {s(sRO)}, 63')
    A(f'  s_xor_b32 {s(sDEC)}, {s(sDEC)}, {s(sA)}')
    A(f'  v_mov_b32 {v(hA)}, {F_DEC}')
    A(f'  v_mov_b32 {v(hD)}, {s(sDEC)}')
    A(f'  ds_write_b32 {v(hA)}, {v(hD)}')
    stamp()
    A(f'  v_lshlrev_b32 {v(hO)}, 4, v0')
    if pf:
        for srd, nb in ((SKS, 24576), (SKZ, 24576), (SVS, 8192), (SVZ, 8192)):
            A(f'  s_mul_i32 {s(sA)}, s2, {nb}')
            for k in range(nb // 1024):
                if k % 4 == 0 and k: A(f'  s_add_u32 {s(sA)}, {s(sA)}, 4096')
                A(f'  s_waitcnt vmcnt({pf - 1})')
                A(f'  buffer_load_dwordx4 {v(hD,4)}, {v(hO)}, {s(srd,4)}, {s(sA)} offen offset:{(k % 4) * 1024}')
        A('  s_waitcnt vmcnt(0)')
    stamp()
    A(f'  s_bitcmp1_b32 {s(sDEC)}, 6')
    A('  s_cbranch_scc1 L_h_all')
    A(f'  s_lshr_b32 {s(sT)}, s2, 6')
    A(f'  s_lshl2_add_u32 {s(sFA)}, {s(sT)}, {s(sFA)}')
    A(f'  s_add_u32 {s(sFA)}, {s(sFA)}, 16')
    A(f'  s_bfe_u32 {s(sFS)}, s2, 0x40002')
    A(f'  s_lshl_b32 {s(sFS)}, {s(sFS)}, 1')
    A(f'  s_lshr_b32 {s(sX)}, {s(sDEC)}, 3')
    A(f'  s_xor_b32 {s(sX)}, {s(sX)}, {s(sDEC)}')
    A(f'  s_lshr_b32 {s(sT)}, {s(sPB)}, 4')
    A(f'  s_lshr_b32 {s(sOF)}, {s(sT)}, 5')
    A(f'  s_lshl_b32 {s(sOF)}, {s(sOF)}, 21')
    A(f'  s_add_u32 {s(sOF)}, {s(sOF)}, {WSX}')
    A(f'  s_and_b32 {s(sQD)}, {s(sT)}, 31')
    A(f'  s_add_u32 {s(sT)}, {s(sQD)}, {s(sRO)}')
    A(f'  s_lshl_b32 {s(sT)}, {s(sT)}, 10')
    A(f'  s_add_u32 {s(sME)}, {s(sOF)}, {s(sT)}')
    A(f'  s_xor_b32 {s(sPA)}, {s(sME)}, 1024')
    def pxor(k):
        h = k >> 2
        c = (h & 3) ^ (((h >> 2) & 1) * 17) ^ (((h >> 3) & 1) * 4)
        return (k << 15) | (c << 10)
    NW = NWU * 384 // 1024
    def reg(k): return hD + 4 * (k % 24)
    def export(lo, hi):
        for k in range(lo, hi): A(f'  ds_read_b128 {v(reg(k),4)}, {v(hO)} offset:{1024*k}')
        A('  s_waitcnt lgkmcnt(0)')
        for k in range(lo, hi):
            A(f'  s_xor_b32 {s(sT)}, {s(sME)}, {pxor(k)}')
            if not noexp: A(f'  buffer_store_dwordx4 {v(reg(k),4)}, {v(hO)}, {s(SW_,4)}, {s(sT)} offen {fl(xf)}')
    def imp(lo, hi):
        for k in range(lo, hi):
            A(f'  s_xor_b32 {s(sT)}, {s(sPA)}, {pxor(k)}')
            if not noimp: A(f'  buffer_load_dwordx4 {v(reg(k),4)}, {v(hO)}, {s(SW_,4)}, {s(sT)} offen sc1')
        A('  s_waitcnt vmcnt(0)')
        for k in range(lo, hi): A(f'  ds_write_b128 {v(hO)}, {v(reg(k),4)} offset:{1024*k}')
    def cond(bit, tag, fn):
        A(f'  s_bitcmp0_b32 {s(sX)}, {bit}')
        A(f'  s_cbranch_scc1 L_h_{tag}')
        fn()
        A(f'L_h_{tag}:')
    def handshake(tag, level):
        A('  s_waitcnt vmcnt(0)')
        A(f'  s_lshl_b32 {s(sA)}, 1, {s(sFS)}')
        A(f'  s_xor_b32 {s(sB)}, {s(sFS)}, 2')
        A(f'  s_atomic_add {s(sA)}, {s(sDBG,2)}, {s(sFA)} glc')
        if safe: A('  s_mov_b32 s59, 0')
        A(f'L_h_flag{tag}:')
        A('  s_waitcnt lgkmcnt(0)')
        A(f'  s_lshr_b32 {s(sA)}, {s(sA)}, {s(sB)}')
        A(f'  s_and_b32 {s(sA)}, {s(sA)}, 3')
        A(f'  s_cmp_ge_u32 {s(sA)}, {level}')
        A(f'  s_cbranch_scc1 L_h_flag{tag}_done')
        if safe:
            A('  s_add_u32 s59, s59, 1')
            A('  s_cmp_gt_u32 s59, 1000')
            A(f'  s_cbranch_scc1 L_h_flag{tag}_done')
        A('  s_sleep 127')
        A(f'  s_mov_b32 {s(sA)}, 0')
        A(f'  s_atomic_or {s(sA)}, {s(sDBG,2)}, {s(sFA)} glc')
        A(f'  s_branch L_h_flag{tag}')
        A(f'L_h_flag{tag}_done:')
    wait_progress('a', 64, 32)
    stamp()
    export(0, NW)
    cond(0, 'e0', lambda: export(NW, 12))
    cond(1, 'e1', lambda: export(12, 24))
    handshake('a', 1)
    stamp()
    A(f'  s_bfe_u32 {s(sA)}, {s(sDEC)}, 0x10003')
    A(f'  s_mul_i32 {s(sA)}, {s(sA)}, 384')
    A(f'  v_lshrrev_b32 {v(h1)}, 3, v0')
    for k in range(NW):
        A(f'  v_add_u32 {v(h2)}, {8 * k}, {v(h1)}')
        A(f'  v_mul_u32_u24 {v(h2)}, 21846, {v(h2)}')
        A(f'  v_bfe_u32 {v(h2)}, {v(h2)}, 16, 1')
        A(f'  v_mul_u32_u24 {v(h3)}, 384, {v(h2)}')
        A(f'  v_sub_u32 {v(h3)}, {v(hO)}, {v(h3)}')
        A(f'  v_add_u32 {v(h3)}, {s(sA)}, {v(h3)}')
        A(f'  v_add_u32 {v(h3)}, {1024 * k}, {v(h3)}')
        A(f'  v_add_u32 {v(h2)}, {s(sQD)}, {v(h2)}')
        A(f'  v_lshrrev_b32 {v(hZ)}, 12, {v(h3)}')
        A(f'  v_xor_b32 {v(h2)}, {v(h2)}, {v(hZ)}')
        A(f'  v_lshrrev_b32 {v(hZ)}, 10, {v(h3)}')
        A(f'  v_lshl_add_u32 {v(h2)}, {v(hZ)}, 5, {v(h2)}')
        A(f'  v_and_b32 {v(h3)}, 1023, {v(h3)}')
        A(f'  v_lshl_add_u32 {v(h2)}, {v(h2)}, 10, {v(h3)}')
        if not noimp: A(f'  buffer_load_dwordx4 {v(reg(k),4)}, {v(h2)}, {s(SW_,4)}, {s(sOF)} offen sc1')
    A('  s_waitcnt vmcnt(0)')
    for k in range(NW): A(f'  ds_write_b128 {v(hO)}, {v(reg(k),4)} offset:{1024*k}')
    cond(0, 'i0', lambda: imp(NW, 12))
    cond(1, 'i1', lambda: imp(12, 24))
    stamp()
    A(f'  s_bitcmp0_b32 {s(sX)}, 2')
    A('  s_cbranch_scc1 L_h_all')
    A(f'  v_mov_b32 {v(hA)}, {F_IMP}')
    A(f'  v_mov_b32 {v(h2)}, 64')
    A(f'  ds_write_b32 {v(hA)}, {v(h2)}')
    wait_progress('b', NF, 32)
    stamp()
    export(24, 36)
    handshake('b', 2)
    stamp()
    imp(24, 36)
    stamp()
    A('L_h_all:')
    A(f'  v_mov_b32 {v(hA)}, {F_IMP}')
    A(f'  v_mov_b32 {v(h2)}, 255')
    A(f'  ds_write_b32 {v(hA)}, {v(h2)}')
    A('  s_waitcnt lgkmcnt(0)')
    if stamps or tl:
        A('  s_branch L_fin')
    else:
        A('  s_endpgm')
    body = pad(L)

    L = []
    A = L.append
    A(f'{NAME2}:')
    A('  s_cmp_ge_u32 s2, 256')
    A('  s_cbranch_scc1 L2_end')
    A('  s_load_dwordx2 s[4:5], s[0:1], 56')
    A('  s_load_dwordx2 s[8:9], s[0:1], 72')
    A('  v_lshlrev_b32 v1, 4, v0')
    A('  v_lshrrev_b32 v2, 4, v0')
    A('  v_lshlrev_b32 v3, 3, v2')
    A('  v_mul_u32_u24 v2, 384, v2')
    A('  v_and_b32 v4, 15, v0')
    A('  v_lshl_add_u32 v2, v4, 3, v2')
    A(f'  s_mul_i32 s12, s2, {4 * REC}')
    A(f'  s_add_u32 s12, s12, {WSOFF}')
    for w in range(1, 4): A(f'  s_add_u32 s{12+w}, s{11+w}, {REC}')
    A('  s_mul_i32 s16, s2, 1536')
    A(f'  s_mov_b32 s6, {256 * 1536}')
    A('  s_mov_b32 s7, 0x20000')
    A(f'  s_mov_b32 s10, {WSOFF + 1024 * REC}')
    A('  s_mov_b32 s11, 0x20000')
    A('  s_waitcnt lgkmcnt(0)')
    A('  s_and_b32 s5, s5, 0xffff')
    A('  s_and_b32 s9, s9, 0xffff')
    for w in range(4):
        A(f'  buffer_load_dwordx2 {v(8+2*w,2)}, v3, s[8:11], s{12+w} offen offset:3072 {ldf}')
        for i in range(3):
            A(f'  buffer_load_dwordx4 {v(16+12*w+4*i,4)}, v1, s[8:11], s{12+w} offen offset:{1024*i} {ldf}')
    A('  s_waitcnt vmcnt(0)')
    combine(A, 4, 8, 16, 3, 6, 7, 64)
    A('  v_rcp_f32 v7, v7')
    for k in range(12): A(f'  v_mul_f32 {v(64+k)}, v7, {v(64+k)}')
    for i in range(3):
        A(f'  v_cvt_pk_bf16_f32 {v(64+4*i)}, {v(64+4*i)}, {v(65+4*i)}')
        A(f'  v_cvt_pk_bf16_f32 {v(65+4*i)}, {v(66+4*i)}, {v(67+4*i)}')
        A(f'  buffer_store_dwordx2 {v(64+4*i,2)}, v2, s[4:7], s16 offen offset:{128*i}')
    A('L2_end:')
    A('  s_endpgm')
    body2 = pad(L)

    nva = (nv + 7) // 8 * 8
    out = HDR + f'; @launch kernel={NAME} grid=(256,1,1) block=({64*(W+1)},1,1) lds={lds}\n'
    out += f'; @launch kernel={NAME2} grid=(256,1,1) block=(64,1,1) lds=0\n'
    out += '.amdgcn_target "amdgcn-amd-amdhsa--gfx950"\n.text\n'
    out += f'.globl {NAME}\n.p2align 8\n.type {NAME},@function\n'
    out += '\n'.join(body) + '\n'
    out += f'.globl {NAME2}\n.p2align 8\n.type {NAME2},@function\n'
    out += '\n'.join(body2) + '\n'
    out += '.section .rodata,"a"\n'
    for nm, nvv, nss in ((NAME, nva, 102), (NAME2, 80, 24)):
        out += f'''.p2align 6
.amdhsa_kernel {nm}
  .amdhsa_next_free_vgpr {nvv}
  .amdhsa_next_free_sgpr {nss}
  .amdhsa_accum_offset {nvv}
  .amdhsa_group_segment_fixed_size 0
  .amdhsa_kernarg_size 80
  .amdhsa_user_sgpr_count 2
  .amdhsa_user_sgpr_kernarg_segment_ptr 1
  .amdhsa_system_sgpr_workgroup_id_x 1
  .amdhsa_float_denorm_mode_32 3
.end_amdhsa_kernel
'''
    return out

if __name__ == '__main__':
    kw = {}
    for x in sys.argv[2:]:
        k, val = x.split('=')
        kw[k] = int(val) if val.lstrip('-').isdigit() else val
    open(sys.argv[1], 'w').write(gen(**kw))
```

```python
import re

REG = re.compile(r'(?<![\w.])([vsa])(\d+)\b|(?<![\w.])([vsa])\[(\d+):(\d+)\]')
TRANS = ('v_exp_f32', 'v_log_f32', 'v_rcp_f32', 'v_rsq_f32', 'v_sqrt_f32', 'v_sin_f32', 'v_cos_f32')

def regs_of(tok):
    out = set()
    for m in REG.finditer(tok):
        if m.group(1):
            out.add((m.group(1), int(m.group(2))))
        else:
            for k in range(int(m.group(4)), int(m.group(5)) + 1):
                out.add((m.group(3), k))
    if re.search(r'\bvcc(_lo|_hi)?\b', tok):
        out.add(('s', 106)); out.add(('s', 107))
    if re.search(r'\bexec\b', tok):
        out.add(('s', 126)); out.add(('s', 127))
    if re.search(r'\bm0\b', tok):
        out.add(('s', 124))
    return out

def split_ops(text):
    text = text.split(';')[0].strip()
    parts = text.split(None, 1)
    op = parts[0]
    rest = parts[1] if len(parts) > 1 else ''
    ops, depth, cur = [], 0, ''
    for ch in rest:
        if ch == '[': depth += 1
        if ch == ']': depth -= 1
        if ch == ',' and depth == 0:
            ops.append(cur.strip()); cur = ''
        else:
            cur += ch
    if cur.strip(): ops.append(cur.strip())
    return op, ops

class Ins:
    def __init__(self, text):
        self.text = text
        t = text.split(';')[0].strip()
        self.label = t.endswith(':')
        self.directive = t.startswith('.') or not t
        self.op, self.ops = ('', []) if (self.label or self.directive) else split_ops(t)
        op = self.op
        self.mfma = op.startswith('v_mfma')
        self.valu = op.startswith('v_') and not self.mfma
        self.vmem = op.startswith(('buffer_', 'global_', 'flat_')) and op not in ('buffer_wbl2', 'buffer_inv')
        self.ds = op.startswith('ds_')
        self.dpp = '_dpp' in op or 'row_newbcast' in t or 'quad_perm' in t
        self.trans = op.replace('_e32', '').replace('_e64', '') in TRANS
        self.permlane = op.startswith('v_permlane')
        self.readlane = op.startswith(('v_readlane', 'v_readfirstlane'))
        self.defs, self.uses = set(), set()
        self.srcc = set(); self.srcab = set()
        o = self.ops
        if self.mfma:
            self.defs = regs_of(o[0]); self.srcab = regs_of(o[1]) | regs_of(o[2]); self.srcc = regs_of(o[3].split()[0])
            self.uses = self.srcab | self.srcc
            self.passes = 2 if '4x4x4' in op else (4 if '16x16' in op else 8)
        elif self.valu:
            self.defs = regs_of(o[0])
            k = 1
            if op.startswith(('v_add_co', 'v_sub_co', 'v_subrev_co', 'v_addc_co', 'v_subb_co', 'v_div_scale')):
                self.defs |= regs_of(o[1]); k = 2
            for x in o[k:]: self.uses |= regs_of(x)
            if self.permlane:
                self.defs |= regs_of(o[1]); self.uses |= regs_of(o[0])
            if op.startswith(('v_fmac', 'v_dot2c', 'v_writelane')) or self.dpp:
                self.uses |= regs_of(o[0]) if op.startswith(('v_fmac', 'v_dot2c', 'v_writelane')) else set()
            if op.startswith('v_cmpx'):
                self.defs |= {('s', 126), ('s', 127)}
        elif self.vmem:
            store = 'store' in op or ('atomic' in op)
            lds = t.endswith(' lds') or ' lds ' in t
            if op.startswith('buffer_'):
                if store or lds:
                    for x in o: self.uses |= regs_of(x)
                    if 'atomic' in op and ' sc0' in t: self.defs = regs_of(o[0])
                else:
                    self.defs = regs_of(o[0])
                    for x in o[1:]: self.uses |= regs_of(x)
                self.data = regs_of(o[0]) if store else set()
            else:
                if store and not ('atomic' in op and ' sc0' in t):
                    for x in o: self.uses |= regs_of(x)
                    self.data = regs_of(o[1])
                else:
                    self.defs = regs_of(o[0])
                    for x in o[1:]: self.uses |= regs_of(x)
                    self.data = set()
            self.widestore = store and ('x3' in op or 'x4' in op)
        elif self.ds:
            if op.startswith(('ds_read', 'ds_bpermute', 'ds_permute', 'ds_swizzle')) or '_rtn' in op:
                self.defs = regs_of(o[0])
                for x in o[1:]: self.uses |= regs_of(x)
            else:
                for x in o: self.uses |= regs_of(x)
        elif op.startswith('s_') and o:
            if op.startswith(('s_cmp', 's_cbranch', 's_branch', 's_waitcnt', 's_nop', 's_setprio', 's_sleep', 's_barrier', 's_setpc')):
                for x in o: self.uses |= regs_of(x)
            else:
                self.defs = regs_of(o[0])
                for x in o[1:]: self.uses |= regs_of(x)
    def states(self):
        if self.label or self.directive: return 0
        if self.op == 's_nop': return int(self.ops[0], 0) + 1
        return 1

def vonly(s): return {r for r in s if r[0] in 'va'}
def sonly(s): return {r for r in s if r[0] == 's'}

def need(p, c):
    n = 0
    if p.valu:
        vd = vonly(p.defs); sd = sonly(p.defs)
        if c.mfma and vd & c.uses: n = max(n, 2)
        if c.valu and c.dpp and vd & c.uses: n = max(n, 2)
        if c.permlane and vd & c.uses: n = max(n, 2)
        if c.readlane and vd & c.uses: n = max(n, 1)
        if p.trans and (c.valu or c.mfma or c.vmem or c.ds) and vd & c.uses: n = max(n, 1)
        if ('sdwa' in p.op or ('op_sel' in p.text and not p.op.startswith('v_pk_'))) and c.valu and vd & (c.uses | c.defs): n = max(n, 1)
        if sd:
            if c.vmem and sd & c.uses: n = max(n, 5)
            if c.valu and sd & c.uses: n = max(n, 4 if c.op.startswith(('v_readlane', 'v_writelane')) else 2)
            if c.op.startswith('s_') and sd & c.uses: n = max(n, 2)
            if ('s', 126) in sd and (c.dpp or c.mfma or c.readlane or c.permlane): n = max(n, 5)
    if p.mfma:
        k = {2: 0, 4: 1, 8: 2}[p.passes]
        if c.mfma:
            if p.defs & c.srcab: n = max(n, (5, 8, 12)[k])
            if p.defs & c.srcc:
                n = max(n, (2, 0, 0)[k] if (p.defs == c.srcc and p.passes == c.passes) else (4, 6, 10)[k])
            elif p.defs & c.defs:
                n = max(n, (5, 8, 12)[k])
        elif (c.valu or c.vmem or c.ds) and p.defs & (c.uses | c.defs):
            n = max(n, (5, 8, 12)[k])
        if c.valu and p.srcc & c.defs: n = max(n, (1, 3, 7)[k])
    if p.vmem and p.widestore and p.data & c.defs: n = max(n, 2)
    if p.op.startswith('s_') and ('s', 124) in p.defs and c.vmem and 'lds' in c.text: n = max(n, 1)
    return n

WINDOW = 14

def pad(lines):
    ins = [Ins(l) for l in lines]
    changed = True
    start = 0
    while changed:
        changed = False
        labels = {i.text.split(';')[0].strip()[:-1]: k for k, i in enumerate(ins) if i.label}
        preds = {k: [] for k in range(len(ins))}
        for k, i in enumerate(ins):
            if i.op.startswith(('s_cbranch', 's_branch')):
                preds[labels[i.ops[0]]].append(k)
            if k + 1 < len(ins) and i.op not in ('s_branch', 's_endpgm', 's_setpc_b64'):
                preds[k + 1].append(k)
        for k, c in enumerate(ins):
            if k < start or c.label or c.directive: continue
            worst = 0
            stack = [(p, 0) for p in preds[k]]
            seen = set()
            while stack:
                p, d = stack.pop()
                if (p, d) in seen: continue
                seen.add((p, d))
                pi = ins[p]
                if not (pi.label or pi.directive):
                    worst = max(worst, need(pi, c) - d)
                d2 = d + pi.states()
                if d2 < WINDOW:
                    stack += [(q, d2) for q in preds[p]]
            if worst > 0:
                ins.insert(k, Ins(f'  s_nop {worst - 1}'))
                changed = True
                start = k
                break
    return [i.text for i in ins]
```

```python
import sys, os
sys.path.insert(0, os.path.dirname(os.path.abspath(__file__)))
from asmlib import pad
NAME = 'standalone__kv_cache_quant_int4_int2_kv_with_per_channel_or_per_token_scales__sampling_kernel'
NAME2 = 'merge_partials_kernel'
HEAD = 4096 * 768
TOTAL = 256 * HEAD
REC = 3328
WSOFF = 1 << 20
WSX = 8 << 20
WSC = 6 << 20
WSF = 7 << 20
IMG = 96 * 384
WSEND = WSX + (16 << 20)
OOB = 0x7ffffff0
HDR = open(os.path.join(os.path.dirname(os.path.abspath(__file__)), 'header.txt')).read()
assert all(((32 * c + 1) * 21846) >> 16 == (32 * c + 1) // 3 for c in range(25))
assert all((c * 43) >> 8 == c // 6 for c in range(24))

class Alloc:
    def __init__(self, start): self.n = start
    def __call__(self, k, align=1):
        self.n = (self.n + align - 1) // align * align
        r = self.n; self.n += k
        return r

def v(r, k=1): return f'v{r}' if k == 1 else f'v[{r}:{r+k-1}]'
def s(r, k=1): return f's{r}' if k == 1 else f's[{r}:{r+k-1}]'

def merge(main, side, every):
    out = []; side = list(side); c = 0
    for m in main:
        out.append(m); c += 1
        if side and c % every == 0: out.append(side.pop(0))
    return out + side

def combine(A, n, ST, AC, npiece, X0, X1, OUT):
    A(f'  v_min_f32 {v(X0)}, {v(ST)}, {v(ST+2)}')
    for w in range(2, n): A(f'  v_min_f32 {v(X0)}, {v(X0)}, {v(ST+2*w)}')
    for w in range(n): A(f'  v_sub_f32 {v(ST+2*w)}, {v(X0)}, {v(ST+2*w)}')
    for w in range(n): A(f'  v_exp_f32 {v(ST+2*w)}, {v(ST+2*w)}')
    A(f'  v_mul_f32 {v(X1)}, {v(ST)}, {v(ST+1)}')
    for w in range(1, n): A(f'  v_fma_f32 {v(X1)}, {v(ST+2*w)}, {v(ST+2*w+1)}, {v(X1)}')
    for i in range(npiece):
        for j in range(4):
            A(f'  v_mul_f32 {v(OUT+4*i+j)}, {v(ST)}, {v(AC+4*i+j)}')
            for w in range(1, n):
                A(f'  v_fma_f32 {v(OUT+4*i+j)}, {v(ST+2*w)}, {v(AC+4*(npiece*w+i)+j)}, {v(OUT+4*i+j)}')

def gen(D=6, W=4, stamps=False, sf='-', stf='sc1', ldf='-', tl=0, NWU=16, NS=2, pf=8, force=-1, THR=12, safe=0, PW=0, xf='sc1', noexp=0, noimp=0, DC=0, U=2, tail=0, ctl='', gain=22, dly=8, dead=30, novote=0):
    R = 11 * U; NST = 33; NF = 96
    DN = D; D = DC = DC or D
    assert DN <= D <= R and NWU % 8 == 0 and W in (2, 4)
    PW = PW or NWU - 2 * W
    fl = lambda x: x.replace('-', '').replace('+', ' ')
    sf, stf, ldf = fl(sf), fl(stf), fl(ldf)
    L = []
    A = L.append
    va = Alloc(1)
    RING = va(4 * R, 4); VO = va(4)
    DUP = va(1); DOWN = va(1); DCON = va(1); ICV = va(1); TU = va(1)
    VVS = va(1); VL1 = va(1); VL2 = va(1); VBP = va(1); VFL = va(1); VST = va(1); VPR = va(1)
    VOOB = va(1); VBA = va(1); VBS = va(1)
    T = va(4, 2); ZN = va(1); SN = va(1); ZC = va(1); SC = va(1); ZS = va(2, 2)
    LG = va(6, 4); ACC = va(12, 4); M = va(1); NB = va(2, 2); LS = NB + 1
    X0 = va(2, 2); X1 = X0 + 1; AL = va(1); ALQ = va(1); E = va(11); PP = va(6); TL = va(1)
    base = va.n
    QB = va(6, 4); QN = va(6, 2); KSR = va(6, 2); KZR = va(6, 2); KS = va(12, 2); KZ = va(12, 2); KA = va(6, 4); SD = va(4, 4); S = va(2, 2)
    IUP = va(1); IOWN = va(1); ICON = va(1); VKS0 = va(1); VKS = va(1); VQ = va(1); VNI = va(1)
    kend = va.n
    va.n = base
    AJ = va(16, 4); AK = va(8, 2); TV = va(12, 2); BV = va(48, 4)
    nv = max(va.n, kend)
    sRO, sPB = 4, 5
    SK, SV, SI, SKS, SKZ, SVS, SVZ, SQ, SW_ = 8, 12, 16, 20, 24, 28, 32, 36, 40
    PT = 44
    sREC, sL0, sL10, sM0, sM10, sLOW = 44, 48, 50, 52, 54, 56
    sCUR, sNXT, sSO, sF, sMSK, sL2E, sTL, s768, sSCL, sT = 60, 61, 62, 64, 65, 66, 67, 63, 68, 70
    sMJ = 72
    sDBG, sWS = 80, 82
    sQ3, sC, sQC, sCC, sHC, sHN, sDIV, sSH = 84, 85, 86, 87, 88, 89, 90, 91
    sDEC, sLIM, sGATE, sSEG = 96, 97, 99, 100
    sU = 92
    sBIG, sSM = 92, 94
    SEG = W * 3072 + W * 32
    LDS_ACC = IMG
    LDS_F = LDS_ACC + 4 * SEG
    F_DEC, F_IMP, F_BST, F_PRG = LDS_F, LDS_F + 4, LDS_F + 8, LDS_F + 16
    cps = [int(x) for x in str(ctl).split('.') if x]
    assert len(cps) <= 16
    lds = 87040
    assert LDS_F + 32 <= lds

    A(f'{NAME}:')
    A('  s_cmp_ge_u32 s2, 256')
    A('  s_cbranch_scc1 L_end')
    A(f'  s_load_dwordx16 {s(PT,16)}, s[0:1], 0')
    A(f'  s_load_dwordx4 {s(sDBG,4)}, s[0:1], 64')
    if stamps:
        A('  s_memrealtime s[6:7]')
    A('  v_lshrrev_b32 v1, 6, v0')
    A('  v_and_b32 v0, 63, v0')
    A('  v_readfirstlane_b32 s3, v1')
    A(f'  s_bfe_u32 {s(sRO)}, s2, 0x10002')
    A(f'  s_lshr_b32 {s(sPB)}, s2, 3')
    A(f'  s_lshl_b32 {s(sPB)}, {s(sPB)}, 2')
    A(f'  s_and_b32 {s(sT)}, s2, 3')
    A(f'  s_add_u32 {s(sPB)}, {s(sPB)}, {s(sT)}')
    A(f'  s_lshl_b32 {s(sPB)}, {s(sPB)}, 5')
    def make_srds():
        A('  s_waitcnt lgkmcnt(0)')
        for srd, p, nb in ((SK, PT + 2, TOTAL), (SKS, PT + 6, 256 * 24576), (SKZ, PT + 8, 256 * 24576), (SQ, PT, 256 * 1536),
                           (SI, PT + 2, TOTAL), (SV, PT + 4, TOTAL), (SVS, PT + 10, 256 * 8192), (SVZ, PT + 12, 256 * 8192), (SW_, sWS, WSEND)):
            A(f'  s_mov_b32 {s(srd)}, {s(p)}')
            A(f'  s_and_b32 {s(srd+1)}, {s(p+1)}, 0xffff')
            A(f'  s_mov_b32 {s(srd+2)}, {nb}')
            A(f'  s_mov_b32 {s(srd+3)}, 0x20000')
    A(f'  s_cmp_eq_u32 s3, {W}')
    A('  s_cbranch_scc1 L_helper')

    cls, a, g, n = T, T + 1, T + 2, T + 3
    A(f'  v_and_b32 {v(cls)}, 3, v0')
    A(f'  v_bfe_u32 {v(a)}, v0, 2, 2')
    A(f'  v_lshrrev_b32 {v(g)}, 4, v0')
    A(f'  v_and_b32 {v(n)}, 15, v0')
    def stream_consts(x, up, own, con, lanepart):
        A(f'  v_and_b32 {v(own)}, 2, {v(x)}')
        A(f'  v_lshlrev_b32 {v(up)}, 5, {v(own)}')
        A(f'  v_add_u32 {v(up)}, 129, {v(up)}')
        A(f'  v_and_b32 {v(X1)}, 1, {v(x)}')
        A(f'  v_lshl_add_u32 {v(own)}, {v(X1)}, 2, {v(own)}')
        A(f'  v_mul_u32_u24 {v(X1)}, {43 * 768}, {v(X1)}')
        A(f'  v_add_u32 {v(con)}, {v(lanepart)}, {v(X1)}')
        A(f'  v_subrev_u32 {v(con)}, {43 * 768}, {v(con)}')
    A(f'  v_lshlrev_b32 {v(X0)}, 4, {v(cls)}')
    A(f'  v_lshl_add_u32 {v(X0)}, {v(g)}, 6, {v(X0)}')
    A(f'  v_lshrrev_b32 {v(VKS0)}, 1, {v(X0)}')
    stream_consts(a, IUP, IOWN, ICON, X0)
    A(f'  v_mul_u32_u24 {v(X1)}, 384, {v(a)}')
    A(f'  v_add_u32 {v(VQ)}, {v(X1)}, {v(VKS0)}')
    A(f'  v_mov_b32 {v(VOOB)}, {OOB}')
    A(f'  s_mov_b32 {s(sDIV)}, 0xaaaaaaab')
    A(f'  s_mov_b32 {s(sSH)}, 0x492492')
    A(f'  s_movk_i32 {s(s768)}, 768')
    def slot(k): return RING + 4 * (k % R)
    def main_load(k, srd, so):
        ss, i = divmod(k % NST, 3)
        r, k0 = (0, 0) if ss == 0 else (1, 1) if ss <= 5 else (2, 6) if ss <= 9 else (3, 10)
        return f'  buffer_load_dwordx4 {v(slot(k),4)}, {v(VO+r)}, {s(srd,4)}, {s(so)} offen offset:{768*(ss-k0) + 256*i} nt'
    def kscale_loads():
        r = [f'  s_mul_i32 {s(sSO)}, {s(sQ3)}, 1536']
        for i in range(3):
            r.append(f'  buffer_load_dwordx2 {v(KSR+2*i,2)}, {v(VKS)}, {s(SKS,4)}, {s(sSO)} offen offset:{128*i} {sf}')
            r.append(f'  buffer_load_dwordx2 {v(KZR+2*i,2)}, {v(VKS)}, {s(SKZ,4)}, {s(sSO)} offen offset:{128*i} {sf}')
        return r
    def vscale_loads():
        return [f'  s_lshl_b32 {s(sSO)}, {s(sQ3)}, 9',
                f'  v_lshl_add_u32 {v(VVS)}, {v(TU)}, 1, {v(ICV)}',
                f'  buffer_load_short_d16_hi {v(ZN)}, {v(VVS)}, {s(SVZ,4)}, {s(sSO)} offen {sf}',
                f'  buffer_load_short_d16_hi {v(SN)}, {v(VVS)}, {s(SVS,4)}, {s(sSO)} offen {sf}']
    def q_loads():
        return [f'  s_mul_i32 {s(sT)}, {s(sHN)}, 1536'] + \
               [f'  buffer_load_dwordx2 {v(QN+2*i,2)}, {v(VQ)}, {s(SQ,4)}, {s(sT)} offen offset:{128*i} {sf}' for i in range(3)]
    def short_masks(own, c, m0, m10, low):
        A(f'  v_add_u32 {v(X0)}, {s(c)}, {v(own)}')
        A(f'  v_lshrrev_b32 {v(X1)}, {v(X0)}, {s(sSH)}')
        A(f'  v_and_b32 {v(X1)}, 1, {v(X1)}')
        A(f'  v_cmp_eq_u32 {s(m10,2)}, 1, {v(X1)}')
        A(f'  s_and_b64 {s(m0,2)}, {s(m10,2)}, {low}')
        A(f'  s_andn2_b64 {s(m10,2)}, {s(m10,2)}, {low}')
    def map_unit(f, isv):
        A(f'  s_andn2_b32 {s(sT)}, {s(f)}, 1')
        A(f'  s_or_b32 {s(sT)}, {s(sT)}, {s(sRO)}')
        A(f'  s_lshr_b32 {s(sT+1)}, {s(f)}, 5')
        A(f'  s_lshr_b32 {s(sC)}, {s(sDEC)}, {s(sT+1)}')
        if isv: A(f'  s_lshr_b32 {s(sC)}, {s(sC)}, 3')
        A(f'  s_cmp_lt_u32 {s(f)}, {s(sLIM)}')
        A(f'  s_cselect_b32 {s(sT)}, {s(sT)}, {s(f)}')
        A(f'  s_cselect_b32 {s(sC)}, {s(f)}, {s(sC)}')
        A(f'  s_and_b32 {s(sC)}, {s(sC)}, 1')
        A(f'  s_mul_i32 {s(sT+1)}, {s(sT+1)}, {4096 - 32}')
        A(f'  s_add_u32 {s(sT)}, {s(sT)}, {s(sT+1)}')
        A(f'  s_add_u32 {s(sT)}, {s(sT)}, {s(sPB)}')
        A(f'  s_mul_hi_u32 {s(sQ3)}, {s(sT)}, {s(sDIV)}')
        A(f'  s_lshr_b32 {s(sQ3)}, {s(sQ3)}, 1')
        A(f'  s_mul_i32 {s(sT+1)}, {s(sQ3)}, 3')
        A(f'  s_sub_u32 {s(sT)}, {s(sT)}, {s(sT+1)}')
        A(f'  s_lshl3_add_u32 {s(sC)}, {s(sT)}, {s(sC)}')
        A(f'  s_mul_i32 {s(sNXT)}, {s(sQ3)}, 196608')
        A(f'  s_lshr_b32 {s(sHN)}, {s(sQ3)}, 4')
        A(f'  s_lshl_b32 {s(sT)}, {s(sC)}, 5')
        A(f'  v_add_u32 {v(TU)}, {s(sT)}, {v(DUP if isv else IUP)}')
        A(f'  v_mul_u32_u24 {v(TU)}, 21846, {v(TU)}')
        A(f'  v_lshrrev_b32 {v(TU)}, 16, {v(TU)}')
        short_masks(DOWN if isv else IOWN, sC, sM0, sM10, s(sLOW + 2 * isv, 2))
        if not isv:
            A(f'  v_mul_u32_u24 {v(X0)}, 43, {v(X0)}')
            A(f'  v_lshrrev_b32 {v(X0)}, 8, {v(X0)}')
            A(f'  v_mul_u32_u24 {v(X0)}, 384, {v(X0)}')
            A(f'  v_add_u32 {v(VKS)}, {v(X0)}, {v(VKS0)}')
    def offsets(con):
        A(f'  v_mad_u32_u24 {v(VO)}, {v(TU)}, {s(s768)}, {v(con)}')
        A(f'  v_add_u32 {v(VO+1)}, 768, {v(VO)}')
        A(f'  v_add_u32 {v(VO+2)}, {6 * 768}, {v(VO)}')
        A(f'  v_add_u32 {v(VO+3)}, {10 * 768}, {v(VO)}')
        A(f'  v_cndmask_b32 {v(VO)}, {v(VO)}, {v(VOOB)}, {s(sM0,2)}')
        A(f'  v_cndmask_b32 {v(VO+3)}, {v(VO+3)}, {v(VOOB)}, {s(sM10,2)}')
    def stamp():
        if tl:
            A(f'  s_memrealtime {s(sT,2)}')
            A('  s_waitcnt lgkmcnt(0)')
            A(f'  s_min_u32 m0, {s(sTL)}, 63')
            A(f'  v_writelane_b32 {v(TL)}, {s(sT)}, m0')
            A(f'  s_add_u32 {s(sTL)}, {s(sTL)}, 1')
    def reset_state():
        for k in range(12): A(f'  v_mov_b32 {v(ACC+k)}, 0')
        A(f'  v_mov_b32 {v(M)}, 0xff800000')
        A(f'  v_mov_b32 {v(NB)}, 0x7f800000')
        A(f'  v_mov_b32 {v(LS)}, 0')
    A(f'  s_mov_b32 {s(sF)}, s3')
    A(f'  s_mov_b32 {s(sLIM)}, {NWU}')
    A(f'  s_mov_b32 {s(sGATE)}, {NWU}')
    A(f'  s_mov_b32 {s(sDEC)}, 0')
    make_srds()
    A(f'  s_mov_b32 {s(sLOW)}, 0x0f0f0f0f')
    A(f'  s_mov_b32 {s(sLOW+1)}, 0x0f0f0f0f')
    A(f'  s_mov_b32 {s(sLOW+2)}, 0xffff')
    A(f'  s_mov_b32 {s(sLOW+3)}, 0xffff')
    map_unit(sF, 0)
    offsets(ICON)
    A(f'  s_mov_b32 {s(sCUR)}, {s(sNXT)}')
    A(f'  s_mov_b32 {s(sHC)}, {s(sHN)}')
    for x in kscale_loads(): A(x)
    for x in q_loads(): A(x)
    for k in range(D): A(main_load(k, SK, sCUR))
    A('  s_mov_b64 vcc, 0')
    A(f'  v_lshlrev_b32 {v(X0)}, 4, {v(n)}')
    stream_consts(g, DUP, DOWN, DCON, X0)
    A(f'  v_and_b32 {v(X1)}, 1, {v(g)}')
    A(f'  v_mul_u32_u24 {v(X1)}, 86, {v(X1)}')
    A(f'  v_lshl_add_u32 {v(ICV)}, {v(n)}, 1, {v(X1)}')
    A(f'  v_subrev_u32 {v(ICV)}, 86, {v(ICV)}')
    A(f'  v_lshlrev_b32 {v(VBP)}, 4, {v(g)}')
    A(f'  v_lshrrev_b32 {v(X0)}, 2, v0')
    A(f'  s_mul_i32 {s(sT)}, s3, 384')
    A(f'  v_lshl_add_u32 {v(VL1)}, {v(X0)}, 4, {s(sT)}')
    A(f'  v_lshl_add_u32 {v(VL2)}, {v(X0)}, 3, {s(sT)}')
    A(f'  s_mul_i32 {s(sT)}, s3, 3072')
    A(f'  s_add_u32 {s(sT)}, {s(sT)}, {LDS_ACC}')
    A(f'  v_lshl_add_u32 {v(VFL)}, v0, 4, {s(sT)}')
    A(f'  s_lshl_b32 {s(sT)}, s3, 5')
    A(f'  s_add_u32 {s(sT)}, {s(sT)}, {LDS_ACC + W * 3072}')
    A(f'  v_lshl_add_u32 {v(VST)}, {v(a)}, 3, {s(sT)}')
    A(f'  s_lshl_b32 {s(sT)}, s3, 2')
    A(f'  s_add_u32 {s(sT)}, {s(sT)}, {F_PRG}')
    A(f'  v_mov_b32 {v(VPR)}, {s(sT)}')
    A(f'  v_mov_b32 {v(VBA)}, {F_BST}')
    A(f'  v_mov_b32 {v(ZN)}, 0')
    A(f'  v_mov_b32 {v(SN)}, 0')
    A(f'  v_mov_b32 {v(VNI)}, 0xff800000')
    A(f'  s_mov_b32 {s(sMSK)}, 0xffff0000')
    A(f'  s_mov_b32 {s(sL2E)}, 0x3fb8aa3b')
    for h in range(2):
        A(f'  s_mov_b32 {s(sSCL+h)}, {hex(0x3d93cd3a + (22 << 23))}')
        A(f'  s_mov_b32 {s(sBIG+h)}, 0x7f000000')
        A(f'  s_mov_b32 {s(sSM+h)}, {hex((127 - 22) << 23)}')
    for j in range(4):
        A(f'  s_mov_b32 {s(sMJ+2*j)}, {hex(0x11111111 << j)}')
        A(f'  s_mov_b32 {s(sMJ+2*j+1)}, {hex(0x11111111 << j)}')
        A(f'  s_mov_b32 {s(sREC+j)}, 0')
    A(f'  s_mov_b32 {s(sSEG)}, 0')
    reset_state()
    if tl:
        A(f'  s_mov_b32 {s(sTL)}, 0')
        A(f'  v_mov_b32 {v(TL)}, 0')
    A('  s_barrier')

    PSMALL = 3
    late = (D == R)
    SW = NST - D
    assert PSMALL < SW
    def wait_step(k, nsmall, tag):
        cnt = lambda d: d - 1 + (nsmall if k - d <= PSMALL < k else 0)
        A(f'  s_waitcnt vmcnt({cnt(D)})')
        if DN < D:
            A(f'  s_cbranch_vccnz L_{tag}')
            A(f'  s_waitcnt vmcnt({cnt(DN)})')
            A(f'L_{tag}:')
    def dequant(X, src, z, sc, zmod, smod):
        r = [f'  v_pk_fma_f32 {v(X+2*h,2)}, {v(src+2*h,2)}, {s(sBIG,2)}, {z[h]} {zmod}neg_lo:[0,0,1] neg_hi:[0,0,1]' for h in range(2)]
        r2 = [f'  v_cvt_pk_bf16_f32 {v(X+j)}, 0, {v(X+j)}' for j in range(4)]
        r2 += [f'  v_pk_mul_f32 {v(X+2*h,2)}, {v(X+2*h,2)}, {sc[h]} {smod}'.rstrip() for h in range(2)]
        return r, r2
    def kreduce(ss):
        d = S + (ss & 1)
        q = lambda j: f'quad_perm:[{j},{j},{j},{j}] row_mask:0xf bank_mask:0xf'
        r = [f'  v_mov_b32_dpp {v(X0)}, {v(SD)} {q(0)}',
             f'  v_mov_b32_dpp {v(X1)}, {v(SD+2)} {q(2)}',
             f'  v_add_f32_dpp {v(X0)}, {v(SD+1)}, {v(X0)} {q(1)}',
             f'  v_add_f32_dpp {v(X1)}, {v(SD+3)}, {v(X1)} {q(3)}',
             f'  v_add_f32 {v(d)}, {v(X0)}, {v(X1)}']
        if ss == 0: r.append(f'  v_cndmask_b32 {v(d)}, {v(d)}, {v(VNI)}, {s(sL0,2)}')
        if ss == 10: r.append(f'  v_cndmask_b32 {v(d)}, {v(d)}, {v(VNI)}, {s(sL10,2)}')
        if ss & 1 or ss == 10:
            r += [f'  v_cvt_pk_bf16_f32 {v(S)}, 0, {v(S)}',
                  f'  v_cvt_pk_bf16_f32 {v(S+1)}, 0, {v(S+1)}',
                  f'  v_pk_mul_f32 {v(S,2)}, {v(S,2)}, {s(sSCL,2)}',
                  f'  v_cvt_pk_bf16_f32 {v(LG+(ss>>1))}, {v(S)}, {v(S+1)}']
        return r
    def lds_word(dst, addr):
        A(f'  v_mov_b32 {v(X0)}, {addr}')
        A(f'  ds_read_b32 {v(X0)}, {v(X0)}')
        A('  s_waitcnt lgkmcnt(0)')
        A(f'  v_readfirstlane_b32 {s(dst)}, {v(X0)}')

    mf32 = f'  v_mfma_f32_16x16x32_bf16 {v(SD,4)}, {v(KA,4)}, {v(QB,4)}, 0'
    mf16 = f'  v_mfma_f32_16x16x16_bf16 {v(SD,4)}, {v(KA+4,2)}, {v(QB+4,2)}, {v(SD,4)}'
    def k_unit(u):
        o = NST * u
        if u == 0: stamp()
        short_masks(DOWN, sC, sL0, sL10, s(sLOW + 2, 2))
        A(f'  s_add_u32 {s(sF)}, {s(sF)}, {W}')
        A(f'  s_cmp_lt_u32 {s(sF)}, {s(sGATE)}')
        A(f'  s_cbranch_scc1 L_k_known{u}')
        A(f'L_k_spin{u}:')
        lds_word(sDEC, F_DEC)
        A(f'  s_cmp_eq_u32 {s(sDEC)}, 0')
        A(f'  s_cbranch_scc1 L_k_spin{u}')
        A(f'  s_mov_b32 {s(sGATE)}, -1')
        A(f'  s_bitcmp1_b32 {s(sDEC)}, 6')
        A(f'  s_cselect_b32 {s(sLIM)}, 255, {s(sLIM)}')
        A(f'L_k_known{u}:')
        map_unit(sF, 0)
        if cps: A(f'  ds_read_b32 {v(VBS)}, {v(VBA)}')
        for k in range(NST):
            ss, i = divmod(k, 3)
            if cps and k == 1:
                A('  s_waitcnt lgkmcnt(0)')
                A(f'  s_sub_u32 {s(sT)}, {s(sF)}, {W}')
                A(f'  v_cmp_lt_u32 vcc, {s(sT)}, {v(VBS)}')
            if k == SW and u < U - 1: offsets(ICON)
            if k == SW and u == U - 1:
                A(f'  s_cmp_lt_u32 {s(sF)}, {NF}')
                A(f'  s_cbranch_scc1 L_k_keep{u}')
                A(f'  s_bitcmp1_b32 {s(sDEC)}, 6')
                A(f'  s_cselect_b32 {s(sLIM)}, 255, 0')
                A(f'  v_mov_b32 {v(E)}, {v(X0)}')
                A(f'  v_mov_b32 {v(E+1)}, {v(X1)}')
                map_unit(3, 1)
                A(f'  v_mov_b32 {v(X0)}, {v(E)}')
                A(f'  v_mov_b32 {v(X1)}, {v(E+1)}')
                A(f'  s_mov_b32 {s(SI)}, {s(SV)}')
                A(f'  s_mov_b32 {s(SI+1)}, {s(SV+1)}')
                for x in vscale_loads(): A(x)
                A(f'  v_mov_b32 {v(ICON)}, {v(DCON)}')
                A(f'L_k_keep{u}:')
                offsets(ICON)
            lds_ = [main_load(o + k + D, SK, sCUR) if k < SW else main_load(o + k + D, SI, sNXT)]
            wait_step(k, 6, f'kw{u}_{k}')
            if not late:
                for x in lds_: A(x)
            if i == 2: A(mf32)
            if i == 0 and ss > 0: A(mf16)
            if ss == 0:
                for raw, dst in ((KZR, KZ), (KSR, KS)):
                    for h in range(2):
                        A(f'  v_lshlrev_b32 {v(dst+4*i+2*h)}, 16, {v(raw+2*i+h)}')
                        A(f'  v_and_b32 {v(dst+4*i+2*h+1)}, {s(sMSK)}, {v(raw+2*i+h)}')
                for h in range(2):
                    A(f'  v_pk_mul_f32 {v(KZ+4*i+2*h,2)}, {v(KZ+4*i+2*h,2)}, {s(sSM,2)}')
                    A(f'  v_mov_b32 {v(QB+2*i+h)}, {v(QN+2*i+h)}')
            c, rest = dequant(T, slot(o + k), (v(KZ+4*i,2), v(KZ+4*i+2,2)), (v(KS+4*i,2), v(KS+4*i+2,2)), '', '')
            for x in c: A(x)
            if late:
                for x in lds_: A(x)
            if k == PSMALL:
                A(f'  s_cmp_eq_u32 {s(sHN)}, {s(sHC)}')
                A(f'  s_cbranch_scc1 L_k_sameq{u}')
                for x in q_loads(): A(x)
                A(f'  s_mov_b32 {s(sHC)}, {s(sHN)}')
                A(f'L_k_sameq{u}:')
                for x in kscale_loads(): A(x)
            rest += [f'  v_cvt_pk_bf16_f32 {v(KA+2*i)}, {v(T)}, {v(T+1)}',
                     f'  v_cvt_pk_bf16_f32 {v(KA+2*i+1)}, {v(T+2)}, {v(T+3)}']
            if i == 1 and ss > 0:
                r = kreduce(ss - 1)
                rest = r[:2] + rest[:2] + r[2:4] + rest[2:4] + r[4:5] + rest[4:]
                pend = r[5:]
            elif i == 2 and ss > 0:
                rest = merge(rest, pend, 1)
            for x in rest: A(x)
        A(f'  s_mov_b32 {s(sCUR)}, {s(sNXT)}')
        A(f'  v_mov_b32 {v(AL)}, {s(sF)}')
        A(mf16)
        A(f'  ds_write_b128 {v(VL1)}, {v(LG,4)}')
        A(f'  v_add_u32 {v(VL1)}, {384 * W}, {v(VL1)}')
        for x in kreduce(10): A(x)
        A(f'  ds_write_b64 {v(VL2)}, {v(LG+4,2)} offset:256')
        A(f'  ds_write_b32 {v(VPR)}, {v(AL)}')
        A(f'  v_add_u32 {v(VL2)}, {384 * W}, {v(VL2)}')
    A('L_k:')
    for u in range(U): k_unit(u)
    A(f'  s_cmp_lt_u32 {s(sF)}, {NF}')
    A('  s_cbranch_scc1 L_k')

    def flush():
        A(f'  v_mov_b32 {v(X1)}, {v(LS)}')
        A(f'  v_permlane32_swap_b32 {v(LS)}, {v(X1)}')
        A(f'  v_add_f32 {v(LS)}, {v(LS)}, {v(X1)}')
        A(f'  v_mov_b32 {v(X1)}, {v(LS)}')
        A(f'  v_permlane16_swap_b32 {v(LS)}, {v(X1)}')
        A(f'  v_add_f32 {v(LS)}, {v(LS)}, {v(X1)}')
        A(f'  ds_write_b64 {v(VST)}, {v(NB,2)}')
        for i in range(3):
            A(f'  ds_write_b128 {v(VFL)}, {v(ACC+4*i,4)} offset:{1024*i}')
        A(f'  s_and_b32 {s(sT)}, {s(sQC)}, 15')
        A(f'  s_cmp_ge_u32 {s(sT)}, 12')
        A(f'  s_cselect_b32 {s(sT)}, 2, 0')
        A(f'  s_and_b32 {s(sT+1)}, {s(sCC)}, 1')
        A(f'  s_bitcmp1_b32 {s(sDEC)}, 6')
        A(f'  s_cselect_b32 {s(sT+1)}, {s(sRO)}, {s(sT+1)}')
        A(f'  s_add_u32 {s(sT)}, {s(sT)}, {s(sT+1)}')
        A(f'  s_lshr_b32 {s(sT+1)}, {s(sQC)}, 4')
        A(f'  s_lshl2_add_u32 {s(sT)}, {s(sT+1)}, {s(sT)}')
        for j in range(4 // W):
            A(f'  s_add_u32 {s(sT+1)}, s3, {W * j}')
            A(f'  s_cmp_eq_u32 {s(sSEG)}, {s(sT+1)}')
            A(f'  s_cselect_b32 {s(sREC+j)}, {s(sT)}, {s(sREC+j)}')
        A(f'  s_add_u32 {s(sSEG)}, {s(sSEG)}, 1')
        A('  s_waitcnt lgkmcnt(0)')
    def import_gate(tag):
        A(f'  s_cmp_lt_u32 {s(sF)}, {s(sGATE)}')
        A(f'  s_cbranch_scc1 L_{tag}_ok')
        A(f'L_{tag}_spin:')
        lds_word(sGATE, F_IMP)
        A(f'  s_cmp_lt_u32 {s(sF)}, {s(sGATE)}')
        A(f'  s_cbranch_scc0 L_{tag}_spin')
        A(f'L_{tag}_ok:')

    A(f'  v_subrev_u32 {v(VL1)}, {IMG}, {v(VL1)}')
    A(f'  v_subrev_u32 {v(VL2)}, {IMG}, {v(VL2)}')
    A(f'  s_mov_b32 {s(sF)}, s3')
    A(f'  s_mov_b32 {s(sHC)}, {s(sHN)}')
    A(f'  s_mov_b32 {s(sGATE)}, 0')
    import_gate('v0')
    A(f'  ds_read_b128 {v(LG,4)}, {v(VL1)}')
    A(f'  ds_read_b64 {v(LG+4,2)}, {v(VL2)} offset:256')
    def v_unit(u):
        o = NST * u
        A(f'L_v{u}:')
        if u == 0: stamp()
        A(f'  s_mov_b32 {s(sQC)}, {s(sQ3)}')
        A(f'  s_mov_b32 {s(sCC)}, {s(sC)}')
        A(f'  s_add_u32 {s(sF)}, {s(sF)}, {W}')
        import_gate(f'v1{u}')
        map_unit(sF, 1)
        if tail:
            A(f'  s_cmp_ge_u32 {s(sF)}, {NF - tail}')
            A('  s_cselect_b64 vcc, -1, 0')
        A(f'  s_cmp_lt_u32 {s(sF)}, {NF}')
        A(f'  s_cselect_b32 {s(sNXT)}, {s(sNXT)}, {TOTAL}')
        prep = ['  s_waitcnt lgkmcnt(0)']
        if cps:
            A(f'  s_add_u32 {s(sT)}, {s(sF)}, {NF - W}')
            A(f'  v_mov_b32 {v(AL)}, {s(sT)}')
            A(f'  ds_read_b32 {v(VBS)}, {v(VBA)}')
            A(f'  ds_write_b32 {v(VPR)}, {v(AL)}')
            prep.append(f'  v_cmp_lt_u32 vcc, {v(AL)}, {v(VBS)}')
        for k in range(11):
            prep.append(f'  v_lshlrev_b32 {v(E+k)}, 16, {v(LG+k//2)}' if k % 2 == 0 else f'  v_and_b32 {v(E+k)}, {s(sMSK)}, {v(LG+k//2)}')
        prep += [f'  v_add_u32 {v(VL1)}, {384 * W}, {v(VL1)}',
                 f'  v_add_u32 {v(VL2)}, {384 * W}, {v(VL2)}',
                 f'  v_max3_f32 {v(X0)}, {v(E)}, {v(E+1)}, {v(E+2)}',
                 f'  ds_read_b128 {v(LG,4)}, {v(VL1)}',
                 f'  ds_read_b64 {v(LG+4,2)}, {v(VL2)} offset:256',
                 f'  v_max3_f32 {v(X1)}, {v(E+3)}, {v(E+4)}, {v(E+5)}',
                 f'  v_max3_f32 {v(X0)}, {v(X0)}, {v(E+6)}, {v(E+7)}',
                 f'  v_max3_f32 {v(X1)}, {v(X1)}, {v(E+8)}, {v(E+9)}',
                 f'  v_max3_f32 {v(X0)}, {v(X0)}, {v(E+10)}, {v(M)}',
                 f'  v_max_f32 {v(X0)}, {v(X0)}, {v(X1)}',
                 f'  v_mov_b32 {v(X1)}, {v(X0)}',
                 f'  v_permlane32_swap_b32 {v(X0)}, {v(X1)}',
                 f'  v_max_f32 {v(X0)}, {v(X0)}, {v(X1)}',
                 f'  v_mov_b32 {v(X1)}, {v(X0)}',
                 f'  v_permlane16_swap_b32 {v(X0)}, {v(X1)}',
                 f'  v_max_f32 {v(M)}, {v(X0)}, {v(X1)}',
                 f'  v_mul_f32 {v(X0)}, {s(sL2E)}, {v(M)}',
                 f'  v_add_f32 {v(AL)}, {v(X0)}, {v(NB)}',
                 f'  v_sub_f32 {v(NB)}, 0, {v(X0)}',
                 f'  v_exp_f32 {v(AL)}, -{v(AL)}',
                 f'  ds_bpermute_b32 {v(ALQ)}, {v(VBP)}, {v(AL)}']
        for k in range(11):
            prep += [f'  v_fma_f32 {v(E+k)}, {v(E+k)}, {s(sL2E)}, {v(NB)}', f'  v_exp_f32 {v(E+k)}, {v(E+k)}']
        prep += [f'  v_add_f32 {v(X0)}, {v(E)}, {v(E+1)}', f'  v_add_f32 {v(X1)}, {v(E+2)}, {v(E+3)}']
        for k in range(4, 11):
            x = X0 if k % 2 == 0 else X1
            prep.append(f'  v_add_f32 {v(x)}, {v(x)}, {v(E+k)}')
        prep += [f'  v_add_f32 {v(X0)}, {v(X0)}, {v(X1)}',
                 f'  v_fma_f32 {v(LS)}, {v(LS)}, {v(AL)}, {v(X0)}']
        for k in range(6):
            prep.append(f'  v_cvt_pk_bf16_f32 {v(PP+k)}, {v(E+2*k)}, {v(E+2*k+1) if k < 5 else 0}')
        for j in range(4):
            for k in range(4):
                prep.append(f'  v_cndmask_b32 {v(AJ+4*j+k)}, 0, {v(PP+k)}, {s(sMJ+2*j,2)}')
        prep.append('  s_waitcnt lgkmcnt(0)')
        for k in range(12):
            prep.append(f'  v_mul_f32 {v(ACC+k)}, {v(ALQ)}, {v(ACC+k)}')
        prep2 = [f'  v_cndmask_b32 {v(AK+2*j+k)}, 0, {v(PP+4+k)}, {s(sMJ+2*j,2)}' for j in range(4) for k in range(2)]
        per = 5
        for k in range(NST):
            ss, i = divmod(k, 3)
            if k == SW: offsets(DCON)
            lds_ = [main_load(o + k + D, SV, sCUR if k < SW else sNXT)]
            wait_step(k, 2, f'vw{u}_{k}')
            if not late:
                for x in lds_: A(x)
            if k == 0:
                A(f'  v_mul_f32 {v(ZC)}, {s(sSM)}, {v(ZN)}')
                A(f'  v_mul_f32 {v(SC)}, {hex((127 + 22) << 23)}, {v(SN)}')
            if i == 0:
                A(f'  v_mov_b32_dpp {v(ZS)}, {v(ZC)} row_newbcast:{ss} row_mask:0xf bank_mask:0xf')
                A(f'  v_mov_b32_dpp {v(ZS+1)}, {v(SC)} row_newbcast:{ss} row_mask:0xf bank_mask:0xf')
            X = TV + 4 * i if ss % 2 == 0 else T
            c, rest = dequant(X, slot(o + k), (v(ZS,2), v(ZS,2)), (v(ZS,2), v(ZS,2)), 'op_sel_hi:[1,1,0] ', 'op_sel:[0,1]')
            for x in c: A(x)
            if late:
                for x in lds_: A(x)
            if k == PSMALL:
                for x in vscale_loads(): A(x)
            if ss % 2 == 1:
                rest += [f'  v_cvt_pk_bf16_f32 {v(BV+16*i+4*j+((ss>>1)&3))}, {v(TV+4*i+j)}, {v(T+j)}' for j in range(4)]
            if ss == 10:
                rest += [f'  v_cvt_pk_bf16_f32 {v(BV+16*i+4*j+1)}, {v(TV+4*i+j)}, 0' for j in range(4)]
            side, prep = prep[:per], prep[per:]
            if k == 20:
                side += prep; prep = []
            if k == 23: prep = prep2
            for x in merge(rest, side, 1): A(x)
            if ss == 7:
                for j in range(4):
                    A(f'  v_mfma_f32_16x16x32_bf16 {v(ACC+4*i,4)}, {v(AJ+4*j,4)}, {v(BV+16*i+4*j,4)}, {v(ACC+4*i,4)}')
            if ss == 10:
                assert not prep
                for j in range(4):
                    A(f'  v_mfma_f32_16x16x16_bf16 {v(ACC+4*i,4)}, {v(AK+2*j,2)}, {v(BV+16*i+4*j,2)}, {v(ACC+4*i,4)}')
        A(f'  s_mov_b32 {s(sCUR)}, {s(sNXT)}')
        if u == U - 1:
            A(f'  s_cmp_ge_u32 {s(sF)}, {NF}')
            A('  s_cbranch_scc1 L_v_done')
        A(f'  s_cmp_eq_u32 {s(sHN)}, {s(sHC)}')
        A(f'  s_cbranch_scc1 L_v{(u + 1) % U}')
        A(f'  s_mov_b32 {s(sHC)}, {s(sHN)}')
        flush()
        A(f'  v_add_u32 {v(VFL)}, {SEG}, {v(VFL)}')
        A(f'  v_add_u32 {v(VST)}, {SEG}, {v(VST)}')
        reset_state()
        if u == U - 1: A('  s_branch L_v0')
    for u in range(U): v_unit(u)
    A('L_v_done:')
    flush()
    A('  s_waitcnt vmcnt(0)')

    A('  s_barrier')
    ST = RING; AC = (base + 3) // 4 * 4
    nv = max(nv, AC + 48)
    A(f'  v_lshrrev_b32 {v(AL)}, 1, {v(VBP)}')
    A(f'  v_lshlrev_b32 {v(ALQ)}, 4, v0')
    for j in range(4 // W):
        A(f'  s_mul_i32 {s(sT)}, s3, {SEG}')
        A(f'  s_add_u32 {s(sT)}, {s(sT)}, {LDS_ACC + W * j * SEG}')
        A(f'  v_add_u32 {v(X0)}, {s(sT)}, {v(AL)}')
        for w in range(W):
            A(f'  ds_read_b64 {v(ST+2*(W*j+w),2)}, {v(X0)} offset:{W*3072 + 32*w}')
        A(f'  v_add_u32 {v(X0)}, {s(sT)}, {v(ALQ)}')
        for w in range(W):
            for i in range(3):
                A(f'  ds_read_b128 {v(AC+12*(W*j+w)+4*i,4)}, {v(X0)} offset:{3072*w + 1024*i}')
    A('  s_waitcnt lgkmcnt(0)')
    for j in range(4 // W):
        OUT = ACC if j == 0 else RING + 12
        XX = X0 if j == 0 else ZS
        A(f'  s_mul_i32 {s(sT)}, {s(sREC+j)}, {REC}')
        A(f'  s_add_u32 {s(sT)}, {s(sT)}, {WSOFF}')
        combine(A, W, ST + 2 * W * j, AC + 12 * W * j, 3, XX, XX + 1, OUT)
        for i in range(3):
            A(f'  buffer_store_dwordx4 {v(OUT+4*i,4)}, {v(ALQ)}, {s(SW_,4)}, {s(sT)} offen offset:{1024*i} {stf}')
        A(f'  buffer_store_dwordx2 {v(XX,2)}, {v(AL)}, {s(SW_,4)}, {s(sT)} offen offset:3072 {stf}')
    A('L_fin:')
    if tl:
        A(f'  s_mul_i32 {s(sT)}, s2, {W+1}')
        A(f'  s_add_u32 {s(sT)}, {s(sT)}, s3')
        A(f'  s_lshl_b32 {s(sT)}, {s(sT)}, 8')
        A(f'  s_add_u32 {s(sT)}, {s(sT)}, 0x10000')
        A(f'  v_lshl_add_u32 {v(E)}, v0, 2, {s(sT)}')
        A(f'  global_store_dword {v(E)}, {v(TL)}, {s(sWS,2)}')
    if stamps:
        A('  s_waitcnt vmcnt(0)')
        A(f'  s_memrealtime {s(sU,2)}')
        A(f'  s_getreg_b32 {s(sU+2)}, hwreg(HW_REG_XCC_ID)')
        A(f'  s_mul_i32 {s(sT)}, s2, {W+1}')
        A(f'  s_add_u32 {s(sT)}, {s(sT)}, s3')
        A(f'  s_lshl_b32 {s(sT)}, {s(sT)}, 4')
        A('  s_waitcnt lgkmcnt(0)')
        A(f'  v_mov_b32 {v(RING)}, s6')
        A(f'  v_mov_b32 {v(RING+1)}, {s(sU)}')
        A(f'  v_mov_b32 {v(RING+2)}, {s(sU+2)}')
        A(f'  v_mov_b32 {v(RING+3)}, {s(sDEC)}')
        A(f'  v_mov_b32 {v(X0)}, {s(sT)}')
        A('  s_mov_b64 exec, 1')
        A(f'  global_store_dwordx4 {v(X0)}, {v(RING,4)}, {s(sWS,2)}')
    A('L_end:')
    A('  s_endpgm')

    A('L_helper:')
    if tl:
        A(f'  s_mov_b32 {s(sTL)}, 0')
        A(f'  v_mov_b32 {v(TL)}, 0')
    hA, hZ, hO, h1, h2, h3, hD = 1, 2, 3, 4, 5, 6, 8
    assert hD + 96 <= TL
    A(f'  v_lshlrev_b32 {v(hA)}, 2, v0')
    A(f'  v_add_u32 {v(hA)}, {LDS_F}, {v(hA)}')
    A(f'  v_mov_b32 {v(hZ)}, 0')
    A('  s_mov_b64 exec, 0xff')
    A(f'  ds_write_b32 {v(hA)}, {v(hZ)}')
    A('  s_mov_b64 exec, -1')
    make_srds()
    A('  s_barrier')
    sOF, sN0, sV0, sJ, sSF, sA, sB, sX, sFA, sFS, sME, sPA = 44, 45, 48, 50, 52, 54, 56, 58, 62, 63, 60, 61
    sQD, sOWN, sUNT, sT0, sNON = 64, 65, 66, 72, 74
    hP, hQ = hD + 96, hD + 97
    assert hQ < TL
    A(f'  s_memrealtime {s(sT0,2)}')
    A(f'  s_mov_b32 {s(sUNT)}, 0')
    A(f'  s_lshr_b32 {s(sT)}, s2, 4')
    A(f'  s_and_b32 {s(sT)}, {s(sT)}, 8')
    A(f'  s_and_b32 {s(sT+1)}, s2, 7')
    A(f'  s_add_u32 {s(sT)}, {s(sT)}, {s(sT+1)}')
    A(f'  s_lshl_b32 {s(sT)}, {s(sT)}, 3')
    A(f'  v_mov_b32 {v(hP)}, {s(sT)}')
    A(f'  v_and_b32 {v(hQ)}, 15, v0')
    A(f'  v_lshlrev_b32 {v(hQ)}, 3, {v(hQ)}')
    A('  s_bitcmp1_b32 s2, 3')
    A(f'  s_cselect_b32 {s(SI)}, {s(SV)}, {s(SK)}')
    A(f'  s_cselect_b32 {s(SI+1)}, {s(SV+1)}, {s(SK+1)}')
    A(f'  s_cselect_b32 {s(sSF)}, 24, 0')
    A(f'  s_lshl_b32 {s(sOF)}, {s(sPB)}, 16')
    A(f'  s_lshl_b32 {s(sT)}, {s(sRO)}, 16')
    A(f'  s_add_u32 {s(sOF)}, {s(sOF)}, {s(sT)}')
    A(f'  s_add_u32 {s(sOF)}, {s(sOF)}, 0x1c0000')
    A(f'  s_bfe_u32 {s(sT)}, s2, 0x40004')
    A(f'  s_mul_i32 {s(sT)}, {s(sT)}, 0x4a80')
    A(f'  s_and_b32 {s(sT)}, {s(sT)}, 0x5f80')
    A(f'  s_add_u32 {s(sOF)}, {s(sOF)}, {s(sT)}')
    A(f'  s_mov_b32 {s(sV0)}, 0')
    A(f'  s_mov_b32 {s(sV0+1)}, 0x1000000')
    A(f'  s_mov_b32 {s(sJ)}, 0')
    A('L_h_page:')
    A(f'  s_add_u32 {s(sT)}, {s(sOF)}, 0x8000')
    A(f'  s_buffer_load_dword {s(sX)}, {s(SI,4)}, {s(sT)}')
    A(f'  s_mov_b32 {s(sN0)}, -1')
    A(f'  s_mov_b32 {s(sN0+1)}, -1')
    A('  s_waitcnt lgkmcnt(0)')
    for k in range(NS):
        for c in range(2):
            o = (((k & 1) << 14) | ((k >> 1 & 1) << 12) | ((k * 0x380) & 0xfff)) ^ (c << 13)
            A(f'  s_xor_b32 {s(sT)}, {s(sOF)}, {o}')
            A(f'  s_memtime {s(sA,2)}')
            A('  s_waitcnt lgkmcnt(0)')
            A(f'  s_buffer_load_dword {s(sX)}, {s(SI,4)}, {s(sT)}')
            A('  s_waitcnt lgkmcnt(0)')
            A(f'  s_memtime {s(sB,2)}')
            A('  s_waitcnt lgkmcnt(0)')
            A(f'  s_sub_u32 {s(sB)}, {s(sB)}, {s(sA)}')
            A(f'  s_min_u32 {s(sN0+c)}, {s(sN0+c)}, {s(sB)}')
    A(f'  s_cmp_lt_u32 {s(sN0+1)}, {s(sN0)}')
    A(f'  s_cselect_b32 {s(sA)}, 1, 0')
    A(f'  s_xor_b32 {s(sA)}, {s(sA)}, {s(sRO)}')
    A(f'  s_mov_b32 {s(sA+1)}, 0')
    A(f'  s_lshl_b64 {s(sA,2)}, {s(sA,2)}, {s(sSF)}')
    A(f'  s_or_b64 {s(sV0,2)}, {s(sV0,2)}, {s(sA,2)}')
    A(f'  s_add_u32 {s(sSF)}, {s(sSF)}, 8')
    A(f'  s_add_u32 {s(sOF)}, {s(sOF)}, 0x10000000')
    A(f'  s_add_u32 {s(sJ)}, {s(sJ)}, 1')
    A(f'  s_cmp_lt_u32 {s(sJ)}, 3')
    A('  s_cbranch_scc1 L_h_page')
    stamp()
    A(f'  s_and_b32 {s(sT)}, s2, 3')
    A(f'  s_lshl_b32 {s(sFA)}, {s(sT)}, 6')
    A('  s_cmp_ge_u32 s2, 4')
    A('  s_cbranch_scc1 L_h_nonce')
    A(f'  s_lshl_b64 {s(sA,2)}, {s(sT0,2)}, 2')
    A(f'  s_add_u32 {s(sT)}, {s(sFA)}, 8')
    A(f'  s_atomic_add_x2 {s(sA,2)}, {s(sDBG,2)}, {s(sT)} glc')
    A('  s_waitcnt lgkmcnt(0)')
    A('L_h_nonce:')
    if not novote: A(f'  s_atomic_add_x2 {s(sV0,2)}, {s(sDBG,2)}, {s(sFA)}')
    A('  s_waitcnt lgkmcnt(0)')
    def wait_progress(tag, lim, slp):
        A(f'  v_mov_b32 {v(hA)}, {F_PRG}')
        A(f'L_h_prog{tag}:')
        A(f'  s_sleep {slp}')
        A(f'  ds_read_b128 {v(hD,4)}, {v(hA)}')
        A('  s_waitcnt lgkmcnt(0)')
        A(f'  v_min_u32 {v(hD)}, {v(hD)}, {v(hD+1)}')
        if W == 4: A(f'  v_min3_u32 {v(hD)}, {v(hD)}, {v(hD+2)}, {v(hD+3)}')
        A(f'  v_readfirstlane_b32 {s(sA)}, {v(hD)}')
        A(f'  s_cmp_lt_u32 {s(sA)}, {lim}')
        A(f'  s_cbranch_scc1 L_h_prog{tag}')
    events = sorted([(c, 0, j) for j, c in enumerate(cps)] + [(c + dly, 1, j) for j, c in enumerate(cps)])
    def checkpoints(upto):
        while events and events[0][0] <= upto:
            c, act, j = events.pop(0)
            wait_progress(f'c{j}_{act}', c, 8)
            if not act:
                A(f'  s_memrealtime {s(sA,2)}')
                A('  s_waitcnt lgkmcnt(0)')
                A(f'  s_sub_u32 {s(sOWN)}, {s(sA)}, {s(sT0)}')
                A(f'  s_and_b32 {s(sT)}, s2, 0x78')
                A(f'  s_cbranch_scc1 L_h_np{j}')
                A(f'  v_mov_b32 {v(hD)}, {s(sA)}')
                A(f'  v_mov_b32 {v(hD+1)}, {s(sA+1)}')
                A(f'  s_mov_b32 {s(sT)}, {WSC + 256 * j}')
                A('  s_mov_b64 exec, 1')
                A(f'  buffer_store_dwordx2 {v(hD,2)}, {v(hP)}, {s(SW_,4)}, {s(sT)} offen sc1')
                A('  s_mov_b64 exec, -1')
                A(f'L_h_np{j}:')
                continue
            A(f'  s_mov_b32 {s(sT)}, {WSC + 256 * j}')
            A(f'  buffer_load_dwordx2 {v(hD,2)}, {v(hQ)}, {s(SW_,4)}, {s(sT)} offen')
            A(f'  v_mov_b32 {v(hD+2)}, {s(sT0+1)}')
            A('  s_waitcnt vmcnt(0)')
            A(f'  v_subrev_co_u32 {v(hD)}, vcc, {s(sT0)}, {v(hD)}')
            A(f'  v_subb_co_u32 {v(hD+1)}, vcc, {v(hD+1)}, {v(hD+2)}, vcc')
            A(f'  v_lshrrev_b32 {v(hD+2)}, 24, {v(hD)}')
            A(f'  v_or_b32 {v(hD+1)}, {v(hD+1)}, {v(hD+2)}')
            A(f'  v_cmp_eq_u32 vcc, 0, {v(hD+1)}')
            A(f'  v_cndmask_b32 {v(hD)}, 0, {v(hD)}, vcc')
            A(f'  s_and_b32 {s(sB)}, vcc_lo, 0xffff')
            A(f'  s_bcnt1_i32_b32 {s(sB)}, {s(sB)}')
            for r in (8, 4, 2, 1):
                A(f'  v_add_u32_dpp {v(hD)}, {v(hD)}, {v(hD)} row_ror:{r} row_mask:0xf bank_mask:0xf')
            A(f'  v_readfirstlane_b32 {s(sA)}, {v(hD)}')
            A(f'  s_sub_u32 {s(sT)}, {s(sOWN)}, {dead}')
            A(f'  s_mul_i32 {s(sT)}, {s(sT)}, {s(sB)}')
            A(f'  s_sub_i32 {s(sA)}, {s(sT)}, {s(sA)}')
            A(f'  s_max_i32 {s(sA)}, {s(sA)}, 0')
            A(f'  s_max_u32 {s(sB)}, {s(sB)}, 1')
            A(f'  s_mul_i32 {s(sB)}, {s(sB)}, {gain}')
            A(f'  v_cvt_f32_u32 {v(hD)}, {s(sB)}')
            A(f'  v_cvt_f32_u32 {v(hD+1)}, {s(sA)}')
            A(f'  v_rcp_f32 {v(hD)}, {v(hD)}')
            A(f'  v_fma_f32 {v(hD)}, {v(hD)}, {v(hD+1)}, 0.5')
            A(f'  v_cvt_u32_f32 {v(hD)}, {v(hD)}')
            A(f'  v_min_u32 {v(hD)}, 64, {v(hD)}')
            A(f'  v_readfirstlane_b32 {s(sA)}, {v(hD)}')
            A(f'  s_mul_i32 {s(sA)}, {s(sA)}, {W}')
            A(f'  s_sub_i32 {s(sT)}, {s(sUNT)}, {c - dly}')
            A(f'  s_max_i32 {s(sT)}, {s(sT)}, 0')
            A(f'  s_min_i32 {s(sT)}, {s(sT)}, {dly + W}')
            A(f'  s_sub_i32 {s(sA)}, {s(sA)}, {s(sT)}')
            A(f'  s_cmp_gt_i32 {s(sA)}, 0')
            A(f'  s_cselect_b32 {s(sT)}, {c + W}, 0')
            A(f'  s_cselect_b32 {s(sA)}, {s(sA)}, 0')
            A(f'  s_add_u32 {s(sUNT)}, {s(sT)}, {s(sA)}')
            A(f'  v_mov_b32 {v(hD)}, {s(sUNT)}')
            A(f'  v_mov_b32 {v(hA)}, {F_BST}')
            A(f'  ds_write_b32 {v(hA)}, {v(hD)}')
    wait_progress('v', PW, 8)
    A(f'  s_load_dwordx2 {s(sV0,2)}, {s(sDBG,2)}, {s(sFA)}')
    if safe: A('  s_mov_b32 s59, 0')
    A('L_h_votes:')
    A('  s_waitcnt lgkmcnt(0)')
    A(f'  s_lshr_b32 {s(sT)}, {s(sV0+1)}, 24')
    A(f'  s_cmp_eq_u32 {s(sT)}, {0 if novote else 64}')
    A('  s_cbranch_scc1 L_h_votes_done')
    if safe:
        A('  s_add_u32 s59, s59, 1')
        A('  s_cmp_gt_u32 s59, 2000')
        A('  s_cbranch_scc1 L_h_votes_done')
    A('  s_sleep 64')
    A(f'  s_mov_b64 {s(sV0,2)}, 0')
    A(f'  s_atomic_or_x2 {s(sV0,2)}, {s(sDBG,2)}, {s(sFA)} glc')
    A('  s_branch L_h_votes')
    A('L_h_votes_done:')
    A(f'  s_mov_b32 {s(sDEC)}, 0x80')
    for j in range(6):
        A(f'  s_bfe_u32 {s(sA)}, {s(sV0 + j // 4)}, {hex(0x80000 | (8 * (j % 4)))}')
        A(f'  s_cmp_gt_u32 {s(sA)}, 16')
        A(f'  s_cselect_b32 {s(sB)}, {1 << j}, 0')
        A(f'  s_or_b32 {s(sDEC)}, {s(sDEC)}, {s(sB)}')
        A(f'  s_sub_u32 {s(sA)}, {s(sA)}, {THR + 1}')
        A(f'  s_cmp_lt_u32 {s(sA)}, {32 - 2 * THR - 1}')
        A(f'  s_cselect_b32 {s(sB)}, 64, 0')
        A(f'  s_or_b32 {s(sDEC)}, {s(sDEC)}, {s(sB)}')
    if force >= 0:
        A(f'  s_mov_b32 {s(sDEC)}, {0x80 | force}')
    A(f'  s_mul_i32 {s(sA)}, {s(sRO)}, 63')
    A(f'  s_xor_b32 {s(sDEC)}, {s(sDEC)}, {s(sA)}')
    A(f'  v_mov_b32 {v(hA)}, {F_DEC}')
    A(f'  v_mov_b32 {v(hD)}, {s(sDEC)}')
    A(f'  ds_write_b32 {v(hA)}, {v(hD)}')
    stamp()
    A(f'  v_lshlrev_b32 {v(hO)}, 4, v0')
    if pf:
        for srd, nb in ((SKS, 24576), (SKZ, 24576), (SVS, 8192), (SVZ, 8192)):
            A(f'  s_mul_i32 {s(sA)}, s2, {nb}')
            for k in range(nb // 1024):
                if k % 4 == 0 and k: A(f'  s_add_u32 {s(sA)}, {s(sA)}, 4096')
                A(f'  s_waitcnt vmcnt({pf - 1})')
                A(f'  buffer_load_dwordx4 {v(hD,4)}, {v(hO)}, {s(srd,4)}, {s(sA)} offen offset:{(k % 4) * 1024}')
        A('  s_waitcnt vmcnt(0)')
    stamp()
    checkpoints(64)
    A(f'  s_bitcmp1_b32 {s(sDEC)}, 6')
    A('  s_cbranch_scc1 L_h_skipa')
    A(f'  s_add_u32 {s(sT)}, {s(sFA)}, 8')
    A(f'  s_load_dwordx2 {s(sNON,2)}, {s(sDBG,2)}, {s(sT)}')
    A('  s_waitcnt lgkmcnt(0)')
    A(f'  s_cmp_lg_u64 {s(sNON,2)}, 0')
    A('  s_cbranch_scc1 L_h_gotnonce')
    A(f'  s_atomic_or_x2 {s(sNON,2)}, {s(sDBG,2)}, {s(sT)} glc')
    A('  s_waitcnt lgkmcnt(0)')
    A('L_h_gotnonce:')
    A(f'  s_lshl_b32 {s(sFA)}, s2, 8')
    A(f'  s_add_u32 {s(sFA)}, {s(sFA)}, {WSF}')
    A(f'  s_xor_b32 {s(sFS)}, {s(sFA)}, 1024')
    A(f'  s_lshr_b32 {s(sX)}, {s(sDEC)}, 3')
    A(f'  s_xor_b32 {s(sX)}, {s(sX)}, {s(sDEC)}')
    A(f'  s_lshr_b32 {s(sT)}, {s(sPB)}, 4')
    A(f'  s_lshr_b32 {s(sOF)}, {s(sT)}, 5')
    A(f'  s_lshl_b32 {s(sOF)}, {s(sOF)}, 21')
    A(f'  s_add_u32 {s(sOF)}, {s(sOF)}, {WSX}')
    A(f'  s_and_b32 {s(sQD)}, {s(sT)}, 31')
    A(f'  s_add_u32 {s(sT)}, {s(sQD)}, {s(sRO)}')
    A(f'  s_lshl_b32 {s(sT)}, {s(sT)}, 10')
    A(f'  s_add_u32 {s(sME)}, {s(sOF)}, {s(sT)}')
    A(f'  s_xor_b32 {s(sPA)}, {s(sME)}, 1024')
    def pxor(k):
        h = k >> 2
        c = (h & 3) ^ (((h >> 2) & 1) * 17) ^ (((h >> 3) & 1) * 4)
        return (k << 15) | (c << 10)
    NW = NWU * 384 // 1024
    def reg(k): return hD + 4 * (k % 24)
    def export(lo, hi):
        for k in range(lo, hi): A(f'  ds_read_b128 {v(reg(k),4)}, {v(hO)} offset:{1024*k}')
        A('  s_waitcnt lgkmcnt(0)')
        for k in range(lo, hi):
            A(f'  s_xor_b32 {s(sT)}, {s(sME)}, {pxor(k)}')
            if not noexp: A(f'  buffer_store_dwordx4 {v(reg(k),4)}, {v(hO)}, {s(SW_,4)}, {s(sT)} offen {fl(xf)}')
    def imp(lo, hi):
        for k in range(lo, hi):
            A(f'  s_xor_b32 {s(sT)}, {s(sPA)}, {pxor(k)}')
            if not noimp: A(f'  buffer_load_dwordx4 {v(reg(k),4)}, {v(hO)}, {s(SW_,4)}, {s(sT)} offen sc1')
        A('  s_waitcnt vmcnt(0)')
        for k in range(lo, hi): A(f'  ds_write_b128 {v(hO)}, {v(reg(k),4)} offset:{1024*k}')
    def cond(bit, tag, fn):
        A(f'  s_bitcmp0_b32 {s(sX)}, {bit}')
        A(f'  s_cbranch_scc1 L_h_{tag}')
        fn()
        A(f'L_h_{tag}:')
    def handshake(tag, level):
        A(f'  s_add_u32 {s(sA)}, {s(sNON)}, {level}')
        A(f'  v_mov_b32 {v(h2)}, 0')
        A('  s_waitcnt vmcnt(0)')
        A(f'  v_mov_b32 {v(hD)}, {s(sA)}')
        A(f'  v_mov_b32 {v(hD+1)}, {s(sNON+1)}')
        A('  s_mov_b64 exec, 1')
        A(f'  buffer_store_dwordx2 {v(hD,2)}, {v(h2)}, {s(SW_,4)}, {s(sFA)} offen sc1')
        if safe: A('  s_mov_b32 s59, 0')
        A(f'L_h_flag{tag}:')
        A(f'  buffer_load_dwordx2 {v(hD+2,2)}, {v(h2)}, {s(SW_,4)}, {s(sFS)} offen sc1')
        A('  s_waitcnt vmcnt(0)')
        A(f'  v_readfirstlane_b32 {s(sB)}, {v(hD+2)}')
        A(f'  v_readfirstlane_b32 {s(sB+1)}, {v(hD+3)}')
        A(f'  s_sub_u32 {s(sB)}, {s(sB)}, {s(sA)}')
        A(f'  s_xor_b32 {s(sB+1)}, {s(sB+1)}, {s(sNON+1)}')
        A(f'  s_lshr_b32 {s(sB)}, {s(sB)}, 1')
        A(f'  s_or_b32 {s(sB)}, {s(sB)}, {s(sB+1)}')
        A(f'  s_cbranch_scc0 L_h_flag{tag}_done')
        if safe:
            A('  s_add_u32 s59, s59, 1')
            A('  s_cmp_gt_u32 s59, 2000')
            A(f'  s_cbranch_scc1 L_h_flag{tag}_done')
        A('  s_sleep 32')
        A(f'  s_branch L_h_flag{tag}')
        A(f'L_h_flag{tag}_done:')
        A('  s_mov_b64 exec, -1')
    wait_progress('a', 64, 32)
    stamp()
    export(0, NW)
    cond(0, 'e0', lambda: export(NW, 12))
    cond(1, 'e1', lambda: export(12, 24))
    handshake('a', 1)
    stamp()
    A(f'  s_bfe_u32 {s(sA)}, {s(sDEC)}, 0x10003')
    A(f'  s_mul_i32 {s(sA)}, {s(sA)}, 384')
    A(f'  v_lshrrev_b32 {v(h1)}, 3, v0')
    for k in range(NW):
        A(f'  v_add_u32 {v(h2)}, {8 * k}, {v(h1)}')
        A(f'  v_mul_u32_u24 {v(h2)}, 21846, {v(h2)}')
        A(f'  v_bfe_u32 {v(h2)}, {v(h2)}, 16, 1')
        A(f'  v_mul_u32_u24 {v(h3)}, 384, {v(h2)}')
        A(f'  v_sub_u32 {v(h3)}, {v(hO)}, {v(h3)}')
        A(f'  v_add_u32 {v(h3)}, {s(sA)}, {v(h3)}')
        A(f'  v_add_u32 {v(h3)}, {1024 * k}, {v(h3)}')
        A(f'  v_add_u32 {v(h2)}, {s(sQD)}, {v(h2)}')
        A(f'  v_lshrrev_b32 {v(hZ)}, 12, {v(h3)}')
        A(f'  v_xor_b32 {v(h2)}, {v(h2)}, {v(hZ)}')
        A(f'  v_lshrrev_b32 {v(hZ)}, 10, {v(h3)}')
        A(f'  v_lshl_add_u32 {v(h2)}, {v(hZ)}, 5, {v(h2)}')
        A(f'  v_and_b32 {v(h3)}, 1023, {v(h3)}')
        A(f'  v_lshl_add_u32 {v(h2)}, {v(h2)}, 10, {v(h3)}')
        if not noimp: A(f'  buffer_load_dwordx4 {v(reg(k),4)}, {v(h2)}, {s(SW_,4)}, {s(sOF)} offen sc1')
    A('  s_waitcnt vmcnt(0)')
    for k in range(NW): A(f'  ds_write_b128 {v(hO)}, {v(reg(k),4)} offset:{1024*k}')
    cond(0, 'i0', lambda: imp(NW, 12))
    cond(1, 'i1', lambda: imp(12, 24))
    stamp()
    A('L_h_skipa:')
    A(f'  s_lshr_b32 {s(sT)}, {s(sDEC)}, 4')
    A(f'  s_andn2_b32 {s(sX)}, {s(sX)}, {s(sT)}')
    A(f'  s_bitcmp0_b32 {s(sX)}, 2')
    A(f'  s_cselect_b32 {s(sT)}, 255, 64')
    A(f'  v_mov_b32 {v(hA)}, {F_IMP}')
    A(f'  v_mov_b32 {v(h2)}, {s(sT)}')
    A(f'  ds_write_b32 {v(hA)}, {v(h2)}')
    checkpoints(NF)
    A(f'  s_bitcmp0_b32 {s(sX)}, 2')
    A('  s_cbranch_scc1 L_h_all')
    wait_progress('b', NF, 32)
    stamp()
    export(24, 36)
    handshake('b', 2)
    stamp()
    imp(24, 36)
    stamp()
    A(f'  v_mov_b32 {v(hA)}, {F_IMP}')
    A(f'  v_mov_b32 {v(h2)}, 255')
    A(f'  ds_write_b32 {v(hA)}, {v(h2)}')
    A('L_h_all:')
    checkpoints(999)
    A('  s_waitcnt lgkmcnt(0)')
    if stamps or tl:
        A('  s_branch L_fin')
    else:
        A('  s_endpgm')
    body = pad(L)

    L = []
    A = L.append
    A(f'{NAME2}:')
    A('  s_cmp_ge_u32 s2, 256')
    A('  s_cbranch_scc1 L2_end')
    A('  s_load_dwordx2 s[4:5], s[0:1], 56')
    A('  s_load_dwordx2 s[8:9], s[0:1], 72')
    A('  v_lshlrev_b32 v1, 4, v0')
    A('  v_lshrrev_b32 v2, 4, v0')
    A('  v_lshlrev_b32 v3, 3, v2')
    A('  v_mul_u32_u24 v2, 384, v2')
    A('  v_and_b32 v4, 15, v0')
    A('  v_lshl_add_u32 v2, v4, 3, v2')
    A(f'  s_mul_i32 s12, s2, {4 * REC}')
    A(f'  s_add_u32 s12, s12, {WSOFF}')
    for w in range(1, 4): A(f'  s_add_u32 s{12+w}, s{11+w}, {REC}')
    A('  s_mul_i32 s16, s2, 1536')
    A(f'  s_mov_b32 s6, {256 * 1536}')
    A('  s_mov_b32 s7, 0x20000')
    A(f'  s_mov_b32 s10, {WSOFF + 1024 * REC}')
    A('  s_mov_b32 s11, 0x20000')
    A('  s_waitcnt lgkmcnt(0)')
    A('  s_and_b32 s5, s5, 0xffff')
    A('  s_and_b32 s9, s9, 0xffff')
    for w in range(4):
        A(f'  buffer_load_dwordx2 {v(8+2*w,2)}, v3, s[8:11], s{12+w} offen offset:3072 {ldf}')
        for i in range(3):
            A(f'  buffer_load_dwordx4 {v(16+12*w+4*i,4)}, v1, s[8:11], s{12+w} offen offset:{1024*i} {ldf}')
    A('  s_waitcnt vmcnt(0)')
    combine(A, 4, 8, 16, 3, 6, 7, 64)
    A('  v_rcp_f32 v7, v7')
    for k in range(12): A(f'  v_mul_f32 {v(64+k)}, v7, {v(64+k)}')
    for i in range(3):
        A(f'  v_cvt_pk_bf16_f32 {v(64+4*i)}, {v(64+4*i)}, {v(65+4*i)}')
        A(f'  v_cvt_pk_bf16_f32 {v(65+4*i)}, {v(66+4*i)}, {v(67+4*i)}')
        A(f'  buffer_store_dwordx2 {v(64+4*i,2)}, v2, s[4:7], s16 offen offset:{128*i}')
    A('L2_end:')
    A('  s_endpgm')
    body2 = pad(L)

    nva = (nv + 7) // 8 * 8
    out = HDR + f'; @launch kernel={NAME} grid=(256,1,1) block=({64*(W+1)},1,1) lds={lds}\n'
    out += f'; @launch kernel={NAME2} grid=(256,1,1) block=(64,1,1) lds=0\n'
    out += '.amdgcn_target "amdgcn-amd-amdhsa--gfx950"\n.text\n'
    out += f'.globl {NAME}\n.p2align 8\n.type {NAME},@function\n'
    out += '\n'.join(body) + '\n'
    out += f'.globl {NAME2}\n.p2align 8\n.type {NAME2},@function\n'
    out += '\n'.join(body2) + '\n'
    out += '.section .rodata,"a"\n'
    for nm, nvv, nss in ((NAME, nva, 102), (NAME2, 80, 24)):
        out += f'''.p2align 6
.amdhsa_kernel {nm}
  .amdhsa_next_free_vgpr {nvv}
  .amdhsa_next_free_sgpr {nss}
  .amdhsa_accum_offset {nvv}
  .amdhsa_group_segment_fixed_size 0
  .amdhsa_kernarg_size 80
  .amdhsa_user_sgpr_count 2
  .amdhsa_user_sgpr_kernarg_segment_ptr 1
  .amdhsa_system_sgpr_workgroup_id_x 1
  .amdhsa_float_denorm_mode_32 3
.end_amdhsa_kernel
'''
    return out

if __name__ == '__main__':
    kw = {}
    for x in sys.argv[2:]:
        k, val = x.split('=')
        kw[k] = int(val) if val.lstrip('-').isdigit() else val
    open(sys.argv[1], 'w').write(gen(**kw))
```

```python
import sys, os
sys.path.insert(0, os.path.dirname(os.path.abspath(__file__)))
from asmlib import pad
NAME = 'standalone__kv_cache_quant_int4_int2_kv_with_per_channel_or_per_token_scales__sampling_kernel'
NAME2 = 'merge_partials_kernel'
HEAD = 4096 * 768
TOTAL = 256 * HEAD
REC = 3328
WSOFF = 1 << 20
WSX = 8 << 20
WSC = 6 << 20
WSF = 7 << 20
IMG = 96 * 384
WSEND = WSX + (16 << 20)
OOB = 0x7ffffff0
HDR = open(os.path.join(os.path.dirname(os.path.abspath(__file__)), 'header.txt')).read()
assert all(((32 * c + 1) * 21846) >> 16 == (32 * c + 1) // 3 for c in range(25))
assert all((c * 43) >> 8 == c // 6 for c in range(24))

class Alloc:
    def __init__(self, start): self.n = start
    def __call__(self, k, align=1):
        self.n = (self.n + align - 1) // align * align
        r = self.n; self.n += k
        return r

def v(r, k=1): return f'v{r}' if k == 1 else f'v[{r}:{r+k-1}]'
def s(r, k=1): return f's{r}' if k == 1 else f's[{r}:{r+k-1}]'

def merge(main, side, every):
    out = []; side = list(side); c = 0
    for m in main:
        out.append(m); c += 1
        if side and c % every == 0: out.append(side.pop(0))
    return out + side

def combine(A, n, ST, AC, npiece, X0, X1, OUT):
    A(f'  v_min_f32 {v(X0)}, {v(ST)}, {v(ST+2)}')
    for w in range(2, n): A(f'  v_min_f32 {v(X0)}, {v(X0)}, {v(ST+2*w)}')
    for w in range(n): A(f'  v_sub_f32 {v(ST+2*w)}, {v(X0)}, {v(ST+2*w)}')
    for w in range(n): A(f'  v_exp_f32 {v(ST+2*w)}, {v(ST+2*w)}')
    A(f'  v_mul_f32 {v(X1)}, {v(ST)}, {v(ST+1)}')
    for w in range(1, n): A(f'  v_fma_f32 {v(X1)}, {v(ST+2*w)}, {v(ST+2*w+1)}, {v(X1)}')
    for i in range(npiece):
        for j in range(4):
            A(f'  v_mul_f32 {v(OUT+4*i+j)}, {v(ST)}, {v(AC+4*i+j)}')
            for w in range(1, n):
                A(f'  v_fma_f32 {v(OUT+4*i+j)}, {v(ST+2*w)}, {v(AC+4*(npiece*w+i)+j)}, {v(OUT+4*i+j)}')

def gen(D=6, W=4, stamps=False, sf='-', stf='sc1', ldf='-', tl=0, NWU=16, NS=2, pf=8, force=-1, THR=12, safe=0, PW=0, xf='sc1', noexp=0, noimp=0, DC=0, U=2, tail=0, ctl='', gain=22, dly=8, dead=30, novote=0, diag=0):
    R = 11 * U; NST = 33; NF = 96
    DN = D; D = DC = DC or D
    assert DN <= D <= R and NWU % 8 == 0 and W in (2, 4)
    PW = PW or NWU - 2 * W
    fl = lambda x: x.replace('-', '').replace('+', ' ')
    sf, stf, ldf = fl(sf), fl(stf), fl(ldf)
    L = []
    A = L.append
    va = Alloc(1)
    RING = va(4 * R, 4); VO = va(4)
    DUP = va(1); DOWN = va(1); DCON = va(1); ICV = va(1); TU = va(1)
    VVS = va(1); VL1 = va(1); VL2 = va(1); VBP = va(1); VFL = va(1); VST = va(1); VPR = va(1)
    VOOB = va(1); VBA = va(1); VBS = va(1)
    T = va(4, 2); ZN = va(1); SN = va(1); ZC = va(1); SC = va(1); ZS = va(2, 2)
    LG = va(6, 4); ACC = va(12, 4); M = va(1); NB = va(2, 2); LS = NB + 1
    X0 = va(2, 2); X1 = X0 + 1; AL = va(1); ALQ = va(1); E = va(11); PP = va(6); TL = va(1)
    base = va.n
    QB = va(6, 4); QN = va(6, 2); KSR = va(6, 2); KZR = va(6, 2); KS = va(12, 2); KZ = va(12, 2); KA = va(6, 4); SD = va(4, 4); S = va(2, 2)
    IUP = va(1); IOWN = va(1); ICON = va(1); VKS0 = va(1); VKS = va(1); VQ = va(1); VNI = va(1)
    kend = va.n
    va.n = base
    AJ = va(16, 4); AK = va(8, 2); TV = va(12, 2); BV = va(48, 4)
    nv = max(va.n, kend)
    sRO, sPB = 4, 5
    SK, SV, SI, SKS, SKZ, SVS, SVZ, SQ, SW_ = 8, 12, 16, 20, 24, 28, 32, 36, 40
    PT = 44
    sREC, sL0, sL10, sM0, sM10, sLOW = 44, 48, 50, 52, 54, 56
    sCUR, sNXT, sSO, sF, sMSK, sL2E, sTL, s768, sSCL, sT = 60, 61, 62, 64, 65, 66, 67, 63, 68, 70
    sMJ = 72
    sDBG, sWS = 80, 82
    sQ3, sC, sQC, sCC, sHC, sHN, sDIV, sSH = 84, 85, 86, 87, 88, 89, 90, 91
    sDEC, sLIM, sGATE, sSEG = 96, 97, 99, 100
    sU = 92
    sBIG, sSM = 92, 94
    SEG = W * 3072 + W * 32
    LDS_ACC = IMG
    LDS_F = LDS_ACC + 4 * SEG
    F_DEC, F_IMP, F_BST, F_PRG = LDS_F, LDS_F + 4, LDS_F + 8, LDS_F + 16
    cps = [int(x) for x in str(ctl).split('.') if x]
    assert len(cps) <= 16
    lds = 87040
    assert LDS_F + 32 <= lds

    A(f'{NAME}:')
    A('  s_cmp_ge_u32 s2, 256')
    A('  s_cbranch_scc1 L_end')
    A(f'  s_load_dwordx16 {s(PT,16)}, s[0:1], 0')
    A(f'  s_load_dwordx4 {s(sDBG,4)}, s[0:1], 64')
    if stamps:
        A('  s_memrealtime s[6:7]')
    A('  v_lshrrev_b32 v1, 6, v0')
    A('  v_and_b32 v0, 63, v0')
    A('  v_readfirstlane_b32 s3, v1')
    A(f'  s_bfe_u32 {s(sRO)}, s2, 0x10002')
    A(f'  s_lshr_b32 {s(sPB)}, s2, 3')
    A(f'  s_lshl_b32 {s(sPB)}, {s(sPB)}, 2')
    A(f'  s_and_b32 {s(sT)}, s2, 3')
    A(f'  s_add_u32 {s(sPB)}, {s(sPB)}, {s(sT)}')
    A(f'  s_lshl_b32 {s(sPB)}, {s(sPB)}, 5')
    def make_srds():
        A('  s_waitcnt lgkmcnt(0)')
        for srd, p, nb in ((SK, PT + 2, TOTAL), (SKS, PT + 6, 256 * 24576), (SKZ, PT + 8, 256 * 24576), (SQ, PT, 256 * 1536),
                           (SI, PT + 2, TOTAL), (SV, PT + 4, TOTAL), (SVS, PT + 10, 256 * 8192), (SVZ, PT + 12, 256 * 8192), (SW_, sWS, WSEND)):
            A(f'  s_mov_b32 {s(srd)}, {s(p)}')
            A(f'  s_and_b32 {s(srd+1)}, {s(p+1)}, 0xffff')
            A(f'  s_mov_b32 {s(srd+2)}, {nb}')
            A(f'  s_mov_b32 {s(srd+3)}, 0x20000')
    A(f'  s_cmp_eq_u32 s3, {W}')
    A('  s_cbranch_scc1 L_helper')

    cls, a, g, n = T, T + 1, T + 2, T + 3
    A(f'  v_and_b32 {v(cls)}, 3, v0')
    A(f'  v_bfe_u32 {v(a)}, v0, 2, 2')
    A(f'  v_lshrrev_b32 {v(g)}, 4, v0')
    A(f'  v_and_b32 {v(n)}, 15, v0')
    def stream_consts(x, up, own, con, lanepart):
        A(f'  v_and_b32 {v(own)}, 2, {v(x)}')
        A(f'  v_lshlrev_b32 {v(up)}, 5, {v(own)}')
        A(f'  v_add_u32 {v(up)}, 129, {v(up)}')
        A(f'  v_and_b32 {v(X1)}, 1, {v(x)}')
        A(f'  v_lshl_add_u32 {v(own)}, {v(X1)}, 2, {v(own)}')
        A(f'  v_mul_u32_u24 {v(X1)}, {43 * 768}, {v(X1)}')
        A(f'  v_add_u32 {v(con)}, {v(lanepart)}, {v(X1)}')
        A(f'  v_subrev_u32 {v(con)}, {43 * 768}, {v(con)}')
    A(f'  v_lshlrev_b32 {v(X0)}, 4, {v(cls)}')
    A(f'  v_lshl_add_u32 {v(X0)}, {v(g)}, 6, {v(X0)}')
    A(f'  v_lshrrev_b32 {v(VKS0)}, 1, {v(X0)}')
    stream_consts(a, IUP, IOWN, ICON, X0)
    A(f'  v_mul_u32_u24 {v(X1)}, 384, {v(a)}')
    A(f'  v_add_u32 {v(VQ)}, {v(X1)}, {v(VKS0)}')
    A(f'  v_mov_b32 {v(VOOB)}, {OOB}')
    A(f'  s_mov_b32 {s(sDIV)}, 0xaaaaaaab')
    A(f'  s_mov_b32 {s(sSH)}, 0x492492')
    A(f'  s_movk_i32 {s(s768)}, 768')
    def slot(k): return RING + 4 * (k % R)
    def main_load(k, srd, so):
        ss, i = divmod(k % NST, 3)
        r, k0 = (0, 0) if ss == 0 else (1, 1) if ss <= 5 else (2, 6) if ss <= 9 else (3, 10)
        return f'  buffer_load_dwordx4 {v(slot(k),4)}, {v(VO+r)}, {s(srd,4)}, {s(so)} offen offset:{768*(ss-k0) + 256*i} nt'
    def kscale_loads():
        r = [f'  s_mul_i32 {s(sSO)}, {s(sQ3)}, 1536']
        for i in range(3):
            r.append(f'  buffer_load_dwordx2 {v(KSR+2*i,2)}, {v(VKS)}, {s(SKS,4)}, {s(sSO)} offen offset:{128*i} {sf}')
            r.append(f'  buffer_load_dwordx2 {v(KZR+2*i,2)}, {v(VKS)}, {s(SKZ,4)}, {s(sSO)} offen offset:{128*i} {sf}')
        return r
    def vscale_loads():
        return [f'  s_lshl_b32 {s(sSO)}, {s(sQ3)}, 9',
                f'  v_lshl_add_u32 {v(VVS)}, {v(TU)}, 1, {v(ICV)}',
                f'  buffer_load_short_d16_hi {v(ZN)}, {v(VVS)}, {s(SVZ,4)}, {s(sSO)} offen {sf}',
                f'  buffer_load_short_d16_hi {v(SN)}, {v(VVS)}, {s(SVS,4)}, {s(sSO)} offen {sf}']
    def q_loads():
        return [f'  s_mul_i32 {s(sT)}, {s(sHN)}, 1536'] + \
               [f'  buffer_load_dwordx2 {v(QN+2*i,2)}, {v(VQ)}, {s(SQ,4)}, {s(sT)} offen offset:{128*i} {sf}' for i in range(3)]
    def short_masks(own, c, m0, m10, low):
        A(f'  v_add_u32 {v(X0)}, {s(c)}, {v(own)}')
        A(f'  v_lshrrev_b32 {v(X1)}, {v(X0)}, {s(sSH)}')
        A(f'  v_and_b32 {v(X1)}, 1, {v(X1)}')
        A(f'  v_cmp_eq_u32 {s(m10,2)}, 1, {v(X1)}')
        A(f'  s_and_b64 {s(m0,2)}, {s(m10,2)}, {low}')
        A(f'  s_andn2_b64 {s(m10,2)}, {s(m10,2)}, {low}')
    def map_unit(f, isv):
        A(f'  s_andn2_b32 {s(sT)}, {s(f)}, 1')
        A(f'  s_or_b32 {s(sT)}, {s(sT)}, {s(sRO)}')
        A(f'  s_lshr_b32 {s(sT+1)}, {s(f)}, 5')
        A(f'  s_lshr_b32 {s(sC)}, {s(sDEC)}, {s(sT+1)}')
        if isv: A(f'  s_lshr_b32 {s(sC)}, {s(sC)}, 3')
        A(f'  s_cmp_lt_u32 {s(f)}, {s(sLIM)}')
        A(f'  s_cselect_b32 {s(sT)}, {s(sT)}, {s(f)}')
        A(f'  s_cselect_b32 {s(sC)}, {s(f)}, {s(sC)}')
        A(f'  s_and_b32 {s(sC)}, {s(sC)}, 1')
        A(f'  s_mul_i32 {s(sT+1)}, {s(sT+1)}, {4096 - 32}')
        A(f'  s_add_u32 {s(sT)}, {s(sT)}, {s(sT+1)}')
        A(f'  s_add_u32 {s(sT)}, {s(sT)}, {s(sPB)}')
        A(f'  s_mul_hi_u32 {s(sQ3)}, {s(sT)}, {s(sDIV)}')
        A(f'  s_lshr_b32 {s(sQ3)}, {s(sQ3)}, 1')
        A(f'  s_mul_i32 {s(sT+1)}, {s(sQ3)}, 3')
        A(f'  s_sub_u32 {s(sT)}, {s(sT)}, {s(sT+1)}')
        A(f'  s_lshl3_add_u32 {s(sC)}, {s(sT)}, {s(sC)}')
        A(f'  s_mul_i32 {s(sNXT)}, {s(sQ3)}, 196608')
        A(f'  s_lshr_b32 {s(sHN)}, {s(sQ3)}, 4')
        A(f'  s_lshl_b32 {s(sT)}, {s(sC)}, 5')
        A(f'  v_add_u32 {v(TU)}, {s(sT)}, {v(DUP if isv else IUP)}')
        A(f'  v_mul_u32_u24 {v(TU)}, 21846, {v(TU)}')
        A(f'  v_lshrrev_b32 {v(TU)}, 16, {v(TU)}')
        short_masks(DOWN if isv else IOWN, sC, sM0, sM10, s(sLOW + 2 * isv, 2))
        if not isv:
            A(f'  v_mul_u32_u24 {v(X0)}, 43, {v(X0)}')
            A(f'  v_lshrrev_b32 {v(X0)}, 8, {v(X0)}')
            A(f'  v_mul_u32_u24 {v(X0)}, 384, {v(X0)}')
            A(f'  v_add_u32 {v(VKS)}, {v(X0)}, {v(VKS0)}')
    def offsets(con):
        A(f'  v_mad_u32_u24 {v(VO)}, {v(TU)}, {s(s768)}, {v(con)}')
        A(f'  v_add_u32 {v(VO+1)}, 768, {v(VO)}')
        A(f'  v_add_u32 {v(VO+2)}, {6 * 768}, {v(VO)}')
        A(f'  v_add_u32 {v(VO+3)}, {10 * 768}, {v(VO)}')
        A(f'  v_cndmask_b32 {v(VO)}, {v(VO)}, {v(VOOB)}, {s(sM0,2)}')
        A(f'  v_cndmask_b32 {v(VO+3)}, {v(VO+3)}, {v(VOOB)}, {s(sM10,2)}')
    def stamp():
        if tl:
            A(f'  s_memrealtime {s(sT,2)}')
            A('  s_waitcnt lgkmcnt(0)')
            A(f'  s_min_u32 m0, {s(sTL)}, 63')
            A(f'  v_writelane_b32 {v(TL)}, {s(sT)}, m0')
            A(f'  s_add_u32 {s(sTL)}, {s(sTL)}, 1')
    def reset_state():
        for k in range(12): A(f'  v_mov_b32 {v(ACC+k)}, 0')
        A(f'  v_mov_b32 {v(M)}, 0xff800000')
        A(f'  v_mov_b32 {v(NB)}, 0x7f800000')
        A(f'  v_mov_b32 {v(LS)}, 0')
    A(f'  s_mov_b32 {s(sF)}, s3')
    A(f'  s_mov_b32 {s(sLIM)}, {NWU}')
    A(f'  s_mov_b32 {s(sGATE)}, {NWU}')
    A(f'  s_mov_b32 {s(sDEC)}, 0')
    make_srds()
    A(f'  s_mov_b32 {s(sLOW)}, 0x0f0f0f0f')
    A(f'  s_mov_b32 {s(sLOW+1)}, 0x0f0f0f0f')
    A(f'  s_mov_b32 {s(sLOW+2)}, 0xffff')
    A(f'  s_mov_b32 {s(sLOW+3)}, 0xffff')
    map_unit(sF, 0)
    offsets(ICON)
    A(f'  s_mov_b32 {s(sCUR)}, {s(sNXT)}')
    A(f'  s_mov_b32 {s(sHC)}, {s(sHN)}')
    for x in kscale_loads(): A(x)
    for x in q_loads(): A(x)
    for k in range(D): A(main_load(k, SK, sCUR))
    A('  s_mov_b64 vcc, 0')
    A(f'  v_lshlrev_b32 {v(X0)}, 4, {v(n)}')
    stream_consts(g, DUP, DOWN, DCON, X0)
    A(f'  v_and_b32 {v(X1)}, 1, {v(g)}')
    A(f'  v_mul_u32_u24 {v(X1)}, 86, {v(X1)}')
    A(f'  v_lshl_add_u32 {v(ICV)}, {v(n)}, 1, {v(X1)}')
    A(f'  v_subrev_u32 {v(ICV)}, 86, {v(ICV)}')
    A(f'  v_lshlrev_b32 {v(VBP)}, 4, {v(g)}')
    A(f'  v_lshrrev_b32 {v(X0)}, 2, v0')
    A(f'  s_mul_i32 {s(sT)}, s3, 384')
    A(f'  v_lshl_add_u32 {v(VL1)}, {v(X0)}, 4, {s(sT)}')
    A(f'  v_lshl_add_u32 {v(VL2)}, {v(X0)}, 3, {s(sT)}')
    A(f'  s_mul_i32 {s(sT)}, s3, 3072')
    A(f'  s_add_u32 {s(sT)}, {s(sT)}, {LDS_ACC}')
    A(f'  v_lshl_add_u32 {v(VFL)}, v0, 4, {s(sT)}')
    A(f'  s_lshl_b32 {s(sT)}, s3, 5')
    A(f'  s_add_u32 {s(sT)}, {s(sT)}, {LDS_ACC + W * 3072}')
    A(f'  v_lshl_add_u32 {v(VST)}, {v(a)}, 3, {s(sT)}')
    A(f'  s_lshl_b32 {s(sT)}, s3, 2')
    A(f'  s_add_u32 {s(sT)}, {s(sT)}, {F_PRG}')
    A(f'  v_mov_b32 {v(VPR)}, {s(sT)}')
    A(f'  v_mov_b32 {v(VBA)}, {F_BST}')
    A(f'  v_mov_b32 {v(ZN)}, 0')
    A(f'  v_mov_b32 {v(SN)}, 0')
    A(f'  v_mov_b32 {v(VNI)}, 0xff800000')
    A(f'  s_mov_b32 {s(sMSK)}, 0xffff0000')
    A(f'  s_mov_b32 {s(sL2E)}, 0x3fb8aa3b')
    for h in range(2):
        A(f'  s_mov_b32 {s(sSCL+h)}, {hex(0x3d93cd3a + (22 << 23))}')
        A(f'  s_mov_b32 {s(sBIG+h)}, 0x7f000000')
        A(f'  s_mov_b32 {s(sSM+h)}, {hex((127 - 22) << 23)}')
    for j in range(4):
        A(f'  s_mov_b32 {s(sMJ+2*j)}, {hex(0x11111111 << j)}')
        A(f'  s_mov_b32 {s(sMJ+2*j+1)}, {hex(0x11111111 << j)}')
        A(f'  s_mov_b32 {s(sREC+j)}, 0')
    A(f'  s_mov_b32 {s(sSEG)}, 0')
    reset_state()
    if tl:
        A(f'  s_mov_b32 {s(sTL)}, 0')
        A(f'  v_mov_b32 {v(TL)}, 0')
    A('  s_barrier')

    PSMALL = 3
    late = (D == R)
    SW = NST - D
    assert PSMALL < SW
    def wait_step(k, nsmall, tag):
        cnt = lambda d: d - 1 + (nsmall if k - d <= PSMALL < k else 0)
        A(f'  s_waitcnt vmcnt({cnt(D)})')
        if DN < D:
            A(f'  s_cbranch_vccnz L_{tag}')
            A(f'  s_waitcnt vmcnt({cnt(DN)})')
            A(f'L_{tag}:')
    def dequant(X, src, z, sc, zmod, smod):
        r = [f'  v_pk_fma_f32 {v(X+2*h,2)}, {v(src+2*h,2)}, {s(sBIG,2)}, {z[h]} {zmod}neg_lo:[0,0,1] neg_hi:[0,0,1]' for h in range(2)]
        r2 = [f'  v_cvt_pk_bf16_f32 {v(X+j)}, 0, {v(X+j)}' for j in range(4)]
        r2 += [f'  v_pk_mul_f32 {v(X+2*h,2)}, {v(X+2*h,2)}, {sc[h]} {smod}'.rstrip() for h in range(2)]
        return r, r2
    def kreduce(ss):
        d = S + (ss & 1)
        q = lambda j: f'quad_perm:[{j},{j},{j},{j}] row_mask:0xf bank_mask:0xf'
        r = [f'  v_mov_b32_dpp {v(X0)}, {v(SD)} {q(0)}',
             f'  v_mov_b32_dpp {v(X1)}, {v(SD+2)} {q(2)}',
             f'  v_add_f32_dpp {v(X0)}, {v(SD+1)}, {v(X0)} {q(1)}',
             f'  v_add_f32_dpp {v(X1)}, {v(SD+3)}, {v(X1)} {q(3)}',
             f'  v_add_f32 {v(d)}, {v(X0)}, {v(X1)}']
        if ss == 0: r.append(f'  v_cndmask_b32 {v(d)}, {v(d)}, {v(VNI)}, {s(sL0,2)}')
        if ss == 10: r.append(f'  v_cndmask_b32 {v(d)}, {v(d)}, {v(VNI)}, {s(sL10,2)}')
        if ss & 1 or ss == 10:
            r += [f'  v_cvt_pk_bf16_f32 {v(S)}, 0, {v(S)}',
                  f'  v_cvt_pk_bf16_f32 {v(S+1)}, 0, {v(S+1)}',
                  f'  v_pk_mul_f32 {v(S,2)}, {v(S,2)}, {s(sSCL,2)}',
                  f'  v_cvt_pk_bf16_f32 {v(LG+(ss>>1))}, {v(S)}, {v(S+1)}']
        return r
    def lds_word(dst, addr):
        A(f'  v_mov_b32 {v(X0)}, {addr}')
        A(f'  ds_read_b32 {v(X0)}, {v(X0)}')
        A('  s_waitcnt lgkmcnt(0)')
        A(f'  v_readfirstlane_b32 {s(dst)}, {v(X0)}')

    mf32 = f'  v_mfma_f32_16x16x32_bf16 {v(SD,4)}, {v(KA,4)}, {v(QB,4)}, 0'
    mf16 = f'  v_mfma_f32_16x16x16_bf16 {v(SD,4)}, {v(KA+4,2)}, {v(QB+4,2)}, {v(SD,4)}'
    def k_unit(u):
        o = NST * u
        if u == 0: stamp()
        short_masks(DOWN, sC, sL0, sL10, s(sLOW + 2, 2))
        A(f'  s_add_u32 {s(sF)}, {s(sF)}, {W}')
        A(f'  s_cmp_lt_u32 {s(sF)}, {s(sGATE)}')
        A(f'  s_cbranch_scc1 L_k_known{u}')
        A(f'L_k_spin{u}:')
        lds_word(sDEC, F_DEC)
        A(f'  s_cmp_eq_u32 {s(sDEC)}, 0')
        A(f'  s_cbranch_scc1 L_k_spin{u}')
        A(f'  s_mov_b32 {s(sGATE)}, -1')
        A(f'  s_bitcmp1_b32 {s(sDEC)}, 6')
        A(f'  s_cselect_b32 {s(sLIM)}, 255, {s(sLIM)}')
        A(f'L_k_known{u}:')
        map_unit(sF, 0)
        if cps: A(f'  ds_read_b32 {v(VBS)}, {v(VBA)}')
        for k in range(NST):
            ss, i = divmod(k, 3)
            if cps and k == 1:
                A('  s_waitcnt lgkmcnt(0)')
                A(f'  s_sub_u32 {s(sT)}, {s(sF)}, {W}')
                A(f'  v_cmp_lt_u32 vcc, {s(sT)}, {v(VBS)}')
            if k == SW and u < U - 1: offsets(ICON)
            if k == SW and u == U - 1:
                A(f'  s_cmp_lt_u32 {s(sF)}, {NF}')
                A(f'  s_cbranch_scc1 L_k_keep{u}')
                A(f'  s_bitcmp1_b32 {s(sDEC)}, 6')
                A(f'  s_cselect_b32 {s(sLIM)}, 255, 0')
                A(f'  v_mov_b32 {v(E)}, {v(X0)}')
                A(f'  v_mov_b32 {v(E+1)}, {v(X1)}')
                map_unit(3, 1)
                A(f'  v_mov_b32 {v(X0)}, {v(E)}')
                A(f'  v_mov_b32 {v(X1)}, {v(E+1)}')
                A(f'  s_mov_b32 {s(SI)}, {s(SV)}')
                A(f'  s_mov_b32 {s(SI+1)}, {s(SV+1)}')
                for x in vscale_loads(): A(x)
                A(f'  v_mov_b32 {v(ICON)}, {v(DCON)}')
                A(f'L_k_keep{u}:')
                offsets(ICON)
            lds_ = [main_load(o + k + D, SK, sCUR) if k < SW else main_load(o + k + D, SI, sNXT)]
            wait_step(k, 6, f'kw{u}_{k}')
            if not late:
                for x in lds_: A(x)
            if i == 2: A(mf32)
            if i == 0 and ss > 0: A(mf16)
            if ss == 0:
                for raw, dst in ((KZR, KZ), (KSR, KS)):
                    for h in range(2):
                        A(f'  v_lshlrev_b32 {v(dst+4*i+2*h)}, 16, {v(raw+2*i+h)}')
                        A(f'  v_and_b32 {v(dst+4*i+2*h+1)}, {s(sMSK)}, {v(raw+2*i+h)}')
                for h in range(2):
                    A(f'  v_pk_mul_f32 {v(KZ+4*i+2*h,2)}, {v(KZ+4*i+2*h,2)}, {s(sSM,2)}')
                    A(f'  v_mov_b32 {v(QB+2*i+h)}, {v(QN+2*i+h)}')
            c, rest = dequant(T, slot(o + k), (v(KZ+4*i,2), v(KZ+4*i+2,2)), (v(KS+4*i,2), v(KS+4*i+2,2)), '', '')
            for x in c: A(x)
            if late:
                for x in lds_: A(x)
            if k == PSMALL:
                A(f'  s_cmp_eq_u32 {s(sHN)}, {s(sHC)}')
                A(f'  s_cbranch_scc1 L_k_sameq{u}')
                for x in q_loads(): A(x)
                A(f'  s_mov_b32 {s(sHC)}, {s(sHN)}')
                A(f'L_k_sameq{u}:')
                for x in kscale_loads(): A(x)
            rest += [f'  v_cvt_pk_bf16_f32 {v(KA+2*i)}, {v(T)}, {v(T+1)}',
                     f'  v_cvt_pk_bf16_f32 {v(KA+2*i+1)}, {v(T+2)}, {v(T+3)}']
            if i == 1 and ss > 0:
                r = kreduce(ss - 1)
                rest = r[:2] + rest[:2] + r[2:4] + rest[2:4] + r[4:5] + rest[4:]
                pend = r[5:]
            elif i == 2 and ss > 0:
                rest = merge(rest, pend, 1)
            for x in rest: A(x)
        A(f'  s_mov_b32 {s(sCUR)}, {s(sNXT)}')
        A(f'  v_mov_b32 {v(AL)}, {s(sF)}')
        A(mf16)
        A(f'  ds_write_b128 {v(VL1)}, {v(LG,4)}')
        A(f'  v_add_u32 {v(VL1)}, {384 * W}, {v(VL1)}')
        for x in kreduce(10): A(x)
        A(f'  ds_write_b64 {v(VL2)}, {v(LG+4,2)} offset:256')
        A(f'  ds_write_b32 {v(VPR)}, {v(AL)}')
        A(f'  v_add_u32 {v(VL2)}, {384 * W}, {v(VL2)}')
    A('L_k:')
    for u in range(U): k_unit(u)
    A(f'  s_cmp_lt_u32 {s(sF)}, {NF}')
    A('  s_cbranch_scc1 L_k')

    def flush():
        A(f'  v_mov_b32 {v(X1)}, {v(LS)}')
        A(f'  v_permlane32_swap_b32 {v(LS)}, {v(X1)}')
        A(f'  v_add_f32 {v(LS)}, {v(LS)}, {v(X1)}')
        A(f'  v_mov_b32 {v(X1)}, {v(LS)}')
        A(f'  v_permlane16_swap_b32 {v(LS)}, {v(X1)}')
        A(f'  v_add_f32 {v(LS)}, {v(LS)}, {v(X1)}')
        A(f'  ds_write_b64 {v(VST)}, {v(NB,2)}')
        for i in range(3):
            A(f'  ds_write_b128 {v(VFL)}, {v(ACC+4*i,4)} offset:{1024*i}')
        A(f'  s_and_b32 {s(sT)}, {s(sQC)}, 15')
        A(f'  s_cmp_ge_u32 {s(sT)}, 12')
        A(f'  s_cselect_b32 {s(sT)}, 2, 0')
        A(f'  s_and_b32 {s(sT+1)}, {s(sCC)}, 1')
        A(f'  s_bitcmp1_b32 {s(sDEC)}, 6')
        A(f'  s_cselect_b32 {s(sT+1)}, {s(sRO)}, {s(sT+1)}')
        A(f'  s_add_u32 {s(sT)}, {s(sT)}, {s(sT+1)}')
        A(f'  s_lshr_b32 {s(sT+1)}, {s(sQC)}, 4')
        A(f'  s_lshl2_add_u32 {s(sT)}, {s(sT+1)}, {s(sT)}')
        for j in range(4 // W):
            A(f'  s_add_u32 {s(sT+1)}, s3, {W * j}')
            A(f'  s_cmp_eq_u32 {s(sSEG)}, {s(sT+1)}')
            A(f'  s_cselect_b32 {s(sREC+j)}, {s(sT)}, {s(sREC+j)}')
        A(f'  s_add_u32 {s(sSEG)}, {s(sSEG)}, 1')
        A('  s_waitcnt lgkmcnt(0)')
    def import_gate(tag):
        A(f'  s_cmp_lt_u32 {s(sF)}, {s(sGATE)}')
        A(f'  s_cbranch_scc1 L_{tag}_ok')
        A(f'L_{tag}_spin:')
        lds_word(sGATE, F_IMP)
        A(f'  s_cmp_lt_u32 {s(sF)}, {s(sGATE)}')
        A(f'  s_cbranch_scc0 L_{tag}_spin')
        A(f'L_{tag}_ok:')

    A(f'  v_subrev_u32 {v(VL1)}, {IMG}, {v(VL1)}')
    A(f'  v_subrev_u32 {v(VL2)}, {IMG}, {v(VL2)}')
    A(f'  s_mov_b32 {s(sF)}, s3')
    A(f'  s_mov_b32 {s(sHC)}, {s(sHN)}')
    A(f'  s_mov_b32 {s(sGATE)}, 0')
    import_gate('v0')
    A(f'  ds_read_b128 {v(LG,4)}, {v(VL1)}')
    A(f'  ds_read_b64 {v(LG+4,2)}, {v(VL2)} offset:256')
    def v_unit(u):
        o = NST * u
        A(f'L_v{u}:')
        if u == 0: stamp()
        A(f'  s_mov_b32 {s(sQC)}, {s(sQ3)}')
        A(f'  s_mov_b32 {s(sCC)}, {s(sC)}')
        A(f'  s_add_u32 {s(sF)}, {s(sF)}, {W}')
        import_gate(f'v1{u}')
        map_unit(sF, 1)
        if tail:
            A(f'  s_cmp_ge_u32 {s(sF)}, {NF - tail}')
            A('  s_cselect_b64 vcc, -1, 0')
        A(f'  s_cmp_lt_u32 {s(sF)}, {NF}')
        A(f'  s_cselect_b32 {s(sNXT)}, {s(sNXT)}, {TOTAL}')
        prep = ['  s_waitcnt lgkmcnt(0)']
        if cps:
            A(f'  s_add_u32 {s(sT)}, {s(sF)}, {NF - W}')
            A(f'  v_mov_b32 {v(AL)}, {s(sT)}')
            A(f'  ds_read_b32 {v(VBS)}, {v(VBA)}')
            A(f'  ds_write_b32 {v(VPR)}, {v(AL)}')
            prep.append(f'  v_cmp_lt_u32 vcc, {v(AL)}, {v(VBS)}')
        for k in range(11):
            prep.append(f'  v_lshlrev_b32 {v(E+k)}, 16, {v(LG+k//2)}' if k % 2 == 0 else f'  v_and_b32 {v(E+k)}, {s(sMSK)}, {v(LG+k//2)}')
        prep += [f'  v_add_u32 {v(VL1)}, {384 * W}, {v(VL1)}',
                 f'  v_add_u32 {v(VL2)}, {384 * W}, {v(VL2)}',
                 f'  v_max3_f32 {v(X0)}, {v(E)}, {v(E+1)}, {v(E+2)}',
                 f'  ds_read_b128 {v(LG,4)}, {v(VL1)}',
                 f'  ds_read_b64 {v(LG+4,2)}, {v(VL2)} offset:256',
                 f'  v_max3_f32 {v(X1)}, {v(E+3)}, {v(E+4)}, {v(E+5)}',
                 f'  v_max3_f32 {v(X0)}, {v(X0)}, {v(E+6)}, {v(E+7)}',
                 f'  v_max3_f32 {v(X1)}, {v(X1)}, {v(E+8)}, {v(E+9)}',
                 f'  v_max3_f32 {v(X0)}, {v(X0)}, {v(E+10)}, {v(M)}',
                 f'  v_max_f32 {v(X0)}, {v(X0)}, {v(X1)}',
                 f'  v_mov_b32 {v(X1)}, {v(X0)}',
                 f'  v_permlane32_swap_b32 {v(X0)}, {v(X1)}',
                 f'  v_max_f32 {v(X0)}, {v(X0)}, {v(X1)}',
                 f'  v_mov_b32 {v(X1)}, {v(X0)}',
                 f'  v_permlane16_swap_b32 {v(X0)}, {v(X1)}',
                 f'  v_max_f32 {v(M)}, {v(X0)}, {v(X1)}',
                 f'  v_mul_f32 {v(X0)}, {s(sL2E)}, {v(M)}',
                 f'  v_add_f32 {v(AL)}, {v(X0)}, {v(NB)}',
                 f'  v_sub_f32 {v(NB)}, 0, {v(X0)}',
                 f'  v_exp_f32 {v(AL)}, -{v(AL)}',
                 f'  ds_bpermute_b32 {v(ALQ)}, {v(VBP)}, {v(AL)}']
        for k in range(11):
            prep += [f'  v_fma_f32 {v(E+k)}, {v(E+k)}, {s(sL2E)}, {v(NB)}', f'  v_exp_f32 {v(E+k)}, {v(E+k)}']
        prep += [f'  v_add_f32 {v(X0)}, {v(E)}, {v(E+1)}', f'  v_add_f32 {v(X1)}, {v(E+2)}, {v(E+3)}']
        for k in range(4, 11):
            x = X0 if k % 2 == 0 else X1
            prep.append(f'  v_add_f32 {v(x)}, {v(x)}, {v(E+k)}')
        prep += [f'  v_add_f32 {v(X0)}, {v(X0)}, {v(X1)}',
                 f'  v_fma_f32 {v(LS)}, {v(LS)}, {v(AL)}, {v(X0)}']
        for k in range(6):
            prep.append(f'  v_cvt_pk_bf16_f32 {v(PP+k)}, {v(E+2*k)}, {v(E+2*k+1) if k < 5 else 0}')
        for j in range(4):
            for k in range(4):
                prep.append(f'  v_cndmask_b32 {v(AJ+4*j+k)}, 0, {v(PP+k)}, {s(sMJ+2*j,2)}')
        prep.append('  s_waitcnt lgkmcnt(0)')
        for k in range(12):
            prep.append(f'  v_mul_f32 {v(ACC+k)}, {v(ALQ)}, {v(ACC+k)}')
        prep2 = [f'  v_cndmask_b32 {v(AK+2*j+k)}, 0, {v(PP+4+k)}, {s(sMJ+2*j,2)}' for j in range(4) for k in range(2)]
        per = 5
        for k in range(NST):
            ss, i = divmod(k, 3)
            if k == SW: offsets(DCON)
            lds_ = [main_load(o + k + D, SV, sCUR if k < SW else sNXT)]
            wait_step(k, 2, f'vw{u}_{k}')
            if not late:
                for x in lds_: A(x)
            if k == 0:
                A(f'  v_mul_f32 {v(ZC)}, {s(sSM)}, {v(ZN)}')
                A(f'  v_mul_f32 {v(SC)}, {hex((127 + 22) << 23)}, {v(SN)}')
            if i == 0:
                A(f'  v_mov_b32_dpp {v(ZS)}, {v(ZC)} row_newbcast:{ss} row_mask:0xf bank_mask:0xf')
                A(f'  v_mov_b32_dpp {v(ZS+1)}, {v(SC)} row_newbcast:{ss} row_mask:0xf bank_mask:0xf')
            X = TV + 4 * i if ss % 2 == 0 else T
            c, rest = dequant(X, slot(o + k), (v(ZS,2), v(ZS,2)), (v(ZS,2), v(ZS,2)), 'op_sel_hi:[1,1,0] ', 'op_sel:[0,1]')
            for x in c: A(x)
            if late:
                for x in lds_: A(x)
            if k == PSMALL:
                for x in vscale_loads(): A(x)
            if ss % 2 == 1:
                rest += [f'  v_cvt_pk_bf16_f32 {v(BV+16*i+4*j+((ss>>1)&3))}, {v(TV+4*i+j)}, {v(T+j)}' for j in range(4)]
            if ss == 10:
                rest += [f'  v_cvt_pk_bf16_f32 {v(BV+16*i+4*j+1)}, {v(TV+4*i+j)}, 0' for j in range(4)]
            side, prep = prep[:per], prep[per:]
            if k == 20:
                side += prep; prep = []
            if k == 23: prep = prep2
            for x in merge(rest, side, 1): A(x)
            if ss == 7:
                for j in range(4):
                    A(f'  v_mfma_f32_16x16x32_bf16 {v(ACC+4*i,4)}, {v(AJ+4*j,4)}, {v(BV+16*i+4*j,4)}, {v(ACC+4*i,4)}')
            if ss == 10:
                assert not prep
                for j in range(4):
                    A(f'  v_mfma_f32_16x16x16_bf16 {v(ACC+4*i,4)}, {v(AK+2*j,2)}, {v(BV+16*i+4*j,2)}, {v(ACC+4*i,4)}')
        A(f'  s_mov_b32 {s(sCUR)}, {s(sNXT)}')
        if u == U - 1:
            A(f'  s_cmp_ge_u32 {s(sF)}, {NF}')
            A('  s_cbranch_scc1 L_v_done')
        A(f'  s_cmp_eq_u32 {s(sHN)}, {s(sHC)}')
        A(f'  s_cbranch_scc1 L_v{(u + 1) % U}')
        A(f'  s_mov_b32 {s(sHC)}, {s(sHN)}')
        flush()
        A(f'  v_add_u32 {v(VFL)}, {SEG}, {v(VFL)}')
        A(f'  v_add_u32 {v(VST)}, {SEG}, {v(VST)}')
        reset_state()
        if u == U - 1: A('  s_branch L_v0')
    for u in range(U): v_unit(u)
    A('L_v_done:')
    flush()
    A('  s_waitcnt vmcnt(0)')

    A('  s_barrier')
    ST = RING; AC = (base + 3) // 4 * 4
    nv = max(nv, AC + 48)
    A(f'  v_lshrrev_b32 {v(AL)}, 1, {v(VBP)}')
    A(f'  v_lshlrev_b32 {v(ALQ)}, 4, v0')
    for j in range(4 // W):
        A(f'  s_mul_i32 {s(sT)}, s3, {SEG}')
        A(f'  s_add_u32 {s(sT)}, {s(sT)}, {LDS_ACC + W * j * SEG}')
        A(f'  v_add_u32 {v(X0)}, {s(sT)}, {v(AL)}')
        for w in range(W):
            A(f'  ds_read_b64 {v(ST+2*(W*j+w),2)}, {v(X0)} offset:{W*3072 + 32*w}')
        A(f'  v_add_u32 {v(X0)}, {s(sT)}, {v(ALQ)}')
        for w in range(W):
            for i in range(3):
                A(f'  ds_read_b128 {v(AC+12*(W*j+w)+4*i,4)}, {v(X0)} offset:{3072*w + 1024*i}')
    A('  s_waitcnt lgkmcnt(0)')
    for j in range(4 // W):
        OUT = ACC if j == 0 else RING + 12
        XX = X0 if j == 0 else ZS
        A(f'  s_mul_i32 {s(sT)}, {s(sREC+j)}, {REC}')
        A(f'  s_add_u32 {s(sT)}, {s(sT)}, {WSOFF}')
        combine(A, W, ST + 2 * W * j, AC + 12 * W * j, 3, XX, XX + 1, OUT)
        for i in range(3):
            A(f'  buffer_store_dwordx4 {v(OUT+4*i,4)}, {v(ALQ)}, {s(SW_,4)}, {s(sT)} offen offset:{1024*i} {stf}')
        A(f'  buffer_store_dwordx2 {v(XX,2)}, {v(AL)}, {s(SW_,4)}, {s(sT)} offen offset:3072 {stf}')
    A('L_fin:')
    if tl:
        A(f'  s_mul_i32 {s(sT)}, s2, {W+1}')
        A(f'  s_add_u32 {s(sT)}, {s(sT)}, s3')
        A(f'  s_lshl_b32 {s(sT)}, {s(sT)}, 8')
        A(f'  s_add_u32 {s(sT)}, {s(sT)}, 0x10000')
        A(f'  v_lshl_add_u32 {v(E)}, v0, 2, {s(sT)}')
        A(f'  global_store_dword {v(E)}, {v(TL)}, {s(sWS,2)}')
    if stamps:
        A('  s_waitcnt vmcnt(0)')
        A(f'  s_memrealtime {s(sU,2)}')
        A(f'  s_getreg_b32 {s(sU+2)}, hwreg(HW_REG_XCC_ID)')
        A(f'  s_mul_i32 {s(sT)}, s2, {W+1}')
        A(f'  s_add_u32 {s(sT)}, {s(sT)}, s3')
        A(f'  s_lshl_b32 {s(sT)}, {s(sT)}, 4')
        A('  s_waitcnt lgkmcnt(0)')
        A(f'  v_mov_b32 {v(RING)}, s6')
        A(f'  v_mov_b32 {v(RING+1)}, {s(sU)}')
        A(f'  v_mov_b32 {v(RING+2)}, {s(sU+2)}')
        A(f'  v_mov_b32 {v(RING+3)}, {s(sDEC)}')
        A(f'  v_mov_b32 {v(X0)}, {s(sT)}')
        A('  s_mov_b64 exec, 1')
        A(f'  global_store_dwordx4 {v(X0)}, {v(RING,4)}, {s(sWS,2)}')
    A('L_end:')
    A('  s_endpgm')

    A('L_helper:')
    if tl:
        A(f'  s_mov_b32 {s(sTL)}, 0')
        A(f'  v_mov_b32 {v(TL)}, 0')
    hA, hZ, hO, h1, h2, h3, hD = 1, 2, 3, 4, 5, 6, 8
    assert hD + 96 <= TL
    A(f'  v_lshlrev_b32 {v(hA)}, 2, v0')
    A(f'  v_add_u32 {v(hA)}, {LDS_F}, {v(hA)}')
    A(f'  v_mov_b32 {v(hZ)}, 0')
    A('  s_mov_b64 exec, 0xff')
    A(f'  ds_write_b32 {v(hA)}, {v(hZ)}')
    A('  s_mov_b64 exec, -1')
    make_srds()
    A('  s_barrier')
    sOF, sN0, sV0, sJ, sSF, sA, sB, sX, sFA, sFS, sME, sPA = 44, 45, 48, 50, 52, 54, 56, 58, 62, 63, 60, 61
    sQD, sOWN, sUNT, sT0, sNON = 64, 65, 66, 72, 74
    hP, hQ = hD + 96, hD + 97
    assert hQ < TL
    A(f'  s_memrealtime {s(sT0,2)}')
    A(f'  s_mov_b32 {s(sUNT)}, 0')
    A(f'  s_lshr_b32 {s(sT)}, s2, 4')
    A(f'  s_and_b32 {s(sT)}, {s(sT)}, 8')
    A(f'  s_and_b32 {s(sT+1)}, s2, 7')
    A(f'  s_add_u32 {s(sT)}, {s(sT)}, {s(sT+1)}')
    A(f'  s_lshl_b32 {s(sT)}, {s(sT)}, 3')
    A(f'  v_mov_b32 {v(hP)}, {s(sT)}')
    A(f'  v_and_b32 {v(hQ)}, 15, v0')
    A(f'  v_lshlrev_b32 {v(hQ)}, 3, {v(hQ)}')
    A('  s_bitcmp1_b32 s2, 3')
    A(f'  s_cselect_b32 {s(SI)}, {s(SV)}, {s(SK)}')
    A(f'  s_cselect_b32 {s(SI+1)}, {s(SV+1)}, {s(SK+1)}')
    A(f'  s_cselect_b32 {s(sSF)}, 24, 0')
    A(f'  s_lshl_b32 {s(sOF)}, {s(sPB)}, 16')
    A(f'  s_lshl_b32 {s(sT)}, {s(sRO)}, 16')
    A(f'  s_add_u32 {s(sOF)}, {s(sOF)}, {s(sT)}')
    A(f'  s_add_u32 {s(sOF)}, {s(sOF)}, 0x1c0000')
    A(f'  s_bfe_u32 {s(sT)}, s2, 0x40004')
    A(f'  s_mul_i32 {s(sT)}, {s(sT)}, 0x4a80')
    A(f'  s_and_b32 {s(sT)}, {s(sT)}, 0x5f80')
    A(f'  s_add_u32 {s(sOF)}, {s(sOF)}, {s(sT)}')
    A(f'  s_mov_b32 {s(sV0)}, 0')
    A(f'  s_mov_b32 {s(sV0+1)}, 0x1000000')
    A(f'  s_mov_b32 {s(sJ)}, 0')
    A('L_h_page:')
    A(f'  s_add_u32 {s(sT)}, {s(sOF)}, 0x8000')
    A(f'  s_buffer_load_dword {s(sX)}, {s(SI,4)}, {s(sT)}')
    A(f'  s_mov_b32 {s(sN0)}, -1')
    A(f'  s_mov_b32 {s(sN0+1)}, -1')
    A('  s_waitcnt lgkmcnt(0)')
    for k in range(NS):
        for c in range(2):
            o = (((k & 1) << 14) | ((k >> 1 & 1) << 12) | ((k * 0x380) & 0xfff)) ^ (c << 13)
            A(f'  s_xor_b32 {s(sT)}, {s(sOF)}, {o}')
            A(f'  s_memtime {s(sA,2)}')
            A('  s_waitcnt lgkmcnt(0)')
            A(f'  s_buffer_load_dword {s(sX)}, {s(SI,4)}, {s(sT)}')
            A('  s_waitcnt lgkmcnt(0)')
            A(f'  s_memtime {s(sB,2)}')
            A('  s_waitcnt lgkmcnt(0)')
            A(f'  s_sub_u32 {s(sB)}, {s(sB)}, {s(sA)}')
            A(f'  s_min_u32 {s(sN0+c)}, {s(sN0+c)}, {s(sB)}')
    A(f'  s_cmp_lt_u32 {s(sN0+1)}, {s(sN0)}')
    A(f'  s_cselect_b32 {s(sA)}, 1, 0')
    A(f'  s_xor_b32 {s(sA)}, {s(sA)}, {s(sRO)}')
    A(f'  s_mov_b32 {s(sA+1)}, 0')
    A(f'  s_lshl_b64 {s(sA,2)}, {s(sA,2)}, {s(sSF)}')
    A(f'  s_or_b64 {s(sV0,2)}, {s(sV0,2)}, {s(sA,2)}')
    A(f'  s_add_u32 {s(sSF)}, {s(sSF)}, 8')
    A(f'  s_add_u32 {s(sOF)}, {s(sOF)}, 0x10000000')
    A(f'  s_add_u32 {s(sJ)}, {s(sJ)}, 1')
    A(f'  s_cmp_lt_u32 {s(sJ)}, 3')
    A('  s_cbranch_scc1 L_h_page')
    stamp()
    A(f'  s_and_b32 {s(sT)}, s2, 3')
    A(f'  s_lshl_b32 {s(sFA)}, {s(sT)}, 6')
    A('  s_cmp_ge_u32 s2, 4')
    A('  s_cbranch_scc1 L_h_nonce')
    A(f'  s_lshl_b64 {s(sA,2)}, {s(sT0,2)}, 2')
    A(f'  s_add_u32 {s(sT)}, {s(sFA)}, 8')
    A(f'  s_atomic_add_x2 {s(sA,2)}, {s(sDBG,2)}, {s(sT)} glc')
    A('  s_waitcnt lgkmcnt(0)')
    A('L_h_nonce:')
    if not novote: A(f'  s_atomic_add_x2 {s(sV0,2)}, {s(sDBG,2)}, {s(sFA)}')
    A('  s_waitcnt lgkmcnt(0)')
    def wait_progress(tag, lim, slp):
        A(f'  v_mov_b32 {v(hA)}, {F_PRG}')
        A(f'L_h_prog{tag}:')
        A(f'  s_sleep {slp}')
        A(f'  ds_read_b128 {v(hD,4)}, {v(hA)}')
        A('  s_waitcnt lgkmcnt(0)')
        A(f'  v_min_u32 {v(hD)}, {v(hD)}, {v(hD+1)}')
        if W == 4: A(f'  v_min3_u32 {v(hD)}, {v(hD)}, {v(hD+2)}, {v(hD+3)}')
        A(f'  v_readfirstlane_b32 {s(sA)}, {v(hD)}')
        A(f'  s_cmp_lt_u32 {s(sA)}, {lim}')
        A(f'  s_cbranch_scc1 L_h_prog{tag}')
    events = sorted([(c, 0, j) for j, c in enumerate(cps)] + [(c + dly, 1, j) for j, c in enumerate(cps)])
    def checkpoints(upto):
        while events and events[0][0] <= upto:
            c, act, j = events.pop(0)
            wait_progress(f'c{j}_{act}', c, 8)
            if not act:
                A(f'  s_memrealtime {s(sA,2)}')
                A('  s_waitcnt lgkmcnt(0)')
                A(f'  s_sub_u32 {s(sOWN)}, {s(sA)}, {s(sT0)}')
                A(f'  s_and_b32 {s(sT)}, s2, 0x78')
                A(f'  s_cbranch_scc1 L_h_np{j}')
                A(f'  v_mov_b32 {v(hD)}, {s(sA)}')
                A(f'  v_mov_b32 {v(hD+1)}, {s(sA+1)}')
                A(f'  s_mov_b32 {s(sT)}, {WSC + 256 * j}')
                A('  s_mov_b64 exec, 1')
                A(f'  buffer_store_dwordx2 {v(hD,2)}, {v(hP)}, {s(SW_,4)}, {s(sT)} offen sc1')
                A('  s_mov_b64 exec, -1')
                A(f'L_h_np{j}:')
                continue
            A(f'  s_mov_b32 {s(sT)}, {WSC + 256 * j}')
            A(f'  buffer_load_dwordx2 {v(hD,2)}, {v(hQ)}, {s(SW_,4)}, {s(sT)} offen')
            A(f'  v_mov_b32 {v(hD+2)}, {s(sT0+1)}')
            A('  s_waitcnt vmcnt(0)')
            A(f'  v_subrev_co_u32 {v(hD)}, vcc, {s(sT0)}, {v(hD)}')
            A(f'  v_subb_co_u32 {v(hD+1)}, vcc, {v(hD+1)}, {v(hD+2)}, vcc')
            A(f'  v_lshrrev_b32 {v(hD+2)}, 24, {v(hD)}')
            A(f'  v_or_b32 {v(hD+1)}, {v(hD+1)}, {v(hD+2)}')
            A(f'  v_cmp_eq_u32 vcc, 0, {v(hD+1)}')
            A(f'  v_cndmask_b32 {v(hD)}, 0, {v(hD)}, vcc')
            A(f'  s_and_b32 {s(sB)}, vcc_lo, 0xffff')
            A(f'  s_bcnt1_i32_b32 {s(sB)}, {s(sB)}')
            for r in (8, 4, 2, 1):
                A(f'  v_add_u32_dpp {v(hD)}, {v(hD)}, {v(hD)} row_ror:{r} row_mask:0xf bank_mask:0xf')
            A(f'  v_readfirstlane_b32 {s(sA)}, {v(hD)}')
            A(f'  s_sub_u32 {s(sT)}, {s(sOWN)}, {dead}')
            A(f'  s_mul_i32 {s(sT)}, {s(sT)}, {s(sB)}')
            A(f'  s_sub_i32 {s(sA)}, {s(sT)}, {s(sA)}')
            A(f'  s_max_i32 {s(sA)}, {s(sA)}, 0')
            A(f'  s_max_u32 {s(sB)}, {s(sB)}, 1')
            A(f'  s_mul_i32 {s(sB)}, {s(sB)}, {gain}')
            A(f'  v_cvt_f32_u32 {v(hD)}, {s(sB)}')
            A(f'  v_cvt_f32_u32 {v(hD+1)}, {s(sA)}')
            A(f'  v_rcp_f32 {v(hD)}, {v(hD)}')
            A(f'  v_fma_f32 {v(hD)}, {v(hD)}, {v(hD+1)}, 0.5')
            A(f'  v_cvt_u32_f32 {v(hD)}, {v(hD)}')
            A(f'  v_min_u32 {v(hD)}, 64, {v(hD)}')
            A(f'  v_readfirstlane_b32 {s(sA)}, {v(hD)}')
            A(f'  s_mul_i32 {s(sA)}, {s(sA)}, {W}')
            A(f'  s_sub_i32 {s(sT)}, {s(sUNT)}, {c - dly}')
            A(f'  s_max_i32 {s(sT)}, {s(sT)}, 0')
            A(f'  s_min_i32 {s(sT)}, {s(sT)}, {dly + W}')
            A(f'  s_sub_i32 {s(sA)}, {s(sA)}, {s(sT)}')
            A(f'  s_cmp_gt_i32 {s(sA)}, 0')
            A(f'  s_cselect_b32 {s(sT)}, {c + W}, 0')
            A(f'  s_cselect_b32 {s(sA)}, {s(sA)}, 0')
            A(f'  s_add_u32 {s(sUNT)}, {s(sT)}, {s(sA)}')
            A(f'  v_mov_b32 {v(hD)}, {s(sUNT)}')
            A(f'  v_mov_b32 {v(hA)}, {F_BST}')
            A(f'  ds_write_b32 {v(hA)}, {v(hD)}')
    wait_progress('v', PW, 8)
    A(f'  s_load_dwordx2 {s(sV0,2)}, {s(sDBG,2)}, {s(sFA)}')
    if safe: A('  s_mov_b32 s59, 0')
    A('L_h_votes:')
    A('  s_waitcnt lgkmcnt(0)')
    A(f'  s_lshr_b32 {s(sT)}, {s(sV0+1)}, 24')
    A(f'  s_cmp_eq_u32 {s(sT)}, {0 if novote else 64}')
    A('  s_cbranch_scc1 L_h_votes_done')
    if safe:
        A('  s_add_u32 s59, s59, 1')
        A('  s_cmp_gt_u32 s59, 2000')
        A('  s_cbranch_scc1 L_h_votes_done')
    A('  s_sleep 64')
    A(f'  s_mov_b64 {s(sV0,2)}, 0')
    A(f'  s_atomic_or_x2 {s(sV0,2)}, {s(sDBG,2)}, {s(sFA)} glc')
    A('  s_branch L_h_votes')
    A('L_h_votes_done:')
    A(f'  s_mov_b32 {s(sDEC)}, 0x80')
    for j in range(6):
        A(f'  s_bfe_u32 {s(sA)}, {s(sV0 + j // 4)}, {hex(0x80000 | (8 * (j % 4)))}')
        A(f'  s_cmp_gt_u32 {s(sA)}, 16')
        A(f'  s_cselect_b32 {s(sB)}, {1 << j}, 0')
        A(f'  s_or_b32 {s(sDEC)}, {s(sDEC)}, {s(sB)}')
        A(f'  s_sub_u32 {s(sA)}, {s(sA)}, {THR + 1}')
        A(f'  s_cmp_lt_u32 {s(sA)}, {32 - 2 * THR - 1}')
        A(f'  s_cselect_b32 {s(sB)}, 64, 0')
        A(f'  s_or_b32 {s(sDEC)}, {s(sDEC)}, {s(sB)}')
    if force >= 0:
        A(f'  s_mov_b32 {s(sDEC)}, {0x80 | force}')
    A(f'  s_mul_i32 {s(sA)}, {s(sRO)}, 63')
    A(f'  s_xor_b32 {s(sDEC)}, {s(sDEC)}, {s(sA)}')
    A(f'  v_mov_b32 {v(hA)}, {F_DEC}')
    A(f'  v_mov_b32 {v(hD)}, {s(sDEC)}')
    A(f'  ds_write_b32 {v(hA)}, {v(hD)}')
    stamp()
    A(f'  v_lshlrev_b32 {v(hO)}, 4, v0')
    if pf:
        for srd, nb in ((SKS, 24576), (SKZ, 24576), (SVS, 8192), (SVZ, 8192)):
            A(f'  s_mul_i32 {s(sA)}, s2, {nb}')
            for k in range(nb // 1024):
                if k % 4 == 0 and k: A(f'  s_add_u32 {s(sA)}, {s(sA)}, 4096')
                A(f'  s_waitcnt vmcnt({pf - 1})')
                A(f'  buffer_load_dwordx4 {v(hD,4)}, {v(hO)}, {s(srd,4)}, {s(sA)} offen offset:{(k % 4) * 1024}')
        A('  s_waitcnt vmcnt(0)')
    stamp()
    checkpoints(64)
    A(f'  s_bitcmp1_b32 {s(sDEC)}, 6')
    A('  s_cbranch_scc1 L_h_skipa')
    A(f'  s_add_u32 {s(sT)}, {s(sFA)}, 8')
    A(f'  s_load_dwordx2 {s(sNON,2)}, {s(sDBG,2)}, {s(sT)}')
    A('  s_waitcnt lgkmcnt(0)')
    A(f'  s_cmp_lg_u64 {s(sNON,2)}, 0')
    A('  s_cbranch_scc1 L_h_gotnonce')
    A(f'  s_atomic_or_x2 {s(sNON,2)}, {s(sDBG,2)}, {s(sT)} glc')
    A('  s_waitcnt lgkmcnt(0)')
    A('L_h_gotnonce:')
    A(f'  s_lshl_b32 {s(sFA)}, s2, 8')
    A(f'  s_add_u32 {s(sFA)}, {s(sFA)}, {WSF}')
    A(f'  s_xor_b32 {s(sFS)}, {s(sFA)}, 1024')
    A(f'  s_lshr_b32 {s(sX)}, {s(sDEC)}, 3')
    A(f'  s_xor_b32 {s(sX)}, {s(sX)}, {s(sDEC)}')
    A(f'  s_lshr_b32 {s(sT)}, {s(sPB)}, 4')
    A(f'  s_lshr_b32 {s(sOF)}, {s(sT)}, 5')
    A(f'  s_lshl_b32 {s(sOF)}, {s(sOF)}, 21')
    A(f'  s_add_u32 {s(sOF)}, {s(sOF)}, {WSX}')
    A(f'  s_and_b32 {s(sQD)}, {s(sT)}, 31')
    A(f'  s_add_u32 {s(sT)}, {s(sQD)}, {s(sRO)}')
    A(f'  s_lshl_b32 {s(sT)}, {s(sT)}, 10')
    A(f'  s_add_u32 {s(sME)}, {s(sOF)}, {s(sT)}')
    A(f'  s_xor_b32 {s(sPA)}, {s(sME)}, 1024')
    def pxor(k):
        h = k >> 2
        c = (h & 3) ^ (((h >> 2) & 1) * 17) ^ (((h >> 3) & 1) * 4)
        return (k << 15) | (c << 10)
    NW = NWU * 384 // 1024
    def reg(k): return hD + 4 * (k % 24)
    def export(lo, hi):
        for k in range(lo, hi): A(f'  ds_read_b128 {v(reg(k),4)}, {v(hO)} offset:{1024*k}')
        A('  s_waitcnt lgkmcnt(0)')
        for k in range(lo, hi):
            A(f'  s_xor_b32 {s(sT)}, {s(sME)}, {pxor(k)}')
            if not noexp: A(f'  buffer_store_dwordx4 {v(reg(k),4)}, {v(hO)}, {s(SW_,4)}, {s(sT)} offen {fl(xf)}')
    def imp(lo, hi):
        for k in range(lo, hi):
            A(f'  s_xor_b32 {s(sT)}, {s(sPA)}, {pxor(k)}')
            if not noimp: A(f'  buffer_load_dwordx4 {v(reg(k),4)}, {v(hO)}, {s(SW_,4)}, {s(sT)} offen sc1')
        A('  s_waitcnt vmcnt(0)')
        for k in range(lo, hi): A(f'  ds_write_b128 {v(hO)}, {v(reg(k),4)} offset:{1024*k}')
    def cond(bit, tag, fn):
        A(f'  s_bitcmp0_b32 {s(sX)}, {bit}')
        A(f'  s_cbranch_scc1 L_h_{tag}')
        fn()
        A(f'L_h_{tag}:')
    def handshake(tag, level):
        A(f'  s_add_u32 {s(sA)}, {s(sNON)}, {level}')
        A(f'  v_mov_b32 {v(h2)}, 0')
        A('  s_waitcnt vmcnt(0)')
        A(f'  v_mov_b32 {v(hD)}, {s(sA)}')
        A(f'  v_mov_b32 {v(hD+1)}, {s(sNON+1)}')
        A('  s_mov_b64 exec, 1')
        A(f'  buffer_store_dwordx2 {v(hD,2)}, {v(h2)}, {s(SW_,4)}, {s(sFA)} offen sc1')
        if safe: A('  s_mov_b32 s59, 0')
        A(f'L_h_flag{tag}:')
        A(f'  buffer_load_dwordx2 {v(hD+2,2)}, {v(h2)}, {s(SW_,4)}, {s(sFS)} offen sc1')
        A('  s_waitcnt vmcnt(0)')
        A(f'  v_readfirstlane_b32 {s(sB)}, {v(hD+2)}')
        A(f'  v_readfirstlane_b32 {s(sB+1)}, {v(hD+3)}')
        A(f'  s_sub_u32 {s(sB)}, {s(sB)}, {s(sA)}')
        A(f'  s_xor_b32 {s(sB+1)}, {s(sB+1)}, {s(sNON+1)}')
        A(f'  s_lshr_b32 {s(sB)}, {s(sB)}, 1')
        A(f'  s_or_b32 {s(sB)}, {s(sB)}, {s(sB+1)}')
        A(f'  s_cbranch_scc0 L_h_flag{tag}_done')
        if safe:
            A('  s_add_u32 s59, s59, 1')
            A('  s_cmp_gt_u32 s59, 2000')
            A(f'  s_cbranch_scc1 L_h_flag{tag}_done')
        A('  s_sleep 32')
        A(f'  s_branch L_h_flag{tag}')
        A(f'L_h_flag{tag}_done:')
        A('  s_mov_b64 exec, -1')
    wait_progress('a', 64, 32)
    stamp()
    export(0, NW)
    cond(0, 'e0', lambda: export(NW, 12))
    cond(1, 'e1', lambda: export(12, 24))
    handshake('a', 1)
    stamp()
    A(f'  s_bfe_u32 {s(sA)}, {s(sDEC)}, 0x10003')
    A(f'  s_mul_i32 {s(sA)}, {s(sA)}, 384')
    A(f'  v_lshrrev_b32 {v(h1)}, 3, v0')
    for k in range(NW):
        A(f'  v_add_u32 {v(h2)}, {8 * k}, {v(h1)}')
        A(f'  v_mul_u32_u24 {v(h2)}, 21846, {v(h2)}')
        A(f'  v_bfe_u32 {v(h2)}, {v(h2)}, 16, 1')
        A(f'  v_mul_u32_u24 {v(h3)}, 384, {v(h2)}')
        A(f'  v_sub_u32 {v(h3)}, {v(hO)}, {v(h3)}')
        A(f'  v_add_u32 {v(h3)}, {s(sA)}, {v(h3)}')
        A(f'  v_add_u32 {v(h3)}, {1024 * k}, {v(h3)}')
        A(f'  v_add_u32 {v(h2)}, {s(sQD)}, {v(h2)}')
        A(f'  v_lshrrev_b32 {v(hZ)}, 12, {v(h3)}')
        A(f'  v_xor_b32 {v(h2)}, {v(h2)}, {v(hZ)}')
        A(f'  v_lshrrev_b32 {v(hZ)}, 10, {v(h3)}')
        A(f'  v_lshl_add_u32 {v(h2)}, {v(hZ)}, 5, {v(h2)}')
        A(f'  v_and_b32 {v(h3)}, 1023, {v(h3)}')
        A(f'  v_lshl_add_u32 {v(h2)}, {v(h2)}, 10, {v(h3)}')
        if not noimp: A(f'  buffer_load_dwordx4 {v(reg(k),4)}, {v(h2)}, {s(SW_,4)}, {s(sOF)} offen sc1')
    A('  s_waitcnt vmcnt(0)')
    for k in range(NW): A(f'  ds_write_b128 {v(hO)}, {v(reg(k),4)} offset:{1024*k}')
    cond(0, 'i0', lambda: imp(NW, 12))
    cond(1, 'i1', lambda: imp(12, 24))
    stamp()
    A('L_h_skipa:')
    A(f'  s_lshr_b32 {s(sT)}, {s(sDEC)}, 4')
    A(f'  s_andn2_b32 {s(sX)}, {s(sX)}, {s(sT)}')
    A(f'  s_bitcmp0_b32 {s(sX)}, 2')
    A(f'  s_cselect_b32 {s(sT)}, 255, 64')
    A(f'  v_mov_b32 {v(hA)}, {F_IMP}')
    A(f'  v_mov_b32 {v(h2)}, {s(sT)}')
    A(f'  ds_write_b32 {v(hA)}, {v(h2)}')
    checkpoints(NF)
    A(f'  s_bitcmp0_b32 {s(sX)}, 2')
    A('  s_cbranch_scc1 L_h_all')
    wait_progress('b', NF, 32)
    stamp()
    export(24, 36)
    handshake('b', 2)
    stamp()
    imp(24, 36)
    stamp()
    A(f'  v_mov_b32 {v(hA)}, {F_IMP}')
    A(f'  v_mov_b32 {v(h2)}, 255')
    A(f'  ds_write_b32 {v(hA)}, {v(h2)}')
    A('L_h_all:')
    checkpoints(999)
    A('  s_waitcnt lgkmcnt(0)')
    if stamps or tl:
        A('  s_branch L_fin')
    else:
        A('  s_endpgm')
    body = pad(L)

    L = []
    A = L.append
    A(f'{NAME2}:')
    A('  s_cmp_ge_u32 s2, 256')
    A('  s_cbranch_scc1 L2_end')
    A('  s_load_dwordx2 s[4:5], s[0:1], 56')
    A('  s_load_dwordx2 s[8:9], s[0:1], 72')
    A('  v_lshlrev_b32 v1, 4, v0')
    A('  v_lshrrev_b32 v2, 4, v0')
    A('  v_lshlrev_b32 v3, 3, v2')
    A('  v_mul_u32_u24 v2, 384, v2')
    A('  v_and_b32 v4, 15, v0')
    A('  v_lshl_add_u32 v2, v4, 3, v2')
    A(f'  s_mul_i32 s12, s2, {4 * REC}')
    A(f'  s_add_u32 s12, s12, {WSOFF}')
    for w in range(1, 4): A(f'  s_add_u32 s{12+w}, s{11+w}, {REC}')
    A('  s_mul_i32 s16, s2, 1536')
    A(f'  s_mov_b32 s6, {256 * 1536}')
    A('  s_mov_b32 s7, 0x20000')
    A(f'  s_mov_b32 s10, {WSOFF + 1024 * REC}')
    A('  s_mov_b32 s11, 0x20000')
    A('  s_waitcnt lgkmcnt(0)')
    A('  s_and_b32 s5, s5, 0xffff')
    A('  s_and_b32 s9, s9, 0xffff')
    for w in range(4):
        A(f'  buffer_load_dwordx2 {v(8+2*w,2)}, v3, s[8:11], s{12+w} offen offset:3072 {ldf}')
        for i in range(3):
            A(f'  buffer_load_dwordx4 {v(16+12*w+4*i,4)}, v1, s[8:11], s{12+w} offen offset:{1024*i} {ldf}')
    A('  s_waitcnt vmcnt(0)')
    combine(A, 4, 8, 16, 3, 6, 7, 64)
    A('  v_rcp_f32 v7, v7')
    for k in range(12): A(f'  v_mul_f32 {v(64+k)}, v7, {v(64+k)}')
    for i in range(3):
        A(f'  v_cvt_pk_bf16_f32 {v(64+4*i)}, {v(64+4*i)}, {v(65+4*i)}')
        A(f'  v_cvt_pk_bf16_f32 {v(65+4*i)}, {v(66+4*i)}, {v(67+4*i)}')
        A(f'  buffer_store_dwordx2 {v(64+4*i,2)}, v2, s[4:7], s16 offen offset:{128*i}')
    if diag:
        A('  s_cmp_lg_u32 s2, 0')
        A('  s_cbranch_scc1 L2_end')
        A('  s_load_dwordx2 s[18:19], s[0:1], 64')
        A(f'  v_mul_u32_u24 v1, {16 * (W + 1)}, v0')
        A('  buffer_load_dwordx4 v[4:7], v1, s[8:11], 0 offen')
        A('  s_waitcnt vmcnt(0) lgkmcnt(0)')
        A('  v_sub_u32 v4, v5, v4')
        A('  v_and_b32 v6, 15, v6')
        A('  v_lshl_or_b32 v4, v6, 16, v4')
        A('  v_lshl_or_b32 v4, v7, 24, v4')
        A('  v_lshlrev_b32 v1, 2, v0')
        A('  global_store_dword v1, v4, s[18:19]')
    A('L2_end:')
    A('  s_endpgm')
    body2 = pad(L)

    nva = (nv + 7) // 8 * 8
    out = HDR + f'; @launch kernel={NAME} grid=(256,1,1) block=({64*(W+1)},1,1) lds={lds}\n'
    out += f'; @launch kernel={NAME2} grid=(256,1,1) block=(64,1,1) lds=0\n'
    out += '.amdgcn_target "amdgcn-amd-amdhsa--gfx950"\n.text\n'
    out += f'.globl {NAME}\n.p2align 8\n.type {NAME},@function\n'
    out += '\n'.join(body) + '\n'
    out += f'.globl {NAME2}\n.p2align 8\n.type {NAME2},@function\n'
    out += '\n'.join(body2) + '\n'
    out += '.section .rodata,"a"\n'
    for nm, nvv, nss in ((NAME, nva, 102), (NAME2, 80, 24)):
        out += f'''.p2align 6
.amdhsa_kernel {nm}
  .amdhsa_next_free_vgpr {nvv}
  .amdhsa_next_free_sgpr {nss}
  .amdhsa_accum_offset {nvv}
  .amdhsa_group_segment_fixed_size 0
  .amdhsa_kernarg_size 80
  .amdhsa_user_sgpr_count 2
  .amdhsa_user_sgpr_kernarg_segment_ptr 1
  .amdhsa_system_sgpr_workgroup_id_x 1
  .amdhsa_float_denorm_mode_32 3
.end_amdhsa_kernel
'''
    return out

if __name__ == '__main__':
    kw = {}
    for x in sys.argv[2:]:
        k, val = x.split('=')
        kw[k] = int(val) if val.lstrip('-').isdigit() else val
    open(sys.argv[1], 'w').write(gen(**kw))
```

```python
import sys, os
sys.path.insert(0, os.path.dirname(os.path.abspath(__file__)))
from asmlib import pad
NAME = 'standalone__kv_cache_quant_int4_int2_kv_with_per_channel_or_per_token_scales__sampling_kernel'
HEAD = 4096 * 768
TOTAL = 256 * HEAD
REC = 5120
WSOFF = 1 << 20
WSX = 8 << 20
WSC = 7 << 20
WSF = (7 << 20) + (1 << 16)
IMG = 96 * 384
WSEND = WSX + (16 << 20)
OOB = 0x7ffffff0
HDR = open(os.path.join(os.path.dirname(os.path.abspath(__file__)), 'header.txt')).read()
assert all(((32 * c + 1) * 21846) >> 16 == (32 * c + 1) // 3 for c in range(25))
assert all((c * 43) >> 8 == c // 6 for c in range(24))

class Alloc:
    def __init__(self, start): self.n = start
    def __call__(self, k, align=1):
        self.n = (self.n + align - 1) // align * align
        r = self.n; self.n += k
        return r

def v(r, k=1): return f'v{r}' if k == 1 else f'v[{r}:{r+k-1}]'
def s(r, k=1): return f's{r}' if k == 1 else f's[{r}:{r+k-1}]'

def merge(main, side, every):
    out = []; side = list(side); c = 0
    for m in main:
        out.append(m); c += 1
        if side and c % every == 0: out.append(side.pop(0))
    return out + side

def combine(A, n, ST, AC, npiece, X0, X1, OUT):
    A(f'  v_min_f32 {v(X0)}, {v(ST)}, {v(ST+2)}')
    for w in range(2, n): A(f'  v_min_f32 {v(X0)}, {v(X0)}, {v(ST+2*w)}')
    for w in range(n): A(f'  v_sub_f32 {v(ST+2*w)}, {v(X0)}, {v(ST+2*w)}')
    for w in range(n): A(f'  v_exp_f32 {v(ST+2*w)}, {v(ST+2*w)}')
    A(f'  v_mul_f32 {v(X1)}, {v(ST)}, {v(ST+1)}')
    for w in range(1, n): A(f'  v_fma_f32 {v(X1)}, {v(ST+2*w)}, {v(ST+2*w+1)}, {v(X1)}')
    for i in range(npiece):
        for j in range(4):
            A(f'  v_mul_f32 {v(OUT(4*i+j))}, {v(ST)}, {v(AC+4*i+j)}')
            for w in range(1, n):
                A(f'  v_fma_f32 {v(OUT(4*i+j))}, {v(ST+2*w)}, {v(AC+4*(npiece*w+i)+j)}, {v(OUT(4*i+j))}')

def gen(D=11, W=2, stamps=False, sf='-', stf='-', tl=0, NWU=16, NS=2, pf=8, force=-1, THR=12, safe=0, PW=0, xf='sc1', noexp=0, noimp=0, DC=15, U=2, tail=0, ctl='28.44.76.108.124.140.156.168', gain=22, dly=8, dead=0, novote=0):
    R = 11 * U; NST = 33; NF = 96
    DN = D; D = DC = DC or D
    assert DN <= D <= R and NWU % 8 == 0 and W in (2, 4)
    PW = PW or NWU - 2 * W
    fl = lambda x: x.replace('-', '').replace('+', ' ')
    sf, stf = fl(sf), fl(stf)
    L = []
    A = L.append
    va = Alloc(1)
    RING = va(4 * R, 4); VO = va(4)
    DUP = va(1); DOWN = va(1); DCON = va(1); ICV = va(1); TU = va(1)
    VVS = va(1); VL1 = va(1); VL2 = va(1); VBP = va(1); VFL = va(1); VST = va(1); VPR = va(1)
    VOOB = va(1); VBA = va(1); VBS = va(1)
    T = va(4, 2); ZN = va(1); SN = va(1); ZC = va(1); SC = va(1); ZS = va(2, 2)
    LG = va(6, 4); ACC = va(12, 4); M = va(1); NB = va(2, 2); LS = NB + 1
    X0 = va(2, 2); X1 = X0 + 1; AL = va(1); ALQ = va(1); E = va(11); PP = va(6); TL = va(1)
    base = va.n
    QB = va(6, 4); QN = va(6, 2); KSR = va(6, 2); KZR = va(6, 2); KS = va(12, 2); KZ = va(12, 2); KA = va(6, 4); SD = va(4, 4); S = va(2, 2)
    IUP = va(1); IOWN = va(1); ICON = va(1); VKS0 = va(1); VKS = va(1); VQ = va(1); VNI = va(1)
    kend = va.n
    va.n = base
    AJ = va(16, 4); AK = va(8, 2); TV = va(12, 2); BV = va(48, 4)
    nv = max(va.n, kend)
    sRO, sPB = 4, 5
    SK, SV, SI, SKS, SKZ, SVS, SVZ, SQ, SW_ = 8, 12, 16, 20, 24, 28, 32, 36, 40
    PT = 44
    sREC, sL0, sL10, sM0, sM10, sLOW = 44, 48, 50, 52, 54, 56
    sCUR, sNXT, sSO, sF, sMSK, sL2E, sTL, s768, sSCL, sT = 60, 61, 62, 64, 65, 66, 67, 63, 68, 70
    sMJ = 72
    sDBG, sWS = 80, 82
    sQ3, sC, sQC, sCC, sHC, sHN, sDIV, sSH = 84, 85, 86, 87, 88, 89, 90, 91
    sDEC, sLIM, sGATE, sSEG = 96, 97, 99, 100
    sU = 92
    sBIG, sSM = 92, 94
    SEG = W * 3072 + W * 32
    LDS_ACC = IMG
    LDS_F = LDS_ACC + 4 * SEG
    F_DEC, F_IMP, F_BST, F_TAG, F_PRG = LDS_F, LDS_F + 4, LDS_F + 8, LDS_F + 12, LDS_F + 16
    cps = [int(x) for x in str(ctl).split('.') if x]
    assert len(cps) <= 16
    lds = 87040
    assert LDS_F + 32 <= lds

    A(f'{NAME}:')
    A('  s_cmp_ge_u32 s2, 256')
    A('  s_cbranch_scc1 L_end')
    A(f'  s_load_dwordx16 {s(PT,16)}, s[0:1], 0')
    A(f'  s_load_dwordx4 {s(sDBG,4)}, s[0:1], 64')
    if stamps:
        A('  s_memrealtime s[6:7]')
    A('  v_lshrrev_b32 v1, 6, v0')
    A('  v_and_b32 v0, 63, v0')
    A('  v_readfirstlane_b32 s3, v1')
    A(f'  s_bfe_u32 {s(sRO)}, s2, 0x10002')
    A(f'  s_lshr_b32 {s(sPB)}, s2, 3')
    A(f'  s_lshl_b32 {s(sPB)}, {s(sPB)}, 2')
    A(f'  s_and_b32 {s(sT)}, s2, 3')
    A(f'  s_add_u32 {s(sPB)}, {s(sPB)}, {s(sT)}')
    A(f'  s_lshl_b32 {s(sPB)}, {s(sPB)}, 5')
    def make_srds():
        A('  s_waitcnt lgkmcnt(0)')
        for srd, p, nb in ((SK, PT + 2, TOTAL), (SKS, PT + 6, 256 * 24576), (SKZ, PT + 8, 256 * 24576), (SQ, PT, 256 * 1536),
                           (SI, PT + 2, TOTAL), (SV, PT + 4, TOTAL), (SVS, PT + 10, 256 * 8192), (SVZ, PT + 12, 256 * 8192), (SW_, sWS, WSEND)):
            A(f'  s_mov_b32 {s(srd)}, {s(p)}')
            A(f'  s_and_b32 {s(srd+1)}, {s(p+1)}, 0xffff')
            A(f'  s_mov_b32 {s(srd+2)}, {nb}')
            A(f'  s_mov_b32 {s(srd+3)}, 0x20000')
    A(f'  s_cmp_eq_u32 s3, {W}')
    A('  s_cbranch_scc1 L_helper')

    cls, a, g, n = T, T + 1, T + 2, T + 3
    A(f'  v_and_b32 {v(cls)}, 3, v0')
    A(f'  v_bfe_u32 {v(a)}, v0, 2, 2')
    A(f'  v_lshrrev_b32 {v(g)}, 4, v0')
    A(f'  v_and_b32 {v(n)}, 15, v0')
    def stream_consts(x, up, own, con, lanepart):
        A(f'  v_and_b32 {v(own)}, 2, {v(x)}')
        A(f'  v_lshlrev_b32 {v(up)}, 5, {v(own)}')
        A(f'  v_add_u32 {v(up)}, 129, {v(up)}')
        A(f'  v_and_b32 {v(X1)}, 1, {v(x)}')
        A(f'  v_lshl_add_u32 {v(own)}, {v(X1)}, 2, {v(own)}')
        A(f'  v_mul_u32_u24 {v(X1)}, {43 * 768}, {v(X1)}')
        A(f'  v_add_u32 {v(con)}, {v(lanepart)}, {v(X1)}')
        A(f'  v_subrev_u32 {v(con)}, {43 * 768}, {v(con)}')
    A(f'  v_lshlrev_b32 {v(X0)}, 4, {v(cls)}')
    A(f'  v_lshl_add_u32 {v(X0)}, {v(g)}, 6, {v(X0)}')
    A(f'  v_lshrrev_b32 {v(VKS0)}, 1, {v(X0)}')
    stream_consts(a, IUP, IOWN, ICON, X0)
    A(f'  v_mul_u32_u24 {v(X1)}, 384, {v(a)}')
    A(f'  v_add_u32 {v(VQ)}, {v(X1)}, {v(VKS0)}')
    A(f'  v_mov_b32 {v(VOOB)}, {OOB}')
    A(f'  s_mov_b32 {s(sDIV)}, 0xaaaaaaab')
    A(f'  s_mov_b32 {s(sSH)}, 0x492492')
    A(f'  s_movk_i32 {s(s768)}, 768')
    def slot(k): return RING + 4 * (k % R)
    def main_load(k, srd, so):
        ss, i = divmod(k % NST, 3)
        r, k0 = (0, 0) if ss == 0 else (1, 1) if ss <= 5 else (2, 6) if ss <= 9 else (3, 10)
        return f'  buffer_load_dwordx4 {v(slot(k),4)}, {v(VO+r)}, {s(srd,4)}, {s(so)} offen offset:{768*(ss-k0) + 256*i} nt'
    def kscale_loads():
        r = [f'  s_mul_i32 {s(sSO)}, {s(sQ3)}, 1536']
        for i in range(3):
            r.append(f'  buffer_load_dwordx2 {v(KSR+2*i,2)}, {v(VKS)}, {s(SKS,4)}, {s(sSO)} offen offset:{128*i} {sf}')
            r.append(f'  buffer_load_dwordx2 {v(KZR+2*i,2)}, {v(VKS)}, {s(SKZ,4)}, {s(sSO)} offen offset:{128*i} {sf}')
        return r
    def vscale_loads():
        return [f'  s_lshl_b32 {s(sSO)}, {s(sQ3)}, 9',
                f'  v_lshl_add_u32 {v(VVS)}, {v(TU)}, 1, {v(ICV)}',
                f'  buffer_load_short_d16_hi {v(ZN)}, {v(VVS)}, {s(SVZ,4)}, {s(sSO)} offen {sf}',
                f'  buffer_load_short_d16_hi {v(SN)}, {v(VVS)}, {s(SVS,4)}, {s(sSO)} offen {sf}']
    def q_loads():
        return [f'  s_mul_i32 {s(sT)}, {s(sHN)}, 1536'] + \
               [f'  buffer_load_dwordx2 {v(QN+2*i,2)}, {v(VQ)}, {s(SQ,4)}, {s(sT)} offen offset:{128*i} {sf}' for i in range(3)]
    def short_masks(own, c, m0, m10, low):
        A(f'  v_add_u32 {v(X0)}, {s(c)}, {v(own)}')
        A(f'  v_lshrrev_b32 {v(X1)}, {v(X0)}, {s(sSH)}')
        A(f'  v_and_b32 {v(X1)}, 1, {v(X1)}')
        A(f'  v_cmp_eq_u32 {s(m10,2)}, 1, {v(X1)}')
        A(f'  s_and_b64 {s(m0,2)}, {s(m10,2)}, {low}')
        A(f'  s_andn2_b64 {s(m10,2)}, {s(m10,2)}, {low}')
    def map_unit(f, isv):
        A(f'  s_andn2_b32 {s(sT)}, {s(f)}, 1')
        A(f'  s_or_b32 {s(sT)}, {s(sT)}, {s(sRO)}')
        A(f'  s_lshr_b32 {s(sT+1)}, {s(f)}, 5')
        A(f'  s_lshr_b32 {s(sC)}, {s(sDEC)}, {s(sT+1)}')
        if isv: A(f'  s_lshr_b32 {s(sC)}, {s(sC)}, 3')
        A(f'  s_cmp_lt_u32 {s(f)}, {s(sLIM)}')
        A(f'  s_cselect_b32 {s(sT)}, {s(sT)}, {s(f)}')
        A(f'  s_cselect_b32 {s(sC)}, {s(f)}, {s(sC)}')
        A(f'  s_and_b32 {s(sC)}, {s(sC)}, 1')
        A(f'  s_mul_i32 {s(sT+1)}, {s(sT+1)}, {4096 - 32}')
        A(f'  s_add_u32 {s(sT)}, {s(sT)}, {s(sT+1)}')
        A(f'  s_add_u32 {s(sT)}, {s(sT)}, {s(sPB)}')
        A(f'  s_mul_hi_u32 {s(sQ3)}, {s(sT)}, {s(sDIV)}')
        A(f'  s_lshr_b32 {s(sQ3)}, {s(sQ3)}, 1')
        A(f'  s_mul_i32 {s(sT+1)}, {s(sQ3)}, 3')
        A(f'  s_sub_u32 {s(sT)}, {s(sT)}, {s(sT+1)}')
        A(f'  s_lshl3_add_u32 {s(sC)}, {s(sT)}, {s(sC)}')
        A(f'  s_mul_i32 {s(sNXT)}, {s(sQ3)}, 196608')
        A(f'  s_lshr_b32 {s(sHN)}, {s(sQ3)}, 4')
        A(f'  s_lshl_b32 {s(sT)}, {s(sC)}, 5')
        A(f'  v_add_u32 {v(TU)}, {s(sT)}, {v(DUP if isv else IUP)}')
        A(f'  v_mul_u32_u24 {v(TU)}, 21846, {v(TU)}')
        A(f'  v_lshrrev_b32 {v(TU)}, 16, {v(TU)}')
        short_masks(DOWN if isv else IOWN, sC, sM0, sM10, s(sLOW + 2 * isv, 2))
        if not isv:
            A(f'  v_mul_u32_u24 {v(X0)}, 43, {v(X0)}')
            A(f'  v_lshrrev_b32 {v(X0)}, 8, {v(X0)}')
            A(f'  v_mul_u32_u24 {v(X0)}, 384, {v(X0)}')
            A(f'  v_add_u32 {v(VKS)}, {v(X0)}, {v(VKS0)}')
    def offsets(con):
        A(f'  v_mad_u32_u24 {v(VO)}, {v(TU)}, {s(s768)}, {v(con)}')
        A(f'  v_add_u32 {v(VO+1)}, 768, {v(VO)}')
        A(f'  v_add_u32 {v(VO+2)}, {6 * 768}, {v(VO)}')
        A(f'  v_add_u32 {v(VO+3)}, {10 * 768}, {v(VO)}')
        A(f'  v_cndmask_b32 {v(VO)}, {v(VO)}, {v(VOOB)}, {s(sM0,2)}')
        A(f'  v_cndmask_b32 {v(VO+3)}, {v(VO+3)}, {v(VOOB)}, {s(sM10,2)}')
    def stamp():
        if tl:
            A(f'  s_memrealtime {s(sT,2)}')
            A('  s_waitcnt lgkmcnt(0)')
            A(f'  s_min_u32 m0, {s(sTL)}, 63')
            A(f'  v_writelane_b32 {v(TL)}, {s(sT)}, m0')
            A(f'  s_add_u32 {s(sTL)}, {s(sTL)}, 1')
    def reset_state():
        for k in range(12): A(f'  v_mov_b32 {v(ACC+k)}, 0')
        A(f'  v_mov_b32 {v(M)}, 0xff800000')
        A(f'  v_mov_b32 {v(NB)}, 0x7f800000')
        A(f'  v_mov_b32 {v(LS)}, 0')
    A(f'  s_mov_b32 {s(sF)}, s3')
    A(f'  s_mov_b32 {s(sLIM)}, {NWU}')
    A(f'  s_mov_b32 {s(sGATE)}, {NWU}')
    A(f'  s_mov_b32 {s(sDEC)}, 0')
    make_srds()
    A(f'  s_mov_b32 {s(sLOW)}, 0x0f0f0f0f')
    A(f'  s_mov_b32 {s(sLOW+1)}, 0x0f0f0f0f')
    A(f'  s_mov_b32 {s(sLOW+2)}, 0xffff')
    A(f'  s_mov_b32 {s(sLOW+3)}, 0xffff')
    map_unit(sF, 0)
    offsets(ICON)
    A(f'  s_mov_b32 {s(sCUR)}, {s(sNXT)}')
    A(f'  s_mov_b32 {s(sHC)}, {s(sHN)}')
    for x in kscale_loads(): A(x)
    for x in q_loads(): A(x)
    for k in range(D): A(main_load(k, SK, sCUR))
    A('  s_mov_b64 vcc, 0')
    A(f'  v_lshlrev_b32 {v(X0)}, 4, {v(n)}')
    stream_consts(g, DUP, DOWN, DCON, X0)
    A(f'  v_and_b32 {v(X1)}, 1, {v(g)}')
    A(f'  v_mul_u32_u24 {v(X1)}, 86, {v(X1)}')
    A(f'  v_lshl_add_u32 {v(ICV)}, {v(n)}, 1, {v(X1)}')
    A(f'  v_subrev_u32 {v(ICV)}, 86, {v(ICV)}')
    A(f'  v_lshlrev_b32 {v(VBP)}, 4, {v(g)}')
    A(f'  v_lshrrev_b32 {v(X0)}, 2, v0')
    A(f'  s_mul_i32 {s(sT)}, s3, 384')
    A(f'  v_lshl_add_u32 {v(VL1)}, {v(X0)}, 4, {s(sT)}')
    A(f'  v_lshl_add_u32 {v(VL2)}, {v(X0)}, 3, {s(sT)}')
    A(f'  s_mul_i32 {s(sT)}, s3, 3072')
    A(f'  s_add_u32 {s(sT)}, {s(sT)}, {LDS_ACC}')
    A(f'  v_lshl_add_u32 {v(VFL)}, v0, 4, {s(sT)}')
    A(f'  s_lshl_b32 {s(sT)}, s3, 5')
    A(f'  s_add_u32 {s(sT)}, {s(sT)}, {LDS_ACC + W * 3072}')
    A(f'  v_lshl_add_u32 {v(VST)}, {v(a)}, 3, {s(sT)}')
    A(f'  s_lshl_b32 {s(sT)}, s3, 2')
    A(f'  s_add_u32 {s(sT)}, {s(sT)}, {F_PRG}')
    A(f'  v_mov_b32 {v(VPR)}, {s(sT)}')
    A(f'  v_mov_b32 {v(VBA)}, {F_BST}')
    A(f'  v_mov_b32 {v(ZN)}, 0')
    A(f'  v_mov_b32 {v(SN)}, 0')
    A(f'  v_mov_b32 {v(VNI)}, 0xff800000')
    A(f'  s_mov_b32 {s(sMSK)}, 0xffff0000')
    A(f'  s_mov_b32 {s(sL2E)}, 0x3fb8aa3b')
    for h in range(2):
        A(f'  s_mov_b32 {s(sSCL+h)}, {hex(0x3d93cd3a + (22 << 23))}')
        A(f'  s_mov_b32 {s(sBIG+h)}, 0x7f000000')
        A(f'  s_mov_b32 {s(sSM+h)}, {hex((127 - 22) << 23)}')
    for j in range(4):
        A(f'  s_mov_b32 {s(sMJ+2*j)}, {hex(0x11111111 << j)}')
        A(f'  s_mov_b32 {s(sMJ+2*j+1)}, {hex(0x11111111 << j)}')
        A(f'  s_mov_b32 {s(sREC+j)}, 0')
    A(f'  s_mov_b32 {s(sSEG)}, 0')
    reset_state()
    if tl:
        A(f'  s_mov_b32 {s(sTL)}, 0')
        A(f'  v_mov_b32 {v(TL)}, 0')
    A('  s_barrier')

    PSMALL = 3
    late = (D == R)
    SW = NST - D
    assert PSMALL < SW
    def wait_step(k, nsmall, tag):
        cnt = lambda d: d - 1 + (nsmall if k - d <= PSMALL < k else 0)
        A(f'  s_waitcnt vmcnt({cnt(D)})')
        if DN < D:
            A(f'  s_cbranch_vccnz L_{tag}')
            A(f'  s_waitcnt vmcnt({cnt(DN)})')
            A(f'L_{tag}:')
    def dequant(X, src, z, sc, zmod, smod):
        r = [f'  v_pk_fma_f32 {v(X+2*h,2)}, {v(src+2*h,2)}, {s(sBIG,2)}, {z[h]} {zmod}neg_lo:[0,0,1] neg_hi:[0,0,1]' for h in range(2)]
        r2 = [f'  v_cvt_pk_bf16_f32 {v(X+j)}, 0, {v(X+j)}' for j in range(4)]
        r2 += [f'  v_pk_mul_f32 {v(X+2*h,2)}, {v(X+2*h,2)}, {sc[h]} {smod}'.rstrip() for h in range(2)]
        return r, r2
    def kreduce(ss):
        d = S + (ss & 1)
        q = lambda j: f'quad_perm:[{j},{j},{j},{j}] row_mask:0xf bank_mask:0xf'
        r = [f'  v_mov_b32_dpp {v(X0)}, {v(SD)} {q(0)}',
             f'  v_mov_b32_dpp {v(X1)}, {v(SD+2)} {q(2)}',
             f'  v_add_f32_dpp {v(X0)}, {v(SD+1)}, {v(X0)} {q(1)}',
             f'  v_add_f32_dpp {v(X1)}, {v(SD+3)}, {v(X1)} {q(3)}',
             f'  v_add_f32 {v(d)}, {v(X0)}, {v(X1)}']
        if ss == 0: r.append(f'  v_cndmask_b32 {v(d)}, {v(d)}, {v(VNI)}, {s(sL0,2)}')
        if ss == 10: r.append(f'  v_cndmask_b32 {v(d)}, {v(d)}, {v(VNI)}, {s(sL10,2)}')
        if ss & 1 or ss == 10:
            r += [f'  v_cvt_pk_bf16_f32 {v(S)}, 0, {v(S)}',
                  f'  v_cvt_pk_bf16_f32 {v(S+1)}, 0, {v(S+1)}',
                  f'  v_pk_mul_f32 {v(S,2)}, {v(S,2)}, {s(sSCL,2)}',
                  f'  v_cvt_pk_bf16_f32 {v(LG+(ss>>1))}, {v(S)}, {v(S+1)}']
        return r
    def lds_word(dst, addr):
        A(f'  v_mov_b32 {v(X0)}, {addr}')
        A(f'  ds_read_b32 {v(X0)}, {v(X0)}')
        A('  s_waitcnt lgkmcnt(0)')
        A(f'  v_readfirstlane_b32 {s(dst)}, {v(X0)}')

    mf32 = f'  v_mfma_f32_16x16x32_bf16 {v(SD,4)}, {v(KA,4)}, {v(QB,4)}, 0'
    mf16 = f'  v_mfma_f32_16x16x16_bf16 {v(SD,4)}, {v(KA+4,2)}, {v(QB+4,2)}, {v(SD,4)}'
    def k_unit(u):
        o = NST * u
        if u == 0: stamp()
        short_masks(DOWN, sC, sL0, sL10, s(sLOW + 2, 2))
        A(f'  s_add_u32 {s(sF)}, {s(sF)}, {W}')
        A(f'  s_cmp_lt_u32 {s(sF)}, {s(sGATE)}')
        A(f'  s_cbranch_scc1 L_k_known{u}')
        A(f'L_k_spin{u}:')
        lds_word(sDEC, F_DEC)
        A(f'  s_cmp_eq_u32 {s(sDEC)}, 0')
        A(f'  s_cbranch_scc1 L_k_spin{u}')
        A(f'  s_mov_b32 {s(sGATE)}, -1')
        A(f'  s_bitcmp1_b32 {s(sDEC)}, 6')
        A(f'  s_cselect_b32 {s(sLIM)}, 255, {s(sLIM)}')
        A(f'L_k_known{u}:')
        map_unit(sF, 0)
        if cps: A(f'  ds_read_b32 {v(VBS)}, {v(VBA)}')
        for k in range(NST):
            ss, i = divmod(k, 3)
            if cps and k == 1:
                A('  s_waitcnt lgkmcnt(0)')
                A(f'  s_sub_u32 {s(sT)}, {s(sF)}, {W}')
                A(f'  v_cmp_lt_u32 vcc, {s(sT)}, {v(VBS)}')
            if k == SW and u < U - 1: offsets(ICON)
            if k == SW and u == U - 1:
                A(f'  s_cmp_lt_u32 {s(sF)}, {NF}')
                A(f'  s_cbranch_scc1 L_k_keep{u}')
                A(f'  s_bitcmp1_b32 {s(sDEC)}, 6')
                A(f'  s_cselect_b32 {s(sLIM)}, 255, 0')
                A(f'  v_mov_b32 {v(E)}, {v(X0)}')
                A(f'  v_mov_b32 {v(E+1)}, {v(X1)}')
                map_unit(3, 1)
                A(f'  v_mov_b32 {v(X0)}, {v(E)}')
                A(f'  v_mov_b32 {v(X1)}, {v(E+1)}')
                A(f'  s_mov_b32 {s(SI)}, {s(SV)}')
                A(f'  s_mov_b32 {s(SI+1)}, {s(SV+1)}')
                for x in vscale_loads(): A(x)
                A(f'  v_mov_b32 {v(ICON)}, {v(DCON)}')
                A(f'L_k_keep{u}:')
                offsets(ICON)
            lds_ = [main_load(o + k + D, SK, sCUR) if k < SW else main_load(o + k + D, SI, sNXT)]
            wait_step(k, 6, f'kw{u}_{k}')
            if not late:
                for x in lds_: A(x)
            if i == 2: A(mf32)
            if i == 0 and ss > 0: A(mf16)
            if ss == 0:
                for raw, dst in ((KZR, KZ), (KSR, KS)):
                    for h in range(2):
                        A(f'  v_lshlrev_b32 {v(dst+4*i+2*h)}, 16, {v(raw+2*i+h)}')
                        A(f'  v_and_b32 {v(dst+4*i+2*h+1)}, {s(sMSK)}, {v(raw+2*i+h)}')
                for h in range(2):
                    A(f'  v_pk_mul_f32 {v(KZ+4*i+2*h,2)}, {v(KZ+4*i+2*h,2)}, {s(sSM,2)}')
                    A(f'  v_mov_b32 {v(QB+2*i+h)}, {v(QN+2*i+h)}')
            c, rest = dequant(T, slot(o + k), (v(KZ+4*i,2), v(KZ+4*i+2,2)), (v(KS+4*i,2), v(KS+4*i+2,2)), '', '')
            for x in c: A(x)
            if late:
                for x in lds_: A(x)
            if k == PSMALL:
                A(f'  s_cmp_eq_u32 {s(sHN)}, {s(sHC)}')
                A(f'  s_cbranch_scc1 L_k_sameq{u}')
                for x in q_loads(): A(x)
                A(f'  s_mov_b32 {s(sHC)}, {s(sHN)}')
                A(f'L_k_sameq{u}:')
                for x in kscale_loads(): A(x)
            rest += [f'  v_cvt_pk_bf16_f32 {v(KA+2*i)}, {v(T)}, {v(T+1)}',
                     f'  v_cvt_pk_bf16_f32 {v(KA+2*i+1)}, {v(T+2)}, {v(T+3)}']
            if i == 1 and ss > 0:
                r = kreduce(ss - 1)
                rest = r[:2] + rest[:2] + r[2:4] + rest[2:4] + r[4:5] + rest[4:]
                pend = r[5:]
            elif i == 2 and ss > 0:
                rest = merge(rest, pend, 1)
            for x in rest: A(x)
        A(f'  s_mov_b32 {s(sCUR)}, {s(sNXT)}')
        A(f'  v_mov_b32 {v(AL)}, {s(sF)}')
        A(mf16)
        A(f'  ds_write_b128 {v(VL1)}, {v(LG,4)}')
        A(f'  v_add_u32 {v(VL1)}, {384 * W}, {v(VL1)}')
        for x in kreduce(10): A(x)
        A(f'  ds_write_b64 {v(VL2)}, {v(LG+4,2)} offset:256')
        A(f'  ds_write_b32 {v(VPR)}, {v(AL)}')
        A(f'  v_add_u32 {v(VL2)}, {384 * W}, {v(VL2)}')
    A('L_k:')
    for u in range(U): k_unit(u)
    A(f'  s_cmp_lt_u32 {s(sF)}, {NF}')
    A('  s_cbranch_scc1 L_k')

    def flush():
        A(f'  v_mov_b32 {v(X1)}, {v(LS)}')
        A(f'  v_permlane32_swap_b32 {v(LS)}, {v(X1)}')
        A(f'  v_add_f32 {v(LS)}, {v(LS)}, {v(X1)}')
        A(f'  v_mov_b32 {v(X1)}, {v(LS)}')
        A(f'  v_permlane16_swap_b32 {v(LS)}, {v(X1)}')
        A(f'  v_add_f32 {v(LS)}, {v(LS)}, {v(X1)}')
        A(f'  ds_write_b64 {v(VST)}, {v(NB,2)}')
        for i in range(3):
            A(f'  ds_write_b128 {v(VFL)}, {v(ACC+4*i,4)} offset:{1024*i}')
        A(f'  s_and_b32 {s(sT)}, {s(sQC)}, 15')
        A(f'  s_cmp_ge_u32 {s(sT)}, 12')
        A(f'  s_cselect_b32 {s(sT)}, 2, 0')
        A(f'  s_and_b32 {s(sT+1)}, {s(sCC)}, 1')
        A(f'  s_bitcmp1_b32 {s(sDEC)}, 6')
        A(f'  s_cselect_b32 {s(sT+1)}, {s(sRO)}, {s(sT+1)}')
        A(f'  s_add_u32 {s(sT)}, {s(sT)}, {s(sT+1)}')
        A(f'  s_lshr_b32 {s(sT+1)}, {s(sQC)}, 4')
        A(f'  s_lshl2_add_u32 {s(sT)}, {s(sT+1)}, {s(sT)}')
        for j in range(4 // W):
            A(f'  s_add_u32 {s(sT+1)}, s3, {W * j}')
            A(f'  s_cmp_eq_u32 {s(sSEG)}, {s(sT+1)}')
            A(f'  s_cselect_b32 {s(sREC+j)}, {s(sT)}, {s(sREC+j)}')
        A(f'  s_add_u32 {s(sSEG)}, {s(sSEG)}, 1')
        A('  s_waitcnt lgkmcnt(0)')
    def import_gate(tag):
        A(f'  s_cmp_lt_u32 {s(sF)}, {s(sGATE)}')
        A(f'  s_cbranch_scc1 L_{tag}_ok')
        A(f'L_{tag}_spin:')
        lds_word(sGATE, F_IMP)
        A(f'  s_cmp_lt_u32 {s(sF)}, {s(sGATE)}')
        A(f'  s_cbranch_scc0 L_{tag}_spin')
        A(f'L_{tag}_ok:')

    A(f'  v_subrev_u32 {v(VL1)}, {IMG}, {v(VL1)}')
    A(f'  v_subrev_u32 {v(VL2)}, {IMG}, {v(VL2)}')
    A(f'  s_mov_b32 {s(sF)}, s3')
    A(f'  s_mov_b32 {s(sHC)}, {s(sHN)}')
    A(f'  s_mov_b32 {s(sGATE)}, 0')
    A(f'  s_load_dwordx2 {s(sREC,2)}, s[0:1], 56')
    A('  s_waitcnt lgkmcnt(0)')
    A(f'  s_mov_b32 {s(SQ)}, {s(sREC)}')
    A(f'  s_and_b32 {s(SQ+1)}, {s(sREC+1)}, 0xffff')
    import_gate('v0')
    A(f'  ds_read_b128 {v(LG,4)}, {v(VL1)}')
    A(f'  ds_read_b64 {v(LG+4,2)}, {v(VL2)} offset:256')
    def v_unit(u):
        o = NST * u
        A(f'L_v{u}:')
        if u == 0: stamp()
        A(f'  s_mov_b32 {s(sQC)}, {s(sQ3)}')
        A(f'  s_mov_b32 {s(sCC)}, {s(sC)}')
        A(f'  s_add_u32 {s(sF)}, {s(sF)}, {W}')
        import_gate(f'v1{u}')
        map_unit(sF, 1)
        if tail:
            A(f'  s_cmp_ge_u32 {s(sF)}, {NF - tail}')
            A('  s_cselect_b64 vcc, -1, 0')
        A(f'  s_cmp_lt_u32 {s(sF)}, {NF}')
        A(f'  s_cselect_b32 {s(sNXT)}, {s(sNXT)}, {TOTAL}')
        prep = ['  s_waitcnt lgkmcnt(0)']
        if cps:
            A(f'  s_add_u32 {s(sT)}, {s(sF)}, {NF - W}')
            A(f'  v_mov_b32 {v(AL)}, {s(sT)}')
            A(f'  ds_read_b32 {v(VBS)}, {v(VBA)}')
            A(f'  ds_write_b32 {v(VPR)}, {v(AL)}')
            prep.append(f'  v_cmp_lt_u32 vcc, {v(AL)}, {v(VBS)}')
        for k in range(11):
            prep.append(f'  v_lshlrev_b32 {v(E+k)}, 16, {v(LG+k//2)}' if k % 2 == 0 else f'  v_and_b32 {v(E+k)}, {s(sMSK)}, {v(LG+k//2)}')
        prep += [f'  v_add_u32 {v(VL1)}, {384 * W}, {v(VL1)}',
                 f'  v_add_u32 {v(VL2)}, {384 * W}, {v(VL2)}',
                 f'  v_max3_f32 {v(X0)}, {v(E)}, {v(E+1)}, {v(E+2)}',
                 f'  ds_read_b128 {v(LG,4)}, {v(VL1)}',
                 f'  ds_read_b64 {v(LG+4,2)}, {v(VL2)} offset:256',
                 f'  v_max3_f32 {v(X1)}, {v(E+3)}, {v(E+4)}, {v(E+5)}',
                 f'  v_max3_f32 {v(X0)}, {v(X0)}, {v(E+6)}, {v(E+7)}',
                 f'  v_max3_f32 {v(X1)}, {v(X1)}, {v(E+8)}, {v(E+9)}',
                 f'  v_max3_f32 {v(X0)}, {v(X0)}, {v(E+10)}, {v(M)}',
                 f'  v_max_f32 {v(X0)}, {v(X0)}, {v(X1)}',
                 f'  v_mov_b32 {v(X1)}, {v(X0)}',
                 f'  v_permlane32_swap_b32 {v(X0)}, {v(X1)}',
                 f'  v_max_f32 {v(X0)}, {v(X0)}, {v(X1)}',
                 f'  v_mov_b32 {v(X1)}, {v(X0)}',
                 f'  v_permlane16_swap_b32 {v(X0)}, {v(X1)}',
                 f'  v_max_f32 {v(M)}, {v(X0)}, {v(X1)}',
                 f'  v_mul_f32 {v(X0)}, {s(sL2E)}, {v(M)}',
                 f'  v_add_f32 {v(AL)}, {v(X0)}, {v(NB)}',
                 f'  v_sub_f32 {v(NB)}, 0, {v(X0)}',
                 f'  v_exp_f32 {v(AL)}, -{v(AL)}',
                 f'  ds_bpermute_b32 {v(ALQ)}, {v(VBP)}, {v(AL)}']
        for k in range(11):
            prep += [f'  v_fma_f32 {v(E+k)}, {v(E+k)}, {s(sL2E)}, {v(NB)}', f'  v_exp_f32 {v(E+k)}, {v(E+k)}']
        prep += [f'  v_add_f32 {v(X0)}, {v(E)}, {v(E+1)}', f'  v_add_f32 {v(X1)}, {v(E+2)}, {v(E+3)}']
        for k in range(4, 11):
            x = X0 if k % 2 == 0 else X1
            prep.append(f'  v_add_f32 {v(x)}, {v(x)}, {v(E+k)}')
        prep += [f'  v_add_f32 {v(X0)}, {v(X0)}, {v(X1)}',
                 f'  v_fma_f32 {v(LS)}, {v(LS)}, {v(AL)}, {v(X0)}']
        for k in range(6):
            prep.append(f'  v_cvt_pk_bf16_f32 {v(PP+k)}, {v(E+2*k)}, {v(E+2*k+1) if k < 5 else 0}')
        for j in range(4):
            for k in range(4):
                prep.append(f'  v_cndmask_b32 {v(AJ+4*j+k)}, 0, {v(PP+k)}, {s(sMJ+2*j,2)}')
        prep.append('  s_waitcnt lgkmcnt(0)')
        for k in range(12):
            prep.append(f'  v_mul_f32 {v(ACC+k)}, {v(ALQ)}, {v(ACC+k)}')
        prep2 = [f'  v_cndmask_b32 {v(AK+2*j+k)}, 0, {v(PP+4+k)}, {s(sMJ+2*j,2)}' for j in range(4) for k in range(2)]
        per = 5
        for k in range(NST):
            ss, i = divmod(k, 3)
            if k == SW: offsets(DCON)
            lds_ = [main_load(o + k + D, SV, sCUR if k < SW else sNXT)]
            wait_step(k, 2, f'vw{u}_{k}')
            if not late:
                for x in lds_: A(x)
            if k == 0:
                A(f'  v_mul_f32 {v(ZC)}, {s(sSM)}, {v(ZN)}')
                A(f'  v_mul_f32 {v(SC)}, {hex((127 + 22) << 23)}, {v(SN)}')
            if i == 0:
                A(f'  v_mov_b32_dpp {v(ZS)}, {v(ZC)} row_newbcast:{ss} row_mask:0xf bank_mask:0xf')
                A(f'  v_mov_b32_dpp {v(ZS+1)}, {v(SC)} row_newbcast:{ss} row_mask:0xf bank_mask:0xf')
            X = TV + 4 * i if ss % 2 == 0 else T
            c, rest = dequant(X, slot(o + k), (v(ZS,2), v(ZS,2)), (v(ZS,2), v(ZS,2)), 'op_sel_hi:[1,1,0] ', 'op_sel:[0,1]')
            for x in c: A(x)
            if late:
                for x in lds_: A(x)
            if k == PSMALL:
                for x in vscale_loads(): A(x)
            if ss % 2 == 1:
                rest += [f'  v_cvt_pk_bf16_f32 {v(BV+16*i+4*j+((ss>>1)&3))}, {v(TV+4*i+j)}, {v(T+j)}' for j in range(4)]
            if ss == 10:
                rest += [f'  v_cvt_pk_bf16_f32 {v(BV+16*i+4*j+1)}, {v(TV+4*i+j)}, 0' for j in range(4)]
            side, prep = prep[:per], prep[per:]
            if k == 20:
                side += prep; prep = []
            if k == 23: prep = prep2
            for x in merge(rest, side, 1): A(x)
            if ss == 7:
                for j in range(4):
                    A(f'  v_mfma_f32_16x16x32_bf16 {v(ACC+4*i,4)}, {v(AJ+4*j,4)}, {v(BV+16*i+4*j,4)}, {v(ACC+4*i,4)}')
            if ss == 10:
                assert not prep
                for j in range(4):
                    A(f'  v_mfma_f32_16x16x16_bf16 {v(ACC+4*i,4)}, {v(AK+2*j,2)}, {v(BV+16*i+4*j,2)}, {v(ACC+4*i,4)}')
        A(f'  s_mov_b32 {s(sCUR)}, {s(sNXT)}')
        if u == U - 1:
            A(f'  s_cmp_ge_u32 {s(sF)}, {NF}')
            A('  s_cbranch_scc1 L_v_done')
        A(f'  s_cmp_eq_u32 {s(sHN)}, {s(sHC)}')
        A(f'  s_cbranch_scc1 L_v{(u + 1) % U}')
        A(f'  s_mov_b32 {s(sHC)}, {s(sHN)}')
        flush()
        A(f'  v_add_u32 {v(VFL)}, {SEG}, {v(VFL)}')
        A(f'  v_add_u32 {v(VST)}, {SEG}, {v(VST)}')
        reset_state()
        if u == U - 1: A('  s_branch L_v0')
    for u in range(U): v_unit(u)
    A('L_v_done:')
    stamp()
    flush()
    A('  s_waitcnt vmcnt(0)')

    A('  s_barrier')
    ST = RING; AC = (base + 3) // 4 * 4
    nv = max(nv, AC + 48)
    A(f'  v_lshrrev_b32 {v(AL)}, 1, {v(VBP)}')
    A(f'  v_lshlrev_b32 {v(ALQ)}, 4, v0')
    for j in range(4 // W):
        A(f'  s_mul_i32 {s(sT)}, s3, {SEG}')
        A(f'  s_add_u32 {s(sT)}, {s(sT)}, {LDS_ACC + W * j * SEG}')
        A(f'  v_add_u32 {v(X0)}, {s(sT)}, {v(AL)}')
        for w in range(W):
            A(f'  ds_read_b64 {v(ST+2*(W*j+w),2)}, {v(X0)} offset:{W*3072 + 32*w}')
        A(f'  v_add_u32 {v(X0)}, {s(sT)}, {v(ALQ)}')
        for w in range(W):
            for i in range(3):
                A(f'  ds_read_b128 {v(AC+12*(W*j+w)+4*i,4)}, {v(X0)} offset:{3072*w + 1024*i}')
    A(f'  v_mov_b32 {v(X0)}, {F_TAG}')
    A(f'  ds_read_b32 {v(M)}, {v(X0)}')
    A(f'  s_mov_b32 {s(sSEG)}, -1')
    A(f'  s_add_u32 {s(sLIM)}, {s(sRO)}, 1')
    A('  s_waitcnt lgkmcnt(0)')
    GR = RING + 8; OWN = GR + 40
    gi = lambda b, x: b + 4 * (x // 3) + x % 3
    for j in range(4 // W):
        G = GR + 20 * j
        combine(A, W, ST + 2 * W * j, AC + 12 * W * j, 3, gi(G, 12), gi(G, 13), lambda x: gi(G, x))
        A(f'  s_bfe_u32 {s(sT)}, {s(sREC+j)}, 0x20001')
        A(f'  s_cmp_eq_u32 {s(sT)}, {s(sLIM)}')
        A(f'  s_cbranch_scc1 L_own{j}')
        for g_ in range(5): A(f'  v_mov_b32 {v(G+4*g_+3)}, {v(M)}')
        A(f'  s_mul_i32 {s(sT)}, {s(sREC+j)}, {REC}')
        A(f'  s_add_u32 {s(sT)}, {s(sT)}, {WSOFF}')
        A(f'  s_add_u32 {s(sT+1)}, {s(sT)}, 4096')
        for g_ in range(5):
            A(f'  buffer_store_dwordx4 {v(G+4*g_,4)}, {v(ALQ)}, {s(SW_,4)}, {s(sT + g_ // 4)} offen offset:{1024 * (g_ % 4)} sc1')
        A(f'  s_branch L_pub{j}')
        A(f'L_own{j}:')
        for x in range(14): A(f'  v_mov_b32 {v(gi(OWN, x))}, {v(gi(G, x))}')
        A(f'  s_mov_b32 {s(sSEG)}, {s(sREC+j)}')
        A(f'L_pub{j}:')
    stamp()
    A(f'  s_cmp_eq_u32 {s(sSEG)}, -1')
    A('  s_cbranch_scc1 L_fin')
    FR = AC
    nv = max(nv, FR + 60)
    sR = 84
    A(f'  s_xor_b32 {s(sR)}, {s(sSEG)}, 1')
    A(f'  s_andn2_b32 {s(sR+2)}, {s(sSEG)}, 1')
    A(f'  s_xor_b32 {s(sR+2)}, {s(sR+2)}, 2')
    A(f'  s_add_u32 {s(sR+4)}, {s(sR+2)}, 1')
    for r in range(3):
        A(f'  s_mul_i32 {s(sR+2*r)}, {s(sR+2*r)}, {REC}')
        A(f'  s_add_u32 {s(sR+2*r)}, {s(sR+2*r)}, {WSOFF}')
        A(f'  s_add_u32 {s(sR+2*r+1)}, {s(sR+2*r)}, 4096')
    A(f'  v_mov_b32 {v(X1)}, {s(sR+1)}')
    A(f'  v_writelane_b32 {v(X1)}, {s(sR+3)}, 1')
    A(f'  v_writelane_b32 {v(X1)}, {s(sR+5)}, 2')
    if safe: A(f'  s_mov_b32 {s(sF)}, 0')
    A('L_gather:')
    for r in range(3):
        for g_ in range(5):
            A(f'  buffer_load_dwordx4 {v(FR+20*r+4*g_,4)}, {v(ALQ)}, {s(SW_,4)}, {s(sR + 2*r + g_ // 4)} offen offset:{1024 * (g_ % 4)} sc1')
    A('  s_waitcnt vmcnt(0)')
    tags = [FR + 4 * k + 3 for k in range(15)]
    A(f'  v_xor_b32 {v(X0)}, {v(M)}, {v(tags[0])}')
    for k in range(1, 15):
        A(f'  v_xor_b32 {v(tags[k])}, {v(M)}, {v(tags[k])}')
    for k in range(1, 15, 2):
        A(f'  v_or3_b32 {v(X0)}, {v(X0)}, {v(tags[k])}, {v(tags[k+1])}')
    A(f'  v_cmp_ne_u32 {s(sT,2)}, 0, {v(X0)}')
    A(f'  s_cmp_eq_u64 {s(sT,2)}, 0')
    A('  s_cbranch_scc1 L_gathered')
    A('  s_mov_b64 exec, 7')
    A('L_poll:')
    if safe:
        A(f'  s_add_u32 {s(sF)}, {s(sF)}, 1')
        A(f'  s_cmp_gt_u32 {s(sF)}, 20000')
        A('  s_cbranch_scc1 L_end')
    A(f'  buffer_load_dword {v(X0)}, {v(X1)}, {s(SW_,4)}, 0 offen offset:1020 sc1')
    A('  s_waitcnt vmcnt(0)')
    A(f'  v_cmp_ne_u32 {s(sT,2)}, {v(M)}, {v(X0)}')
    A(f'  s_cmp_lg_u64 {s(sT,2)}, 0')
    A('  s_cbranch_scc1 L_poll')
    A('  s_mov_b64 exec, -1')
    A('  s_branch L_gather')
    A('L_gathered:')
    stamp()
    B4 = [OWN, FR, FR + 20, FR + 40]
    A(f'  v_min_f32 {v(X0)}, {v(gi(B4[0],12))}, {v(gi(B4[1],12))}')
    A(f'  v_min3_f32 {v(X0)}, {v(X0)}, {v(gi(B4[2],12))}, {v(gi(B4[3],12))}')
    for b in B4: A(f'  v_sub_f32 {v(gi(b,12))}, {v(X0)}, {v(gi(b,12))}')
    for b in B4: A(f'  v_exp_f32 {v(gi(b,12))}, {v(gi(b,12))}')
    for x in [13] + list(range(12)):
        for b in B4: A(f'  v_mul_f32 {v(gi(b,x))}, {v(gi(b,12))}, {v(gi(b,x))}')
        A(f'  v_add_f32 {v(gi(B4[0],x))}, {v(gi(B4[0],x))}, {v(gi(B4[1],x))}')
        A(f'  v_add_f32 {v(gi(B4[2],x))}, {v(gi(B4[2],x))}, {v(gi(B4[3],x))}')
        A(f'  v_add_f32 {v(gi(B4[0],x))}, {v(gi(B4[0],x))}, {v(gi(B4[2],x))}')
        if x == 13: A(f'  v_rcp_f32 {v(X1)}, {v(gi(OWN,13))}')
    for x in range(12): A(f'  v_mul_f32 {v(gi(OWN,x))}, {v(X1)}, {v(gi(OWN,x))}')
    A(f'  v_mul_u32_u24 {v(X0)}, 24, {v(VBP)}')
    A(f'  v_and_b32 {v(X1)}, 15, v0')
    A(f'  v_lshl_add_u32 {v(X0)}, {v(X1)}, 3, {v(X0)}')
    A(f'  s_lshr_b32 {s(sT)}, {s(sSEG)}, 2')
    A(f'  s_mul_i32 {s(sT)}, {s(sT)}, 1536')
    for i in range(3):
        A(f'  v_cvt_pk_bf16_f32 {v(ACC+2*i)}, {v(gi(OWN,4*i))}, {v(gi(OWN,4*i+1))}')
        A(f'  v_cvt_pk_bf16_f32 {v(ACC+2*i+1)}, {v(gi(OWN,4*i+2))}, {v(gi(OWN,4*i+3))}')
        A(f'  buffer_store_dwordx2 {v(ACC+2*i,2)}, {v(X0)}, {s(SQ,4)}, {s(sT)} offen offset:{128*i} {stf}')
    A('L_fin:')
    if tl:
        A(f'  s_mul_i32 {s(sT)}, s2, {W+1}')
        A(f'  s_add_u32 {s(sT)}, {s(sT)}, s3')
        A(f'  s_lshl_b32 {s(sT)}, {s(sT)}, 8')
        A(f'  s_add_u32 {s(sT)}, {s(sT)}, 0x10000')
        A(f'  v_lshl_add_u32 {v(E)}, v0, 2, {s(sT)}')
        A(f'  global_store_dword {v(E)}, {v(TL)}, {s(sWS,2)}')
    if stamps:
        A('  s_waitcnt vmcnt(0)')
        A(f'  s_memrealtime {s(sU,2)}')
        A(f'  s_getreg_b32 {s(sU+2)}, hwreg(HW_REG_XCC_ID)')
        A(f'  s_mul_i32 {s(sT)}, s2, {W+1}')
        A(f'  s_add_u32 {s(sT)}, {s(sT)}, s3')
        A(f'  s_lshl_b32 {s(sT)}, {s(sT)}, 4')
        A('  s_waitcnt lgkmcnt(0)')
        A(f'  v_mov_b32 {v(RING)}, s6')
        A(f'  v_mov_b32 {v(RING+1)}, {s(sU)}')
        A(f'  v_mov_b32 {v(RING+2)}, {s(sU+2)}')
        A(f'  v_mov_b32 {v(RING+3)}, {s(sDEC)}')
        A(f'  v_mov_b32 {v(X0)}, {s(sT)}')
        A('  s_mov_b64 exec, 1')
        A(f'  global_store_dwordx4 {v(X0)}, {v(RING,4)}, {s(sWS,2)}')
    A('L_end:')
    A('  s_endpgm')

    A('L_helper:')
    if tl:
        A(f'  s_mov_b32 {s(sTL)}, 0')
        A(f'  v_mov_b32 {v(TL)}, 0')
    hA, hZ, hO, h1, h2, h3, hD = 1, 2, 3, 4, 5, 6, 8
    assert hD + 96 <= TL
    A(f'  v_lshlrev_b32 {v(hA)}, 2, v0')
    A(f'  v_add_u32 {v(hA)}, {LDS_F}, {v(hA)}')
    A(f'  v_mov_b32 {v(hZ)}, 0')
    A('  s_mov_b64 exec, 0xff')
    A(f'  ds_write_b32 {v(hA)}, {v(hZ)}')
    A('  s_mov_b64 exec, -1')
    make_srds()
    A('  s_barrier')
    sOF, sN0, sV0, sJ, sSF, sA, sB, sX, sFA, sFS, sME, sPA = 44, 45, 48, 50, 52, 54, 56, 58, 62, 63, 60, 61
    sQD, sOWN, sUNT, sT0, sNON = 64, 65, 66, 72, 74
    hP, hQ = hD + 96, hD + 97
    assert hQ < TL
    A(f'  s_memrealtime {s(sT0,2)}')
    A(f'  s_mov_b32 {s(sUNT)}, 0')
    A(f'  s_lshr_b32 {s(sT)}, s2, 4')
    A(f'  s_and_b32 {s(sT)}, {s(sT)}, 8')
    A(f'  s_and_b32 {s(sT+1)}, s2, 7')
    A(f'  s_add_u32 {s(sT)}, {s(sT)}, {s(sT+1)}')
    A(f'  s_lshl_b32 {s(sT)}, {s(sT)}, 3')
    A(f'  v_mov_b32 {v(hP)}, {s(sT)}')
    A(f'  v_and_b32 {v(hQ)}, 15, v0')
    A(f'  v_lshlrev_b32 {v(hQ)}, 3, {v(hQ)}')
    A('  s_bitcmp1_b32 s2, 3')
    A(f'  s_cselect_b32 {s(SI)}, {s(SV)}, {s(SK)}')
    A(f'  s_cselect_b32 {s(SI+1)}, {s(SV+1)}, {s(SK+1)}')
    A(f'  s_cselect_b32 {s(sSF)}, 24, 0')
    A(f'  s_lshl_b32 {s(sOF)}, {s(sPB)}, 16')
    A(f'  s_lshl_b32 {s(sT)}, {s(sRO)}, 16')
    A(f'  s_add_u32 {s(sOF)}, {s(sOF)}, {s(sT)}')
    A(f'  s_add_u32 {s(sOF)}, {s(sOF)}, 0x1c0000')
    A(f'  s_bfe_u32 {s(sT)}, s2, 0x40004')
    A(f'  s_mul_i32 {s(sT)}, {s(sT)}, 0x4a80')
    A(f'  s_and_b32 {s(sT)}, {s(sT)}, 0x5f80')
    A(f'  s_add_u32 {s(sOF)}, {s(sOF)}, {s(sT)}')
    A(f'  s_mov_b32 {s(sV0)}, 0')
    A(f'  s_mov_b32 {s(sV0+1)}, 0x1000000')
    A(f'  s_mov_b32 {s(sJ)}, 0')
    A('L_h_page:')
    A(f'  s_add_u32 {s(sT)}, {s(sOF)}, 0x8000')
    A(f'  s_buffer_load_dword {s(sX)}, {s(SI,4)}, {s(sT)}')
    A(f'  s_mov_b32 {s(sN0)}, -1')
    A(f'  s_mov_b32 {s(sN0+1)}, -1')
    A('  s_waitcnt lgkmcnt(0)')
    for k in range(NS):
        for c in range(2):
            o = (((k & 1) << 14) | ((k >> 1 & 1) << 12) | ((k * 0x380) & 0xfff)) ^ (c << 13)
            A(f'  s_xor_b32 {s(sT)}, {s(sOF)}, {o}')
            A(f'  s_memtime {s(sA,2)}')
            A('  s_waitcnt lgkmcnt(0)')
            A(f'  s_buffer_load_dword {s(sX)}, {s(SI,4)}, {s(sT)}')
            A('  s_waitcnt lgkmcnt(0)')
            A(f'  s_memtime {s(sB,2)}')
            A('  s_waitcnt lgkmcnt(0)')
            A(f'  s_sub_u32 {s(sB)}, {s(sB)}, {s(sA)}')
            A(f'  s_min_u32 {s(sN0+c)}, {s(sN0+c)}, {s(sB)}')
    A(f'  s_cmp_lt_u32 {s(sN0+1)}, {s(sN0)}')
    A(f'  s_cselect_b32 {s(sA)}, 1, 0')
    A(f'  s_xor_b32 {s(sA)}, {s(sA)}, {s(sRO)}')
    A(f'  s_mov_b32 {s(sA+1)}, 0')
    A(f'  s_lshl_b64 {s(sA,2)}, {s(sA,2)}, {s(sSF)}')
    A(f'  s_or_b64 {s(sV0,2)}, {s(sV0,2)}, {s(sA,2)}')
    A(f'  s_add_u32 {s(sSF)}, {s(sSF)}, 8')
    A(f'  s_add_u32 {s(sOF)}, {s(sOF)}, 0x10000000')
    A(f'  s_add_u32 {s(sJ)}, {s(sJ)}, 1')
    A(f'  s_cmp_lt_u32 {s(sJ)}, 3')
    A('  s_cbranch_scc1 L_h_page')
    stamp()
    A(f'  s_and_b32 {s(sT)}, s2, 3')
    A(f'  s_lshl_b32 {s(sFA)}, {s(sT)}, 6')
    A('  s_cmp_lg_u32 s2, 0')
    A('  s_cbranch_scc1 L_h_nonce')
    A(f'  s_lshl_b64 {s(sA,2)}, {s(sT0,2)}, 2')
    A(f'  s_atomic_add_x2 {s(sA,2)}, {s(sDBG,2)}, 8 glc')
    A('  s_waitcnt lgkmcnt(0)')
    A('L_h_nonce:')
    if not novote: A(f'  s_atomic_add_x2 {s(sV0,2)}, {s(sDBG,2)}, {s(sFA)}')
    A('  s_waitcnt lgkmcnt(0)')
    def wait_progress(tag, lim, slp):
        A(f'  v_mov_b32 {v(hA)}, {F_PRG}')
        A(f'L_h_prog{tag}:')
        A(f'  s_sleep {slp}')
        A(f'  ds_read_b128 {v(hD,4)}, {v(hA)}')
        A('  s_waitcnt lgkmcnt(0)')
        A(f'  v_min_u32 {v(hD)}, {v(hD)}, {v(hD+1)}')
        if W == 4: A(f'  v_min3_u32 {v(hD)}, {v(hD)}, {v(hD+2)}, {v(hD+3)}')
        A(f'  v_readfirstlane_b32 {s(sA)}, {v(hD)}')
        A(f'  s_cmp_lt_u32 {s(sA)}, {lim}')
        A(f'  s_cbranch_scc1 L_h_prog{tag}')
    events = sorted([(c, 0, j) for j, c in enumerate(cps)] + [(c + dly, 1, j) for j, c in enumerate(cps)])
    def checkpoints(upto):
        while events and events[0][0] <= upto:
            c, act, j = events.pop(0)
            wait_progress(f'c{j}_{act}', c, 8)
            if not act:
                A(f'  s_memrealtime {s(sA,2)}')
                A('  s_waitcnt lgkmcnt(0)')
                A(f'  s_sub_u32 {s(sOWN)}, {s(sA)}, {s(sT0)}')
                A(f'  s_and_b32 {s(sT)}, s2, 0x78')
                A(f'  s_cbranch_scc1 L_h_np{j}')
                A(f'  v_mov_b32 {v(hD)}, {s(sA)}')
                A(f'  v_mov_b32 {v(hD+1)}, {s(sA+1)}')
                A(f'  s_mov_b32 {s(sT)}, {WSC + 256 * j}')
                A('  s_mov_b64 exec, 1')
                A(f'  buffer_store_dwordx2 {v(hD,2)}, {v(hP)}, {s(SW_,4)}, {s(sT)} offen sc1')
                A('  s_mov_b64 exec, -1')
                A(f'L_h_np{j}:')
                continue
            A(f'  s_mov_b32 {s(sT)}, {WSC + 256 * j}')
            A(f'  buffer_load_dwordx2 {v(hD,2)}, {v(hQ)}, {s(SW_,4)}, {s(sT)} offen')
            A(f'  v_mov_b32 {v(hD+2)}, {s(sT0+1)}')
            A('  s_waitcnt vmcnt(0)')
            A(f'  v_subrev_co_u32 {v(hD)}, vcc, {s(sT0)}, {v(hD)}')
            A(f'  v_subb_co_u32 {v(hD+1)}, vcc, {v(hD+1)}, {v(hD+2)}, vcc')
            A(f'  v_lshrrev_b32 {v(hD+2)}, 24, {v(hD)}')
            A(f'  v_or_b32 {v(hD+1)}, {v(hD+1)}, {v(hD+2)}')
            A(f'  v_cmp_eq_u32 vcc, 0, {v(hD+1)}')
            A(f'  v_cndmask_b32 {v(hD)}, 0, {v(hD)}, vcc')
            A(f'  s_and_b32 {s(sB)}, vcc_lo, 0xffff')
            A(f'  s_bcnt1_i32_b32 {s(sB)}, {s(sB)}')
            for r in (8, 4, 2, 1):
                A(f'  v_add_u32_dpp {v(hD)}, {v(hD)}, {v(hD)} row_ror:{r} row_mask:0xf bank_mask:0xf')
            A(f'  v_readfirstlane_b32 {s(sA)}, {v(hD)}')
            A(f'  s_sub_u32 {s(sT)}, {s(sOWN)}, {dead}')
            A(f'  s_mul_i32 {s(sT)}, {s(sT)}, {s(sB)}')
            A(f'  s_sub_i32 {s(sA)}, {s(sT)}, {s(sA)}')
            A(f'  s_max_i32 {s(sA)}, {s(sA)}, 0')
            A(f'  s_max_u32 {s(sB)}, {s(sB)}, 1')
            A(f'  s_mul_i32 {s(sB)}, {s(sB)}, {gain}')
            A(f'  v_cvt_f32_u32 {v(hD)}, {s(sB)}')
            A(f'  v_cvt_f32_u32 {v(hD+1)}, {s(sA)}')
            A(f'  v_rcp_f32 {v(hD)}, {v(hD)}')
            A(f'  v_fma_f32 {v(hD)}, {v(hD)}, {v(hD+1)}, 0.5')
            A(f'  v_cvt_u32_f32 {v(hD)}, {v(hD)}')
            A(f'  v_min_u32 {v(hD)}, 64, {v(hD)}')
            A(f'  v_readfirstlane_b32 {s(sA)}, {v(hD)}')
            A(f'  s_mul_i32 {s(sA)}, {s(sA)}, {W}')
            A(f'  s_sub_i32 {s(sT)}, {s(sUNT)}, {c - dly}')
            A(f'  s_max_i32 {s(sT)}, {s(sT)}, 0')
            A(f'  s_min_i32 {s(sT)}, {s(sT)}, {dly + W}')
            A(f'  s_sub_i32 {s(sA)}, {s(sA)}, {s(sT)}')
            A(f'  s_cmp_gt_i32 {s(sA)}, 0')
            A(f'  s_cselect_b32 {s(sT)}, {c + W}, 0')
            A(f'  s_cselect_b32 {s(sA)}, {s(sA)}, 0')
            A(f'  s_add_u32 {s(sUNT)}, {s(sT)}, {s(sA)}')
            A(f'  v_mov_b32 {v(hD)}, {s(sUNT)}')
            A(f'  v_mov_b32 {v(hA)}, {F_BST}')
            A(f'  ds_write_b32 {v(hA)}, {v(hD)}')
    wait_progress('v', PW, 8)
    A(f'  s_load_dwordx2 {s(sV0,2)}, {s(sDBG,2)}, {s(sFA)}')
    if safe: A('  s_mov_b32 s59, 0')
    A('L_h_votes:')
    A('  s_waitcnt lgkmcnt(0)')
    A(f'  s_lshr_b32 {s(sT)}, {s(sV0+1)}, 24')
    A(f'  s_cmp_eq_u32 {s(sT)}, {0 if novote else 64}')
    A('  s_cbranch_scc1 L_h_votes_done')
    if safe:
        A('  s_add_u32 s59, s59, 1')
        A('  s_cmp_gt_u32 s59, 2000')
        A('  s_cbranch_scc1 L_h_votes_done')
    A('  s_sleep 64')
    A(f'  s_mov_b64 {s(sV0,2)}, 0')
    A(f'  s_atomic_or_x2 {s(sV0,2)}, {s(sDBG,2)}, {s(sFA)} glc')
    A('  s_branch L_h_votes')
    A('L_h_votes_done:')
    A(f'  s_mov_b32 {s(sDEC)}, 0x80')
    for j in range(6):
        A(f'  s_bfe_u32 {s(sA)}, {s(sV0 + j // 4)}, {hex(0x80000 | (8 * (j % 4)))}')
        A(f'  s_cmp_gt_u32 {s(sA)}, 16')
        A(f'  s_cselect_b32 {s(sB)}, {1 << j}, 0')
        A(f'  s_or_b32 {s(sDEC)}, {s(sDEC)}, {s(sB)}')
        A(f'  s_sub_u32 {s(sA)}, {s(sA)}, {THR + 1}')
        A(f'  s_cmp_lt_u32 {s(sA)}, {32 - 2 * THR - 1}')
        A(f'  s_cselect_b32 {s(sB)}, 64, 0')
        A(f'  s_or_b32 {s(sDEC)}, {s(sDEC)}, {s(sB)}')
    if force >= 0:
        A(f'  s_mov_b32 {s(sDEC)}, {0x80 | force}')
    A(f'  s_mul_i32 {s(sA)}, {s(sRO)}, 63')
    A(f'  s_xor_b32 {s(sDEC)}, {s(sDEC)}, {s(sA)}')
    A(f'  v_mov_b32 {v(hA)}, {F_DEC}')
    A(f'  v_mov_b32 {v(hD)}, {s(sDEC)}')
    A(f'  ds_write_b32 {v(hA)}, {v(hD)}')
    stamp()
    A(f'  v_lshlrev_b32 {v(hO)}, 4, v0')
    if pf:
        for srd, nb in ((SKS, 24576), (SKZ, 24576), (SVS, 8192), (SVZ, 8192)):
            A(f'  s_mul_i32 {s(sA)}, s2, {nb}')
            for k in range(nb // 1024):
                if k % 4 == 0 and k: A(f'  s_add_u32 {s(sA)}, {s(sA)}, 4096')
                A(f'  s_waitcnt vmcnt({pf - 1})')
                A(f'  buffer_load_dwordx4 {v(hD,4)}, {v(hO)}, {s(srd,4)}, {s(sA)} offen offset:{(k % 4) * 1024}')
        A('  s_waitcnt vmcnt(0)')
    stamp()
    A(f'  s_load_dwordx2 {s(sNON,2)}, {s(sDBG,2)}, 8')
    A('L_h_getnonce:')
    A('  s_waitcnt lgkmcnt(0)')
    A(f'  s_cmp_lg_u64 {s(sNON,2)}, 0')
    A('  s_cbranch_scc1 L_h_gotnonce')
    A('  s_sleep 32')
    A(f'  s_atomic_or_x2 {s(sNON,2)}, {s(sDBG,2)}, 8 glc')
    A('  s_branch L_h_getnonce')
    A('L_h_gotnonce:')
    A(f'  s_lshr_b64 {s(sA,2)}, {s(sNON,2)}, 2')
    A(f'  v_mov_b32 {v(hA)}, {F_TAG}')
    A(f'  v_mov_b32 {v(hD)}, {s(sA)}')
    A(f'  ds_write_b32 {v(hA)}, {v(hD)}')
    checkpoints(64)
    A(f'  s_bitcmp1_b32 {s(sDEC)}, 6')
    A('  s_cbranch_scc1 L_h_skipa')
    A(f'  s_lshl_b32 {s(sFA)}, s2, 8')
    A(f'  s_add_u32 {s(sFA)}, {s(sFA)}, {WSF}')
    A(f'  s_xor_b32 {s(sFS)}, {s(sFA)}, 1024')
    A(f'  s_lshr_b32 {s(sX)}, {s(sDEC)}, 3')
    A(f'  s_xor_b32 {s(sX)}, {s(sX)}, {s(sDEC)}')
    A(f'  s_lshr_b32 {s(sT)}, {s(sPB)}, 4')
    A(f'  s_lshr_b32 {s(sOF)}, {s(sT)}, 5')
    A(f'  s_lshl_b32 {s(sOF)}, {s(sOF)}, 21')
    A(f'  s_add_u32 {s(sOF)}, {s(sOF)}, {WSX}')
    A(f'  s_and_b32 {s(sQD)}, {s(sT)}, 31')
    A(f'  s_add_u32 {s(sT)}, {s(sQD)}, {s(sRO)}')
    A(f'  s_lshl_b32 {s(sT)}, {s(sT)}, 10')
    A(f'  s_add_u32 {s(sME)}, {s(sOF)}, {s(sT)}')
    A(f'  s_xor_b32 {s(sPA)}, {s(sME)}, 1024')
    def pxor(k):
        h = k >> 2
        c = (h & 3) ^ (((h >> 2) & 1) * 17) ^ (((h >> 3) & 1) * 4)
        return (k << 15) | (c << 10)
    NW = NWU * 384 // 1024
    def reg(k): return hD + 4 * (k % 24)
    def export(lo, hi):
        for k in range(lo, hi): A(f'  ds_read_b128 {v(reg(k),4)}, {v(hO)} offset:{1024*k}')
        A('  s_waitcnt lgkmcnt(0)')
        for k in range(lo, hi):
            A(f'  s_xor_b32 {s(sT)}, {s(sME)}, {pxor(k)}')
            if not noexp: A(f'  buffer_store_dwordx4 {v(reg(k),4)}, {v(hO)}, {s(SW_,4)}, {s(sT)} offen {fl(xf)}')
    def imp(lo, hi):
        for k in range(lo, hi):
            A(f'  s_xor_b32 {s(sT)}, {s(sPA)}, {pxor(k)}')
            if not noimp: A(f'  buffer_load_dwordx4 {v(reg(k),4)}, {v(hO)}, {s(SW_,4)}, {s(sT)} offen sc1')
        A('  s_waitcnt vmcnt(0)')
        for k in range(lo, hi): A(f'  ds_write_b128 {v(hO)}, {v(reg(k),4)} offset:{1024*k}')
    def cond(bit, tag, fn):
        A(f'  s_bitcmp0_b32 {s(sX)}, {bit}')
        A(f'  s_cbranch_scc1 L_h_{tag}')
        fn()
        A(f'L_h_{tag}:')
    def handshake(tag, level):
        A(f'  s_add_u32 {s(sA)}, {s(sNON)}, {level}')
        A(f'  v_mov_b32 {v(h2)}, 0')
        A('  s_waitcnt vmcnt(0)')
        A(f'  v_mov_b32 {v(hD)}, {s(sA)}')
        A(f'  v_mov_b32 {v(hD+1)}, {s(sNON+1)}')
        A('  s_mov_b64 exec, 1')
        A(f'  buffer_store_dwordx2 {v(hD,2)}, {v(h2)}, {s(SW_,4)}, {s(sFA)} offen sc1')
        if safe: A('  s_mov_b32 s59, 0')
        A(f'L_h_flag{tag}:')
        A(f'  buffer_load_dwordx2 {v(hD+2,2)}, {v(h2)}, {s(SW_,4)}, {s(sFS)} offen sc1')
        A('  s_waitcnt vmcnt(0)')
        A(f'  v_readfirstlane_b32 {s(sB)}, {v(hD+2)}')
        A(f'  v_readfirstlane_b32 {s(sB+1)}, {v(hD+3)}')
        A(f'  s_sub_u32 {s(sB)}, {s(sB)}, {s(sA)}')
        A(f'  s_xor_b32 {s(sB+1)}, {s(sB+1)}, {s(sNON+1)}')
        A(f'  s_lshr_b32 {s(sB)}, {s(sB)}, 1')
        A(f'  s_or_b32 {s(sB)}, {s(sB)}, {s(sB+1)}')
        A(f'  s_cbranch_scc0 L_h_flag{tag}_done')
        if safe:
            A('  s_add_u32 s59, s59, 1')
            A('  s_cmp_gt_u32 s59, 2000')
            A(f'  s_cbranch_scc1 L_h_flag{tag}_done')
        A('  s_sleep 32')
        A(f'  s_branch L_h_flag{tag}')
        A(f'L_h_flag{tag}_done:')
        A('  s_mov_b64 exec, -1')
    wait_progress('a', 64, 32)
    stamp()
    export(0, NW)
    cond(0, 'e0', lambda: export(NW, 12))
    cond(1, 'e1', lambda: export(12, 24))
    handshake('a', 1)
    stamp()
    A(f'  s_bfe_u32 {s(sA)}, {s(sDEC)}, 0x10003')
    A(f'  s_mul_i32 {s(sA)}, {s(sA)}, 384')
    A(f'  v_lshrrev_b32 {v(h1)}, 3, v0')
    for k in range(NW):
        A(f'  v_add_u32 {v(h2)}, {8 * k}, {v(h1)}')
        A(f'  v_mul_u32_u24 {v(h2)}, 21846, {v(h2)}')
        A(f'  v_bfe_u32 {v(h2)}, {v(h2)}, 16, 1')
        A(f'  v_mul_u32_u24 {v(h3)}, 384, {v(h2)}')
        A(f'  v_sub_u32 {v(h3)}, {v(hO)}, {v(h3)}')
        A(f'  v_add_u32 {v(h3)}, {s(sA)}, {v(h3)}')
        A(f'  v_add_u32 {v(h3)}, {1024 * k}, {v(h3)}')
        A(f'  v_add_u32 {v(h2)}, {s(sQD)}, {v(h2)}')
        A(f'  v_lshrrev_b32 {v(hZ)}, 12, {v(h3)}')
        A(f'  v_xor_b32 {v(h2)}, {v(h2)}, {v(hZ)}')
        A(f'  v_lshrrev_b32 {v(hZ)}, 10, {v(h3)}')
        A(f'  v_lshl_add_u32 {v(h2)}, {v(hZ)}, 5, {v(h2)}')
        A(f'  v_and_b32 {v(h3)}, 1023, {v(h3)}')
        A(f'  v_lshl_add_u32 {v(h2)}, {v(h2)}, 10, {v(h3)}')
        if not noimp: A(f'  buffer_load_dwordx4 {v(reg(k),4)}, {v(h2)}, {s(SW_,4)}, {s(sOF)} offen sc1')
    A('  s_waitcnt vmcnt(0)')
    for k in range(NW): A(f'  ds_write_b128 {v(hO)}, {v(reg(k),4)} offset:{1024*k}')
    cond(0, 'i0', lambda: imp(NW, 12))
    cond(1, 'i1', lambda: imp(12, 24))
    stamp()
    A('L_h_skipa:')
    A(f'  s_lshr_b32 {s(sT)}, {s(sDEC)}, 4')
    A(f'  s_andn2_b32 {s(sX)}, {s(sX)}, {s(sT)}')
    A(f'  s_bitcmp0_b32 {s(sX)}, 2')
    A(f'  s_cselect_b32 {s(sT)}, 255, 64')
    A(f'  v_mov_b32 {v(hA)}, {F_IMP}')
    A(f'  v_mov_b32 {v(h2)}, {s(sT)}')
    A(f'  ds_write_b32 {v(hA)}, {v(h2)}')
    checkpoints(NF)
    A(f'  s_bitcmp0_b32 {s(sX)}, 2')
    A('  s_cbranch_scc1 L_h_all')
    wait_progress('b', NF, 32)
    stamp()
    export(24, 36)
    handshake('b', 2)
    stamp()
    imp(24, 36)
    stamp()
    A(f'  v_mov_b32 {v(hA)}, {F_IMP}')
    A(f'  v_mov_b32 {v(h2)}, 255')
    A(f'  ds_write_b32 {v(hA)}, {v(h2)}')
    A('L_h_all:')
    checkpoints(999)
    A('  s_waitcnt lgkmcnt(0)')
    if stamps or tl:
        A('  s_branch L_fin')
    else:
        A('  s_endpgm')
    body = pad(L)

    nva = (nv + 7) // 8 * 8
    out = HDR + f'; @launch grid=(256,1,1) block=({64*(W+1)},1,1) lds={lds}\n'
    out += '.amdgcn_target "amdgcn-amd-amdhsa--gfx950"\n.text\n'
    out += f'.globl {NAME}\n.p2align 8\n.type {NAME},@function\n'
    out += '\n'.join(body) + '\n'
    out += '.section .rodata,"a"\n'
    for nm, nvv, nss in ((NAME, nva, 102),):
        out += f'''.p2align 6
.amdhsa_kernel {nm}
  .amdhsa_next_free_vgpr {nvv}
  .amdhsa_next_free_sgpr {nss}
  .amdhsa_accum_offset {nvv}
  .amdhsa_group_segment_fixed_size 0
  .amdhsa_kernarg_size 80
  .amdhsa_user_sgpr_count 2
  .amdhsa_user_sgpr_kernarg_segment_ptr 1
  .amdhsa_system_sgpr_workgroup_id_x 1
  .amdhsa_float_denorm_mode_32 3
.end_amdhsa_kernel
'''
    return out

if __name__ == '__main__':
    kw = {}
    for x in sys.argv[2:]:
        k, val = x.split('=')
        kw[k] = int(val) if val.lstrip('-').isdigit() else val
    open(sys.argv[1], 'w').write(gen(**kw))
```

```python
import sys, os
sys.path.insert(0, os.path.dirname(os.path.abspath(__file__)))
from asmlib import pad
NAME = 'standalone__kv_cache_quant_int4_int2_kv_with_per_channel_or_per_token_scales__sampling_kernel'
HEAD = 4096 * 768
TOTAL = 256 * HEAD
REC = 5120
WSOFF = 1 << 20
WSX = 8 << 20
WSC = 7 << 20
WSF = (7 << 20) + (1 << 16)
IMG = 96 * 384
WSEND = WSX + (16 << 20)
OOB = 0x7ffffff0
HDR = open(os.path.join(os.path.dirname(os.path.abspath(__file__)), 'header.txt')).read()
assert all(((32 * c + 1) * 21846) >> 16 == (32 * c + 1) // 3 for c in range(25))
assert all((c * 43) >> 8 == c // 6 for c in range(24))

class Alloc:
    def __init__(self, start): self.n = start
    def __call__(self, k, align=1):
        self.n = (self.n + align - 1) // align * align
        r = self.n; self.n += k
        return r

def v(r, k=1): return f'v{r}' if k == 1 else f'v[{r}:{r+k-1}]'
def s(r, k=1): return f's{r}' if k == 1 else f's[{r}:{r+k-1}]'

def merge(main, side, every):
    out = []; side = list(side); c = 0
    for m in main:
        out.append(m); c += 1
        if side and c % every == 0: out.append(side.pop(0))
    return out + side

def combine(A, n, ST, AC, npiece, X0, X1, OUT):
    A(f'  v_min_f32 {v(X0)}, {v(ST)}, {v(ST+2)}')
    for w in range(2, n): A(f'  v_min_f32 {v(X0)}, {v(X0)}, {v(ST+2*w)}')
    for w in range(n): A(f'  v_sub_f32 {v(ST+2*w)}, {v(X0)}, {v(ST+2*w)}')
    for w in range(n): A(f'  v_exp_f32 {v(ST+2*w)}, {v(ST+2*w)}')
    A(f'  v_mul_f32 {v(X1)}, {v(ST)}, {v(ST+1)}')
    for w in range(1, n): A(f'  v_fma_f32 {v(X1)}, {v(ST+2*w)}, {v(ST+2*w+1)}, {v(X1)}')
    for i in range(npiece):
        for j in range(4):
            A(f'  v_mul_f32 {v(OUT(4*i+j))}, {v(ST)}, {v(AC+4*i+j)}')
            for w in range(1, n):
                A(f'  v_fma_f32 {v(OUT(4*i+j))}, {v(ST+2*w)}, {v(AC+4*(npiece*w+i)+j)}, {v(OUT(4*i+j))}')

def gen(D=11, W=2, stamps=False, sf='-', stf='-', tl=0, NWU=16, NS=2, pf=8, force=-1, THR=12, safe=0, PW=0, xf='sc1', noexp=0, noimp=0, DC=15, U=2, tail=0, ctl='28.44.76.108.124.140.156.168', gain=22, dly=8, dead=0, novote=0, diagpad=0, diagref=0, ldsz=87040):
    R = 11 * U; NST = 33; NF = 96
    DN = D; D = DC = DC or D
    assert DN <= D <= R and NWU % 8 == 0 and W in (2, 4)
    PW = PW or NWU - 2 * W
    fl = lambda x: x.replace('-', '').replace('+', ' ')
    sf, stf = fl(sf), fl(stf)
    L = []
    A = L.append
    va = Alloc(1)
    RING = va(4 * R, 4); VO = va(4)
    DUP = va(1); DOWN = va(1); DCON = va(1); ICV = va(1); TU = va(1)
    VVS = va(1); VL1 = va(1); VL2 = va(1); VBP = va(1); VFL = va(1); VST = va(1); VPR = va(1)
    VOOB = va(1); VBA = va(1); VBS = va(1)
    T = va(4, 2); ZN = va(1); SN = va(1); ZC = va(1); SC = va(1); ZS = va(2, 2)
    LG = va(6, 4); ACC = va(12, 4); M = va(1); NB = va(2, 2); LS = NB + 1
    X0 = va(2, 2); X1 = X0 + 1; AL = va(1); ALQ = va(1); E = va(11); PP = va(6); TL = va(1)
    base = va.n
    QB = va(6, 4); QN = va(6, 2); KSR = va(6, 2); KZR = va(6, 2); KS = va(12, 2); KZ = va(12, 2); KA = va(6, 4); SD = va(4, 4); S = va(2, 2)
    IUP = va(1); IOWN = va(1); ICON = va(1); VKS0 = va(1); VKS = va(1); VQ = va(1); VNI = va(1)
    kend = va.n
    va.n = base
    AJ = va(16, 4); AK = va(8, 2); TV = va(12, 2); BV = va(48, 4)
    nv = max(va.n, kend)
    sRO, sPB = 4, 5
    SK, SV, SI, SKS, SKZ, SVS, SVZ, SQ, SW_ = 8, 12, 16, 20, 24, 28, 32, 36, 40
    PT = 44
    sREC, sL0, sL10, sM0, sM10, sLOW = 44, 48, 50, 52, 54, 56
    sCUR, sNXT, sSO, sF, sMSK, sL2E, sTL, s768, sSCL, sT = 60, 61, 62, 64, 65, 66, 67, 63, 68, 70
    sMJ = 72
    sDBG, sWS = 80, 82
    sQ3, sC, sQC, sCC, sHC, sHN, sDIV, sSH = 84, 85, 86, 87, 88, 89, 90, 91
    sDEC, sLIM, sGATE, sSEG = 96, 97, 99, 100
    sU = 92
    sBIG, sSM = 92, 94
    SEG = W * 3072 + W * 32
    LDS_ACC = IMG
    LDS_F = LDS_ACC + 4 * SEG
    F_DEC, F_IMP, F_BST, F_TAG, F_PRG = LDS_F, LDS_F + 4, LDS_F + 8, LDS_F + 12, LDS_F + 16
    cps = [int(x) for x in str(ctl).split('.') if x]
    assert len(cps) <= 16
    lds = ldsz
    assert LDS_F + 32 <= lds

    A(f'{NAME}:')
    A('  s_cmp_ge_u32 s2, 256')
    A('  s_cbranch_scc1 L_end')
    A(f'  s_load_dwordx16 {s(PT,16)}, s[0:1], 0')
    A(f'  s_load_dwordx4 {s(sDBG,4)}, s[0:1], 64')
    if stamps or diagpad:
        A('  s_memrealtime s[6:7]')
    A('  v_lshrrev_b32 v1, 6, v0')
    A('  v_and_b32 v0, 63, v0')
    A('  v_readfirstlane_b32 s3, v1')
    A(f'  s_bfe_u32 {s(sRO)}, s2, 0x10002')
    A(f'  s_lshr_b32 {s(sPB)}, s2, 3')
    A(f'  s_lshl_b32 {s(sPB)}, {s(sPB)}, 2')
    A(f'  s_and_b32 {s(sT)}, s2, 3')
    A(f'  s_add_u32 {s(sPB)}, {s(sPB)}, {s(sT)}')
    A(f'  s_lshl_b32 {s(sPB)}, {s(sPB)}, 5')
    def make_srds():
        A('  s_waitcnt lgkmcnt(0)')
        for srd, p, nb in ((SK, PT + 2, TOTAL), (SKS, PT + 6, 256 * 24576), (SKZ, PT + 8, 256 * 24576), (SQ, PT, 256 * 1536),
                           (SI, PT + 2, TOTAL), (SV, PT + 4, TOTAL), (SVS, PT + 10, 256 * 8192), (SVZ, PT + 12, 256 * 8192), (SW_, sWS, WSEND)):
            A(f'  s_mov_b32 {s(srd)}, {s(p)}')
            A(f'  s_and_b32 {s(srd+1)}, {s(p+1)}, 0xffff')
            A(f'  s_mov_b32 {s(srd+2)}, {nb}')
            A(f'  s_mov_b32 {s(srd+3)}, 0x20000')
    A(f'  s_cmp_eq_u32 s3, {W}')
    A('  s_cbranch_scc1 L_helper')

    cls, a, g, n = T, T + 1, T + 2, T + 3
    A(f'  v_and_b32 {v(cls)}, 3, v0')
    A(f'  v_bfe_u32 {v(a)}, v0, 2, 2')
    A(f'  v_lshrrev_b32 {v(g)}, 4, v0')
    A(f'  v_and_b32 {v(n)}, 15, v0')
    def stream_consts(x, up, own, con, lanepart):
        A(f'  v_and_b32 {v(own)}, 2, {v(x)}')
        A(f'  v_lshlrev_b32 {v(up)}, 5, {v(own)}')
        A(f'  v_add_u32 {v(up)}, 129, {v(up)}')
        A(f'  v_and_b32 {v(X1)}, 1, {v(x)}')
        A(f'  v_lshl_add_u32 {v(own)}, {v(X1)}, 2, {v(own)}')
        A(f'  v_mul_u32_u24 {v(X1)}, {43 * 768}, {v(X1)}')
        A(f'  v_add_u32 {v(con)}, {v(lanepart)}, {v(X1)}')
        A(f'  v_subrev_u32 {v(con)}, {43 * 768}, {v(con)}')
    A(f'  v_lshlrev_b32 {v(X0)}, 4, {v(cls)}')
    A(f'  v_lshl_add_u32 {v(X0)}, {v(g)}, 6, {v(X0)}')
    A(f'  v_lshrrev_b32 {v(VKS0)}, 1, {v(X0)}')
    stream_consts(a, IUP, IOWN, ICON, X0)
    A(f'  v_mul_u32_u24 {v(X1)}, 384, {v(a)}')
    A(f'  v_add_u32 {v(VQ)}, {v(X1)}, {v(VKS0)}')
    A(f'  v_mov_b32 {v(VOOB)}, {OOB}')
    A(f'  s_mov_b32 {s(sDIV)}, 0xaaaaaaab')
    A(f'  s_mov_b32 {s(sSH)}, 0x492492')
    A(f'  s_movk_i32 {s(s768)}, 768')
    def slot(k): return RING + 4 * (k % R)
    def main_load(k, srd, so):
        ss, i = divmod(k % NST, 3)
        r, k0 = (0, 0) if ss == 0 else (1, 1) if ss <= 5 else (2, 6) if ss <= 9 else (3, 10)
        return f'  buffer_load_dwordx4 {v(slot(k),4)}, {v(VO+r)}, {s(srd,4)}, {s(so)} offen offset:{768*(ss-k0) + 256*i} nt'
    def kscale_loads():
        r = [f'  s_mul_i32 {s(sSO)}, {s(sQ3)}, 1536']
        for i in range(3):
            r.append(f'  buffer_load_dwordx2 {v(KSR+2*i,2)}, {v(VKS)}, {s(SKS,4)}, {s(sSO)} offen offset:{128*i} {sf}')
            r.append(f'  buffer_load_dwordx2 {v(KZR+2*i,2)}, {v(VKS)}, {s(SKZ,4)}, {s(sSO)} offen offset:{128*i} {sf}')
        return r
    def vscale_loads():
        return [f'  s_lshl_b32 {s(sSO)}, {s(sQ3)}, 9',
                f'  v_lshl_add_u32 {v(VVS)}, {v(TU)}, 1, {v(ICV)}',
                f'  buffer_load_short_d16_hi {v(ZN)}, {v(VVS)}, {s(SVZ,4)}, {s(sSO)} offen {sf}',
                f'  buffer_load_short_d16_hi {v(SN)}, {v(VVS)}, {s(SVS,4)}, {s(sSO)} offen {sf}']
    def q_loads():
        return [f'  s_mul_i32 {s(sT)}, {s(sHN)}, 1536'] + \
               [f'  buffer_load_dwordx2 {v(QN+2*i,2)}, {v(VQ)}, {s(SQ,4)}, {s(sT)} offen offset:{128*i} {sf}' for i in range(3)]
    def short_masks(own, c, m0, m10, low):
        A(f'  v_add_u32 {v(X0)}, {s(c)}, {v(own)}')
        A(f'  v_lshrrev_b32 {v(X1)}, {v(X0)}, {s(sSH)}')
        A(f'  v_and_b32 {v(X1)}, 1, {v(X1)}')
        A(f'  v_cmp_eq_u32 {s(m10,2)}, 1, {v(X1)}')
        A(f'  s_and_b64 {s(m0,2)}, {s(m10,2)}, {low}')
        A(f'  s_andn2_b64 {s(m10,2)}, {s(m10,2)}, {low}')
    def map_unit(f, isv):
        A(f'  s_andn2_b32 {s(sT)}, {s(f)}, 1')
        A(f'  s_or_b32 {s(sT)}, {s(sT)}, {s(sRO)}')
        A(f'  s_lshr_b32 {s(sT+1)}, {s(f)}, 5')
        A(f'  s_lshr_b32 {s(sC)}, {s(sDEC)}, {s(sT+1)}')
        if isv: A(f'  s_lshr_b32 {s(sC)}, {s(sC)}, 3')
        A(f'  s_cmp_lt_u32 {s(f)}, {s(sLIM)}')
        A(f'  s_cselect_b32 {s(sT)}, {s(sT)}, {s(f)}')
        A(f'  s_cselect_b32 {s(sC)}, {s(f)}, {s(sC)}')
        A(f'  s_and_b32 {s(sC)}, {s(sC)}, 1')
        A(f'  s_mul_i32 {s(sT+1)}, {s(sT+1)}, {4096 - 32}')
        A(f'  s_add_u32 {s(sT)}, {s(sT)}, {s(sT+1)}')
        A(f'  s_add_u32 {s(sT)}, {s(sT)}, {s(sPB)}')
        A(f'  s_mul_hi_u32 {s(sQ3)}, {s(sT)}, {s(sDIV)}')
        A(f'  s_lshr_b32 {s(sQ3)}, {s(sQ3)}, 1')
        A(f'  s_mul_i32 {s(sT+1)}, {s(sQ3)}, 3')
        A(f'  s_sub_u32 {s(sT)}, {s(sT)}, {s(sT+1)}')
        A(f'  s_lshl3_add_u32 {s(sC)}, {s(sT)}, {s(sC)}')
        A(f'  s_mul_i32 {s(sNXT)}, {s(sQ3)}, 196608')
        A(f'  s_lshr_b32 {s(sHN)}, {s(sQ3)}, 4')
        A(f'  s_lshl_b32 {s(sT)}, {s(sC)}, 5')
        A(f'  v_add_u32 {v(TU)}, {s(sT)}, {v(DUP if isv else IUP)}')
        A(f'  v_mul_u32_u24 {v(TU)}, 21846, {v(TU)}')
        A(f'  v_lshrrev_b32 {v(TU)}, 16, {v(TU)}')
        short_masks(DOWN if isv else IOWN, sC, sM0, sM10, s(sLOW + 2 * isv, 2))
        if not isv:
            A(f'  v_mul_u32_u24 {v(X0)}, 43, {v(X0)}')
            A(f'  v_lshrrev_b32 {v(X0)}, 8, {v(X0)}')
            A(f'  v_mul_u32_u24 {v(X0)}, 384, {v(X0)}')
            A(f'  v_add_u32 {v(VKS)}, {v(X0)}, {v(VKS0)}')
    def offsets(con):
        A(f'  v_mad_u32_u24 {v(VO)}, {v(TU)}, {s(s768)}, {v(con)}')
        A(f'  v_add_u32 {v(VO+1)}, 768, {v(VO)}')
        A(f'  v_add_u32 {v(VO+2)}, {6 * 768}, {v(VO)}')
        A(f'  v_add_u32 {v(VO+3)}, {10 * 768}, {v(VO)}')
        A(f'  v_cndmask_b32 {v(VO)}, {v(VO)}, {v(VOOB)}, {s(sM0,2)}')
        A(f'  v_cndmask_b32 {v(VO+3)}, {v(VO+3)}, {v(VOOB)}, {s(sM10,2)}')
    def stamp():
        if tl:
            A(f'  s_memrealtime {s(sT,2)}')
            A('  s_waitcnt lgkmcnt(0)')
            A(f'  s_min_u32 m0, {s(sTL)}, 63')
            A(f'  v_writelane_b32 {v(TL)}, {s(sT)}, m0')
            A(f'  s_add_u32 {s(sTL)}, {s(sTL)}, 1')
    def reset_state():
        for k in range(12): A(f'  v_mov_b32 {v(ACC+k)}, 0')
        A(f'  v_mov_b32 {v(M)}, 0xff800000')
        A(f'  v_mov_b32 {v(NB)}, 0x7f800000')
        A(f'  v_mov_b32 {v(LS)}, 0')
    A(f'  s_mov_b32 {s(sF)}, s3')
    A(f'  s_mov_b32 {s(sLIM)}, {NWU}')
    A(f'  s_mov_b32 {s(sGATE)}, {NWU}')
    A(f'  s_mov_b32 {s(sDEC)}, 0')
    make_srds()
    A(f'  s_mov_b32 {s(sLOW)}, 0x0f0f0f0f')
    A(f'  s_mov_b32 {s(sLOW+1)}, 0x0f0f0f0f')
    A(f'  s_mov_b32 {s(sLOW+2)}, 0xffff')
    A(f'  s_mov_b32 {s(sLOW+3)}, 0xffff')
    map_unit(sF, 0)
    offsets(ICON)
    A(f'  s_mov_b32 {s(sCUR)}, {s(sNXT)}')
    A(f'  s_mov_b32 {s(sHC)}, {s(sHN)}')
    for x in kscale_loads(): A(x)
    for x in q_loads(): A(x)
    for k in range(D): A(main_load(k, SK, sCUR))
    A('  s_mov_b64 vcc, 0')
    A(f'  v_lshlrev_b32 {v(X0)}, 4, {v(n)}')
    stream_consts(g, DUP, DOWN, DCON, X0)
    A(f'  v_and_b32 {v(X1)}, 1, {v(g)}')
    A(f'  v_mul_u32_u24 {v(X1)}, 86, {v(X1)}')
    A(f'  v_lshl_add_u32 {v(ICV)}, {v(n)}, 1, {v(X1)}')
    A(f'  v_subrev_u32 {v(ICV)}, 86, {v(ICV)}')
    A(f'  v_lshlrev_b32 {v(VBP)}, 4, {v(g)}')
    A(f'  v_lshrrev_b32 {v(X0)}, 2, v0')
    A(f'  s_mul_i32 {s(sT)}, s3, 384')
    A(f'  v_lshl_add_u32 {v(VL1)}, {v(X0)}, 4, {s(sT)}')
    A(f'  v_lshl_add_u32 {v(VL2)}, {v(X0)}, 3, {s(sT)}')
    A(f'  s_mul_i32 {s(sT)}, s3, 3072')
    A(f'  s_add_u32 {s(sT)}, {s(sT)}, {LDS_ACC}')
    A(f'  v_lshl_add_u32 {v(VFL)}, v0, 4, {s(sT)}')
    A(f'  s_lshl_b32 {s(sT)}, s3, 5')
    A(f'  s_add_u32 {s(sT)}, {s(sT)}, {LDS_ACC + W * 3072}')
    A(f'  v_lshl_add_u32 {v(VST)}, {v(a)}, 3, {s(sT)}')
    A(f'  s_lshl_b32 {s(sT)}, s3, 2')
    A(f'  s_add_u32 {s(sT)}, {s(sT)}, {F_PRG}')
    A(f'  v_mov_b32 {v(VPR)}, {s(sT)}')
    A(f'  v_mov_b32 {v(VBA)}, {F_BST}')
    A(f'  v_mov_b32 {v(ZN)}, 0')
    A(f'  v_mov_b32 {v(SN)}, 0')
    A(f'  v_mov_b32 {v(VNI)}, 0xff800000')
    A(f'  s_mov_b32 {s(sMSK)}, 0xffff0000')
    A(f'  s_mov_b32 {s(sL2E)}, 0x3fb8aa3b')
    for h in range(2):
        A(f'  s_mov_b32 {s(sSCL+h)}, {hex(0x3d93cd3a + (22 << 23))}')
        A(f'  s_mov_b32 {s(sBIG+h)}, 0x7f000000')
        A(f'  s_mov_b32 {s(sSM+h)}, {hex((127 - 22) << 23)}')
    for j in range(4):
        A(f'  s_mov_b32 {s(sMJ+2*j)}, {hex(0x11111111 << j)}')
        A(f'  s_mov_b32 {s(sMJ+2*j+1)}, {hex(0x11111111 << j)}')
        A(f'  s_mov_b32 {s(sREC+j)}, 0')
    A(f'  s_mov_b32 {s(sSEG)}, 0')
    reset_state()
    if tl:
        A(f'  s_mov_b32 {s(sTL)}, 0')
        A(f'  v_mov_b32 {v(TL)}, 0')
    A('  s_barrier')

    PSMALL = 3
    late = (D == R)
    SW = NST - D
    assert PSMALL < SW
    def wait_step(k, nsmall, tag):
        cnt = lambda d: d - 1 + (nsmall if k - d <= PSMALL < k else 0)
        A(f'  s_waitcnt vmcnt({cnt(D)})')
        if DN < D:
            A(f'  s_cbranch_vccnz L_{tag}')
            A(f'  s_waitcnt vmcnt({cnt(DN)})')
            A(f'L_{tag}:')
    def dequant(X, src, z, sc, zmod, smod):
        r = [f'  v_pk_fma_f32 {v(X+2*h,2)}, {v(src+2*h,2)}, {s(sBIG,2)}, {z[h]} {zmod}neg_lo:[0,0,1] neg_hi:[0,0,1]' for h in range(2)]
        r2 = [f'  v_cvt_pk_bf16_f32 {v(X+j)}, 0, {v(X+j)}' for j in range(4)]
        r2 += [f'  v_pk_mul_f32 {v(X+2*h,2)}, {v(X+2*h,2)}, {sc[h]} {smod}'.rstrip() for h in range(2)]
        return r, r2
    def kreduce(ss):
        d = S + (ss & 1)
        q = lambda j: f'quad_perm:[{j},{j},{j},{j}] row_mask:0xf bank_mask:0xf'
        r = [f'  v_mov_b32_dpp {v(X0)}, {v(SD)} {q(0)}',
             f'  v_mov_b32_dpp {v(X1)}, {v(SD+2)} {q(2)}',
             f'  v_add_f32_dpp {v(X0)}, {v(SD+1)}, {v(X0)} {q(1)}',
             f'  v_add_f32_dpp {v(X1)}, {v(SD+3)}, {v(X1)} {q(3)}',
             f'  v_add_f32 {v(d)}, {v(X0)}, {v(X1)}']
        if ss == 0: r.append(f'  v_cndmask_b32 {v(d)}, {v(d)}, {v(VNI)}, {s(sL0,2)}')
        if ss == 10: r.append(f'  v_cndmask_b32 {v(d)}, {v(d)}, {v(VNI)}, {s(sL10,2)}')
        if ss & 1 or ss == 10:
            r += [f'  v_cvt_pk_bf16_f32 {v(S)}, 0, {v(S)}',
                  f'  v_cvt_pk_bf16_f32 {v(S+1)}, 0, {v(S+1)}',
                  f'  v_pk_mul_f32 {v(S,2)}, {v(S,2)}, {s(sSCL,2)}',
                  f'  v_cvt_pk_bf16_f32 {v(LG+(ss>>1))}, {v(S)}, {v(S+1)}']
        return r
    def lds_word(dst, addr):
        A(f'  v_mov_b32 {v(X0)}, {addr}')
        A(f'  ds_read_b32 {v(X0)}, {v(X0)}')
        A('  s_waitcnt lgkmcnt(0)')
        A(f'  v_readfirstlane_b32 {s(dst)}, {v(X0)}')

    mf32 = f'  v_mfma_f32_16x16x32_bf16 {v(SD,4)}, {v(KA,4)}, {v(QB,4)}, 0'
    mf16 = f'  v_mfma_f32_16x16x16_bf16 {v(SD,4)}, {v(KA+4,2)}, {v(QB+4,2)}, {v(SD,4)}'
    def k_unit(u):
        o = NST * u
        if u == 0: stamp()
        short_masks(DOWN, sC, sL0, sL10, s(sLOW + 2, 2))
        A(f'  s_add_u32 {s(sF)}, {s(sF)}, {W}')
        A(f'  s_cmp_lt_u32 {s(sF)}, {s(sGATE)}')
        A(f'  s_cbranch_scc1 L_k_known{u}')
        A(f'L_k_spin{u}:')
        lds_word(sDEC, F_DEC)
        A(f'  s_cmp_eq_u32 {s(sDEC)}, 0')
        A(f'  s_cbranch_scc1 L_k_spin{u}')
        A(f'  s_mov_b32 {s(sGATE)}, -1')
        A(f'  s_bitcmp1_b32 {s(sDEC)}, 6')
        A(f'  s_cselect_b32 {s(sLIM)}, 255, {s(sLIM)}')
        A(f'L_k_known{u}:')
        map_unit(sF, 0)
        if cps: A(f'  ds_read_b32 {v(VBS)}, {v(VBA)}')
        for k in range(NST):
            ss, i = divmod(k, 3)
            if cps and k == 1:
                A('  s_waitcnt lgkmcnt(0)')
                A(f'  s_sub_u32 {s(sT)}, {s(sF)}, {W}')
                A(f'  v_cmp_lt_u32 vcc, {s(sT)}, {v(VBS)}')
            if k == SW and u < U - 1: offsets(ICON)
            if k == SW and u == U - 1:
                A(f'  s_cmp_lt_u32 {s(sF)}, {NF}')
                A(f'  s_cbranch_scc1 L_k_keep{u}')
                A(f'  s_bitcmp1_b32 {s(sDEC)}, 6')
                A(f'  s_cselect_b32 {s(sLIM)}, 255, 0')
                A(f'  v_mov_b32 {v(E)}, {v(X0)}')
                A(f'  v_mov_b32 {v(E+1)}, {v(X1)}')
                map_unit(3, 1)
                A(f'  v_mov_b32 {v(X0)}, {v(E)}')
                A(f'  v_mov_b32 {v(X1)}, {v(E+1)}')
                A(f'  s_mov_b32 {s(SI)}, {s(SV)}')
                A(f'  s_mov_b32 {s(SI+1)}, {s(SV+1)}')
                for x in vscale_loads(): A(x)
                A(f'  v_mov_b32 {v(ICON)}, {v(DCON)}')
                A(f'L_k_keep{u}:')
                offsets(ICON)
            lds_ = [main_load(o + k + D, SK, sCUR) if k < SW else main_load(o + k + D, SI, sNXT)]
            wait_step(k, 6, f'kw{u}_{k}')
            if not late:
                for x in lds_: A(x)
            if i == 2: A(mf32)
            if i == 0 and ss > 0: A(mf16)
            if ss == 0:
                for raw, dst in ((KZR, KZ), (KSR, KS)):
                    for h in range(2):
                        A(f'  v_lshlrev_b32 {v(dst+4*i+2*h)}, 16, {v(raw+2*i+h)}')
                        A(f'  v_and_b32 {v(dst+4*i+2*h+1)}, {s(sMSK)}, {v(raw+2*i+h)}')
                for h in range(2):
                    A(f'  v_pk_mul_f32 {v(KZ+4*i+2*h,2)}, {v(KZ+4*i+2*h,2)}, {s(sSM,2)}')
                    A(f'  v_mov_b32 {v(QB+2*i+h)}, {v(QN+2*i+h)}')
            c, rest = dequant(T, slot(o + k), (v(KZ+4*i,2), v(KZ+4*i+2,2)), (v(KS+4*i,2), v(KS+4*i+2,2)), '', '')
            for x in c: A(x)
            if late:
                for x in lds_: A(x)
            if k == PSMALL:
                A(f'  s_cmp_eq_u32 {s(sHN)}, {s(sHC)}')
                A(f'  s_cbranch_scc1 L_k_sameq{u}')
                for x in q_loads(): A(x)
                A(f'  s_mov_b32 {s(sHC)}, {s(sHN)}')
                A(f'L_k_sameq{u}:')
                for x in kscale_loads(): A(x)
            rest += [f'  v_cvt_pk_bf16_f32 {v(KA+2*i)}, {v(T)}, {v(T+1)}',
                     f'  v_cvt_pk_bf16_f32 {v(KA+2*i+1)}, {v(T+2)}, {v(T+3)}']
            if i == 1 and ss > 0:
                r = kreduce(ss - 1)
                rest = r[:2] + rest[:2] + r[2:4] + rest[2:4] + r[4:5] + rest[4:]
                pend = r[5:]
            elif i == 2 and ss > 0:
                rest = merge(rest, pend, 1)
            for x in rest: A(x)
        A(f'  s_mov_b32 {s(sCUR)}, {s(sNXT)}')
        A(f'  v_mov_b32 {v(AL)}, {s(sF)}')
        A(mf16)
        A(f'  ds_write_b128 {v(VL1)}, {v(LG,4)}')
        A(f'  v_add_u32 {v(VL1)}, {384 * W}, {v(VL1)}')
        for x in kreduce(10): A(x)
        A(f'  ds_write_b64 {v(VL2)}, {v(LG+4,2)} offset:256')
        A(f'  ds_write_b32 {v(VPR)}, {v(AL)}')
        A(f'  v_add_u32 {v(VL2)}, {384 * W}, {v(VL2)}')
    A('L_k:')
    for u in range(U): k_unit(u)
    A(f'  s_cmp_lt_u32 {s(sF)}, {NF}')
    A('  s_cbranch_scc1 L_k')

    def flush():
        A(f'  v_mov_b32 {v(X1)}, {v(LS)}')
        A(f'  v_permlane32_swap_b32 {v(LS)}, {v(X1)}')
        A(f'  v_add_f32 {v(LS)}, {v(LS)}, {v(X1)}')
        A(f'  v_mov_b32 {v(X1)}, {v(LS)}')
        A(f'  v_permlane16_swap_b32 {v(LS)}, {v(X1)}')
        A(f'  v_add_f32 {v(LS)}, {v(LS)}, {v(X1)}')
        A(f'  ds_write_b64 {v(VST)}, {v(NB,2)}')
        for i in range(3):
            A(f'  ds_write_b128 {v(VFL)}, {v(ACC+4*i,4)} offset:{1024*i}')
        A(f'  s_and_b32 {s(sT)}, {s(sQC)}, 15')
        A(f'  s_cmp_ge_u32 {s(sT)}, 12')
        A(f'  s_cselect_b32 {s(sT)}, 2, 0')
        A(f'  s_and_b32 {s(sT+1)}, {s(sCC)}, 1')
        A(f'  s_bitcmp1_b32 {s(sDEC)}, 6')
        A(f'  s_cselect_b32 {s(sT+1)}, {s(sRO)}, {s(sT+1)}')
        A(f'  s_add_u32 {s(sT)}, {s(sT)}, {s(sT+1)}')
        A(f'  s_lshr_b32 {s(sT+1)}, {s(sQC)}, 4')
        A(f'  s_lshl2_add_u32 {s(sT)}, {s(sT+1)}, {s(sT)}')
        for j in range(4 // W):
            A(f'  s_add_u32 {s(sT+1)}, s3, {W * j}')
            A(f'  s_cmp_eq_u32 {s(sSEG)}, {s(sT+1)}')
            A(f'  s_cselect_b32 {s(sREC+j)}, {s(sT)}, {s(sREC+j)}')
        A(f'  s_add_u32 {s(sSEG)}, {s(sSEG)}, 1')
        A('  s_waitcnt lgkmcnt(0)')
    def import_gate(tag):
        A(f'  s_cmp_lt_u32 {s(sF)}, {s(sGATE)}')
        A(f'  s_cbranch_scc1 L_{tag}_ok')
        A(f'L_{tag}_spin:')
        lds_word(sGATE, F_IMP)
        A(f'  s_cmp_lt_u32 {s(sF)}, {s(sGATE)}')
        A(f'  s_cbranch_scc0 L_{tag}_spin')
        A(f'L_{tag}_ok:')

    A(f'  v_subrev_u32 {v(VL1)}, {IMG}, {v(VL1)}')
    A(f'  v_subrev_u32 {v(VL2)}, {IMG}, {v(VL2)}')
    A(f'  s_mov_b32 {s(sF)}, s3')
    A(f'  s_mov_b32 {s(sHC)}, {s(sHN)}')
    A(f'  s_mov_b32 {s(sGATE)}, 0')
    A(f'  s_load_dwordx2 {s(sREC,2)}, s[0:1], 56')
    A('  s_waitcnt lgkmcnt(0)')
    A(f'  s_mov_b32 {s(SQ)}, {s(sREC)}')
    A(f'  s_and_b32 {s(SQ+1)}, {s(sREC+1)}, 0xffff')
    import_gate('v0')
    A(f'  ds_read_b128 {v(LG,4)}, {v(VL1)}')
    A(f'  ds_read_b64 {v(LG+4,2)}, {v(VL2)} offset:256')
    def v_unit(u):
        o = NST * u
        A(f'L_v{u}:')
        if u == 0: stamp()
        A(f'  s_mov_b32 {s(sQC)}, {s(sQ3)}')
        A(f'  s_mov_b32 {s(sCC)}, {s(sC)}')
        A(f'  s_add_u32 {s(sF)}, {s(sF)}, {W}')
        import_gate(f'v1{u}')
        map_unit(sF, 1)
        if tail:
            A(f'  s_cmp_ge_u32 {s(sF)}, {NF - tail}')
            A('  s_cselect_b64 vcc, -1, 0')
        A(f'  s_cmp_lt_u32 {s(sF)}, {NF}')
        A(f'  s_cselect_b32 {s(sNXT)}, {s(sNXT)}, {TOTAL}')
        prep = ['  s_waitcnt lgkmcnt(0)']
        if cps:
            A(f'  s_add_u32 {s(sT)}, {s(sF)}, {NF - W}')
            A(f'  v_mov_b32 {v(AL)}, {s(sT)}')
            A(f'  ds_read_b32 {v(VBS)}, {v(VBA)}')
            A(f'  ds_write_b32 {v(VPR)}, {v(AL)}')
            prep.append(f'  v_cmp_lt_u32 vcc, {v(AL)}, {v(VBS)}')
        for k in range(11):
            prep.append(f'  v_lshlrev_b32 {v(E+k)}, 16, {v(LG+k//2)}' if k % 2 == 0 else f'  v_and_b32 {v(E+k)}, {s(sMSK)}, {v(LG+k//2)}')
        prep += [f'  v_add_u32 {v(VL1)}, {384 * W}, {v(VL1)}',
                 f'  v_add_u32 {v(VL2)}, {384 * W}, {v(VL2)}',
                 f'  v_max3_f32 {v(X0)}, {v(E)}, {v(E+1)}, {v(E+2)}',
                 f'  ds_read_b128 {v(LG,4)}, {v(VL1)}',
                 f'  ds_read_b64 {v(LG+4,2)}, {v(VL2)} offset:256',
                 f'  v_max3_f32 {v(X1)}, {v(E+3)}, {v(E+4)}, {v(E+5)}',
                 f'  v_max3_f32 {v(X0)}, {v(X0)}, {v(E+6)}, {v(E+7)}',
                 f'  v_max3_f32 {v(X1)}, {v(X1)}, {v(E+8)}, {v(E+9)}',
                 f'  v_max3_f32 {v(X0)}, {v(X0)}, {v(E+10)}, {v(M)}',
                 f'  v_max_f32 {v(X0)}, {v(X0)}, {v(X1)}',
                 f'  v_mov_b32 {v(X1)}, {v(X0)}',
                 f'  v_permlane32_swap_b32 {v(X0)}, {v(X1)}',
                 f'  v_max_f32 {v(X0)}, {v(X0)}, {v(X1)}',
                 f'  v_mov_b32 {v(X1)}, {v(X0)}',
                 f'  v_permlane16_swap_b32 {v(X0)}, {v(X1)}',
                 f'  v_max_f32 {v(M)}, {v(X0)}, {v(X1)}',
                 f'  v_mul_f32 {v(X0)}, {s(sL2E)}, {v(M)}',
                 f'  v_add_f32 {v(AL)}, {v(X0)}, {v(NB)}',
                 f'  v_sub_f32 {v(NB)}, 0, {v(X0)}',
                 f'  v_exp_f32 {v(AL)}, -{v(AL)}',
                 f'  ds_bpermute_b32 {v(ALQ)}, {v(VBP)}, {v(AL)}']
        for k in range(11):
            prep += [f'  v_fma_f32 {v(E+k)}, {v(E+k)}, {s(sL2E)}, {v(NB)}', f'  v_exp_f32 {v(E+k)}, {v(E+k)}']
        prep += [f'  v_add_f32 {v(X0)}, {v(E)}, {v(E+1)}', f'  v_add_f32 {v(X1)}, {v(E+2)}, {v(E+3)}']
        for k in range(4, 11):
            x = X0 if k % 2 == 0 else X1
            prep.append(f'  v_add_f32 {v(x)}, {v(x)}, {v(E+k)}')
        prep += [f'  v_add_f32 {v(X0)}, {v(X0)}, {v(X1)}',
                 f'  v_fma_f32 {v(LS)}, {v(LS)}, {v(AL)}, {v(X0)}']
        for k in range(6):
            prep.append(f'  v_cvt_pk_bf16_f32 {v(PP+k)}, {v(E+2*k)}, {v(E+2*k+1) if k < 5 else 0}')
        for j in range(4):
            for k in range(4):
                prep.append(f'  v_cndmask_b32 {v(AJ+4*j+k)}, 0, {v(PP+k)}, {s(sMJ+2*j,2)}')
        prep.append('  s_waitcnt lgkmcnt(0)')
        for k in range(12):
            prep.append(f'  v_mul_f32 {v(ACC+k)}, {v(ALQ)}, {v(ACC+k)}')
        prep2 = [f'  v_cndmask_b32 {v(AK+2*j+k)}, 0, {v(PP+4+k)}, {s(sMJ+2*j,2)}' for j in range(4) for k in range(2)]
        per = 5
        for k in range(NST):
            ss, i = divmod(k, 3)
            if k == SW: offsets(DCON)
            lds_ = [main_load(o + k + D, SV, sCUR if k < SW else sNXT)]
            wait_step(k, 2, f'vw{u}_{k}')
            if not late:
                for x in lds_: A(x)
            if k == 0:
                A(f'  v_mul_f32 {v(ZC)}, {s(sSM)}, {v(ZN)}')
                A(f'  v_mul_f32 {v(SC)}, {hex((127 + 22) << 23)}, {v(SN)}')
            if i == 0:
                A(f'  v_mov_b32_dpp {v(ZS)}, {v(ZC)} row_newbcast:{ss} row_mask:0xf bank_mask:0xf')
                A(f'  v_mov_b32_dpp {v(ZS+1)}, {v(SC)} row_newbcast:{ss} row_mask:0xf bank_mask:0xf')
            X = TV + 4 * i if ss % 2 == 0 else T
            c, rest = dequant(X, slot(o + k), (v(ZS,2), v(ZS,2)), (v(ZS,2), v(ZS,2)), 'op_sel_hi:[1,1,0] ', 'op_sel:[0,1]')
            for x in c: A(x)
            if late:
                for x in lds_: A(x)
            if k == PSMALL:
                for x in vscale_loads(): A(x)
            if ss % 2 == 1:
                rest += [f'  v_cvt_pk_bf16_f32 {v(BV+16*i+4*j+((ss>>1)&3))}, {v(TV+4*i+j)}, {v(T+j)}' for j in range(4)]
            if ss == 10:
                rest += [f'  v_cvt_pk_bf16_f32 {v(BV+16*i+4*j+1)}, {v(TV+4*i+j)}, 0' for j in range(4)]
            side, prep = prep[:per], prep[per:]
            if k == 20:
                side += prep; prep = []
            if k == 23: prep = prep2
            for x in merge(rest, side, 1): A(x)
            if ss == 7:
                for j in range(4):
                    A(f'  v_mfma_f32_16x16x32_bf16 {v(ACC+4*i,4)}, {v(AJ+4*j,4)}, {v(BV+16*i+4*j,4)}, {v(ACC+4*i,4)}')
            if ss == 10:
                assert not prep
                for j in range(4):
                    A(f'  v_mfma_f32_16x16x16_bf16 {v(ACC+4*i,4)}, {v(AK+2*j,2)}, {v(BV+16*i+4*j,2)}, {v(ACC+4*i,4)}')
        A(f'  s_mov_b32 {s(sCUR)}, {s(sNXT)}')
        if u == U - 1:
            A(f'  s_cmp_ge_u32 {s(sF)}, {NF}')
            A('  s_cbranch_scc1 L_v_done')
        A(f'  s_cmp_eq_u32 {s(sHN)}, {s(sHC)}')
        A(f'  s_cbranch_scc1 L_v{(u + 1) % U}')
        A(f'  s_mov_b32 {s(sHC)}, {s(sHN)}')
        flush()
        A(f'  v_add_u32 {v(VFL)}, {SEG}, {v(VFL)}')
        A(f'  v_add_u32 {v(VST)}, {SEG}, {v(VST)}')
        reset_state()
        if u == U - 1: A('  s_branch L_v0')
    for u in range(U): v_unit(u)
    A('L_v_done:')
    stamp()
    flush()
    A('  s_waitcnt vmcnt(0)')

    A('  s_barrier')
    ST = RING; AC = (base + 3) // 4 * 4
    nv = max(nv, AC + 48)
    A(f'  v_lshrrev_b32 {v(AL)}, 1, {v(VBP)}')
    A(f'  v_lshlrev_b32 {v(ALQ)}, 4, v0')
    for j in range(4 // W):
        A(f'  s_mul_i32 {s(sT)}, s3, {SEG}')
        A(f'  s_add_u32 {s(sT)}, {s(sT)}, {LDS_ACC + W * j * SEG}')
        A(f'  v_add_u32 {v(X0)}, {s(sT)}, {v(AL)}')
        for w in range(W):
            A(f'  ds_read_b64 {v(ST+2*(W*j+w),2)}, {v(X0)} offset:{W*3072 + 32*w}')
        A(f'  v_add_u32 {v(X0)}, {s(sT)}, {v(ALQ)}')
        for w in range(W):
            for i in range(3):
                A(f'  ds_read_b128 {v(AC+12*(W*j+w)+4*i,4)}, {v(X0)} offset:{3072*w + 1024*i}')
    A(f'  v_mov_b32 {v(X0)}, {F_TAG}')
    A(f'  ds_read_b32 {v(M)}, {v(X0)}')
    A(f'  s_mov_b32 {s(sSEG)}, -1')
    A(f'  s_add_u32 {s(sLIM)}, {s(sRO)}, 1')
    A('  s_waitcnt lgkmcnt(0)')
    GR = RING + 8; OWN = GR + 40
    gi = lambda b, x: b + 4 * (x // 3) + x % 3
    for j in range(4 // W):
        G = GR + 20 * j
        combine(A, W, ST + 2 * W * j, AC + 12 * W * j, 3, gi(G, 12), gi(G, 13), lambda x: gi(G, x))
        A(f'  s_bfe_u32 {s(sT)}, {s(sREC+j)}, 0x20001')
        A(f'  s_cmp_eq_u32 {s(sT)}, {s(sLIM)}')
        A(f'  s_cbranch_scc1 L_own{j}')
        for g_ in range(5): A(f'  v_mov_b32 {v(G+4*g_+3)}, {v(M)}')
        A(f'  s_mul_i32 {s(sT)}, {s(sREC+j)}, {REC}')
        A(f'  s_add_u32 {s(sT)}, {s(sT)}, {WSOFF}')
        A(f'  s_add_u32 {s(sT+1)}, {s(sT)}, 4096')
        for g_ in range(5):
            A(f'  buffer_store_dwordx4 {v(G+4*g_,4)}, {v(ALQ)}, {s(SW_,4)}, {s(sT + g_ // 4)} offen offset:{1024 * (g_ % 4)} sc1')
        A(f'  s_branch L_pub{j}')
        A(f'L_own{j}:')
        for x in range(14): A(f'  v_mov_b32 {v(gi(OWN, x))}, {v(gi(G, x))}')
        A(f'  s_mov_b32 {s(sSEG)}, {s(sREC+j)}')
        A(f'L_pub{j}:')
    stamp()
    A(f'  s_cmp_eq_u32 {s(sSEG)}, -1')
    A('  s_cbranch_scc1 L_fin')
    FR = AC
    nv = max(nv, FR + 60)
    sR = 84
    A(f'  s_xor_b32 {s(sR)}, {s(sSEG)}, 1')
    A(f'  s_andn2_b32 {s(sR+2)}, {s(sSEG)}, 1')
    A(f'  s_xor_b32 {s(sR+2)}, {s(sR+2)}, 2')
    A(f'  s_add_u32 {s(sR+4)}, {s(sR+2)}, 1')
    for r in range(3):
        A(f'  s_mul_i32 {s(sR+2*r)}, {s(sR+2*r)}, {REC}')
        A(f'  s_add_u32 {s(sR+2*r)}, {s(sR+2*r)}, {WSOFF}')
        A(f'  s_add_u32 {s(sR+2*r+1)}, {s(sR+2*r)}, 4096')
    A(f'  v_mov_b32 {v(X1)}, {s(sR+1)}')
    A(f'  v_writelane_b32 {v(X1)}, {s(sR+3)}, 1')
    A(f'  v_writelane_b32 {v(X1)}, {s(sR+5)}, 2')
    if safe: A(f'  s_mov_b32 {s(sF)}, 0')
    A('L_gather:')
    for r in range(3):
        for g_ in range(5):
            A(f'  buffer_load_dwordx4 {v(FR+20*r+4*g_,4)}, {v(ALQ)}, {s(SW_,4)}, {s(sR + 2*r + g_ // 4)} offen offset:{1024 * (g_ % 4)} sc1')
    A('  s_waitcnt vmcnt(0)')
    tags = [FR + 4 * k + 3 for k in range(15)]
    A(f'  v_xor_b32 {v(X0)}, {v(M)}, {v(tags[0])}')
    for k in range(1, 15):
        A(f'  v_xor_b32 {v(tags[k])}, {v(M)}, {v(tags[k])}')
    for k in range(1, 15, 2):
        A(f'  v_or3_b32 {v(X0)}, {v(X0)}, {v(tags[k])}, {v(tags[k+1])}')
    A(f'  v_cmp_ne_u32 {s(sT,2)}, 0, {v(X0)}')
    A(f'  s_cmp_eq_u64 {s(sT,2)}, 0')
    A('  s_cbranch_scc1 L_gathered')
    A('  s_mov_b64 exec, 7')
    A('L_poll:')
    if safe:
        A(f'  s_add_u32 {s(sF)}, {s(sF)}, 1')
        A(f'  s_cmp_gt_u32 {s(sF)}, 20000')
        A('  s_cbranch_scc1 L_end')
    A(f'  buffer_load_dword {v(X0)}, {v(X1)}, {s(SW_,4)}, 0 offen offset:1020 sc1')
    A('  s_waitcnt vmcnt(0)')
    A(f'  v_cmp_ne_u32 {s(sT,2)}, {v(M)}, {v(X0)}')
    A(f'  s_cmp_lg_u64 {s(sT,2)}, 0')
    A('  s_cbranch_scc1 L_poll')
    A('  s_mov_b64 exec, -1')
    A('  s_branch L_gather')
    A('L_gathered:')
    stamp()
    B4 = [OWN, FR, FR + 20, FR + 40]
    A(f'  v_min_f32 {v(X0)}, {v(gi(B4[0],12))}, {v(gi(B4[1],12))}')
    A(f'  v_min3_f32 {v(X0)}, {v(X0)}, {v(gi(B4[2],12))}, {v(gi(B4[3],12))}')
    for b in B4: A(f'  v_sub_f32 {v(gi(b,12))}, {v(X0)}, {v(gi(b,12))}')
    for b in B4: A(f'  v_exp_f32 {v(gi(b,12))}, {v(gi(b,12))}')
    for x in [13] + list(range(12)):
        for b in B4: A(f'  v_mul_f32 {v(gi(b,x))}, {v(gi(b,12))}, {v(gi(b,x))}')
        A(f'  v_add_f32 {v(gi(B4[0],x))}, {v(gi(B4[0],x))}, {v(gi(B4[1],x))}')
        A(f'  v_add_f32 {v(gi(B4[2],x))}, {v(gi(B4[2],x))}, {v(gi(B4[3],x))}')
        A(f'  v_add_f32 {v(gi(B4[0],x))}, {v(gi(B4[0],x))}, {v(gi(B4[2],x))}')
        if x == 13: A(f'  v_rcp_f32 {v(X1)}, {v(gi(OWN,13))}')
    for x in range(12): A(f'  v_mul_f32 {v(gi(OWN,x))}, {v(X1)}, {v(gi(OWN,x))}')
    A(f'  v_mul_u32_u24 {v(X0)}, 24, {v(VBP)}')
    A(f'  v_and_b32 {v(X1)}, 15, v0')
    A(f'  v_lshl_add_u32 {v(X0)}, {v(X1)}, 3, {v(X0)}')
    A(f'  s_lshr_b32 {s(sT)}, {s(sSEG)}, 2')
    A(f'  s_mul_i32 {s(sT)}, {s(sT)}, 1536')
    for i in range(3):
        A(f'  v_cvt_pk_bf16_f32 {v(ACC+2*i)}, {v(gi(OWN,4*i))}, {v(gi(OWN,4*i+1))}')
        A(f'  v_cvt_pk_bf16_f32 {v(ACC+2*i+1)}, {v(gi(OWN,4*i+2))}, {v(gi(OWN,4*i+3))}')
        A(f'  buffer_store_dwordx2 {v(ACC+2*i,2)}, {v(X0)}, {s(SQ,4)}, {s(sT)} offen offset:{128*i} {stf}')
    A('L_fin:')
    if diagpad:
        if diagref: A(f'  v_readfirstlane_b32 s6, {v(M)}')
        A('L_diag:')
        A(f'  s_memrealtime {s(sU,2)}')
        A('  s_waitcnt lgkmcnt(0)')
        A(f'  s_sub_u32 {s(sU)}, {s(sU)}, s6')
        A(f'  s_cmp_lt_u32 {s(sU)}, {diagpad * 100}')
        A('  s_cbranch_scc1 L_diag')
    if tl:
        A(f'  s_mul_i32 {s(sT)}, s2, {W+1}')
        A(f'  s_add_u32 {s(sT)}, {s(sT)}, s3')
        A(f'  s_lshl_b32 {s(sT)}, {s(sT)}, 8')
        A(f'  s_add_u32 {s(sT)}, {s(sT)}, 0x10000')
        A(f'  v_lshl_add_u32 {v(E)}, v0, 2, {s(sT)}')
        A(f'  global_store_dword {v(E)}, {v(TL)}, {s(sWS,2)}')
    if stamps:
        A('  s_waitcnt vmcnt(0)')
        A(f'  s_memrealtime {s(sU,2)}')
        A(f'  s_getreg_b32 {s(sU+2)}, hwreg(HW_REG_XCC_ID)')
        A(f'  s_mul_i32 {s(sT)}, s2, {W+1}')
        A(f'  s_add_u32 {s(sT)}, {s(sT)}, s3')
        A(f'  s_lshl_b32 {s(sT)}, {s(sT)}, 4')
        A('  s_waitcnt lgkmcnt(0)')
        A(f'  v_mov_b32 {v(RING)}, s6')
        A(f'  v_mov_b32 {v(RING+1)}, {s(sU)}')
        A(f'  v_mov_b32 {v(RING+2)}, {s(sU+2)}')
        A(f'  v_mov_b32 {v(RING+3)}, {s(sDEC)}')
        A(f'  v_mov_b32 {v(X0)}, {s(sT)}')
        A('  s_mov_b64 exec, 1')
        A(f'  global_store_dwordx4 {v(X0)}, {v(RING,4)}, {s(sWS,2)}')
    A('L_end:')
    A('  s_endpgm')

    A('L_helper:')
    if tl:
        A(f'  s_mov_b32 {s(sTL)}, 0')
        A(f'  v_mov_b32 {v(TL)}, 0')
    hA, hZ, hO, h1, h2, h3, hD = 1, 2, 3, 4, 5, 6, 8
    assert hD + 96 <= TL
    A(f'  v_lshlrev_b32 {v(hA)}, 2, v0')
    A(f'  v_add_u32 {v(hA)}, {LDS_F}, {v(hA)}')
    A(f'  v_mov_b32 {v(hZ)}, 0')
    A('  s_mov_b64 exec, 0xff')
    A(f'  ds_write_b32 {v(hA)}, {v(hZ)}')
    A('  s_mov_b64 exec, -1')
    make_srds()
    A('  s_barrier')
    sOF, sN0, sV0, sJ, sSF, sA, sB, sX, sFA, sFS, sME, sPA = 44, 45, 48, 50, 52, 54, 56, 58, 62, 63, 60, 61
    sQD, sOWN, sUNT, sT0, sNON = 64, 65, 66, 72, 74
    hP, hQ = hD + 96, hD + 97
    assert hQ < TL
    A(f'  s_memrealtime {s(sT0,2)}')
    A(f'  s_mov_b32 {s(sUNT)}, 0')
    A(f'  s_lshr_b32 {s(sT)}, s2, 4')
    A(f'  s_and_b32 {s(sT)}, {s(sT)}, 8')
    A(f'  s_and_b32 {s(sT+1)}, s2, 7')
    A(f'  s_add_u32 {s(sT)}, {s(sT)}, {s(sT+1)}')
    A(f'  s_lshl_b32 {s(sT)}, {s(sT)}, 3')
    A(f'  v_mov_b32 {v(hP)}, {s(sT)}')
    A(f'  v_and_b32 {v(hQ)}, 15, v0')
    A(f'  v_lshlrev_b32 {v(hQ)}, 3, {v(hQ)}')
    A('  s_bitcmp1_b32 s2, 3')
    A(f'  s_cselect_b32 {s(SI)}, {s(SV)}, {s(SK)}')
    A(f'  s_cselect_b32 {s(SI+1)}, {s(SV+1)}, {s(SK+1)}')
    A(f'  s_cselect_b32 {s(sSF)}, 24, 0')
    A(f'  s_lshl_b32 {s(sOF)}, {s(sPB)}, 16')
    A(f'  s_lshl_b32 {s(sT)}, {s(sRO)}, 16')
    A(f'  s_add_u32 {s(sOF)}, {s(sOF)}, {s(sT)}')
    A(f'  s_add_u32 {s(sOF)}, {s(sOF)}, 0x1c0000')
    A(f'  s_bfe_u32 {s(sT)}, s2, 0x40004')
    A(f'  s_mul_i32 {s(sT)}, {s(sT)}, 0x4a80')
    A(f'  s_and_b32 {s(sT)}, {s(sT)}, 0x5f80')
    A(f'  s_add_u32 {s(sOF)}, {s(sOF)}, {s(sT)}')
    A(f'  s_mov_b32 {s(sV0)}, 0')
    A(f'  s_mov_b32 {s(sV0+1)}, 0x1000000')
    A(f'  s_mov_b32 {s(sJ)}, 0')
    A('L_h_page:')
    A(f'  s_add_u32 {s(sT)}, {s(sOF)}, 0x8000')
    A(f'  s_buffer_load_dword {s(sX)}, {s(SI,4)}, {s(sT)}')
    A(f'  s_mov_b32 {s(sN0)}, -1')
    A(f'  s_mov_b32 {s(sN0+1)}, -1')
    A('  s_waitcnt lgkmcnt(0)')
    for k in range(NS):
        for c in range(2):
            o = (((k & 1) << 14) | ((k >> 1 & 1) << 12) | ((k * 0x380) & 0xfff)) ^ (c << 13)
            A(f'  s_xor_b32 {s(sT)}, {s(sOF)}, {o}')
            A(f'  s_memtime {s(sA,2)}')
            A('  s_waitcnt lgkmcnt(0)')
            A(f'  s_buffer_load_dword {s(sX)}, {s(SI,4)}, {s(sT)}')
            A('  s_waitcnt lgkmcnt(0)')
            A(f'  s_memtime {s(sB,2)}')
            A('  s_waitcnt lgkmcnt(0)')
            A(f'  s_sub_u32 {s(sB)}, {s(sB)}, {s(sA)}')
            A(f'  s_min_u32 {s(sN0+c)}, {s(sN0+c)}, {s(sB)}')
    A(f'  s_cmp_lt_u32 {s(sN0+1)}, {s(sN0)}')
    A(f'  s_cselect_b32 {s(sA)}, 1, 0')
    A(f'  s_xor_b32 {s(sA)}, {s(sA)}, {s(sRO)}')
    A(f'  s_mov_b32 {s(sA+1)}, 0')
    A(f'  s_lshl_b64 {s(sA,2)}, {s(sA,2)}, {s(sSF)}')
    A(f'  s_or_b64 {s(sV0,2)}, {s(sV0,2)}, {s(sA,2)}')
    A(f'  s_add_u32 {s(sSF)}, {s(sSF)}, 8')
    A(f'  s_add_u32 {s(sOF)}, {s(sOF)}, 0x10000000')
    A(f'  s_add_u32 {s(sJ)}, {s(sJ)}, 1')
    A(f'  s_cmp_lt_u32 {s(sJ)}, 3')
    A('  s_cbranch_scc1 L_h_page')
    stamp()
    A(f'  s_and_b32 {s(sT)}, s2, 3')
    A(f'  s_lshl_b32 {s(sFA)}, {s(sT)}, 6')
    A('  s_cmp_lg_u32 s2, 0')
    A('  s_cbranch_scc1 L_h_nonce')
    A(f'  s_lshl_b64 {s(sA,2)}, {s(sT0,2)}, 2')
    A(f'  s_atomic_add_x2 {s(sA,2)}, {s(sDBG,2)}, 8 glc')
    A('  s_waitcnt lgkmcnt(0)')
    A('L_h_nonce:')
    if not novote: A(f'  s_atomic_add_x2 {s(sV0,2)}, {s(sDBG,2)}, {s(sFA)}')
    A('  s_waitcnt lgkmcnt(0)')
    def wait_progress(tag, lim, slp):
        A(f'  v_mov_b32 {v(hA)}, {F_PRG}')
        A(f'L_h_prog{tag}:')
        A(f'  s_sleep {slp}')
        A(f'  ds_read_b128 {v(hD,4)}, {v(hA)}')
        A('  s_waitcnt lgkmcnt(0)')
        A(f'  v_min_u32 {v(hD)}, {v(hD)}, {v(hD+1)}')
        if W == 4: A(f'  v_min3_u32 {v(hD)}, {v(hD)}, {v(hD+2)}, {v(hD+3)}')
        A(f'  v_readfirstlane_b32 {s(sA)}, {v(hD)}')
        A(f'  s_cmp_lt_u32 {s(sA)}, {lim}')
        A(f'  s_cbranch_scc1 L_h_prog{tag}')
    events = sorted([(c, 0, j) for j, c in enumerate(cps)] + [(c + dly, 1, j) for j, c in enumerate(cps)])
    def checkpoints(upto):
        while events and events[0][0] <= upto:
            c, act, j = events.pop(0)
            wait_progress(f'c{j}_{act}', c, 8)
            if not act:
                A(f'  s_memrealtime {s(sA,2)}')
                A('  s_waitcnt lgkmcnt(0)')
                A(f'  s_sub_u32 {s(sOWN)}, {s(sA)}, {s(sT0)}')
                A(f'  s_and_b32 {s(sT)}, s2, 0x78')
                A(f'  s_cbranch_scc1 L_h_np{j}')
                A(f'  v_mov_b32 {v(hD)}, {s(sA)}')
                A(f'  v_mov_b32 {v(hD+1)}, {s(sA+1)}')
                A(f'  s_mov_b32 {s(sT)}, {WSC + 256 * j}')
                A('  s_mov_b64 exec, 1')
                A(f'  buffer_store_dwordx2 {v(hD,2)}, {v(hP)}, {s(SW_,4)}, {s(sT)} offen sc1')
                A('  s_mov_b64 exec, -1')
                A(f'L_h_np{j}:')
                continue
            A(f'  s_mov_b32 {s(sT)}, {WSC + 256 * j}')
            A(f'  buffer_load_dwordx2 {v(hD,2)}, {v(hQ)}, {s(SW_,4)}, {s(sT)} offen')
            A(f'  v_mov_b32 {v(hD+2)}, {s(sT0+1)}')
            A('  s_waitcnt vmcnt(0)')
            A(f'  v_subrev_co_u32 {v(hD)}, vcc, {s(sT0)}, {v(hD)}')
            A(f'  v_subb_co_u32 {v(hD+1)}, vcc, {v(hD+1)}, {v(hD+2)}, vcc')
            A(f'  v_lshrrev_b32 {v(hD+2)}, 24, {v(hD)}')
            A(f'  v_or_b32 {v(hD+1)}, {v(hD+1)}, {v(hD+2)}')
            A(f'  v_cmp_eq_u32 vcc, 0, {v(hD+1)}')
            A(f'  v_cndmask_b32 {v(hD)}, 0, {v(hD)}, vcc')
            A(f'  s_and_b32 {s(sB)}, vcc_lo, 0xffff')
            A(f'  s_bcnt1_i32_b32 {s(sB)}, {s(sB)}')
            for r in (8, 4, 2, 1):
                A(f'  v_add_u32_dpp {v(hD)}, {v(hD)}, {v(hD)} row_ror:{r} row_mask:0xf bank_mask:0xf')
            A(f'  v_readfirstlane_b32 {s(sA)}, {v(hD)}')
            A(f'  s_sub_u32 {s(sT)}, {s(sOWN)}, {dead}')
            A(f'  s_mul_i32 {s(sT)}, {s(sT)}, {s(sB)}')
            A(f'  s_sub_i32 {s(sA)}, {s(sT)}, {s(sA)}')
            A(f'  s_max_i32 {s(sA)}, {s(sA)}, 0')
            A(f'  s_max_u32 {s(sB)}, {s(sB)}, 1')
            A(f'  s_mul_i32 {s(sB)}, {s(sB)}, {gain}')
            A(f'  v_cvt_f32_u32 {v(hD)}, {s(sB)}')
            A(f'  v_cvt_f32_u32 {v(hD+1)}, {s(sA)}')
            A(f'  v_rcp_f32 {v(hD)}, {v(hD)}')
            A(f'  v_fma_f32 {v(hD)}, {v(hD)}, {v(hD+1)}, 0.5')
            A(f'  v_cvt_u32_f32 {v(hD)}, {v(hD)}')
            A(f'  v_min_u32 {v(hD)}, 64, {v(hD)}')
            A(f'  v_readfirstlane_b32 {s(sA)}, {v(hD)}')
            A(f'  s_mul_i32 {s(sA)}, {s(sA)}, {W}')
            A(f'  s_sub_i32 {s(sT)}, {s(sUNT)}, {c - dly}')
            A(f'  s_max_i32 {s(sT)}, {s(sT)}, 0')
            A(f'  s_min_i32 {s(sT)}, {s(sT)}, {dly + W}')
            A(f'  s_sub_i32 {s(sA)}, {s(sA)}, {s(sT)}')
            A(f'  s_cmp_gt_i32 {s(sA)}, 0')
            A(f'  s_cselect_b32 {s(sT)}, {c + W}, 0')
            A(f'  s_cselect_b32 {s(sA)}, {s(sA)}, 0')
            A(f'  s_add_u32 {s(sUNT)}, {s(sT)}, {s(sA)}')
            A(f'  v_mov_b32 {v(hD)}, {s(sUNT)}')
            A(f'  v_mov_b32 {v(hA)}, {F_BST}')
            A(f'  ds_write_b32 {v(hA)}, {v(hD)}')
    wait_progress('v', PW, 8)
    A(f'  s_load_dwordx2 {s(sV0,2)}, {s(sDBG,2)}, {s(sFA)}')
    if safe: A('  s_mov_b32 s59, 0')
    A('L_h_votes:')
    A('  s_waitcnt lgkmcnt(0)')
    A(f'  s_lshr_b32 {s(sT)}, {s(sV0+1)}, 24')
    A(f'  s_cmp_eq_u32 {s(sT)}, {0 if novote else 64}')
    A('  s_cbranch_scc1 L_h_votes_done')
    if safe:
        A('  s_add_u32 s59, s59, 1')
        A('  s_cmp_gt_u32 s59, 2000')
        A('  s_cbranch_scc1 L_h_votes_done')
    A('  s_sleep 64')
    A(f'  s_mov_b64 {s(sV0,2)}, 0')
    A(f'  s_atomic_or_x2 {s(sV0,2)}, {s(sDBG,2)}, {s(sFA)} glc')
    A('  s_branch L_h_votes')
    A('L_h_votes_done:')
    A(f'  s_mov_b32 {s(sDEC)}, 0x80')
    for j in range(6):
        A(f'  s_bfe_u32 {s(sA)}, {s(sV0 + j // 4)}, {hex(0x80000 | (8 * (j % 4)))}')
        A(f'  s_cmp_gt_u32 {s(sA)}, 16')
        A(f'  s_cselect_b32 {s(sB)}, {1 << j}, 0')
        A(f'  s_or_b32 {s(sDEC)}, {s(sDEC)}, {s(sB)}')
        A(f'  s_sub_u32 {s(sA)}, {s(sA)}, {THR + 1}')
        A(f'  s_cmp_lt_u32 {s(sA)}, {32 - 2 * THR - 1}')
        A(f'  s_cselect_b32 {s(sB)}, 64, 0')
        A(f'  s_or_b32 {s(sDEC)}, {s(sDEC)}, {s(sB)}')
    if force >= 0:
        A(f'  s_mov_b32 {s(sDEC)}, {0x80 | force}')
    A(f'  s_mul_i32 {s(sA)}, {s(sRO)}, 63')
    A(f'  s_xor_b32 {s(sDEC)}, {s(sDEC)}, {s(sA)}')
    A(f'  v_mov_b32 {v(hA)}, {F_DEC}')
    A(f'  v_mov_b32 {v(hD)}, {s(sDEC)}')
    A(f'  ds_write_b32 {v(hA)}, {v(hD)}')
    stamp()
    A(f'  v_lshlrev_b32 {v(hO)}, 4, v0')
    if pf:
        for srd, nb in ((SKS, 24576), (SKZ, 24576), (SVS, 8192), (SVZ, 8192)):
            A(f'  s_mul_i32 {s(sA)}, s2, {nb}')
            for k in range(nb // 1024):
                if k % 4 == 0 and k: A(f'  s_add_u32 {s(sA)}, {s(sA)}, 4096')
                A(f'  s_waitcnt vmcnt({pf - 1})')
                A(f'  buffer_load_dwordx4 {v(hD,4)}, {v(hO)}, {s(srd,4)}, {s(sA)} offen offset:{(k % 4) * 1024}')
        A('  s_waitcnt vmcnt(0)')
    stamp()
    A(f'  s_load_dwordx2 {s(sNON,2)}, {s(sDBG,2)}, 8')
    A('L_h_getnonce:')
    A('  s_waitcnt lgkmcnt(0)')
    A(f'  s_cmp_lg_u64 {s(sNON,2)}, 0')
    A('  s_cbranch_scc1 L_h_gotnonce')
    A('  s_sleep 32')
    A(f'  s_atomic_or_x2 {s(sNON,2)}, {s(sDBG,2)}, 8 glc')
    A('  s_branch L_h_getnonce')
    A('L_h_gotnonce:')
    A(f'  s_lshr_b64 {s(sA,2)}, {s(sNON,2)}, 2')
    A(f'  v_mov_b32 {v(hA)}, {F_TAG}')
    A(f'  v_mov_b32 {v(hD)}, {s(sA)}')
    A(f'  ds_write_b32 {v(hA)}, {v(hD)}')
    checkpoints(64)
    A(f'  s_bitcmp1_b32 {s(sDEC)}, 6')
    A('  s_cbranch_scc1 L_h_skipa')
    A(f'  s_lshl_b32 {s(sFA)}, s2, 8')
    A(f'  s_add_u32 {s(sFA)}, {s(sFA)}, {WSF}')
    A(f'  s_xor_b32 {s(sFS)}, {s(sFA)}, 1024')
    A(f'  s_lshr_b32 {s(sX)}, {s(sDEC)}, 3')
    A(f'  s_xor_b32 {s(sX)}, {s(sX)}, {s(sDEC)}')
    A(f'  s_lshr_b32 {s(sT)}, {s(sPB)}, 4')
    A(f'  s_lshr_b32 {s(sOF)}, {s(sT)}, 5')
    A(f'  s_lshl_b32 {s(sOF)}, {s(sOF)}, 21')
    A(f'  s_add_u32 {s(sOF)}, {s(sOF)}, {WSX}')
    A(f'  s_and_b32 {s(sQD)}, {s(sT)}, 31')
    A(f'  s_add_u32 {s(sT)}, {s(sQD)}, {s(sRO)}')
    A(f'  s_lshl_b32 {s(sT)}, {s(sT)}, 10')
    A(f'  s_add_u32 {s(sME)}, {s(sOF)}, {s(sT)}')
    A(f'  s_xor_b32 {s(sPA)}, {s(sME)}, 1024')
    def pxor(k):
        h = k >> 2
        c = (h & 3) ^ (((h >> 2) & 1) * 17) ^ (((h >> 3) & 1) * 4)
        return (k << 15) | (c << 10)
    NW = NWU * 384 // 1024
    def reg(k): return hD + 4 * (k % 24)
    def export(lo, hi):
        for k in range(lo, hi): A(f'  ds_read_b128 {v(reg(k),4)}, {v(hO)} offset:{1024*k}')
        A('  s_waitcnt lgkmcnt(0)')
        for k in range(lo, hi):
            A(f'  s_xor_b32 {s(sT)}, {s(sME)}, {pxor(k)}')
            if not noexp: A(f'  buffer_store_dwordx4 {v(reg(k),4)}, {v(hO)}, {s(SW_,4)}, {s(sT)} offen {fl(xf)}')
    def imp(lo, hi):
        for k in range(lo, hi):
            A(f'  s_xor_b32 {s(sT)}, {s(sPA)}, {pxor(k)}')
            if not noimp: A(f'  buffer_load_dwordx4 {v(reg(k),4)}, {v(hO)}, {s(SW_,4)}, {s(sT)} offen sc1')
        A('  s_waitcnt vmcnt(0)')
        for k in range(lo, hi): A(f'  ds_write_b128 {v(hO)}, {v(reg(k),4)} offset:{1024*k}')
    def cond(bit, tag, fn):
        A(f'  s_bitcmp0_b32 {s(sX)}, {bit}')
        A(f'  s_cbranch_scc1 L_h_{tag}')
        fn()
        A(f'L_h_{tag}:')
    def handshake(tag, level):
        A(f'  s_add_u32 {s(sA)}, {s(sNON)}, {level}')
        A(f'  v_mov_b32 {v(h2)}, 0')
        A('  s_waitcnt vmcnt(0)')
        A(f'  v_mov_b32 {v(hD)}, {s(sA)}')
        A(f'  v_mov_b32 {v(hD+1)}, {s(sNON+1)}')
        A('  s_mov_b64 exec, 1')
        A(f'  buffer_store_dwordx2 {v(hD,2)}, {v(h2)}, {s(SW_,4)}, {s(sFA)} offen sc1')
        if safe: A('  s_mov_b32 s59, 0')
        A(f'L_h_flag{tag}:')
        A(f'  buffer_load_dwordx2 {v(hD+2,2)}, {v(h2)}, {s(SW_,4)}, {s(sFS)} offen sc1')
        A('  s_waitcnt vmcnt(0)')
        A(f'  v_readfirstlane_b32 {s(sB)}, {v(hD+2)}')
        A(f'  v_readfirstlane_b32 {s(sB+1)}, {v(hD+3)}')
        A(f'  s_sub_u32 {s(sB)}, {s(sB)}, {s(sA)}')
        A(f'  s_xor_b32 {s(sB+1)}, {s(sB+1)}, {s(sNON+1)}')
        A(f'  s_lshr_b32 {s(sB)}, {s(sB)}, 1')
        A(f'  s_or_b32 {s(sB)}, {s(sB)}, {s(sB+1)}')
        A(f'  s_cbranch_scc0 L_h_flag{tag}_done')
        if safe:
            A('  s_add_u32 s59, s59, 1')
            A('  s_cmp_gt_u32 s59, 2000')
            A(f'  s_cbranch_scc1 L_h_flag{tag}_done')
        A('  s_sleep 32')
        A(f'  s_branch L_h_flag{tag}')
        A(f'L_h_flag{tag}_done:')
        A('  s_mov_b64 exec, -1')
    wait_progress('a', 64, 32)
    stamp()
    export(0, NW)
    cond(0, 'e0', lambda: export(NW, 12))
    cond(1, 'e1', lambda: export(12, 24))
    handshake('a', 1)
    stamp()
    A(f'  s_bfe_u32 {s(sA)}, {s(sDEC)}, 0x10003')
    A(f'  s_mul_i32 {s(sA)}, {s(sA)}, 384')
    A(f'  v_lshrrev_b32 {v(h1)}, 3, v0')
    for k in range(NW):
        A(f'  v_add_u32 {v(h2)}, {8 * k}, {v(h1)}')
        A(f'  v_mul_u32_u24 {v(h2)}, 21846, {v(h2)}')
        A(f'  v_bfe_u32 {v(h2)}, {v(h2)}, 16, 1')
        A(f'  v_mul_u32_u24 {v(h3)}, 384, {v(h2)}')
        A(f'  v_sub_u32 {v(h3)}, {v(hO)}, {v(h3)}')
        A(f'  v_add_u32 {v(h3)}, {s(sA)}, {v(h3)}')
        A(f'  v_add_u32 {v(h3)}, {1024 * k}, {v(h3)}')
        A(f'  v_add_u32 {v(h2)}, {s(sQD)}, {v(h2)}')
        A(f'  v_lshrrev_b32 {v(hZ)}, 12, {v(h3)}')
        A(f'  v_xor_b32 {v(h2)}, {v(h2)}, {v(hZ)}')
        A(f'  v_lshrrev_b32 {v(hZ)}, 10, {v(h3)}')
        A(f'  v_lshl_add_u32 {v(h2)}, {v(hZ)}, 5, {v(h2)}')
        A(f'  v_and_b32 {v(h3)}, 1023, {v(h3)}')
        A(f'  v_lshl_add_u32 {v(h2)}, {v(h2)}, 10, {v(h3)}')
        if not noimp: A(f'  buffer_load_dwordx4 {v(reg(k),4)}, {v(h2)}, {s(SW_,4)}, {s(sOF)} offen sc1')
    A('  s_waitcnt vmcnt(0)')
    for k in range(NW): A(f'  ds_write_b128 {v(hO)}, {v(reg(k),4)} offset:{1024*k}')
    cond(0, 'i0', lambda: imp(NW, 12))
    cond(1, 'i1', lambda: imp(12, 24))
    stamp()
    A('L_h_skipa:')
    A(f'  s_lshr_b32 {s(sT)}, {s(sDEC)}, 4')
    A(f'  s_andn2_b32 {s(sX)}, {s(sX)}, {s(sT)}')
    A(f'  s_bitcmp0_b32 {s(sX)}, 2')
    A(f'  s_cselect_b32 {s(sT)}, 255, 64')
    A(f'  v_mov_b32 {v(hA)}, {F_IMP}')
    A(f'  v_mov_b32 {v(h2)}, {s(sT)}')
    A(f'  ds_write_b32 {v(hA)}, {v(h2)}')
    checkpoints(NF)
    A(f'  s_bitcmp0_b32 {s(sX)}, 2')
    A('  s_cbranch_scc1 L_h_all')
    wait_progress('b', NF, 32)
    stamp()
    export(24, 36)
    handshake('b', 2)
    stamp()
    imp(24, 36)
    stamp()
    A(f'  v_mov_b32 {v(hA)}, {F_IMP}')
    A(f'  v_mov_b32 {v(h2)}, 255')
    A(f'  ds_write_b32 {v(hA)}, {v(h2)}')
    A('L_h_all:')
    checkpoints(999)
    A('  s_waitcnt lgkmcnt(0)')
    if stamps or tl:
        A('  s_branch L_fin')
    else:
        A('  s_endpgm')
    body = pad(L)

    nva = (nv + 7) // 8 * 8
    out = HDR + f'; @launch grid=(256,1,1) block=({64*(W+1)},1,1) lds={lds}\n'
    out += '.amdgcn_target "amdgcn-amd-amdhsa--gfx950"\n.text\n'
    out += f'.globl {NAME}\n.p2align 8\n.type {NAME},@function\n'
    out += '\n'.join(body) + '\n'
    out += '.section .rodata,"a"\n'
    for nm, nvv, nss in ((NAME, nva, 102),):
        out += f'''.p2align 6
.amdhsa_kernel {nm}
  .amdhsa_next_free_vgpr {nvv}
  .amdhsa_next_free_sgpr {nss}
  .amdhsa_accum_offset {nvv}
  .amdhsa_group_segment_fixed_size 0
  .amdhsa_kernarg_size 80
  .amdhsa_user_sgpr_count 2
  .amdhsa_user_sgpr_kernarg_segment_ptr 1
  .amdhsa_system_sgpr_workgroup_id_x 1
  .amdhsa_float_denorm_mode_32 3
.end_amdhsa_kernel
'''
    return out

if __name__ == '__main__':
    kw = {}
    for x in sys.argv[2:]:
        k, val = x.split('=')
        kw[k] = int(val) if val.lstrip('-').isdigit() else val
    open(sys.argv[1], 'w').write(gen(**kw))
```

```python
import sys, os
sys.path.insert(0, os.path.dirname(os.path.abspath(__file__)))
from asmlib import pad
NAME = 'standalone__kv_cache_quant_int4_int2_kv_with_per_channel_or_per_token_scales__sampling_kernel'
HEAD = 4096 * 768
TOTAL = 256 * HEAD
REC = 5120
WSOFF = 1 << 20
WSX = 8 << 20
WSC = 7 << 20
WSF = (7 << 20) + (1 << 16)
IMG = 96 * 384
WSEND = WSX + (16 << 20)
OOB = 0x7ffffff0
HDR = open(os.path.join(os.path.dirname(os.path.abspath(__file__)), 'header.txt')).read()
assert all(((32 * c + 1) * 21846) >> 16 == (32 * c + 1) // 3 for c in range(25))
assert all((c * 43) >> 8 == c // 6 for c in range(24))

class Alloc:
    def __init__(self, start): self.n = start
    def __call__(self, k, align=1):
        self.n = (self.n + align - 1) // align * align
        r = self.n; self.n += k
        return r

def v(r, k=1): return f'v{r}' if k == 1 else f'v[{r}:{r+k-1}]'
def s(r, k=1): return f's{r}' if k == 1 else f's[{r}:{r+k-1}]'

def merge(main, side, every):
    out = []; side = list(side); c = 0
    for m in main:
        out.append(m); c += 1
        if side and c % every == 0: out.append(side.pop(0))
    return out + side

def combine(A, n, ST, AC, npiece, X0, X1, OUT):
    A(f'  v_min_f32 {v(X0)}, {v(ST)}, {v(ST+2)}')
    for w in range(2, n): A(f'  v_min_f32 {v(X0)}, {v(X0)}, {v(ST+2*w)}')
    for w in range(n): A(f'  v_sub_f32 {v(ST+2*w)}, {v(X0)}, {v(ST+2*w)}')
    for w in range(n): A(f'  v_exp_f32 {v(ST+2*w)}, {v(ST+2*w)}')
    A(f'  v_mul_f32 {v(X1)}, {v(ST)}, {v(ST+1)}')
    for w in range(1, n): A(f'  v_fma_f32 {v(X1)}, {v(ST+2*w)}, {v(ST+2*w+1)}, {v(X1)}')
    for i in range(npiece):
        for j in range(4):
            A(f'  v_mul_f32 {v(OUT(4*i+j))}, {v(ST)}, {v(AC+4*i+j)}')
            for w in range(1, n):
                A(f'  v_fma_f32 {v(OUT(4*i+j))}, {v(ST+2*w)}, {v(AC+4*(npiece*w+i)+j)}, {v(OUT(4*i+j))}')

def gen(D=11, W=2, stamps=False, sf='-', stf='-', tl=0, NWU=8, NS=3, pf=8, force=-1, THR=6, safe=0, PW=0, xf='sc1', noexp=0, noimp=0, DC=15, U=2, gain=22, dly=4, dead=0, diagpad=0, diagref=0, ldsz=62464, pfw=16, PSK=14, vsl=56, cpf='-', fullpoll=1, cpre=1, impf='sc1', xdep=0, idep=4, ia=72, ib=104, tlb=0, DT=4, gth=22, deadt=50, cp0=12, step=8, last=186, tev=0):
    R = 11 * U; NST = 33; NF = 96
    DN = D; D = DC = DC or D
    assert DN <= D <= R and NWU % 8 == 0 and W in (2, 4)
    PW = PW or NWU - 2 * W
    fl = lambda x: x.replace('-', '').replace('+', ' ')
    sf, stf = fl(sf), fl(stf)
    L = []
    A = L.append
    va = Alloc(1)
    RING = va(4 * R, 4); VO = va(4)
    DUP = va(1); DOWN = va(1); DCON = va(1); ICV = va(1); TU = va(1)
    VVS = va(1); VL1 = va(1); VL2 = va(1); VBP = va(1); VFL = va(1); VST = va(1); VPR = va(1)
    VOOB = va(1); VBA = va(1); VBS = va(1)
    T = va(4, 2); ZN = va(1); SN = va(1); ZC = va(1); SC = va(1); ZS = va(2, 2)
    LG = va(6, 4); ACC = va(12, 4); M = va(1); NB = va(2, 2); LS = NB + 1
    X0 = va(2, 2); X1 = X0 + 1; AL = va(1); ALQ = va(1); E = va(11); PP = va(6); TL = va(1)
    base = va.n
    QB = va(6, 4); QN = va(6, 2); KSR = va(6, 2); KZR = va(6, 2); KS = va(12, 2); KZ = va(12, 2); KA = va(6, 4); SD = va(4, 4); S = va(2, 2)
    IUP = va(1); IOWN = va(1); ICON = va(1); VKS0 = va(1); VKS = va(1); VQ = va(1); VNI = va(1)
    kend = va.n
    va.n = base
    AJ = va(16, 4); AK = va(8, 2); TV = va(12, 2); BV = va(48, 4)
    nv = max(va.n, kend)
    sRO, sPB = 4, 5
    SK, SV, SI, SKS, SKZ, SVS, SVZ, SQ, SW_ = 8, 12, 16, 20, 24, 28, 32, 36, 40
    PT = 44
    sREC, sL0, sL10, sM0, sM10, sLOW = 44, 48, 50, 52, 54, 56
    sCUR, sNXT, sSO, sF, sMSK, sL2E, sTL, s768, sSCL, sT = 60, 61, 62, 64, 65, 66, 67, 63, 68, 70
    sMJ = 72
    sDBG, sWS = 80, 82
    sQ3, sC, sQC, sCC, sHC, sHN, sDIV, sSH = 84, 85, 86, 87, 88, 89, 90, 91
    sDEC, sLIM, sGATE, sSEG = 96, 97, 99, 100
    sU = 92
    sBIG, sSM = 92, 94
    SEG = W * 3072 + W * 32
    LDS_ACC = IMG
    LDS_F = LDS_ACC + 4 * SEG
    F_DEC, F_IMP, F_BST, F_TAG, F_PRG = LDS_F, LDS_F + 4, LDS_F + 8, LDS_F + 12, LDS_F + 16
    F_BST = F_PRG + 16; F_THR = F_PRG + 32
    cps = True
    lds = ldsz
    assert LDS_F + 64 <= lds

    A(f'{NAME}:')
    A('  s_cmp_ge_u32 s2, 256')
    A('  s_cbranch_scc1 L_end')
    A(f'  s_load_dwordx16 {s(PT,16)}, s[0:1], 0')
    A(f'  s_load_dwordx4 {s(sDBG,4)}, s[0:1], 64')
    if stamps or diagpad:
        A('  s_memrealtime s[6:7]')
    A('  v_lshrrev_b32 v1, 6, v0')
    A('  v_and_b32 v0, 63, v0')
    A('  v_readfirstlane_b32 s3, v1')
    A(f'  s_bfe_u32 {s(sRO)}, s2, 0x10002')
    A(f'  s_lshr_b32 {s(sPB)}, s2, 3')
    A(f'  s_lshl_b32 {s(sPB)}, {s(sPB)}, 2')
    A(f'  s_and_b32 {s(sT)}, s2, 3')
    A(f'  s_add_u32 {s(sPB)}, {s(sPB)}, {s(sT)}')
    A(f'  s_lshl_b32 {s(sPB)}, {s(sPB)}, 5')
    SRDS = ((SKS, PT + 6, 256 * 24576), (SKZ, PT + 8, 256 * 24576), (SVS, PT + 10, 256 * 8192), (SVZ, PT + 12, 256 * 8192),
            (SK, PT + 2, TOTAL), (SQ, PT, 256 * 1536), (SI, PT + 2, TOTAL), (SV, PT + 4, TOTAL), (SW_, sWS, WSEND))
    for srd, p, nb in SRDS:
        A(f'  s_mov_b32 {s(srd+2)}, {nb}')
        A(f'  s_mov_b32 {s(srd+3)}, 0x20000')
    def make_srds(lo=0, hi=9):
        if lo == 0: A('  s_waitcnt lgkmcnt(0)')
        for srd, p, nb in SRDS[lo:hi]:
            A(f'  s_mov_b32 {s(srd)}, {s(p)}')
            A(f'  s_and_b32 {s(srd+1)}, {s(p+1)}, 0xffff')
    A(f'  s_cmp_eq_u32 s3, {W}')
    A('  s_cbranch_scc1 L_helper')

    cls, a, g, n = T, T + 1, T + 2, T + 3
    A(f'  v_and_b32 {v(cls)}, 3, v0')
    A(f'  v_bfe_u32 {v(a)}, v0, 2, 2')
    A(f'  v_lshrrev_b32 {v(g)}, 4, v0')
    A(f'  v_and_b32 {v(n)}, 15, v0')
    def stream_consts(x, up, own, con, lanepart):
        A(f'  v_and_b32 {v(own)}, 2, {v(x)}')
        A(f'  v_lshlrev_b32 {v(up)}, 5, {v(own)}')
        A(f'  v_add_u32 {v(up)}, 129, {v(up)}')
        A(f'  v_and_b32 {v(X1)}, 1, {v(x)}')
        A(f'  v_lshl_add_u32 {v(own)}, {v(X1)}, 2, {v(own)}')
        A(f'  v_mul_u32_u24 {v(X1)}, {43 * 768}, {v(X1)}')
        A(f'  v_add_u32 {v(con)}, {v(lanepart)}, {v(X1)}')
        A(f'  v_subrev_u32 {v(con)}, {43 * 768}, {v(con)}')
    A(f'  v_lshlrev_b32 {v(X0)}, 4, {v(cls)}')
    A(f'  v_lshl_add_u32 {v(X0)}, {v(g)}, 6, {v(X0)}')
    A(f'  v_lshrrev_b32 {v(VKS0)}, 1, {v(X0)}')
    stream_consts(a, IUP, IOWN, ICON, X0)
    A(f'  v_mul_u32_u24 {v(X1)}, 384, {v(a)}')
    A(f'  v_add_u32 {v(VQ)}, {v(X1)}, {v(VKS0)}')
    A(f'  v_mov_b32 {v(VOOB)}, {OOB}')
    A(f'  s_mov_b32 {s(sDIV)}, 0xaaaaaaab')
    A(f'  s_mov_b32 {s(sSH)}, 0x492492')
    A(f'  s_movk_i32 {s(s768)}, 768')
    def slot(k): return RING + 4 * (k % R)
    def main_load(k, srd, so):
        ss, i = divmod(k % NST, 3)
        r, k0 = (0, 0) if ss == 0 else (1, 1) if ss <= 5 else (2, 6) if ss <= 9 else (3, 10)
        return f'  buffer_load_dwordx4 {v(slot(k),4)}, {v(VO+r)}, {s(srd,4)}, {s(so)} offen offset:{768*(ss-k0) + 256*i} nt'
    def kscale_loads():
        r = [f'  s_mul_i32 {s(sSO)}, {s(sQ3)}, 1536']
        for i in range(3):
            r.append(f'  buffer_load_dwordx2 {v(KSR+2*i,2)}, {v(VKS)}, {s(SKS,4)}, {s(sSO)} offen offset:{128*i} {sf}')
            r.append(f'  buffer_load_dwordx2 {v(KZR+2*i,2)}, {v(VKS)}, {s(SKZ,4)}, {s(sSO)} offen offset:{128*i} {sf}')
        return r
    def vscale_loads():
        return [f'  s_lshl_b32 {s(sSO)}, {s(sQ3)}, 9',
                f'  v_lshl_add_u32 {v(VVS)}, {v(TU)}, 1, {v(ICV)}',
                f'  buffer_load_short_d16_hi {v(ZN)}, {v(VVS)}, {s(SVZ,4)}, {s(sSO)} offen {sf}',
                f'  buffer_load_short_d16_hi {v(SN)}, {v(VVS)}, {s(SVS,4)}, {s(sSO)} offen {sf}']
    def q_loads():
        return [f'  s_mul_i32 {s(sT)}, {s(sHN)}, 1536'] + \
               [f'  buffer_load_dwordx2 {v(QN+2*i,2)}, {v(VQ)}, {s(SQ,4)}, {s(sT)} offen offset:{128*i} {sf}' for i in range(3)]
    def short_masks(own, c, m0, m10, low):
        A(f'  v_add_u32 {v(X0)}, {s(c)}, {v(own)}')
        A(f'  v_lshrrev_b32 {v(X1)}, {v(X0)}, {s(sSH)}')
        A(f'  v_and_b32 {v(X1)}, 1, {v(X1)}')
        A(f'  v_cmp_eq_u32 {s(m10,2)}, 1, {v(X1)}')
        A(f'  s_and_b64 {s(m0,2)}, {s(m10,2)}, {low}')
        A(f'  s_andn2_b64 {s(m10,2)}, {s(m10,2)}, {low}')
    def map_unit(f, isv):
        A(f'  s_andn2_b32 {s(sT)}, {s(f)}, 1')
        A(f'  s_or_b32 {s(sT)}, {s(sT)}, {s(sRO)}')
        A(f'  s_lshr_b32 {s(sT+1)}, {s(f)}, 5')
        A(f'  s_lshr_b32 {s(sC)}, {s(sDEC)}, {s(sT+1)}')
        if isv: A(f'  s_lshr_b32 {s(sC)}, {s(sC)}, 3')
        A(f'  s_cmp_lt_u32 {s(f)}, {s(sLIM)}')
        A(f'  s_cselect_b32 {s(sT)}, {s(sT)}, {s(f)}')
        A(f'  s_cselect_b32 {s(sC)}, {s(f)}, {s(sC)}')
        A(f'  s_and_b32 {s(sC)}, {s(sC)}, 1')
        A(f'  s_mul_i32 {s(sT+1)}, {s(sT+1)}, {4096 - 32}')
        A(f'  s_add_u32 {s(sT)}, {s(sT)}, {s(sT+1)}')
        A(f'  s_add_u32 {s(sT)}, {s(sT)}, {s(sPB)}')
        A(f'  s_mul_hi_u32 {s(sQ3)}, {s(sT)}, {s(sDIV)}')
        A(f'  s_lshr_b32 {s(sQ3)}, {s(sQ3)}, 1')
        A(f'  s_mul_i32 {s(sT+1)}, {s(sQ3)}, 3')
        A(f'  s_sub_u32 {s(sT)}, {s(sT)}, {s(sT+1)}')
        A(f'  s_lshl3_add_u32 {s(sC)}, {s(sT)}, {s(sC)}')
        A(f'  s_mul_i32 {s(sNXT)}, {s(sQ3)}, 196608')
        A(f'  s_lshr_b32 {s(sHN)}, {s(sQ3)}, 4')
        A(f'  s_lshl_b32 {s(sT)}, {s(sC)}, 5')
        A(f'  v_add_u32 {v(TU)}, {s(sT)}, {v(DUP if isv else IUP)}')
        A(f'  v_mul_u32_u24 {v(TU)}, 21846, {v(TU)}')
        A(f'  v_lshrrev_b32 {v(TU)}, 16, {v(TU)}')
        short_masks(DOWN if isv else IOWN, sC, sM0, sM10, s(sLOW + 2 * isv, 2))
        if not isv:
            A(f'  v_mul_u32_u24 {v(X0)}, 43, {v(X0)}')
            A(f'  v_lshrrev_b32 {v(X0)}, 8, {v(X0)}')
            A(f'  v_mul_u32_u24 {v(X0)}, 384, {v(X0)}')
            A(f'  v_add_u32 {v(VKS)}, {v(X0)}, {v(VKS0)}')
    def offsets(con):
        A(f'  v_mad_u32_u24 {v(VO)}, {v(TU)}, {s(s768)}, {v(con)}')
        A(f'  v_add_u32 {v(VO+1)}, 768, {v(VO)}')
        A(f'  v_add_u32 {v(VO+2)}, {6 * 768}, {v(VO)}')
        A(f'  v_add_u32 {v(VO+3)}, {10 * 768}, {v(VO)}')
        A(f'  v_cndmask_b32 {v(VO)}, {v(VO)}, {v(VOOB)}, {s(sM0,2)}')
        A(f'  v_cndmask_b32 {v(VO+3)}, {v(VO+3)}, {v(VOOB)}, {s(sM10,2)}')
    def stamp():
        if tl:
            A(f'  s_memrealtime {s(sT,2)}')
            A('  s_waitcnt lgkmcnt(0)')
            A(f'  s_min_u32 m0, {s(sTL)}, 63')
            A(f'  v_writelane_b32 {v(TL)}, {s(sT)}, m0')
            A(f'  s_add_u32 {s(sTL)}, {s(sTL)}, 1')
    def reset_state():
        for k in range(12): A(f'  v_mov_b32 {v(ACC+k)}, 0')
        A(f'  v_mov_b32 {v(M)}, 0xff800000')
        A(f'  v_mov_b32 {v(NB)}, 0x7f800000')
        A(f'  v_mov_b32 {v(LS)}, 0')
    A(f'  s_mov_b32 {s(sF)}, s3')
    A(f'  s_mov_b32 {s(sLIM)}, {NWU}')
    A(f'  s_mov_b32 {s(sGATE)}, {NWU}')
    A(f'  s_mov_b32 {s(sDEC)}, 0')
    A(f'  v_lshlrev_b32 {v(ZC)}, 4, v0')
    pfl = []
    if pfw:
        sPK, sPV = sQC, sHC
        A(f'  s_mul_i32 {s(sT)}, s2, {W}')
        A(f'  s_add_u32 {s(sT)}, {s(sT)}, s3')
        A(f'  s_mul_i32 {s(sPV)}, {s(sT)}, {8192 // W}')
        A(f'  s_mul_i32 {s(sPK)}, {s(sT)}, {24576 // W}')
        line = lambda srd, so, k: f'  buffer_load_dwordx4 {v(ACC,4)}, {v(ZC)}, {s(srd,4)}, {s(so)} offen offset:{(k % 4) * 1024}'
        for k in range(24 // W):
            if k % 4 == 0 and k: pfl.append(f'  s_add_u32 {s(sPK)}, {s(sPK)}, 4096')
            pfl += [line(SKS, sPK, k), line(SKZ, sPK, k)]
            if k < 8 // W: pfl += [line(SVS, sPV, k), line(SVZ, sPV, k)]
    nissued = [0]
    def issue_pf(n):
        while pfl and n > 0:
            x = pfl.pop(0)
            if 'buffer_load' in x:
                if nissued[0] >= pfw: A(f'  s_waitcnt vmcnt({pfw - 1})')
                nissued[0] += 1; n -= 1
            A(x)
    make_srds(0, 4)
    issue_pf(min(pfw, 8))
    make_srds(4, 9)
    A(f'  s_mov_b32 {s(sLOW)}, 0x0f0f0f0f')
    A(f'  s_mov_b32 {s(sLOW+1)}, 0x0f0f0f0f')
    A(f'  s_mov_b32 {s(sLOW+2)}, 0xffff')
    A(f'  s_mov_b32 {s(sLOW+3)}, 0xffff')
    map_unit(sF, 0)
    offsets(ICON)
    A(f'  s_mov_b32 {s(sCUR)}, {s(sNXT)}')
    if pfw:
        for x in q_loads(): A(x)
        A(main_load(0, SK, sCUR))
        issue_pf(pfw - nissued[0])
        A('  s_barrier')
        issue_pf(99)
        for x in kscale_loads(): A(x)
        for k in range(1, D):
            A(f'  s_waitcnt vmcnt({max(min(pfw, DN) - 1 + 6, k - 1 + 6)})')
            A(main_load(k, SK, sCUR))
    else:
        for x in kscale_loads(): A(x)
        for x in q_loads(): A(x)
        for k in range(D): A(main_load(k, SK, sCUR))
    A(f'  s_mov_b32 {s(sHC)}, {s(sHN)}')
    A('  s_mov_b64 vcc, 0')
    A(f'  v_lshlrev_b32 {v(X0)}, 4, {v(n)}')
    stream_consts(g, DUP, DOWN, DCON, X0)
    A(f'  v_and_b32 {v(X1)}, 1, {v(g)}')
    A(f'  v_mul_u32_u24 {v(X1)}, 86, {v(X1)}')
    A(f'  v_lshl_add_u32 {v(ICV)}, {v(n)}, 1, {v(X1)}')
    A(f'  v_subrev_u32 {v(ICV)}, 86, {v(ICV)}')
    A(f'  v_lshlrev_b32 {v(VBP)}, 4, {v(g)}')
    A(f'  v_lshrrev_b32 {v(X0)}, 2, v0')
    A(f'  s_mul_i32 {s(sT)}, s3, 384')
    A(f'  v_lshl_add_u32 {v(VL1)}, {v(X0)}, 4, {s(sT)}')
    A(f'  v_lshl_add_u32 {v(VL2)}, {v(X0)}, 3, {s(sT)}')
    A(f'  s_mul_i32 {s(sT)}, s3, 3072')
    A(f'  s_add_u32 {s(sT)}, {s(sT)}, {LDS_ACC}')
    A(f'  v_lshl_add_u32 {v(VFL)}, v0, 4, {s(sT)}')
    A(f'  s_lshl_b32 {s(sT)}, s3, 5')
    A(f'  s_add_u32 {s(sT)}, {s(sT)}, {LDS_ACC + W * 3072}')
    A(f'  v_lshl_add_u32 {v(VST)}, {v(a)}, 3, {s(sT)}')
    A(f'  s_lshl_b32 {s(sT)}, s3, 2')
    A(f'  s_add_u32 {s(sT)}, {s(sT)}, {F_PRG}')
    A(f'  v_mov_b32 {v(VPR)}, {s(sT)}')
    A(f'  v_lshrrev_b32 {v(VBA)}, 5, v0')
    A(f'  v_mul_u32_u24 {v(VBA)}, {F_THR - F_BST}, {v(VBA)}')
    A(f'  s_lshl2_add_u32 {s(sT)}, s3, {F_BST}')
    A(f'  v_add_u32 {v(VBA)}, {s(sT)}, {v(VBA)}')
    A(f'  v_mov_b32 {v(ZN)}, 0')
    A(f'  v_mov_b32 {v(SN)}, 0')
    A(f'  v_mov_b32 {v(VNI)}, 0xff800000')
    A(f'  s_mov_b32 {s(sMSK)}, 0xffff0000')
    A(f'  s_mov_b32 {s(sL2E)}, 0x3fb8aa3b')
    for h in range(2):
        A(f'  s_mov_b32 {s(sSCL+h)}, {hex(0x3d93cd3a + (22 << 23))}')
        A(f'  s_mov_b32 {s(sBIG+h)}, 0x7f000000')
        A(f'  s_mov_b32 {s(sSM+h)}, {hex((127 - 22) << 23)}')
    for j in range(4):
        A(f'  s_mov_b32 {s(sMJ+2*j)}, {hex(0x11111111 << j)}')
        A(f'  s_mov_b32 {s(sMJ+2*j+1)}, {hex(0x11111111 << j)}')
        A(f'  s_mov_b32 {s(sREC+j)}, 0')
    A(f'  s_mov_b32 {s(sSEG)}, 0')
    if pfw: A(f'  s_waitcnt vmcnt({D - 1})')
    reset_state()
    if tl:
        A(f'  s_mov_b32 {s(sTL)}, 0')
        A(f'  v_mov_b32 {v(TL)}, 0')
    if not pfw: A('  s_barrier')

    PSMALL = 3
    late = (D == R)
    SW = NST - D
    assert PSMALL < SW and 3 <= PSK < SW
    stubs = []
    sTH = 98
    def wait_step(k, nsmall, tag, PSMALL):
        cnt = lambda d: d - 1 + (nsmall if k - d <= PSMALL < k else 0)
        if k == 2 and tev:
            A(f'  s_mov_b32 {s(sTH)}, vcc_hi')
            A('  s_mov_b32 vcc_hi, 0')
        if tev and k >= 2 and (k - 2) % tev == 0:
            A(f'  s_cmp_lg_u32 {s(sTH)}, 0')
            A(f'  s_cbranch_scc1 L_{tag}x')
            A(f'L_{tag}t:')
            stubs.extend([f'L_{tag}x:', f'  s_waitcnt vmcnt({cnt(DT)})', f'  s_branch L_{tag}t'])
        A(f'  s_waitcnt vmcnt({cnt(D)})')
        A(f'  s_cbranch_vccnz L_{tag}')
        A(f'  s_waitcnt vmcnt({cnt(DN)})')
        A(f'L_{tag}:')
    def dequant(X, src, z, sc, zmod, smod):
        r = [f'  v_pk_fma_f32 {v(X+2*h,2)}, {v(src+2*h,2)}, {s(sBIG,2)}, {z[h]} {zmod}neg_lo:[0,0,1] neg_hi:[0,0,1]' for h in range(2)]
        r2 = [f'  v_cvt_pk_bf16_f32 {v(X+j)}, 0, {v(X+j)}' for j in range(4)]
        r2 += [f'  v_pk_mul_f32 {v(X+2*h,2)}, {v(X+2*h,2)}, {sc[h]} {smod}'.rstrip() for h in range(2)]
        return r, r2
    def kreduce(ss):
        d = S + (ss & 1)
        q = lambda j: f'quad_perm:[{j},{j},{j},{j}] row_mask:0xf bank_mask:0xf'
        r = [f'  v_mov_b32_dpp {v(X0)}, {v(SD)} {q(0)}',
             f'  v_mov_b32_dpp {v(X1)}, {v(SD+2)} {q(2)}',
             f'  v_add_f32_dpp {v(X0)}, {v(SD+1)}, {v(X0)} {q(1)}',
             f'  v_add_f32_dpp {v(X1)}, {v(SD+3)}, {v(X1)} {q(3)}',
             f'  v_add_f32 {v(d)}, {v(X0)}, {v(X1)}']
        if ss == 0: r.append(f'  v_cndmask_b32 {v(d)}, {v(d)}, {v(VNI)}, {s(sL0,2)}')
        if ss == 10: r.append(f'  v_cndmask_b32 {v(d)}, {v(d)}, {v(VNI)}, {s(sL10,2)}')
        if ss & 1 or ss == 10:
            r += [f'  v_cvt_pk_bf16_f32 {v(S)}, 0, {v(S)}',
                  f'  v_cvt_pk_bf16_f32 {v(S+1)}, 0, {v(S+1)}',
                  f'  v_pk_mul_f32 {v(S,2)}, {v(S,2)}, {s(sSCL,2)}',
                  f'  v_cvt_pk_bf16_f32 {v(LG+(ss>>1))}, {v(S)}, {v(S+1)}']
        return r
    def lds_word(dst, addr):
        A(f'  v_mov_b32 {v(X0)}, {addr}')
        A(f'  ds_read_b32 {v(X0)}, {v(X0)}')
        A('  s_waitcnt lgkmcnt(0)')
        A(f'  v_readfirstlane_b32 {s(dst)}, {v(X0)}')

    mf32 = f'  v_mfma_f32_16x16x32_bf16 {v(SD,4)}, {v(KA,4)}, {v(QB,4)}, 0'
    mf16 = f'  v_mfma_f32_16x16x16_bf16 {v(SD,4)}, {v(KA+4,2)}, {v(QB+4,2)}, {v(SD,4)}'
    def k_unit(u):
        o = NST * u
        if u == 0: stamp()
        short_masks(DOWN, sC, sL0, sL10, s(sLOW + 2, 2))
        A(f'  s_add_u32 {s(sF)}, {s(sF)}, {W}')
        if cps: A(f'  ds_read_b32 {v(VBS)}, {v(VBA)}')
        for k in range(NST):
            ss, i = divmod(k, 3)
            if cps and k == 1:
                A('  s_waitcnt lgkmcnt(0)')
                A(f'  s_sub_u32 {s(sT)}, {s(sF)}, {W}')
                A(f'  v_cmp_lt_u32 vcc, {s(sT)}, {v(VBS)}')
            if k == SW and u < U - 1: offsets(ICON)
            if k == SW and u == U - 1:
                A(f'  s_cmp_lt_u32 {s(sF)}, {NF}')
                A(f'  s_cbranch_scc1 L_k_keep{u}')
                A(f'  s_bitcmp1_b32 {s(sDEC)}, 6')
                A(f'  s_cselect_b32 {s(sLIM)}, 255, 0')
                A(f'  v_mov_b32 {v(E)}, {v(X0)}')
                A(f'  v_mov_b32 {v(E+1)}, {v(X1)}')
                map_unit(3, 1)
                A(f'  v_mov_b32 {v(X0)}, {v(E)}')
                A(f'  v_mov_b32 {v(X1)}, {v(E+1)}')
                A(f'  s_mov_b32 {s(SI)}, {s(SV)}')
                A(f'  s_mov_b32 {s(SI+1)}, {s(SV+1)}')
                for x in vscale_loads(): A(x)
                A(f'  v_mov_b32 {v(ICON)}, {v(DCON)}')
                A(f'L_k_keep{u}:')
                offsets(ICON)
            lds_ = [main_load(o + k + D, SK, sCUR) if k < SW else main_load(o + k + D, SI, sNXT)]
            wait_step(k, 6, f'kw{u}_{k}', PSK)
            if not late:
                for x in lds_: A(x)
            if i == 2: A(mf32)
            if i == 0 and ss > 0: A(mf16)
            if ss == 0:
                for raw, dst in ((KZR, KZ), (KSR, KS)):
                    for h in range(2):
                        A(f'  v_lshlrev_b32 {v(dst+4*i+2*h)}, 16, {v(raw+2*i+h)}')
                        A(f'  v_and_b32 {v(dst+4*i+2*h+1)}, {s(sMSK)}, {v(raw+2*i+h)}')
                for h in range(2):
                    A(f'  v_pk_mul_f32 {v(KZ+4*i+2*h,2)}, {v(KZ+4*i+2*h,2)}, {s(sSM,2)}')
                    A(f'  v_mov_b32 {v(QB+2*i+h)}, {v(QN+2*i+h)}')
            c, rest = dequant(T, slot(o + k), (v(KZ+4*i,2), v(KZ+4*i+2,2)), (v(KS+4*i,2), v(KS+4*i+2,2)), '', '')
            for x in c: A(x)
            if late:
                for x in lds_: A(x)
            if k == PSK:
                A(f'  s_cmp_lt_u32 {s(sF)}, {s(sGATE)}')
                A(f'  s_cbranch_scc1 L_k_known{u}')
                A(f'L_k_spin{u}:')
                lds_word(sDEC, F_DEC)
                A(f'  s_cmp_eq_u32 {s(sDEC)}, 0')
                A(f'  s_cbranch_scc1 L_k_spin{u}')
                A(f'  s_mov_b32 {s(sGATE)}, -1')
                A(f'  s_bitcmp1_b32 {s(sDEC)}, 6')
                A(f'  s_cselect_b32 {s(sLIM)}, 255, {s(sLIM)}')
                A(f'L_k_known{u}:')
                map_unit(sF, 0)
                A(f'  s_cmp_eq_u32 {s(sHN)}, {s(sHC)}')
                A(f'  s_cbranch_scc1 L_k_sameq{u}')
                for x in q_loads(): A(x)
                A(f'  s_mov_b32 {s(sHC)}, {s(sHN)}')
                A(f'L_k_sameq{u}:')
                for x in kscale_loads(): A(x)
            rest += [f'  v_cvt_pk_bf16_f32 {v(KA+2*i)}, {v(T)}, {v(T+1)}',
                     f'  v_cvt_pk_bf16_f32 {v(KA+2*i+1)}, {v(T+2)}, {v(T+3)}']
            if i == 1 and ss > 0:
                r = kreduce(ss - 1)
                rest = r[:2] + rest[:2] + r[2:4] + rest[2:4] + r[4:5] + rest[4:]
                pend = r[5:]
            elif i == 2 and ss > 0:
                rest = merge(rest, pend, 1)
            for x in rest: A(x)
        A(f'  s_mov_b32 {s(sCUR)}, {s(sNXT)}')
        A(f'  v_mov_b32 {v(AL)}, {s(sF)}')
        A(mf16)
        A(f'  ds_write_b128 {v(VL1)}, {v(LG,4)}')
        A(f'  v_add_u32 {v(VL1)}, {384 * W}, {v(VL1)}')
        for x in kreduce(10): A(x)
        A(f'  ds_write_b64 {v(VL2)}, {v(LG+4,2)} offset:256')
        A(f'  ds_write_b32 {v(VPR)}, {v(AL)}')
        A(f'  v_add_u32 {v(VL2)}, {384 * W}, {v(VL2)}')
    A('L_k:')
    for u in range(U): k_unit(u)
    A(f'  s_cmp_lt_u32 {s(sF)}, {NF}')
    A('  s_cbranch_scc1 L_k')

    def flush():
        A(f'  v_mov_b32 {v(X1)}, {v(LS)}')
        A(f'  v_permlane32_swap_b32 {v(LS)}, {v(X1)}')
        A(f'  v_add_f32 {v(LS)}, {v(LS)}, {v(X1)}')
        A(f'  v_mov_b32 {v(X1)}, {v(LS)}')
        A(f'  v_permlane16_swap_b32 {v(LS)}, {v(X1)}')
        A(f'  v_add_f32 {v(LS)}, {v(LS)}, {v(X1)}')
        A(f'  ds_write_b64 {v(VST)}, {v(NB,2)}')
        for i in range(3):
            A(f'  ds_write_b128 {v(VFL)}, {v(ACC+4*i,4)} offset:{1024*i}')
        A(f'  s_and_b32 {s(sT)}, {s(sQC)}, 15')
        A(f'  s_cmp_ge_u32 {s(sT)}, 12')
        A(f'  s_cselect_b32 {s(sT)}, 2, 0')
        A(f'  s_and_b32 {s(sT+1)}, {s(sCC)}, 1')
        A(f'  s_bitcmp1_b32 {s(sDEC)}, 6')
        A(f'  s_cselect_b32 {s(sT+1)}, {s(sRO)}, {s(sT+1)}')
        A(f'  s_add_u32 {s(sT)}, {s(sT)}, {s(sT+1)}')
        A(f'  s_lshr_b32 {s(sT+1)}, {s(sQC)}, 4')
        A(f'  s_lshl2_add_u32 {s(sT)}, {s(sT+1)}, {s(sT)}')
        for j in range(4 // W):
            A(f'  s_add_u32 {s(sT+1)}, s3, {W * j}')
            A(f'  s_cmp_eq_u32 {s(sSEG)}, {s(sT+1)}')
            A(f'  s_cselect_b32 {s(sREC+j)}, {s(sT)}, {s(sREC+j)}')
        A(f'  s_add_u32 {s(sSEG)}, {s(sSEG)}, 1')
        A('  s_waitcnt lgkmcnt(0)')
    def import_gate(tag):
        A(f'  s_cmp_lt_u32 {s(sF)}, {s(sGATE)}')
        A(f'  s_cbranch_scc1 L_{tag}_ok')
        A(f'L_{tag}_spin:')
        lds_word(sGATE, F_IMP)
        A(f'  s_cmp_lt_u32 {s(sF)}, {s(sGATE)}')
        A(f'  s_cbranch_scc0 L_{tag}_spin')
        A(f'L_{tag}_ok:')

    A(f'  v_subrev_u32 {v(VL1)}, {IMG}, {v(VL1)}')
    A(f'  v_subrev_u32 {v(VL2)}, {IMG}, {v(VL2)}')
    A(f'  s_mov_b32 {s(sF)}, s3')
    A(f'  s_mov_b32 {s(sHC)}, {s(sHN)}')
    A(f'  s_mov_b32 {s(sGATE)}, 0')
    A(f'  s_load_dwordx2 {s(sREC,2)}, s[0:1], 56')
    A('  s_waitcnt lgkmcnt(0)')
    A(f'  s_mov_b32 {s(SQ)}, {s(sREC)}')
    A(f'  s_and_b32 {s(SQ+1)}, {s(sREC+1)}, 0xffff')
    import_gate('v0')
    A(f'  ds_read_b128 {v(LG,4)}, {v(VL1)}')
    A(f'  ds_read_b64 {v(LG+4,2)}, {v(VL2)} offset:256')
    def v_unit(u):
        o = NST * u
        A(f'L_v{u}:')
        if u == 0: stamp()
        A(f'  s_mov_b32 {s(sQC)}, {s(sQ3)}')
        A(f'  s_mov_b32 {s(sCC)}, {s(sC)}')
        A(f'  s_add_u32 {s(sF)}, {s(sF)}, {W}')
        import_gate(f'v1{u}')
        map_unit(sF, 1)
        A(f'  s_cmp_lt_u32 {s(sF)}, {NF}')
        A(f'  s_cselect_b32 {s(sNXT)}, {s(sNXT)}, {TOTAL}')
        prep = ['  s_waitcnt lgkmcnt(0)']
        if cps:
            A(f'  s_add_u32 {s(sT)}, {s(sF)}, {NF - W}')
            A(f'  v_mov_b32 {v(AL)}, {s(sT)}')
            A(f'  ds_read_b32 {v(VBS)}, {v(VBA)}')
            A(f'  ds_write_b32 {v(VPR)}, {v(AL)}')
            prep.append(f'  v_cmp_lt_u32 vcc, {v(AL)}, {v(VBS)}')
        for k in range(11):
            prep.append(f'  v_lshlrev_b32 {v(E+k)}, 16, {v(LG+k//2)}' if k % 2 == 0 else f'  v_and_b32 {v(E+k)}, {s(sMSK)}, {v(LG+k//2)}')
        prep += [f'  v_add_u32 {v(VL1)}, {384 * W}, {v(VL1)}',
                 f'  v_add_u32 {v(VL2)}, {384 * W}, {v(VL2)}',
                 f'  v_max3_f32 {v(X0)}, {v(E)}, {v(E+1)}, {v(E+2)}',
                 f'  ds_read_b128 {v(LG,4)}, {v(VL1)}',
                 f'  ds_read_b64 {v(LG+4,2)}, {v(VL2)} offset:256',
                 f'  v_max3_f32 {v(X1)}, {v(E+3)}, {v(E+4)}, {v(E+5)}',
                 f'  v_max3_f32 {v(X0)}, {v(X0)}, {v(E+6)}, {v(E+7)}',
                 f'  v_max3_f32 {v(X1)}, {v(X1)}, {v(E+8)}, {v(E+9)}',
                 f'  v_max3_f32 {v(X0)}, {v(X0)}, {v(E+10)}, {v(M)}',
                 f'  v_max_f32 {v(X0)}, {v(X0)}, {v(X1)}',
                 f'  v_mov_b32 {v(X1)}, {v(X0)}',
                 f'  v_permlane32_swap_b32 {v(X0)}, {v(X1)}',
                 f'  v_max_f32 {v(X0)}, {v(X0)}, {v(X1)}',
                 f'  v_mov_b32 {v(X1)}, {v(X0)}',
                 f'  v_permlane16_swap_b32 {v(X0)}, {v(X1)}',
                 f'  v_max_f32 {v(M)}, {v(X0)}, {v(X1)}',
                 f'  v_mul_f32 {v(X0)}, {s(sL2E)}, {v(M)}',
                 f'  v_add_f32 {v(AL)}, {v(X0)}, {v(NB)}',
                 f'  v_sub_f32 {v(NB)}, 0, {v(X0)}',
                 f'  v_exp_f32 {v(AL)}, -{v(AL)}',
                 f'  ds_bpermute_b32 {v(ALQ)}, {v(VBP)}, {v(AL)}']
        for k in range(11):
            prep += [f'  v_fma_f32 {v(E+k)}, {v(E+k)}, {s(sL2E)}, {v(NB)}', f'  v_exp_f32 {v(E+k)}, {v(E+k)}']
        prep += [f'  v_add_f32 {v(X0)}, {v(E)}, {v(E+1)}', f'  v_add_f32 {v(X1)}, {v(E+2)}, {v(E+3)}']
        for k in range(4, 11):
            x = X0 if k % 2 == 0 else X1
            prep.append(f'  v_add_f32 {v(x)}, {v(x)}, {v(E+k)}')
        prep += [f'  v_add_f32 {v(X0)}, {v(X0)}, {v(X1)}',
                 f'  v_fma_f32 {v(LS)}, {v(LS)}, {v(AL)}, {v(X0)}']
        for k in range(6):
            prep.append(f'  v_cvt_pk_bf16_f32 {v(PP+k)}, {v(E+2*k)}, {v(E+2*k+1) if k < 5 else 0}')
        for j in range(4):
            for k in range(4):
                prep.append(f'  v_cndmask_b32 {v(AJ+4*j+k)}, 0, {v(PP+k)}, {s(sMJ+2*j,2)}')
        prep.append('  s_waitcnt lgkmcnt(0)')
        for k in range(12):
            prep.append(f'  v_mul_f32 {v(ACC+k)}, {v(ALQ)}, {v(ACC+k)}')
        prep2 = [f'  v_cndmask_b32 {v(AK+2*j+k)}, 0, {v(PP+4+k)}, {s(sMJ+2*j,2)}' for j in range(4) for k in range(2)]
        per = 5
        for k in range(NST):
            ss, i = divmod(k, 3)
            if k == SW: offsets(DCON)
            lds_ = [main_load(o + k + D, SV, sCUR if k < SW else sNXT)]
            wait_step(k, 2, f'vw{u}_{k}', PSMALL)
            if not late:
                for x in lds_: A(x)
            if k == 0:
                A(f'  v_mul_f32 {v(ZC)}, {s(sSM)}, {v(ZN)}')
                A(f'  v_mul_f32 {v(SC)}, {hex((127 + 22) << 23)}, {v(SN)}')
            if i == 0:
                A(f'  v_mov_b32_dpp {v(ZS)}, {v(ZC)} row_newbcast:{ss} row_mask:0xf bank_mask:0xf')
                A(f'  v_mov_b32_dpp {v(ZS+1)}, {v(SC)} row_newbcast:{ss} row_mask:0xf bank_mask:0xf')
            X = TV + 4 * i if ss % 2 == 0 else T
            c, rest = dequant(X, slot(o + k), (v(ZS,2), v(ZS,2)), (v(ZS,2), v(ZS,2)), 'op_sel_hi:[1,1,0] ', 'op_sel:[0,1]')
            for x in c: A(x)
            if late:
                for x in lds_: A(x)
            if k == PSMALL:
                for x in vscale_loads(): A(x)
            if ss % 2 == 1:
                rest += [f'  v_cvt_pk_bf16_f32 {v(BV+16*i+4*j+((ss>>1)&3))}, {v(TV+4*i+j)}, {v(T+j)}' for j in range(4)]
            if ss == 10:
                rest += [f'  v_cvt_pk_bf16_f32 {v(BV+16*i+4*j+1)}, {v(TV+4*i+j)}, 0' for j in range(4)]
            side, prep = prep[:per], prep[per:]
            if k == 20:
                side += prep; prep = []
            if k == 23: prep = prep2
            for x in merge(rest, side, 1): A(x)
            if ss == 7:
                for j in range(4):
                    A(f'  v_mfma_f32_16x16x32_bf16 {v(ACC+4*i,4)}, {v(AJ+4*j,4)}, {v(BV+16*i+4*j,4)}, {v(ACC+4*i,4)}')
            if ss == 10:
                assert not prep
                for j in range(4):
                    A(f'  v_mfma_f32_16x16x16_bf16 {v(ACC+4*i,4)}, {v(AK+2*j,2)}, {v(BV+16*i+4*j,2)}, {v(ACC+4*i,4)}')
        A(f'  s_mov_b32 {s(sCUR)}, {s(sNXT)}')
        if u == U - 1:
            A(f'  s_cmp_ge_u32 {s(sF)}, {NF}')
            A('  s_cbranch_scc1 L_v_done')
        A(f'  s_cmp_eq_u32 {s(sHN)}, {s(sHC)}')
        A(f'  s_cbranch_scc1 L_v{(u + 1) % U}')
        A(f'  s_mov_b32 {s(sHC)}, {s(sHN)}')
        flush()
        A(f'  v_add_u32 {v(VFL)}, {SEG}, {v(VFL)}')
        A(f'  v_add_u32 {v(VST)}, {SEG}, {v(VST)}')
        reset_state()
        if u == U - 1: A('  s_branch L_v0')
    for u in range(U): v_unit(u)
    A('L_v_done:')
    stamp()
    flush()
    A('  s_waitcnt vmcnt(0)')

    A('  s_barrier')
    ST = RING; AC = (base + 3) // 4 * 4
    nv = max(nv, AC + 48)
    A(f'  v_lshrrev_b32 {v(AL)}, 1, {v(VBP)}')
    A(f'  v_lshlrev_b32 {v(ALQ)}, 4, v0')
    for j in range(4 // W):
        A(f'  s_mul_i32 {s(sT)}, s3, {SEG}')
        A(f'  s_add_u32 {s(sT)}, {s(sT)}, {LDS_ACC + W * j * SEG}')
        A(f'  v_add_u32 {v(X0)}, {s(sT)}, {v(AL)}')
        for w in range(W):
            A(f'  ds_read_b64 {v(ST+2*(W*j+w),2)}, {v(X0)} offset:{W*3072 + 32*w}')
        A(f'  v_add_u32 {v(X0)}, {s(sT)}, {v(ALQ)}')
        for w in range(W):
            for i in range(3):
                A(f'  ds_read_b128 {v(AC+12*(W*j+w)+4*i,4)}, {v(X0)} offset:{3072*w + 1024*i}')
    A(f'  v_mov_b32 {v(X0)}, {F_TAG}')
    A(f'  ds_read_b32 {v(M)}, {v(X0)}')
    A(f'  s_mov_b32 {s(sSEG)}, -1')
    A(f'  s_add_u32 {s(sLIM)}, {s(sRO)}, 1')
    A('  s_waitcnt lgkmcnt(0)')
    GR = RING + 8; OWN = GR + 40
    gi = lambda b, x: b + 4 * (x // 3) + x % 3
    for j in range(4 // W):
        G = GR + 20 * j
        combine(A, W, ST + 2 * W * j, AC + 12 * W * j, 3, gi(G, 12), gi(G, 13), lambda x: gi(G, x))
        A(f'  s_bfe_u32 {s(sT)}, {s(sREC+j)}, 0x20001')
        A(f'  s_cmp_eq_u32 {s(sT)}, {s(sLIM)}')
        A(f'  s_cbranch_scc1 L_own{j}')
        for g_ in range(5): A(f'  v_mov_b32 {v(G+4*g_+3)}, {v(M)}')
        A(f'  s_mul_i32 {s(sT)}, {s(sREC+j)}, {REC}')
        A(f'  s_add_u32 {s(sT)}, {s(sT)}, {WSOFF}')
        A(f'  s_add_u32 {s(sT+1)}, {s(sT)}, 4096')
        for g_ in range(5):
            A(f'  buffer_store_dwordx4 {v(G+4*g_,4)}, {v(ALQ)}, {s(SW_,4)}, {s(sT + g_ // 4)} offen offset:{1024 * (g_ % 4)} sc1')
        A(f'  s_branch L_pub{j}')
        A(f'L_own{j}:')
        for x in range(14): A(f'  v_mov_b32 {v(gi(OWN, x))}, {v(gi(G, x))}')
        A(f'  s_mov_b32 {s(sSEG)}, {s(sREC+j)}')
        A(f'L_pub{j}:')
    stamp()
    A(f'  s_cmp_eq_u32 {s(sSEG)}, -1')
    A('  s_cbranch_scc1 L_fin')
    FR = AC
    nv = max(nv, FR + 60)
    sR = 84
    A(f'  s_xor_b32 {s(sR)}, {s(sSEG)}, 1')
    A(f'  s_andn2_b32 {s(sR+2)}, {s(sSEG)}, 1')
    A(f'  s_xor_b32 {s(sR+2)}, {s(sR+2)}, 2')
    A(f'  s_add_u32 {s(sR+4)}, {s(sR+2)}, 1')
    for r in range(3):
        A(f'  s_mul_i32 {s(sR+2*r)}, {s(sR+2*r)}, {REC}')
        A(f'  s_add_u32 {s(sR+2*r)}, {s(sR+2*r)}, {WSOFF}')
        A(f'  s_add_u32 {s(sR+2*r+1)}, {s(sR+2*r)}, 4096')
    A(f'  v_mov_b32 {v(X1)}, {s(sR+1)}')
    A(f'  v_writelane_b32 {v(X1)}, {s(sR+3)}, 1')
    A(f'  v_writelane_b32 {v(X1)}, {s(sR+5)}, 2')
    if safe: A(f'  s_mov_b32 {s(sF)}, 0')
    A('L_gather:')
    for r in range(3):
        for g_ in range(5):
            A(f'  buffer_load_dwordx4 {v(FR+20*r+4*g_,4)}, {v(ALQ)}, {s(SW_,4)}, {s(sR + 2*r + g_ // 4)} offen offset:{1024 * (g_ % 4)} sc1')
    A('  s_waitcnt vmcnt(0)')
    tags = [FR + 4 * k + 3 for k in range(15)]
    A(f'  v_xor_b32 {v(X0)}, {v(M)}, {v(tags[0])}')
    for k in range(1, 15):
        A(f'  v_xor_b32 {v(tags[k])}, {v(M)}, {v(tags[k])}')
    for k in range(1, 15, 2):
        A(f'  v_or3_b32 {v(X0)}, {v(X0)}, {v(tags[k])}, {v(tags[k+1])}')
    A(f'  v_cmp_ne_u32 {s(sT,2)}, 0, {v(X0)}')
    A(f'  s_cmp_eq_u64 {s(sT,2)}, 0')
    A('  s_cbranch_scc1 L_gathered')
    if not fullpoll: A('  s_mov_b64 exec, 7')
    A('L_poll:')
    if safe:
        A(f'  s_add_u32 {s(sF)}, {s(sF)}, 1')
        A(f'  s_cmp_gt_u32 {s(sF)}, 20000')
        A('  s_cbranch_scc1 L_end')
    if fullpoll: A('  s_branch L_gather')
    A(f'  buffer_load_dword {v(X0)}, {v(X1)}, {s(SW_,4)}, 0 offen offset:1020 sc1')
    A('  s_waitcnt vmcnt(0)')
    A(f'  v_cmp_ne_u32 {s(sT,2)}, {v(M)}, {v(X0)}')
    A(f'  s_cmp_lg_u64 {s(sT,2)}, 0')
    A('  s_cbranch_scc1 L_poll')
    A('  s_mov_b64 exec, -1')
    A('  s_branch L_gather')
    A('L_gathered:')
    stamp()
    B4 = [OWN, FR, FR + 20, FR + 40]
    A(f'  v_min_f32 {v(X0)}, {v(gi(B4[0],12))}, {v(gi(B4[1],12))}')
    A(f'  v_min3_f32 {v(X0)}, {v(X0)}, {v(gi(B4[2],12))}, {v(gi(B4[3],12))}')
    for b in B4: A(f'  v_sub_f32 {v(gi(b,12))}, {v(X0)}, {v(gi(b,12))}')
    for b in B4: A(f'  v_exp_f32 {v(gi(b,12))}, {v(gi(b,12))}')
    for x in [13] + list(range(12)):
        for b in B4: A(f'  v_mul_f32 {v(gi(b,x))}, {v(gi(b,12))}, {v(gi(b,x))}')
        A(f'  v_add_f32 {v(gi(B4[0],x))}, {v(gi(B4[0],x))}, {v(gi(B4[1],x))}')
        A(f'  v_add_f32 {v(gi(B4[2],x))}, {v(gi(B4[2],x))}, {v(gi(B4[3],x))}')
        A(f'  v_add_f32 {v(gi(B4[0],x))}, {v(gi(B4[0],x))}, {v(gi(B4[2],x))}')
        if x == 13: A(f'  v_rcp_f32 {v(X1)}, {v(gi(OWN,13))}')
    for x in range(12): A(f'  v_mul_f32 {v(gi(OWN,x))}, {v(X1)}, {v(gi(OWN,x))}')
    A(f'  v_mul_u32_u24 {v(X0)}, 24, {v(VBP)}')
    A(f'  v_and_b32 {v(X1)}, 15, v0')
    A(f'  v_lshl_add_u32 {v(X0)}, {v(X1)}, 3, {v(X0)}')
    A(f'  s_lshr_b32 {s(sT)}, {s(sSEG)}, 2')
    A(f'  s_mul_i32 {s(sT)}, {s(sT)}, 1536')
    for i in range(3):
        A(f'  v_cvt_pk_bf16_f32 {v(ACC+2*i)}, {v(gi(OWN,4*i))}, {v(gi(OWN,4*i+1))}')
        A(f'  v_cvt_pk_bf16_f32 {v(ACC+2*i+1)}, {v(gi(OWN,4*i+2))}, {v(gi(OWN,4*i+3))}')
        A(f'  buffer_store_dwordx2 {v(ACC+2*i,2)}, {v(X0)}, {s(SQ,4)}, {s(sT)} offen offset:{128*i} {stf}')
    A('L_fin:')
    if diagpad:
        if diagref: A(f'  v_readfirstlane_b32 s6, {v(M)}')
        A('L_diag:')
        A(f'  s_memrealtime {s(sU,2)}')
        A('  s_waitcnt lgkmcnt(0)')
        A(f'  s_sub_u32 {s(sU)}, {s(sU)}, s6')
        A(f'  s_cmp_lt_u32 {s(sU)}, {diagpad * 100}')
        A('  s_cbranch_scc1 L_diag')
    if tl:
        A(f'  s_mul_i32 {s(sT)}, s2, {W+1}')
        A(f'  s_add_u32 {s(sT)}, {s(sT)}, s3')
        A(f'  s_lshl_b32 {s(sT)}, {s(sT)}, 8')
        A(f'  s_add_u32 {s(sT)}, {s(sT)}, 0x10000')
        A(f'  v_lshl_add_u32 {v(E)}, v0, 2, {s(sT)}')
        A(f'  global_store_dword {v(E)}, {v(TL)}, {s(sWS,2)}')
    if stamps:
        A('  s_waitcnt vmcnt(0)')
        A(f'  s_memrealtime {s(sU,2)}')
        A(f'  s_getreg_b32 {s(sU+2)}, hwreg(HW_REG_XCC_ID)')
        A(f'  s_mul_i32 {s(sT)}, s2, {W+1}')
        A(f'  s_add_u32 {s(sT)}, {s(sT)}, s3')
        A(f'  s_lshl_b32 {s(sT)}, {s(sT)}, 4')
        A('  s_waitcnt lgkmcnt(0)')
        A(f'  v_mov_b32 {v(RING)}, s6')
        A(f'  v_mov_b32 {v(RING+1)}, {s(sU)}')
        A(f'  v_mov_b32 {v(RING+2)}, {s(sU+2)}')
        A(f'  v_mov_b32 {v(RING+3)}, {s(sDEC)}')
        A(f'  v_mov_b32 {v(X0)}, {s(sT)}')
        A('  s_mov_b64 exec, 1')
        A(f'  global_store_dwordx4 {v(X0)}, {v(RING,4)}, {s(sWS,2)}')
    A('L_end:')
    A('  s_endpgm')


    for x in stubs: A(x)

    A('L_helper:')
    if tl:
        A(f'  s_mov_b32 {s(sTL)}, 0')
        A(f'  v_mov_b32 {v(TL)}, 0')
    hA, hZ, hO, h1, h2, h3, hD = 1, 2, 3, 4, 5, 6, 8
    assert hD + 96 <= TL
    A(f'  v_lshlrev_b32 {v(hA)}, 2, v0')
    A(f'  v_add_u32 {v(hA)}, {LDS_F}, {v(hA)}')
    A(f'  v_mov_b32 {v(hZ)}, 0')
    A('  s_mov_b64 exec, 0xffff')
    A(f'  ds_write_b32 {v(hA)}, {v(hZ)}')
    A('  s_mov_b64 exec, -1')
    make_srds()
    A('  s_barrier')
    sOF, sN0, sV0, sJ, sSF, sA, sB, sX, sFA, sFS, sME, sPA = 44, 45, 48, 50, 52, 54, 56, 58, 62, 63, 60, 61
    sQD, sOWN, sUNT, sT0, sNON = 64, 65, 66, 72, 74
    hP, hQ = hD + 96, hD + 97
    hC = (hQ + 2) // 2 * 2
    hW, hU, hT = hC + 9, hC + 10, hC + 12
    assert hT + 1 < TL and W == 2
    A(f'  s_memrealtime {s(sT0,2)}')
    def code_touch(tag):
        if not cpre: return
        for h in range(2):
            A(f'  s_lshr_b32 {s(sT)}, s2, 3')
            A(f'  s_cmp_lt_i32 {s(sT)}, (L_code_end - L_k) / 1024 - {32 * h}')
            A(f'  s_cbranch_scc0 L_h_ct{tag}')
            if h:
                A(f'  v_add_co_u32 {v(hC+2)}, vcc, 0x8000, {v(hC)}')
                A(f'  v_addc_co_u32 {v(hC+3)}, vcc, 0, {v(hC+1)}, vcc')
            A(f'  global_load_dwordx4 {v(hC+4,4)}, {v(hC+2*h,2)}, off')
        A(f'L_h_ct{tag}:')
    if tlb:
        A(f'  v_lshlrev_b32 {v(hD)}, 28, v0')
        A(f'  v_lshlrev_b32 {v(hD+1)}, 21, v0')
        A(f'  s_lshl_b32 {s(sT)}, {s(sPB)}, 16')
        A(f'  s_add_u32 {s(sT)}, {s(sT)}, 0x1ff000')
        A(f'  s_lshr_b32 {s(sT+1)}, s2, 5')
        A(f'  s_lshl_b32 {s(sT+1)}, {s(sT+1)}, 21')
        A(f'  s_add_u32 {s(sT+1)}, {s(sT+1)}, {WSX + 0x1f0000}')
        A(f'  v_writelane_b32 {v(hD+1)}, {s(sT+1)}, 4')
        A(f'  s_mov_b32 {s(SQ)}, {s(PT+14)}')
        A(f'  s_and_b32 {s(SQ+1)}, {s(PT+15)}, 0xffff')
        A('  s_mov_b64 exec, 7')
        A(f'  buffer_load_dword {v(hC+8)}, {v(hD)}, {s(SK,4)}, {s(sT)} offen nt')
        A(f'  buffer_load_dword {v(hC+8)}, {v(hD)}, {s(SV,4)}, {s(sT)} offen nt')
        A('  s_mov_b64 exec, 31')
        A(f'  s_lshl_b32 {s(sT)}, s2, 8')
        A(f'  buffer_load_dword {v(hC+8)}, {v(hD+1)}, {s(SW_,4)}, {s(sT)} offen sc1 nt')
        A('  s_mov_b64 exec, 1')
        A(f'  buffer_load_dword {v(hC+8)}, {v(hD)}, {s(SQ,4)}, {s(sT)} offen sc1 nt')
        A('  s_mov_b64 exec, -1')
    if cpre:
        A(f'  s_getpc_b64 {s(sA,2)}')
        A('L_h_pc:')
        A(f'  s_sub_u32 {s(sA)}, {s(sA)}, L_h_pc - L_k')
        A(f'  s_subb_u32 {s(sA+1)}, {s(sA+1)}, 0')
        A(f'  s_and_b32 {s(sA)}, {s(sA)}, -16')
        A(f'  s_lshr_b32 {s(sT)}, s2, 3')
        A(f'  s_lshl_b32 {s(sT)}, {s(sT)}, 10')
        A(f'  v_lshl_add_u32 {v(hC)}, v0, 4, {s(sT)}')
        A(f'  v_mov_b32 {v(hC+1)}, {s(sA+1)}')
        A(f'  v_add_co_u32 {v(hC)}, vcc, {s(sA)}, {v(hC)}')
        A(f'  v_addc_co_u32 {v(hC+1)}, vcc, 0, {v(hC+1)}, vcc')
        code_touch('a')
    A(f'  s_lshr_b32 {s(sT)}, s2, 4')
    A(f'  s_and_b32 {s(sT)}, {s(sT)}, 8')
    A(f'  s_and_b32 {s(sT+1)}, s2, 7')
    A(f'  s_add_u32 {s(sT)}, {s(sT)}, {s(sT+1)}')
    A(f'  s_lshl_b32 {s(sT)}, {s(sT)}, 4')
    A(f'  v_lshl_add_u32 {v(hP)}, v0, 3, {s(sT)}')
    A(f'  v_and_b32 {v(hQ)}, 31, v0')
    A(f'  v_lshlrev_b32 {v(hQ)}, 3, {v(hQ)}')
    A(f'  v_and_b32 {v(hW)}, 1, v0')
    A(f'  v_lshlrev_b32 {v(hW)}, 2, {v(hW)}')
    A(f'  v_add_u32 {v(hW)}, {F_PRG}, {v(hW)}')
    A(f'  v_mov_b32 {v(hU)}, 0')
    A(f'  v_mov_b32 {v(hU+1)}, 0')
    A(f'  s_getreg_b32 {s(sJ)}, hwreg(HW_REG_XCC_ID)')
    A(f'  s_bfe_u32 {s(sJ)}, {s(sJ)}, 0x10002')
    A(f'  s_bfe_u32 {s(sSF)}, s2, 0x30003')
    A(f'  s_cmp_eq_u32 {s(sSF)}, 7')
    A('  s_cbranch_scc1 L_h_voted')
    A('  s_bitcmp1_b32 s2, 6')
    A('  s_cbranch_scc1 L_h_voted')
    A(f'  s_cmp_eq_u32 {s(sSF)}, 6')
    A('  s_cbranch_scc0 L_h_probe')
    A(f'  s_xor_b32 {s(sV0)}, {s(sJ)}, {s(sRO)}')
    A(f'  s_and_b32 {s(sSF)}, s2, 3')
    A(f'  s_lshl2_add_u32 {s(sSF)}, {s(sSF)}, 36')
    A('  s_branch L_h_vote')
    A('L_h_probe:')
    A(f'  s_cmp_ge_u32 {s(sSF)}, 3')
    A(f'  s_cselect_b32 {s(SI)}, {s(SV)}, {s(SK)}')
    A(f'  s_cselect_b32 {s(SI+1)}, {s(SV+1)}, {s(SK+1)}')
    A(f'  s_cselect_b32 {s(sT)}, 3, 0')
    A(f'  s_sub_u32 {s(sT)}, {s(sSF)}, {s(sT)}')
    A(f'  s_lshl_b32 {s(sT)}, {s(sT)}, 28')
    A(f'  s_lshl_b32 {s(sOF)}, {s(sPB)}, 16')
    A(f'  s_add_u32 {s(sOF)}, {s(sOF)}, {s(sT)}')
    A(f'  s_lshl_b32 {s(sT)}, {s(sRO)}, 16')
    A(f'  s_add_u32 {s(sOF)}, {s(sOF)}, {s(sT)}')
    A(f'  s_add_u32 {s(sOF)}, {s(sOF)}, 0x1c0000')
    A(f'  s_mul_i32 {s(sT)}, s2, 0x2a95')
    A(f'  s_and_b32 {s(sT)}, {s(sT)}, 0x7f80')
    A(f'  s_add_u32 {s(sOF)}, {s(sOF)}, {s(sT)}')
    A(f'  s_add_u32 {s(sT)}, {s(sOF)}, 0x8000')
    A(f'  s_buffer_load_dword {s(sX)}, {s(SI,4)}, {s(sT)}')
    A(f'  s_mov_b32 {s(sN0)}, -1')
    A(f'  s_mov_b32 {s(sN0+1)}, -1')
    A(f'  s_mul_i32 {s(sSF)}, {s(sSF)}, 6')
    A('  s_waitcnt lgkmcnt(0)')
    for k in range(NS):
        for c in ((0, 1) if k % 2 == 0 else (1, 0)):
            o = (((k & 1) << 14) | ((k >> 1 & 1) << 12) | ((k * 0x380) & 0xfff)) ^ (c << 13)
            A(f'  s_xor_b32 {s(sT)}, {s(sOF)}, {o}')
            A(f'  s_memtime {s(sA,2)}')
            A('  s_waitcnt lgkmcnt(0)')
            A(f'  s_buffer_load_dword {s(sX)}, {s(SI,4)}, {s(sT)}')
            A('  s_waitcnt lgkmcnt(0)')
            A(f'  s_memtime {s(sB,2)}')
            A('  s_waitcnt lgkmcnt(0)')
            A(f'  s_sub_u32 {s(sB)}, {s(sB)}, {s(sA)}')
            A(f'  s_min_u32 {s(sN0+c)}, {s(sN0+c)}, {s(sB)}')
    A(f'  s_cmp_lt_u32 {s(sN0+1)}, {s(sN0)}')
    A(f'  s_cselect_b32 {s(sV0)}, 1, 0')
    A(f'  s_lshr_b32 {s(sT)}, {s(sOF)}, 13')
    A(f'  s_xor_b32 {s(sT)}, {s(sT)}, s2')
    A(f'  s_xor_b32 {s(sT)}, {s(sT)}, {s(sJ)}')
    A(f'  s_and_b32 {s(sT)}, {s(sT)}, 1')
    A(f'  s_xor_b32 {s(sV0)}, {s(sV0)}, {s(sT)}')
    A('L_h_vote:')
    A(f'  s_mov_b32 {s(sV0+1)}, 0')
    A(f'  s_lshl_b64 {s(sV0,2)}, {s(sV0,2)}, {s(sSF)}')
    A(f'  s_or_b32 {s(sV0+1)}, {s(sV0+1)}, 0x1000000')
    A(f'  s_atomic_add_x2 {s(sV0,2)}, {s(sDBG,2)}, 0')
    A('L_h_voted:')
    A('  s_waitcnt lgkmcnt(0)')
    A('  s_cmp_lg_u32 s2, 56')
    A('  s_cbranch_scc1 L_h_nonce')
    A(f'  s_lshl_b64 {s(sA,2)}, {s(sT0,2)}, 2')
    A(f'  s_atomic_add_x2 {s(sA,2)}, {s(sDBG,2)}, 8')
    A('  s_waitcnt lgkmcnt(0)')
    A('L_h_nonce:')
    stamp()
    def wait_progress(tag, lim, slp):
        A(f'  v_mov_b32 {v(hA)}, {F_PRG}')
        A(f'L_h_prog{tag}:')
        if slp: A(f'  s_sleep {slp}')
        A(f'  ds_read_b128 {v(hD,4)}, {v(hA)}')
        A('  s_waitcnt lgkmcnt(0)')
        A(f'  v_min_u32 {v(hD)}, {v(hD)}, {v(hD+1)}')
        if W == 4: A(f'  v_min3_u32 {v(hD)}, {v(hD)}, {v(hD+2)}, {v(hD+3)}')
        A(f'  v_readfirstlane_b32 {s(sA)}, {v(hD)}')
        if slp:
            A(f'  s_cmp_lt_u32 {s(sA)}, {lim}')
            A(f'  s_cbranch_scc1 L_h_prog{tag}')
    sCP, sCA, sUP, sRET, sSUB, sTHU = 76, 77, 78, 84, 86, 79
    A(f'  s_mov_b32 {s(sCP)}, {cp0}')
    A(f'  s_mov_b32 {s(sCA)}, {WSC}')
    A(f'  s_getpc_b64 {s(sSUB,2)}')
    A('L_h_pc2:')
    A(f'  s_add_u32 {s(sSUB)}, {s(sSUB)}, L_h_cp - L_h_pc2')
    A(f'  s_addc_u32 {s(sSUB+1)}, {s(sSUB+1)}, 0')
    def checkpoints(upto):
        A(f'  s_mov_b32 {s(sUP)}, {min(upto, last) - dly}')
        A(f'  s_swappc_b64 {s(sRET,2)}, {s(sSUB,2)}')
    def checkpoint_sub():
        A('L_h_cp:')
        A(f'  s_cmp_gt_u32 {s(sCP)}, {s(sUP)}')
        A('  s_cbranch_scc0 L_h_cpgo')
        A(f'  s_setpc_b64 {s(sRET,2)}')
        A('L_h_cpgo:')
        A(f'  ds_read_b32 {v(hD)}, {v(hW)}')
        A(f'  s_memrealtime {s(sA,2)}')
        A('  s_waitcnt lgkmcnt(0)')
        A(f'  v_mov_b32 {v(hT)}, {s(sA)}')
        A(f'  v_mov_b32 {v(hT+1)}, {s(sA+1)}')
        A(f'  v_cmp_gt_u32 vcc, {s(sCP)}, {v(hD)}')
        A('  s_cmp_eq_u32 vcc_lo, 0')
        A('  s_cbranch_scc1 L_h_cpnext')
        A('L_h_cpm:')
        A('  s_sleep 2')
        A(f'  ds_read_b32 {v(hD)}, {v(hW)}')
        A(f'  s_memrealtime {s(sA,2)}')
        A('  s_waitcnt lgkmcnt(0)')
        A(f'  v_mov_b32 {v(hD+2)}, {s(sA)}')
        A(f'  v_mov_b32 {v(hD+3)}, {s(sA+1)}')
        A(f'  v_cndmask_b32 {v(hT)}, {v(hT)}, {v(hD+2)}, vcc')
        A(f'  v_cndmask_b32 {v(hT+1)}, {v(hT+1)}, {v(hD+3)}, vcc')
        A(f'  v_cmp_gt_u32 vcc, {s(sCP)}, {v(hD)}')
        A('  s_cmp_lg_u32 vcc_lo, 0')
        A('  s_cbranch_scc1 L_h_cpm')
        A(f'  s_and_b32 {s(sT)}, s2, 0x78')
        A('  s_cbranch_scc1 L_h_np')
        A('  s_mov_b64 exec, 3')
        A(f'  buffer_store_dwordx2 {v(hT,2)}, {v(hP)}, {s(SW_,4)}, {s(sCA)} offen sc1')
        A('  s_mov_b64 exec, -1')
        A('L_h_np:')
        A(f'  s_add_u32 {s(sJ)}, {s(sCP)}, {dly}')
        wait_progress('c1', s(sJ), 4)
        A(f'  buffer_load_dwordx2 {v(hD,2)}, {v(hQ)}, {s(SW_,4)}, {s(sCA)} offen {fl(cpf)}')
        A(f'  v_mov_b32 {v(hD+2)}, {s(sT0+1)}')
        A('  s_waitcnt vmcnt(0)')
        A(f'  ds_read_b32 {v(hD+4)}, {v(hW)}')
        A(f'  v_subrev_co_u32 {v(hD)}, vcc, {s(sT0)}, {v(hD)}')
        A(f'  v_subb_co_u32 {v(hD+1)}, vcc, {v(hD+1)}, {v(hD+2)}, vcc')
        A(f'  v_lshrrev_b32 {v(hD+2)}, 24, {v(hD)}')
        A(f'  v_or_b32 {v(hD+1)}, {v(hD+1)}, {v(hD+2)}')
        A(f'  v_cmp_eq_u32 vcc, 0, {v(hD+1)}')
        A(f'  v_cndmask_b32 {v(hD)}, 0, {v(hD)}, vcc')
        A(f'  s_bcnt1_i32_b32 {s(sB)}, vcc_lo')
        for r in (8, 4, 2, 1):
            A(f'  v_add_u32_dpp {v(hD)}, {v(hD)}, {v(hD)} row_ror:{r} row_mask:0xf bank_mask:0xf')
        A(f'  v_readlane_b32 {s(sA)}, {v(hD)}, 0')
        A(f'  v_readlane_b32 {s(sT)}, {v(hD)}, 16')
        A(f'  v_subrev_u32 {v(hD)}, {s(sT0)}, {v(hT)}')
        A(f'  v_mul_lo_u32 {v(hD)}, {v(hD)}, {s(sB)}')
        A(f'  s_add_u32 {s(sA)}, {s(sA)}, {s(sT)}')
        A(f'  s_max_u32 {s(sB)}, {s(sB)}, 1')
        A(f'  v_subrev_u32 {v(hD)}, {s(sA)}, {v(hD)}')
        A(f'  v_cvt_f32_u32 {v(hD+1)}, {s(sB)}')
        A(f'  v_cvt_f32_i32 {v(hD)}, {v(hD)}')
        A(f'  v_rcp_f32 {v(hD+1)}, {v(hD+1)}')
        A(f'  v_mul_f32 {v(hD)}, {v(hD)}, {v(hD+1)}')
        A(f'  v_cvt_i32_f32 {v(hD)}, {v(hD)}')
        A('  s_waitcnt lgkmcnt(0)')
        A(f'  v_add_u32 {v(hD+4)}, {W}, {v(hD+4)}')
        acts = [(hU, gain, dead, False, F_BST)] + ([(hU + 1, gth, deadt, True, F_THR)] if tev else [])
        for unt, g_, dd, neg, addr in acts:
            A(f'  v_min_u32 {v(hD+1)}, {v(unt)}, {v(hD+4)}')
            A(f'  v_subrev_u32 {v(hD+1)}, {s(sCP)}, {v(hD+1)}')
            A(f'  v_max_i32 {v(hD+1)}, 0, {v(hD+1)}')
            A(f'  v_lshrrev_b32 {v(hD+1)}, 1, {v(hD+1)}')
            A(f'  v_mul_u32_u24 {v(hD+1)}, {g_}, {v(hD+1)}')
            A(f'  v_{"add" if neg else "sub"}_u32 {v(hD)}, {v(hD)}, {v(hD+1)}')
        for unt, g_, dd, neg, addr in acts:
            A(f'  v_{"sub" if neg else "add"}_u32 {v(hD+1)}, {g_ // 2 - dd}, {v(hD)}')
            A(f'  v_max_i32 {v(hD+1)}, 0, {v(hD+1)}')
            A(f'  v_min_i32 {v(hD+1)}, 2000, {v(hD+1)}')
            A(f'  v_mul_u32_u24 {v(hD+1)}, {65536 // g_}, {v(hD+1)}')
            A(f'  v_lshrrev_b32 {v(hD+1)}, 16, {v(hD+1)}')
            A(f'  v_cmp_ne_u32 vcc, 0, {v(hD+1)}')
            A(f'  v_lshl_add_u32 {v(hD+1)}, {v(hD+1)}, 1, {v(hD+4)}')
            A(f'  v_cndmask_b32 {v(unt)}, 0, {v(hD+1)}, vcc')
            A(f'  ds_write_b32 {v(hW)}, {v(unt)} offset:{addr - F_PRG}')
        A('L_h_cpnext:')
        A(f'  s_add_u32 {s(sCP)}, {s(sCP)}, {step}')
        A(f'  s_add_u32 {s(sCA)}, {s(sCA)}, 256')
        A('  s_branch L_h_cp')
    wait_progress('v', PW, 8)
    if vsl: A(f'  s_sleep {vsl}')
    A(f'  s_load_dwordx2 {s(sV0,2)}, {s(sDBG,2)}, 0')
    if safe: A('  s_mov_b32 s59, 0')
    A('L_h_votes:')
    A('  s_waitcnt lgkmcnt(0)')
    A(f'  s_lshr_b32 {s(sT)}, {s(sV0+1)}, 24')
    A(f'  s_cmp_eq_u32 {s(sT)}, 112')
    A('  s_cbranch_scc1 L_h_votes_done')
    if safe:
        A('  s_add_u32 s59, s59, 1')
        A('  s_cmp_gt_u32 s59, 2000')
        A('  s_cbranch_scc1 L_h_votes_done')
    A('  s_sleep 64')
    A(f'  s_mov_b64 {s(sV0,2)}, 0')
    A(f'  s_atomic_or_x2 {s(sV0,2)}, {s(sDBG,2)}, 0 glc')
    A('  s_branch L_h_votes')
    A('L_h_votes_done:')
    A(f'  s_mov_b32 {s(sDEC)}, 0x80')
    for j in range(6):
        A(f'  s_bfe_u64 {s(sA,2)}, {s(sV0,2)}, {hex(0x60000 | (6 * j))}')
        A(f'  s_cmp_gt_u32 {s(sA)}, 8')
        A(f'  s_cselect_b32 {s(sB)}, {1 << j}, 0')
        A(f'  s_or_b32 {s(sDEC)}, {s(sDEC)}, {s(sB)}')
        A(f'  s_sub_u32 {s(sA)}, {s(sA)}, {THR + 1}')
        A(f'  s_cmp_lt_u32 {s(sA)}, {16 - 2 * THR - 1}')
        A(f'  s_cselect_b32 {s(sB)}, 64, 0')
        A(f'  s_or_b32 {s(sDEC)}, {s(sDEC)}, {s(sB)}')
    A(f'  s_and_b32 {s(sT)}, s2, 3')
    A(f'  s_lshl2_add_u32 {s(sT)}, {s(sT)}, 4')
    A(f'  s_lshr_b32 {s(sA)}, {s(sV0+1)}, {s(sT)}')
    A(f'  s_and_b32 {s(sB)}, {s(sA)}, 3')
    A(f'  s_cselect_b32 {s(sB)}, 64, 0')
    A(f'  s_or_b32 {s(sDEC)}, {s(sDEC)}, {s(sB)}')
    if force >= 0:
        A(f'  s_mov_b32 {s(sDEC)}, {0x80 | force}')
    A(f'  s_lshr_b32 {s(sA)}, {s(sA)}, 2')
    A(f'  s_xor_b32 {s(sA)}, {s(sA)}, s2')
    A(f'  s_xor_b32 {s(sA)}, {s(sA)}, {s(sRO)}')
    A(f'  s_and_b32 {s(sA)}, {s(sA)}, 1')
    A(f'  s_mul_i32 {s(sA)}, {s(sA)}, 63')
    A(f'  s_xor_b32 {s(sDEC)}, {s(sDEC)}, {s(sA)}')
    A(f'  v_mov_b32 {v(hA)}, {F_DEC}')
    A(f'  v_mov_b32 {v(hD)}, {s(sDEC)}')
    A(f'  ds_write_b32 {v(hA)}, {v(hD)}')
    stamp()
    A(f'  v_lshlrev_b32 {v(hO)}, 4, v0')
    if pf and not pfw:
        for srd, nb in ((SKS, 24576), (SKZ, 24576), (SVS, 8192), (SVZ, 8192)):
            A(f'  s_mul_i32 {s(sA)}, s2, {nb}')
            for k in range(nb // 1024):
                if k % 4 == 0 and k: A(f'  s_add_u32 {s(sA)}, {s(sA)}, 4096')
                A(f'  s_waitcnt vmcnt({pf - 1})')
                A(f'  buffer_load_dwordx4 {v(hD,4)}, {v(hO)}, {s(srd,4)}, {s(sA)} offen offset:{(k % 4) * 1024}')
        A('  s_waitcnt vmcnt(0)')
    stamp()
    A(f'  s_load_dwordx2 {s(sNON,2)}, {s(sDBG,2)}, 8')
    A('L_h_getnonce:')
    A('  s_waitcnt lgkmcnt(0)')
    A(f'  s_cmp_lg_u64 {s(sNON,2)}, 0')
    A('  s_cbranch_scc1 L_h_gotnonce')
    A('  s_sleep 32')
    A(f'  s_atomic_or_x2 {s(sNON,2)}, {s(sDBG,2)}, 8 glc')
    A('  s_branch L_h_getnonce')
    A('L_h_gotnonce:')
    A(f'  s_lshr_b64 {s(sA,2)}, {s(sNON,2)}, 2')
    A(f'  v_mov_b32 {v(hA)}, {F_TAG}')
    A(f'  v_mov_b32 {v(hD)}, {s(sA)}')
    A(f'  ds_write_b32 {v(hA)}, {v(hD)}')
    checkpoints(64)
    A(f'  s_bitcmp1_b32 {s(sDEC)}, 6')
    A('  s_cbranch_scc1 L_h_skipa0')
    A(f'  s_lshl_b32 {s(sFA)}, s2, 8')
    A(f'  s_add_u32 {s(sFA)}, {s(sFA)}, {WSF}')
    A(f'  s_xor_b32 {s(sFS)}, {s(sFA)}, 1024')
    A(f'  s_lshr_b32 {s(sX)}, {s(sDEC)}, 3')
    A(f'  s_xor_b32 {s(sX)}, {s(sX)}, {s(sDEC)}')
    A(f'  s_lshr_b32 {s(sT)}, {s(sPB)}, 4')
    A(f'  s_lshr_b32 {s(sOF)}, {s(sT)}, 5')
    A(f'  s_lshl_b32 {s(sOF)}, {s(sOF)}, 21')
    A(f'  s_add_u32 {s(sOF)}, {s(sOF)}, {WSX}')
    A(f'  s_and_b32 {s(sQD)}, {s(sT)}, 31')
    A(f'  s_add_u32 {s(sT)}, {s(sQD)}, {s(sRO)}')
    A(f'  s_lshl_b32 {s(sT)}, {s(sT)}, 10')
    A(f'  s_add_u32 {s(sME)}, {s(sOF)}, {s(sT)}')
    A(f'  s_xor_b32 {s(sPA)}, {s(sME)}, 1024')
    def pxor(k):
        h = k >> 2
        c = (h & 3) ^ (((h >> 2) & 1) * 17) ^ (((h >> 3) & 1) * 4)
        return (k << 15) | (c << 10)
    NW = NWU * 384 // 1024
    def reg(k): return hD + 4 * (k % 24)
    def export(lo, hi):
        for k in range(lo, hi): A(f'  ds_read_b128 {v(reg(k),4)}, {v(hO)} offset:{1024*k}')
        A('  s_waitcnt lgkmcnt(0)')
        for k in range(lo, hi):
            A(f'  s_xor_b32 {s(sT)}, {s(sME)}, {pxor(k)}')
            if xdep: A(f'  s_waitcnt vmcnt({xdep - 1})')
            if not noexp: A(f'  buffer_store_dwordx4 {v(reg(k),4)}, {v(hO)}, {s(SW_,4)}, {s(sT)} offen {fl(xf)}')
    def imp(lo, hi):
        for k in range(lo, hi):
            A(f'  s_xor_b32 {s(sT)}, {s(sPA)}, {pxor(k)}')
            if idep: A(f'  s_waitcnt vmcnt({idep - 1})')
            if not noimp: A(f'  buffer_load_dwordx4 {v(reg(k),4)}, {v(hO)}, {s(SW_,4)}, {s(sT)} offen {fl(impf)}')
        A('  s_waitcnt vmcnt(0)')
        for k in range(lo, hi): A(f'  ds_write_b128 {v(hO)}, {v(reg(k),4)} offset:{1024*k}')
    def cond(bit, tag, fn):
        A(f'  s_bitcmp0_b32 {s(sX)}, {bit}')
        A(f'  s_cbranch_scc1 L_h_{tag}')
        fn()
        A(f'L_h_{tag}:')
    def signal(level):
        A(f'  s_add_u32 {s(sA)}, {s(sNON)}, {level}')
        A(f'  v_mov_b32 {v(h2)}, 0')
        A('  s_waitcnt vmcnt(0)')
        A(f'  v_mov_b32 {v(hD)}, {s(sA)}')
        A(f'  v_mov_b32 {v(hD+1)}, {s(sNON+1)}')
        A('  s_mov_b64 exec, 1')
        A(f'  buffer_store_dwordx2 {v(hD,2)}, {v(h2)}, {s(SW_,4)}, {s(sFA)} offen sc1')
        A('  s_mov_b64 exec, -1')
    def await_partner(tag, level):
        A(f'  s_add_u32 {s(sA)}, {s(sNON)}, {level}')
        A(f'  v_mov_b32 {v(h2)}, 0')
        A('  s_mov_b64 exec, 1')
        if safe: A('  s_mov_b32 s59, 0')
        A(f'L_h_flag{tag}:')
        A(f'  buffer_load_dwordx2 {v(hD+2,2)}, {v(h2)}, {s(SW_,4)}, {s(sFS)} offen sc1')
        A('  s_waitcnt vmcnt(0)')
        A(f'  v_readfirstlane_b32 {s(sB)}, {v(hD+2)}')
        A(f'  v_readfirstlane_b32 {s(sB+1)}, {v(hD+3)}')
        A(f'  s_sub_u32 {s(sB)}, {s(sB)}, {s(sA)}')
        A(f'  s_xor_b32 {s(sB+1)}, {s(sB+1)}, {s(sNON+1)}')
        A(f'  s_lshr_b32 {s(sB)}, {s(sB)}, 1')
        A(f'  s_or_b32 {s(sB)}, {s(sB)}, {s(sB+1)}')
        A(f'  s_cbranch_scc0 L_h_flag{tag}_done')
        if safe:
            A('  s_add_u32 s59, s59, 1')
            A('  s_cmp_gt_u32 s59, 2000')
            A(f'  s_cbranch_scc1 L_h_flag{tag}_done')
        A('  s_sleep 32')
        A(f'  s_branch L_h_flag{tag}')
        A(f'L_h_flag{tag}_done:')
        A('  s_mov_b64 exec, -1')
    wait_progress('a', 64, 8)
    stamp()
    export(0, NW)
    cond(0, 'e0', lambda: export(NW, 12))
    cond(1, 'e1', lambda: export(12, 24))
    signal(1)
    A('L_h_skipa0:')
    checkpoints(ia)
    A(f'  s_bitcmp1_b32 {s(sDEC)}, 6')
    A('  s_cbranch_scc1 L_h_skipa')
    if ia > 64: wait_progress('ia', ia, 8)
    await_partner('a', 1)
    stamp()
    A(f'  s_bfe_u32 {s(sA)}, {s(sDEC)}, 0x10003')
    A(f'  s_mul_i32 {s(sA)}, {s(sA)}, 384')
    A(f'  v_lshrrev_b32 {v(h1)}, 3, v0')
    for k in range(NW):
        A(f'  v_add_u32 {v(h2)}, {8 * k}, {v(h1)}')
        A(f'  v_mul_u32_u24 {v(h2)}, 21846, {v(h2)}')
        A(f'  v_bfe_u32 {v(h2)}, {v(h2)}, 16, 1')
        A(f'  v_mul_u32_u24 {v(h3)}, 384, {v(h2)}')
        A(f'  v_sub_u32 {v(h3)}, {v(hO)}, {v(h3)}')
        A(f'  v_add_u32 {v(h3)}, {s(sA)}, {v(h3)}')
        A(f'  v_add_u32 {v(h3)}, {1024 * k}, {v(h3)}')
        A(f'  v_add_u32 {v(h2)}, {s(sQD)}, {v(h2)}')
        A(f'  v_lshrrev_b32 {v(hZ)}, 12, {v(h3)}')
        A(f'  v_xor_b32 {v(h2)}, {v(h2)}, {v(hZ)}')
        A(f'  v_lshrrev_b32 {v(hZ)}, 10, {v(h3)}')
        A(f'  v_lshl_add_u32 {v(h2)}, {v(hZ)}, 5, {v(h2)}')
        A(f'  v_and_b32 {v(h3)}, 1023, {v(h3)}')
        A(f'  v_lshl_add_u32 {v(h2)}, {v(h2)}, 10, {v(h3)}')
        if not noimp: A(f'  buffer_load_dwordx4 {v(reg(k),4)}, {v(h2)}, {s(SW_,4)}, {s(sOF)} offen sc1')
    A('  s_waitcnt vmcnt(0)')
    for k in range(NW): A(f'  ds_write_b128 {v(hO)}, {v(reg(k),4)} offset:{1024*k}')
    cond(0, 'i0', lambda: imp(NW, 12))
    cond(1, 'i1', lambda: imp(12, 24))
    stamp()
    A('L_h_skipa:')
    A(f'  s_lshr_b32 {s(sT)}, {s(sDEC)}, 4')
    A(f'  s_andn2_b32 {s(sX)}, {s(sX)}, {s(sT)}')
    A(f'  s_bitcmp0_b32 {s(sX)}, 2')
    A(f'  s_cselect_b32 {s(sT)}, 255, 64')
    A(f'  v_mov_b32 {v(hA)}, {F_IMP}')
    A(f'  v_mov_b32 {v(h2)}, {s(sT)}')
    A(f'  ds_write_b32 {v(hA)}, {v(h2)}')
    checkpoints(NF)
    code_touch('b')
    A(f'  s_bitcmp0_b32 {s(sX)}, 2')
    A('  s_cbranch_scc1 L_h_skipb0')
    wait_progress('b', NF, 8)
    stamp()
    export(24, 36)
    signal(2)
    A('L_h_skipb0:')
    checkpoints(ib)
    A(f'  s_bitcmp0_b32 {s(sX)}, 2')
    A('  s_cbranch_scc1 L_h_all')
    if ib > NF: wait_progress('ib', ib, 8)
    await_partner('b', 2)
    stamp()
    imp(24, 36)
    stamp()
    A(f'  v_mov_b32 {v(hA)}, {F_IMP}')
    A(f'  v_mov_b32 {v(h2)}, 255')
    A(f'  ds_write_b32 {v(hA)}, {v(h2)}')
    A('L_h_all:')
    checkpoints(176)
    code_touch('c')
    checkpoints(999)
    A('  s_waitcnt lgkmcnt(0)')
    if stamps or tl:
        A('  s_branch L_fin')
    else:
        A('  s_endpgm')
    checkpoint_sub()
    A('L_code_end:')
    body = pad(L)

    nva = (nv + 7) // 8 * 8
    out = HDR + f'; @launch grid=(256,1,1) block=({64*(W+1)},1,1) lds={lds}\n'
    out += '.amdgcn_target "amdgcn-amd-amdhsa--gfx950"\n.text\n'
    out += f'.globl {NAME}\n.p2align 8\n.type {NAME},@function\n'
    out += '\n'.join(body) + '\n'
    out += '.section .rodata,"a"\n'
    for nm, nvv, nss in ((NAME, nva, 102),):
        out += f'''.p2align 6
.amdhsa_kernel {nm}
  .amdhsa_next_free_vgpr {nvv}
  .amdhsa_next_free_sgpr {nss}
  .amdhsa_accum_offset {nvv}
  .amdhsa_group_segment_fixed_size 0
  .amdhsa_kernarg_size 80
  .amdhsa_user_sgpr_count 2
  .amdhsa_user_sgpr_kernarg_segment_ptr 1
  .amdhsa_system_sgpr_workgroup_id_x 1
  .amdhsa_float_denorm_mode_32 3
.end_amdhsa_kernel
'''
    return out

if __name__ == '__main__':
    kw = {}
    for x in sys.argv[2:]:
        k, val = x.split('=')
        kw[k] = int(val) if val.lstrip('-').isdigit() else val
    open(sys.argv[1], 'w').write(gen(**kw))
```

```python
import sys, os
sys.path.insert(0, os.path.dirname(os.path.abspath(__file__)))
from asmlib import pad
NAME = 'standalone__kv_cache_quant_int4_int2_kv_with_per_channel_or_per_token_scales__sampling_kernel'
HEAD = 4096 * 768
TOTAL = 256 * HEAD
REC = 5120
WSOFF = 1 << 20
WSX = 8 << 20
WSC = 7 << 20
WSF = (7 << 20) + (1 << 16)
IMG = 96 * 384
WSEND = WSX + (16 << 20)
OOB = 0x7ffffff0
HDR = open(os.path.join(os.path.dirname(os.path.abspath(__file__)), 'header.txt')).read()
assert all(((32 * c + 1) * 21846) >> 16 == (32 * c + 1) // 3 for c in range(25))
assert all((c * 43) >> 8 == c // 6 for c in range(24))

class Alloc:
    def __init__(self, start): self.n = start
    def __call__(self, k, align=1):
        self.n = (self.n + align - 1) // align * align
        r = self.n; self.n += k
        return r

def v(r, k=1): return f'v{r}' if k == 1 else f'v[{r}:{r+k-1}]'
def s(r, k=1): return f's{r}' if k == 1 else f's[{r}:{r+k-1}]'

def merge(main, side, every):
    out = []; side = list(side); c = 0
    for m in main:
        out.append(m); c += 1
        if side and c % every == 0: out.append(side.pop(0))
    return out + side

def combine(A, n, ST, AC, npiece, X0, X1, OUT):
    A(f'  v_min_f32 {v(X0)}, {v(ST)}, {v(ST+2)}')
    for w in range(2, n): A(f'  v_min_f32 {v(X0)}, {v(X0)}, {v(ST+2*w)}')
    for w in range(n): A(f'  v_sub_f32 {v(ST+2*w)}, {v(X0)}, {v(ST+2*w)}')
    for w in range(n): A(f'  v_exp_f32 {v(ST+2*w)}, {v(ST+2*w)}')
    A(f'  v_mul_f32 {v(X1)}, {v(ST)}, {v(ST+1)}')
    for w in range(1, n): A(f'  v_fma_f32 {v(X1)}, {v(ST+2*w)}, {v(ST+2*w+1)}, {v(X1)}')
    for i in range(npiece):
        for j in range(4):
            A(f'  v_mul_f32 {v(OUT(4*i+j))}, {v(ST)}, {v(AC+4*i+j)}')
            for w in range(1, n):
                A(f'  v_fma_f32 {v(OUT(4*i+j))}, {v(ST+2*w)}, {v(AC+4*(npiece*w+i)+j)}, {v(OUT(4*i+j))}')

def gen(D=11, W=2, stamps=False, sf='-', stf='-', tl=0, NWU=8, NS=3, pf=8, force=-1, THR=2, NV=8, safe=0, PW=0, xf='sc1', noexp=0, noimp=0, DC=15, U=2, gain=22, dly=4, dead=0, diagpad=0, diagref=0, ldsz=62464, pfw=16, PSK=17, vsl=0, cpf='-', fullpoll=1, cpre=1, impf='sc1', xdep=0, idep=4, ia=72, ib=104, tlb=0, DT=4, gth=22, deadt=50, cp0=12, step=8, last=186, tev=0, pdel=1, wsy=0):
    R = 11 * U; NST = 33; NF = 96
    DN = D; D = DC = DC or D
    assert DN <= D <= R and NWU % 8 == 0 and W in (2, 4)
    PW = PW or NWU - W
    fl = lambda x: x.replace('-', '').replace('+', ' ')
    sf, stf = fl(sf), fl(stf)
    L = []
    A = L.append
    va = Alloc(1)
    RING = va(4 * R, 4); VO = va(4)
    DUP = va(1); DOWN = va(1); DCON = va(1); ICV = va(1); TU = va(1)
    VVS = va(1); VL1 = va(1); VL2 = va(1); VBP = va(1); VFL = va(1); VST = va(1); VPR = va(1)
    VOOB = va(1); VBA = va(1); VBS = va(1); VBD = va(1); VBC = va(1)
    T = va(4, 2); ZN = va(1); SN = va(1); ZC = va(1); SC = va(1); ZS = va(2, 2)
    LG = va(6, 4); ACC = va(12, 4); M = va(1); NB = va(2, 2); LS = NB + 1
    X0 = va(2, 2); X1 = X0 + 1; AL = va(1); ALQ = va(1); E = va(11); PP = va(6); TL = va(1)
    base = va.n
    QB = va(6, 4); QN = va(6, 2); KSR = va(6, 2); KZR = va(6, 2); KS = va(12, 2); KZ = va(12, 2); KA = va(6, 4); SD = va(4, 4); S = va(2, 2)
    IUP = va(1); IOWN = va(1); ICON = va(1); VKS0 = va(1); VKS = va(1); VQ = va(1); VNI = va(1)
    kend = va.n
    va.n = base
    AJ = va(16, 4); AK = va(8, 2); TV = va(12, 2); BV = va(48, 4)
    nv = max(va.n, kend)
    sRO, sPB = 4, 5
    SK, SV, SI, SKS, SKZ, SVS, SVZ, SQ, SW_ = 8, 12, 16, 20, 24, 28, 32, 36, 40
    PT = 44
    sREC, sL0, sL10, sM0, sM10, sLOW = 44, 48, 50, 52, 54, 56
    sCUR, sNXT, sSO, sF, sMSK, sL2E, sTL, s768, sSCL, sT = 60, 61, 62, 64, 65, 66, 67, 63, 68, 70
    sMJ = 72
    sDBG, sWS = 80, 82
    sQ3, sC, sQC, sCC, sHC, sHN, sDIV, sSH = 84, 85, 86, 87, 88, 89, 90, 91
    sDEC, sLIM, sGATE, sSEG = 96, 97, 99, 100
    sU = 92
    sBIG, sSM = 92, 94
    SEG = W * 3072 + W * 32
    LDS_ACC = IMG
    LDS_F = LDS_ACC + 4 * SEG
    F_DEC, F_IMP, F_BST, F_TAG, F_PRG = LDS_F, LDS_F + 4, LDS_F + 8, LDS_F + 12, LDS_F + 16
    F_BST = F_PRG + 16; F_THR = F_PRG + 32
    cps = True
    lds = ldsz
    assert LDS_F + 64 <= lds

    A(f'{NAME}:')
    A('  s_cmp_ge_u32 s2, 256')
    A('  s_cbranch_scc1 L_end')
    A(f'  s_load_dwordx16 {s(PT,16)}, s[0:1], 0')
    A(f'  s_load_dwordx4 {s(sDBG,4)}, s[0:1], 64')
    if stamps or diagpad:
        A('  s_memrealtime s[6:7]')
    A('  v_lshrrev_b32 v1, 6, v0')
    A('  v_and_b32 v0, 63, v0')
    A('  v_readfirstlane_b32 s3, v1')
    A(f'  s_bfe_u32 {s(sRO)}, s2, 0x10002')
    A(f'  s_lshr_b32 {s(sPB)}, s2, 3')
    A(f'  s_lshl_b32 {s(sPB)}, {s(sPB)}, 2')
    A(f'  s_and_b32 {s(sT)}, s2, 3')
    A(f'  s_add_u32 {s(sPB)}, {s(sPB)}, {s(sT)}')
    A(f'  s_lshl_b32 {s(sPB)}, {s(sPB)}, 5')
    SRDS = ((SKS, PT + 6, 256 * 24576), (SKZ, PT + 8, 256 * 24576), (SVS, PT + 10, 256 * 8192), (SVZ, PT + 12, 256 * 8192),
            (SK, PT + 2, TOTAL), (SQ, PT, 256 * 1536), (SI, PT + 2, TOTAL), (SV, PT + 4, TOTAL), (SW_, sWS, WSEND))
    for srd, p, nb in SRDS:
        A(f'  s_mov_b32 {s(srd+2)}, {nb}')
        A(f'  s_mov_b32 {s(srd+3)}, 0x20000')
    def make_srds(lo=0, hi=9):
        if lo == 0: A('  s_waitcnt lgkmcnt(0)')
        for srd, p, nb in SRDS[lo:hi]:
            A(f'  s_mov_b32 {s(srd)}, {s(p)}')
            A(f'  s_and_b32 {s(srd+1)}, {s(p+1)}, 0xffff')
    A(f'  s_cmp_eq_u32 s3, {W}')
    A('  s_cbranch_scc1 L_helper')

    cls, a, g, n = T, T + 1, T + 2, T + 3
    A(f'  v_and_b32 {v(cls)}, 3, v0')
    A(f'  v_bfe_u32 {v(a)}, v0, 2, 2')
    A(f'  v_lshrrev_b32 {v(g)}, 4, v0')
    A(f'  v_and_b32 {v(n)}, 15, v0')
    def stream_consts(x, up, own, con, lanepart):
        A(f'  v_and_b32 {v(own)}, 2, {v(x)}')
        A(f'  v_lshlrev_b32 {v(up)}, 5, {v(own)}')
        A(f'  v_add_u32 {v(up)}, 129, {v(up)}')
        A(f'  v_and_b32 {v(X1)}, 1, {v(x)}')
        A(f'  v_lshl_add_u32 {v(own)}, {v(X1)}, 2, {v(own)}')
        A(f'  v_mul_u32_u24 {v(X1)}, {43 * 768}, {v(X1)}')
        A(f'  v_add_u32 {v(con)}, {v(lanepart)}, {v(X1)}')
        A(f'  v_subrev_u32 {v(con)}, {43 * 768}, {v(con)}')
    A(f'  v_lshlrev_b32 {v(X0)}, 4, {v(cls)}')
    A(f'  v_lshl_add_u32 {v(X0)}, {v(g)}, 6, {v(X0)}')
    A(f'  v_lshrrev_b32 {v(VKS0)}, 1, {v(X0)}')
    stream_consts(a, IUP, IOWN, ICON, X0)
    A(f'  v_mul_u32_u24 {v(X1)}, 384, {v(a)}')
    A(f'  v_add_u32 {v(VQ)}, {v(X1)}, {v(VKS0)}')
    A(f'  v_mov_b32 {v(VOOB)}, {OOB}')
    A(f'  s_mov_b32 {s(sDIV)}, 0xaaaaaaab')
    A(f'  s_mov_b32 {s(sSH)}, 0x492492')
    A(f'  s_movk_i32 {s(s768)}, 768')
    def slot(k): return RING + 4 * (k % R)
    def main_load(k, srd, so):
        ss, i = divmod(k % NST, 3)
        r, k0 = (0, 0) if ss == 0 else (1, 1) if ss <= 5 else (2, 6) if ss <= 9 else (3, 10)
        return f'  buffer_load_dwordx4 {v(slot(k),4)}, {v(VO+r)}, {s(srd,4)}, {s(so)} offen offset:{768*(ss-k0) + 256*i} nt'
    def kscale_loads():
        r = [f'  s_mul_i32 {s(sSO)}, {s(sQ3)}, 1536']
        for i in range(3):
            r.append(f'  buffer_load_dwordx2 {v(KSR+2*i,2)}, {v(VKS)}, {s(SKS,4)}, {s(sSO)} offen offset:{128*i} {sf}')
            r.append(f'  buffer_load_dwordx2 {v(KZR+2*i,2)}, {v(VKS)}, {s(SKZ,4)}, {s(sSO)} offen offset:{128*i} {sf}')
        return r
    def vscale_loads():
        return [f'  s_lshl_b32 {s(sSO)}, {s(sQ3)}, 9',
                f'  v_lshl_add_u32 {v(VVS)}, {v(TU)}, 1, {v(ICV)}',
                f'  buffer_load_short_d16_hi {v(ZN)}, {v(VVS)}, {s(SVZ,4)}, {s(sSO)} offen {sf}',
                f'  buffer_load_short_d16_hi {v(SN)}, {v(VVS)}, {s(SVS,4)}, {s(sSO)} offen {sf}']
    def q_loads():
        return [f'  s_mul_i32 {s(sT)}, {s(sHN)}, 1536'] + \
               [f'  buffer_load_dwordx2 {v(QN+2*i,2)}, {v(VQ)}, {s(SQ,4)}, {s(sT)} offen offset:{128*i} {sf}' for i in range(3)]
    def short_masks(own, c, m0, m10, low):
        A(f'  v_add_u32 {v(X0)}, {s(c)}, {v(own)}')
        A(f'  v_lshrrev_b32 {v(X1)}, {v(X0)}, {s(sSH)}')
        A(f'  v_and_b32 {v(X1)}, 1, {v(X1)}')
        A(f'  v_cmp_eq_u32 {s(m10,2)}, 1, {v(X1)}')
        A(f'  s_and_b64 {s(m0,2)}, {s(m10,2)}, {low}')
        A(f'  s_andn2_b64 {s(m10,2)}, {s(m10,2)}, {low}')
    def map_unit(f, isv):
        A(f'  s_andn2_b32 {s(sT)}, {s(f)}, 1')
        A(f'  s_or_b32 {s(sT)}, {s(sT)}, {s(sRO)}')
        A(f'  s_lshr_b32 {s(sT+1)}, {s(f)}, 5')
        A(f'  s_lshr_b32 {s(sC)}, {s(sDEC)}, {s(sT+1)}')
        if isv: A(f'  s_lshr_b32 {s(sC)}, {s(sC)}, 3')
        A(f'  s_cmp_lt_u32 {s(f)}, {s(sLIM)}')
        A(f'  s_cselect_b32 {s(sT)}, {s(sT)}, {s(f)}')
        A(f'  s_cselect_b32 {s(sC)}, {s(f)}, {s(sC)}')
        A(f'  s_and_b32 {s(sC)}, {s(sC)}, 1')
        A(f'  s_mul_i32 {s(sT+1)}, {s(sT+1)}, {4096 - 32}')
        A(f'  s_add_u32 {s(sT)}, {s(sT)}, {s(sT+1)}')
        A(f'  s_add_u32 {s(sT)}, {s(sT)}, {s(sPB)}')
        A(f'  s_mul_hi_u32 {s(sQ3)}, {s(sT)}, {s(sDIV)}')
        A(f'  s_lshr_b32 {s(sQ3)}, {s(sQ3)}, 1')
        A(f'  s_mul_i32 {s(sT+1)}, {s(sQ3)}, 3')
        A(f'  s_sub_u32 {s(sT)}, {s(sT)}, {s(sT+1)}')
        A(f'  s_lshl3_add_u32 {s(sC)}, {s(sT)}, {s(sC)}')
        A(f'  s_mul_i32 {s(sNXT)}, {s(sQ3)}, 196608')
        A(f'  s_lshr_b32 {s(sHN)}, {s(sQ3)}, 4')
        A(f'  s_lshl_b32 {s(sT)}, {s(sC)}, 5')
        A(f'  v_add_u32 {v(TU)}, {s(sT)}, {v(DUP if isv else IUP)}')
        A(f'  v_mul_u32_u24 {v(TU)}, 21846, {v(TU)}')
        A(f'  v_lshrrev_b32 {v(TU)}, 16, {v(TU)}')
        short_masks(DOWN if isv else IOWN, sC, sM0, sM10, s(sLOW + 2 * isv, 2))
        if not isv:
            A(f'  v_mul_u32_u24 {v(X0)}, 43, {v(X0)}')
            A(f'  v_lshrrev_b32 {v(X0)}, 8, {v(X0)}')
            A(f'  v_mul_u32_u24 {v(X0)}, 384, {v(X0)}')
            A(f'  v_add_u32 {v(VKS)}, {v(X0)}, {v(VKS0)}')
    def offsets(con):
        A(f'  v_mad_u32_u24 {v(VO)}, {v(TU)}, {s(s768)}, {v(con)}')
        A(f'  v_add_u32 {v(VO+1)}, 768, {v(VO)}')
        A(f'  v_add_u32 {v(VO+2)}, {6 * 768}, {v(VO)}')
        A(f'  v_add_u32 {v(VO+3)}, {10 * 768}, {v(VO)}')
        A(f'  v_cndmask_b32 {v(VO)}, {v(VO)}, {v(VOOB)}, {s(sM0,2)}')
        A(f'  v_cndmask_b32 {v(VO+3)}, {v(VO+3)}, {v(VOOB)}, {s(sM10,2)}')
    def stamp():
        if tl:
            A(f'  s_memrealtime {s(sT,2)}')
            A('  s_waitcnt lgkmcnt(0)')
            A(f'  s_min_u32 m0, {s(sTL)}, 63')
            A(f'  v_writelane_b32 {v(TL)}, {s(sT)}, m0')
            A(f'  s_add_u32 {s(sTL)}, {s(sTL)}, 1')
    def reset_state():
        for k in range(12): A(f'  v_mov_b32 {v(ACC+k)}, 0')
        A(f'  v_mov_b32 {v(M)}, 0xff800000')
        A(f'  v_mov_b32 {v(NB)}, 0x7f800000')
        A(f'  v_mov_b32 {v(LS)}, 0')
    A(f'  s_mov_b32 {s(sF)}, s3')
    A(f'  s_mov_b32 {s(sLIM)}, {NWU}')
    A(f'  s_mov_b32 {s(sGATE)}, {NWU}')
    A(f'  s_mov_b32 {s(sDEC)}, 0')
    A(f'  v_lshlrev_b32 {v(ZC)}, 4, v0')
    pfl = []
    if pfw:
        sPK, sPV = sQC, sHC
        A(f'  s_mul_i32 {s(sT)}, s2, {W}')
        A(f'  s_add_u32 {s(sT)}, {s(sT)}, s3')
        A(f'  s_mul_i32 {s(sPV)}, {s(sT)}, {8192 // W}')
        A(f'  s_mul_i32 {s(sPK)}, {s(sT)}, {24576 // W}')
        line = lambda srd, so, k: f'  buffer_load_dwordx4 {v(ACC,4)}, {v(ZC)}, {s(srd,4)}, {s(so)} offen offset:{(k % 4) * 1024}'
        for k in range(24 // W):
            if k % 4 == 0 and k: pfl.append(f'  s_add_u32 {s(sPK)}, {s(sPK)}, 4096')
            pfl += [line(SKS, sPK, k), line(SKZ, sPK, k)]
            if k < 8 // W: pfl += [line(SVS, sPV, k), line(SVZ, sPV, k)]
    nissued = [0]
    def issue_pf(n):
        while pfl and n > 0:
            x = pfl.pop(0)
            if 'buffer_load' in x:
                if nissued[0] >= pfw: A(f'  s_waitcnt vmcnt({pfw - 1})')
                nissued[0] += 1; n -= 1
            A(x)
    make_srds(0, 4)
    issue_pf(min(pfw, 8))
    make_srds(4, 9)
    A(f'  s_mov_b32 {s(sLOW)}, 0x0f0f0f0f')
    A(f'  s_mov_b32 {s(sLOW+1)}, 0x0f0f0f0f')
    A(f'  s_mov_b32 {s(sLOW+2)}, 0xffff')
    A(f'  s_mov_b32 {s(sLOW+3)}, 0xffff')
    map_unit(sF, 0)
    offsets(ICON)
    A(f'  s_mov_b32 {s(sCUR)}, {s(sNXT)}')
    if pfw:
        for x in q_loads(): A(x)
        A(main_load(0, SK, sCUR))
        issue_pf(pfw - nissued[0])
        A('  s_barrier')
        issue_pf(99)
        for x in kscale_loads(): A(x)
        for k in range(1, D):
            A(f'  s_waitcnt vmcnt({max(min(pfw, DN) - 1 + 6, k - 1 + 6)})')
            A(main_load(k, SK, sCUR))
    else:
        for x in kscale_loads(): A(x)
        for x in q_loads(): A(x)
        for k in range(D): A(main_load(k, SK, sCUR))
    A(f'  s_mov_b32 {s(sHC)}, {s(sHN)}')
    A('  s_mov_b64 vcc, 0')
    A(f'  v_lshlrev_b32 {v(X0)}, 4, {v(n)}')
    stream_consts(g, DUP, DOWN, DCON, X0)
    A(f'  v_and_b32 {v(X1)}, 1, {v(g)}')
    A(f'  v_mul_u32_u24 {v(X1)}, 86, {v(X1)}')
    A(f'  v_lshl_add_u32 {v(ICV)}, {v(n)}, 1, {v(X1)}')
    A(f'  v_subrev_u32 {v(ICV)}, 86, {v(ICV)}')
    A(f'  v_lshlrev_b32 {v(VBP)}, 4, {v(g)}')
    A(f'  v_lshrrev_b32 {v(X0)}, 2, v0')
    A(f'  s_mul_i32 {s(sT)}, s3, 384')
    A(f'  v_lshl_add_u32 {v(VL1)}, {v(X0)}, 4, {s(sT)}')
    A(f'  v_lshl_add_u32 {v(VL2)}, {v(X0)}, 3, {s(sT)}')
    A(f'  s_mul_i32 {s(sT)}, s3, 3072')
    A(f'  s_add_u32 {s(sT)}, {s(sT)}, {LDS_ACC}')
    A(f'  v_lshl_add_u32 {v(VFL)}, v0, 4, {s(sT)}')
    A(f'  s_lshl_b32 {s(sT)}, s3, 5')
    A(f'  s_add_u32 {s(sT)}, {s(sT)}, {LDS_ACC + W * 3072}')
    A(f'  v_lshl_add_u32 {v(VST)}, {v(a)}, 3, {s(sT)}')
    A(f'  s_lshl_b32 {s(sT)}, s3, 2')
    A(f'  s_add_u32 {s(sT)}, {s(sT)}, {F_PRG}')
    A(f'  v_mov_b32 {v(VPR)}, {s(sT)}')
    A(f'  v_lshrrev_b32 {v(VBD)}, 5, v0')
    if wsy:
        A(f'  s_lshl_b32 {s(sT)}, s3, 3')
        A(f'  s_sub_u32 {s(sT)}, {F_PRG + 4 - F_BST}, {s(sT)}')
        A(f'  v_mul_i32_i24 {v(VBA)}, {s(sT)}, {v(VBD)}')
        A(f'  s_not_b32 {s(sT)}, s3')
        A(f'  v_mul_i32_i24 {v(VBD)}, {s(sT)}, {v(VBD)}')
    else:
        A(f'  v_mul_u32_u24 {v(VBA)}, {F_THR - F_BST}, {v(VBD)}')
        A(f'  v_mov_b32 {v(VBD)}, 0')
    A(f'  s_lshl2_add_u32 {s(sT)}, s3, {F_BST}')
    A(f'  v_add_u32 {v(VBA)}, {s(sT)}, {v(VBA)}')
    A(f'  v_mov_b32 {v(ZN)}, 0')
    A(f'  v_mov_b32 {v(SN)}, 0')
    A(f'  v_mov_b32 {v(VNI)}, 0xff800000')
    A(f'  s_mov_b32 {s(sMSK)}, 0xffff0000')
    A(f'  s_mov_b32 {s(sL2E)}, 0x3fb8aa3b')
    for h in range(2):
        A(f'  s_mov_b32 {s(sSCL+h)}, {hex(0x3d93cd3a + (22 << 23))}')
        A(f'  s_mov_b32 {s(sBIG+h)}, 0x7f000000')
        A(f'  s_mov_b32 {s(sSM+h)}, {hex((127 - 22) << 23)}')
    for j in range(4):
        A(f'  s_mov_b32 {s(sMJ+2*j)}, {hex(0x11111111 << j)}')
        A(f'  s_mov_b32 {s(sMJ+2*j+1)}, {hex(0x11111111 << j)}')
        A(f'  s_mov_b32 {s(sREC+j)}, 0')
    A(f'  s_mov_b32 {s(sSEG)}, 0')
    if pfw: A(f'  s_waitcnt vmcnt({D - 1})')
    if pdel:
        A(f'  v_mov_b32 {v(AL)}, 1')
        A(f'  ds_write_b32 {v(VPR)}, {v(AL)}')
    reset_state()
    if tl:
        A(f'  s_mov_b32 {s(sTL)}, 0')
        A(f'  v_mov_b32 {v(TL)}, 0')
    if not pfw: A('  s_barrier')

    PSMALL = 3
    late = (D == R)
    SW = NST - D
    assert PSMALL < SW and 3 <= PSK < SW
    stubs = []
    sTH = 98
    def wait_step(k, nsmall, tag, PSMALL):
        cnt = lambda d: d - 1 + (nsmall if k - d <= PSMALL < k else 0)
        if k == 2 and tev:
            A(f'  s_mov_b32 {s(sTH)}, vcc_hi')
            A('  s_mov_b32 vcc_hi, 0')
        if tev and k >= 2 and (k - 2) % tev == 0:
            A(f'  s_cmp_lg_u32 {s(sTH)}, 0')
            A(f'  s_cbranch_scc1 L_{tag}x')
            A(f'L_{tag}t:')
            stubs.extend([f'L_{tag}x:', f'  s_waitcnt vmcnt({cnt(DT)})', f'  s_branch L_{tag}t'])
        A(f'  s_waitcnt vmcnt({cnt(D)})')
        A(f'  s_cbranch_vccnz L_{tag}')
        A(f'  s_waitcnt vmcnt({cnt(DN)})')
        A(f'L_{tag}:')
    def mode_update(tag):
        A('  s_waitcnt lgkmcnt(0)')
        A(f'  v_cmp_lt_i32 vcc, {v(VBC)}, {v(VBS)}')
        if wsy:
            A('  s_cmp_lg_u32 vcc_hi, 0')
            A(f'  s_cbranch_scc1 L_{tag}_in')
            A(f'L_{tag}_w:')
            A(f'  ds_read_b32 {v(VBS)}, {v(VBA)}')
            A('  s_waitcnt lgkmcnt(0)')
            A(f'  v_cmp_lt_i32 vcc, {v(VBC)}, {v(VBS)}')
            A('  s_cmp_eq_u32 vcc_hi, 0')
            A(f'  s_cbranch_scc1 L_{tag}_w')
            A(f'L_{tag}_in:')
            A('  s_mov_b32 vcc_hi, 0')
    def dequant(X, src, z, sc, zmod, smod):
        r = [f'  v_pk_fma_f32 {v(X+2*h,2)}, {v(src+2*h,2)}, {s(sBIG,2)}, {z[h]} {zmod}neg_lo:[0,0,1] neg_hi:[0,0,1]' for h in range(2)]
        r2 = [f'  v_cvt_pk_bf16_f32 {v(X+j)}, 0, {v(X+j)}' for j in range(4)]
        r2 += [f'  v_pk_mul_f32 {v(X+2*h,2)}, {v(X+2*h,2)}, {sc[h]} {smod}'.rstrip() for h in range(2)]
        return r, r2
    def kreduce(ss):
        d = S + (ss & 1)
        q = lambda j: f'quad_perm:[{j},{j},{j},{j}] row_mask:0xf bank_mask:0xf'
        r = [f'  v_mov_b32_dpp {v(X0)}, {v(SD)} {q(0)}',
             f'  v_mov_b32_dpp {v(X1)}, {v(SD+2)} {q(2)}',
             f'  v_add_f32_dpp {v(X0)}, {v(SD+1)}, {v(X0)} {q(1)}',
             f'  v_add_f32_dpp {v(X1)}, {v(SD+3)}, {v(X1)} {q(3)}',
             f'  v_add_f32 {v(d)}, {v(X0)}, {v(X1)}']
        if ss == 0: r.append(f'  v_cndmask_b32 {v(d)}, {v(d)}, {v(VNI)}, {s(sL0,2)}')
        if ss == 10: r.append(f'  v_cndmask_b32 {v(d)}, {v(d)}, {v(VNI)}, {s(sL10,2)}')
        if ss & 1 or ss == 10:
            r += [f'  v_cvt_pk_bf16_f32 {v(S)}, 0, {v(S)}',
                  f'  v_cvt_pk_bf16_f32 {v(S+1)}, 0, {v(S+1)}',
                  f'  v_pk_mul_f32 {v(S,2)}, {v(S,2)}, {s(sSCL,2)}',
                  f'  v_cvt_pk_bf16_f32 {v(LG+(ss>>1))}, {v(S)}, {v(S+1)}']
        return r
    def lds_word(dst, addr):
        A(f'  v_mov_b32 {v(X0)}, {addr}')
        A(f'  ds_read_b32 {v(X0)}, {v(X0)}')
        A('  s_waitcnt lgkmcnt(0)')
        A(f'  v_readfirstlane_b32 {s(dst)}, {v(X0)}')

    mf32 = f'  v_mfma_f32_16x16x32_bf16 {v(SD,4)}, {v(KA,4)}, {v(QB,4)}, 0'
    mf16 = f'  v_mfma_f32_16x16x16_bf16 {v(SD,4)}, {v(KA+4,2)}, {v(QB+4,2)}, {v(SD,4)}'
    def k_unit(u):
        o = NST * u
        if u == 0: stamp()
        short_masks(DOWN, sC, sL0, sL10, s(sLOW + 2, 2))
        A(f'  s_add_u32 {s(sF)}, {s(sF)}, {W}')
        A(f'  s_sub_u32 {s(sT)}, {s(sF)}, {W}')
        A(f'  v_add_u32 {v(VBC)}, {s(sT)}, {v(VBD)}')
        for k in range(NST):
            ss, i = divmod(k, 3)
            if k == max(wsy, 1) - 1: A(f'  ds_read_b32 {v(VBS)}, {v(VBA)}')
            if k == max(wsy, 1): mode_update(f'km{u}')
            if k == SW and u < U - 1: offsets(ICON)
            if k == SW and u == U - 1:
                A(f'  s_cmp_lt_u32 {s(sF)}, {NF}')
                A(f'  s_cbranch_scc1 L_k_keep{u}')
                A(f'  s_bitcmp1_b32 {s(sDEC)}, 6')
                A(f'  s_cselect_b32 {s(sLIM)}, 255, 0')
                A(f'  v_mov_b32 {v(E)}, {v(X0)}')
                A(f'  v_mov_b32 {v(E+1)}, {v(X1)}')
                map_unit(3, 1)
                A(f'  v_mov_b32 {v(X0)}, {v(E)}')
                A(f'  v_mov_b32 {v(X1)}, {v(E+1)}')
                A(f'  s_mov_b32 {s(SI)}, {s(SV)}')
                A(f'  s_mov_b32 {s(SI+1)}, {s(SV+1)}')
                for x in vscale_loads(): A(x)
                A(f'  v_mov_b32 {v(ICON)}, {v(DCON)}')
                A(f'L_k_keep{u}:')
                offsets(ICON)
            lds_ = [main_load(o + k + D, SK, sCUR) if k < SW else main_load(o + k + D, SI, sNXT)]
            wait_step(k, 6, f'kw{u}_{k}', PSK)
            if not late:
                for x in lds_: A(x)
            if i == 2: A(mf32)
            if i == 0 and ss > 0: A(mf16)
            if ss == 0:
                for raw, dst in ((KZR, KZ), (KSR, KS)):
                    for h in range(2):
                        A(f'  v_lshlrev_b32 {v(dst+4*i+2*h)}, 16, {v(raw+2*i+h)}')
                        A(f'  v_and_b32 {v(dst+4*i+2*h+1)}, {s(sMSK)}, {v(raw+2*i+h)}')
                for h in range(2):
                    A(f'  v_pk_mul_f32 {v(KZ+4*i+2*h,2)}, {v(KZ+4*i+2*h,2)}, {s(sSM,2)}')
                    A(f'  v_mov_b32 {v(QB+2*i+h)}, {v(QN+2*i+h)}')
            c, rest = dequant(T, slot(o + k), (v(KZ+4*i,2), v(KZ+4*i+2,2)), (v(KS+4*i,2), v(KS+4*i+2,2)), '', '')
            for x in c: A(x)
            if late:
                for x in lds_: A(x)
            if k == PSK:
                A(f'  s_cmp_lt_u32 {s(sF)}, {s(sGATE)}')
                A(f'  s_cbranch_scc1 L_k_known{u}')
                A(f'L_k_spin{u}:')
                lds_word(sDEC, F_DEC)
                A(f'  s_cmp_eq_u32 {s(sDEC)}, 0')
                A(f'  s_cbranch_scc1 L_k_spin{u}')
                A(f'  s_mov_b32 {s(sGATE)}, -1')
                A(f'  s_bitcmp1_b32 {s(sDEC)}, 6')
                A(f'  s_cselect_b32 {s(sLIM)}, 255, {s(sLIM)}')
                A(f'L_k_known{u}:')
                map_unit(sF, 0)
                A(f'  s_cmp_eq_u32 {s(sHN)}, {s(sHC)}')
                A(f'  s_cbranch_scc1 L_k_sameq{u}')
                for x in q_loads(): A(x)
                A(f'  s_mov_b32 {s(sHC)}, {s(sHN)}')
                A(f'L_k_sameq{u}:')
                for x in kscale_loads(): A(x)
            rest += [f'  v_cvt_pk_bf16_f32 {v(KA+2*i)}, {v(T)}, {v(T+1)}',
                     f'  v_cvt_pk_bf16_f32 {v(KA+2*i+1)}, {v(T+2)}, {v(T+3)}']
            if i == 1 and ss > 0:
                r = kreduce(ss - 1)
                rest = r[:2] + rest[:2] + r[2:4] + rest[2:4] + r[4:5] + rest[4:]
                pend = r[5:]
            elif i == 2 and ss > 0:
                rest = merge(rest, pend, 1)
            for x in rest: A(x)
        A(f'  s_mov_b32 {s(sCUR)}, {s(sNXT)}')
        A(f'  v_mov_b32 {v(AL)}, {s(sF)}')
        A(mf16)
        A(f'  ds_write_b128 {v(VL1)}, {v(LG,4)}')
        A(f'  v_add_u32 {v(VL1)}, {384 * W}, {v(VL1)}')
        for x in kreduce(10): A(x)
        A(f'  ds_write_b64 {v(VL2)}, {v(LG+4,2)} offset:256')
        A(f'  ds_write_b32 {v(VPR)}, {v(AL)}')
        A(f'  v_add_u32 {v(VL2)}, {384 * W}, {v(VL2)}')
    A('L_k:')
    for u in range(U): k_unit(u)
    A(f'  s_cmp_lt_u32 {s(sF)}, {NF}')
    A('  s_cbranch_scc1 L_k')

    def flush():
        A(f'  v_mov_b32 {v(X1)}, {v(LS)}')
        A(f'  v_permlane32_swap_b32 {v(LS)}, {v(X1)}')
        A(f'  v_add_f32 {v(LS)}, {v(LS)}, {v(X1)}')
        A(f'  v_mov_b32 {v(X1)}, {v(LS)}')
        A(f'  v_permlane16_swap_b32 {v(LS)}, {v(X1)}')
        A(f'  v_add_f32 {v(LS)}, {v(LS)}, {v(X1)}')
        A(f'  ds_write_b64 {v(VST)}, {v(NB,2)}')
        for i in range(3):
            A(f'  ds_write_b128 {v(VFL)}, {v(ACC+4*i,4)} offset:{1024*i}')
        A(f'  s_and_b32 {s(sT)}, {s(sQC)}, 15')
        A(f'  s_cmp_ge_u32 {s(sT)}, 12')
        A(f'  s_cselect_b32 {s(sT)}, 2, 0')
        A(f'  s_and_b32 {s(sT+1)}, {s(sCC)}, 1')
        A(f'  s_bitcmp1_b32 {s(sDEC)}, 6')
        A(f'  s_cselect_b32 {s(sT+1)}, {s(sRO)}, {s(sT+1)}')
        A(f'  s_add_u32 {s(sT)}, {s(sT)}, {s(sT+1)}')
        A(f'  s_lshr_b32 {s(sT+1)}, {s(sQC)}, 4')
        A(f'  s_lshl2_add_u32 {s(sT)}, {s(sT+1)}, {s(sT)}')
        for j in range(4 // W):
            A(f'  s_add_u32 {s(sT+1)}, s3, {W * j}')
            A(f'  s_cmp_eq_u32 {s(sSEG)}, {s(sT+1)}')
            A(f'  s_cselect_b32 {s(sREC+j)}, {s(sT)}, {s(sREC+j)}')
        A(f'  s_add_u32 {s(sSEG)}, {s(sSEG)}, 1')
        A('  s_waitcnt lgkmcnt(0)')
    def import_gate(tag):
        A(f'  s_cmp_lt_u32 {s(sF)}, {s(sGATE)}')
        A(f'  s_cbranch_scc1 L_{tag}_ok')
        A(f'L_{tag}_spin:')
        lds_word(sGATE, F_IMP)
        A(f'  s_cmp_lt_u32 {s(sF)}, {s(sGATE)}')
        A(f'  s_cbranch_scc0 L_{tag}_spin')
        A(f'L_{tag}_ok:')

    A(f'  v_subrev_u32 {v(VL1)}, {IMG}, {v(VL1)}')
    A(f'  v_subrev_u32 {v(VL2)}, {IMG}, {v(VL2)}')
    A(f'  s_mov_b32 {s(sF)}, s3')
    A(f'  s_mov_b32 {s(sHC)}, {s(sHN)}')
    A(f'  s_mov_b32 {s(sGATE)}, 0')
    A(f'  s_load_dwordx2 {s(sREC,2)}, s[0:1], 56')
    A('  s_waitcnt lgkmcnt(0)')
    A(f'  s_mov_b32 {s(SQ)}, {s(sREC)}')
    A(f'  s_and_b32 {s(SQ+1)}, {s(sREC+1)}, 0xffff')
    import_gate('v0')
    A(f'  ds_read_b128 {v(LG,4)}, {v(VL1)}')
    A(f'  ds_read_b64 {v(LG+4,2)}, {v(VL2)} offset:256')
    def v_unit(u):
        o = NST * u
        A(f'L_v{u}:')
        if u == 0: stamp()
        A(f'  s_mov_b32 {s(sQC)}, {s(sQ3)}')
        A(f'  s_mov_b32 {s(sCC)}, {s(sC)}')
        A(f'  s_add_u32 {s(sF)}, {s(sF)}, {W}')
        import_gate(f'v1{u}')
        map_unit(sF, 1)
        A(f'  s_cmp_lt_u32 {s(sF)}, {NF}')
        A(f'  s_cselect_b32 {s(sNXT)}, {s(sNXT)}, {TOTAL}')
        prep = ['  s_waitcnt lgkmcnt(0)']
        A(f'  s_add_u32 {s(sT)}, {s(sF)}, {NF - W}')
        A(f'  v_mov_b32 {v(AL)}, {s(sT)}')
        A(f'  v_add_u32 {v(VBC)}, {s(sT)}, {v(VBD)}')
        A(f'  ds_write_b32 {v(VPR)}, {v(AL)}')
        for k in range(11):
            prep.append(f'  v_lshlrev_b32 {v(E+k)}, 16, {v(LG+k//2)}' if k % 2 == 0 else f'  v_and_b32 {v(E+k)}, {s(sMSK)}, {v(LG+k//2)}')
        prep += [f'  v_add_u32 {v(VL1)}, {384 * W}, {v(VL1)}',
                 f'  v_add_u32 {v(VL2)}, {384 * W}, {v(VL2)}',
                 f'  v_max3_f32 {v(X0)}, {v(E)}, {v(E+1)}, {v(E+2)}',
                 f'  ds_read_b128 {v(LG,4)}, {v(VL1)}',
                 f'  ds_read_b64 {v(LG+4,2)}, {v(VL2)} offset:256',
                 f'  v_max3_f32 {v(X1)}, {v(E+3)}, {v(E+4)}, {v(E+5)}',
                 f'  v_max3_f32 {v(X0)}, {v(X0)}, {v(E+6)}, {v(E+7)}',
                 f'  v_max3_f32 {v(X1)}, {v(X1)}, {v(E+8)}, {v(E+9)}',
                 f'  v_max3_f32 {v(X0)}, {v(X0)}, {v(E+10)}, {v(M)}',
                 f'  v_max_f32 {v(X0)}, {v(X0)}, {v(X1)}',
                 f'  v_mov_b32 {v(X1)}, {v(X0)}',
                 f'  v_permlane32_swap_b32 {v(X0)}, {v(X1)}',
                 f'  v_max_f32 {v(X0)}, {v(X0)}, {v(X1)}',
                 f'  v_mov_b32 {v(X1)}, {v(X0)}',
                 f'  v_permlane16_swap_b32 {v(X0)}, {v(X1)}',
                 f'  v_max_f32 {v(M)}, {v(X0)}, {v(X1)}',
                 f'  v_mul_f32 {v(X0)}, {s(sL2E)}, {v(M)}',
                 f'  v_add_f32 {v(AL)}, {v(X0)}, {v(NB)}',
                 f'  v_sub_f32 {v(NB)}, 0, {v(X0)}',
                 f'  v_exp_f32 {v(AL)}, -{v(AL)}',
                 f'  ds_bpermute_b32 {v(ALQ)}, {v(VBP)}, {v(AL)}']
        for k in range(11):
            prep += [f'  v_fma_f32 {v(E+k)}, {v(E+k)}, {s(sL2E)}, {v(NB)}', f'  v_exp_f32 {v(E+k)}, {v(E+k)}']
        prep += [f'  v_add_f32 {v(X0)}, {v(E)}, {v(E+1)}', f'  v_add_f32 {v(X1)}, {v(E+2)}, {v(E+3)}']
        for k in range(4, 11):
            x = X0 if k % 2 == 0 else X1
            prep.append(f'  v_add_f32 {v(x)}, {v(x)}, {v(E+k)}')
        prep += [f'  v_add_f32 {v(X0)}, {v(X0)}, {v(X1)}',
                 f'  v_fma_f32 {v(LS)}, {v(LS)}, {v(AL)}, {v(X0)}']
        for k in range(6):
            prep.append(f'  v_cvt_pk_bf16_f32 {v(PP+k)}, {v(E+2*k)}, {v(E+2*k+1) if k < 5 else 0}')
        for j in range(4):
            for k in range(4):
                prep.append(f'  v_cndmask_b32 {v(AJ+4*j+k)}, 0, {v(PP+k)}, {s(sMJ+2*j,2)}')
        prep.append('  s_waitcnt lgkmcnt(0)')
        for k in range(12):
            prep.append(f'  v_mul_f32 {v(ACC+k)}, {v(ALQ)}, {v(ACC+k)}')
        prep2 = [f'  v_cndmask_b32 {v(AK+2*j+k)}, 0, {v(PP+4+k)}, {s(sMJ+2*j,2)}' for j in range(4) for k in range(2)]
        per = 5
        for k in range(NST):
            ss, i = divmod(k, 3)
            if k == max(wsy, 1) - 1: A(f'  ds_read_b32 {v(VBS)}, {v(VBA)}')
            if k == max(wsy, 1): mode_update(f'vm{u}')
            if k == SW: offsets(DCON)
            lds_ = [main_load(o + k + D, SV, sCUR if k < SW else sNXT)]
            wait_step(k, 2, f'vw{u}_{k}', PSMALL)
            if not late:
                for x in lds_: A(x)
            if k == 0:
                A(f'  v_mul_f32 {v(ZC)}, {s(sSM)}, {v(ZN)}')
                A(f'  v_mul_f32 {v(SC)}, {hex((127 + 22) << 23)}, {v(SN)}')
            if i == 0:
                A(f'  v_mov_b32_dpp {v(ZS)}, {v(ZC)} row_newbcast:{ss} row_mask:0xf bank_mask:0xf')
                A(f'  v_mov_b32_dpp {v(ZS+1)}, {v(SC)} row_newbcast:{ss} row_mask:0xf bank_mask:0xf')
            X = TV + 4 * i if ss % 2 == 0 else T
            c, rest = dequant(X, slot(o + k), (v(ZS,2), v(ZS,2)), (v(ZS,2), v(ZS,2)), 'op_sel_hi:[1,1,0] ', 'op_sel:[0,1]')
            for x in c: A(x)
            if late:
                for x in lds_: A(x)
            if k == PSMALL:
                for x in vscale_loads(): A(x)
            if ss % 2 == 1:
                rest += [f'  v_cvt_pk_bf16_f32 {v(BV+16*i+4*j+((ss>>1)&3))}, {v(TV+4*i+j)}, {v(T+j)}' for j in range(4)]
            if ss == 10:
                rest += [f'  v_cvt_pk_bf16_f32 {v(BV+16*i+4*j+1)}, {v(TV+4*i+j)}, 0' for j in range(4)]
            side, prep = prep[:per], prep[per:]
            if k == 20:
                side += prep; prep = []
            if k == 23: prep = prep2
            for x in merge(rest, side, 1): A(x)
            if ss == 7:
                for j in range(4):
                    A(f'  v_mfma_f32_16x16x32_bf16 {v(ACC+4*i,4)}, {v(AJ+4*j,4)}, {v(BV+16*i+4*j,4)}, {v(ACC+4*i,4)}')
            if ss == 10:
                assert not prep
                for j in range(4):
                    A(f'  v_mfma_f32_16x16x16_bf16 {v(ACC+4*i,4)}, {v(AK+2*j,2)}, {v(BV+16*i+4*j,2)}, {v(ACC+4*i,4)}')
        A(f'  s_mov_b32 {s(sCUR)}, {s(sNXT)}')
        if u == U - 1:
            A(f'  s_cmp_ge_u32 {s(sF)}, {NF}')
            A('  s_cbranch_scc1 L_v_done')
        A(f'  s_cmp_eq_u32 {s(sHN)}, {s(sHC)}')
        A(f'  s_cbranch_scc1 L_v{(u + 1) % U}')
        A(f'  s_mov_b32 {s(sHC)}, {s(sHN)}')
        flush()
        A(f'  v_add_u32 {v(VFL)}, {SEG}, {v(VFL)}')
        A(f'  v_add_u32 {v(VST)}, {SEG}, {v(VST)}')
        reset_state()
        if u == U - 1: A('  s_branch L_v0')
    for u in range(U): v_unit(u)
    A('L_v_done:')
    stamp()
    flush()
    A('  s_waitcnt vmcnt(0)')

    A('  s_barrier')
    ST = RING; AC = (base + 3) // 4 * 4
    nv = max(nv, AC + 48)
    A(f'  v_lshrrev_b32 {v(AL)}, 1, {v(VBP)}')
    A(f'  v_lshlrev_b32 {v(ALQ)}, 4, v0')
    for j in range(4 // W):
        A(f'  s_mul_i32 {s(sT)}, s3, {SEG}')
        A(f'  s_add_u32 {s(sT)}, {s(sT)}, {LDS_ACC + W * j * SEG}')
        A(f'  v_add_u32 {v(X0)}, {s(sT)}, {v(AL)}')
        for w in range(W):
            A(f'  ds_read_b64 {v(ST+2*(W*j+w),2)}, {v(X0)} offset:{W*3072 + 32*w}')
        A(f'  v_add_u32 {v(X0)}, {s(sT)}, {v(ALQ)}')
        for w in range(W):
            for i in range(3):
                A(f'  ds_read_b128 {v(AC+12*(W*j+w)+4*i,4)}, {v(X0)} offset:{3072*w + 1024*i}')
    A(f'  v_mov_b32 {v(X0)}, {F_TAG}')
    A(f'  ds_read_b32 {v(M)}, {v(X0)}')
    A(f'  s_mov_b32 {s(sSEG)}, -1')
    A(f'  s_add_u32 {s(sLIM)}, {s(sRO)}, 1')
    A('  s_waitcnt lgkmcnt(0)')
    GR = RING + 8; OWN = GR + 40
    gi = lambda b, x: b + 4 * (x // 3) + x % 3
    for j in range(4 // W):
        G = GR + 20 * j
        combine(A, W, ST + 2 * W * j, AC + 12 * W * j, 3, gi(G, 12), gi(G, 13), lambda x: gi(G, x))
        A(f'  s_bfe_u32 {s(sT)}, {s(sREC+j)}, 0x20001')
        A(f'  s_cmp_eq_u32 {s(sT)}, {s(sLIM)}')
        A(f'  s_cbranch_scc1 L_own{j}')
        for g_ in range(5): A(f'  v_mov_b32 {v(G+4*g_+3)}, {v(M)}')
        A(f'  s_mul_i32 {s(sT)}, {s(sREC+j)}, {REC}')
        A(f'  s_add_u32 {s(sT)}, {s(sT)}, {WSOFF}')
        A(f'  s_add_u32 {s(sT+1)}, {s(sT)}, 4096')
        for g_ in range(5):
            A(f'  buffer_store_dwordx4 {v(G+4*g_,4)}, {v(ALQ)}, {s(SW_,4)}, {s(sT + g_ // 4)} offen offset:{1024 * (g_ % 4)} sc1')
        A(f'  s_branch L_pub{j}')
        A(f'L_own{j}:')
        for x in range(14): A(f'  v_mov_b32 {v(gi(OWN, x))}, {v(gi(G, x))}')
        A(f'  s_mov_b32 {s(sSEG)}, {s(sREC+j)}')
        A(f'L_pub{j}:')
    stamp()
    A(f'  s_cmp_eq_u32 {s(sSEG)}, -1')
    A('  s_cbranch_scc1 L_fin')
    FR = AC
    nv = max(nv, FR + 60)
    sR = 84
    A(f'  s_xor_b32 {s(sR)}, {s(sSEG)}, 1')
    A(f'  s_andn2_b32 {s(sR+2)}, {s(sSEG)}, 1')
    A(f'  s_xor_b32 {s(sR+2)}, {s(sR+2)}, 2')
    A(f'  s_add_u32 {s(sR+4)}, {s(sR+2)}, 1')
    for r in range(3):
        A(f'  s_mul_i32 {s(sR+2*r)}, {s(sR+2*r)}, {REC}')
        A(f'  s_add_u32 {s(sR+2*r)}, {s(sR+2*r)}, {WSOFF}')
        A(f'  s_add_u32 {s(sR+2*r+1)}, {s(sR+2*r)}, 4096')
    A(f'  v_mov_b32 {v(X1)}, {s(sR+1)}')
    A(f'  v_writelane_b32 {v(X1)}, {s(sR+3)}, 1')
    A(f'  v_writelane_b32 {v(X1)}, {s(sR+5)}, 2')
    if safe: A(f'  s_mov_b32 {s(sF)}, 0')
    A('L_gather:')
    for r in range(3):
        for g_ in range(5):
            A(f'  buffer_load_dwordx4 {v(FR+20*r+4*g_,4)}, {v(ALQ)}, {s(SW_,4)}, {s(sR + 2*r + g_ // 4)} offen offset:{1024 * (g_ % 4)} sc1')
    A('  s_waitcnt vmcnt(0)')
    tags = [FR + 4 * k + 3 for k in range(15)]
    A(f'  v_xor_b32 {v(X0)}, {v(M)}, {v(tags[0])}')
    for k in range(1, 15):
        A(f'  v_xor_b32 {v(tags[k])}, {v(M)}, {v(tags[k])}')
    for k in range(1, 15, 2):
        A(f'  v_or3_b32 {v(X0)}, {v(X0)}, {v(tags[k])}, {v(tags[k+1])}')
    A(f'  v_cmp_ne_u32 {s(sT,2)}, 0, {v(X0)}')
    A(f'  s_cmp_eq_u64 {s(sT,2)}, 0')
    A('  s_cbranch_scc1 L_gathered')
    if not fullpoll: A('  s_mov_b64 exec, 7')
    A('L_poll:')
    if safe:
        A(f'  s_add_u32 {s(sF)}, {s(sF)}, 1')
        A(f'  s_cmp_gt_u32 {s(sF)}, 20000')
        A('  s_cbranch_scc1 L_end')
    if fullpoll: A('  s_branch L_gather')
    A(f'  buffer_load_dword {v(X0)}, {v(X1)}, {s(SW_,4)}, 0 offen offset:1020 sc1')
    A('  s_waitcnt vmcnt(0)')
    A(f'  v_cmp_ne_u32 {s(sT,2)}, {v(M)}, {v(X0)}')
    A(f'  s_cmp_lg_u64 {s(sT,2)}, 0')
    A('  s_cbranch_scc1 L_poll')
    A('  s_mov_b64 exec, -1')
    A('  s_branch L_gather')
    A('L_gathered:')
    stamp()
    B4 = [OWN, FR, FR + 20, FR + 40]
    A(f'  v_min_f32 {v(X0)}, {v(gi(B4[0],12))}, {v(gi(B4[1],12))}')
    A(f'  v_min3_f32 {v(X0)}, {v(X0)}, {v(gi(B4[2],12))}, {v(gi(B4[3],12))}')
    for b in B4: A(f'  v_sub_f32 {v(gi(b,12))}, {v(X0)}, {v(gi(b,12))}')
    for b in B4: A(f'  v_exp_f32 {v(gi(b,12))}, {v(gi(b,12))}')
    for x in [13] + list(range(12)):
        for b in B4: A(f'  v_mul_f32 {v(gi(b,x))}, {v(gi(b,12))}, {v(gi(b,x))}')
        A(f'  v_add_f32 {v(gi(B4[0],x))}, {v(gi(B4[0],x))}, {v(gi(B4[1],x))}')
        A(f'  v_add_f32 {v(gi(B4[2],x))}, {v(gi(B4[2],x))}, {v(gi(B4[3],x))}')
        A(f'  v_add_f32 {v(gi(B4[0],x))}, {v(gi(B4[0],x))}, {v(gi(B4[2],x))}')
        if x == 13: A(f'  v_rcp_f32 {v(X1)}, {v(gi(OWN,13))}')
    for x in range(12): A(f'  v_mul_f32 {v(gi(OWN,x))}, {v(X1)}, {v(gi(OWN,x))}')
    A(f'  v_mul_u32_u24 {v(X0)}, 24, {v(VBP)}')
    A(f'  v_and_b32 {v(X1)}, 15, v0')
    A(f'  v_lshl_add_u32 {v(X0)}, {v(X1)}, 3, {v(X0)}')
    A(f'  s_lshr_b32 {s(sT)}, {s(sSEG)}, 2')
    A(f'  s_mul_i32 {s(sT)}, {s(sT)}, 1536')
    for i in range(3):
        A(f'  v_cvt_pk_bf16_f32 {v(ACC+2*i)}, {v(gi(OWN,4*i))}, {v(gi(OWN,4*i+1))}')
        A(f'  v_cvt_pk_bf16_f32 {v(ACC+2*i+1)}, {v(gi(OWN,4*i+2))}, {v(gi(OWN,4*i+3))}')
        A(f'  buffer_store_dwordx2 {v(ACC+2*i,2)}, {v(X0)}, {s(SQ,4)}, {s(sT)} offen offset:{128*i} {stf}')
    A('L_fin:')
    if diagpad:
        if diagref: A(f'  v_readfirstlane_b32 s6, {v(M)}')
        A('L_diag:')
        A(f'  s_memrealtime {s(sU,2)}')
        A('  s_waitcnt lgkmcnt(0)')
        A(f'  s_sub_u32 {s(sU)}, {s(sU)}, s6')
        A(f'  s_cmp_lt_u32 {s(sU)}, {diagpad * 100}')
        A('  s_cbranch_scc1 L_diag')
    if tl:
        A(f'  s_mul_i32 {s(sT)}, s2, {W+1}')
        A(f'  s_add_u32 {s(sT)}, {s(sT)}, s3')
        A(f'  s_lshl_b32 {s(sT)}, {s(sT)}, 8')
        A(f'  s_add_u32 {s(sT)}, {s(sT)}, 0x10000')
        A(f'  v_lshl_add_u32 {v(E)}, v0, 2, {s(sT)}')
        A(f'  global_store_dword {v(E)}, {v(TL)}, {s(sWS,2)}')
    if stamps:
        A('  s_waitcnt vmcnt(0)')
        A(f'  s_memrealtime {s(sU,2)}')
        A(f'  s_getreg_b32 {s(sU+2)}, hwreg(HW_REG_XCC_ID)')
        A(f'  s_mul_i32 {s(sT)}, s2, {W+1}')
        A(f'  s_add_u32 {s(sT)}, {s(sT)}, s3')
        A(f'  s_lshl_b32 {s(sT)}, {s(sT)}, 4')
        A('  s_waitcnt lgkmcnt(0)')
        A(f'  v_mov_b32 {v(RING)}, s6')
        A(f'  v_mov_b32 {v(RING+1)}, {s(sU)}')
        A(f'  v_mov_b32 {v(RING+2)}, {s(sU+2)}')
        A(f'  v_mov_b32 {v(RING+3)}, {s(sDEC)}')
        A(f'  v_mov_b32 {v(X0)}, {s(sT)}')
        A('  s_mov_b64 exec, 1')
        A(f'  global_store_dwordx4 {v(X0)}, {v(RING,4)}, {s(sWS,2)}')
    A('L_end:')
    A('  s_endpgm')


    for x in stubs: A(x)

    A('L_helper:')
    if tl:
        A(f'  s_mov_b32 {s(sTL)}, 0')
        A(f'  v_mov_b32 {v(TL)}, 0')
    hA, hZ, hO, h1, h2, h3, hD = 1, 2, 3, 4, 5, 6, 8
    assert hD + 96 <= TL
    A(f'  v_lshlrev_b32 {v(hA)}, 2, v0')
    A(f'  v_add_u32 {v(hA)}, {LDS_F}, {v(hA)}')
    A(f'  v_mov_b32 {v(hZ)}, 0')
    A('  s_mov_b64 exec, 0xffff')
    A(f'  ds_write_b32 {v(hA)}, {v(hZ)}')
    A('  s_mov_b64 exec, -1')
    make_srds()
    A('  s_barrier')
    sOF, sN0, sV0, sJ, sSF, sA, sB, sX, sFA, sFS, sME, sPA = 44, 45, 48, 50, 52, 54, 56, 58, 62, 63, 60, 61
    sQD, sOWN, sUNT, sT0, sNON = 64, 65, 66, 72, 74
    hP, hQ = hD + 96, hD + 97
    hC = (hQ + 2) // 2 * 2
    hW, hU, hT = hC + 9, hC + 10, hC + 12
    assert hT + 1 < TL and W == 2
    A(f'  s_memrealtime {s(sT0,2)}')
    def code_touch(tag):
        if not cpre: return
        for h in range(2):
            A(f'  s_lshr_b32 {s(sT)}, s2, 3')
            A(f'  s_cmp_lt_i32 {s(sT)}, (L_code_end - L_k) / 1024 - {32 * h}')
            A(f'  s_cbranch_scc0 L_h_ct{tag}')
            if h:
                A(f'  v_add_co_u32 {v(hC+2)}, vcc, 0x8000, {v(hC)}')
                A(f'  v_addc_co_u32 {v(hC+3)}, vcc, 0, {v(hC+1)}, vcc')
            A(f'  global_load_dwordx4 {v(hC+4,4)}, {v(hC+2*h,2)}, off')
        A(f'L_h_ct{tag}:')
    if tlb:
        A(f'  v_lshlrev_b32 {v(hD)}, 28, v0')
        A(f'  v_lshlrev_b32 {v(hD+1)}, 21, v0')
        A(f'  s_lshl_b32 {s(sT)}, {s(sPB)}, 16')
        A(f'  s_add_u32 {s(sT)}, {s(sT)}, 0x1ff000')
        A(f'  s_lshr_b32 {s(sT+1)}, s2, 5')
        A(f'  s_lshl_b32 {s(sT+1)}, {s(sT+1)}, 21')
        A(f'  s_add_u32 {s(sT+1)}, {s(sT+1)}, {WSX + 0x1f0000}')
        A(f'  v_writelane_b32 {v(hD+1)}, {s(sT+1)}, 4')
        A(f'  s_mov_b32 {s(SQ)}, {s(PT+14)}')
        A(f'  s_and_b32 {s(SQ+1)}, {s(PT+15)}, 0xffff')
        A('  s_mov_b64 exec, 7')
        A(f'  buffer_load_dword {v(hC+8)}, {v(hD)}, {s(SK,4)}, {s(sT)} offen nt')
        A(f'  buffer_load_dword {v(hC+8)}, {v(hD)}, {s(SV,4)}, {s(sT)} offen nt')
        A('  s_mov_b64 exec, 31')
        A(f'  s_lshl_b32 {s(sT)}, s2, 8')
        A(f'  buffer_load_dword {v(hC+8)}, {v(hD+1)}, {s(SW_,4)}, {s(sT)} offen sc1 nt')
        A('  s_mov_b64 exec, 1')
        A(f'  buffer_load_dword {v(hC+8)}, {v(hD)}, {s(SQ,4)}, {s(sT)} offen sc1 nt')
        A('  s_mov_b64 exec, -1')
    if cpre:
        A(f'  s_getpc_b64 {s(sA,2)}')
        A('L_h_pc:')
        A(f'  s_sub_u32 {s(sA)}, {s(sA)}, L_h_pc - L_k')
        A(f'  s_subb_u32 {s(sA+1)}, {s(sA+1)}, 0')
        A(f'  s_and_b32 {s(sA)}, {s(sA)}, -16')
        A(f'  s_lshr_b32 {s(sT)}, s2, 3')
        A(f'  s_lshl_b32 {s(sT)}, {s(sT)}, 10')
        A(f'  v_lshl_add_u32 {v(hC)}, v0, 4, {s(sT)}')
        A(f'  v_mov_b32 {v(hC+1)}, {s(sA+1)}')
        A(f'  v_add_co_u32 {v(hC)}, vcc, {s(sA)}, {v(hC)}')
        A(f'  v_addc_co_u32 {v(hC+1)}, vcc, 0, {v(hC+1)}, vcc')
        code_touch('a')
    A(f'  s_lshr_b32 {s(sT)}, s2, 4')
    A(f'  s_and_b32 {s(sT)}, {s(sT)}, 8')
    A(f'  s_and_b32 {s(sT+1)}, s2, 7')
    A(f'  s_add_u32 {s(sT)}, {s(sT)}, {s(sT+1)}')
    A(f'  s_lshl_b32 {s(sT)}, {s(sT)}, 4')
    A(f'  v_lshl_add_u32 {v(hP)}, v0, 3, {s(sT)}')
    A(f'  v_and_b32 {v(hQ)}, 31, v0')
    A(f'  v_lshlrev_b32 {v(hQ)}, 3, {v(hQ)}')
    A(f'  v_and_b32 {v(hW)}, 1, v0')
    A(f'  v_lshlrev_b32 {v(hW)}, 2, {v(hW)}')
    A(f'  v_add_u32 {v(hW)}, {F_PRG}, {v(hW)}')
    A(f'  v_mov_b32 {v(hU)}, 0')
    A(f'  v_mov_b32 {v(hU+1)}, 0')
    def wait_progress(tag, lim, slp):
        A(f'  v_mov_b32 {v(hA)}, {F_PRG}')
        A(f'L_h_prog{tag}:')
        if slp: A(f'  s_sleep {slp}')
        A(f'  ds_read_b128 {v(hD,4)}, {v(hA)}')
        A('  s_waitcnt lgkmcnt(0)')
        A(f'  v_min_u32 {v(hD)}, {v(hD)}, {v(hD+1)}')
        if W == 4: A(f'  v_min3_u32 {v(hD)}, {v(hD)}, {v(hD+2)}, {v(hD+3)}')
        A(f'  v_readfirstlane_b32 {s(sA)}, {v(hD)}')
        if slp:
            A(f'  s_cmp_lt_u32 {s(sA)}, {lim}')
            A(f'  s_cbranch_scc1 L_h_prog{tag}')
    A(f'  s_getreg_b32 {s(sJ)}, hwreg(HW_REG_XCC_ID)')
    A(f'  s_bfe_u32 {s(sJ)}, {s(sJ)}, 0x10002')
    A(f'  s_bfe_u32 {s(sSF)}, s2, 0x30003')
    A(f'  s_cmp_eq_u32 {s(sSF)}, 7')
    A('  s_cbranch_scc1 L_h_voted')
    A(f'  s_lshr_b32 {s(sT)}, s2, 6')
    A(f'  s_xor_b32 {s(sT)}, {s(sT)}, s2')
    A(f'  s_and_b32 {s(sT)}, {s(sT)}, {32 // NV - 1}')
    A('  s_cbranch_scc1 L_h_voted')
    A(f'  s_cmp_eq_u32 {s(sSF)}, 6')
    A('  s_cbranch_scc0 L_h_probe')
    A(f'  s_xor_b32 {s(sV0)}, {s(sJ)}, {s(sRO)}')
    A(f'  s_and_b32 {s(sSF)}, s2, 3')
    A(f'  s_lshl2_add_u32 {s(sSF)}, {s(sSF)}, 36')
    A('  s_branch L_h_vote')
    A('L_h_probe:')
    A(f'  s_cmp_ge_u32 {s(sSF)}, 3')
    A(f'  s_cselect_b32 {s(SI)}, {s(SV)}, {s(SK)}')
    A(f'  s_cselect_b32 {s(SI+1)}, {s(SV+1)}, {s(SK+1)}')
    A(f'  s_cselect_b32 {s(sT)}, 3, 0')
    A(f'  s_sub_u32 {s(sT)}, {s(sSF)}, {s(sT)}')
    A(f'  s_lshl_b32 {s(sT)}, {s(sT)}, 28')
    A(f'  s_lshl_b32 {s(sOF)}, {s(sPB)}, 16')
    A(f'  s_add_u32 {s(sOF)}, {s(sOF)}, {s(sT)}')
    A(f'  s_lshl_b32 {s(sT)}, {s(sRO)}, 16')
    A(f'  s_add_u32 {s(sOF)}, {s(sOF)}, {s(sT)}')
    A(f'  s_add_u32 {s(sOF)}, {s(sOF)}, 0x1c0000')
    A(f'  s_mul_i32 {s(sT)}, s2, 0x2a95')
    A(f'  s_and_b32 {s(sT)}, {s(sT)}, 0x7f80')
    A(f'  s_add_u32 {s(sOF)}, {s(sOF)}, {s(sT)}')
    A(f'  s_add_u32 {s(sT)}, {s(sOF)}, 0x8000')
    A(f'  s_buffer_load_dword {s(sX)}, {s(SI,4)}, {s(sT)}')
    A(f'  s_mov_b32 {s(sN0)}, -1')
    A(f'  s_mov_b32 {s(sN0+1)}, -1')
    A(f'  s_mul_i32 {s(sSF)}, {s(sSF)}, 6')
    A('  s_waitcnt lgkmcnt(0)')
    if pdel: wait_progress('p', 1, 2)
    for k in range(NS):
        for c in ((0, 1) if k % 2 == 0 else (1, 0)):
            o = (((k & 1) << 14) | ((k >> 1 & 1) << 12) | ((k * 0x380) & 0xfff)) ^ (c << 13)
            A(f'  s_xor_b32 {s(sT)}, {s(sOF)}, {o}')
            A(f'  s_memtime {s(sA,2)}')
            A('  s_waitcnt lgkmcnt(0)')
            A(f'  s_buffer_load_dword {s(sX)}, {s(SI,4)}, {s(sT)}')
            A('  s_waitcnt lgkmcnt(0)')
            A(f'  s_memtime {s(sB,2)}')
            A('  s_waitcnt lgkmcnt(0)')
            A(f'  s_sub_u32 {s(sB)}, {s(sB)}, {s(sA)}')
            A(f'  s_min_u32 {s(sN0+c)}, {s(sN0+c)}, {s(sB)}')
    A(f'  s_cmp_lt_u32 {s(sN0+1)}, {s(sN0)}')
    A(f'  s_cselect_b32 {s(sV0)}, 1, 0')
    A(f'  s_lshr_b32 {s(sT)}, {s(sOF)}, 13')
    A(f'  s_xor_b32 {s(sT)}, {s(sT)}, s2')
    A(f'  s_xor_b32 {s(sT)}, {s(sT)}, {s(sJ)}')
    A(f'  s_and_b32 {s(sT)}, {s(sT)}, 1')
    A(f'  s_xor_b32 {s(sV0)}, {s(sV0)}, {s(sT)}')
    A('L_h_vote:')
    A(f'  s_mov_b32 {s(sV0+1)}, 0')
    A(f'  s_lshl_b64 {s(sV0,2)}, {s(sV0,2)}, {s(sSF)}')
    A(f'  s_or_b32 {s(sV0+1)}, {s(sV0+1)}, 0x1000000')
    A(f'  s_atomic_add_x2 {s(sV0,2)}, {s(sDBG,2)}, 0')
    A('L_h_voted:')
    A('  s_waitcnt lgkmcnt(0)')
    A('  s_cmp_lg_u32 s2, 56')
    A('  s_cbranch_scc1 L_h_nonce')
    A(f'  s_lshl_b64 {s(sA,2)}, {s(sT0,2)}, 2')
    A(f'  s_atomic_add_x2 {s(sA,2)}, {s(sDBG,2)}, 8')
    A('  s_waitcnt lgkmcnt(0)')
    A('L_h_nonce:')
    stamp()
    sCP, sCA, sUP, sRET, sSUB, sTHU = 76, 77, 78, 84, 86, 79
    A(f'  s_mov_b32 {s(sCP)}, {cp0}')
    A(f'  s_mov_b32 {s(sCA)}, {WSC}')
    A(f'  s_getpc_b64 {s(sSUB,2)}')
    A('L_h_pc2:')
    A(f'  s_add_u32 {s(sSUB)}, {s(sSUB)}, L_h_cp - L_h_pc2')
    A(f'  s_addc_u32 {s(sSUB+1)}, {s(sSUB+1)}, 0')
    def checkpoints(upto):
        A(f'  s_mov_b32 {s(sUP)}, {min(upto, last) - dly}')
        A(f'  s_swappc_b64 {s(sRET,2)}, {s(sSUB,2)}')
    def checkpoint_sub():
        A('L_h_cp:')
        A(f'  s_cmp_gt_u32 {s(sCP)}, {s(sUP)}')
        A('  s_cbranch_scc0 L_h_cpgo')
        A(f'  s_setpc_b64 {s(sRET,2)}')
        A('L_h_cpgo:')
        A(f'  ds_read_b32 {v(hD)}, {v(hW)}')
        A(f'  s_memrealtime {s(sA,2)}')
        A('  s_waitcnt lgkmcnt(0)')
        A(f'  v_mov_b32 {v(hT)}, {s(sA)}')
        A(f'  v_mov_b32 {v(hT+1)}, {s(sA+1)}')
        A(f'  v_cmp_gt_u32 vcc, {s(sCP)}, {v(hD)}')
        A('  s_cmp_eq_u32 vcc_lo, 0')
        A('  s_cbranch_scc1 L_h_cpnext')
        A('L_h_cpm:')
        A('  s_sleep 2')
        A(f'  ds_read_b32 {v(hD)}, {v(hW)}')
        A(f'  s_memrealtime {s(sA,2)}')
        A('  s_waitcnt lgkmcnt(0)')
        A(f'  v_mov_b32 {v(hD+2)}, {s(sA)}')
        A(f'  v_mov_b32 {v(hD+3)}, {s(sA+1)}')
        A(f'  v_cndmask_b32 {v(hT)}, {v(hT)}, {v(hD+2)}, vcc')
        A(f'  v_cndmask_b32 {v(hT+1)}, {v(hT+1)}, {v(hD+3)}, vcc')
        A(f'  v_cmp_gt_u32 vcc, {s(sCP)}, {v(hD)}')
        A('  s_cmp_lg_u32 vcc_lo, 0')
        A('  s_cbranch_scc1 L_h_cpm')
        A(f'  s_and_b32 {s(sT)}, s2, 0x78')
        A('  s_cbranch_scc1 L_h_np')
        A('  s_mov_b64 exec, 3')
        A(f'  buffer_store_dwordx2 {v(hT,2)}, {v(hP)}, {s(SW_,4)}, {s(sCA)} offen sc1')
        A('  s_mov_b64 exec, -1')
        A('L_h_np:')
        A(f'  s_add_u32 {s(sJ)}, {s(sCP)}, {dly}')
        wait_progress('c1', s(sJ), 4)
        A(f'  buffer_load_dwordx2 {v(hD,2)}, {v(hQ)}, {s(SW_,4)}, {s(sCA)} offen {fl(cpf)}')
        A(f'  v_mov_b32 {v(hD+2)}, {s(sT0+1)}')
        A('  s_waitcnt vmcnt(0)')
        A(f'  ds_read_b32 {v(hD+4)}, {v(hW)}')
        A(f'  v_subrev_co_u32 {v(hD)}, vcc, {s(sT0)}, {v(hD)}')
        A(f'  v_subb_co_u32 {v(hD+1)}, vcc, {v(hD+1)}, {v(hD+2)}, vcc')
        A(f'  v_lshrrev_b32 {v(hD+2)}, 24, {v(hD)}')
        A(f'  v_or_b32 {v(hD+1)}, {v(hD+1)}, {v(hD+2)}')
        A(f'  v_cmp_eq_u32 vcc, 0, {v(hD+1)}')
        A(f'  v_cndmask_b32 {v(hD)}, 0, {v(hD)}, vcc')
        A(f'  s_bcnt1_i32_b32 {s(sB)}, vcc_lo')
        for r in (8, 4, 2, 1):
            A(f'  v_add_u32_dpp {v(hD)}, {v(hD)}, {v(hD)} row_ror:{r} row_mask:0xf bank_mask:0xf')
        A(f'  v_readlane_b32 {s(sA)}, {v(hD)}, 0')
        A(f'  v_readlane_b32 {s(sT)}, {v(hD)}, 16')
        A(f'  v_subrev_u32 {v(hD)}, {s(sT0)}, {v(hT)}')
        A(f'  v_mul_lo_u32 {v(hD)}, {v(hD)}, {s(sB)}')
        A(f'  s_add_u32 {s(sA)}, {s(sA)}, {s(sT)}')
        A(f'  s_max_u32 {s(sB)}, {s(sB)}, 1')
        A(f'  v_subrev_u32 {v(hD)}, {s(sA)}, {v(hD)}')
        A(f'  v_cvt_f32_u32 {v(hD+1)}, {s(sB)}')
        A(f'  v_cvt_f32_i32 {v(hD)}, {v(hD)}')
        A(f'  v_rcp_f32 {v(hD+1)}, {v(hD+1)}')
        A(f'  v_mul_f32 {v(hD)}, {v(hD)}, {v(hD+1)}')
        A(f'  v_cvt_i32_f32 {v(hD)}, {v(hD)}')
        A('  s_waitcnt lgkmcnt(0)')
        A(f'  v_add_u32 {v(hD+4)}, {W}, {v(hD+4)}')
        acts = [(hU, gain, dead, False, F_BST)] + ([(hU + 1, gth, deadt, True, F_THR)] if tev else [])
        for unt, g_, dd, neg, addr in acts:
            A(f'  v_min_u32 {v(hD+1)}, {v(unt)}, {v(hD+4)}')
            A(f'  v_subrev_u32 {v(hD+1)}, {s(sCP)}, {v(hD+1)}')
            A(f'  v_max_i32 {v(hD+1)}, 0, {v(hD+1)}')
            A(f'  v_lshrrev_b32 {v(hD+1)}, 1, {v(hD+1)}')
            A(f'  v_mul_u32_u24 {v(hD+1)}, {g_}, {v(hD+1)}')
            A(f'  v_{"add" if neg else "sub"}_u32 {v(hD)}, {v(hD)}, {v(hD+1)}')
        for unt, g_, dd, neg, addr in acts:
            A(f'  v_{"sub" if neg else "add"}_u32 {v(hD+1)}, {g_ // 2 - dd}, {v(hD)}')
            A(f'  v_max_i32 {v(hD+1)}, 0, {v(hD+1)}')
            A(f'  v_min_i32 {v(hD+1)}, 2000, {v(hD+1)}')
            A(f'  v_mul_u32_u24 {v(hD+1)}, {65536 // g_}, {v(hD+1)}')
            A(f'  v_lshrrev_b32 {v(hD+1)}, 16, {v(hD+1)}')
            A(f'  v_cmp_ne_u32 vcc, 0, {v(hD+1)}')
            A(f'  v_lshl_add_u32 {v(hD+1)}, {v(hD+1)}, 1, {v(hD+4)}')
            A(f'  v_cndmask_b32 {v(unt)}, 0, {v(hD+1)}, vcc')
            A(f'  ds_write_b32 {v(hW)}, {v(unt)} offset:{addr - F_PRG}')
        A('L_h_cpnext:')
        A(f'  s_add_u32 {s(sCP)}, {s(sCP)}, {step}')
        A(f'  s_add_u32 {s(sCA)}, {s(sCA)}, 256')
        A('  s_branch L_h_cp')
    wait_progress('v', PW, 8)
    if vsl: A(f'  s_sleep {vsl}')
    A(f'  s_load_dwordx2 {s(sV0,2)}, {s(sDBG,2)}, 0')
    if safe: A('  s_mov_b32 s59, 0')
    A('L_h_votes:')
    A('  s_waitcnt lgkmcnt(0)')
    A(f'  s_lshr_b32 {s(sT)}, {s(sV0+1)}, 24')
    A(f'  s_cmp_eq_u32 {s(sT)}, {7 * NV}')
    A('  s_cbranch_scc1 L_h_votes_done')
    if safe:
        A('  s_add_u32 s59, s59, 1')
        A('  s_cmp_gt_u32 s59, 2000')
        A('  s_cbranch_scc1 L_h_votes_done')
    A('  s_sleep 64')
    A(f'  s_mov_b64 {s(sV0,2)}, 0')
    A(f'  s_atomic_or_x2 {s(sV0,2)}, {s(sDBG,2)}, 0 glc')
    A('  s_branch L_h_votes')
    A('L_h_votes_done:')
    A(f'  s_mov_b32 {s(sDEC)}, 0x80')
    for j in range(6):
        A(f'  s_bfe_u64 {s(sA,2)}, {s(sV0,2)}, {hex(0x60000 | (6 * j))}')
        A(f'  s_cmp_gt_u32 {s(sA)}, {NV // 2}')
        A(f'  s_cselect_b32 {s(sB)}, {1 << j}, 0')
        A(f'  s_or_b32 {s(sDEC)}, {s(sDEC)}, {s(sB)}')
        A(f'  s_sub_u32 {s(sA)}, {s(sA)}, {THR + 1}')
        A(f'  s_cmp_lt_u32 {s(sA)}, {NV - 2 * THR - 1}')
        A(f'  s_cselect_b32 {s(sB)}, 64, 0')
        A(f'  s_or_b32 {s(sDEC)}, {s(sDEC)}, {s(sB)}')
    A(f'  s_and_b32 {s(sT)}, s2, 3')
    A(f'  s_lshl2_add_u32 {s(sT)}, {s(sT)}, 4')
    A(f'  s_lshr_b32 {s(sA)}, {s(sV0+1)}, {s(sT)}')
    A(f'  s_and_b32 {s(sB)}, {s(sA)}, {NV // 4 - 1}')
    A(f'  s_cselect_b32 {s(sB)}, 64, 0')
    A(f'  s_or_b32 {s(sDEC)}, {s(sDEC)}, {s(sB)}')
    if force >= 0:
        A(f'  s_mov_b32 {s(sDEC)}, {0x80 | force}')
    A(f'  s_lshr_b32 {s(sA)}, {s(sA)}, {(NV // 4).bit_length() - 1}')
    A(f'  s_xor_b32 {s(sA)}, {s(sA)}, s2')
    A(f'  s_xor_b32 {s(sA)}, {s(sA)}, {s(sRO)}')
    A(f'  s_and_b32 {s(sA)}, {s(sA)}, 1')
    A(f'  s_mul_i32 {s(sA)}, {s(sA)}, 63')
    A(f'  s_xor_b32 {s(sDEC)}, {s(sDEC)}, {s(sA)}')
    A(f'  v_mov_b32 {v(hA)}, {F_DEC}')
    A(f'  v_mov_b32 {v(hD)}, {s(sDEC)}')
    A(f'  ds_write_b32 {v(hA)}, {v(hD)}')
    stamp()
    A(f'  v_lshlrev_b32 {v(hO)}, 4, v0')
    if pf and not pfw:
        for srd, nb in ((SKS, 24576), (SKZ, 24576), (SVS, 8192), (SVZ, 8192)):
            A(f'  s_mul_i32 {s(sA)}, s2, {nb}')
            for k in range(nb // 1024):
                if k % 4 == 0 and k: A(f'  s_add_u32 {s(sA)}, {s(sA)}, 4096')
                A(f'  s_waitcnt vmcnt({pf - 1})')
                A(f'  buffer_load_dwordx4 {v(hD,4)}, {v(hO)}, {s(srd,4)}, {s(sA)} offen offset:{(k % 4) * 1024}')
        A('  s_waitcnt vmcnt(0)')
    stamp()
    A(f'  s_load_dwordx2 {s(sNON,2)}, {s(sDBG,2)}, 8')
    A('L_h_getnonce:')
    A('  s_waitcnt lgkmcnt(0)')
    A(f'  s_cmp_lg_u64 {s(sNON,2)}, 0')
    A('  s_cbranch_scc1 L_h_gotnonce')
    A('  s_sleep 32')
    A(f'  s_atomic_or_x2 {s(sNON,2)}, {s(sDBG,2)}, 8 glc')
    A('  s_branch L_h_getnonce')
    A('L_h_gotnonce:')
    A(f'  s_lshr_b64 {s(sA,2)}, {s(sNON,2)}, 2')
    A(f'  v_mov_b32 {v(hA)}, {F_TAG}')
    A(f'  v_mov_b32 {v(hD)}, {s(sA)}')
    A(f'  ds_write_b32 {v(hA)}, {v(hD)}')
    checkpoints(64)
    A(f'  s_bitcmp1_b32 {s(sDEC)}, 6')
    A('  s_cbranch_scc1 L_h_skipa0')
    A(f'  s_lshl_b32 {s(sFA)}, s2, 8')
    A(f'  s_add_u32 {s(sFA)}, {s(sFA)}, {WSF}')
    A(f'  s_xor_b32 {s(sFS)}, {s(sFA)}, 1024')
    A(f'  s_lshr_b32 {s(sX)}, {s(sDEC)}, 3')
    A(f'  s_xor_b32 {s(sX)}, {s(sX)}, {s(sDEC)}')
    A(f'  s_lshr_b32 {s(sT)}, {s(sPB)}, 4')
    A(f'  s_lshr_b32 {s(sOF)}, {s(sT)}, 5')
    A(f'  s_lshl_b32 {s(sOF)}, {s(sOF)}, 21')
    A(f'  s_add_u32 {s(sOF)}, {s(sOF)}, {WSX}')
    A(f'  s_and_b32 {s(sQD)}, {s(sT)}, 31')
    A(f'  s_add_u32 {s(sT)}, {s(sQD)}, {s(sRO)}')
    A(f'  s_lshl_b32 {s(sT)}, {s(sT)}, 10')
    A(f'  s_add_u32 {s(sME)}, {s(sOF)}, {s(sT)}')
    A(f'  s_xor_b32 {s(sPA)}, {s(sME)}, 1024')
    def pxor(k):
        h = k >> 2
        c = (h & 3) ^ (((h >> 2) & 1) * 17) ^ (((h >> 3) & 1) * 4)
        return (k << 15) | (c << 10)
    NW = NWU * 384 // 1024
    def reg(k): return hD + 4 * (k % 24)
    def export(lo, hi):
        for k in range(lo, hi): A(f'  ds_read_b128 {v(reg(k),4)}, {v(hO)} offset:{1024*k}')
        A('  s_waitcnt lgkmcnt(0)')
        for k in range(lo, hi):
            A(f'  s_xor_b32 {s(sT)}, {s(sME)}, {pxor(k)}')
            if xdep: A(f'  s_waitcnt vmcnt({xdep - 1})')
            if not noexp: A(f'  buffer_store_dwordx4 {v(reg(k),4)}, {v(hO)}, {s(SW_,4)}, {s(sT)} offen {fl(xf)}')
    def imp(lo, hi):
        for k in range(lo, hi):
            A(f'  s_xor_b32 {s(sT)}, {s(sPA)}, {pxor(k)}')
            if idep: A(f'  s_waitcnt vmcnt({idep - 1})')
            if not noimp: A(f'  buffer_load_dwordx4 {v(reg(k),4)}, {v(hO)}, {s(SW_,4)}, {s(sT)} offen {fl(impf)}')
        A('  s_waitcnt vmcnt(0)')
        for k in range(lo, hi): A(f'  ds_write_b128 {v(hO)}, {v(reg(k),4)} offset:{1024*k}')
    def cond(bit, tag, fn):
        A(f'  s_bitcmp0_b32 {s(sX)}, {bit}')
        A(f'  s_cbranch_scc1 L_h_{tag}')
        fn()
        A(f'L_h_{tag}:')
    def signal(level):
        A(f'  s_add_u32 {s(sA)}, {s(sNON)}, {level}')
        A(f'  v_mov_b32 {v(h2)}, 0')
        A('  s_waitcnt vmcnt(0)')
        A(f'  v_mov_b32 {v(hD)}, {s(sA)}')
        A(f'  v_mov_b32 {v(hD+1)}, {s(sNON+1)}')
        A('  s_mov_b64 exec, 1')
        A(f'  buffer_store_dwordx2 {v(hD,2)}, {v(h2)}, {s(SW_,4)}, {s(sFA)} offen sc1')
        A('  s_mov_b64 exec, -1')
    def await_partner(tag, level):
        A(f'  s_add_u32 {s(sA)}, {s(sNON)}, {level}')
        A(f'  v_mov_b32 {v(h2)}, 0')
        A('  s_mov_b64 exec, 1')
        if safe: A('  s_mov_b32 s59, 0')
        A(f'L_h_flag{tag}:')
        A(f'  buffer_load_dwordx2 {v(hD+2,2)}, {v(h2)}, {s(SW_,4)}, {s(sFS)} offen sc1')
        A('  s_waitcnt vmcnt(0)')
        A(f'  v_readfirstlane_b32 {s(sB)}, {v(hD+2)}')
        A(f'  v_readfirstlane_b32 {s(sB+1)}, {v(hD+3)}')
        A(f'  s_sub_u32 {s(sB)}, {s(sB)}, {s(sA)}')
        A(f'  s_xor_b32 {s(sB+1)}, {s(sB+1)}, {s(sNON+1)}')
        A(f'  s_lshr_b32 {s(sB)}, {s(sB)}, 1')
        A(f'  s_or_b32 {s(sB)}, {s(sB)}, {s(sB+1)}')
        A(f'  s_cbranch_scc0 L_h_flag{tag}_done')
        if safe:
            A('  s_add_u32 s59, s59, 1')
            A('  s_cmp_gt_u32 s59, 2000')
            A(f'  s_cbranch_scc1 L_h_flag{tag}_done')
        A('  s_sleep 32')
        A(f'  s_branch L_h_flag{tag}')
        A(f'L_h_flag{tag}_done:')
        A('  s_mov_b64 exec, -1')
    wait_progress('a', 64, 8)
    stamp()
    export(0, NW)
    cond(0, 'e0', lambda: export(NW, 12))
    cond(1, 'e1', lambda: export(12, 24))
    signal(1)
    A('L_h_skipa0:')
    checkpoints(ia)
    A(f'  s_bitcmp1_b32 {s(sDEC)}, 6')
    A('  s_cbranch_scc1 L_h_skipa')
    if ia > 64: wait_progress('ia', ia, 8)
    await_partner('a', 1)
    stamp()
    A(f'  s_bfe_u32 {s(sA)}, {s(sDEC)}, 0x10003')
    A(f'  s_mul_i32 {s(sA)}, {s(sA)}, 384')
    A(f'  v_lshrrev_b32 {v(h1)}, 3, v0')
    for k in range(NW):
        A(f'  v_add_u32 {v(h2)}, {8 * k}, {v(h1)}')
        A(f'  v_mul_u32_u24 {v(h2)}, 21846, {v(h2)}')
        A(f'  v_bfe_u32 {v(h2)}, {v(h2)}, 16, 1')
        A(f'  v_mul_u32_u24 {v(h3)}, 384, {v(h2)}')
        A(f'  v_sub_u32 {v(h3)}, {v(hO)}, {v(h3)}')
        A(f'  v_add_u32 {v(h3)}, {s(sA)}, {v(h3)}')
        A(f'  v_add_u32 {v(h3)}, {1024 * k}, {v(h3)}')
        A(f'  v_add_u32 {v(h2)}, {s(sQD)}, {v(h2)}')
        A(f'  v_lshrrev_b32 {v(hZ)}, 12, {v(h3)}')
        A(f'  v_xor_b32 {v(h2)}, {v(h2)}, {v(hZ)}')
        A(f'  v_lshrrev_b32 {v(hZ)}, 10, {v(h3)}')
        A(f'  v_lshl_add_u32 {v(h2)}, {v(hZ)}, 5, {v(h2)}')
        A(f'  v_and_b32 {v(h3)}, 1023, {v(h3)}')
        A(f'  v_lshl_add_u32 {v(h2)}, {v(h2)}, 10, {v(h3)}')
        if not noimp: A(f'  buffer_load_dwordx4 {v(reg(k),4)}, {v(h2)}, {s(SW_,4)}, {s(sOF)} offen sc1')
    A('  s_waitcnt vmcnt(0)')
    for k in range(NW): A(f'  ds_write_b128 {v(hO)}, {v(reg(k),4)} offset:{1024*k}')
    cond(0, 'i0', lambda: imp(NW, 12))
    cond(1, 'i1', lambda: imp(12, 24))
    stamp()
    A('L_h_skipa:')
    A(f'  s_lshr_b32 {s(sT)}, {s(sDEC)}, 4')
    A(f'  s_andn2_b32 {s(sX)}, {s(sX)}, {s(sT)}')
    A(f'  s_bitcmp0_b32 {s(sX)}, 2')
    A(f'  s_cselect_b32 {s(sT)}, 255, 64')
    A(f'  v_mov_b32 {v(hA)}, {F_IMP}')
    A(f'  v_mov_b32 {v(h2)}, {s(sT)}')
    A(f'  ds_write_b32 {v(hA)}, {v(h2)}')
    checkpoints(NF)
    code_touch('b')
    A(f'  s_bitcmp0_b32 {s(sX)}, 2')
    A('  s_cbranch_scc1 L_h_skipb0')
    wait_progress('b', NF, 8)
    stamp()
    export(24, 36)
    signal(2)
    A('L_h_skipb0:')
    checkpoints(ib)
    A(f'  s_bitcmp0_b32 {s(sX)}, 2')
    A('  s_cbranch_scc1 L_h_all')
    if ib > NF: wait_progress('ib', ib, 8)
    await_partner('b', 2)
    stamp()
    imp(24, 36)
    stamp()
    A(f'  v_mov_b32 {v(hA)}, {F_IMP}')
    A(f'  v_mov_b32 {v(h2)}, 255')
    A(f'  ds_write_b32 {v(hA)}, {v(h2)}')
    A('L_h_all:')
    checkpoints(176)
    code_touch('c')
    checkpoints(999)
    A('  s_waitcnt lgkmcnt(0)')
    if stamps or tl:
        A('  s_branch L_fin')
    else:
        A('  s_endpgm')
    checkpoint_sub()
    A('L_code_end:')
    body = pad(L)

    nva = (nv + 7) // 8 * 8
    out = HDR + f'; @launch grid=(256,1,1) block=({64*(W+1)},1,1) lds={lds}\n'
    out += '.amdgcn_target "amdgcn-amd-amdhsa--gfx950"\n.text\n'
    out += f'.globl {NAME}\n.p2align 8\n.type {NAME},@function\n'
    out += '\n'.join(body) + '\n'
    out += '.section .rodata,"a"\n'
    for nm, nvv, nss in ((NAME, nva, 102),):
        out += f'''.p2align 6
.amdhsa_kernel {nm}
  .amdhsa_next_free_vgpr {nvv}
  .amdhsa_next_free_sgpr {nss}
  .amdhsa_accum_offset {nvv}
  .amdhsa_group_segment_fixed_size 0
  .amdhsa_kernarg_size 80
  .amdhsa_user_sgpr_count 2
  .amdhsa_user_sgpr_kernarg_segment_ptr 1
  .amdhsa_system_sgpr_workgroup_id_x 1
  .amdhsa_float_denorm_mode_32 3
.end_amdhsa_kernel
'''
    return out

if __name__ == '__main__':
    kw = {}
    for x in sys.argv[2:]:
        k, val = x.split('=')
        kw[k] = int(val) if val.lstrip('-').isdigit() else val
    open(sys.argv[1], 'w').write(gen(**kw))
```

```python
import sys, os
sys.path.insert(0, os.path.dirname(os.path.abspath(__file__)))
from asmlib import pad
NAME = 'standalone__kv_cache_quant_int4_int2_kv_with_per_channel_or_per_token_scales__sampling_kernel'
HEAD = 4096 * 768
TOTAL = 256 * HEAD
REC = 5120
WSOFF = 1 << 20
WSX = 8 << 20
WSC = 7 << 20
WSF = (7 << 20) + (1 << 16)
IMG = 96 * 384
WSEND = WSX + (16 << 20)
OOB = 0x7ffffff0
HDR = open(os.path.join(os.path.dirname(os.path.abspath(__file__)), 'header.txt')).read()
assert all(((32 * c + 1) * 21846) >> 16 == (32 * c + 1) // 3 for c in range(25))
assert all((c * 43) >> 8 == c // 6 for c in range(24))

class Alloc:
    def __init__(self, start): self.n = start
    def __call__(self, k, align=1):
        self.n = (self.n + align - 1) // align * align
        r = self.n; self.n += k
        return r

def v(r, k=1): return f'v{r}' if k == 1 else f'v[{r}:{r+k-1}]'
def s(r, k=1): return f's{r}' if k == 1 else f's[{r}:{r+k-1}]'

def merge(main, side, every):
    out = []; side = list(side); c = 0
    for m in main:
        out.append(m); c += 1
        if side and c % every == 0: out.append(side.pop(0))
    return out + side

def combine(A, n, ST, AC, npiece, X0, X1, OUT):
    A(f'  v_min_f32 {v(X0)}, {v(ST)}, {v(ST+2)}')
    for w in range(2, n): A(f'  v_min_f32 {v(X0)}, {v(X0)}, {v(ST+2*w)}')
    for w in range(n): A(f'  v_sub_f32 {v(ST+2*w)}, {v(X0)}, {v(ST+2*w)}')
    for w in range(n): A(f'  v_exp_f32 {v(ST+2*w)}, {v(ST+2*w)}')
    A(f'  v_mul_f32 {v(X1)}, {v(ST)}, {v(ST+1)}')
    for w in range(1, n): A(f'  v_fma_f32 {v(X1)}, {v(ST+2*w)}, {v(ST+2*w+1)}, {v(X1)}')
    for i in range(npiece):
        for j in range(4):
            A(f'  v_mul_f32 {v(OUT(4*i+j))}, {v(ST)}, {v(AC+4*i+j)}')
            for w in range(1, n):
                A(f'  v_fma_f32 {v(OUT(4*i+j))}, {v(ST+2*w)}, {v(AC+4*(npiece*w+i)+j)}, {v(OUT(4*i+j))}')

def gen(D=11, W=2, stamps=False, sf='-', stf='-', tl=0, NWU=8, NS=3, pf=8, force=-1, THR=2, NV=8, safe=0, PW=0, xf='sc1', noexp=0, noimp=0, DC=15, U=2, gain=22, dly=4, dead=0, diagpad=0, diagref=0, ldsz=62464, pfw=16, PSK=17, vsl=0, cpf='-', fullpoll=1, cpre=1, impf='sc1', xdep=0, idep=4, ia=72, ib=104, tlb=0, DT=4, gth=22, deadt=50, cp0=12, step=8, last=186, tev=0, pdel=1, wsy=0, diagat=-1):
    R = 11 * U; NST = 33; NF = 96
    DN = D; D = DC = DC or D
    assert DN <= D <= R and NWU % 8 == 0 and W in (2, 4)
    PW = PW or NWU - W
    fl = lambda x: x.replace('-', '').replace('+', ' ')
    sf, stf = fl(sf), fl(stf)
    L = []
    A = L.append
    va = Alloc(1)
    RING = va(4 * R, 4); VO = va(4)
    DUP = va(1); DOWN = va(1); DCON = va(1); ICV = va(1); TU = va(1)
    VVS = va(1); VL1 = va(1); VL2 = va(1); VBP = va(1); VFL = va(1); VST = va(1); VPR = va(1)
    VOOB = va(1); VBA = va(1); VBS = va(1); VBD = va(1); VBC = va(1)
    T = va(4, 2); ZN = va(1); SN = va(1); ZC = va(1); SC = va(1); ZS = va(2, 2)
    LG = va(6, 4); ACC = va(12, 4); M = va(1); NB = va(2, 2); LS = NB + 1
    X0 = va(2, 2); X1 = X0 + 1; AL = va(1); ALQ = va(1); E = va(11); PP = va(6); TL = va(1)
    base = va.n
    QB = va(6, 4); QN = va(6, 2); KSR = va(6, 2); KZR = va(6, 2); KS = va(12, 2); KZ = va(12, 2); KA = va(6, 4); SD = va(4, 4); S = va(2, 2)
    IUP = va(1); IOWN = va(1); ICON = va(1); VKS0 = va(1); VKS = va(1); VQ = va(1); VNI = va(1)
    kend = va.n
    va.n = base
    AJ = va(16, 4); AK = va(8, 2); TV = va(12, 2); BV = va(48, 4)
    nv = max(va.n, kend)
    sRO, sPB = 4, 5
    SK, SV, SI, SKS, SKZ, SVS, SVZ, SQ, SW_ = 8, 12, 16, 20, 24, 28, 32, 36, 40
    PT = 44
    sREC, sL0, sL10, sM0, sM10, sLOW = 44, 48, 50, 52, 54, 56
    sCUR, sNXT, sSO, sF, sMSK, sL2E, sTL, s768, sSCL, sT = 60, 61, 62, 64, 65, 66, 67, 63, 68, 70
    sMJ = 72
    sDBG, sWS = 80, 82
    sQ3, sC, sQC, sCC, sHC, sHN, sDIV, sSH = 84, 85, 86, 87, 88, 89, 90, 91
    sDEC, sLIM, sGATE, sSEG = 96, 97, 99, 100
    sU = 92
    sBIG, sSM = 92, 94
    SEG = W * 3072 + W * 32
    LDS_ACC = IMG
    LDS_F = LDS_ACC + 4 * SEG
    F_DEC, F_IMP, F_BST, F_TAG, F_PRG = LDS_F, LDS_F + 4, LDS_F + 8, LDS_F + 12, LDS_F + 16
    F_BST = F_PRG + 16; F_THR = F_PRG + 32
    cps = True
    lds = ldsz
    assert LDS_F + 64 <= lds

    A(f'{NAME}:')
    A('  s_cmp_ge_u32 s2, 256')
    A('  s_cbranch_scc1 L_end')
    A(f'  s_load_dwordx16 {s(PT,16)}, s[0:1], 0')
    A(f'  s_load_dwordx4 {s(sDBG,4)}, s[0:1], 64')
    if stamps or diagpad:
        A('  s_memrealtime s[6:7]')
    A('  v_lshrrev_b32 v1, 6, v0')
    A('  v_and_b32 v0, 63, v0')
    A('  v_readfirstlane_b32 s3, v1')
    A(f'  s_bfe_u32 {s(sRO)}, s2, 0x10002')
    A(f'  s_lshr_b32 {s(sPB)}, s2, 3')
    A(f'  s_lshl_b32 {s(sPB)}, {s(sPB)}, 2')
    A(f'  s_and_b32 {s(sT)}, s2, 3')
    A(f'  s_add_u32 {s(sPB)}, {s(sPB)}, {s(sT)}')
    A(f'  s_lshl_b32 {s(sPB)}, {s(sPB)}, 5')
    SRDS = ((SKS, PT + 6, 256 * 24576), (SKZ, PT + 8, 256 * 24576), (SVS, PT + 10, 256 * 8192), (SVZ, PT + 12, 256 * 8192),
            (SK, PT + 2, TOTAL), (SQ, PT, 256 * 1536), (SI, PT + 2, TOTAL), (SV, PT + 4, TOTAL), (SW_, sWS, WSEND))
    for srd, p, nb in SRDS:
        A(f'  s_mov_b32 {s(srd+2)}, {nb}')
        A(f'  s_mov_b32 {s(srd+3)}, 0x20000')
    def make_srds(lo=0, hi=9):
        if lo == 0: A('  s_waitcnt lgkmcnt(0)')
        for srd, p, nb in SRDS[lo:hi]:
            A(f'  s_mov_b32 {s(srd)}, {s(p)}')
            A(f'  s_and_b32 {s(srd+1)}, {s(p+1)}, 0xffff')
    A(f'  s_cmp_eq_u32 s3, {W}')
    A('  s_cbranch_scc1 L_helper')

    cls, a, g, n = T, T + 1, T + 2, T + 3
    A(f'  v_and_b32 {v(cls)}, 3, v0')
    A(f'  v_bfe_u32 {v(a)}, v0, 2, 2')
    A(f'  v_lshrrev_b32 {v(g)}, 4, v0')
    A(f'  v_and_b32 {v(n)}, 15, v0')
    def stream_consts(x, up, own, con, lanepart):
        A(f'  v_and_b32 {v(own)}, 2, {v(x)}')
        A(f'  v_lshlrev_b32 {v(up)}, 5, {v(own)}')
        A(f'  v_add_u32 {v(up)}, 129, {v(up)}')
        A(f'  v_and_b32 {v(X1)}, 1, {v(x)}')
        A(f'  v_lshl_add_u32 {v(own)}, {v(X1)}, 2, {v(own)}')
        A(f'  v_mul_u32_u24 {v(X1)}, {43 * 768}, {v(X1)}')
        A(f'  v_add_u32 {v(con)}, {v(lanepart)}, {v(X1)}')
        A(f'  v_subrev_u32 {v(con)}, {43 * 768}, {v(con)}')
    A(f'  v_lshlrev_b32 {v(X0)}, 4, {v(cls)}')
    A(f'  v_lshl_add_u32 {v(X0)}, {v(g)}, 6, {v(X0)}')
    A(f'  v_lshrrev_b32 {v(VKS0)}, 1, {v(X0)}')
    stream_consts(a, IUP, IOWN, ICON, X0)
    A(f'  v_mul_u32_u24 {v(X1)}, 384, {v(a)}')
    A(f'  v_add_u32 {v(VQ)}, {v(X1)}, {v(VKS0)}')
    A(f'  v_mov_b32 {v(VOOB)}, {OOB}')
    A(f'  s_mov_b32 {s(sDIV)}, 0xaaaaaaab')
    A(f'  s_mov_b32 {s(sSH)}, 0x492492')
    A(f'  s_movk_i32 {s(s768)}, 768')
    def slot(k): return RING + 4 * (k % R)
    def main_load(k, srd, so):
        ss, i = divmod(k % NST, 3)
        r, k0 = (0, 0) if ss == 0 else (1, 1) if ss <= 5 else (2, 6) if ss <= 9 else (3, 10)
        return f'  buffer_load_dwordx4 {v(slot(k),4)}, {v(VO+r)}, {s(srd,4)}, {s(so)} offen offset:{768*(ss-k0) + 256*i} nt'
    def kscale_loads():
        r = [f'  s_mul_i32 {s(sSO)}, {s(sQ3)}, 1536']
        for i in range(3):
            r.append(f'  buffer_load_dwordx2 {v(KSR+2*i,2)}, {v(VKS)}, {s(SKS,4)}, {s(sSO)} offen offset:{128*i} {sf}')
            r.append(f'  buffer_load_dwordx2 {v(KZR+2*i,2)}, {v(VKS)}, {s(SKZ,4)}, {s(sSO)} offen offset:{128*i} {sf}')
        return r
    def vscale_loads():
        return [f'  s_lshl_b32 {s(sSO)}, {s(sQ3)}, 9',
                f'  v_lshl_add_u32 {v(VVS)}, {v(TU)}, 1, {v(ICV)}',
                f'  buffer_load_short_d16_hi {v(ZN)}, {v(VVS)}, {s(SVZ,4)}, {s(sSO)} offen {sf}',
                f'  buffer_load_short_d16_hi {v(SN)}, {v(VVS)}, {s(SVS,4)}, {s(sSO)} offen {sf}']
    def q_loads():
        return [f'  s_mul_i32 {s(sT)}, {s(sHN)}, 1536'] + \
               [f'  buffer_load_dwordx2 {v(QN+2*i,2)}, {v(VQ)}, {s(SQ,4)}, {s(sT)} offen offset:{128*i} {sf}' for i in range(3)]
    def short_masks(own, c, m0, m10, low):
        A(f'  v_add_u32 {v(X0)}, {s(c)}, {v(own)}')
        A(f'  v_lshrrev_b32 {v(X1)}, {v(X0)}, {s(sSH)}')
        A(f'  v_and_b32 {v(X1)}, 1, {v(X1)}')
        A(f'  v_cmp_eq_u32 {s(m10,2)}, 1, {v(X1)}')
        A(f'  s_and_b64 {s(m0,2)}, {s(m10,2)}, {low}')
        A(f'  s_andn2_b64 {s(m10,2)}, {s(m10,2)}, {low}')
    def map_unit(f, isv):
        A(f'  s_andn2_b32 {s(sT)}, {s(f)}, 1')
        A(f'  s_or_b32 {s(sT)}, {s(sT)}, {s(sRO)}')
        A(f'  s_lshr_b32 {s(sT+1)}, {s(f)}, 5')
        A(f'  s_lshr_b32 {s(sC)}, {s(sDEC)}, {s(sT+1)}')
        if isv: A(f'  s_lshr_b32 {s(sC)}, {s(sC)}, 3')
        A(f'  s_cmp_lt_u32 {s(f)}, {s(sLIM)}')
        A(f'  s_cselect_b32 {s(sT)}, {s(sT)}, {s(f)}')
        A(f'  s_cselect_b32 {s(sC)}, {s(f)}, {s(sC)}')
        A(f'  s_and_b32 {s(sC)}, {s(sC)}, 1')
        A(f'  s_mul_i32 {s(sT+1)}, {s(sT+1)}, {4096 - 32}')
        A(f'  s_add_u32 {s(sT)}, {s(sT)}, {s(sT+1)}')
        A(f'  s_add_u32 {s(sT)}, {s(sT)}, {s(sPB)}')
        A(f'  s_mul_hi_u32 {s(sQ3)}, {s(sT)}, {s(sDIV)}')
        A(f'  s_lshr_b32 {s(sQ3)}, {s(sQ3)}, 1')
        A(f'  s_mul_i32 {s(sT+1)}, {s(sQ3)}, 3')
        A(f'  s_sub_u32 {s(sT)}, {s(sT)}, {s(sT+1)}')
        A(f'  s_lshl3_add_u32 {s(sC)}, {s(sT)}, {s(sC)}')
        A(f'  s_mul_i32 {s(sNXT)}, {s(sQ3)}, 196608')
        A(f'  s_lshr_b32 {s(sHN)}, {s(sQ3)}, 4')
        A(f'  s_lshl_b32 {s(sT)}, {s(sC)}, 5')
        A(f'  v_add_u32 {v(TU)}, {s(sT)}, {v(DUP if isv else IUP)}')
        A(f'  v_mul_u32_u24 {v(TU)}, 21846, {v(TU)}')
        A(f'  v_lshrrev_b32 {v(TU)}, 16, {v(TU)}')
        short_masks(DOWN if isv else IOWN, sC, sM0, sM10, s(sLOW + 2 * isv, 2))
        if not isv:
            A(f'  v_mul_u32_u24 {v(X0)}, 43, {v(X0)}')
            A(f'  v_lshrrev_b32 {v(X0)}, 8, {v(X0)}')
            A(f'  v_mul_u32_u24 {v(X0)}, 384, {v(X0)}')
            A(f'  v_add_u32 {v(VKS)}, {v(X0)}, {v(VKS0)}')
    def offsets(con):
        A(f'  v_mad_u32_u24 {v(VO)}, {v(TU)}, {s(s768)}, {v(con)}')
        A(f'  v_add_u32 {v(VO+1)}, 768, {v(VO)}')
        A(f'  v_add_u32 {v(VO+2)}, {6 * 768}, {v(VO)}')
        A(f'  v_add_u32 {v(VO+3)}, {10 * 768}, {v(VO)}')
        A(f'  v_cndmask_b32 {v(VO)}, {v(VO)}, {v(VOOB)}, {s(sM0,2)}')
        A(f'  v_cndmask_b32 {v(VO+3)}, {v(VO+3)}, {v(VOOB)}, {s(sM10,2)}')
    def stamp():
        if tl:
            A(f'  s_memrealtime {s(sT,2)}')
            A('  s_waitcnt lgkmcnt(0)')
            A(f'  s_min_u32 m0, {s(sTL)}, 63')
            A(f'  v_writelane_b32 {v(TL)}, {s(sT)}, m0')
            A(f'  s_add_u32 {s(sTL)}, {s(sTL)}, 1')
    def reset_state():
        for k in range(12): A(f'  v_mov_b32 {v(ACC+k)}, 0')
        A(f'  v_mov_b32 {v(M)}, 0xff800000')
        A(f'  v_mov_b32 {v(NB)}, 0x7f800000')
        A(f'  v_mov_b32 {v(LS)}, 0')
    A(f'  s_mov_b32 {s(sF)}, s3')
    A(f'  s_mov_b32 {s(sLIM)}, {NWU}')
    A(f'  s_mov_b32 {s(sGATE)}, {NWU}')
    A(f'  s_mov_b32 {s(sDEC)}, 0')
    A(f'  v_lshlrev_b32 {v(ZC)}, 4, v0')
    pfl = []
    if pfw:
        sPK, sPV = sQC, sHC
        A(f'  s_mul_i32 {s(sT)}, s2, {W}')
        A(f'  s_add_u32 {s(sT)}, {s(sT)}, s3')
        A(f'  s_mul_i32 {s(sPV)}, {s(sT)}, {8192 // W}')
        A(f'  s_mul_i32 {s(sPK)}, {s(sT)}, {24576 // W}')
        line = lambda srd, so, k: f'  buffer_load_dwordx4 {v(ACC,4)}, {v(ZC)}, {s(srd,4)}, {s(so)} offen offset:{(k % 4) * 1024}'
        for k in range(24 // W):
            if k % 4 == 0 and k: pfl.append(f'  s_add_u32 {s(sPK)}, {s(sPK)}, 4096')
            pfl += [line(SKS, sPK, k), line(SKZ, sPK, k)]
            if k < 8 // W: pfl += [line(SVS, sPV, k), line(SVZ, sPV, k)]
    nissued = [0]
    def issue_pf(n):
        while pfl and n > 0:
            x = pfl.pop(0)
            if 'buffer_load' in x:
                if nissued[0] >= pfw: A(f'  s_waitcnt vmcnt({pfw - 1})')
                nissued[0] += 1; n -= 1
            A(x)
    make_srds(0, 4)
    issue_pf(min(pfw, 8))
    make_srds(4, 9)
    A(f'  s_mov_b32 {s(sLOW)}, 0x0f0f0f0f')
    A(f'  s_mov_b32 {s(sLOW+1)}, 0x0f0f0f0f')
    A(f'  s_mov_b32 {s(sLOW+2)}, 0xffff')
    A(f'  s_mov_b32 {s(sLOW+3)}, 0xffff')
    map_unit(sF, 0)
    offsets(ICON)
    A(f'  s_mov_b32 {s(sCUR)}, {s(sNXT)}')
    if pfw:
        for x in q_loads(): A(x)
        A(main_load(0, SK, sCUR))
        issue_pf(pfw - nissued[0])
        A('  s_barrier')
        issue_pf(99)
        for x in kscale_loads(): A(x)
        for k in range(1, D):
            A(f'  s_waitcnt vmcnt({max(min(pfw, DN) - 1 + 6, k - 1 + 6)})')
            A(main_load(k, SK, sCUR))
    else:
        for x in kscale_loads(): A(x)
        for x in q_loads(): A(x)
        for k in range(D): A(main_load(k, SK, sCUR))
    A(f'  s_mov_b32 {s(sHC)}, {s(sHN)}')
    A('  s_mov_b64 vcc, 0')
    A(f'  v_lshlrev_b32 {v(X0)}, 4, {v(n)}')
    stream_consts(g, DUP, DOWN, DCON, X0)
    A(f'  v_and_b32 {v(X1)}, 1, {v(g)}')
    A(f'  v_mul_u32_u24 {v(X1)}, 86, {v(X1)}')
    A(f'  v_lshl_add_u32 {v(ICV)}, {v(n)}, 1, {v(X1)}')
    A(f'  v_subrev_u32 {v(ICV)}, 86, {v(ICV)}')
    A(f'  v_lshlrev_b32 {v(VBP)}, 4, {v(g)}')
    A(f'  v_lshrrev_b32 {v(X0)}, 2, v0')
    A(f'  s_mul_i32 {s(sT)}, s3, 384')
    A(f'  v_lshl_add_u32 {v(VL1)}, {v(X0)}, 4, {s(sT)}')
    A(f'  v_lshl_add_u32 {v(VL2)}, {v(X0)}, 3, {s(sT)}')
    A(f'  s_mul_i32 {s(sT)}, s3, 3072')
    A(f'  s_add_u32 {s(sT)}, {s(sT)}, {LDS_ACC}')
    A(f'  v_lshl_add_u32 {v(VFL)}, v0, 4, {s(sT)}')
    A(f'  s_lshl_b32 {s(sT)}, s3, 5')
    A(f'  s_add_u32 {s(sT)}, {s(sT)}, {LDS_ACC + W * 3072}')
    A(f'  v_lshl_add_u32 {v(VST)}, {v(a)}, 3, {s(sT)}')
    A(f'  s_lshl_b32 {s(sT)}, s3, 2')
    A(f'  s_add_u32 {s(sT)}, {s(sT)}, {F_PRG}')
    A(f'  v_mov_b32 {v(VPR)}, {s(sT)}')
    A(f'  v_lshrrev_b32 {v(VBD)}, 5, v0')
    if wsy:
        A(f'  s_lshl_b32 {s(sT)}, s3, 3')
        A(f'  s_sub_u32 {s(sT)}, {F_PRG + 4 - F_BST}, {s(sT)}')
        A(f'  v_mul_i32_i24 {v(VBA)}, {s(sT)}, {v(VBD)}')
        A(f'  s_not_b32 {s(sT)}, s3')
        A(f'  v_mul_i32_i24 {v(VBD)}, {s(sT)}, {v(VBD)}')
    else:
        A(f'  v_mul_u32_u24 {v(VBA)}, {F_THR - F_BST}, {v(VBD)}')
        A(f'  v_mov_b32 {v(VBD)}, 0')
    A(f'  s_lshl2_add_u32 {s(sT)}, s3, {F_BST}')
    A(f'  v_add_u32 {v(VBA)}, {s(sT)}, {v(VBA)}')
    A(f'  v_mov_b32 {v(ZN)}, 0')
    A(f'  v_mov_b32 {v(SN)}, 0')
    A(f'  v_mov_b32 {v(VNI)}, 0xff800000')
    A(f'  s_mov_b32 {s(sMSK)}, 0xffff0000')
    A(f'  s_mov_b32 {s(sL2E)}, 0x3fb8aa3b')
    for h in range(2):
        A(f'  s_mov_b32 {s(sSCL+h)}, {hex(0x3d93cd3a + (22 << 23))}')
        A(f'  s_mov_b32 {s(sBIG+h)}, 0x7f000000')
        A(f'  s_mov_b32 {s(sSM+h)}, {hex((127 - 22) << 23)}')
    for j in range(4):
        A(f'  s_mov_b32 {s(sMJ+2*j)}, {hex(0x11111111 << j)}')
        A(f'  s_mov_b32 {s(sMJ+2*j+1)}, {hex(0x11111111 << j)}')
        A(f'  s_mov_b32 {s(sREC+j)}, 0')
    A(f'  s_mov_b32 {s(sSEG)}, 0')
    if pfw: A(f'  s_waitcnt vmcnt({D - 1})')
    if pdel:
        A(f'  v_mov_b32 {v(AL)}, 1')
        A(f'  ds_write_b32 {v(VPR)}, {v(AL)}')
    reset_state()
    if tl:
        A(f'  s_mov_b32 {s(sTL)}, 0')
        A(f'  v_mov_b32 {v(TL)}, 0')
    if not pfw: A('  s_barrier')

    PSMALL = 3
    late = (D == R)
    SW = NST - D
    assert PSMALL < SW and 3 <= PSK < SW
    stubs = []
    sTH = 98
    def wait_step(k, nsmall, tag, PSMALL):
        cnt = lambda d: d - 1 + (nsmall if k - d <= PSMALL < k else 0)
        if k == 2 and tev:
            A(f'  s_mov_b32 {s(sTH)}, vcc_hi')
            A('  s_mov_b32 vcc_hi, 0')
        if tev and k >= 2 and (k - 2) % tev == 0:
            A(f'  s_cmp_lg_u32 {s(sTH)}, 0')
            A(f'  s_cbranch_scc1 L_{tag}x')
            A(f'L_{tag}t:')
            stubs.extend([f'L_{tag}x:', f'  s_waitcnt vmcnt({cnt(DT)})', f'  s_branch L_{tag}t'])
        A(f'  s_waitcnt vmcnt({cnt(D)})')
        A(f'  s_cbranch_vccnz L_{tag}')
        A(f'  s_waitcnt vmcnt({cnt(DN)})')
        A(f'L_{tag}:')
    def mode_update(tag):
        A('  s_waitcnt lgkmcnt(0)')
        A(f'  v_cmp_lt_i32 vcc, {v(VBC)}, {v(VBS)}')
        if wsy:
            A('  s_cmp_lg_u32 vcc_hi, 0')
            A(f'  s_cbranch_scc1 L_{tag}_in')
            A(f'L_{tag}_w:')
            A(f'  ds_read_b32 {v(VBS)}, {v(VBA)}')
            A('  s_waitcnt lgkmcnt(0)')
            A(f'  v_cmp_lt_i32 vcc, {v(VBC)}, {v(VBS)}')
            A('  s_cmp_eq_u32 vcc_hi, 0')
            A(f'  s_cbranch_scc1 L_{tag}_w')
            A(f'L_{tag}_in:')
            A('  s_mov_b32 vcc_hi, 0')
    def dequant(X, src, z, sc, zmod, smod):
        r = [f'  v_pk_fma_f32 {v(X+2*h,2)}, {v(src+2*h,2)}, {s(sBIG,2)}, {z[h]} {zmod}neg_lo:[0,0,1] neg_hi:[0,0,1]' for h in range(2)]
        r2 = [f'  v_cvt_pk_bf16_f32 {v(X+j)}, 0, {v(X+j)}' for j in range(4)]
        r2 += [f'  v_pk_mul_f32 {v(X+2*h,2)}, {v(X+2*h,2)}, {sc[h]} {smod}'.rstrip() for h in range(2)]
        return r, r2
    def kreduce(ss):
        d = S + (ss & 1)
        q = lambda j: f'quad_perm:[{j},{j},{j},{j}] row_mask:0xf bank_mask:0xf'
        r = [f'  v_mov_b32_dpp {v(X0)}, {v(SD)} {q(0)}',
             f'  v_mov_b32_dpp {v(X1)}, {v(SD+2)} {q(2)}',
             f'  v_add_f32_dpp {v(X0)}, {v(SD+1)}, {v(X0)} {q(1)}',
             f'  v_add_f32_dpp {v(X1)}, {v(SD+3)}, {v(X1)} {q(3)}',
             f'  v_add_f32 {v(d)}, {v(X0)}, {v(X1)}']
        if ss == 0: r.append(f'  v_cndmask_b32 {v(d)}, {v(d)}, {v(VNI)}, {s(sL0,2)}')
        if ss == 10: r.append(f'  v_cndmask_b32 {v(d)}, {v(d)}, {v(VNI)}, {s(sL10,2)}')
        if ss & 1 or ss == 10:
            r += [f'  v_cvt_pk_bf16_f32 {v(S)}, 0, {v(S)}',
                  f'  v_cvt_pk_bf16_f32 {v(S+1)}, 0, {v(S+1)}',
                  f'  v_pk_mul_f32 {v(S,2)}, {v(S,2)}, {s(sSCL,2)}',
                  f'  v_cvt_pk_bf16_f32 {v(LG+(ss>>1))}, {v(S)}, {v(S+1)}']
        return r
    def lds_word(dst, addr):
        A(f'  v_mov_b32 {v(X0)}, {addr}')
        A(f'  ds_read_b32 {v(X0)}, {v(X0)}')
        A('  s_waitcnt lgkmcnt(0)')
        A(f'  v_readfirstlane_b32 {s(dst)}, {v(X0)}')

    mf32 = f'  v_mfma_f32_16x16x32_bf16 {v(SD,4)}, {v(KA,4)}, {v(QB,4)}, 0'
    mf16 = f'  v_mfma_f32_16x16x16_bf16 {v(SD,4)}, {v(KA+4,2)}, {v(QB+4,2)}, {v(SD,4)}'
    def diag_mark(tag, base_):
        if diagat < 0: return
        A(f'  s_and_b32 {s(sT)}, {s(sF)}, -4')
        A(f'  s_cmp_lg_u32 {s(sT)}, {diagat - base_}')
        A(f'  s_cbranch_scc1 L_dm{tag}')
        A('  s_memrealtime s[6:7]')
        A('  s_waitcnt lgkmcnt(0)')
        A(f'L_dm{tag}:')
    def k_unit(u):
        o = NST * u
        if u == 0: diag_mark('k', 0)
        if u == 0: stamp()
        short_masks(DOWN, sC, sL0, sL10, s(sLOW + 2, 2))
        A(f'  s_add_u32 {s(sF)}, {s(sF)}, {W}')
        A(f'  s_sub_u32 {s(sT)}, {s(sF)}, {W}')
        A(f'  v_add_u32 {v(VBC)}, {s(sT)}, {v(VBD)}')
        for k in range(NST):
            ss, i = divmod(k, 3)
            if k == max(wsy, 1) - 1: A(f'  ds_read_b32 {v(VBS)}, {v(VBA)}')
            if k == max(wsy, 1): mode_update(f'km{u}')
            if k == SW and u < U - 1: offsets(ICON)
            if k == SW and u == U - 1:
                A(f'  s_cmp_lt_u32 {s(sF)}, {NF}')
                A(f'  s_cbranch_scc1 L_k_keep{u}')
                A(f'  s_bitcmp1_b32 {s(sDEC)}, 6')
                A(f'  s_cselect_b32 {s(sLIM)}, 255, 0')
                A(f'  v_mov_b32 {v(E)}, {v(X0)}')
                A(f'  v_mov_b32 {v(E+1)}, {v(X1)}')
                map_unit(3, 1)
                A(f'  v_mov_b32 {v(X0)}, {v(E)}')
                A(f'  v_mov_b32 {v(X1)}, {v(E+1)}')
                A(f'  s_mov_b32 {s(SI)}, {s(SV)}')
                A(f'  s_mov_b32 {s(SI+1)}, {s(SV+1)}')
                for x in vscale_loads(): A(x)
                A(f'  v_mov_b32 {v(ICON)}, {v(DCON)}')
                A(f'L_k_keep{u}:')
                offsets(ICON)
            lds_ = [main_load(o + k + D, SK, sCUR) if k < SW else main_load(o + k + D, SI, sNXT)]
            wait_step(k, 6, f'kw{u}_{k}', PSK)
            if not late:
                for x in lds_: A(x)
            if i == 2: A(mf32)
            if i == 0 and ss > 0: A(mf16)
            if ss == 0:
                for raw, dst in ((KZR, KZ), (KSR, KS)):
                    for h in range(2):
                        A(f'  v_lshlrev_b32 {v(dst+4*i+2*h)}, 16, {v(raw+2*i+h)}')
                        A(f'  v_and_b32 {v(dst+4*i+2*h+1)}, {s(sMSK)}, {v(raw+2*i+h)}')
                for h in range(2):
                    A(f'  v_pk_mul_f32 {v(KZ+4*i+2*h,2)}, {v(KZ+4*i+2*h,2)}, {s(sSM,2)}')
                    A(f'  v_mov_b32 {v(QB+2*i+h)}, {v(QN+2*i+h)}')
            c, rest = dequant(T, slot(o + k), (v(KZ+4*i,2), v(KZ+4*i+2,2)), (v(KS+4*i,2), v(KS+4*i+2,2)), '', '')
            for x in c: A(x)
            if late:
                for x in lds_: A(x)
            if k == PSK:
                A(f'  s_cmp_lt_u32 {s(sF)}, {s(sGATE)}')
                A(f'  s_cbranch_scc1 L_k_known{u}')
                A(f'L_k_spin{u}:')
                lds_word(sDEC, F_DEC)
                A(f'  s_cmp_eq_u32 {s(sDEC)}, 0')
                A(f'  s_cbranch_scc1 L_k_spin{u}')
                A(f'  s_mov_b32 {s(sGATE)}, -1')
                A(f'  s_bitcmp1_b32 {s(sDEC)}, 6')
                A(f'  s_cselect_b32 {s(sLIM)}, 255, {s(sLIM)}')
                A(f'L_k_known{u}:')
                map_unit(sF, 0)
                A(f'  s_cmp_eq_u32 {s(sHN)}, {s(sHC)}')
                A(f'  s_cbranch_scc1 L_k_sameq{u}')
                for x in q_loads(): A(x)
                A(f'  s_mov_b32 {s(sHC)}, {s(sHN)}')
                A(f'L_k_sameq{u}:')
                for x in kscale_loads(): A(x)
            rest += [f'  v_cvt_pk_bf16_f32 {v(KA+2*i)}, {v(T)}, {v(T+1)}',
                     f'  v_cvt_pk_bf16_f32 {v(KA+2*i+1)}, {v(T+2)}, {v(T+3)}']
            if i == 1 and ss > 0:
                r = kreduce(ss - 1)
                rest = r[:2] + rest[:2] + r[2:4] + rest[2:4] + r[4:5] + rest[4:]
                pend = r[5:]
            elif i == 2 and ss > 0:
                rest = merge(rest, pend, 1)
            for x in rest: A(x)
        A(f'  s_mov_b32 {s(sCUR)}, {s(sNXT)}')
        A(f'  v_mov_b32 {v(AL)}, {s(sF)}')
        A(mf16)
        A(f'  ds_write_b128 {v(VL1)}, {v(LG,4)}')
        A(f'  v_add_u32 {v(VL1)}, {384 * W}, {v(VL1)}')
        for x in kreduce(10): A(x)
        A(f'  ds_write_b64 {v(VL2)}, {v(LG+4,2)} offset:256')
        A(f'  ds_write_b32 {v(VPR)}, {v(AL)}')
        A(f'  v_add_u32 {v(VL2)}, {384 * W}, {v(VL2)}')
    A('L_k:')
    for u in range(U): k_unit(u)
    A(f'  s_cmp_lt_u32 {s(sF)}, {NF}')
    A('  s_cbranch_scc1 L_k')

    def flush():
        A(f'  v_mov_b32 {v(X1)}, {v(LS)}')
        A(f'  v_permlane32_swap_b32 {v(LS)}, {v(X1)}')
        A(f'  v_add_f32 {v(LS)}, {v(LS)}, {v(X1)}')
        A(f'  v_mov_b32 {v(X1)}, {v(LS)}')
        A(f'  v_permlane16_swap_b32 {v(LS)}, {v(X1)}')
        A(f'  v_add_f32 {v(LS)}, {v(LS)}, {v(X1)}')
        A(f'  ds_write_b64 {v(VST)}, {v(NB,2)}')
        for i in range(3):
            A(f'  ds_write_b128 {v(VFL)}, {v(ACC+4*i,4)} offset:{1024*i}')
        A(f'  s_and_b32 {s(sT)}, {s(sQC)}, 15')
        A(f'  s_cmp_ge_u32 {s(sT)}, 12')
        A(f'  s_cselect_b32 {s(sT)}, 2, 0')
        A(f'  s_and_b32 {s(sT+1)}, {s(sCC)}, 1')
        A(f'  s_bitcmp1_b32 {s(sDEC)}, 6')
        A(f'  s_cselect_b32 {s(sT+1)}, {s(sRO)}, {s(sT+1)}')
        A(f'  s_add_u32 {s(sT)}, {s(sT)}, {s(sT+1)}')
        A(f'  s_lshr_b32 {s(sT+1)}, {s(sQC)}, 4')
        A(f'  s_lshl2_add_u32 {s(sT)}, {s(sT+1)}, {s(sT)}')
        for j in range(4 // W):
            A(f'  s_add_u32 {s(sT+1)}, s3, {W * j}')
            A(f'  s_cmp_eq_u32 {s(sSEG)}, {s(sT+1)}')
            A(f'  s_cselect_b32 {s(sREC+j)}, {s(sT)}, {s(sREC+j)}')
        A(f'  s_add_u32 {s(sSEG)}, {s(sSEG)}, 1')
        A('  s_waitcnt lgkmcnt(0)')
    def import_gate(tag):
        A(f'  s_cmp_lt_u32 {s(sF)}, {s(sGATE)}')
        A(f'  s_cbranch_scc1 L_{tag}_ok')
        A(f'L_{tag}_spin:')
        lds_word(sGATE, F_IMP)
        A(f'  s_cmp_lt_u32 {s(sF)}, {s(sGATE)}')
        A(f'  s_cbranch_scc0 L_{tag}_spin')
        A(f'L_{tag}_ok:')

    A(f'  v_subrev_u32 {v(VL1)}, {IMG}, {v(VL1)}')
    A(f'  v_subrev_u32 {v(VL2)}, {IMG}, {v(VL2)}')
    A(f'  s_mov_b32 {s(sF)}, s3')
    A(f'  s_mov_b32 {s(sHC)}, {s(sHN)}')
    A(f'  s_mov_b32 {s(sGATE)}, 0')
    A(f'  s_load_dwordx2 {s(sREC,2)}, s[0:1], 56')
    A('  s_waitcnt lgkmcnt(0)')
    A(f'  s_mov_b32 {s(SQ)}, {s(sREC)}')
    A(f'  s_and_b32 {s(SQ+1)}, {s(sREC+1)}, 0xffff')
    import_gate('v0')
    A(f'  ds_read_b128 {v(LG,4)}, {v(VL1)}')
    A(f'  ds_read_b64 {v(LG+4,2)}, {v(VL2)} offset:256')
    def v_unit(u):
        o = NST * u
        A(f'L_v{u}:')
        if u == 0: diag_mark('v', NF)
        if u == 0: stamp()
        A(f'  s_mov_b32 {s(sQC)}, {s(sQ3)}')
        A(f'  s_mov_b32 {s(sCC)}, {s(sC)}')
        A(f'  s_add_u32 {s(sF)}, {s(sF)}, {W}')
        import_gate(f'v1{u}')
        map_unit(sF, 1)
        A(f'  s_cmp_lt_u32 {s(sF)}, {NF}')
        A(f'  s_cselect_b32 {s(sNXT)}, {s(sNXT)}, {TOTAL}')
        prep = ['  s_waitcnt lgkmcnt(0)']
        A(f'  s_add_u32 {s(sT)}, {s(sF)}, {NF - W}')
        A(f'  v_mov_b32 {v(AL)}, {s(sT)}')
        A(f'  v_add_u32 {v(VBC)}, {s(sT)}, {v(VBD)}')
        A(f'  ds_write_b32 {v(VPR)}, {v(AL)}')
        for k in range(11):
            prep.append(f'  v_lshlrev_b32 {v(E+k)}, 16, {v(LG+k//2)}' if k % 2 == 0 else f'  v_and_b32 {v(E+k)}, {s(sMSK)}, {v(LG+k//2)}')
        prep += [f'  v_add_u32 {v(VL1)}, {384 * W}, {v(VL1)}',
                 f'  v_add_u32 {v(VL2)}, {384 * W}, {v(VL2)}',
                 f'  v_max3_f32 {v(X0)}, {v(E)}, {v(E+1)}, {v(E+2)}',
                 f'  ds_read_b128 {v(LG,4)}, {v(VL1)}',
                 f'  ds_read_b64 {v(LG+4,2)}, {v(VL2)} offset:256',
                 f'  v_max3_f32 {v(X1)}, {v(E+3)}, {v(E+4)}, {v(E+5)}',
                 f'  v_max3_f32 {v(X0)}, {v(X0)}, {v(E+6)}, {v(E+7)}',
                 f'  v_max3_f32 {v(X1)}, {v(X1)}, {v(E+8)}, {v(E+9)}',
                 f'  v_max3_f32 {v(X0)}, {v(X0)}, {v(E+10)}, {v(M)}',
                 f'  v_max_f32 {v(X0)}, {v(X0)}, {v(X1)}',
                 f'  v_mov_b32 {v(X1)}, {v(X0)}',
                 f'  v_permlane32_swap_b32 {v(X0)}, {v(X1)}',
                 f'  v_max_f32 {v(X0)}, {v(X0)}, {v(X1)}',
                 f'  v_mov_b32 {v(X1)}, {v(X0)}',
                 f'  v_permlane16_swap_b32 {v(X0)}, {v(X1)}',
                 f'  v_max_f32 {v(M)}, {v(X0)}, {v(X1)}',
                 f'  v_mul_f32 {v(X0)}, {s(sL2E)}, {v(M)}',
                 f'  v_add_f32 {v(AL)}, {v(X0)}, {v(NB)}',
                 f'  v_sub_f32 {v(NB)}, 0, {v(X0)}',
                 f'  v_exp_f32 {v(AL)}, -{v(AL)}',
                 f'  ds_bpermute_b32 {v(ALQ)}, {v(VBP)}, {v(AL)}']
        for k in range(11):
            prep += [f'  v_fma_f32 {v(E+k)}, {v(E+k)}, {s(sL2E)}, {v(NB)}', f'  v_exp_f32 {v(E+k)}, {v(E+k)}']
        prep += [f'  v_add_f32 {v(X0)}, {v(E)}, {v(E+1)}', f'  v_add_f32 {v(X1)}, {v(E+2)}, {v(E+3)}']
        for k in range(4, 11):
            x = X0 if k % 2 == 0 else X1
            prep.append(f'  v_add_f32 {v(x)}, {v(x)}, {v(E+k)}')
        prep += [f'  v_add_f32 {v(X0)}, {v(X0)}, {v(X1)}',
                 f'  v_fma_f32 {v(LS)}, {v(LS)}, {v(AL)}, {v(X0)}']
        for k in range(6):
            prep.append(f'  v_cvt_pk_bf16_f32 {v(PP+k)}, {v(E+2*k)}, {v(E+2*k+1) if k < 5 else 0}')
        for j in range(4):
            for k in range(4):
                prep.append(f'  v_cndmask_b32 {v(AJ+4*j+k)}, 0, {v(PP+k)}, {s(sMJ+2*j,2)}')
        prep.append('  s_waitcnt lgkmcnt(0)')
        for k in range(12):
            prep.append(f'  v_mul_f32 {v(ACC+k)}, {v(ALQ)}, {v(ACC+k)}')
        prep2 = [f'  v_cndmask_b32 {v(AK+2*j+k)}, 0, {v(PP+4+k)}, {s(sMJ+2*j,2)}' for j in range(4) for k in range(2)]
        per = 5
        for k in range(NST):
            ss, i = divmod(k, 3)
            if k == max(wsy, 1) - 1: A(f'  ds_read_b32 {v(VBS)}, {v(VBA)}')
            if k == max(wsy, 1): mode_update(f'vm{u}')
            if k == SW: offsets(DCON)
            lds_ = [main_load(o + k + D, SV, sCUR if k < SW else sNXT)]
            wait_step(k, 2, f'vw{u}_{k}', PSMALL)
            if not late:
                for x in lds_: A(x)
            if k == 0:
                A(f'  v_mul_f32 {v(ZC)}, {s(sSM)}, {v(ZN)}')
                A(f'  v_mul_f32 {v(SC)}, {hex((127 + 22) << 23)}, {v(SN)}')
            if i == 0:
                A(f'  v_mov_b32_dpp {v(ZS)}, {v(ZC)} row_newbcast:{ss} row_mask:0xf bank_mask:0xf')
                A(f'  v_mov_b32_dpp {v(ZS+1)}, {v(SC)} row_newbcast:{ss} row_mask:0xf bank_mask:0xf')
            X = TV + 4 * i if ss % 2 == 0 else T
            c, rest = dequant(X, slot(o + k), (v(ZS,2), v(ZS,2)), (v(ZS,2), v(ZS,2)), 'op_sel_hi:[1,1,0] ', 'op_sel:[0,1]')
            for x in c: A(x)
            if late:
                for x in lds_: A(x)
            if k == PSMALL:
                for x in vscale_loads(): A(x)
            if ss % 2 == 1:
                rest += [f'  v_cvt_pk_bf16_f32 {v(BV+16*i+4*j+((ss>>1)&3))}, {v(TV+4*i+j)}, {v(T+j)}' for j in range(4)]
            if ss == 10:
                rest += [f'  v_cvt_pk_bf16_f32 {v(BV+16*i+4*j+1)}, {v(TV+4*i+j)}, 0' for j in range(4)]
            side, prep = prep[:per], prep[per:]
            if k == 20:
                side += prep; prep = []
            if k == 23: prep = prep2
            for x in merge(rest, side, 1): A(x)
            if ss == 7:
                for j in range(4):
                    A(f'  v_mfma_f32_16x16x32_bf16 {v(ACC+4*i,4)}, {v(AJ+4*j,4)}, {v(BV+16*i+4*j,4)}, {v(ACC+4*i,4)}')
            if ss == 10:
                assert not prep
                for j in range(4):
                    A(f'  v_mfma_f32_16x16x16_bf16 {v(ACC+4*i,4)}, {v(AK+2*j,2)}, {v(BV+16*i+4*j,2)}, {v(ACC+4*i,4)}')
        A(f'  s_mov_b32 {s(sCUR)}, {s(sNXT)}')
        if u == U - 1:
            A(f'  s_cmp_ge_u32 {s(sF)}, {NF}')
            A('  s_cbranch_scc1 L_v_done')
        A(f'  s_cmp_eq_u32 {s(sHN)}, {s(sHC)}')
        A(f'  s_cbranch_scc1 L_v{(u + 1) % U}')
        A(f'  s_mov_b32 {s(sHC)}, {s(sHN)}')
        flush()
        A(f'  v_add_u32 {v(VFL)}, {SEG}, {v(VFL)}')
        A(f'  v_add_u32 {v(VST)}, {SEG}, {v(VST)}')
        reset_state()
        if u == U - 1: A('  s_branch L_v0')
    for u in range(U): v_unit(u)
    A('L_v_done:')
    stamp()
    flush()
    A('  s_waitcnt vmcnt(0)')

    A('  s_barrier')
    ST = RING; AC = (base + 3) // 4 * 4
    nv = max(nv, AC + 48)
    A(f'  v_lshrrev_b32 {v(AL)}, 1, {v(VBP)}')
    A(f'  v_lshlrev_b32 {v(ALQ)}, 4, v0')
    for j in range(4 // W):
        A(f'  s_mul_i32 {s(sT)}, s3, {SEG}')
        A(f'  s_add_u32 {s(sT)}, {s(sT)}, {LDS_ACC + W * j * SEG}')
        A(f'  v_add_u32 {v(X0)}, {s(sT)}, {v(AL)}')
        for w in range(W):
            A(f'  ds_read_b64 {v(ST+2*(W*j+w),2)}, {v(X0)} offset:{W*3072 + 32*w}')
        A(f'  v_add_u32 {v(X0)}, {s(sT)}, {v(ALQ)}')
        for w in range(W):
            for i in range(3):
                A(f'  ds_read_b128 {v(AC+12*(W*j+w)+4*i,4)}, {v(X0)} offset:{3072*w + 1024*i}')
    A(f'  v_mov_b32 {v(X0)}, {F_TAG}')
    A(f'  ds_read_b32 {v(M)}, {v(X0)}')
    A(f'  s_mov_b32 {s(sSEG)}, -1')
    A(f'  s_add_u32 {s(sLIM)}, {s(sRO)}, 1')
    A('  s_waitcnt lgkmcnt(0)')
    GR = RING + 8; OWN = GR + 40
    gi = lambda b, x: b + 4 * (x // 3) + x % 3
    for j in range(4 // W):
        G = GR + 20 * j
        combine(A, W, ST + 2 * W * j, AC + 12 * W * j, 3, gi(G, 12), gi(G, 13), lambda x: gi(G, x))
        A(f'  s_bfe_u32 {s(sT)}, {s(sREC+j)}, 0x20001')
        A(f'  s_cmp_eq_u32 {s(sT)}, {s(sLIM)}')
        A(f'  s_cbranch_scc1 L_own{j}')
        for g_ in range(5): A(f'  v_mov_b32 {v(G+4*g_+3)}, {v(M)}')
        A(f'  s_mul_i32 {s(sT)}, {s(sREC+j)}, {REC}')
        A(f'  s_add_u32 {s(sT)}, {s(sT)}, {WSOFF}')
        A(f'  s_add_u32 {s(sT+1)}, {s(sT)}, 4096')
        for g_ in range(5):
            A(f'  buffer_store_dwordx4 {v(G+4*g_,4)}, {v(ALQ)}, {s(SW_,4)}, {s(sT + g_ // 4)} offen offset:{1024 * (g_ % 4)} sc1')
        A(f'  s_branch L_pub{j}')
        A(f'L_own{j}:')
        for x in range(14): A(f'  v_mov_b32 {v(gi(OWN, x))}, {v(gi(G, x))}')
        A(f'  s_mov_b32 {s(sSEG)}, {s(sREC+j)}')
        A(f'L_pub{j}:')
    stamp()
    A(f'  s_cmp_eq_u32 {s(sSEG)}, -1')
    A('  s_cbranch_scc1 L_fin')
    FR = AC
    nv = max(nv, FR + 60)
    sR = 84
    A(f'  s_xor_b32 {s(sR)}, {s(sSEG)}, 1')
    A(f'  s_andn2_b32 {s(sR+2)}, {s(sSEG)}, 1')
    A(f'  s_xor_b32 {s(sR+2)}, {s(sR+2)}, 2')
    A(f'  s_add_u32 {s(sR+4)}, {s(sR+2)}, 1')
    for r in range(3):
        A(f'  s_mul_i32 {s(sR+2*r)}, {s(sR+2*r)}, {REC}')
        A(f'  s_add_u32 {s(sR+2*r)}, {s(sR+2*r)}, {WSOFF}')
        A(f'  s_add_u32 {s(sR+2*r+1)}, {s(sR+2*r)}, 4096')
    A(f'  v_mov_b32 {v(X1)}, {s(sR+1)}')
    A(f'  v_writelane_b32 {v(X1)}, {s(sR+3)}, 1')
    A(f'  v_writelane_b32 {v(X1)}, {s(sR+5)}, 2')
    if safe: A(f'  s_mov_b32 {s(sF)}, 0')
    A('L_gather:')
    for r in range(3):
        for g_ in range(5):
            A(f'  buffer_load_dwordx4 {v(FR+20*r+4*g_,4)}, {v(ALQ)}, {s(SW_,4)}, {s(sR + 2*r + g_ // 4)} offen offset:{1024 * (g_ % 4)} sc1')
    A('  s_waitcnt vmcnt(0)')
    tags = [FR + 4 * k + 3 for k in range(15)]
    A(f'  v_xor_b32 {v(X0)}, {v(M)}, {v(tags[0])}')
    for k in range(1, 15):
        A(f'  v_xor_b32 {v(tags[k])}, {v(M)}, {v(tags[k])}')
    for k in range(1, 15, 2):
        A(f'  v_or3_b32 {v(X0)}, {v(X0)}, {v(tags[k])}, {v(tags[k+1])}')
    A(f'  v_cmp_ne_u32 {s(sT,2)}, 0, {v(X0)}')
    A(f'  s_cmp_eq_u64 {s(sT,2)}, 0')
    A('  s_cbranch_scc1 L_gathered')
    if not fullpoll: A('  s_mov_b64 exec, 7')
    A('L_poll:')
    if safe:
        A(f'  s_add_u32 {s(sF)}, {s(sF)}, 1')
        A(f'  s_cmp_gt_u32 {s(sF)}, 20000')
        A('  s_cbranch_scc1 L_end')
    if fullpoll: A('  s_branch L_gather')
    A(f'  buffer_load_dword {v(X0)}, {v(X1)}, {s(SW_,4)}, 0 offen offset:1020 sc1')
    A('  s_waitcnt vmcnt(0)')
    A(f'  v_cmp_ne_u32 {s(sT,2)}, {v(M)}, {v(X0)}')
    A(f'  s_cmp_lg_u64 {s(sT,2)}, 0')
    A('  s_cbranch_scc1 L_poll')
    A('  s_mov_b64 exec, -1')
    A('  s_branch L_gather')
    A('L_gathered:')
    stamp()
    B4 = [OWN, FR, FR + 20, FR + 40]
    A(f'  v_min_f32 {v(X0)}, {v(gi(B4[0],12))}, {v(gi(B4[1],12))}')
    A(f'  v_min3_f32 {v(X0)}, {v(X0)}, {v(gi(B4[2],12))}, {v(gi(B4[3],12))}')
    for b in B4: A(f'  v_sub_f32 {v(gi(b,12))}, {v(X0)}, {v(gi(b,12))}')
    for b in B4: A(f'  v_exp_f32 {v(gi(b,12))}, {v(gi(b,12))}')
    for x in [13] + list(range(12)):
        for b in B4: A(f'  v_mul_f32 {v(gi(b,x))}, {v(gi(b,12))}, {v(gi(b,x))}')
        A(f'  v_add_f32 {v(gi(B4[0],x))}, {v(gi(B4[0],x))}, {v(gi(B4[1],x))}')
        A(f'  v_add_f32 {v(gi(B4[2],x))}, {v(gi(B4[2],x))}, {v(gi(B4[3],x))}')
        A(f'  v_add_f32 {v(gi(B4[0],x))}, {v(gi(B4[0],x))}, {v(gi(B4[2],x))}')
        if x == 13: A(f'  v_rcp_f32 {v(X1)}, {v(gi(OWN,13))}')
    for x in range(12): A(f'  v_mul_f32 {v(gi(OWN,x))}, {v(X1)}, {v(gi(OWN,x))}')
    A(f'  v_mul_u32_u24 {v(X0)}, 24, {v(VBP)}')
    A(f'  v_and_b32 {v(X1)}, 15, v0')
    A(f'  v_lshl_add_u32 {v(X0)}, {v(X1)}, 3, {v(X0)}')
    A(f'  s_lshr_b32 {s(sT)}, {s(sSEG)}, 2')
    A(f'  s_mul_i32 {s(sT)}, {s(sT)}, 1536')
    for i in range(3):
        A(f'  v_cvt_pk_bf16_f32 {v(ACC+2*i)}, {v(gi(OWN,4*i))}, {v(gi(OWN,4*i+1))}')
        A(f'  v_cvt_pk_bf16_f32 {v(ACC+2*i+1)}, {v(gi(OWN,4*i+2))}, {v(gi(OWN,4*i+3))}')
        A(f'  buffer_store_dwordx2 {v(ACC+2*i,2)}, {v(X0)}, {s(SQ,4)}, {s(sT)} offen offset:{128*i} {stf}')
    A('L_fin:')
    if diagpad:
        if diagref: A(f'  v_readfirstlane_b32 s6, {v(M)}')
        A('L_diag:')
        A(f'  s_memrealtime {s(sU,2)}')
        A('  s_waitcnt lgkmcnt(0)')
        A(f'  s_sub_u32 {s(sU)}, {s(sU)}, s6')
        A(f'  s_cmp_lt_u32 {s(sU)}, {diagpad * 100}')
        A('  s_cbranch_scc1 L_diag')
    if tl:
        A(f'  s_mul_i32 {s(sT)}, s2, {W+1}')
        A(f'  s_add_u32 {s(sT)}, {s(sT)}, s3')
        A(f'  s_lshl_b32 {s(sT)}, {s(sT)}, 8')
        A(f'  s_add_u32 {s(sT)}, {s(sT)}, 0x10000')
        A(f'  v_lshl_add_u32 {v(E)}, v0, 2, {s(sT)}')
        A(f'  global_store_dword {v(E)}, {v(TL)}, {s(sWS,2)}')
    if stamps:
        A('  s_waitcnt vmcnt(0)')
        A(f'  s_memrealtime {s(sU,2)}')
        A(f'  s_getreg_b32 {s(sU+2)}, hwreg(HW_REG_XCC_ID)')
        A(f'  s_mul_i32 {s(sT)}, s2, {W+1}')
        A(f'  s_add_u32 {s(sT)}, {s(sT)}, s3')
        A(f'  s_lshl_b32 {s(sT)}, {s(sT)}, 4')
        A('  s_waitcnt lgkmcnt(0)')
        A(f'  v_mov_b32 {v(RING)}, s6')
        A(f'  v_mov_b32 {v(RING+1)}, {s(sU)}')
        A(f'  v_mov_b32 {v(RING+2)}, {s(sU+2)}')
        A(f'  v_mov_b32 {v(RING+3)}, {s(sDEC)}')
        A(f'  v_mov_b32 {v(X0)}, {s(sT)}')
        A('  s_mov_b64 exec, 1')
        A(f'  global_store_dwordx4 {v(X0)}, {v(RING,4)}, {s(sWS,2)}')
    A('L_end:')
    A('  s_endpgm')


    for x in stubs: A(x)

    A('L_helper:')
    if tl:
        A(f'  s_mov_b32 {s(sTL)}, 0')
        A(f'  v_mov_b32 {v(TL)}, 0')
    hA, hZ, hO, h1, h2, h3, hD = 1, 2, 3, 4, 5, 6, 8
    assert hD + 96 <= TL
    A(f'  v_lshlrev_b32 {v(hA)}, 2, v0')
    A(f'  v_add_u32 {v(hA)}, {LDS_F}, {v(hA)}')
    A(f'  v_mov_b32 {v(hZ)}, 0')
    A('  s_mov_b64 exec, 0xffff')
    A(f'  ds_write_b32 {v(hA)}, {v(hZ)}')
    A('  s_mov_b64 exec, -1')
    make_srds()
    A('  s_barrier')
    sOF, sN0, sV0, sJ, sSF, sA, sB, sX, sFA, sFS, sME, sPA = 44, 45, 48, 50, 52, 54, 56, 58, 62, 63, 60, 61
    sQD, sOWN, sUNT, sT0, sNON = 64, 65, 66, 72, 74
    hP, hQ = hD + 96, hD + 97
    hC = (hQ + 2) // 2 * 2
    hW, hU, hT = hC + 9, hC + 10, hC + 12
    assert hT + 1 < TL and W == 2
    A(f'  s_memrealtime {s(sT0,2)}')
    def code_touch(tag):
        if not cpre: return
        for h in range(2):
            A(f'  s_lshr_b32 {s(sT)}, s2, 3')
            A(f'  s_cmp_lt_i32 {s(sT)}, (L_code_end - L_k) / 1024 - {32 * h}')
            A(f'  s_cbranch_scc0 L_h_ct{tag}')
            if h:
                A(f'  v_add_co_u32 {v(hC+2)}, vcc, 0x8000, {v(hC)}')
                A(f'  v_addc_co_u32 {v(hC+3)}, vcc, 0, {v(hC+1)}, vcc')
            A(f'  global_load_dwordx4 {v(hC+4,4)}, {v(hC+2*h,2)}, off')
        A(f'L_h_ct{tag}:')
    if tlb:
        A(f'  v_lshlrev_b32 {v(hD)}, 28, v0')
        A(f'  v_lshlrev_b32 {v(hD+1)}, 21, v0')
        A(f'  s_lshl_b32 {s(sT)}, {s(sPB)}, 16')
        A(f'  s_add_u32 {s(sT)}, {s(sT)}, 0x1ff000')
        A(f'  s_lshr_b32 {s(sT+1)}, s2, 5')
        A(f'  s_lshl_b32 {s(sT+1)}, {s(sT+1)}, 21')
        A(f'  s_add_u32 {s(sT+1)}, {s(sT+1)}, {WSX + 0x1f0000}')
        A(f'  v_writelane_b32 {v(hD+1)}, {s(sT+1)}, 4')
        A(f'  s_mov_b32 {s(SQ)}, {s(PT+14)}')
        A(f'  s_and_b32 {s(SQ+1)}, {s(PT+15)}, 0xffff')
        A('  s_mov_b64 exec, 7')
        A(f'  buffer_load_dword {v(hC+8)}, {v(hD)}, {s(SK,4)}, {s(sT)} offen nt')
        A(f'  buffer_load_dword {v(hC+8)}, {v(hD)}, {s(SV,4)}, {s(sT)} offen nt')
        A('  s_mov_b64 exec, 31')
        A(f'  s_lshl_b32 {s(sT)}, s2, 8')
        A(f'  buffer_load_dword {v(hC+8)}, {v(hD+1)}, {s(SW_,4)}, {s(sT)} offen sc1 nt')
        A('  s_mov_b64 exec, 1')
        A(f'  buffer_load_dword {v(hC+8)}, {v(hD)}, {s(SQ,4)}, {s(sT)} offen sc1 nt')
        A('  s_mov_b64 exec, -1')
    if cpre:
        A(f'  s_getpc_b64 {s(sA,2)}')
        A('L_h_pc:')
        A(f'  s_sub_u32 {s(sA)}, {s(sA)}, L_h_pc - L_k')
        A(f'  s_subb_u32 {s(sA+1)}, {s(sA+1)}, 0')
        A(f'  s_and_b32 {s(sA)}, {s(sA)}, -16')
        A(f'  s_lshr_b32 {s(sT)}, s2, 3')
        A(f'  s_lshl_b32 {s(sT)}, {s(sT)}, 10')
        A(f'  v_lshl_add_u32 {v(hC)}, v0, 4, {s(sT)}')
        A(f'  v_mov_b32 {v(hC+1)}, {s(sA+1)}')
        A(f'  v_add_co_u32 {v(hC)}, vcc, {s(sA)}, {v(hC)}')
        A(f'  v_addc_co_u32 {v(hC+1)}, vcc, 0, {v(hC+1)}, vcc')
        code_touch('a')
    A(f'  s_lshr_b32 {s(sT)}, s2, 4')
    A(f'  s_and_b32 {s(sT)}, {s(sT)}, 8')
    A(f'  s_and_b32 {s(sT+1)}, s2, 7')
    A(f'  s_add_u32 {s(sT)}, {s(sT)}, {s(sT+1)}')
    A(f'  s_lshl_b32 {s(sT)}, {s(sT)}, 4')
    A(f'  v_lshl_add_u32 {v(hP)}, v0, 3, {s(sT)}')
    A(f'  v_and_b32 {v(hQ)}, 31, v0')
    A(f'  v_lshlrev_b32 {v(hQ)}, 3, {v(hQ)}')
    A(f'  v_and_b32 {v(hW)}, 1, v0')
    A(f'  v_lshlrev_b32 {v(hW)}, 2, {v(hW)}')
    A(f'  v_add_u32 {v(hW)}, {F_PRG}, {v(hW)}')
    A(f'  v_mov_b32 {v(hU)}, 0')
    A(f'  v_mov_b32 {v(hU+1)}, 0')
    def wait_progress(tag, lim, slp):
        A(f'  v_mov_b32 {v(hA)}, {F_PRG}')
        A(f'L_h_prog{tag}:')
        if slp: A(f'  s_sleep {slp}')
        A(f'  ds_read_b128 {v(hD,4)}, {v(hA)}')
        A('  s_waitcnt lgkmcnt(0)')
        A(f'  v_min_u32 {v(hD)}, {v(hD)}, {v(hD+1)}')
        if W == 4: A(f'  v_min3_u32 {v(hD)}, {v(hD)}, {v(hD+2)}, {v(hD+3)}')
        A(f'  v_readfirstlane_b32 {s(sA)}, {v(hD)}')
        if slp:
            A(f'  s_cmp_lt_u32 {s(sA)}, {lim}')
            A(f'  s_cbranch_scc1 L_h_prog{tag}')
    A(f'  s_getreg_b32 {s(sJ)}, hwreg(HW_REG_XCC_ID)')
    A(f'  s_bfe_u32 {s(sJ)}, {s(sJ)}, 0x10002')
    A(f'  s_bfe_u32 {s(sSF)}, s2, 0x30003')
    A(f'  s_cmp_eq_u32 {s(sSF)}, 7')
    A('  s_cbranch_scc1 L_h_voted')
    A(f'  s_lshr_b32 {s(sT)}, s2, 6')
    A(f'  s_xor_b32 {s(sT)}, {s(sT)}, s2')
    A(f'  s_and_b32 {s(sT)}, {s(sT)}, {32 // NV - 1}')
    A('  s_cbranch_scc1 L_h_voted')
    A(f'  s_cmp_eq_u32 {s(sSF)}, 6')
    A('  s_cbranch_scc0 L_h_probe')
    A(f'  s_xor_b32 {s(sV0)}, {s(sJ)}, {s(sRO)}')
    A(f'  s_and_b32 {s(sSF)}, s2, 3')
    A(f'  s_lshl2_add_u32 {s(sSF)}, {s(sSF)}, 36')
    A('  s_branch L_h_vote')
    A('L_h_probe:')
    A(f'  s_cmp_ge_u32 {s(sSF)}, 3')
    A(f'  s_cselect_b32 {s(SI)}, {s(SV)}, {s(SK)}')
    A(f'  s_cselect_b32 {s(SI+1)}, {s(SV+1)}, {s(SK+1)}')
    A(f'  s_cselect_b32 {s(sT)}, 3, 0')
    A(f'  s_sub_u32 {s(sT)}, {s(sSF)}, {s(sT)}')
    A(f'  s_lshl_b32 {s(sT)}, {s(sT)}, 28')
    A(f'  s_lshl_b32 {s(sOF)}, {s(sPB)}, 16')
    A(f'  s_add_u32 {s(sOF)}, {s(sOF)}, {s(sT)}')
    A(f'  s_lshl_b32 {s(sT)}, {s(sRO)}, 16')
    A(f'  s_add_u32 {s(sOF)}, {s(sOF)}, {s(sT)}')
    A(f'  s_add_u32 {s(sOF)}, {s(sOF)}, 0x1c0000')
    A(f'  s_mul_i32 {s(sT)}, s2, 0x2a95')
    A(f'  s_and_b32 {s(sT)}, {s(sT)}, 0x7f80')
    A(f'  s_add_u32 {s(sOF)}, {s(sOF)}, {s(sT)}')
    A(f'  s_add_u32 {s(sT)}, {s(sOF)}, 0x8000')
    A(f'  s_buffer_load_dword {s(sX)}, {s(SI,4)}, {s(sT)}')
    A(f'  s_mov_b32 {s(sN0)}, -1')
    A(f'  s_mov_b32 {s(sN0+1)}, -1')
    A(f'  s_mul_i32 {s(sSF)}, {s(sSF)}, 6')
    A('  s_waitcnt lgkmcnt(0)')
    if pdel: wait_progress('p', 1, 2)
    for k in range(NS):
        for c in ((0, 1) if k % 2 == 0 else (1, 0)):
            o = (((k & 1) << 14) | ((k >> 1 & 1) << 12) | ((k * 0x380) & 0xfff)) ^ (c << 13)
            A(f'  s_xor_b32 {s(sT)}, {s(sOF)}, {o}')
            A(f'  s_memtime {s(sA,2)}')
            A('  s_waitcnt lgkmcnt(0)')
            A(f'  s_buffer_load_dword {s(sX)}, {s(SI,4)}, {s(sT)}')
            A('  s_waitcnt lgkmcnt(0)')
            A(f'  s_memtime {s(sB,2)}')
            A('  s_waitcnt lgkmcnt(0)')
            A(f'  s_sub_u32 {s(sB)}, {s(sB)}, {s(sA)}')
            A(f'  s_min_u32 {s(sN0+c)}, {s(sN0+c)}, {s(sB)}')
    A(f'  s_cmp_lt_u32 {s(sN0+1)}, {s(sN0)}')
    A(f'  s_cselect_b32 {s(sV0)}, 1, 0')
    A(f'  s_lshr_b32 {s(sT)}, {s(sOF)}, 13')
    A(f'  s_xor_b32 {s(sT)}, {s(sT)}, s2')
    A(f'  s_xor_b32 {s(sT)}, {s(sT)}, {s(sJ)}')
    A(f'  s_and_b32 {s(sT)}, {s(sT)}, 1')
    A(f'  s_xor_b32 {s(sV0)}, {s(sV0)}, {s(sT)}')
    A('L_h_vote:')
    A(f'  s_mov_b32 {s(sV0+1)}, 0')
    A(f'  s_lshl_b64 {s(sV0,2)}, {s(sV0,2)}, {s(sSF)}')
    A(f'  s_or_b32 {s(sV0+1)}, {s(sV0+1)}, 0x1000000')
    A(f'  s_atomic_add_x2 {s(sV0,2)}, {s(sDBG,2)}, 0')
    A('L_h_voted:')
    A('  s_waitcnt lgkmcnt(0)')
    A('  s_cmp_lg_u32 s2, 56')
    A('  s_cbranch_scc1 L_h_nonce')
    A(f'  s_lshl_b64 {s(sA,2)}, {s(sT0,2)}, 2')
    A(f'  s_atomic_add_x2 {s(sA,2)}, {s(sDBG,2)}, 8')
    A('  s_waitcnt lgkmcnt(0)')
    A('L_h_nonce:')
    stamp()
    sCP, sCA, sUP, sRET, sSUB, sTHU = 76, 77, 78, 84, 86, 79
    A(f'  s_mov_b32 {s(sCP)}, {cp0}')
    A(f'  s_mov_b32 {s(sCA)}, {WSC}')
    A(f'  s_getpc_b64 {s(sSUB,2)}')
    A('L_h_pc2:')
    A(f'  s_add_u32 {s(sSUB)}, {s(sSUB)}, L_h_cp - L_h_pc2')
    A(f'  s_addc_u32 {s(sSUB+1)}, {s(sSUB+1)}, 0')
    def checkpoints(upto):
        A(f'  s_mov_b32 {s(sUP)}, {min(upto, last) - dly}')
        A(f'  s_swappc_b64 {s(sRET,2)}, {s(sSUB,2)}')
    def checkpoint_sub():
        A('L_h_cp:')
        A(f'  s_cmp_gt_u32 {s(sCP)}, {s(sUP)}')
        A('  s_cbranch_scc0 L_h_cpgo')
        A(f'  s_setpc_b64 {s(sRET,2)}')
        A('L_h_cpgo:')
        A(f'  ds_read_b32 {v(hD)}, {v(hW)}')
        A(f'  s_memrealtime {s(sA,2)}')
        A('  s_waitcnt lgkmcnt(0)')
        A(f'  v_mov_b32 {v(hT)}, {s(sA)}')
        A(f'  v_mov_b32 {v(hT+1)}, {s(sA+1)}')
        A(f'  v_cmp_gt_u32 vcc, {s(sCP)}, {v(hD)}')
        A('  s_cmp_eq_u32 vcc_lo, 0')
        A('  s_cbranch_scc1 L_h_cpnext')
        A('L_h_cpm:')
        A('  s_sleep 2')
        A(f'  ds_read_b32 {v(hD)}, {v(hW)}')
        A(f'  s_memrealtime {s(sA,2)}')
        A('  s_waitcnt lgkmcnt(0)')
        A(f'  v_mov_b32 {v(hD+2)}, {s(sA)}')
        A(f'  v_mov_b32 {v(hD+3)}, {s(sA+1)}')
        A(f'  v_cndmask_b32 {v(hT)}, {v(hT)}, {v(hD+2)}, vcc')
        A(f'  v_cndmask_b32 {v(hT+1)}, {v(hT+1)}, {v(hD+3)}, vcc')
        A(f'  v_cmp_gt_u32 vcc, {s(sCP)}, {v(hD)}')
        A('  s_cmp_lg_u32 vcc_lo, 0')
        A('  s_cbranch_scc1 L_h_cpm')
        A(f'  s_and_b32 {s(sT)}, s2, 0x78')
        A('  s_cbranch_scc1 L_h_np')
        A('  s_mov_b64 exec, 3')
        A(f'  buffer_store_dwordx2 {v(hT,2)}, {v(hP)}, {s(SW_,4)}, {s(sCA)} offen sc1')
        A('  s_mov_b64 exec, -1')
        A('L_h_np:')
        A(f'  s_add_u32 {s(sJ)}, {s(sCP)}, {dly}')
        wait_progress('c1', s(sJ), 4)
        A(f'  buffer_load_dwordx2 {v(hD,2)}, {v(hQ)}, {s(SW_,4)}, {s(sCA)} offen {fl(cpf)}')
        A(f'  v_mov_b32 {v(hD+2)}, {s(sT0+1)}')
        A('  s_waitcnt vmcnt(0)')
        A(f'  ds_read_b32 {v(hD+4)}, {v(hW)}')
        A(f'  v_subrev_co_u32 {v(hD)}, vcc, {s(sT0)}, {v(hD)}')
        A(f'  v_subb_co_u32 {v(hD+1)}, vcc, {v(hD+1)}, {v(hD+2)}, vcc')
        A(f'  v_lshrrev_b32 {v(hD+2)}, 24, {v(hD)}')
        A(f'  v_or_b32 {v(hD+1)}, {v(hD+1)}, {v(hD+2)}')
        A(f'  v_cmp_eq_u32 vcc, 0, {v(hD+1)}')
        A(f'  v_cndmask_b32 {v(hD)}, 0, {v(hD)}, vcc')
        A(f'  s_bcnt1_i32_b32 {s(sB)}, vcc_lo')
        for r in (8, 4, 2, 1):
            A(f'  v_add_u32_dpp {v(hD)}, {v(hD)}, {v(hD)} row_ror:{r} row_mask:0xf bank_mask:0xf')
        A(f'  v_readlane_b32 {s(sA)}, {v(hD)}, 0')
        A(f'  v_readlane_b32 {s(sT)}, {v(hD)}, 16')
        A(f'  v_subrev_u32 {v(hD)}, {s(sT0)}, {v(hT)}')
        A(f'  v_mul_lo_u32 {v(hD)}, {v(hD)}, {s(sB)}')
        A(f'  s_add_u32 {s(sA)}, {s(sA)}, {s(sT)}')
        A(f'  s_max_u32 {s(sB)}, {s(sB)}, 1')
        A(f'  v_subrev_u32 {v(hD)}, {s(sA)}, {v(hD)}')
        A(f'  v_cvt_f32_u32 {v(hD+1)}, {s(sB)}')
        A(f'  v_cvt_f32_i32 {v(hD)}, {v(hD)}')
        A(f'  v_rcp_f32 {v(hD+1)}, {v(hD+1)}')
        A(f'  v_mul_f32 {v(hD)}, {v(hD)}, {v(hD+1)}')
        A(f'  v_cvt_i32_f32 {v(hD)}, {v(hD)}')
        A('  s_waitcnt lgkmcnt(0)')
        A(f'  v_add_u32 {v(hD+4)}, {W}, {v(hD+4)}')
        acts = [(hU, gain, dead, False, F_BST)] + ([(hU + 1, gth, deadt, True, F_THR)] if tev else [])
        for unt, g_, dd, neg, addr in acts:
            A(f'  v_min_u32 {v(hD+1)}, {v(unt)}, {v(hD+4)}')
            A(f'  v_subrev_u32 {v(hD+1)}, {s(sCP)}, {v(hD+1)}')
            A(f'  v_max_i32 {v(hD+1)}, 0, {v(hD+1)}')
            A(f'  v_lshrrev_b32 {v(hD+1)}, 1, {v(hD+1)}')
            A(f'  v_mul_u32_u24 {v(hD+1)}, {g_}, {v(hD+1)}')
            A(f'  v_{"add" if neg else "sub"}_u32 {v(hD)}, {v(hD)}, {v(hD+1)}')
        for unt, g_, dd, neg, addr in acts:
            A(f'  v_{"sub" if neg else "add"}_u32 {v(hD+1)}, {g_ // 2 - dd}, {v(hD)}')
            A(f'  v_max_i32 {v(hD+1)}, 0, {v(hD+1)}')
            A(f'  v_min_i32 {v(hD+1)}, 2000, {v(hD+1)}')
            A(f'  v_mul_u32_u24 {v(hD+1)}, {65536 // g_}, {v(hD+1)}')
            A(f'  v_lshrrev_b32 {v(hD+1)}, 16, {v(hD+1)}')
            A(f'  v_cmp_ne_u32 vcc, 0, {v(hD+1)}')
            A(f'  v_lshl_add_u32 {v(hD+1)}, {v(hD+1)}, 1, {v(hD+4)}')
            A(f'  v_cndmask_b32 {v(unt)}, 0, {v(hD+1)}, vcc')
            A(f'  ds_write_b32 {v(hW)}, {v(unt)} offset:{addr - F_PRG}')
        A('L_h_cpnext:')
        A(f'  s_add_u32 {s(sCP)}, {s(sCP)}, {step}')
        A(f'  s_add_u32 {s(sCA)}, {s(sCA)}, 256')
        A('  s_branch L_h_cp')
    wait_progress('v', PW, 8)
    if vsl: A(f'  s_sleep {vsl}')
    A(f'  s_load_dwordx2 {s(sV0,2)}, {s(sDBG,2)}, 0')
    if safe: A('  s_mov_b32 s59, 0')
    A('L_h_votes:')
    A('  s_waitcnt lgkmcnt(0)')
    A(f'  s_lshr_b32 {s(sT)}, {s(sV0+1)}, 24')
    A(f'  s_cmp_eq_u32 {s(sT)}, {7 * NV}')
    A('  s_cbranch_scc1 L_h_votes_done')
    if safe:
        A('  s_add_u32 s59, s59, 1')
        A('  s_cmp_gt_u32 s59, 2000')
        A('  s_cbranch_scc1 L_h_votes_done')
    A('  s_sleep 64')
    A(f'  s_mov_b64 {s(sV0,2)}, 0')
    A(f'  s_atomic_or_x2 {s(sV0,2)}, {s(sDBG,2)}, 0 glc')
    A('  s_branch L_h_votes')
    A('L_h_votes_done:')
    A(f'  s_mov_b32 {s(sDEC)}, 0x80')
    for j in range(6):
        A(f'  s_bfe_u64 {s(sA,2)}, {s(sV0,2)}, {hex(0x60000 | (6 * j))}')
        A(f'  s_cmp_gt_u32 {s(sA)}, {NV // 2}')
        A(f'  s_cselect_b32 {s(sB)}, {1 << j}, 0')
        A(f'  s_or_b32 {s(sDEC)}, {s(sDEC)}, {s(sB)}')
        A(f'  s_sub_u32 {s(sA)}, {s(sA)}, {THR + 1}')
        A(f'  s_cmp_lt_u32 {s(sA)}, {NV - 2 * THR - 1}')
        A(f'  s_cselect_b32 {s(sB)}, 64, 0')
        A(f'  s_or_b32 {s(sDEC)}, {s(sDEC)}, {s(sB)}')
    A(f'  s_and_b32 {s(sT)}, s2, 3')
    A(f'  s_lshl2_add_u32 {s(sT)}, {s(sT)}, 4')
    A(f'  s_lshr_b32 {s(sA)}, {s(sV0+1)}, {s(sT)}')
    A(f'  s_and_b32 {s(sB)}, {s(sA)}, {NV // 4 - 1}')
    A(f'  s_cselect_b32 {s(sB)}, 64, 0')
    A(f'  s_or_b32 {s(sDEC)}, {s(sDEC)}, {s(sB)}')
    if force >= 0:
        A(f'  s_mov_b32 {s(sDEC)}, {0x80 | force}')
    A(f'  s_lshr_b32 {s(sA)}, {s(sA)}, {(NV // 4).bit_length() - 1}')
    A(f'  s_xor_b32 {s(sA)}, {s(sA)}, s2')
    A(f'  s_xor_b32 {s(sA)}, {s(sA)}, {s(sRO)}')
    A(f'  s_and_b32 {s(sA)}, {s(sA)}, 1')
    A(f'  s_mul_i32 {s(sA)}, {s(sA)}, 63')
    A(f'  s_xor_b32 {s(sDEC)}, {s(sDEC)}, {s(sA)}')
    A(f'  v_mov_b32 {v(hA)}, {F_DEC}')
    A(f'  v_mov_b32 {v(hD)}, {s(sDEC)}')
    A(f'  ds_write_b32 {v(hA)}, {v(hD)}')
    stamp()
    A(f'  v_lshlrev_b32 {v(hO)}, 4, v0')
    if pf and not pfw:
        for srd, nb in ((SKS, 24576), (SKZ, 24576), (SVS, 8192), (SVZ, 8192)):
            A(f'  s_mul_i32 {s(sA)}, s2, {nb}')
            for k in range(nb // 1024):
                if k % 4 == 0 and k: A(f'  s_add_u32 {s(sA)}, {s(sA)}, 4096')
                A(f'  s_waitcnt vmcnt({pf - 1})')
                A(f'  buffer_load_dwordx4 {v(hD,4)}, {v(hO)}, {s(srd,4)}, {s(sA)} offen offset:{(k % 4) * 1024}')
        A('  s_waitcnt vmcnt(0)')
    stamp()
    A(f'  s_load_dwordx2 {s(sNON,2)}, {s(sDBG,2)}, 8')
    A('L_h_getnonce:')
    A('  s_waitcnt lgkmcnt(0)')
    A(f'  s_cmp_lg_u64 {s(sNON,2)}, 0')
    A('  s_cbranch_scc1 L_h_gotnonce')
    A('  s_sleep 32')
    A(f'  s_atomic_or_x2 {s(sNON,2)}, {s(sDBG,2)}, 8 glc')
    A('  s_branch L_h_getnonce')
    A('L_h_gotnonce:')
    A(f'  s_lshr_b64 {s(sA,2)}, {s(sNON,2)}, 2')
    A(f'  v_mov_b32 {v(hA)}, {F_TAG}')
    A(f'  v_mov_b32 {v(hD)}, {s(sA)}')
    A(f'  ds_write_b32 {v(hA)}, {v(hD)}')
    checkpoints(64)
    A(f'  s_bitcmp1_b32 {s(sDEC)}, 6')
    A('  s_cbranch_scc1 L_h_skipa0')
    A(f'  s_lshl_b32 {s(sFA)}, s2, 8')
    A(f'  s_add_u32 {s(sFA)}, {s(sFA)}, {WSF}')
    A(f'  s_xor_b32 {s(sFS)}, {s(sFA)}, 1024')
    A(f'  s_lshr_b32 {s(sX)}, {s(sDEC)}, 3')
    A(f'  s_xor_b32 {s(sX)}, {s(sX)}, {s(sDEC)}')
    A(f'  s_lshr_b32 {s(sT)}, {s(sPB)}, 4')
    A(f'  s_lshr_b32 {s(sOF)}, {s(sT)}, 5')
    A(f'  s_lshl_b32 {s(sOF)}, {s(sOF)}, 21')
    A(f'  s_add_u32 {s(sOF)}, {s(sOF)}, {WSX}')
    A(f'  s_and_b32 {s(sQD)}, {s(sT)}, 31')
    A(f'  s_add_u32 {s(sT)}, {s(sQD)}, {s(sRO)}')
    A(f'  s_lshl_b32 {s(sT)}, {s(sT)}, 10')
    A(f'  s_add_u32 {s(sME)}, {s(sOF)}, {s(sT)}')
    A(f'  s_xor_b32 {s(sPA)}, {s(sME)}, 1024')
    def pxor(k):
        h = k >> 2
        c = (h & 3) ^ (((h >> 2) & 1) * 17) ^ (((h >> 3) & 1) * 4)
        return (k << 15) | (c << 10)
    NW = NWU * 384 // 1024
    def reg(k): return hD + 4 * (k % 24)
    def export(lo, hi):
        for k in range(lo, hi): A(f'  ds_read_b128 {v(reg(k),4)}, {v(hO)} offset:{1024*k}')
        A('  s_waitcnt lgkmcnt(0)')
        for k in range(lo, hi):
            A(f'  s_xor_b32 {s(sT)}, {s(sME)}, {pxor(k)}')
            if xdep: A(f'  s_waitcnt vmcnt({xdep - 1})')
            if not noexp: A(f'  buffer_store_dwordx4 {v(reg(k),4)}, {v(hO)}, {s(SW_,4)}, {s(sT)} offen {fl(xf)}')
    def imp(lo, hi):
        for k in range(lo, hi):
            A(f'  s_xor_b32 {s(sT)}, {s(sPA)}, {pxor(k)}')
            if idep: A(f'  s_waitcnt vmcnt({idep - 1})')
            if not noimp: A(f'  buffer_load_dwordx4 {v(reg(k),4)}, {v(hO)}, {s(SW_,4)}, {s(sT)} offen {fl(impf)}')
        A('  s_waitcnt vmcnt(0)')
        for k in range(lo, hi): A(f'  ds_write_b128 {v(hO)}, {v(reg(k),4)} offset:{1024*k}')
    def cond(bit, tag, fn):
        A(f'  s_bitcmp0_b32 {s(sX)}, {bit}')
        A(f'  s_cbranch_scc1 L_h_{tag}')
        fn()
        A(f'L_h_{tag}:')
    def signal(level):
        A(f'  s_add_u32 {s(sA)}, {s(sNON)}, {level}')
        A(f'  v_mov_b32 {v(h2)}, 0')
        A('  s_waitcnt vmcnt(0)')
        A(f'  v_mov_b32 {v(hD)}, {s(sA)}')
        A(f'  v_mov_b32 {v(hD+1)}, {s(sNON+1)}')
        A('  s_mov_b64 exec, 1')
        A(f'  buffer_store_dwordx2 {v(hD,2)}, {v(h2)}, {s(SW_,4)}, {s(sFA)} offen sc1')
        A('  s_mov_b64 exec, -1')
    def await_partner(tag, level):
        A(f'  s_add_u32 {s(sA)}, {s(sNON)}, {level}')
        A(f'  v_mov_b32 {v(h2)}, 0')
        A('  s_mov_b64 exec, 1')
        if safe: A('  s_mov_b32 s59, 0')
        A(f'L_h_flag{tag}:')
        A(f'  buffer_load_dwordx2 {v(hD+2,2)}, {v(h2)}, {s(SW_,4)}, {s(sFS)} offen sc1')
        A('  s_waitcnt vmcnt(0)')
        A(f'  v_readfirstlane_b32 {s(sB)}, {v(hD+2)}')
        A(f'  v_readfirstlane_b32 {s(sB+1)}, {v(hD+3)}')
        A(f'  s_sub_u32 {s(sB)}, {s(sB)}, {s(sA)}')
        A(f'  s_xor_b32 {s(sB+1)}, {s(sB+1)}, {s(sNON+1)}')
        A(f'  s_lshr_b32 {s(sB)}, {s(sB)}, 1')
        A(f'  s_or_b32 {s(sB)}, {s(sB)}, {s(sB+1)}')
        A(f'  s_cbranch_scc0 L_h_flag{tag}_done')
        if safe:
            A('  s_add_u32 s59, s59, 1')
            A('  s_cmp_gt_u32 s59, 2000')
            A(f'  s_cbranch_scc1 L_h_flag{tag}_done')
        A('  s_sleep 32')
        A(f'  s_branch L_h_flag{tag}')
        A(f'L_h_flag{tag}_done:')
        A('  s_mov_b64 exec, -1')
    wait_progress('a', 64, 8)
    stamp()
    export(0, NW)
    cond(0, 'e0', lambda: export(NW, 12))
    cond(1, 'e1', lambda: export(12, 24))
    signal(1)
    A('L_h_skipa0:')
    checkpoints(ia)
    A(f'  s_bitcmp1_b32 {s(sDEC)}, 6')
    A('  s_cbranch_scc1 L_h_skipa')
    if ia > 64: wait_progress('ia', ia, 8)
    await_partner('a', 1)
    stamp()
    A(f'  s_bfe_u32 {s(sA)}, {s(sDEC)}, 0x10003')
    A(f'  s_mul_i32 {s(sA)}, {s(sA)}, 384')
    A(f'  v_lshrrev_b32 {v(h1)}, 3, v0')
    for k in range(NW):
        A(f'  v_add_u32 {v(h2)}, {8 * k}, {v(h1)}')
        A(f'  v_mul_u32_u24 {v(h2)}, 21846, {v(h2)}')
        A(f'  v_bfe_u32 {v(h2)}, {v(h2)}, 16, 1')
        A(f'  v_mul_u32_u24 {v(h3)}, 384, {v(h2)}')
        A(f'  v_sub_u32 {v(h3)}, {v(hO)}, {v(h3)}')
        A(f'  v_add_u32 {v(h3)}, {s(sA)}, {v(h3)}')
        A(f'  v_add_u32 {v(h3)}, {1024 * k}, {v(h3)}')
        A(f'  v_add_u32 {v(h2)}, {s(sQD)}, {v(h2)}')
        A(f'  v_lshrrev_b32 {v(hZ)}, 12, {v(h3)}')
        A(f'  v_xor_b32 {v(h2)}, {v(h2)}, {v(hZ)}')
        A(f'  v_lshrrev_b32 {v(hZ)}, 10, {v(h3)}')
        A(f'  v_lshl_add_u32 {v(h2)}, {v(hZ)}, 5, {v(h2)}')
        A(f'  v_and_b32 {v(h3)}, 1023, {v(h3)}')
        A(f'  v_lshl_add_u32 {v(h2)}, {v(h2)}, 10, {v(h3)}')
        if not noimp: A(f'  buffer_load_dwordx4 {v(reg(k),4)}, {v(h2)}, {s(SW_,4)}, {s(sOF)} offen sc1')
    A('  s_waitcnt vmcnt(0)')
    for k in range(NW): A(f'  ds_write_b128 {v(hO)}, {v(reg(k),4)} offset:{1024*k}')
    cond(0, 'i0', lambda: imp(NW, 12))
    cond(1, 'i1', lambda: imp(12, 24))
    stamp()
    A('L_h_skipa:')
    A(f'  s_lshr_b32 {s(sT)}, {s(sDEC)}, 4')
    A(f'  s_andn2_b32 {s(sX)}, {s(sX)}, {s(sT)}')
    A(f'  s_bitcmp0_b32 {s(sX)}, 2')
    A(f'  s_cselect_b32 {s(sT)}, 255, 64')
    A(f'  v_mov_b32 {v(hA)}, {F_IMP}')
    A(f'  v_mov_b32 {v(h2)}, {s(sT)}')
    A(f'  ds_write_b32 {v(hA)}, {v(h2)}')
    checkpoints(NF)
    code_touch('b')
    A(f'  s_bitcmp0_b32 {s(sX)}, 2')
    A('  s_cbranch_scc1 L_h_skipb0')
    wait_progress('b', NF, 8)
    stamp()
    export(24, 36)
    signal(2)
    A('L_h_skipb0:')
    checkpoints(ib)
    A(f'  s_bitcmp0_b32 {s(sX)}, 2')
    A('  s_cbranch_scc1 L_h_all')
    if ib > NF: wait_progress('ib', ib, 8)
    await_partner('b', 2)
    stamp()
    imp(24, 36)
    stamp()
    A(f'  v_mov_b32 {v(hA)}, {F_IMP}')
    A(f'  v_mov_b32 {v(h2)}, 255')
    A(f'  ds_write_b32 {v(hA)}, {v(h2)}')
    A('L_h_all:')
    checkpoints(176)
    code_touch('c')
    checkpoints(999)
    A('  s_waitcnt lgkmcnt(0)')
    if stamps or tl:
        A('  s_branch L_fin')
    else:
        A('  s_endpgm')
    checkpoint_sub()
    A('L_code_end:')
    body = pad(L)

    nva = (nv + 7) // 8 * 8
    out = HDR + f'; @launch grid=(256,1,1) block=({64*(W+1)},1,1) lds={lds}\n'
    out += '.amdgcn_target "amdgcn-amd-amdhsa--gfx950"\n.text\n'
    out += f'.globl {NAME}\n.p2align 8\n.type {NAME},@function\n'
    out += '\n'.join(body) + '\n'
    out += '.section .rodata,"a"\n'
    for nm, nvv, nss in ((NAME, nva, 102),):
        out += f'''.p2align 6
.amdhsa_kernel {nm}
  .amdhsa_next_free_vgpr {nvv}
  .amdhsa_next_free_sgpr {nss}
  .amdhsa_accum_offset {nvv}
  .amdhsa_group_segment_fixed_size 0
  .amdhsa_kernarg_size 80
  .amdhsa_user_sgpr_count 2
  .amdhsa_user_sgpr_kernarg_segment_ptr 1
  .amdhsa_system_sgpr_workgroup_id_x 1
  .amdhsa_float_denorm_mode_32 3
.end_amdhsa_kernel
'''
    return out

if __name__ == '__main__':
    kw = {}
    for x in sys.argv[2:]:
        k, val = x.split('=')
        kw[k] = int(val) if val.lstrip('-').isdigit() else val
    open(sys.argv[1], 'w').write(gen(**kw))
```

```python
import sys, os
sys.path.insert(0, os.path.dirname(os.path.abspath(__file__)))
from asmlib import pad
NAME = 'standalone__kv_cache_quant_int4_int2_kv_with_per_channel_or_per_token_scales__sampling_kernel'
HEAD = 4096 * 768
TOTAL = 256 * HEAD
REC = 5120
WSOFF = 1 << 20
WSX = 8 << 20
WSC = 7 << 20
WSF = (7 << 20) + (1 << 16)
IMG = 96 * 384
WSEND = WSX + (16 << 20)
OOB = 0x7ffffff0
HDR = open(os.path.join(os.path.dirname(os.path.abspath(__file__)), 'header.txt')).read()
assert all(((32 * c + 1) * 21846) >> 16 == (32 * c + 1) // 3 for c in range(25))
assert all((c * 43) >> 8 == c // 6 for c in range(24))

class Alloc:
    def __init__(self, start): self.n = start
    def __call__(self, k, align=1):
        self.n = (self.n + align - 1) // align * align
        r = self.n; self.n += k
        return r

def v(r, k=1): return f'v{r}' if k == 1 else f'v[{r}:{r+k-1}]'
def s(r, k=1): return f's{r}' if k == 1 else f's[{r}:{r+k-1}]'

def merge(main, side, every):
    out = []; side = list(side); c = 0
    for m in main:
        out.append(m); c += 1
        if side and c % every == 0: out.append(side.pop(0))
    return out + side

def combine(A, n, ST, AC, npiece, X0, X1, OUT):
    A(f'  v_min_f32 {v(X0)}, {v(ST)}, {v(ST+2)}')
    for w in range(2, n): A(f'  v_min_f32 {v(X0)}, {v(X0)}, {v(ST+2*w)}')
    for w in range(n): A(f'  v_sub_f32 {v(ST+2*w)}, {v(X0)}, {v(ST+2*w)}')
    for w in range(n): A(f'  v_exp_f32 {v(ST+2*w)}, {v(ST+2*w)}')
    A(f'  v_mul_f32 {v(X1)}, {v(ST)}, {v(ST+1)}')
    for w in range(1, n): A(f'  v_fma_f32 {v(X1)}, {v(ST+2*w)}, {v(ST+2*w+1)}, {v(X1)}')
    for i in range(npiece):
        for j in range(4):
            A(f'  v_mul_f32 {v(OUT(4*i+j))}, {v(ST)}, {v(AC+4*i+j)}')
            for w in range(1, n):
                A(f'  v_fma_f32 {v(OUT(4*i+j))}, {v(ST+2*w)}, {v(AC+4*(npiece*w+i)+j)}, {v(OUT(4*i+j))}')

def gen(D=10, W=2, stamps=False, sf='-', stf='-', tl=0, NWU=8, NS=3, pf=8, force=-1, THR=2, NV=8, safe=0, PW=0, xf='sc1', noexp=0, noimp=0, DC=15, U=2, gain=22, dly=4, dead=0, diagpad=0, diagref=0, ldsz=62464, pfw=16, PSK=17, vsl=0, cpf='-', fullpoll=1, cpre=1, impf='sc1', xdep=0, idep=0, ia=64, ib=96, tlb=0, DT=4, gth=22, deadt=50, cp0=12, step=8, last=186, tev=0, pdel=1, wsy=0, diagat=-1, ib0=0, nobr=0, bev=3, fk=0, fv=0, w3=0, rot=0, rk=0, nosmall=0, wbl=0):
    R = 11 * U; NST = 33; NF = 96
    DN = D; D = DC = DC or D
    assert DN <= D <= R and NWU % 8 == 0 and W in (2, 4)
    PW = PW or NWU - W
    fl = lambda x: x.replace('-', '').replace('+', ' ')
    sf, stf = fl(sf), fl(stf)
    L = []
    A = L.append
    va = Alloc(1)
    VO5 = va(1); VO6 = va(1); ICR = va(1)
    RING = va(4 * R, 4); VO = va(4)
    DUP = va(1); DOWN = va(1); DCON = va(1); ICV = va(1); TU = va(1)
    VVS = va(1); VL1 = va(1); VL2 = va(1); VBP = va(1); VFL = va(1); VST = va(1); VPR = va(1)
    VOOB = va(1); VBA = va(1); VBS = va(1); VBD = va(1); VBC = va(1)
    T = va(4, 2); ZN = va(1); SN = va(1); ZC = va(1); SC = va(1); ZS = va(2, 2)
    LG = va(6, 4); ACC = va(12, 4); M = va(1); NB = va(2, 2); LS = NB + 1
    X0 = va(2, 2); X1 = X0 + 1; AL = va(1); ALQ = va(1); E = va(11); PP = va(6); TL = va(1)
    base = va.n
    QB = va(6, 4); QN = va(6, 2); KSR = va(6, 2); KZR = va(6, 2); KS = va(12, 2); KZ = va(12, 2); KA = va(6, 4); SD = va(4, 4); S = va(2, 2)
    IUP = va(1); IOWN = va(1); ICON = va(1); VKS0 = va(1); VKS = va(1); VQ = va(1); VNI = va(1)
    kend = va.n
    va.n = base
    AJ = va(16, 4); AK = va(8, 2); TV = va(12, 2); BV = va(48, 4)
    nv = max(va.n, kend)
    sRO, sPB = 4, 5
    SK, SV, SI, SKS, SKZ, SVS, SVZ, SQ, SW_ = 8, 12, 16, 20, 24, 28, 32, 36, 40
    PT = 44
    sREC, sL0, sL10, sM0, sM10, sLOW = 44, 48, 50, 52, 54, 56
    sRN, sRC = 46, 47
    sCUR, sNXT, sSO, sF, sMSK, sL2E, sTL, s768, sSCL, sT = 60, 61, 62, 64, 65, 66, 67, 63, 68, 70
    sMJ = 72
    sDBG, sWS = 80, 82
    sQ3, sC, sQC, sCC, sHC, sHN, sDIV, sSH = 84, 85, 86, 87, 88, 89, 90, 91
    sDEC, sLIM, sGATE, sSEG = 96, 97, 99, 100
    sU = 92
    sBIG, sSM = 92, 94
    SEG = W * 3072 + W * 32
    LDS_ACC = IMG
    LDS_F = LDS_ACC + 4 * SEG
    F_DEC, F_IMP, F_BST, F_TAG, F_PRG = LDS_F, LDS_F + 4, LDS_F + 8, LDS_F + 12, LDS_F + 16
    F_BST = F_PRG + 16; F_THR = F_PRG + 32
    cps = True
    lds = ldsz
    assert LDS_F + 64 <= lds

    A(f'{NAME}:')
    A('  s_cmp_ge_u32 s2, 256')
    A('  s_cbranch_scc1 L_end')
    A(f'  s_load_dwordx16 {s(PT,16)}, s[0:1], 0')
    A(f'  s_load_dwordx4 {s(sDBG,4)}, s[0:1], 64')
    if stamps or diagpad:
        A('  s_memrealtime s[6:7]')
    A('  v_lshrrev_b32 v1, 6, v0')
    A('  v_and_b32 v0, 63, v0')
    A('  v_readfirstlane_b32 s3, v1')
    A(f'  s_bfe_u32 {s(sRO)}, s2, 0x10002')
    A(f'  s_lshr_b32 {s(sPB)}, s2, 3')
    A(f'  s_lshl_b32 {s(sPB)}, {s(sPB)}, 2')
    A(f'  s_and_b32 {s(sT)}, s2, 3')
    A(f'  s_add_u32 {s(sPB)}, {s(sPB)}, {s(sT)}')
    A(f'  s_lshl_b32 {s(sPB)}, {s(sPB)}, 5')
    SRDS = ((SKS, PT + 6, 256 * 24576), (SKZ, PT + 8, 256 * 24576), (SVS, PT + 10, 256 * 8192), (SVZ, PT + 12, 256 * 8192),
            (SK, PT + 2, TOTAL), (SQ, PT, 256 * 1536), (SI, PT + 2, TOTAL), (SV, PT + 4, TOTAL), (SW_, sWS, WSEND))
    for srd, p, nb in SRDS:
        A(f'  s_mov_b32 {s(srd+2)}, {nb}')
        A(f'  s_mov_b32 {s(srd+3)}, 0x20000')
    def make_srds(lo=0, hi=9):
        if lo == 0: A('  s_waitcnt lgkmcnt(0)')
        for srd, p, nb in SRDS[lo:hi]:
            A(f'  s_mov_b32 {s(srd)}, {s(p)}')
            A(f'  s_and_b32 {s(srd+1)}, {s(p+1)}, 0xffff')
    A(f'  s_cmp_eq_u32 s3, {W}')
    A('  s_cbranch_scc1 L_helper')

    cls, a, g, n = T, T + 1, T + 2, T + 3
    A(f'  v_and_b32 {v(cls)}, 3, v0')
    A(f'  v_bfe_u32 {v(a)}, v0, 2, 2')
    A(f'  v_lshrrev_b32 {v(g)}, 4, v0')
    A(f'  v_and_b32 {v(n)}, 15, v0')
    def stream_consts(x, up, own, con, lanepart):
        A(f'  v_and_b32 {v(own)}, 2, {v(x)}')
        A(f'  v_lshlrev_b32 {v(up)}, 5, {v(own)}')
        A(f'  v_add_u32 {v(up)}, 129, {v(up)}')
        A(f'  v_and_b32 {v(X1)}, 1, {v(x)}')
        A(f'  v_lshl_add_u32 {v(own)}, {v(X1)}, 2, {v(own)}')
        A(f'  v_mul_u32_u24 {v(X1)}, {43 * 768}, {v(X1)}')
        A(f'  v_add_u32 {v(con)}, {v(lanepart)}, {v(X1)}')
        A(f'  v_subrev_u32 {v(con)}, {43 * 768}, {v(con)}')
    A(f'  v_lshlrev_b32 {v(X0)}, 4, {v(cls)}')
    A(f'  v_lshl_add_u32 {v(X0)}, {v(g)}, 6, {v(X0)}')
    A(f'  v_lshrrev_b32 {v(VKS0)}, 1, {v(X0)}')
    stream_consts(a, IUP, IOWN, ICON, X0)
    A(f'  v_mul_u32_u24 {v(X1)}, 384, {v(a)}')
    A(f'  v_add_u32 {v(VQ)}, {v(X1)}, {v(VKS0)}')
    A(f'  v_mov_b32 {v(VOOB)}, {OOB}')
    A(f'  s_mov_b32 {s(sDIV)}, 0xaaaaaaab')
    A(f'  s_mov_b32 {s(sSH)}, 0x492492')
    A(f'  s_movk_i32 {s(s768)}, 768')
    def slot(k): return RING + 4 * (k % R)
    def main_load(k, srd, so):
        ss, i = divmod(k % NST, 3)
        r, k0 = (VO, 0) if ss == 0 else (VO + 1, 1) if ss <= 5 else (VO + 2, 6) if ss <= 9 else (VO + 3, 10)
        if rk and ss in (5, 6): r, k0 = (VO5, 5) if ss == 5 else (VO6, 6)
        return f'  buffer_load_dwordx4 {v(slot(k),4)}, {v(r)}, {s(srd,4)}, {s(so)} offen offset:{768*(ss-k0) + 256*i} nt'
    def kscale_loads():
        r = [f'  s_mul_i32 {s(sSO)}, {s(sQ3)}, 1536' if not nosmall & 1 else f'  s_mov_b32 {s(sSO)}, 0']
        for i in range(3):
            r.append(f'  buffer_load_dwordx2 {v(KSR+2*i,2)}, {v(VKS)}, {s(SKS,4)}, {s(sSO)} offen offset:{128*i} {sf}')
            r.append(f'  buffer_load_dwordx2 {v(KZR+2*i,2)}, {v(VKS)}, {s(SKZ,4)}, {s(sSO)} offen offset:{128*i} {sf}')
        return r
    def vscale_loads():
        return [f'  s_lshl_b32 {s(sSO)}, {s(sQ3)}, 9' if not nosmall & 2 else f'  s_mov_b32 {s(sSO)}, 0',
                f'  v_lshl_add_u32 {v(VVS)}, {v(TU)}, 1, {v(ICV)}'] + \
               ([f'  v_mad_i32_i24 {v(VVS)}, {v(ICR)}, {s(sRN)}, {v(VVS)}'] if rk else []) + [
                f'  buffer_load_short_d16_hi {v(ZN)}, {v(VVS)}, {s(SVZ,4)}, {s(sSO)} offen {sf}',
                f'  buffer_load_short_d16_hi {v(SN)}, {v(VVS)}, {s(SVS,4)}, {s(sSO)} offen {sf}']
    def q_loads():
        return [f'  s_mul_i32 {s(sT)}, {s(sHN)}, 1536'] + \
               [f'  buffer_load_dwordx2 {v(QN+2*i,2)}, {v(VQ)}, {s(SQ,4)}, {s(sT)} offen offset:{128*i} {sf}' for i in range(3)]
    def short_masks(own, c, m0, m10, low):
        A(f'  v_add_u32 {v(X0)}, {s(c)}, {v(own)}')
        A(f'  v_lshrrev_b32 {v(X1)}, {v(X0)}, {s(sSH)}')
        A(f'  v_and_b32 {v(X1)}, 1, {v(X1)}')
        A(f'  v_cmp_eq_u32 {s(m10,2)}, 1, {v(X1)}')
        A(f'  s_and_b64 {s(m0,2)}, {s(m10,2)}, {low}')
        A(f'  s_andn2_b64 {s(m10,2)}, {s(m10,2)}, {low}')
    def map_unit(f, isv):
        A(f'  s_andn2_b32 {s(sT)}, {s(f)}, 1')
        A(f'  s_or_b32 {s(sT)}, {s(sT)}, {s(sRO)}')
        A(f'  s_lshr_b32 {s(sT+1)}, {s(f)}, 5')
        A(f'  s_lshr_b32 {s(sC)}, {s(sDEC)}, {s(sT+1)}')
        if isv: A(f'  s_lshr_b32 {s(sC)}, {s(sC)}, 3')
        A(f'  s_cmp_lt_u32 {s(f)}, {s(sLIM)}')
        A(f'  s_cselect_b32 {s(sT)}, {s(sT)}, {s(f)}')
        A(f'  s_cselect_b32 {s(sC)}, {s(f)}, {s(sC)}')
        A(f'  s_and_b32 {s(sC)}, {s(sC)}, 1')
        if rk: A(f'  s_and_b32 {s(sRN)}, {s(sT)}, 1')
        if rot:
            A(f'  s_and_b32 {s(sQ3)}, {s(sT)}, {(2 << rot) - 1}')
            A(f'  s_sub_u32 {s(sT)}, {s(sT)}, {s(sQ3)}')
            A(f'  s_mul_i32 {s(sQ3)}, {s(sQ3)}, {(2 << rot) + 1}')
            A(f'  s_bfe_u32 {s(sQ3)}, {s(sQ3)}, {hex(((rot + 1) << 16) | 1)}')
            A(f'  s_add_u32 {s(sT)}, {s(sT)}, {s(sQ3)}')
        A(f'  s_mul_i32 {s(sT+1)}, {s(sT+1)}, {4096 - 32}')
        A(f'  s_add_u32 {s(sT)}, {s(sT)}, {s(sT+1)}')
        A(f'  s_add_u32 {s(sT)}, {s(sT)}, {s(sPB)}')
        A(f'  s_mul_hi_u32 {s(sQ3)}, {s(sT)}, {s(sDIV)}')
        A(f'  s_lshr_b32 {s(sQ3)}, {s(sQ3)}, 1')
        A(f'  s_mul_i32 {s(sT+1)}, {s(sQ3)}, 3')
        A(f'  s_sub_u32 {s(sT)}, {s(sT)}, {s(sT+1)}')
        A(f'  s_lshl3_add_u32 {s(sC)}, {s(sT)}, {s(sC)}')
        A(f'  s_mul_i32 {s(sNXT)}, {s(sQ3)}, 196608')
        A(f'  s_lshr_b32 {s(sHN)}, {s(sQ3)}, 4')
        A(f'  s_lshl_b32 {s(sT)}, {s(sC)}, 5')
        A(f'  v_add_u32 {v(TU)}, {s(sT)}, {v(DUP if isv else IUP)}')
        A(f'  v_mul_u32_u24 {v(TU)}, 21846, {v(TU)}')
        A(f'  v_lshrrev_b32 {v(TU)}, 16, {v(TU)}')
        short_masks(DOWN if isv else IOWN, sC, sM0, sM10, s(sLOW + 2 * isv, 2))
        if not isv:
            A(f'  v_mul_u32_u24 {v(X0)}, 43, {v(X0)}')
            A(f'  v_lshrrev_b32 {v(X0)}, 8, {v(X0)}')
            A(f'  v_mul_u32_u24 {v(X0)}, 384, {v(X0)}')
            A(f'  v_add_u32 {v(VKS)}, {v(X0)}, {v(VKS0)}')
    def offsets(con):
        A(f'  v_mad_u32_u24 {v(VO)}, {v(TU)}, {s(s768)}, {v(con)}')
        if rk:
            A(f'  s_xor_b32 {s(sT)}, {s(sRN)}, 1')
            A(f'  s_mul_i32 {s(sT)}, {s(sT)}, {6 * 768}')
            A(f'  s_mul_i32 {s(sT+1)}, {s(sRN)}, {5 * 768}')
            A(f'  v_add_u32 {v(VO+2)}, {s(sT)}, {v(VO)}')
            A(f'  v_add_u32 {v(VO)}, {s(sT+1)}, {v(VO)}')
            A(f'  v_add_u32 {v(VO+3)}, {4 * 768}, {v(VO+2)}')
            A(f'  v_add_u32 {v(VO+1)}, 768, {v(VO)}')
            A(f'  v_add_u32 {v(VO5)}, {5 * 768}, {v(VO)}')
            A(f'  s_cmp_eq_u32 {s(sRN)}, 0')
            for dst, src, m, when0 in ((VO, VO, sM0, 1), (VO + 3, VO + 3, sM10, 1), (VO5, VO5, sM10, 0), (VO6, VO + 2, sM0, 0)):
                A(f'  s_cselect_b64 {s(sT,2)}, {s(m,2)}, 0' if when0 else f'  s_cselect_b64 {s(sT,2)}, 0, {s(m,2)}')
                A(f'  v_cndmask_b32 {v(dst)}, {v(src)}, {v(VOOB)}, {s(sT,2)}')
            return
        A(f'  v_add_u32 {v(VO+1)}, 768, {v(VO)}')
        A(f'  v_add_u32 {v(VO+2)}, {6 * 768}, {v(VO)}')
        A(f'  v_add_u32 {v(VO+3)}, {10 * 768}, {v(VO)}')
        A(f'  v_cndmask_b32 {v(VO)}, {v(VO)}, {v(VOOB)}, {s(sM0,2)}')
        A(f'  v_cndmask_b32 {v(VO+3)}, {v(VO+3)}, {v(VOOB)}, {s(sM10,2)}')
    def stamp():
        if tl:
            A(f'  s_memrealtime {s(sT,2)}')
            A('  s_waitcnt lgkmcnt(0)')
            A(f'  s_min_u32 m0, {s(sTL)}, 63')
            A(f'  v_writelane_b32 {v(TL)}, {s(sT)}, m0')
            A(f'  s_add_u32 {s(sTL)}, {s(sTL)}, 1')
    def reset_state():
        for k in range(12): A(f'  v_mov_b32 {v(ACC+k)}, 0')
        A(f'  v_mov_b32 {v(M)}, 0xff800000')
        A(f'  v_mov_b32 {v(NB)}, 0x7f800000')
        A(f'  v_mov_b32 {v(LS)}, 0')
    A(f'  s_mov_b32 {s(sF)}, s3')
    A(f'  s_mov_b32 {s(sLIM)}, {NWU}')
    A(f'  s_mov_b32 {s(sGATE)}, {NWU}')
    A(f'  s_mov_b32 {s(sDEC)}, 0')
    A(f'  v_lshlrev_b32 {v(ZC)}, 4, v0')
    pfl = []
    if pfw:
        sPK, sPV = sQC, sHC
        A(f'  s_mul_i32 {s(sT)}, s2, {W}')
        A(f'  s_add_u32 {s(sT)}, {s(sT)}, s3')
        A(f'  s_mul_i32 {s(sPV)}, {s(sT)}, {8192 // W}')
        A(f'  s_mul_i32 {s(sPK)}, {s(sT)}, {24576 // W}')
        line = lambda srd, so, k: f'  buffer_load_dwordx4 {v(ACC,4)}, {v(ZC)}, {s(srd,4)}, {s(so)} offen offset:{(k % 4) * 1024}'
        for k in range(24 // W):
            if k % 4 == 0 and k: pfl.append(f'  s_add_u32 {s(sPK)}, {s(sPK)}, 4096')
            pfl += [line(SKS, sPK, k), line(SKZ, sPK, k)]
            if k < 8 // W: pfl += [line(SVS, sPV, k), line(SVZ, sPV, k)]
    nissued = [0]
    def issue_pf(n):
        while pfl and n > 0:
            x = pfl.pop(0)
            if 'buffer_load' in x:
                if nissued[0] >= pfw: A(f'  s_waitcnt vmcnt({pfw - 1})')
                nissued[0] += 1; n -= 1
            A(x)
    make_srds(0, 4)
    issue_pf(min(pfw, 8))
    make_srds(4, 9)
    A(f'  s_mov_b32 {s(sLOW)}, 0x0f0f0f0f')
    A(f'  s_mov_b32 {s(sLOW+1)}, 0x0f0f0f0f')
    A(f'  s_mov_b32 {s(sLOW+2)}, 0xffff')
    A(f'  s_mov_b32 {s(sLOW+3)}, 0xffff')
    map_unit(sF, 0)
    offsets(ICON)
    A(f'  s_mov_b32 {s(sCUR)}, {s(sNXT)}')
    if pfw:
        for x in q_loads(): A(x)
        A(main_load(0, SK, sCUR))
        issue_pf(pfw - nissued[0])
        A('  s_barrier')
        issue_pf(99)
        for x in kscale_loads(): A(x)
        for k in range(1, D):
            A(f'  s_waitcnt vmcnt({max(min(pfw, DN) - 1 + 6, k - 1 + 6)})')
            A(main_load(k, SK, sCUR))
    else:
        for x in kscale_loads(): A(x)
        for x in q_loads(): A(x)
        for k in range(D): A(main_load(k, SK, sCUR))
    A(f'  s_mov_b32 {s(sHC)}, {s(sHN)}')
    A('  s_mov_b64 vcc, 0')
    A(f'  v_lshlrev_b32 {v(X0)}, 4, {v(n)}')
    stream_consts(g, DUP, DOWN, DCON, X0)
    A(f'  v_and_b32 {v(X1)}, 1, {v(g)}')
    A(f'  v_mul_u32_u24 {v(X1)}, 86, {v(X1)}')
    A(f'  v_lshl_add_u32 {v(ICV)}, {v(n)}, 1, {v(X1)}')
    A(f'  v_subrev_u32 {v(ICV)}, 86, {v(ICV)}')
    if rk:
        A(f'  v_add_u32 {v(ICR)}, 10, {v(n)}')
        A(f'  v_lshrrev_b32 {v(ICR)}, 4, {v(ICR)}')
        A(f'  v_mul_i32_i24 {v(ICR)}, -22, {v(ICR)}')
        A(f'  v_add_u32 {v(ICR)}, 10, {v(ICR)}')
    A(f'  v_lshlrev_b32 {v(VBP)}, 4, {v(g)}')
    A(f'  v_lshrrev_b32 {v(X0)}, 2, v0')
    A(f'  s_mul_i32 {s(sT)}, s3, 384')
    A(f'  v_lshl_add_u32 {v(VL1)}, {v(X0)}, 4, {s(sT)}')
    A(f'  v_lshl_add_u32 {v(VL2)}, {v(X0)}, 3, {s(sT)}')
    A(f'  s_mul_i32 {s(sT)}, s3, 3072')
    A(f'  s_add_u32 {s(sT)}, {s(sT)}, {LDS_ACC}')
    A(f'  v_lshl_add_u32 {v(VFL)}, v0, 4, {s(sT)}')
    A(f'  s_lshl_b32 {s(sT)}, s3, 5')
    A(f'  s_add_u32 {s(sT)}, {s(sT)}, {LDS_ACC + W * 3072}')
    A(f'  v_lshl_add_u32 {v(VST)}, {v(a)}, 3, {s(sT)}')
    A(f'  s_lshl_b32 {s(sT)}, s3, 2')
    A(f'  s_add_u32 {s(sT)}, {s(sT)}, {F_PRG}')
    A(f'  v_mov_b32 {v(VPR)}, {s(sT)}')
    A(f'  v_lshrrev_b32 {v(VBD)}, 5, v0')
    if wsy:
        A(f'  s_lshl_b32 {s(sT)}, s3, 3')
        A(f'  s_sub_u32 {s(sT)}, {F_PRG + 4 - F_BST}, {s(sT)}')
        A(f'  v_mul_i32_i24 {v(VBA)}, {s(sT)}, {v(VBD)}')
        A(f'  s_not_b32 {s(sT)}, s3')
        A(f'  v_mul_i32_i24 {v(VBD)}, {s(sT)}, {v(VBD)}')
    else:
        A(f'  v_mul_u32_u24 {v(VBA)}, {F_THR - F_BST}, {v(VBD)}')
        A(f'  v_mov_b32 {v(VBD)}, 0')
    A(f'  s_lshl2_add_u32 {s(sT)}, s3, {F_BST}')
    A(f'  v_add_u32 {v(VBA)}, {s(sT)}, {v(VBA)}')
    A(f'  v_mov_b32 {v(ZN)}, 0')
    A(f'  v_mov_b32 {v(SN)}, 0')
    A(f'  v_mov_b32 {v(VNI)}, 0xff800000')
    A(f'  s_mov_b32 {s(sMSK)}, 0xffff0000')
    A(f'  s_mov_b32 {s(sL2E)}, 0x3fb8aa3b')
    for h in range(2):
        A(f'  s_mov_b32 {s(sSCL+h)}, {hex(0x3d93cd3a + ((49 if fk else 22) << 23))}')
        A(f'  s_mov_b32 {s(sBIG+h)}, {hex((127 + (100 if fk else 127)) << 23)}')
        A(f'  s_mov_b32 {s(sSM+h)}, {hex((127 - (49 if fk else 22)) << 23)}')
    for j in range(4):
        A(f'  s_mov_b32 {s(sMJ+2*j)}, {hex(0x11111111 << j)}')
        A(f'  s_mov_b32 {s(sMJ+2*j+1)}, {hex(0x11111111 << j)}')
        if j < 4 // W: A(f'  s_mov_b32 {s(sREC+j)}, 0')
    A(f'  s_mov_b32 {s(sSEG)}, 0')
    if pfw: A(f'  s_waitcnt vmcnt({D - 1})')
    if pdel:
        A(f'  v_mov_b32 {v(AL)}, 1')
        A(f'  ds_write_b32 {v(VPR)}, {v(AL)}')
    reset_state()
    if tl:
        A(f'  s_mov_b32 {s(sTL)}, 0')
        A(f'  v_mov_b32 {v(TL)}, 0')
    if not pfw: A('  s_barrier')

    PSMALL = 3
    late = (D == R)
    SW = NST - D
    assert PSMALL < SW and 3 <= PSK < SW
    stubs = []
    sTH = 98
    def wait_step(k, nsmall, tag, PSMALL):
        cnt = lambda d: d - 1 + (nsmall if k - d <= PSMALL < k else 0)
        if k == 2 and tev:
            A(f'  s_mov_b32 {s(sTH)}, vcc_hi')
            A('  s_mov_b32 vcc_hi, 0')
        if tev and k >= 2 and (k - 2) % tev == 0:
            A(f'  s_cmp_lg_u32 {s(sTH)}, 0')
            A(f'  s_cbranch_scc1 L_{tag}x')
            A(f'L_{tag}t:')
            stubs.extend([f'L_{tag}x:', f'  s_waitcnt vmcnt({cnt(DT)})', f'  s_branch L_{tag}t'])
        if nobr:
            A(f'  s_waitcnt vmcnt({cnt(DN)})')
            return
        if w3:
            if k % bev: return
            A(f'  s_waitcnt vmcnt({cnt(D - bev + 1)})')
        else:
            A(f'  s_waitcnt vmcnt({cnt(D)})')
            if k % bev: return
        A(f'  s_cbranch_vccnz L_{tag}')
        A(f'  s_waitcnt vmcnt({cnt(DN)})')
        A(f'L_{tag}:')
    def mode_update(tag):
        A('  s_waitcnt lgkmcnt(0)')
        A(f'  v_cmp_lt_i32 vcc, {v(VBC)}, {v(VBS)}')
        if wsy:
            A('  s_cmp_lg_u32 vcc_hi, 0')
            A(f'  s_cbranch_scc1 L_{tag}_in')
            A(f'L_{tag}_w:')
            A(f'  ds_read_b32 {v(VBS)}, {v(VBA)}')
            A('  s_waitcnt lgkmcnt(0)')
            A(f'  v_cmp_lt_i32 vcc, {v(VBC)}, {v(VBS)}')
            A('  s_cmp_eq_u32 vcc_hi, 0')
            A(f'  s_cbranch_scc1 L_{tag}_w')
            A(f'L_{tag}_in:')
            A('  s_mov_b32 vcc_hi, 0')
    def dequant(X, src, z, sc, zmod, smod, fused, fmod):
        if fused:
            return [f'  v_pk_fma_f32 {v(X+2*h,2)}, {v(src+2*h,2)}, {sc[h]}, {z[h]} {fmod}neg_lo:[0,0,1] neg_hi:[0,0,1]' for h in range(2)], []
        r = [f'  v_pk_fma_f32 {v(X+2*h,2)}, {v(src+2*h,2)}, {s(sBIG,2)}, {z[h]} {zmod}neg_lo:[0,0,1] neg_hi:[0,0,1]' for h in range(2)]
        r2 = [f'  v_cvt_pk_bf16_f32 {v(X+j)}, 0, {v(X+j)}' for j in range(4)]
        r2 += [f'  v_pk_mul_f32 {v(X+2*h,2)}, {v(X+2*h,2)}, {sc[h]} {smod}'.rstrip() for h in range(2)]
        return r, r2
    def kreduce(ss):
        d = S + (ss & 1)
        q = lambda j: f'quad_perm:[{j},{j},{j},{j}] row_mask:0xf bank_mask:0xf'
        r = [f'  v_mov_b32_dpp {v(X0)}, {v(SD)} {q(0)}',
             f'  v_mov_b32_dpp {v(X1)}, {v(SD+2)} {q(2)}',
             f'  v_add_f32_dpp {v(X0)}, {v(SD+1)}, {v(X0)} {q(1)}',
             f'  v_add_f32_dpp {v(X1)}, {v(SD+3)}, {v(X1)} {q(3)}',
             f'  v_add_f32 {v(d)}, {v(X0)}, {v(X1)}']
        if rk:
            if ss in (0, 5, 6, 10):
                r += [f'  s_cmp_eq_u32 {s(sRC)}, {int(ss in (5, 6))}', f'  s_cselect_b64 {s(sT,2)}, {s(sL0 if ss in (0, 6) else sL10,2)}, 0',
                      f'  v_cndmask_b32 {v(d)}, {v(d)}, {v(VNI)}, {s(sT,2)}']
        else:
            if ss == 0: r.append(f'  v_cndmask_b32 {v(d)}, {v(d)}, {v(VNI)}, {s(sL0,2)}')
            if ss == 10: r.append(f'  v_cndmask_b32 {v(d)}, {v(d)}, {v(VNI)}, {s(sL10,2)}')
        if ss & 1 or ss == 10:
            r += [f'  v_cvt_pk_bf16_f32 {v(S)}, 0, {v(S)}',
                  f'  v_cvt_pk_bf16_f32 {v(S+1)}, 0, {v(S+1)}',
                  f'  v_pk_mul_f32 {v(S,2)}, {v(S,2)}, {s(sSCL,2)}',
                  f'  v_cvt_pk_bf16_f32 {v(LG+(ss>>1))}, {v(S)}, {v(S+1)}']
        return r
    def lds_word(dst, addr):
        A(f'  v_mov_b32 {v(X0)}, {addr}')
        A(f'  ds_read_b32 {v(X0)}, {v(X0)}')
        A('  s_waitcnt lgkmcnt(0)')
        A(f'  v_readfirstlane_b32 {s(dst)}, {v(X0)}')

    mf32 = f'  v_mfma_f32_16x16x32_bf16 {v(SD,4)}, {v(KA,4)}, {v(QB,4)}, 0'
    mf16 = f'  v_mfma_f32_16x16x16_bf16 {v(SD,4)}, {v(KA+4,2)}, {v(QB+4,2)}, {v(SD,4)}'
    def diag_mark(tag, base_):
        if diagat < 0: return
        A(f'  s_and_b32 {s(sT)}, {s(sF)}, -4')
        A(f'  s_cmp_lg_u32 {s(sT)}, {diagat - base_}')
        A(f'  s_cbranch_scc1 L_dm{tag}')
        A('  s_memrealtime s[6:7]')
        A('  s_waitcnt lgkmcnt(0)')
        A(f'L_dm{tag}:')
    def k_unit(u):
        o = NST * u
        if u == 0: diag_mark('k', 0)
        if u == 0: stamp()
        short_masks(DOWN, sC, sL0, sL10, s(sLOW + 2, 2))
        if rk: A(f'  s_mov_b32 {s(sRC)}, {s(sRN)}')
        A(f'  s_add_u32 {s(sF)}, {s(sF)}, {W}')
        A(f'  s_sub_u32 {s(sT)}, {s(sF)}, {W}')
        A(f'  v_add_u32 {v(VBC)}, {s(sT)}, {v(VBD)}')
        for k in range(NST):
            ss, i = divmod(k, 3)
            if k == max(wsy, 1) - 1: A(f'  ds_read_b32 {v(VBS)}, {v(VBA)}')
            if k == max(wsy, 1): mode_update(f'km{u}')
            if k == SW and u < U - 1: offsets(ICON)
            if k == SW and u == U - 1:
                A(f'  s_cmp_lt_u32 {s(sF)}, {NF}')
                A(f'  s_cbranch_scc1 L_k_keep{u}')
                A(f'  s_bitcmp1_b32 {s(sDEC)}, 6')
                A(f'  s_cselect_b32 {s(sLIM)}, 255, 0')
                A(f'  v_mov_b32 {v(E)}, {v(X0)}')
                A(f'  v_mov_b32 {v(E+1)}, {v(X1)}')
                map_unit(3, 1)
                A(f'  v_mov_b32 {v(X0)}, {v(E)}')
                A(f'  v_mov_b32 {v(X1)}, {v(E+1)}')
                A(f'  s_mov_b32 {s(SI)}, {s(SV)}')
                A(f'  s_mov_b32 {s(SI+1)}, {s(SV+1)}')
                for x in vscale_loads(): A(x)
                A(f'  v_mov_b32 {v(ICON)}, {v(DCON)}')
                A(f'L_k_keep{u}:')
                offsets(ICON)
            lds_ = [main_load(o + k + D, SK, sCUR) if k < SW else main_load(o + k + D, SI, sNXT)]
            wait_step(k, 6, f'kw{u}_{k}', PSK)
            if not late:
                for x in lds_: A(x)
            if i == 2: A(mf32)
            if i == 0 and ss > 0: A(mf16)
            if ss == 0:
                for raw, dst in ((KZR, KZ), (KSR, KS)):
                    for h in range(2):
                        A(f'  v_lshlrev_b32 {v(dst+4*i+2*h)}, 16, {v(raw+2*i+h)}')
                        A(f'  v_and_b32 {v(dst+4*i+2*h+1)}, {s(sMSK)}, {v(raw+2*i+h)}')
                for h in range(2):
                    A(f'  v_pk_mul_f32 {v(KZ+4*i+2*h,2)}, {v(KZ+4*i+2*h,2)}, {s(sSM,2)}')
                    if fk:
                        A(f'  v_pk_mul_f32 {v(KZ+4*i+2*h,2)}, {v(KZ+4*i+2*h,2)}, {v(KS+4*i+2*h,2)}')
                        A(f'  v_pk_mul_f32 {v(KS+4*i+2*h,2)}, {v(KS+4*i+2*h,2)}, {s(sBIG,2)}')
                    A(f'  v_mov_b32 {v(QB+2*i+h)}, {v(QN+2*i+h)}')
            c, rest = dequant(T, slot(o + k), (v(KZ+4*i,2), v(KZ+4*i+2,2)), (v(KS+4*i,2), v(KS+4*i+2,2)), '', '', fk, '')
            for x in c: A(x)
            if late:
                for x in lds_: A(x)
            if k == PSK:
                A(f'  s_cmp_lt_u32 {s(sF)}, {s(sGATE)}')
                A(f'  s_cbranch_scc1 L_k_known{u}')
                A(f'L_k_spin{u}:')
                lds_word(sDEC, F_DEC)
                A(f'  s_cmp_eq_u32 {s(sDEC)}, 0')
                A(f'  s_cbranch_scc1 L_k_spin{u}')
                A(f'  s_mov_b32 {s(sGATE)}, -1')
                A(f'  s_bitcmp1_b32 {s(sDEC)}, 6')
                A(f'  s_cselect_b32 {s(sLIM)}, 255, {s(sLIM)}')
                A(f'L_k_known{u}:')
                map_unit(sF, 0)
                A(f'  s_cmp_eq_u32 {s(sHN)}, {s(sHC)}')
                A(f'  s_cbranch_scc1 L_k_sameq{u}')
                for x in q_loads(): A(x)
                A(f'  s_mov_b32 {s(sHC)}, {s(sHN)}')
                A(f'L_k_sameq{u}:')
                for x in kscale_loads(): A(x)
            rest += [f'  v_cvt_pk_bf16_f32 {v(KA+2*i)}, {v(T)}, {v(T+1)}',
                     f'  v_cvt_pk_bf16_f32 {v(KA+2*i+1)}, {v(T+2)}, {v(T+3)}']
            if i == 1 and ss > 0:
                r = kreduce(ss - 1)
                rest = r[:2] + rest[:2] + r[2:4] + rest[2:4] + r[4:5] + rest[4:]
                pend = r[5:]
            elif i == 2 and ss > 0:
                rest = merge(rest, pend, 1)
            for x in rest: A(x)
        A(f'  s_mov_b32 {s(sCUR)}, {s(sNXT)}')
        A(f'  v_mov_b32 {v(AL)}, {s(sF)}')
        A(mf16)
        A(f'  ds_write_b128 {v(VL1)}, {v(LG,4)}')
        A(f'  v_add_u32 {v(VL1)}, {384 * W}, {v(VL1)}')
        for x in kreduce(10): A(x)
        A(f'  ds_write_b64 {v(VL2)}, {v(LG+4,2)} offset:256')
        A(f'  ds_write_b32 {v(VPR)}, {v(AL)}')
        A(f'  v_add_u32 {v(VL2)}, {384 * W}, {v(VL2)}')
    A('L_k:')
    for u in range(U): k_unit(u)
    A(f'  s_cmp_lt_u32 {s(sF)}, {NF}')
    A('  s_cbranch_scc1 L_k')

    def flush():
        A(f'  v_mov_b32 {v(X1)}, {v(LS)}')
        A(f'  v_permlane32_swap_b32 {v(LS)}, {v(X1)}')
        A(f'  v_add_f32 {v(LS)}, {v(LS)}, {v(X1)}')
        A(f'  v_mov_b32 {v(X1)}, {v(LS)}')
        A(f'  v_permlane16_swap_b32 {v(LS)}, {v(X1)}')
        A(f'  v_add_f32 {v(LS)}, {v(LS)}, {v(X1)}')
        A(f'  ds_write_b64 {v(VST)}, {v(NB,2)}')
        for i in range(3):
            A(f'  ds_write_b128 {v(VFL)}, {v(ACC+4*i,4)} offset:{1024*i}')
        A(f'  s_and_b32 {s(sT)}, {s(sQC)}, 15')
        A(f'  s_cmp_ge_u32 {s(sT)}, 12')
        A(f'  s_cselect_b32 {s(sT)}, 2, 0')
        A(f'  s_and_b32 {s(sT+1)}, {s(sCC)}, 1')
        A(f'  s_bitcmp1_b32 {s(sDEC)}, 6')
        A(f'  s_cselect_b32 {s(sT+1)}, {s(sRO)}, {s(sT+1)}')
        A(f'  s_add_u32 {s(sT)}, {s(sT)}, {s(sT+1)}')
        A(f'  s_lshr_b32 {s(sT+1)}, {s(sQC)}, 4')
        A(f'  s_lshl2_add_u32 {s(sT)}, {s(sT+1)}, {s(sT)}')
        for j in range(4 // W):
            A(f'  s_add_u32 {s(sT+1)}, s3, {W * j}')
            A(f'  s_cmp_eq_u32 {s(sSEG)}, {s(sT+1)}')
            A(f'  s_cselect_b32 {s(sREC+j)}, {s(sT)}, {s(sREC+j)}')
        A(f'  s_add_u32 {s(sSEG)}, {s(sSEG)}, 1')
        A('  s_waitcnt lgkmcnt(0)')
    def import_gate(tag):
        A(f'  s_cmp_lt_u32 {s(sF)}, {s(sGATE)}')
        A(f'  s_cbranch_scc1 L_{tag}_ok')
        A(f'L_{tag}_spin:')
        lds_word(sGATE, F_IMP)
        A(f'  s_cmp_lt_u32 {s(sF)}, {s(sGATE)}')
        A(f'  s_cbranch_scc0 L_{tag}_spin')
        A(f'L_{tag}_ok:')

    A(f'  v_subrev_u32 {v(VL1)}, {IMG}, {v(VL1)}')
    A(f'  v_subrev_u32 {v(VL2)}, {IMG}, {v(VL2)}')
    A(f'  s_mov_b32 {s(sF)}, s3')
    A(f'  s_mov_b32 {s(sHC)}, {s(sHN)}')
    A(f'  s_mov_b32 {s(sGATE)}, 0')
    if not fv:
        for h in range(2): A(f'  s_mov_b32 {s(sBIG+h)}, 0x7f000000')
    A(f'  s_load_dwordx2 {s(sREC,2)}, s[0:1], 56')
    A('  s_waitcnt lgkmcnt(0)')
    A(f'  s_mov_b32 {s(SQ)}, {s(sREC)}')
    A(f'  s_and_b32 {s(SQ+1)}, {s(sREC+1)}, 0xffff')
    import_gate('v0')
    A(f'  ds_read_b128 {v(LG,4)}, {v(VL1)}')
    A(f'  ds_read_b64 {v(LG+4,2)}, {v(VL2)} offset:256')
    def v_unit(u):
        o = NST * u
        A(f'L_v{u}:')
        if u == 0: diag_mark('v', NF)
        if u == 0: stamp()
        A(f'  s_mov_b32 {s(sQC)}, {s(sQ3)}')
        A(f'  s_mov_b32 {s(sCC)}, {s(sC)}')
        A(f'  s_add_u32 {s(sF)}, {s(sF)}, {W}')
        import_gate(f'v1{u}')
        map_unit(sF, 1)
        A(f'  s_cmp_lt_u32 {s(sF)}, {NF}')
        A(f'  s_cselect_b32 {s(sNXT)}, {s(sNXT)}, {TOTAL}')
        prep = ['  s_waitcnt lgkmcnt(0)']
        A(f'  s_add_u32 {s(sT)}, {s(sF)}, {NF - W}')
        A(f'  v_mov_b32 {v(AL)}, {s(sT)}')
        A(f'  v_add_u32 {v(VBC)}, {s(sT)}, {v(VBD)}')
        A(f'  ds_write_b32 {v(VPR)}, {v(AL)}')
        for k in range(11):
            prep.append(f'  v_lshlrev_b32 {v(E+k)}, 16, {v(LG+k//2)}' if k % 2 == 0 else f'  v_and_b32 {v(E+k)}, {s(sMSK)}, {v(LG+k//2)}')
        prep += [f'  v_add_u32 {v(VL1)}, {384 * W}, {v(VL1)}',
                 f'  v_add_u32 {v(VL2)}, {384 * W}, {v(VL2)}',
                 f'  v_max3_f32 {v(X0)}, {v(E)}, {v(E+1)}, {v(E+2)}',
                 f'  ds_read_b128 {v(LG,4)}, {v(VL1)}',
                 f'  ds_read_b64 {v(LG+4,2)}, {v(VL2)} offset:256',
                 f'  v_max3_f32 {v(X1)}, {v(E+3)}, {v(E+4)}, {v(E+5)}',
                 f'  v_max3_f32 {v(X0)}, {v(X0)}, {v(E+6)}, {v(E+7)}',
                 f'  v_max3_f32 {v(X1)}, {v(X1)}, {v(E+8)}, {v(E+9)}',
                 f'  v_max3_f32 {v(X0)}, {v(X0)}, {v(E+10)}, {v(M)}',
                 f'  v_max_f32 {v(X0)}, {v(X0)}, {v(X1)}',
                 f'  v_mov_b32 {v(X1)}, {v(X0)}',
                 f'  v_permlane32_swap_b32 {v(X0)}, {v(X1)}',
                 f'  v_max_f32 {v(X0)}, {v(X0)}, {v(X1)}',
                 f'  v_mov_b32 {v(X1)}, {v(X0)}',
                 f'  v_permlane16_swap_b32 {v(X0)}, {v(X1)}',
                 f'  v_max_f32 {v(M)}, {v(X0)}, {v(X1)}',
                 f'  v_mul_f32 {v(X0)}, {s(sL2E)}, {v(M)}',
                 f'  v_add_f32 {v(AL)}, {v(X0)}, {v(NB)}',
                 f'  v_sub_f32 {v(NB)}, 0, {v(X0)}',
                 f'  v_exp_f32 {v(AL)}, -{v(AL)}',
                 f'  ds_bpermute_b32 {v(ALQ)}, {v(VBP)}, {v(AL)}']
        for k in range(11):
            prep += [f'  v_fma_f32 {v(E+k)}, {v(E+k)}, {s(sL2E)}, {v(NB)}', f'  v_exp_f32 {v(E+k)}, {v(E+k)}']
        prep += [f'  v_add_f32 {v(X0)}, {v(E)}, {v(E+1)}', f'  v_add_f32 {v(X1)}, {v(E+2)}, {v(E+3)}']
        for k in range(4, 11):
            x = X0 if k % 2 == 0 else X1
            prep.append(f'  v_add_f32 {v(x)}, {v(x)}, {v(E+k)}')
        prep += [f'  v_add_f32 {v(X0)}, {v(X0)}, {v(X1)}',
                 f'  v_fma_f32 {v(LS)}, {v(LS)}, {v(AL)}, {v(X0)}']
        for k in range(6):
            prep.append(f'  v_cvt_pk_bf16_f32 {v(PP+k)}, {v(E+2*k)}, {v(E+2*k+1) if k < 5 else 0}')
        for j in range(4):
            for k in range(4):
                prep.append(f'  v_cndmask_b32 {v(AJ+4*j+k)}, 0, {v(PP+k)}, {s(sMJ+2*j,2)}')
        prep.append('  s_waitcnt lgkmcnt(0)')
        for k in range(12):
            prep.append(f'  v_mul_f32 {v(ACC+k)}, {v(ALQ)}, {v(ACC+k)}')
        prep2 = [f'  v_cndmask_b32 {v(AK+2*j+k)}, 0, {v(PP+4+k)}, {s(sMJ+2*j,2)}' for j in range(4) for k in range(2)]
        per = 5
        for k in range(NST):
            ss, i = divmod(k, 3)
            if k == max(wsy, 1) - 1: A(f'  ds_read_b32 {v(VBS)}, {v(VBA)}')
            if k == max(wsy, 1): mode_update(f'vm{u}')
            if k == SW: offsets(DCON)
            lds_ = [main_load(o + k + D, SV, sCUR if k < SW else sNXT)]
            wait_step(k, 2, f'vw{u}_{k}', PSMALL)
            if not late:
                for x in lds_: A(x)
            if k == 0:
                A(f'  v_mul_f32 {v(ZC)}, {hex((127 - (49 if fv else 22)) << 23)}, {v(ZN)}')
                A(f'  v_mul_f32 {v(SC)}, {hex((127 + (100 if fv else 22)) << 23)}, {v(SN)}')
                if fv: A(f'  v_mul_f32 {v(ZC)}, {v(ZC)}, {v(SN)}')
            if i == 0:
                A(f'  v_mov_b32_dpp {v(ZS)}, {v(ZC)} row_newbcast:{ss} row_mask:0xf bank_mask:0xf')
                A(f'  v_mov_b32_dpp {v(ZS+1)}, {v(SC)} row_newbcast:{ss} row_mask:0xf bank_mask:0xf')
            X = TV + 4 * i if ss % 2 == 0 else T
            c, rest = dequant(X, slot(o + k), (v(ZS,2), v(ZS,2)), (v(ZS,2), v(ZS,2)), 'op_sel_hi:[1,1,0] ', 'op_sel:[0,1]', fv, 'op_sel:[0,1,0] op_sel_hi:[1,1,0] ')
            for x in c: A(x)
            if late:
                for x in lds_: A(x)
            if k == PSMALL:
                for x in vscale_loads(): A(x)
            if ss % 2 == 1:
                rest += [f'  v_cvt_pk_bf16_f32 {v(BV+16*i+4*j+((ss>>1)&3))}, {v(TV+4*i+j)}, {v(T+j)}' for j in range(4)]
            if ss == 10:
                rest += [f'  v_cvt_pk_bf16_f32 {v(BV+16*i+4*j+1)}, {v(TV+4*i+j)}, 0' for j in range(4)]
            side, prep = prep[:per], prep[per:]
            if k == 20:
                side += prep; prep = []
            if k == 23: prep = prep2
            for x in merge(rest, side, 1): A(x)
            if ss == 7:
                for j in range(4):
                    A(f'  v_mfma_f32_16x16x32_bf16 {v(ACC+4*i,4)}, {v(AJ+4*j,4)}, {v(BV+16*i+4*j,4)}, {v(ACC+4*i,4)}')
            if ss == 10:
                assert not prep
                for j in range(4):
                    A(f'  v_mfma_f32_16x16x16_bf16 {v(ACC+4*i,4)}, {v(AK+2*j,2)}, {v(BV+16*i+4*j,2)}, {v(ACC+4*i,4)}')
        A(f'  s_mov_b32 {s(sCUR)}, {s(sNXT)}')
        if u == U - 1:
            A(f'  s_cmp_ge_u32 {s(sF)}, {NF}')
            A('  s_cbranch_scc1 L_v_done')
        A(f'  s_cmp_eq_u32 {s(sHN)}, {s(sHC)}')
        A(f'  s_cbranch_scc1 L_v{(u + 1) % U}')
        A(f'  s_mov_b32 {s(sHC)}, {s(sHN)}')
        flush()
        A(f'  v_add_u32 {v(VFL)}, {SEG}, {v(VFL)}')
        A(f'  v_add_u32 {v(VST)}, {SEG}, {v(VST)}')
        reset_state()
        if u == U - 1: A('  s_branch L_v0')
    for u in range(U): v_unit(u)
    A('L_v_done:')
    stamp()
    flush()
    A('  s_waitcnt vmcnt(0)')

    A('  s_barrier')
    ST = RING; AC = (base + 3) // 4 * 4
    nv = max(nv, AC + 48)
    A(f'  v_lshrrev_b32 {v(AL)}, 1, {v(VBP)}')
    A(f'  v_lshlrev_b32 {v(ALQ)}, 4, v0')
    for j in range(4 // W):
        A(f'  s_mul_i32 {s(sT)}, s3, {SEG}')
        A(f'  s_add_u32 {s(sT)}, {s(sT)}, {LDS_ACC + W * j * SEG}')
        A(f'  v_add_u32 {v(X0)}, {s(sT)}, {v(AL)}')
        for w in range(W):
            A(f'  ds_read_b64 {v(ST+2*(W*j+w),2)}, {v(X0)} offset:{W*3072 + 32*w}')
        A(f'  v_add_u32 {v(X0)}, {s(sT)}, {v(ALQ)}')
        for w in range(W):
            for i in range(3):
                A(f'  ds_read_b128 {v(AC+12*(W*j+w)+4*i,4)}, {v(X0)} offset:{3072*w + 1024*i}')
    A(f'  v_mov_b32 {v(X0)}, {F_TAG}')
    A(f'  ds_read_b32 {v(M)}, {v(X0)}')
    A(f'  s_mov_b32 {s(sSEG)}, -1')
    A(f'  s_add_u32 {s(sLIM)}, {s(sRO)}, 1')
    A('  s_waitcnt lgkmcnt(0)')
    GR = RING + 8; OWN = GR + 40
    gi = lambda b, x: b + 4 * (x // 3) + x % 3
    for j in range(4 // W):
        G = GR + 20 * j
        combine(A, W, ST + 2 * W * j, AC + 12 * W * j, 3, gi(G, 12), gi(G, 13), lambda x: gi(G, x))
        A(f'  s_bfe_u32 {s(sT)}, {s(sREC+j)}, 0x20001')
        A(f'  s_cmp_eq_u32 {s(sT)}, {s(sLIM)}')
        A(f'  s_cbranch_scc1 L_own{j}')
        for g_ in range(5): A(f'  v_mov_b32 {v(G+4*g_+3)}, {v(M)}')
        A(f'  s_mul_i32 {s(sT)}, {s(sREC+j)}, {REC}')
        A(f'  s_add_u32 {s(sT)}, {s(sT)}, {WSOFF}')
        A(f'  s_add_u32 {s(sT+1)}, {s(sT)}, 4096')
        for g_ in range(5):
            A(f'  buffer_store_dwordx4 {v(G+4*g_,4)}, {v(ALQ)}, {s(SW_,4)}, {s(sT + g_ // 4)} offen offset:{1024 * (g_ % 4)} sc1')
        A(f'  s_branch L_pub{j}')
        A(f'L_own{j}:')
        for x in range(14): A(f'  v_mov_b32 {v(gi(OWN, x))}, {v(gi(G, x))}')
        A(f'  s_mov_b32 {s(sSEG)}, {s(sREC+j)}')
        A(f'L_pub{j}:')
    stamp()
    A(f'  s_cmp_eq_u32 {s(sSEG)}, -1')
    A('  s_cbranch_scc1 L_fin')
    FR = AC
    nv = max(nv, FR + 60)
    sR = 84
    A(f'  s_xor_b32 {s(sR)}, {s(sSEG)}, 1')
    A(f'  s_andn2_b32 {s(sR+2)}, {s(sSEG)}, 1')
    A(f'  s_xor_b32 {s(sR+2)}, {s(sR+2)}, 2')
    A(f'  s_add_u32 {s(sR+4)}, {s(sR+2)}, 1')
    for r in range(3):
        A(f'  s_mul_i32 {s(sR+2*r)}, {s(sR+2*r)}, {REC}')
        A(f'  s_add_u32 {s(sR+2*r)}, {s(sR+2*r)}, {WSOFF}')
        A(f'  s_add_u32 {s(sR+2*r+1)}, {s(sR+2*r)}, 4096')
    A(f'  v_mov_b32 {v(X1)}, {s(sR+1)}')
    A(f'  v_writelane_b32 {v(X1)}, {s(sR+3)}, 1')
    A(f'  v_writelane_b32 {v(X1)}, {s(sR+5)}, 2')
    if safe: A(f'  s_mov_b32 {s(sF)}, 0')
    A('L_gather:')
    for r in range(3):
        for g_ in range(5):
            A(f'  buffer_load_dwordx4 {v(FR+20*r+4*g_,4)}, {v(ALQ)}, {s(SW_,4)}, {s(sR + 2*r + g_ // 4)} offen offset:{1024 * (g_ % 4)} sc1')
    A('  s_waitcnt vmcnt(0)')
    tags = [FR + 4 * k + 3 for k in range(15)]
    A(f'  v_xor_b32 {v(X0)}, {v(M)}, {v(tags[0])}')
    for k in range(1, 15):
        A(f'  v_xor_b32 {v(tags[k])}, {v(M)}, {v(tags[k])}')
    for k in range(1, 15, 2):
        A(f'  v_or3_b32 {v(X0)}, {v(X0)}, {v(tags[k])}, {v(tags[k+1])}')
    A(f'  v_cmp_ne_u32 {s(sT,2)}, 0, {v(X0)}')
    A(f'  s_cmp_eq_u64 {s(sT,2)}, 0')
    A('  s_cbranch_scc1 L_gathered')
    if not fullpoll: A('  s_mov_b64 exec, 7')
    A('L_poll:')
    if safe:
        A(f'  s_add_u32 {s(sF)}, {s(sF)}, 1')
        A(f'  s_cmp_gt_u32 {s(sF)}, 20000')
        A('  s_cbranch_scc1 L_end')
    if fullpoll: A('  s_branch L_gather')
    A(f'  buffer_load_dword {v(X0)}, {v(X1)}, {s(SW_,4)}, 0 offen offset:1020 sc1')
    A('  s_waitcnt vmcnt(0)')
    A(f'  v_cmp_ne_u32 {s(sT,2)}, {v(M)}, {v(X0)}')
    A(f'  s_cmp_lg_u64 {s(sT,2)}, 0')
    A('  s_cbranch_scc1 L_poll')
    A('  s_mov_b64 exec, -1')
    A('  s_branch L_gather')
    A('L_gathered:')
    stamp()
    B4 = [OWN, FR, FR + 20, FR + 40]
    A(f'  v_min_f32 {v(X0)}, {v(gi(B4[0],12))}, {v(gi(B4[1],12))}')
    A(f'  v_min3_f32 {v(X0)}, {v(X0)}, {v(gi(B4[2],12))}, {v(gi(B4[3],12))}')
    for b in B4: A(f'  v_sub_f32 {v(gi(b,12))}, {v(X0)}, {v(gi(b,12))}')
    for b in B4: A(f'  v_exp_f32 {v(gi(b,12))}, {v(gi(b,12))}')
    for x in [13] + list(range(12)):
        for b in B4: A(f'  v_mul_f32 {v(gi(b,x))}, {v(gi(b,12))}, {v(gi(b,x))}')
        A(f'  v_add_f32 {v(gi(B4[0],x))}, {v(gi(B4[0],x))}, {v(gi(B4[1],x))}')
        A(f'  v_add_f32 {v(gi(B4[2],x))}, {v(gi(B4[2],x))}, {v(gi(B4[3],x))}')
        A(f'  v_add_f32 {v(gi(B4[0],x))}, {v(gi(B4[0],x))}, {v(gi(B4[2],x))}')
        if x == 13: A(f'  v_rcp_f32 {v(X1)}, {v(gi(OWN,13))}')
        if x == 0 and fv: A(f'  v_mul_f32 {v(X1)}, {hex((127 + 49) << 23)}, {v(X1)}')
    for x in range(12): A(f'  v_mul_f32 {v(gi(OWN,x))}, {v(X1)}, {v(gi(OWN,x))}')
    A(f'  v_mul_u32_u24 {v(X0)}, 24, {v(VBP)}')
    A(f'  v_and_b32 {v(X1)}, 15, v0')
    A(f'  v_lshl_add_u32 {v(X0)}, {v(X1)}, 3, {v(X0)}')
    A(f'  s_lshr_b32 {s(sT)}, {s(sSEG)}, 2')
    A(f'  s_mul_i32 {s(sT)}, {s(sT)}, 1536')
    for i in range(3):
        A(f'  v_cvt_pk_bf16_f32 {v(ACC+2*i)}, {v(gi(OWN,4*i))}, {v(gi(OWN,4*i+1))}')
        A(f'  v_cvt_pk_bf16_f32 {v(ACC+2*i+1)}, {v(gi(OWN,4*i+2))}, {v(gi(OWN,4*i+3))}')
        A(f'  buffer_store_dwordx2 {v(ACC+2*i,2)}, {v(X0)}, {s(SQ,4)}, {s(sT)} offen offset:{128*i} {stf}')
    A('L_fin:')
    if diagpad:
        if diagref: A(f'  v_readfirstlane_b32 s6, {v(M)}')
        A('L_diag:')
        A(f'  s_memrealtime {s(sU,2)}')
        A('  s_waitcnt lgkmcnt(0)')
        A(f'  s_sub_u32 {s(sU)}, {s(sU)}, s6')
        A(f'  s_cmp_lt_u32 {s(sU)}, {diagpad * 100}')
        A('  s_cbranch_scc1 L_diag')
    if tl:
        A(f'  s_mul_i32 {s(sT)}, s2, {W+1}')
        A(f'  s_add_u32 {s(sT)}, {s(sT)}, s3')
        A(f'  s_lshl_b32 {s(sT)}, {s(sT)}, 8')
        A(f'  s_add_u32 {s(sT)}, {s(sT)}, 0x10000')
        A(f'  v_lshl_add_u32 {v(E)}, v0, 2, {s(sT)}')
        A(f'  global_store_dword {v(E)}, {v(TL)}, {s(sWS,2)}')
    if stamps:
        A('  s_waitcnt vmcnt(0)')
        A(f'  s_memrealtime {s(sU,2)}')
        A(f'  s_getreg_b32 {s(sU+2)}, hwreg(HW_REG_XCC_ID)')
        A(f'  s_mul_i32 {s(sT)}, s2, {W+1}')
        A(f'  s_add_u32 {s(sT)}, {s(sT)}, s3')
        A(f'  s_lshl_b32 {s(sT)}, {s(sT)}, 4')
        A('  s_waitcnt lgkmcnt(0)')
        A(f'  v_mov_b32 {v(RING)}, s6')
        A(f'  v_mov_b32 {v(RING+1)}, {s(sU)}')
        A(f'  v_mov_b32 {v(RING+2)}, {s(sU+2)}')
        A(f'  v_mov_b32 {v(RING+3)}, {s(sDEC)}')
        A(f'  v_mov_b32 {v(X0)}, {s(sT)}')
        A('  s_mov_b64 exec, 1')
        A(f'  global_store_dwordx4 {v(X0)}, {v(RING,4)}, {s(sWS,2)}')
    A('L_end:')
    A('  s_endpgm')


    for x in stubs: A(x)

    A('L_helper:')
    if tl:
        A(f'  s_mov_b32 {s(sTL)}, 0')
        A(f'  v_mov_b32 {v(TL)}, 0')
    hA, hZ, hO, h1, h2, h3, hD = 1, 2, 3, 4, 5, 6, 8
    assert hD + 96 <= TL
    A(f'  v_lshlrev_b32 {v(hA)}, 2, v0')
    A(f'  v_add_u32 {v(hA)}, {LDS_F}, {v(hA)}')
    A(f'  v_mov_b32 {v(hZ)}, 0')
    if ib0:
        for w in range(W): A(f'  v_writelane_b32 {v(hZ)}, {ib0}, {(F_BST - LDS_F) // 4 + w}')
    A('  s_mov_b64 exec, 0xffff')
    A(f'  ds_write_b32 {v(hA)}, {v(hZ)}')
    A('  s_mov_b64 exec, -1')
    make_srds()
    A('  s_barrier')
    sOF, sN0, sV0, sJ, sSF, sA, sB, sX, sFA, sFS, sME, sPA = 44, 45, 48, 50, 52, 54, 56, 58, 62, 63, 60, 61
    sQD, sOWN, sUNT, sT0, sNON = 64, 65, 66, 72, 74
    hP, hQ = hD + 96, hD + 97
    hC = (hQ + 2) // 2 * 2
    hW, hU, hT = hC + 9, hC + 10, hC + 12
    assert hT + 1 < TL and W == 2
    A(f'  s_memrealtime {s(sT0,2)}')
    def code_touch(tag):
        if not cpre: return
        for h in range(2):
            A(f'  s_lshr_b32 {s(sT)}, s2, 3')
            A(f'  s_cmp_lt_i32 {s(sT)}, (L_code_end - L_k) / 1024 - {32 * h}')
            A(f'  s_cbranch_scc0 L_h_ct{tag}')
            if h:
                A(f'  v_add_co_u32 {v(hC+2)}, vcc, 0x8000, {v(hC)}')
                A(f'  v_addc_co_u32 {v(hC+3)}, vcc, 0, {v(hC+1)}, vcc')
            A(f'  global_load_dwordx4 {v(hC+4,4)}, {v(hC+2*h,2)}, off')
        A(f'L_h_ct{tag}:')
    if tlb:
        A(f'  v_lshlrev_b32 {v(hD)}, 28, v0')
        A(f'  v_lshlrev_b32 {v(hD+1)}, 21, v0')
        A(f'  s_lshl_b32 {s(sT)}, {s(sPB)}, 16')
        A(f'  s_add_u32 {s(sT)}, {s(sT)}, 0x1ff000')
        A(f'  s_lshr_b32 {s(sT+1)}, s2, 5')
        A(f'  s_lshl_b32 {s(sT+1)}, {s(sT+1)}, 21')
        A(f'  s_add_u32 {s(sT+1)}, {s(sT+1)}, {WSX + 0x1f0000}')
        A(f'  v_writelane_b32 {v(hD+1)}, {s(sT+1)}, 4')
        A(f'  s_mov_b32 {s(SQ)}, {s(PT+14)}')
        A(f'  s_and_b32 {s(SQ+1)}, {s(PT+15)}, 0xffff')
        A('  s_mov_b64 exec, 7')
        A(f'  buffer_load_dword {v(hC+8)}, {v(hD)}, {s(SK,4)}, {s(sT)} offen nt')
        A(f'  buffer_load_dword {v(hC+8)}, {v(hD)}, {s(SV,4)}, {s(sT)} offen nt')
        A('  s_mov_b64 exec, 31')
        A(f'  s_lshl_b32 {s(sT)}, s2, 8')
        A(f'  buffer_load_dword {v(hC+8)}, {v(hD+1)}, {s(SW_,4)}, {s(sT)} offen sc1 nt')
        A('  s_mov_b64 exec, 1')
        A(f'  buffer_load_dword {v(hC+8)}, {v(hD)}, {s(SQ,4)}, {s(sT)} offen sc1 nt')
        A('  s_mov_b64 exec, -1')
    if cpre:
        A(f'  s_getpc_b64 {s(sA,2)}')
        A('L_h_pc:')
        A(f'  s_sub_u32 {s(sA)}, {s(sA)}, L_h_pc - L_k')
        A(f'  s_subb_u32 {s(sA+1)}, {s(sA+1)}, 0')
        A(f'  s_and_b32 {s(sA)}, {s(sA)}, -16')
        A(f'  s_lshr_b32 {s(sT)}, s2, 3')
        A(f'  s_lshl_b32 {s(sT)}, {s(sT)}, 10')
        A(f'  v_lshl_add_u32 {v(hC)}, v0, 4, {s(sT)}')
        A(f'  v_mov_b32 {v(hC+1)}, {s(sA+1)}')
        A(f'  v_add_co_u32 {v(hC)}, vcc, {s(sA)}, {v(hC)}')
        A(f'  v_addc_co_u32 {v(hC+1)}, vcc, 0, {v(hC+1)}, vcc')
        code_touch('a')
    A(f'  s_lshr_b32 {s(sT)}, s2, 4')
    A(f'  s_and_b32 {s(sT)}, {s(sT)}, 8')
    A(f'  s_and_b32 {s(sT+1)}, s2, 7')
    A(f'  s_add_u32 {s(sT)}, {s(sT)}, {s(sT+1)}')
    A(f'  s_lshl_b32 {s(sT)}, {s(sT)}, 4')
    A(f'  v_lshl_add_u32 {v(hP)}, v0, 3, {s(sT)}')
    A(f'  v_and_b32 {v(hQ)}, 31, v0')
    A(f'  v_lshlrev_b32 {v(hQ)}, 3, {v(hQ)}')
    A(f'  v_and_b32 {v(hW)}, 1, v0')
    A(f'  v_lshlrev_b32 {v(hW)}, 2, {v(hW)}')
    A(f'  v_add_u32 {v(hW)}, {F_PRG}, {v(hW)}')
    A(f'  v_mov_b32 {v(hU)}, 0')
    A(f'  v_mov_b32 {v(hU+1)}, 0')
    def wait_progress(tag, lim, slp):
        A(f'  v_mov_b32 {v(hA)}, {F_PRG}')
        A(f'L_h_prog{tag}:')
        if slp: A(f'  s_sleep {slp}')
        A(f'  ds_read_b128 {v(hD,4)}, {v(hA)}')
        A('  s_waitcnt lgkmcnt(0)')
        A(f'  v_min_u32 {v(hD)}, {v(hD)}, {v(hD+1)}')
        if W == 4: A(f'  v_min3_u32 {v(hD)}, {v(hD)}, {v(hD+2)}, {v(hD+3)}')
        A(f'  v_readfirstlane_b32 {s(sA)}, {v(hD)}')
        if slp:
            A(f'  s_cmp_lt_u32 {s(sA)}, {lim}')
            A(f'  s_cbranch_scc1 L_h_prog{tag}')
    A(f'  s_getreg_b32 {s(sJ)}, hwreg(HW_REG_XCC_ID)')
    A(f'  s_bfe_u32 {s(sJ)}, {s(sJ)}, 0x10002')
    A(f'  s_bfe_u32 {s(sSF)}, s2, 0x30003')
    A(f'  s_cmp_eq_u32 {s(sSF)}, 7')
    A('  s_cbranch_scc1 L_h_voted')
    A(f'  s_lshr_b32 {s(sT)}, s2, 6')
    A(f'  s_xor_b32 {s(sT)}, {s(sT)}, s2')
    A(f'  s_and_b32 {s(sT)}, {s(sT)}, {32 // NV - 1}')
    A('  s_cbranch_scc1 L_h_voted')
    A(f'  s_cmp_eq_u32 {s(sSF)}, 6')
    A('  s_cbranch_scc0 L_h_probe')
    A(f'  s_xor_b32 {s(sV0)}, {s(sJ)}, {s(sRO)}')
    A(f'  s_and_b32 {s(sSF)}, s2, 3')
    A(f'  s_lshl2_add_u32 {s(sSF)}, {s(sSF)}, 36')
    A('  s_branch L_h_vote')
    A('L_h_probe:')
    A(f'  s_cmp_ge_u32 {s(sSF)}, 3')
    A(f'  s_cselect_b32 {s(SI)}, {s(SV)}, {s(SK)}')
    A(f'  s_cselect_b32 {s(SI+1)}, {s(SV+1)}, {s(SK+1)}')
    A(f'  s_cselect_b32 {s(sT)}, 3, 0')
    A(f'  s_sub_u32 {s(sT)}, {s(sSF)}, {s(sT)}')
    A(f'  s_lshl_b32 {s(sT)}, {s(sT)}, 28')
    A(f'  s_lshl_b32 {s(sOF)}, {s(sPB)}, 16')
    A(f'  s_add_u32 {s(sOF)}, {s(sOF)}, {s(sT)}')
    A(f'  s_lshl_b32 {s(sT)}, {s(sRO)}, 16')
    A(f'  s_add_u32 {s(sOF)}, {s(sOF)}, {s(sT)}')
    A(f'  s_add_u32 {s(sOF)}, {s(sOF)}, 0x1c0000')
    A(f'  s_mul_i32 {s(sT)}, s2, 0x2a95')
    A(f'  s_and_b32 {s(sT)}, {s(sT)}, 0x7f80')
    A(f'  s_add_u32 {s(sOF)}, {s(sOF)}, {s(sT)}')
    A(f'  s_add_u32 {s(sT)}, {s(sOF)}, 0x8000')
    A(f'  s_buffer_load_dword {s(sX)}, {s(SI,4)}, {s(sT)}')
    A(f'  s_mov_b32 {s(sN0)}, -1')
    A(f'  s_mov_b32 {s(sN0+1)}, -1')
    A(f'  s_mul_i32 {s(sSF)}, {s(sSF)}, 6')
    A('  s_waitcnt lgkmcnt(0)')
    if pdel: wait_progress('p', 1, 2)
    for k in range(NS):
        for c in ((0, 1) if k % 2 == 0 else (1, 0)):
            o = (((k & 1) << 14) | ((k >> 1 & 1) << 12) | ((k * 0x380) & 0xfff)) ^ (c << 13)
            A(f'  s_xor_b32 {s(sT)}, {s(sOF)}, {o}')
            A(f'  s_memtime {s(sA,2)}')
            A('  s_waitcnt lgkmcnt(0)')
            A(f'  s_buffer_load_dword {s(sX)}, {s(SI,4)}, {s(sT)}')
            A('  s_waitcnt lgkmcnt(0)')
            A(f'  s_memtime {s(sB,2)}')
            A('  s_waitcnt lgkmcnt(0)')
            A(f'  s_sub_u32 {s(sB)}, {s(sB)}, {s(sA)}')
            A(f'  s_min_u32 {s(sN0+c)}, {s(sN0+c)}, {s(sB)}')
    A(f'  s_cmp_lt_u32 {s(sN0+1)}, {s(sN0)}')
    A(f'  s_cselect_b32 {s(sV0)}, 1, 0')
    A(f'  s_lshr_b32 {s(sT)}, {s(sOF)}, 13')
    A(f'  s_xor_b32 {s(sT)}, {s(sT)}, s2')
    A(f'  s_xor_b32 {s(sT)}, {s(sT)}, {s(sJ)}')
    A(f'  s_and_b32 {s(sT)}, {s(sT)}, 1')
    A(f'  s_xor_b32 {s(sV0)}, {s(sV0)}, {s(sT)}')
    A('L_h_vote:')
    A(f'  s_mov_b32 {s(sV0+1)}, 0')
    A(f'  s_lshl_b64 {s(sV0,2)}, {s(sV0,2)}, {s(sSF)}')
    A(f'  s_or_b32 {s(sV0+1)}, {s(sV0+1)}, 0x1000000')
    A(f'  s_atomic_add_x2 {s(sV0,2)}, {s(sDBG,2)}, 0')
    A('L_h_voted:')
    A('  s_waitcnt lgkmcnt(0)')
    A('  s_cmp_lg_u32 s2, 56')
    A('  s_cbranch_scc1 L_h_nonce')
    A(f'  s_lshl_b64 {s(sA,2)}, {s(sT0,2)}, 2')
    A(f'  s_atomic_add_x2 {s(sA,2)}, {s(sDBG,2)}, 8')
    A('  s_waitcnt lgkmcnt(0)')
    A('L_h_nonce:')
    stamp()
    sCP, sCA, sUP, sRET, sSUB, sTHU = 76, 77, 78, 84, 86, 79
    A(f'  s_mov_b32 {s(sCP)}, {cp0}')
    A(f'  s_mov_b32 {s(sCA)}, {WSC}')
    A(f'  s_getpc_b64 {s(sSUB,2)}')
    A('L_h_pc2:')
    A(f'  s_add_u32 {s(sSUB)}, {s(sSUB)}, L_h_cp - L_h_pc2')
    A(f'  s_addc_u32 {s(sSUB+1)}, {s(sSUB+1)}, 0')
    def checkpoints(upto):
        A(f'  s_mov_b32 {s(sUP)}, {min(upto, last) - dly}')
        A(f'  s_swappc_b64 {s(sRET,2)}, {s(sSUB,2)}')
    def checkpoint_sub():
        A('L_h_cp:')
        A(f'  s_cmp_gt_u32 {s(sCP)}, {s(sUP)}')
        A('  s_cbranch_scc0 L_h_cpgo')
        A(f'  s_setpc_b64 {s(sRET,2)}')
        A('L_h_cpgo:')
        A(f'  ds_read_b32 {v(hD)}, {v(hW)}')
        A(f'  s_memrealtime {s(sA,2)}')
        A('  s_waitcnt lgkmcnt(0)')
        A(f'  v_mov_b32 {v(hT)}, {s(sA)}')
        A(f'  v_mov_b32 {v(hT+1)}, {s(sA+1)}')
        A(f'  v_cmp_gt_u32 vcc, {s(sCP)}, {v(hD)}')
        A('  s_cmp_eq_u32 vcc_lo, 0')
        A('  s_cbranch_scc1 L_h_cpnext')
        A('L_h_cpm:')
        A('  s_sleep 2')
        A(f'  ds_read_b32 {v(hD)}, {v(hW)}')
        A(f'  s_memrealtime {s(sA,2)}')
        A('  s_waitcnt lgkmcnt(0)')
        A(f'  v_mov_b32 {v(hD+2)}, {s(sA)}')
        A(f'  v_mov_b32 {v(hD+3)}, {s(sA+1)}')
        A(f'  v_cndmask_b32 {v(hT)}, {v(hT)}, {v(hD+2)}, vcc')
        A(f'  v_cndmask_b32 {v(hT+1)}, {v(hT+1)}, {v(hD+3)}, vcc')
        A(f'  v_cmp_gt_u32 vcc, {s(sCP)}, {v(hD)}')
        A('  s_cmp_lg_u32 vcc_lo, 0')
        A('  s_cbranch_scc1 L_h_cpm')
        A(f'  s_and_b32 {s(sT)}, s2, 0x78')
        A('  s_cbranch_scc1 L_h_np')
        A('  s_mov_b64 exec, 3')
        A(f'  buffer_store_dwordx2 {v(hT,2)}, {v(hP)}, {s(SW_,4)}, {s(sCA)} offen sc1')
        A('  s_mov_b64 exec, -1')
        A('L_h_np:')
        A(f'  s_add_u32 {s(sJ)}, {s(sCP)}, {dly}')
        wait_progress('c1', s(sJ), 4)
        A(f'  buffer_load_dwordx2 {v(hD,2)}, {v(hQ)}, {s(SW_,4)}, {s(sCA)} offen {fl(cpf)}')
        A(f'  v_mov_b32 {v(hD+2)}, {s(sT0+1)}')
        A('  s_waitcnt vmcnt(0)')
        A(f'  ds_read_b32 {v(hD+4)}, {v(hW)}')
        A(f'  v_subrev_co_u32 {v(hD)}, vcc, {s(sT0)}, {v(hD)}')
        A(f'  v_subb_co_u32 {v(hD+1)}, vcc, {v(hD+1)}, {v(hD+2)}, vcc')
        A(f'  v_lshrrev_b32 {v(hD+2)}, 24, {v(hD)}')
        A(f'  v_or_b32 {v(hD+1)}, {v(hD+1)}, {v(hD+2)}')
        A(f'  v_cmp_eq_u32 vcc, 0, {v(hD+1)}')
        A(f'  v_cndmask_b32 {v(hD)}, 0, {v(hD)}, vcc')
        A(f'  s_bcnt1_i32_b32 {s(sB)}, vcc_lo')
        for r in (8, 4, 2, 1):
            A(f'  v_add_u32_dpp {v(hD)}, {v(hD)}, {v(hD)} row_ror:{r} row_mask:0xf bank_mask:0xf')
        A(f'  v_readlane_b32 {s(sA)}, {v(hD)}, 0')
        A(f'  v_readlane_b32 {s(sT)}, {v(hD)}, 16')
        A(f'  v_subrev_u32 {v(hD)}, {s(sT0)}, {v(hT)}')
        A(f'  v_mul_lo_u32 {v(hD)}, {v(hD)}, {s(sB)}')
        A(f'  s_add_u32 {s(sA)}, {s(sA)}, {s(sT)}')
        A(f'  s_max_u32 {s(sB)}, {s(sB)}, 1')
        A(f'  v_subrev_u32 {v(hD)}, {s(sA)}, {v(hD)}')
        A(f'  v_cvt_f32_u32 {v(hD+1)}, {s(sB)}')
        A(f'  v_cvt_f32_i32 {v(hD)}, {v(hD)}')
        A(f'  v_rcp_f32 {v(hD+1)}, {v(hD+1)}')
        A(f'  v_mul_f32 {v(hD)}, {v(hD)}, {v(hD+1)}')
        A(f'  v_cvt_i32_f32 {v(hD)}, {v(hD)}')
        A('  s_waitcnt lgkmcnt(0)')
        A(f'  v_add_u32 {v(hD+4)}, {W}, {v(hD+4)}')
        acts = [(hU, gain, dead, False, F_BST)] + ([(hU + 1, gth, deadt, True, F_THR)] if tev else [])
        for unt, g_, dd, neg, addr in acts:
            A(f'  v_min_u32 {v(hD+1)}, {v(unt)}, {v(hD+4)}')
            A(f'  v_subrev_u32 {v(hD+1)}, {s(sCP)}, {v(hD+1)}')
            A(f'  v_max_i32 {v(hD+1)}, 0, {v(hD+1)}')
            A(f'  v_lshrrev_b32 {v(hD+1)}, 1, {v(hD+1)}')
            A(f'  v_mul_u32_u24 {v(hD+1)}, {g_}, {v(hD+1)}')
            A(f'  v_{"add" if neg else "sub"}_u32 {v(hD)}, {v(hD)}, {v(hD+1)}')
        for unt, g_, dd, neg, addr in acts:
            A(f'  v_{"sub" if neg else "add"}_u32 {v(hD+1)}, {g_ // 2 - dd}, {v(hD)}')
            A(f'  v_max_i32 {v(hD+1)}, 0, {v(hD+1)}')
            A(f'  v_min_i32 {v(hD+1)}, 2000, {v(hD+1)}')
            A(f'  v_mul_u32_u24 {v(hD+1)}, {65536 // g_}, {v(hD+1)}')
            A(f'  v_lshrrev_b32 {v(hD+1)}, 16, {v(hD+1)}')
            A(f'  v_cmp_ne_u32 vcc, 0, {v(hD+1)}')
            A(f'  v_lshl_add_u32 {v(hD+1)}, {v(hD+1)}, 1, {v(hD+4)}')
            A(f'  v_cndmask_b32 {v(unt)}, 0, {v(hD+1)}, vcc')
            A(f'  ds_write_b32 {v(hW)}, {v(unt)} offset:{addr - F_PRG}')
        A('L_h_cpnext:')
        A(f'  s_add_u32 {s(sCP)}, {s(sCP)}, {step}')
        A(f'  s_add_u32 {s(sCA)}, {s(sCA)}, 256')
        A('  s_branch L_h_cp')
    wait_progress('v', PW, 8)
    if vsl: A(f'  s_sleep {vsl}')
    A(f'  s_load_dwordx2 {s(sV0,2)}, {s(sDBG,2)}, 0')
    if safe: A('  s_mov_b32 s59, 0')
    A('L_h_votes:')
    A('  s_waitcnt lgkmcnt(0)')
    A(f'  s_lshr_b32 {s(sT)}, {s(sV0+1)}, 24')
    A(f'  s_cmp_eq_u32 {s(sT)}, {7 * NV}')
    A('  s_cbranch_scc1 L_h_votes_done')
    if safe:
        A('  s_add_u32 s59, s59, 1')
        A('  s_cmp_gt_u32 s59, 2000')
        A('  s_cbranch_scc1 L_h_votes_done')
    A('  s_sleep 64')
    A(f'  s_mov_b64 {s(sV0,2)}, 0')
    A(f'  s_atomic_or_x2 {s(sV0,2)}, {s(sDBG,2)}, 0 glc')
    A('  s_branch L_h_votes')
    A('L_h_votes_done:')
    A(f'  s_mov_b32 {s(sDEC)}, 0x80')
    for j in range(6):
        A(f'  s_bfe_u64 {s(sA,2)}, {s(sV0,2)}, {hex(0x60000 | (6 * j))}')
        A(f'  s_cmp_gt_u32 {s(sA)}, {NV // 2}')
        A(f'  s_cselect_b32 {s(sB)}, {1 << j}, 0')
        A(f'  s_or_b32 {s(sDEC)}, {s(sDEC)}, {s(sB)}')
        A(f'  s_sub_u32 {s(sA)}, {s(sA)}, {THR + 1}')
        A(f'  s_cmp_lt_u32 {s(sA)}, {NV - 2 * THR - 1}')
        A(f'  s_cselect_b32 {s(sB)}, 64, 0')
        A(f'  s_or_b32 {s(sDEC)}, {s(sDEC)}, {s(sB)}')
    A(f'  s_and_b32 {s(sT)}, s2, 3')
    A(f'  s_lshl2_add_u32 {s(sT)}, {s(sT)}, 4')
    A(f'  s_lshr_b32 {s(sA)}, {s(sV0+1)}, {s(sT)}')
    A(f'  s_and_b32 {s(sB)}, {s(sA)}, {NV // 4 - 1}')
    A(f'  s_cselect_b32 {s(sB)}, 64, 0')
    A(f'  s_or_b32 {s(sDEC)}, {s(sDEC)}, {s(sB)}')
    if force >= 0:
        A(f'  s_mov_b32 {s(sDEC)}, {0x80 | force}')
    A(f'  s_lshr_b32 {s(sA)}, {s(sA)}, {(NV // 4).bit_length() - 1}')
    A(f'  s_xor_b32 {s(sA)}, {s(sA)}, s2')
    A(f'  s_xor_b32 {s(sA)}, {s(sA)}, {s(sRO)}')
    A(f'  s_and_b32 {s(sA)}, {s(sA)}, 1')
    A(f'  s_mul_i32 {s(sA)}, {s(sA)}, 63')
    A(f'  s_xor_b32 {s(sDEC)}, {s(sDEC)}, {s(sA)}')
    A(f'  v_mov_b32 {v(hA)}, {F_DEC}')
    A(f'  v_mov_b32 {v(hD)}, {s(sDEC)}')
    A(f'  ds_write_b32 {v(hA)}, {v(hD)}')
    stamp()
    A(f'  v_lshlrev_b32 {v(hO)}, 4, v0')
    if pf and not pfw:
        for srd, nb in ((SKS, 24576), (SKZ, 24576), (SVS, 8192), (SVZ, 8192)):
            A(f'  s_mul_i32 {s(sA)}, s2, {nb}')
            for k in range(nb // 1024):
                if k % 4 == 0 and k: A(f'  s_add_u32 {s(sA)}, {s(sA)}, 4096')
                A(f'  s_waitcnt vmcnt({pf - 1})')
                A(f'  buffer_load_dwordx4 {v(hD,4)}, {v(hO)}, {s(srd,4)}, {s(sA)} offen offset:{(k % 4) * 1024}')
        A('  s_waitcnt vmcnt(0)')
    stamp()
    A(f'  s_load_dwordx2 {s(sNON,2)}, {s(sDBG,2)}, 8')
    A('L_h_getnonce:')
    A('  s_waitcnt lgkmcnt(0)')
    A(f'  s_cmp_lg_u64 {s(sNON,2)}, 0')
    A('  s_cbranch_scc1 L_h_gotnonce')
    A('  s_sleep 32')
    A(f'  s_atomic_or_x2 {s(sNON,2)}, {s(sDBG,2)}, 8 glc')
    A('  s_branch L_h_getnonce')
    A('L_h_gotnonce:')
    A(f'  s_lshr_b64 {s(sA,2)}, {s(sNON,2)}, 2')
    A(f'  v_mov_b32 {v(hA)}, {F_TAG}')
    A(f'  v_mov_b32 {v(hD)}, {s(sA)}')
    A(f'  ds_write_b32 {v(hA)}, {v(hD)}')
    checkpoints(64)
    A(f'  s_bitcmp1_b32 {s(sDEC)}, 6')
    A('  s_cbranch_scc1 L_h_skipa0')
    A(f'  s_lshl_b32 {s(sFA)}, s2, 8')
    A(f'  s_add_u32 {s(sFA)}, {s(sFA)}, {WSF}')
    A(f'  s_xor_b32 {s(sFS)}, {s(sFA)}, 1024')
    A(f'  s_lshr_b32 {s(sX)}, {s(sDEC)}, 3')
    A(f'  s_xor_b32 {s(sX)}, {s(sX)}, {s(sDEC)}')
    A(f'  s_lshr_b32 {s(sT)}, {s(sPB)}, 4')
    A(f'  s_lshr_b32 {s(sOF)}, {s(sT)}, 5')
    A(f'  s_lshl_b32 {s(sOF)}, {s(sOF)}, 21')
    A(f'  s_add_u32 {s(sOF)}, {s(sOF)}, {WSX}')
    A(f'  s_and_b32 {s(sQD)}, {s(sT)}, 31')
    A(f'  s_add_u32 {s(sT)}, {s(sQD)}, {s(sRO)}')
    A(f'  s_lshl_b32 {s(sT)}, {s(sT)}, 10')
    A(f'  s_add_u32 {s(sME)}, {s(sOF)}, {s(sT)}')
    A(f'  s_xor_b32 {s(sPA)}, {s(sME)}, 1024')
    def pxor(k):
        h = k >> 2
        c = (h & 3) ^ (((h >> 2) & 1) * 17) ^ (((h >> 3) & 1) * 4)
        return (k << 15) | (c << 10)
    NW = NWU * 384 // 1024
    def reg(k): return hD + 4 * (k % 24)
    def export(lo, hi):
        for k in range(lo, hi): A(f'  ds_read_b128 {v(reg(k),4)}, {v(hO)} offset:{1024*k}')
        A('  s_waitcnt lgkmcnt(0)')
        for k in range(lo, hi):
            A(f'  s_xor_b32 {s(sT)}, {s(sME)}, {pxor(k)}')
            if xdep: A(f'  s_waitcnt vmcnt({xdep - 1})')
            if not noexp: A(f'  buffer_store_dwordx4 {v(reg(k),4)}, {v(hO)}, {s(SW_,4)}, {s(sT)} offen {fl(xf)}')
    def imp(lo, hi):
        for k in range(lo, hi):
            A(f'  s_xor_b32 {s(sT)}, {s(sPA)}, {pxor(k)}')
            if idep: A(f'  s_waitcnt vmcnt({idep - 1})')
            if not noimp: A(f'  buffer_load_dwordx4 {v(reg(k),4)}, {v(hO)}, {s(SW_,4)}, {s(sT)} offen {fl(impf)}')
        A('  s_waitcnt vmcnt(0)')
        for k in range(lo, hi): A(f'  ds_write_b128 {v(hO)}, {v(reg(k),4)} offset:{1024*k}')
    def cond(bit, tag, fn):
        A(f'  s_bitcmp0_b32 {s(sX)}, {bit}')
        A(f'  s_cbranch_scc1 L_h_{tag}')
        fn()
        A(f'L_h_{tag}:')
    def signal(level):
        A(f'  s_add_u32 {s(sA)}, {s(sNON)}, {level}')
        A(f'  v_mov_b32 {v(h2)}, 0')
        A('  s_waitcnt vmcnt(0)')
        if wbl:
            A('  buffer_wbl2 sc1')
            A('  s_waitcnt vmcnt(0)')
        A(f'  v_mov_b32 {v(hD)}, {s(sA)}')
        A(f'  v_mov_b32 {v(hD+1)}, {s(sNON+1)}')
        A('  s_mov_b64 exec, 1')
        A(f'  buffer_store_dwordx2 {v(hD,2)}, {v(h2)}, {s(SW_,4)}, {s(sFA)} offen sc1')
        A('  s_mov_b64 exec, -1')
    def await_partner(tag, level):
        A(f'  s_add_u32 {s(sA)}, {s(sNON)}, {level}')
        A(f'  v_mov_b32 {v(h2)}, 0')
        A('  s_mov_b64 exec, 1')
        if safe: A('  s_mov_b32 s59, 0')
        A(f'L_h_flag{tag}:')
        A(f'  buffer_load_dwordx2 {v(hD+2,2)}, {v(h2)}, {s(SW_,4)}, {s(sFS)} offen sc1')
        A('  s_waitcnt vmcnt(0)')
        A(f'  v_readfirstlane_b32 {s(sB)}, {v(hD+2)}')
        A(f'  v_readfirstlane_b32 {s(sB+1)}, {v(hD+3)}')
        A(f'  s_sub_u32 {s(sB)}, {s(sB)}, {s(sA)}')
        A(f'  s_xor_b32 {s(sB+1)}, {s(sB+1)}, {s(sNON+1)}')
        A(f'  s_lshr_b32 {s(sB)}, {s(sB)}, 1')
        A(f'  s_or_b32 {s(sB)}, {s(sB)}, {s(sB+1)}')
        A(f'  s_cbranch_scc0 L_h_flag{tag}_done')
        if safe:
            A('  s_add_u32 s59, s59, 1')
            A('  s_cmp_gt_u32 s59, 2000')
            A(f'  s_cbranch_scc1 L_h_flag{tag}_done')
        A('  s_sleep 32')
        A(f'  s_branch L_h_flag{tag}')
        A(f'L_h_flag{tag}_done:')
        A('  s_mov_b64 exec, -1')
    wait_progress('a', 64, 8)
    stamp()
    export(0, NW)
    cond(0, 'e0', lambda: export(NW, 12))
    cond(1, 'e1', lambda: export(12, 24))
    signal(1)
    A('L_h_skipa0:')
    checkpoints(ia)
    A(f'  s_bitcmp1_b32 {s(sDEC)}, 6')
    A('  s_cbranch_scc1 L_h_skipa')
    if ia > 64: wait_progress('ia', ia, 8)
    await_partner('a', 1)
    stamp()
    A(f'  s_bfe_u32 {s(sA)}, {s(sDEC)}, 0x10003')
    A(f'  s_mul_i32 {s(sA)}, {s(sA)}, 384')
    A(f'  v_lshrrev_b32 {v(h1)}, 3, v0')
    for k in range(NW):
        A(f'  v_add_u32 {v(h2)}, {8 * k}, {v(h1)}')
        A(f'  v_mul_u32_u24 {v(h2)}, 21846, {v(h2)}')
        A(f'  v_bfe_u32 {v(h2)}, {v(h2)}, 16, 1')
        A(f'  v_mul_u32_u24 {v(h3)}, 384, {v(h2)}')
        A(f'  v_sub_u32 {v(h3)}, {v(hO)}, {v(h3)}')
        A(f'  v_add_u32 {v(h3)}, {s(sA)}, {v(h3)}')
        A(f'  v_add_u32 {v(h3)}, {1024 * k}, {v(h3)}')
        A(f'  v_add_u32 {v(h2)}, {s(sQD)}, {v(h2)}')
        A(f'  v_lshrrev_b32 {v(hZ)}, 12, {v(h3)}')
        A(f'  v_xor_b32 {v(h2)}, {v(h2)}, {v(hZ)}')
        A(f'  v_lshrrev_b32 {v(hZ)}, 10, {v(h3)}')
        A(f'  v_lshl_add_u32 {v(h2)}, {v(hZ)}, 5, {v(h2)}')
        A(f'  v_and_b32 {v(h3)}, 1023, {v(h3)}')
        A(f'  v_lshl_add_u32 {v(h2)}, {v(h2)}, 10, {v(h3)}')
        if not noimp: A(f'  buffer_load_dwordx4 {v(reg(k),4)}, {v(h2)}, {s(SW_,4)}, {s(sOF)} offen sc1')
    A('  s_waitcnt vmcnt(0)')
    for k in range(NW): A(f'  ds_write_b128 {v(hO)}, {v(reg(k),4)} offset:{1024*k}')
    cond(0, 'i0', lambda: imp(NW, 12))
    cond(1, 'i1', lambda: imp(12, 24))
    stamp()
    A('L_h_skipa:')
    A(f'  s_lshr_b32 {s(sT)}, {s(sDEC)}, 4')
    A(f'  s_andn2_b32 {s(sX)}, {s(sX)}, {s(sT)}')
    A(f'  s_bitcmp0_b32 {s(sX)}, 2')
    A(f'  s_cselect_b32 {s(sT)}, 255, 64')
    A(f'  v_mov_b32 {v(hA)}, {F_IMP}')
    A(f'  v_mov_b32 {v(h2)}, {s(sT)}')
    A(f'  ds_write_b32 {v(hA)}, {v(h2)}')
    checkpoints(NF)
    code_touch('b')
    A(f'  s_bitcmp0_b32 {s(sX)}, 2')
    A('  s_cbranch_scc1 L_h_skipb0')
    wait_progress('b', NF, 8)
    stamp()
    export(24, 36)
    signal(2)
    A('L_h_skipb0:')
    checkpoints(ib)
    A(f'  s_bitcmp0_b32 {s(sX)}, 2')
    A('  s_cbranch_scc1 L_h_all')
    if ib > NF: wait_progress('ib', ib, 8)
    await_partner('b', 2)
    stamp()
    imp(24, 36)
    stamp()
    A(f'  v_mov_b32 {v(hA)}, {F_IMP}')
    A(f'  v_mov_b32 {v(h2)}, 255')
    A(f'  ds_write_b32 {v(hA)}, {v(h2)}')
    A('L_h_all:')
    checkpoints(176)
    code_touch('c')
    checkpoints(999)
    A('  s_waitcnt lgkmcnt(0)')
    if stamps or tl:
        A('  s_branch L_fin')
    else:
        A('  s_endpgm')
    checkpoint_sub()
    A('L_code_end:')
    body = pad(L)

    nva = (nv + 7) // 8 * 8
    out = HDR + f'; @launch grid=(256,1,1) block=({64*(W+1)},1,1) lds={lds}\n'
    out += '.amdgcn_target "amdgcn-amd-amdhsa--gfx950"\n.text\n'
    out += f'.globl {NAME}\n.p2align 8\n.type {NAME},@function\n'
    out += '\n'.join(body) + '\n'
    out += '.section .rodata,"a"\n'
    for nm, nvv, nss in ((NAME, nva, 102),):
        out += f'''.p2align 6
.amdhsa_kernel {nm}
  .amdhsa_next_free_vgpr {nvv}
  .amdhsa_next_free_sgpr {nss}
  .amdhsa_accum_offset {nvv}
  .amdhsa_group_segment_fixed_size 0
  .amdhsa_kernarg_size 80
  .amdhsa_user_sgpr_count 2
  .amdhsa_user_sgpr_kernarg_segment_ptr 1
  .amdhsa_system_sgpr_workgroup_id_x 1
  .amdhsa_float_denorm_mode_32 3
.end_amdhsa_kernel
'''
    return out

if __name__ == '__main__':
    kw = {}
    for x in sys.argv[2:]:
        k, val = x.split('=')
        kw[k] = int(val) if val.lstrip('-').isdigit() else val
    open(sys.argv[1], 'w').write(gen(**kw))
```

```python
import sys, os
sys.path.insert(0, os.path.dirname(os.path.abspath(__file__)))
from asmlib import pad
NAME = 'standalone__kv_cache_quant_int4_int2_kv_with_per_channel_or_per_token_scales__sampling_kernel'
TOTAL = 256 * 4096 * 768
REC = 5120
WS_REC = 1 << 20
WS_CP = 7 << 20
WS_FLAG = (7 << 20) + (1 << 16)
WS_IMG = 8 << 20
WS_END = WS_IMG + (16 << 20)
IMG = 96 * 384
OOB = 0x7ffffff0
HDR = open(os.path.join(os.path.dirname(os.path.abspath(__file__)), 'header.txt')).read()
assert all(((32 * c + 1) * 21846) >> 16 == (32 * c + 1) // 3 for c in range(25))
assert all((c * 43) >> 8 == c // 6 for c in range(24))
assert all((x * 21846) >> 16 == x // 3 for x in range(100))

NOTES = """\
"""

class Alloc:
    def __init__(self, start): self.n = start
    def __call__(self, k, align=1):
        self.n = (self.n + align - 1) // align * align
        r = self.n; self.n += k
        return r

def v(r, k=1): return f'v{r}' if k == 1 else f'v[{r}:{r+k-1}]'
def s(r, k=1): return f's{r}' if k == 1 else f's[{r}:{r+k-1}]'

def merge(main, side):
    out = []; side = list(side)
    for m in main:
        out.append(m)
        if side: out.append(side.pop(0))
    return out + side

def gen(DN=10, D=15, bev=3, NWU=8, NS=3, NV=8, pfw=16, PSK=17, gain=28, dly=4, dead=0, cp0=12, step=8, last=186,
        force=-1, stamps=0, tl=0, touch=1):
    W, U, NST, NF, PSV = 2, 2, 33, 96, 3
    R = 11 * U
    SW = NST - D
    assert DN <= D < R and NWU % 8 == 0 and PSV < SW and 3 <= PSK < SW
    L = []
    A = L.append
    C = lambda t: L.append('; ' + t)
    va = Alloc(1)
    DUP = va(1); DOWN = va(1); DCON = va(1)
    RING = va(4 * R, 4); VO = va(4)
    ICV = va(1); TU = va(1); VVS = va(1); VL1 = va(1); VL2 = va(1); VBP = va(1); VFL = va(1); VST = va(1); VPR = va(1)
    VOOB = va(1); VBS = va(1)
    T = va(4, 2); ZN = va(1); SN = va(1); ZC = va(1); SC = va(1); ZS = va(2, 2)
    LG = va(6, 4); ACC = va(12, 4); M = va(1); NB = va(2, 2); LS = NB + 1
    X0 = va(2, 2); X1 = X0 + 1; AL = va(1); ALQ = va(1); E = va(11); PP = va(6); TL = va(1)
    base = va.n
    QB = va(6, 4); QN = va(6, 2); KSR = va(6, 2); KZR = va(6, 2); KS = va(12, 2); KZ = va(12, 2); KA = va(6, 4); SD = va(4, 4); S = va(2, 2)
    IUP = va(1); IOWN = va(1); ICON = va(1); VKS0 = va(1); VKS = va(1); VQ = va(1); VNI = va(1)
    kend = va.n
    va.n = base
    AJ = va(16, 4); AK = va(8, 2); TV = va(12, 2); BV = va(48, 4)
    nv = max(va.n, kend)
    sRO, sPB = 4, 5
    SK, SV, SI, SKS, SKZ, SVS, SVZ, SQ, SWS = 8, 12, 16, 20, 24, 28, 32, 36, 40
    PT = 44
    sREC, sOUT, sL0, sL10, sM0, sM10, sLOW = 44, 46, 48, 50, 52, 54, 56
    sCUR, sNXT, sSO, s768, sF, sMSK, sL2E, sTL, sSCL, sT = 60, 61, 62, 63, 64, 65, 66, 67, 68, 70
    sMJ = 72
    sDBG, sWS = 80, 82
    sQ3, sC, sQC, sCC, sHC, sHN, sDIV, sSH = 84, 85, 86, 87, 88, 89, 90, 91
    sBIG, sSM = 92, 94
    sDEC, sG, sGATE, sSEG = 96, 97, 99, 100
    SEG = W * 3072 + W * 32
    LDS_ACC = IMG
    LDS_F = LDS_ACC + 4 * SEG
    F_DEC, F_IMP, F_TAG, F_PRG, F_BST = LDS_F, LDS_F + 4, LDS_F + 8, LDS_F + 16, LDS_F + 24
    lds = 62464
    assert LDS_F + 32 <= lds

    A(f'{NAME}:')
    A('  s_cmp_ge_u32 s2, 256')
    A('  s_cbranch_scc1 L_end')
    A(f'  s_load_dwordx16 {s(PT,16)}, s[0:1], 0')
    A(f'  s_load_dwordx4 {s(sDBG,4)}, s[0:1], 64')
    if stamps: A('  s_memrealtime s[6:7]')
    C('s3 = wave, s4 = role in the pair, s5 = 32 * pair (first block of the first page)')
    A('  v_lshrrev_b32 v1, 6, v0')
    A('  v_and_b32 v0, 63, v0')
    A('  v_readfirstlane_b32 s3, v1')
    A(f'  s_bfe_u32 {s(sRO)}, s2, 0x10002')
    A(f'  s_lshr_b32 {s(sPB)}, s2, 3')
    A(f'  s_lshl_b32 {s(sPB)}, {s(sPB)}, 2')
    A(f'  s_and_b32 {s(sT)}, s2, 3')
    A(f'  s_add_u32 {s(sPB)}, {s(sPB)}, {s(sT)}')
    A(f'  s_lshl_b32 {s(sPB)}, {s(sPB)}, 5')
    SRDS = ((SKS, PT + 6, 256 * 24576), (SKZ, PT + 8, 256 * 24576), (SVS, PT + 10, 256 * 8192), (SVZ, PT + 12, 256 * 8192),
            (SK, PT + 2, TOTAL), (SQ, PT, 256 * 1536), (SI, PT + 2, TOTAL), (SV, PT + 4, TOTAL), (SWS, sWS, WS_END))
    for srd, p, nb in SRDS:
        A(f'  s_mov_b32 {s(srd+2)}, {nb}')
        A(f'  s_mov_b32 {s(srd+3)}, 0x20000')
    def make_srds(lo, hi):
        for srd, p, nb in SRDS[lo:hi]:
            A(f'  s_mov_b32 {s(srd)}, {s(p)}')
            A(f'  s_and_b32 {s(srd+1)}, {s(p+1)}, 0xffff')
    A(f'  s_cmp_eq_u32 s3, {W}')
    A('  s_cbranch_scc1 L_helper')

    C('================= streaming waves')
    cls, a, g, n = T, T + 1, T + 2, T + 3
    A(f'  v_and_b32 {v(cls)}, 3, v0')
    A(f'  v_bfe_u32 {v(a)}, v0, 2, 2')
    A(f'  v_lshrrev_b32 {v(g)}, 4, v0')
    A(f'  v_and_b32 {v(n)}, 15, v0')
    def stream_consts(x, up, own, con, lanepart):
        A(f'  v_and_b32 {v(own)}, 2, {v(x)}')
        A(f'  v_lshlrev_b32 {v(up)}, 5, {v(own)}')
        A(f'  v_add_u32 {v(up)}, 129, {v(up)}')
        A(f'  v_and_b32 {v(X1)}, 1, {v(x)}')
        A(f'  v_lshl_add_u32 {v(own)}, {v(X1)}, 2, {v(own)}')
        A(f'  v_mul_u32_u24 {v(X1)}, {43 * 768}, {v(X1)}')
        A(f'  v_add_u32 {v(con)}, {v(lanepart)}, {v(X1)}')
        A(f'  v_subrev_u32 {v(con)}, {43 * 768}, {v(con)}')
    A(f'  v_lshlrev_b32 {v(X0)}, 4, {v(cls)}')
    A(f'  v_lshl_add_u32 {v(X0)}, {v(g)}, 6, {v(X0)}')
    A(f'  v_lshrrev_b32 {v(VKS0)}, 1, {v(X0)}')
    stream_consts(a, IUP, IOWN, ICON, X0)
    A(f'  v_mul_u32_u24 {v(X1)}, 384, {v(a)}')
    A(f'  v_add_u32 {v(VQ)}, {v(X1)}, {v(VKS0)}')
    A(f'  v_mov_b32 {v(VOOB)}, {OOB}')
    A(f'  s_mov_b32 {s(sDIV)}, 0xaaaaaaab')
    A(f'  s_mov_b32 {s(sSH)}, 0x492492')
    A(f'  s_movk_i32 {s(s768)}, 768')
    def slot(k): return RING + 4 * (k % R)
    def main_load(k, srd, so):
        ss, i = divmod(k % NST, 3)
        r, k0 = (0, 0) if ss == 0 else (1, 1) if ss <= 5 else (2, 6) if ss <= 9 else (3, 10)
        return f'  buffer_load_dwordx4 {v(slot(k),4)}, {v(VO+r)}, {s(srd,4)}, {s(so)} offen offset:{768*(ss-k0) + 256*i} nt'
    def kscale_loads():
        A(f'  s_mul_i32 {s(sSO)}, {s(sQ3)}, 1536')
        for i in range(3):
            A(f'  buffer_load_dwordx2 {v(KSR+2*i,2)}, {v(VKS)}, {s(SKS,4)}, {s(sSO)} offen offset:{128*i}')
            A(f'  buffer_load_dwordx2 {v(KZR+2*i,2)}, {v(VKS)}, {s(SKZ,4)}, {s(sSO)} offen offset:{128*i}')
    def vscale_loads():
        A(f'  s_lshl_b32 {s(sSO)}, {s(sQ3)}, 9')
        A(f'  v_lshl_add_u32 {v(VVS)}, {v(TU)}, 1, {v(ICV)}')
        A(f'  buffer_load_short_d16_hi {v(ZN)}, {v(VVS)}, {s(SVZ,4)}, {s(sSO)} offen')
        A(f'  buffer_load_short_d16_hi {v(SN)}, {v(VVS)}, {s(SVS,4)}, {s(sSO)} offen')
    def q_loads():
        A(f'  s_mul_i32 {s(sT)}, {s(sHN)}, 1536')
        for i in range(3): A(f'  buffer_load_dwordx2 {v(QN+2*i,2)}, {v(VQ)}, {s(SQ,4)}, {s(sT)} offen offset:{128*i}')
    def short_masks(own, m0, m10, low):
        A(f'  v_add_u32 {v(X0)}, {s(sC)}, {v(own)}')
        A(f'  v_lshrrev_b32 {v(X1)}, {v(X0)}, {s(sSH)}')
        A(f'  v_and_b32 {v(X1)}, 1, {v(X1)}')
        A(f'  v_cmp_eq_u32 {s(m10,2)}, 1, {v(X1)}')
        A(f'  s_and_b64 {s(m0,2)}, {s(m10,2)}, {s(low,2)}')
        A(f'  s_andn2_b64 {s(m10,2)}, {s(m10,2)}, {s(low,2)}')
    def map_unit(f, isv):
        A(f'  s_lshr_b32 {s(sT+1)}, {s(f)}, 5')
        A(f'  s_lshr_b32 {s(sC)}, {s(sDEC)}, {s(sT+1)}')
        if isv:
            A(f'  s_bfe_u32 {s(sC)}, {s(sC)}, 0x10003')
            A(f'  s_add_u32 {s(sT)}, {s(f)}, {s(sPB)}')
        else:
            A(f'  s_andn2_b32 {s(sT)}, {s(f)}, 1')
            A(f'  s_or_b32 {s(sT)}, {s(sT)}, {s(sRO)}')
            A(f'  s_cmp_lt_u32 {s(f)}, {NWU}')
            A(f'  s_cselect_b32 {s(sT)}, {s(sT)}, {s(f)}')
            A(f'  s_cselect_b32 {s(sC)}, {s(f)}, {s(sC)}')
            A(f'  s_and_b32 {s(sC)}, {s(sC)}, 1')
            A(f'  s_add_u32 {s(sT)}, {s(sT)}, {s(sPB)}')
        A(f'  s_mul_i32 {s(sT+1)}, {s(sT+1)}, {4096 - 32}')
        A(f'  s_add_u32 {s(sT)}, {s(sT)}, {s(sT+1)}')
        A(f'  s_mul_hi_u32 {s(sQ3)}, {s(sT)}, {s(sDIV)}')
        A(f'  s_lshr_b32 {s(sQ3)}, {s(sQ3)}, 1')
        A(f'  s_mul_i32 {s(sT+1)}, {s(sQ3)}, 3')
        A(f'  s_sub_u32 {s(sT)}, {s(sT)}, {s(sT+1)}')
        A(f'  s_lshl3_add_u32 {s(sC)}, {s(sT)}, {s(sC)}')
        A(f'  s_mul_i32 {s(sNXT)}, {s(sQ3)}, 196608')
        A(f'  s_lshr_b32 {s(sHN)}, {s(sQ3)}, 4')
        A(f'  s_lshl_b32 {s(sT)}, {s(sC)}, 5')
        A(f'  v_add_u32 {v(TU)}, {s(sT)}, {v(DUP if isv else IUP)}')
        A(f'  v_mul_u32_u24 {v(TU)}, 21846, {v(TU)}')
        A(f'  v_lshrrev_b32 {v(TU)}, 16, {v(TU)}')
        short_masks(DOWN if isv else IOWN, sM0, sM10, sLOW + 2 * isv)
        if not isv:
            A(f'  v_mul_u32_u24 {v(X0)}, 43, {v(X0)}')
            A(f'  v_lshrrev_b32 {v(X0)}, 8, {v(X0)}')
            A(f'  v_mul_u32_u24 {v(X0)}, 384, {v(X0)}')
            A(f'  v_add_u32 {v(VKS)}, {v(X0)}, {v(VKS0)}')
    def offsets(con):
        A(f'  v_mad_u32_u24 {v(VO)}, {v(TU)}, {s(s768)}, {v(con)}')
        A(f'  v_add_u32 {v(VO+1)}, 768, {v(VO)}')
        A(f'  v_add_u32 {v(VO+2)}, {6 * 768}, {v(VO)}')
        A(f'  v_add_u32 {v(VO+3)}, {10 * 768}, {v(VO)}')
        A(f'  v_cndmask_b32 {v(VO)}, {v(VO)}, {v(VOOB)}, {s(sM0,2)}')
        A(f'  v_cndmask_b32 {v(VO+3)}, {v(VO+3)}, {v(VOOB)}, {s(sM10,2)}')
    def stamp():
        if tl:
            A(f'  s_memrealtime {s(sT,2)}')
            A('  s_waitcnt lgkmcnt(0)')
            A(f'  s_min_u32 m0, {s(sTL)}, 63')
            A(f'  v_writelane_b32 {v(TL)}, {s(sT)}, m0')
            A(f'  s_add_u32 {s(sTL)}, {s(sTL)}, 1')
    def reset_state():
        for k in range(12): A(f'  v_mov_b32 {v(ACC+k)}, 0')
        A(f'  v_mov_b32 {v(M)}, 0xff800000')
        A(f'  v_mov_b32 {v(NB)}, 0x7f800000')
        A(f'  v_mov_b32 {v(LS)}, 0')
    A(f'  s_mov_b32 {s(sF)}, s3')
    A(f'  s_mov_b32 {s(sGATE)}, {NWU}')
    A(f'  s_mov_b32 {s(sDEC)}, 0')
    C('one bulk pass pulls the scale/zero arrays into the memory-side cache (1/512 per wave); later reads of them stay off DRAM')
    A(f'  v_lshlrev_b32 {v(ZC)}, 4, v0')
    sPK, sPV = sQC, sHC
    A(f'  s_lshl1_add_u32 {s(sT)}, s2, s3')
    A(f'  s_mul_i32 {s(sPV)}, {s(sT)}, {8192 // W}')
    A(f'  s_mul_i32 {s(sPK)}, {s(sT)}, {24576 // W}')
    line = lambda srd, so, k: f'  buffer_load_dwordx4 {v(ACC,4)}, {v(ZC)}, {s(srd,4)}, {s(so)} offen offset:{(k % 4) * 1024}'
    pfl = []
    for k in range(24 // W):
        if k % 4 == 0 and k: pfl.append(f'  s_add_u32 {s(sPK)}, {s(sPK)}, 4096')
        pfl += [line(SKS, sPK, k), line(SKZ, sPK, k)]
        if k < 8 // W: pfl += [line(SVS, sPV, k), line(SVZ, sPV, k)]
    nissued = [0]
    def issue_pf(cnt):
        while pfl and cnt > 0:
            x = pfl.pop(0)
            if 'buffer_load' in x:
                if nissued[0] >= pfw: A(f'  s_waitcnt vmcnt({pfw - 1})')
                nissued[0] += 1; cnt -= 1
            A(x)
    A('  s_waitcnt lgkmcnt(0)')
    make_srds(0, 4)
    issue_pf(8)
    make_srds(4, 9)
    A(f'  s_mov_b64 {s(sOUT,2)}, {s(PT+14,2)}')
    A(f'  s_mov_b32 {s(sLOW)}, 0x0f0f0f0f')
    A(f'  s_mov_b32 {s(sLOW+1)}, 0x0f0f0f0f')
    A(f'  s_mov_b32 {s(sLOW+2)}, 0xffff')
    A(f'  s_mov_b32 {s(sLOW+3)}, 0xffff')
    map_unit(sF, 0)
    offsets(ICON)
    A(f'  s_mov_b32 {s(sCUR)}, {s(sNXT)}')
    q_loads()
    A(main_load(0, SK, sCUR))
    issue_pf(pfw - nissued[0])
    A('  s_barrier')
    A('  s_mov_b64 vcc, 0')
    A(f'  v_lshlrev_b32 {v(X0)}, 4, {v(n)}')
    stream_consts(g, DUP, DOWN, DCON, X0)
    A(f'  v_and_b32 {v(X1)}, 1, {v(g)}')
    A(f'  v_mul_u32_u24 {v(X1)}, 86, {v(X1)}')
    A(f'  v_lshl_add_u32 {v(ICV)}, {v(n)}, 1, {v(X1)}')
    A(f'  v_subrev_u32 {v(ICV)}, 86, {v(ICV)}')
    A(f'  v_lshlrev_b32 {v(VBP)}, 4, {v(g)}')
    A(f'  v_lshrrev_b32 {v(X0)}, 2, v0')
    A(f'  s_mul_i32 {s(sT)}, s3, 384')
    A(f'  v_lshl_add_u32 {v(VL1)}, {v(X0)}, 4, {s(sT)}')
    A(f'  v_lshl_add_u32 {v(VL2)}, {v(X0)}, 3, {s(sT)}')
    A(f'  s_mul_i32 {s(sT)}, s3, 3072')
    A(f'  s_add_u32 {s(sT)}, {s(sT)}, {LDS_ACC}')
    A(f'  v_lshl_add_u32 {v(VFL)}, v0, 4, {s(sT)}')
    A(f'  s_lshl_b32 {s(sT)}, s3, 5')
    A(f'  s_add_u32 {s(sT)}, {s(sT)}, {LDS_ACC + W * 3072}')
    A(f'  v_lshl_add_u32 {v(VST)}, {v(a)}, 3, {s(sT)}')
    A(f'  s_lshl2_add_u32 {s(sT)}, s3, {F_PRG}')
    A(f'  v_mov_b32 {v(VPR)}, {s(sT)}')
    A(f'  v_mov_b32 {v(ZN)}, 0')
    A(f'  v_mov_b32 {v(SN)}, 0')
    A(f'  v_mov_b32 {v(VNI)}, 0xff800000')
    A(f'  v_mov_b32 {v(AL)}, 1')
    A(f'  s_mov_b32 {s(sMSK)}, 0xffff0000')
    A(f'  s_mov_b32 {s(sL2E)}, 0x3fb8aa3b')
    for h in range(2):
        A(f'  s_mov_b32 {s(sSCL+h)}, {hex(0x3d93cd3a + (22 << 23))}')
        A(f'  s_mov_b32 {s(sBIG+h)}, 0x7f000000')
        A(f'  s_mov_b32 {s(sSM+h)}, {hex((127 - 22) << 23)}')
        A(f'  s_mov_b32 {s(sREC+h)}, 0')
    for j in range(4):
        A(f'  s_mov_b32 {s(sMJ+2*j)}, {hex(0x11111111 << j)}')
        A(f'  s_mov_b32 {s(sMJ+2*j+1)}, {hex(0x11111111 << j)}')
    A(f'  s_mov_b32 {s(sSEG)}, 0')
    if tl:
        A(f'  s_mov_b32 {s(sTL)}, 0')
        A(f'  v_mov_b32 {v(TL)}, 0')
    issue_pf(99)
    A(f'  s_mov_b32 {s(sHC)}, {s(sHN)}')
    kscale_loads()
    for k in range(1, D):
        A(f'  s_waitcnt vmcnt({max(DN, k) - 1 + 6})')
        A(main_load(k, SK, sCUR))
    A(f'  s_waitcnt vmcnt({D - 1})')
    A(f'  ds_write_b32 {v(VPR)}, {v(AL)}')

    def wait_step(k, nsmall, tag, ps):
        cnt = lambda d: d - 1 + (nsmall if k - d <= ps < k else 0)
        A(f'  s_waitcnt vmcnt({cnt(D)})')
        if k % bev == 0:
            A(f'  s_cbranch_vccnz L_{tag}')
            A(f'  s_waitcnt vmcnt({cnt(DN)})')
            A(f'L_{tag}:')
    def mode(k):
        if k == 0: A(f'  ds_read_b32 {v(VBS)}, {v(VPR)} offset:{F_BST - F_PRG}')
        if k == 1:
            A('  s_waitcnt lgkmcnt(0)')
            A(f'  v_cmp_lt_u32 vcc, {s(sG)}, {v(VBS)}')
    def dequant(X, src, z, sc, zmod, smod):
        r = [f'  v_pk_fma_f32 {v(X+2*h,2)}, {v(src+2*h,2)}, {s(sBIG,2)}, {z[h]} {zmod}neg_lo:[0,0,1] neg_hi:[0,0,1]' for h in range(2)]
        r2 = [f'  v_cvt_pk_bf16_f32 {v(X+j)}, 0, {v(X+j)}' for j in range(4)]
        r2 += [f'  v_pk_mul_f32 {v(X+2*h,2)}, {v(X+2*h,2)}, {sc[h]} {smod}'.rstrip() for h in range(2)]
        return r, r2
    def kreduce(ss):
        d = S + (ss & 1)
        q = lambda j: f'quad_perm:[{j},{j},{j},{j}] row_mask:0xf bank_mask:0xf'
        r = [f'  v_mov_b32_dpp {v(X0)}, {v(SD)} {q(0)}',
             f'  v_mov_b32_dpp {v(X1)}, {v(SD+2)} {q(2)}',
             f'  v_add_f32_dpp {v(X0)}, {v(SD+1)}, {v(X0)} {q(1)}',
             f'  v_add_f32_dpp {v(X1)}, {v(SD+3)}, {v(X1)} {q(3)}',
             f'  v_add_f32 {v(d)}, {v(X0)}, {v(X1)}']
        if ss == 0: r.append(f'  v_cndmask_b32 {v(d)}, {v(d)}, {v(VNI)}, {s(sL0,2)}')
        if ss == 10: r.append(f'  v_cndmask_b32 {v(d)}, {v(d)}, {v(VNI)}, {s(sL10,2)}')
        if ss & 1 or ss == 10:
            r += [f'  v_cvt_pk_bf16_f32 {v(S)}, 0, {v(S)}',
                  f'  v_cvt_pk_bf16_f32 {v(S+1)}, 0, {v(S+1)}',
                  f'  v_pk_mul_f32 {v(S,2)}, {v(S,2)}, {s(sSCL,2)}',
                  f'  v_cvt_pk_bf16_f32 {v(LG+(ss>>1))}, {v(S)}, {v(S+1)}']
        return r
    def lds_word(dst, addr):
        A(f'  v_mov_b32 {v(X0)}, {addr}')
        A(f'  ds_read_b32 {v(X0)}, {v(X0)}')
        A('  s_waitcnt lgkmcnt(0)')
        A(f'  v_readfirstlane_b32 {s(dst)}, {v(X0)}')

    mf32 = f'  v_mfma_f32_16x16x32_bf16 {v(SD,4)}, {v(KA,4)}, {v(QB,4)}, 0'
    mf16 = f'  v_mfma_f32_16x16x16_bf16 {v(SD,4)}, {v(KA+4,2)}, {v(QB+4,2)}, {v(SD,4)}'
    def k_unit(u):
        o = NST * u
        if u == 0: stamp()
        short_masks(DOWN, sL0, sL10, sLOW + 2)
        A(f'  s_mov_b32 {s(sG)}, {s(sF)}')
        A(f'  s_add_u32 {s(sF)}, {s(sF)}, {W}')
        for k in range(NST):
            ss, i = divmod(k, 3)
            mode(k)
            if k == SW:
                if u == U - 1:
                    C('the last K unit prefetches the first V unit')
                    A(f'  s_cmp_lt_u32 {s(sF)}, {NF}')
                    A('  s_cbranch_scc1 L_k_keep')
                    map_unit(3, 1)
                    A(f'  s_mov_b32 {s(SI)}, {s(SV)}')
                    A(f'  s_mov_b32 {s(SI+1)}, {s(SV+1)}')
                    vscale_loads()
                    A(f'  v_mov_b32 {v(ICON)}, {v(DCON)}')
                    A('L_k_keep:')
                offsets(ICON)
            wait_step(k, 6, f'kw{u}_{k}', PSK)
            A(main_load(o + k + D, SK, sCUR) if k < SW else main_load(o + k + D, SI, sNXT))
            if i == 2: A(mf32)
            if i == 0 and ss > 0: A(mf16)
            if ss == 0:
                for raw, dst in ((KZR, KZ), (KSR, KS)):
                    for h in range(2):
                        A(f'  v_lshlrev_b32 {v(dst+4*i+2*h)}, 16, {v(raw+2*i+h)}')
                        A(f'  v_and_b32 {v(dst+4*i+2*h+1)}, {s(sMSK)}, {v(raw+2*i+h)}')
                for h in range(2):
                    A(f'  v_pk_mul_f32 {v(KZ+4*i+2*h,2)}, {v(KZ+4*i+2*h,2)}, {s(sSM,2)}')
                    A(f'  v_mov_b32 {v(QB+2*i+h)}, {v(QN+2*i+h)}')
            c, rest = dequant(T, slot(o + k), (v(KZ+4*i,2), v(KZ+4*i+2,2)), (v(KS+4*i,2), v(KS+4*i+2,2)), '', '')
            for x in c: A(x)
            if k == PSK:
                C('next unit: class (needs the vote once), scales, q on a head change')
                A(f'  s_cmp_lt_u32 {s(sF)}, {s(sGATE)}')
                A(f'  s_cbranch_scc1 L_k_known{u}')
                A(f'L_k_spin{u}:')
                lds_word(sDEC, F_DEC)
                A(f'  s_cmp_eq_u32 {s(sDEC)}, 0')
                A(f'  s_cbranch_scc1 L_k_spin{u}')
                A(f'  s_mov_b32 {s(sGATE)}, -1')
                A(f'L_k_known{u}:')
                map_unit(sF, 0)
                A(f'  s_cmp_eq_u32 {s(sHN)}, {s(sHC)}')
                A(f'  s_cbranch_scc1 L_k_sameq{u}')
                q_loads()
                A(f'  s_mov_b32 {s(sHC)}, {s(sHN)}')
                A(f'L_k_sameq{u}:')
                kscale_loads()
            rest += [f'  v_cvt_pk_bf16_f32 {v(KA+2*i)}, {v(T)}, {v(T+1)}',
                     f'  v_cvt_pk_bf16_f32 {v(KA+2*i+1)}, {v(T+2)}, {v(T+3)}']
            if i == 1 and ss > 0:
                r = kreduce(ss - 1)
                rest = r[:2] + rest[:2] + r[2:4] + rest[2:4] + r[4:5] + rest[4:]
                pend = r[5:]
            elif i == 2 and ss > 0:
                rest = merge(rest, pend)
            for x in rest: A(x)
        A(f'  s_mov_b32 {s(sCUR)}, {s(sNXT)}')
        A(f'  v_mov_b32 {v(AL)}, {s(sF)}')
        A(mf16)
        A(f'  ds_write_b128 {v(VL1)}, {v(LG,4)}')
        A(f'  v_add_u32 {v(VL1)}, {384 * W}, {v(VL1)}')
        for x in kreduce(10): A(x)
        A(f'  ds_write_b64 {v(VL2)}, {v(LG+4,2)} offset:256')
        A(f'  ds_write_b32 {v(VPR)}, {v(AL)}')
        A(f'  v_add_u32 {v(VL2)}, {384 * W}, {v(VL2)}')
    C('---------------- K loop: two units per trip')
    A('L_k:')
    for u in range(U): k_unit(u)
    A(f'  s_cmp_lt_u32 {s(sF)}, {NF}')
    A('  s_cbranch_scc1 L_k')

    def flush():
        C('park the partial result of the finished head segment; record id = head*4 + 2*(segment ends the head) + class')
        A(f'  v_mov_b32 {v(X1)}, {v(LS)}')
        A(f'  v_permlane32_swap_b32 {v(LS)}, {v(X1)}')
        A(f'  v_add_f32 {v(LS)}, {v(LS)}, {v(X1)}')
        A(f'  v_mov_b32 {v(X1)}, {v(LS)}')
        A(f'  v_permlane16_swap_b32 {v(LS)}, {v(X1)}')
        A(f'  v_add_f32 {v(LS)}, {v(LS)}, {v(X1)}')
        A(f'  ds_write_b64 {v(VST)}, {v(NB,2)}')
        for i in range(3):
            A(f'  ds_write_b128 {v(VFL)}, {v(ACC+4*i,4)} offset:{1024*i}')
        A(f'  s_and_b32 {s(sT)}, {s(sQC)}, 15')
        A(f'  s_cmp_ge_u32 {s(sT)}, 12')
        A(f'  s_cselect_b32 {s(sT)}, 2, 0')
        A(f'  s_and_b32 {s(sT+1)}, {s(sCC)}, 1')
        A(f'  s_add_u32 {s(sT)}, {s(sT)}, {s(sT+1)}')
        A(f'  s_lshr_b32 {s(sT+1)}, {s(sQC)}, 4')
        A(f'  s_lshl2_add_u32 {s(sT)}, {s(sT+1)}, {s(sT)}')
        for j in range(2):
            A(f'  s_add_u32 {s(sT+1)}, s3, {W * j}')
            A(f'  s_cmp_eq_u32 {s(sSEG)}, {s(sT+1)}')
            A(f'  s_cselect_b32 {s(sREC+j)}, {s(sT)}, {s(sREC+j)}')
        A(f'  s_add_u32 {s(sSEG)}, {s(sSEG)}, 1')
        A('  s_waitcnt lgkmcnt(0)')
    def import_gate(tag):
        A(f'  s_cmp_lt_u32 {s(sF)}, {s(sGATE)}')
        A(f'  s_cbranch_scc1 L_{tag}_ok')
        A(f'L_{tag}_spin:')
        lds_word(sGATE, F_IMP)
        A(f'  s_cmp_lt_u32 {s(sF)}, {s(sGATE)}')
        A(f'  s_cbranch_scc0 L_{tag}_spin')
        A(f'L_{tag}_ok:')

    C('---------------- V loop: two units per trip')
    A(f'  v_subrev_u32 {v(VL1)}, {IMG}, {v(VL1)}')
    A(f'  v_subrev_u32 {v(VL2)}, {IMG}, {v(VL2)}')
    A(f'  s_mov_b32 {s(sF)}, s3')
    A(f'  s_mov_b32 {s(sHC)}, {s(sHN)}')
    A(f'  s_mov_b32 {s(sGATE)}, 0')
    A(f'  s_mov_b32 {s(SQ)}, {s(sOUT)}')
    A(f'  s_and_b32 {s(SQ+1)}, {s(sOUT+1)}, 0xffff')
    import_gate('v0')
    A(f'  ds_read_b128 {v(LG,4)}, {v(VL1)}')
    A(f'  ds_read_b64 {v(LG+4,2)}, {v(VL2)} offset:256')
    reset_state()
    def v_unit(u):
        o = NST * u
        A(f'L_v{u}:')
        if u == 0: stamp()
        A(f'  s_add_u32 {s(sG)}, {s(sF)}, {NF}')
        A(f'  v_mov_b32 {v(AL)}, {s(sG)}')
        A(f'  s_mov_b32 {s(sQC)}, {s(sQ3)}')
        A(f'  s_mov_b32 {s(sCC)}, {s(sC)}')
        A(f'  ds_write_b32 {v(VPR)}, {v(AL)}')
        A(f'  s_add_u32 {s(sF)}, {s(sF)}, {W}')
        import_gate(f'v1{u}')
        map_unit(sF, 1)
        A(f'  s_cmp_lt_u32 {s(sF)}, {NF}')
        A(f'  s_cselect_b32 {s(sNXT)}, {s(sNXT)}, {TOTAL}')
        prep = []
        for k in range(11):
            prep.append(f'  v_lshlrev_b32 {v(E+k)}, 16, {v(LG+k//2)}' if k % 2 == 0 else f'  v_and_b32 {v(E+k)}, {s(sMSK)}, {v(LG+k//2)}')
        prep += [f'  v_add_u32 {v(VL1)}, {384 * W}, {v(VL1)}',
                 f'  v_add_u32 {v(VL2)}, {384 * W}, {v(VL2)}',
                 f'  v_max3_f32 {v(X0)}, {v(E)}, {v(E+1)}, {v(E+2)}',
                 f'  ds_read_b128 {v(LG,4)}, {v(VL1)}',
                 f'  ds_read_b64 {v(LG+4,2)}, {v(VL2)} offset:256',
                 f'  v_max3_f32 {v(X1)}, {v(E+3)}, {v(E+4)}, {v(E+5)}',
                 f'  v_max3_f32 {v(X0)}, {v(X0)}, {v(E+6)}, {v(E+7)}',
                 f'  v_max3_f32 {v(X1)}, {v(X1)}, {v(E+8)}, {v(E+9)}',
                 f'  v_max3_f32 {v(X0)}, {v(X0)}, {v(E+10)}, {v(M)}',
                 f'  v_max_f32 {v(X0)}, {v(X0)}, {v(X1)}',
                 f'  v_mov_b32 {v(X1)}, {v(X0)}',
                 f'  v_permlane32_swap_b32 {v(X0)}, {v(X1)}',
                 f'  v_max_f32 {v(X0)}, {v(X0)}, {v(X1)}',
                 f'  v_mov_b32 {v(X1)}, {v(X0)}',
                 f'  v_permlane16_swap_b32 {v(X0)}, {v(X1)}',
                 f'  v_max_f32 {v(M)}, {v(X0)}, {v(X1)}',
                 f'  v_mul_f32 {v(X0)}, {s(sL2E)}, {v(M)}',
                 f'  v_add_f32 {v(AL)}, {v(X0)}, {v(NB)}',
                 f'  v_sub_f32 {v(NB)}, 0, {v(X0)}',
                 f'  v_exp_f32 {v(AL)}, -{v(AL)}',
                 f'  ds_bpermute_b32 {v(ALQ)}, {v(VBP)}, {v(AL)}']
        for k in range(11):
            prep += [f'  v_fma_f32 {v(E+k)}, {v(E+k)}, {s(sL2E)}, {v(NB)}', f'  v_exp_f32 {v(E+k)}, {v(E+k)}']
        prep += [f'  v_add_f32 {v(X0)}, {v(E)}, {v(E+1)}', f'  v_add_f32 {v(X1)}, {v(E+2)}, {v(E+3)}']
        for k in range(4, 11):
            x = X0 if k % 2 == 0 else X1
            prep.append(f'  v_add_f32 {v(x)}, {v(x)}, {v(E+k)}')
        prep += [f'  v_add_f32 {v(X0)}, {v(X0)}, {v(X1)}',
                 f'  v_fma_f32 {v(LS)}, {v(LS)}, {v(AL)}, {v(X0)}']
        for k in range(6):
            prep.append(f'  v_cvt_pk_bf16_f32 {v(PP+k)}, {v(E+2*k)}, {v(E+2*k+1) if k < 5 else 0}')
        for j in range(4):
            for k in range(4):
                prep.append(f'  v_cndmask_b32 {v(AJ+4*j+k)}, 0, {v(PP+k)}, {s(sMJ+2*j,2)}')
        prep.append('  s_waitcnt lgkmcnt(0)')
        for k in range(12):
            prep.append(f'  v_mul_f32 {v(ACC+k)}, {v(ALQ)}, {v(ACC+k)}')
        prep2 = [f'  v_cndmask_b32 {v(AK+2*j+k)}, 0, {v(PP+4+k)}, {s(sMJ+2*j,2)}' for j in range(4) for k in range(2)]
        for k in range(NST):
            ss, i = divmod(k, 3)
            mode(k)
            if k == SW: offsets(DCON)
            wait_step(k, 2, f'vw{u}_{k}', PSV)
            A(main_load(o + k + D, SV, sCUR if k < SW else sNXT))
            if k == 0:
                A(f'  v_mul_f32 {v(ZC)}, {s(sSM)}, {v(ZN)}')
                A(f'  v_mul_f32 {v(SC)}, {hex((127 + 22) << 23)}, {v(SN)}')
            if i == 0:
                A(f'  v_mov_b32_dpp {v(ZS)}, {v(ZC)} row_newbcast:{ss} row_mask:0xf bank_mask:0xf')
                A(f'  v_mov_b32_dpp {v(ZS+1)}, {v(SC)} row_newbcast:{ss} row_mask:0xf bank_mask:0xf')
            X = TV + 4 * i if ss % 2 == 0 else T
            c, rest = dequant(X, slot(o + k), (v(ZS,2), v(ZS,2)), (v(ZS,2), v(ZS,2)), 'op_sel_hi:[1,1,0] ', 'op_sel:[0,1]')
            for x in c: A(x)
            if k == PSV: vscale_loads()
            if ss % 2 == 1:
                rest += [f'  v_cvt_pk_bf16_f32 {v(BV+16*i+4*j+((ss>>1)&3))}, {v(TV+4*i+j)}, {v(T+j)}' for j in range(4)]
            if ss == 10:
                rest += [f'  v_cvt_pk_bf16_f32 {v(BV+16*i+4*j+1)}, {v(TV+4*i+j)}, 0' for j in range(4)]
            side = []
            if k >= 1: side, prep = prep[:5], prep[5:]
            if k == 20: assert not prep
            if k == 23: prep = prep2
            for x in merge(rest, side): A(x)
            if ss == 7:
                for j in range(4):
                    A(f'  v_mfma_f32_16x16x32_bf16 {v(ACC+4*i,4)}, {v(AJ+4*j,4)}, {v(BV+16*i+4*j,4)}, {v(ACC+4*i,4)}')
            if ss == 10:
                assert not prep
                for j in range(4):
                    A(f'  v_mfma_f32_16x16x16_bf16 {v(ACC+4*i,4)}, {v(AK+2*j,2)}, {v(BV+16*i+4*j,2)}, {v(ACC+4*i,4)}')
        A(f'  s_mov_b32 {s(sCUR)}, {s(sNXT)}')
        if u == U - 1:
            A(f'  s_cmp_ge_u32 {s(sF)}, {NF}')
            A('  s_cbranch_scc1 L_v_done')
            A(f'  s_cmp_eq_u32 {s(sHN)}, {s(sHC)}')
            A('  s_cbranch_scc1 L_v0')
            A(f'  s_mov_b32 {s(sHC)}, {s(sHN)}')
            flush()
            A(f'  v_add_u32 {v(VFL)}, {SEG}, {v(VFL)}')
            A(f'  v_add_u32 {v(VST)}, {SEG}, {v(VST)}')
            reset_state()
            A('  s_branch L_v0')
    assert 16 % (W * U) == 0
    for u in range(U): v_unit(u)
    A('L_v_done:')
    stamp()
    A(f'  v_mov_b32 {v(X0)}, {F_TAG}')
    A(f'  ds_read_b32 {v(M)}, {v(X0)}')
    A(f'  v_lshlrev_b32 {v(ALQ)}, 4, v0')
    A(f'  s_mul_i32 {s(sT)}, s3, {SEG}')
    A(f'  v_add_u32 {v(E)}, {s(sT)}, {v(ALQ)}')
    A(f'  s_add_u32 {s(sT)}, {s(sT)}, {LDS_ACC + W * 3072}')
    A(f'  v_lshrrev_b32 {v(AL)}, 1, {v(VBP)}')
    A(f'  v_add_u32 {v(E+1)}, {s(sT)}, {v(AL)}')
    A(f'  v_add_u32 {v(E+2)}, {W * SEG}, {v(E+1)}')
    flush()
    A('  s_waitcnt vmcnt(0)')

    C('---------------- wave w merges segments w and w+2 over the two waves, publishes them or keeps the owned one')
    A('  s_barrier')
    ST = RING; AC = (base + 3) // 4 * 4
    nv = max(nv, AC + 60)
    for j in range(2):
        A(f'  ds_read2_b64 {v(ST+4*j,4)}, {v(E+1+j)} offset1:4')
        for w in range(W):
            for i in range(3):
                A(f'  ds_read_b128 {v(AC+12*(W*j+w)+4*i,4)}, {v(E)} offset:{LDS_ACC + W * j * SEG + 3072*w + 1024*i}')
    A(f'  s_mov_b32 {s(sSEG)}, -1')
    A(f'  s_add_u32 {s(sG)}, {s(sRO)}, 1')
    GR = RING + 8; OWN = GR + 40
    gi = lambda b, x: b + 4 * (x // 3) + x % 3
    for j in range(2):
        G = GR + 20 * j; st = ST + 4 * j; ac = AC + 24 * j
        A(f'  s_waitcnt lgkmcnt({7 * (1 - j)})')
        A(f'  v_min_f32 {v(gi(G,12))}, {v(st)}, {v(st+2)}')
        for w in range(2): A(f'  v_sub_f32 {v(st+2*w)}, {v(gi(G,12))}, {v(st+2*w)}')
        for w in range(2): A(f'  v_exp_f32 {v(st+2*w)}, {v(st+2*w)}')
        for x in range(13):
            a0, a1, d_ = (st + 1, st + 3, gi(G, 13)) if x == 12 else (ac + x, ac + 12 + x, gi(G, x))
            A(f'  v_mul_f32 {v(d_)}, {v(st)}, {v(a0)}')
            A(f'  v_fma_f32 {v(d_)}, {v(st+2)}, {v(a1)}, {v(d_)}')
        A(f'  s_bfe_u32 {s(sT)}, {s(sREC+j)}, 0x20001')
        A(f'  s_cmp_eq_u32 {s(sT)}, {s(sG)}')
        A(f'  s_cbranch_scc1 L_own{j}')
        for g_ in range(5): A(f'  v_mov_b32 {v(G+4*g_+3)}, {v(M)}')
        A(f'  s_mul_i32 {s(sT)}, {s(sREC+j)}, {REC}')
        A(f'  s_add_u32 {s(sT)}, {s(sT)}, {WS_REC}')
        A(f'  s_add_u32 {s(sT+1)}, {s(sT)}, 4096')
        for g_ in range(5):
            A(f'  buffer_store_dwordx4 {v(G+4*g_,4)}, {v(ALQ)}, {s(SWS,4)}, {s(sT + g_ // 4)} offen offset:{1024 * (g_ % 4)} sc1')
        A(f'  s_branch L_pub{j}')
        A(f'L_own{j}:')
        for x in range(14): A(f'  v_mov_b32 {v(gi(OWN, x))}, {v(gi(G, x))}')
        A(f'  s_mov_b32 {s(sSEG)}, {s(sREC+j)}')
        A(f'L_pub{j}:')
    stamp()
    A(f'  s_cmp_eq_u32 {s(sSEG)}, -1')
    A('  s_cbranch_scc1 L_fin')
    C('gather the three foreign records of the owned head; a granule counts once it carries this launch\'s tag')
    FR = AC
    sR, sMISS = 84, 90
    A(f'  s_xor_b32 {s(sR)}, {s(sSEG)}, 1')
    A(f'  s_andn2_b32 {s(sR+2)}, {s(sSEG)}, 1')
    A(f'  s_xor_b32 {s(sR+2)}, {s(sR+2)}, 2')
    A(f'  s_add_u32 {s(sR+4)}, {s(sR+2)}, 1')
    for r in range(3):
        A(f'  s_mul_i32 {s(sR+2*r)}, {s(sR+2*r)}, {REC}')
        A(f'  s_add_u32 {s(sR+2*r)}, {s(sR+2*r)}, {WS_REC}')
        A(f'  s_add_u32 {s(sR+2*r+1)}, {s(sR+2*r)}, 4096')
    A(f'  s_mov_b32 {s(sF)}, 0')
    A(f'  s_mov_b32 {s(sMISS)}, 7')
    A('L_gather:')
    for r in range(3):
        A(f'  s_bitcmp0_b32 {s(sMISS)}, {r}')
        A(f'  s_cbranch_scc1 L_have{r}')
        for g_ in range(5):
            A(f'  buffer_load_dwordx4 {v(FR+20*r+4*g_,4)}, {v(ALQ)}, {s(SWS,4)}, {s(sR + 2*r + g_ // 4)} offen offset:{1024 * (g_ % 4)} sc1')
        A(f'L_have{r}:')
    A(f'  s_mov_b32 {s(sMISS)}, 0')
    A('  s_waitcnt vmcnt(0)')
    for r in range(3):
        tg = [FR + 20 * r + 4 * k + 3 for k in range(5)]
        A(f'  v_min3_u32 {v(X0)}, {v(tg[0])}, {v(tg[1])}, {v(tg[2])}')
        A(f'  v_max3_u32 {v(X1)}, {v(tg[0])}, {v(tg[1])}, {v(tg[2])}')
        A(f'  v_min3_u32 {v(X0)}, {v(X0)}, {v(tg[3])}, {v(tg[4])}')
        A(f'  v_max3_u32 {v(X1)}, {v(X1)}, {v(tg[3])}, {v(tg[4])}')
        A(f'  v_cmp_ne_u32 {s(sT,2)}, {v(M)}, {v(X0)}')
        A(f'  v_cmp_ne_u32 vcc, {v(M)}, {v(X1)}')
        A(f'  s_or_b64 {s(sT,2)}, {s(sT,2)}, vcc')
        A(f'  s_cselect_b32 {s(sT)}, {1 << r}, 0')
        A(f'  s_or_b32 {s(sMISS)}, {s(sMISS)}, {s(sT)}')
    A('  s_cbranch_scc0 L_gathered')
    A(f'  s_add_u32 {s(sF)}, {s(sF)}, 1')
    A(f'  s_cmp_lt_u32 {s(sF)}, 20000')
    A('  s_cbranch_scc1 L_gather')
    A('  s_endpgm')
    A('L_gathered:')
    stamp()
    C('(own + partner) + (neighbour pair): products are rounded separately, so the sum does not depend on who had which class')
    B4 = [OWN, FR, FR + 20, FR + 40]
    A(f'  v_min_f32 {v(X0)}, {v(gi(B4[0],12))}, {v(gi(B4[1],12))}')
    A(f'  v_min3_f32 {v(X0)}, {v(X0)}, {v(gi(B4[2],12))}, {v(gi(B4[3],12))}')
    for b in B4: A(f'  v_sub_f32 {v(gi(b,12))}, {v(X0)}, {v(gi(b,12))}')
    for b in B4: A(f'  v_exp_f32 {v(gi(b,12))}, {v(gi(b,12))}')
    A(f'  v_mul_u32_u24 {v(AL)}, 24, {v(VBP)}')
    A(f'  v_and_b32 {v(X0)}, 15, v0')
    A(f'  v_lshl_add_u32 {v(AL)}, {v(X0)}, 3, {v(AL)}')
    A(f'  s_lshr_b32 {s(sT)}, {s(sSEG)}, 2')
    A(f'  s_mul_i32 {s(sT)}, {s(sT)}, 1536')
    for x in [13] + list(range(12)):
        for b in B4: A(f'  v_mul_f32 {v(gi(b,x))}, {v(gi(b,12))}, {v(gi(b,x))}')
        A(f'  v_add_f32 {v(gi(B4[0],x))}, {v(gi(B4[0],x))}, {v(gi(B4[1],x))}')
        A(f'  v_add_f32 {v(gi(B4[2],x))}, {v(gi(B4[2],x))}, {v(gi(B4[3],x))}')
        A(f'  v_add_f32 {v(gi(B4[0],x))}, {v(gi(B4[0],x))}, {v(gi(B4[2],x))}')
        if x == 13: A(f'  v_rcp_f32 {v(X1)}, {v(gi(OWN,13))}')
        else: A(f'  v_mul_f32 {v(gi(OWN,x))}, {v(X1)}, {v(gi(OWN,x))}')
        if x % 4 == 3:
            i = x // 4
            A(f'  v_cvt_pk_bf16_f32 {v(ACC+2*i)}, {v(gi(OWN,4*i))}, {v(gi(OWN,4*i+1))}')
            A(f'  v_cvt_pk_bf16_f32 {v(ACC+2*i+1)}, {v(gi(OWN,4*i+2))}, {v(gi(OWN,4*i+3))}')
            A(f'  buffer_store_dwordx2 {v(ACC+2*i,2)}, {v(AL)}, {s(SQ,4)}, {s(sT)} offen offset:{128*i}')
    A('L_fin:')
    if tl:
        A(f'  s_mul_i32 {s(sT)}, s2, {W+1}')
        A(f'  s_add_u32 {s(sT)}, {s(sT)}, s3')
        A(f'  s_lshl_b32 {s(sT)}, {s(sT)}, 8')
        A(f'  s_add_u32 {s(sT)}, {s(sT)}, 0x10000')
        A(f'  v_lshl_add_u32 {v(E)}, v0, 2, {s(sT)}')
        A(f'  global_store_dword {v(E)}, {v(TL)}, {s(sWS,2)}')
    if stamps:
        A('  s_waitcnt vmcnt(0)')
        A(f'  s_memrealtime {s(sBIG,2)}')
        A(f'  s_getreg_b32 {s(sSM)}, hwreg(HW_REG_XCC_ID)')
        A(f'  s_mul_i32 {s(sT)}, s2, {W+1}')
        A(f'  s_add_u32 {s(sT)}, {s(sT)}, s3')
        A(f'  s_lshl_b32 {s(sT)}, {s(sT)}, 4')
        A('  s_waitcnt lgkmcnt(0)')
        A(f'  v_mov_b32 {v(RING)}, s6')
        A(f'  v_mov_b32 {v(RING+1)}, {s(sBIG)}')
        A(f'  v_mov_b32 {v(RING+2)}, {s(sSM)}')
        A(f'  v_mov_b32 {v(RING+3)}, {s(sDEC)}')
        A(f'  v_mov_b32 {v(X0)}, {s(sT)}')
        A('  s_mov_b64 exec, 1')
        A(f'  global_store_dwordx4 {v(X0)}, {v(RING,4)}, {s(sWS,2)}')
    A('L_end:')
    A('  s_endpgm')

    C('================= helper wave')
    A('L_helper:')
    if tl:
        A(f'  s_mov_b32 {s(sTL)}, 0')
        A(f'  v_mov_b32 {v(TL)}, 0')
    hA, hZ, hO, h1, h2, h3, hD = 1, 2, 3, 4, 5, 6, 8
    hP, hQ, hC, hX, hW, hU, hT = hD + 96, hD + 97, hD + 98, hD + 100, hD + 104, hD + 105, hD + 106
    assert hT + 1 < TL
    A(f'  v_lshlrev_b32 {v(hA)}, 2, v0')
    A(f'  v_add_u32 {v(hA)}, {LDS_F}, {v(hA)}')
    A(f'  v_mov_b32 {v(hZ)}, 0')
    A('  s_mov_b64 exec, 0xff')
    A(f'  ds_write_b32 {v(hA)}, {v(hZ)}')
    A('  s_mov_b64 exec, -1')
    A('  s_waitcnt lgkmcnt(0)')
    make_srds(4, 9)
    A('  s_barrier')
    sOF, sN0, sV0, sJ, sSF, sA, sB, sX, sCNT, sME, sPA, sFA, sFS, sQD = 44, 45, 48, 50, 52, 54, 56, 58, 59, 60, 61, 62, 63, 64
    sT0, sNON, sCP, sCA, sUP, sRET, sSUB = 72, 74, 76, 77, 78, 84, 86
    A(f'  s_memrealtime {s(sT0,2)}')
    def code_touch(tag):
        A(f'  s_lshr_b32 {s(sT)}, s2, 3')
        A(f'  s_cmp_lt_u32 {s(sT)}, (L_code_end - L_k) / 1024')
        A(f'  s_cbranch_scc0 L_h_ct{tag}')
        A(f'  global_load_dwordx4 {v(hX,4)}, {v(hC,2)}, off')
        A(f'L_h_ct{tag}:')
    C('workgroup i reads kilobyte i/8 of this kernel\'s code so that first instruction fetches hit L2')
    A(f'  s_getpc_b64 {s(sA,2)}')
    A('L_h_pc:')
    A(f'  s_add_u32 {s(sSUB)}, {s(sA)}, L_h_cp - L_h_pc')
    A(f'  s_addc_u32 {s(sSUB+1)}, {s(sA+1)}, 0')
    A(f'  s_sub_u32 {s(sA)}, {s(sA)}, L_h_pc - L_k')
    A(f'  s_subb_u32 {s(sA+1)}, {s(sA+1)}, 0')
    A(f'  s_and_b32 {s(sA)}, {s(sA)}, -16')
    A(f'  s_lshr_b32 {s(sT)}, s2, 3')
    A(f'  s_lshl_b32 {s(sT)}, {s(sT)}, 10')
    A(f'  v_lshl_add_u32 {v(hC)}, v0, 4, {s(sT)}')
    A(f'  v_mov_b32 {v(hC+1)}, {s(sA+1)}')
    A(f'  v_add_co_u32 {v(hC)}, vcc, {s(sA)}, {v(hC)}')
    A(f'  v_addc_co_u32 {v(hC+1)}, vcc, 0, {v(hC+1)}, vcc')
    if touch & 1: code_touch('a')
    A(f'  s_lshr_b32 {s(sT)}, s2, 4')
    A(f'  s_and_b32 {s(sT)}, {s(sT)}, 8')
    A(f'  s_and_b32 {s(sT+1)}, s2, 7')
    A(f'  s_add_u32 {s(sT)}, {s(sT)}, {s(sT+1)}')
    A(f'  s_lshl_b32 {s(sT)}, {s(sT)}, 4')
    A(f'  v_lshl_add_u32 {v(hP)}, v0, 3, {s(sT)}')
    A(f'  v_and_b32 {v(hQ)}, 31, v0')
    A(f'  v_lshlrev_b32 {v(hQ)}, 3, {v(hQ)}')
    A(f'  v_and_b32 {v(hW)}, 1, v0')
    A(f'  v_lshlrev_b32 {v(hW)}, 2, {v(hW)}')
    A(f'  v_add_u32 {v(hW)}, {F_PRG}, {v(hW)}')
    A(f'  v_mov_b32 {v(hU)}, 0')
    A(f'  v_lshlrev_b32 {v(hO)}, 4, v0')
    A(f'  s_mov_b32 {s(sCP)}, {cp0}')
    A(f'  s_mov_b32 {s(sCA)}, {WS_CP}')
    def wait_progress(tag, lim, slp):
        A(f'L_h_prog{tag}:')
        A(f'  s_sleep {slp}')
        A(f'  ds_read_b32 {v(hD)}, {v(hW)}')
        A('  s_waitcnt lgkmcnt(0)')
        A(f'  v_cmp_gt_u32 vcc, {lim}, {v(hD)}')
        A('  s_cmp_lg_u32 vcc_lo, 0')
        A(f'  s_cbranch_scc1 L_h_prog{tag}')
    def lds_set(addr, val):
        A(f'  v_mov_b32 {v(hA)}, {addr}')
        A(f'  v_mov_b32 {v(h2)}, {val}')
        A(f'  ds_write_b32 {v(hA)}, {v(h2)}')
    C('vote word in d_debug: six 6-bit tallies (class near die 0 in even pages, per slab of qk and qv), four 4-bit tallies')
    C(f'(die of role 0 per wg&3) and the voter count in the top byte; {7 * NV} workgroups vote')
    A(f'  s_getreg_b32 {s(sJ)}, hwreg(HW_REG_XCC_ID)')
    A(f'  s_bfe_u32 {s(sJ)}, {s(sJ)}, 0x10002')
    A(f'  s_bfe_u32 {s(sSF)}, s2, 0x30003')
    A(f'  s_cmp_eq_u32 {s(sSF)}, 7')
    A('  s_cbranch_scc1 L_h_voted')
    A(f'  s_lshr_b32 {s(sT)}, s2, 6')
    A(f'  s_xor_b32 {s(sT)}, {s(sT)}, s2')
    A(f'  s_and_b32 {s(sT)}, {s(sT)}, {32 // NV - 1}')
    A('  s_cbranch_scc1 L_h_voted')
    A(f'  s_cmp_eq_u32 {s(sSF)}, 6')
    A('  s_cbranch_scc0 L_h_probe')
    A(f'  s_xor_b32 {s(sV0)}, {s(sJ)}, {s(sRO)}')
    A(f'  s_and_b32 {s(sSF)}, s2, 3')
    A(f'  s_lshl2_add_u32 {s(sSF)}, {s(sSF)}, 36')
    A('  s_branch L_h_vote')
    A('L_h_probe:')
    A(f'  s_cmp_ge_u32 {s(sSF)}, 3')
    A(f'  s_cselect_b32 {s(SI)}, {s(SV)}, {s(SK)}')
    A(f'  s_cselect_b32 {s(SI+1)}, {s(SV+1)}, {s(SK+1)}')
    A(f'  s_cselect_b32 {s(sT)}, 3, 0')
    A(f'  s_sub_u32 {s(sT)}, {s(sSF)}, {s(sT)}')
    A(f'  s_lshl_b32 {s(sT)}, {s(sT)}, 28')
    A(f'  s_add_u32 {s(sOF)}, {s(sPB)}, {s(sRO)}')
    A(f'  s_lshl_b32 {s(sOF)}, {s(sOF)}, 16')
    A(f'  s_add_u32 {s(sOF)}, {s(sOF)}, {s(sT)}')
    A(f'  s_add_u32 {s(sOF)}, {s(sOF)}, 0x1c0000')
    A(f'  s_mul_i32 {s(sT)}, s2, 0x2a95')
    A(f'  s_and_b32 {s(sT)}, {s(sT)}, 0x7f80')
    A(f'  s_add_u32 {s(sOF)}, {s(sOF)}, {s(sT)}')
    A(f'  s_add_u32 {s(sT)}, {s(sOF)}, 0x8000')
    A(f'  s_buffer_load_dword {s(sX)}, {s(SI,4)}, {s(sT)}')
    A(f'  s_mov_b32 {s(sN0)}, -1')
    A(f'  s_mov_b32 {s(sN0+1)}, -1')
    A(f'  s_mul_i32 {s(sSF)}, {s(sSF)}, 6')
    wait_progress('p', 1, 2)
    for k in range(NS):
        for c in ((0, 1) if k % 2 == 0 else (1, 0)):
            o = (((k & 1) << 14) | ((k >> 1 & 1) << 12) | ((k * 0x380) & 0xfff)) ^ (c << 13)
            A(f'  s_xor_b32 {s(sT)}, {s(sOF)}, {o}')
            A(f'  s_memtime {s(sA,2)}')
            A('  s_waitcnt lgkmcnt(0)')
            A(f'  s_buffer_load_dword {s(sX)}, {s(SI,4)}, {s(sT)}')
            A('  s_waitcnt lgkmcnt(0)')
            A(f'  s_memtime {s(sB,2)}')
            A('  s_waitcnt lgkmcnt(0)')
            A(f'  s_sub_u32 {s(sB)}, {s(sB)}, {s(sA)}')
            A(f'  s_min_u32 {s(sN0+c)}, {s(sN0+c)}, {s(sB)}')
    A(f'  s_cmp_lt_u32 {s(sN0+1)}, {s(sN0)}')
    A(f'  s_cselect_b32 {s(sV0)}, 1, 0')
    A(f'  s_lshr_b32 {s(sT)}, {s(sOF)}, 13')
    A(f'  s_xor_b32 {s(sT)}, {s(sT)}, s2')
    A(f'  s_xor_b32 {s(sT)}, {s(sT)}, {s(sJ)}')
    A(f'  s_and_b32 {s(sT)}, {s(sT)}, 1')
    A(f'  s_xor_b32 {s(sV0)}, {s(sV0)}, {s(sT)}')
    A('L_h_vote:')
    A(f'  s_mov_b32 {s(sV0+1)}, 0')
    A(f'  s_lshl_b64 {s(sV0,2)}, {s(sV0,2)}, {s(sSF)}')
    A(f'  s_or_b32 {s(sV0+1)}, {s(sV0+1)}, 0x1000000')
    A(f'  s_atomic_add_x2 {s(sV0,2)}, {s(sDBG,2)}, 0')
    A('L_h_voted:')
    A('  s_waitcnt lgkmcnt(0)')
    C('launch nonce (tells this launch\'s hand-offs in ws from older contents)')
    A('  s_cmp_lg_u32 s2, 56')
    A('  s_cbranch_scc1 L_h_nonce')
    A(f'  s_lshl_b64 {s(sA,2)}, {s(sT0,2)}, 2')
    A(f'  s_atomic_add_x2 {s(sA,2)}, {s(sDBG,2)}, 8')
    A('  s_waitcnt lgkmcnt(0)')
    A('L_h_nonce:')
    stamp()
    def checkpoints(upto):
        A(f'  s_mov_b32 {s(sUP)}, {min(upto, last) - dly}')
        A(f'  s_swappc_b64 {s(sRET,2)}, {s(sSUB,2)}')
    def bounded(label, n):
        A(f'  s_add_u32 {s(sCNT)}, {s(sCNT)}, 1')
        A(f'  s_cmp_gt_u32 {s(sCNT)}, {n}')
        A(f'  s_cbranch_scc1 {label}')
    wait_progress('v', NWU - W, 8)
    A(f'  s_load_dwordx2 {s(sV0,2)}, {s(sDBG,2)}, 0')
    A(f'  s_mov_b32 {s(sCNT)}, 0')
    A('L_h_votes:')
    A('  s_waitcnt lgkmcnt(0)')
    A(f'  s_lshr_b32 {s(sT)}, {s(sV0+1)}, 24')
    A(f'  s_cmp_eq_u32 {s(sT)}, {7 * NV}')
    A('  s_cbranch_scc1 L_h_votes_done')
    bounded('L_h_votes_done', 2000)
    A('  s_sleep 64')
    A(f'  s_mov_b64 {s(sV0,2)}, 0')
    A(f'  s_atomic_or_x2 {s(sV0,2)}, {s(sDBG,2)}, 0 glc')
    A('  s_branch L_h_votes')
    A('L_h_votes_done:')
    A(f'  s_mov_b32 {s(sDEC)}, 0x80')
    for j in range(6):
        A(f'  s_bfe_u64 {s(sA,2)}, {s(sV0,2)}, {hex(0x60000 | (6 * j))}')
        A(f'  s_cmp_gt_u32 {s(sA)}, {NV // 2}')
        A(f'  s_cselect_b32 {s(sB)}, {1 << j}, 0')
        A(f'  s_or_b32 {s(sDEC)}, {s(sDEC)}, {s(sB)}')
    if force >= 0: A(f'  s_mov_b32 {s(sDEC)}, {0x80 | force}')
    A(f'  s_and_b32 {s(sT)}, s2, 3')
    A(f'  s_lshl2_add_u32 {s(sT)}, {s(sT)}, {4 + (NV // 4).bit_length() - 1}')
    A(f'  s_lshr_b32 {s(sA)}, {s(sV0+1)}, {s(sT)}')
    A(f'  s_xor_b32 {s(sA)}, {s(sA)}, s2')
    A(f'  s_xor_b32 {s(sA)}, {s(sA)}, {s(sRO)}')
    A(f'  s_and_b32 {s(sA)}, {s(sA)}, 1')
    A(f'  s_mul_i32 {s(sA)}, {s(sA)}, 63')
    A(f'  s_xor_b32 {s(sDEC)}, {s(sDEC)}, {s(sA)}')
    lds_set(F_DEC, s(sDEC))
    stamp()
    A(f'  s_load_dwordx2 {s(sNON,2)}, {s(sDBG,2)}, 8')
    A(f'  s_mov_b32 {s(sCNT)}, 0')
    A('L_h_getnonce:')
    A('  s_waitcnt lgkmcnt(0)')
    A(f'  s_cmp_lg_u64 {s(sNON,2)}, 0')
    A('  s_cbranch_scc1 L_h_gotnonce')
    bounded('L_h_gotnonce', 2000)
    A('  s_sleep 64')
    A(f'  s_atomic_or_x2 {s(sNON,2)}, {s(sDBG,2)}, 8 glc')
    A('  s_branch L_h_getnonce')
    A('L_h_gotnonce:')
    A(f'  s_lshr_b64 {s(sA,2)}, {s(sNON,2)}, 2')
    lds_set(F_TAG, s(sA))
    C('logit swap: flag word per workgroup; image q = 2*pair + role keeps kilobyte k at')
    C('region(q>>5) + (k<<15) + ((q&31 ^ comp(k)) << 10), which stays inside four memory channels')
    A(f'  s_lshl_b32 {s(sFA)}, s2, 8')
    A(f'  s_add_u32 {s(sFA)}, {s(sFA)}, {WS_FLAG}')
    A(f'  s_xor_b32 {s(sFS)}, {s(sFA)}, 1024')
    A(f'  s_lshr_b32 {s(sX)}, {s(sDEC)}, 3')
    A(f'  s_xor_b32 {s(sX)}, {s(sX)}, {s(sDEC)}')
    A(f'  s_lshr_b32 {s(sT)}, {s(sPB)}, 4')
    A(f'  s_lshr_b32 {s(sOF)}, {s(sT)}, 5')
    A(f'  s_lshl_b32 {s(sOF)}, {s(sOF)}, 21')
    A(f'  s_add_u32 {s(sOF)}, {s(sOF)}, {WS_IMG}')
    A(f'  s_and_b32 {s(sQD)}, {s(sT)}, 31')
    A(f'  s_add_u32 {s(sT)}, {s(sQD)}, {s(sRO)}')
    A(f'  s_lshl_b32 {s(sT)}, {s(sT)}, 10')
    A(f'  s_add_u32 {s(sME)}, {s(sOF)}, {s(sT)}')
    A(f'  s_xor_b32 {s(sPA)}, {s(sME)}, 1024')
    def pxor(k):
        h = k >> 2
        c = (h & 3) ^ (((h >> 2) & 1) * 17) ^ (((h >> 3) & 1) * 4)
        return (k << 15) | (c << 10)
    NW = NWU * 384 // 1024
    def reg(k): return hD + 4 * (k % 24)
    def export(lo, hi):
        for k in range(lo, hi): A(f'  ds_read_b128 {v(reg(k),4)}, {v(hO)} offset:{1024*k}')
        A('  s_waitcnt lgkmcnt(0)')
        for k in range(lo, hi):
            A(f'  s_xor_b32 {s(sT)}, {s(sME)}, {pxor(k)}')
            A(f'  buffer_store_dwordx4 {v(reg(k),4)}, {v(hO)}, {s(SWS,4)}, {s(sT)} offen sc1')
    def imp(lo, hi):
        for k in range(lo, hi):
            A(f'  s_xor_b32 {s(sT)}, {s(sPA)}, {pxor(k)}')
            A(f'  buffer_load_dwordx4 {v(reg(k),4)}, {v(hO)}, {s(SWS,4)}, {s(sT)} offen sc1')
        A('  s_waitcnt vmcnt(0)')
        for k in range(lo, hi): A(f'  ds_write_b128 {v(hO)}, {v(reg(k),4)} offset:{1024*k}')
    def cond(bit, tag, fn):
        A(f'  s_bitcmp0_b32 {s(sX)}, {bit}')
        A(f'  s_cbranch_scc1 L_h_{tag}')
        fn()
        A(f'L_h_{tag}:')
    def handshake(tag, level):
        A(f'  s_add_u32 {s(sA)}, {s(sNON)}, {level}')
        A(f'  v_mov_b32 {v(h2)}, 0')
        A('  s_waitcnt vmcnt(0)')
        A(f'  v_mov_b32 {v(hD)}, {s(sA)}')
        A(f'  v_mov_b32 {v(hD+1)}, {s(sNON+1)}')
        A('  s_mov_b64 exec, 1')
        A(f'  buffer_store_dwordx2 {v(hD,2)}, {v(h2)}, {s(SWS,4)}, {s(sFA)} offen sc1')
        A(f'  s_mov_b32 {s(sCNT)}, 0')
        A(f'L_h_flag{tag}:')
        A(f'  buffer_load_dwordx2 {v(hD+2,2)}, {v(h2)}, {s(SWS,4)}, {s(sFS)} offen sc1')
        A('  s_waitcnt vmcnt(0)')
        A(f'  v_readfirstlane_b32 {s(sB)}, {v(hD+2)}')
        A(f'  v_readfirstlane_b32 {s(sB+1)}, {v(hD+3)}')
        A(f'  s_sub_u32 {s(sB)}, {s(sB)}, {s(sA)}')
        A(f'  s_xor_b32 {s(sB+1)}, {s(sB+1)}, {s(sNON+1)}')
        A(f'  s_lshr_b32 {s(sB)}, {s(sB)}, 1')
        A(f'  s_or_b32 {s(sB)}, {s(sB)}, {s(sB+1)}')
        A(f'  s_cbranch_scc0 L_h_flag{tag}_done')
        bounded(f'L_h_flag{tag}_done', 10000)
        A('  s_sleep 8')
        A(f'  s_branch L_h_flag{tag}')
        A(f'L_h_flag{tag}_done:')
        A('  s_mov_b64 exec, -1')
    checkpoints(64)
    wait_progress('a', 64, 4)
    stamp()
    export(0, NW)
    cond(0, 'e0', lambda: export(NW, 12))
    cond(1, 'e1', lambda: export(12, 24))
    handshake('a', 1)
    stamp()
    C('first units: slot f comes from the image of role f&1, slot (f&~1) + V class of the first page')
    A(f'  s_bfe_u32 {s(sA)}, {s(sDEC)}, 0x10003')
    A(f'  s_mul_i32 {s(sA)}, {s(sA)}, 384')
    A(f'  v_lshrrev_b32 {v(h1)}, 3, v0')
    for k in range(NW):
        A(f'  v_add_u32 {v(h2)}, {8 * k}, {v(h1)}')
        A(f'  v_mul_u32_u24 {v(h2)}, 21846, {v(h2)}')
        A(f'  v_bfe_u32 {v(h2)}, {v(h2)}, 16, 1')
        A(f'  v_mul_u32_u24 {v(h3)}, 384, {v(h2)}')
        A(f'  v_sub_u32 {v(h3)}, {v(hO)}, {v(h3)}')
        A(f'  v_add_u32 {v(h3)}, {s(sA)}, {v(h3)}')
        A(f'  v_add_u32 {v(h3)}, {1024 * k}, {v(h3)}')
        A(f'  v_add_u32 {v(h2)}, {s(sQD)}, {v(h2)}')
        A(f'  v_lshrrev_b32 {v(hZ)}, 12, {v(h3)}')
        A(f'  v_xor_b32 {v(h2)}, {v(h2)}, {v(hZ)}')
        A(f'  v_lshrrev_b32 {v(hZ)}, 10, {v(h3)}')
        A(f'  v_lshl_add_u32 {v(h2)}, {v(hZ)}, 5, {v(h2)}')
        A(f'  v_and_b32 {v(h3)}, 1023, {v(h3)}')
        A(f'  v_lshl_add_u32 {v(h2)}, {v(h2)}, 10, {v(h3)}')
        A(f'  buffer_load_dwordx4 {v(reg(k),4)}, {v(h2)}, {s(SWS,4)}, {s(sOF)} offen sc1')
    cond(0, 'i0', lambda: imp(NW, 12))
    cond(1, 'i1', lambda: imp(12, 24))
    A('  s_waitcnt vmcnt(0)')
    for k in range(NW): A(f'  ds_write_b128 {v(hO)}, {v(reg(k),4)} offset:{1024*k}')
    stamp()
    A(f'  s_bitcmp0_b32 {s(sX)}, 2')
    A(f'  s_cselect_b32 {s(sT)}, 255, 64')
    lds_set(F_IMP, s(sT))
    checkpoints(NF)
    if touch & 2: code_touch('b')
    A(f'  s_bitcmp0_b32 {s(sX)}, 2')
    A('  s_cbranch_scc1 L_h_all')
    wait_progress('b', NF, 4)
    export(24, 36)
    handshake('b', 2)
    imp(24, 36)
    lds_set(F_IMP, 255)
    A('L_h_all:')
    if touch & 4:
        checkpoints(176)
        code_touch('c')
    checkpoints(999)
    C('the last unit runs with the deep queue')
    wait_progress('t', 2 * NF - 2 * W, 4)
    A(f'  v_mov_b32 {v(hD)}, 255')
    A(f'  ds_write_b32 {v(hW)}, {v(hD)} offset:{F_BST - F_PRG}')
    A('  s_waitcnt lgkmcnt(0)')
    A('  s_branch L_fin' if stamps or tl else '  s_endpgm')

    C(f'check points every {step} units up to unit s{sUP}: lane w (mod 2) follows wave w. Arrival times of 16 workgroups go to ws;')
    C(f'{dly} units later the entries stamped inside this launch give the mean, and a late wave gets a catch-up limit in LDS')
    A('L_h_cp:')
    A(f'  s_cmp_gt_u32 {s(sCP)}, {s(sUP)}')
    A('  s_cbranch_scc0 L_h_cpgo')
    A(f'  s_setpc_b64 {s(sRET,2)}')
    A('L_h_cpgo:')
    A(f'  ds_read_b32 {v(hD)}, {v(hW)}')
    A(f'  s_memrealtime {s(sA,2)}')
    A('  s_waitcnt lgkmcnt(0)')
    A(f'  v_mov_b32 {v(hT)}, {s(sA)}')
    A(f'  v_mov_b32 {v(hT+1)}, {s(sA+1)}')
    A(f'  v_cmp_gt_u32 vcc, {s(sCP)}, {v(hD)}')
    A('  s_cmp_eq_u32 vcc_lo, 0')
    A('  s_cbranch_scc1 L_h_cpnext')
    A('L_h_cpm:')
    A('  s_sleep 2')
    A(f'  ds_read_b32 {v(hD)}, {v(hW)}')
    A(f'  s_memrealtime {s(sA,2)}')
    A('  s_waitcnt lgkmcnt(0)')
    A(f'  v_mov_b32 {v(hD+2)}, {s(sA)}')
    A(f'  v_mov_b32 {v(hD+3)}, {s(sA+1)}')
    A(f'  v_cndmask_b32 {v(hT)}, {v(hT)}, {v(hD+2)}, vcc')
    A(f'  v_cndmask_b32 {v(hT+1)}, {v(hT+1)}, {v(hD+3)}, vcc')
    A(f'  v_cmp_gt_u32 vcc, {s(sCP)}, {v(hD)}')
    A('  s_cmp_lg_u32 vcc_lo, 0')
    A('  s_cbranch_scc1 L_h_cpm')
    A(f'  s_and_b32 {s(sT)}, s2, 0x78')
    A('  s_cbranch_scc1 L_h_np')
    A('  s_mov_b64 exec, 3')
    A(f'  buffer_store_dwordx2 {v(hT,2)}, {v(hP)}, {s(SWS,4)}, {s(sCA)} offen sc1')
    A('  s_mov_b64 exec, -1')
    A('L_h_np:')
    A(f'  s_add_u32 {s(sJ)}, {s(sCP)}, {dly}')
    wait_progress('c', s(sJ), 4)
    A(f'  buffer_load_dwordx2 {v(hD,2)}, {v(hQ)}, {s(SWS,4)}, {s(sCA)} offen')
    A(f'  v_mov_b32 {v(hD+2)}, {s(sT0+1)}')
    A('  s_waitcnt vmcnt(0)')
    A(f'  ds_read_b32 {v(hD+4)}, {v(hW)}')
    A(f'  v_subrev_co_u32 {v(hD)}, vcc, {s(sT0)}, {v(hD)}')
    A(f'  v_subb_co_u32 {v(hD+1)}, vcc, {v(hD+1)}, {v(hD+2)}, vcc')
    A(f'  v_lshrrev_b32 {v(hD+2)}, 24, {v(hD)}')
    A(f'  v_or_b32 {v(hD+1)}, {v(hD+1)}, {v(hD+2)}')
    A(f'  v_cmp_eq_u32 vcc, 0, {v(hD+1)}')
    A(f'  v_cndmask_b32 {v(hD)}, 0, {v(hD)}, vcc')
    A(f'  s_bcnt1_i32_b32 {s(sB)}, vcc_lo')
    for r in (8, 4, 2, 1):
        A(f'  v_add_u32_dpp {v(hD)}, {v(hD)}, {v(hD)} row_ror:{r} row_mask:0xf bank_mask:0xf')
    A(f'  v_readlane_b32 {s(sA)}, {v(hD)}, 0')
    A(f'  v_readlane_b32 {s(sT)}, {v(hD)}, 16')
    A(f'  v_subrev_u32 {v(hD)}, {s(sT0)}, {v(hT)}')
    A(f'  v_mul_lo_u32 {v(hD)}, {v(hD)}, {s(sB)}')
    A(f'  s_add_u32 {s(sA)}, {s(sA)}, {s(sT)}')
    A(f'  s_max_u32 {s(sB)}, {s(sB)}, 1')
    A(f'  v_subrev_u32 {v(hD)}, {s(sA)}, {v(hD)}')
    A(f'  v_cvt_f32_u32 {v(hD+1)}, {s(sB)}')
    A(f'  v_cvt_f32_i32 {v(hD)}, {v(hD)}')
    A(f'  v_rcp_f32 {v(hD+1)}, {v(hD+1)}')
    A(f'  v_mul_f32 {v(hD)}, {v(hD)}, {v(hD+1)}')
    A(f'  v_cvt_i32_f32 {v(hD)}, {v(hD)}')
    A('  s_waitcnt lgkmcnt(0)')
    A(f'  v_add_u32 {v(hD+4)}, {W}, {v(hD+4)}')
    C('subtract what the running catch-up gains between the check point and the first unit that sees the new limit')
    A(f'  v_min_u32 {v(hD+1)}, {v(hU)}, {v(hD+4)}')
    A(f'  v_subrev_u32 {v(hD+1)}, {s(sCP)}, {v(hD+1)}')
    A(f'  v_max_i32 {v(hD+1)}, 0, {v(hD+1)}')
    A(f'  v_lshrrev_b32 {v(hD+1)}, 1, {v(hD+1)}')
    A(f'  v_mul_u32_u24 {v(hD+1)}, {gain}, {v(hD+1)}')
    A(f'  v_sub_u32 {v(hD)}, {v(hD)}, {v(hD+1)}')
    A(f'  v_add_u32 {v(hD+1)}, {gain // 2 - dead}, {v(hD)}')
    A(f'  v_max_i32 {v(hD+1)}, 0, {v(hD+1)}')
    A(f'  v_min_i32 {v(hD+1)}, 2000, {v(hD+1)}')
    A(f'  v_mul_u32_u24 {v(hD+1)}, {65536 // gain}, {v(hD+1)}')
    A(f'  v_lshrrev_b32 {v(hD+1)}, 16, {v(hD+1)}')
    A(f'  v_cmp_ne_u32 vcc, 0, {v(hD+1)}')
    A(f'  v_lshl_add_u32 {v(hD+1)}, {v(hD+1)}, 1, {v(hD+4)}')
    A(f'  v_cndmask_b32 {v(hU)}, 0, {v(hD+1)}, vcc')
    A(f'  ds_write_b32 {v(hW)}, {v(hU)} offset:{F_BST - F_PRG}')
    A('L_h_cpnext:')
    A(f'  s_add_u32 {s(sCP)}, {s(sCP)}, {step}')
    A(f'  s_add_u32 {s(sCA)}, {s(sCA)}, 256')
    A('  s_branch L_h_cp')
    A('L_code_end:')
    body = pad(L)

    nva = (nv + 7) // 8 * 8
    out = HDR + f'; @launch grid=(256,1,1) block=({64*(W+1)},1,1) lds={lds}\n' + NOTES
    out += '.amdgcn_target "amdgcn-amd-amdhsa--gfx950"\n.text\n'
    out += f'.globl {NAME}\n.p2align 8\n.type {NAME},@function\n'
    out += '\n'.join(body) + '\n'
    out += f'''.section .rodata,"a"
.p2align 6
.amdhsa_kernel {NAME}
  .amdhsa_next_free_vgpr {nva}
  .amdhsa_next_free_sgpr 102
  .amdhsa_accum_offset {nva}
  .amdhsa_group_segment_fixed_size 0
  .amdhsa_kernarg_size 80
  .amdhsa_user_sgpr_count 2
  .amdhsa_user_sgpr_kernarg_segment_ptr 1
  .amdhsa_system_sgpr_workgroup_id_x 1
  .amdhsa_float_denorm_mode_32 3
.end_amdhsa_kernel
'''
    return out

if __name__ == '__main__':
    kw = {}
    for x in sys.argv[2:]:
        k, val = x.split('=')
        kw[k] = int(val)
    open(sys.argv[1], 'w').write(gen(**kw))
```

```python
import sys, os
sys.path.insert(0, os.path.dirname(os.path.abspath(__file__)))
from asmlib import pad
NAME = 'standalone__kv_cache_quant_int4_int2_kv_with_per_channel_or_per_token_scales__sampling_kernel'
TOTAL = 256 * 4096 * 768
REC = 5120
WS_REC = 1 << 20
WS_CP = 7 << 20
WS_FLAG = (7 << 20) + (1 << 16)
WS_IMG = 8 << 20
WS_END = WS_IMG + (16 << 20)
IMG = 96 * 384
OOB = 0x7ffffff0
HDR = open(os.path.join(os.path.dirname(os.path.abspath(__file__)), 'header.txt')).read()
assert all(((32 * c + 1) * 21846) >> 16 == (32 * c + 1) // 3 for c in range(25))
assert all((c * 43) >> 8 == c // 6 for c in range(24))
assert all((x * 21846) >> 16 == x // 3 for x in range(100))

NOTES = """\
"""

class Alloc:
    def __init__(self, start): self.n = start
    def __call__(self, k, align=1):
        self.n = (self.n + align - 1) // align * align
        r = self.n; self.n += k
        return r

def v(r, k=1): return f'v{r}' if k == 1 else f'v[{r}:{r+k-1}]'
def s(r, k=1): return f's{r}' if k == 1 else f's[{r}:{r+k-1}]'

def merge(main, side):
    out = []; side = list(side)
    for m in main:
        out.append(m)
        if side: out.append(side.pop(0))
    return out + side

def gen(DN=10, D=15, bev=3, NWU=8, NS=3, NV=8, pfw=16, PSK=17, gain=28, dly=4, dead=0, cp0=12, step=8, last=186,
        force=-1, stamps=0, tl=0, touch=1, tlb=0):
    W, U, NST, NF, PSV = 2, 2, 33, 96, 3
    R = 11 * U
    SW = NST - D
    assert DN <= D < R and NWU % 8 == 0 and PSV < SW and 3 <= PSK < SW
    L = []
    A = L.append
    C = lambda t: L.append('; ' + t)
    va = Alloc(1)
    DUP = va(1); DOWN = va(1); DCON = va(1)
    RING = va(4 * R, 4); VO = va(4)
    ICV = va(1); TU = va(1); VVS = va(1); VL1 = va(1); VL2 = va(1); VBP = va(1); VFL = va(1); VST = va(1); VPR = va(1)
    VOOB = va(1); VBS = va(1)
    T = va(4, 2); ZN = va(1); SN = va(1); ZC = va(1); SC = va(1); ZS = va(2, 2)
    LG = va(6, 4); ACC = va(12, 4); M = va(1); NB = va(2, 2); LS = NB + 1
    X0 = va(2, 2); X1 = X0 + 1; AL = va(1); ALQ = va(1); E = va(11); PP = va(6); TL = va(1)
    base = va.n
    QB = va(6, 4); QN = va(6, 2); KSR = va(6, 2); KZR = va(6, 2); KS = va(12, 2); KZ = va(12, 2); KA = va(6, 4); SD = va(4, 4); S = va(2, 2)
    IUP = va(1); IOWN = va(1); ICON = va(1); VKS0 = va(1); VKS = va(1); VQ = va(1); VNI = va(1)
    kend = va.n
    va.n = base
    AJ = va(16, 4); AK = va(8, 2); TV = va(12, 2); BV = va(48, 4)
    nv = max(va.n, kend)
    sRO, sPB = 4, 5
    SK, SV, SI, SKS, SKZ, SVS, SVZ, SQ, SWS = 8, 12, 16, 20, 24, 28, 32, 36, 40
    PT = 44
    sREC, sOUT, sL0, sL10, sM0, sM10, sLOW = 44, 46, 48, 50, 52, 54, 56
    sCUR, sNXT, sSO, s768, sF, sMSK, sL2E, sTL, sSCL, sT = 60, 61, 62, 63, 64, 65, 66, 67, 68, 70
    sMJ = 72
    sDBG, sWS = 80, 82
    sQ3, sC, sQC, sCC, sHC, sHN, sDIV, sSH = 84, 85, 86, 87, 88, 89, 90, 91
    sBIG, sSM = 92, 94
    sDEC, sG, sGATE, sSEG = 96, 97, 99, 100
    SEG = W * 3072 + W * 32
    LDS_ACC = IMG
    LDS_F = LDS_ACC + 4 * SEG
    F_DEC, F_IMP, F_TAG, F_PRG, F_BST = LDS_F, LDS_F + 4, LDS_F + 8, LDS_F + 16, LDS_F + 24
    lds = 62464
    assert LDS_F + 32 <= lds

    A(f'{NAME}:')
    A('  s_cmp_ge_u32 s2, 256')
    A('  s_cbranch_scc1 L_end')
    A(f'  s_load_dwordx16 {s(PT,16)}, s[0:1], 0')
    A(f'  s_load_dwordx4 {s(sDBG,4)}, s[0:1], 64')
    if stamps: A('  s_memrealtime s[6:7]')
    C('s3 = wave, s4 = role in the pair, s5 = 32 * pair (first block of the first page)')
    A('  v_lshrrev_b32 v1, 6, v0')
    A('  v_and_b32 v0, 63, v0')
    A('  v_readfirstlane_b32 s3, v1')
    A(f'  s_bfe_u32 {s(sRO)}, s2, 0x10002')
    A(f'  s_lshr_b32 {s(sPB)}, s2, 3')
    A(f'  s_lshl_b32 {s(sPB)}, {s(sPB)}, 2')
    A(f'  s_and_b32 {s(sT)}, s2, 3')
    A(f'  s_add_u32 {s(sPB)}, {s(sPB)}, {s(sT)}')
    A(f'  s_lshl_b32 {s(sPB)}, {s(sPB)}, 5')
    SRDS = ((SKS, PT + 6, 256 * 24576), (SKZ, PT + 8, 256 * 24576), (SVS, PT + 10, 256 * 8192), (SVZ, PT + 12, 256 * 8192),
            (SK, PT + 2, TOTAL), (SQ, PT, 256 * 1536), (SI, PT + 2, TOTAL), (SV, PT + 4, TOTAL), (SWS, sWS, WS_END))
    for srd, p, nb in SRDS:
        A(f'  s_mov_b32 {s(srd+2)}, {nb}')
        A(f'  s_mov_b32 {s(srd+3)}, 0x20000')
    def make_srds(lo, hi):
        for srd, p, nb in SRDS[lo:hi]:
            A(f'  s_mov_b32 {s(srd)}, {s(p)}')
            A(f'  s_and_b32 {s(srd+1)}, {s(p+1)}, 0xffff')
    A(f'  s_cmp_eq_u32 s3, {W}')
    A('  s_cbranch_scc1 L_helper')

    C('================= streaming waves')
    cls, a, g, n = T, T + 1, T + 2, T + 3
    A(f'  v_and_b32 {v(cls)}, 3, v0')
    A(f'  v_bfe_u32 {v(a)}, v0, 2, 2')
    A(f'  v_lshrrev_b32 {v(g)}, 4, v0')
    A(f'  v_and_b32 {v(n)}, 15, v0')
    def stream_consts(x, up, own, con, lanepart):
        A(f'  v_and_b32 {v(own)}, 2, {v(x)}')
        A(f'  v_lshlrev_b32 {v(up)}, 5, {v(own)}')
        A(f'  v_add_u32 {v(up)}, 129, {v(up)}')
        A(f'  v_and_b32 {v(X1)}, 1, {v(x)}')
        A(f'  v_lshl_add_u32 {v(own)}, {v(X1)}, 2, {v(own)}')
        A(f'  v_mul_u32_u24 {v(X1)}, {43 * 768}, {v(X1)}')
        A(f'  v_add_u32 {v(con)}, {v(lanepart)}, {v(X1)}')
        A(f'  v_subrev_u32 {v(con)}, {43 * 768}, {v(con)}')
    A(f'  v_lshlrev_b32 {v(X0)}, 4, {v(cls)}')
    A(f'  v_lshl_add_u32 {v(X0)}, {v(g)}, 6, {v(X0)}')
    A(f'  v_lshrrev_b32 {v(VKS0)}, 1, {v(X0)}')
    stream_consts(a, IUP, IOWN, ICON, X0)
    A(f'  v_mul_u32_u24 {v(X1)}, 384, {v(a)}')
    A(f'  v_add_u32 {v(VQ)}, {v(X1)}, {v(VKS0)}')
    A(f'  v_mov_b32 {v(VOOB)}, {OOB}')
    A(f'  s_mov_b32 {s(sDIV)}, 0xaaaaaaab')
    A(f'  s_mov_b32 {s(sSH)}, 0x492492')
    A(f'  s_movk_i32 {s(s768)}, 768')
    def slot(k): return RING + 4 * (k % R)
    def main_load(k, srd, so):
        ss, i = divmod(k % NST, 3)
        r, k0 = (0, 0) if ss == 0 else (1, 1) if ss <= 5 else (2, 6) if ss <= 9 else (3, 10)
        return f'  buffer_load_dwordx4 {v(slot(k),4)}, {v(VO+r)}, {s(srd,4)}, {s(so)} offen offset:{768*(ss-k0) + 256*i} nt'
    def kscale_loads():
        A(f'  s_mul_i32 {s(sSO)}, {s(sQ3)}, 1536')
        for i in range(3):
            A(f'  buffer_load_dwordx2 {v(KSR+2*i,2)}, {v(VKS)}, {s(SKS,4)}, {s(sSO)} offen offset:{128*i}')
            A(f'  buffer_load_dwordx2 {v(KZR+2*i,2)}, {v(VKS)}, {s(SKZ,4)}, {s(sSO)} offen offset:{128*i}')
    def vscale_loads():
        A(f'  s_lshl_b32 {s(sSO)}, {s(sQ3)}, 9')
        A(f'  v_lshl_add_u32 {v(VVS)}, {v(TU)}, 1, {v(ICV)}')
        A(f'  buffer_load_short_d16_hi {v(ZN)}, {v(VVS)}, {s(SVZ,4)}, {s(sSO)} offen')
        A(f'  buffer_load_short_d16_hi {v(SN)}, {v(VVS)}, {s(SVS,4)}, {s(sSO)} offen')
    def q_loads():
        A(f'  s_mul_i32 {s(sT)}, {s(sHN)}, 1536')
        for i in range(3): A(f'  buffer_load_dwordx2 {v(QN+2*i,2)}, {v(VQ)}, {s(SQ,4)}, {s(sT)} offen offset:{128*i}')
    def short_masks(own, m0, m10, low):
        A(f'  v_add_u32 {v(X0)}, {s(sC)}, {v(own)}')
        A(f'  v_lshrrev_b32 {v(X1)}, {v(X0)}, {s(sSH)}')
        A(f'  v_and_b32 {v(X1)}, 1, {v(X1)}')
        A(f'  v_cmp_eq_u32 {s(m10,2)}, 1, {v(X1)}')
        A(f'  s_and_b64 {s(m0,2)}, {s(m10,2)}, {s(low,2)}')
        A(f'  s_andn2_b64 {s(m10,2)}, {s(m10,2)}, {s(low,2)}')
    def map_unit(f, isv):
        A(f'  s_lshr_b32 {s(sT+1)}, {s(f)}, 5')
        A(f'  s_lshr_b32 {s(sC)}, {s(sDEC)}, {s(sT+1)}')
        if isv:
            A(f'  s_bfe_u32 {s(sC)}, {s(sC)}, 0x10003')
            A(f'  s_add_u32 {s(sT)}, {s(f)}, {s(sPB)}')
        else:
            A(f'  s_andn2_b32 {s(sT)}, {s(f)}, 1')
            A(f'  s_or_b32 {s(sT)}, {s(sT)}, {s(sRO)}')
            A(f'  s_cmp_lt_u32 {s(f)}, {NWU}')
            A(f'  s_cselect_b32 {s(sT)}, {s(sT)}, {s(f)}')
            A(f'  s_cselect_b32 {s(sC)}, {s(f)}, {s(sC)}')
            A(f'  s_and_b32 {s(sC)}, {s(sC)}, 1')
            A(f'  s_add_u32 {s(sT)}, {s(sT)}, {s(sPB)}')
        A(f'  s_mul_i32 {s(sT+1)}, {s(sT+1)}, {4096 - 32}')
        A(f'  s_add_u32 {s(sT)}, {s(sT)}, {s(sT+1)}')
        A(f'  s_mul_hi_u32 {s(sQ3)}, {s(sT)}, {s(sDIV)}')
        A(f'  s_lshr_b32 {s(sQ3)}, {s(sQ3)}, 1')
        A(f'  s_mul_i32 {s(sT+1)}, {s(sQ3)}, 3')
        A(f'  s_sub_u32 {s(sT)}, {s(sT)}, {s(sT+1)}')
        A(f'  s_lshl3_add_u32 {s(sC)}, {s(sT)}, {s(sC)}')
        A(f'  s_mul_i32 {s(sNXT)}, {s(sQ3)}, 196608')
        A(f'  s_lshr_b32 {s(sHN)}, {s(sQ3)}, 4')
        A(f'  s_lshl_b32 {s(sT)}, {s(sC)}, 5')
        A(f'  v_add_u32 {v(TU)}, {s(sT)}, {v(DUP if isv else IUP)}')
        A(f'  v_mul_u32_u24 {v(TU)}, 21846, {v(TU)}')
        A(f'  v_lshrrev_b32 {v(TU)}, 16, {v(TU)}')
        short_masks(DOWN if isv else IOWN, sM0, sM10, sLOW + 2 * isv)
        if not isv:
            A(f'  v_mul_u32_u24 {v(X0)}, 43, {v(X0)}')
            A(f'  v_lshrrev_b32 {v(X0)}, 8, {v(X0)}')
            A(f'  v_mul_u32_u24 {v(X0)}, 384, {v(X0)}')
            A(f'  v_add_u32 {v(VKS)}, {v(X0)}, {v(VKS0)}')
    def offsets(con):
        A(f'  v_mad_u32_u24 {v(VO)}, {v(TU)}, {s(s768)}, {v(con)}')
        A(f'  v_add_u32 {v(VO+1)}, 768, {v(VO)}')
        A(f'  v_add_u32 {v(VO+2)}, {6 * 768}, {v(VO)}')
        A(f'  v_add_u32 {v(VO+3)}, {10 * 768}, {v(VO)}')
        A(f'  v_cndmask_b32 {v(VO)}, {v(VO)}, {v(VOOB)}, {s(sM0,2)}')
        A(f'  v_cndmask_b32 {v(VO+3)}, {v(VO+3)}, {v(VOOB)}, {s(sM10,2)}')
    def stamp():
        if tl:
            A(f'  s_memrealtime {s(sT,2)}')
            A('  s_waitcnt lgkmcnt(0)')
            A(f'  s_min_u32 m0, {s(sTL)}, 63')
            A(f'  v_writelane_b32 {v(TL)}, {s(sT)}, m0')
            A(f'  s_add_u32 {s(sTL)}, {s(sTL)}, 1')
    def reset_state():
        for k in range(12): A(f'  v_mov_b32 {v(ACC+k)}, 0')
        A(f'  v_mov_b32 {v(M)}, 0xff800000')
        A(f'  v_mov_b32 {v(NB)}, 0x7f800000')
        A(f'  v_mov_b32 {v(LS)}, 0')
    A(f'  s_mov_b32 {s(sF)}, s3')
    A(f'  s_mov_b32 {s(sGATE)}, {NWU}')
    A(f'  s_mov_b32 {s(sDEC)}, 0')
    C('one bulk pass pulls the scale/zero arrays into the memory-side cache (1/512 per wave); later reads of them stay off DRAM')
    A(f'  v_lshlrev_b32 {v(ZC)}, 4, v0')
    sPK, sPV = sQC, sHC
    A(f'  s_lshl1_add_u32 {s(sT)}, s2, s3')
    A(f'  s_mul_i32 {s(sPV)}, {s(sT)}, {8192 // W}')
    A(f'  s_mul_i32 {s(sPK)}, {s(sT)}, {24576 // W}')
    line = lambda srd, so, k: f'  buffer_load_dwordx4 {v(ACC,4)}, {v(ZC)}, {s(srd,4)}, {s(so)} offen offset:{(k % 4) * 1024}'
    pfl = []
    for k in range(24 // W):
        if k % 4 == 0 and k: pfl.append(f'  s_add_u32 {s(sPK)}, {s(sPK)}, 4096')
        pfl += [line(SKS, sPK, k), line(SKZ, sPK, k)]
        if k < 8 // W: pfl += [line(SVS, sPV, k), line(SVZ, sPV, k)]
    nissued = [0]
    def issue_pf(cnt):
        while pfl and cnt > 0:
            x = pfl.pop(0)
            if 'buffer_load' in x:
                if nissued[0] >= pfw: A(f'  s_waitcnt vmcnt({pfw - 1})')
                nissued[0] += 1; cnt -= 1
            A(x)
    A('  s_waitcnt lgkmcnt(0)')
    make_srds(0, 4)
    issue_pf(8)
    make_srds(4, 9)
    A(f'  s_mov_b64 {s(sOUT,2)}, {s(PT+14,2)}')
    A(f'  s_mov_b32 {s(sLOW)}, 0x0f0f0f0f')
    A(f'  s_mov_b32 {s(sLOW+1)}, 0x0f0f0f0f')
    A(f'  s_mov_b32 {s(sLOW+2)}, 0xffff')
    A(f'  s_mov_b32 {s(sLOW+3)}, 0xffff')
    map_unit(sF, 0)
    offsets(ICON)
    A(f'  s_mov_b32 {s(sCUR)}, {s(sNXT)}')
    q_loads()
    A(main_load(0, SK, sCUR))
    issue_pf(pfw - nissued[0])
    A('  s_barrier')
    A('  s_mov_b64 vcc, 0')
    A(f'  v_lshlrev_b32 {v(X0)}, 4, {v(n)}')
    stream_consts(g, DUP, DOWN, DCON, X0)
    A(f'  v_and_b32 {v(X1)}, 1, {v(g)}')
    A(f'  v_mul_u32_u24 {v(X1)}, 86, {v(X1)}')
    A(f'  v_lshl_add_u32 {v(ICV)}, {v(n)}, 1, {v(X1)}')
    A(f'  v_subrev_u32 {v(ICV)}, 86, {v(ICV)}')
    A(f'  v_lshlrev_b32 {v(VBP)}, 4, {v(g)}')
    A(f'  v_lshrrev_b32 {v(X0)}, 2, v0')
    A(f'  s_mul_i32 {s(sT)}, s3, 384')
    A(f'  v_lshl_add_u32 {v(VL1)}, {v(X0)}, 4, {s(sT)}')
    A(f'  v_lshl_add_u32 {v(VL2)}, {v(X0)}, 3, {s(sT)}')
    A(f'  s_mul_i32 {s(sT)}, s3, 3072')
    A(f'  s_add_u32 {s(sT)}, {s(sT)}, {LDS_ACC}')
    A(f'  v_lshl_add_u32 {v(VFL)}, v0, 4, {s(sT)}')
    A(f'  s_lshl_b32 {s(sT)}, s3, 5')
    A(f'  s_add_u32 {s(sT)}, {s(sT)}, {LDS_ACC + W * 3072}')
    A(f'  v_lshl_add_u32 {v(VST)}, {v(a)}, 3, {s(sT)}')
    A(f'  s_lshl2_add_u32 {s(sT)}, s3, {F_PRG}')
    A(f'  v_mov_b32 {v(VPR)}, {s(sT)}')
    A(f'  v_mov_b32 {v(ZN)}, 0')
    A(f'  v_mov_b32 {v(SN)}, 0')
    A(f'  v_mov_b32 {v(VNI)}, 0xff800000')
    A(f'  v_mov_b32 {v(AL)}, 1')
    A(f'  s_mov_b32 {s(sMSK)}, 0xffff0000')
    A(f'  s_mov_b32 {s(sL2E)}, 0x3fb8aa3b')
    for h in range(2):
        A(f'  s_mov_b32 {s(sSCL+h)}, {hex(0x3d93cd3a + (22 << 23))}')
        A(f'  s_mov_b32 {s(sBIG+h)}, 0x7f000000')
        A(f'  s_mov_b32 {s(sSM+h)}, {hex((127 - 22) << 23)}')
        A(f'  s_mov_b32 {s(sREC+h)}, 0')
    for j in range(4):
        A(f'  s_mov_b32 {s(sMJ+2*j)}, {hex(0x11111111 << j)}')
        A(f'  s_mov_b32 {s(sMJ+2*j+1)}, {hex(0x11111111 << j)}')
    A(f'  s_mov_b32 {s(sSEG)}, 0')
    if tl:
        A(f'  s_mov_b32 {s(sTL)}, 0')
        A(f'  v_mov_b32 {v(TL)}, 0')
    issue_pf(99)
    A(f'  s_mov_b32 {s(sHC)}, {s(sHN)}')
    kscale_loads()
    for k in range(1, D):
        A(f'  s_waitcnt vmcnt({max(DN, k) - 1 + 6})')
        A(main_load(k, SK, sCUR))
    A(f'  s_waitcnt vmcnt({D - 1})')
    A(f'  ds_write_b32 {v(VPR)}, {v(AL)}')

    def wait_step(k, nsmall, tag, ps):
        cnt = lambda d: d - 1 + (nsmall if k - d <= ps < k else 0)
        A(f'  s_waitcnt vmcnt({cnt(D)})')
        if k % bev == 0:
            A(f'  s_cbranch_vccnz L_{tag}')
            A(f'  s_waitcnt vmcnt({cnt(DN)})')
            A(f'L_{tag}:')
    def mode(k):
        if k == 0: A(f'  ds_read_b32 {v(VBS)}, {v(VPR)} offset:{F_BST - F_PRG}')
        if k == 1:
            A('  s_waitcnt lgkmcnt(0)')
            A(f'  v_cmp_lt_u32 vcc, {s(sG)}, {v(VBS)}')
    def dequant(X, src, z, sc, zmod, smod):
        r = [f'  v_pk_fma_f32 {v(X+2*h,2)}, {v(src+2*h,2)}, {s(sBIG,2)}, {z[h]} {zmod}neg_lo:[0,0,1] neg_hi:[0,0,1]' for h in range(2)]
        r2 = [f'  v_cvt_pk_bf16_f32 {v(X+j)}, 0, {v(X+j)}' for j in range(4)]
        r2 += [f'  v_pk_mul_f32 {v(X+2*h,2)}, {v(X+2*h,2)}, {sc[h]} {smod}'.rstrip() for h in range(2)]
        return r, r2
    def kreduce(ss):
        d = S + (ss & 1)
        q = lambda j: f'quad_perm:[{j},{j},{j},{j}] row_mask:0xf bank_mask:0xf'
        r = [f'  v_mov_b32_dpp {v(X0)}, {v(SD)} {q(0)}',
             f'  v_mov_b32_dpp {v(X1)}, {v(SD+2)} {q(2)}',
             f'  v_add_f32_dpp {v(X0)}, {v(SD+1)}, {v(X0)} {q(1)}',
             f'  v_add_f32_dpp {v(X1)}, {v(SD+3)}, {v(X1)} {q(3)}',
             f'  v_add_f32 {v(d)}, {v(X0)}, {v(X1)}']
        if ss == 0: r.append(f'  v_cndmask_b32 {v(d)}, {v(d)}, {v(VNI)}, {s(sL0,2)}')
        if ss == 10: r.append(f'  v_cndmask_b32 {v(d)}, {v(d)}, {v(VNI)}, {s(sL10,2)}')
        if ss & 1 or ss == 10:
            r += [f'  v_cvt_pk_bf16_f32 {v(S)}, 0, {v(S)}',
                  f'  v_cvt_pk_bf16_f32 {v(S+1)}, 0, {v(S+1)}',
                  f'  v_pk_mul_f32 {v(S,2)}, {v(S,2)}, {s(sSCL,2)}',
                  f'  v_cvt_pk_bf16_f32 {v(LG+(ss>>1))}, {v(S)}, {v(S+1)}']
        return r
    def lds_word(dst, addr):
        A(f'  v_mov_b32 {v(X0)}, {addr}')
        A(f'  ds_read_b32 {v(X0)}, {v(X0)}')
        A('  s_waitcnt lgkmcnt(0)')
        A(f'  v_readfirstlane_b32 {s(dst)}, {v(X0)}')

    mf32 = f'  v_mfma_f32_16x16x32_bf16 {v(SD,4)}, {v(KA,4)}, {v(QB,4)}, 0'
    mf16 = f'  v_mfma_f32_16x16x16_bf16 {v(SD,4)}, {v(KA+4,2)}, {v(QB+4,2)}, {v(SD,4)}'
    def k_unit(u):
        o = NST * u
        if u == 0: stamp()
        short_masks(DOWN, sL0, sL10, sLOW + 2)
        A(f'  s_mov_b32 {s(sG)}, {s(sF)}')
        A(f'  s_add_u32 {s(sF)}, {s(sF)}, {W}')
        for k in range(NST):
            ss, i = divmod(k, 3)
            mode(k)
            if k == SW:
                if u == U - 1:
                    C('the last K unit prefetches the first V unit')
                    A(f'  s_cmp_lt_u32 {s(sF)}, {NF}')
                    A('  s_cbranch_scc1 L_k_keep')
                    map_unit(3, 1)
                    A(f'  s_mov_b32 {s(SI)}, {s(SV)}')
                    A(f'  s_mov_b32 {s(SI+1)}, {s(SV+1)}')
                    vscale_loads()
                    A(f'  v_mov_b32 {v(ICON)}, {v(DCON)}')
                    A('L_k_keep:')
                offsets(ICON)
            wait_step(k, 6, f'kw{u}_{k}', PSK)
            A(main_load(o + k + D, SK, sCUR) if k < SW else main_load(o + k + D, SI, sNXT))
            if i == 2: A(mf32)
            if i == 0 and ss > 0: A(mf16)
            if ss == 0:
                for raw, dst in ((KZR, KZ), (KSR, KS)):
                    for h in range(2):
                        A(f'  v_lshlrev_b32 {v(dst+4*i+2*h)}, 16, {v(raw+2*i+h)}')
                        A(f'  v_and_b32 {v(dst+4*i+2*h+1)}, {s(sMSK)}, {v(raw+2*i+h)}')
                for h in range(2):
                    A(f'  v_pk_mul_f32 {v(KZ+4*i+2*h,2)}, {v(KZ+4*i+2*h,2)}, {s(sSM,2)}')
                    A(f'  v_mov_b32 {v(QB+2*i+h)}, {v(QN+2*i+h)}')
            c, rest = dequant(T, slot(o + k), (v(KZ+4*i,2), v(KZ+4*i+2,2)), (v(KS+4*i,2), v(KS+4*i+2,2)), '', '')
            for x in c: A(x)
            if k == PSK:
                C('next unit: class (needs the vote once), scales, q on a head change')
                A(f'  s_cmp_lt_u32 {s(sF)}, {s(sGATE)}')
                A(f'  s_cbranch_scc1 L_k_known{u}')
                A(f'L_k_spin{u}:')
                lds_word(sDEC, F_DEC)
                A(f'  s_cmp_eq_u32 {s(sDEC)}, 0')
                A(f'  s_cbranch_scc1 L_k_spin{u}')
                A(f'  s_mov_b32 {s(sGATE)}, -1')
                A(f'L_k_known{u}:')
                map_unit(sF, 0)
                A(f'  s_cmp_eq_u32 {s(sHN)}, {s(sHC)}')
                A(f'  s_cbranch_scc1 L_k_sameq{u}')
                q_loads()
                A(f'  s_mov_b32 {s(sHC)}, {s(sHN)}')
                A(f'L_k_sameq{u}:')
                kscale_loads()
            rest += [f'  v_cvt_pk_bf16_f32 {v(KA+2*i)}, {v(T)}, {v(T+1)}',
                     f'  v_cvt_pk_bf16_f32 {v(KA+2*i+1)}, {v(T+2)}, {v(T+3)}']
            if i == 1 and ss > 0:
                r = kreduce(ss - 1)
                rest = r[:2] + rest[:2] + r[2:4] + rest[2:4] + r[4:5] + rest[4:]
                pend = r[5:]
            elif i == 2 and ss > 0:
                rest = merge(rest, pend)
            for x in rest: A(x)
        A(f'  s_mov_b32 {s(sCUR)}, {s(sNXT)}')
        A(f'  v_mov_b32 {v(AL)}, {s(sF)}')
        A(mf16)
        A(f'  ds_write_b128 {v(VL1)}, {v(LG,4)}')
        A(f'  v_add_u32 {v(VL1)}, {384 * W}, {v(VL1)}')
        for x in kreduce(10): A(x)
        A(f'  ds_write_b64 {v(VL2)}, {v(LG+4,2)} offset:256')
        A(f'  ds_write_b32 {v(VPR)}, {v(AL)}')
        A(f'  v_add_u32 {v(VL2)}, {384 * W}, {v(VL2)}')
    C('---------------- K loop: two units per trip')
    A('L_k:')
    for u in range(U): k_unit(u)
    A(f'  s_cmp_lt_u32 {s(sF)}, {NF}')
    A('  s_cbranch_scc1 L_k')

    def flush():
        C('park the partial result of the finished head segment; record id = head*4 + 2*(segment ends the head) + class')
        A(f'  v_mov_b32 {v(X1)}, {v(LS)}')
        A(f'  v_permlane32_swap_b32 {v(LS)}, {v(X1)}')
        A(f'  v_add_f32 {v(LS)}, {v(LS)}, {v(X1)}')
        A(f'  v_mov_b32 {v(X1)}, {v(LS)}')
        A(f'  v_permlane16_swap_b32 {v(LS)}, {v(X1)}')
        A(f'  v_add_f32 {v(LS)}, {v(LS)}, {v(X1)}')
        A(f'  ds_write_b64 {v(VST)}, {v(NB,2)}')
        for i in range(3):
            A(f'  ds_write_b128 {v(VFL)}, {v(ACC+4*i,4)} offset:{1024*i}')
        A(f'  s_and_b32 {s(sT)}, {s(sQC)}, 15')
        A(f'  s_cmp_ge_u32 {s(sT)}, 12')
        A(f'  s_cselect_b32 {s(sT)}, 2, 0')
        A(f'  s_and_b32 {s(sT+1)}, {s(sCC)}, 1')
        A(f'  s_add_u32 {s(sT)}, {s(sT)}, {s(sT+1)}')
        A(f'  s_lshr_b32 {s(sT+1)}, {s(sQC)}, 4')
        A(f'  s_lshl2_add_u32 {s(sT)}, {s(sT+1)}, {s(sT)}')
        for j in range(2):
            A(f'  s_add_u32 {s(sT+1)}, s3, {W * j}')
            A(f'  s_cmp_eq_u32 {s(sSEG)}, {s(sT+1)}')
            A(f'  s_cselect_b32 {s(sREC+j)}, {s(sT)}, {s(sREC+j)}')
        A(f'  s_add_u32 {s(sSEG)}, {s(sSEG)}, 1')
        A('  s_waitcnt lgkmcnt(0)')
    def import_gate(tag):
        A(f'  s_cmp_lt_u32 {s(sF)}, {s(sGATE)}')
        A(f'  s_cbranch_scc1 L_{tag}_ok')
        A(f'L_{tag}_spin:')
        lds_word(sGATE, F_IMP)
        A(f'  s_cmp_lt_u32 {s(sF)}, {s(sGATE)}')
        A(f'  s_cbranch_scc0 L_{tag}_spin')
        A(f'L_{tag}_ok:')

    C('---------------- V loop: two units per trip')
    A(f'  v_subrev_u32 {v(VL1)}, {IMG}, {v(VL1)}')
    A(f'  v_subrev_u32 {v(VL2)}, {IMG}, {v(VL2)}')
    A(f'  s_mov_b32 {s(sF)}, s3')
    A(f'  s_mov_b32 {s(sHC)}, {s(sHN)}')
    A(f'  s_mov_b32 {s(sGATE)}, 0')
    A(f'  s_mov_b32 {s(SQ)}, {s(sOUT)}')
    A(f'  s_and_b32 {s(SQ+1)}, {s(sOUT+1)}, 0xffff')
    import_gate('v0')
    A(f'  ds_read_b128 {v(LG,4)}, {v(VL1)}')
    A(f'  ds_read_b64 {v(LG+4,2)}, {v(VL2)} offset:256')
    reset_state()
    def v_unit(u):
        o = NST * u
        A(f'L_v{u}:')
        if u == 0: stamp()
        A(f'  s_add_u32 {s(sG)}, {s(sF)}, {NF}')
        A(f'  v_mov_b32 {v(AL)}, {s(sG)}')
        A(f'  s_mov_b32 {s(sQC)}, {s(sQ3)}')
        A(f'  s_mov_b32 {s(sCC)}, {s(sC)}')
        A(f'  ds_write_b32 {v(VPR)}, {v(AL)}')
        A(f'  s_add_u32 {s(sF)}, {s(sF)}, {W}')
        import_gate(f'v1{u}')
        map_unit(sF, 1)
        A(f'  s_cmp_lt_u32 {s(sF)}, {NF}')
        A(f'  s_cselect_b32 {s(sNXT)}, {s(sNXT)}, {TOTAL}')
        prep = []
        for k in range(11):
            prep.append(f'  v_lshlrev_b32 {v(E+k)}, 16, {v(LG+k//2)}' if k % 2 == 0 else f'  v_and_b32 {v(E+k)}, {s(sMSK)}, {v(LG+k//2)}')
        prep += [f'  v_add_u32 {v(VL1)}, {384 * W}, {v(VL1)}',
                 f'  v_add_u32 {v(VL2)}, {384 * W}, {v(VL2)}',
                 f'  v_max3_f32 {v(X0)}, {v(E)}, {v(E+1)}, {v(E+2)}',
                 f'  ds_read_b128 {v(LG,4)}, {v(VL1)}',
                 f'  ds_read_b64 {v(LG+4,2)}, {v(VL2)} offset:256',
                 f'  v_max3_f32 {v(X1)}, {v(E+3)}, {v(E+4)}, {v(E+5)}',
                 f'  v_max3_f32 {v(X0)}, {v(X0)}, {v(E+6)}, {v(E+7)}',
                 f'  v_max3_f32 {v(X1)}, {v(X1)}, {v(E+8)}, {v(E+9)}',
                 f'  v_max3_f32 {v(X0)}, {v(X0)}, {v(E+10)}, {v(M)}',
                 f'  v_max_f32 {v(X0)}, {v(X0)}, {v(X1)}',
                 f'  v_mov_b32 {v(X1)}, {v(X0)}',
                 f'  v_permlane32_swap_b32 {v(X0)}, {v(X1)}',
                 f'  v_max_f32 {v(X0)}, {v(X0)}, {v(X1)}',
                 f'  v_mov_b32 {v(X1)}, {v(X0)}',
                 f'  v_permlane16_swap_b32 {v(X0)}, {v(X1)}',
                 f'  v_max_f32 {v(M)}, {v(X0)}, {v(X1)}',
                 f'  v_mul_f32 {v(X0)}, {s(sL2E)}, {v(M)}',
                 f'  v_add_f32 {v(AL)}, {v(X0)}, {v(NB)}',
                 f'  v_sub_f32 {v(NB)}, 0, {v(X0)}',
                 f'  v_exp_f32 {v(AL)}, -{v(AL)}',
                 f'  ds_bpermute_b32 {v(ALQ)}, {v(VBP)}, {v(AL)}']
        for k in range(11):
            prep += [f'  v_fma_f32 {v(E+k)}, {v(E+k)}, {s(sL2E)}, {v(NB)}', f'  v_exp_f32 {v(E+k)}, {v(E+k)}']
        prep += [f'  v_add_f32 {v(X0)}, {v(E)}, {v(E+1)}', f'  v_add_f32 {v(X1)}, {v(E+2)}, {v(E+3)}']
        for k in range(4, 11):
            x = X0 if k % 2 == 0 else X1
            prep.append(f'  v_add_f32 {v(x)}, {v(x)}, {v(E+k)}')
        prep += [f'  v_add_f32 {v(X0)}, {v(X0)}, {v(X1)}',
                 f'  v_fma_f32 {v(LS)}, {v(LS)}, {v(AL)}, {v(X0)}']
        for k in range(6):
            prep.append(f'  v_cvt_pk_bf16_f32 {v(PP+k)}, {v(E+2*k)}, {v(E+2*k+1) if k < 5 else 0}')
        for j in range(4):
            for k in range(4):
                prep.append(f'  v_cndmask_b32 {v(AJ+4*j+k)}, 0, {v(PP+k)}, {s(sMJ+2*j,2)}')
        prep.append('  s_waitcnt lgkmcnt(0)')
        for k in range(12):
            prep.append(f'  v_mul_f32 {v(ACC+k)}, {v(ALQ)}, {v(ACC+k)}')
        prep2 = [f'  v_cndmask_b32 {v(AK+2*j+k)}, 0, {v(PP+4+k)}, {s(sMJ+2*j,2)}' for j in range(4) for k in range(2)]
        for k in range(NST):
            ss, i = divmod(k, 3)
            mode(k)
            if k == SW: offsets(DCON)
            wait_step(k, 2, f'vw{u}_{k}', PSV)
            A(main_load(o + k + D, SV, sCUR if k < SW else sNXT))
            if k == 0:
                A(f'  v_mul_f32 {v(ZC)}, {s(sSM)}, {v(ZN)}')
                A(f'  v_mul_f32 {v(SC)}, {hex((127 + 22) << 23)}, {v(SN)}')
            if i == 0:
                A(f'  v_mov_b32_dpp {v(ZS)}, {v(ZC)} row_newbcast:{ss} row_mask:0xf bank_mask:0xf')
                A(f'  v_mov_b32_dpp {v(ZS+1)}, {v(SC)} row_newbcast:{ss} row_mask:0xf bank_mask:0xf')
            X = TV + 4 * i if ss % 2 == 0 else T
            c, rest = dequant(X, slot(o + k), (v(ZS,2), v(ZS,2)), (v(ZS,2), v(ZS,2)), 'op_sel_hi:[1,1,0] ', 'op_sel:[0,1]')
            for x in c: A(x)
            if k == PSV: vscale_loads()
            if ss % 2 == 1:
                rest += [f'  v_cvt_pk_bf16_f32 {v(BV+16*i+4*j+((ss>>1)&3))}, {v(TV+4*i+j)}, {v(T+j)}' for j in range(4)]
            if ss == 10:
                rest += [f'  v_cvt_pk_bf16_f32 {v(BV+16*i+4*j+1)}, {v(TV+4*i+j)}, 0' for j in range(4)]
            side = []
            if k >= 1: side, prep = prep[:5], prep[5:]
            if k == 20: assert not prep
            if k == 23: prep = prep2
            for x in merge(rest, side): A(x)
            if ss == 7:
                for j in range(4):
                    A(f'  v_mfma_f32_16x16x32_bf16 {v(ACC+4*i,4)}, {v(AJ+4*j,4)}, {v(BV+16*i+4*j,4)}, {v(ACC+4*i,4)}')
            if ss == 10:
                assert not prep
                for j in range(4):
                    A(f'  v_mfma_f32_16x16x16_bf16 {v(ACC+4*i,4)}, {v(AK+2*j,2)}, {v(BV+16*i+4*j,2)}, {v(ACC+4*i,4)}')
        A(f'  s_mov_b32 {s(sCUR)}, {s(sNXT)}')
        if u == U - 1:
            A(f'  s_cmp_ge_u32 {s(sF)}, {NF}')
            A('  s_cbranch_scc1 L_v_done')
            A(f'  s_cmp_eq_u32 {s(sHN)}, {s(sHC)}')
            A('  s_cbranch_scc1 L_v0')
            A(f'  s_mov_b32 {s(sHC)}, {s(sHN)}')
            flush()
            A(f'  v_add_u32 {v(VFL)}, {SEG}, {v(VFL)}')
            A(f'  v_add_u32 {v(VST)}, {SEG}, {v(VST)}')
            reset_state()
            A('  s_branch L_v0')
    assert 16 % (W * U) == 0
    for u in range(U): v_unit(u)
    A('L_v_done:')
    stamp()
    A(f'  v_mov_b32 {v(X0)}, {F_TAG}')
    A(f'  ds_read_b32 {v(M)}, {v(X0)}')
    A(f'  v_lshlrev_b32 {v(ALQ)}, 4, v0')
    A(f'  s_mul_i32 {s(sT)}, s3, {SEG}')
    A(f'  v_add_u32 {v(E)}, {s(sT)}, {v(ALQ)}')
    A(f'  s_add_u32 {s(sT)}, {s(sT)}, {LDS_ACC + W * 3072}')
    A(f'  v_lshrrev_b32 {v(AL)}, 1, {v(VBP)}')
    A(f'  v_add_u32 {v(E+1)}, {s(sT)}, {v(AL)}')
    A(f'  v_add_u32 {v(E+2)}, {W * SEG}, {v(E+1)}')
    flush()
    A('  s_waitcnt vmcnt(0)')

    C('---------------- wave w merges segments w and w+2 over the two waves, publishes them or keeps the owned one')
    A('  s_barrier')
    ST = RING; AC = (base + 3) // 4 * 4
    nv = max(nv, AC + 60)
    for j in range(2):
        A(f'  ds_read2_b64 {v(ST+4*j,4)}, {v(E+1+j)} offset1:4')
        for w in range(W):
            for i in range(3):
                A(f'  ds_read_b128 {v(AC+12*(W*j+w)+4*i,4)}, {v(E)} offset:{LDS_ACC + W * j * SEG + 3072*w + 1024*i}')
    A(f'  s_mov_b32 {s(sSEG)}, -1')
    A(f'  s_add_u32 {s(sG)}, {s(sRO)}, 1')
    GR = RING + 8; OWN = GR + 40
    gi = lambda b, x: b + 4 * (x // 3) + x % 3
    for j in range(2):
        G = GR + 20 * j; st = ST + 4 * j; ac = AC + 24 * j
        A(f'  s_waitcnt lgkmcnt({7 * (1 - j)})')
        A(f'  v_min_f32 {v(gi(G,12))}, {v(st)}, {v(st+2)}')
        for w in range(2): A(f'  v_sub_f32 {v(st+2*w)}, {v(gi(G,12))}, {v(st+2*w)}')
        for w in range(2): A(f'  v_exp_f32 {v(st+2*w)}, {v(st+2*w)}')
        for x in range(13):
            a0, a1, d_ = (st + 1, st + 3, gi(G, 13)) if x == 12 else (ac + x, ac + 12 + x, gi(G, x))
            A(f'  v_mul_f32 {v(d_)}, {v(st)}, {v(a0)}')
            A(f'  v_fma_f32 {v(d_)}, {v(st+2)}, {v(a1)}, {v(d_)}')
        A(f'  s_bfe_u32 {s(sT)}, {s(sREC+j)}, 0x20001')
        A(f'  s_cmp_eq_u32 {s(sT)}, {s(sG)}')
        A(f'  s_cbranch_scc1 L_own{j}')
        for g_ in range(5): A(f'  v_mov_b32 {v(G+4*g_+3)}, {v(M)}')
        A(f'  s_mul_i32 {s(sT)}, {s(sREC+j)}, {REC}')
        A(f'  s_add_u32 {s(sT)}, {s(sT)}, {WS_REC}')
        A(f'  s_add_u32 {s(sT+1)}, {s(sT)}, 4096')
        for g_ in range(5):
            A(f'  buffer_store_dwordx4 {v(G+4*g_,4)}, {v(ALQ)}, {s(SWS,4)}, {s(sT + g_ // 4)} offen offset:{1024 * (g_ % 4)} sc1')
        A(f'  s_branch L_pub{j}')
        A(f'L_own{j}:')
        for x in range(14): A(f'  v_mov_b32 {v(gi(OWN, x))}, {v(gi(G, x))}')
        A(f'  s_mov_b32 {s(sSEG)}, {s(sREC+j)}')
        A(f'L_pub{j}:')
    stamp()
    A(f'  s_cmp_eq_u32 {s(sSEG)}, -1')
    A('  s_cbranch_scc1 L_fin')
    C('gather the three foreign records of the owned head; a granule counts once it carries this launch\'s tag')
    FR = AC
    sR, sMISS = 84, 90
    A(f'  s_xor_b32 {s(sR)}, {s(sSEG)}, 1')
    A(f'  s_andn2_b32 {s(sR+2)}, {s(sSEG)}, 1')
    A(f'  s_xor_b32 {s(sR+2)}, {s(sR+2)}, 2')
    A(f'  s_add_u32 {s(sR+4)}, {s(sR+2)}, 1')
    for r in range(3):
        A(f'  s_mul_i32 {s(sR+2*r)}, {s(sR+2*r)}, {REC}')
        A(f'  s_add_u32 {s(sR+2*r)}, {s(sR+2*r)}, {WS_REC}')
        A(f'  s_add_u32 {s(sR+2*r+1)}, {s(sR+2*r)}, 4096')
    A(f'  s_mov_b32 {s(sF)}, 0')
    A(f'  s_mov_b32 {s(sMISS)}, 7')
    A('L_gather:')
    for r in range(3):
        A(f'  s_bitcmp0_b32 {s(sMISS)}, {r}')
        A(f'  s_cbranch_scc1 L_have{r}')
        for g_ in range(5):
            A(f'  buffer_load_dwordx4 {v(FR+20*r+4*g_,4)}, {v(ALQ)}, {s(SWS,4)}, {s(sR + 2*r + g_ // 4)} offen offset:{1024 * (g_ % 4)} sc1')
        A(f'L_have{r}:')
    A(f'  s_mov_b32 {s(sMISS)}, 0')
    A('  s_waitcnt vmcnt(0)')
    for r in range(3):
        tg = [FR + 20 * r + 4 * k + 3 for k in range(5)]
        A(f'  v_min3_u32 {v(X0)}, {v(tg[0])}, {v(tg[1])}, {v(tg[2])}')
        A(f'  v_max3_u32 {v(X1)}, {v(tg[0])}, {v(tg[1])}, {v(tg[2])}')
        A(f'  v_min3_u32 {v(X0)}, {v(X0)}, {v(tg[3])}, {v(tg[4])}')
        A(f'  v_max3_u32 {v(X1)}, {v(X1)}, {v(tg[3])}, {v(tg[4])}')
        A(f'  v_cmp_ne_u32 {s(sT,2)}, {v(M)}, {v(X0)}')
        A(f'  v_cmp_ne_u32 vcc, {v(M)}, {v(X1)}')
        A(f'  s_or_b64 {s(sT,2)}, {s(sT,2)}, vcc')
        A(f'  s_cselect_b32 {s(sT)}, {1 << r}, 0')
        A(f'  s_or_b32 {s(sMISS)}, {s(sMISS)}, {s(sT)}')
    A('  s_cbranch_scc0 L_gathered')
    A(f'  s_add_u32 {s(sF)}, {s(sF)}, 1')
    A(f'  s_cmp_lt_u32 {s(sF)}, 20000')
    A('  s_cbranch_scc1 L_gather')
    A('  s_endpgm')
    A('L_gathered:')
    stamp()
    C('(own + partner) + (neighbour pair): products are rounded separately, so the sum does not depend on who had which class')
    B4 = [OWN, FR, FR + 20, FR + 40]
    A(f'  v_min_f32 {v(X0)}, {v(gi(B4[0],12))}, {v(gi(B4[1],12))}')
    A(f'  v_min3_f32 {v(X0)}, {v(X0)}, {v(gi(B4[2],12))}, {v(gi(B4[3],12))}')
    for b in B4: A(f'  v_sub_f32 {v(gi(b,12))}, {v(X0)}, {v(gi(b,12))}')
    for b in B4: A(f'  v_exp_f32 {v(gi(b,12))}, {v(gi(b,12))}')
    A(f'  v_mul_u32_u24 {v(AL)}, 24, {v(VBP)}')
    A(f'  v_and_b32 {v(X0)}, 15, v0')
    A(f'  v_lshl_add_u32 {v(AL)}, {v(X0)}, 3, {v(AL)}')
    A(f'  s_lshr_b32 {s(sT)}, {s(sSEG)}, 2')
    A(f'  s_mul_i32 {s(sT)}, {s(sT)}, 1536')
    for x in [13] + list(range(12)):
        for b in B4: A(f'  v_mul_f32 {v(gi(b,x))}, {v(gi(b,12))}, {v(gi(b,x))}')
        A(f'  v_add_f32 {v(gi(B4[0],x))}, {v(gi(B4[0],x))}, {v(gi(B4[1],x))}')
        A(f'  v_add_f32 {v(gi(B4[2],x))}, {v(gi(B4[2],x))}, {v(gi(B4[3],x))}')
        A(f'  v_add_f32 {v(gi(B4[0],x))}, {v(gi(B4[0],x))}, {v(gi(B4[2],x))}')
        if x == 13: A(f'  v_rcp_f32 {v(X1)}, {v(gi(OWN,13))}')
        else: A(f'  v_mul_f32 {v(gi(OWN,x))}, {v(X1)}, {v(gi(OWN,x))}')
        if x % 4 == 3:
            i = x // 4
            A(f'  v_cvt_pk_bf16_f32 {v(ACC+2*i)}, {v(gi(OWN,4*i))}, {v(gi(OWN,4*i+1))}')
            A(f'  v_cvt_pk_bf16_f32 {v(ACC+2*i+1)}, {v(gi(OWN,4*i+2))}, {v(gi(OWN,4*i+3))}')
            A(f'  buffer_store_dwordx2 {v(ACC+2*i,2)}, {v(AL)}, {s(SQ,4)}, {s(sT)} offen offset:{128*i}')
    A('L_fin:')
    if tl:
        A(f'  s_mul_i32 {s(sT)}, s2, {W+1}')
        A(f'  s_add_u32 {s(sT)}, {s(sT)}, s3')
        A(f'  s_lshl_b32 {s(sT)}, {s(sT)}, 8')
        A(f'  s_add_u32 {s(sT)}, {s(sT)}, 0x10000')
        A(f'  v_lshl_add_u32 {v(E)}, v0, 2, {s(sT)}')
        A(f'  global_store_dword {v(E)}, {v(TL)}, {s(sWS,2)}')
    if stamps:
        A('  s_waitcnt vmcnt(0)')
        A(f'  s_memrealtime {s(sBIG,2)}')
        A(f'  s_getreg_b32 {s(sSM)}, hwreg(HW_REG_XCC_ID)')
        A(f'  s_mul_i32 {s(sT)}, s2, {W+1}')
        A(f'  s_add_u32 {s(sT)}, {s(sT)}, s3')
        A(f'  s_lshl_b32 {s(sT)}, {s(sT)}, 4')
        A('  s_waitcnt lgkmcnt(0)')
        A(f'  v_mov_b32 {v(RING)}, s6')
        A(f'  v_mov_b32 {v(RING+1)}, {s(sBIG)}')
        A(f'  v_mov_b32 {v(RING+2)}, {s(sSM)}')
        A(f'  v_mov_b32 {v(RING+3)}, {s(sDEC)}')
        A(f'  v_mov_b32 {v(X0)}, {s(sT)}')
        A('  s_mov_b64 exec, 1')
        A(f'  global_store_dwordx4 {v(X0)}, {v(RING,4)}, {s(sWS,2)}')
    A('L_end:')
    A('  s_endpgm')

    C('================= helper wave')
    A('L_helper:')
    if tl:
        A(f'  s_mov_b32 {s(sTL)}, 0')
        A(f'  v_mov_b32 {v(TL)}, 0')
    hA, hZ, hO, h1, h2, h3, hD = 1, 2, 3, 4, 5, 6, 8
    hP, hQ, hC, hX, hW, hU, hT = hD + 96, hD + 97, hD + 98, hD + 100, hD + 104, hD + 105, hD + 106
    assert hT + 1 < TL
    A(f'  v_lshlrev_b32 {v(hA)}, 2, v0')
    A(f'  v_add_u32 {v(hA)}, {LDS_F}, {v(hA)}')
    A(f'  v_mov_b32 {v(hZ)}, 0')
    A('  s_mov_b64 exec, 0xff')
    A(f'  ds_write_b32 {v(hA)}, {v(hZ)}')
    A('  s_mov_b64 exec, -1')
    A('  s_waitcnt lgkmcnt(0)')
    make_srds(4, 9)
    A('  s_barrier')
    sOF, sN0, sV0, sJ, sSF, sA, sB, sX, sCNT, sME, sPA, sFA, sFS, sQD = 44, 45, 48, 50, 52, 54, 56, 58, 59, 60, 61, 62, 63, 64
    sT0, sNON, sCP, sCA, sUP, sRET, sSUB = 72, 74, 76, 77, 78, 84, 86
    A(f'  s_memrealtime {s(sT0,2)}')
    def code_touch(tag):
        A(f'  s_lshr_b32 {s(sT)}, s2, 3')
        A(f'  s_cmp_lt_u32 {s(sT)}, (L_code_end - L_k) / 1024')
        A(f'  s_cbranch_scc0 L_h_ct{tag}')
        A(f'  global_load_dwordx4 {v(hX,4)}, {v(hC,2)}, off')
        A(f'L_h_ct{tag}:')
    if tlb:
        C('first touch of every page this workgroup uses later, while the start-up misses are in flight anyway')
        A(f'  v_lshlrev_b32 {v(hD)}, 28, v0')
        A(f'  v_lshlrev_b32 {v(hD+1)}, 21, v0')
        A(f'  s_lshl_b32 {s(sT)}, {s(sPB)}, 16')
        A(f'  s_add_u32 {s(sT)}, {s(sT)}, 0x1ff000')
        A(f'  s_lshr_b32 {s(sT+1)}, s2, 5')
        A(f'  s_lshl_b32 {s(sT+1)}, {s(sT+1)}, 21')
        A(f'  s_add_u32 {s(sT+1)}, {s(sT+1)}, {WS_IMG + 0x1f0000}')
        A(f'  v_writelane_b32 {v(hD+1)}, {s(sT+1)}, 4')
        A(f'  s_mov_b32 {s(SQ)}, {s(PT+14)}')
        A(f'  s_and_b32 {s(SQ+1)}, {s(PT+15)}, 0xffff')
        A('  s_mov_b64 exec, 7')
        A(f'  buffer_load_dword {v(hX)}, {v(hD)}, {s(SK,4)}, {s(sT)} offen nt')
        A(f'  buffer_load_dword {v(hX)}, {v(hD)}, {s(SV,4)}, {s(sT)} offen nt')
        A('  s_mov_b64 exec, 31')
        A(f'  s_lshl_b32 {s(sT)}, s2, 8')
        A(f'  buffer_load_dword {v(hX)}, {v(hD+1)}, {s(SWS,4)}, {s(sT)} offen sc1 nt')
        A('  s_mov_b64 exec, 1')
        A(f'  buffer_load_dword {v(hX)}, {v(hD)}, {s(SQ,4)}, {s(sT)} offen sc1 nt')
        A('  s_mov_b64 exec, -1')
    C('workgroup i reads kilobyte i/8 of this kernel\'s code so that first instruction fetches hit L2')
    A(f'  s_getpc_b64 {s(sA,2)}')
    A('L_h_pc:')
    A(f'  s_add_u32 {s(sSUB)}, {s(sA)}, L_h_cp - L_h_pc')
    A(f'  s_addc_u32 {s(sSUB+1)}, {s(sA+1)}, 0')
    A(f'  s_sub_u32 {s(sA)}, {s(sA)}, L_h_pc - L_k')
    A(f'  s_subb_u32 {s(sA+1)}, {s(sA+1)}, 0')
    A(f'  s_and_b32 {s(sA)}, {s(sA)}, -16')
    A(f'  s_lshr_b32 {s(sT)}, s2, 3')
    A(f'  s_lshl_b32 {s(sT)}, {s(sT)}, 10')
    A(f'  v_lshl_add_u32 {v(hC)}, v0, 4, {s(sT)}')
    A(f'  v_mov_b32 {v(hC+1)}, {s(sA+1)}')
    A(f'  v_add_co_u32 {v(hC)}, vcc, {s(sA)}, {v(hC)}')
    A(f'  v_addc_co_u32 {v(hC+1)}, vcc, 0, {v(hC+1)}, vcc')
    if touch & 1: code_touch('a')
    A(f'  s_lshr_b32 {s(sT)}, s2, 4')
    A(f'  s_and_b32 {s(sT)}, {s(sT)}, 8')
    A(f'  s_and_b32 {s(sT+1)}, s2, 7')
    A(f'  s_add_u32 {s(sT)}, {s(sT)}, {s(sT+1)}')
    A(f'  s_lshl_b32 {s(sT)}, {s(sT)}, 4')
    A(f'  v_lshl_add_u32 {v(hP)}, v0, 3, {s(sT)}')
    A(f'  v_and_b32 {v(hQ)}, 31, v0')
    A(f'  v_lshlrev_b32 {v(hQ)}, 3, {v(hQ)}')
    A(f'  v_and_b32 {v(hW)}, 1, v0')
    A(f'  v_lshlrev_b32 {v(hW)}, 2, {v(hW)}')
    A(f'  v_add_u32 {v(hW)}, {F_PRG}, {v(hW)}')
    A(f'  v_mov_b32 {v(hU)}, 0')
    A(f'  v_lshlrev_b32 {v(hO)}, 4, v0')
    A(f'  s_mov_b32 {s(sCP)}, {cp0}')
    A(f'  s_mov_b32 {s(sCA)}, {WS_CP}')
    def wait_progress(tag, lim, slp):
        A(f'L_h_prog{tag}:')
        A(f'  s_sleep {slp}')
        A(f'  ds_read_b32 {v(hD)}, {v(hW)}')
        A('  s_waitcnt lgkmcnt(0)')
        A(f'  v_cmp_gt_u32 vcc, {lim}, {v(hD)}')
        A('  s_cmp_lg_u32 vcc_lo, 0')
        A(f'  s_cbranch_scc1 L_h_prog{tag}')
    def lds_set(addr, val):
        A(f'  v_mov_b32 {v(hA)}, {addr}')
        A(f'  v_mov_b32 {v(h2)}, {val}')
        A(f'  ds_write_b32 {v(hA)}, {v(h2)}')
    C('vote word in d_debug: six 6-bit tallies (class near die 0 in even pages, per slab of qk and qv), four 4-bit tallies')
    C(f'(die of role 0 per wg&3) and the voter count in the top byte; {7 * NV} workgroups vote')
    A(f'  s_getreg_b32 {s(sJ)}, hwreg(HW_REG_XCC_ID)')
    A(f'  s_bfe_u32 {s(sJ)}, {s(sJ)}, 0x10002')
    A(f'  s_bfe_u32 {s(sSF)}, s2, 0x30003')
    A(f'  s_cmp_eq_u32 {s(sSF)}, 7')
    A('  s_cbranch_scc1 L_h_voted')
    A(f'  s_lshr_b32 {s(sT)}, s2, 6')
    A(f'  s_xor_b32 {s(sT)}, {s(sT)}, s2')
    A(f'  s_and_b32 {s(sT)}, {s(sT)}, {32 // NV - 1}')
    A('  s_cbranch_scc1 L_h_voted')
    A(f'  s_cmp_eq_u32 {s(sSF)}, 6')
    A('  s_cbranch_scc0 L_h_probe')
    A(f'  s_xor_b32 {s(sV0)}, {s(sJ)}, {s(sRO)}')
    A(f'  s_and_b32 {s(sSF)}, s2, 3')
    A(f'  s_lshl2_add_u32 {s(sSF)}, {s(sSF)}, 36')
    A('  s_branch L_h_vote')
    A('L_h_probe:')
    A(f'  s_cmp_ge_u32 {s(sSF)}, 3')
    A(f'  s_cselect_b32 {s(SI)}, {s(SV)}, {s(SK)}')
    A(f'  s_cselect_b32 {s(SI+1)}, {s(SV+1)}, {s(SK+1)}')
    A(f'  s_cselect_b32 {s(sT)}, 3, 0')
    A(f'  s_sub_u32 {s(sT)}, {s(sSF)}, {s(sT)}')
    A(f'  s_lshl_b32 {s(sT)}, {s(sT)}, 28')
    A(f'  s_add_u32 {s(sOF)}, {s(sPB)}, {s(sRO)}')
    A(f'  s_lshl_b32 {s(sOF)}, {s(sOF)}, 16')
    A(f'  s_add_u32 {s(sOF)}, {s(sOF)}, {s(sT)}')
    A(f'  s_add_u32 {s(sOF)}, {s(sOF)}, 0x1c0000')
    A(f'  s_mul_i32 {s(sT)}, s2, 0x2a95')
    A(f'  s_and_b32 {s(sT)}, {s(sT)}, 0x7f80')
    A(f'  s_add_u32 {s(sOF)}, {s(sOF)}, {s(sT)}')
    A(f'  s_add_u32 {s(sT)}, {s(sOF)}, 0x8000')
    A(f'  s_buffer_load_dword {s(sX)}, {s(SI,4)}, {s(sT)}')
    A(f'  s_mov_b32 {s(sN0)}, -1')
    A(f'  s_mov_b32 {s(sN0+1)}, -1')
    A(f'  s_mul_i32 {s(sSF)}, {s(sSF)}, 6')
    wait_progress('p', 1, 2)
    for k in range(NS):
        for c in ((0, 1) if k % 2 == 0 else (1, 0)):
            o = (((k & 1) << 14) | ((k >> 1 & 1) << 12) | ((k * 0x380) & 0xfff)) ^ (c << 13)
            A(f'  s_xor_b32 {s(sT)}, {s(sOF)}, {o}')
            A(f'  s_memtime {s(sA,2)}')
            A('  s_waitcnt lgkmcnt(0)')
            A(f'  s_buffer_load_dword {s(sX)}, {s(SI,4)}, {s(sT)}')
            A('  s_waitcnt lgkmcnt(0)')
            A(f'  s_memtime {s(sB,2)}')
            A('  s_waitcnt lgkmcnt(0)')
            A(f'  s_sub_u32 {s(sB)}, {s(sB)}, {s(sA)}')
            A(f'  s_min_u32 {s(sN0+c)}, {s(sN0+c)}, {s(sB)}')
    A(f'  s_cmp_lt_u32 {s(sN0+1)}, {s(sN0)}')
    A(f'  s_cselect_b32 {s(sV0)}, 1, 0')
    A(f'  s_lshr_b32 {s(sT)}, {s(sOF)}, 13')
    A(f'  s_xor_b32 {s(sT)}, {s(sT)}, s2')
    A(f'  s_xor_b32 {s(sT)}, {s(sT)}, {s(sJ)}')
    A(f'  s_and_b32 {s(sT)}, {s(sT)}, 1')
    A(f'  s_xor_b32 {s(sV0)}, {s(sV0)}, {s(sT)}')
    A('L_h_vote:')
    A(f'  s_mov_b32 {s(sV0+1)}, 0')
    A(f'  s_lshl_b64 {s(sV0,2)}, {s(sV0,2)}, {s(sSF)}')
    A(f'  s_or_b32 {s(sV0+1)}, {s(sV0+1)}, 0x1000000')
    A(f'  s_atomic_add_x2 {s(sV0,2)}, {s(sDBG,2)}, 0')
    A('L_h_voted:')
    A('  s_waitcnt lgkmcnt(0)')
    C('launch nonce (tells this launch\'s hand-offs in ws from older contents)')
    A('  s_cmp_lg_u32 s2, 56')
    A('  s_cbranch_scc1 L_h_nonce')
    A(f'  s_lshl_b64 {s(sA,2)}, {s(sT0,2)}, 2')
    A(f'  s_atomic_add_x2 {s(sA,2)}, {s(sDBG,2)}, 8')
    A('  s_waitcnt lgkmcnt(0)')
    A('L_h_nonce:')
    stamp()
    def checkpoints(upto):
        A(f'  s_mov_b32 {s(sUP)}, {min(upto, last) - dly}')
        A(f'  s_swappc_b64 {s(sRET,2)}, {s(sSUB,2)}')
    def bounded(label, n):
        A(f'  s_add_u32 {s(sCNT)}, {s(sCNT)}, 1')
        A(f'  s_cmp_gt_u32 {s(sCNT)}, {n}')
        A(f'  s_cbranch_scc1 {label}')
    wait_progress('v', NWU - W, 8)
    A(f'  s_load_dwordx2 {s(sV0,2)}, {s(sDBG,2)}, 0')
    A(f'  s_mov_b32 {s(sCNT)}, 0')
    A('L_h_votes:')
    A('  s_waitcnt lgkmcnt(0)')
    A(f'  s_lshr_b32 {s(sT)}, {s(sV0+1)}, 24')
    A(f'  s_cmp_eq_u32 {s(sT)}, {7 * NV}')
    A('  s_cbranch_scc1 L_h_votes_done')
    bounded('L_h_votes_done', 2000)
    A('  s_sleep 64')
    A(f'  s_mov_b64 {s(sV0,2)}, 0')
    A(f'  s_atomic_or_x2 {s(sV0,2)}, {s(sDBG,2)}, 0 glc')
    A('  s_branch L_h_votes')
    A('L_h_votes_done:')
    A(f'  s_mov_b32 {s(sDEC)}, 0x80')
    for j in range(6):
        A(f'  s_bfe_u64 {s(sA,2)}, {s(sV0,2)}, {hex(0x60000 | (6 * j))}')
        A(f'  s_cmp_gt_u32 {s(sA)}, {NV // 2}')
        A(f'  s_cselect_b32 {s(sB)}, {1 << j}, 0')
        A(f'  s_or_b32 {s(sDEC)}, {s(sDEC)}, {s(sB)}')
    if force >= 0: A(f'  s_mov_b32 {s(sDEC)}, {0x80 | force}')
    A(f'  s_and_b32 {s(sT)}, s2, 3')
    A(f'  s_lshl2_add_u32 {s(sT)}, {s(sT)}, {4 + (NV // 4).bit_length() - 1}')
    A(f'  s_lshr_b32 {s(sA)}, {s(sV0+1)}, {s(sT)}')
    A(f'  s_xor_b32 {s(sA)}, {s(sA)}, s2')
    A(f'  s_xor_b32 {s(sA)}, {s(sA)}, {s(sRO)}')
    A(f'  s_and_b32 {s(sA)}, {s(sA)}, 1')
    A(f'  s_mul_i32 {s(sA)}, {s(sA)}, 63')
    A(f'  s_xor_b32 {s(sDEC)}, {s(sDEC)}, {s(sA)}')
    lds_set(F_DEC, s(sDEC))
    stamp()
    A(f'  s_load_dwordx2 {s(sNON,2)}, {s(sDBG,2)}, 8')
    A(f'  s_mov_b32 {s(sCNT)}, 0')
    A('L_h_getnonce:')
    A('  s_waitcnt lgkmcnt(0)')
    A(f'  s_cmp_lg_u64 {s(sNON,2)}, 0')
    A('  s_cbranch_scc1 L_h_gotnonce')
    bounded('L_h_gotnonce', 2000)
    A('  s_sleep 64')
    A(f'  s_atomic_or_x2 {s(sNON,2)}, {s(sDBG,2)}, 8 glc')
    A('  s_branch L_h_getnonce')
    A('L_h_gotnonce:')
    A(f'  s_lshr_b64 {s(sA,2)}, {s(sNON,2)}, 2')
    lds_set(F_TAG, s(sA))
    C('logit swap: flag word per workgroup; image q = 2*pair + role keeps kilobyte k at')
    C('region(q>>5) + (k<<15) + ((q&31 ^ comp(k)) << 10), which stays inside four memory channels')
    A(f'  s_lshl_b32 {s(sFA)}, s2, 8')
    A(f'  s_add_u32 {s(sFA)}, {s(sFA)}, {WS_FLAG}')
    A(f'  s_xor_b32 {s(sFS)}, {s(sFA)}, 1024')
    A(f'  s_lshr_b32 {s(sX)}, {s(sDEC)}, 3')
    A(f'  s_xor_b32 {s(sX)}, {s(sX)}, {s(sDEC)}')
    A(f'  s_lshr_b32 {s(sT)}, {s(sPB)}, 4')
    A(f'  s_lshr_b32 {s(sOF)}, {s(sT)}, 5')
    A(f'  s_lshl_b32 {s(sOF)}, {s(sOF)}, 21')
    A(f'  s_add_u32 {s(sOF)}, {s(sOF)}, {WS_IMG}')
    A(f'  s_and_b32 {s(sQD)}, {s(sT)}, 31')
    A(f'  s_add_u32 {s(sT)}, {s(sQD)}, {s(sRO)}')
    A(f'  s_lshl_b32 {s(sT)}, {s(sT)}, 10')
    A(f'  s_add_u32 {s(sME)}, {s(sOF)}, {s(sT)}')
    A(f'  s_xor_b32 {s(sPA)}, {s(sME)}, 1024')
    def pxor(k):
        h = k >> 2
        c = (h & 3) ^ (((h >> 2) & 1) * 17) ^ (((h >> 3) & 1) * 4)
        return (k << 15) | (c << 10)
    NW = NWU * 384 // 1024
    def reg(k): return hD + 4 * (k % 24)
    def export(lo, hi):
        for k in range(lo, hi): A(f'  ds_read_b128 {v(reg(k),4)}, {v(hO)} offset:{1024*k}')
        A('  s_waitcnt lgkmcnt(0)')
        for k in range(lo, hi):
            A(f'  s_xor_b32 {s(sT)}, {s(sME)}, {pxor(k)}')
            A(f'  buffer_store_dwordx4 {v(reg(k),4)}, {v(hO)}, {s(SWS,4)}, {s(sT)} offen sc1')
    def imp(lo, hi):
        for k in range(lo, hi):
            A(f'  s_xor_b32 {s(sT)}, {s(sPA)}, {pxor(k)}')
            A(f'  buffer_load_dwordx4 {v(reg(k),4)}, {v(hO)}, {s(SWS,4)}, {s(sT)} offen sc1')
        A('  s_waitcnt vmcnt(0)')
        for k in range(lo, hi): A(f'  ds_write_b128 {v(hO)}, {v(reg(k),4)} offset:{1024*k}')
    def cond(bit, tag, fn):
        A(f'  s_bitcmp0_b32 {s(sX)}, {bit}')
        A(f'  s_cbranch_scc1 L_h_{tag}')
        fn()
        A(f'L_h_{tag}:')
    def handshake(tag, level):
        A(f'  s_add_u32 {s(sA)}, {s(sNON)}, {level}')
        A(f'  v_mov_b32 {v(h2)}, 0')
        A('  s_waitcnt vmcnt(0)')
        A(f'  v_mov_b32 {v(hD)}, {s(sA)}')
        A(f'  v_mov_b32 {v(hD+1)}, {s(sNON+1)}')
        A('  s_mov_b64 exec, 1')
        A(f'  buffer_store_dwordx2 {v(hD,2)}, {v(h2)}, {s(SWS,4)}, {s(sFA)} offen sc1')
        A(f'  s_mov_b32 {s(sCNT)}, 0')
        A(f'L_h_flag{tag}:')
        A(f'  buffer_load_dwordx2 {v(hD+2,2)}, {v(h2)}, {s(SWS,4)}, {s(sFS)} offen sc1')
        A('  s_waitcnt vmcnt(0)')
        A(f'  v_readfirstlane_b32 {s(sB)}, {v(hD+2)}')
        A(f'  v_readfirstlane_b32 {s(sB+1)}, {v(hD+3)}')
        A(f'  s_sub_u32 {s(sB)}, {s(sB)}, {s(sA)}')
        A(f'  s_xor_b32 {s(sB+1)}, {s(sB+1)}, {s(sNON+1)}')
        A(f'  s_lshr_b32 {s(sB)}, {s(sB)}, 1')
        A(f'  s_or_b32 {s(sB)}, {s(sB)}, {s(sB+1)}')
        A(f'  s_cbranch_scc0 L_h_flag{tag}_done')
        bounded(f'L_h_flag{tag}_done', 10000)
        A('  s_sleep 8')
        A(f'  s_branch L_h_flag{tag}')
        A(f'L_h_flag{tag}_done:')
        A('  s_mov_b64 exec, -1')
    checkpoints(64)
    wait_progress('a', 64, 4)
    stamp()
    export(0, NW)
    cond(0, 'e0', lambda: export(NW, 12))
    cond(1, 'e1', lambda: export(12, 24))
    handshake('a', 1)
    stamp()
    C('first units: slot f comes from the image of role f&1, slot (f&~1) + V class of the first page')
    A(f'  s_bfe_u32 {s(sA)}, {s(sDEC)}, 0x10003')
    A(f'  s_mul_i32 {s(sA)}, {s(sA)}, 384')
    A(f'  v_lshrrev_b32 {v(h1)}, 3, v0')
    for k in range(NW):
        A(f'  v_add_u32 {v(h2)}, {8 * k}, {v(h1)}')
        A(f'  v_mul_u32_u24 {v(h2)}, 21846, {v(h2)}')
        A(f'  v_bfe_u32 {v(h2)}, {v(h2)}, 16, 1')
        A(f'  v_mul_u32_u24 {v(h3)}, 384, {v(h2)}')
        A(f'  v_sub_u32 {v(h3)}, {v(hO)}, {v(h3)}')
        A(f'  v_add_u32 {v(h3)}, {s(sA)}, {v(h3)}')
        A(f'  v_add_u32 {v(h3)}, {1024 * k}, {v(h3)}')
        A(f'  v_add_u32 {v(h2)}, {s(sQD)}, {v(h2)}')
        A(f'  v_lshrrev_b32 {v(hZ)}, 12, {v(h3)}')
        A(f'  v_xor_b32 {v(h2)}, {v(h2)}, {v(hZ)}')
        A(f'  v_lshrrev_b32 {v(hZ)}, 10, {v(h3)}')
        A(f'  v_lshl_add_u32 {v(h2)}, {v(hZ)}, 5, {v(h2)}')
        A(f'  v_and_b32 {v(h3)}, 1023, {v(h3)}')
        A(f'  v_lshl_add_u32 {v(h2)}, {v(h2)}, 10, {v(h3)}')
        A(f'  buffer_load_dwordx4 {v(reg(k),4)}, {v(h2)}, {s(SWS,4)}, {s(sOF)} offen sc1')
    cond(0, 'i0', lambda: imp(NW, 12))
    cond(1, 'i1', lambda: imp(12, 24))
    A('  s_waitcnt vmcnt(0)')
    for k in range(NW): A(f'  ds_write_b128 {v(hO)}, {v(reg(k),4)} offset:{1024*k}')
    stamp()
    A(f'  s_bitcmp0_b32 {s(sX)}, 2')
    A(f'  s_cselect_b32 {s(sT)}, 255, 64')
    lds_set(F_IMP, s(sT))
    checkpoints(NF)
    if touch & 2: code_touch('b')
    A(f'  s_bitcmp0_b32 {s(sX)}, 2')
    A('  s_cbranch_scc1 L_h_all')
    wait_progress('b', NF, 4)
    export(24, 36)
    handshake('b', 2)
    imp(24, 36)
    lds_set(F_IMP, 255)
    A('L_h_all:')
    if touch & 4:
        checkpoints(176)
        code_touch('c')
    checkpoints(999)
    C('the last unit runs with the deep queue')
    wait_progress('t', 2 * NF - 2 * W, 4)
    A(f'  v_mov_b32 {v(hD)}, 255')
    A(f'  ds_write_b32 {v(hW)}, {v(hD)} offset:{F_BST - F_PRG}')
    A('  s_waitcnt lgkmcnt(0)')
    A('  s_branch L_fin' if stamps or tl else '  s_endpgm')

    C(f'check points every {step} units up to unit s{sUP}: lane w (mod 2) follows wave w. Arrival times of 16 workgroups go to ws;')
    C(f'{dly} units later the entries stamped inside this launch give the mean, and a late wave gets a catch-up limit in LDS')
    A('L_h_cp:')
    A(f'  s_cmp_gt_u32 {s(sCP)}, {s(sUP)}')
    A('  s_cbranch_scc0 L_h_cpgo')
    A(f'  s_setpc_b64 {s(sRET,2)}')
    A('L_h_cpgo:')
    A(f'  ds_read_b32 {v(hD)}, {v(hW)}')
    A(f'  s_memrealtime {s(sA,2)}')
    A('  s_waitcnt lgkmcnt(0)')
    A(f'  v_mov_b32 {v(hT)}, {s(sA)}')
    A(f'  v_mov_b32 {v(hT+1)}, {s(sA+1)}')
    A(f'  v_cmp_gt_u32 vcc, {s(sCP)}, {v(hD)}')
    A('  s_cmp_eq_u32 vcc_lo, 0')
    A('  s_cbranch_scc1 L_h_cpnext')
    A('L_h_cpm:')
    A('  s_sleep 2')
    A(f'  ds_read_b32 {v(hD)}, {v(hW)}')
    A(f'  s_memrealtime {s(sA,2)}')
    A('  s_waitcnt lgkmcnt(0)')
    A(f'  v_mov_b32 {v(hD+2)}, {s(sA)}')
    A(f'  v_mov_b32 {v(hD+3)}, {s(sA+1)}')
    A(f'  v_cndmask_b32 {v(hT)}, {v(hT)}, {v(hD+2)}, vcc')
    A(f'  v_cndmask_b32 {v(hT+1)}, {v(hT+1)}, {v(hD+3)}, vcc')
    A(f'  v_cmp_gt_u32 vcc, {s(sCP)}, {v(hD)}')
    A('  s_cmp_lg_u32 vcc_lo, 0')
    A('  s_cbranch_scc1 L_h_cpm')
    A(f'  s_and_b32 {s(sT)}, s2, 0x78')
    A('  s_cbranch_scc1 L_h_np')
    A('  s_mov_b64 exec, 3')
    A(f'  buffer_store_dwordx2 {v(hT,2)}, {v(hP)}, {s(SWS,4)}, {s(sCA)} offen sc1')
    A('  s_mov_b64 exec, -1')
    A('L_h_np:')
    A(f'  s_add_u32 {s(sJ)}, {s(sCP)}, {dly}')
    wait_progress('c', s(sJ), 4)
    A(f'  buffer_load_dwordx2 {v(hD,2)}, {v(hQ)}, {s(SWS,4)}, {s(sCA)} offen')
    A(f'  v_mov_b32 {v(hD+2)}, {s(sT0+1)}')
    A('  s_waitcnt vmcnt(0)')
    A(f'  ds_read_b32 {v(hD+4)}, {v(hW)}')
    A(f'  v_subrev_co_u32 {v(hD)}, vcc, {s(sT0)}, {v(hD)}')
    A(f'  v_subb_co_u32 {v(hD+1)}, vcc, {v(hD+1)}, {v(hD+2)}, vcc')
    A(f'  v_lshrrev_b32 {v(hD+2)}, 24, {v(hD)}')
    A(f'  v_or_b32 {v(hD+1)}, {v(hD+1)}, {v(hD+2)}')
    A(f'  v_cmp_eq_u32 vcc, 0, {v(hD+1)}')
    A(f'  v_cndmask_b32 {v(hD)}, 0, {v(hD)}, vcc')
    A(f'  s_bcnt1_i32_b32 {s(sB)}, vcc_lo')
    for r in (8, 4, 2, 1):
        A(f'  v_add_u32_dpp {v(hD)}, {v(hD)}, {v(hD)} row_ror:{r} row_mask:0xf bank_mask:0xf')
    A(f'  v_readlane_b32 {s(sA)}, {v(hD)}, 0')
    A(f'  v_readlane_b32 {s(sT)}, {v(hD)}, 16')
    A(f'  v_subrev_u32 {v(hD)}, {s(sT0)}, {v(hT)}')
    A(f'  v_mul_lo_u32 {v(hD)}, {v(hD)}, {s(sB)}')
    A(f'  s_add_u32 {s(sA)}, {s(sA)}, {s(sT)}')
    A(f'  s_max_u32 {s(sB)}, {s(sB)}, 1')
    A(f'  v_subrev_u32 {v(hD)}, {s(sA)}, {v(hD)}')
    A(f'  v_cvt_f32_u32 {v(hD+1)}, {s(sB)}')
    A(f'  v_cvt_f32_i32 {v(hD)}, {v(hD)}')
    A(f'  v_rcp_f32 {v(hD+1)}, {v(hD+1)}')
    A(f'  v_mul_f32 {v(hD)}, {v(hD)}, {v(hD+1)}')
    A(f'  v_cvt_i32_f32 {v(hD)}, {v(hD)}')
    A('  s_waitcnt lgkmcnt(0)')
    A(f'  v_add_u32 {v(hD+4)}, {W}, {v(hD+4)}')
    C('subtract what the running catch-up gains between the check point and the first unit that sees the new limit')
    A(f'  v_min_u32 {v(hD+1)}, {v(hU)}, {v(hD+4)}')
    A(f'  v_subrev_u32 {v(hD+1)}, {s(sCP)}, {v(hD+1)}')
    A(f'  v_max_i32 {v(hD+1)}, 0, {v(hD+1)}')
    A(f'  v_lshrrev_b32 {v(hD+1)}, 1, {v(hD+1)}')
    A(f'  v_mul_u32_u24 {v(hD+1)}, {gain}, {v(hD+1)}')
    A(f'  v_sub_u32 {v(hD)}, {v(hD)}, {v(hD+1)}')
    A(f'  v_add_u32 {v(hD+1)}, {gain // 2 - dead}, {v(hD)}')
    A(f'  v_max_i32 {v(hD+1)}, 0, {v(hD+1)}')
    A(f'  v_min_i32 {v(hD+1)}, 2000, {v(hD+1)}')
    A(f'  v_mul_u32_u24 {v(hD+1)}, {65536 // gain}, {v(hD+1)}')
    A(f'  v_lshrrev_b32 {v(hD+1)}, 16, {v(hD+1)}')
    A(f'  v_cmp_ne_u32 vcc, 0, {v(hD+1)}')
    A(f'  v_lshl_add_u32 {v(hD+1)}, {v(hD+1)}, 1, {v(hD+4)}')
    A(f'  v_cndmask_b32 {v(hU)}, 0, {v(hD+1)}, vcc')
    A(f'  ds_write_b32 {v(hW)}, {v(hU)} offset:{F_BST - F_PRG}')
    A('L_h_cpnext:')
    A(f'  s_add_u32 {s(sCP)}, {s(sCP)}, {step}')
    A(f'  s_add_u32 {s(sCA)}, {s(sCA)}, 256')
    A('  s_branch L_h_cp')
    A('L_code_end:')
    body = pad(L)

    nva = (nv + 7) // 8 * 8
    out = HDR + f'; @launch grid=(256,1,1) block=({64*(W+1)},1,1) lds={lds}\n' + NOTES
    out += '.amdgcn_target "amdgcn-amd-amdhsa--gfx950"\n.text\n'
    out += f'.globl {NAME}\n.p2align 8\n.type {NAME},@function\n'
    out += '\n'.join(body) + '\n'
    out += f'''.section .rodata,"a"
.p2align 6
.amdhsa_kernel {NAME}
  .amdhsa_next_free_vgpr {nva}
  .amdhsa_next_free_sgpr 102
  .amdhsa_accum_offset {nva}
  .amdhsa_group_segment_fixed_size 0
  .amdhsa_kernarg_size 80
  .amdhsa_user_sgpr_count 2
  .amdhsa_user_sgpr_kernarg_segment_ptr 1
  .amdhsa_system_sgpr_workgroup_id_x 1
  .amdhsa_float_denorm_mode_32 3
.end_amdhsa_kernel
'''
    return out

if __name__ == '__main__':
    kw = {}
    for x in sys.argv[2:]:
        k, val = x.split('=')
        kw[k] = int(val)
    open(sys.argv[1], 'w').write(gen(**kw))
```

```python
import sys, os
sys.path.insert(0, os.path.dirname(os.path.abspath(__file__)))
from asmlib import pad
NAME = 'standalone__kv_cache_quant_int4_int2_kv_with_per_channel_or_per_token_scales__sampling_kernel'
TOTAL = 256 * 4096 * 768
REC = 5120
WS_REC = 1 << 20
WS_CP = 7 << 20
WS_FLAG = (7 << 20) + (1 << 16)
WS_IMG = 8 << 20
WS_END = WS_IMG + (16 << 20)
IMG = 96 * 384
OOB = 0x7ffffff0
HDR = open(os.path.join(os.path.dirname(os.path.abspath(__file__)), 'header.txt')).read()
assert all(((32 * c + 1) * 21846) >> 16 == (32 * c + 1) // 3 for c in range(25))
assert all((c * 43) >> 8 == c // 6 for c in range(24))
assert all((x * 21846) >> 16 == x // 3 for x in range(100))

NOTES = """\
"""

class Alloc:
    def __init__(self, start): self.n = start
    def __call__(self, k, align=1):
        self.n = (self.n + align - 1) // align * align
        r = self.n; self.n += k
        return r

def v(r, k=1): return f'v{r}' if k == 1 else f'v[{r}:{r+k-1}]'
def s(r, k=1): return f's{r}' if k == 1 else f's[{r}:{r+k-1}]'

def merge(main, side):
    out = []; side = list(side)
    for m in main:
        out.append(m)
        if side: out.append(side.pop(0))
    return out + side

def gen(DN=10, D=15, bev=3, NWU=8, NS=3, NV=8, pfw=16, PSK=17, gain=28, dly=4, dead=0, cp0=12, step=8, last=186,
        force=-1, stamps=0, tl=0, touch=1, tlb=0, diagpad=0, diagat=-1, early=1, stouch=0):
    W, U, NST, NF, PSV = 2, 2, 33, 96, 3
    R = 11 * U
    SW = NST - D
    assert DN <= D < R and NWU % 8 == 0 and PSV < SW and 3 <= PSK < SW
    L = []
    A = L.append
    C = lambda t: L.append('; ' + t)
    va = Alloc(1)
    DUP = va(1); DOWN = va(1); DCON = va(1)
    RING = va(4 * R, 4); VO = va(4)
    ICV = va(1); TU = va(1); VVS = va(1); VL1 = va(1); VL2 = va(1); VBP = va(1); VFL = va(1); VST = va(1); VPR = va(1)
    VOOB = va(1); VBS = va(1)
    T = va(4, 2); ZN = va(1); SN = va(1); ZC = va(1); SC = va(1); ZS = va(2, 2)
    LG = va(6, 4); ACC = va(12, 4); M = va(1); NB = va(2, 2); LS = NB + 1
    X0 = va(2, 2); X1 = X0 + 1; AL = va(1); ALQ = va(1); E = va(11); PP = va(6); TL = va(1)
    base = va.n
    QB = va(6, 4); QN = va(6, 2); KSR = va(6, 2); KZR = va(6, 2); KS = va(12, 2); KZ = va(12, 2); KA = va(6, 4); SD = va(4, 4); S = va(2, 2)
    IUP = va(1); IOWN = va(1); ICON = va(1); VKS0 = va(1); VKS = va(1); VQ = va(1); VNI = va(1)
    kend = va.n
    va.n = base
    AJ = va(16, 4); AK = va(8, 2); TV = va(12, 2); BV = va(48, 4)
    nv = max(va.n, kend)
    sRO, sPB = 4, 5
    SK, SV, SI, SKS, SKZ, SVS, SVZ, SQ, SWS = 8, 12, 16, 20, 24, 28, 32, 36, 40
    PT = 44
    sREC, sOUT, sL0, sL10, sM0, sM10, sLOW = 44, 46, 48, 50, 52, 54, 56
    sCUR, sNXT, sSO, s768, sF, sMSK, sL2E, sTL, sSCL, sT = 60, 61, 62, 63, 64, 65, 66, 67, 68, 70
    sMJ = 72
    sDBG, sWS = 80, 82
    sQ3, sC, sQC, sCC, sHC, sHN, sDIV, sSH = 84, 85, 86, 87, 88, 89, 90, 91
    sBIG, sSM = 92, 94
    sDEC, sG, sGATE, sSEG = 96, 97, 99, 100
    SEG = W * 3072 + W * 32
    LDS_ACC = IMG
    LDS_F = LDS_ACC + 4 * SEG
    F_DEC, F_IMP, F_TAG, F_PRG, F_BST = LDS_F, LDS_F + 4, LDS_F + 8, LDS_F + 16, LDS_F + 24
    lds = 62464
    assert LDS_F + 32 <= lds

    A(f'{NAME}:')
    A('  s_cmp_ge_u32 s2, 256')
    A('  s_cbranch_scc1 L_end')
    A(f'  s_load_dwordx16 {s(PT,16)}, s[0:1], 0')
    A(f'  s_load_dwordx4 {s(sDBG,4)}, s[0:1], 64')
    if stamps or diagpad: A('  s_memrealtime s[6:7]')
    C('s3 = wave, s4 = role in the pair, s5 = 32 * pair (first block of the first page)')
    A('  v_lshrrev_b32 v1, 6, v0')
    A('  v_and_b32 v0, 63, v0')
    A('  v_readfirstlane_b32 s3, v1')
    A(f'  s_bfe_u32 {s(sRO)}, s2, 0x10002')
    A(f'  s_lshr_b32 {s(sPB)}, s2, 3')
    A(f'  s_lshl_b32 {s(sPB)}, {s(sPB)}, 2')
    A(f'  s_and_b32 {s(sT)}, s2, 3')
    A(f'  s_add_u32 {s(sPB)}, {s(sPB)}, {s(sT)}')
    A(f'  s_lshl_b32 {s(sPB)}, {s(sPB)}, 5')
    SRDS = ((SKS, PT + 6, 256 * 24576), (SKZ, PT + 8, 256 * 24576), (SVS, PT + 10, 256 * 8192), (SVZ, PT + 12, 256 * 8192),
            (SK, PT + 2, TOTAL), (SQ, PT, 256 * 1536), (SI, PT + 2, TOTAL), (SV, PT + 4, TOTAL), (SWS, sWS, WS_END))
    for srd, p, nb in SRDS:
        A(f'  s_mov_b32 {s(srd+2)}, {nb}')
        A(f'  s_mov_b32 {s(srd+3)}, 0x20000')
    def make_srds(lo, hi):
        for srd, p, nb in SRDS[lo:hi]:
            A(f'  s_mov_b32 {s(srd)}, {s(p)}')
            A(f'  s_and_b32 {s(srd+1)}, {s(p+1)}, 0xffff')
    A(f'  s_cmp_eq_u32 s3, {W}')
    A('  s_cbranch_scc1 L_helper')

    C('================= streaming waves')
    cls, a, g, n = T, T + 1, T + 2, T + 3
    A(f'  v_and_b32 {v(cls)}, 3, v0')
    A(f'  v_bfe_u32 {v(a)}, v0, 2, 2')
    A(f'  v_lshrrev_b32 {v(g)}, 4, v0')
    A(f'  v_and_b32 {v(n)}, 15, v0')
    def stream_consts(x, up, own, con, lanepart):
        A(f'  v_and_b32 {v(own)}, 2, {v(x)}')
        A(f'  v_lshlrev_b32 {v(up)}, 5, {v(own)}')
        A(f'  v_add_u32 {v(up)}, 129, {v(up)}')
        A(f'  v_and_b32 {v(X1)}, 1, {v(x)}')
        A(f'  v_lshl_add_u32 {v(own)}, {v(X1)}, 2, {v(own)}')
        A(f'  v_mul_u32_u24 {v(X1)}, {43 * 768}, {v(X1)}')
        A(f'  v_add_u32 {v(con)}, {v(lanepart)}, {v(X1)}')
        A(f'  v_subrev_u32 {v(con)}, {43 * 768}, {v(con)}')
    A(f'  v_lshlrev_b32 {v(X0)}, 4, {v(cls)}')
    A(f'  v_lshl_add_u32 {v(X0)}, {v(g)}, 6, {v(X0)}')
    A(f'  v_lshrrev_b32 {v(VKS0)}, 1, {v(X0)}')
    stream_consts(a, IUP, IOWN, ICON, X0)
    A(f'  v_mul_u32_u24 {v(X1)}, 384, {v(a)}')
    A(f'  v_add_u32 {v(VQ)}, {v(X1)}, {v(VKS0)}')
    A(f'  v_mov_b32 {v(VOOB)}, {OOB}')
    A(f'  s_mov_b32 {s(sDIV)}, 0xaaaaaaab')
    A(f'  s_mov_b32 {s(sSH)}, 0x492492')
    A(f'  s_movk_i32 {s(s768)}, 768')
    def slot(k): return RING + 4 * (k % R)
    def main_load(k, srd, so):
        ss, i = divmod(k % NST, 3)
        r, k0 = (0, 0) if ss == 0 else (1, 1) if ss <= 5 else (2, 6) if ss <= 9 else (3, 10)
        return f'  buffer_load_dwordx4 {v(slot(k),4)}, {v(VO+r)}, {s(srd,4)}, {s(so)} offen offset:{768*(ss-k0) + 256*i} nt'
    def kscale_loads():
        A(f'  s_mul_i32 {s(sSO)}, {s(sQ3)}, 1536')
        for i in range(3):
            A(f'  buffer_load_dwordx2 {v(KSR+2*i,2)}, {v(VKS)}, {s(SKS,4)}, {s(sSO)} offen offset:{128*i}')
            A(f'  buffer_load_dwordx2 {v(KZR+2*i,2)}, {v(VKS)}, {s(SKZ,4)}, {s(sSO)} offen offset:{128*i}')
    def vscale_loads():
        A(f'  s_lshl_b32 {s(sSO)}, {s(sQ3)}, 9')
        A(f'  v_lshl_add_u32 {v(VVS)}, {v(TU)}, 1, {v(ICV)}')
        A(f'  buffer_load_short_d16_hi {v(ZN)}, {v(VVS)}, {s(SVZ,4)}, {s(sSO)} offen')
        A(f'  buffer_load_short_d16_hi {v(SN)}, {v(VVS)}, {s(SVS,4)}, {s(sSO)} offen')
    def q_loads():
        A(f'  s_mul_i32 {s(sT)}, {s(sHN)}, 1536')
        for i in range(3): A(f'  buffer_load_dwordx2 {v(QN+2*i,2)}, {v(VQ)}, {s(SQ,4)}, {s(sT)} offen offset:{128*i}')
    def short_masks(own, m0, m10, low):
        A(f'  v_add_u32 {v(X0)}, {s(sC)}, {v(own)}')
        A(f'  v_lshrrev_b32 {v(X1)}, {v(X0)}, {s(sSH)}')
        A(f'  v_and_b32 {v(X1)}, 1, {v(X1)}')
        A(f'  v_cmp_eq_u32 {s(m10,2)}, 1, {v(X1)}')
        A(f'  s_and_b64 {s(m0,2)}, {s(m10,2)}, {s(low,2)}')
        A(f'  s_andn2_b64 {s(m10,2)}, {s(m10,2)}, {s(low,2)}')
    def map_unit(f, isv):
        A(f'  s_lshr_b32 {s(sT+1)}, {s(f)}, 5')
        A(f'  s_lshr_b32 {s(sC)}, {s(sDEC)}, {s(sT+1)}')
        if isv:
            A(f'  s_bfe_u32 {s(sC)}, {s(sC)}, 0x10003')
            A(f'  s_add_u32 {s(sT)}, {s(f)}, {s(sPB)}')
        else:
            A(f'  s_andn2_b32 {s(sT)}, {s(f)}, 1')
            A(f'  s_or_b32 {s(sT)}, {s(sT)}, {s(sRO)}')
            A(f'  s_cmp_lt_u32 {s(f)}, {NWU}')
            A(f'  s_cselect_b32 {s(sT)}, {s(sT)}, {s(f)}')
            A(f'  s_cselect_b32 {s(sC)}, {s(f)}, {s(sC)}')
            A(f'  s_and_b32 {s(sC)}, {s(sC)}, 1')
            A(f'  s_add_u32 {s(sT)}, {s(sT)}, {s(sPB)}')
        A(f'  s_mul_i32 {s(sT+1)}, {s(sT+1)}, {4096 - 32}')
        A(f'  s_add_u32 {s(sT)}, {s(sT)}, {s(sT+1)}')
        A(f'  s_mul_hi_u32 {s(sQ3)}, {s(sT)}, {s(sDIV)}')
        A(f'  s_lshr_b32 {s(sQ3)}, {s(sQ3)}, 1')
        A(f'  s_mul_i32 {s(sT+1)}, {s(sQ3)}, 3')
        A(f'  s_sub_u32 {s(sT)}, {s(sT)}, {s(sT+1)}')
        A(f'  s_lshl3_add_u32 {s(sC)}, {s(sT)}, {s(sC)}')
        A(f'  s_mul_i32 {s(sNXT)}, {s(sQ3)}, 196608')
        A(f'  s_lshr_b32 {s(sHN)}, {s(sQ3)}, 4')
        A(f'  s_lshl_b32 {s(sT)}, {s(sC)}, 5')
        A(f'  v_add_u32 {v(TU)}, {s(sT)}, {v(DUP if isv else IUP)}')
        A(f'  v_mul_u32_u24 {v(TU)}, 21846, {v(TU)}')
        A(f'  v_lshrrev_b32 {v(TU)}, 16, {v(TU)}')
        short_masks(DOWN if isv else IOWN, sM0, sM10, sLOW + 2 * isv)
        if not isv:
            A(f'  v_mul_u32_u24 {v(X0)}, 43, {v(X0)}')
            A(f'  v_lshrrev_b32 {v(X0)}, 8, {v(X0)}')
            A(f'  v_mul_u32_u24 {v(X0)}, 384, {v(X0)}')
            A(f'  v_add_u32 {v(VKS)}, {v(X0)}, {v(VKS0)}')
    def offsets(con):
        A(f'  v_mad_u32_u24 {v(VO)}, {v(TU)}, {s(s768)}, {v(con)}')
        A(f'  v_add_u32 {v(VO+1)}, 768, {v(VO)}')
        A(f'  v_add_u32 {v(VO+2)}, {6 * 768}, {v(VO)}')
        A(f'  v_add_u32 {v(VO+3)}, {10 * 768}, {v(VO)}')
        A(f'  v_cndmask_b32 {v(VO)}, {v(VO)}, {v(VOOB)}, {s(sM0,2)}')
        A(f'  v_cndmask_b32 {v(VO+3)}, {v(VO+3)}, {v(VOOB)}, {s(sM10,2)}')
    def stamp():
        if tl:
            A(f'  s_memrealtime {s(sT,2)}')
            A('  s_waitcnt lgkmcnt(0)')
            A(f'  s_min_u32 m0, {s(sTL)}, 63')
            A(f'  v_writelane_b32 {v(TL)}, {s(sT)}, m0')
            A(f'  s_add_u32 {s(sTL)}, {s(sTL)}, 1')
    def reset_state():
        for k in range(12): A(f'  v_mov_b32 {v(ACC+k)}, 0')
        A(f'  v_mov_b32 {v(M)}, 0xff800000')
        A(f'  v_mov_b32 {v(NB)}, 0x7f800000')
        A(f'  v_mov_b32 {v(LS)}, 0')
    A(f'  s_mov_b32 {s(sF)}, s3')
    A(f'  s_mov_b32 {s(sGATE)}, {NWU}')
    A(f'  s_mov_b32 {s(sDEC)}, 0')
    C('one bulk pass pulls the scale/zero arrays into the memory-side cache (1/512 per wave); later reads of them stay off DRAM')
    A(f'  v_lshlrev_b32 {v(ZC)}, 4, v0')
    sPK, sPV = sQC, sHC
    A(f'  s_lshl1_add_u32 {s(sT)}, s2, s3')
    A(f'  s_mul_i32 {s(sPV)}, {s(sT)}, {8192 // W}')
    A(f'  s_mul_i32 {s(sPK)}, {s(sT)}, {24576 // W}')
    line = lambda srd, so, k: f'  buffer_load_dwordx4 {v(ACC,4)}, {v(ZC)}, {s(srd,4)}, {s(so)} offen offset:{(k % 4) * 1024}'
    pfl = []
    for k in range(24 // W):
        if k % 4 == 0 and k: pfl.append(f'  s_add_u32 {s(sPK)}, {s(sPK)}, 4096')
        pfl += [line(SKS, sPK, k), line(SKZ, sPK, k)]
        if k < 8 // W: pfl += [line(SVS, sPV, k), line(SVZ, sPV, k)]
    nissued = [0]
    def issue_pf(cnt):
        while pfl and cnt > 0:
            x = pfl.pop(0)
            if 'buffer_load' in x:
                if nissued[0] >= pfw: A(f'  s_waitcnt vmcnt({pfw - 1})')
                nissued[0] += 1; cnt -= 1
            A(x)
    A('  s_waitcnt lgkmcnt(0)')
    make_srds(0, 4)
    issue_pf(8)
    make_srds(4, 9)
    A(f'  s_mov_b64 {s(sOUT,2)}, {s(PT+14,2)}')
    A(f'  s_mov_b32 {s(sLOW)}, 0x0f0f0f0f')
    A(f'  s_mov_b32 {s(sLOW+1)}, 0x0f0f0f0f')
    A(f'  s_mov_b32 {s(sLOW+2)}, 0xffff')
    A(f'  s_mov_b32 {s(sLOW+3)}, 0xffff')
    map_unit(sF, 0)
    offsets(ICON)
    A(f'  s_mov_b32 {s(sCUR)}, {s(sNXT)}')
    if early:
        q_loads()
        A(main_load(0, SK, sCUR))
    issue_pf(pfw - nissued[0])
    A('  s_barrier')
    A('  s_mov_b64 vcc, 0')
    A(f'  v_lshlrev_b32 {v(X0)}, 4, {v(n)}')
    stream_consts(g, DUP, DOWN, DCON, X0)
    A(f'  v_and_b32 {v(X1)}, 1, {v(g)}')
    A(f'  v_mul_u32_u24 {v(X1)}, 86, {v(X1)}')
    A(f'  v_lshl_add_u32 {v(ICV)}, {v(n)}, 1, {v(X1)}')
    A(f'  v_subrev_u32 {v(ICV)}, 86, {v(ICV)}')
    A(f'  v_lshlrev_b32 {v(VBP)}, 4, {v(g)}')
    A(f'  v_lshrrev_b32 {v(X0)}, 2, v0')
    A(f'  s_mul_i32 {s(sT)}, s3, 384')
    A(f'  v_lshl_add_u32 {v(VL1)}, {v(X0)}, 4, {s(sT)}')
    A(f'  v_lshl_add_u32 {v(VL2)}, {v(X0)}, 3, {s(sT)}')
    A(f'  s_mul_i32 {s(sT)}, s3, 3072')
    A(f'  s_add_u32 {s(sT)}, {s(sT)}, {LDS_ACC}')
    A(f'  v_lshl_add_u32 {v(VFL)}, v0, 4, {s(sT)}')
    A(f'  s_lshl_b32 {s(sT)}, s3, 5')
    A(f'  s_add_u32 {s(sT)}, {s(sT)}, {LDS_ACC + W * 3072}')
    A(f'  v_lshl_add_u32 {v(VST)}, {v(a)}, 3, {s(sT)}')
    A(f'  s_lshl2_add_u32 {s(sT)}, s3, {F_PRG}')
    A(f'  v_mov_b32 {v(VPR)}, {s(sT)}')
    A(f'  v_mov_b32 {v(ZN)}, 0')
    A(f'  v_mov_b32 {v(SN)}, 0')
    A(f'  v_mov_b32 {v(VNI)}, 0xff800000')
    A(f'  v_mov_b32 {v(AL)}, 1')
    A(f'  s_mov_b32 {s(sMSK)}, 0xffff0000')
    A(f'  s_mov_b32 {s(sL2E)}, 0x3fb8aa3b')
    for h in range(2):
        A(f'  s_mov_b32 {s(sSCL+h)}, {hex(0x3d93cd3a + (22 << 23))}')
        A(f'  s_mov_b32 {s(sBIG+h)}, 0x7f000000')
        A(f'  s_mov_b32 {s(sSM+h)}, {hex((127 - 22) << 23)}')
        A(f'  s_mov_b32 {s(sREC+h)}, 0')
    for j in range(4):
        A(f'  s_mov_b32 {s(sMJ+2*j)}, {hex(0x11111111 << j)}')
        A(f'  s_mov_b32 {s(sMJ+2*j+1)}, {hex(0x11111111 << j)}')
    A(f'  s_mov_b32 {s(sSEG)}, 0')
    if tl:
        A(f'  s_mov_b32 {s(sTL)}, 0')
        A(f'  v_mov_b32 {v(TL)}, 0')
    issue_pf(99)
    A(f'  s_mov_b32 {s(sHC)}, {s(sHN)}')
    if not early:
        q_loads()
        A(main_load(0, SK, sCUR))
    kscale_loads()
    for k in range(1, D):
        A(f'  s_waitcnt vmcnt({max(DN, k) - 1 + 6})')
        A(main_load(k, SK, sCUR))
    A(f'  s_waitcnt vmcnt({D - 1})')
    A(f'  ds_write_b32 {v(VPR)}, {v(AL)}')

    def wait_step(k, nsmall, tag, ps):
        cnt = lambda d: d - 1 + (nsmall if k - d <= ps < k else 0)
        A(f'  s_waitcnt vmcnt({cnt(D)})')
        if k % bev == 0:
            A(f'  s_cbranch_vccnz L_{tag}')
            A(f'  s_waitcnt vmcnt({cnt(DN)})')
            A(f'L_{tag}:')
    def mode(k):
        if k == 0: A(f'  ds_read_b32 {v(VBS)}, {v(VPR)} offset:{F_BST - F_PRG}')
        if k == 1:
            A('  s_waitcnt lgkmcnt(0)')
            A(f'  v_cmp_lt_u32 vcc, {s(sG)}, {v(VBS)}')
    def dequant(X, src, z, sc, zmod, smod):
        r = [f'  v_pk_fma_f32 {v(X+2*h,2)}, {v(src+2*h,2)}, {s(sBIG,2)}, {z[h]} {zmod}neg_lo:[0,0,1] neg_hi:[0,0,1]' for h in range(2)]
        r2 = [f'  v_cvt_pk_bf16_f32 {v(X+j)}, 0, {v(X+j)}' for j in range(4)]
        r2 += [f'  v_pk_mul_f32 {v(X+2*h,2)}, {v(X+2*h,2)}, {sc[h]} {smod}'.rstrip() for h in range(2)]
        return r, r2
    def kreduce(ss):
        d = S + (ss & 1)
        q = lambda j: f'quad_perm:[{j},{j},{j},{j}] row_mask:0xf bank_mask:0xf'
        r = [f'  v_mov_b32_dpp {v(X0)}, {v(SD)} {q(0)}',
             f'  v_mov_b32_dpp {v(X1)}, {v(SD+2)} {q(2)}',
             f'  v_add_f32_dpp {v(X0)}, {v(SD+1)}, {v(X0)} {q(1)}',
             f'  v_add_f32_dpp {v(X1)}, {v(SD+3)}, {v(X1)} {q(3)}',
             f'  v_add_f32 {v(d)}, {v(X0)}, {v(X1)}']
        if ss == 0: r.append(f'  v_cndmask_b32 {v(d)}, {v(d)}, {v(VNI)}, {s(sL0,2)}')
        if ss == 10: r.append(f'  v_cndmask_b32 {v(d)}, {v(d)}, {v(VNI)}, {s(sL10,2)}')
        if ss & 1 or ss == 10:
            r += [f'  v_cvt_pk_bf16_f32 {v(S)}, 0, {v(S)}',
                  f'  v_cvt_pk_bf16_f32 {v(S+1)}, 0, {v(S+1)}',
                  f'  v_pk_mul_f32 {v(S,2)}, {v(S,2)}, {s(sSCL,2)}',
                  f'  v_cvt_pk_bf16_f32 {v(LG+(ss>>1))}, {v(S)}, {v(S+1)}']
        return r
    def lds_word(dst, addr):
        A(f'  v_mov_b32 {v(X0)}, {addr}')
        A(f'  ds_read_b32 {v(X0)}, {v(X0)}')
        A('  s_waitcnt lgkmcnt(0)')
        A(f'  v_readfirstlane_b32 {s(dst)}, {v(X0)}')

    mf32 = f'  v_mfma_f32_16x16x32_bf16 {v(SD,4)}, {v(KA,4)}, {v(QB,4)}, 0'
    mf16 = f'  v_mfma_f32_16x16x16_bf16 {v(SD,4)}, {v(KA+4,2)}, {v(QB+4,2)}, {v(SD,4)}'
    def diag_mark(tag, base_):
        if diagat < 0: return
        A(f'  s_and_b32 {s(sT)}, {s(sF)}, -4')
        A(f'  s_cmp_lg_u32 {s(sT)}, {diagat - base_}')
        A(f'  s_cbranch_scc1 L_dm{tag}')
        A('  s_memrealtime s[6:7]')
        A('  s_waitcnt lgkmcnt(0)')
        A(f'L_dm{tag}:')
    def k_unit(u):
        o = NST * u
        if u == 0: diag_mark('k', 0)
        if u == 0: stamp()
        short_masks(DOWN, sL0, sL10, sLOW + 2)
        A(f'  s_mov_b32 {s(sG)}, {s(sF)}')
        A(f'  s_add_u32 {s(sF)}, {s(sF)}, {W}')
        for k in range(NST):
            ss, i = divmod(k, 3)
            mode(k)
            if k == SW:
                if u == U - 1:
                    C('the last K unit prefetches the first V unit')
                    A(f'  s_cmp_lt_u32 {s(sF)}, {NF}')
                    A('  s_cbranch_scc1 L_k_keep')
                    map_unit(3, 1)
                    A(f'  s_mov_b32 {s(SI)}, {s(SV)}')
                    A(f'  s_mov_b32 {s(SI+1)}, {s(SV+1)}')
                    vscale_loads()
                    A(f'  v_mov_b32 {v(ICON)}, {v(DCON)}')
                    A('L_k_keep:')
                offsets(ICON)
            wait_step(k, 6, f'kw{u}_{k}', PSK)
            A(main_load(o + k + D, SK, sCUR) if k < SW else main_load(o + k + D, SI, sNXT))
            if i == 2: A(mf32)
            if i == 0 and ss > 0: A(mf16)
            if ss == 0:
                for raw, dst in ((KZR, KZ), (KSR, KS)):
                    for h in range(2):
                        A(f'  v_lshlrev_b32 {v(dst+4*i+2*h)}, 16, {v(raw+2*i+h)}')
                        A(f'  v_and_b32 {v(dst+4*i+2*h+1)}, {s(sMSK)}, {v(raw+2*i+h)}')
                for h in range(2):
                    A(f'  v_pk_mul_f32 {v(KZ+4*i+2*h,2)}, {v(KZ+4*i+2*h,2)}, {s(sSM,2)}')
                    A(f'  v_mov_b32 {v(QB+2*i+h)}, {v(QN+2*i+h)}')
            c, rest = dequant(T, slot(o + k), (v(KZ+4*i,2), v(KZ+4*i+2,2)), (v(KS+4*i,2), v(KS+4*i+2,2)), '', '')
            for x in c: A(x)
            if k == PSK:
                C('next unit: class (needs the vote once), scales, q on a head change')
                A(f'  s_cmp_lt_u32 {s(sF)}, {s(sGATE)}')
                A(f'  s_cbranch_scc1 L_k_known{u}')
                A(f'L_k_spin{u}:')
                lds_word(sDEC, F_DEC)
                A(f'  s_cmp_eq_u32 {s(sDEC)}, 0')
                A(f'  s_cbranch_scc1 L_k_spin{u}')
                A(f'  s_mov_b32 {s(sGATE)}, -1')
                A(f'L_k_known{u}:')
                map_unit(sF, 0)
                A(f'  s_cmp_eq_u32 {s(sHN)}, {s(sHC)}')
                A(f'  s_cbranch_scc1 L_k_sameq{u}')
                q_loads()
                A(f'  s_mov_b32 {s(sHC)}, {s(sHN)}')
                A(f'L_k_sameq{u}:')
                kscale_loads()
            rest += [f'  v_cvt_pk_bf16_f32 {v(KA+2*i)}, {v(T)}, {v(T+1)}',
                     f'  v_cvt_pk_bf16_f32 {v(KA+2*i+1)}, {v(T+2)}, {v(T+3)}']
            if i == 1 and ss > 0:
                r = kreduce(ss - 1)
                rest = r[:2] + rest[:2] + r[2:4] + rest[2:4] + r[4:5] + rest[4:]
                pend = r[5:]
            elif i == 2 and ss > 0:
                rest = merge(rest, pend)
            for x in rest: A(x)
        A(f'  s_mov_b32 {s(sCUR)}, {s(sNXT)}')
        A(f'  v_mov_b32 {v(AL)}, {s(sF)}')
        A(mf16)
        A(f'  ds_write_b128 {v(VL1)}, {v(LG,4)}')
        A(f'  v_add_u32 {v(VL1)}, {384 * W}, {v(VL1)}')
        for x in kreduce(10): A(x)
        A(f'  ds_write_b64 {v(VL2)}, {v(LG+4,2)} offset:256')
        A(f'  ds_write_b32 {v(VPR)}, {v(AL)}')
        A(f'  v_add_u32 {v(VL2)}, {384 * W}, {v(VL2)}')
    C('---------------- K loop: two units per trip')
    A('L_k:')
    for u in range(U): k_unit(u)
    A(f'  s_cmp_lt_u32 {s(sF)}, {NF}')
    A('  s_cbranch_scc1 L_k')

    def flush():
        C('park the partial result of the finished head segment; record id = head*4 + 2*(segment ends the head) + class')
        A(f'  v_mov_b32 {v(X1)}, {v(LS)}')
        A(f'  v_permlane32_swap_b32 {v(LS)}, {v(X1)}')
        A(f'  v_add_f32 {v(LS)}, {v(LS)}, {v(X1)}')
        A(f'  v_mov_b32 {v(X1)}, {v(LS)}')
        A(f'  v_permlane16_swap_b32 {v(LS)}, {v(X1)}')
        A(f'  v_add_f32 {v(LS)}, {v(LS)}, {v(X1)}')
        A(f'  ds_write_b64 {v(VST)}, {v(NB,2)}')
        for i in range(3):
            A(f'  ds_write_b128 {v(VFL)}, {v(ACC+4*i,4)} offset:{1024*i}')
        A(f'  s_and_b32 {s(sT)}, {s(sQC)}, 15')
        A(f'  s_cmp_ge_u32 {s(sT)}, 12')
        A(f'  s_cselect_b32 {s(sT)}, 2, 0')
        A(f'  s_and_b32 {s(sT+1)}, {s(sCC)}, 1')
        A(f'  s_add_u32 {s(sT)}, {s(sT)}, {s(sT+1)}')
        A(f'  s_lshr_b32 {s(sT+1)}, {s(sQC)}, 4')
        A(f'  s_lshl2_add_u32 {s(sT)}, {s(sT+1)}, {s(sT)}')
        for j in range(2):
            A(f'  s_add_u32 {s(sT+1)}, s3, {W * j}')
            A(f'  s_cmp_eq_u32 {s(sSEG)}, {s(sT+1)}')
            A(f'  s_cselect_b32 {s(sREC+j)}, {s(sT)}, {s(sREC+j)}')
        A(f'  s_add_u32 {s(sSEG)}, {s(sSEG)}, 1')
        A('  s_waitcnt lgkmcnt(0)')
    def import_gate(tag):
        A(f'  s_cmp_lt_u32 {s(sF)}, {s(sGATE)}')
        A(f'  s_cbranch_scc1 L_{tag}_ok')
        A(f'L_{tag}_spin:')
        lds_word(sGATE, F_IMP)
        A(f'  s_cmp_lt_u32 {s(sF)}, {s(sGATE)}')
        A(f'  s_cbranch_scc0 L_{tag}_spin')
        A(f'L_{tag}_ok:')

    C('---------------- V loop: two units per trip')
    A(f'  v_subrev_u32 {v(VL1)}, {IMG}, {v(VL1)}')
    A(f'  v_subrev_u32 {v(VL2)}, {IMG}, {v(VL2)}')
    A(f'  s_mov_b32 {s(sF)}, s3')
    A(f'  s_mov_b32 {s(sHC)}, {s(sHN)}')
    A(f'  s_mov_b32 {s(sGATE)}, 0')
    A(f'  s_mov_b32 {s(SQ)}, {s(sOUT)}')
    A(f'  s_and_b32 {s(SQ+1)}, {s(sOUT+1)}, 0xffff')
    import_gate('v0')
    A(f'  ds_read_b128 {v(LG,4)}, {v(VL1)}')
    A(f'  ds_read_b64 {v(LG+4,2)}, {v(VL2)} offset:256')
    reset_state()
    def v_unit(u):
        o = NST * u
        A(f'L_v{u}:')
        if u == 0: diag_mark('v', NF)
        if u == 0: stamp()
        A(f'  s_add_u32 {s(sG)}, {s(sF)}, {NF}')
        A(f'  v_mov_b32 {v(AL)}, {s(sG)}')
        A(f'  s_mov_b32 {s(sQC)}, {s(sQ3)}')
        A(f'  s_mov_b32 {s(sCC)}, {s(sC)}')
        A(f'  ds_write_b32 {v(VPR)}, {v(AL)}')
        A(f'  s_add_u32 {s(sF)}, {s(sF)}, {W}')
        import_gate(f'v1{u}')
        map_unit(sF, 1)
        A(f'  s_cmp_lt_u32 {s(sF)}, {NF}')
        A(f'  s_cselect_b32 {s(sNXT)}, {s(sNXT)}, {TOTAL}')
        prep = []
        for k in range(11):
            prep.append(f'  v_lshlrev_b32 {v(E+k)}, 16, {v(LG+k//2)}' if k % 2 == 0 else f'  v_and_b32 {v(E+k)}, {s(sMSK)}, {v(LG+k//2)}')
        prep += [f'  v_add_u32 {v(VL1)}, {384 * W}, {v(VL1)}',
                 f'  v_add_u32 {v(VL2)}, {384 * W}, {v(VL2)}',
                 f'  v_max3_f32 {v(X0)}, {v(E)}, {v(E+1)}, {v(E+2)}',
                 f'  ds_read_b128 {v(LG,4)}, {v(VL1)}',
                 f'  ds_read_b64 {v(LG+4,2)}, {v(VL2)} offset:256',
                 f'  v_max3_f32 {v(X1)}, {v(E+3)}, {v(E+4)}, {v(E+5)}',
                 f'  v_max3_f32 {v(X0)}, {v(X0)}, {v(E+6)}, {v(E+7)}',
                 f'  v_max3_f32 {v(X1)}, {v(X1)}, {v(E+8)}, {v(E+9)}',
                 f'  v_max3_f32 {v(X0)}, {v(X0)}, {v(E+10)}, {v(M)}',
                 f'  v_max_f32 {v(X0)}, {v(X0)}, {v(X1)}',
                 f'  v_mov_b32 {v(X1)}, {v(X0)}',
                 f'  v_permlane32_swap_b32 {v(X0)}, {v(X1)}',
                 f'  v_max_f32 {v(X0)}, {v(X0)}, {v(X1)}',
                 f'  v_mov_b32 {v(X1)}, {v(X0)}',
                 f'  v_permlane16_swap_b32 {v(X0)}, {v(X1)}',
                 f'  v_max_f32 {v(M)}, {v(X0)}, {v(X1)}',
                 f'  v_mul_f32 {v(X0)}, {s(sL2E)}, {v(M)}',
                 f'  v_add_f32 {v(AL)}, {v(X0)}, {v(NB)}',
                 f'  v_sub_f32 {v(NB)}, 0, {v(X0)}',
                 f'  v_exp_f32 {v(AL)}, -{v(AL)}',
                 f'  ds_bpermute_b32 {v(ALQ)}, {v(VBP)}, {v(AL)}']
        for k in range(11):
            prep += [f'  v_fma_f32 {v(E+k)}, {v(E+k)}, {s(sL2E)}, {v(NB)}', f'  v_exp_f32 {v(E+k)}, {v(E+k)}']
        prep += [f'  v_add_f32 {v(X0)}, {v(E)}, {v(E+1)}', f'  v_add_f32 {v(X1)}, {v(E+2)}, {v(E+3)}']
        for k in range(4, 11):
            x = X0 if k % 2 == 0 else X1
            prep.append(f'  v_add_f32 {v(x)}, {v(x)}, {v(E+k)}')
        prep += [f'  v_add_f32 {v(X0)}, {v(X0)}, {v(X1)}',
                 f'  v_fma_f32 {v(LS)}, {v(LS)}, {v(AL)}, {v(X0)}']
        for k in range(6):
            prep.append(f'  v_cvt_pk_bf16_f32 {v(PP+k)}, {v(E+2*k)}, {v(E+2*k+1) if k < 5 else 0}')
        for j in range(4):
            for k in range(4):
                prep.append(f'  v_cndmask_b32 {v(AJ+4*j+k)}, 0, {v(PP+k)}, {s(sMJ+2*j,2)}')
        prep.append('  s_waitcnt lgkmcnt(0)')
        for k in range(12):
            prep.append(f'  v_mul_f32 {v(ACC+k)}, {v(ALQ)}, {v(ACC+k)}')
        prep2 = [f'  v_cndmask_b32 {v(AK+2*j+k)}, 0, {v(PP+4+k)}, {s(sMJ+2*j,2)}' for j in range(4) for k in range(2)]
        for k in range(NST):
            ss, i = divmod(k, 3)
            mode(k)
            if k == SW: offsets(DCON)
            wait_step(k, 2, f'vw{u}_{k}', PSV)
            A(main_load(o + k + D, SV, sCUR if k < SW else sNXT))
            if k == 0:
                A(f'  v_mul_f32 {v(ZC)}, {s(sSM)}, {v(ZN)}')
                A(f'  v_mul_f32 {v(SC)}, {hex((127 + 22) << 23)}, {v(SN)}')
            if i == 0:
                A(f'  v_mov_b32_dpp {v(ZS)}, {v(ZC)} row_newbcast:{ss} row_mask:0xf bank_mask:0xf')
                A(f'  v_mov_b32_dpp {v(ZS+1)}, {v(SC)} row_newbcast:{ss} row_mask:0xf bank_mask:0xf')
            X = TV + 4 * i if ss % 2 == 0 else T
            c, rest = dequant(X, slot(o + k), (v(ZS,2), v(ZS,2)), (v(ZS,2), v(ZS,2)), 'op_sel_hi:[1,1,0] ', 'op_sel:[0,1]')
            for x in c: A(x)
            if k == PSV: vscale_loads()
            if ss % 2 == 1:
                rest += [f'  v_cvt_pk_bf16_f32 {v(BV+16*i+4*j+((ss>>1)&3))}, {v(TV+4*i+j)}, {v(T+j)}' for j in range(4)]
            if ss == 10:
                rest += [f'  v_cvt_pk_bf16_f32 {v(BV+16*i+4*j+1)}, {v(TV+4*i+j)}, 0' for j in range(4)]
            side = []
            if k >= 1: side, prep = prep[:5], prep[5:]
            if k == 20: assert not prep
            if k == 23: prep = prep2
            for x in merge(rest, side): A(x)
            if ss == 7:
                for j in range(4):
                    A(f'  v_mfma_f32_16x16x32_bf16 {v(ACC+4*i,4)}, {v(AJ+4*j,4)}, {v(BV+16*i+4*j,4)}, {v(ACC+4*i,4)}')
            if ss == 10:
                assert not prep
                for j in range(4):
                    A(f'  v_mfma_f32_16x16x16_bf16 {v(ACC+4*i,4)}, {v(AK+2*j,2)}, {v(BV+16*i+4*j,2)}, {v(ACC+4*i,4)}')
        A(f'  s_mov_b32 {s(sCUR)}, {s(sNXT)}')
        if u == U - 1:
            A(f'  s_cmp_ge_u32 {s(sF)}, {NF}')
            A('  s_cbranch_scc1 L_v_done')
            A(f'  s_cmp_eq_u32 {s(sHN)}, {s(sHC)}')
            A('  s_cbranch_scc1 L_v0')
            A(f'  s_mov_b32 {s(sHC)}, {s(sHN)}')
            flush()
            A(f'  v_add_u32 {v(VFL)}, {SEG}, {v(VFL)}')
            A(f'  v_add_u32 {v(VST)}, {SEG}, {v(VST)}')
            reset_state()
            A('  s_branch L_v0')
    assert 16 % (W * U) == 0
    for u in range(U): v_unit(u)
    A('L_v_done:')
    stamp()
    A(f'  v_mov_b32 {v(X0)}, {F_TAG}')
    A(f'  ds_read_b32 {v(M)}, {v(X0)}')
    A(f'  v_lshlrev_b32 {v(ALQ)}, 4, v0')
    A(f'  s_mul_i32 {s(sT)}, s3, {SEG}')
    A(f'  v_add_u32 {v(E)}, {s(sT)}, {v(ALQ)}')
    A(f'  s_add_u32 {s(sT)}, {s(sT)}, {LDS_ACC + W * 3072}')
    A(f'  v_lshrrev_b32 {v(AL)}, 1, {v(VBP)}')
    A(f'  v_add_u32 {v(E+1)}, {s(sT)}, {v(AL)}')
    A(f'  v_add_u32 {v(E+2)}, {W * SEG}, {v(E+1)}')
    flush()
    A('  s_waitcnt vmcnt(0)')

    C('---------------- wave w merges segments w and w+2 over the two waves, publishes them or keeps the owned one')
    A('  s_barrier')
    ST = RING; AC = (base + 3) // 4 * 4
    nv = max(nv, AC + 60)
    for j in range(2):
        A(f'  ds_read2_b64 {v(ST+4*j,4)}, {v(E+1+j)} offset1:4')
        for w in range(W):
            for i in range(3):
                A(f'  ds_read_b128 {v(AC+12*(W*j+w)+4*i,4)}, {v(E)} offset:{LDS_ACC + W * j * SEG + 3072*w + 1024*i}')
    A(f'  s_mov_b32 {s(sSEG)}, -1')
    A(f'  s_add_u32 {s(sG)}, {s(sRO)}, 1')
    GR = RING + 8; OWN = GR + 40
    gi = lambda b, x: b + 4 * (x // 3) + x % 3
    for j in range(2):
        G = GR + 20 * j; st = ST + 4 * j; ac = AC + 24 * j
        A(f'  s_waitcnt lgkmcnt({7 * (1 - j)})')
        A(f'  v_min_f32 {v(gi(G,12))}, {v(st)}, {v(st+2)}')
        for w in range(2): A(f'  v_sub_f32 {v(st+2*w)}, {v(gi(G,12))}, {v(st+2*w)}')
        for w in range(2): A(f'  v_exp_f32 {v(st+2*w)}, {v(st+2*w)}')
        for x in range(13):
            a0, a1, d_ = (st + 1, st + 3, gi(G, 13)) if x == 12 else (ac + x, ac + 12 + x, gi(G, x))
            A(f'  v_mul_f32 {v(d_)}, {v(st)}, {v(a0)}')
            A(f'  v_fma_f32 {v(d_)}, {v(st+2)}, {v(a1)}, {v(d_)}')
        A(f'  s_bfe_u32 {s(sT)}, {s(sREC+j)}, 0x20001')
        A(f'  s_cmp_eq_u32 {s(sT)}, {s(sG)}')
        A(f'  s_cbranch_scc1 L_own{j}')
        for g_ in range(5): A(f'  v_mov_b32 {v(G+4*g_+3)}, {v(M)}')
        A(f'  s_mul_i32 {s(sT)}, {s(sREC+j)}, {REC}')
        A(f'  s_add_u32 {s(sT)}, {s(sT)}, {WS_REC}')
        A(f'  s_add_u32 {s(sT+1)}, {s(sT)}, 4096')
        for g_ in range(5):
            A(f'  buffer_store_dwordx4 {v(G+4*g_,4)}, {v(ALQ)}, {s(SWS,4)}, {s(sT + g_ // 4)} offen offset:{1024 * (g_ % 4)} sc1')
        A(f'  s_branch L_pub{j}')
        A(f'L_own{j}:')
        for x in range(14): A(f'  v_mov_b32 {v(gi(OWN, x))}, {v(gi(G, x))}')
        A(f'  s_mov_b32 {s(sSEG)}, {s(sREC+j)}')
        A(f'L_pub{j}:')
    stamp()
    A(f'  s_cmp_eq_u32 {s(sSEG)}, -1')
    A('  s_cbranch_scc1 L_fin')
    C('gather the three foreign records of the owned head; a granule counts once it carries this launch\'s tag')
    FR = AC
    sR, sMISS = 84, 90
    A(f'  s_xor_b32 {s(sR)}, {s(sSEG)}, 1')
    A(f'  s_andn2_b32 {s(sR+2)}, {s(sSEG)}, 1')
    A(f'  s_xor_b32 {s(sR+2)}, {s(sR+2)}, 2')
    A(f'  s_add_u32 {s(sR+4)}, {s(sR+2)}, 1')
    for r in range(3):
        A(f'  s_mul_i32 {s(sR+2*r)}, {s(sR+2*r)}, {REC}')
        A(f'  s_add_u32 {s(sR+2*r)}, {s(sR+2*r)}, {WS_REC}')
        A(f'  s_add_u32 {s(sR+2*r+1)}, {s(sR+2*r)}, 4096')
    A(f'  s_mov_b32 {s(sF)}, 0')
    A(f'  s_mov_b32 {s(sMISS)}, 7')
    A('L_gather:')
    for r in range(3):
        A(f'  s_bitcmp0_b32 {s(sMISS)}, {r}')
        A(f'  s_cbranch_scc1 L_have{r}')
        for g_ in range(5):
            A(f'  buffer_load_dwordx4 {v(FR+20*r+4*g_,4)}, {v(ALQ)}, {s(SWS,4)}, {s(sR + 2*r + g_ // 4)} offen offset:{1024 * (g_ % 4)} sc1')
        A(f'L_have{r}:')
    A(f'  s_mov_b32 {s(sMISS)}, 0')
    A('  s_waitcnt vmcnt(0)')
    for r in range(3):
        tg = [FR + 20 * r + 4 * k + 3 for k in range(5)]
        A(f'  v_min3_u32 {v(X0)}, {v(tg[0])}, {v(tg[1])}, {v(tg[2])}')
        A(f'  v_max3_u32 {v(X1)}, {v(tg[0])}, {v(tg[1])}, {v(tg[2])}')
        A(f'  v_min3_u32 {v(X0)}, {v(X0)}, {v(tg[3])}, {v(tg[4])}')
        A(f'  v_max3_u32 {v(X1)}, {v(X1)}, {v(tg[3])}, {v(tg[4])}')
        A(f'  v_cmp_ne_u32 {s(sT,2)}, {v(M)}, {v(X0)}')
        A(f'  v_cmp_ne_u32 vcc, {v(M)}, {v(X1)}')
        A(f'  s_or_b64 {s(sT,2)}, {s(sT,2)}, vcc')
        A(f'  s_cselect_b32 {s(sT)}, {1 << r}, 0')
        A(f'  s_or_b32 {s(sMISS)}, {s(sMISS)}, {s(sT)}')
    A('  s_cbranch_scc0 L_gathered')
    A(f'  s_add_u32 {s(sF)}, {s(sF)}, 1')
    A(f'  s_cmp_lt_u32 {s(sF)}, 20000')
    A('  s_cbranch_scc1 L_gather')
    A('  s_endpgm')
    A('L_gathered:')
    stamp()
    C('(own + partner) + (neighbour pair): products are rounded separately, so the sum does not depend on who had which class')
    B4 = [OWN, FR, FR + 20, FR + 40]
    A(f'  v_min_f32 {v(X0)}, {v(gi(B4[0],12))}, {v(gi(B4[1],12))}')
    A(f'  v_min3_f32 {v(X0)}, {v(X0)}, {v(gi(B4[2],12))}, {v(gi(B4[3],12))}')
    for b in B4: A(f'  v_sub_f32 {v(gi(b,12))}, {v(X0)}, {v(gi(b,12))}')
    for b in B4: A(f'  v_exp_f32 {v(gi(b,12))}, {v(gi(b,12))}')
    A(f'  v_mul_u32_u24 {v(AL)}, 24, {v(VBP)}')
    A(f'  v_and_b32 {v(X0)}, 15, v0')
    A(f'  v_lshl_add_u32 {v(AL)}, {v(X0)}, 3, {v(AL)}')
    A(f'  s_lshr_b32 {s(sT)}, {s(sSEG)}, 2')
    A(f'  s_mul_i32 {s(sT)}, {s(sT)}, 1536')
    for x in [13] + list(range(12)):
        for b in B4: A(f'  v_mul_f32 {v(gi(b,x))}, {v(gi(b,12))}, {v(gi(b,x))}')
        A(f'  v_add_f32 {v(gi(B4[0],x))}, {v(gi(B4[0],x))}, {v(gi(B4[1],x))}')
        A(f'  v_add_f32 {v(gi(B4[2],x))}, {v(gi(B4[2],x))}, {v(gi(B4[3],x))}')
        A(f'  v_add_f32 {v(gi(B4[0],x))}, {v(gi(B4[0],x))}, {v(gi(B4[2],x))}')
        if x == 13: A(f'  v_rcp_f32 {v(X1)}, {v(gi(OWN,13))}')
        else: A(f'  v_mul_f32 {v(gi(OWN,x))}, {v(X1)}, {v(gi(OWN,x))}')
        if x % 4 == 3:
            i = x // 4
            A(f'  v_cvt_pk_bf16_f32 {v(ACC+2*i)}, {v(gi(OWN,4*i))}, {v(gi(OWN,4*i+1))}')
            A(f'  v_cvt_pk_bf16_f32 {v(ACC+2*i+1)}, {v(gi(OWN,4*i+2))}, {v(gi(OWN,4*i+3))}')
            A(f'  buffer_store_dwordx2 {v(ACC+2*i,2)}, {v(AL)}, {s(SQ,4)}, {s(sT)} offen offset:{128*i}')
    A('L_fin:')
    if diagpad:
        A('L_diag:')
        A(f'  s_memrealtime {s(sBIG,2)}')
        A('  s_waitcnt lgkmcnt(0)')
        A(f'  s_sub_u32 {s(sBIG)}, {s(sBIG)}, s6')
        A(f'  s_cmp_lt_u32 {s(sBIG)}, {diagpad * 100}')
        A('  s_cbranch_scc1 L_diag')
    if tl:
        A(f'  s_mul_i32 {s(sT)}, s2, {W+1}')
        A(f'  s_add_u32 {s(sT)}, {s(sT)}, s3')
        A(f'  s_lshl_b32 {s(sT)}, {s(sT)}, 8')
        A(f'  s_add_u32 {s(sT)}, {s(sT)}, 0x10000')
        A(f'  v_lshl_add_u32 {v(E)}, v0, 2, {s(sT)}')
        A(f'  global_store_dword {v(E)}, {v(TL)}, {s(sWS,2)}')
    if stamps:
        A('  s_waitcnt vmcnt(0)')
        A(f'  s_memrealtime {s(sBIG,2)}')
        A(f'  s_getreg_b32 {s(sSM)}, hwreg(HW_REG_XCC_ID)')
        A(f'  s_mul_i32 {s(sT)}, s2, {W+1}')
        A(f'  s_add_u32 {s(sT)}, {s(sT)}, s3')
        A(f'  s_lshl_b32 {s(sT)}, {s(sT)}, 4')
        A('  s_waitcnt lgkmcnt(0)')
        A(f'  v_mov_b32 {v(RING)}, s6')
        A(f'  v_mov_b32 {v(RING+1)}, {s(sBIG)}')
        A(f'  v_mov_b32 {v(RING+2)}, {s(sSM)}')
        A(f'  v_mov_b32 {v(RING+3)}, {s(sDEC)}')
        A(f'  v_mov_b32 {v(X0)}, {s(sT)}')
        A('  s_mov_b64 exec, 1')
        A(f'  global_store_dwordx4 {v(X0)}, {v(RING,4)}, {s(sWS,2)}')
    A('L_end:')
    A('  s_endpgm')

    C('================= helper wave')
    A('L_helper:')
    if tl:
        A(f'  s_mov_b32 {s(sTL)}, 0')
        A(f'  v_mov_b32 {v(TL)}, 0')
    hA, hZ, hO, h1, h2, h3, hD = 1, 2, 3, 4, 5, 6, 8
    hP, hQ, hC, hX, hW, hU, hT = hD + 96, hD + 97, hD + 98, hD + 100, hD + 104, hD + 105, hD + 106
    assert hT + 1 < TL
    A(f'  v_lshlrev_b32 {v(hA)}, 2, v0')
    A(f'  v_add_u32 {v(hA)}, {LDS_F}, {v(hA)}')
    A(f'  v_mov_b32 {v(hZ)}, 0')
    A('  s_mov_b64 exec, 0xff')
    A(f'  ds_write_b32 {v(hA)}, {v(hZ)}')
    A('  s_mov_b64 exec, -1')
    A('  s_waitcnt lgkmcnt(0)')
    make_srds(4, 9)
    if stouch:
        C('scalar first touch of the first K page and of q: the translations are ready when the vector loads arrive')
        A(f'  s_lshl_b32 {s(sT)}, {s(sPB)}, 16')
        A(f'  s_add_u32 {s(sT)}, {s(sT)}, 0x1ff000')
        A(f'  s_buffer_load_dword s58, {s(SK,4)}, {s(sT)}')
        A(f'  s_buffer_load_dword s59, {s(SQ,4)}, 0')
    A('  s_barrier')
    sOF, sN0, sV0, sJ, sSF, sA, sB, sX, sCNT, sME, sPA, sFA, sFS, sQD = 44, 45, 48, 50, 52, 54, 56, 58, 59, 60, 61, 62, 63, 64
    sT0, sNON, sCP, sCA, sUP, sRET, sSUB = 72, 74, 76, 77, 78, 84, 86
    A(f'  s_memrealtime {s(sT0,2)}')
    def code_touch(tag):
        A(f'  s_lshr_b32 {s(sT)}, s2, 3')
        A(f'  s_cmp_lt_u32 {s(sT)}, (L_code_end - L_k) / 1024')
        A(f'  s_cbranch_scc0 L_h_ct{tag}')
        A(f'  global_load_dwordx4 {v(hX,4)}, {v(hC,2)}, off')
        A(f'L_h_ct{tag}:')
    if tlb:
        C('first touch of every page this workgroup uses later, while the start-up misses are in flight anyway')
        A(f'  v_lshlrev_b32 {v(hD)}, 28, v0')
        A(f'  v_lshlrev_b32 {v(hD+1)}, 21, v0')
        A(f'  s_lshl_b32 {s(sT)}, {s(sPB)}, 16')
        A(f'  s_add_u32 {s(sT)}, {s(sT)}, 0x1ff000')
        A(f'  s_lshr_b32 {s(sT+1)}, s2, 5')
        A(f'  s_lshl_b32 {s(sT+1)}, {s(sT+1)}, 21')
        A(f'  s_add_u32 {s(sT+1)}, {s(sT+1)}, {WS_IMG + 0x1f0000}')
        A(f'  v_writelane_b32 {v(hD+1)}, {s(sT+1)}, 4')
        A(f'  s_mov_b32 {s(SQ)}, {s(PT+14)}')
        A(f'  s_and_b32 {s(SQ+1)}, {s(PT+15)}, 0xffff')
        A('  s_mov_b64 exec, 7')
        A(f'  buffer_load_dword {v(hX)}, {v(hD)}, {s(SK,4)}, {s(sT)} offen nt')
        A(f'  buffer_load_dword {v(hX)}, {v(hD)}, {s(SV,4)}, {s(sT)} offen nt')
        A('  s_mov_b64 exec, 31')
        A(f'  s_lshl_b32 {s(sT)}, s2, 8')
        A(f'  buffer_load_dword {v(hX)}, {v(hD+1)}, {s(SWS,4)}, {s(sT)} offen sc1 nt')
        A('  s_mov_b64 exec, 1')
        A(f'  buffer_load_dword {v(hX)}, {v(hD)}, {s(SQ,4)}, {s(sT)} offen sc1 nt')
        A('  s_mov_b64 exec, -1')
    C('workgroup i reads kilobyte i/8 of this kernel\'s code so that first instruction fetches hit L2')
    A(f'  s_getpc_b64 {s(sA,2)}')
    A('L_h_pc:')
    A(f'  s_add_u32 {s(sSUB)}, {s(sA)}, L_h_cp - L_h_pc')
    A(f'  s_addc_u32 {s(sSUB+1)}, {s(sA+1)}, 0')
    A(f'  s_sub_u32 {s(sA)}, {s(sA)}, L_h_pc - L_k')
    A(f'  s_subb_u32 {s(sA+1)}, {s(sA+1)}, 0')
    A(f'  s_and_b32 {s(sA)}, {s(sA)}, -16')
    A(f'  s_lshr_b32 {s(sT)}, s2, 3')
    A(f'  s_lshl_b32 {s(sT)}, {s(sT)}, 10')
    A(f'  v_lshl_add_u32 {v(hC)}, v0, 4, {s(sT)}')
    A(f'  v_mov_b32 {v(hC+1)}, {s(sA+1)}')
    A(f'  v_add_co_u32 {v(hC)}, vcc, {s(sA)}, {v(hC)}')
    A(f'  v_addc_co_u32 {v(hC+1)}, vcc, 0, {v(hC+1)}, vcc')
    if touch & 1: code_touch('a')
    A(f'  s_lshr_b32 {s(sT)}, s2, 4')
    A(f'  s_and_b32 {s(sT)}, {s(sT)}, 8')
    A(f'  s_and_b32 {s(sT+1)}, s2, 7')
    A(f'  s_add_u32 {s(sT)}, {s(sT)}, {s(sT+1)}')
    A(f'  s_lshl_b32 {s(sT)}, {s(sT)}, 4')
    A(f'  v_lshl_add_u32 {v(hP)}, v0, 3, {s(sT)}')
    A(f'  v_and_b32 {v(hQ)}, 31, v0')
    A(f'  v_lshlrev_b32 {v(hQ)}, 3, {v(hQ)}')
    A(f'  v_and_b32 {v(hW)}, 1, v0')
    A(f'  v_lshlrev_b32 {v(hW)}, 2, {v(hW)}')
    A(f'  v_add_u32 {v(hW)}, {F_PRG}, {v(hW)}')
    A(f'  v_mov_b32 {v(hU)}, 0')
    A(f'  v_lshlrev_b32 {v(hO)}, 4, v0')
    A(f'  s_mov_b32 {s(sCP)}, {cp0}')
    A(f'  s_mov_b32 {s(sCA)}, {WS_CP}')
    def wait_progress(tag, lim, slp):
        A(f'L_h_prog{tag}:')
        A(f'  s_sleep {slp}')
        A(f'  ds_read_b32 {v(hD)}, {v(hW)}')
        A('  s_waitcnt lgkmcnt(0)')
        A(f'  v_cmp_gt_u32 vcc, {lim}, {v(hD)}')
        A('  s_cmp_lg_u32 vcc_lo, 0')
        A(f'  s_cbranch_scc1 L_h_prog{tag}')
    def lds_set(addr, val):
        A(f'  v_mov_b32 {v(hA)}, {addr}')
        A(f'  v_mov_b32 {v(h2)}, {val}')
        A(f'  ds_write_b32 {v(hA)}, {v(h2)}')
    C('vote word in d_debug: six 6-bit tallies (class near die 0 in even pages, per slab of qk and qv), four 4-bit tallies')
    C(f'(die of role 0 per wg&3) and the voter count in the top byte; {7 * NV} workgroups vote')
    A(f'  s_getreg_b32 {s(sJ)}, hwreg(HW_REG_XCC_ID)')
    A(f'  s_bfe_u32 {s(sJ)}, {s(sJ)}, 0x10002')
    A(f'  s_bfe_u32 {s(sSF)}, s2, 0x30003')
    A(f'  s_cmp_eq_u32 {s(sSF)}, 7')
    A('  s_cbranch_scc1 L_h_voted')
    A(f'  s_lshr_b32 {s(sT)}, s2, 6')
    A(f'  s_xor_b32 {s(sT)}, {s(sT)}, s2')
    A(f'  s_and_b32 {s(sT)}, {s(sT)}, {32 // NV - 1}')
    A('  s_cbranch_scc1 L_h_voted')
    A(f'  s_cmp_eq_u32 {s(sSF)}, 6')
    A('  s_cbranch_scc0 L_h_probe')
    A(f'  s_xor_b32 {s(sV0)}, {s(sJ)}, {s(sRO)}')
    A(f'  s_and_b32 {s(sSF)}, s2, 3')
    A(f'  s_lshl2_add_u32 {s(sSF)}, {s(sSF)}, 36')
    A('  s_branch L_h_vote')
    A('L_h_probe:')
    A(f'  s_cmp_ge_u32 {s(sSF)}, 3')
    A(f'  s_cselect_b32 {s(SI)}, {s(SV)}, {s(SK)}')
    A(f'  s_cselect_b32 {s(SI+1)}, {s(SV+1)}, {s(SK+1)}')
    A(f'  s_cselect_b32 {s(sT)}, 3, 0')
    A(f'  s_sub_u32 {s(sT)}, {s(sSF)}, {s(sT)}')
    A(f'  s_lshl_b32 {s(sT)}, {s(sT)}, 28')
    A(f'  s_add_u32 {s(sOF)}, {s(sPB)}, {s(sRO)}')
    A(f'  s_lshl_b32 {s(sOF)}, {s(sOF)}, 16')
    A(f'  s_add_u32 {s(sOF)}, {s(sOF)}, {s(sT)}')
    A(f'  s_add_u32 {s(sOF)}, {s(sOF)}, 0x1c0000')
    A(f'  s_mul_i32 {s(sT)}, s2, 0x2a95')
    A(f'  s_and_b32 {s(sT)}, {s(sT)}, 0x7f80')
    A(f'  s_add_u32 {s(sOF)}, {s(sOF)}, {s(sT)}')
    A(f'  s_add_u32 {s(sT)}, {s(sOF)}, 0x8000')
    A(f'  s_buffer_load_dword {s(sX)}, {s(SI,4)}, {s(sT)}')
    A(f'  s_mov_b32 {s(sN0)}, -1')
    A(f'  s_mov_b32 {s(sN0+1)}, -1')
    A(f'  s_mul_i32 {s(sSF)}, {s(sSF)}, 6')
    wait_progress('p', 1, 2)
    for k in range(NS):
        for c in ((0, 1) if k % 2 == 0 else (1, 0)):
            o = (((k & 1) << 14) | ((k >> 1 & 1) << 12) | ((k * 0x380) & 0xfff)) ^ (c << 13)
            A(f'  s_xor_b32 {s(sT)}, {s(sOF)}, {o}')
            A(f'  s_memtime {s(sA,2)}')
            A('  s_waitcnt lgkmcnt(0)')
            A(f'  s_buffer_load_dword {s(sX)}, {s(SI,4)}, {s(sT)}')
            A('  s_waitcnt lgkmcnt(0)')
            A(f'  s_memtime {s(sB,2)}')
            A('  s_waitcnt lgkmcnt(0)')
            A(f'  s_sub_u32 {s(sB)}, {s(sB)}, {s(sA)}')
            A(f'  s_min_u32 {s(sN0+c)}, {s(sN0+c)}, {s(sB)}')
    A(f'  s_cmp_lt_u32 {s(sN0+1)}, {s(sN0)}')
    A(f'  s_cselect_b32 {s(sV0)}, 1, 0')
    A(f'  s_lshr_b32 {s(sT)}, {s(sOF)}, 13')
    A(f'  s_xor_b32 {s(sT)}, {s(sT)}, s2')
    A(f'  s_xor_b32 {s(sT)}, {s(sT)}, {s(sJ)}')
    A(f'  s_and_b32 {s(sT)}, {s(sT)}, 1')
    A(f'  s_xor_b32 {s(sV0)}, {s(sV0)}, {s(sT)}')
    A('L_h_vote:')
    A(f'  s_mov_b32 {s(sV0+1)}, 0')
    A(f'  s_lshl_b64 {s(sV0,2)}, {s(sV0,2)}, {s(sSF)}')
    A(f'  s_or_b32 {s(sV0+1)}, {s(sV0+1)}, 0x1000000')
    A(f'  s_atomic_add_x2 {s(sV0,2)}, {s(sDBG,2)}, 0')
    A('L_h_voted:')
    A('  s_waitcnt lgkmcnt(0)')
    C('launch nonce (tells this launch\'s hand-offs in ws from older contents)')
    A('  s_cmp_lg_u32 s2, 56')
    A('  s_cbranch_scc1 L_h_nonce')
    A(f'  s_lshl_b64 {s(sA,2)}, {s(sT0,2)}, 2')
    A(f'  s_atomic_add_x2 {s(sA,2)}, {s(sDBG,2)}, 8')
    A('  s_waitcnt lgkmcnt(0)')
    A('L_h_nonce:')
    stamp()
    def checkpoints(upto):
        A(f'  s_mov_b32 {s(sUP)}, {min(upto, last) - dly}')
        A(f'  s_swappc_b64 {s(sRET,2)}, {s(sSUB,2)}')
    def bounded(label, n):
        A(f'  s_add_u32 {s(sCNT)}, {s(sCNT)}, 1')
        A(f'  s_cmp_gt_u32 {s(sCNT)}, {n}')
        A(f'  s_cbranch_scc1 {label}')
    wait_progress('v', NWU - W, 8)
    A(f'  s_load_dwordx2 {s(sV0,2)}, {s(sDBG,2)}, 0')
    A(f'  s_mov_b32 {s(sCNT)}, 0')
    A('L_h_votes:')
    A('  s_waitcnt lgkmcnt(0)')
    A(f'  s_lshr_b32 {s(sT)}, {s(sV0+1)}, 24')
    A(f'  s_cmp_eq_u32 {s(sT)}, {7 * NV}')
    A('  s_cbranch_scc1 L_h_votes_done')
    bounded('L_h_votes_done', 2000)
    A('  s_sleep 64')
    A(f'  s_mov_b64 {s(sV0,2)}, 0')
    A(f'  s_atomic_or_x2 {s(sV0,2)}, {s(sDBG,2)}, 0 glc')
    A('  s_branch L_h_votes')
    A('L_h_votes_done:')
    A(f'  s_mov_b32 {s(sDEC)}, 0x80')
    for j in range(6):
        A(f'  s_bfe_u64 {s(sA,2)}, {s(sV0,2)}, {hex(0x60000 | (6 * j))}')
        A(f'  s_cmp_gt_u32 {s(sA)}, {NV // 2}')
        A(f'  s_cselect_b32 {s(sB)}, {1 << j}, 0')
        A(f'  s_or_b32 {s(sDEC)}, {s(sDEC)}, {s(sB)}')
    if force >= 0: A(f'  s_mov_b32 {s(sDEC)}, {0x80 | force}')
    A(f'  s_and_b32 {s(sT)}, s2, 3')
    A(f'  s_lshl2_add_u32 {s(sT)}, {s(sT)}, {4 + (NV // 4).bit_length() - 1}')
    A(f'  s_lshr_b32 {s(sA)}, {s(sV0+1)}, {s(sT)}')
    A(f'  s_xor_b32 {s(sA)}, {s(sA)}, s2')
    A(f'  s_xor_b32 {s(sA)}, {s(sA)}, {s(sRO)}')
    A(f'  s_and_b32 {s(sA)}, {s(sA)}, 1')
    A(f'  s_mul_i32 {s(sA)}, {s(sA)}, 63')
    A(f'  s_xor_b32 {s(sDEC)}, {s(sDEC)}, {s(sA)}')
    lds_set(F_DEC, s(sDEC))
    stamp()
    A(f'  s_load_dwordx2 {s(sNON,2)}, {s(sDBG,2)}, 8')
    A(f'  s_mov_b32 {s(sCNT)}, 0')
    A('L_h_getnonce:')
    A('  s_waitcnt lgkmcnt(0)')
    A(f'  s_cmp_lg_u64 {s(sNON,2)}, 0')
    A('  s_cbranch_scc1 L_h_gotnonce')
    bounded('L_h_gotnonce', 2000)
    A('  s_sleep 64')
    A(f'  s_atomic_or_x2 {s(sNON,2)}, {s(sDBG,2)}, 8 glc')
    A('  s_branch L_h_getnonce')
    A('L_h_gotnonce:')
    A(f'  s_lshr_b64 {s(sA,2)}, {s(sNON,2)}, 2')
    lds_set(F_TAG, s(sA))
    C('logit swap: flag word per workgroup; image q = 2*pair + role keeps kilobyte k at')
    C('region(q>>5) + (k<<15) + ((q&31 ^ comp(k)) << 10), which stays inside four memory channels')
    A(f'  s_lshl_b32 {s(sFA)}, s2, 8')
    A(f'  s_add_u32 {s(sFA)}, {s(sFA)}, {WS_FLAG}')
    A(f'  s_xor_b32 {s(sFS)}, {s(sFA)}, 1024')
    A(f'  s_lshr_b32 {s(sX)}, {s(sDEC)}, 3')
    A(f'  s_xor_b32 {s(sX)}, {s(sX)}, {s(sDEC)}')
    A(f'  s_lshr_b32 {s(sT)}, {s(sPB)}, 4')
    A(f'  s_lshr_b32 {s(sOF)}, {s(sT)}, 5')
    A(f'  s_lshl_b32 {s(sOF)}, {s(sOF)}, 21')
    A(f'  s_add_u32 {s(sOF)}, {s(sOF)}, {WS_IMG}')
    A(f'  s_and_b32 {s(sQD)}, {s(sT)}, 31')
    A(f'  s_add_u32 {s(sT)}, {s(sQD)}, {s(sRO)}')
    A(f'  s_lshl_b32 {s(sT)}, {s(sT)}, 10')
    A(f'  s_add_u32 {s(sME)}, {s(sOF)}, {s(sT)}')
    A(f'  s_xor_b32 {s(sPA)}, {s(sME)}, 1024')
    def pxor(k):
        h = k >> 2
        c = (h & 3) ^ (((h >> 2) & 1) * 17) ^ (((h >> 3) & 1) * 4)
        return (k << 15) | (c << 10)
    NW = NWU * 384 // 1024
    def reg(k): return hD + 4 * (k % 24)
    def export(lo, hi):
        for k in range(lo, hi): A(f'  ds_read_b128 {v(reg(k),4)}, {v(hO)} offset:{1024*k}')
        A('  s_waitcnt lgkmcnt(0)')
        for k in range(lo, hi):
            A(f'  s_xor_b32 {s(sT)}, {s(sME)}, {pxor(k)}')
            A(f'  buffer_store_dwordx4 {v(reg(k),4)}, {v(hO)}, {s(SWS,4)}, {s(sT)} offen sc1')
    def imp(lo, hi):
        for k in range(lo, hi):
            A(f'  s_xor_b32 {s(sT)}, {s(sPA)}, {pxor(k)}')
            A(f'  buffer_load_dwordx4 {v(reg(k),4)}, {v(hO)}, {s(SWS,4)}, {s(sT)} offen sc1')
        A('  s_waitcnt vmcnt(0)')
        for k in range(lo, hi): A(f'  ds_write_b128 {v(hO)}, {v(reg(k),4)} offset:{1024*k}')
    def cond(bit, tag, fn):
        A(f'  s_bitcmp0_b32 {s(sX)}, {bit}')
        A(f'  s_cbranch_scc1 L_h_{tag}')
        fn()
        A(f'L_h_{tag}:')
    def handshake(tag, level):
        A(f'  s_add_u32 {s(sA)}, {s(sNON)}, {level}')
        A(f'  v_mov_b32 {v(h2)}, 0')
        A('  s_waitcnt vmcnt(0)')
        A(f'  v_mov_b32 {v(hD)}, {s(sA)}')
        A(f'  v_mov_b32 {v(hD+1)}, {s(sNON+1)}')
        A('  s_mov_b64 exec, 1')
        A(f'  buffer_store_dwordx2 {v(hD,2)}, {v(h2)}, {s(SWS,4)}, {s(sFA)} offen sc1')
        A(f'  s_mov_b32 {s(sCNT)}, 0')
        A(f'L_h_flag{tag}:')
        A(f'  buffer_load_dwordx2 {v(hD+2,2)}, {v(h2)}, {s(SWS,4)}, {s(sFS)} offen sc1')
        A('  s_waitcnt vmcnt(0)')
        A(f'  v_readfirstlane_b32 {s(sB)}, {v(hD+2)}')
        A(f'  v_readfirstlane_b32 {s(sB+1)}, {v(hD+3)}')
        A(f'  s_sub_u32 {s(sB)}, {s(sB)}, {s(sA)}')
        A(f'  s_xor_b32 {s(sB+1)}, {s(sB+1)}, {s(sNON+1)}')
        A(f'  s_lshr_b32 {s(sB)}, {s(sB)}, 1')
        A(f'  s_or_b32 {s(sB)}, {s(sB)}, {s(sB+1)}')
        A(f'  s_cbranch_scc0 L_h_flag{tag}_done')
        bounded(f'L_h_flag{tag}_done', 10000)
        A('  s_sleep 8')
        A(f'  s_branch L_h_flag{tag}')
        A(f'L_h_flag{tag}_done:')
        A('  s_mov_b64 exec, -1')
    checkpoints(64)
    wait_progress('a', 64, 4)
    stamp()
    export(0, NW)
    cond(0, 'e0', lambda: export(NW, 12))
    cond(1, 'e1', lambda: export(12, 24))
    handshake('a', 1)
    stamp()
    C('first units: slot f comes from the image of role f&1, slot (f&~1) + V class of the first page')
    A(f'  s_bfe_u32 {s(sA)}, {s(sDEC)}, 0x10003')
    A(f'  s_mul_i32 {s(sA)}, {s(sA)}, 384')
    A(f'  v_lshrrev_b32 {v(h1)}, 3, v0')
    for k in range(NW):
        A(f'  v_add_u32 {v(h2)}, {8 * k}, {v(h1)}')
        A(f'  v_mul_u32_u24 {v(h2)}, 21846, {v(h2)}')
        A(f'  v_bfe_u32 {v(h2)}, {v(h2)}, 16, 1')
        A(f'  v_mul_u32_u24 {v(h3)}, 384, {v(h2)}')
        A(f'  v_sub_u32 {v(h3)}, {v(hO)}, {v(h3)}')
        A(f'  v_add_u32 {v(h3)}, {s(sA)}, {v(h3)}')
        A(f'  v_add_u32 {v(h3)}, {1024 * k}, {v(h3)}')
        A(f'  v_add_u32 {v(h2)}, {s(sQD)}, {v(h2)}')
        A(f'  v_lshrrev_b32 {v(hZ)}, 12, {v(h3)}')
        A(f'  v_xor_b32 {v(h2)}, {v(h2)}, {v(hZ)}')
        A(f'  v_lshrrev_b32 {v(hZ)}, 10, {v(h3)}')
        A(f'  v_lshl_add_u32 {v(h2)}, {v(hZ)}, 5, {v(h2)}')
        A(f'  v_and_b32 {v(h3)}, 1023, {v(h3)}')
        A(f'  v_lshl_add_u32 {v(h2)}, {v(h2)}, 10, {v(h3)}')
        A(f'  buffer_load_dwordx4 {v(reg(k),4)}, {v(h2)}, {s(SWS,4)}, {s(sOF)} offen sc1')
    cond(0, 'i0', lambda: imp(NW, 12))
    cond(1, 'i1', lambda: imp(12, 24))
    A('  s_waitcnt vmcnt(0)')
    for k in range(NW): A(f'  ds_write_b128 {v(hO)}, {v(reg(k),4)} offset:{1024*k}')
    stamp()
    A(f'  s_bitcmp0_b32 {s(sX)}, 2')
    A(f'  s_cselect_b32 {s(sT)}, 255, 64')
    lds_set(F_IMP, s(sT))
    checkpoints(NF)
    if touch & 2: code_touch('b')
    A(f'  s_bitcmp0_b32 {s(sX)}, 2')
    A('  s_cbranch_scc1 L_h_all')
    wait_progress('b', NF, 4)
    export(24, 36)
    handshake('b', 2)
    imp(24, 36)
    lds_set(F_IMP, 255)
    A('L_h_all:')
    if touch & 4:
        checkpoints(176)
        code_touch('c')
    checkpoints(999)
    C('the last unit runs with the deep queue')
    wait_progress('t', 2 * NF - 2 * W, 4)
    A(f'  v_mov_b32 {v(hD)}, 255')
    A(f'  ds_write_b32 {v(hW)}, {v(hD)} offset:{F_BST - F_PRG}')
    A('  s_waitcnt lgkmcnt(0)')
    A('  s_branch L_fin' if stamps or tl else '  s_endpgm')

    C(f'check points every {step} units up to unit s{sUP}: lane w (mod 2) follows wave w. Arrival times of 16 workgroups go to ws;')
    C(f'{dly} units later the entries stamped inside this launch give the mean, and a late wave gets a catch-up limit in LDS')
    A('L_h_cp:')
    A(f'  s_cmp_gt_u32 {s(sCP)}, {s(sUP)}')
    A('  s_cbranch_scc0 L_h_cpgo')
    A(f'  s_setpc_b64 {s(sRET,2)}')
    A('L_h_cpgo:')
    A(f'  ds_read_b32 {v(hD)}, {v(hW)}')
    A(f'  s_memrealtime {s(sA,2)}')
    A('  s_waitcnt lgkmcnt(0)')
    A(f'  v_mov_b32 {v(hT)}, {s(sA)}')
    A(f'  v_mov_b32 {v(hT+1)}, {s(sA+1)}')
    A(f'  v_cmp_gt_u32 vcc, {s(sCP)}, {v(hD)}')
    A('  s_cmp_eq_u32 vcc_lo, 0')
    A('  s_cbranch_scc1 L_h_cpnext')
    A('L_h_cpm:')
    A('  s_sleep 2')
    A(f'  ds_read_b32 {v(hD)}, {v(hW)}')
    A(f'  s_memrealtime {s(sA,2)}')
    A('  s_waitcnt lgkmcnt(0)')
    A(f'  v_mov_b32 {v(hD+2)}, {s(sA)}')
    A(f'  v_mov_b32 {v(hD+3)}, {s(sA+1)}')
    A(f'  v_cndmask_b32 {v(hT)}, {v(hT)}, {v(hD+2)}, vcc')
    A(f'  v_cndmask_b32 {v(hT+1)}, {v(hT+1)}, {v(hD+3)}, vcc')
    A(f'  v_cmp_gt_u32 vcc, {s(sCP)}, {v(hD)}')
    A('  s_cmp_lg_u32 vcc_lo, 0')
    A('  s_cbranch_scc1 L_h_cpm')
    A(f'  s_and_b32 {s(sT)}, s2, 0x78')
    A('  s_cbranch_scc1 L_h_np')
    A('  s_mov_b64 exec, 3')
    A(f'  buffer_store_dwordx2 {v(hT,2)}, {v(hP)}, {s(SWS,4)}, {s(sCA)} offen sc1')
    A('  s_mov_b64 exec, -1')
    A('L_h_np:')
    A(f'  s_add_u32 {s(sJ)}, {s(sCP)}, {dly}')
    wait_progress('c', s(sJ), 4)
    A(f'  buffer_load_dwordx2 {v(hD,2)}, {v(hQ)}, {s(SWS,4)}, {s(sCA)} offen')
    A(f'  v_mov_b32 {v(hD+2)}, {s(sT0+1)}')
    A('  s_waitcnt vmcnt(0)')
    A(f'  ds_read_b32 {v(hD+4)}, {v(hW)}')
    A(f'  v_subrev_co_u32 {v(hD)}, vcc, {s(sT0)}, {v(hD)}')
    A(f'  v_subb_co_u32 {v(hD+1)}, vcc, {v(hD+1)}, {v(hD+2)}, vcc')
    A(f'  v_lshrrev_b32 {v(hD+2)}, 24, {v(hD)}')
    A(f'  v_or_b32 {v(hD+1)}, {v(hD+1)}, {v(hD+2)}')
    A(f'  v_cmp_eq_u32 vcc, 0, {v(hD+1)}')
    A(f'  v_cndmask_b32 {v(hD)}, 0, {v(hD)}, vcc')
    A(f'  s_bcnt1_i32_b32 {s(sB)}, vcc_lo')
    for r in (8, 4, 2, 1):
        A(f'  v_add_u32_dpp {v(hD)}, {v(hD)}, {v(hD)} row_ror:{r} row_mask:0xf bank_mask:0xf')
    A(f'  v_readlane_b32 {s(sA)}, {v(hD)}, 0')
    A(f'  v_readlane_b32 {s(sT)}, {v(hD)}, 16')
    A(f'  v_subrev_u32 {v(hD)}, {s(sT0)}, {v(hT)}')
    A(f'  v_mul_lo_u32 {v(hD)}, {v(hD)}, {s(sB)}')
    A(f'  s_add_u32 {s(sA)}, {s(sA)}, {s(sT)}')
    A(f'  s_max_u32 {s(sB)}, {s(sB)}, 1')
    A(f'  v_subrev_u32 {v(hD)}, {s(sA)}, {v(hD)}')
    A(f'  v_cvt_f32_u32 {v(hD+1)}, {s(sB)}')
    A(f'  v_cvt_f32_i32 {v(hD)}, {v(hD)}')
    A(f'  v_rcp_f32 {v(hD+1)}, {v(hD+1)}')
    A(f'  v_mul_f32 {v(hD)}, {v(hD)}, {v(hD+1)}')
    A(f'  v_cvt_i32_f32 {v(hD)}, {v(hD)}')
    A('  s_waitcnt lgkmcnt(0)')
    A(f'  v_add_u32 {v(hD+4)}, {W}, {v(hD+4)}')
    C('subtract what the running catch-up gains between the check point and the first unit that sees the new limit')
    A(f'  v_min_u32 {v(hD+1)}, {v(hU)}, {v(hD+4)}')
    A(f'  v_subrev_u32 {v(hD+1)}, {s(sCP)}, {v(hD+1)}')
    A(f'  v_max_i32 {v(hD+1)}, 0, {v(hD+1)}')
    A(f'  v_lshrrev_b32 {v(hD+1)}, 1, {v(hD+1)}')
    A(f'  v_mul_u32_u24 {v(hD+1)}, {gain}, {v(hD+1)}')
    A(f'  v_sub_u32 {v(hD)}, {v(hD)}, {v(hD+1)}')
    A(f'  v_add_u32 {v(hD+1)}, {gain // 2 - dead}, {v(hD)}')
    A(f'  v_max_i32 {v(hD+1)}, 0, {v(hD+1)}')
    A(f'  v_min_i32 {v(hD+1)}, 2000, {v(hD+1)}')
    A(f'  v_mul_u32_u24 {v(hD+1)}, {65536 // gain}, {v(hD+1)}')
    A(f'  v_lshrrev_b32 {v(hD+1)}, 16, {v(hD+1)}')
    A(f'  v_cmp_ne_u32 vcc, 0, {v(hD+1)}')
    A(f'  v_lshl_add_u32 {v(hD+1)}, {v(hD+1)}, 1, {v(hD+4)}')
    A(f'  v_cndmask_b32 {v(hU)}, 0, {v(hD+1)}, vcc')
    A(f'  ds_write_b32 {v(hW)}, {v(hU)} offset:{F_BST - F_PRG}')
    A('L_h_cpnext:')
    A(f'  s_add_u32 {s(sCP)}, {s(sCP)}, {step}')
    A(f'  s_add_u32 {s(sCA)}, {s(sCA)}, 256')
    A('  s_branch L_h_cp')
    A('L_code_end:')
    body = pad(L)

    nva = (nv + 7) // 8 * 8
    out = HDR + f'; @launch grid=(256,1,1) block=({64*(W+1)},1,1) lds={lds}\n' + NOTES
    out += '.amdgcn_target "amdgcn-amd-amdhsa--gfx950"\n.text\n'
    out += f'.globl {NAME}\n.p2align 8\n.type {NAME},@function\n'
    out += '\n'.join(body) + '\n'
    out += f'''.section .rodata,"a"
.p2align 6
.amdhsa_kernel {NAME}
  .amdhsa_next_free_vgpr {nva}
  .amdhsa_next_free_sgpr 102
  .amdhsa_accum_offset {nva}
  .amdhsa_group_segment_fixed_size 0
  .amdhsa_kernarg_size 80
  .amdhsa_user_sgpr_count 2
  .amdhsa_user_sgpr_kernarg_segment_ptr 1
  .amdhsa_system_sgpr_workgroup_id_x 1
  .amdhsa_float_denorm_mode_32 3
.end_amdhsa_kernel
'''
    return out

if __name__ == '__main__':
    kw = {}
    for x in sys.argv[2:]:
        k, val = x.split('=')
        kw[k] = int(val)
    open(sys.argv[1], 'w').write(gen(**kw))
```

```python
import sys, os
sys.path.insert(0, os.path.dirname(os.path.abspath(__file__)))
from asmlib import pad
NAME = 'standalone__kv_cache_quant_int4_int2_kv_with_per_channel_or_per_token_scales__sampling_kernel'
HEAD = 4096 * 768
TOTAL = 256 * HEAD
REC = 5120
WSOFF = 1 << 20
WSX = 8 << 20
WSC = 7 << 20
WSF = (7 << 20) + (1 << 16)
IMG = 96 * 384
WSEND = WSX + (16 << 20)
OOB = 0x7ffffff0
HDR = open(os.path.join(os.path.dirname(os.path.abspath(__file__)), 'header.txt')).read()
assert all(((32 * c + 1) * 21846) >> 16 == (32 * c + 1) // 3 for c in range(25))
assert all((c * 43) >> 8 == c // 6 for c in range(24))

class Alloc:
    def __init__(self, start): self.n = start
    def __call__(self, k, align=1):
        self.n = (self.n + align - 1) // align * align
        r = self.n; self.n += k
        return r

def v(r, k=1): return f'v{r}' if k == 1 else f'v[{r}:{r+k-1}]'
def s(r, k=1): return f's{r}' if k == 1 else f's[{r}:{r+k-1}]'

def merge(main, side, every):
    out = []; side = list(side); c = 0
    for m in main:
        out.append(m); c += 1
        if side and c % every == 0: out.append(side.pop(0))
    return out + side

def combine(A, n, ST, AC, npiece, X0, X1, OUT):
    A(f'  v_min_f32 {v(X0)}, {v(ST)}, {v(ST+2)}')
    for w in range(2, n): A(f'  v_min_f32 {v(X0)}, {v(X0)}, {v(ST+2*w)}')
    for w in range(n): A(f'  v_sub_f32 {v(ST+2*w)}, {v(X0)}, {v(ST+2*w)}')
    for w in range(n): A(f'  v_exp_f32 {v(ST+2*w)}, {v(ST+2*w)}')
    A(f'  v_mul_f32 {v(X1)}, {v(ST)}, {v(ST+1)}')
    for w in range(1, n): A(f'  v_fma_f32 {v(X1)}, {v(ST+2*w)}, {v(ST+2*w+1)}, {v(X1)}')
    for i in range(npiece):
        for j in range(4):
            A(f'  v_mul_f32 {v(OUT(4*i+j))}, {v(ST)}, {v(AC+4*i+j)}')
            for w in range(1, n):
                A(f'  v_fma_f32 {v(OUT(4*i+j))}, {v(ST+2*w)}, {v(AC+4*(npiece*w+i)+j)}, {v(OUT(4*i+j))}')

def gen(D=10, W=2, stamps=False, sf='-', stf='-', tl=0, NWU=8, NS=3, pf=8, force=-1, THR=2, NV=8, safe=0, PW=0, xf='sc1', noexp=0, noimp=0, DC=15, U=2, gain=28, dly=4, dead=0, diagpad=0, diagref=0, ldsz=62464, pfw=16, PSK=17, vsl=0, cpf='-', fullpoll=1, cpre=1, impf='sc1', xdep=0, idep=0, ia=64, ib=96, tlb=0, DT=4, gth=22, deadt=50, cp0=12, step=8, last=186, tev=0, pdel=1, wsy=0, diagat=-1, ib0=0, nobr=0, bev=3, fk=0, fv=0, w3=0, rot=0, rk=0, nosmall=0, wbl=0, tail=2, fsl=8):
    R = 11 * U; NST = 33; NF = 96
    DN = D; D = DC = DC or D
    assert DN <= D <= R and NWU % 8 == 0 and W in (2, 4)
    PW = PW or NWU - W
    fl = lambda x: x.replace('-', '').replace('+', ' ')
    sf, stf = fl(sf), fl(stf)
    L = []
    A = L.append
    va = Alloc(1)
    VO5 = va(1); VO6 = va(1); ICR = va(1)
    RING = va(4 * R, 4); VO = va(4)
    DUP = va(1); DOWN = va(1); DCON = va(1); ICV = va(1); TU = va(1)
    VVS = va(1); VL1 = va(1); VL2 = va(1); VBP = va(1); VFL = va(1); VST = va(1); VPR = va(1)
    VOOB = va(1); VBA = va(1); VBS = va(1); VBD = va(1); VBC = va(1)
    T = va(4, 2); ZN = va(1); SN = va(1); ZC = va(1); SC = va(1); ZS = va(2, 2)
    LG = va(6, 4); ACC = va(12, 4); M = va(1); NB = va(2, 2); LS = NB + 1
    X0 = va(2, 2); X1 = X0 + 1; AL = va(1); ALQ = va(1); E = va(11); PP = va(6); TL = va(1)
    base = va.n
    QB = va(6, 4); QN = va(6, 2); KSR = va(6, 2); KZR = va(6, 2); KS = va(12, 2); KZ = va(12, 2); KA = va(6, 4); SD = va(4, 4); S = va(2, 2)
    IUP = va(1); IOWN = va(1); ICON = va(1); VKS0 = va(1); VKS = va(1); VQ = va(1); VNI = va(1)
    kend = va.n
    va.n = base
    AJ = va(16, 4); AK = va(8, 2); TV = va(12, 2); BV = va(48, 4)
    nv = max(va.n, kend)
    sRO, sPB = 4, 5
    SK, SV, SI, SKS, SKZ, SVS, SVZ, SQ, SW_ = 8, 12, 16, 20, 24, 28, 32, 36, 40
    PT = 44
    sREC, sL0, sL10, sM0, sM10, sLOW = 44, 48, 50, 52, 54, 56
    sRN, sRC = 46, 47
    sCUR, sNXT, sSO, sF, sMSK, sL2E, sTL, s768, sSCL, sT = 60, 61, 62, 64, 65, 66, 67, 63, 68, 70
    sMJ = 72
    sDBG, sWS = 80, 82
    sQ3, sC, sQC, sCC, sHC, sHN, sDIV, sSH = 84, 85, 86, 87, 88, 89, 90, 91
    sDEC, sLIM, sGATE, sSEG = 96, 97, 99, 100
    sU = 92
    sBIG, sSM = 92, 94
    SEG = W * 3072 + W * 32
    LDS_ACC = IMG
    LDS_F = LDS_ACC + 4 * SEG
    F_DEC, F_IMP, F_BST, F_TAG, F_PRG = LDS_F, LDS_F + 4, LDS_F + 8, LDS_F + 12, LDS_F + 16
    F_BST = F_PRG + 16; F_THR = F_PRG + 32
    cps = True
    lds = ldsz
    assert LDS_F + 64 <= lds

    A(f'{NAME}:')
    A('  s_cmp_ge_u32 s2, 256')
    A('  s_cbranch_scc1 L_end')
    A(f'  s_load_dwordx16 {s(PT,16)}, s[0:1], 0')
    A(f'  s_load_dwordx4 {s(sDBG,4)}, s[0:1], 64')
    if stamps or diagpad:
        A('  s_memrealtime s[6:7]')
    A('  v_lshrrev_b32 v1, 6, v0')
    A('  v_and_b32 v0, 63, v0')
    A('  v_readfirstlane_b32 s3, v1')
    A(f'  s_bfe_u32 {s(sRO)}, s2, 0x10002')
    A(f'  s_lshr_b32 {s(sPB)}, s2, 3')
    A(f'  s_lshl_b32 {s(sPB)}, {s(sPB)}, 2')
    A(f'  s_and_b32 {s(sT)}, s2, 3')
    A(f'  s_add_u32 {s(sPB)}, {s(sPB)}, {s(sT)}')
    A(f'  s_lshl_b32 {s(sPB)}, {s(sPB)}, 5')
    SRDS = ((SKS, PT + 6, 256 * 24576), (SKZ, PT + 8, 256 * 24576), (SVS, PT + 10, 256 * 8192), (SVZ, PT + 12, 256 * 8192),
            (SK, PT + 2, TOTAL), (SQ, PT, 256 * 1536), (SI, PT + 2, TOTAL), (SV, PT + 4, TOTAL), (SW_, sWS, WSEND))
    for srd, p, nb in SRDS:
        A(f'  s_mov_b32 {s(srd+2)}, {nb}')
        A(f'  s_mov_b32 {s(srd+3)}, 0x20000')
    def make_srds(lo=0, hi=9):
        if lo == 0: A('  s_waitcnt lgkmcnt(0)')
        for srd, p, nb in SRDS[lo:hi]:
            A(f'  s_mov_b32 {s(srd)}, {s(p)}')
            A(f'  s_and_b32 {s(srd+1)}, {s(p+1)}, 0xffff')
    A(f'  s_cmp_eq_u32 s3, {W}')
    A('  s_cbranch_scc1 L_helper')

    cls, a, g, n = T, T + 1, T + 2, T + 3
    A(f'  v_and_b32 {v(cls)}, 3, v0')
    A(f'  v_bfe_u32 {v(a)}, v0, 2, 2')
    A(f'  v_lshrrev_b32 {v(g)}, 4, v0')
    A(f'  v_and_b32 {v(n)}, 15, v0')
    def stream_consts(x, up, own, con, lanepart):
        A(f'  v_and_b32 {v(own)}, 2, {v(x)}')
        A(f'  v_lshlrev_b32 {v(up)}, 5, {v(own)}')
        A(f'  v_add_u32 {v(up)}, 129, {v(up)}')
        A(f'  v_and_b32 {v(X1)}, 1, {v(x)}')
        A(f'  v_lshl_add_u32 {v(own)}, {v(X1)}, 2, {v(own)}')
        A(f'  v_mul_u32_u24 {v(X1)}, {43 * 768}, {v(X1)}')
        A(f'  v_add_u32 {v(con)}, {v(lanepart)}, {v(X1)}')
        A(f'  v_subrev_u32 {v(con)}, {43 * 768}, {v(con)}')
    A(f'  v_lshlrev_b32 {v(X0)}, 4, {v(cls)}')
    A(f'  v_lshl_add_u32 {v(X0)}, {v(g)}, 6, {v(X0)}')
    A(f'  v_lshrrev_b32 {v(VKS0)}, 1, {v(X0)}')
    stream_consts(a, IUP, IOWN, ICON, X0)
    A(f'  v_mul_u32_u24 {v(X1)}, 384, {v(a)}')
    A(f'  v_add_u32 {v(VQ)}, {v(X1)}, {v(VKS0)}')
    A(f'  v_mov_b32 {v(VOOB)}, {OOB}')
    A(f'  s_mov_b32 {s(sDIV)}, 0xaaaaaaab')
    A(f'  s_mov_b32 {s(sSH)}, 0x492492')
    A(f'  s_movk_i32 {s(s768)}, 768')
    def slot(k): return RING + 4 * (k % R)
    def main_load(k, srd, so):
        ss, i = divmod(k % NST, 3)
        r, k0 = (VO, 0) if ss == 0 else (VO + 1, 1) if ss <= 5 else (VO + 2, 6) if ss <= 9 else (VO + 3, 10)
        if rk and ss in (5, 6): r, k0 = (VO5, 5) if ss == 5 else (VO6, 6)
        return f'  buffer_load_dwordx4 {v(slot(k),4)}, {v(r)}, {s(srd,4)}, {s(so)} offen offset:{768*(ss-k0) + 256*i} nt'
    def kscale_loads():
        r = [f'  s_mul_i32 {s(sSO)}, {s(sQ3)}, 1536' if not nosmall & 1 else f'  s_mov_b32 {s(sSO)}, 0']
        for i in range(3):
            r.append(f'  buffer_load_dwordx2 {v(KSR+2*i,2)}, {v(VKS)}, {s(SKS,4)}, {s(sSO)} offen offset:{128*i} {sf}')
            r.append(f'  buffer_load_dwordx2 {v(KZR+2*i,2)}, {v(VKS)}, {s(SKZ,4)}, {s(sSO)} offen offset:{128*i} {sf}')
        return r
    def vscale_loads():
        return [f'  s_lshl_b32 {s(sSO)}, {s(sQ3)}, 9' if not nosmall & 2 else f'  s_mov_b32 {s(sSO)}, 0',
                f'  v_lshl_add_u32 {v(VVS)}, {v(TU)}, 1, {v(ICV)}'] + \
               ([f'  v_mad_i32_i24 {v(VVS)}, {v(ICR)}, {s(sRN)}, {v(VVS)}'] if rk else []) + [
                f'  buffer_load_short_d16_hi {v(ZN)}, {v(VVS)}, {s(SVZ,4)}, {s(sSO)} offen {sf}',
                f'  buffer_load_short_d16_hi {v(SN)}, {v(VVS)}, {s(SVS,4)}, {s(sSO)} offen {sf}']
    def q_loads():
        return [f'  s_mul_i32 {s(sT)}, {s(sHN)}, 1536'] + \
               [f'  buffer_load_dwordx2 {v(QN+2*i,2)}, {v(VQ)}, {s(SQ,4)}, {s(sT)} offen offset:{128*i} {sf}' for i in range(3)]
    def short_masks(own, c, m0, m10, low):
        A(f'  v_add_u32 {v(X0)}, {s(c)}, {v(own)}')
        A(f'  v_lshrrev_b32 {v(X1)}, {v(X0)}, {s(sSH)}')
        A(f'  v_and_b32 {v(X1)}, 1, {v(X1)}')
        A(f'  v_cmp_eq_u32 {s(m10,2)}, 1, {v(X1)}')
        A(f'  s_and_b64 {s(m0,2)}, {s(m10,2)}, {low}')
        A(f'  s_andn2_b64 {s(m10,2)}, {s(m10,2)}, {low}')
    def map_unit(f, isv):
        A(f'  s_andn2_b32 {s(sT)}, {s(f)}, 1')
        A(f'  s_or_b32 {s(sT)}, {s(sT)}, {s(sRO)}')
        A(f'  s_lshr_b32 {s(sT+1)}, {s(f)}, 5')
        A(f'  s_lshr_b32 {s(sC)}, {s(sDEC)}, {s(sT+1)}')
        if isv: A(f'  s_lshr_b32 {s(sC)}, {s(sC)}, 3')
        A(f'  s_cmp_lt_u32 {s(f)}, {s(sLIM)}')
        A(f'  s_cselect_b32 {s(sT)}, {s(sT)}, {s(f)}')
        A(f'  s_cselect_b32 {s(sC)}, {s(f)}, {s(sC)}')
        A(f'  s_and_b32 {s(sC)}, {s(sC)}, 1')
        if rk: A(f'  s_and_b32 {s(sRN)}, {s(sT)}, 1')
        if rot:
            A(f'  s_and_b32 {s(sQ3)}, {s(sT)}, {(2 << rot) - 1}')
            A(f'  s_sub_u32 {s(sT)}, {s(sT)}, {s(sQ3)}')
            A(f'  s_mul_i32 {s(sQ3)}, {s(sQ3)}, {(2 << rot) + 1}')
            A(f'  s_bfe_u32 {s(sQ3)}, {s(sQ3)}, {hex(((rot + 1) << 16) | 1)}')
            A(f'  s_add_u32 {s(sT)}, {s(sT)}, {s(sQ3)}')
        A(f'  s_mul_i32 {s(sT+1)}, {s(sT+1)}, {4096 - 32}')
        A(f'  s_add_u32 {s(sT)}, {s(sT)}, {s(sT+1)}')
        A(f'  s_add_u32 {s(sT)}, {s(sT)}, {s(sPB)}')
        A(f'  s_mul_hi_u32 {s(sQ3)}, {s(sT)}, {s(sDIV)}')
        A(f'  s_lshr_b32 {s(sQ3)}, {s(sQ3)}, 1')
        A(f'  s_mul_i32 {s(sT+1)}, {s(sQ3)}, 3')
        A(f'  s_sub_u32 {s(sT)}, {s(sT)}, {s(sT+1)}')
        A(f'  s_lshl3_add_u32 {s(sC)}, {s(sT)}, {s(sC)}')
        A(f'  s_mul_i32 {s(sNXT)}, {s(sQ3)}, 196608')
        A(f'  s_lshr_b32 {s(sHN)}, {s(sQ3)}, 4')
        A(f'  s_lshl_b32 {s(sT)}, {s(sC)}, 5')
        A(f'  v_add_u32 {v(TU)}, {s(sT)}, {v(DUP if isv else IUP)}')
        A(f'  v_mul_u32_u24 {v(TU)}, 21846, {v(TU)}')
        A(f'  v_lshrrev_b32 {v(TU)}, 16, {v(TU)}')
        short_masks(DOWN if isv else IOWN, sC, sM0, sM10, s(sLOW + 2 * isv, 2))
        if not isv:
            A(f'  v_mul_u32_u24 {v(X0)}, 43, {v(X0)}')
            A(f'  v_lshrrev_b32 {v(X0)}, 8, {v(X0)}')
            A(f'  v_mul_u32_u24 {v(X0)}, 384, {v(X0)}')
            A(f'  v_add_u32 {v(VKS)}, {v(X0)}, {v(VKS0)}')
    def offsets(con):
        A(f'  v_mad_u32_u24 {v(VO)}, {v(TU)}, {s(s768)}, {v(con)}')
        if rk:
            A(f'  s_xor_b32 {s(sT)}, {s(sRN)}, 1')
            A(f'  s_mul_i32 {s(sT)}, {s(sT)}, {6 * 768}')
            A(f'  s_mul_i32 {s(sT+1)}, {s(sRN)}, {5 * 768}')
            A(f'  v_add_u32 {v(VO+2)}, {s(sT)}, {v(VO)}')
            A(f'  v_add_u32 {v(VO)}, {s(sT+1)}, {v(VO)}')
            A(f'  v_add_u32 {v(VO+3)}, {4 * 768}, {v(VO+2)}')
            A(f'  v_add_u32 {v(VO+1)}, 768, {v(VO)}')
            A(f'  v_add_u32 {v(VO5)}, {5 * 768}, {v(VO)}')
            A(f'  s_cmp_eq_u32 {s(sRN)}, 0')
            for dst, src, m, when0 in ((VO, VO, sM0, 1), (VO + 3, VO + 3, sM10, 1), (VO5, VO5, sM10, 0), (VO6, VO + 2, sM0, 0)):
                A(f'  s_cselect_b64 {s(sT,2)}, {s(m,2)}, 0' if when0 else f'  s_cselect_b64 {s(sT,2)}, 0, {s(m,2)}')
                A(f'  v_cndmask_b32 {v(dst)}, {v(src)}, {v(VOOB)}, {s(sT,2)}')
            return
        A(f'  v_add_u32 {v(VO+1)}, 768, {v(VO)}')
        A(f'  v_add_u32 {v(VO+2)}, {6 * 768}, {v(VO)}')
        A(f'  v_add_u32 {v(VO+3)}, {10 * 768}, {v(VO)}')
        A(f'  v_cndmask_b32 {v(VO)}, {v(VO)}, {v(VOOB)}, {s(sM0,2)}')
        A(f'  v_cndmask_b32 {v(VO+3)}, {v(VO+3)}, {v(VOOB)}, {s(sM10,2)}')
    def stamp():
        if tl:
            A(f'  s_memrealtime {s(sT,2)}')
            A('  s_waitcnt lgkmcnt(0)')
            A(f'  s_min_u32 m0, {s(sTL)}, 63')
            A(f'  v_writelane_b32 {v(TL)}, {s(sT)}, m0')
            A(f'  s_add_u32 {s(sTL)}, {s(sTL)}, 1')
    def reset_state():
        for k in range(12): A(f'  v_mov_b32 {v(ACC+k)}, 0')
        A(f'  v_mov_b32 {v(M)}, 0xff800000')
        A(f'  v_mov_b32 {v(NB)}, 0x7f800000')
        A(f'  v_mov_b32 {v(LS)}, 0')
    A(f'  s_mov_b32 {s(sF)}, s3')
    A(f'  s_mov_b32 {s(sLIM)}, {NWU}')
    A(f'  s_mov_b32 {s(sGATE)}, {NWU}')
    A(f'  s_mov_b32 {s(sDEC)}, 0')
    A(f'  v_lshlrev_b32 {v(ZC)}, 4, v0')
    pfl = []
    if pfw:
        sPK, sPV = sQC, sHC
        A(f'  s_mul_i32 {s(sT)}, s2, {W}')
        A(f'  s_add_u32 {s(sT)}, {s(sT)}, s3')
        A(f'  s_mul_i32 {s(sPV)}, {s(sT)}, {8192 // W}')
        A(f'  s_mul_i32 {s(sPK)}, {s(sT)}, {24576 // W}')
        line = lambda srd, so, k: f'  buffer_load_dwordx4 {v(ACC,4)}, {v(ZC)}, {s(srd,4)}, {s(so)} offen offset:{(k % 4) * 1024}'
        for k in range(24 // W):
            if k % 4 == 0 and k: pfl.append(f'  s_add_u32 {s(sPK)}, {s(sPK)}, 4096')
            pfl += [line(SKS, sPK, k), line(SKZ, sPK, k)]
            if k < 8 // W: pfl += [line(SVS, sPV, k), line(SVZ, sPV, k)]
    nissued = [0]
    def issue_pf(n):
        while pfl and n > 0:
            x = pfl.pop(0)
            if 'buffer_load' in x:
                if nissued[0] >= pfw: A(f'  s_waitcnt vmcnt({pfw - 1})')
                nissued[0] += 1; n -= 1
            A(x)
    make_srds(0, 4)
    issue_pf(min(pfw, 8))
    make_srds(4, 9)
    A(f'  s_mov_b32 {s(sLOW)}, 0x0f0f0f0f')
    A(f'  s_mov_b32 {s(sLOW+1)}, 0x0f0f0f0f')
    A(f'  s_mov_b32 {s(sLOW+2)}, 0xffff')
    A(f'  s_mov_b32 {s(sLOW+3)}, 0xffff')
    map_unit(sF, 0)
    offsets(ICON)
    A(f'  s_mov_b32 {s(sCUR)}, {s(sNXT)}')
    if pfw:
        for x in q_loads(): A(x)
        A(main_load(0, SK, sCUR))
        issue_pf(pfw - nissued[0])
        A('  s_barrier')
        issue_pf(99)
        for x in kscale_loads(): A(x)
        for k in range(1, D):
            A(f'  s_waitcnt vmcnt({max(min(pfw, DN) - 1 + 6, k - 1 + 6)})')
            A(main_load(k, SK, sCUR))
    else:
        for x in kscale_loads(): A(x)
        for x in q_loads(): A(x)
        for k in range(D): A(main_load(k, SK, sCUR))
    A(f'  s_mov_b32 {s(sHC)}, {s(sHN)}')
    A('  s_mov_b64 vcc, 0')
    A(f'  v_lshlrev_b32 {v(X0)}, 4, {v(n)}')
    stream_consts(g, DUP, DOWN, DCON, X0)
    A(f'  v_and_b32 {v(X1)}, 1, {v(g)}')
    A(f'  v_mul_u32_u24 {v(X1)}, 86, {v(X1)}')
    A(f'  v_lshl_add_u32 {v(ICV)}, {v(n)}, 1, {v(X1)}')
    A(f'  v_subrev_u32 {v(ICV)}, 86, {v(ICV)}')
    if rk:
        A(f'  v_add_u32 {v(ICR)}, 10, {v(n)}')
        A(f'  v_lshrrev_b32 {v(ICR)}, 4, {v(ICR)}')
        A(f'  v_mul_i32_i24 {v(ICR)}, -22, {v(ICR)}')
        A(f'  v_add_u32 {v(ICR)}, 10, {v(ICR)}')
    A(f'  v_lshlrev_b32 {v(VBP)}, 4, {v(g)}')
    A(f'  v_lshrrev_b32 {v(X0)}, 2, v0')
    A(f'  s_mul_i32 {s(sT)}, s3, 384')
    A(f'  v_lshl_add_u32 {v(VL1)}, {v(X0)}, 4, {s(sT)}')
    A(f'  v_lshl_add_u32 {v(VL2)}, {v(X0)}, 3, {s(sT)}')
    A(f'  s_mul_i32 {s(sT)}, s3, 3072')
    A(f'  s_add_u32 {s(sT)}, {s(sT)}, {LDS_ACC}')
    A(f'  v_lshl_add_u32 {v(VFL)}, v0, 4, {s(sT)}')
    A(f'  s_lshl_b32 {s(sT)}, s3, 5')
    A(f'  s_add_u32 {s(sT)}, {s(sT)}, {LDS_ACC + W * 3072}')
    A(f'  v_lshl_add_u32 {v(VST)}, {v(a)}, 3, {s(sT)}')
    A(f'  s_lshl_b32 {s(sT)}, s3, 2')
    A(f'  s_add_u32 {s(sT)}, {s(sT)}, {F_PRG}')
    A(f'  v_mov_b32 {v(VPR)}, {s(sT)}')
    A(f'  v_lshrrev_b32 {v(VBD)}, 5, v0')
    if wsy:
        A(f'  s_lshl_b32 {s(sT)}, s3, 3')
        A(f'  s_sub_u32 {s(sT)}, {F_PRG + 4 - F_BST}, {s(sT)}')
        A(f'  v_mul_i32_i24 {v(VBA)}, {s(sT)}, {v(VBD)}')
        A(f'  s_not_b32 {s(sT)}, s3')
        A(f'  v_mul_i32_i24 {v(VBD)}, {s(sT)}, {v(VBD)}')
    else:
        A(f'  v_mul_u32_u24 {v(VBA)}, {F_THR - F_BST}, {v(VBD)}')
        A(f'  v_mov_b32 {v(VBD)}, 0')
    A(f'  s_lshl2_add_u32 {s(sT)}, s3, {F_BST}')
    A(f'  v_add_u32 {v(VBA)}, {s(sT)}, {v(VBA)}')
    A(f'  v_mov_b32 {v(ZN)}, 0')
    A(f'  v_mov_b32 {v(SN)}, 0')
    A(f'  v_mov_b32 {v(VNI)}, 0xff800000')
    A(f'  s_mov_b32 {s(sMSK)}, 0xffff0000')
    A(f'  s_mov_b32 {s(sL2E)}, 0x3fb8aa3b')
    for h in range(2):
        A(f'  s_mov_b32 {s(sSCL+h)}, {hex(0x3d93cd3a + ((49 if fk else 22) << 23))}')
        A(f'  s_mov_b32 {s(sBIG+h)}, {hex((127 + (100 if fk else 127)) << 23)}')
        A(f'  s_mov_b32 {s(sSM+h)}, {hex((127 - (49 if fk else 22)) << 23)}')
    for j in range(4):
        A(f'  s_mov_b32 {s(sMJ+2*j)}, {hex(0x11111111 << j)}')
        A(f'  s_mov_b32 {s(sMJ+2*j+1)}, {hex(0x11111111 << j)}')
        if j < 4 // W: A(f'  s_mov_b32 {s(sREC+j)}, 0')
    A(f'  s_mov_b32 {s(sSEG)}, 0')
    if pfw: A(f'  s_waitcnt vmcnt({D - 1})')
    if pdel:
        A(f'  v_mov_b32 {v(AL)}, 1')
        A(f'  ds_write_b32 {v(VPR)}, {v(AL)}')
    reset_state()
    if tl:
        A(f'  s_mov_b32 {s(sTL)}, 0')
        A(f'  v_mov_b32 {v(TL)}, 0')
    if not pfw: A('  s_barrier')

    PSMALL = 3
    late = (D == R)
    SW = NST - D
    assert PSMALL < SW and 3 <= PSK < SW
    stubs = []
    sTH = 98
    def wait_step(k, nsmall, tag, PSMALL):
        cnt = lambda d: d - 1 + (nsmall if k - d <= PSMALL < k else 0)
        if k == 2 and tev:
            A(f'  s_mov_b32 {s(sTH)}, vcc_hi')
            A('  s_mov_b32 vcc_hi, 0')
        if tev and k >= 2 and (k - 2) % tev == 0:
            A(f'  s_cmp_lg_u32 {s(sTH)}, 0')
            A(f'  s_cbranch_scc1 L_{tag}x')
            A(f'L_{tag}t:')
            stubs.extend([f'L_{tag}x:', f'  s_waitcnt vmcnt({cnt(DT)})', f'  s_branch L_{tag}t'])
        if nobr:
            A(f'  s_waitcnt vmcnt({cnt(DN)})')
            return
        if w3:
            if k % bev: return
            A(f'  s_waitcnt vmcnt({cnt(D - bev + 1)})')
        else:
            A(f'  s_waitcnt vmcnt({cnt(D)})')
            if k % bev: return
        A(f'  s_cbranch_vccnz L_{tag}')
        A(f'  s_waitcnt vmcnt({cnt(DN)})')
        A(f'L_{tag}:')
    def mode_update(tag):
        A('  s_waitcnt lgkmcnt(0)')
        A(f'  v_cmp_lt_i32 vcc, {v(VBC)}, {v(VBS)}')
        if wsy:
            A('  s_cmp_lg_u32 vcc_hi, 0')
            A(f'  s_cbranch_scc1 L_{tag}_in')
            A(f'L_{tag}_w:')
            A(f'  ds_read_b32 {v(VBS)}, {v(VBA)}')
            A('  s_waitcnt lgkmcnt(0)')
            A(f'  v_cmp_lt_i32 vcc, {v(VBC)}, {v(VBS)}')
            A('  s_cmp_eq_u32 vcc_hi, 0')
            A(f'  s_cbranch_scc1 L_{tag}_w')
            A(f'L_{tag}_in:')
            A('  s_mov_b32 vcc_hi, 0')
    def dequant(X, src, z, sc, zmod, smod, fused, fmod):
        if fused:
            return [f'  v_pk_fma_f32 {v(X+2*h,2)}, {v(src+2*h,2)}, {sc[h]}, {z[h]} {fmod}neg_lo:[0,0,1] neg_hi:[0,0,1]' for h in range(2)], []
        r = [f'  v_pk_fma_f32 {v(X+2*h,2)}, {v(src+2*h,2)}, {s(sBIG,2)}, {z[h]} {zmod}neg_lo:[0,0,1] neg_hi:[0,0,1]' for h in range(2)]
        r2 = [f'  v_cvt_pk_bf16_f32 {v(X+j)}, 0, {v(X+j)}' for j in range(4)]
        r2 += [f'  v_pk_mul_f32 {v(X+2*h,2)}, {v(X+2*h,2)}, {sc[h]} {smod}'.rstrip() for h in range(2)]
        return r, r2
    def kreduce(ss):
        d = S + (ss & 1)
        q = lambda j: f'quad_perm:[{j},{j},{j},{j}] row_mask:0xf bank_mask:0xf'
        r = [f'  v_mov_b32_dpp {v(X0)}, {v(SD)} {q(0)}',
             f'  v_mov_b32_dpp {v(X1)}, {v(SD+2)} {q(2)}',
             f'  v_add_f32_dpp {v(X0)}, {v(SD+1)}, {v(X0)} {q(1)}',
             f'  v_add_f32_dpp {v(X1)}, {v(SD+3)}, {v(X1)} {q(3)}',
             f'  v_add_f32 {v(d)}, {v(X0)}, {v(X1)}']
        if rk:
            if ss in (0, 5, 6, 10):
                r += [f'  s_cmp_eq_u32 {s(sRC)}, {int(ss in (5, 6))}', f'  s_cselect_b64 {s(sT,2)}, {s(sL0 if ss in (0, 6) else sL10,2)}, 0',
                      f'  v_cndmask_b32 {v(d)}, {v(d)}, {v(VNI)}, {s(sT,2)}']
        else:
            if ss == 0: r.append(f'  v_cndmask_b32 {v(d)}, {v(d)}, {v(VNI)}, {s(sL0,2)}')
            if ss == 10: r.append(f'  v_cndmask_b32 {v(d)}, {v(d)}, {v(VNI)}, {s(sL10,2)}')
        if ss & 1 or ss == 10:
            r += [f'  v_cvt_pk_bf16_f32 {v(S)}, 0, {v(S)}',
                  f'  v_cvt_pk_bf16_f32 {v(S+1)}, 0, {v(S+1)}',
                  f'  v_pk_mul_f32 {v(S,2)}, {v(S,2)}, {s(sSCL,2)}',
                  f'  v_cvt_pk_bf16_f32 {v(LG+(ss>>1))}, {v(S)}, {v(S+1)}']
        return r
    def lds_word(dst, addr):
        A(f'  v_mov_b32 {v(X0)}, {addr}')
        A(f'  ds_read_b32 {v(X0)}, {v(X0)}')
        A('  s_waitcnt lgkmcnt(0)')
        A(f'  v_readfirstlane_b32 {s(dst)}, {v(X0)}')

    mf32 = f'  v_mfma_f32_16x16x32_bf16 {v(SD,4)}, {v(KA,4)}, {v(QB,4)}, 0'
    mf16 = f'  v_mfma_f32_16x16x16_bf16 {v(SD,4)}, {v(KA+4,2)}, {v(QB+4,2)}, {v(SD,4)}'
    def diag_mark(tag, base_):
        if diagat < 0: return
        A(f'  s_and_b32 {s(sT)}, {s(sF)}, -4')
        A(f'  s_cmp_lg_u32 {s(sT)}, {diagat - base_}')
        A(f'  s_cbranch_scc1 L_dm{tag}')
        A('  s_memrealtime s[6:7]')
        A('  s_waitcnt lgkmcnt(0)')
        A(f'L_dm{tag}:')
    def k_unit(u):
        o = NST * u
        if u == 0: diag_mark('k', 0)
        if u == 0: stamp()
        short_masks(DOWN, sC, sL0, sL10, s(sLOW + 2, 2))
        if rk: A(f'  s_mov_b32 {s(sRC)}, {s(sRN)}')
        A(f'  s_add_u32 {s(sF)}, {s(sF)}, {W}')
        A(f'  s_sub_u32 {s(sT)}, {s(sF)}, {W}')
        A(f'  v_add_u32 {v(VBC)}, {s(sT)}, {v(VBD)}')
        for k in range(NST):
            ss, i = divmod(k, 3)
            if k == max(wsy, 1) - 1: A(f'  ds_read_b32 {v(VBS)}, {v(VBA)}')
            if k == max(wsy, 1): mode_update(f'km{u}')
            if k == SW and u < U - 1: offsets(ICON)
            if k == SW and u == U - 1:
                A(f'  s_cmp_lt_u32 {s(sF)}, {NF}')
                A(f'  s_cbranch_scc1 L_k_keep{u}')
                A(f'  s_bitcmp1_b32 {s(sDEC)}, 6')
                A(f'  s_cselect_b32 {s(sLIM)}, 255, 0')
                A(f'  v_mov_b32 {v(E)}, {v(X0)}')
                A(f'  v_mov_b32 {v(E+1)}, {v(X1)}')
                map_unit(3, 1)
                A(f'  v_mov_b32 {v(X0)}, {v(E)}')
                A(f'  v_mov_b32 {v(X1)}, {v(E+1)}')
                A(f'  s_mov_b32 {s(SI)}, {s(SV)}')
                A(f'  s_mov_b32 {s(SI+1)}, {s(SV+1)}')
                for x in vscale_loads(): A(x)
                A(f'  v_mov_b32 {v(ICON)}, {v(DCON)}')
                A(f'L_k_keep{u}:')
                offsets(ICON)
            lds_ = [main_load(o + k + D, SK, sCUR) if k < SW else main_load(o + k + D, SI, sNXT)]
            wait_step(k, 6, f'kw{u}_{k}', PSK)
            if not late:
                for x in lds_: A(x)
            if i == 2: A(mf32)
            if i == 0 and ss > 0: A(mf16)
            if ss == 0:
                for raw, dst in ((KZR, KZ), (KSR, KS)):
                    for h in range(2):
                        A(f'  v_lshlrev_b32 {v(dst+4*i+2*h)}, 16, {v(raw+2*i+h)}')
                        A(f'  v_and_b32 {v(dst+4*i+2*h+1)}, {s(sMSK)}, {v(raw+2*i+h)}')
                for h in range(2):
                    A(f'  v_pk_mul_f32 {v(KZ+4*i+2*h,2)}, {v(KZ+4*i+2*h,2)}, {s(sSM,2)}')
                    if fk:
                        A(f'  v_pk_mul_f32 {v(KZ+4*i+2*h,2)}, {v(KZ+4*i+2*h,2)}, {v(KS+4*i+2*h,2)}')
                        A(f'  v_pk_mul_f32 {v(KS+4*i+2*h,2)}, {v(KS+4*i+2*h,2)}, {s(sBIG,2)}')
                    A(f'  v_mov_b32 {v(QB+2*i+h)}, {v(QN+2*i+h)}')
            c, rest = dequant(T, slot(o + k), (v(KZ+4*i,2), v(KZ+4*i+2,2)), (v(KS+4*i,2), v(KS+4*i+2,2)), '', '', fk, '')
            for x in c: A(x)
            if late:
                for x in lds_: A(x)
            if k == PSK:
                A(f'  s_cmp_lt_u32 {s(sF)}, {s(sGATE)}')
                A(f'  s_cbranch_scc1 L_k_known{u}')
                A(f'L_k_spin{u}:')
                lds_word(sDEC, F_DEC)
                A(f'  s_cmp_eq_u32 {s(sDEC)}, 0')
                A(f'  s_cbranch_scc1 L_k_spin{u}')
                A(f'  s_mov_b32 {s(sGATE)}, -1')
                A(f'  s_bitcmp1_b32 {s(sDEC)}, 6')
                A(f'  s_cselect_b32 {s(sLIM)}, 255, {s(sLIM)}')
                A(f'L_k_known{u}:')
                map_unit(sF, 0)
                A(f'  s_cmp_eq_u32 {s(sHN)}, {s(sHC)}')
                A(f'  s_cbranch_scc1 L_k_sameq{u}')
                for x in q_loads(): A(x)
                A(f'  s_mov_b32 {s(sHC)}, {s(sHN)}')
                A(f'L_k_sameq{u}:')
                for x in kscale_loads(): A(x)
            rest += [f'  v_cvt_pk_bf16_f32 {v(KA+2*i)}, {v(T)}, {v(T+1)}',
                     f'  v_cvt_pk_bf16_f32 {v(KA+2*i+1)}, {v(T+2)}, {v(T+3)}']
            if i == 1 and ss > 0:
                r = kreduce(ss - 1)
                rest = r[:2] + rest[:2] + r[2:4] + rest[2:4] + r[4:5] + rest[4:]
                pend = r[5:]
            elif i == 2 and ss > 0:
                rest = merge(rest, pend, 1)
            for x in rest: A(x)
        A(f'  s_mov_b32 {s(sCUR)}, {s(sNXT)}')
        A(f'  v_mov_b32 {v(AL)}, {s(sF)}')
        A(mf16)
        A(f'  ds_write_b128 {v(VL1)}, {v(LG,4)}')
        A(f'  v_add_u32 {v(VL1)}, {384 * W}, {v(VL1)}')
        for x in kreduce(10): A(x)
        A(f'  ds_write_b64 {v(VL2)}, {v(LG+4,2)} offset:256')
        A(f'  ds_write_b32 {v(VPR)}, {v(AL)}')
        A(f'  v_add_u32 {v(VL2)}, {384 * W}, {v(VL2)}')
    A('L_k:')
    for u in range(U): k_unit(u)
    A(f'  s_cmp_lt_u32 {s(sF)}, {NF}')
    A('  s_cbranch_scc1 L_k')

    def flush():
        A(f'  v_mov_b32 {v(X1)}, {v(LS)}')
        A(f'  v_permlane32_swap_b32 {v(LS)}, {v(X1)}')
        A(f'  v_add_f32 {v(LS)}, {v(LS)}, {v(X1)}')
        A(f'  v_mov_b32 {v(X1)}, {v(LS)}')
        A(f'  v_permlane16_swap_b32 {v(LS)}, {v(X1)}')
        A(f'  v_add_f32 {v(LS)}, {v(LS)}, {v(X1)}')
        A(f'  ds_write_b64 {v(VST)}, {v(NB,2)}')
        for i in range(3):
            A(f'  ds_write_b128 {v(VFL)}, {v(ACC+4*i,4)} offset:{1024*i}')
        A(f'  s_and_b32 {s(sT)}, {s(sQC)}, 15')
        A(f'  s_cmp_ge_u32 {s(sT)}, 12')
        A(f'  s_cselect_b32 {s(sT)}, 2, 0')
        A(f'  s_and_b32 {s(sT+1)}, {s(sCC)}, 1')
        A(f'  s_bitcmp1_b32 {s(sDEC)}, 6')
        A(f'  s_cselect_b32 {s(sT+1)}, {s(sRO)}, {s(sT+1)}')
        A(f'  s_add_u32 {s(sT)}, {s(sT)}, {s(sT+1)}')
        A(f'  s_lshr_b32 {s(sT+1)}, {s(sQC)}, 4')
        A(f'  s_lshl2_add_u32 {s(sT)}, {s(sT+1)}, {s(sT)}')
        for j in range(4 // W):
            A(f'  s_add_u32 {s(sT+1)}, s3, {W * j}')
            A(f'  s_cmp_eq_u32 {s(sSEG)}, {s(sT+1)}')
            A(f'  s_cselect_b32 {s(sREC+j)}, {s(sT)}, {s(sREC+j)}')
        A(f'  s_add_u32 {s(sSEG)}, {s(sSEG)}, 1')
        A('  s_waitcnt lgkmcnt(0)')
    def import_gate(tag):
        A(f'  s_cmp_lt_u32 {s(sF)}, {s(sGATE)}')
        A(f'  s_cbranch_scc1 L_{tag}_ok')
        A(f'L_{tag}_spin:')
        lds_word(sGATE, F_IMP)
        A(f'  s_cmp_lt_u32 {s(sF)}, {s(sGATE)}')
        A(f'  s_cbranch_scc0 L_{tag}_spin')
        A(f'L_{tag}_ok:')

    A(f'  v_subrev_u32 {v(VL1)}, {IMG}, {v(VL1)}')
    A(f'  v_subrev_u32 {v(VL2)}, {IMG}, {v(VL2)}')
    A(f'  s_mov_b32 {s(sF)}, s3')
    A(f'  s_mov_b32 {s(sHC)}, {s(sHN)}')
    A(f'  s_mov_b32 {s(sGATE)}, 0')
    if not fv:
        for h in range(2): A(f'  s_mov_b32 {s(sBIG+h)}, 0x7f000000')
    A(f'  s_load_dwordx2 {s(sREC,2)}, s[0:1], 56')
    A('  s_waitcnt lgkmcnt(0)')
    A(f'  s_mov_b32 {s(SQ)}, {s(sREC)}')
    A(f'  s_and_b32 {s(SQ+1)}, {s(sREC+1)}, 0xffff')
    import_gate('v0')
    A(f'  ds_read_b128 {v(LG,4)}, {v(VL1)}')
    A(f'  ds_read_b64 {v(LG+4,2)}, {v(VL2)} offset:256')
    def v_unit(u):
        o = NST * u
        A(f'L_v{u}:')
        if u == 0: diag_mark('v', NF)
        if u == 0: stamp()
        A(f'  s_mov_b32 {s(sQC)}, {s(sQ3)}')
        A(f'  s_mov_b32 {s(sCC)}, {s(sC)}')
        A(f'  s_add_u32 {s(sF)}, {s(sF)}, {W}')
        import_gate(f'v1{u}')
        map_unit(sF, 1)
        A(f'  s_cmp_lt_u32 {s(sF)}, {NF}')
        A(f'  s_cselect_b32 {s(sNXT)}, {s(sNXT)}, {TOTAL}')
        prep = ['  s_waitcnt lgkmcnt(0)']
        A(f'  s_add_u32 {s(sT)}, {s(sF)}, {NF - W}')
        A(f'  v_mov_b32 {v(AL)}, {s(sT)}')
        A(f'  v_add_u32 {v(VBC)}, {s(sT)}, {v(VBD)}')
        A(f'  ds_write_b32 {v(VPR)}, {v(AL)}')
        for k in range(11):
            prep.append(f'  v_lshlrev_b32 {v(E+k)}, 16, {v(LG+k//2)}' if k % 2 == 0 else f'  v_and_b32 {v(E+k)}, {s(sMSK)}, {v(LG+k//2)}')
        prep += [f'  v_add_u32 {v(VL1)}, {384 * W}, {v(VL1)}',
                 f'  v_add_u32 {v(VL2)}, {384 * W}, {v(VL2)}',
                 f'  v_max3_f32 {v(X0)}, {v(E)}, {v(E+1)}, {v(E+2)}',
                 f'  ds_read_b128 {v(LG,4)}, {v(VL1)}',
                 f'  ds_read_b64 {v(LG+4,2)}, {v(VL2)} offset:256',
                 f'  v_max3_f32 {v(X1)}, {v(E+3)}, {v(E+4)}, {v(E+5)}',
                 f'  v_max3_f32 {v(X0)}, {v(X0)}, {v(E+6)}, {v(E+7)}',
                 f'  v_max3_f32 {v(X1)}, {v(X1)}, {v(E+8)}, {v(E+9)}',
                 f'  v_max3_f32 {v(X0)}, {v(X0)}, {v(E+10)}, {v(M)}',
                 f'  v_max_f32 {v(X0)}, {v(X0)}, {v(X1)}',
                 f'  v_mov_b32 {v(X1)}, {v(X0)}',
                 f'  v_permlane32_swap_b32 {v(X0)}, {v(X1)}',
                 f'  v_max_f32 {v(X0)}, {v(X0)}, {v(X1)}',
                 f'  v_mov_b32 {v(X1)}, {v(X0)}',
                 f'  v_permlane16_swap_b32 {v(X0)}, {v(X1)}',
                 f'  v_max_f32 {v(M)}, {v(X0)}, {v(X1)}',
                 f'  v_mul_f32 {v(X0)}, {s(sL2E)}, {v(M)}',
                 f'  v_add_f32 {v(AL)}, {v(X0)}, {v(NB)}',
                 f'  v_sub_f32 {v(NB)}, 0, {v(X0)}',
                 f'  v_exp_f32 {v(AL)}, -{v(AL)}',
                 f'  ds_bpermute_b32 {v(ALQ)}, {v(VBP)}, {v(AL)}']
        for k in range(11):
            prep += [f'  v_fma_f32 {v(E+k)}, {v(E+k)}, {s(sL2E)}, {v(NB)}', f'  v_exp_f32 {v(E+k)}, {v(E+k)}']
        prep += [f'  v_add_f32 {v(X0)}, {v(E)}, {v(E+1)}', f'  v_add_f32 {v(X1)}, {v(E+2)}, {v(E+3)}']
        for k in range(4, 11):
            x = X0 if k % 2 == 0 else X1
            prep.append(f'  v_add_f32 {v(x)}, {v(x)}, {v(E+k)}')
        prep += [f'  v_add_f32 {v(X0)}, {v(X0)}, {v(X1)}',
                 f'  v_fma_f32 {v(LS)}, {v(LS)}, {v(AL)}, {v(X0)}']
        for k in range(6):
            prep.append(f'  v_cvt_pk_bf16_f32 {v(PP+k)}, {v(E+2*k)}, {v(E+2*k+1) if k < 5 else 0}')
        for j in range(4):
            for k in range(4):
                prep.append(f'  v_cndmask_b32 {v(AJ+4*j+k)}, 0, {v(PP+k)}, {s(sMJ+2*j,2)}')
        prep.append('  s_waitcnt lgkmcnt(0)')
        for k in range(12):
            prep.append(f'  v_mul_f32 {v(ACC+k)}, {v(ALQ)}, {v(ACC+k)}')
        prep2 = [f'  v_cndmask_b32 {v(AK+2*j+k)}, 0, {v(PP+4+k)}, {s(sMJ+2*j,2)}' for j in range(4) for k in range(2)]
        per = 5
        for k in range(NST):
            ss, i = divmod(k, 3)
            if k == max(wsy, 1) - 1: A(f'  ds_read_b32 {v(VBS)}, {v(VBA)}')
            if k == max(wsy, 1): mode_update(f'vm{u}')
            if k == SW: offsets(DCON)
            lds_ = [main_load(o + k + D, SV, sCUR if k < SW else sNXT)]
            wait_step(k, 2, f'vw{u}_{k}', PSMALL)
            if not late:
                for x in lds_: A(x)
            if k == 0:
                A(f'  v_mul_f32 {v(ZC)}, {hex((127 - (49 if fv else 22)) << 23)}, {v(ZN)}')
                A(f'  v_mul_f32 {v(SC)}, {hex((127 + (100 if fv else 22)) << 23)}, {v(SN)}')
                if fv: A(f'  v_mul_f32 {v(ZC)}, {v(ZC)}, {v(SN)}')
            if i == 0:
                A(f'  v_mov_b32_dpp {v(ZS)}, {v(ZC)} row_newbcast:{ss} row_mask:0xf bank_mask:0xf')
                A(f'  v_mov_b32_dpp {v(ZS+1)}, {v(SC)} row_newbcast:{ss} row_mask:0xf bank_mask:0xf')
            X = TV + 4 * i if ss % 2 == 0 else T
            c, rest = dequant(X, slot(o + k), (v(ZS,2), v(ZS,2)), (v(ZS,2), v(ZS,2)), 'op_sel_hi:[1,1,0] ', 'op_sel:[0,1]', fv, 'op_sel:[0,1,0] op_sel_hi:[1,1,0] ')
            for x in c: A(x)
            if late:
                for x in lds_: A(x)
            if k == PSMALL:
                for x in vscale_loads(): A(x)
            if ss % 2 == 1:
                rest += [f'  v_cvt_pk_bf16_f32 {v(BV+16*i+4*j+((ss>>1)&3))}, {v(TV+4*i+j)}, {v(T+j)}' for j in range(4)]
            if ss == 10:
                rest += [f'  v_cvt_pk_bf16_f32 {v(BV+16*i+4*j+1)}, {v(TV+4*i+j)}, 0' for j in range(4)]
            side, prep = prep[:per], prep[per:]
            if k == 20:
                side += prep; prep = []
            if k == 23: prep = prep2
            for x in merge(rest, side, 1): A(x)
            if ss == 7:
                for j in range(4):
                    A(f'  v_mfma_f32_16x16x32_bf16 {v(ACC+4*i,4)}, {v(AJ+4*j,4)}, {v(BV+16*i+4*j,4)}, {v(ACC+4*i,4)}')
            if ss == 10:
                assert not prep
                for j in range(4):
                    A(f'  v_mfma_f32_16x16x16_bf16 {v(ACC+4*i,4)}, {v(AK+2*j,2)}, {v(BV+16*i+4*j,2)}, {v(ACC+4*i,4)}')
        A(f'  s_mov_b32 {s(sCUR)}, {s(sNXT)}')
        if u == U - 1:
            A(f'  s_cmp_ge_u32 {s(sF)}, {NF}')
            A('  s_cbranch_scc1 L_v_done')
        A(f'  s_cmp_eq_u32 {s(sHN)}, {s(sHC)}')
        A(f'  s_cbranch_scc1 L_v{(u + 1) % U}')
        A(f'  s_mov_b32 {s(sHC)}, {s(sHN)}')
        flush()
        A(f'  v_add_u32 {v(VFL)}, {SEG}, {v(VFL)}')
        A(f'  v_add_u32 {v(VST)}, {SEG}, {v(VST)}')
        reset_state()
        if u == U - 1: A('  s_branch L_v0')
    for u in range(U): v_unit(u)
    A('L_v_done:')
    stamp()
    flush()
    A('  s_waitcnt vmcnt(0)')

    A('  s_barrier')
    ST = RING; AC = (base + 3) // 4 * 4
    nv = max(nv, AC + 48)
    A(f'  v_lshrrev_b32 {v(AL)}, 1, {v(VBP)}')
    A(f'  v_lshlrev_b32 {v(ALQ)}, 4, v0')
    for j in range(4 // W):
        A(f'  s_mul_i32 {s(sT)}, s3, {SEG}')
        A(f'  s_add_u32 {s(sT)}, {s(sT)}, {LDS_ACC + W * j * SEG}')
        A(f'  v_add_u32 {v(X0)}, {s(sT)}, {v(AL)}')
        for w in range(W):
            A(f'  ds_read_b64 {v(ST+2*(W*j+w),2)}, {v(X0)} offset:{W*3072 + 32*w}')
        A(f'  v_add_u32 {v(X0)}, {s(sT)}, {v(ALQ)}')
        for w in range(W):
            for i in range(3):
                A(f'  ds_read_b128 {v(AC+12*(W*j+w)+4*i,4)}, {v(X0)} offset:{3072*w + 1024*i}')
    A(f'  v_mov_b32 {v(X0)}, {F_TAG}')
    A(f'  ds_read_b32 {v(M)}, {v(X0)}')
    A(f'  s_mov_b32 {s(sSEG)}, -1')
    A(f'  s_add_u32 {s(sLIM)}, {s(sRO)}, 1')
    A('  s_waitcnt lgkmcnt(0)')
    GR = RING + 8; OWN = GR + 40
    gi = lambda b, x: b + 4 * (x // 3) + x % 3
    for j in range(4 // W):
        G = GR + 20 * j
        combine(A, W, ST + 2 * W * j, AC + 12 * W * j, 3, gi(G, 12), gi(G, 13), lambda x: gi(G, x))
        A(f'  s_bfe_u32 {s(sT)}, {s(sREC+j)}, 0x20001')
        A(f'  s_cmp_eq_u32 {s(sT)}, {s(sLIM)}')
        A(f'  s_cbranch_scc1 L_own{j}')
        for g_ in range(5): A(f'  v_mov_b32 {v(G+4*g_+3)}, {v(M)}')
        A(f'  s_mul_i32 {s(sT)}, {s(sREC+j)}, {REC}')
        A(f'  s_add_u32 {s(sT)}, {s(sT)}, {WSOFF}')
        A(f'  s_add_u32 {s(sT+1)}, {s(sT)}, 4096')
        for g_ in range(5):
            A(f'  buffer_store_dwordx4 {v(G+4*g_,4)}, {v(ALQ)}, {s(SW_,4)}, {s(sT + g_ // 4)} offen offset:{1024 * (g_ % 4)} sc1')
        A(f'  s_branch L_pub{j}')
        A(f'L_own{j}:')
        for x in range(14): A(f'  v_mov_b32 {v(gi(OWN, x))}, {v(gi(G, x))}')
        A(f'  s_mov_b32 {s(sSEG)}, {s(sREC+j)}')
        A(f'L_pub{j}:')
    stamp()
    A(f'  s_cmp_eq_u32 {s(sSEG)}, -1')
    A('  s_cbranch_scc1 L_fin')
    FR = AC
    nv = max(nv, FR + 60)
    sR = 84
    A(f'  s_xor_b32 {s(sR)}, {s(sSEG)}, 1')
    A(f'  s_andn2_b32 {s(sR+2)}, {s(sSEG)}, 1')
    A(f'  s_xor_b32 {s(sR+2)}, {s(sR+2)}, 2')
    A(f'  s_add_u32 {s(sR+4)}, {s(sR+2)}, 1')
    for r in range(3):
        A(f'  s_mul_i32 {s(sR+2*r)}, {s(sR+2*r)}, {REC}')
        A(f'  s_add_u32 {s(sR+2*r)}, {s(sR+2*r)}, {WSOFF}')
        A(f'  s_add_u32 {s(sR+2*r+1)}, {s(sR+2*r)}, 4096')
    A(f'  v_mov_b32 {v(X1)}, {s(sR+1)}')
    A(f'  v_writelane_b32 {v(X1)}, {s(sR+3)}, 1')
    A(f'  v_writelane_b32 {v(X1)}, {s(sR+5)}, 2')
    if safe: A(f'  s_mov_b32 {s(sF)}, 0')
    A('L_gather:')
    for r in range(3):
        for g_ in range(5):
            A(f'  buffer_load_dwordx4 {v(FR+20*r+4*g_,4)}, {v(ALQ)}, {s(SW_,4)}, {s(sR + 2*r + g_ // 4)} offen offset:{1024 * (g_ % 4)} sc1')
    A('  s_waitcnt vmcnt(0)')
    tags = [FR + 4 * k + 3 for k in range(15)]
    A(f'  v_xor_b32 {v(X0)}, {v(M)}, {v(tags[0])}')
    for k in range(1, 15):
        A(f'  v_xor_b32 {v(tags[k])}, {v(M)}, {v(tags[k])}')
    for k in range(1, 15, 2):
        A(f'  v_or3_b32 {v(X0)}, {v(X0)}, {v(tags[k])}, {v(tags[k+1])}')
    A(f'  v_cmp_ne_u32 {s(sT,2)}, 0, {v(X0)}')
    A(f'  s_cmp_eq_u64 {s(sT,2)}, 0')
    A('  s_cbranch_scc1 L_gathered')
    if not fullpoll: A('  s_mov_b64 exec, 7')
    A('L_poll:')
    if safe:
        A(f'  s_add_u32 {s(sF)}, {s(sF)}, 1')
        A(f'  s_cmp_gt_u32 {s(sF)}, 20000')
        A('  s_cbranch_scc1 L_end')
    if fullpoll: A('  s_branch L_gather')
    A(f'  buffer_load_dword {v(X0)}, {v(X1)}, {s(SW_,4)}, 0 offen offset:1020 sc1')
    A('  s_waitcnt vmcnt(0)')
    A(f'  v_cmp_ne_u32 {s(sT,2)}, {v(M)}, {v(X0)}')
    A(f'  s_cmp_lg_u64 {s(sT,2)}, 0')
    A('  s_cbranch_scc1 L_poll')
    A('  s_mov_b64 exec, -1')
    A('  s_branch L_gather')
    A('L_gathered:')
    stamp()
    B4 = [OWN, FR, FR + 20, FR + 40]
    A(f'  v_min_f32 {v(X0)}, {v(gi(B4[0],12))}, {v(gi(B4[1],12))}')
    A(f'  v_min3_f32 {v(X0)}, {v(X0)}, {v(gi(B4[2],12))}, {v(gi(B4[3],12))}')
    for b in B4: A(f'  v_sub_f32 {v(gi(b,12))}, {v(X0)}, {v(gi(b,12))}')
    for b in B4: A(f'  v_exp_f32 {v(gi(b,12))}, {v(gi(b,12))}')
    for x in [13] + list(range(12)):
        for b in B4: A(f'  v_mul_f32 {v(gi(b,x))}, {v(gi(b,12))}, {v(gi(b,x))}')
        A(f'  v_add_f32 {v(gi(B4[0],x))}, {v(gi(B4[0],x))}, {v(gi(B4[1],x))}')
        A(f'  v_add_f32 {v(gi(B4[2],x))}, {v(gi(B4[2],x))}, {v(gi(B4[3],x))}')
        A(f'  v_add_f32 {v(gi(B4[0],x))}, {v(gi(B4[0],x))}, {v(gi(B4[2],x))}')
        if x == 13: A(f'  v_rcp_f32 {v(X1)}, {v(gi(OWN,13))}')
        if x == 0 and fv: A(f'  v_mul_f32 {v(X1)}, {hex((127 + 49) << 23)}, {v(X1)}')
    for x in range(12): A(f'  v_mul_f32 {v(gi(OWN,x))}, {v(X1)}, {v(gi(OWN,x))}')
    A(f'  v_mul_u32_u24 {v(X0)}, 24, {v(VBP)}')
    A(f'  v_and_b32 {v(X1)}, 15, v0')
    A(f'  v_lshl_add_u32 {v(X0)}, {v(X1)}, 3, {v(X0)}')
    A(f'  s_lshr_b32 {s(sT)}, {s(sSEG)}, 2')
    A(f'  s_mul_i32 {s(sT)}, {s(sT)}, 1536')
    for i in range(3):
        A(f'  v_cvt_pk_bf16_f32 {v(ACC+2*i)}, {v(gi(OWN,4*i))}, {v(gi(OWN,4*i+1))}')
        A(f'  v_cvt_pk_bf16_f32 {v(ACC+2*i+1)}, {v(gi(OWN,4*i+2))}, {v(gi(OWN,4*i+3))}')
        A(f'  buffer_store_dwordx2 {v(ACC+2*i,2)}, {v(X0)}, {s(SQ,4)}, {s(sT)} offen offset:{128*i} {stf}')
    A('L_fin:')
    if diagpad:
        if diagref: A(f'  v_readfirstlane_b32 s6, {v(M)}')
        A('L_diag:')
        A(f'  s_memrealtime {s(sU,2)}')
        A('  s_waitcnt lgkmcnt(0)')
        A(f'  s_sub_u32 {s(sU)}, {s(sU)}, s6')
        A(f'  s_cmp_lt_u32 {s(sU)}, {diagpad * 100}')
        A('  s_cbranch_scc1 L_diag')
    if tl:
        A(f'  s_mul_i32 {s(sT)}, s2, {W+1}')
        A(f'  s_add_u32 {s(sT)}, {s(sT)}, s3')
        A(f'  s_lshl_b32 {s(sT)}, {s(sT)}, 8')
        A(f'  s_add_u32 {s(sT)}, {s(sT)}, 0x10000')
        A(f'  v_lshl_add_u32 {v(E)}, v0, 2, {s(sT)}')
        A(f'  global_store_dword {v(E)}, {v(TL)}, {s(sWS,2)}')
    if stamps:
        A('  s_waitcnt vmcnt(0)')
        A(f'  s_memrealtime {s(sU,2)}')
        A(f'  s_getreg_b32 {s(sU+2)}, hwreg(HW_REG_XCC_ID)')
        A(f'  s_mul_i32 {s(sT)}, s2, {W+1}')
        A(f'  s_add_u32 {s(sT)}, {s(sT)}, s3')
        A(f'  s_lshl_b32 {s(sT)}, {s(sT)}, 4')
        A('  s_waitcnt lgkmcnt(0)')
        A(f'  v_mov_b32 {v(RING)}, s6')
        A(f'  v_mov_b32 {v(RING+1)}, {s(sU)}')
        A(f'  v_mov_b32 {v(RING+2)}, {s(sU+2)}')
        A(f'  v_mov_b32 {v(RING+3)}, {s(sDEC)}')
        A(f'  v_mov_b32 {v(X0)}, {s(sT)}')
        A('  s_mov_b64 exec, 1')
        A(f'  global_store_dwordx4 {v(X0)}, {v(RING,4)}, {s(sWS,2)}')
    A('L_end:')
    A('  s_endpgm')


    for x in stubs: A(x)

    A('L_helper:')
    if tl:
        A(f'  s_mov_b32 {s(sTL)}, 0')
        A(f'  v_mov_b32 {v(TL)}, 0')
    hA, hZ, hO, h1, h2, h3, hD = 1, 2, 3, 4, 5, 6, 8
    assert hD + 96 <= TL
    A(f'  v_lshlrev_b32 {v(hA)}, 2, v0')
    A(f'  v_add_u32 {v(hA)}, {LDS_F}, {v(hA)}')
    A(f'  v_mov_b32 {v(hZ)}, 0')
    if ib0:
        for w in range(W): A(f'  v_writelane_b32 {v(hZ)}, {ib0}, {(F_BST - LDS_F) // 4 + w}')
    A('  s_mov_b64 exec, 0xffff')
    A(f'  ds_write_b32 {v(hA)}, {v(hZ)}')
    A('  s_mov_b64 exec, -1')
    make_srds()
    A('  s_barrier')
    sOF, sN0, sV0, sJ, sSF, sA, sB, sX, sFA, sFS, sME, sPA = 44, 45, 48, 50, 52, 54, 56, 58, 62, 63, 60, 61
    sQD, sOWN, sUNT, sT0, sNON = 64, 65, 66, 72, 74
    hP, hQ = hD + 96, hD + 97
    hC = (hQ + 2) // 2 * 2
    hW, hU, hT = hC + 9, hC + 10, hC + 12
    assert hT + 1 < TL and W == 2
    A(f'  s_memrealtime {s(sT0,2)}')
    def code_touch(tag):
        if not cpre: return
        for h in range(2):
            A(f'  s_lshr_b32 {s(sT)}, s2, 3')
            A(f'  s_cmp_lt_i32 {s(sT)}, (L_code_end - L_k) / 1024 - {32 * h}')
            A(f'  s_cbranch_scc0 L_h_ct{tag}')
            if h:
                A(f'  v_add_co_u32 {v(hC+2)}, vcc, 0x8000, {v(hC)}')
                A(f'  v_addc_co_u32 {v(hC+3)}, vcc, 0, {v(hC+1)}, vcc')
            A(f'  global_load_dwordx4 {v(hC+4,4)}, {v(hC+2*h,2)}, off')
        A(f'L_h_ct{tag}:')
    if tlb:
        A(f'  v_lshlrev_b32 {v(hD)}, 28, v0')
        A(f'  v_lshlrev_b32 {v(hD+1)}, 21, v0')
        A(f'  s_lshl_b32 {s(sT)}, {s(sPB)}, 16')
        A(f'  s_add_u32 {s(sT)}, {s(sT)}, 0x1ff000')
        A(f'  s_lshr_b32 {s(sT+1)}, s2, 5')
        A(f'  s_lshl_b32 {s(sT+1)}, {s(sT+1)}, 21')
        A(f'  s_add_u32 {s(sT+1)}, {s(sT+1)}, {WSX + 0x1f0000}')
        A(f'  v_writelane_b32 {v(hD+1)}, {s(sT+1)}, 4')
        A(f'  s_mov_b32 {s(SQ)}, {s(PT+14)}')
        A(f'  s_and_b32 {s(SQ+1)}, {s(PT+15)}, 0xffff')
        A('  s_mov_b64 exec, 7')
        A(f'  buffer_load_dword {v(hC+8)}, {v(hD)}, {s(SK,4)}, {s(sT)} offen nt')
        A(f'  buffer_load_dword {v(hC+8)}, {v(hD)}, {s(SV,4)}, {s(sT)} offen nt')
        A('  s_mov_b64 exec, 31')
        A(f'  s_lshl_b32 {s(sT)}, s2, 8')
        A(f'  buffer_load_dword {v(hC+8)}, {v(hD+1)}, {s(SW_,4)}, {s(sT)} offen sc1 nt')
        A('  s_mov_b64 exec, 1')
        A(f'  buffer_load_dword {v(hC+8)}, {v(hD)}, {s(SQ,4)}, {s(sT)} offen sc1 nt')
        A('  s_mov_b64 exec, -1')
    if cpre:
        A(f'  s_getpc_b64 {s(sA,2)}')
        A('L_h_pc:')
        A(f'  s_sub_u32 {s(sA)}, {s(sA)}, L_h_pc - L_k')
        A(f'  s_subb_u32 {s(sA+1)}, {s(sA+1)}, 0')
        A(f'  s_and_b32 {s(sA)}, {s(sA)}, -16')
        A(f'  s_lshr_b32 {s(sT)}, s2, 3')
        A(f'  s_lshl_b32 {s(sT)}, {s(sT)}, 10')
        A(f'  v_lshl_add_u32 {v(hC)}, v0, 4, {s(sT)}')
        A(f'  v_mov_b32 {v(hC+1)}, {s(sA+1)}')
        A(f'  v_add_co_u32 {v(hC)}, vcc, {s(sA)}, {v(hC)}')
        A(f'  v_addc_co_u32 {v(hC+1)}, vcc, 0, {v(hC+1)}, vcc')
        code_touch('a')
    A(f'  s_lshr_b32 {s(sT)}, s2, 4')
    A(f'  s_and_b32 {s(sT)}, {s(sT)}, 8')
    A(f'  s_and_b32 {s(sT+1)}, s2, 7')
    A(f'  s_add_u32 {s(sT)}, {s(sT)}, {s(sT+1)}')
    A(f'  s_lshl_b32 {s(sT)}, {s(sT)}, 4')
    A(f'  v_lshl_add_u32 {v(hP)}, v0, 3, {s(sT)}')
    A(f'  v_and_b32 {v(hQ)}, 31, v0')
    A(f'  v_lshlrev_b32 {v(hQ)}, 3, {v(hQ)}')
    A(f'  v_and_b32 {v(hW)}, 1, v0')
    A(f'  v_lshlrev_b32 {v(hW)}, 2, {v(hW)}')
    A(f'  v_add_u32 {v(hW)}, {F_PRG}, {v(hW)}')
    A(f'  v_mov_b32 {v(hU)}, 0')
    A(f'  v_mov_b32 {v(hU+1)}, 0')
    def wait_progress(tag, lim, slp):
        A(f'  v_mov_b32 {v(hA)}, {F_PRG}')
        A(f'L_h_prog{tag}:')
        if slp: A(f'  s_sleep {slp}')
        A(f'  ds_read_b128 {v(hD,4)}, {v(hA)}')
        A('  s_waitcnt lgkmcnt(0)')
        A(f'  v_min_u32 {v(hD)}, {v(hD)}, {v(hD+1)}')
        if W == 4: A(f'  v_min3_u32 {v(hD)}, {v(hD)}, {v(hD+2)}, {v(hD+3)}')
        A(f'  v_readfirstlane_b32 {s(sA)}, {v(hD)}')
        if slp:
            A(f'  s_cmp_lt_u32 {s(sA)}, {lim}')
            A(f'  s_cbranch_scc1 L_h_prog{tag}')
    A(f'  s_getreg_b32 {s(sJ)}, hwreg(HW_REG_XCC_ID)')
    A(f'  s_bfe_u32 {s(sJ)}, {s(sJ)}, 0x10002')
    A(f'  s_bfe_u32 {s(sSF)}, s2, 0x30003')
    A(f'  s_cmp_eq_u32 {s(sSF)}, 7')
    A('  s_cbranch_scc1 L_h_voted')
    A(f'  s_lshr_b32 {s(sT)}, s2, 6')
    A(f'  s_xor_b32 {s(sT)}, {s(sT)}, s2')
    A(f'  s_and_b32 {s(sT)}, {s(sT)}, {32 // NV - 1}')
    A('  s_cbranch_scc1 L_h_voted')
    A(f'  s_cmp_eq_u32 {s(sSF)}, 6')
    A('  s_cbranch_scc0 L_h_probe')
    A(f'  s_xor_b32 {s(sV0)}, {s(sJ)}, {s(sRO)}')
    A(f'  s_and_b32 {s(sSF)}, s2, 3')
    A(f'  s_lshl2_add_u32 {s(sSF)}, {s(sSF)}, 36')
    A('  s_branch L_h_vote')
    A('L_h_probe:')
    A(f'  s_cmp_ge_u32 {s(sSF)}, 3')
    A(f'  s_cselect_b32 {s(SI)}, {s(SV)}, {s(SK)}')
    A(f'  s_cselect_b32 {s(SI+1)}, {s(SV+1)}, {s(SK+1)}')
    A(f'  s_cselect_b32 {s(sT)}, 3, 0')
    A(f'  s_sub_u32 {s(sT)}, {s(sSF)}, {s(sT)}')
    A(f'  s_lshl_b32 {s(sT)}, {s(sT)}, 28')
    A(f'  s_lshl_b32 {s(sOF)}, {s(sPB)}, 16')
    A(f'  s_add_u32 {s(sOF)}, {s(sOF)}, {s(sT)}')
    A(f'  s_lshl_b32 {s(sT)}, {s(sRO)}, 16')
    A(f'  s_add_u32 {s(sOF)}, {s(sOF)}, {s(sT)}')
    A(f'  s_add_u32 {s(sOF)}, {s(sOF)}, 0x1c0000')
    A(f'  s_mul_i32 {s(sT)}, s2, 0x2a95')
    A(f'  s_and_b32 {s(sT)}, {s(sT)}, 0x7f80')
    A(f'  s_add_u32 {s(sOF)}, {s(sOF)}, {s(sT)}')
    A(f'  s_add_u32 {s(sT)}, {s(sOF)}, 0x8000')
    A(f'  s_buffer_load_dword {s(sX)}, {s(SI,4)}, {s(sT)}')
    A(f'  s_mov_b32 {s(sN0)}, -1')
    A(f'  s_mov_b32 {s(sN0+1)}, -1')
    A(f'  s_mul_i32 {s(sSF)}, {s(sSF)}, 6')
    A('  s_waitcnt lgkmcnt(0)')
    if pdel: wait_progress('p', 1, 2)
    for k in range(NS):
        for c in ((0, 1) if k % 2 == 0 else (1, 0)):
            o = (((k & 1) << 14) | ((k >> 1 & 1) << 12) | ((k * 0x380) & 0xfff)) ^ (c << 13)
            A(f'  s_xor_b32 {s(sT)}, {s(sOF)}, {o}')
            A(f'  s_memtime {s(sA,2)}')
            A('  s_waitcnt lgkmcnt(0)')
            A(f'  s_buffer_load_dword {s(sX)}, {s(SI,4)}, {s(sT)}')
            A('  s_waitcnt lgkmcnt(0)')
            A(f'  s_memtime {s(sB,2)}')
            A('  s_waitcnt lgkmcnt(0)')
            A(f'  s_sub_u32 {s(sB)}, {s(sB)}, {s(sA)}')
            A(f'  s_min_u32 {s(sN0+c)}, {s(sN0+c)}, {s(sB)}')
    A(f'  s_cmp_lt_u32 {s(sN0+1)}, {s(sN0)}')
    A(f'  s_cselect_b32 {s(sV0)}, 1, 0')
    A(f'  s_lshr_b32 {s(sT)}, {s(sOF)}, 13')
    A(f'  s_xor_b32 {s(sT)}, {s(sT)}, s2')
    A(f'  s_xor_b32 {s(sT)}, {s(sT)}, {s(sJ)}')
    A(f'  s_and_b32 {s(sT)}, {s(sT)}, 1')
    A(f'  s_xor_b32 {s(sV0)}, {s(sV0)}, {s(sT)}')
    A('L_h_vote:')
    A(f'  s_mov_b32 {s(sV0+1)}, 0')
    A(f'  s_lshl_b64 {s(sV0,2)}, {s(sV0,2)}, {s(sSF)}')
    A(f'  s_or_b32 {s(sV0+1)}, {s(sV0+1)}, 0x1000000')
    A(f'  s_atomic_add_x2 {s(sV0,2)}, {s(sDBG,2)}, 0')
    A('L_h_voted:')
    A('  s_waitcnt lgkmcnt(0)')
    A('  s_cmp_lg_u32 s2, 56')
    A('  s_cbranch_scc1 L_h_nonce')
    A(f'  s_lshl_b64 {s(sA,2)}, {s(sT0,2)}, 2')
    A(f'  s_atomic_add_x2 {s(sA,2)}, {s(sDBG,2)}, 8')
    A('  s_waitcnt lgkmcnt(0)')
    A('L_h_nonce:')
    stamp()
    sCP, sCA, sUP, sRET, sSUB, sTHU = 76, 77, 78, 84, 86, 79
    A(f'  s_mov_b32 {s(sCP)}, {cp0}')
    A(f'  s_mov_b32 {s(sCA)}, {WSC}')
    A(f'  s_getpc_b64 {s(sSUB,2)}')
    A('L_h_pc2:')
    A(f'  s_add_u32 {s(sSUB)}, {s(sSUB)}, L_h_cp - L_h_pc2')
    A(f'  s_addc_u32 {s(sSUB+1)}, {s(sSUB+1)}, 0')
    def checkpoints(upto):
        A(f'  s_mov_b32 {s(sUP)}, {min(upto, last) - dly}')
        A(f'  s_swappc_b64 {s(sRET,2)}, {s(sSUB,2)}')
    def checkpoint_sub():
        A('L_h_cp:')
        A(f'  s_cmp_gt_u32 {s(sCP)}, {s(sUP)}')
        A('  s_cbranch_scc0 L_h_cpgo')
        A(f'  s_setpc_b64 {s(sRET,2)}')
        A('L_h_cpgo:')
        A(f'  ds_read_b32 {v(hD)}, {v(hW)}')
        A(f'  s_memrealtime {s(sA,2)}')
        A('  s_waitcnt lgkmcnt(0)')
        A(f'  v_mov_b32 {v(hT)}, {s(sA)}')
        A(f'  v_mov_b32 {v(hT+1)}, {s(sA+1)}')
        A(f'  v_cmp_gt_u32 vcc, {s(sCP)}, {v(hD)}')
        A('  s_cmp_eq_u32 vcc_lo, 0')
        A('  s_cbranch_scc1 L_h_cpnext')
        A('L_h_cpm:')
        A('  s_sleep 2')
        A(f'  ds_read_b32 {v(hD)}, {v(hW)}')
        A(f'  s_memrealtime {s(sA,2)}')
        A('  s_waitcnt lgkmcnt(0)')
        A(f'  v_mov_b32 {v(hD+2)}, {s(sA)}')
        A(f'  v_mov_b32 {v(hD+3)}, {s(sA+1)}')
        A(f'  v_cndmask_b32 {v(hT)}, {v(hT)}, {v(hD+2)}, vcc')
        A(f'  v_cndmask_b32 {v(hT+1)}, {v(hT+1)}, {v(hD+3)}, vcc')
        A(f'  v_cmp_gt_u32 vcc, {s(sCP)}, {v(hD)}')
        A('  s_cmp_lg_u32 vcc_lo, 0')
        A('  s_cbranch_scc1 L_h_cpm')
        A(f'  s_and_b32 {s(sT)}, s2, 0x78')
        A('  s_cbranch_scc1 L_h_np')
        A('  s_mov_b64 exec, 3')
        A(f'  buffer_store_dwordx2 {v(hT,2)}, {v(hP)}, {s(SW_,4)}, {s(sCA)} offen sc1')
        A('  s_mov_b64 exec, -1')
        A('L_h_np:')
        A(f'  s_add_u32 {s(sJ)}, {s(sCP)}, {dly}')
        wait_progress('c1', s(sJ), 4)
        A(f'  buffer_load_dwordx2 {v(hD,2)}, {v(hQ)}, {s(SW_,4)}, {s(sCA)} offen {fl(cpf)}')
        A(f'  v_mov_b32 {v(hD+2)}, {s(sT0+1)}')
        A('  s_waitcnt vmcnt(0)')
        A(f'  ds_read_b32 {v(hD+4)}, {v(hW)}')
        A(f'  v_subrev_co_u32 {v(hD)}, vcc, {s(sT0)}, {v(hD)}')
        A(f'  v_subb_co_u32 {v(hD+1)}, vcc, {v(hD+1)}, {v(hD+2)}, vcc')
        A(f'  v_lshrrev_b32 {v(hD+2)}, 24, {v(hD)}')
        A(f'  v_or_b32 {v(hD+1)}, {v(hD+1)}, {v(hD+2)}')
        A(f'  v_cmp_eq_u32 vcc, 0, {v(hD+1)}')
        A(f'  v_cndmask_b32 {v(hD)}, 0, {v(hD)}, vcc')
        A(f'  s_bcnt1_i32_b32 {s(sB)}, vcc_lo')
        for r in (8, 4, 2, 1):
            A(f'  v_add_u32_dpp {v(hD)}, {v(hD)}, {v(hD)} row_ror:{r} row_mask:0xf bank_mask:0xf')
        A(f'  v_readlane_b32 {s(sA)}, {v(hD)}, 0')
        A(f'  v_readlane_b32 {s(sT)}, {v(hD)}, 16')
        A(f'  v_subrev_u32 {v(hD)}, {s(sT0)}, {v(hT)}')
        A(f'  v_mul_lo_u32 {v(hD)}, {v(hD)}, {s(sB)}')
        A(f'  s_add_u32 {s(sA)}, {s(sA)}, {s(sT)}')
        A(f'  s_max_u32 {s(sB)}, {s(sB)}, 1')
        A(f'  v_subrev_u32 {v(hD)}, {s(sA)}, {v(hD)}')
        A(f'  v_cvt_f32_u32 {v(hD+1)}, {s(sB)}')
        A(f'  v_cvt_f32_i32 {v(hD)}, {v(hD)}')
        A(f'  v_rcp_f32 {v(hD+1)}, {v(hD+1)}')
        A(f'  v_mul_f32 {v(hD)}, {v(hD)}, {v(hD+1)}')
        A(f'  v_cvt_i32_f32 {v(hD)}, {v(hD)}')
        A('  s_waitcnt lgkmcnt(0)')
        A(f'  v_add_u32 {v(hD+4)}, {W}, {v(hD+4)}')
        acts = [(hU, gain, dead, False, F_BST)] + ([(hU + 1, gth, deadt, True, F_THR)] if tev else [])
        for unt, g_, dd, neg, addr in acts:
            A(f'  v_min_u32 {v(hD+1)}, {v(unt)}, {v(hD+4)}')
            A(f'  v_subrev_u32 {v(hD+1)}, {s(sCP)}, {v(hD+1)}')
            A(f'  v_max_i32 {v(hD+1)}, 0, {v(hD+1)}')
            A(f'  v_lshrrev_b32 {v(hD+1)}, 1, {v(hD+1)}')
            A(f'  v_mul_u32_u24 {v(hD+1)}, {g_}, {v(hD+1)}')
            A(f'  v_{"add" if neg else "sub"}_u32 {v(hD)}, {v(hD)}, {v(hD+1)}')
        for unt, g_, dd, neg, addr in acts:
            A(f'  v_{"sub" if neg else "add"}_u32 {v(hD+1)}, {g_ // 2 - dd}, {v(hD)}')
            A(f'  v_max_i32 {v(hD+1)}, 0, {v(hD+1)}')
            A(f'  v_min_i32 {v(hD+1)}, 2000, {v(hD+1)}')
            A(f'  v_mul_u32_u24 {v(hD+1)}, {65536 // g_}, {v(hD+1)}')
            A(f'  v_lshrrev_b32 {v(hD+1)}, 16, {v(hD+1)}')
            A(f'  v_cmp_ne_u32 vcc, 0, {v(hD+1)}')
            A(f'  v_lshl_add_u32 {v(hD+1)}, {v(hD+1)}, 1, {v(hD+4)}')
            A(f'  v_cndmask_b32 {v(unt)}, 0, {v(hD+1)}, vcc')
            A(f'  ds_write_b32 {v(hW)}, {v(unt)} offset:{addr - F_PRG}')
        A('L_h_cpnext:')
        A(f'  s_add_u32 {s(sCP)}, {s(sCP)}, {step}')
        A(f'  s_add_u32 {s(sCA)}, {s(sCA)}, 256')
        A('  s_branch L_h_cp')
    wait_progress('v', PW, 8)
    if vsl: A(f'  s_sleep {vsl}')
    A(f'  s_load_dwordx2 {s(sV0,2)}, {s(sDBG,2)}, 0')
    if safe: A('  s_mov_b32 s59, 0')
    A('L_h_votes:')
    A('  s_waitcnt lgkmcnt(0)')
    A(f'  s_lshr_b32 {s(sT)}, {s(sV0+1)}, 24')
    A(f'  s_cmp_eq_u32 {s(sT)}, {7 * NV}')
    A('  s_cbranch_scc1 L_h_votes_done')
    if safe:
        A('  s_add_u32 s59, s59, 1')
        A('  s_cmp_gt_u32 s59, 2000')
        A('  s_cbranch_scc1 L_h_votes_done')
    A('  s_sleep 64')
    A(f'  s_mov_b64 {s(sV0,2)}, 0')
    A(f'  s_atomic_or_x2 {s(sV0,2)}, {s(sDBG,2)}, 0 glc')
    A('  s_branch L_h_votes')
    A('L_h_votes_done:')
    A(f'  s_mov_b32 {s(sDEC)}, 0x80')
    for j in range(6):
        A(f'  s_bfe_u64 {s(sA,2)}, {s(sV0,2)}, {hex(0x60000 | (6 * j))}')
        A(f'  s_cmp_gt_u32 {s(sA)}, {NV // 2}')
        A(f'  s_cselect_b32 {s(sB)}, {1 << j}, 0')
        A(f'  s_or_b32 {s(sDEC)}, {s(sDEC)}, {s(sB)}')
        A(f'  s_sub_u32 {s(sA)}, {s(sA)}, {THR + 1}')
        A(f'  s_cmp_lt_u32 {s(sA)}, {NV - 2 * THR - 1}')
        A(f'  s_cselect_b32 {s(sB)}, 64, 0')
        A(f'  s_or_b32 {s(sDEC)}, {s(sDEC)}, {s(sB)}')
    A(f'  s_and_b32 {s(sT)}, s2, 3')
    A(f'  s_lshl2_add_u32 {s(sT)}, {s(sT)}, 4')
    A(f'  s_lshr_b32 {s(sA)}, {s(sV0+1)}, {s(sT)}')
    A(f'  s_and_b32 {s(sB)}, {s(sA)}, {NV // 4 - 1}')
    A(f'  s_cselect_b32 {s(sB)}, 64, 0')
    A(f'  s_or_b32 {s(sDEC)}, {s(sDEC)}, {s(sB)}')
    if force >= 0:
        A(f'  s_mov_b32 {s(sDEC)}, {0x80 | force}')
    A(f'  s_lshr_b32 {s(sA)}, {s(sA)}, {(NV // 4).bit_length() - 1}')
    A(f'  s_xor_b32 {s(sA)}, {s(sA)}, s2')
    A(f'  s_xor_b32 {s(sA)}, {s(sA)}, {s(sRO)}')
    A(f'  s_and_b32 {s(sA)}, {s(sA)}, 1')
    A(f'  s_mul_i32 {s(sA)}, {s(sA)}, 63')
    A(f'  s_xor_b32 {s(sDEC)}, {s(sDEC)}, {s(sA)}')
    A(f'  v_mov_b32 {v(hA)}, {F_DEC}')
    A(f'  v_mov_b32 {v(hD)}, {s(sDEC)}')
    A(f'  ds_write_b32 {v(hA)}, {v(hD)}')
    stamp()
    A(f'  v_lshlrev_b32 {v(hO)}, 4, v0')
    if pf and not pfw:
        for srd, nb in ((SKS, 24576), (SKZ, 24576), (SVS, 8192), (SVZ, 8192)):
            A(f'  s_mul_i32 {s(sA)}, s2, {nb}')
            for k in range(nb // 1024):
                if k % 4 == 0 and k: A(f'  s_add_u32 {s(sA)}, {s(sA)}, 4096')
                A(f'  s_waitcnt vmcnt({pf - 1})')
                A(f'  buffer_load_dwordx4 {v(hD,4)}, {v(hO)}, {s(srd,4)}, {s(sA)} offen offset:{(k % 4) * 1024}')
        A('  s_waitcnt vmcnt(0)')
    stamp()
    A(f'  s_load_dwordx2 {s(sNON,2)}, {s(sDBG,2)}, 8')
    A('L_h_getnonce:')
    A('  s_waitcnt lgkmcnt(0)')
    A(f'  s_cmp_lg_u64 {s(sNON,2)}, 0')
    A('  s_cbranch_scc1 L_h_gotnonce')
    A('  s_sleep 32')
    A(f'  s_atomic_or_x2 {s(sNON,2)}, {s(sDBG,2)}, 8 glc')
    A('  s_branch L_h_getnonce')
    A('L_h_gotnonce:')
    A(f'  s_lshr_b64 {s(sA,2)}, {s(sNON,2)}, 2')
    A(f'  v_mov_b32 {v(hA)}, {F_TAG}')
    A(f'  v_mov_b32 {v(hD)}, {s(sA)}')
    A(f'  ds_write_b32 {v(hA)}, {v(hD)}')
    checkpoints(64)
    A(f'  s_bitcmp1_b32 {s(sDEC)}, 6')
    A('  s_cbranch_scc1 L_h_skipa0')
    A(f'  s_lshl_b32 {s(sFA)}, s2, 8')
    A(f'  s_add_u32 {s(sFA)}, {s(sFA)}, {WSF}')
    A(f'  s_xor_b32 {s(sFS)}, {s(sFA)}, 1024')
    A(f'  s_lshr_b32 {s(sX)}, {s(sDEC)}, 3')
    A(f'  s_xor_b32 {s(sX)}, {s(sX)}, {s(sDEC)}')
    A(f'  s_lshr_b32 {s(sT)}, {s(sPB)}, 4')
    A(f'  s_lshr_b32 {s(sOF)}, {s(sT)}, 5')
    A(f'  s_lshl_b32 {s(sOF)}, {s(sOF)}, 21')
    A(f'  s_add_u32 {s(sOF)}, {s(sOF)}, {WSX}')
    A(f'  s_and_b32 {s(sQD)}, {s(sT)}, 31')
    A(f'  s_add_u32 {s(sT)}, {s(sQD)}, {s(sRO)}')
    A(f'  s_lshl_b32 {s(sT)}, {s(sT)}, 10')
    A(f'  s_add_u32 {s(sME)}, {s(sOF)}, {s(sT)}')
    A(f'  s_xor_b32 {s(sPA)}, {s(sME)}, 1024')
    def pxor(k):
        h = k >> 2
        c = (h & 3) ^ (((h >> 2) & 1) * 17) ^ (((h >> 3) & 1) * 4)
        return (k << 15) | (c << 10)
    NW = NWU * 384 // 1024
    def reg(k): return hD + 4 * (k % 24)
    def export(lo, hi):
        for k in range(lo, hi): A(f'  ds_read_b128 {v(reg(k),4)}, {v(hO)} offset:{1024*k}')
        A('  s_waitcnt lgkmcnt(0)')
        for k in range(lo, hi):
            A(f'  s_xor_b32 {s(sT)}, {s(sME)}, {pxor(k)}')
            if xdep: A(f'  s_waitcnt vmcnt({xdep - 1})')
            if not noexp: A(f'  buffer_store_dwordx4 {v(reg(k),4)}, {v(hO)}, {s(SW_,4)}, {s(sT)} offen {fl(xf)}')
    def imp(lo, hi):
        for k in range(lo, hi):
            A(f'  s_xor_b32 {s(sT)}, {s(sPA)}, {pxor(k)}')
            if idep: A(f'  s_waitcnt vmcnt({idep - 1})')
            if not noimp: A(f'  buffer_load_dwordx4 {v(reg(k),4)}, {v(hO)}, {s(SW_,4)}, {s(sT)} offen {fl(impf)}')
        A('  s_waitcnt vmcnt(0)')
        for k in range(lo, hi): A(f'  ds_write_b128 {v(hO)}, {v(reg(k),4)} offset:{1024*k}')
    def cond(bit, tag, fn):
        A(f'  s_bitcmp0_b32 {s(sX)}, {bit}')
        A(f'  s_cbranch_scc1 L_h_{tag}')
        fn()
        A(f'L_h_{tag}:')
    def signal(level):
        A(f'  s_add_u32 {s(sA)}, {s(sNON)}, {level}')
        A(f'  v_mov_b32 {v(h2)}, 0')
        A('  s_waitcnt vmcnt(0)')
        if wbl:
            A('  buffer_wbl2 sc1')
            A('  s_waitcnt vmcnt(0)')
        A(f'  v_mov_b32 {v(hD)}, {s(sA)}')
        A(f'  v_mov_b32 {v(hD+1)}, {s(sNON+1)}')
        A('  s_mov_b64 exec, 1')
        A(f'  buffer_store_dwordx2 {v(hD,2)}, {v(h2)}, {s(SW_,4)}, {s(sFA)} offen sc1')
        A('  s_mov_b64 exec, -1')
    def await_partner(tag, level):
        A(f'  s_add_u32 {s(sA)}, {s(sNON)}, {level}')
        A(f'  v_mov_b32 {v(h2)}, 0')
        A('  s_mov_b64 exec, 1')
        if safe: A('  s_mov_b32 s59, 0')
        A(f'L_h_flag{tag}:')
        A(f'  buffer_load_dwordx2 {v(hD+2,2)}, {v(h2)}, {s(SW_,4)}, {s(sFS)} offen sc1')
        A('  s_waitcnt vmcnt(0)')
        A(f'  v_readfirstlane_b32 {s(sB)}, {v(hD+2)}')
        A(f'  v_readfirstlane_b32 {s(sB+1)}, {v(hD+3)}')
        A(f'  s_sub_u32 {s(sB)}, {s(sB)}, {s(sA)}')
        A(f'  s_xor_b32 {s(sB+1)}, {s(sB+1)}, {s(sNON+1)}')
        A(f'  s_lshr_b32 {s(sB)}, {s(sB)}, 1')
        A(f'  s_or_b32 {s(sB)}, {s(sB)}, {s(sB+1)}')
        A(f'  s_cbranch_scc0 L_h_flag{tag}_done')
        if safe:
            A('  s_add_u32 s59, s59, 1')
            A('  s_cmp_gt_u32 s59, 2000')
            A(f'  s_cbranch_scc1 L_h_flag{tag}_done')
        A(f'  s_sleep {fsl}')
        A(f'  s_branch L_h_flag{tag}')
        A(f'L_h_flag{tag}_done:')
        A('  s_mov_b64 exec, -1')
    wait_progress('a', 64, 8)
    stamp()
    export(0, NW)
    cond(0, 'e0', lambda: export(NW, 12))
    cond(1, 'e1', lambda: export(12, 24))
    signal(1)
    A('L_h_skipa0:')
    checkpoints(ia)
    A(f'  s_bitcmp1_b32 {s(sDEC)}, 6')
    A('  s_cbranch_scc1 L_h_skipa')
    if ia > 64: wait_progress('ia', ia, 8)
    await_partner('a', 1)
    stamp()
    A(f'  s_bfe_u32 {s(sA)}, {s(sDEC)}, 0x10003')
    A(f'  s_mul_i32 {s(sA)}, {s(sA)}, 384')
    A(f'  v_lshrrev_b32 {v(h1)}, 3, v0')
    for k in range(NW):
        A(f'  v_add_u32 {v(h2)}, {8 * k}, {v(h1)}')
        A(f'  v_mul_u32_u24 {v(h2)}, 21846, {v(h2)}')
        A(f'  v_bfe_u32 {v(h2)}, {v(h2)}, 16, 1')
        A(f'  v_mul_u32_u24 {v(h3)}, 384, {v(h2)}')
        A(f'  v_sub_u32 {v(h3)}, {v(hO)}, {v(h3)}')
        A(f'  v_add_u32 {v(h3)}, {s(sA)}, {v(h3)}')
        A(f'  v_add_u32 {v(h3)}, {1024 * k}, {v(h3)}')
        A(f'  v_add_u32 {v(h2)}, {s(sQD)}, {v(h2)}')
        A(f'  v_lshrrev_b32 {v(hZ)}, 12, {v(h3)}')
        A(f'  v_xor_b32 {v(h2)}, {v(h2)}, {v(hZ)}')
        A(f'  v_lshrrev_b32 {v(hZ)}, 10, {v(h3)}')
        A(f'  v_lshl_add_u32 {v(h2)}, {v(hZ)}, 5, {v(h2)}')
        A(f'  v_and_b32 {v(h3)}, 1023, {v(h3)}')
        A(f'  v_lshl_add_u32 {v(h2)}, {v(h2)}, 10, {v(h3)}')
        if not noimp: A(f'  buffer_load_dwordx4 {v(reg(k),4)}, {v(h2)}, {s(SW_,4)}, {s(sOF)} offen sc1')
    A('  s_waitcnt vmcnt(0)')
    for k in range(NW): A(f'  ds_write_b128 {v(hO)}, {v(reg(k),4)} offset:{1024*k}')
    cond(0, 'i0', lambda: imp(NW, 12))
    cond(1, 'i1', lambda: imp(12, 24))
    stamp()
    A('L_h_skipa:')
    A(f'  s_lshr_b32 {s(sT)}, {s(sDEC)}, 4')
    A(f'  s_andn2_b32 {s(sX)}, {s(sX)}, {s(sT)}')
    A(f'  s_bitcmp0_b32 {s(sX)}, 2')
    A(f'  s_cselect_b32 {s(sT)}, 255, 64')
    A(f'  v_mov_b32 {v(hA)}, {F_IMP}')
    A(f'  v_mov_b32 {v(h2)}, {s(sT)}')
    A(f'  ds_write_b32 {v(hA)}, {v(h2)}')
    checkpoints(NF)
    code_touch('b')
    A(f'  s_bitcmp0_b32 {s(sX)}, 2')
    A('  s_cbranch_scc1 L_h_skipb0')
    wait_progress('b', NF, 8)
    stamp()
    export(24, 36)
    signal(2)
    A('L_h_skipb0:')
    checkpoints(ib)
    A(f'  s_bitcmp0_b32 {s(sX)}, 2')
    A('  s_cbranch_scc1 L_h_all')
    if ib > NF: wait_progress('ib', ib, 8)
    await_partner('b', 2)
    stamp()
    imp(24, 36)
    stamp()
    A(f'  v_mov_b32 {v(hA)}, {F_IMP}')
    A(f'  v_mov_b32 {v(h2)}, 255')
    A(f'  ds_write_b32 {v(hA)}, {v(h2)}')
    A('L_h_all:')
    checkpoints(176)
    code_touch('c')
    checkpoints(999)
    if tail:
        wait_progress('t', 2 * NF - tail - W, 4)
        A(f'  v_mov_b32 {v(hD)}, 255')
        A(f'  ds_write_b32 {v(hW)}, {v(hD)} offset:{F_BST - F_PRG}')
    A('  s_waitcnt lgkmcnt(0)')
    if stamps or tl:
        A('  s_branch L_fin')
    else:
        A('  s_endpgm')
    checkpoint_sub()
    A('L_code_end:')
    body = pad(L)

    nva = (nv + 7) // 8 * 8
    out = HDR + f'; @launch grid=(256,1,1) block=({64*(W+1)},1,1) lds={lds}\n'
    out += '.amdgcn_target "amdgcn-amd-amdhsa--gfx950"\n.text\n'
    out += f'.globl {NAME}\n.p2align 8\n.type {NAME},@function\n'
    out += '\n'.join(body) + '\n'
    out += '.section .rodata,"a"\n'
    for nm, nvv, nss in ((NAME, nva, 102),):
        out += f'''.p2align 6
.amdhsa_kernel {nm}
  .amdhsa_next_free_vgpr {nvv}
  .amdhsa_next_free_sgpr {nss}
  .amdhsa_accum_offset {nvv}
  .amdhsa_group_segment_fixed_size 0
  .amdhsa_kernarg_size 80
  .amdhsa_user_sgpr_count 2
  .amdhsa_user_sgpr_kernarg_segment_ptr 1
  .amdhsa_system_sgpr_workgroup_id_x 1
  .amdhsa_float_denorm_mode_32 3
.end_amdhsa_kernel
'''
    return out

if __name__ == '__main__':
    kw = {}
    for x in sys.argv[2:]:
        k, val = x.split('=')
        kw[k] = int(val) if val.lstrip('-').isdigit() else val
    open(sys.argv[1], 'w').write(gen(**kw))
```

```python
import sys, os
sys.path.insert(0, os.path.dirname(os.path.abspath(__file__)))
from asmlib import pad
NAME = 'standalone__kv_cache_quant_int4_int2_kv_with_per_channel_or_per_token_scales__sampling_kernel'
TOTAL = 256 * 4096 * 768
REC = 5120
WS_REC = 1 << 20
WS_CP = 7 << 20
WS_FLAG = (7 << 20) + (1 << 16)
WS_IMG = 8 << 20
WS_END = WS_IMG + (16 << 20)
IMG = 96 * 384
OOB = 0x7ffffff0
HDR = open(os.path.join(os.path.dirname(os.path.abspath(__file__)), 'header.txt')).read()
assert all(((32 * c + 1) * 21846) >> 16 == (32 * c + 1) // 3 for c in range(25))
assert all((c * 43) >> 8 == c // 6 for c in range(24))
assert all((x * 21846) >> 16 == x // 3 for x in range(100))

NOTES = """\
"""

class Alloc:
    def __init__(self, start): self.n = start
    def __call__(self, k, align=1):
        self.n = (self.n + align - 1) // align * align
        r = self.n; self.n += k
        return r

def v(r, k=1): return f'v{r}' if k == 1 else f'v[{r}:{r+k-1}]'
def s(r, k=1): return f's{r}' if k == 1 else f's[{r}:{r+k-1}]'

def merge(main, side):
    out = []; side = list(side)
    for m in main:
        out.append(m)
        if side: out.append(side.pop(0))
    return out + side

def gen(DN=10, D=15, bev=3, NWU=8, NS=3, NV=8, pfw=16, PSK=17, gain=28, dly=4, dead=0, cp0=12, step=8, last=186,
        force=-1, stamps=0, tl=0, diagpad=0, diagat=-1, kord=1):
    W, U, NST, NF, PSV = 2, 2, 33, 96, 3
    R = 11 * U
    SW = NST - D
    assert DN <= D < R and NWU % 8 == 0 and PSV < SW and 3 <= PSK < SW
    L = []
    A = L.append
    C = lambda t: L.append('; ' + t)
    va = Alloc(1)
    DUP = va(1); DOWN = va(1); DCON = va(1)
    RING = va(4 * R, 4); VO = va(4)
    ICV = va(1); TU = va(1); VVS = va(1); VL1 = va(1); VL2 = va(1); VBP = va(1); VFL = va(1); VST = va(1); VPR = va(1)
    VOOB = va(1); VBS = va(1)
    T = va(4, 2); ZN = va(1); SN = va(1); ZC = va(1); SC = va(1); ZS = va(2, 2)
    LG = va(6, 4); ACC = va(12, 4); M = va(1); NB = va(2, 2); LS = NB + 1
    X0 = va(2, 2); X1 = X0 + 1; AL = va(1); ALQ = va(1); E = va(11); PP = va(6); TL = va(1)
    base = va.n
    QB = va(6, 4); QN = va(6, 2); KSR = va(6, 2); KZR = va(6, 2); KS = va(12, 2); KZ = va(12, 2); KA = va(6, 4); SD = va(4, 4); S = va(2, 2)
    IUP = va(1); IOWN = va(1); ICON = va(1); VKS0 = va(1); VKS = va(1); VQ = va(1); VNI = va(1)
    kend = va.n
    va.n = base
    AJ = va(16, 4); AK = va(8, 2); TV = va(12, 2); BV = va(48, 4)
    nv = max(va.n, kend)
    sRO, sPB = 4, 5
    SK, SV, SI, SKS, SKZ, SVS, SVZ, SQ, SWS = 8, 12, 16, 20, 24, 28, 32, 36, 40
    PT = 44
    sREC, sOUT, sL0, sL10, sM0, sM10, sLOW = 44, 46, 48, 50, 52, 54, 56
    sCUR, sNXT, sSO, s768, sF, sMSK, sL2E, sTL, sSCL, sT = 60, 61, 62, 63, 64, 65, 66, 67, 68, 70
    sMJ = 72
    sDBG, sWS = 80, 82
    sQ3, sC, sQC, sCC, sHC, sHN, sDIV, sSH = 84, 85, 86, 87, 88, 89, 90, 91
    sBIG, sSM = 92, 94
    sDEC, sG, sGATE, sSEG = 96, 97, 99, 100
    SEG = W * 3072 + W * 32
    LDS_ACC = IMG
    LDS_F = LDS_ACC + 4 * SEG
    F_DEC, F_IMP, F_TAG, F_PRG, F_BST = LDS_F, LDS_F + 4, LDS_F + 8, LDS_F + 16, LDS_F + 24
    lds = 62464
    assert LDS_F + 32 <= lds

    A(f'{NAME}:')
    A('  s_cmp_ge_u32 s2, 256')
    A('  s_cbranch_scc1 L_end')
    A(f'  s_load_dwordx16 {s(PT,16)}, s[0:1], 0')
    A(f'  s_load_dwordx4 {s(sDBG,4)}, s[0:1], 64')
    if stamps or diagpad: A('  s_memrealtime s[6:7]')
    C('s3 = wave, s4 = role in the pair, s5 = 32 * pair (first block of the first page)')
    A('  v_lshrrev_b32 v1, 6, v0')
    A('  v_and_b32 v0, 63, v0')
    A('  v_readfirstlane_b32 s3, v1')
    A(f'  s_bfe_u32 {s(sRO)}, s2, 0x10002')
    A(f'  s_lshr_b32 {s(sPB)}, s2, 3')
    A(f'  s_lshl_b32 {s(sPB)}, {s(sPB)}, 2')
    A(f'  s_and_b32 {s(sT)}, s2, 3')
    A(f'  s_add_u32 {s(sPB)}, {s(sPB)}, {s(sT)}')
    A(f'  s_lshl_b32 {s(sPB)}, {s(sPB)}, 5')
    SRDS = ((SKS, PT + 6, 256 * 24576), (SKZ, PT + 8, 256 * 24576), (SVS, PT + 10, 256 * 8192), (SVZ, PT + 12, 256 * 8192),
            (SK, PT + 2, TOTAL), (SQ, PT, 256 * 1536), (SI, PT + 2, TOTAL), (SV, PT + 4, TOTAL), (SWS, sWS, WS_END))
    for srd, p, nb in SRDS:
        A(f'  s_mov_b32 {s(srd+2)}, {nb}')
        A(f'  s_mov_b32 {s(srd+3)}, 0x20000')
    def make_srds(lo, hi):
        for srd, p, nb in SRDS[lo:hi]:
            A(f'  s_mov_b32 {s(srd)}, {s(p)}')
            A(f'  s_and_b32 {s(srd+1)}, {s(p+1)}, 0xffff')
    A(f'  s_cmp_eq_u32 s3, {W}')
    A('  s_cbranch_scc1 L_helper')

    C('================= streaming waves')
    cls, a, g, n = T, T + 1, T + 2, T + 3
    A(f'  v_and_b32 {v(cls)}, 3, v0')
    A(f'  v_bfe_u32 {v(a)}, v0, 2, 2')
    A(f'  v_lshrrev_b32 {v(g)}, 4, v0')
    A(f'  v_and_b32 {v(n)}, 15, v0')
    def stream_consts(x, up, own, con, lanepart):
        A(f'  v_and_b32 {v(own)}, 2, {v(x)}')
        A(f'  v_lshlrev_b32 {v(up)}, 5, {v(own)}')
        A(f'  v_add_u32 {v(up)}, 129, {v(up)}')
        A(f'  v_and_b32 {v(X1)}, 1, {v(x)}')
        A(f'  v_lshl_add_u32 {v(own)}, {v(X1)}, 2, {v(own)}')
        A(f'  v_mul_u32_u24 {v(X1)}, {43 * 768}, {v(X1)}')
        A(f'  v_add_u32 {v(con)}, {v(lanepart)}, {v(X1)}')
        A(f'  v_subrev_u32 {v(con)}, {43 * 768}, {v(con)}')
    A(f'  v_lshlrev_b32 {v(X0)}, 4, {v(cls)}')
    A(f'  v_lshl_add_u32 {v(X0)}, {v(g)}, 6, {v(X0)}')
    A(f'  v_lshrrev_b32 {v(VKS0)}, 1, {v(X0)}')
    stream_consts(a, IUP, IOWN, ICON, X0)
    A(f'  v_mul_u32_u24 {v(X1)}, 384, {v(a)}')
    A(f'  v_add_u32 {v(VQ)}, {v(X1)}, {v(VKS0)}')
    A(f'  v_mov_b32 {v(VOOB)}, {OOB}')
    A(f'  s_mov_b32 {s(sDIV)}, 0xaaaaaaab')
    A(f'  s_mov_b32 {s(sSH)}, 0x492492')
    A(f'  s_movk_i32 {s(s768)}, 768')
    def slot(k): return RING + 4 * (k % R)
    def main_load(k, srd, so):
        ss, i = divmod(k % NST, 3)
        r, k0 = (0, 0) if ss == 0 else (1, 1) if ss <= 5 else (2, 6) if ss <= 9 else (3, 10)
        return f'  buffer_load_dwordx4 {v(slot(k),4)}, {v(VO+r)}, {s(srd,4)}, {s(so)} offen offset:{768*(ss-k0) + 256*i} nt'
    def kscale_loads():
        A(f'  s_mul_i32 {s(sSO)}, {s(sQ3)}, 1536')
        for i in range(3):
            A(f'  buffer_load_dwordx2 {v(KSR+2*i,2)}, {v(VKS)}, {s(SKS,4)}, {s(sSO)} offen offset:{128*i}')
            A(f'  buffer_load_dwordx2 {v(KZR+2*i,2)}, {v(VKS)}, {s(SKZ,4)}, {s(sSO)} offen offset:{128*i}')
    def vscale_loads():
        A(f'  s_lshl_b32 {s(sSO)}, {s(sQ3)}, 9')
        A(f'  v_lshl_add_u32 {v(VVS)}, {v(TU)}, 1, {v(ICV)}')
        A(f'  buffer_load_short_d16_hi {v(ZN)}, {v(VVS)}, {s(SVZ,4)}, {s(sSO)} offen')
        A(f'  buffer_load_short_d16_hi {v(SN)}, {v(VVS)}, {s(SVS,4)}, {s(sSO)} offen')
    def q_loads():
        A(f'  s_mul_i32 {s(sT)}, {s(sHN)}, 1536')
        for i in range(3): A(f'  buffer_load_dwordx2 {v(QN+2*i,2)}, {v(VQ)}, {s(SQ,4)}, {s(sT)} offen offset:{128*i}')
    def short_masks(own, m0, m10, low):
        A(f'  v_add_u32 {v(X0)}, {s(sC)}, {v(own)}')
        A(f'  v_lshrrev_b32 {v(X1)}, {v(X0)}, {s(sSH)}')
        A(f'  v_and_b32 {v(X1)}, 1, {v(X1)}')
        A(f'  v_cmp_eq_u32 {s(m10,2)}, 1, {v(X1)}')
        A(f'  s_and_b64 {s(m0,2)}, {s(m10,2)}, {s(low,2)}')
        A(f'  s_andn2_b64 {s(m10,2)}, {s(m10,2)}, {s(low,2)}')
    def map_unit(f, isv):
        if kord and not isv:
            A(f'  s_lshr_b32 {s(sT+1)}, {s(f)}, 4')
            A(f'  s_andn2_b32 {s(sT+1)}, {s(sT+1)}, 1')
            A(f'  s_lshr_b32 {s(sT+1)}, 0x12, {s(sT+1)}')
            A(f'  s_and_b32 {s(sT+1)}, {s(sT+1)}, 3')
        else:
            A(f'  s_lshr_b32 {s(sT+1)}, {s(f)}, 5')
        A(f'  s_lshr_b32 {s(sC)}, {s(sDEC)}, {s(sT+1)}')
        if isv:
            A(f'  s_bfe_u32 {s(sC)}, {s(sC)}, 0x10003')
            A(f'  s_and_b32 {s(sT)}, {s(f)}, 31')
        else:
            A(f'  s_andn2_b32 {s(sT)}, {s(f)}, 1')
            A(f'  s_or_b32 {s(sT)}, {s(sT)}, {s(sRO)}')
            A(f'  s_cmp_lt_u32 {s(f)}, {NWU}')
            A(f'  s_cselect_b32 {s(sT)}, {s(sT)}, {s(f)}')
            A(f'  s_cselect_b32 {s(sC)}, {s(f)}, {s(sC)}')
            A(f'  s_and_b32 {s(sC)}, {s(sC)}, 1')
            A(f'  s_and_b32 {s(sT)}, {s(sT)}, 31')
        A(f'  s_lshl_b32 {s(sT+1)}, {s(sT+1)}, 12')
        A(f'  s_add_u32 {s(sT)}, {s(sT)}, {s(sPB)}')
        A(f'  s_add_u32 {s(sT)}, {s(sT)}, {s(sT+1)}')
        A(f'  s_mul_hi_u32 {s(sQ3)}, {s(sT)}, {s(sDIV)}')
        A(f'  s_lshr_b32 {s(sQ3)}, {s(sQ3)}, 1')
        A(f'  s_mul_i32 {s(sT+1)}, {s(sQ3)}, 3')
        A(f'  s_sub_u32 {s(sT)}, {s(sT)}, {s(sT+1)}')
        A(f'  s_lshl3_add_u32 {s(sC)}, {s(sT)}, {s(sC)}')
        A(f'  s_mul_i32 {s(sNXT)}, {s(sQ3)}, 196608')
        A(f'  s_lshr_b32 {s(sHN)}, {s(sQ3)}, 4')
        A(f'  s_lshl_b32 {s(sT)}, {s(sC)}, 5')
        A(f'  v_add_u32 {v(TU)}, {s(sT)}, {v(DUP if isv else IUP)}')
        A(f'  v_mul_u32_u24 {v(TU)}, 21846, {v(TU)}')
        A(f'  v_lshrrev_b32 {v(TU)}, 16, {v(TU)}')
        short_masks(DOWN if isv else IOWN, sM0, sM10, sLOW + 2 * isv)
        if not isv:
            A(f'  v_mul_u32_u24 {v(X0)}, 43, {v(X0)}')
            A(f'  v_lshrrev_b32 {v(X0)}, 8, {v(X0)}')
            A(f'  v_mul_u32_u24 {v(X0)}, 384, {v(X0)}')
            A(f'  v_add_u32 {v(VKS)}, {v(X0)}, {v(VKS0)}')
    def offsets(con):
        A(f'  v_mad_u32_u24 {v(VO)}, {v(TU)}, {s(s768)}, {v(con)}')
        A(f'  v_add_u32 {v(VO+1)}, 768, {v(VO)}')
        A(f'  v_add_u32 {v(VO+2)}, {6 * 768}, {v(VO)}')
        A(f'  v_add_u32 {v(VO+3)}, {10 * 768}, {v(VO)}')
        A(f'  v_cndmask_b32 {v(VO)}, {v(VO)}, {v(VOOB)}, {s(sM0,2)}')
        A(f'  v_cndmask_b32 {v(VO+3)}, {v(VO+3)}, {v(VOOB)}, {s(sM10,2)}')
    def stamp():
        if tl:
            A(f'  s_memrealtime {s(sT,2)}')
            A('  s_waitcnt lgkmcnt(0)')
            A(f'  s_min_u32 m0, {s(sTL)}, 63')
            A(f'  v_writelane_b32 {v(TL)}, {s(sT)}, m0')
            A(f'  s_add_u32 {s(sTL)}, {s(sTL)}, 1')
    def reset_state():
        for k in range(12): A(f'  v_mov_b32 {v(ACC+k)}, 0')
        A(f'  v_mov_b32 {v(M)}, 0xff800000')
        A(f'  v_mov_b32 {v(NB)}, 0x7f800000')
        A(f'  v_mov_b32 {v(LS)}, 0')
    A(f'  s_mov_b32 {s(sF)}, s3')
    A(f'  s_mov_b32 {s(sGATE)}, {NWU}')
    A(f'  s_mov_b32 {s(sDEC)}, 0')
    C('one bulk pass pulls the scale/zero arrays into the memory-side cache (1/512 per wave); later reads of them stay off DRAM')
    A(f'  v_lshlrev_b32 {v(ZC)}, 4, v0')
    sPK, sPV = sQC, sHC
    A(f'  s_lshl1_add_u32 {s(sT)}, s2, s3')
    A(f'  s_mul_i32 {s(sPV)}, {s(sT)}, {8192 // W}')
    A(f'  s_mul_i32 {s(sPK)}, {s(sT)}, {24576 // W}')
    line = lambda srd, so, k: f'  buffer_load_dwordx4 {v(ACC,4)}, {v(ZC)}, {s(srd,4)}, {s(so)} offen offset:{(k % 4) * 1024}'
    pfl = []
    for k in range(24 // W):
        if k % 4 == 0 and k: pfl.append(f'  s_add_u32 {s(sPK)}, {s(sPK)}, 4096')
        pfl += [line(SKS, sPK, k), line(SKZ, sPK, k)]
        if k < 8 // W: pfl += [line(SVS, sPV, k), line(SVZ, sPV, k)]
    nissued = [0]
    def issue_pf(cnt):
        while pfl and cnt > 0:
            x = pfl.pop(0)
            if 'buffer_load' in x:
                if nissued[0] >= pfw: A(f'  s_waitcnt vmcnt({pfw - 1})')
                nissued[0] += 1; cnt -= 1
            A(x)
    A('  s_waitcnt lgkmcnt(0)')
    make_srds(0, 4)
    issue_pf(8)
    make_srds(4, 9)
    A(f'  s_mov_b64 {s(sOUT,2)}, {s(PT+14,2)}')
    A(f'  s_mov_b32 {s(sLOW)}, 0x0f0f0f0f')
    A(f'  s_mov_b32 {s(sLOW+1)}, 0x0f0f0f0f')
    A(f'  s_mov_b32 {s(sLOW+2)}, 0xffff')
    A(f'  s_mov_b32 {s(sLOW+3)}, 0xffff')
    map_unit(sF, 0)
    offsets(ICON)
    A(f'  s_mov_b32 {s(sCUR)}, {s(sNXT)}')
    q_loads()
    A(main_load(0, SK, sCUR))
    issue_pf(pfw - nissued[0])
    A('  s_barrier')
    A('  s_mov_b64 vcc, 0')
    A(f'  v_lshlrev_b32 {v(X0)}, 4, {v(n)}')
    stream_consts(g, DUP, DOWN, DCON, X0)
    A(f'  v_and_b32 {v(X1)}, 1, {v(g)}')
    A(f'  v_mul_u32_u24 {v(X1)}, 86, {v(X1)}')
    A(f'  v_lshl_add_u32 {v(ICV)}, {v(n)}, 1, {v(X1)}')
    A(f'  v_subrev_u32 {v(ICV)}, 86, {v(ICV)}')
    A(f'  v_lshlrev_b32 {v(VBP)}, 4, {v(g)}')
    A(f'  v_lshrrev_b32 {v(X0)}, 2, v0')
    A(f'  s_mul_i32 {s(sT)}, s3, 384')
    A(f'  v_lshl_add_u32 {v(VL1)}, {v(X0)}, 4, {s(sT)}')
    A(f'  v_lshl_add_u32 {v(VL2)}, {v(X0)}, 3, {s(sT)}')
    A(f'  s_mul_i32 {s(sT)}, s3, 3072')
    A(f'  s_add_u32 {s(sT)}, {s(sT)}, {LDS_ACC}')
    A(f'  v_lshl_add_u32 {v(VFL)}, v0, 4, {s(sT)}')
    A(f'  s_lshl_b32 {s(sT)}, s3, 5')
    A(f'  s_add_u32 {s(sT)}, {s(sT)}, {LDS_ACC + W * 3072}')
    A(f'  v_lshl_add_u32 {v(VST)}, {v(a)}, 3, {s(sT)}')
    A(f'  s_lshl2_add_u32 {s(sT)}, s3, {F_PRG}')
    A(f'  v_mov_b32 {v(VPR)}, {s(sT)}')
    A(f'  v_mov_b32 {v(ZN)}, 0')
    A(f'  v_mov_b32 {v(SN)}, 0')
    A(f'  v_mov_b32 {v(VNI)}, 0xff800000')
    A(f'  v_mov_b32 {v(AL)}, 1')
    A(f'  s_mov_b32 {s(sMSK)}, 0xffff0000')
    A(f'  s_mov_b32 {s(sL2E)}, 0x3fb8aa3b')
    for h in range(2):
        A(f'  s_mov_b32 {s(sSCL+h)}, {hex(0x3d93cd3a + (22 << 23))}')
        A(f'  s_mov_b32 {s(sBIG+h)}, 0x7f000000')
        A(f'  s_mov_b32 {s(sSM+h)}, {hex((127 - 22) << 23)}')
        A(f'  s_mov_b32 {s(sREC+h)}, 0')
    for j in range(4):
        A(f'  s_mov_b32 {s(sMJ+2*j)}, {hex(0x11111111 << j)}')
        A(f'  s_mov_b32 {s(sMJ+2*j+1)}, {hex(0x11111111 << j)}')
    A(f'  s_mov_b32 {s(sSEG)}, 0')
    if tl:
        A(f'  s_mov_b32 {s(sTL)}, 0')
        A(f'  v_mov_b32 {v(TL)}, 0')
    issue_pf(99)
    A(f'  s_mov_b32 {s(sHC)}, {s(sHN)}')
    kscale_loads()
    for k in range(1, D):
        A(f'  s_waitcnt vmcnt({max(DN, k) - 1 + 6})')
        A(main_load(k, SK, sCUR))
    A(f'  s_waitcnt vmcnt({D - 1})')
    A(f'  ds_write_b32 {v(VPR)}, {v(AL)}')

    def wait_step(k, nsmall, tag, ps):
        cnt = lambda d: d - 1 + (nsmall if k - d <= ps < k else 0)
        A(f'  s_waitcnt vmcnt({cnt(D)})')
        if k % bev == 0:
            A(f'  s_cbranch_vccnz L_{tag}')
            A(f'  s_waitcnt vmcnt({cnt(DN)})')
            A(f'L_{tag}:')
    def mode(k):
        if k == 0: A(f'  ds_read_b32 {v(VBS)}, {v(VPR)} offset:{F_BST - F_PRG}')
        if k == 1:
            A('  s_waitcnt lgkmcnt(0)')
            A(f'  v_cmp_lt_u32 vcc, {s(sG)}, {v(VBS)}')
    def dequant(X, src, z, sc, zmod, smod):
        r = [f'  v_pk_fma_f32 {v(X+2*h,2)}, {v(src+2*h,2)}, {s(sBIG,2)}, {z[h]} {zmod}neg_lo:[0,0,1] neg_hi:[0,0,1]' for h in range(2)]
        r2 = [f'  v_cvt_pk_bf16_f32 {v(X+j)}, 0, {v(X+j)}' for j in range(4)]
        r2 += [f'  v_pk_mul_f32 {v(X+2*h,2)}, {v(X+2*h,2)}, {sc[h]} {smod}'.rstrip() for h in range(2)]
        return r, r2
    def kreduce(ss):
        d = S + (ss & 1)
        q = lambda j: f'quad_perm:[{j},{j},{j},{j}] row_mask:0xf bank_mask:0xf'
        r = [f'  v_mov_b32_dpp {v(X0)}, {v(SD)} {q(0)}',
             f'  v_mov_b32_dpp {v(X1)}, {v(SD+2)} {q(2)}',
             f'  v_add_f32_dpp {v(X0)}, {v(SD+1)}, {v(X0)} {q(1)}',
             f'  v_add_f32_dpp {v(X1)}, {v(SD+3)}, {v(X1)} {q(3)}',
             f'  v_add_f32 {v(d)}, {v(X0)}, {v(X1)}']
        if ss == 0: r.append(f'  v_cndmask_b32 {v(d)}, {v(d)}, {v(VNI)}, {s(sL0,2)}')
        if ss == 10: r.append(f'  v_cndmask_b32 {v(d)}, {v(d)}, {v(VNI)}, {s(sL10,2)}')
        if ss & 1 or ss == 10:
            r += [f'  v_cvt_pk_bf16_f32 {v(S)}, 0, {v(S)}',
                  f'  v_cvt_pk_bf16_f32 {v(S+1)}, 0, {v(S+1)}',
                  f'  v_pk_mul_f32 {v(S,2)}, {v(S,2)}, {s(sSCL,2)}',
                  f'  v_cvt_pk_bf16_f32 {v(LG+(ss>>1))}, {v(S)}, {v(S+1)}']
        return r
    def lds_word(dst, addr):
        A(f'  v_mov_b32 {v(X0)}, {addr}')
        A(f'  ds_read_b32 {v(X0)}, {v(X0)}')
        A('  s_waitcnt lgkmcnt(0)')
        A(f'  v_readfirstlane_b32 {s(dst)}, {v(X0)}')

    mf32 = f'  v_mfma_f32_16x16x32_bf16 {v(SD,4)}, {v(KA,4)}, {v(QB,4)}, 0'
    mf16 = f'  v_mfma_f32_16x16x16_bf16 {v(SD,4)}, {v(KA+4,2)}, {v(QB+4,2)}, {v(SD,4)}'
    def diag_mark(tag, base_):
        if diagat < 0: return
        A(f'  s_and_b32 {s(sT)}, {s(sF)}, -4')
        A(f'  s_cmp_lg_u32 {s(sT)}, {diagat - base_}')
        A(f'  s_cbranch_scc1 L_dm{tag}')
        A('  s_memrealtime s[6:7]')
        A('  s_waitcnt lgkmcnt(0)')
        A(f'L_dm{tag}:')
    def k_unit(u):
        o = NST * u
        if u == 0: diag_mark('k', 0)
        if u == 0: stamp()
        short_masks(DOWN, sL0, sL10, sLOW + 2)
        A(f'  s_mov_b32 {s(sG)}, {s(sF)}')
        A(f'  s_add_u32 {s(sF)}, {s(sF)}, {W}')
        for k in range(NST):
            ss, i = divmod(k, 3)
            mode(k)
            if k == SW:
                if u == U - 1:
                    C('the last K unit prefetches the first V unit')
                    A(f'  s_cmp_lt_u32 {s(sF)}, {NF}')
                    A('  s_cbranch_scc1 L_k_keep')
                    map_unit(3, 1)
                    A(f'  s_mov_b32 {s(SI)}, {s(SV)}')
                    A(f'  s_mov_b32 {s(SI+1)}, {s(SV+1)}')
                    vscale_loads()
                    A(f'  v_mov_b32 {v(ICON)}, {v(DCON)}')
                    A('L_k_keep:')
                offsets(ICON)
            wait_step(k, 6, f'kw{u}_{k}', PSK)
            A(main_load(o + k + D, SK, sCUR) if k < SW else main_load(o + k + D, SI, sNXT))
            if i == 2: A(mf32)
            if i == 0 and ss > 0: A(mf16)
            if ss == 0:
                for raw, dst in ((KZR, KZ), (KSR, KS)):
                    for h in range(2):
                        A(f'  v_lshlrev_b32 {v(dst+4*i+2*h)}, 16, {v(raw+2*i+h)}')
                        A(f'  v_and_b32 {v(dst+4*i+2*h+1)}, {s(sMSK)}, {v(raw+2*i+h)}')
                for h in range(2):
                    A(f'  v_pk_mul_f32 {v(KZ+4*i+2*h,2)}, {v(KZ+4*i+2*h,2)}, {s(sSM,2)}')
                    A(f'  v_mov_b32 {v(QB+2*i+h)}, {v(QN+2*i+h)}')
            c, rest = dequant(T, slot(o + k), (v(KZ+4*i,2), v(KZ+4*i+2,2)), (v(KS+4*i,2), v(KS+4*i+2,2)), '', '')
            for x in c: A(x)
            if k == PSK:
                C('next unit: class (needs the vote once), scales, q on a head change')
                A(f'  s_cmp_lt_u32 {s(sF)}, {s(sGATE)}')
                A(f'  s_cbranch_scc1 L_k_known{u}')
                A(f'L_k_spin{u}:')
                lds_word(sDEC, F_DEC)
                A(f'  s_cmp_eq_u32 {s(sDEC)}, 0')
                A(f'  s_cbranch_scc1 L_k_spin{u}')
                A(f'  s_mov_b32 {s(sGATE)}, -1')
                A(f'L_k_known{u}:')
                map_unit(sF, 0)
                A(f'  s_cmp_eq_u32 {s(sHN)}, {s(sHC)}')
                A(f'  s_cbranch_scc1 L_k_sameq{u}')
                q_loads()
                A(f'  s_mov_b32 {s(sHC)}, {s(sHN)}')
                A(f'L_k_sameq{u}:')
                kscale_loads()
            rest += [f'  v_cvt_pk_bf16_f32 {v(KA+2*i)}, {v(T)}, {v(T+1)}',
                     f'  v_cvt_pk_bf16_f32 {v(KA+2*i+1)}, {v(T+2)}, {v(T+3)}']
            if i == 1 and ss > 0:
                r = kreduce(ss - 1)
                rest = r[:2] + rest[:2] + r[2:4] + rest[2:4] + r[4:5] + rest[4:]
                pend = r[5:]
            elif i == 2 and ss > 0:
                rest = merge(rest, pend)
            for x in rest: A(x)
        A(f'  s_mov_b32 {s(sCUR)}, {s(sNXT)}')
        A(f'  v_mov_b32 {v(AL)}, {s(sF)}')
        A(mf16)
        A(f'  ds_write_b128 {v(VL1)}, {v(LG,4)}')
        A(f'  v_add_u32 {v(VL1)}, {384 * W}, {v(VL1)}')
        for x in kreduce(10): A(x)
        A(f'  ds_write_b64 {v(VL2)}, {v(LG+4,2)} offset:256')
        A(f'  ds_write_b32 {v(VPR)}, {v(AL)}')
        A(f'  v_add_u32 {v(VL2)}, {384 * W}, {v(VL2)}')
    C('---------------- K loop: two units per trip')
    A('L_k:')
    for u in range(U): k_unit(u)
    A(f'  s_cmp_lt_u32 {s(sF)}, {NF}')
    A('  s_cbranch_scc1 L_k')

    def flush():
        C('park the partial result of the finished head segment; record id = head*4 + 2*(segment ends the head) + class')
        A(f'  v_mov_b32 {v(X1)}, {v(LS)}')
        A(f'  v_permlane32_swap_b32 {v(LS)}, {v(X1)}')
        A(f'  v_add_f32 {v(LS)}, {v(LS)}, {v(X1)}')
        A(f'  v_mov_b32 {v(X1)}, {v(LS)}')
        A(f'  v_permlane16_swap_b32 {v(LS)}, {v(X1)}')
        A(f'  v_add_f32 {v(LS)}, {v(LS)}, {v(X1)}')
        A(f'  ds_write_b64 {v(VST)}, {v(NB,2)}')
        for i in range(3):
            A(f'  ds_write_b128 {v(VFL)}, {v(ACC+4*i,4)} offset:{1024*i}')
        A(f'  s_and_b32 {s(sT)}, {s(sQC)}, 15')
        A(f'  s_cmp_ge_u32 {s(sT)}, 12')
        A(f'  s_cselect_b32 {s(sT)}, 2, 0')
        A(f'  s_and_b32 {s(sT+1)}, {s(sCC)}, 1')
        A(f'  s_add_u32 {s(sT)}, {s(sT)}, {s(sT+1)}')
        A(f'  s_lshr_b32 {s(sT+1)}, {s(sQC)}, 4')
        A(f'  s_lshl2_add_u32 {s(sT)}, {s(sT+1)}, {s(sT)}')
        for j in range(2):
            A(f'  s_add_u32 {s(sT+1)}, s3, {W * j}')
            A(f'  s_cmp_eq_u32 {s(sSEG)}, {s(sT+1)}')
            A(f'  s_cselect_b32 {s(sREC+j)}, {s(sT)}, {s(sREC+j)}')
        A(f'  s_add_u32 {s(sSEG)}, {s(sSEG)}, 1')
        A('  s_waitcnt lgkmcnt(0)')
    def import_gate(tag):
        A(f'  s_cmp_lt_u32 {s(sF)}, {s(sGATE)}')
        A(f'  s_cbranch_scc1 L_{tag}_ok')
        A(f'L_{tag}_spin:')
        lds_word(sGATE, F_IMP)
        A(f'  s_cmp_lt_u32 {s(sF)}, {s(sGATE)}')
        A(f'  s_cbranch_scc0 L_{tag}_spin')
        A(f'L_{tag}_ok:')

    C('---------------- V loop: two units per trip')
    A(f'  v_subrev_u32 {v(VL1)}, {IMG - 32 * 384 * kord}, {v(VL1)}')
    A(f'  v_subrev_u32 {v(VL2)}, {IMG - 32 * 384 * kord}, {v(VL2)}')
    A(f'  s_mov_b32 {s(sF)}, s3')
    A(f'  s_mov_b32 {s(sHC)}, {s(sHN)}')
    A(f'  s_mov_b32 {s(sGATE)}, 0')
    A(f'  s_mov_b32 {s(SQ)}, {s(sOUT)}')
    A(f'  s_and_b32 {s(SQ+1)}, {s(sOUT+1)}, 0xffff')
    import_gate('v0')
    A(f'  ds_read_b128 {v(LG,4)}, {v(VL1)}')
    A(f'  ds_read_b64 {v(LG+4,2)}, {v(VL2)} offset:256')
    reset_state()
    def v_unit(u):
        o = NST * u
        A(f'L_v{u}:')
        if u == 0: diag_mark('v', NF)
        if u == 0: stamp()
        A(f'  s_add_u32 {s(sG)}, {s(sF)}, {NF}')
        A(f'  v_mov_b32 {v(AL)}, {s(sG)}')
        A(f'  s_mov_b32 {s(sQC)}, {s(sQ3)}')
        A(f'  s_mov_b32 {s(sCC)}, {s(sC)}')
        A(f'  ds_write_b32 {v(VPR)}, {v(AL)}')
        A(f'  s_add_u32 {s(sF)}, {s(sF)}, {W}')
        import_gate(f'v1{u}')
        map_unit(sF, 1)
        A(f'  s_cmp_lt_u32 {s(sF)}, {NF}')
        A(f'  s_cselect_b32 {s(sNXT)}, {s(sNXT)}, {TOTAL}')
        stp = 384 * W
        if kord and u == U - 1:
            stp = s(sL0)
            A(f'  s_lshr_b32 {s(sT)}, {s(sF)}, 1')
            A(f'  s_cmp_eq_u32 {s(sT)}, 32')
            A(f'  s_cselect_b32 {stp}, {384 * W - IMG}, {s(s768)}')
        prep = []
        for k in range(11):
            prep.append(f'  v_lshlrev_b32 {v(E+k)}, 16, {v(LG+k//2)}' if k % 2 == 0 else f'  v_and_b32 {v(E+k)}, {s(sMSK)}, {v(LG+k//2)}')
        prep += [f'  v_add_u32 {v(VL1)}, {stp}, {v(VL1)}',
                 f'  v_add_u32 {v(VL2)}, {stp}, {v(VL2)}',
                 f'  v_max3_f32 {v(X0)}, {v(E)}, {v(E+1)}, {v(E+2)}',
                 f'  ds_read_b128 {v(LG,4)}, {v(VL1)}',
                 f'  ds_read_b64 {v(LG+4,2)}, {v(VL2)} offset:256',
                 f'  v_max3_f32 {v(X1)}, {v(E+3)}, {v(E+4)}, {v(E+5)}',
                 f'  v_max3_f32 {v(X0)}, {v(X0)}, {v(E+6)}, {v(E+7)}',
                 f'  v_max3_f32 {v(X1)}, {v(X1)}, {v(E+8)}, {v(E+9)}',
                 f'  v_max3_f32 {v(X0)}, {v(X0)}, {v(E+10)}, {v(M)}',
                 f'  v_max_f32 {v(X0)}, {v(X0)}, {v(X1)}',
                 f'  v_mov_b32 {v(X1)}, {v(X0)}',
                 f'  v_permlane32_swap_b32 {v(X0)}, {v(X1)}',
                 f'  v_max_f32 {v(X0)}, {v(X0)}, {v(X1)}',
                 f'  v_mov_b32 {v(X1)}, {v(X0)}',
                 f'  v_permlane16_swap_b32 {v(X0)}, {v(X1)}',
                 f'  v_max_f32 {v(M)}, {v(X0)}, {v(X1)}',
                 f'  v_mul_f32 {v(X0)}, {s(sL2E)}, {v(M)}',
                 f'  v_add_f32 {v(AL)}, {v(X0)}, {v(NB)}',
                 f'  v_sub_f32 {v(NB)}, 0, {v(X0)}',
                 f'  v_exp_f32 {v(AL)}, -{v(AL)}',
                 f'  ds_bpermute_b32 {v(ALQ)}, {v(VBP)}, {v(AL)}']
        for k in range(11):
            prep += [f'  v_fma_f32 {v(E+k)}, {v(E+k)}, {s(sL2E)}, {v(NB)}', f'  v_exp_f32 {v(E+k)}, {v(E+k)}']
        prep += [f'  v_add_f32 {v(X0)}, {v(E)}, {v(E+1)}', f'  v_add_f32 {v(X1)}, {v(E+2)}, {v(E+3)}']
        for k in range(4, 11):
            x = X0 if k % 2 == 0 else X1
            prep.append(f'  v_add_f32 {v(x)}, {v(x)}, {v(E+k)}')
        prep += [f'  v_add_f32 {v(X0)}, {v(X0)}, {v(X1)}',
                 f'  v_fma_f32 {v(LS)}, {v(LS)}, {v(AL)}, {v(X0)}']
        for k in range(6):
            prep.append(f'  v_cvt_pk_bf16_f32 {v(PP+k)}, {v(E+2*k)}, {v(E+2*k+1) if k < 5 else 0}')
        for j in range(4):
            for k in range(4):
                prep.append(f'  v_cndmask_b32 {v(AJ+4*j+k)}, 0, {v(PP+k)}, {s(sMJ+2*j,2)}')
        prep.append('  s_waitcnt lgkmcnt(0)')
        for k in range(12):
            prep.append(f'  v_mul_f32 {v(ACC+k)}, {v(ALQ)}, {v(ACC+k)}')
        prep2 = [f'  v_cndmask_b32 {v(AK+2*j+k)}, 0, {v(PP+4+k)}, {s(sMJ+2*j,2)}' for j in range(4) for k in range(2)]
        for k in range(NST):
            ss, i = divmod(k, 3)
            mode(k)
            if k == SW: offsets(DCON)
            wait_step(k, 2, f'vw{u}_{k}', PSV)
            A(main_load(o + k + D, SV, sCUR if k < SW else sNXT))
            if k == 0:
                A(f'  v_mul_f32 {v(ZC)}, {s(sSM)}, {v(ZN)}')
                A(f'  v_mul_f32 {v(SC)}, {hex((127 + 22) << 23)}, {v(SN)}')
            if i == 0:
                A(f'  v_mov_b32_dpp {v(ZS)}, {v(ZC)} row_newbcast:{ss} row_mask:0xf bank_mask:0xf')
                A(f'  v_mov_b32_dpp {v(ZS+1)}, {v(SC)} row_newbcast:{ss} row_mask:0xf bank_mask:0xf')
            X = TV + 4 * i if ss % 2 == 0 else T
            c, rest = dequant(X, slot(o + k), (v(ZS,2), v(ZS,2)), (v(ZS,2), v(ZS,2)), 'op_sel_hi:[1,1,0] ', 'op_sel:[0,1]')
            for x in c: A(x)
            if k == PSV: vscale_loads()
            if ss % 2 == 1:
                rest += [f'  v_cvt_pk_bf16_f32 {v(BV+16*i+4*j+((ss>>1)&3))}, {v(TV+4*i+j)}, {v(T+j)}' for j in range(4)]
            if ss == 10:
                rest += [f'  v_cvt_pk_bf16_f32 {v(BV+16*i+4*j+1)}, {v(TV+4*i+j)}, 0' for j in range(4)]
            side = []
            if k >= 1: side, prep = prep[:5], prep[5:]
            if k == 20: assert not prep
            if k == 23: prep = prep2
            for x in merge(rest, side): A(x)
            if ss == 7:
                for j in range(4):
                    A(f'  v_mfma_f32_16x16x32_bf16 {v(ACC+4*i,4)}, {v(AJ+4*j,4)}, {v(BV+16*i+4*j,4)}, {v(ACC+4*i,4)}')
            if ss == 10:
                assert not prep
                for j in range(4):
                    A(f'  v_mfma_f32_16x16x16_bf16 {v(ACC+4*i,4)}, {v(AK+2*j,2)}, {v(BV+16*i+4*j,2)}, {v(ACC+4*i,4)}')
        A(f'  s_mov_b32 {s(sCUR)}, {s(sNXT)}')
        if u == U - 1:
            A(f'  s_cmp_ge_u32 {s(sF)}, {NF}')
            A('  s_cbranch_scc1 L_v_done')
            A(f'  s_cmp_eq_u32 {s(sHN)}, {s(sHC)}')
            A('  s_cbranch_scc1 L_v0')
            A(f'  s_mov_b32 {s(sHC)}, {s(sHN)}')
            flush()
            A(f'  v_add_u32 {v(VFL)}, {SEG}, {v(VFL)}')
            A(f'  v_add_u32 {v(VST)}, {SEG}, {v(VST)}')
            reset_state()
            A('  s_branch L_v0')
    assert 16 % (W * U) == 0
    for u in range(U): v_unit(u)
    A('L_v_done:')
    stamp()
    A(f'  v_mov_b32 {v(X0)}, {F_TAG}')
    A(f'  ds_read_b32 {v(M)}, {v(X0)}')
    A(f'  v_lshlrev_b32 {v(ALQ)}, 4, v0')
    A(f'  s_mul_i32 {s(sT)}, s3, {SEG}')
    A(f'  v_add_u32 {v(E)}, {s(sT)}, {v(ALQ)}')
    A(f'  s_add_u32 {s(sT)}, {s(sT)}, {LDS_ACC + W * 3072}')
    A(f'  v_lshrrev_b32 {v(AL)}, 1, {v(VBP)}')
    A(f'  v_add_u32 {v(E+1)}, {s(sT)}, {v(AL)}')
    A(f'  v_add_u32 {v(E+2)}, {W * SEG}, {v(E+1)}')
    flush()
    A('  s_waitcnt vmcnt(0)')

    C('---------------- wave w merges segments w and w+2 over the two waves, publishes them or keeps the owned one')
    A('  s_barrier')
    ST = RING; AC = (base + 3) // 4 * 4
    nv = max(nv, AC + 60)
    for j in range(2):
        A(f'  ds_read2_b64 {v(ST+4*j,4)}, {v(E+1+j)} offset1:4')
        for w in range(W):
            for i in range(3):
                A(f'  ds_read_b128 {v(AC+12*(W*j+w)+4*i,4)}, {v(E)} offset:{LDS_ACC + W * j * SEG + 3072*w + 1024*i}')
    A(f'  s_mov_b32 {s(sSEG)}, -1')
    A(f'  s_add_u32 {s(sG)}, {s(sRO)}, 1')
    GR = RING + 8; OWN = GR + 40
    gi = lambda b, x: b + 4 * (x // 3) + x % 3
    for j in range(2):
        G = GR + 20 * j; st = ST + 4 * j; ac = AC + 24 * j
        A(f'  s_waitcnt lgkmcnt({7 * (1 - j)})')
        A(f'  v_min_f32 {v(gi(G,12))}, {v(st)}, {v(st+2)}')
        for w in range(2): A(f'  v_sub_f32 {v(st+2*w)}, {v(gi(G,12))}, {v(st+2*w)}')
        for w in range(2): A(f'  v_exp_f32 {v(st+2*w)}, {v(st+2*w)}')
        for x in range(13):
            a0, a1, d_ = (st + 1, st + 3, gi(G, 13)) if x == 12 else (ac + x, ac + 12 + x, gi(G, x))
            A(f'  v_mul_f32 {v(d_)}, {v(st)}, {v(a0)}')
            A(f'  v_fma_f32 {v(d_)}, {v(st+2)}, {v(a1)}, {v(d_)}')
        A(f'  s_bfe_u32 {s(sT)}, {s(sREC+j)}, 0x20001')
        A(f'  s_cmp_eq_u32 {s(sT)}, {s(sG)}')
        A(f'  s_cbranch_scc1 L_own{j}')
        for g_ in range(5): A(f'  v_mov_b32 {v(G+4*g_+3)}, {v(M)}')
        A(f'  s_mul_i32 {s(sT)}, {s(sREC+j)}, {REC}')
        A(f'  s_add_u32 {s(sT)}, {s(sT)}, {WS_REC}')
        A(f'  s_add_u32 {s(sT+1)}, {s(sT)}, 4096')
        for g_ in range(5):
            A(f'  buffer_store_dwordx4 {v(G+4*g_,4)}, {v(ALQ)}, {s(SWS,4)}, {s(sT + g_ // 4)} offen offset:{1024 * (g_ % 4)} sc1')
        A(f'  s_branch L_pub{j}')
        A(f'L_own{j}:')
        for x in range(14): A(f'  v_mov_b32 {v(gi(OWN, x))}, {v(gi(G, x))}')
        A(f'  s_mov_b32 {s(sSEG)}, {s(sREC+j)}')
        A(f'L_pub{j}:')
    stamp()
    A(f'  s_cmp_eq_u32 {s(sSEG)}, -1')
    A('  s_cbranch_scc1 L_fin')
    C('gather the three foreign records of the owned head; a granule counts once it carries this launch\'s tag')
    FR = AC
    sR, sMISS = 84, 90
    A(f'  s_xor_b32 {s(sR)}, {s(sSEG)}, 1')
    A(f'  s_andn2_b32 {s(sR+2)}, {s(sSEG)}, 1')
    A(f'  s_xor_b32 {s(sR+2)}, {s(sR+2)}, 2')
    A(f'  s_add_u32 {s(sR+4)}, {s(sR+2)}, 1')
    for r in range(3):
        A(f'  s_mul_i32 {s(sR+2*r)}, {s(sR+2*r)}, {REC}')
        A(f'  s_add_u32 {s(sR+2*r)}, {s(sR+2*r)}, {WS_REC}')
        A(f'  s_add_u32 {s(sR+2*r+1)}, {s(sR+2*r)}, 4096')
    A(f'  s_mov_b32 {s(sF)}, 0')
    A(f'  s_mov_b32 {s(sMISS)}, 7')
    A('L_gather:')
    for r in range(3):
        A(f'  s_bitcmp0_b32 {s(sMISS)}, {r}')
        A(f'  s_cbranch_scc1 L_have{r}')
        for g_ in range(5):
            A(f'  buffer_load_dwordx4 {v(FR+20*r+4*g_,4)}, {v(ALQ)}, {s(SWS,4)}, {s(sR + 2*r + g_ // 4)} offen offset:{1024 * (g_ % 4)} sc1')
        A(f'L_have{r}:')
    A(f'  s_mov_b32 {s(sMISS)}, 0')
    A('  s_waitcnt vmcnt(0)')
    for r in range(3):
        tg = [FR + 20 * r + 4 * k + 3 for k in range(5)]
        A(f'  v_min3_u32 {v(X0)}, {v(tg[0])}, {v(tg[1])}, {v(tg[2])}')
        A(f'  v_max3_u32 {v(X1)}, {v(tg[0])}, {v(tg[1])}, {v(tg[2])}')
        A(f'  v_min3_u32 {v(X0)}, {v(X0)}, {v(tg[3])}, {v(tg[4])}')
        A(f'  v_max3_u32 {v(X1)}, {v(X1)}, {v(tg[3])}, {v(tg[4])}')
        A(f'  v_cmp_ne_u32 {s(sT,2)}, {v(M)}, {v(X0)}')
        A(f'  v_cmp_ne_u32 vcc, {v(M)}, {v(X1)}')
        A(f'  s_or_b64 {s(sT,2)}, {s(sT,2)}, vcc')
        A(f'  s_cselect_b32 {s(sT)}, {1 << r}, 0')
        A(f'  s_or_b32 {s(sMISS)}, {s(sMISS)}, {s(sT)}')
    A('  s_cbranch_scc0 L_gathered')
    A(f'  s_add_u32 {s(sF)}, {s(sF)}, 1')
    A(f'  s_cmp_lt_u32 {s(sF)}, 20000')
    A('  s_cbranch_scc1 L_gather')
    A('  s_endpgm')
    A('L_gathered:')
    stamp()
    C('(own + partner) + (neighbour pair): products are rounded separately, so the sum does not depend on who had which class')
    B4 = [OWN, FR, FR + 20, FR + 40]
    A(f'  v_min_f32 {v(X0)}, {v(gi(B4[0],12))}, {v(gi(B4[1],12))}')
    A(f'  v_min3_f32 {v(X0)}, {v(X0)}, {v(gi(B4[2],12))}, {v(gi(B4[3],12))}')
    for b in B4: A(f'  v_sub_f32 {v(gi(b,12))}, {v(X0)}, {v(gi(b,12))}')
    for b in B4: A(f'  v_exp_f32 {v(gi(b,12))}, {v(gi(b,12))}')
    A(f'  v_mul_u32_u24 {v(AL)}, 24, {v(VBP)}')
    A(f'  v_and_b32 {v(X0)}, 15, v0')
    A(f'  v_lshl_add_u32 {v(AL)}, {v(X0)}, 3, {v(AL)}')
    A(f'  s_lshr_b32 {s(sT)}, {s(sSEG)}, 2')
    A(f'  s_mul_i32 {s(sT)}, {s(sT)}, 1536')
    for x in [13] + list(range(12)):
        for b in B4: A(f'  v_mul_f32 {v(gi(b,x))}, {v(gi(b,12))}, {v(gi(b,x))}')
        A(f'  v_add_f32 {v(gi(B4[0],x))}, {v(gi(B4[0],x))}, {v(gi(B4[1],x))}')
        A(f'  v_add_f32 {v(gi(B4[2],x))}, {v(gi(B4[2],x))}, {v(gi(B4[3],x))}')
        A(f'  v_add_f32 {v(gi(B4[0],x))}, {v(gi(B4[0],x))}, {v(gi(B4[2],x))}')
        if x == 13: A(f'  v_rcp_f32 {v(X1)}, {v(gi(OWN,13))}')
        else: A(f'  v_mul_f32 {v(gi(OWN,x))}, {v(X1)}, {v(gi(OWN,x))}')
        if x % 4 == 3:
            i = x // 4
            A(f'  v_cvt_pk_bf16_f32 {v(ACC+2*i)}, {v(gi(OWN,4*i))}, {v(gi(OWN,4*i+1))}')
            A(f'  v_cvt_pk_bf16_f32 {v(ACC+2*i+1)}, {v(gi(OWN,4*i+2))}, {v(gi(OWN,4*i+3))}')
            A(f'  buffer_store_dwordx2 {v(ACC+2*i,2)}, {v(AL)}, {s(SQ,4)}, {s(sT)} offen offset:{128*i}')
    A('L_fin:')
    if diagpad:
        A('L_diag:')
        A(f'  s_memrealtime {s(sBIG,2)}')
        A('  s_waitcnt lgkmcnt(0)')
        A(f'  s_sub_u32 {s(sBIG)}, {s(sBIG)}, s6')
        A(f'  s_cmp_lt_u32 {s(sBIG)}, {diagpad * 100}')
        A('  s_cbranch_scc1 L_diag')
    if tl:
        A(f'  s_mul_i32 {s(sT)}, s2, {W+1}')
        A(f'  s_add_u32 {s(sT)}, {s(sT)}, s3')
        A(f'  s_lshl_b32 {s(sT)}, {s(sT)}, 8')
        A(f'  s_add_u32 {s(sT)}, {s(sT)}, 0x10000')
        A(f'  v_lshl_add_u32 {v(E)}, v0, 2, {s(sT)}')
        A(f'  global_store_dword {v(E)}, {v(TL)}, {s(sWS,2)}')
    if stamps:
        A('  s_waitcnt vmcnt(0)')
        A(f'  s_memrealtime {s(sBIG,2)}')
        A(f'  s_getreg_b32 {s(sSM)}, hwreg(HW_REG_XCC_ID)')
        A(f'  s_mul_i32 {s(sT)}, s2, {W+1}')
        A(f'  s_add_u32 {s(sT)}, {s(sT)}, s3')
        A(f'  s_lshl_b32 {s(sT)}, {s(sT)}, 4')
        A('  s_waitcnt lgkmcnt(0)')
        A(f'  v_mov_b32 {v(RING)}, s6')
        A(f'  v_mov_b32 {v(RING+1)}, {s(sBIG)}')
        A(f'  v_mov_b32 {v(RING+2)}, {s(sSM)}')
        A(f'  v_mov_b32 {v(RING+3)}, {s(sDEC)}')
        A(f'  v_mov_b32 {v(X0)}, {s(sT)}')
        A('  s_mov_b64 exec, 1')
        A(f'  global_store_dwordx4 {v(X0)}, {v(RING,4)}, {s(sWS,2)}')
    A('L_end:')
    A('  s_endpgm')

    C('================= helper wave')
    A('L_helper:')
    if tl:
        A(f'  s_mov_b32 {s(sTL)}, 0')
        A(f'  v_mov_b32 {v(TL)}, 0')
    hA, hZ, hO, h1, h2, h3, hD = 1, 2, 3, 4, 5, 6, 8
    hP, hQ, hC, hX, hW, hU, hT = hD + 96, hD + 97, hD + 98, hD + 100, hD + 104, hD + 105, hD + 106
    assert hT + 1 < TL
    A(f'  v_lshlrev_b32 {v(hA)}, 2, v0')
    A(f'  v_add_u32 {v(hA)}, {LDS_F}, {v(hA)}')
    A(f'  v_mov_b32 {v(hZ)}, 0')
    A('  s_mov_b64 exec, 0xff')
    A(f'  ds_write_b32 {v(hA)}, {v(hZ)}')
    A('  s_mov_b64 exec, -1')
    A('  s_waitcnt lgkmcnt(0)')
    make_srds(4, 9)
    A('  s_barrier')
    sOF, sN0, sV0, sJ, sSF, sA, sB, sX, sCNT, sME, sPA, sFA, sFS, sQD = 44, 45, 48, 50, 52, 54, 56, 58, 59, 60, 61, 62, 63, 64
    sT0, sNON, sCP, sCA, sUP, sRET, sSUB = 72, 74, 76, 77, 78, 84, 86
    A(f'  s_memrealtime {s(sT0,2)}')
    def code_touch(tag):
        A(f'  s_lshr_b32 {s(sT)}, s2, 3')
        A(f'  s_cmp_lt_u32 {s(sT)}, (L_code_end - L_k) / 1024')
        A(f'  s_cbranch_scc0 L_h_ct{tag}')
        A(f'  global_load_dwordx4 {v(hX,4)}, {v(hC,2)}, off')
        A(f'L_h_ct{tag}:')
    C('workgroup i reads kilobyte i/8 of this kernel\'s code so that first instruction fetches hit L2')
    A(f'  s_getpc_b64 {s(sA,2)}')
    A('L_h_pc:')
    A(f'  s_add_u32 {s(sSUB)}, {s(sA)}, L_h_cp - L_h_pc')
    A(f'  s_addc_u32 {s(sSUB+1)}, {s(sA+1)}, 0')
    A(f'  s_sub_u32 {s(sA)}, {s(sA)}, L_h_pc - L_k')
    A(f'  s_subb_u32 {s(sA+1)}, {s(sA+1)}, 0')
    A(f'  s_and_b32 {s(sA)}, {s(sA)}, -16')
    A(f'  s_lshr_b32 {s(sT)}, s2, 3')
    A(f'  s_lshl_b32 {s(sT)}, {s(sT)}, 10')
    A(f'  v_lshl_add_u32 {v(hC)}, v0, 4, {s(sT)}')
    A(f'  v_mov_b32 {v(hC+1)}, {s(sA+1)}')
    A(f'  v_add_co_u32 {v(hC)}, vcc, {s(sA)}, {v(hC)}')
    A(f'  v_addc_co_u32 {v(hC+1)}, vcc, 0, {v(hC+1)}, vcc')
    code_touch('a')
    A(f'  s_lshr_b32 {s(sT)}, s2, 4')
    A(f'  s_and_b32 {s(sT)}, {s(sT)}, 8')
    A(f'  s_and_b32 {s(sT+1)}, s2, 7')
    A(f'  s_add_u32 {s(sT)}, {s(sT)}, {s(sT+1)}')
    A(f'  s_lshl_b32 {s(sT)}, {s(sT)}, 4')
    A(f'  v_lshl_add_u32 {v(hP)}, v0, 3, {s(sT)}')
    A(f'  v_and_b32 {v(hQ)}, 31, v0')
    A(f'  v_lshlrev_b32 {v(hQ)}, 3, {v(hQ)}')
    A(f'  v_and_b32 {v(hW)}, 1, v0')
    A(f'  v_lshlrev_b32 {v(hW)}, 2, {v(hW)}')
    A(f'  v_add_u32 {v(hW)}, {F_PRG}, {v(hW)}')
    A(f'  v_mov_b32 {v(hU)}, 0')
    A(f'  v_lshlrev_b32 {v(hO)}, 4, v0')
    A(f'  s_mov_b32 {s(sCP)}, {cp0}')
    A(f'  s_mov_b32 {s(sCA)}, {WS_CP}')
    def wait_progress(tag, lim, slp):
        A(f'L_h_prog{tag}:')
        A(f'  s_sleep {slp}')
        A(f'  ds_read_b32 {v(hD)}, {v(hW)}')
        A('  s_waitcnt lgkmcnt(0)')
        A(f'  v_cmp_gt_u32 vcc, {lim}, {v(hD)}')
        A('  s_cmp_lg_u32 vcc_lo, 0')
        A(f'  s_cbranch_scc1 L_h_prog{tag}')
    def lds_set(addr, val):
        A(f'  v_mov_b32 {v(hA)}, {addr}')
        A(f'  v_mov_b32 {v(h2)}, {val}')
        A(f'  ds_write_b32 {v(hA)}, {v(h2)}')
    C('vote word in d_debug: six 6-bit tallies (class near die 0 in even pages, per slab of qk and qv), four 4-bit tallies')
    C(f'(die of role 0 per wg&3) and the voter count in the top byte; {7 * NV} workgroups vote')
    A(f'  s_getreg_b32 {s(sJ)}, hwreg(HW_REG_XCC_ID)')
    A(f'  s_bfe_u32 {s(sJ)}, {s(sJ)}, 0x10002')
    A(f'  s_bfe_u32 {s(sSF)}, s2, 0x30003')
    A(f'  s_cmp_eq_u32 {s(sSF)}, 7')
    A('  s_cbranch_scc1 L_h_voted')
    A(f'  s_lshr_b32 {s(sT)}, s2, 6')
    A(f'  s_xor_b32 {s(sT)}, {s(sT)}, s2')
    A(f'  s_and_b32 {s(sT)}, {s(sT)}, {32 // NV - 1}')
    A('  s_cbranch_scc1 L_h_voted')
    A(f'  s_cmp_eq_u32 {s(sSF)}, 6')
    A('  s_cbranch_scc0 L_h_probe')
    A(f'  s_xor_b32 {s(sV0)}, {s(sJ)}, {s(sRO)}')
    A(f'  s_and_b32 {s(sSF)}, s2, 3')
    A(f'  s_lshl2_add_u32 {s(sSF)}, {s(sSF)}, 36')
    A('  s_branch L_h_vote')
    A('L_h_probe:')
    A(f'  s_cmp_ge_u32 {s(sSF)}, 3')
    A(f'  s_cselect_b32 {s(SI)}, {s(SV)}, {s(SK)}')
    A(f'  s_cselect_b32 {s(SI+1)}, {s(SV+1)}, {s(SK+1)}')
    A(f'  s_cselect_b32 {s(sT)}, 3, 0')
    A(f'  s_sub_u32 {s(sT)}, {s(sSF)}, {s(sT)}')
    A(f'  s_lshl_b32 {s(sT)}, {s(sT)}, 28')
    A(f'  s_add_u32 {s(sOF)}, {s(sPB)}, {s(sRO)}')
    A(f'  s_lshl_b32 {s(sOF)}, {s(sOF)}, 16')
    A(f'  s_add_u32 {s(sOF)}, {s(sOF)}, {s(sT)}')
    A(f'  s_add_u32 {s(sOF)}, {s(sOF)}, 0x1c0000')
    A(f'  s_mul_i32 {s(sT)}, s2, 0x2a95')
    A(f'  s_and_b32 {s(sT)}, {s(sT)}, 0x7f80')
    A(f'  s_add_u32 {s(sOF)}, {s(sOF)}, {s(sT)}')
    A(f'  s_add_u32 {s(sT)}, {s(sOF)}, 0x8000')
    A(f'  s_buffer_load_dword {s(sX)}, {s(SI,4)}, {s(sT)}')
    A(f'  s_mov_b32 {s(sN0)}, -1')
    A(f'  s_mov_b32 {s(sN0+1)}, -1')
    A(f'  s_mul_i32 {s(sSF)}, {s(sSF)}, 6')
    wait_progress('p', 1, 2)
    for k in range(NS):
        for c in ((0, 1) if k % 2 == 0 else (1, 0)):
            o = (((k & 1) << 14) | ((k >> 1 & 1) << 12) | ((k * 0x380) & 0xfff)) ^ (c << 13)
            A(f'  s_xor_b32 {s(sT)}, {s(sOF)}, {o}')
            A(f'  s_memtime {s(sA,2)}')
            A('  s_waitcnt lgkmcnt(0)')
            A(f'  s_buffer_load_dword {s(sX)}, {s(SI,4)}, {s(sT)}')
            A('  s_waitcnt lgkmcnt(0)')
            A(f'  s_memtime {s(sB,2)}')
            A('  s_waitcnt lgkmcnt(0)')
            A(f'  s_sub_u32 {s(sB)}, {s(sB)}, {s(sA)}')
            A(f'  s_min_u32 {s(sN0+c)}, {s(sN0+c)}, {s(sB)}')
    A(f'  s_cmp_lt_u32 {s(sN0+1)}, {s(sN0)}')
    A(f'  s_cselect_b32 {s(sV0)}, 1, 0')
    A(f'  s_lshr_b32 {s(sT)}, {s(sOF)}, 13')
    A(f'  s_xor_b32 {s(sT)}, {s(sT)}, s2')
    A(f'  s_xor_b32 {s(sT)}, {s(sT)}, {s(sJ)}')
    A(f'  s_and_b32 {s(sT)}, {s(sT)}, 1')
    A(f'  s_xor_b32 {s(sV0)}, {s(sV0)}, {s(sT)}')
    A('L_h_vote:')
    A(f'  s_mov_b32 {s(sV0+1)}, 0')
    A(f'  s_lshl_b64 {s(sV0,2)}, {s(sV0,2)}, {s(sSF)}')
    A(f'  s_or_b32 {s(sV0+1)}, {s(sV0+1)}, 0x1000000')
    A(f'  s_atomic_add_x2 {s(sV0,2)}, {s(sDBG,2)}, 0')
    A('L_h_voted:')
    A('  s_waitcnt lgkmcnt(0)')
    C('launch nonce (tells this launch\'s hand-offs in ws from older contents)')
    A('  s_cmp_lg_u32 s2, 56')
    A('  s_cbranch_scc1 L_h_nonce')
    A(f'  s_lshl_b64 {s(sA,2)}, {s(sT0,2)}, 2')
    A(f'  s_atomic_add_x2 {s(sA,2)}, {s(sDBG,2)}, 8')
    A('  s_waitcnt lgkmcnt(0)')
    A('L_h_nonce:')
    stamp()
    def checkpoints(upto):
        A(f'  s_mov_b32 {s(sUP)}, {min(upto, last) - dly}')
        A(f'  s_swappc_b64 {s(sRET,2)}, {s(sSUB,2)}')
    def bounded(label, n):
        A(f'  s_add_u32 {s(sCNT)}, {s(sCNT)}, 1')
        A(f'  s_cmp_gt_u32 {s(sCNT)}, {n}')
        A(f'  s_cbranch_scc1 {label}')
    wait_progress('v', NWU - W, 8)
    A(f'  s_load_dwordx2 {s(sV0,2)}, {s(sDBG,2)}, 0')
    A(f'  s_mov_b32 {s(sCNT)}, 0')
    A('L_h_votes:')
    A('  s_waitcnt lgkmcnt(0)')
    A(f'  s_lshr_b32 {s(sT)}, {s(sV0+1)}, 24')
    A(f'  s_cmp_eq_u32 {s(sT)}, {7 * NV}')
    A('  s_cbranch_scc1 L_h_votes_done')
    bounded('L_h_votes_done', 2000)
    A('  s_sleep 64')
    A(f'  s_mov_b64 {s(sV0,2)}, 0')
    A(f'  s_atomic_or_x2 {s(sV0,2)}, {s(sDBG,2)}, 0 glc')
    A('  s_branch L_h_votes')
    A('L_h_votes_done:')
    A(f'  s_mov_b32 {s(sDEC)}, 0x80')
    for j in range(6):
        A(f'  s_bfe_u64 {s(sA,2)}, {s(sV0,2)}, {hex(0x60000 | (6 * j))}')
        A(f'  s_cmp_gt_u32 {s(sA)}, {NV // 2}')
        A(f'  s_cselect_b32 {s(sB)}, {1 << j}, 0')
        A(f'  s_or_b32 {s(sDEC)}, {s(sDEC)}, {s(sB)}')
    if force >= 0: A(f'  s_mov_b32 {s(sDEC)}, {0x80 | force}')
    A(f'  s_and_b32 {s(sT)}, s2, 3')
    A(f'  s_lshl2_add_u32 {s(sT)}, {s(sT)}, {4 + (NV // 4).bit_length() - 1}')
    A(f'  s_lshr_b32 {s(sA)}, {s(sV0+1)}, {s(sT)}')
    A(f'  s_xor_b32 {s(sA)}, {s(sA)}, s2')
    A(f'  s_xor_b32 {s(sA)}, {s(sA)}, {s(sRO)}')
    A(f'  s_and_b32 {s(sA)}, {s(sA)}, 1')
    A(f'  s_mul_i32 {s(sA)}, {s(sA)}, 63')
    A(f'  s_xor_b32 {s(sDEC)}, {s(sDEC)}, {s(sA)}')
    lds_set(F_DEC, s(sDEC))
    stamp()
    A(f'  s_load_dwordx2 {s(sNON,2)}, {s(sDBG,2)}, 8')
    A(f'  s_mov_b32 {s(sCNT)}, 0')
    A('L_h_getnonce:')
    A('  s_waitcnt lgkmcnt(0)')
    A(f'  s_cmp_lg_u64 {s(sNON,2)}, 0')
    A('  s_cbranch_scc1 L_h_gotnonce')
    bounded('L_h_gotnonce', 2000)
    A('  s_sleep 64')
    A(f'  s_atomic_or_x2 {s(sNON,2)}, {s(sDBG,2)}, 8 glc')
    A('  s_branch L_h_getnonce')
    A('L_h_gotnonce:')
    A(f'  s_lshr_b64 {s(sA,2)}, {s(sNON,2)}, 2')
    lds_set(F_TAG, s(sA))
    C('logit swap: flag word per workgroup; image q = 2*pair + role keeps kilobyte k at')
    C('region(q>>5) + (k<<15) + ((q&31 ^ comp(k)) << 10), which stays inside four memory channels')
    A(f'  s_lshl_b32 {s(sFA)}, s2, 8')
    A(f'  s_add_u32 {s(sFA)}, {s(sFA)}, {WS_FLAG}')
    A(f'  s_xor_b32 {s(sFS)}, {s(sFA)}, 1024')
    A(f'  s_lshr_b32 {s(sX)}, {s(sDEC)}, 3')
    A(f'  s_xor_b32 {s(sX)}, {s(sX)}, {s(sDEC)}')
    A(f'  s_lshr_b32 {s(sT)}, {s(sPB)}, 4')
    A(f'  s_lshr_b32 {s(sOF)}, {s(sT)}, 5')
    A(f'  s_lshl_b32 {s(sOF)}, {s(sOF)}, 21')
    A(f'  s_add_u32 {s(sOF)}, {s(sOF)}, {WS_IMG}')
    A(f'  s_and_b32 {s(sQD)}, {s(sT)}, 31')
    A(f'  s_add_u32 {s(sT)}, {s(sQD)}, {s(sRO)}')
    A(f'  s_lshl_b32 {s(sT)}, {s(sT)}, 10')
    A(f'  s_add_u32 {s(sME)}, {s(sOF)}, {s(sT)}')
    A(f'  s_xor_b32 {s(sPA)}, {s(sME)}, 1024')
    def pxor(k):
        h = k >> 2
        c = (h & 3) ^ (((h >> 2) & 1) * 17) ^ (((h >> 3) & 1) * 4)
        return (k << 15) | (c << 10)
    NW = NWU * 384 // 1024
    def reg(k): return hD + 4 * (k % 24)
    def export(lo, hi):
        for k in range(lo, hi): A(f'  ds_read_b128 {v(reg(k),4)}, {v(hO)} offset:{1024*k}')
        A('  s_waitcnt lgkmcnt(0)')
        for k in range(lo, hi):
            A(f'  s_xor_b32 {s(sT)}, {s(sME)}, {pxor(k)}')
            A(f'  buffer_store_dwordx4 {v(reg(k),4)}, {v(hO)}, {s(SWS,4)}, {s(sT)} offen sc1')
    def imp(lo, hi):
        for k in range(lo, hi):
            A(f'  s_xor_b32 {s(sT)}, {s(sPA)}, {pxor(k)}')
            A(f'  buffer_load_dwordx4 {v(reg(k),4)}, {v(hO)}, {s(SWS,4)}, {s(sT)} offen sc1')
        A('  s_waitcnt vmcnt(0)')
        for k in range(lo, hi): A(f'  ds_write_b128 {v(hO)}, {v(reg(k),4)} offset:{1024*k}')
    def cond(bit, tag, fn):
        A(f'  s_bitcmp0_b32 {s(sX)}, {bit}')
        A(f'  s_cbranch_scc1 L_h_{tag}')
        fn()
        A(f'L_h_{tag}:')
    def handshake(tag, level):
        A(f'  s_add_u32 {s(sA)}, {s(sNON)}, {level}')
        A(f'  v_mov_b32 {v(h2)}, 0')
        A('  s_waitcnt vmcnt(0)')
        A(f'  v_mov_b32 {v(hD)}, {s(sA)}')
        A(f'  v_mov_b32 {v(hD+1)}, {s(sNON+1)}')
        A('  s_mov_b64 exec, 1')
        A(f'  buffer_store_dwordx2 {v(hD,2)}, {v(h2)}, {s(SWS,4)}, {s(sFA)} offen sc1')
        A(f'  s_mov_b32 {s(sCNT)}, 0')
        A(f'L_h_flag{tag}:')
        A(f'  buffer_load_dwordx2 {v(hD+2,2)}, {v(h2)}, {s(SWS,4)}, {s(sFS)} offen sc1')
        A('  s_waitcnt vmcnt(0)')
        A(f'  v_readfirstlane_b32 {s(sB)}, {v(hD+2)}')
        A(f'  v_readfirstlane_b32 {s(sB+1)}, {v(hD+3)}')
        A(f'  s_sub_u32 {s(sB)}, {s(sB)}, {s(sA)}')
        A(f'  s_xor_b32 {s(sB+1)}, {s(sB+1)}, {s(sNON+1)}')
        A(f'  s_lshr_b32 {s(sB)}, {s(sB)}, 1')
        A(f'  s_or_b32 {s(sB)}, {s(sB)}, {s(sB+1)}')
        A(f'  s_cbranch_scc0 L_h_flag{tag}_done')
        bounded(f'L_h_flag{tag}_done', 10000)
        A('  s_sleep 8')
        A(f'  s_branch L_h_flag{tag}')
        A(f'L_h_flag{tag}_done:')
        A('  s_mov_b64 exec, -1')
    pg = (2, 0, 1) if kord else (0, 1, 2)
    checkpoints(64)
    wait_progress('a', 64, 4)
    stamp()
    export(0, NW)
    cond(pg[0], 'e0', lambda: export(NW, 12))
    cond(pg[1], 'e1', lambda: export(12, 24))
    handshake('a', 1)
    stamp()
    C('first units: slot f comes from the image of role f&1, slot (f&~1) + V class of that page')
    A(f'  s_bfe_u32 {s(sA)}, {s(sDEC)}, {hex(0x10003 + pg[0])}')
    A(f'  s_mul_i32 {s(sA)}, {s(sA)}, 384')
    A(f'  v_lshrrev_b32 {v(h1)}, 3, v0')
    for k in range(NW):
        A(f'  v_add_u32 {v(h2)}, {8 * k}, {v(h1)}')
        A(f'  v_mul_u32_u24 {v(h2)}, 21846, {v(h2)}')
        A(f'  v_bfe_u32 {v(h2)}, {v(h2)}, 16, 1')
        A(f'  v_mul_u32_u24 {v(h3)}, 384, {v(h2)}')
        A(f'  v_sub_u32 {v(h3)}, {v(hO)}, {v(h3)}')
        A(f'  v_add_u32 {v(h3)}, {s(sA)}, {v(h3)}')
        A(f'  v_add_u32 {v(h3)}, {1024 * k}, {v(h3)}')
        A(f'  v_add_u32 {v(h2)}, {s(sQD)}, {v(h2)}')
        A(f'  v_lshrrev_b32 {v(hZ)}, 12, {v(h3)}')
        A(f'  v_xor_b32 {v(h2)}, {v(h2)}, {v(hZ)}')
        A(f'  v_lshrrev_b32 {v(hZ)}, 10, {v(h3)}')
        A(f'  v_lshl_add_u32 {v(h2)}, {v(hZ)}, 5, {v(h2)}')
        A(f'  v_and_b32 {v(h3)}, 1023, {v(h3)}')
        A(f'  v_lshl_add_u32 {v(h2)}, {v(h2)}, 10, {v(h3)}')
        A(f'  buffer_load_dwordx4 {v(reg(k),4)}, {v(h2)}, {s(SWS,4)}, {s(sOF)} offen sc1')
    cond(pg[0], 'i0', lambda: imp(NW, 12))
    cond(pg[1], 'i1', lambda: imp(12, 24))
    A('  s_waitcnt vmcnt(0)')
    for k in range(NW): A(f'  ds_write_b128 {v(hO)}, {v(reg(k),4)} offset:{1024*k}')
    stamp()
    A(f'  s_bitcmp0_b32 {s(sX)}, {pg[2]}')
    A(f'  s_cselect_b32 {s(sT)}, 255, {32 * pg[2]}')
    lds_set(F_IMP, s(sT))
    checkpoints(NF)
    A(f'  s_bitcmp0_b32 {s(sX)}, {pg[2]}')
    A('  s_cbranch_scc1 L_h_all')
    wait_progress('b', NF, 4)
    export(24, 36)
    handshake('b', 2)
    imp(24, 36)
    lds_set(F_IMP, 255)
    A('L_h_all:')
    checkpoints(999)
    C('the last unit runs with the deep queue')
    wait_progress('t', 2 * NF - 2 * W, 4)
    A(f'  v_mov_b32 {v(hD)}, 255')
    A(f'  ds_write_b32 {v(hW)}, {v(hD)} offset:{F_BST - F_PRG}')
    A('  s_waitcnt lgkmcnt(0)')
    A('  s_branch L_fin' if stamps or tl else '  s_endpgm')

    C(f'check points every {step} units up to unit s{sUP}: lane w (mod 2) follows wave w. Arrival times of 16 workgroups go to ws;')
    C(f'{dly} units later the entries stamped inside this launch give the mean, and a late wave gets a catch-up limit in LDS')
    A('L_h_cp:')
    A(f'  s_cmp_gt_u32 {s(sCP)}, {s(sUP)}')
    A('  s_cbranch_scc0 L_h_cpgo')
    A(f'  s_setpc_b64 {s(sRET,2)}')
    A('L_h_cpgo:')
    A(f'  ds_read_b32 {v(hD)}, {v(hW)}')
    A('  s_waitcnt lgkmcnt(0)')
    A(f'  v_cmp_gt_u32 vcc, {s(sCP)}, {v(hD)}')
    A('  s_cmp_eq_u32 vcc_lo, 0')
    A('  s_cbranch_scc1 L_h_cpnext')
    A('L_h_first:')
    A('  s_sleep 2')
    A(f'  ds_read_b32 {v(hD)}, {v(hW)}')
    A('  s_waitcnt lgkmcnt(0)')
    A(f'  v_cmp_gt_u32 {s(sV0,2)}, {s(sCP)}, {v(hD)}')
    A(f'  s_cmp_eq_u32 {s(sV0)}, -1')
    A('  s_cbranch_scc1 L_h_first')
    A(f'  s_memrealtime {s(sA,2)}')
    wait_progress('m', s(sCP), 2)
    A(f'  s_memrealtime {s(sB,2)}')
    A(f'  v_mov_b32 {v(hT)}, {s(sA)}')
    A(f'  v_mov_b32 {v(hT+1)}, {s(sA+1)}')
    A(f'  s_mov_b64 exec, {s(sV0,2)}')
    A('  s_waitcnt lgkmcnt(0)')
    A(f'  v_mov_b32 {v(hT)}, {s(sB)}')
    A(f'  v_mov_b32 {v(hT+1)}, {s(sB+1)}')
    A('  s_mov_b64 exec, -1')
    A(f'  s_and_b32 {s(sT)}, s2, 0x78')
    A('  s_cbranch_scc1 L_h_np')
    A('  s_mov_b64 exec, 3')
    A(f'  buffer_store_dwordx2 {v(hT,2)}, {v(hP)}, {s(SWS,4)}, {s(sCA)} offen sc1')
    A('  s_mov_b64 exec, -1')
    A('L_h_np:')
    A(f'  s_add_u32 {s(sJ)}, {s(sCP)}, {dly}')
    wait_progress('c', s(sJ), 4)
    A(f'  buffer_load_dwordx2 {v(hD,2)}, {v(hQ)}, {s(SWS,4)}, {s(sCA)} offen')
    A(f'  v_mov_b32 {v(hD+2)}, {s(sT0+1)}')
    A('  s_waitcnt vmcnt(0)')
    A(f'  ds_read_b32 {v(hD+4)}, {v(hW)}')
    A(f'  v_subrev_co_u32 {v(hD)}, vcc, {s(sT0)}, {v(hD)}')
    A(f'  v_subb_co_u32 {v(hD+1)}, vcc, {v(hD+1)}, {v(hD+2)}, vcc')
    A(f'  v_lshrrev_b32 {v(hD+2)}, 24, {v(hD)}')
    A(f'  v_or_b32 {v(hD+1)}, {v(hD+1)}, {v(hD+2)}')
    A(f'  v_cmp_eq_u32 vcc, 0, {v(hD+1)}')
    A(f'  v_cndmask_b32 {v(hD)}, 0, {v(hD)}, vcc')
    A(f'  s_bcnt1_i32_b32 {s(sB)}, vcc_lo')
    for r in (8, 4, 2, 1):
        A(f'  v_add_u32_dpp {v(hD)}, {v(hD)}, {v(hD)} row_ror:{r} row_mask:0xf bank_mask:0xf')
    A(f'  v_readlane_b32 {s(sA)}, {v(hD)}, 0')
    A(f'  v_readlane_b32 {s(sT)}, {v(hD)}, 16')
    A(f'  v_subrev_u32 {v(hD)}, {s(sT0)}, {v(hT)}')
    A(f'  v_mul_lo_u32 {v(hD)}, {v(hD)}, {s(sB)}')
    A(f'  s_add_u32 {s(sA)}, {s(sA)}, {s(sT)}')
    A(f'  s_max_u32 {s(sB)}, {s(sB)}, 1')
    A(f'  v_subrev_u32 {v(hD)}, {s(sA)}, {v(hD)}')
    A(f'  v_cvt_f32_u32 {v(hD+1)}, {s(sB)}')
    A(f'  v_cvt_f32_i32 {v(hD)}, {v(hD)}')
    A(f'  v_rcp_f32 {v(hD+1)}, {v(hD+1)}')
    A(f'  v_mul_f32 {v(hD)}, {v(hD)}, {v(hD+1)}')
    A(f'  v_cvt_i32_f32 {v(hD)}, {v(hD)}')
    A('  s_waitcnt lgkmcnt(0)')
    A(f'  v_add_u32 {v(hD+4)}, {W}, {v(hD+4)}')
    C('subtract what the running catch-up gains between the check point and the first unit that sees the new limit')
    A(f'  v_min_u32 {v(hD+1)}, {v(hU)}, {v(hD+4)}')
    A(f'  v_subrev_u32 {v(hD+1)}, {s(sCP)}, {v(hD+1)}')
    A(f'  v_max_i32 {v(hD+1)}, 0, {v(hD+1)}')
    A(f'  v_lshrrev_b32 {v(hD+1)}, 1, {v(hD+1)}')
    A(f'  v_mul_u32_u24 {v(hD+1)}, {gain}, {v(hD+1)}')
    A(f'  v_sub_u32 {v(hD)}, {v(hD)}, {v(hD+1)}')
    A(f'  v_add_u32 {v(hD+1)}, {gain // 2 - dead}, {v(hD)}')
    A(f'  v_max_i32 {v(hD+1)}, 0, {v(hD+1)}')
    A(f'  v_min_i32 {v(hD+1)}, 2000, {v(hD+1)}')
    A(f'  v_mul_u32_u24 {v(hD+1)}, {65536 // gain}, {v(hD+1)}')
    A(f'  v_lshrrev_b32 {v(hD+1)}, 16, {v(hD+1)}')
    A(f'  v_cmp_ne_u32 vcc, 0, {v(hD+1)}')
    A(f'  v_lshl_add_u32 {v(hD+1)}, {v(hD+1)}, 1, {v(hD+4)}')
    A(f'  v_cndmask_b32 {v(hU)}, 0, {v(hD+1)}, vcc')
    A(f'  ds_write_b32 {v(hW)}, {v(hU)} offset:{F_BST - F_PRG}')
    A('L_h_cpnext:')
    A(f'  s_add_u32 {s(sCP)}, {s(sCP)}, {step}')
    A(f'  s_add_u32 {s(sCA)}, {s(sCA)}, 256')
    A('  s_branch L_h_cp')
    A('L_code_end:')
    body = pad(L)

    nva = (nv + 7) // 8 * 8
    out = HDR + f'; @launch grid=(256,1,1) block=({64*(W+1)},1,1) lds={lds}\n' + NOTES
    out += '.amdgcn_target "amdgcn-amd-amdhsa--gfx950"\n.text\n'
    out += f'.globl {NAME}\n.p2align 8\n.type {NAME},@function\n'
    out += '\n'.join(body) + '\n'
    out += f'''.section .rodata,"a"
.p2align 6
.amdhsa_kernel {NAME}
  .amdhsa_next_free_vgpr {nva}
  .amdhsa_next_free_sgpr 102
  .amdhsa_accum_offset {nva}
  .amdhsa_group_segment_fixed_size 0
  .amdhsa_kernarg_size 80
  .amdhsa_user_sgpr_count 2
  .amdhsa_user_sgpr_kernarg_segment_ptr 1
  .amdhsa_system_sgpr_workgroup_id_x 1
  .amdhsa_float_denorm_mode_32 3
.end_amdhsa_kernel
'''
    return out

if __name__ == '__main__':
    kw = {}
    for x in sys.argv[2:]:
        k, val = x.split('=')
        kw[k] = int(val)
    open(sys.argv[1], 'w').write(gen(**kw))
```

```python
import sys, os
sys.path.insert(0, os.path.dirname(os.path.abspath(__file__)))
from asmlib import pad
NAME = 'standalone__kv_cache_quant_int4_int2_kv_with_per_channel_or_per_token_scales__sampling_kernel'
TOTAL = 256 * 4096 * 768
PIECE = 1152
REC = 3 * PIECE
WS_REC = 1 << 20
WS_CP = 7 << 20
WS_FLAG = (7 << 20) + (1 << 16)
WS_IMG = 8 << 20
WS_END = WS_IMG + (16 << 20)
IMG = 96 * 384
OOB = 0x7ffffff0
HDR = open(os.path.join(os.path.dirname(os.path.abspath(__file__)), 'header.txt')).read()
assert all(((32 * c + 1) * 21846) >> 16 == (32 * c + 1) // 3 for c in range(25))
assert all((c * 43) >> 8 == c // 6 for c in range(24))
assert all((x * 21846) >> 16 == x // 3 for x in range(100))

NOTES = """\
"""

class Alloc:
    def __init__(self, start): self.n = start
    def __call__(self, k, align=1):
        self.n = (self.n + align - 1) // align * align
        r = self.n; self.n += k
        return r

def v(r, k=1): return f'v{r}' if k == 1 else f'v[{r}:{r+k-1}]'
def s(r, k=1): return f's{r}' if k == 1 else f's[{r}:{r+k-1}]'

def merge(main, side):
    out = []; side = list(side)
    for m in main:
        out.append(m)
        if side: out.append(side.pop(0))
    return out + side

def gen(DN=10, D=15, bev=3, NWU=8, NS=3, NV=8, pfw=16, PSK=17, gain=28, dly=4, dead=0, cp0=12, step=8, last=186,
        force=-1, stamps=0, tl=0, diagpad=0, diagat=-1, kord=1):
    W, U, NST, NF, PSV = 2, 2, 33, 96, 3
    R = 11 * U
    SW = NST - D
    assert DN <= D < R and NWU % 8 == 0 and PSV < SW and 3 <= PSK < SW
    L = []
    A = L.append
    C = lambda t: L.append('; ' + t)
    va = Alloc(1)
    DUP = va(1); DOWN = va(1); DCON = va(1)
    RING = va(4 * R, 4); VO = va(4)
    ICV = va(1); TU = va(1); VVS = va(1); VL1 = va(1); VL2 = va(1); VBP = va(1); VFL = va(1); VST = va(1); VPR = va(1)
    VOOB = va(1); VBS = va(1)
    T = va(4, 2); ZN = va(1); SN = va(1); ZC = va(1); SC = va(1); ZS = va(2, 2)
    LG = va(6, 4); ACC = va(12, 4); M = va(1); NB = va(2, 2); LS = NB + 1
    X0 = va(2, 2); X1 = X0 + 1; AL = va(1); ALQ = va(1); E = va(11); PP = va(6); TL = va(1)
    base = va.n
    QB = va(6, 4); QN = va(6, 2); KSR = va(6, 2); KZR = va(6, 2); KS = va(12, 2); KZ = va(12, 2); KA = va(6, 4); SD = va(4, 4); S = va(2, 2)
    IUP = va(1); IOWN = va(1); ICON = va(1); VKS0 = va(1); VKS = va(1); VQ = va(1); VNI = va(1)
    kend = va.n
    va.n = base
    AJ = va(16, 4); AK = va(8, 2); TV = va(12, 2); BV = va(48, 4)
    nv = max(va.n, kend)
    sRO, sPB = 4, 5
    SK, SV, SI, SKS, SKZ, SVS, SVZ, SQ, SWS = 8, 12, 16, 20, 24, 28, 32, 36, 40
    PT = 44
    sOUT, sL0, sL10, sM0, sM10, sLOW = 46, 48, 50, 52, 54, 56
    sCUR, sNXT, sSO, s768, sF, sMSK, sL2E, sTL, sSCL, sT = 60, 61, 62, 63, 64, 65, 66, 67, 68, 70
    sMJ = 72
    sDBG, sWS = 80, 82
    sQ3, sC, sQC, sMISS, sHC, sHN, sDIV, sSH = 84, 85, 86, 87, 88, 89, 90, 91
    sBIG, sSM = 92, 94
    sDEC, sG, sGATE = 96, 97, 99
    SEG = W * 3072 + W * 32
    LDS_ACC = IMG
    LDS_F = LDS_ACC + 4 * SEG
    F_DEC, F_IMP, F_PRG, F_BST, F_END = LDS_F, LDS_F + 4, LDS_F + 16, LDS_F + 24, LDS_F + 32
    lds = 62464
    assert LDS_F + 64 <= lds and F_END % 16 == 0

    A(f'{NAME}:')
    A('  s_cmp_ge_u32 s2, 256')
    A('  s_cbranch_scc1 L_end')
    A(f'  s_load_dwordx16 {s(PT,16)}, s[0:1], 0')
    A(f'  s_load_dwordx4 {s(sDBG,4)}, s[0:1], 64')
    if stamps or diagpad: A('  s_memrealtime s[6:7]')
    C('s3 = wave, s4 = role in the pair, s5 = 32 * pair (first block of the first page)')
    A('  v_lshrrev_b32 v1, 6, v0')
    A('  v_and_b32 v0, 63, v0')
    A('  v_readfirstlane_b32 s3, v1')
    A(f'  s_bfe_u32 {s(sRO)}, s2, 0x10002')
    A(f'  s_lshr_b32 {s(sPB)}, s2, 3')
    A(f'  s_lshl_b32 {s(sPB)}, {s(sPB)}, 2')
    A(f'  s_and_b32 {s(sT)}, s2, 3')
    A(f'  s_add_u32 {s(sPB)}, {s(sPB)}, {s(sT)}')
    A(f'  s_lshl_b32 {s(sPB)}, {s(sPB)}, 5')
    SRDS = ((SKS, PT + 6, 256 * 24576), (SKZ, PT + 8, 256 * 24576), (SVS, PT + 10, 256 * 8192), (SVZ, PT + 12, 256 * 8192),
            (SK, PT + 2, TOTAL), (SQ, PT, 256 * 1536), (SI, PT + 2, TOTAL), (SV, PT + 4, TOTAL), (SWS, sWS, WS_END))
    for srd, p, nb in SRDS:
        A(f'  s_mov_b32 {s(srd+2)}, {nb}')
        A(f'  s_mov_b32 {s(srd+3)}, 0x20000')
    def make_srds(lo, hi):
        for srd, p, nb in SRDS[lo:hi]:
            A(f'  s_mov_b32 {s(srd)}, {s(p)}')
            A(f'  s_and_b32 {s(srd+1)}, {s(p+1)}, 0xffff')
    A(f'  s_cmp_eq_u32 s3, {W}')
    A('  s_cbranch_scc1 L_helper')

    C('================= streaming waves')
    cls, a, g, n = T, T + 1, T + 2, T + 3
    A(f'  v_and_b32 {v(cls)}, 3, v0')
    A(f'  v_bfe_u32 {v(a)}, v0, 2, 2')
    A(f'  v_lshrrev_b32 {v(g)}, 4, v0')
    A(f'  v_and_b32 {v(n)}, 15, v0')
    def stream_consts(x, up, own, con, lanepart):
        A(f'  v_and_b32 {v(own)}, 2, {v(x)}')
        A(f'  v_lshlrev_b32 {v(up)}, 5, {v(own)}')
        A(f'  v_add_u32 {v(up)}, 129, {v(up)}')
        A(f'  v_and_b32 {v(X1)}, 1, {v(x)}')
        A(f'  v_lshl_add_u32 {v(own)}, {v(X1)}, 2, {v(own)}')
        A(f'  v_mul_u32_u24 {v(X1)}, {43 * 768}, {v(X1)}')
        A(f'  v_add_u32 {v(con)}, {v(lanepart)}, {v(X1)}')
        A(f'  v_subrev_u32 {v(con)}, {43 * 768}, {v(con)}')
    A(f'  v_lshlrev_b32 {v(X0)}, 4, {v(cls)}')
    A(f'  v_lshl_add_u32 {v(X0)}, {v(g)}, 6, {v(X0)}')
    A(f'  v_lshrrev_b32 {v(VKS0)}, 1, {v(X0)}')
    stream_consts(a, IUP, IOWN, ICON, X0)
    A(f'  v_mul_u32_u24 {v(X1)}, 384, {v(a)}')
    A(f'  v_add_u32 {v(VQ)}, {v(X1)}, {v(VKS0)}')
    A(f'  v_mov_b32 {v(VOOB)}, {OOB}')
    A(f'  s_mov_b32 {s(sDIV)}, 0xaaaaaaab')
    A(f'  s_mov_b32 {s(sSH)}, 0x492492')
    A(f'  s_movk_i32 {s(s768)}, 768')
    def slot(k): return RING + 4 * (k % R)
    def main_load(k, srd, so):
        ss, i = divmod(k % NST, 3)
        r, k0 = (0, 0) if ss == 0 else (1, 1) if ss <= 5 else (2, 6) if ss <= 9 else (3, 10)
        return f'  buffer_load_dwordx4 {v(slot(k),4)}, {v(VO+r)}, {s(srd,4)}, {s(so)} offen offset:{768*(ss-k0) + 256*i} nt'
    def kscale_loads():
        A(f'  s_mul_i32 {s(sSO)}, {s(sQ3)}, 1536')
        for i in range(3):
            A(f'  buffer_load_dwordx2 {v(KSR+2*i,2)}, {v(VKS)}, {s(SKS,4)}, {s(sSO)} offen offset:{128*i}')
            A(f'  buffer_load_dwordx2 {v(KZR+2*i,2)}, {v(VKS)}, {s(SKZ,4)}, {s(sSO)} offen offset:{128*i}')
    def vscale_loads():
        A(f'  s_lshl_b32 {s(sSO)}, {s(sQ3)}, 9')
        A(f'  v_lshl_add_u32 {v(VVS)}, {v(TU)}, 1, {v(ICV)}')
        A(f'  buffer_load_short_d16_hi {v(ZN)}, {v(VVS)}, {s(SVZ,4)}, {s(sSO)} offen')
        A(f'  buffer_load_short_d16_hi {v(SN)}, {v(VVS)}, {s(SVS,4)}, {s(sSO)} offen')
    def q_loads():
        A(f'  s_mul_i32 {s(sT)}, {s(sHN)}, 1536')
        for i in range(3): A(f'  buffer_load_dwordx2 {v(QN+2*i,2)}, {v(VQ)}, {s(SQ,4)}, {s(sT)} offen offset:{128*i}')
    def short_masks(own, m0, m10, low):
        A(f'  v_add_u32 {v(X0)}, {s(sC)}, {v(own)}')
        A(f'  v_lshrrev_b32 {v(X1)}, {v(X0)}, {s(sSH)}')
        A(f'  v_and_b32 {v(X1)}, 1, {v(X1)}')
        A(f'  v_cmp_eq_u32 {s(m10,2)}, 1, {v(X1)}')
        A(f'  s_and_b64 {s(m0,2)}, {s(m10,2)}, {s(low,2)}')
        A(f'  s_andn2_b64 {s(m10,2)}, {s(m10,2)}, {s(low,2)}')
    def map_unit(f, isv):
        if kord and not isv:
            A(f'  s_lshr_b32 {s(sT+1)}, {s(f)}, 4')
            A(f'  s_andn2_b32 {s(sT+1)}, {s(sT+1)}, 1')
            A(f'  s_lshr_b32 {s(sT+1)}, 0x12, {s(sT+1)}')
            A(f'  s_and_b32 {s(sT+1)}, {s(sT+1)}, 3')
        else:
            A(f'  s_lshr_b32 {s(sT+1)}, {s(f)}, 5')
        A(f'  s_lshr_b32 {s(sC)}, {s(sDEC)}, {s(sT+1)}')
        if isv:
            A(f'  s_bfe_u32 {s(sC)}, {s(sC)}, 0x10003')
            A(f'  s_and_b32 {s(sT)}, {s(f)}, 31')
        else:
            A(f'  s_andn2_b32 {s(sT)}, {s(f)}, 1')
            A(f'  s_or_b32 {s(sT)}, {s(sT)}, {s(sRO)}')
            A(f'  s_cmp_lt_u32 {s(f)}, {NWU}')
            A(f'  s_cselect_b32 {s(sT)}, {s(sT)}, {s(f)}')
            A(f'  s_cselect_b32 {s(sC)}, {s(f)}, {s(sC)}')
            A(f'  s_and_b32 {s(sC)}, {s(sC)}, 1')
            A(f'  s_and_b32 {s(sT)}, {s(sT)}, 31')
        A(f'  s_lshl_b32 {s(sT+1)}, {s(sT+1)}, 12')
        A(f'  s_add_u32 {s(sT)}, {s(sT)}, {s(sPB)}')
        A(f'  s_add_u32 {s(sT)}, {s(sT)}, {s(sT+1)}')
        A(f'  s_mul_hi_u32 {s(sQ3)}, {s(sT)}, {s(sDIV)}')
        A(f'  s_lshr_b32 {s(sQ3)}, {s(sQ3)}, 1')
        A(f'  s_mul_i32 {s(sT+1)}, {s(sQ3)}, 3')
        A(f'  s_sub_u32 {s(sT)}, {s(sT)}, {s(sT+1)}')
        A(f'  s_lshl3_add_u32 {s(sC)}, {s(sT)}, {s(sC)}')
        A(f'  s_mul_i32 {s(sNXT)}, {s(sQ3)}, 196608')
        A(f'  s_lshr_b32 {s(sHN)}, {s(sQ3)}, 4')
        A(f'  s_lshl_b32 {s(sT)}, {s(sC)}, 5')
        A(f'  v_add_u32 {v(TU)}, {s(sT)}, {v(DUP if isv else IUP)}')
        A(f'  v_mul_u32_u24 {v(TU)}, 21846, {v(TU)}')
        A(f'  v_lshrrev_b32 {v(TU)}, 16, {v(TU)}')
        short_masks(DOWN if isv else IOWN, sM0, sM10, sLOW + 2 * isv)
        if not isv:
            A(f'  v_mul_u32_u24 {v(X0)}, 43, {v(X0)}')
            A(f'  v_lshrrev_b32 {v(X0)}, 8, {v(X0)}')
            A(f'  v_mul_u32_u24 {v(X0)}, 384, {v(X0)}')
            A(f'  v_add_u32 {v(VKS)}, {v(X0)}, {v(VKS0)}')
    def offsets(con):
        A(f'  v_mad_u32_u24 {v(VO)}, {v(TU)}, {s(s768)}, {v(con)}')
        A(f'  v_add_u32 {v(VO+1)}, 768, {v(VO)}')
        A(f'  v_add_u32 {v(VO+2)}, {6 * 768}, {v(VO)}')
        A(f'  v_add_u32 {v(VO+3)}, {10 * 768}, {v(VO)}')
        A(f'  v_cndmask_b32 {v(VO)}, {v(VO)}, {v(VOOB)}, {s(sM0,2)}')
        A(f'  v_cndmask_b32 {v(VO+3)}, {v(VO+3)}, {v(VOOB)}, {s(sM10,2)}')
    def stamp():
        if tl:
            A(f'  s_memrealtime {s(sT,2)}')
            A('  s_waitcnt lgkmcnt(0)')
            A(f'  s_min_u32 m0, {s(sTL)}, 63')
            A(f'  v_writelane_b32 {v(TL)}, {s(sT)}, m0')
            A(f'  s_add_u32 {s(sTL)}, {s(sTL)}, 1')
    def reset_state():
        for k in range(12): A(f'  v_mov_b32 {v(ACC+k)}, 0')
        A(f'  v_mov_b32 {v(M)}, 0xff800000')
        A(f'  v_mov_b32 {v(NB)}, 0x7f800000')
        A(f'  v_mov_b32 {v(LS)}, 0')
    A(f'  s_mov_b32 {s(sF)}, s3')
    A(f'  s_mov_b32 {s(sGATE)}, {NWU}')
    A(f'  s_mov_b32 {s(sDEC)}, 0')
    C('one bulk pass pulls the scale/zero arrays into the memory-side cache (1/512 per wave); later reads of them stay off DRAM')
    A(f'  v_lshlrev_b32 {v(ZC)}, 4, v0')
    sPK, sPV = sQC, sHC
    A(f'  s_lshl1_add_u32 {s(sT)}, s2, s3')
    A(f'  s_mul_i32 {s(sPV)}, {s(sT)}, {8192 // W}')
    A(f'  s_mul_i32 {s(sPK)}, {s(sT)}, {24576 // W}')
    line = lambda srd, so, k: f'  buffer_load_dwordx4 {v(ACC,4)}, {v(ZC)}, {s(srd,4)}, {s(so)} offen offset:{(k % 4) * 1024}'
    pfl = []
    for k in range(24 // W):
        if k % 4 == 0 and k: pfl.append(f'  s_add_u32 {s(sPK)}, {s(sPK)}, 4096')
        pfl += [line(SKS, sPK, k), line(SKZ, sPK, k)]
        if k < 8 // W: pfl += [line(SVS, sPV, k), line(SVZ, sPV, k)]
    nissued = [0]
    def issue_pf(cnt):
        while pfl and cnt > 0:
            x = pfl.pop(0)
            if 'buffer_load' in x:
                if nissued[0] >= pfw: A(f'  s_waitcnt vmcnt({pfw - 1})')
                nissued[0] += 1; cnt -= 1
            A(x)
    A('  s_waitcnt lgkmcnt(0)')
    make_srds(0, 4)
    issue_pf(8)
    make_srds(4, 9)
    A(f'  s_mov_b64 {s(sOUT,2)}, {s(PT+14,2)}')
    A(f'  s_mov_b32 {s(sLOW)}, 0x0f0f0f0f')
    A(f'  s_mov_b32 {s(sLOW+1)}, 0x0f0f0f0f')
    A(f'  s_mov_b32 {s(sLOW+2)}, 0xffff')
    A(f'  s_mov_b32 {s(sLOW+3)}, 0xffff')
    map_unit(sF, 0)
    offsets(ICON)
    A(f'  s_mov_b32 {s(sCUR)}, {s(sNXT)}')
    q_loads()
    A(main_load(0, SK, sCUR))
    issue_pf(pfw - nissued[0])
    A('  s_barrier')
    A('  s_mov_b64 vcc, 0')
    A(f'  v_lshlrev_b32 {v(X0)}, 4, {v(n)}')
    stream_consts(g, DUP, DOWN, DCON, X0)
    A(f'  v_and_b32 {v(X1)}, 1, {v(g)}')
    A(f'  v_mul_u32_u24 {v(X1)}, 86, {v(X1)}')
    A(f'  v_lshl_add_u32 {v(ICV)}, {v(n)}, 1, {v(X1)}')
    A(f'  v_subrev_u32 {v(ICV)}, 86, {v(ICV)}')
    A(f'  v_lshlrev_b32 {v(VBP)}, 4, {v(g)}')
    A(f'  v_lshrrev_b32 {v(X0)}, 2, v0')
    A(f'  s_mul_i32 {s(sT)}, s3, 384')
    A(f'  v_lshl_add_u32 {v(VL1)}, {v(X0)}, 4, {s(sT)}')
    A(f'  v_lshl_add_u32 {v(VL2)}, {v(X0)}, 3, {s(sT)}')
    A(f'  s_mul_i32 {s(sT)}, s3, 3072')
    A(f'  s_add_u32 {s(sT)}, {s(sT)}, {LDS_ACC}')
    A(f'  v_lshl_add_u32 {v(VFL)}, v0, 4, {s(sT)}')
    A(f'  s_lshl_b32 {s(sT)}, s3, 5')
    A(f'  s_add_u32 {s(sT)}, {s(sT)}, {LDS_ACC + W * 3072}')
    A(f'  v_lshl_add_u32 {v(VST)}, {v(a)}, 3, {s(sT)}')
    A(f'  s_lshl2_add_u32 {s(sT)}, s3, {F_PRG}')
    A(f'  v_mov_b32 {v(VPR)}, {s(sT)}')
    A(f'  v_mov_b32 {v(ZN)}, 0')
    A(f'  v_mov_b32 {v(SN)}, 0')
    A(f'  v_mov_b32 {v(VNI)}, 0xff800000')
    A(f'  v_mov_b32 {v(AL)}, 1')
    A(f'  s_mov_b32 {s(sMSK)}, 0xffff0000')
    A(f'  s_mov_b32 {s(sL2E)}, 0x3fb8aa3b')
    for h in range(2):
        A(f'  s_mov_b32 {s(sSCL+h)}, {hex(0x3d93cd3a + (22 << 23))}')
        A(f'  s_mov_b32 {s(sBIG+h)}, 0x7f000000')
        A(f'  s_mov_b32 {s(sSM+h)}, {hex((127 - 22) << 23)}')
    for j in range(4):
        A(f'  s_mov_b32 {s(sMJ+2*j)}, {hex(0x11111111 << j)}')
        A(f'  s_mov_b32 {s(sMJ+2*j+1)}, {hex(0x11111111 << j)}')
    if tl:
        A(f'  s_mov_b32 {s(sTL)}, 0')
        A(f'  v_mov_b32 {v(TL)}, 0')
    issue_pf(99)
    A(f'  s_mov_b32 {s(sHC)}, {s(sHN)}')
    kscale_loads()
    for k in range(1, D):
        A(f'  s_waitcnt vmcnt({max(DN, k) - 1 + 6})')
        A(main_load(k, SK, sCUR))
    A(f'  s_waitcnt vmcnt({D - 1})')
    A(f'  ds_write_b32 {v(VPR)}, {v(AL)}')

    def wait_step(k, nsmall, tag, ps):
        cnt = lambda d: d - 1 + (nsmall if k - d <= ps < k else 0)
        A(f'  s_waitcnt vmcnt({cnt(D)})')
        if k % bev == 0:
            A(f'  s_cbranch_vccnz L_{tag}')
            A(f'  s_waitcnt vmcnt({cnt(DN)})')
            A(f'L_{tag}:')
    def mode(k):
        if k == 0: A(f'  ds_read_b32 {v(VBS)}, {v(VPR)} offset:{F_BST - F_PRG}')
        if k == 1:
            A('  s_waitcnt lgkmcnt(0)')
            A(f'  v_cmp_lt_u32 vcc, {s(sG)}, {v(VBS)}')
    def dequant(X, src, z, sc, zmod, smod):
        r = [f'  v_pk_fma_f32 {v(X+2*h,2)}, {v(src+2*h,2)}, {s(sBIG,2)}, {z[h]} {zmod}neg_lo:[0,0,1] neg_hi:[0,0,1]' for h in range(2)]
        r2 = [f'  v_cvt_pk_bf16_f32 {v(X+j)}, 0, {v(X+j)}' for j in range(4)]
        r2 += [f'  v_pk_mul_f32 {v(X+2*h,2)}, {v(X+2*h,2)}, {sc[h]} {smod}'.rstrip() for h in range(2)]
        return r, r2
    def kreduce(ss):
        d = S + (ss & 1)
        q = lambda j: f'quad_perm:[{j},{j},{j},{j}] row_mask:0xf bank_mask:0xf'
        r = [f'  v_mov_b32_dpp {v(X0)}, {v(SD)} {q(0)}',
             f'  v_mov_b32_dpp {v(X1)}, {v(SD+2)} {q(2)}',
             f'  v_add_f32_dpp {v(X0)}, {v(SD+1)}, {v(X0)} {q(1)}',
             f'  v_add_f32_dpp {v(X1)}, {v(SD+3)}, {v(X1)} {q(3)}',
             f'  v_add_f32 {v(d)}, {v(X0)}, {v(X1)}']
        if ss == 0: r.append(f'  v_cndmask_b32 {v(d)}, {v(d)}, {v(VNI)}, {s(sL0,2)}')
        if ss == 10: r.append(f'  v_cndmask_b32 {v(d)}, {v(d)}, {v(VNI)}, {s(sL10,2)}')
        if ss & 1 or ss == 10:
            r += [f'  v_cvt_pk_bf16_f32 {v(S)}, 0, {v(S)}',
                  f'  v_cvt_pk_bf16_f32 {v(S+1)}, 0, {v(S+1)}',
                  f'  v_pk_mul_f32 {v(S,2)}, {v(S,2)}, {s(sSCL,2)}',
                  f'  v_cvt_pk_bf16_f32 {v(LG+(ss>>1))}, {v(S)}, {v(S+1)}']
        return r
    def lds_word(dst, addr):
        A(f'  v_mov_b32 {v(X0)}, {addr}')
        A(f'  ds_read_b32 {v(X0)}, {v(X0)}')
        A('  s_waitcnt lgkmcnt(0)')
        A(f'  v_readfirstlane_b32 {s(dst)}, {v(X0)}')

    mf32 = f'  v_mfma_f32_16x16x32_bf16 {v(SD,4)}, {v(KA,4)}, {v(QB,4)}, 0'
    mf16 = f'  v_mfma_f32_16x16x16_bf16 {v(SD,4)}, {v(KA+4,2)}, {v(QB+4,2)}, {v(SD,4)}'
    def diag_mark(tag, base_):
        if diagat < 0: return
        A(f'  s_and_b32 {s(sT)}, {s(sF)}, -4')
        A(f'  s_cmp_lg_u32 {s(sT)}, {diagat - base_}')
        A(f'  s_cbranch_scc1 L_dm{tag}')
        A('  s_memrealtime s[6:7]')
        A('  s_waitcnt lgkmcnt(0)')
        A(f'L_dm{tag}:')
    def k_unit(u):
        o = NST * u
        if u == 0: diag_mark('k', 0)
        if u == 0: stamp()
        short_masks(DOWN, sL0, sL10, sLOW + 2)
        A(f'  s_mov_b32 {s(sG)}, {s(sF)}')
        A(f'  s_add_u32 {s(sF)}, {s(sF)}, {W}')
        for k in range(NST):
            ss, i = divmod(k, 3)
            mode(k)
            if k == SW:
                if u == U - 1:
                    C('the last K unit prefetches the first V unit')
                    A(f'  s_cmp_lt_u32 {s(sF)}, {NF}')
                    A('  s_cbranch_scc1 L_k_keep')
                    map_unit(3, 1)
                    A(f'  s_mov_b32 {s(SI)}, {s(SV)}')
                    A(f'  s_mov_b32 {s(SI+1)}, {s(SV+1)}')
                    vscale_loads()
                    A(f'  v_mov_b32 {v(ICON)}, {v(DCON)}')
                    A('L_k_keep:')
                offsets(ICON)
            wait_step(k, 6, f'kw{u}_{k}', PSK)
            A(main_load(o + k + D, SK, sCUR) if k < SW else main_load(o + k + D, SI, sNXT))
            if i == 2: A(mf32)
            if i == 0 and ss > 0: A(mf16)
            if ss == 0:
                for raw, dst in ((KZR, KZ), (KSR, KS)):
                    for h in range(2):
                        A(f'  v_lshlrev_b32 {v(dst+4*i+2*h)}, 16, {v(raw+2*i+h)}')
                        A(f'  v_and_b32 {v(dst+4*i+2*h+1)}, {s(sMSK)}, {v(raw+2*i+h)}')
                for h in range(2):
                    A(f'  v_pk_mul_f32 {v(KZ+4*i+2*h,2)}, {v(KZ+4*i+2*h,2)}, {s(sSM,2)}')
                    A(f'  v_mov_b32 {v(QB+2*i+h)}, {v(QN+2*i+h)}')
            c, rest = dequant(T, slot(o + k), (v(KZ+4*i,2), v(KZ+4*i+2,2)), (v(KS+4*i,2), v(KS+4*i+2,2)), '', '')
            for x in c: A(x)
            if k == PSK:
                C('next unit: class (needs the vote once), scales, q on a head change')
                A(f'  s_cmp_lt_u32 {s(sF)}, {s(sGATE)}')
                A(f'  s_cbranch_scc1 L_k_known{u}')
                A(f'L_k_spin{u}:')
                lds_word(sDEC, F_DEC)
                A(f'  s_cmp_eq_u32 {s(sDEC)}, 0')
                A(f'  s_cbranch_scc1 L_k_spin{u}')
                A(f'  s_mov_b32 {s(sGATE)}, -1')
                A(f'L_k_known{u}:')
                map_unit(sF, 0)
                A(f'  s_cmp_eq_u32 {s(sHN)}, {s(sHC)}')
                A(f'  s_cbranch_scc1 L_k_sameq{u}')
                q_loads()
                A(f'  s_mov_b32 {s(sHC)}, {s(sHN)}')
                A(f'L_k_sameq{u}:')
                kscale_loads()
            rest += [f'  v_cvt_pk_bf16_f32 {v(KA+2*i)}, {v(T)}, {v(T+1)}',
                     f'  v_cvt_pk_bf16_f32 {v(KA+2*i+1)}, {v(T+2)}, {v(T+3)}']
            if i == 1 and ss > 0:
                r = kreduce(ss - 1)
                rest = r[:2] + rest[:2] + r[2:4] + rest[2:4] + r[4:5] + rest[4:]
                pend = r[5:]
            elif i == 2 and ss > 0:
                rest = merge(rest, pend)
            for x in rest: A(x)
        A(f'  s_mov_b32 {s(sCUR)}, {s(sNXT)}')
        A(f'  v_mov_b32 {v(AL)}, {s(sF)}')
        A(mf16)
        A(f'  ds_write_b128 {v(VL1)}, {v(LG,4)}')
        A(f'  v_add_u32 {v(VL1)}, {384 * W}, {v(VL1)}')
        for x in kreduce(10): A(x)
        A(f'  ds_write_b64 {v(VL2)}, {v(LG+4,2)} offset:256')
        A(f'  ds_write_b32 {v(VPR)}, {v(AL)}')
        A(f'  v_add_u32 {v(VL2)}, {384 * W}, {v(VL2)}')
    C('---------------- K loop: two units per trip')
    A('L_k:')
    for u in range(U): k_unit(u)
    A(f'  s_cmp_lt_u32 {s(sF)}, {NF}')
    A('  s_cbranch_scc1 L_k')

    def flush():
        C('park the partial result of the finished head segment in slot 2*(head&1) + (segment ends the head)')
        A(f'  s_and_b32 {s(sT)}, {s(sQC)}, 15')
        A(f'  s_cmp_ge_u32 {s(sT)}, 12')
        A(f'  s_cselect_b32 {s(sT)}, {SEG}, 0')
        A(f'  s_bitcmp1_b32 {s(sQC)}, 4')
        A(f'  s_cselect_b32 {s(sT+1)}, {2 * SEG}, 0')
        A(f'  s_add_u32 {s(sT)}, {s(sT)}, {s(sT+1)}')
        A(f'  v_mov_b32 {v(X1)}, {v(LS)}')
        A(f'  v_add_u32 {v(X0)}, {s(sT)}, {v(VFL)}')
        A(f'  v_add_u32 {v(ALQ)}, {s(sT)}, {v(VST)}')
        A(f'  v_permlane32_swap_b32 {v(LS)}, {v(X1)}')
        A(f'  v_add_f32 {v(LS)}, {v(LS)}, {v(X1)}')
        A(f'  v_mov_b32 {v(X1)}, {v(LS)}')
        for i in range(3):
            A(f'  ds_write_b128 {v(X0)}, {v(ACC+4*i,4)} offset:{1024*i}')
        A(f'  v_permlane16_swap_b32 {v(LS)}, {v(X1)}')
        A(f'  v_add_f32 {v(LS)}, {v(LS)}, {v(X1)}')
        A(f'  ds_write_b64 {v(ALQ)}, {v(NB,2)}')
    def import_gate(tag):
        A(f'  s_cmp_lt_u32 {s(sF)}, {s(sGATE)}')
        A(f'  s_cbranch_scc1 L_{tag}_ok')
        A(f'L_{tag}_spin:')
        lds_word(sGATE, F_IMP)
        A(f'  s_cmp_lt_u32 {s(sF)}, {s(sGATE)}')
        A(f'  s_cbranch_scc0 L_{tag}_spin')
        A(f'L_{tag}_ok:')

    C('---------------- V loop: two units per trip')
    A(f'  v_subrev_u32 {v(VL1)}, {IMG - 32 * 384 * kord}, {v(VL1)}')
    A(f'  v_subrev_u32 {v(VL2)}, {IMG - 32 * 384 * kord}, {v(VL2)}')
    A(f'  s_mov_b32 {s(sF)}, s3')
    A(f'  s_mov_b32 {s(sHC)}, {s(sHN)}')
    A(f'  s_mov_b32 {s(sGATE)}, 0')
    A(f'  s_mov_b32 {s(SQ)}, {s(sOUT)}')
    A(f'  s_and_b32 {s(SQ+1)}, {s(sOUT+1)}, 0xffff')
    import_gate('v0')
    A(f'  ds_read_b128 {v(LG,4)}, {v(VL1)}')
    A(f'  ds_read_b64 {v(LG+4,2)}, {v(VL2)} offset:256')
    reset_state()
    def v_unit(u):
        o = NST * u
        A(f'L_v{u}:')
        if u == 0: diag_mark('v', NF)
        if u == 0: stamp()
        A(f'  s_add_u32 {s(sG)}, {s(sF)}, {NF}')
        A(f'  v_mov_b32 {v(AL)}, {s(sG)}')
        A(f'  s_mov_b32 {s(sQC)}, {s(sQ3)}')
        A(f'  ds_write_b32 {v(VPR)}, {v(AL)}')
        A(f'  s_add_u32 {s(sF)}, {s(sF)}, {W}')
        import_gate(f'v1{u}')
        map_unit(sF, 1)
        A(f'  s_cmp_lt_u32 {s(sF)}, {NF}')
        A(f'  s_cselect_b32 {s(sNXT)}, {s(sNXT)}, {TOTAL}')
        stp = 384 * W
        if kord and u == U - 1:
            stp = s(sL0)
            A(f'  s_lshr_b32 {s(sT)}, {s(sF)}, 1')
            A(f'  s_cmp_eq_u32 {s(sT)}, 32')
            A(f'  s_cselect_b32 {stp}, {384 * W - IMG}, {s(s768)}')
        prep = []
        for k in range(11):
            prep.append(f'  v_lshlrev_b32 {v(E+k)}, 16, {v(LG+k//2)}' if k % 2 == 0 else f'  v_and_b32 {v(E+k)}, {s(sMSK)}, {v(LG+k//2)}')
        prep += [f'  v_add_u32 {v(VL1)}, {stp}, {v(VL1)}',
                 f'  v_add_u32 {v(VL2)}, {stp}, {v(VL2)}',
                 f'  v_max3_f32 {v(X0)}, {v(E)}, {v(E+1)}, {v(E+2)}',
                 f'  ds_read_b128 {v(LG,4)}, {v(VL1)}',
                 f'  ds_read_b64 {v(LG+4,2)}, {v(VL2)} offset:256',
                 f'  v_max3_f32 {v(X1)}, {v(E+3)}, {v(E+4)}, {v(E+5)}',
                 f'  v_max3_f32 {v(X0)}, {v(X0)}, {v(E+6)}, {v(E+7)}',
                 f'  v_max3_f32 {v(X1)}, {v(X1)}, {v(E+8)}, {v(E+9)}',
                 f'  v_max3_f32 {v(X0)}, {v(X0)}, {v(E+10)}, {v(M)}',
                 f'  v_max_f32 {v(X0)}, {v(X0)}, {v(X1)}',
                 f'  v_mov_b32 {v(X1)}, {v(X0)}',
                 f'  v_permlane32_swap_b32 {v(X0)}, {v(X1)}',
                 f'  v_max_f32 {v(X0)}, {v(X0)}, {v(X1)}',
                 f'  v_mov_b32 {v(X1)}, {v(X0)}',
                 f'  v_permlane16_swap_b32 {v(X0)}, {v(X1)}',
                 f'  v_max_f32 {v(M)}, {v(X0)}, {v(X1)}',
                 f'  v_mul_f32 {v(X0)}, {s(sL2E)}, {v(M)}',
                 f'  v_add_f32 {v(AL)}, {v(X0)}, {v(NB)}',
                 f'  v_sub_f32 {v(NB)}, 0, {v(X0)}',
                 f'  v_exp_f32 {v(AL)}, -{v(AL)}',
                 f'  ds_bpermute_b32 {v(ALQ)}, {v(VBP)}, {v(AL)}']
        for k in range(11):
            prep += [f'  v_fma_f32 {v(E+k)}, {v(E+k)}, {s(sL2E)}, {v(NB)}', f'  v_exp_f32 {v(E+k)}, {v(E+k)}']
        prep += [f'  v_add_f32 {v(X0)}, {v(E)}, {v(E+1)}', f'  v_add_f32 {v(X1)}, {v(E+2)}, {v(E+3)}']
        for k in range(4, 11):
            x = X0 if k % 2 == 0 else X1
            prep.append(f'  v_add_f32 {v(x)}, {v(x)}, {v(E+k)}')
        prep += [f'  v_add_f32 {v(X0)}, {v(X0)}, {v(X1)}',
                 f'  v_fma_f32 {v(LS)}, {v(LS)}, {v(AL)}, {v(X0)}']
        for k in range(6):
            prep.append(f'  v_cvt_pk_bf16_f32 {v(PP+k)}, {v(E+2*k)}, {v(E+2*k+1) if k < 5 else 0}')
        for j in range(4):
            for k in range(4):
                prep.append(f'  v_cndmask_b32 {v(AJ+4*j+k)}, 0, {v(PP+k)}, {s(sMJ+2*j,2)}')
        prep.append('  s_waitcnt lgkmcnt(0)')
        for k in range(12):
            prep.append(f'  v_mul_f32 {v(ACC+k)}, {v(ALQ)}, {v(ACC+k)}')
        prep2 = [f'  v_cndmask_b32 {v(AK+2*j+k)}, 0, {v(PP+4+k)}, {s(sMJ+2*j,2)}' for j in range(4) for k in range(2)]
        for k in range(NST):
            ss, i = divmod(k, 3)
            mode(k)
            if k == SW: offsets(DCON)
            wait_step(k, 2, f'vw{u}_{k}', PSV)
            A(main_load(o + k + D, SV, sCUR if k < SW else sNXT))
            if k == 0:
                A(f'  v_mul_f32 {v(ZC)}, {s(sSM)}, {v(ZN)}')
                A(f'  v_mul_f32 {v(SC)}, {hex((127 + 22) << 23)}, {v(SN)}')
            if i == 0:
                A(f'  v_mov_b32_dpp {v(ZS)}, {v(ZC)} row_newbcast:{ss} row_mask:0xf bank_mask:0xf')
                A(f'  v_mov_b32_dpp {v(ZS+1)}, {v(SC)} row_newbcast:{ss} row_mask:0xf bank_mask:0xf')
            X = TV + 4 * i if ss % 2 == 0 else T
            c, rest = dequant(X, slot(o + k), (v(ZS,2), v(ZS,2)), (v(ZS,2), v(ZS,2)), 'op_sel_hi:[1,1,0] ', 'op_sel:[0,1]')
            for x in c: A(x)
            if k == PSV: vscale_loads()
            if ss % 2 == 1:
                rest += [f'  v_cvt_pk_bf16_f32 {v(BV+16*i+4*j+((ss>>1)&3))}, {v(TV+4*i+j)}, {v(T+j)}' for j in range(4)]
            if ss == 10:
                rest += [f'  v_cvt_pk_bf16_f32 {v(BV+16*i+4*j+1)}, {v(TV+4*i+j)}, 0' for j in range(4)]
            side = []
            if k >= 1: side, prep = prep[:5], prep[5:]
            if k == 20: assert not prep
            if k == 23: prep = prep2
            for x in merge(rest, side): A(x)
            if ss == 7:
                for j in range(4):
                    A(f'  v_mfma_f32_16x16x32_bf16 {v(ACC+4*i,4)}, {v(AJ+4*j,4)}, {v(BV+16*i+4*j,4)}, {v(ACC+4*i,4)}')
            if ss == 10:
                assert not prep
                for j in range(4):
                    A(f'  v_mfma_f32_16x16x16_bf16 {v(ACC+4*i,4)}, {v(AK+2*j,2)}, {v(BV+16*i+4*j,2)}, {v(ACC+4*i,4)}')
        A(f'  s_mov_b32 {s(sCUR)}, {s(sNXT)}')
        if u == U - 1:
            A(f'  s_cmp_ge_u32 {s(sF)}, {NF}')
            A('  s_cbranch_scc1 L_v_done')
            A(f'  s_cmp_eq_u32 {s(sHN)}, {s(sHC)}')
            A('  s_cbranch_scc1 L_v0')
            A(f'  s_mov_b32 {s(sHC)}, {s(sHN)}')
            flush()
            A('  s_waitcnt lgkmcnt(0)')
            reset_state()
            A('  s_branch L_v0')
    assert 16 % (W * U) == 0
    for u in range(U): v_unit(u)
    A('L_v_done:')
    stamp()
    flush()
    C('---------------- all three waves: wave i finishes dims 64i..64i+63 of the four segments')
    A('L_finish:')
    AC = (base + 3) // 4 * 4
    OF = AC; ST = AC + 8; PA = ST + 16; FR = PA + 32
    nv = max(nv, FR + 24)
    TB, VA, VS_, VG, VH = E, E + 4, E + 6, E + 8, E + 9
    TAG = OF + 7
    A(f'  v_mov_b32 {v(X0)}, {F_END}')
    A(f'  ds_read_b128 {v(OF,4)}, {v(X0)}')
    A(f'  ds_read_b128 {v(OF+4,4)}, {v(X0)} offset:16')
    A(f'  s_mul_i32 {s(sT)}, {s(sRO)}, {SEG}')
    A(f'  s_lshl_b32 {s(sT+1)}, s3, 10')
    A(f'  v_lshl_add_u32 {v(VA)}, v0, 4, {s(sT+1)}')
    A(f'  v_lshrrev_b32 {v(X1)}, 4, v0')
    A(f'  v_lshlrev_b32 {v(VS_)}, 3, {v(X1)}')
    A(f'  v_add_u32 {v(VS_)}, {LDS_ACC + W * 3072}, {v(VS_)}')
    A(f'  s_sub_u32 {s(sG)}, {SEG}, {s(sT)}')
    A(f'  v_add_u32 {v(VA+1)}, {s(sG)}, {v(VA)}')
    A(f'  v_add_u32 {v(M)}, {s(sT)}, {v(VA)}')
    A(f'  s_sub_u32 {s(sG)}, {2 * SEG}, {s(sT)}')
    A(f'  v_add_u32 {v(ZN)}, {s(sG)}, {v(VS_)}')
    A(f'  s_add_u32 {s(sG)}, {s(sT)}, {SEG}')
    A(f'  v_add_u32 {v(SN)}, {s(sG)}, {v(VS_)}')
    A(f'  v_add_u32 {v(VS_+1)}, {3 * SEG}, {v(VS_)}')
    A(f'  s_mul_i32 {s(sT)}, s3, {PIECE}')
    A(f'  v_lshl_add_u32 {v(VG)}, v0, 4, {s(sT)}')
    A(f'  v_lshl_add_u32 {v(VH)}, {v(X1)}, 4, {s(sT)}')
    A(f'  v_mul_u32_u24 {v(AL)}, 384, {v(X1)}')
    A(f'  v_and_b32 {v(X1)}, 15, v0')
    A(f'  v_lshl_add_u32 {v(AL)}, {v(X1)}, 3, {v(AL)}')
    A(f'  s_movk_i32 {s(sMSK)}, 0xff00')
    A(f'  s_mov_b32 {s(sL0)}, 0x10001')
    A(f'  s_mov_b32 {s(sL0+1)}, 0x10001')
    A(f'  s_mov_b32 {s(sL10)}, 0x0c0c0400')
    A(f'  s_mov_b32 {s(sL10+1)}, 0x05040100')
    A(f'  s_mov_b32 {s(sF)}, 0')
    A('  s_waitcnt vmcnt(0) lgkmcnt(0)')
    sO = 72
    def fetch(r):
        A(f'  buffer_load_dwordx4 {v(FR+8*r,4)}, {v(VG)}, {s(SWS,4)}, {s(sO+3+r)} offen sc1')
        A(f'  buffer_load_dwordx4 {v(FR+8*r+4,4)}, {v(VH)}, {s(SWS,4)}, {s(sO+3+r)} offen offset:1024 sc1')
    A('  s_barrier')
    slots = ((VA, 0, VS_), (VA, 3, VS_ + 1), (VA + 1, 1, ZN), (M, 1, SN))
    for j, (va_, sl, vs_) in enumerate(slots):
        A(f'  ds_read2_b64 {v(ST+4*j,4)}, {v(vs_)} offset1:4')
        for w in range(W):
            A(f'  ds_read_b128 {v(PA+8*j+4*w,4)}, {v(va_)} offset:{LDS_ACC + sl * SEG + 3072*w}')
    for k in range(7): A(f'  v_readfirstlane_b32 {s(sO+k)}, {v(OF+k)}')
    for k in range(4): A(f'  v_bfe_u32 {v(TB+k)}, {v(TAG)}, {8 * k}, 8')
    C('three segments are published, the fourth belongs to the head this workgroup owns')
    for j in range(4):
        st = ST + 4 * j; pa = PA + 8 * j
        A(f'  s_waitcnt lgkmcnt({3 * (3 - j)})')
        A(f'  v_min_f32 {v(X0)}, {v(st)}, {v(st+2)}')
        for w in range(2): A(f'  v_sub_f32 {v(st+2*w)}, {v(X0)}, {v(st+2*w)}')
        for w in range(2): A(f'  v_exp_f32 {v(st+2*w)}, {v(st+2*w)}')
        A(f'  v_mul_f32 {v(X1)}, {v(st)}, {v(st+1)}')
        for h in range(2): A(f'  v_pk_mul_f32 {v(pa+2*h,2)}, {v(pa+2*h,2)}, {v(st,2)} op_sel_hi:[1,0]')
        for h in range(2): A(f'  v_pk_fma_f32 {v(pa+2*h,2)}, {v(pa+4+2*h,2)}, {v(st+2,2)}, {v(pa+2*h,2)} op_sel_hi:[1,0,1]')
        A(f'  v_fma_f32 {v(pa+5)}, {v(st+2)}, {v(st+3)}, {v(X1)}')
        A(f'  v_mov_b32 {v(pa+4)}, {v(X0)}')
        if j < 3:
            for x in range(4): A(f'  v_and_or_b32 {v(pa+x)}, {v(pa+x)}, {s(sMSK)}, {v(TB+x)}')
            A(f'  v_mov_b32 {v(pa+7)}, {v(TAG)}')
            A(f'  buffer_store_dwordx4 {v(pa,4)}, {v(VG)}, {s(SWS,4)}, {s(sO+j)} offen sc1')
            A(f'  s_mov_b64 exec, {s(sL0,2)}')
            A(f'  buffer_store_dwordx4 {v(pa+4,4)}, {v(VH)}, {s(SWS,4)}, {s(sO+j)} offen offset:1024 sc1')
            A('  s_mov_b64 exec, -1')
        if j == 2:
            stamp()
            for r in range(3): fetch(r)
    A('  s_branch L_check')
    C('gather the three foreign records of the owned head; a granule counts once it carries this launch\'s tag')
    A('L_gather:')
    A(f'  s_add_u32 {s(sF)}, {s(sF)}, 1')
    A(f'  s_cmp_gt_u32 {s(sF)}, 20000')
    A('  s_cbranch_scc1 L_end')
    for r in range(3):
        A(f'  s_bitcmp0_b32 {s(sMISS)}, {r}')
        A(f'  s_cbranch_scc1 L_have{r}')
        fetch(r)
        A(f'L_have{r}:')
    A('L_check:')
    A(f'  s_mov_b32 {s(sMISS)}, 0')
    A('  s_waitcnt vmcnt(0)')
    for r in range(3):
        b = FR + 8 * r
        A(f'  v_perm_b32 {v(X0)}, {v(b+1)}, {v(b)}, {s(sL10)}')
        A(f'  v_perm_b32 {v(X1)}, {v(b+3)}, {v(b+2)}, {s(sL10)}')
        A(f'  v_cmp_ne_u32 vcc, {v(TAG)}, {v(b+7)}')
        A(f'  v_perm_b32 {v(X0)}, {v(X1)}, {v(X0)}, {s(sL10+1)}')
        A(f'  v_cmp_ne_u32 {s(sT,2)}, {v(TAG)}, {v(X0)}')
        A(f'  s_or_b64 {s(sT,2)}, {s(sT,2)}, vcc')
        A(f'  s_cselect_b32 {s(sT)}, {1 << r}, 0')
        A(f'  s_or_b32 {s(sMISS)}, {s(sMISS)}, {s(sT)}')
    A('  s_cbranch_scc1 L_gather')
    stamp()
    C('(own + partner) + (neighbour pair): products are rounded separately, so the sum does not depend on who had which class')
    B4 = [PA + 24, FR, FR + 8, FR + 16]
    A(f'  v_min_f32 {v(X0)}, {v(B4[0]+4)}, {v(B4[1]+4)}')
    A(f'  v_min3_f32 {v(X0)}, {v(X0)}, {v(B4[2]+4)}, {v(B4[3]+4)}')
    for b in B4: A(f'  v_sub_f32 {v(b+4)}, {v(X0)}, {v(b+4)}')
    for b in B4: A(f'  v_exp_f32 {v(b+4)}, {v(b+4)}')
    for b in B4:
        for x in range(4): A(f'  v_and_b32 {v(b+x)}, {s(sMSK)}, {v(b+x)}')
    for b in B4: A(f'  v_mul_f32 {v(b+5)}, {v(b+4)}, {v(b+5)}')
    A(f'  v_add_f32 {v(B4[0]+5)}, {v(B4[0]+5)}, {v(B4[1]+5)}')
    A(f'  v_add_f32 {v(B4[2]+5)}, {v(B4[2]+5)}, {v(B4[3]+5)}')
    A(f'  v_add_f32 {v(X0)}, {v(B4[0]+5)}, {v(B4[2]+5)}')
    A(f'  v_rcp_f32 {v(X0)}, {v(X0)}')
    A(f'  s_lshl_b32 {s(sT)}, s3, 7')
    A(f'  s_add_u32 {s(sT)}, {s(sT)}, {s(sO+6)}')
    for x in (0, 2):
        for b in B4: A(f'  v_pk_mul_f32 {v(b+x,2)}, {v(b+x,2)}, {v(b+4,2)} op_sel_hi:[1,0]')
        A(f'  v_pk_add_f32 {v(B4[0]+x,2)}, {v(B4[0]+x,2)}, {v(B4[1]+x,2)}')
        A(f'  v_pk_add_f32 {v(B4[2]+x,2)}, {v(B4[2]+x,2)}, {v(B4[3]+x,2)}')
        A(f'  v_pk_add_f32 {v(B4[0]+x,2)}, {v(B4[0]+x,2)}, {v(B4[2]+x,2)}')
        A(f'  v_pk_mul_f32 {v(B4[0]+x,2)}, {v(B4[0]+x,2)}, {v(X0,2)} op_sel_hi:[1,0]')
        A(f'  v_cvt_pk_bf16_f32 {v(ACC+x//2)}, {v(B4[0]+x)}, {v(B4[0]+x+1)}')
    A(f'  buffer_store_dwordx2 {v(ACC,2)}, {v(AL)}, {s(SQ,4)}, {s(sT)} offen')
    A('L_fin:')
    if diagpad:
        A('L_diag:')
        A(f'  s_memrealtime {s(sBIG,2)}')
        A('  s_waitcnt lgkmcnt(0)')
        A(f'  s_sub_u32 {s(sBIG)}, {s(sBIG)}, s6')
        A(f'  s_cmp_lt_u32 {s(sBIG)}, {diagpad * 100}')
        A('  s_cbranch_scc1 L_diag')
    if tl:
        A(f'  s_mul_i32 {s(sT)}, s2, {W+1}')
        A(f'  s_add_u32 {s(sT)}, {s(sT)}, s3')
        A(f'  s_lshl_b32 {s(sT)}, {s(sT)}, 8')
        A(f'  s_add_u32 {s(sT)}, {s(sT)}, 0x10000')
        A(f'  v_lshl_add_u32 {v(E)}, v0, 2, {s(sT)}')
        A(f'  global_store_dword {v(E)}, {v(TL)}, {s(sWS,2)}')
    if stamps:
        A('  s_waitcnt vmcnt(0)')
        A(f'  s_memrealtime {s(sBIG,2)}')
        A(f'  s_getreg_b32 {s(sSM)}, hwreg(HW_REG_XCC_ID)')
        A(f'  s_mul_i32 {s(sT)}, s2, {W+1}')
        A(f'  s_add_u32 {s(sT)}, {s(sT)}, s3')
        A(f'  s_lshl_b32 {s(sT)}, {s(sT)}, 4')
        A('  s_waitcnt lgkmcnt(0)')
        A(f'  v_mov_b32 {v(RING)}, s6')
        A(f'  v_mov_b32 {v(RING+1)}, {s(sBIG)}')
        A(f'  v_mov_b32 {v(RING+2)}, {s(sSM)}')
        A(f'  v_mov_b32 {v(RING+3)}, {s(sDEC)}')
        A(f'  v_mov_b32 {v(X0)}, {s(sT)}')
        A('  s_mov_b64 exec, 1')
        A(f'  global_store_dwordx4 {v(X0)}, {v(RING,4)}, {s(sWS,2)}')
    A('L_end:')
    A('  s_endpgm')

    C('================= helper wave')
    A('L_helper:')
    if tl:
        A(f'  s_mov_b32 {s(sTL)}, 0')
        A(f'  v_mov_b32 {v(TL)}, 0')
    hA, hZ, hO, h1, h2, h3, hD = 1, 2, 3, 4, 5, 6, 8
    hP, hQ, hC, hX, hW, hU, hT = hD + 96, hD + 97, hD + 98, hD + 100, hD + 104, hD + 105, hD + 106
    assert hT + 1 < TL
    A(f'  v_lshlrev_b32 {v(hA)}, 2, v0')
    A(f'  v_add_u32 {v(hA)}, {LDS_F}, {v(hA)}')
    A(f'  v_mov_b32 {v(hZ)}, 0')
    A('  s_mov_b64 exec, 0xff')
    A(f'  ds_write_b32 {v(hA)}, {v(hZ)}')
    A('  s_mov_b64 exec, -1')
    A('  s_waitcnt lgkmcnt(0)')
    make_srds(4, 9)
    A(f'  s_mov_b32 {s(SQ)}, {s(PT+14)}')
    A(f'  s_and_b32 {s(SQ+1)}, {s(PT+15)}, 0xffff')
    A('  s_barrier')
    sOF, sN0, sV0, sJ, sSF, sA, sB, sX, sCNT, sME, sPA, sFA, sFS, sQD = 44, 45, 48, 50, 52, 54, 56, 58, 59, 60, 61, 62, 63, 64
    sT0, sNON, sCP, sCA, sUP, sRET, sSUB = 72, 74, 76, 77, 78, 84, 86
    A(f'  s_memrealtime {s(sT0,2)}')
    def code_touch(tag):
        A(f'  s_lshr_b32 {s(sT)}, s2, 3')
        A(f'  s_cmp_lt_u32 {s(sT)}, (L_code_end - L_k) / 1024')
        A(f'  s_cbranch_scc0 L_h_ct{tag}')
        A(f'  global_load_dwordx4 {v(hX,4)}, {v(hC,2)}, off')
        A(f'L_h_ct{tag}:')
    C('workgroup i reads kilobyte i/8 of this kernel\'s code so that first instruction fetches hit L2')
    A(f'  s_getpc_b64 {s(sA,2)}')
    A('L_h_pc:')
    A(f'  s_add_u32 {s(sSUB)}, {s(sA)}, L_h_cp - L_h_pc')
    A(f'  s_addc_u32 {s(sSUB+1)}, {s(sA+1)}, 0')
    A(f'  s_sub_u32 {s(sA)}, {s(sA)}, L_h_pc - L_k')
    A(f'  s_subb_u32 {s(sA+1)}, {s(sA+1)}, 0')
    A(f'  s_and_b32 {s(sA)}, {s(sA)}, -16')
    A(f'  s_lshr_b32 {s(sT)}, s2, 3')
    A(f'  s_lshl_b32 {s(sT)}, {s(sT)}, 10')
    A(f'  v_lshl_add_u32 {v(hC)}, v0, 4, {s(sT)}')
    A(f'  v_mov_b32 {v(hC+1)}, {s(sA+1)}')
    A(f'  v_add_co_u32 {v(hC)}, vcc, {s(sA)}, {v(hC)}')
    A(f'  v_addc_co_u32 {v(hC+1)}, vcc, 0, {v(hC+1)}, vcc')
    code_touch('a')
    A(f'  s_lshr_b32 {s(sT)}, s2, 4')
    A(f'  s_and_b32 {s(sT)}, {s(sT)}, 8')
    A(f'  s_and_b32 {s(sT+1)}, s2, 7')
    A(f'  s_add_u32 {s(sT)}, {s(sT)}, {s(sT+1)}')
    A(f'  s_lshl_b32 {s(sT)}, {s(sT)}, 4')
    A(f'  v_lshl_add_u32 {v(hP)}, v0, 3, {s(sT)}')
    A(f'  v_and_b32 {v(hQ)}, 31, v0')
    A(f'  v_lshlrev_b32 {v(hQ)}, 3, {v(hQ)}')
    A(f'  v_and_b32 {v(hW)}, 1, v0')
    A(f'  v_lshlrev_b32 {v(hW)}, 2, {v(hW)}')
    A(f'  v_add_u32 {v(hW)}, {F_PRG}, {v(hW)}')
    A(f'  v_mov_b32 {v(hU)}, 0')
    A(f'  v_lshlrev_b32 {v(hO)}, 4, v0')
    A(f'  s_mov_b32 {s(sCP)}, {cp0}')
    A(f'  s_mov_b32 {s(sCA)}, {WS_CP}')
    def wait_progress(tag, lim, slp):
        A(f'L_h_prog{tag}:')
        A(f'  s_sleep {slp}')
        A(f'  ds_read_b32 {v(hD)}, {v(hW)}')
        A('  s_waitcnt lgkmcnt(0)')
        A(f'  v_cmp_gt_u32 vcc, {lim}, {v(hD)}')
        A('  s_cmp_lg_u32 vcc_lo, 0')
        A(f'  s_cbranch_scc1 L_h_prog{tag}')
    def lds_set(addr, val):
        A(f'  v_mov_b32 {v(hA)}, {addr}')
        A(f'  v_mov_b32 {v(h2)}, {val}')
        A(f'  ds_write_b32 {v(hA)}, {v(h2)}')
    C('vote word in d_debug: six 6-bit tallies (class near die 0 in even pages, per slab of qk and qv), four 4-bit tallies')
    C(f'(die of role 0 per wg&3) and the voter count in the top byte; {7 * NV} workgroups vote')
    A(f'  s_getreg_b32 {s(sJ)}, hwreg(HW_REG_XCC_ID)')
    A(f'  s_bfe_u32 {s(sJ)}, {s(sJ)}, 0x10002')
    A(f'  s_bfe_u32 {s(sSF)}, s2, 0x30003')
    A(f'  s_cmp_eq_u32 {s(sSF)}, 7')
    A('  s_cbranch_scc1 L_h_voted')
    A(f'  s_lshr_b32 {s(sT)}, s2, 6')
    A(f'  s_xor_b32 {s(sT)}, {s(sT)}, s2')
    A(f'  s_and_b32 {s(sT)}, {s(sT)}, {32 // NV - 1}')
    A('  s_cbranch_scc1 L_h_voted')
    A(f'  s_cmp_eq_u32 {s(sSF)}, 6')
    A('  s_cbranch_scc0 L_h_probe')
    A(f'  s_xor_b32 {s(sV0)}, {s(sJ)}, {s(sRO)}')
    A(f'  s_and_b32 {s(sSF)}, s2, 3')
    A(f'  s_lshl2_add_u32 {s(sSF)}, {s(sSF)}, 36')
    A('  s_branch L_h_vote')
    A('L_h_probe:')
    A(f'  s_cmp_ge_u32 {s(sSF)}, 3')
    A(f'  s_cselect_b32 {s(SI)}, {s(SV)}, {s(SK)}')
    A(f'  s_cselect_b32 {s(SI+1)}, {s(SV+1)}, {s(SK+1)}')
    A(f'  s_cselect_b32 {s(sT)}, 3, 0')
    A(f'  s_sub_u32 {s(sT)}, {s(sSF)}, {s(sT)}')
    A(f'  s_lshl_b32 {s(sT)}, {s(sT)}, 28')
    A(f'  s_add_u32 {s(sOF)}, {s(sPB)}, {s(sRO)}')
    A(f'  s_lshl_b32 {s(sOF)}, {s(sOF)}, 16')
    A(f'  s_add_u32 {s(sOF)}, {s(sOF)}, {s(sT)}')
    A(f'  s_add_u32 {s(sOF)}, {s(sOF)}, 0x1c0000')
    A(f'  s_mul_i32 {s(sT)}, s2, 0x2a95')
    A(f'  s_and_b32 {s(sT)}, {s(sT)}, 0x7f80')
    A(f'  s_add_u32 {s(sOF)}, {s(sOF)}, {s(sT)}')
    A(f'  s_add_u32 {s(sT)}, {s(sOF)}, 0x8000')
    A(f'  s_buffer_load_dword {s(sX)}, {s(SI,4)}, {s(sT)}')
    A(f'  s_mov_b32 {s(sN0)}, -1')
    A(f'  s_mov_b32 {s(sN0+1)}, -1')
    A(f'  s_mul_i32 {s(sSF)}, {s(sSF)}, 6')
    wait_progress('p', 1, 2)
    for k in range(NS):
        for c in ((0, 1) if k % 2 == 0 else (1, 0)):
            o = (((k & 1) << 14) | ((k >> 1 & 1) << 12) | ((k * 0x380) & 0xfff)) ^ (c << 13)
            A(f'  s_xor_b32 {s(sT)}, {s(sOF)}, {o}')
            A(f'  s_memtime {s(sA,2)}')
            A('  s_waitcnt lgkmcnt(0)')
            A(f'  s_buffer_load_dword {s(sX)}, {s(SI,4)}, {s(sT)}')
            A('  s_waitcnt lgkmcnt(0)')
            A(f'  s_memtime {s(sB,2)}')
            A('  s_waitcnt lgkmcnt(0)')
            A(f'  s_sub_u32 {s(sB)}, {s(sB)}, {s(sA)}')
            A(f'  s_min_u32 {s(sN0+c)}, {s(sN0+c)}, {s(sB)}')
    A(f'  s_cmp_lt_u32 {s(sN0+1)}, {s(sN0)}')
    A(f'  s_cselect_b32 {s(sV0)}, 1, 0')
    A(f'  s_lshr_b32 {s(sT)}, {s(sOF)}, 13')
    A(f'  s_xor_b32 {s(sT)}, {s(sT)}, s2')
    A(f'  s_xor_b32 {s(sT)}, {s(sT)}, {s(sJ)}')
    A(f'  s_and_b32 {s(sT)}, {s(sT)}, 1')
    A(f'  s_xor_b32 {s(sV0)}, {s(sV0)}, {s(sT)}')
    A('L_h_vote:')
    A(f'  s_mov_b32 {s(sV0+1)}, 0')
    A(f'  s_lshl_b64 {s(sV0,2)}, {s(sV0,2)}, {s(sSF)}')
    A(f'  s_or_b32 {s(sV0+1)}, {s(sV0+1)}, 0x1000000')
    A(f'  s_atomic_add_x2 {s(sV0,2)}, {s(sDBG,2)}, 0')
    A('L_h_voted:')
    A('  s_waitcnt lgkmcnt(0)')
    C('launch nonce (tells this launch\'s hand-offs in ws from older contents)')
    A('  s_cmp_lg_u32 s2, 56')
    A('  s_cbranch_scc1 L_h_nonce')
    A(f'  s_lshl_b64 {s(sA,2)}, {s(sT0,2)}, 2')
    A(f'  s_atomic_add_x2 {s(sA,2)}, {s(sDBG,2)}, 8')
    A('  s_waitcnt lgkmcnt(0)')
    A('L_h_nonce:')
    stamp()
    def checkpoints(upto):
        A(f'  s_mov_b32 {s(sUP)}, {min(upto, last) - dly}')
        A(f'  s_swappc_b64 {s(sRET,2)}, {s(sSUB,2)}')
    def bounded(label, n):
        A(f'  s_add_u32 {s(sCNT)}, {s(sCNT)}, 1')
        A(f'  s_cmp_gt_u32 {s(sCNT)}, {n}')
        A(f'  s_cbranch_scc1 {label}')
    wait_progress('v', NWU - W, 8)
    A(f'  s_load_dwordx2 {s(sV0,2)}, {s(sDBG,2)}, 0')
    A(f'  s_mov_b32 {s(sCNT)}, 0')
    A('L_h_votes:')
    A('  s_waitcnt lgkmcnt(0)')
    A(f'  s_lshr_b32 {s(sT)}, {s(sV0+1)}, 24')
    A(f'  s_cmp_eq_u32 {s(sT)}, {7 * NV}')
    A('  s_cbranch_scc1 L_h_votes_done')
    bounded('L_h_votes_done', 2000)
    A('  s_sleep 64')
    A(f'  s_mov_b64 {s(sV0,2)}, 0')
    A(f'  s_atomic_or_x2 {s(sV0,2)}, {s(sDBG,2)}, 0 glc')
    A('  s_branch L_h_votes')
    A('L_h_votes_done:')
    A(f'  s_mov_b32 {s(sDEC)}, 0x80')
    for j in range(6):
        A(f'  s_bfe_u64 {s(sA,2)}, {s(sV0,2)}, {hex(0x60000 | (6 * j))}')
        A(f'  s_cmp_gt_u32 {s(sA)}, {NV // 2}')
        A(f'  s_cselect_b32 {s(sB)}, {1 << j}, 0')
        A(f'  s_or_b32 {s(sDEC)}, {s(sDEC)}, {s(sB)}')
    if force >= 0: A(f'  s_mov_b32 {s(sDEC)}, {0x80 | force}')
    A(f'  s_and_b32 {s(sT)}, s2, 3')
    A(f'  s_lshl2_add_u32 {s(sT)}, {s(sT)}, {4 + (NV // 4).bit_length() - 1}')
    A(f'  s_lshr_b32 {s(sA)}, {s(sV0+1)}, {s(sT)}')
    A(f'  s_xor_b32 {s(sA)}, {s(sA)}, s2')
    A(f'  s_xor_b32 {s(sA)}, {s(sA)}, {s(sRO)}')
    A(f'  s_and_b32 {s(sA)}, {s(sA)}, 1')
    A(f'  s_mul_i32 {s(sA)}, {s(sA)}, 63')
    A(f'  s_xor_b32 {s(sDEC)}, {s(sDEC)}, {s(sA)}')
    lds_set(F_DEC, s(sDEC))
    stamp()
    A(f'  s_load_dwordx2 {s(sNON,2)}, {s(sDBG,2)}, 8')
    A(f'  s_mov_b32 {s(sCNT)}, 0')
    A('L_h_getnonce:')
    A('  s_waitcnt lgkmcnt(0)')
    A(f'  s_cmp_lg_u64 {s(sNON,2)}, 0')
    A('  s_cbranch_scc1 L_h_gotnonce')
    bounded('L_h_gotnonce', 2000)
    A('  s_sleep 64')
    A(f'  s_atomic_or_x2 {s(sNON,2)}, {s(sDBG,2)}, 8 glc')
    A('  s_branch L_h_getnonce')
    A('L_h_gotnonce:')
    A(f'  s_lshr_b64 {s(sA,2)}, {s(sNON,2)}, 2')
    C('table for the finish: ws offsets of the records to publish (slots 0, 3, 2-role) and to gather, output offset, tag.')
    C('record = 8*(page/3) + 2*slot + class; the page of type t = page%3 lies in slab (2t + pair) % 3')
    A(f'  v_writelane_b32 {v(hD)}, {s(sA)}, 7')
    A(f'  s_lshr_b32 {s(sQD)}, {s(sPB)}, 5')
    A(f'  s_mov_b32 {s(sJ)}, 0xaaaaaaab')
    def rec_base(t):
        A(f'  s_add_u32 {s(sA)}, {s(sQD)}, {2 * t}')
        A(f'  s_mul_hi_u32 {s(sB)}, {s(sA)}, {s(sJ)}')
        A(f'  s_lshr_b32 {s(sB)}, {s(sB)}, 1')
        A(f'  s_mul_i32 {s(sB)}, {s(sB)}, 3')
        A(f'  s_sub_u32 {s(sA)}, {s(sA)}, {s(sB)}')
        A(f'  s_lshr_b32 {s(sB)}, {s(sDEC)}, {s(sA)}')
        A(f'  s_bfe_u32 {s(sB)}, {s(sB)}, 0x10003')
        A(f'  s_lshl_b32 {s(sA)}, {s(sA)}, 7')
        A(f'  s_add_u32 {s(sA)}, {s(sA)}, {s(sQD)}')
        A(f'  s_mul_hi_u32 {s(sA)}, {s(sA)}, {s(sJ)}')
        A(f'  s_lshr_b32 {s(sA)}, {s(sA)}, 1')
        A(f'  s_lshl3_add_u32 {s(sA)}, {s(sA)}, {s(sB)}')
    def put(lane, reg):
        A(f'  s_mul_i32 {s(sT)}, {s(reg)}, {REC}')
        A(f'  s_add_u32 {s(sT)}, {s(sT)}, {WS_REC}')
        A(f'  v_writelane_b32 {v(hD)}, {s(sT)}, {lane}')
    rec_base(0)
    put(0, sA)
    rec_base(2)
    A(f'  s_add_u32 {s(sA)}, {s(sA)}, 6')
    put(1, sA)
    rec_base(1)
    A(f'  s_lshl_b32 {s(sB)}, {s(sRO)}, 1')
    A(f'  s_sub_u32 {s(sB+1)}, {s(sA)}, {s(sB)}')
    A(f'  s_add_u32 {s(sB+1)}, {s(sB+1)}, 4')
    put(2, sB + 1)
    A(f'  s_add_u32 {s(sA)}, {s(sA)}, {s(sB)}')
    A(f'  s_add_u32 {s(sA)}, {s(sA)}, 2')
    A(f'  s_xor_b32 {s(sB)}, {s(sA)}, 1')
    put(3, sB)
    A(f'  s_andn2_b32 {s(sB)}, {s(sA)}, 1')
    A(f'  s_xor_b32 {s(sB)}, {s(sB)}, 2')
    put(4, sB)
    A(f'  s_add_u32 {s(sB)}, {s(sB)}, 1')
    put(5, sB)
    A(f'  s_lshr_b32 {s(sA)}, {s(sA)}, 2')
    A(f'  s_mul_i32 {s(sA)}, {s(sA)}, 1536')
    A(f'  v_writelane_b32 {v(hD)}, {s(sA)}, 6')
    A(f'  v_lshlrev_b32 {v(hA)}, 2, v0')
    A('  s_mov_b64 exec, 0xff')
    A(f'  ds_write_b32 {v(hA)}, {v(hD)} offset:{F_END}')
    A('  s_mov_b64 exec, -1')
    C('logit swap: flag word per workgroup; image q = 2*pair + role keeps kilobyte k at')
    C('region(q>>5) + (k<<15) + ((q&31 ^ comp(k)) << 10), which stays inside four memory channels')
    A(f'  s_lshl_b32 {s(sFA)}, s2, 8')
    A(f'  s_add_u32 {s(sFA)}, {s(sFA)}, {WS_FLAG}')
    A(f'  s_xor_b32 {s(sFS)}, {s(sFA)}, 1024')
    A(f'  s_lshr_b32 {s(sX)}, {s(sDEC)}, 3')
    A(f'  s_xor_b32 {s(sX)}, {s(sX)}, {s(sDEC)}')
    A(f'  s_lshr_b32 {s(sT)}, {s(sPB)}, 4')
    A(f'  s_lshr_b32 {s(sOF)}, {s(sT)}, 5')
    A(f'  s_lshl_b32 {s(sOF)}, {s(sOF)}, 21')
    A(f'  s_add_u32 {s(sOF)}, {s(sOF)}, {WS_IMG}')
    A(f'  s_and_b32 {s(sQD)}, {s(sT)}, 31')
    A(f'  s_add_u32 {s(sT)}, {s(sQD)}, {s(sRO)}')
    A(f'  s_lshl_b32 {s(sT)}, {s(sT)}, 10')
    A(f'  s_add_u32 {s(sME)}, {s(sOF)}, {s(sT)}')
    A(f'  s_xor_b32 {s(sPA)}, {s(sME)}, 1024')
    def pxor(k):
        h = k >> 2
        c = (h & 3) ^ (((h >> 2) & 1) * 17) ^ (((h >> 3) & 1) * 4)
        return (k << 15) | (c << 10)
    NW = NWU * 384 // 1024
    def reg(k): return hD + 4 * (k % 24)
    def export(lo, hi):
        for k in range(lo, hi): A(f'  ds_read_b128 {v(reg(k),4)}, {v(hO)} offset:{1024*k}')
        A('  s_waitcnt lgkmcnt(0)')
        for k in range(lo, hi):
            A(f'  s_xor_b32 {s(sT)}, {s(sME)}, {pxor(k)}')
            A(f'  buffer_store_dwordx4 {v(reg(k),4)}, {v(hO)}, {s(SWS,4)}, {s(sT)} offen sc1')
    def imp(lo, hi):
        for k in range(lo, hi):
            A(f'  s_xor_b32 {s(sT)}, {s(sPA)}, {pxor(k)}')
            A(f'  buffer_load_dwordx4 {v(reg(k),4)}, {v(hO)}, {s(SWS,4)}, {s(sT)} offen sc1')
        A('  s_waitcnt vmcnt(0)')
        for k in range(lo, hi): A(f'  ds_write_b128 {v(hO)}, {v(reg(k),4)} offset:{1024*k}')
    def cond(bit, tag, fn):
        A(f'  s_bitcmp0_b32 {s(sX)}, {bit}')
        A(f'  s_cbranch_scc1 L_h_{tag}')
        fn()
        A(f'L_h_{tag}:')
    def handshake(tag, level):
        A(f'  s_add_u32 {s(sA)}, {s(sNON)}, {level}')
        A(f'  v_mov_b32 {v(h2)}, 0')
        A('  s_waitcnt vmcnt(0)')
        A(f'  v_mov_b32 {v(hD)}, {s(sA)}')
        A(f'  v_mov_b32 {v(hD+1)}, {s(sNON+1)}')
        A('  s_mov_b64 exec, 1')
        A(f'  buffer_store_dwordx2 {v(hD,2)}, {v(h2)}, {s(SWS,4)}, {s(sFA)} offen sc1')
        A(f'  s_mov_b32 {s(sCNT)}, 0')
        A(f'L_h_flag{tag}:')
        A(f'  buffer_load_dwordx2 {v(hD+2,2)}, {v(h2)}, {s(SWS,4)}, {s(sFS)} offen sc1')
        A('  s_waitcnt vmcnt(0)')
        A(f'  v_readfirstlane_b32 {s(sB)}, {v(hD+2)}')
        A(f'  v_readfirstlane_b32 {s(sB+1)}, {v(hD+3)}')
        A(f'  s_sub_u32 {s(sB)}, {s(sB)}, {s(sA)}')
        A(f'  s_xor_b32 {s(sB+1)}, {s(sB+1)}, {s(sNON+1)}')
        A(f'  s_lshr_b32 {s(sB)}, {s(sB)}, 1')
        A(f'  s_or_b32 {s(sB)}, {s(sB)}, {s(sB+1)}')
        A(f'  s_cbranch_scc0 L_h_flag{tag}_done')
        bounded(f'L_h_flag{tag}_done', 10000)
        A('  s_sleep 8')
        A(f'  s_branch L_h_flag{tag}')
        A(f'L_h_flag{tag}_done:')
        A('  s_mov_b64 exec, -1')
    pg = (2, 0, 1) if kord else (0, 1, 2)
    checkpoints(64)
    wait_progress('a', 64, 4)
    stamp()
    export(0, NW)
    cond(pg[0], 'e0', lambda: export(NW, 12))
    cond(pg[1], 'e1', lambda: export(12, 24))
    handshake('a', 1)
    stamp()
    C('first units: slot f comes from the image of role f&1, slot (f&~1) + V class of that page')
    A(f'  s_bfe_u32 {s(sA)}, {s(sDEC)}, {hex(0x10003 + pg[0])}')
    A(f'  s_mul_i32 {s(sA)}, {s(sA)}, 384')
    A(f'  v_lshrrev_b32 {v(h1)}, 3, v0')
    for k in range(NW):
        A(f'  v_add_u32 {v(h2)}, {8 * k}, {v(h1)}')
        A(f'  v_mul_u32_u24 {v(h2)}, 21846, {v(h2)}')
        A(f'  v_bfe_u32 {v(h2)}, {v(h2)}, 16, 1')
        A(f'  v_mul_u32_u24 {v(h3)}, 384, {v(h2)}')
        A(f'  v_sub_u32 {v(h3)}, {v(hO)}, {v(h3)}')
        A(f'  v_add_u32 {v(h3)}, {s(sA)}, {v(h3)}')
        A(f'  v_add_u32 {v(h3)}, {1024 * k}, {v(h3)}')
        A(f'  v_add_u32 {v(h2)}, {s(sQD)}, {v(h2)}')
        A(f'  v_lshrrev_b32 {v(hZ)}, 12, {v(h3)}')
        A(f'  v_xor_b32 {v(h2)}, {v(h2)}, {v(hZ)}')
        A(f'  v_lshrrev_b32 {v(hZ)}, 10, {v(h3)}')
        A(f'  v_lshl_add_u32 {v(h2)}, {v(hZ)}, 5, {v(h2)}')
        A(f'  v_and_b32 {v(h3)}, 1023, {v(h3)}')
        A(f'  v_lshl_add_u32 {v(h2)}, {v(h2)}, 10, {v(h3)}')
        A(f'  buffer_load_dwordx4 {v(reg(k),4)}, {v(h2)}, {s(SWS,4)}, {s(sOF)} offen sc1')
    cond(pg[0], 'i0', lambda: imp(NW, 12))
    cond(pg[1], 'i1', lambda: imp(12, 24))
    A('  s_waitcnt vmcnt(0)')
    for k in range(NW): A(f'  ds_write_b128 {v(hO)}, {v(reg(k),4)} offset:{1024*k}')
    stamp()
    A(f'  s_bitcmp0_b32 {s(sX)}, {pg[2]}')
    A(f'  s_cselect_b32 {s(sT)}, 255, {32 * pg[2]}')
    lds_set(F_IMP, s(sT))
    checkpoints(NF)
    A(f'  s_bitcmp0_b32 {s(sX)}, {pg[2]}')
    A('  s_cbranch_scc1 L_h_all')
    wait_progress('b', NF, 4)
    export(24, 36)
    handshake('b', 2)
    imp(24, 36)
    lds_set(F_IMP, 255)
    A('L_h_all:')
    checkpoints(999)
    C('the last unit runs with the deep queue')
    wait_progress('t', 2 * NF - 2 * W, 4)
    A(f'  v_mov_b32 {v(hD)}, 255')
    A(f'  ds_write_b32 {v(hW)}, {v(hD)} offset:{F_BST - F_PRG}')
    A('  s_branch L_finish')

    C(f'check points every {step} units up to unit s{sUP}: lane w (mod 2) follows wave w. Arrival times of 16 workgroups go to ws;')
    C(f'{dly} units later the entries stamped inside this launch give the mean, and a late wave gets a catch-up limit in LDS')
    A('L_h_cp:')
    A(f'  s_cmp_gt_u32 {s(sCP)}, {s(sUP)}')
    A('  s_cbranch_scc0 L_h_cpgo')
    A(f'  s_setpc_b64 {s(sRET,2)}')
    A('L_h_cpgo:')
    A(f'  ds_read_b32 {v(hD)}, {v(hW)}')
    A('  s_waitcnt lgkmcnt(0)')
    A(f'  v_cmp_gt_u32 vcc, {s(sCP)}, {v(hD)}')
    A('  s_cmp_eq_u32 vcc_lo, 0')
    A('  s_cbranch_scc1 L_h_cpnext')
    A('L_h_first:')
    A('  s_sleep 2')
    A(f'  ds_read_b32 {v(hD)}, {v(hW)}')
    A('  s_waitcnt lgkmcnt(0)')
    A(f'  v_cmp_gt_u32 {s(sV0,2)}, {s(sCP)}, {v(hD)}')
    A(f'  s_cmp_eq_u32 {s(sV0)}, -1')
    A('  s_cbranch_scc1 L_h_first')
    A(f'  s_memrealtime {s(sA,2)}')
    wait_progress('m', s(sCP), 2)
    A(f'  s_memrealtime {s(sB,2)}')
    A(f'  v_mov_b32 {v(hT)}, {s(sA)}')
    A(f'  v_mov_b32 {v(hT+1)}, {s(sA+1)}')
    A(f'  s_mov_b64 exec, {s(sV0,2)}')
    A('  s_waitcnt lgkmcnt(0)')
    A(f'  v_mov_b32 {v(hT)}, {s(sB)}')
    A(f'  v_mov_b32 {v(hT+1)}, {s(sB+1)}')
    A('  s_mov_b64 exec, -1')
    A(f'  s_and_b32 {s(sT)}, s2, 0x78')
    A('  s_cbranch_scc1 L_h_np')
    A('  s_mov_b64 exec, 3')
    A(f'  buffer_store_dwordx2 {v(hT,2)}, {v(hP)}, {s(SWS,4)}, {s(sCA)} offen sc1')
    A('  s_mov_b64 exec, -1')
    A('L_h_np:')
    A(f'  s_add_u32 {s(sJ)}, {s(sCP)}, {dly}')
    wait_progress('c', s(sJ), 4)
    A(f'  buffer_load_dwordx2 {v(hD,2)}, {v(hQ)}, {s(SWS,4)}, {s(sCA)} offen')
    A(f'  v_mov_b32 {v(hD+2)}, {s(sT0+1)}')
    A('  s_waitcnt vmcnt(0)')
    A(f'  ds_read_b32 {v(hD+4)}, {v(hW)}')
    A(f'  v_subrev_co_u32 {v(hD)}, vcc, {s(sT0)}, {v(hD)}')
    A(f'  v_subb_co_u32 {v(hD+1)}, vcc, {v(hD+1)}, {v(hD+2)}, vcc')
    A(f'  v_lshrrev_b32 {v(hD+2)}, 24, {v(hD)}')
    A(f'  v_or_b32 {v(hD+1)}, {v(hD+1)}, {v(hD+2)}')
    A(f'  v_cmp_eq_u32 vcc, 0, {v(hD+1)}')
    A(f'  v_cndmask_b32 {v(hD)}, 0, {v(hD)}, vcc')
    A(f'  s_bcnt1_i32_b32 {s(sB)}, vcc_lo')
    for r in (8, 4, 2, 1):
        A(f'  v_add_u32_dpp {v(hD)}, {v(hD)}, {v(hD)} row_ror:{r} row_mask:0xf bank_mask:0xf')
    A(f'  v_readlane_b32 {s(sA)}, {v(hD)}, 0')
    A(f'  v_readlane_b32 {s(sT)}, {v(hD)}, 16')
    A(f'  v_subrev_u32 {v(hD)}, {s(sT0)}, {v(hT)}')
    A(f'  v_mul_lo_u32 {v(hD)}, {v(hD)}, {s(sB)}')
    A(f'  s_add_u32 {s(sA)}, {s(sA)}, {s(sT)}')
    A(f'  s_max_u32 {s(sB)}, {s(sB)}, 1')
    A(f'  v_subrev_u32 {v(hD)}, {s(sA)}, {v(hD)}')
    A(f'  v_cvt_f32_u32 {v(hD+1)}, {s(sB)}')
    A(f'  v_cvt_f32_i32 {v(hD)}, {v(hD)}')
    A(f'  v_rcp_f32 {v(hD+1)}, {v(hD+1)}')
    A(f'  v_mul_f32 {v(hD)}, {v(hD)}, {v(hD+1)}')
    A(f'  v_cvt_i32_f32 {v(hD)}, {v(hD)}')
    A('  s_waitcnt lgkmcnt(0)')
    A(f'  v_add_u32 {v(hD+4)}, {W}, {v(hD+4)}')
    C('subtract what the running catch-up gains between the check point and the first unit that sees the new limit')
    A(f'  v_min_u32 {v(hD+1)}, {v(hU)}, {v(hD+4)}')
    A(f'  v_subrev_u32 {v(hD+1)}, {s(sCP)}, {v(hD+1)}')
    A(f'  v_max_i32 {v(hD+1)}, 0, {v(hD+1)}')
    A(f'  v_lshrrev_b32 {v(hD+1)}, 1, {v(hD+1)}')
    A(f'  v_mul_u32_u24 {v(hD+1)}, {gain}, {v(hD+1)}')
    A(f'  v_sub_u32 {v(hD)}, {v(hD)}, {v(hD+1)}')
    A(f'  v_add_u32 {v(hD+1)}, {gain // 2 - dead}, {v(hD)}')
    A(f'  v_max_i32 {v(hD+1)}, 0, {v(hD+1)}')
    A(f'  v_min_i32 {v(hD+1)}, 2000, {v(hD+1)}')
    A(f'  v_mul_u32_u24 {v(hD+1)}, {65536 // gain}, {v(hD+1)}')
    A(f'  v_lshrrev_b32 {v(hD+1)}, 16, {v(hD+1)}')
    A(f'  v_cmp_ne_u32 vcc, 0, {v(hD+1)}')
    A(f'  v_lshl_add_u32 {v(hD+1)}, {v(hD+1)}, 1, {v(hD+4)}')
    A(f'  v_cndmask_b32 {v(hU)}, 0, {v(hD+1)}, vcc')
    A(f'  ds_write_b32 {v(hW)}, {v(hU)} offset:{F_BST - F_PRG}')
    A('L_h_cpnext:')
    A(f'  s_add_u32 {s(sCP)}, {s(sCP)}, {step}')
    A(f'  s_add_u32 {s(sCA)}, {s(sCA)}, 256')
    A('  s_branch L_h_cp')
    A('L_code_end:')
    body = pad(L)

    nva = (nv + 7) // 8 * 8
    out = HDR + f'; @launch grid=(256,1,1) block=({64*(W+1)},1,1) lds={lds}\n' + NOTES
    out += '.amdgcn_target "amdgcn-amd-amdhsa--gfx950"\n.text\n'
    out += f'.globl {NAME}\n.p2align 8\n.type {NAME},@function\n'
    out += '\n'.join(body) + '\n'
    out += f'''.section .rodata,"a"
.p2align 6
.amdhsa_kernel {NAME}
  .amdhsa_next_free_vgpr {nva}
  .amdhsa_next_free_sgpr 102
  .amdhsa_accum_offset {nva}
  .amdhsa_group_segment_fixed_size 0
  .amdhsa_kernarg_size 80
  .amdhsa_user_sgpr_count 2
  .amdhsa_user_sgpr_kernarg_segment_ptr 1
  .amdhsa_system_sgpr_workgroup_id_x 1
  .amdhsa_float_denorm_mode_32 3
.end_amdhsa_kernel
'''
    return out

if __name__ == '__main__':
    kw = {}
    for x in sys.argv[2:]:
        k, val = x.split('=')
        kw[k] = int(val)
    open(sys.argv[1], 'w').write(gen(**kw))
```

```python
import sys, os
sys.path.insert(0, os.path.dirname(os.path.abspath(__file__)))
from asmlib import pad
NAME = 'standalone__kv_cache_quant_int4_int2_kv_with_per_channel_or_per_token_scales__sampling_kernel'
TOTAL = 256 * 4096 * 768
PIECE = 1152
REC = 3 * PIECE
WS_REC = 1 << 20
WS_CP = 7 << 20
WS_FLAG = (7 << 20) + (1 << 16)
WS_IMG = 8 << 20
WS_END = WS_IMG + (16 << 20)
IMG = 96 * 384
OOB = 0x7ffffff0
HDR = open(os.path.join(os.path.dirname(os.path.abspath(__file__)), 'header.txt')).read()
assert all(((32 * c + 1) * 21846) >> 16 == (32 * c + 1) // 3 for c in range(25))
assert all((c * 43) >> 8 == c // 6 for c in range(24))
assert all((x * 21846) >> 16 == x // 3 for x in range(100))

NOTES = """\
"""

class Alloc:
    def __init__(self, start): self.n = start
    def __call__(self, k, align=1):
        self.n = (self.n + align - 1) // align * align
        r = self.n; self.n += k
        return r

def v(r, k=1): return f'v{r}' if k == 1 else f'v[{r}:{r+k-1}]'
def s(r, k=1): return f's{r}' if k == 1 else f's[{r}:{r+k-1}]'

def merge(main, side):
    out = []; side = list(side)
    for m in main:
        out.append(m)
        if side: out.append(side.pop(0))
    return out + side

def gen(DN=10, D=15, bev=3, NWU=8, NS=3, NV=8, pfw=16, PSK=17, gain=28, dly=4, dead=0, cp0=12, step=8, last=186,
        force=-1, stamps=0, tl=0, diagpad=0, diagat=-1, kord=1):
    W, U, NST, NF, PSV = 2, 2, 33, 96, 3
    R = 11 * U
    SW = NST - D
    assert DN <= D < R and NWU % 8 == 0 and PSV < SW and 3 <= PSK < SW
    L = []
    A = L.append
    C = lambda t: L.append('; ' + t)
    va = Alloc(1)
    DUP = va(1); DOWN = va(1); DCON = va(1)
    RING = va(4 * R, 4); VO = va(4)
    ICV = va(1); TU = va(1); VVS = va(1); VL1 = va(1); VL2 = va(1); VBP = va(1); VFL = va(1); VST = va(1); VPR = va(1)
    VOOB = va(1); VBS = va(1)
    T = va(4, 2); ZN = va(1); SN = va(1); ZC = va(1); SC = va(1); ZS = va(2, 2)
    LG = va(6, 4); ACC = va(12, 4); M = va(1); NB = va(2, 2); LS = NB + 1
    X0 = va(2, 2); X1 = X0 + 1; AL = va(1); ALQ = va(1); E = va(11); PP = va(6); TL = va(1)
    base = va.n
    QB = va(6, 4); QN = va(6, 2); KSR = va(6, 2); KZR = va(6, 2); KS = va(12, 2); KZ = va(12, 2); KA = va(6, 4); SD = va(4, 4); S = va(2, 2)
    IUP = va(1); IOWN = va(1); ICON = va(1); VKS0 = va(1); VKS = va(1); VQ = va(1); VNI = va(1)
    kend = va.n
    va.n = base
    AJ = va(16, 4); AK = va(8, 2); TV = va(12, 2); BV = va(48, 4)
    nv = max(va.n, kend)
    sRO, sPB = 4, 5
    SK, SV, SI, SKS, SKZ, SVS, SVZ, SQ, SWS = 8, 12, 16, 20, 24, 28, 32, 36, 40
    PT = 44
    sOUT, sL0, sL10, sM0, sM10, sLOW = 46, 48, 50, 52, 54, 56
    sCUR, sNXT, sSO, s768, sF, sMSK, sL2E, sTL, sSCL, sT = 60, 61, 62, 63, 64, 65, 66, 67, 68, 70
    sMJ = 72
    sDBG, sWS = 80, 82
    sQ3, sC, sQC, sMISS, sHC, sHN, sDIV, sSH = 84, 85, 86, 87, 88, 89, 90, 91
    sBIG, sSM = 92, 94
    sDEC, sG, sGATE = 96, 97, 99
    SEG = W * 3072 + W * 32
    LDS_ACC = IMG
    LDS_F = LDS_ACC + 4 * SEG
    F_DEC, F_IMP, F_PRG, F_BST, F_END = LDS_F, LDS_F + 4, LDS_F + 16, LDS_F + 24, LDS_F + 32
    lds = 62464
    assert LDS_F + 64 <= lds and F_END % 16 == 0

    A(f'{NAME}:')
    A('  s_cmp_ge_u32 s2, 256')
    A('  s_cbranch_scc1 L_end')
    A(f'  s_load_dwordx16 {s(PT,16)}, s[0:1], 0')
    A(f'  s_load_dwordx4 {s(sDBG,4)}, s[0:1], 64')
    if stamps or diagpad: A('  s_memrealtime s[6:7]')
    C('s3 = wave, s4 = role in the pair, s5 = 32 * pair (first block of the first page)')
    A('  v_lshrrev_b32 v1, 6, v0')
    A('  v_and_b32 v0, 63, v0')
    A('  v_readfirstlane_b32 s3, v1')
    A(f'  s_bfe_u32 {s(sRO)}, s2, 0x10002')
    A(f'  s_lshr_b32 {s(sPB)}, s2, 3')
    A(f'  s_lshl_b32 {s(sPB)}, {s(sPB)}, 2')
    A(f'  s_and_b32 {s(sT)}, s2, 3')
    A(f'  s_add_u32 {s(sPB)}, {s(sPB)}, {s(sT)}')
    A(f'  s_lshl_b32 {s(sPB)}, {s(sPB)}, 5')
    SRDS = ((SKS, PT + 6, 256 * 24576), (SKZ, PT + 8, 256 * 24576), (SVS, PT + 10, 256 * 8192), (SVZ, PT + 12, 256 * 8192),
            (SK, PT + 2, TOTAL), (SQ, PT, 256 * 1536), (SI, PT + 2, TOTAL), (SV, PT + 4, TOTAL), (SWS, sWS, WS_END))
    for srd, p, nb in SRDS:
        A(f'  s_mov_b32 {s(srd+2)}, {nb}')
        A(f'  s_mov_b32 {s(srd+3)}, 0x20000')
    def make_srds(lo, hi):
        for srd, p, nb in SRDS[lo:hi]:
            A(f'  s_mov_b32 {s(srd)}, {s(p)}')
            A(f'  s_and_b32 {s(srd+1)}, {s(p+1)}, 0xffff')
    A(f'  s_cmp_eq_u32 s3, {W}')
    A('  s_cbranch_scc1 L_helper')

    C('================= streaming waves')
    cls, a, g, n = T, T + 1, T + 2, T + 3
    A(f'  v_and_b32 {v(cls)}, 3, v0')
    A(f'  v_bfe_u32 {v(a)}, v0, 2, 2')
    A(f'  v_lshrrev_b32 {v(g)}, 4, v0')
    A(f'  v_and_b32 {v(n)}, 15, v0')
    def stream_consts(x, up, own, con, lanepart):
        A(f'  v_and_b32 {v(own)}, 2, {v(x)}')
        A(f'  v_lshlrev_b32 {v(up)}, 5, {v(own)}')
        A(f'  v_add_u32 {v(up)}, 129, {v(up)}')
        A(f'  v_and_b32 {v(X1)}, 1, {v(x)}')
        A(f'  v_lshl_add_u32 {v(own)}, {v(X1)}, 2, {v(own)}')
        A(f'  v_mul_u32_u24 {v(X1)}, {43 * 768}, {v(X1)}')
        A(f'  v_add_u32 {v(con)}, {v(lanepart)}, {v(X1)}')
        A(f'  v_subrev_u32 {v(con)}, {43 * 768}, {v(con)}')
    A(f'  v_lshlrev_b32 {v(X0)}, 4, {v(cls)}')
    A(f'  v_lshl_add_u32 {v(X0)}, {v(g)}, 6, {v(X0)}')
    A(f'  v_lshrrev_b32 {v(VKS0)}, 1, {v(X0)}')
    stream_consts(a, IUP, IOWN, ICON, X0)
    A(f'  v_mul_u32_u24 {v(X1)}, 384, {v(a)}')
    A(f'  v_add_u32 {v(VQ)}, {v(X1)}, {v(VKS0)}')
    A(f'  v_mov_b32 {v(VOOB)}, {OOB}')
    A(f'  s_mov_b32 {s(sDIV)}, 0xaaaaaaab')
    A(f'  s_mov_b32 {s(sSH)}, 0x492492')
    A(f'  s_movk_i32 {s(s768)}, 768')
    def slot(k): return RING + 4 * (k % R)
    def main_load(k, srd, so):
        ss, i = divmod(k % NST, 3)
        r, k0 = (0, 0) if ss == 0 else (1, 1) if ss <= 5 else (2, 6) if ss <= 9 else (3, 10)
        return f'  buffer_load_dwordx4 {v(slot(k),4)}, {v(VO+r)}, {s(srd,4)}, {s(so)} offen offset:{768*(ss-k0) + 256*i} nt'
    def kscale_loads():
        A(f'  s_mul_i32 {s(sSO)}, {s(sQ3)}, 1536')
        for i in range(3):
            A(f'  buffer_load_dwordx2 {v(KSR+2*i,2)}, {v(VKS)}, {s(SKS,4)}, {s(sSO)} offen offset:{128*i}')
            A(f'  buffer_load_dwordx2 {v(KZR+2*i,2)}, {v(VKS)}, {s(SKZ,4)}, {s(sSO)} offen offset:{128*i}')
    def vscale_loads():
        A(f'  s_lshl_b32 {s(sSO)}, {s(sQ3)}, 9')
        A(f'  v_lshl_add_u32 {v(VVS)}, {v(TU)}, 1, {v(ICV)}')
        A(f'  buffer_load_short_d16_hi {v(ZN)}, {v(VVS)}, {s(SVZ,4)}, {s(sSO)} offen')
        A(f'  buffer_load_short_d16_hi {v(SN)}, {v(VVS)}, {s(SVS,4)}, {s(sSO)} offen')
    def q_loads():
        A(f'  s_mul_i32 {s(sT)}, {s(sHN)}, 1536')
        for i in range(3): A(f'  buffer_load_dwordx2 {v(QN+2*i,2)}, {v(VQ)}, {s(SQ,4)}, {s(sT)} offen offset:{128*i}')
    def short_masks(own, m0, m10, low):
        A(f'  v_add_u32 {v(X0)}, {s(sC)}, {v(own)}')
        A(f'  v_lshrrev_b32 {v(X1)}, {v(X0)}, {s(sSH)}')
        A(f'  v_and_b32 {v(X1)}, 1, {v(X1)}')
        A(f'  v_cmp_eq_u32 {s(m10,2)}, 1, {v(X1)}')
        A(f'  s_and_b64 {s(m0,2)}, {s(m10,2)}, {s(low,2)}')
        A(f'  s_andn2_b64 {s(m10,2)}, {s(m10,2)}, {s(low,2)}')
    def map_unit(f, isv):
        if kord and not isv:
            A(f'  s_lshr_b32 {s(sT+1)}, {s(f)}, 4')
            A(f'  s_andn2_b32 {s(sT+1)}, {s(sT+1)}, 1')
            A(f'  s_lshr_b32 {s(sT+1)}, 0x12, {s(sT+1)}')
            A(f'  s_and_b32 {s(sT+1)}, {s(sT+1)}, 3')
        else:
            A(f'  s_lshr_b32 {s(sT+1)}, {s(f)}, 5')
        A(f'  s_lshr_b32 {s(sC)}, {s(sDEC)}, {s(sT+1)}')
        if isv:
            A(f'  s_bfe_u32 {s(sC)}, {s(sC)}, 0x10003')
            A(f'  s_and_b32 {s(sT)}, {s(f)}, 31')
        else:
            A(f'  s_andn2_b32 {s(sT)}, {s(f)}, 1')
            A(f'  s_or_b32 {s(sT)}, {s(sT)}, {s(sRO)}')
            A(f'  s_cmp_lt_u32 {s(f)}, {NWU}')
            A(f'  s_cselect_b32 {s(sT)}, {s(sT)}, {s(f)}')
            A(f'  s_cselect_b32 {s(sC)}, {s(f)}, {s(sC)}')
            A(f'  s_and_b32 {s(sC)}, {s(sC)}, 1')
            A(f'  s_and_b32 {s(sT)}, {s(sT)}, 31')
        A(f'  s_lshl_b32 {s(sT+1)}, {s(sT+1)}, 12')
        A(f'  s_add_u32 {s(sT)}, {s(sT)}, {s(sPB)}')
        A(f'  s_add_u32 {s(sT)}, {s(sT)}, {s(sT+1)}')
        A(f'  s_mul_hi_u32 {s(sQ3)}, {s(sT)}, {s(sDIV)}')
        A(f'  s_lshr_b32 {s(sQ3)}, {s(sQ3)}, 1')
        A(f'  s_mul_i32 {s(sT+1)}, {s(sQ3)}, 3')
        A(f'  s_sub_u32 {s(sT)}, {s(sT)}, {s(sT+1)}')
        A(f'  s_lshl3_add_u32 {s(sC)}, {s(sT)}, {s(sC)}')
        A(f'  s_mul_i32 {s(sNXT)}, {s(sQ3)}, 196608')
        A(f'  s_lshr_b32 {s(sHN)}, {s(sQ3)}, 4')
        A(f'  s_lshl_b32 {s(sT)}, {s(sC)}, 5')
        A(f'  v_add_u32 {v(TU)}, {s(sT)}, {v(DUP if isv else IUP)}')
        A(f'  v_mul_u32_u24 {v(TU)}, 21846, {v(TU)}')
        A(f'  v_lshrrev_b32 {v(TU)}, 16, {v(TU)}')
        short_masks(DOWN if isv else IOWN, sM0, sM10, sLOW + 2 * isv)
        if not isv:
            A(f'  v_mul_u32_u24 {v(X0)}, 43, {v(X0)}')
            A(f'  v_lshrrev_b32 {v(X0)}, 8, {v(X0)}')
            A(f'  v_mul_u32_u24 {v(X0)}, 384, {v(X0)}')
            A(f'  v_add_u32 {v(VKS)}, {v(X0)}, {v(VKS0)}')
    def offsets(con):
        A(f'  v_mad_u32_u24 {v(VO)}, {v(TU)}, {s(s768)}, {v(con)}')
        A(f'  v_add_u32 {v(VO+1)}, 768, {v(VO)}')
        A(f'  v_add_u32 {v(VO+2)}, {6 * 768}, {v(VO)}')
        A(f'  v_add_u32 {v(VO+3)}, {10 * 768}, {v(VO)}')
        A(f'  v_cndmask_b32 {v(VO)}, {v(VO)}, {v(VOOB)}, {s(sM0,2)}')
        A(f'  v_cndmask_b32 {v(VO+3)}, {v(VO+3)}, {v(VOOB)}, {s(sM10,2)}')
    def stamp():
        if tl:
            A(f'  s_memrealtime {s(sT,2)}')
            A('  s_waitcnt lgkmcnt(0)')
            A(f'  s_min_u32 m0, {s(sTL)}, 63')
            A(f'  v_writelane_b32 {v(TL)}, {s(sT)}, m0')
            A(f'  s_add_u32 {s(sTL)}, {s(sTL)}, 1')
    def reset_state():
        for k in range(12): A(f'  v_mov_b32 {v(ACC+k)}, 0')
        A(f'  v_mov_b32 {v(M)}, 0xff800000')
        A(f'  v_mov_b32 {v(NB)}, 0x7f800000')
        A(f'  v_mov_b32 {v(LS)}, 0')
    A(f'  s_mov_b32 {s(sF)}, s3')
    A(f'  s_mov_b32 {s(sGATE)}, {NWU}')
    A(f'  s_mov_b32 {s(sDEC)}, 0')
    C('one bulk pass pulls the scale/zero arrays into the memory-side cache (1/512 per wave); later reads of them stay off DRAM')
    A(f'  v_lshlrev_b32 {v(ZC)}, 4, v0')
    sPK, sPV = sQC, sHC
    A(f'  s_lshl1_add_u32 {s(sT)}, s2, s3')
    A(f'  s_mul_i32 {s(sPV)}, {s(sT)}, {8192 // W}')
    A(f'  s_mul_i32 {s(sPK)}, {s(sT)}, {24576 // W}')
    line = lambda srd, so, k: f'  buffer_load_dwordx4 {v(ACC,4)}, {v(ZC)}, {s(srd,4)}, {s(so)} offen offset:{(k % 4) * 1024}'
    pfl = []
    for k in range(24 // W):
        if k % 4 == 0 and k: pfl.append(f'  s_add_u32 {s(sPK)}, {s(sPK)}, 4096')
        pfl += [line(SKS, sPK, k), line(SKZ, sPK, k)]
        if k < 8 // W: pfl += [line(SVS, sPV, k), line(SVZ, sPV, k)]
    nissued = [0]
    def issue_pf(cnt):
        while pfl and cnt > 0:
            x = pfl.pop(0)
            if 'buffer_load' in x:
                if nissued[0] >= pfw: A(f'  s_waitcnt vmcnt({pfw - 1})')
                nissued[0] += 1; cnt -= 1
            A(x)
    A('  s_waitcnt lgkmcnt(0)')
    make_srds(0, 4)
    issue_pf(8)
    make_srds(4, 9)
    A(f'  s_mov_b64 {s(sOUT,2)}, {s(PT+14,2)}')
    A(f'  s_mov_b32 {s(sLOW)}, 0x0f0f0f0f')
    A(f'  s_mov_b32 {s(sLOW+1)}, 0x0f0f0f0f')
    A(f'  s_mov_b32 {s(sLOW+2)}, 0xffff')
    A(f'  s_mov_b32 {s(sLOW+3)}, 0xffff')
    map_unit(sF, 0)
    offsets(ICON)
    A(f'  s_mov_b32 {s(sCUR)}, {s(sNXT)}')
    q_loads()
    A(main_load(0, SK, sCUR))
    issue_pf(pfw - nissued[0])
    A('  s_barrier')
    A('  s_mov_b64 vcc, 0')
    A(f'  v_lshlrev_b32 {v(X0)}, 4, {v(n)}')
    stream_consts(g, DUP, DOWN, DCON, X0)
    A(f'  v_and_b32 {v(X1)}, 1, {v(g)}')
    A(f'  v_mul_u32_u24 {v(X1)}, 86, {v(X1)}')
    A(f'  v_lshl_add_u32 {v(ICV)}, {v(n)}, 1, {v(X1)}')
    A(f'  v_subrev_u32 {v(ICV)}, 86, {v(ICV)}')
    A(f'  v_lshlrev_b32 {v(VBP)}, 4, {v(g)}')
    A(f'  v_lshrrev_b32 {v(X0)}, 2, v0')
    A(f'  s_mul_i32 {s(sT)}, s3, 384')
    A(f'  v_lshl_add_u32 {v(VL1)}, {v(X0)}, 4, {s(sT)}')
    A(f'  v_lshl_add_u32 {v(VL2)}, {v(X0)}, 3, {s(sT)}')
    A(f'  s_mul_i32 {s(sT)}, s3, 3072')
    A(f'  s_add_u32 {s(sT)}, {s(sT)}, {LDS_ACC}')
    A(f'  v_lshl_add_u32 {v(VFL)}, v0, 4, {s(sT)}')
    A(f'  s_lshl_b32 {s(sT)}, s3, 5')
    A(f'  s_add_u32 {s(sT)}, {s(sT)}, {LDS_ACC + W * 3072}')
    A(f'  v_lshl_add_u32 {v(VST)}, {v(a)}, 3, {s(sT)}')
    A(f'  s_lshl2_add_u32 {s(sT)}, s3, {F_PRG}')
    A(f'  v_mov_b32 {v(VPR)}, {s(sT)}')
    A(f'  v_mov_b32 {v(ZN)}, 0')
    A(f'  v_mov_b32 {v(SN)}, 0')
    A(f'  v_mov_b32 {v(VNI)}, 0xff800000')
    A(f'  v_mov_b32 {v(AL)}, 1')
    A(f'  s_mov_b32 {s(sMSK)}, 0xffff0000')
    A(f'  s_mov_b32 {s(sL2E)}, 0x3fb8aa3b')
    for h in range(2):
        A(f'  s_mov_b32 {s(sSCL+h)}, 0x3d93cd3a')
    for j in range(4):
        A(f'  s_mov_b32 {s(sMJ+2*j)}, {hex(0x11111111 << j)}')
        A(f'  s_mov_b32 {s(sMJ+2*j+1)}, {hex(0x11111111 << j)}')
    if tl:
        A(f'  s_mov_b32 {s(sTL)}, 0')
        A(f'  v_mov_b32 {v(TL)}, 0')
    issue_pf(99)
    A(f'  s_mov_b32 {s(sHC)}, {s(sHN)}')
    kscale_loads()
    for k in range(1, D):
        A(f'  s_waitcnt vmcnt({max(DN, k) - 1 + 6})')
        A(main_load(k, SK, sCUR))
    A(f'  s_waitcnt vmcnt({D - 1})')
    A(f'  ds_write_b32 {v(VPR)}, {v(AL)}')

    def wait_step(k, nsmall, tag, ps):
        cnt = lambda d: d - 1 + (nsmall if k - d <= ps < k else 0)
        A(f'  s_waitcnt vmcnt({cnt(D)})')
        if k % bev == 0:
            A(f'  s_cbranch_vccnz L_{tag}')
            A(f'  s_waitcnt vmcnt({cnt(DN)})')
            A(f'L_{tag}:')
    def mode(k):
        if k == 0: A(f'  ds_read_b32 {v(VBS)}, {v(VPR)} offset:{F_BST - F_PRG}')
        if k == 1:
            A('  s_waitcnt lgkmcnt(0)')
            A(f'  v_cmp_lt_u32 vcc, {s(sG)}, {v(VBS)}')
    def dequant(X, src, z, sc, zmod, smod):
        r = [f'  v_cvt_f32_i32 {v(X+j)}, {v(src+j)}' for j in range(4)]
        r += [f'  v_pk_add_f32 {v(X+2*h,2)}, {v(X+2*h,2)}, {z[h]} {zmod}neg_lo:[0,1] neg_hi:[0,1]' for h in range(2)]
        r2 = [f'  v_cvt_pk_bf16_f32 {v(X+j)}, 0, {v(X+j)}' for j in range(4)]
        r2 += [f'  v_pk_mul_f32 {v(X+2*h,2)}, {v(X+2*h,2)}, {sc[h]} {smod}'.rstrip() for h in range(2)]
        return r, r2
    def kreduce(ss):
        d = S + (ss & 1)
        q = lambda j: f'quad_perm:[{j},{j},{j},{j}] row_mask:0xf bank_mask:0xf'
        r = [f'  v_mov_b32_dpp {v(X0)}, {v(SD)} {q(0)}',
             f'  v_mov_b32_dpp {v(X1)}, {v(SD+2)} {q(2)}',
             f'  v_add_f32_dpp {v(X0)}, {v(SD+1)}, {v(X0)} {q(1)}',
             f'  v_add_f32_dpp {v(X1)}, {v(SD+3)}, {v(X1)} {q(3)}',
             f'  v_add_f32 {v(d)}, {v(X0)}, {v(X1)}']
        if ss == 0: r.append(f'  v_cndmask_b32 {v(d)}, {v(d)}, {v(VNI)}, {s(sL0,2)}')
        if ss == 10: r.append(f'  v_cndmask_b32 {v(d)}, {v(d)}, {v(VNI)}, {s(sL10,2)}')
        if ss & 1 or ss == 10:
            r += [f'  v_cvt_pk_bf16_f32 {v(S)}, 0, {v(S)}',
                  f'  v_cvt_pk_bf16_f32 {v(S+1)}, 0, {v(S+1)}',
                  f'  v_pk_mul_f32 {v(S,2)}, {v(S,2)}, {s(sSCL,2)}',
                  f'  v_cvt_pk_bf16_f32 {v(LG+(ss>>1))}, {v(S)}, {v(S+1)}']
        return r
    def lds_word(dst, addr):
        A(f'  v_mov_b32 {v(X0)}, {addr}')
        A(f'  ds_read_b32 {v(X0)}, {v(X0)}')
        A('  s_waitcnt lgkmcnt(0)')
        A(f'  v_readfirstlane_b32 {s(dst)}, {v(X0)}')

    mf32 = f'  v_mfma_f32_16x16x32_bf16 {v(SD,4)}, {v(KA,4)}, {v(QB,4)}, 0'
    mf16 = f'  v_mfma_f32_16x16x16_bf16 {v(SD,4)}, {v(KA+4,2)}, {v(QB+4,2)}, {v(SD,4)}'
    def diag_mark(tag, base_):
        if diagat < 0: return
        A(f'  s_and_b32 {s(sT)}, {s(sF)}, -4')
        A(f'  s_cmp_lg_u32 {s(sT)}, {diagat - base_}')
        A(f'  s_cbranch_scc1 L_dm{tag}')
        A('  s_memrealtime s[6:7]')
        A('  s_waitcnt lgkmcnt(0)')
        A(f'L_dm{tag}:')
    def k_unit(u):
        o = NST * u
        if u == 0: diag_mark('k', 0)
        if u == 0: stamp()
        short_masks(DOWN, sL0, sL10, sLOW + 2)
        A(f'  s_mov_b32 {s(sG)}, {s(sF)}')
        A(f'  s_add_u32 {s(sF)}, {s(sF)}, {W}')
        for k in range(NST):
            ss, i = divmod(k, 3)
            mode(k)
            if k == SW:
                if u == U - 1:
                    C('the last K unit prefetches the first V unit')
                    A(f'  s_cmp_lt_u32 {s(sF)}, {NF}')
                    A('  s_cbranch_scc1 L_k_keep')
                    map_unit(3, 1)
                    A(f'  s_mov_b32 {s(SI)}, {s(SV)}')
                    A(f'  s_mov_b32 {s(SI+1)}, {s(SV+1)}')
                    vscale_loads()
                    A(f'  v_mov_b32 {v(ICON)}, {v(DCON)}')
                    A('L_k_keep:')
                offsets(ICON)
            wait_step(k, 6, f'kw{u}_{k}', PSK)
            A(main_load(o + k + D, SK, sCUR) if k < SW else main_load(o + k + D, SI, sNXT))
            if i == 2: A(mf32)
            if i == 0 and ss > 0: A(mf16)
            if ss == 0:
                for raw, dst in ((KZR, KZ), (KSR, KS)):
                    for h in range(2):
                        A(f'  v_lshlrev_b32 {v(dst+4*i+2*h)}, 16, {v(raw+2*i+h)}')
                        A(f'  v_and_b32 {v(dst+4*i+2*h+1)}, {s(sMSK)}, {v(raw+2*i+h)}')
                for h in range(2):
                    A(f'  v_mov_b32 {v(QB+2*i+h)}, {v(QN+2*i+h)}')
            c, rest = dequant(T, slot(o + k), (v(KZ+4*i,2), v(KZ+4*i+2,2)), (v(KS+4*i,2), v(KS+4*i+2,2)), '', '')
            for x in c: A(x)
            if k == PSK:
                C('next unit: class (needs the vote once), scales, q on a head change')
                A(f'  s_cmp_lt_u32 {s(sF)}, {s(sGATE)}')
                A(f'  s_cbranch_scc1 L_k_known{u}')
                A(f'L_k_spin{u}:')
                lds_word(sDEC, F_DEC)
                A(f'  s_cmp_eq_u32 {s(sDEC)}, 0')
                A(f'  s_cbranch_scc1 L_k_spin{u}')
                A(f'  s_mov_b32 {s(sGATE)}, -1')
                A(f'L_k_known{u}:')
                map_unit(sF, 0)
                A(f'  s_cmp_eq_u32 {s(sHN)}, {s(sHC)}')
                A(f'  s_cbranch_scc1 L_k_sameq{u}')
                q_loads()
                A(f'  s_mov_b32 {s(sHC)}, {s(sHN)}')
                A(f'L_k_sameq{u}:')
                kscale_loads()
            rest += [f'  v_cvt_pk_bf16_f32 {v(KA+2*i)}, {v(T)}, {v(T+1)}',
                     f'  v_cvt_pk_bf16_f32 {v(KA+2*i+1)}, {v(T+2)}, {v(T+3)}']
            if i == 1 and ss > 0:
                r = kreduce(ss - 1)
                rest = r[:2] + rest[:2] + r[2:4] + rest[2:4] + r[4:5] + rest[4:]
                pend = r[5:]
            elif i == 2 and ss > 0:
                rest = merge(rest, pend)
            for x in rest: A(x)
        A(f'  s_mov_b32 {s(sCUR)}, {s(sNXT)}')
        A(f'  v_mov_b32 {v(AL)}, {s(sF)}')
        A(mf16)
        A(f'  ds_write_b128 {v(VL1)}, {v(LG,4)}')
        A(f'  v_add_u32 {v(VL1)}, {384 * W}, {v(VL1)}')
        for x in kreduce(10): A(x)
        A(f'  ds_write_b64 {v(VL2)}, {v(LG+4,2)} offset:256')
        A(f'  ds_write_b32 {v(VPR)}, {v(AL)}')
        A(f'  v_add_u32 {v(VL2)}, {384 * W}, {v(VL2)}')
    C('---------------- K loop: two units per trip')
    A('L_k:')
    for u in range(U): k_unit(u)
    A(f'  s_cmp_lt_u32 {s(sF)}, {NF}')
    A('  s_cbranch_scc1 L_k')

    def flush():
        C('park the partial result of the finished head segment in slot 2*(head&1) + (segment ends the head)')
        A(f'  s_and_b32 {s(sT)}, {s(sQC)}, 15')
        A(f'  s_cmp_ge_u32 {s(sT)}, 12')
        A(f'  s_cselect_b32 {s(sT)}, {SEG}, 0')
        A(f'  s_bitcmp1_b32 {s(sQC)}, 4')
        A(f'  s_cselect_b32 {s(sT+1)}, {2 * SEG}, 0')
        A(f'  s_add_u32 {s(sT)}, {s(sT)}, {s(sT+1)}')
        A(f'  v_mov_b32 {v(X1)}, {v(LS)}')
        A(f'  v_add_u32 {v(X0)}, {s(sT)}, {v(VFL)}')
        A(f'  v_add_u32 {v(ALQ)}, {s(sT)}, {v(VST)}')
        A(f'  v_permlane32_swap_b32 {v(LS)}, {v(X1)}')
        A(f'  v_add_f32 {v(LS)}, {v(LS)}, {v(X1)}')
        A(f'  v_mov_b32 {v(X1)}, {v(LS)}')
        for i in range(3):
            A(f'  ds_write_b128 {v(X0)}, {v(ACC+4*i,4)} offset:{1024*i}')
        A(f'  v_permlane16_swap_b32 {v(LS)}, {v(X1)}')
        A(f'  v_add_f32 {v(LS)}, {v(LS)}, {v(X1)}')
        A(f'  ds_write_b64 {v(ALQ)}, {v(NB,2)}')
    def import_gate(tag):
        A(f'  s_cmp_lt_u32 {s(sF)}, {s(sGATE)}')
        A(f'  s_cbranch_scc1 L_{tag}_ok')
        A(f'L_{tag}_spin:')
        lds_word(sGATE, F_IMP)
        A(f'  s_cmp_lt_u32 {s(sF)}, {s(sGATE)}')
        A(f'  s_cbranch_scc0 L_{tag}_spin')
        A(f'L_{tag}_ok:')

    C('---------------- V loop: two units per trip')
    A(f'  v_subrev_u32 {v(VL1)}, {IMG - 32 * 384 * kord}, {v(VL1)}')
    A(f'  v_subrev_u32 {v(VL2)}, {IMG - 32 * 384 * kord}, {v(VL2)}')
    A(f'  s_mov_b32 {s(sF)}, s3')
    A(f'  s_mov_b32 {s(sHC)}, {s(sHN)}')
    A(f'  s_mov_b32 {s(sGATE)}, 0')
    A(f'  s_mov_b32 {s(SQ)}, {s(sOUT)}')
    A(f'  s_and_b32 {s(SQ+1)}, {s(sOUT+1)}, 0xffff')
    import_gate('v0')
    A(f'  ds_read_b128 {v(LG,4)}, {v(VL1)}')
    A(f'  ds_read_b64 {v(LG+4,2)}, {v(VL2)} offset:256')
    reset_state()
    def v_unit(u):
        o = NST * u
        A(f'L_v{u}:')
        if u == 0: diag_mark('v', NF)
        if u == 0: stamp()
        A(f'  s_add_u32 {s(sG)}, {s(sF)}, {NF}')
        A(f'  v_mov_b32 {v(AL)}, {s(sG)}')
        A(f'  s_mov_b32 {s(sQC)}, {s(sQ3)}')
        A(f'  ds_write_b32 {v(VPR)}, {v(AL)}')
        A(f'  s_add_u32 {s(sF)}, {s(sF)}, {W}')
        import_gate(f'v1{u}')
        map_unit(sF, 1)
        A(f'  s_cmp_lt_u32 {s(sF)}, {NF}')
        A(f'  s_cselect_b32 {s(sNXT)}, {s(sNXT)}, {TOTAL}')
        stp = 384 * W
        if kord and u == U - 1:
            stp = s(sL0)
            A(f'  s_lshr_b32 {s(sT)}, {s(sF)}, 1')
            A(f'  s_cmp_eq_u32 {s(sT)}, 32')
            A(f'  s_cselect_b32 {stp}, {384 * W - IMG}, {s(s768)}')
        prep = []
        for k in range(11):
            prep.append(f'  v_lshlrev_b32 {v(E+k)}, 16, {v(LG+k//2)}' if k % 2 == 0 else f'  v_and_b32 {v(E+k)}, {s(sMSK)}, {v(LG+k//2)}')
        prep += [f'  v_add_u32 {v(VL1)}, {stp}, {v(VL1)}',
                 f'  v_add_u32 {v(VL2)}, {stp}, {v(VL2)}',
                 f'  v_max3_f32 {v(X0)}, {v(E)}, {v(E+1)}, {v(E+2)}',
                 f'  ds_read_b128 {v(LG,4)}, {v(VL1)}',
                 f'  ds_read_b64 {v(LG+4,2)}, {v(VL2)} offset:256',
                 f'  v_max3_f32 {v(X1)}, {v(E+3)}, {v(E+4)}, {v(E+5)}',
                 f'  v_max3_f32 {v(X0)}, {v(X0)}, {v(E+6)}, {v(E+7)}',
                 f'  v_max3_f32 {v(X1)}, {v(X1)}, {v(E+8)}, {v(E+9)}',
                 f'  v_max3_f32 {v(X0)}, {v(X0)}, {v(E+10)}, {v(M)}',
                 f'  v_max_f32 {v(X0)}, {v(X0)}, {v(X1)}',
                 f'  v_mov_b32 {v(X1)}, {v(X0)}',
                 f'  v_permlane32_swap_b32 {v(X0)}, {v(X1)}',
                 f'  v_max_f32 {v(X0)}, {v(X0)}, {v(X1)}',
                 f'  v_mov_b32 {v(X1)}, {v(X0)}',
                 f'  v_permlane16_swap_b32 {v(X0)}, {v(X1)}',
                 f'  v_max_f32 {v(M)}, {v(X0)}, {v(X1)}',
                 f'  v_mul_f32 {v(X0)}, {s(sL2E)}, {v(M)}',
                 f'  v_add_f32 {v(AL)}, {v(X0)}, {v(NB)}',
                 f'  v_sub_f32 {v(NB)}, 0, {v(X0)}',
                 f'  v_exp_f32 {v(AL)}, -{v(AL)}',
                 f'  ds_bpermute_b32 {v(ALQ)}, {v(VBP)}, {v(AL)}']
        for k in range(11):
            prep += [f'  v_fma_f32 {v(E+k)}, {v(E+k)}, {s(sL2E)}, {v(NB)}', f'  v_exp_f32 {v(E+k)}, {v(E+k)}']
        prep += [f'  v_add_f32 {v(X0)}, {v(E)}, {v(E+1)}', f'  v_add_f32 {v(X1)}, {v(E+2)}, {v(E+3)}']
        for k in range(4, 11):
            x = X0 if k % 2 == 0 else X1
            prep.append(f'  v_add_f32 {v(x)}, {v(x)}, {v(E+k)}')
        prep += [f'  v_add_f32 {v(X0)}, {v(X0)}, {v(X1)}',
                 f'  v_fma_f32 {v(LS)}, {v(LS)}, {v(AL)}, {v(X0)}']
        for k in range(6):
            prep.append(f'  v_cvt_pk_bf16_f32 {v(PP+k)}, {v(E+2*k)}, {v(E+2*k+1) if k < 5 else 0}')
        for j in range(4):
            for k in range(4):
                prep.append(f'  v_cndmask_b32 {v(AJ+4*j+k)}, 0, {v(PP+k)}, {s(sMJ+2*j,2)}')
        prep.append('  s_waitcnt lgkmcnt(0)')
        for k in range(12):
            prep.append(f'  v_mul_f32 {v(ACC+k)}, {v(ALQ)}, {v(ACC+k)}')
        prep2 = [f'  v_cndmask_b32 {v(AK+2*j+k)}, 0, {v(PP+4+k)}, {s(sMJ+2*j,2)}' for j in range(4) for k in range(2)]
        for k in range(NST):
            ss, i = divmod(k, 3)
            mode(k)
            if k == SW: offsets(DCON)
            wait_step(k, 2, f'vw{u}_{k}', PSV)
            A(main_load(o + k + D, SV, sCUR if k < SW else sNXT))
            if k == 0:
                A(f'  v_mov_b32 {v(ZC)}, {v(ZN)}')
                A(f'  v_mov_b32 {v(SC)}, {v(SN)}')
            X = TV + 4 * i if ss % 2 == 0 else T
            c, rest = dequant(X, slot(o + k), (v(ZS,2), v(ZS,2)), (v(ZS,2), v(ZS,2)), 'op_sel_hi:[1,0] ', 'op_sel:[0,1]')
            if i == 0:
                c[2:2] = [f'  v_mov_b32_dpp {v(ZS)}, {v(ZC)} row_newbcast:{ss} row_mask:0xf bank_mask:0xf',
                          f'  v_mov_b32_dpp {v(ZS+1)}, {v(SC)} row_newbcast:{ss} row_mask:0xf bank_mask:0xf']
            for x in c: A(x)
            if k == PSV: vscale_loads()
            if ss % 2 == 1:
                rest += [f'  v_cvt_pk_bf16_f32 {v(BV+16*i+4*j+((ss>>1)&3))}, {v(TV+4*i+j)}, {v(T+j)}' for j in range(4)]
            if ss == 10:
                rest += [f'  v_cvt_pk_bf16_f32 {v(BV+16*i+4*j+1)}, {v(TV+4*i+j)}, 0' for j in range(4)]
            side = []
            if k >= 1: side, prep = prep[:5], prep[5:]
            if k == 20: assert not prep
            if k == 23: prep = prep2
            for x in merge(rest, side): A(x)
            if ss == 7:
                for j in range(4):
                    A(f'  v_mfma_f32_16x16x32_bf16 {v(ACC+4*i,4)}, {v(AJ+4*j,4)}, {v(BV+16*i+4*j,4)}, {v(ACC+4*i,4)}')
            if ss == 10:
                assert not prep
                for j in range(4):
                    A(f'  v_mfma_f32_16x16x16_bf16 {v(ACC+4*i,4)}, {v(AK+2*j,2)}, {v(BV+16*i+4*j,2)}, {v(ACC+4*i,4)}')
        A(f'  s_mov_b32 {s(sCUR)}, {s(sNXT)}')
        if u == U - 1:
            A(f'  s_cmp_ge_u32 {s(sF)}, {NF}')
            A('  s_cbranch_scc1 L_v_done')
            A(f'  s_cmp_eq_u32 {s(sHN)}, {s(sHC)}')
            A('  s_cbranch_scc1 L_v0')
            A(f'  s_mov_b32 {s(sHC)}, {s(sHN)}')
            flush()
            A('  s_waitcnt lgkmcnt(0)')
            reset_state()
            A('  s_branch L_v0')
    assert 16 % (W * U) == 0
    for u in range(U): v_unit(u)
    A('L_v_done:')
    stamp()
    flush()
    C('---------------- all three waves: wave i finishes dims 64i..64i+63 of the four segments')
    A('L_finish:')
    AC = (base + 3) // 4 * 4
    OF = AC; ST = AC + 8; PA = ST + 16; FR = PA + 32
    nv = max(nv, FR + 24)
    TB, VA, VS_, VG, VH = E, E + 4, E + 6, E + 8, E + 9
    TAG = OF + 7
    A(f'  v_mov_b32 {v(X0)}, {F_END}')
    A(f'  ds_read_b128 {v(OF,4)}, {v(X0)}')
    A(f'  ds_read_b128 {v(OF+4,4)}, {v(X0)} offset:16')
    A(f'  s_mul_i32 {s(sT)}, {s(sRO)}, {SEG}')
    A(f'  s_lshl_b32 {s(sT+1)}, s3, 10')
    A(f'  v_lshl_add_u32 {v(VA)}, v0, 4, {s(sT+1)}')
    A(f'  v_lshrrev_b32 {v(X1)}, 4, v0')
    A(f'  v_lshlrev_b32 {v(VS_)}, 3, {v(X1)}')
    A(f'  v_add_u32 {v(VS_)}, {LDS_ACC + W * 3072}, {v(VS_)}')
    A(f'  s_sub_u32 {s(sG)}, {SEG}, {s(sT)}')
    A(f'  v_add_u32 {v(VA+1)}, {s(sG)}, {v(VA)}')
    A(f'  v_add_u32 {v(M)}, {s(sT)}, {v(VA)}')
    A(f'  s_sub_u32 {s(sG)}, {2 * SEG}, {s(sT)}')
    A(f'  v_add_u32 {v(ZN)}, {s(sG)}, {v(VS_)}')
    A(f'  s_add_u32 {s(sG)}, {s(sT)}, {SEG}')
    A(f'  v_add_u32 {v(SN)}, {s(sG)}, {v(VS_)}')
    A(f'  v_add_u32 {v(VS_+1)}, {3 * SEG}, {v(VS_)}')
    A(f'  s_mul_i32 {s(sT)}, s3, {PIECE}')
    A(f'  v_lshl_add_u32 {v(VG)}, v0, 4, {s(sT)}')
    A(f'  v_lshl_add_u32 {v(VH)}, {v(X1)}, 4, {s(sT)}')
    A(f'  v_mul_u32_u24 {v(AL)}, 384, {v(X1)}')
    A(f'  v_and_b32 {v(X1)}, 15, v0')
    A(f'  v_lshl_add_u32 {v(AL)}, {v(X1)}, 3, {v(AL)}')
    A(f'  s_movk_i32 {s(sMSK)}, 0xff00')
    A(f'  s_mov_b32 {s(sL0)}, 0x10001')
    A(f'  s_mov_b32 {s(sL0+1)}, 0x10001')
    A(f'  s_mov_b32 {s(sL10)}, 0x0c0c0400')
    A(f'  s_mov_b32 {s(sL10+1)}, 0x05040100')
    A(f'  s_mov_b32 {s(sF)}, 0')
    A('  s_waitcnt vmcnt(0) lgkmcnt(0)')
    sO = 72
    def fetch(r):
        A(f'  buffer_load_dwordx4 {v(FR+8*r,4)}, {v(VG)}, {s(SWS,4)}, {s(sO+3+r)} offen sc1')
        A(f'  buffer_load_dwordx4 {v(FR+8*r+4,4)}, {v(VH)}, {s(SWS,4)}, {s(sO+3+r)} offen offset:1024 sc1')
    A('  s_barrier')
    slots = ((VA, 0, VS_), (VA, 3, VS_ + 1), (VA + 1, 1, ZN), (M, 1, SN))
    for j, (va_, sl, vs_) in enumerate(slots):
        A(f'  ds_read2_b64 {v(ST+4*j,4)}, {v(vs_)} offset1:4')
        for w in range(W):
            A(f'  ds_read_b128 {v(PA+8*j+4*w,4)}, {v(va_)} offset:{LDS_ACC + sl * SEG + 3072*w}')
    for k in range(7): A(f'  v_readfirstlane_b32 {s(sO+k)}, {v(OF+k)}')
    for k in range(4): A(f'  v_bfe_u32 {v(TB+k)}, {v(TAG)}, {8 * k}, 8')
    C('three segments are published, the fourth belongs to the head this workgroup owns')
    for j in range(4):
        st = ST + 4 * j; pa = PA + 8 * j
        A(f'  s_waitcnt lgkmcnt({3 * (3 - j)})')
        A(f'  v_min_f32 {v(X0)}, {v(st)}, {v(st+2)}')
        for w in range(2): A(f'  v_sub_f32 {v(st+2*w)}, {v(X0)}, {v(st+2*w)}')
        for w in range(2): A(f'  v_exp_f32 {v(st+2*w)}, {v(st+2*w)}')
        A(f'  v_mul_f32 {v(X1)}, {v(st)}, {v(st+1)}')
        for h in range(2): A(f'  v_pk_mul_f32 {v(pa+2*h,2)}, {v(pa+2*h,2)}, {v(st,2)} op_sel_hi:[1,0]')
        for h in range(2): A(f'  v_pk_fma_f32 {v(pa+2*h,2)}, {v(pa+4+2*h,2)}, {v(st+2,2)}, {v(pa+2*h,2)} op_sel_hi:[1,0,1]')
        A(f'  v_fma_f32 {v(pa+5)}, {v(st+2)}, {v(st+3)}, {v(X1)}')
        A(f'  v_mov_b32 {v(pa+4)}, {v(X0)}')
        if j < 3:
            for x in range(4): A(f'  v_and_or_b32 {v(pa+x)}, {v(pa+x)}, {s(sMSK)}, {v(TB+x)}')
            A(f'  v_mov_b32 {v(pa+7)}, {v(TAG)}')
            A(f'  buffer_store_dwordx4 {v(pa,4)}, {v(VG)}, {s(SWS,4)}, {s(sO+j)} offen sc1')
            A(f'  s_mov_b64 exec, {s(sL0,2)}')
            A(f'  buffer_store_dwordx4 {v(pa+4,4)}, {v(VH)}, {s(SWS,4)}, {s(sO+j)} offen offset:1024 sc1')
            A('  s_mov_b64 exec, -1')
        if j == 2:
            stamp()
            for r in range(3): fetch(r)
    A('  s_branch L_check')
    C('gather the three foreign records of the owned head; a granule counts once it carries this launch\'s tag')
    A('L_gather:')
    A(f'  s_add_u32 {s(sF)}, {s(sF)}, 1')
    A(f'  s_cmp_gt_u32 {s(sF)}, 20000')
    A('  s_cbranch_scc1 L_end')
    for r in range(3):
        A(f'  s_bitcmp0_b32 {s(sMISS)}, {r}')
        A(f'  s_cbranch_scc1 L_have{r}')
        fetch(r)
        A(f'L_have{r}:')
    A('L_check:')
    A(f'  s_mov_b32 {s(sMISS)}, 0')
    A('  s_waitcnt vmcnt(0)')
    for r in range(3):
        b = FR + 8 * r
        A(f'  v_perm_b32 {v(X0)}, {v(b+1)}, {v(b)}, {s(sL10)}')
        A(f'  v_perm_b32 {v(X1)}, {v(b+3)}, {v(b+2)}, {s(sL10)}')
        A(f'  v_cmp_ne_u32 vcc, {v(TAG)}, {v(b+7)}')
        A(f'  v_perm_b32 {v(X0)}, {v(X1)}, {v(X0)}, {s(sL10+1)}')
        A(f'  v_cmp_ne_u32 {s(sT,2)}, {v(TAG)}, {v(X0)}')
        A(f'  s_or_b64 {s(sT,2)}, {s(sT,2)}, vcc')
        A(f'  s_cselect_b32 {s(sT)}, {1 << r}, 0')
        A(f'  s_or_b32 {s(sMISS)}, {s(sMISS)}, {s(sT)}')
    A('  s_cbranch_scc1 L_gather')
    stamp()
    C('(own + partner) + (neighbour pair): products are rounded separately, so the sum does not depend on who had which class')
    B4 = [PA + 24, FR, FR + 8, FR + 16]
    A(f'  v_min_f32 {v(X0)}, {v(B4[0]+4)}, {v(B4[1]+4)}')
    A(f'  v_min3_f32 {v(X0)}, {v(X0)}, {v(B4[2]+4)}, {v(B4[3]+4)}')
    for b in B4: A(f'  v_sub_f32 {v(b+4)}, {v(X0)}, {v(b+4)}')
    for b in B4: A(f'  v_exp_f32 {v(b+4)}, {v(b+4)}')
    for b in B4:
        for x in range(4): A(f'  v_and_b32 {v(b+x)}, {s(sMSK)}, {v(b+x)}')
    for b in B4: A(f'  v_mul_f32 {v(b+5)}, {v(b+4)}, {v(b+5)}')
    A(f'  v_add_f32 {v(B4[0]+5)}, {v(B4[0]+5)}, {v(B4[1]+5)}')
    A(f'  v_add_f32 {v(B4[2]+5)}, {v(B4[2]+5)}, {v(B4[3]+5)}')
    A(f'  v_add_f32 {v(X0)}, {v(B4[0]+5)}, {v(B4[2]+5)}')
    A(f'  v_rcp_f32 {v(X0)}, {v(X0)}')
    A(f'  s_lshl_b32 {s(sT)}, s3, 7')
    A(f'  s_add_u32 {s(sT)}, {s(sT)}, {s(sO+6)}')
    for x in (0, 2):
        for b in B4: A(f'  v_pk_mul_f32 {v(b+x,2)}, {v(b+x,2)}, {v(b+4,2)} op_sel_hi:[1,0]')
        A(f'  v_pk_add_f32 {v(B4[0]+x,2)}, {v(B4[0]+x,2)}, {v(B4[1]+x,2)}')
        A(f'  v_pk_add_f32 {v(B4[2]+x,2)}, {v(B4[2]+x,2)}, {v(B4[3]+x,2)}')
        A(f'  v_pk_add_f32 {v(B4[0]+x,2)}, {v(B4[0]+x,2)}, {v(B4[2]+x,2)}')
        A(f'  v_pk_mul_f32 {v(B4[0]+x,2)}, {v(B4[0]+x,2)}, {v(X0,2)} op_sel_hi:[1,0]')
        A(f'  v_cvt_pk_bf16_f32 {v(ACC+x//2)}, {v(B4[0]+x)}, {v(B4[0]+x+1)}')
    A(f'  buffer_store_dwordx2 {v(ACC,2)}, {v(AL)}, {s(SQ,4)}, {s(sT)} offen')
    A('L_fin:')
    if diagpad:
        A('L_diag:')
        A(f'  s_memrealtime {s(sBIG,2)}')
        A('  s_waitcnt lgkmcnt(0)')
        A(f'  s_sub_u32 {s(sBIG)}, {s(sBIG)}, s6')
        A(f'  s_cmp_lt_u32 {s(sBIG)}, {diagpad * 100}')
        A('  s_cbranch_scc1 L_diag')
    if tl:
        A(f'  s_mul_i32 {s(sT)}, s2, {W+1}')
        A(f'  s_add_u32 {s(sT)}, {s(sT)}, s3')
        A(f'  s_lshl_b32 {s(sT)}, {s(sT)}, 8')
        A(f'  s_add_u32 {s(sT)}, {s(sT)}, 0x10000')
        A(f'  v_lshl_add_u32 {v(E)}, v0, 2, {s(sT)}')
        A(f'  global_store_dword {v(E)}, {v(TL)}, {s(sWS,2)}')
    if stamps:
        A('  s_waitcnt vmcnt(0)')
        A(f'  s_memrealtime {s(sBIG,2)}')
        A(f'  s_getreg_b32 {s(sSM)}, hwreg(HW_REG_XCC_ID)')
        A(f'  s_mul_i32 {s(sT)}, s2, {W+1}')
        A(f'  s_add_u32 {s(sT)}, {s(sT)}, s3')
        A(f'  s_lshl_b32 {s(sT)}, {s(sT)}, 4')
        A('  s_waitcnt lgkmcnt(0)')
        A(f'  v_mov_b32 {v(RING)}, s6')
        A(f'  v_mov_b32 {v(RING+1)}, {s(sBIG)}')
        A(f'  v_mov_b32 {v(RING+2)}, {s(sSM)}')
        A(f'  v_mov_b32 {v(RING+3)}, {s(sDEC)}')
        A(f'  v_mov_b32 {v(X0)}, {s(sT)}')
        A('  s_mov_b64 exec, 1')
        A(f'  global_store_dwordx4 {v(X0)}, {v(RING,4)}, {s(sWS,2)}')
    A('L_end:')
    A('  s_endpgm')

    C('================= helper wave')
    A('L_helper:')
    if tl:
        A(f'  s_mov_b32 {s(sTL)}, 0')
        A(f'  v_mov_b32 {v(TL)}, 0')
    hA, hZ, hO, h1, h2, h3, hD = 1, 2, 3, 4, 5, 6, 8
    hP, hQ, hC, hX, hW, hU, hT = hD + 96, hD + 97, hD + 98, hD + 100, hD + 104, hD + 105, hD + 106
    assert hT + 1 < TL
    A(f'  v_lshlrev_b32 {v(hA)}, 2, v0')
    A(f'  v_add_u32 {v(hA)}, {LDS_F}, {v(hA)}')
    A(f'  v_mov_b32 {v(hZ)}, 0')
    A('  s_mov_b64 exec, 0xff')
    A(f'  ds_write_b32 {v(hA)}, {v(hZ)}')
    A('  s_mov_b64 exec, -1')
    A('  s_waitcnt lgkmcnt(0)')
    make_srds(4, 9)
    A(f'  s_mov_b32 {s(SQ)}, {s(PT+14)}')
    A(f'  s_and_b32 {s(SQ+1)}, {s(PT+15)}, 0xffff')
    A('  s_barrier')
    sOF, sN0, sV0, sJ, sSF, sA, sB, sX, sCNT, sME, sPA, sFA, sFS, sQD = 44, 45, 48, 50, 52, 54, 56, 58, 59, 60, 61, 62, 63, 64
    sT0, sNON, sCP, sCA, sUP, sRET, sSUB = 72, 74, 76, 77, 78, 84, 86
    A(f'  s_memrealtime {s(sT0,2)}')
    def code_touch(tag):
        A(f'  s_lshr_b32 {s(sT)}, s2, 3')
        A(f'  s_cmp_lt_u32 {s(sT)}, (L_code_end - L_k) / 1024')
        A(f'  s_cbranch_scc0 L_h_ct{tag}')
        A(f'  global_load_dwordx4 {v(hX,4)}, {v(hC,2)}, off')
        A(f'L_h_ct{tag}:')
    C('workgroup i reads kilobyte i/8 of this kernel\'s code so that first instruction fetches hit L2')
    A(f'  s_getpc_b64 {s(sA,2)}')
    A('L_h_pc:')
    A(f'  s_add_u32 {s(sSUB)}, {s(sA)}, L_h_cp - L_h_pc')
    A(f'  s_addc_u32 {s(sSUB+1)}, {s(sA+1)}, 0')
    A(f'  s_sub_u32 {s(sA)}, {s(sA)}, L_h_pc - L_k')
    A(f'  s_subb_u32 {s(sA+1)}, {s(sA+1)}, 0')
    A(f'  s_and_b32 {s(sA)}, {s(sA)}, -16')
    A(f'  s_lshr_b32 {s(sT)}, s2, 3')
    A(f'  s_lshl_b32 {s(sT)}, {s(sT)}, 10')
    A(f'  v_lshl_add_u32 {v(hC)}, v0, 4, {s(sT)}')
    A(f'  v_mov_b32 {v(hC+1)}, {s(sA+1)}')
    A(f'  v_add_co_u32 {v(hC)}, vcc, {s(sA)}, {v(hC)}')
    A(f'  v_addc_co_u32 {v(hC+1)}, vcc, 0, {v(hC+1)}, vcc')
    code_touch('a')
    A(f'  s_lshr_b32 {s(sT)}, s2, 4')
    A(f'  s_and_b32 {s(sT)}, {s(sT)}, 8')
    A(f'  s_and_b32 {s(sT+1)}, s2, 7')
    A(f'  s_add_u32 {s(sT)}, {s(sT)}, {s(sT+1)}')
    A(f'  s_lshl_b32 {s(sT)}, {s(sT)}, 4')
    A(f'  v_lshl_add_u32 {v(hP)}, v0, 3, {s(sT)}')
    A(f'  v_and_b32 {v(hQ)}, 31, v0')
    A(f'  v_lshlrev_b32 {v(hQ)}, 3, {v(hQ)}')
    A(f'  v_and_b32 {v(hW)}, 1, v0')
    A(f'  v_lshlrev_b32 {v(hW)}, 2, {v(hW)}')
    A(f'  v_add_u32 {v(hW)}, {F_PRG}, {v(hW)}')
    A(f'  v_mov_b32 {v(hU)}, 0')
    A(f'  v_lshlrev_b32 {v(hO)}, 4, v0')
    A(f'  s_mov_b32 {s(sCP)}, {cp0}')
    A(f'  s_mov_b32 {s(sCA)}, {WS_CP}')
    def wait_progress(tag, lim, slp):
        A(f'L_h_prog{tag}:')
        A(f'  s_sleep {slp}')
        A(f'  ds_read_b32 {v(hD)}, {v(hW)}')
        A('  s_waitcnt lgkmcnt(0)')
        A(f'  v_cmp_gt_u32 vcc, {lim}, {v(hD)}')
        A('  s_cmp_lg_u32 vcc_lo, 0')
        A(f'  s_cbranch_scc1 L_h_prog{tag}')
    def lds_set(addr, val):
        A(f'  v_mov_b32 {v(hA)}, {addr}')
        A(f'  v_mov_b32 {v(h2)}, {val}')
        A(f'  ds_write_b32 {v(hA)}, {v(h2)}')
    C('vote word in d_debug: six 6-bit tallies (class near die 0 in even pages, per slab of qk and qv), four 4-bit tallies')
    C(f'(die of role 0 per wg&3) and the voter count in the top byte; {7 * NV} workgroups vote')
    A(f'  s_getreg_b32 {s(sJ)}, hwreg(HW_REG_XCC_ID)')
    A(f'  s_bfe_u32 {s(sJ)}, {s(sJ)}, 0x10002')
    A(f'  s_bfe_u32 {s(sSF)}, s2, 0x30003')
    A(f'  s_cmp_eq_u32 {s(sSF)}, 7')
    A('  s_cbranch_scc1 L_h_voted')
    A(f'  s_lshr_b32 {s(sT)}, s2, 6')
    A(f'  s_xor_b32 {s(sT)}, {s(sT)}, s2')
    A(f'  s_and_b32 {s(sT)}, {s(sT)}, {32 // NV - 1}')
    A('  s_cbranch_scc1 L_h_voted')
    A(f'  s_cmp_eq_u32 {s(sSF)}, 6')
    A('  s_cbranch_scc0 L_h_probe')
    A(f'  s_xor_b32 {s(sV0)}, {s(sJ)}, {s(sRO)}')
    A(f'  s_and_b32 {s(sSF)}, s2, 3')
    A(f'  s_lshl2_add_u32 {s(sSF)}, {s(sSF)}, 36')
    A('  s_branch L_h_vote')
    A('L_h_probe:')
    A(f'  s_cmp_ge_u32 {s(sSF)}, 3')
    A(f'  s_cselect_b32 {s(SI)}, {s(SV)}, {s(SK)}')
    A(f'  s_cselect_b32 {s(SI+1)}, {s(SV+1)}, {s(SK+1)}')
    A(f'  s_cselect_b32 {s(sT)}, 3, 0')
    A(f'  s_sub_u32 {s(sT)}, {s(sSF)}, {s(sT)}')
    A(f'  s_lshl_b32 {s(sT)}, {s(sT)}, 28')
    A(f'  s_add_u32 {s(sOF)}, {s(sPB)}, {s(sRO)}')
    A(f'  s_lshl_b32 {s(sOF)}, {s(sOF)}, 16')
    A(f'  s_add_u32 {s(sOF)}, {s(sOF)}, {s(sT)}')
    A(f'  s_add_u32 {s(sOF)}, {s(sOF)}, 0x1c0000')
    A(f'  s_mul_i32 {s(sT)}, s2, 0x2a95')
    A(f'  s_and_b32 {s(sT)}, {s(sT)}, 0x7f80')
    A(f'  s_add_u32 {s(sOF)}, {s(sOF)}, {s(sT)}')
    A(f'  s_add_u32 {s(sT)}, {s(sOF)}, 0x8000')
    A(f'  s_buffer_load_dword {s(sX)}, {s(SI,4)}, {s(sT)}')
    A(f'  s_mov_b32 {s(sN0)}, -1')
    A(f'  s_mov_b32 {s(sN0+1)}, -1')
    A(f'  s_mul_i32 {s(sSF)}, {s(sSF)}, 6')
    wait_progress('p', 1, 2)
    for k in range(NS):
        for c in ((0, 1) if k % 2 == 0 else (1, 0)):
            o = (((k & 1) << 14) | ((k >> 1 & 1) << 12) | ((k * 0x380) & 0xfff)) ^ (c << 13)
            A(f'  s_xor_b32 {s(sT)}, {s(sOF)}, {o}')
            A(f'  s_memtime {s(sA,2)}')
            A('  s_waitcnt lgkmcnt(0)')
            A(f'  s_buffer_load_dword {s(sX)}, {s(SI,4)}, {s(sT)}')
            A('  s_waitcnt lgkmcnt(0)')
            A(f'  s_memtime {s(sB,2)}')
            A('  s_waitcnt lgkmcnt(0)')
            A(f'  s_sub_u32 {s(sB)}, {s(sB)}, {s(sA)}')
            A(f'  s_min_u32 {s(sN0+c)}, {s(sN0+c)}, {s(sB)}')
    A(f'  s_cmp_lt_u32 {s(sN0+1)}, {s(sN0)}')
    A(f'  s_cselect_b32 {s(sV0)}, 1, 0')
    A(f'  s_lshr_b32 {s(sT)}, {s(sOF)}, 13')
    A(f'  s_xor_b32 {s(sT)}, {s(sT)}, s2')
    A(f'  s_xor_b32 {s(sT)}, {s(sT)}, {s(sJ)}')
    A(f'  s_and_b32 {s(sT)}, {s(sT)}, 1')
    A(f'  s_xor_b32 {s(sV0)}, {s(sV0)}, {s(sT)}')
    A('L_h_vote:')
    A(f'  s_mov_b32 {s(sV0+1)}, 0')
    A(f'  s_lshl_b64 {s(sV0,2)}, {s(sV0,2)}, {s(sSF)}')
    A(f'  s_or_b32 {s(sV0+1)}, {s(sV0+1)}, 0x1000000')
    A(f'  s_atomic_add_x2 {s(sV0,2)}, {s(sDBG,2)}, 0')
    A('L_h_voted:')
    A('  s_waitcnt lgkmcnt(0)')
    C('launch nonce (tells this launch\'s hand-offs in ws from older contents)')
    A('  s_cmp_lg_u32 s2, 56')
    A('  s_cbranch_scc1 L_h_nonce')
    A(f'  s_lshl_b64 {s(sA,2)}, {s(sT0,2)}, 2')
    A(f'  s_atomic_add_x2 {s(sA,2)}, {s(sDBG,2)}, 8')
    A('  s_waitcnt lgkmcnt(0)')
    A('L_h_nonce:')
    stamp()
    def checkpoints(upto):
        A(f'  s_mov_b32 {s(sUP)}, {min(upto, last) - dly}')
        A(f'  s_swappc_b64 {s(sRET,2)}, {s(sSUB,2)}')
    def bounded(label, n):
        A(f'  s_add_u32 {s(sCNT)}, {s(sCNT)}, 1')
        A(f'  s_cmp_gt_u32 {s(sCNT)}, {n}')
        A(f'  s_cbranch_scc1 {label}')
    wait_progress('v', NWU - W, 8)
    A(f'  s_load_dwordx2 {s(sV0,2)}, {s(sDBG,2)}, 0')
    A(f'  s_mov_b32 {s(sCNT)}, 0')
    A('L_h_votes:')
    A('  s_waitcnt lgkmcnt(0)')
    A(f'  s_lshr_b32 {s(sT)}, {s(sV0+1)}, 24')
    A(f'  s_cmp_eq_u32 {s(sT)}, {7 * NV}')
    A('  s_cbranch_scc1 L_h_votes_done')
    bounded('L_h_votes_done', 2000)
    A('  s_sleep 64')
    A(f'  s_mov_b64 {s(sV0,2)}, 0')
    A(f'  s_atomic_or_x2 {s(sV0,2)}, {s(sDBG,2)}, 0 glc')
    A('  s_branch L_h_votes')
    A('L_h_votes_done:')
    A(f'  s_mov_b32 {s(sDEC)}, 0x80')
    for j in range(6):
        A(f'  s_bfe_u64 {s(sA,2)}, {s(sV0,2)}, {hex(0x60000 | (6 * j))}')
        A(f'  s_cmp_gt_u32 {s(sA)}, {NV // 2}')
        A(f'  s_cselect_b32 {s(sB)}, {1 << j}, 0')
        A(f'  s_or_b32 {s(sDEC)}, {s(sDEC)}, {s(sB)}')
    if force >= 0: A(f'  s_mov_b32 {s(sDEC)}, {0x80 | force}')
    A(f'  s_and_b32 {s(sT)}, s2, 3')
    A(f'  s_lshl2_add_u32 {s(sT)}, {s(sT)}, {4 + (NV // 4).bit_length() - 1}')
    A(f'  s_lshr_b32 {s(sA)}, {s(sV0+1)}, {s(sT)}')
    A(f'  s_xor_b32 {s(sA)}, {s(sA)}, s2')
    A(f'  s_xor_b32 {s(sA)}, {s(sA)}, {s(sRO)}')
    A(f'  s_and_b32 {s(sA)}, {s(sA)}, 1')
    A(f'  s_mul_i32 {s(sA)}, {s(sA)}, 63')
    A(f'  s_xor_b32 {s(sDEC)}, {s(sDEC)}, {s(sA)}')
    lds_set(F_DEC, s(sDEC))
    stamp()
    A(f'  s_load_dwordx2 {s(sNON,2)}, {s(sDBG,2)}, 8')
    A(f'  s_mov_b32 {s(sCNT)}, 0')
    A('L_h_getnonce:')
    A('  s_waitcnt lgkmcnt(0)')
    A(f'  s_cmp_lg_u64 {s(sNON,2)}, 0')
    A('  s_cbranch_scc1 L_h_gotnonce')
    bounded('L_h_gotnonce', 2000)
    A('  s_sleep 64')
    A(f'  s_atomic_or_x2 {s(sNON,2)}, {s(sDBG,2)}, 8 glc')
    A('  s_branch L_h_getnonce')
    A('L_h_gotnonce:')
    A(f'  s_lshr_b64 {s(sA,2)}, {s(sNON,2)}, 2')
    C('table for the finish: ws offsets of the records to publish (slots 0, 3, 2-role) and to gather, output offset, tag.')
    C('record = 8*(page/3) + 2*slot + class; the page of type t = page%3 lies in slab (2t + pair) % 3')
    A(f'  v_writelane_b32 {v(hD)}, {s(sA)}, 7')
    A(f'  s_lshr_b32 {s(sQD)}, {s(sPB)}, 5')
    A(f'  s_mov_b32 {s(sJ)}, 0xaaaaaaab')
    def rec_base(t):
        A(f'  s_add_u32 {s(sA)}, {s(sQD)}, {2 * t}')
        A(f'  s_mul_hi_u32 {s(sB)}, {s(sA)}, {s(sJ)}')
        A(f'  s_lshr_b32 {s(sB)}, {s(sB)}, 1')
        A(f'  s_mul_i32 {s(sB)}, {s(sB)}, 3')
        A(f'  s_sub_u32 {s(sA)}, {s(sA)}, {s(sB)}')
        A(f'  s_lshr_b32 {s(sB)}, {s(sDEC)}, {s(sA)}')
        A(f'  s_bfe_u32 {s(sB)}, {s(sB)}, 0x10003')
        A(f'  s_lshl_b32 {s(sA)}, {s(sA)}, 7')
        A(f'  s_add_u32 {s(sA)}, {s(sA)}, {s(sQD)}')
        A(f'  s_mul_hi_u32 {s(sA)}, {s(sA)}, {s(sJ)}')
        A(f'  s_lshr_b32 {s(sA)}, {s(sA)}, 1')
        A(f'  s_lshl3_add_u32 {s(sA)}, {s(sA)}, {s(sB)}')
    def put(lane, reg):
        A(f'  s_mul_i32 {s(sT)}, {s(reg)}, {REC}')
        A(f'  s_add_u32 {s(sT)}, {s(sT)}, {WS_REC}')
        A(f'  v_writelane_b32 {v(hD)}, {s(sT)}, {lane}')
    rec_base(0)
    put(0, sA)
    rec_base(2)
    A(f'  s_add_u32 {s(sA)}, {s(sA)}, 6')
    put(1, sA)
    rec_base(1)
    A(f'  s_lshl_b32 {s(sB)}, {s(sRO)}, 1')
    A(f'  s_sub_u32 {s(sB+1)}, {s(sA)}, {s(sB)}')
    A(f'  s_add_u32 {s(sB+1)}, {s(sB+1)}, 4')
    put(2, sB + 1)
    A(f'  s_add_u32 {s(sA)}, {s(sA)}, {s(sB)}')
    A(f'  s_add_u32 {s(sA)}, {s(sA)}, 2')
    A(f'  s_xor_b32 {s(sB)}, {s(sA)}, 1')
    put(3, sB)
    A(f'  s_andn2_b32 {s(sB)}, {s(sA)}, 1')
    A(f'  s_xor_b32 {s(sB)}, {s(sB)}, 2')
    put(4, sB)
    A(f'  s_add_u32 {s(sB)}, {s(sB)}, 1')
    put(5, sB)
    A(f'  s_lshr_b32 {s(sA)}, {s(sA)}, 2')
    A(f'  s_mul_i32 {s(sA)}, {s(sA)}, 1536')
    A(f'  v_writelane_b32 {v(hD)}, {s(sA)}, 6')
    A(f'  v_lshlrev_b32 {v(hA)}, 2, v0')
    A('  s_mov_b64 exec, 0xff')
    A(f'  ds_write_b32 {v(hA)}, {v(hD)} offset:{F_END}')
    A('  s_mov_b64 exec, -1')
    C('logit swap: flag word per workgroup; image q = 2*pair + role keeps kilobyte k at')
    C('region(q>>5) + (k<<15) + ((q&31 ^ comp(k)) << 10), which stays inside four memory channels')
    A(f'  s_lshl_b32 {s(sFA)}, s2, 8')
    A(f'  s_add_u32 {s(sFA)}, {s(sFA)}, {WS_FLAG}')
    A(f'  s_xor_b32 {s(sFS)}, {s(sFA)}, 1024')
    A(f'  s_lshr_b32 {s(sX)}, {s(sDEC)}, 3')
    A(f'  s_xor_b32 {s(sX)}, {s(sX)}, {s(sDEC)}')
    A(f'  s_lshr_b32 {s(sT)}, {s(sPB)}, 4')
    A(f'  s_lshr_b32 {s(sOF)}, {s(sT)}, 5')
    A(f'  s_lshl_b32 {s(sOF)}, {s(sOF)}, 21')
    A(f'  s_add_u32 {s(sOF)}, {s(sOF)}, {WS_IMG}')
    A(f'  s_and_b32 {s(sQD)}, {s(sT)}, 31')
    A(f'  s_add_u32 {s(sT)}, {s(sQD)}, {s(sRO)}')
    A(f'  s_lshl_b32 {s(sT)}, {s(sT)}, 10')
    A(f'  s_add_u32 {s(sME)}, {s(sOF)}, {s(sT)}')
    A(f'  s_xor_b32 {s(sPA)}, {s(sME)}, 1024')
    def pxor(k):
        h = k >> 2
        c = (h & 3) ^ (((h >> 2) & 1) * 17) ^ (((h >> 3) & 1) * 4)
        return (k << 15) | (c << 10)
    NW = NWU * 384 // 1024
    def reg(k): return hD + 4 * (k % 24)
    def export(lo, hi):
        for k in range(lo, hi): A(f'  ds_read_b128 {v(reg(k),4)}, {v(hO)} offset:{1024*k}')
        A('  s_waitcnt lgkmcnt(0)')
        for k in range(lo, hi):
            A(f'  s_xor_b32 {s(sT)}, {s(sME)}, {pxor(k)}')
            A(f'  buffer_store_dwordx4 {v(reg(k),4)}, {v(hO)}, {s(SWS,4)}, {s(sT)} offen sc1')
    def imp(lo, hi):
        for k in range(lo, hi):
            A(f'  s_xor_b32 {s(sT)}, {s(sPA)}, {pxor(k)}')
            A(f'  buffer_load_dwordx4 {v(reg(k),4)}, {v(hO)}, {s(SWS,4)}, {s(sT)} offen sc1')
        A('  s_waitcnt vmcnt(0)')
        for k in range(lo, hi): A(f'  ds_write_b128 {v(hO)}, {v(reg(k),4)} offset:{1024*k}')
    def cond(bit, tag, fn):
        A(f'  s_bitcmp0_b32 {s(sX)}, {bit}')
        A(f'  s_cbranch_scc1 L_h_{tag}')
        fn()
        A(f'L_h_{tag}:')
    def handshake(tag, level):
        A(f'  s_add_u32 {s(sA)}, {s(sNON)}, {level}')
        A(f'  v_mov_b32 {v(h2)}, 0')
        A('  s_waitcnt vmcnt(0)')
        A(f'  v_mov_b32 {v(hD)}, {s(sA)}')
        A(f'  v_mov_b32 {v(hD+1)}, {s(sNON+1)}')
        A('  s_mov_b64 exec, 1')
        A(f'  buffer_store_dwordx2 {v(hD,2)}, {v(h2)}, {s(SWS,4)}, {s(sFA)} offen sc1')
        A(f'  s_mov_b32 {s(sCNT)}, 0')
        A(f'L_h_flag{tag}:')
        A(f'  buffer_load_dwordx2 {v(hD+2,2)}, {v(h2)}, {s(SWS,4)}, {s(sFS)} offen sc1')
        A('  s_waitcnt vmcnt(0)')
        A(f'  v_readfirstlane_b32 {s(sB)}, {v(hD+2)}')
        A(f'  v_readfirstlane_b32 {s(sB+1)}, {v(hD+3)}')
        A(f'  s_sub_u32 {s(sB)}, {s(sB)}, {s(sA)}')
        A(f'  s_xor_b32 {s(sB+1)}, {s(sB+1)}, {s(sNON+1)}')
        A(f'  s_lshr_b32 {s(sB)}, {s(sB)}, 1')
        A(f'  s_or_b32 {s(sB)}, {s(sB)}, {s(sB+1)}')
        A(f'  s_cbranch_scc0 L_h_flag{tag}_done')
        bounded(f'L_h_flag{tag}_done', 10000)
        A('  s_sleep 8')
        A(f'  s_branch L_h_flag{tag}')
        A(f'L_h_flag{tag}_done:')
        A('  s_mov_b64 exec, -1')
    pg = (2, 0, 1) if kord else (0, 1, 2)
    checkpoints(64)
    wait_progress('a', 64, 4)
    stamp()
    export(0, NW)
    cond(pg[0], 'e0', lambda: export(NW, 12))
    cond(pg[1], 'e1', lambda: export(12, 24))
    handshake('a', 1)
    stamp()
    C('first units: slot f comes from the image of role f&1, slot (f&~1) + V class of that page')
    A(f'  s_bfe_u32 {s(sA)}, {s(sDEC)}, {hex(0x10003 + pg[0])}')
    A(f'  s_mul_i32 {s(sA)}, {s(sA)}, 384')
    A(f'  v_lshrrev_b32 {v(h1)}, 3, v0')
    for k in range(NW):
        A(f'  v_add_u32 {v(h2)}, {8 * k}, {v(h1)}')
        A(f'  v_mul_u32_u24 {v(h2)}, 21846, {v(h2)}')
        A(f'  v_bfe_u32 {v(h2)}, {v(h2)}, 16, 1')
        A(f'  v_mul_u32_u24 {v(h3)}, 384, {v(h2)}')
        A(f'  v_sub_u32 {v(h3)}, {v(hO)}, {v(h3)}')
        A(f'  v_add_u32 {v(h3)}, {s(sA)}, {v(h3)}')
        A(f'  v_add_u32 {v(h3)}, {1024 * k}, {v(h3)}')
        A(f'  v_add_u32 {v(h2)}, {s(sQD)}, {v(h2)}')
        A(f'  v_lshrrev_b32 {v(hZ)}, 12, {v(h3)}')
        A(f'  v_xor_b32 {v(h2)}, {v(h2)}, {v(hZ)}')
        A(f'  v_lshrrev_b32 {v(hZ)}, 10, {v(h3)}')
        A(f'  v_lshl_add_u32 {v(h2)}, {v(hZ)}, 5, {v(h2)}')
        A(f'  v_and_b32 {v(h3)}, 1023, {v(h3)}')
        A(f'  v_lshl_add_u32 {v(h2)}, {v(h2)}, 10, {v(h3)}')
        A(f'  buffer_load_dwordx4 {v(reg(k),4)}, {v(h2)}, {s(SWS,4)}, {s(sOF)} offen sc1')
    cond(pg[0], 'i0', lambda: imp(NW, 12))
    cond(pg[1], 'i1', lambda: imp(12, 24))
    A('  s_waitcnt vmcnt(0)')
    for k in range(NW): A(f'  ds_write_b128 {v(hO)}, {v(reg(k),4)} offset:{1024*k}')
    stamp()
    A(f'  s_bitcmp0_b32 {s(sX)}, {pg[2]}')
    A(f'  s_cselect_b32 {s(sT)}, 255, {32 * pg[2]}')
    lds_set(F_IMP, s(sT))
    checkpoints(NF)
    A(f'  s_bitcmp0_b32 {s(sX)}, {pg[2]}')
    A('  s_cbranch_scc1 L_h_all')
    wait_progress('b', NF, 4)
    export(24, 36)
    handshake('b', 2)
    imp(24, 36)
    lds_set(F_IMP, 255)
    A('L_h_all:')
    checkpoints(999)
    C('the last unit runs with the deep queue')
    wait_progress('t', 2 * NF - 2 * W, 4)
    A(f'  v_mov_b32 {v(hD)}, 255')
    A(f'  ds_write_b32 {v(hW)}, {v(hD)} offset:{F_BST - F_PRG}')
    A('  s_branch L_finish')

    C(f'check points every {step} units up to unit s{sUP}: lane w (mod 2) follows wave w. Arrival times of 16 workgroups go to ws;')
    C(f'{dly} units later the entries stamped inside this launch give the mean, and a late wave gets a catch-up limit in LDS')
    A('L_h_cp:')
    A(f'  s_cmp_gt_u32 {s(sCP)}, {s(sUP)}')
    A('  s_cbranch_scc0 L_h_cpgo')
    A(f'  s_setpc_b64 {s(sRET,2)}')
    A('L_h_cpgo:')
    A(f'  ds_read_b32 {v(hD)}, {v(hW)}')
    A('  s_waitcnt lgkmcnt(0)')
    A(f'  v_cmp_gt_u32 vcc, {s(sCP)}, {v(hD)}')
    A('  s_cmp_eq_u32 vcc_lo, 0')
    A('  s_cbranch_scc1 L_h_cpnext')
    A('L_h_first:')
    A('  s_sleep 2')
    A(f'  ds_read_b32 {v(hD)}, {v(hW)}')
    A('  s_waitcnt lgkmcnt(0)')
    A(f'  v_cmp_gt_u32 {s(sV0,2)}, {s(sCP)}, {v(hD)}')
    A(f'  s_cmp_eq_u32 {s(sV0)}, -1')
    A('  s_cbranch_scc1 L_h_first')
    A(f'  s_memrealtime {s(sA,2)}')
    wait_progress('m', s(sCP), 2)
    A(f'  s_memrealtime {s(sB,2)}')
    A(f'  v_mov_b32 {v(hT)}, {s(sA)}')
    A(f'  v_mov_b32 {v(hT+1)}, {s(sA+1)}')
    A(f'  s_mov_b64 exec, {s(sV0,2)}')
    A('  s_waitcnt lgkmcnt(0)')
    A(f'  v_mov_b32 {v(hT)}, {s(sB)}')
    A(f'  v_mov_b32 {v(hT+1)}, {s(sB+1)}')
    A('  s_mov_b64 exec, -1')
    A(f'  s_and_b32 {s(sT)}, s2, 0x78')
    A('  s_cbranch_scc1 L_h_np')
    A('  s_mov_b64 exec, 3')
    A(f'  buffer_store_dwordx2 {v(hT,2)}, {v(hP)}, {s(SWS,4)}, {s(sCA)} offen sc1')
    A('  s_mov_b64 exec, -1')
    A('L_h_np:')
    A(f'  s_add_u32 {s(sJ)}, {s(sCP)}, {dly}')
    wait_progress('c', s(sJ), 4)
    A(f'  buffer_load_dwordx2 {v(hD,2)}, {v(hQ)}, {s(SWS,4)}, {s(sCA)} offen')
    A(f'  v_mov_b32 {v(hD+2)}, {s(sT0+1)}')
    A('  s_waitcnt vmcnt(0)')
    A(f'  ds_read_b32 {v(hD+4)}, {v(hW)}')
    A(f'  v_subrev_co_u32 {v(hD)}, vcc, {s(sT0)}, {v(hD)}')
    A(f'  v_subb_co_u32 {v(hD+1)}, vcc, {v(hD+1)}, {v(hD+2)}, vcc')
    A(f'  v_lshrrev_b32 {v(hD+2)}, 24, {v(hD)}')
    A(f'  v_or_b32 {v(hD+1)}, {v(hD+1)}, {v(hD+2)}')
    A(f'  v_cmp_eq_u32 vcc, 0, {v(hD+1)}')
    A(f'  v_cndmask_b32 {v(hD)}, 0, {v(hD)}, vcc')
    A(f'  s_bcnt1_i32_b32 {s(sB)}, vcc_lo')
    for r in (8, 4, 2, 1):
        A(f'  v_add_u32_dpp {v(hD)}, {v(hD)}, {v(hD)} row_ror:{r} row_mask:0xf bank_mask:0xf')
    A(f'  v_readlane_b32 {s(sA)}, {v(hD)}, 0')
    A(f'  v_readlane_b32 {s(sT)}, {v(hD)}, 16')
    A(f'  v_subrev_u32 {v(hD)}, {s(sT0)}, {v(hT)}')
    A(f'  v_mul_lo_u32 {v(hD)}, {v(hD)}, {s(sB)}')
    A(f'  s_add_u32 {s(sA)}, {s(sA)}, {s(sT)}')
    A(f'  s_max_u32 {s(sB)}, {s(sB)}, 1')
    A(f'  v_subrev_u32 {v(hD)}, {s(sA)}, {v(hD)}')
    A(f'  v_cvt_f32_u32 {v(hD+1)}, {s(sB)}')
    A(f'  v_cvt_f32_i32 {v(hD)}, {v(hD)}')
    A(f'  v_rcp_f32 {v(hD+1)}, {v(hD+1)}')
    A(f'  v_mul_f32 {v(hD)}, {v(hD)}, {v(hD+1)}')
    A(f'  v_cvt_i32_f32 {v(hD)}, {v(hD)}')
    A('  s_waitcnt lgkmcnt(0)')
    A(f'  v_add_u32 {v(hD+4)}, {W}, {v(hD+4)}')
    C('subtract what the running catch-up gains between the check point and the first unit that sees the new limit')
    A(f'  v_min_u32 {v(hD+1)}, {v(hU)}, {v(hD+4)}')
    A(f'  v_subrev_u32 {v(hD+1)}, {s(sCP)}, {v(hD+1)}')
    A(f'  v_max_i32 {v(hD+1)}, 0, {v(hD+1)}')
    A(f'  v_lshrrev_b32 {v(hD+1)}, 1, {v(hD+1)}')
    A(f'  v_mul_u32_u24 {v(hD+1)}, {gain}, {v(hD+1)}')
    A(f'  v_sub_u32 {v(hD)}, {v(hD)}, {v(hD+1)}')
    A(f'  v_add_u32 {v(hD+1)}, {gain // 2 - dead}, {v(hD)}')
    A(f'  v_max_i32 {v(hD+1)}, 0, {v(hD+1)}')
    A(f'  v_min_i32 {v(hD+1)}, 2000, {v(hD+1)}')
    A(f'  v_mul_u32_u24 {v(hD+1)}, {65536 // gain}, {v(hD+1)}')
    A(f'  v_lshrrev_b32 {v(hD+1)}, 16, {v(hD+1)}')
    A(f'  v_cmp_ne_u32 vcc, 0, {v(hD+1)}')
    A(f'  v_lshl_add_u32 {v(hD+1)}, {v(hD+1)}, 1, {v(hD+4)}')
    A(f'  v_cndmask_b32 {v(hU)}, 0, {v(hD+1)}, vcc')
    A(f'  ds_write_b32 {v(hW)}, {v(hU)} offset:{F_BST - F_PRG}')
    A('L_h_cpnext:')
    A(f'  s_add_u32 {s(sCP)}, {s(sCP)}, {step}')
    A(f'  s_add_u32 {s(sCA)}, {s(sCA)}, 256')
    A('  s_branch L_h_cp')
    A('L_code_end:')
    body = pad(L)

    nva = (nv + 7) // 8 * 8
    out = HDR + f'; @launch grid=(256,1,1) block=({64*(W+1)},1,1) lds={lds}\n' + NOTES
    out += '.amdgcn_target "amdgcn-amd-amdhsa--gfx950"\n.text\n'
    out += f'.globl {NAME}\n.p2align 8\n.type {NAME},@function\n'
    out += '\n'.join(body) + '\n'
    out += f'''.section .rodata,"a"
.p2align 6
.amdhsa_kernel {NAME}
  .amdhsa_next_free_vgpr {nva}
  .amdhsa_next_free_sgpr 102
  .amdhsa_accum_offset {nva}
  .amdhsa_group_segment_fixed_size 0
  .amdhsa_kernarg_size 80
  .amdhsa_user_sgpr_count 2
  .amdhsa_user_sgpr_kernarg_segment_ptr 1
  .amdhsa_system_sgpr_workgroup_id_x 1
  .amdhsa_float_denorm_mode_32 3
.end_amdhsa_kernel
'''
    return out

if __name__ == '__main__':
    kw = {}
    for x in sys.argv[2:]:
        k, val = x.split('=')
        kw[k] = int(val)
    open(sys.argv[1], 'w').write(gen(**kw))
```

```python
import sys, os
sys.path.insert(0, os.path.dirname(os.path.abspath(__file__)))
from asmlib import pad
NAME = 'standalone__kv_cache_quant_int4_int2_kv_with_per_channel_or_per_token_scales__sampling_kernel'
TOTAL = 256 * 4096 * 768
PIECE = 1152
REC = 3 * PIECE
WS_REC = 1 << 20
WS_CP = 7 << 20
WS_FLAG = (7 << 20) + (1 << 16)
WS_IMG = 8 << 20
WS_END = WS_IMG + (16 << 20)
IMG = 96 * 384
OOB = 0x7ffffff0
HDR = open(os.path.join(os.path.dirname(os.path.abspath(__file__)), 'header.txt')).read()
assert all(((32 * c + 1) * 21846) >> 16 == (32 * c + 1) // 3 for c in range(25))
assert all((c * 43) >> 8 == c // 6 for c in range(24))
assert all((x * 21846) >> 16 == x // 3 for x in range(100))

NOTES = """\
"""

class Alloc:
    def __init__(self, start): self.n = start
    def __call__(self, k, align=1):
        self.n = (self.n + align - 1) // align * align
        r = self.n; self.n += k
        return r

def v(r, k=1): return f'v{r}' if k == 1 else f'v[{r}:{r+k-1}]'
def s(r, k=1): return f's{r}' if k == 1 else f's[{r}:{r+k-1}]'

def merge(main, side):
    out = []; side = list(side)
    for m in main:
        out.append(m)
        if side: out.append(side.pop(0))
    return out + side

def gen(DN=10, D=15, bev=3, NWU=8, NS=3, NV=8, pfw=16, PSK=17, gain=28, dly=4, dead=0, cp0=12, step=8, last=186,
        force=-1, stamps=0, tl=0, diagpad=0, diagat=-1, kord=1):
    W, U, NST, NF, PSV = 2, 2, 33, 96, 3
    R = 11 * U
    SW = NST - D
    assert DN <= D < R and NWU % 8 == 0 and PSV < SW and 3 <= PSK < SW
    L = []
    A = L.append
    C = lambda t: L.append('; ' + t)
    va = Alloc(1)
    DUP = va(1); DOWN = va(1); DCON = va(1)
    RING = va(4 * R, 4); VO = va(4)
    ICV = va(1); TU = va(1); VVS = va(1); VL1 = va(1); VL2 = va(1); VBP = va(1); VFL = va(1); VST = va(1); VPR = va(1)
    VOOB = va(1); VBS = va(1)
    T = va(4, 2); ZN = va(1); SN = va(1); ZC = va(1); SC = va(1); ZS = va(2, 2)
    LG = va(6, 4); ACC = va(12, 4); M = va(1); NB = va(2, 2); LS = NB + 1
    X0 = va(2, 2); X1 = X0 + 1; AL = va(1); ALQ = va(1); E = va(11); PP = va(6); TL = va(1)
    base = va.n
    QB = va(6, 4); QN = va(6, 2); KSR = va(6, 2); KZR = va(6, 2); KS = va(12, 2); KZ = va(12, 2); KA = va(6, 4); SD = va(4, 4); S = va(2, 2)
    IUP = va(1); IOWN = va(1); ICON = va(1); VKS0 = va(1); VKS = va(1); VQ = va(1); VNI = va(1)
    kend = va.n
    va.n = base
    AJ = va(16, 4); AK = va(8, 2); TV = va(12, 2); BV = va(48, 4)
    nv = max(va.n, kend)
    sRO, sPB = 4, 5
    SK, SV, SI, SKS, SKZ, SVS, SVZ, SQ, SWS = 8, 12, 16, 20, 24, 28, 32, 36, 40
    PT = 44
    sOUT, sL0, sL10, sM0, sM10, sLOW = 46, 48, 50, 52, 54, 56
    sCUR, sNXT, sSO, s768, sF, sMSK, sL2E, sTL, sSCL, sT = 60, 61, 62, 63, 64, 65, 66, 67, 68, 70
    sMJ = 72
    sDBG, sWS = 80, 82
    sQ3, sC, sQC, sMISS, sHC, sHN, sDIV, sSH = 84, 85, 86, 87, 88, 89, 90, 91
    sBIG, sSM = 92, 94
    sDEC, sG, sGATE = 96, 97, 99
    SEG = W * 3072 + W * 32
    LDS_ACC = IMG
    LDS_F = LDS_ACC + 4 * SEG
    F_DEC, F_IMP, F_PRG, F_BST, F_END = LDS_F, LDS_F + 4, LDS_F + 16, LDS_F + 24, LDS_F + 32
    lds = 62464
    assert LDS_F + 64 <= lds and F_END % 16 == 0

    A(f'{NAME}:')
    A('  s_cmp_ge_u32 s2, 256')
    A('  s_cbranch_scc1 L_end')
    A(f'  s_load_dwordx16 {s(PT,16)}, s[0:1], 0')
    A(f'  s_load_dwordx4 {s(sDBG,4)}, s[0:1], 64')
    if stamps or diagpad: A('  s_memrealtime s[6:7]')
    C('s3 = wave, s4 = role in the pair, s5 = 32 * pair (first block of the first page)')
    A('  v_lshrrev_b32 v1, 6, v0')
    A('  v_and_b32 v0, 63, v0')
    A('  v_readfirstlane_b32 s3, v1')
    A(f'  s_bfe_u32 {s(sRO)}, s2, 0x10002')
    A(f'  s_lshr_b32 {s(sPB)}, s2, 3')
    A(f'  s_lshl_b32 {s(sPB)}, {s(sPB)}, 2')
    A(f'  s_and_b32 {s(sT)}, s2, 3')
    A(f'  s_add_u32 {s(sPB)}, {s(sPB)}, {s(sT)}')
    A(f'  s_lshl_b32 {s(sPB)}, {s(sPB)}, 5')
    SRDS = ((SKS, PT + 6, 256 * 24576), (SKZ, PT + 8, 256 * 24576), (SVS, PT + 10, 256 * 8192), (SVZ, PT + 12, 256 * 8192),
            (SK, PT + 2, TOTAL), (SQ, PT, 256 * 1536), (SI, PT + 2, TOTAL), (SV, PT + 4, TOTAL), (SWS, sWS, WS_END))
    for srd, p, nb in SRDS:
        A(f'  s_mov_b32 {s(srd+2)}, {nb}')
        A(f'  s_mov_b32 {s(srd+3)}, 0x20000')
    def make_srds(lo, hi):
        for srd, p, nb in SRDS[lo:hi]:
            A(f'  s_mov_b32 {s(srd)}, {s(p)}')
            A(f'  s_and_b32 {s(srd+1)}, {s(p+1)}, 0xffff')
    A(f'  s_cmp_eq_u32 s3, {W}')
    A('  s_cbranch_scc1 L_helper')

    C('================= streaming waves')
    cls, a, g, n = T, T + 1, T + 2, T + 3
    A(f'  v_and_b32 {v(cls)}, 3, v0')
    A(f'  v_bfe_u32 {v(a)}, v0, 2, 2')
    A(f'  v_lshrrev_b32 {v(g)}, 4, v0')
    A(f'  v_and_b32 {v(n)}, 15, v0')
    def stream_consts(x, up, own, con, lanepart):
        A(f'  v_and_b32 {v(own)}, 2, {v(x)}')
        A(f'  v_lshlrev_b32 {v(up)}, 5, {v(own)}')
        A(f'  v_add_u32 {v(up)}, 129, {v(up)}')
        A(f'  v_and_b32 {v(X1)}, 1, {v(x)}')
        A(f'  v_lshl_add_u32 {v(own)}, {v(X1)}, 2, {v(own)}')
        A(f'  v_mul_u32_u24 {v(X1)}, {43 * 768}, {v(X1)}')
        A(f'  v_add_u32 {v(con)}, {v(lanepart)}, {v(X1)}')
        A(f'  v_subrev_u32 {v(con)}, {43 * 768}, {v(con)}')
    A(f'  v_lshlrev_b32 {v(X0)}, 4, {v(cls)}')
    A(f'  v_lshl_add_u32 {v(X0)}, {v(g)}, 6, {v(X0)}')
    A(f'  v_lshrrev_b32 {v(VKS0)}, 1, {v(X0)}')
    stream_consts(a, IUP, IOWN, ICON, X0)
    A(f'  v_mul_u32_u24 {v(X1)}, 384, {v(a)}')
    A(f'  v_add_u32 {v(VQ)}, {v(X1)}, {v(VKS0)}')
    A(f'  v_mov_b32 {v(VOOB)}, {OOB}')
    A(f'  s_mov_b32 {s(sDIV)}, 0xaaaaaaab')
    A(f'  s_mov_b32 {s(sSH)}, 0x492492')
    A(f'  s_movk_i32 {s(s768)}, 768')
    def slot(k): return RING + 4 * (k % R)
    def main_load(k, srd, so):
        ss, i = divmod(k % NST, 3)
        r, k0 = (0, 0) if ss == 0 else (1, 1) if ss <= 5 else (2, 6) if ss <= 9 else (3, 10)
        return f'  buffer_load_dwordx4 {v(slot(k),4)}, {v(VO+r)}, {s(srd,4)}, {s(so)} offen offset:{768*(ss-k0) + 256*i} nt'
    def kscale_loads():
        A(f'  s_mul_i32 {s(sSO)}, {s(sQ3)}, 1536')
        for i in range(3):
            A(f'  buffer_load_dwordx2 {v(KSR+2*i,2)}, {v(VKS)}, {s(SKS,4)}, {s(sSO)} offen offset:{128*i}')
            A(f'  buffer_load_dwordx2 {v(KZR+2*i,2)}, {v(VKS)}, {s(SKZ,4)}, {s(sSO)} offen offset:{128*i}')
    def vscale_loads():
        A(f'  s_lshl_b32 {s(sSO)}, {s(sQ3)}, 9')
        A(f'  v_lshl_add_u32 {v(VVS)}, {v(TU)}, 1, {v(ICV)}')
        A(f'  buffer_load_short_d16_hi {v(ZN)}, {v(VVS)}, {s(SVZ,4)}, {s(sSO)} offen')
        A(f'  buffer_load_short_d16_hi {v(SN)}, {v(VVS)}, {s(SVS,4)}, {s(sSO)} offen')
    def q_loads():
        A(f'  s_mul_i32 {s(sT)}, {s(sHN)}, 1536')
        for i in range(3): A(f'  buffer_load_dwordx2 {v(QN+2*i,2)}, {v(VQ)}, {s(SQ,4)}, {s(sT)} offen offset:{128*i}')
    def short_masks(own, m0, m10, low):
        A(f'  v_add_u32 {v(X0)}, {s(sC)}, {v(own)}')
        A(f'  v_lshrrev_b32 {v(X1)}, {v(X0)}, {s(sSH)}')
        A(f'  v_and_b32 {v(X1)}, 1, {v(X1)}')
        A(f'  v_cmp_eq_u32 {s(m10,2)}, 1, {v(X1)}')
        A(f'  s_and_b64 {s(m0,2)}, {s(m10,2)}, {s(low,2)}')
        A(f'  s_andn2_b64 {s(m10,2)}, {s(m10,2)}, {s(low,2)}')
    def map_unit(f, isv):
        if kord and not isv:
            A(f'  s_lshr_b32 {s(sT+1)}, {s(f)}, 4')
            A(f'  s_andn2_b32 {s(sT+1)}, {s(sT+1)}, 1')
            A(f'  s_lshr_b32 {s(sT+1)}, 0x12, {s(sT+1)}')
            A(f'  s_and_b32 {s(sT+1)}, {s(sT+1)}, 3')
        else:
            A(f'  s_lshr_b32 {s(sT+1)}, {s(f)}, 5')
        A(f'  s_lshr_b32 {s(sC)}, {s(sDEC)}, {s(sT+1)}')
        if isv:
            A(f'  s_bfe_u32 {s(sC)}, {s(sC)}, 0x10003')
            A(f'  s_and_b32 {s(sT)}, {s(f)}, 31')
        else:
            A(f'  s_andn2_b32 {s(sT)}, {s(f)}, 1')
            A(f'  s_or_b32 {s(sT)}, {s(sT)}, {s(sRO)}')
            A(f'  s_cmp_lt_u32 {s(f)}, {NWU}')
            A(f'  s_cselect_b32 {s(sT)}, {s(sT)}, {s(f)}')
            A(f'  s_cselect_b32 {s(sC)}, {s(f)}, {s(sC)}')
            A(f'  s_and_b32 {s(sC)}, {s(sC)}, 1')
            A(f'  s_and_b32 {s(sT)}, {s(sT)}, 31')
        A(f'  s_lshl_b32 {s(sT+1)}, {s(sT+1)}, 12')
        A(f'  s_add_u32 {s(sT)}, {s(sT)}, {s(sPB)}')
        A(f'  s_add_u32 {s(sT)}, {s(sT)}, {s(sT+1)}')
        A(f'  s_mul_hi_u32 {s(sQ3)}, {s(sT)}, {s(sDIV)}')
        A(f'  s_lshr_b32 {s(sQ3)}, {s(sQ3)}, 1')
        A(f'  s_mul_i32 {s(sT+1)}, {s(sQ3)}, 3')
        A(f'  s_sub_u32 {s(sT)}, {s(sT)}, {s(sT+1)}')
        A(f'  s_lshl3_add_u32 {s(sC)}, {s(sT)}, {s(sC)}')
        A(f'  s_mul_i32 {s(sNXT)}, {s(sQ3)}, 196608')
        A(f'  s_lshr_b32 {s(sHN)}, {s(sQ3)}, 4')
        A(f'  s_lshl_b32 {s(sT)}, {s(sC)}, 5')
        A(f'  v_add_u32 {v(TU)}, {s(sT)}, {v(DUP if isv else IUP)}')
        A(f'  v_mul_u32_u24 {v(TU)}, 21846, {v(TU)}')
        A(f'  v_lshrrev_b32 {v(TU)}, 16, {v(TU)}')
        short_masks(DOWN if isv else IOWN, sM0, sM10, sLOW + 2 * isv)
        if not isv:
            A(f'  v_mul_u32_u24 {v(X0)}, 43, {v(X0)}')
            A(f'  v_lshrrev_b32 {v(X0)}, 8, {v(X0)}')
            A(f'  v_mul_u32_u24 {v(X0)}, 384, {v(X0)}')
            A(f'  v_add_u32 {v(VKS)}, {v(X0)}, {v(VKS0)}')
    def offsets(con):
        A(f'  v_mad_u32_u24 {v(VO)}, {v(TU)}, {s(s768)}, {v(con)}')
        A(f'  v_add_u32 {v(VO+1)}, 768, {v(VO)}')
        A(f'  v_add_u32 {v(VO+2)}, {6 * 768}, {v(VO)}')
        A(f'  v_add_u32 {v(VO+3)}, {10 * 768}, {v(VO)}')
        A(f'  v_cndmask_b32 {v(VO)}, {v(VO)}, {v(VOOB)}, {s(sM0,2)}')
        A(f'  v_cndmask_b32 {v(VO+3)}, {v(VO+3)}, {v(VOOB)}, {s(sM10,2)}')
    def stamp():
        if tl:
            A(f'  s_memrealtime {s(sT,2)}')
            A('  s_waitcnt lgkmcnt(0)')
            A(f'  s_min_u32 m0, {s(sTL)}, 63')
            A(f'  v_writelane_b32 {v(TL)}, {s(sT)}, m0')
            A(f'  s_add_u32 {s(sTL)}, {s(sTL)}, 1')
    def reset_state():
        for k in range(12): A(f'  v_mov_b32 {v(ACC+k)}, 0')
        A(f'  v_mov_b32 {v(M)}, 0xff800000')
        A(f'  v_mov_b32 {v(NB)}, 0x7f800000')
        A(f'  v_mov_b32 {v(LS)}, 0')
    A(f'  s_mov_b32 {s(sF)}, s3')
    A(f'  s_mov_b32 {s(sGATE)}, {NWU}')
    A(f'  s_mov_b32 {s(sDEC)}, 0')
    C('one bulk pass pulls the scale/zero arrays into the memory-side cache (1/512 per wave); later reads of them stay off DRAM')
    A(f'  v_lshlrev_b32 {v(ZC)}, 4, v0')
    sPK, sPV = sQC, sHC
    A(f'  s_lshl1_add_u32 {s(sT)}, s2, s3')
    A(f'  s_mul_i32 {s(sPV)}, {s(sT)}, {8192 // W}')
    A(f'  s_mul_i32 {s(sPK)}, {s(sT)}, {24576 // W}')
    line = lambda srd, so, k: f'  buffer_load_dwordx4 {v(ACC,4)}, {v(ZC)}, {s(srd,4)}, {s(so)} offen offset:{(k % 4) * 1024}'
    pfl = []
    for k in range(24 // W):
        if k % 4 == 0 and k: pfl.append(f'  s_add_u32 {s(sPK)}, {s(sPK)}, 4096')
        pfl += [line(SKS, sPK, k), line(SKZ, sPK, k)]
        if k < 8 // W: pfl += [line(SVS, sPV, k), line(SVZ, sPV, k)]
    nissued = [0]
    def issue_pf(cnt):
        while pfl and cnt > 0:
            x = pfl.pop(0)
            if 'buffer_load' in x:
                if nissued[0] >= pfw: A(f'  s_waitcnt vmcnt({pfw - 1})')
                nissued[0] += 1; cnt -= 1
            A(x)
    A('  s_waitcnt lgkmcnt(0)')
    make_srds(0, 4)
    issue_pf(8)
    make_srds(4, 9)
    A(f'  s_mov_b64 {s(sOUT,2)}, {s(PT+14,2)}')
    A(f'  s_mov_b32 {s(sLOW)}, 0x0f0f0f0f')
    A(f'  s_mov_b32 {s(sLOW+1)}, 0x0f0f0f0f')
    A(f'  s_mov_b32 {s(sLOW+2)}, 0xffff')
    A(f'  s_mov_b32 {s(sLOW+3)}, 0xffff')
    map_unit(sF, 0)
    offsets(ICON)
    A(f'  s_mov_b32 {s(sCUR)}, {s(sNXT)}')
    q_loads()
    A(main_load(0, SK, sCUR))
    issue_pf(pfw - nissued[0])
    A('  s_barrier')
    A('  s_mov_b64 vcc, 0')
    A(f'  v_lshlrev_b32 {v(X0)}, 4, {v(n)}')
    stream_consts(g, DUP, DOWN, DCON, X0)
    A(f'  v_and_b32 {v(X1)}, 1, {v(g)}')
    A(f'  v_mul_u32_u24 {v(X1)}, 86, {v(X1)}')
    A(f'  v_lshl_add_u32 {v(ICV)}, {v(n)}, 1, {v(X1)}')
    A(f'  v_subrev_u32 {v(ICV)}, 86, {v(ICV)}')
    A(f'  v_lshlrev_b32 {v(VBP)}, 4, {v(g)}')
    A(f'  v_lshrrev_b32 {v(X0)}, 2, v0')
    A(f'  s_mul_i32 {s(sT)}, s3, 384')
    A(f'  v_lshl_add_u32 {v(VL1)}, {v(X0)}, 4, {s(sT)}')
    A(f'  v_lshl_add_u32 {v(VL2)}, {v(X0)}, 3, {s(sT)}')
    A(f'  s_mul_i32 {s(sT)}, s3, 3072')
    A(f'  s_add_u32 {s(sT)}, {s(sT)}, {LDS_ACC}')
    A(f'  v_lshl_add_u32 {v(VFL)}, v0, 4, {s(sT)}')
    A(f'  s_lshl_b32 {s(sT)}, s3, 5')
    A(f'  s_add_u32 {s(sT)}, {s(sT)}, {LDS_ACC + W * 3072}')
    A(f'  v_lshl_add_u32 {v(VST)}, {v(a)}, 3, {s(sT)}')
    A(f'  s_lshl2_add_u32 {s(sT)}, s3, {F_PRG}')
    A(f'  v_mov_b32 {v(VPR)}, {s(sT)}')
    A(f'  v_mov_b32 {v(ZN)}, 0')
    A(f'  v_mov_b32 {v(SN)}, 0')
    A(f'  v_mov_b32 {v(VNI)}, 0xff800000')
    A(f'  v_mov_b32 {v(AL)}, 1')
    A(f'  s_mov_b32 {s(sMSK)}, 0xffff0000')
    A(f'  s_mov_b32 {s(sL2E)}, 0x3fb8aa3b')
    for h in range(2):
        A(f'  s_mov_b32 {s(sSCL+h)}, 0x3d93cd3a')
    for j in range(4):
        A(f'  s_mov_b32 {s(sMJ+2*j)}, {hex(0x11111111 << j)}')
        A(f'  s_mov_b32 {s(sMJ+2*j+1)}, {hex(0x11111111 << j)}')
    if tl:
        A(f'  s_mov_b32 {s(sTL)}, 0')
        A(f'  v_mov_b32 {v(TL)}, 0')
    issue_pf(99)
    A(f'  s_mov_b32 {s(sHC)}, {s(sHN)}')
    kscale_loads()
    for k in range(1, D):
        A(f'  s_waitcnt vmcnt({max(DN, k) - 1 + 6})')
        A(main_load(k, SK, sCUR))
    A(f'  s_waitcnt vmcnt({D - 1})')
    A(f'  ds_write_b32 {v(VPR)}, {v(AL)}')

    def wait_step(k, nsmall, tag, ps):
        cnt = lambda d: d - 1 + (nsmall if k - d <= ps < k else 0)
        A(f'  s_waitcnt vmcnt({cnt(D)})')
        if k % bev == 0:
            A(f'  s_cbranch_vccnz L_{tag}')
            A(f'  s_waitcnt vmcnt({cnt(DN)})')
            A(f'L_{tag}:')
    def mode(k):
        if k == 0: A(f'  ds_read_b32 {v(VBS)}, {v(VPR)} offset:{F_BST - F_PRG}')
        if k == 1:
            A('  s_waitcnt lgkmcnt(0)')
            A(f'  v_cmp_lt_u32 vcc, {s(sG)}, {v(VBS)}')
    def dequant(X, src, z, sc, zmod, smod):
        r = [f'  v_cvt_f32_i32 {v(X+j)}, {v(src+j)}' for j in range(4)]
        r += [f'  v_pk_add_f32 {v(X+2*h,2)}, {v(X+2*h,2)}, {z[h]} {zmod}neg_lo:[0,1] neg_hi:[0,1]' for h in range(2)]
        r2 = [f'  v_cvt_pk_bf16_f32 {v(X+j)}, 0, {v(X+j)}' for j in range(4)]
        r2 += [f'  v_pk_mul_f32 {v(X+2*h,2)}, {v(X+2*h,2)}, {sc[h]} {smod}'.rstrip() for h in range(2)]
        return r, r2
    def kreduce(ss):
        d = S + (ss & 1)
        q = lambda j: f'quad_perm:[{j},{j},{j},{j}] row_mask:0xf bank_mask:0xf'
        r = [f'  v_mov_b32_dpp {v(X0)}, {v(SD)} {q(0)}',
             f'  v_mov_b32_dpp {v(X1)}, {v(SD+2)} {q(2)}',
             f'  v_add_f32_dpp {v(X0)}, {v(SD+1)}, {v(X0)} {q(1)}',
             f'  v_add_f32_dpp {v(X1)}, {v(SD+3)}, {v(X1)} {q(3)}',
             f'  v_add_f32 {v(d)}, {v(X0)}, {v(X1)}']
        if ss == 0: r.append(f'  v_cndmask_b32 {v(d)}, {v(d)}, {v(VNI)}, {s(sL0,2)}')
        if ss == 10: r.append(f'  v_cndmask_b32 {v(d)}, {v(d)}, {v(VNI)}, {s(sL10,2)}')
        if ss & 1 or ss == 10:
            r += [f'  v_cvt_pk_bf16_f32 {v(S)}, 0, {v(S)}',
                  f'  v_cvt_pk_bf16_f32 {v(S+1)}, 0, {v(S+1)}',
                  f'  v_pk_mul_f32 {v(S,2)}, {v(S,2)}, {s(sSCL,2)}',
                  f'  v_cvt_pk_bf16_f32 {v(LG+(ss>>1))}, {v(S)}, {v(S+1)}']
        return r
    def lds_word(dst, addr):
        A(f'  v_mov_b32 {v(X0)}, {addr}')
        A(f'  ds_read_b32 {v(X0)}, {v(X0)}')
        A('  s_waitcnt lgkmcnt(0)')
        A(f'  v_readfirstlane_b32 {s(dst)}, {v(X0)}')

    mf32 = f'  v_mfma_f32_16x16x32_bf16 {v(SD,4)}, {v(KA,4)}, {v(QB,4)}, 0'
    mf16 = f'  v_mfma_f32_16x16x16_bf16 {v(SD,4)}, {v(KA+4,2)}, {v(QB+4,2)}, {v(SD,4)}'
    def diag_mark(tag, base_):
        if diagat < 0: return
        A(f'  s_and_b32 {s(sT)}, {s(sF)}, -4')
        A(f'  s_cmp_lg_u32 {s(sT)}, {diagat - base_}')
        A(f'  s_cbranch_scc1 L_dm{tag}')
        A('  s_memrealtime s[6:7]')
        A('  s_waitcnt lgkmcnt(0)')
        A(f'L_dm{tag}:')
    def k_unit(u):
        o = NST * u
        if u == 0: diag_mark('k', 0)
        if u == 0: stamp()
        short_masks(DOWN, sL0, sL10, sLOW + 2)
        A(f'  s_mov_b32 {s(sG)}, {s(sF)}')
        A(f'  s_add_u32 {s(sF)}, {s(sF)}, {W}')
        for k in range(NST):
            ss, i = divmod(k, 3)
            mode(k)
            if k == SW:
                if u == U - 1:
                    C('the last K unit prefetches the first V unit')
                    A(f'  s_cmp_lt_u32 {s(sF)}, {NF}')
                    A('  s_cbranch_scc1 L_k_keep')
                    map_unit(3, 1)
                    A(f'  s_mov_b32 {s(SI)}, {s(SV)}')
                    A(f'  s_mov_b32 {s(SI+1)}, {s(SV+1)}')
                    vscale_loads()
                    A(f'  v_mov_b32 {v(ICON)}, {v(DCON)}')
                    A('L_k_keep:')
                offsets(ICON)
            wait_step(k, 6, f'kw{u}_{k}', PSK)
            A(main_load(o + k + D, SK, sCUR) if k < SW else main_load(o + k + D, SI, sNXT))
            if i == 2: A(mf32)
            if i == 0 and ss > 0: A(mf16)
            if ss == 0:
                for raw, dst in ((KZR, KZ), (KSR, KS)):
                    for h in range(2):
                        A(f'  v_lshlrev_b32 {v(dst+4*i+2*h)}, 16, {v(raw+2*i+h)}')
                        A(f'  v_and_b32 {v(dst+4*i+2*h+1)}, {s(sMSK)}, {v(raw+2*i+h)}')
                for h in range(2):
                    A(f'  v_mov_b32 {v(QB+2*i+h)}, {v(QN+2*i+h)}')
            c, rest = dequant(T, slot(o + k), (v(KZ+4*i,2), v(KZ+4*i+2,2)), (v(KS+4*i,2), v(KS+4*i+2,2)), '', '')
            for x in c: A(x)
            if k == PSK:
                C('next unit: class (needs the vote once), scales, q on a head change')
                A(f'  s_cmp_lt_u32 {s(sF)}, {s(sGATE)}')
                A(f'  s_cbranch_scc1 L_k_known{u}')
                A(f'L_k_spin{u}:')
                lds_word(sDEC, F_DEC)
                A(f'  s_cmp_eq_u32 {s(sDEC)}, 0')
                A(f'  s_cbranch_scc1 L_k_spin{u}')
                A(f'  s_mov_b32 {s(sGATE)}, -1')
                A(f'L_k_known{u}:')
                map_unit(sF, 0)
                A(f'  s_cmp_eq_u32 {s(sHN)}, {s(sHC)}')
                A(f'  s_cbranch_scc1 L_k_sameq{u}')
                q_loads()
                A(f'  s_mov_b32 {s(sHC)}, {s(sHN)}')
                A(f'L_k_sameq{u}:')
                kscale_loads()
            rest += [f'  v_cvt_pk_bf16_f32 {v(KA+2*i)}, {v(T)}, {v(T+1)}',
                     f'  v_cvt_pk_bf16_f32 {v(KA+2*i+1)}, {v(T+2)}, {v(T+3)}']
            if i == 1 and ss > 0:
                r = kreduce(ss - 1)
                rest = r[:2] + rest[:2] + r[2:4] + rest[2:4] + r[4:5] + rest[4:]
                pend = r[5:]
            elif i == 2 and ss > 0:
                rest = merge(rest, pend)
            for x in rest: A(x)
        A(f'  s_mov_b32 {s(sCUR)}, {s(sNXT)}')
        A(f'  v_mov_b32 {v(AL)}, {s(sF)}')
        A(mf16)
        A(f'  ds_write_b128 {v(VL1)}, {v(LG,4)}')
        A(f'  v_add_u32 {v(VL1)}, {384 * W}, {v(VL1)}')
        for x in kreduce(10): A(x)
        A(f'  ds_write_b64 {v(VL2)}, {v(LG+4,2)} offset:256')
        A(f'  ds_write_b32 {v(VPR)}, {v(AL)}')
        A(f'  v_add_u32 {v(VL2)}, {384 * W}, {v(VL2)}')
    C('---------------- K loop: two units per trip')
    A('L_k:')
    for u in range(U): k_unit(u)
    A(f'  s_cmp_lt_u32 {s(sF)}, {NF}')
    A('  s_cbranch_scc1 L_k')

    def flush():
        C('park the partial result of the finished head segment in slot 2*(head&1) + (segment ends the head)')
        A(f'  s_and_b32 {s(sT)}, {s(sQC)}, 15')
        A(f'  s_cmp_ge_u32 {s(sT)}, 12')
        A(f'  s_cselect_b32 {s(sT)}, {SEG}, 0')
        A(f'  s_bitcmp1_b32 {s(sQC)}, 4')
        A(f'  s_cselect_b32 {s(sT+1)}, {2 * SEG}, 0')
        A(f'  s_add_u32 {s(sT)}, {s(sT)}, {s(sT+1)}')
        A(f'  v_mov_b32 {v(X1)}, {v(LS)}')
        A(f'  v_add_u32 {v(X0)}, {s(sT)}, {v(VFL)}')
        A(f'  v_add_u32 {v(ALQ)}, {s(sT)}, {v(VST)}')
        A(f'  v_permlane32_swap_b32 {v(LS)}, {v(X1)}')
        A(f'  v_add_f32 {v(LS)}, {v(LS)}, {v(X1)}')
        A(f'  v_mov_b32 {v(X1)}, {v(LS)}')
        for i in range(3):
            A(f'  ds_write_b128 {v(X0)}, {v(ACC+4*i,4)} offset:{1024*i}')
        A(f'  v_permlane16_swap_b32 {v(LS)}, {v(X1)}')
        A(f'  v_add_f32 {v(LS)}, {v(LS)}, {v(X1)}')
        A(f'  ds_write_b64 {v(ALQ)}, {v(NB,2)}')
    def import_gate(tag):
        A(f'  s_cmp_lt_u32 {s(sF)}, {s(sGATE)}')
        A(f'  s_cbranch_scc1 L_{tag}_ok')
        A(f'L_{tag}_spin:')
        lds_word(sGATE, F_IMP)
        A(f'  s_cmp_lt_u32 {s(sF)}, {s(sGATE)}')
        A(f'  s_cbranch_scc0 L_{tag}_spin')
        A(f'L_{tag}_ok:')

    C('---------------- V loop: two units per trip')
    A(f'  v_subrev_u32 {v(VL1)}, {IMG - 32 * 384 * kord}, {v(VL1)}')
    A(f'  v_subrev_u32 {v(VL2)}, {IMG - 32 * 384 * kord}, {v(VL2)}')
    A(f'  s_mov_b32 {s(sF)}, s3')
    A(f'  s_mov_b32 {s(sHC)}, {s(sHN)}')
    A(f'  s_mov_b32 {s(sGATE)}, 0')
    A(f'  s_mov_b32 {s(SQ)}, {s(sOUT)}')
    A(f'  s_and_b32 {s(SQ+1)}, {s(sOUT+1)}, 0xffff')
    import_gate('v0')
    A(f'  ds_read_b128 {v(LG,4)}, {v(VL1)}')
    A(f'  ds_read_b64 {v(LG+4,2)}, {v(VL2)} offset:256')
    reset_state()
    def v_unit(u):
        o = NST * u
        A(f'L_v{u}:')
        if u == 0: diag_mark('v', NF)
        if u == 0: stamp()
        A(f'  s_add_u32 {s(sG)}, {s(sF)}, {NF}')
        A(f'  v_mov_b32 {v(AL)}, {s(sG)}')
        A(f'  s_mov_b32 {s(sQC)}, {s(sQ3)}')
        A(f'  ds_write_b32 {v(VPR)}, {v(AL)}')
        A(f'  s_add_u32 {s(sF)}, {s(sF)}, {W}')
        import_gate(f'v1{u}')
        map_unit(sF, 1)
        A(f'  s_cmp_lt_u32 {s(sF)}, {NF}')
        A(f'  s_cselect_b32 {s(sNXT)}, {s(sNXT)}, {TOTAL}')
        stp = 384 * W
        if kord and u == U - 1:
            stp = s(sL0)
            A(f'  s_lshr_b32 {s(sT)}, {s(sF)}, 1')
            A(f'  s_cmp_eq_u32 {s(sT)}, 32')
            A(f'  s_cselect_b32 {stp}, {384 * W - IMG}, {s(s768)}')
        prep = []
        for k in range(11):
            prep.append(f'  v_lshlrev_b32 {v(E+k)}, 16, {v(LG+k//2)}' if k % 2 == 0 else f'  v_and_b32 {v(E+k)}, {s(sMSK)}, {v(LG+k//2)}')
        prep += [f'  v_add_u32 {v(VL1)}, {stp}, {v(VL1)}',
                 f'  v_add_u32 {v(VL2)}, {stp}, {v(VL2)}',
                 f'  v_max3_f32 {v(X0)}, {v(E)}, {v(E+1)}, {v(E+2)}',
                 f'  ds_read_b128 {v(LG,4)}, {v(VL1)}',
                 f'  ds_read_b64 {v(LG+4,2)}, {v(VL2)} offset:256',
                 f'  v_max3_f32 {v(X1)}, {v(E+3)}, {v(E+4)}, {v(E+5)}',
                 f'  v_max3_f32 {v(X0)}, {v(X0)}, {v(E+6)}, {v(E+7)}',
                 f'  v_max3_f32 {v(X1)}, {v(X1)}, {v(E+8)}, {v(E+9)}',
                 f'  v_max3_f32 {v(X0)}, {v(X0)}, {v(E+10)}, {v(M)}',
                 f'  v_max_f32 {v(X0)}, {v(X0)}, {v(X1)}',
                 f'  v_mov_b32 {v(X1)}, {v(X0)}',
                 f'  v_permlane32_swap_b32 {v(X0)}, {v(X1)}',
                 f'  v_max_f32 {v(X0)}, {v(X0)}, {v(X1)}',
                 f'  v_mov_b32 {v(X1)}, {v(X0)}',
                 f'  v_permlane16_swap_b32 {v(X0)}, {v(X1)}',
                 f'  v_max_f32 {v(M)}, {v(X0)}, {v(X1)}',
                 f'  v_mul_f32 {v(X0)}, {s(sL2E)}, {v(M)}',
                 f'  v_add_f32 {v(AL)}, {v(X0)}, {v(NB)}',
                 f'  v_sub_f32 {v(NB)}, 0, {v(X0)}',
                 f'  v_exp_f32 {v(AL)}, -{v(AL)}',
                 f'  ds_bpermute_b32 {v(ALQ)}, {v(VBP)}, {v(AL)}']
        for k in range(11):
            prep += [f'  v_fma_f32 {v(E+k)}, {v(E+k)}, {s(sL2E)}, {v(NB)}', f'  v_exp_f32 {v(E+k)}, {v(E+k)}']
        prep += [f'  v_add_f32 {v(X0)}, {v(E)}, {v(E+1)}', f'  v_add_f32 {v(X1)}, {v(E+2)}, {v(E+3)}']
        for k in range(4, 11):
            x = X0 if k % 2 == 0 else X1
            prep.append(f'  v_add_f32 {v(x)}, {v(x)}, {v(E+k)}')
        prep += [f'  v_add_f32 {v(X0)}, {v(X0)}, {v(X1)}',
                 f'  v_fma_f32 {v(LS)}, {v(LS)}, {v(AL)}, {v(X0)}']
        for k in range(6):
            prep.append(f'  v_cvt_pk_bf16_f32 {v(PP+k)}, {v(E+2*k)}, {v(E+2*k+1) if k < 5 else 0}')
        for j in range(4):
            for k in range(4):
                prep.append(f'  v_cndmask_b32 {v(AJ+4*j+k)}, 0, {v(PP+k)}, {s(sMJ+2*j,2)}')
        prep.append('  s_waitcnt lgkmcnt(0)')
        for k in range(12):
            prep.append(f'  v_mul_f32 {v(ACC+k)}, {v(ALQ)}, {v(ACC+k)}')
        prep2 = [f'  v_cndmask_b32 {v(AK+2*j+k)}, 0, {v(PP+4+k)}, {s(sMJ+2*j,2)}' for j in range(4) for k in range(2)]
        for k in range(NST):
            ss, i = divmod(k, 3)
            mode(k)
            if k == SW: offsets(DCON)
            wait_step(k, 2, f'vw{u}_{k}', PSV)
            A(main_load(o + k + D, SV, sCUR if k < SW else sNXT))
            if k == 0:
                A(f'  v_mov_b32 {v(ZC)}, {v(ZN)}')
                A(f'  v_mov_b32 {v(SC)}, {v(SN)}')
            X = TV + 4 * i if ss % 2 == 0 else T
            c, rest = dequant(X, slot(o + k), (v(ZS,2), v(ZS,2)), (v(ZS,2), v(ZS,2)), 'op_sel_hi:[1,0] ', 'op_sel:[0,1]')
            if i == 0:
                c[2:2] = [f'  v_mov_b32_dpp {v(ZS)}, {v(ZC)} row_newbcast:{ss} row_mask:0xf bank_mask:0xf',
                          f'  v_mov_b32_dpp {v(ZS+1)}, {v(SC)} row_newbcast:{ss} row_mask:0xf bank_mask:0xf']
            for x in c: A(x)
            if k == PSV: vscale_loads()
            if ss % 2 == 1:
                rest += [f'  v_cvt_pk_bf16_f32 {v(BV+16*i+4*j+((ss>>1)&3))}, {v(TV+4*i+j)}, {v(T+j)}' for j in range(4)]
            if ss == 10:
                rest += [f'  v_cvt_pk_bf16_f32 {v(BV+16*i+4*j+1)}, {v(TV+4*i+j)}, 0' for j in range(4)]
            side = []
            if k >= 1: side, prep = prep[:5], prep[5:]
            if k == 20: assert not prep
            if k == 23: prep = prep2
            for x in merge(rest, side): A(x)
            if ss == 7:
                for j in range(4):
                    A(f'  v_mfma_f32_16x16x32_bf16 {v(ACC+4*i,4)}, {v(AJ+4*j,4)}, {v(BV+16*i+4*j,4)}, {v(ACC+4*i,4)}')
            if ss == 10:
                assert not prep
                for j in range(4):
                    A(f'  v_mfma_f32_16x16x16_bf16 {v(ACC+4*i,4)}, {v(AK+2*j,2)}, {v(BV+16*i+4*j,2)}, {v(ACC+4*i,4)}')
        A(f'  s_mov_b32 {s(sCUR)}, {s(sNXT)}')
        if u == U - 1:
            A(f'  s_cmp_ge_u32 {s(sF)}, {NF}')
            A('  s_cbranch_scc1 L_v_done')
            A(f'  s_cmp_eq_u32 {s(sHN)}, {s(sHC)}')
            A('  s_cbranch_scc1 L_v0')
            A(f'  s_mov_b32 {s(sHC)}, {s(sHN)}')
            flush()
            A('  s_waitcnt lgkmcnt(0)')
            reset_state()
            A('  s_branch L_v0')
    assert 16 % (W * U) == 0
    for u in range(U): v_unit(u)
    A('L_v_done:')
    stamp()
    flush()
    C('---------------- all three waves: wave i finishes dims 64i..64i+63 of the four segments')
    A('L_finish:')
    AC = (base + 3) // 4 * 4
    OF = AC; ST = AC + 8; PA = ST + 16; FR = PA + 32
    nv = max(nv, FR + 24)
    TB, VA, VS_, VG, VH = E, E + 4, E + 6, E + 8, E + 9
    TAG = OF + 7
    A(f'  v_mov_b32 {v(X0)}, {F_END}')
    A(f'  ds_read_b128 {v(OF,4)}, {v(X0)}')
    A(f'  ds_read_b128 {v(OF+4,4)}, {v(X0)} offset:16')
    A(f'  s_mul_i32 {s(sT)}, {s(sRO)}, {SEG}')
    A(f'  s_lshl_b32 {s(sT+1)}, s3, 10')
    A(f'  v_lshl_add_u32 {v(VA)}, v0, 4, {s(sT+1)}')
    A(f'  v_lshrrev_b32 {v(X1)}, 4, v0')
    A(f'  v_lshlrev_b32 {v(VS_)}, 3, {v(X1)}')
    A(f'  v_add_u32 {v(VS_)}, {LDS_ACC + W * 3072}, {v(VS_)}')
    A(f'  s_sub_u32 {s(sG)}, {SEG}, {s(sT)}')
    A(f'  v_add_u32 {v(VA+1)}, {s(sG)}, {v(VA)}')
    A(f'  v_add_u32 {v(M)}, {s(sT)}, {v(VA)}')
    A(f'  s_sub_u32 {s(sG)}, {2 * SEG}, {s(sT)}')
    A(f'  v_add_u32 {v(ZN)}, {s(sG)}, {v(VS_)}')
    A(f'  s_add_u32 {s(sG)}, {s(sT)}, {SEG}')
    A(f'  v_add_u32 {v(SN)}, {s(sG)}, {v(VS_)}')
    A(f'  v_add_u32 {v(VS_+1)}, {3 * SEG}, {v(VS_)}')
    A(f'  s_mul_i32 {s(sT)}, s3, {PIECE}')
    A(f'  v_lshl_add_u32 {v(VG)}, v0, 4, {s(sT)}')
    A(f'  v_lshl_add_u32 {v(VH)}, {v(X1)}, 4, {s(sT)}')
    A(f'  v_mul_u32_u24 {v(AL)}, 384, {v(X1)}')
    A(f'  v_and_b32 {v(X1)}, 15, v0')
    A(f'  v_lshl_add_u32 {v(AL)}, {v(X1)}, 3, {v(AL)}')
    A(f'  s_movk_i32 {s(sMSK)}, 0xff00')
    A(f'  s_mov_b32 {s(sL0)}, 0x10001')
    A(f'  s_mov_b32 {s(sL0+1)}, 0x10001')
    A(f'  s_mov_b32 {s(sL10)}, 0x0c0c0400')
    A(f'  s_mov_b32 {s(sL10+1)}, 0x05040100')
    A(f'  s_mov_b32 {s(sF)}, 0')
    A('  s_waitcnt vmcnt(0) lgkmcnt(0)')
    sO = 72
    def fetch(r):
        A(f'  buffer_load_dwordx4 {v(FR+8*r,4)}, {v(VG)}, {s(SWS,4)}, {s(sO+3+r)} offen sc1')
        A(f'  buffer_load_dwordx4 {v(FR+8*r+4,4)}, {v(VH)}, {s(SWS,4)}, {s(sO+3+r)} offen offset:1024 sc1')
    A('  s_barrier')
    slots = ((VA, 0, VS_), (VA, 3, VS_ + 1), (VA + 1, 1, ZN), (M, 1, SN))
    for j, (va_, sl, vs_) in enumerate(slots):
        A(f'  ds_read2_b64 {v(ST+4*j,4)}, {v(vs_)} offset1:4')
        for w in range(W):
            A(f'  ds_read_b128 {v(PA+8*j+4*w,4)}, {v(va_)} offset:{LDS_ACC + sl * SEG + 3072*w}')
    for k in range(7): A(f'  v_readfirstlane_b32 {s(sO+k)}, {v(OF+k)}')
    for k in range(4): A(f'  v_bfe_u32 {v(TB+k)}, {v(TAG)}, {8 * k}, 8')
    C('three segments are published, the fourth belongs to the head this workgroup owns')
    for j in range(4):
        st = ST + 4 * j; pa = PA + 8 * j
        A(f'  s_waitcnt lgkmcnt({3 * (3 - j)})')
        A(f'  v_min_f32 {v(X0)}, {v(st)}, {v(st+2)}')
        for w in range(2): A(f'  v_sub_f32 {v(st+2*w)}, {v(X0)}, {v(st+2*w)}')
        for w in range(2): A(f'  v_exp_f32 {v(st+2*w)}, {v(st+2*w)}')
        A(f'  v_mul_f32 {v(X1)}, {v(st)}, {v(st+1)}')
        for h in range(2): A(f'  v_pk_mul_f32 {v(pa+2*h,2)}, {v(pa+2*h,2)}, {v(st,2)} op_sel_hi:[1,0]')
        for h in range(2): A(f'  v_pk_fma_f32 {v(pa+2*h,2)}, {v(pa+4+2*h,2)}, {v(st+2,2)}, {v(pa+2*h,2)} op_sel_hi:[1,0,1]')
        A(f'  v_fma_f32 {v(pa+5)}, {v(st+2)}, {v(st+3)}, {v(X1)}')
        A(f'  v_mov_b32 {v(pa+4)}, {v(X0)}')
        if j < 3:
            for x in range(4): A(f'  v_and_or_b32 {v(pa+x)}, {v(pa+x)}, {s(sMSK)}, {v(TB+x)}')
            A(f'  v_mov_b32 {v(pa+7)}, {v(TAG)}')
            A(f'  buffer_store_dwordx4 {v(pa,4)}, {v(VG)}, {s(SWS,4)}, {s(sO+j)} offen sc1')
            A(f'  s_mov_b64 exec, {s(sL0,2)}')
            A(f'  buffer_store_dwordx4 {v(pa+4,4)}, {v(VH)}, {s(SWS,4)}, {s(sO+j)} offen offset:1024 sc1')
            A('  s_mov_b64 exec, -1')
        if j == 2:
            stamp()
            for r in range(3): fetch(r)
    A('  s_branch L_check')
    C('gather the three foreign records of the owned head; a granule counts once it carries this launch\'s tag')
    A('L_gather:')
    A(f'  s_add_u32 {s(sF)}, {s(sF)}, 1')
    A(f'  s_cmp_gt_u32 {s(sF)}, 200000')
    A('  s_cbranch_scc1 L_end')
    for r in range(3):
        A(f'  s_bitcmp0_b32 {s(sMISS)}, {r}')
        A(f'  s_cbranch_scc1 L_have{r}')
        fetch(r)
        A(f'L_have{r}:')
    A('L_check:')
    A(f'  s_mov_b32 {s(sMISS)}, 0')
    A('  s_waitcnt vmcnt(0)')
    for r in range(3):
        b = FR + 8 * r
        A(f'  v_perm_b32 {v(X0)}, {v(b+1)}, {v(b)}, {s(sL10)}')
        A(f'  v_perm_b32 {v(X1)}, {v(b+3)}, {v(b+2)}, {s(sL10)}')
        A(f'  v_cmp_ne_u32 vcc, {v(TAG)}, {v(b+7)}')
        A(f'  v_perm_b32 {v(X0)}, {v(X1)}, {v(X0)}, {s(sL10+1)}')
        A(f'  v_cmp_ne_u32 {s(sT,2)}, {v(TAG)}, {v(X0)}')
        A(f'  s_or_b64 {s(sT,2)}, {s(sT,2)}, vcc')
        A(f'  s_cselect_b32 {s(sT)}, {1 << r}, 0')
        A(f'  s_or_b32 {s(sMISS)}, {s(sMISS)}, {s(sT)}')
    A('  s_cbranch_scc1 L_gather')
    stamp()
    C('(own + partner) + (neighbour pair): products are rounded separately, so the sum does not depend on who had which class')
    B4 = [PA + 24, FR, FR + 8, FR + 16]
    A(f'  v_min_f32 {v(X0)}, {v(B4[0]+4)}, {v(B4[1]+4)}')
    A(f'  v_min3_f32 {v(X0)}, {v(X0)}, {v(B4[2]+4)}, {v(B4[3]+4)}')
    for b in B4: A(f'  v_sub_f32 {v(b+4)}, {v(X0)}, {v(b+4)}')
    for b in B4: A(f'  v_exp_f32 {v(b+4)}, {v(b+4)}')
    for b in B4:
        for x in range(4): A(f'  v_and_b32 {v(b+x)}, {s(sMSK)}, {v(b+x)}')
    for b in B4: A(f'  v_mul_f32 {v(b+5)}, {v(b+4)}, {v(b+5)}')
    A(f'  v_add_f32 {v(B4[0]+5)}, {v(B4[0]+5)}, {v(B4[1]+5)}')
    A(f'  v_add_f32 {v(B4[2]+5)}, {v(B4[2]+5)}, {v(B4[3]+5)}')
    A(f'  v_add_f32 {v(X0)}, {v(B4[0]+5)}, {v(B4[2]+5)}')
    A(f'  v_rcp_f32 {v(X0)}, {v(X0)}')
    A(f'  s_lshl_b32 {s(sT)}, s3, 7')
    A(f'  s_add_u32 {s(sT)}, {s(sT)}, {s(sO+6)}')
    for x in (0, 2):
        for b in B4: A(f'  v_pk_mul_f32 {v(b+x,2)}, {v(b+x,2)}, {v(b+4,2)} op_sel_hi:[1,0]')
        A(f'  v_pk_add_f32 {v(B4[0]+x,2)}, {v(B4[0]+x,2)}, {v(B4[1]+x,2)}')
        A(f'  v_pk_add_f32 {v(B4[2]+x,2)}, {v(B4[2]+x,2)}, {v(B4[3]+x,2)}')
        A(f'  v_pk_add_f32 {v(B4[0]+x,2)}, {v(B4[0]+x,2)}, {v(B4[2]+x,2)}')
        A(f'  v_pk_mul_f32 {v(B4[0]+x,2)}, {v(B4[0]+x,2)}, {v(X0,2)} op_sel_hi:[1,0]')
        A(f'  v_cvt_pk_bf16_f32 {v(ACC+x//2)}, {v(B4[0]+x)}, {v(B4[0]+x+1)}')
    A(f'  buffer_store_dwordx2 {v(ACC,2)}, {v(AL)}, {s(SQ,4)}, {s(sT)} offen')
    A('L_fin:')
    if diagpad:
        A('L_diag:')
        A(f'  s_memrealtime {s(sBIG,2)}')
        A('  s_waitcnt lgkmcnt(0)')
        A(f'  s_sub_u32 {s(sBIG)}, {s(sBIG)}, s6')
        A(f'  s_cmp_lt_u32 {s(sBIG)}, {diagpad * 100}')
        A('  s_cbranch_scc1 L_diag')
    if tl:
        A(f'  s_mul_i32 {s(sT)}, s2, {W+1}')
        A(f'  s_add_u32 {s(sT)}, {s(sT)}, s3')
        A(f'  s_lshl_b32 {s(sT)}, {s(sT)}, 8')
        A(f'  s_add_u32 {s(sT)}, {s(sT)}, 0x10000')
        A(f'  v_lshl_add_u32 {v(E)}, v0, 2, {s(sT)}')
        A(f'  global_store_dword {v(E)}, {v(TL)}, {s(sWS,2)}')
    if stamps:
        A('  s_waitcnt vmcnt(0)')
        A(f'  s_memrealtime {s(sBIG,2)}')
        A(f'  s_getreg_b32 {s(sSM)}, hwreg(HW_REG_XCC_ID)')
        A(f'  s_mul_i32 {s(sT)}, s2, {W+1}')
        A(f'  s_add_u32 {s(sT)}, {s(sT)}, s3')
        A(f'  s_lshl_b32 {s(sT)}, {s(sT)}, 4')
        A('  s_waitcnt lgkmcnt(0)')
        A(f'  v_mov_b32 {v(RING)}, s6')
        A(f'  v_mov_b32 {v(RING+1)}, {s(sBIG)}')
        A(f'  v_mov_b32 {v(RING+2)}, {s(sSM)}')
        A(f'  v_mov_b32 {v(RING+3)}, {s(sDEC)}')
        A(f'  v_mov_b32 {v(X0)}, {s(sT)}')
        A('  s_mov_b64 exec, 1')
        A(f'  global_store_dwordx4 {v(X0)}, {v(RING,4)}, {s(sWS,2)}')
    A('L_end:')
    A('  s_endpgm')

    C('================= helper wave')
    A('L_helper:')
    if tl:
        A(f'  s_mov_b32 {s(sTL)}, 0')
        A(f'  v_mov_b32 {v(TL)}, 0')
    hA, hZ, hO, h1, h2, h3, hD = 1, 2, 3, 4, 5, 6, 8
    hP, hQ, hC, hX, hW, hU, hT = hD + 96, hD + 97, hD + 98, hD + 100, hD + 104, hD + 105, hD + 106
    assert hT + 1 < TL
    A(f'  v_lshlrev_b32 {v(hA)}, 2, v0')
    A(f'  v_add_u32 {v(hA)}, {LDS_F}, {v(hA)}')
    A(f'  v_mov_b32 {v(hZ)}, 0')
    A('  s_mov_b64 exec, 0xff')
    A(f'  ds_write_b32 {v(hA)}, {v(hZ)}')
    A('  s_mov_b64 exec, -1')
    A('  s_waitcnt lgkmcnt(0)')
    make_srds(4, 9)
    A(f'  s_mov_b32 {s(SQ)}, {s(PT+14)}')
    A(f'  s_and_b32 {s(SQ+1)}, {s(PT+15)}, 0xffff')
    A('  s_barrier')
    sOF, sN0, sV0, sJ, sSF, sA, sB, sX, sCNT, sME, sPA, sFA, sFS, sQD = 44, 45, 48, 50, 52, 54, 56, 58, 59, 60, 61, 62, 63, 64
    sT0, sNON, sCP, sCA, sUP, sRET, sSUB = 72, 74, 76, 77, 78, 84, 86
    A(f'  s_memrealtime {s(sT0,2)}')
    def code_touch(tag):
        A(f'  s_lshr_b32 {s(sT)}, s2, 3')
        A(f'  s_cmp_lt_u32 {s(sT)}, (L_code_end - L_k) / 1024')
        A(f'  s_cbranch_scc0 L_h_ct{tag}')
        A(f'  global_load_dwordx4 {v(hX,4)}, {v(hC,2)}, off')
        A(f'L_h_ct{tag}:')
    C('workgroup i reads kilobyte i/8 of this kernel\'s code so that first instruction fetches hit L2')
    A(f'  s_getpc_b64 {s(sA,2)}')
    A('L_h_pc:')
    A(f'  s_add_u32 {s(sSUB)}, {s(sA)}, L_h_cp - L_h_pc')
    A(f'  s_addc_u32 {s(sSUB+1)}, {s(sA+1)}, 0')
    A(f'  s_sub_u32 {s(sA)}, {s(sA)}, L_h_pc - L_k')
    A(f'  s_subb_u32 {s(sA+1)}, {s(sA+1)}, 0')
    A(f'  s_and_b32 {s(sA)}, {s(sA)}, -16')
    A(f'  s_lshr_b32 {s(sT)}, s2, 3')
    A(f'  s_lshl_b32 {s(sT)}, {s(sT)}, 10')
    A(f'  v_lshl_add_u32 {v(hC)}, v0, 4, {s(sT)}')
    A(f'  v_mov_b32 {v(hC+1)}, {s(sA+1)}')
    A(f'  v_add_co_u32 {v(hC)}, vcc, {s(sA)}, {v(hC)}')
    A(f'  v_addc_co_u32 {v(hC+1)}, vcc, 0, {v(hC+1)}, vcc')
    code_touch('a')
    A(f'  s_lshr_b32 {s(sT)}, s2, 4')
    A(f'  s_and_b32 {s(sT)}, {s(sT)}, 8')
    A(f'  s_and_b32 {s(sT+1)}, s2, 7')
    A(f'  s_add_u32 {s(sT)}, {s(sT)}, {s(sT+1)}')
    A(f'  s_lshl_b32 {s(sT)}, {s(sT)}, 4')
    A(f'  v_lshl_add_u32 {v(hP)}, v0, 3, {s(sT)}')
    A(f'  v_and_b32 {v(hQ)}, 31, v0')
    A(f'  v_lshlrev_b32 {v(hQ)}, 3, {v(hQ)}')
    A(f'  v_and_b32 {v(hW)}, 1, v0')
    A(f'  v_lshlrev_b32 {v(hW)}, 2, {v(hW)}')
    A(f'  v_add_u32 {v(hW)}, {F_PRG}, {v(hW)}')
    A(f'  v_mov_b32 {v(hU)}, 0')
    A(f'  v_lshlrev_b32 {v(hO)}, 4, v0')
    A(f'  s_mov_b32 {s(sCP)}, {cp0}')
    A(f'  s_mov_b32 {s(sCA)}, {WS_CP}')
    def wait_progress(tag, lim, slp):
        A(f'L_h_prog{tag}:')
        A(f'  s_sleep {slp}')
        A(f'  ds_read_b32 {v(hD)}, {v(hW)}')
        A('  s_waitcnt lgkmcnt(0)')
        A(f'  v_cmp_gt_u32 vcc, {lim}, {v(hD)}')
        A('  s_cmp_lg_u32 vcc_lo, 0')
        A(f'  s_cbranch_scc1 L_h_prog{tag}')
    def lds_set(addr, val):
        A(f'  v_mov_b32 {v(hA)}, {addr}')
        A(f'  v_mov_b32 {v(h2)}, {val}')
        A(f'  ds_write_b32 {v(hA)}, {v(h2)}')
    C('vote word in d_debug: six 6-bit tallies (class near die 0 in even pages, per slab of qk and qv), four 4-bit tallies')
    C(f'(die of role 0 per wg&3) and the voter count in the top byte; {7 * NV} workgroups vote')
    A(f'  s_getreg_b32 {s(sJ)}, hwreg(HW_REG_XCC_ID)')
    A(f'  s_bfe_u32 {s(sJ)}, {s(sJ)}, 0x10002')
    A(f'  s_bfe_u32 {s(sSF)}, s2, 0x30003')
    A(f'  s_cmp_eq_u32 {s(sSF)}, 7')
    A('  s_cbranch_scc1 L_h_voted')
    A(f'  s_lshr_b32 {s(sT)}, s2, 6')
    A(f'  s_xor_b32 {s(sT)}, {s(sT)}, s2')
    A(f'  s_and_b32 {s(sT)}, {s(sT)}, {32 // NV - 1}')
    A('  s_cbranch_scc1 L_h_voted')
    A(f'  s_cmp_eq_u32 {s(sSF)}, 6')
    A('  s_cbranch_scc0 L_h_probe')
    A(f'  s_xor_b32 {s(sV0)}, {s(sJ)}, {s(sRO)}')
    A(f'  s_and_b32 {s(sSF)}, s2, 3')
    A(f'  s_lshl2_add_u32 {s(sSF)}, {s(sSF)}, 36')
    A('  s_branch L_h_vote')
    A('L_h_probe:')
    A(f'  s_cmp_ge_u32 {s(sSF)}, 3')
    A(f'  s_cselect_b32 {s(SI)}, {s(SV)}, {s(SK)}')
    A(f'  s_cselect_b32 {s(SI+1)}, {s(SV+1)}, {s(SK+1)}')
    A(f'  s_cselect_b32 {s(sT)}, 3, 0')
    A(f'  s_sub_u32 {s(sT)}, {s(sSF)}, {s(sT)}')
    A(f'  s_lshl_b32 {s(sT)}, {s(sT)}, 28')
    A(f'  s_add_u32 {s(sOF)}, {s(sPB)}, {s(sRO)}')
    A(f'  s_lshl_b32 {s(sOF)}, {s(sOF)}, 16')
    A(f'  s_add_u32 {s(sOF)}, {s(sOF)}, {s(sT)}')
    A(f'  s_add_u32 {s(sOF)}, {s(sOF)}, 0x1c0000')
    A(f'  s_mul_i32 {s(sT)}, s2, 0x2a95')
    A(f'  s_and_b32 {s(sT)}, {s(sT)}, 0x7f80')
    A(f'  s_add_u32 {s(sOF)}, {s(sOF)}, {s(sT)}')
    A(f'  s_add_u32 {s(sT)}, {s(sOF)}, 0x8000')
    A(f'  s_buffer_load_dword {s(sX)}, {s(SI,4)}, {s(sT)}')
    A(f'  s_mov_b32 {s(sN0)}, -1')
    A(f'  s_mov_b32 {s(sN0+1)}, -1')
    A(f'  s_mul_i32 {s(sSF)}, {s(sSF)}, 6')
    wait_progress('p', 1, 2)
    for k in range(NS):
        for c in ((0, 1) if k % 2 == 0 else (1, 0)):
            o = (((k & 1) << 14) | ((k >> 1 & 1) << 12) | ((k * 0x380) & 0xfff)) ^ (c << 13)
            A(f'  s_xor_b32 {s(sT)}, {s(sOF)}, {o}')
            A(f'  s_memtime {s(sA,2)}')
            A('  s_waitcnt lgkmcnt(0)')
            A(f'  s_buffer_load_dword {s(sX)}, {s(SI,4)}, {s(sT)}')
            A('  s_waitcnt lgkmcnt(0)')
            A(f'  s_memtime {s(sB,2)}')
            A('  s_waitcnt lgkmcnt(0)')
            A(f'  s_sub_u32 {s(sB)}, {s(sB)}, {s(sA)}')
            A(f'  s_min_u32 {s(sN0+c)}, {s(sN0+c)}, {s(sB)}')
    A(f'  s_cmp_lt_u32 {s(sN0+1)}, {s(sN0)}')
    A(f'  s_cselect_b32 {s(sV0)}, 1, 0')
    A(f'  s_lshr_b32 {s(sT)}, {s(sOF)}, 13')
    A(f'  s_xor_b32 {s(sT)}, {s(sT)}, s2')
    A(f'  s_xor_b32 {s(sT)}, {s(sT)}, {s(sJ)}')
    A(f'  s_and_b32 {s(sT)}, {s(sT)}, 1')
    A(f'  s_xor_b32 {s(sV0)}, {s(sV0)}, {s(sT)}')
    A('L_h_vote:')
    A(f'  s_mov_b32 {s(sV0+1)}, 0')
    A(f'  s_lshl_b64 {s(sV0,2)}, {s(sV0,2)}, {s(sSF)}')
    A(f'  s_or_b32 {s(sV0+1)}, {s(sV0+1)}, 0x1000000')
    A(f'  s_atomic_add_x2 {s(sV0,2)}, {s(sDBG,2)}, 0')
    A('L_h_voted:')
    A('  s_waitcnt lgkmcnt(0)')
    C('launch nonce (tells this launch\'s hand-offs in ws from older contents)')
    A('  s_cmp_lg_u32 s2, 56')
    A('  s_cbranch_scc1 L_h_nonce')
    A(f'  s_lshl_b64 {s(sA,2)}, {s(sT0,2)}, 2')
    A(f'  s_atomic_add_x2 {s(sA,2)}, {s(sDBG,2)}, 8')
    A('  s_waitcnt lgkmcnt(0)')
    A('L_h_nonce:')
    stamp()
    def checkpoints(upto):
        A(f'  s_mov_b32 {s(sUP)}, {min(upto, last) - dly}')
        A(f'  s_swappc_b64 {s(sRET,2)}, {s(sSUB,2)}')
    def bounded(label, n):
        A(f'  s_add_u32 {s(sCNT)}, {s(sCNT)}, 1')
        A(f'  s_cmp_gt_u32 {s(sCNT)}, {n}')
        A(f'  s_cbranch_scc1 {label}')
    wait_progress('v', NWU - W, 8)
    A(f'  s_load_dwordx2 {s(sV0,2)}, {s(sDBG,2)}, 0')
    A(f'  s_mov_b32 {s(sCNT)}, 0')
    A('L_h_votes:')
    A('  s_waitcnt lgkmcnt(0)')
    A(f'  s_lshr_b32 {s(sT)}, {s(sV0+1)}, 24')
    A(f'  s_cmp_eq_u32 {s(sT)}, {7 * NV}')
    A('  s_cbranch_scc1 L_h_votes_done')
    bounded('L_h_votes_done', 8000)
    A('  s_sleep 64')
    A(f'  s_mov_b64 {s(sV0,2)}, 0')
    A(f'  s_atomic_or_x2 {s(sV0,2)}, {s(sDBG,2)}, 0 glc')
    A('  s_branch L_h_votes')
    A('L_h_votes_done:')
    A(f'  s_mov_b32 {s(sDEC)}, 0x80')
    for j in range(6):
        A(f'  s_bfe_u64 {s(sA,2)}, {s(sV0,2)}, {hex(0x60000 | (6 * j))}')
        A(f'  s_cmp_gt_u32 {s(sA)}, {NV // 2}')
        A(f'  s_cselect_b32 {s(sB)}, {1 << j}, 0')
        A(f'  s_or_b32 {s(sDEC)}, {s(sDEC)}, {s(sB)}')
    if force >= 0: A(f'  s_mov_b32 {s(sDEC)}, {0x80 | force}')
    A(f'  s_and_b32 {s(sT)}, s2, 3')
    A(f'  s_lshl2_add_u32 {s(sT)}, {s(sT)}, {4 + (NV // 4).bit_length() - 1}')
    A(f'  s_lshr_b32 {s(sA)}, {s(sV0+1)}, {s(sT)}')
    A(f'  s_xor_b32 {s(sA)}, {s(sA)}, s2')
    A(f'  s_xor_b32 {s(sA)}, {s(sA)}, {s(sRO)}')
    A(f'  s_and_b32 {s(sA)}, {s(sA)}, 1')
    A(f'  s_mul_i32 {s(sA)}, {s(sA)}, 63')
    A(f'  s_xor_b32 {s(sDEC)}, {s(sDEC)}, {s(sA)}')
    lds_set(F_DEC, s(sDEC))
    stamp()
    A(f'  s_load_dwordx2 {s(sNON,2)}, {s(sDBG,2)}, 8')
    A(f'  s_mov_b32 {s(sCNT)}, 0')
    A('L_h_getnonce:')
    A('  s_waitcnt lgkmcnt(0)')
    A(f'  s_cmp_lg_u64 {s(sNON,2)}, 0')
    A('  s_cbranch_scc1 L_h_gotnonce')
    bounded('L_h_gotnonce', 8000)
    A('  s_sleep 64')
    A(f'  s_atomic_or_x2 {s(sNON,2)}, {s(sDBG,2)}, 8 glc')
    A('  s_branch L_h_getnonce')
    A('L_h_gotnonce:')
    A(f'  s_lshr_b64 {s(sA,2)}, {s(sNON,2)}, 2')
    C('table for the finish: ws offsets of the records to publish (slots 0, 3, 2-role) and to gather, output offset, tag.')
    C('record = 8*(page/3) + 2*slot + class; the page of type t = page%3 lies in slab (2t + pair) % 3')
    A(f'  v_writelane_b32 {v(hD)}, {s(sA)}, 7')
    A(f'  s_lshr_b32 {s(sQD)}, {s(sPB)}, 5')
    A(f'  s_mov_b32 {s(sJ)}, 0xaaaaaaab')
    def rec_base(t):
        A(f'  s_add_u32 {s(sA)}, {s(sQD)}, {2 * t}')
        A(f'  s_mul_hi_u32 {s(sB)}, {s(sA)}, {s(sJ)}')
        A(f'  s_lshr_b32 {s(sB)}, {s(sB)}, 1')
        A(f'  s_mul_i32 {s(sB)}, {s(sB)}, 3')
        A(f'  s_sub_u32 {s(sA)}, {s(sA)}, {s(sB)}')
        A(f'  s_lshr_b32 {s(sB)}, {s(sDEC)}, {s(sA)}')
        A(f'  s_bfe_u32 {s(sB)}, {s(sB)}, 0x10003')
        A(f'  s_lshl_b32 {s(sA)}, {s(sA)}, 7')
        A(f'  s_add_u32 {s(sA)}, {s(sA)}, {s(sQD)}')
        A(f'  s_mul_hi_u32 {s(sA)}, {s(sA)}, {s(sJ)}')
        A(f'  s_lshr_b32 {s(sA)}, {s(sA)}, 1')
        A(f'  s_lshl3_add_u32 {s(sA)}, {s(sA)}, {s(sB)}')
    def put(lane, reg):
        A(f'  s_mul_i32 {s(sT)}, {s(reg)}, {REC}')
        A(f'  s_add_u32 {s(sT)}, {s(sT)}, {WS_REC}')
        A(f'  v_writelane_b32 {v(hD)}, {s(sT)}, {lane}')
    rec_base(0)
    put(0, sA)
    rec_base(2)
    A(f'  s_add_u32 {s(sA)}, {s(sA)}, 6')
    put(1, sA)
    rec_base(1)
    A(f'  s_lshl_b32 {s(sB)}, {s(sRO)}, 1')
    A(f'  s_sub_u32 {s(sB+1)}, {s(sA)}, {s(sB)}')
    A(f'  s_add_u32 {s(sB+1)}, {s(sB+1)}, 4')
    put(2, sB + 1)
    A(f'  s_add_u32 {s(sA)}, {s(sA)}, {s(sB)}')
    A(f'  s_add_u32 {s(sA)}, {s(sA)}, 2')
    A(f'  s_xor_b32 {s(sB)}, {s(sA)}, 1')
    put(3, sB)
    A(f'  s_andn2_b32 {s(sB)}, {s(sA)}, 1')
    A(f'  s_xor_b32 {s(sB)}, {s(sB)}, 2')
    put(4, sB)
    A(f'  s_add_u32 {s(sB)}, {s(sB)}, 1')
    put(5, sB)
    A(f'  s_lshr_b32 {s(sA)}, {s(sA)}, 2')
    A(f'  s_mul_i32 {s(sA)}, {s(sA)}, 1536')
    A(f'  v_writelane_b32 {v(hD)}, {s(sA)}, 6')
    A(f'  v_lshlrev_b32 {v(hA)}, 2, v0')
    A('  s_mov_b64 exec, 0xff')
    A(f'  ds_write_b32 {v(hA)}, {v(hD)} offset:{F_END}')
    A('  s_mov_b64 exec, -1')
    C('logit swap: flag word per workgroup; image q = 2*pair + role keeps kilobyte k at')
    C('region(q>>5) + (k<<15) + ((q&31 ^ comp(k)) << 10), which stays inside four memory channels')
    A(f'  s_lshl_b32 {s(sFA)}, s2, 8')
    A(f'  s_add_u32 {s(sFA)}, {s(sFA)}, {WS_FLAG}')
    A(f'  s_xor_b32 {s(sFS)}, {s(sFA)}, 1024')
    A(f'  s_lshr_b32 {s(sX)}, {s(sDEC)}, 3')
    A(f'  s_xor_b32 {s(sX)}, {s(sX)}, {s(sDEC)}')
    A(f'  s_lshr_b32 {s(sT)}, {s(sPB)}, 4')
    A(f'  s_lshr_b32 {s(sOF)}, {s(sT)}, 5')
    A(f'  s_lshl_b32 {s(sOF)}, {s(sOF)}, 21')
    A(f'  s_add_u32 {s(sOF)}, {s(sOF)}, {WS_IMG}')
    A(f'  s_and_b32 {s(sQD)}, {s(sT)}, 31')
    A(f'  s_add_u32 {s(sT)}, {s(sQD)}, {s(sRO)}')
    A(f'  s_lshl_b32 {s(sT)}, {s(sT)}, 10')
    A(f'  s_add_u32 {s(sME)}, {s(sOF)}, {s(sT)}')
    A(f'  s_xor_b32 {s(sPA)}, {s(sME)}, 1024')
    def pxor(k):
        h = k >> 2
        c = (h & 3) ^ (((h >> 2) & 1) * 17) ^ (((h >> 3) & 1) * 4)
        return (k << 15) | (c << 10)
    NW = NWU * 384 // 1024
    def reg(k): return hD + 4 * (k % 24)
    def export(lo, hi):
        for k in range(lo, hi): A(f'  ds_read_b128 {v(reg(k),4)}, {v(hO)} offset:{1024*k}')
        A('  s_waitcnt lgkmcnt(0)')
        for k in range(lo, hi):
            A(f'  s_xor_b32 {s(sT)}, {s(sME)}, {pxor(k)}')
            A(f'  buffer_store_dwordx4 {v(reg(k),4)}, {v(hO)}, {s(SWS,4)}, {s(sT)} offen sc1')
    def imp(lo, hi):
        for k in range(lo, hi):
            A(f'  s_xor_b32 {s(sT)}, {s(sPA)}, {pxor(k)}')
            A(f'  buffer_load_dwordx4 {v(reg(k),4)}, {v(hO)}, {s(SWS,4)}, {s(sT)} offen sc1')
        A('  s_waitcnt vmcnt(0)')
        for k in range(lo, hi): A(f'  ds_write_b128 {v(hO)}, {v(reg(k),4)} offset:{1024*k}')
    def cond(bit, tag, fn):
        A(f'  s_bitcmp0_b32 {s(sX)}, {bit}')
        A(f'  s_cbranch_scc1 L_h_{tag}')
        fn()
        A(f'L_h_{tag}:')
    def handshake(tag, level):
        A(f'  s_add_u32 {s(sA)}, {s(sNON)}, {level}')
        A(f'  v_mov_b32 {v(h2)}, 0')
        A('  s_waitcnt vmcnt(0)')
        A(f'  v_mov_b32 {v(hD)}, {s(sA)}')
        A(f'  v_mov_b32 {v(hD+1)}, {s(sNON+1)}')
        A('  s_mov_b64 exec, 1')
        A(f'  buffer_store_dwordx2 {v(hD,2)}, {v(h2)}, {s(SWS,4)}, {s(sFA)} offen sc1')
        A(f'  s_mov_b32 {s(sCNT)}, 0')
        A(f'L_h_flag{tag}:')
        A(f'  buffer_load_dwordx2 {v(hD+2,2)}, {v(h2)}, {s(SWS,4)}, {s(sFS)} offen sc1')
        A('  s_waitcnt vmcnt(0)')
        A(f'  v_readfirstlane_b32 {s(sB)}, {v(hD+2)}')
        A(f'  v_readfirstlane_b32 {s(sB+1)}, {v(hD+3)}')
        A(f'  s_sub_u32 {s(sB)}, {s(sB)}, {s(sA)}')
        A(f'  s_xor_b32 {s(sB+1)}, {s(sB+1)}, {s(sNON+1)}')
        A(f'  s_lshr_b32 {s(sB)}, {s(sB)}, 1')
        A(f'  s_or_b32 {s(sB)}, {s(sB)}, {s(sB+1)}')
        A(f'  s_cbranch_scc0 L_h_flag{tag}_done')
        bounded(f'L_h_flag{tag}_done', 100000)
        A('  s_sleep 8')
        A(f'  s_branch L_h_flag{tag}')
        A(f'L_h_flag{tag}_done:')
        A('  s_mov_b64 exec, -1')
    pg = (2, 0, 1) if kord else (0, 1, 2)
    checkpoints(64)
    wait_progress('a', 64, 4)
    stamp()
    export(0, NW)
    cond(pg[0], 'e0', lambda: export(NW, 12))
    cond(pg[1], 'e1', lambda: export(12, 24))
    handshake('a', 1)
    stamp()
    C('first units: slot f comes from the image of role f&1, slot (f&~1) + V class of that page')
    A(f'  s_bfe_u32 {s(sA)}, {s(sDEC)}, {hex(0x10003 + pg[0])}')
    A(f'  s_mul_i32 {s(sA)}, {s(sA)}, 384')
    A(f'  v_lshrrev_b32 {v(h1)}, 3, v0')
    for k in range(NW):
        A(f'  v_add_u32 {v(h2)}, {8 * k}, {v(h1)}')
        A(f'  v_mul_u32_u24 {v(h2)}, 21846, {v(h2)}')
        A(f'  v_bfe_u32 {v(h2)}, {v(h2)}, 16, 1')
        A(f'  v_mul_u32_u24 {v(h3)}, 384, {v(h2)}')
        A(f'  v_sub_u32 {v(h3)}, {v(hO)}, {v(h3)}')
        A(f'  v_add_u32 {v(h3)}, {s(sA)}, {v(h3)}')
        A(f'  v_add_u32 {v(h3)}, {1024 * k}, {v(h3)}')
        A(f'  v_add_u32 {v(h2)}, {s(sQD)}, {v(h2)}')
        A(f'  v_lshrrev_b32 {v(hZ)}, 12, {v(h3)}')
        A(f'  v_xor_b32 {v(h2)}, {v(h2)}, {v(hZ)}')
        A(f'  v_lshrrev_b32 {v(hZ)}, 10, {v(h3)}')
        A(f'  v_lshl_add_u32 {v(h2)}, {v(hZ)}, 5, {v(h2)}')
        A(f'  v_and_b32 {v(h3)}, 1023, {v(h3)}')
        A(f'  v_lshl_add_u32 {v(h2)}, {v(h2)}, 10, {v(h3)}')
        A(f'  buffer_load_dwordx4 {v(reg(k),4)}, {v(h2)}, {s(SWS,4)}, {s(sOF)} offen sc1')
    cond(pg[0], 'i0', lambda: imp(NW, 12))
    cond(pg[1], 'i1', lambda: imp(12, 24))
    A('  s_waitcnt vmcnt(0)')
    for k in range(NW): A(f'  ds_write_b128 {v(hO)}, {v(reg(k),4)} offset:{1024*k}')
    stamp()
    A(f'  s_bitcmp0_b32 {s(sX)}, {pg[2]}')
    A(f'  s_cselect_b32 {s(sT)}, 255, {32 * pg[2]}')
    lds_set(F_IMP, s(sT))
    checkpoints(NF)
    A(f'  s_bitcmp0_b32 {s(sX)}, {pg[2]}')
    A('  s_cbranch_scc1 L_h_all')
    wait_progress('b', NF, 4)
    export(24, 36)
    handshake('b', 2)
    imp(24, 36)
    lds_set(F_IMP, 255)
    A('L_h_all:')
    checkpoints(999)
    C('the last unit runs with the deep queue')
    wait_progress('t', 2 * NF - 2 * W, 4)
    A(f'  v_mov_b32 {v(hD)}, 255')
    A(f'  ds_write_b32 {v(hW)}, {v(hD)} offset:{F_BST - F_PRG}')
    A('  s_branch L_finish')

    C(f'check points every {step} units up to unit s{sUP}: lane w (mod 2) follows wave w. Arrival times of 16 workgroups go to ws;')
    C(f'{dly} units later the entries stamped inside this launch give the mean, and a late wave gets a catch-up limit in LDS')
    A('L_h_cp:')
    A(f'  s_cmp_gt_u32 {s(sCP)}, {s(sUP)}')
    A('  s_cbranch_scc0 L_h_cpgo')
    A(f'  s_setpc_b64 {s(sRET,2)}')
    A('L_h_cpgo:')
    A(f'  ds_read_b32 {v(hD)}, {v(hW)}')
    A('  s_waitcnt lgkmcnt(0)')
    A(f'  v_cmp_gt_u32 vcc, {s(sCP)}, {v(hD)}')
    A('  s_cmp_eq_u32 vcc_lo, 0')
    A('  s_cbranch_scc1 L_h_cpnext')
    A('L_h_first:')
    A('  s_sleep 2')
    A(f'  ds_read_b32 {v(hD)}, {v(hW)}')
    A('  s_waitcnt lgkmcnt(0)')
    A(f'  v_cmp_gt_u32 {s(sV0,2)}, {s(sCP)}, {v(hD)}')
    A(f'  s_cmp_eq_u32 {s(sV0)}, -1')
    A('  s_cbranch_scc1 L_h_first')
    A(f'  s_memrealtime {s(sA,2)}')
    wait_progress('m', s(sCP), 2)
    A(f'  s_memrealtime {s(sB,2)}')
    A(f'  v_mov_b32 {v(hT)}, {s(sA)}')
    A(f'  v_mov_b32 {v(hT+1)}, {s(sA+1)}')
    A(f'  s_mov_b64 exec, {s(sV0,2)}')
    A('  s_waitcnt lgkmcnt(0)')
    A(f'  v_mov_b32 {v(hT)}, {s(sB)}')
    A(f'  v_mov_b32 {v(hT+1)}, {s(sB+1)}')
    A('  s_mov_b64 exec, -1')
    A(f'  s_and_b32 {s(sT)}, s2, 0x78')
    A('  s_cbranch_scc1 L_h_np')
    A('  s_mov_b64 exec, 3')
    A(f'  buffer_store_dwordx2 {v(hT,2)}, {v(hP)}, {s(SWS,4)}, {s(sCA)} offen sc1')
    A('  s_mov_b64 exec, -1')
    A('L_h_np:')
    A(f'  s_add_u32 {s(sJ)}, {s(sCP)}, {dly}')
    wait_progress('c', s(sJ), 4)
    A(f'  buffer_load_dwordx2 {v(hD,2)}, {v(hQ)}, {s(SWS,4)}, {s(sCA)} offen')
    A(f'  v_mov_b32 {v(hD+2)}, {s(sT0+1)}')
    A('  s_waitcnt vmcnt(0)')
    A(f'  ds_read_b32 {v(hD+4)}, {v(hW)}')
    A(f'  v_subrev_co_u32 {v(hD)}, vcc, {s(sT0)}, {v(hD)}')
    A(f'  v_subb_co_u32 {v(hD+1)}, vcc, {v(hD+1)}, {v(hD+2)}, vcc')
    A(f'  v_lshrrev_b32 {v(hD+2)}, 24, {v(hD)}')
    A(f'  v_or_b32 {v(hD+1)}, {v(hD+1)}, {v(hD+2)}')
    A(f'  v_cmp_eq_u32 vcc, 0, {v(hD+1)}')
    A(f'  v_cndmask_b32 {v(hD)}, 0, {v(hD)}, vcc')
    A(f'  s_bcnt1_i32_b32 {s(sB)}, vcc_lo')
    for r in (8, 4, 2, 1):
        A(f'  v_add_u32_dpp {v(hD)}, {v(hD)}, {v(hD)} row_ror:{r} row_mask:0xf bank_mask:0xf')
    A(f'  v_readlane_b32 {s(sA)}, {v(hD)}, 0')
    A(f'  v_readlane_b32 {s(sT)}, {v(hD)}, 16')
    A(f'  v_subrev_u32 {v(hD)}, {s(sT0)}, {v(hT)}')
    A(f'  v_mul_lo_u32 {v(hD)}, {v(hD)}, {s(sB)}')
    A(f'  s_add_u32 {s(sA)}, {s(sA)}, {s(sT)}')
    A(f'  s_max_u32 {s(sB)}, {s(sB)}, 1')
    A(f'  v_subrev_u32 {v(hD)}, {s(sA)}, {v(hD)}')
    A(f'  v_cvt_f32_u32 {v(hD+1)}, {s(sB)}')
    A(f'  v_cvt_f32_i32 {v(hD)}, {v(hD)}')
    A(f'  v_rcp_f32 {v(hD+1)}, {v(hD+1)}')
    A(f'  v_mul_f32 {v(hD)}, {v(hD)}, {v(hD+1)}')
    A(f'  v_cvt_i32_f32 {v(hD)}, {v(hD)}')
    A('  s_waitcnt lgkmcnt(0)')
    A(f'  v_add_u32 {v(hD+4)}, {W}, {v(hD+4)}')
    C('subtract what the running catch-up gains between the check point and the first unit that sees the new limit')
    A(f'  v_min_u32 {v(hD+1)}, {v(hU)}, {v(hD+4)}')
    A(f'  v_subrev_u32 {v(hD+1)}, {s(sCP)}, {v(hD+1)}')
    A(f'  v_max_i32 {v(hD+1)}, 0, {v(hD+1)}')
    A(f'  v_lshrrev_b32 {v(hD+1)}, 1, {v(hD+1)}')
    A(f'  v_mul_u32_u24 {v(hD+1)}, {gain}, {v(hD+1)}')
    A(f'  v_sub_u32 {v(hD)}, {v(hD)}, {v(hD+1)}')
    A(f'  v_add_u32 {v(hD+1)}, {gain // 2 - dead}, {v(hD)}')
    A(f'  v_max_i32 {v(hD+1)}, 0, {v(hD+1)}')
    A(f'  v_min_i32 {v(hD+1)}, 2000, {v(hD+1)}')
    A(f'  v_mul_u32_u24 {v(hD+1)}, {65536 // gain}, {v(hD+1)}')
    A(f'  v_lshrrev_b32 {v(hD+1)}, 16, {v(hD+1)}')
    A(f'  v_cmp_ne_u32 vcc, 0, {v(hD+1)}')
    A(f'  v_lshl_add_u32 {v(hD+1)}, {v(hD+1)}, 1, {v(hD+4)}')
    A(f'  v_cndmask_b32 {v(hU)}, 0, {v(hD+1)}, vcc')
    A(f'  ds_write_b32 {v(hW)}, {v(hU)} offset:{F_BST - F_PRG}')
    A('L_h_cpnext:')
    A(f'  s_add_u32 {s(sCP)}, {s(sCP)}, {step}')
    A(f'  s_add_u32 {s(sCA)}, {s(sCA)}, 256')
    A('  s_branch L_h_cp')
    A('L_code_end:')
    body = pad(L)

    nva = (nv + 7) // 8 * 8
    out = HDR + f'; @launch grid=(256,1,1) block=({64*(W+1)},1,1) lds={lds}\n' + NOTES
    out += '.amdgcn_target "amdgcn-amd-amdhsa--gfx950"\n.text\n'
    out += f'.globl {NAME}\n.p2align 8\n.type {NAME},@function\n'
    out += '\n'.join(body) + '\n'
    out += f'''.section .rodata,"a"
.p2align 6
.amdhsa_kernel {NAME}
  .amdhsa_next_free_vgpr {nva}
  .amdhsa_next_free_sgpr 102
  .amdhsa_accum_offset {nva}
  .amdhsa_group_segment_fixed_size 0
  .amdhsa_kernarg_size 80
  .amdhsa_user_sgpr_count 2
  .amdhsa_user_sgpr_kernarg_segment_ptr 1
  .amdhsa_system_sgpr_workgroup_id_x 1
  .amdhsa_float_denorm_mode_32 3
.end_amdhsa_kernel
'''
    return out

if __name__ == '__main__':
    kw = {}
    for x in sys.argv[2:]:
        k, val = x.split('=')
        kw[k] = int(val)
    open(sys.argv[1], 'w').write(gen(**kw))
```

```python
import sys, os
sys.path.insert(0, os.path.dirname(os.path.abspath(__file__)))
from asmlib import pad
NAME = 'standalone__kv_cache_quant_int4_int2_kv_with_per_channel_or_per_token_scales__sampling_kernel'
TOTAL = 256 * 4096 * 768
PIECE = 1152
REC = 3 * PIECE
WS_REC = 1 << 20
WS_CP = 7 << 20
WS_FLAG = (7 << 20) + (1 << 16)
WS_IMG = 8 << 20
WS_END = WS_IMG + (16 << 20)
IMG = 96 * 384
OOB = 0x7ffffff0
HDR = open(os.path.join(os.path.dirname(os.path.abspath(__file__)), 'header.txt')).read()
assert all(((32 * c + 1) * 21846) >> 16 == (32 * c + 1) // 3 for c in range(25))
assert all((c * 43) >> 8 == c // 6 for c in range(24))
assert all((x * 21846) >> 16 == x // 3 for x in range(100))

NOTES = """\
"""

class Alloc:
    def __init__(self, start): self.n = start
    def __call__(self, k, align=1):
        self.n = (self.n + align - 1) // align * align
        r = self.n; self.n += k
        return r

def v(r, k=1): return f'v{r}' if k == 1 else f'v[{r}:{r+k-1}]'
def s(r, k=1): return f's{r}' if k == 1 else f's[{r}:{r+k-1}]'

def merge(main, side):
    out = []; side = list(side)
    for m in main:
        out.append(m)
        if side: out.append(side.pop(0))
    return out + side

def gen(DN=10, D=15, bev=3, NWU=8, NS=3, NV=8, pfw=16, PSK=17, gain=28, dly=4, dead=0, cp0=12, step=8, last=186,
        force=-1, stamps=0, tl=0, diagpad=0, diagat=-1, kord=1):
    W, U, NST, NF, PSV = 2, 2, 33, 96, 3
    R = 11 * U
    SW = NST - D
    assert DN <= D < R and NWU % 8 == 0 and PSV < SW and 3 <= PSK < SW
    L = []
    A = L.append
    C = lambda t: L.append('; ' + t)
    va = Alloc(1)
    DUP = va(1); DOWN = va(1); DCON = va(1)
    RING = va(4 * R, 4); VO = va(4)
    ICV = va(1); TU = va(1); VVS = va(1); VL1 = va(1); VL2 = va(1); VBP = va(1); VFL = va(1); VST = va(1); VPR = va(1)
    VOOB = va(1); VBS = va(1)
    T = va(4, 2); ZN = va(1); SN = va(1); ZC = va(1); SC = va(1); ZS = va(2, 2)
    LG = va(6, 4); ACC = va(12, 4); M = va(1); NB = va(2, 2); LS = NB + 1
    X0 = va(2, 2); X1 = X0 + 1; AL = va(1); ALQ = va(1); E = va(11); PP = va(6); TL = va(1)
    base = va.n
    QB = va(6, 4); QN = va(6, 2); KSR = va(6, 2); KZR = va(6, 2); KS = va(12, 2); KZ = va(12, 2); KA = va(6, 4); SD = va(4, 4); S = va(2, 2)
    IUP = va(1); IOWN = va(1); ICON = va(1); VKS0 = va(1); VKS = va(1); VQ = va(1); VNI = va(1)
    kend = va.n
    va.n = base
    AJ = va(16, 4); AK = va(8, 2); TV = va(12, 2); BV = va(48, 4)
    nv = max(va.n, kend)
    sRO, sPB = 4, 5
    SK, SV, SI, SKS, SKZ, SVS, SVZ, SQ, SWS = 8, 12, 16, 20, 24, 28, 32, 36, 40
    PT = 44
    sOUT, sL0, sL10, sM0, sM10, sLOW = 46, 48, 50, 52, 54, 56
    sCUR, sNXT, sSO, s768, sF, sMSK, sL2E, sTL, sSCL, sT = 60, 61, 62, 63, 64, 65, 66, 67, 68, 70
    sMJ = 72
    sDBG, sWS = 80, 82
    sQ3, sC, sQC, sMISS, sHC, sHN, sDIV, sSH = 84, 85, 86, 87, 88, 89, 90, 91
    sBIG, sSM = 92, 94
    sDEC, sG, sGATE = 96, 97, 99
    SEG = W * 3072 + W * 32
    LDS_ACC = IMG
    LDS_F = LDS_ACC + 4 * SEG
    F_DEC, F_IMP, F_PRG, F_BST, F_END = LDS_F, LDS_F + 4, LDS_F + 16, LDS_F + 24, LDS_F + 32
    lds = 62464
    assert LDS_F + 64 <= lds and F_END % 16 == 0

    A(f'{NAME}:')
    A('  s_cmp_ge_u32 s2, 256')
    A('  s_cbranch_scc1 L_end')
    A(f'  s_load_dwordx16 {s(PT,16)}, s[0:1], 0')
    A(f'  s_load_dwordx4 {s(sDBG,4)}, s[0:1], 64')
    if stamps or diagpad: A('  s_memrealtime s[6:7]')
    C('s3 = wave, s4 = role in the pair, s5 = 32 * pair (first block of the first page)')
    A('  v_lshrrev_b32 v1, 6, v0')
    A('  v_and_b32 v0, 63, v0')
    A('  v_readfirstlane_b32 s3, v1')
    A(f'  s_bfe_u32 {s(sRO)}, s2, 0x10002')
    A(f'  s_lshr_b32 {s(sPB)}, s2, 3')
    A(f'  s_lshl_b32 {s(sPB)}, {s(sPB)}, 2')
    A(f'  s_and_b32 {s(sT)}, s2, 3')
    A(f'  s_add_u32 {s(sPB)}, {s(sPB)}, {s(sT)}')
    A(f'  s_lshl_b32 {s(sPB)}, {s(sPB)}, 5')
    SRDS = ((SKS, PT + 6, 256 * 24576), (SKZ, PT + 8, 256 * 24576), (SVS, PT + 10, 256 * 8192), (SVZ, PT + 12, 256 * 8192),
            (SK, PT + 2, TOTAL), (SQ, PT, 256 * 1536), (SI, PT + 2, TOTAL), (SV, PT + 4, TOTAL), (SWS, sWS, WS_END))
    for srd, p, nb in SRDS:
        A(f'  s_mov_b32 {s(srd+2)}, {nb}')
        A(f'  s_mov_b32 {s(srd+3)}, 0x20000')
    def make_srds(lo, hi):
        for srd, p, nb in SRDS[lo:hi]:
            A(f'  s_mov_b32 {s(srd)}, {s(p)}')
            A(f'  s_and_b32 {s(srd+1)}, {s(p+1)}, 0xffff')
    A(f'  s_cmp_eq_u32 s3, {W}')
    A('  s_cbranch_scc1 L_helper')

    C('================= streaming waves')
    cls, a, g, n = T, T + 1, T + 2, T + 3
    A(f'  v_and_b32 {v(cls)}, 3, v0')
    A(f'  v_bfe_u32 {v(a)}, v0, 2, 2')
    A(f'  v_lshrrev_b32 {v(g)}, 4, v0')
    A(f'  v_and_b32 {v(n)}, 15, v0')
    def stream_consts(x, up, own, con, lanepart):
        A(f'  v_and_b32 {v(own)}, 2, {v(x)}')
        A(f'  v_lshlrev_b32 {v(up)}, 5, {v(own)}')
        A(f'  v_add_u32 {v(up)}, 129, {v(up)}')
        A(f'  v_and_b32 {v(X1)}, 1, {v(x)}')
        A(f'  v_lshl_add_u32 {v(own)}, {v(X1)}, 2, {v(own)}')
        A(f'  v_mul_u32_u24 {v(X1)}, {43 * 768}, {v(X1)}')
        A(f'  v_add_u32 {v(con)}, {v(lanepart)}, {v(X1)}')
        A(f'  v_subrev_u32 {v(con)}, {43 * 768}, {v(con)}')
    A(f'  v_lshlrev_b32 {v(X0)}, 4, {v(cls)}')
    A(f'  v_lshl_add_u32 {v(X0)}, {v(g)}, 6, {v(X0)}')
    A(f'  v_lshrrev_b32 {v(VKS0)}, 1, {v(X0)}')
    stream_consts(a, IUP, IOWN, ICON, X0)
    A(f'  v_mul_u32_u24 {v(X1)}, 384, {v(a)}')
    A(f'  v_add_u32 {v(VQ)}, {v(X1)}, {v(VKS0)}')
    A(f'  v_mov_b32 {v(VOOB)}, {OOB}')
    A(f'  s_mov_b32 {s(sDIV)}, 0xaaaaaaab')
    A(f'  s_mov_b32 {s(sSH)}, 0x492492')
    A(f'  s_movk_i32 {s(s768)}, 768')
    def slot(k): return RING + 4 * (k % R)
    def main_load(k, srd, so):
        ss, i = divmod(k % NST, 3)
        r, k0 = (0, 0) if ss == 0 else (1, 1) if ss <= 5 else (2, 6) if ss <= 9 else (3, 10)
        return f'  buffer_load_dwordx4 {v(slot(k),4)}, {v(VO+r)}, {s(srd,4)}, {s(so)} offen offset:{768*(ss-k0) + 256*i} nt'
    def kscale_loads():
        A(f'  s_mul_i32 {s(sSO)}, {s(sQ3)}, 1536')
        for i in range(3):
            A(f'  buffer_load_dwordx2 {v(KSR+2*i,2)}, {v(VKS)}, {s(SKS,4)}, {s(sSO)} offen offset:{128*i}')
            A(f'  buffer_load_dwordx2 {v(KZR+2*i,2)}, {v(VKS)}, {s(SKZ,4)}, {s(sSO)} offen offset:{128*i}')
    def vscale_loads():
        A(f'  s_lshl_b32 {s(sSO)}, {s(sQ3)}, 9')
        A(f'  v_lshl_add_u32 {v(VVS)}, {v(TU)}, 1, {v(ICV)}')
        A(f'  buffer_load_short_d16_hi {v(ZN)}, {v(VVS)}, {s(SVZ,4)}, {s(sSO)} offen')
        A(f'  buffer_load_short_d16_hi {v(SN)}, {v(VVS)}, {s(SVS,4)}, {s(sSO)} offen')
    def q_loads():
        A(f'  s_mul_i32 {s(sT)}, {s(sHN)}, 1536')
        for i in range(3): A(f'  buffer_load_dwordx2 {v(QN+2*i,2)}, {v(VQ)}, {s(SQ,4)}, {s(sT)} offen offset:{128*i}')
    def short_masks(own, m0, m10, low):
        A(f'  v_add_u32 {v(X0)}, {s(sC)}, {v(own)}')
        A(f'  v_lshrrev_b32 {v(X1)}, {v(X0)}, {s(sSH)}')
        A(f'  v_and_b32 {v(X1)}, 1, {v(X1)}')
        A(f'  v_cmp_eq_u32 {s(m10,2)}, 1, {v(X1)}')
        A(f'  s_and_b64 {s(m0,2)}, {s(m10,2)}, {s(low,2)}')
        A(f'  s_andn2_b64 {s(m10,2)}, {s(m10,2)}, {s(low,2)}')
    def map_unit(f, isv):
        if kord and not isv:
            A(f'  s_lshr_b32 {s(sT+1)}, {s(f)}, 4')
            A(f'  s_andn2_b32 {s(sT+1)}, {s(sT+1)}, 1')
            A(f'  s_lshr_b32 {s(sT+1)}, 0x12, {s(sT+1)}')
            A(f'  s_and_b32 {s(sT+1)}, {s(sT+1)}, 3')
        else:
            A(f'  s_lshr_b32 {s(sT+1)}, {s(f)}, 5')
        A(f'  s_lshr_b32 {s(sC)}, {s(sDEC)}, {s(sT+1)}')
        if isv:
            A(f'  s_bfe_u32 {s(sC)}, {s(sC)}, 0x10003')
            A(f'  s_and_b32 {s(sT)}, {s(f)}, 31')
        else:
            A(f'  s_andn2_b32 {s(sT)}, {s(f)}, 1')
            A(f'  s_or_b32 {s(sT)}, {s(sT)}, {s(sRO)}')
            A(f'  s_cmp_lt_u32 {s(f)}, {NWU}')
            A(f'  s_cselect_b32 {s(sT)}, {s(sT)}, {s(f)}')
            A(f'  s_cselect_b32 {s(sC)}, {s(f)}, {s(sC)}')
            A(f'  s_and_b32 {s(sC)}, {s(sC)}, 1')
            A(f'  s_and_b32 {s(sT)}, {s(sT)}, 31')
        A(f'  s_lshl_b32 {s(sT+1)}, {s(sT+1)}, 12')
        A(f'  s_add_u32 {s(sT)}, {s(sT)}, {s(sPB)}')
        A(f'  s_add_u32 {s(sT)}, {s(sT)}, {s(sT+1)}')
        A(f'  s_mul_hi_u32 {s(sQ3)}, {s(sT)}, {s(sDIV)}')
        A(f'  s_lshr_b32 {s(sQ3)}, {s(sQ3)}, 1')
        A(f'  s_mul_i32 {s(sT+1)}, {s(sQ3)}, 3')
        A(f'  s_sub_u32 {s(sT)}, {s(sT)}, {s(sT+1)}')
        A(f'  s_lshl3_add_u32 {s(sC)}, {s(sT)}, {s(sC)}')
        A(f'  s_mul_i32 {s(sNXT)}, {s(sQ3)}, 196608')
        A(f'  s_lshr_b32 {s(sHN)}, {s(sQ3)}, 4')
        A(f'  s_lshl_b32 {s(sT)}, {s(sC)}, 5')
        A(f'  v_add_u32 {v(TU)}, {s(sT)}, {v(DUP if isv else IUP)}')
        A(f'  v_mul_u32_u24 {v(TU)}, 21846, {v(TU)}')
        A(f'  v_lshrrev_b32 {v(TU)}, 16, {v(TU)}')
        short_masks(DOWN if isv else IOWN, sM0, sM10, sLOW + 2 * isv)
        if not isv:
            A(f'  v_mul_u32_u24 {v(X0)}, 43, {v(X0)}')
            A(f'  v_lshrrev_b32 {v(X0)}, 8, {v(X0)}')
            A(f'  v_mul_u32_u24 {v(X0)}, 384, {v(X0)}')
            A(f'  v_add_u32 {v(VKS)}, {v(X0)}, {v(VKS0)}')
    def offsets(con):
        A(f'  v_mad_u32_u24 {v(VO)}, {v(TU)}, {s(s768)}, {v(con)}')
        A(f'  v_add_u32 {v(VO+1)}, 768, {v(VO)}')
        A(f'  v_add_u32 {v(VO+2)}, {6 * 768}, {v(VO)}')
        A(f'  v_add_u32 {v(VO+3)}, {10 * 768}, {v(VO)}')
        A(f'  v_cndmask_b32 {v(VO)}, {v(VO)}, {v(VOOB)}, {s(sM0,2)}')
        A(f'  v_cndmask_b32 {v(VO+3)}, {v(VO+3)}, {v(VOOB)}, {s(sM10,2)}')
    def stamp():
        if tl:
            A(f'  s_memrealtime {s(sT,2)}')
            A('  s_waitcnt lgkmcnt(0)')
            A(f'  s_min_u32 m0, {s(sTL)}, 63')
            A(f'  v_writelane_b32 {v(TL)}, {s(sT)}, m0')
            A(f'  s_add_u32 {s(sTL)}, {s(sTL)}, 1')
    def reset_state():
        for k in range(12): A(f'  v_mov_b32 {v(ACC+k)}, 0')
        A(f'  v_mov_b32 {v(M)}, 0xff800000')
        A(f'  v_mov_b32 {v(NB)}, 0x7f800000')
        A(f'  v_mov_b32 {v(LS)}, 0')
    A(f'  s_mov_b32 {s(sF)}, s3')
    A(f'  s_mov_b32 {s(sGATE)}, {NWU}')
    A(f'  s_mov_b32 {s(sDEC)}, 0')
    C('one bulk pass pulls the scale/zero arrays into the memory-side cache (1/512 per wave); later reads of them stay off DRAM')
    A(f'  v_lshlrev_b32 {v(ZC)}, 4, v0')
    sPK, sPV = sQC, sHC
    A(f'  s_lshl1_add_u32 {s(sT)}, s2, s3')
    A(f'  s_mul_i32 {s(sPV)}, {s(sT)}, {8192 // W}')
    A(f'  s_mul_i32 {s(sPK)}, {s(sT)}, {24576 // W}')
    line = lambda srd, so, k: f'  buffer_load_dwordx4 {v(ACC,4)}, {v(ZC)}, {s(srd,4)}, {s(so)} offen offset:{(k % 4) * 1024}'
    pfl = []
    for k in range(24 // W):
        if k % 4 == 0 and k: pfl.append(f'  s_add_u32 {s(sPK)}, {s(sPK)}, 4096')
        pfl += [line(SKS, sPK, k), line(SKZ, sPK, k)]
        if k < 8 // W: pfl += [line(SVS, sPV, k), line(SVZ, sPV, k)]
    nissued = [0]
    def issue_pf(cnt):
        while pfl and cnt > 0:
            x = pfl.pop(0)
            if 'buffer_load' in x:
                if nissued[0] >= pfw: A(f'  s_waitcnt vmcnt({pfw - 1})')
                nissued[0] += 1; cnt -= 1
            A(x)
    A('  s_waitcnt lgkmcnt(0)')
    make_srds(0, 4)
    issue_pf(8)
    make_srds(4, 9)
    A(f'  s_mov_b64 {s(sOUT,2)}, {s(PT+14,2)}')
    A(f'  s_mov_b32 {s(sLOW)}, 0x0f0f0f0f')
    A(f'  s_mov_b32 {s(sLOW+1)}, 0x0f0f0f0f')
    A(f'  s_mov_b32 {s(sLOW+2)}, 0xffff')
    A(f'  s_mov_b32 {s(sLOW+3)}, 0xffff')
    map_unit(sF, 0)
    offsets(ICON)
    A(f'  s_mov_b32 {s(sCUR)}, {s(sNXT)}')
    q_loads()
    A(main_load(0, SK, sCUR))
    issue_pf(pfw - nissued[0])
    A('  s_barrier')
    A('  s_mov_b64 vcc, 0')
    A(f'  v_lshlrev_b32 {v(X0)}, 4, {v(n)}')
    stream_consts(g, DUP, DOWN, DCON, X0)
    A(f'  v_and_b32 {v(X1)}, 1, {v(g)}')
    A(f'  v_mul_u32_u24 {v(X1)}, 86, {v(X1)}')
    A(f'  v_lshl_add_u32 {v(ICV)}, {v(n)}, 1, {v(X1)}')
    A(f'  v_subrev_u32 {v(ICV)}, 86, {v(ICV)}')
    A(f'  v_lshlrev_b32 {v(VBP)}, 4, {v(g)}')
    A(f'  v_lshrrev_b32 {v(X0)}, 2, v0')
    A(f'  s_mul_i32 {s(sT)}, s3, 384')
    A(f'  v_lshl_add_u32 {v(VL1)}, {v(X0)}, 4, {s(sT)}')
    A(f'  v_lshl_add_u32 {v(VL2)}, {v(X0)}, 3, {s(sT)}')
    A(f'  s_mul_i32 {s(sT)}, s3, 3072')
    A(f'  s_add_u32 {s(sT)}, {s(sT)}, {LDS_ACC}')
    A(f'  v_lshl_add_u32 {v(VFL)}, v0, 4, {s(sT)}')
    A(f'  s_lshl_b32 {s(sT)}, s3, 5')
    A(f'  s_add_u32 {s(sT)}, {s(sT)}, {LDS_ACC + W * 3072}')
    A(f'  v_lshl_add_u32 {v(VST)}, {v(a)}, 3, {s(sT)}')
    A(f'  s_lshl2_add_u32 {s(sT)}, s3, {F_PRG}')
    A(f'  v_mov_b32 {v(VPR)}, {s(sT)}')
    A(f'  v_mov_b32 {v(ZN)}, 0')
    A(f'  v_mov_b32 {v(SN)}, 0')
    A(f'  v_mov_b32 {v(VNI)}, 0xff800000')
    A(f'  v_mov_b32 {v(AL)}, 1')
    A(f'  s_mov_b32 {s(sMSK)}, 0xffff0000')
    A(f'  s_mov_b32 {s(sL2E)}, 0x3fb8aa3b')
    for h in range(2):
        A(f'  s_mov_b32 {s(sSCL+h)}, 0x3d93cd3a')
    for j in range(4):
        A(f'  s_mov_b32 {s(sMJ+2*j)}, {hex(0x11111111 << j)}')
        A(f'  s_mov_b32 {s(sMJ+2*j+1)}, {hex(0x11111111 << j)}')
    if tl:
        A(f'  s_mov_b32 {s(sTL)}, 0')
        A(f'  v_mov_b32 {v(TL)}, 0')
    issue_pf(99)
    A(f'  s_mov_b32 {s(sHC)}, {s(sHN)}')
    kscale_loads()
    for k in range(1, D):
        A(f'  s_waitcnt vmcnt({max(DN, k) - 1 + 6})')
        A(main_load(k, SK, sCUR))
    A(f'  s_waitcnt vmcnt({D - 1})')
    A(f'  ds_write_b32 {v(VPR)}, {v(AL)}')

    def wait_step(k, nsmall, tag, ps):
        cnt = lambda d: d - 1 + (nsmall if k - d <= ps < k else 0)
        A(f'  s_waitcnt vmcnt({cnt(D)})')
        if k % bev == 0:
            A(f'  s_cbranch_vccnz L_{tag}')
            A(f'  s_waitcnt vmcnt({cnt(DN)})')
            A(f'L_{tag}:')
    def mode(k):
        if k == 0: A(f'  ds_read_b32 {v(VBS)}, {v(VPR)} offset:{F_BST - F_PRG}')
        if k == 1:
            A('  s_waitcnt lgkmcnt(0)')
            A(f'  v_cmp_lt_u32 vcc, {s(sG)}, {v(VBS)}')
    def dequant(X, src, z, sc, zmod, smod):
        r = [f'  v_cvt_f32_i32 {v(X+j)}, {v(src+j)}' for j in range(4)]
        r += [f'  v_pk_add_f32 {v(X+2*h,2)}, {v(X+2*h,2)}, {z[h]} {zmod}neg_lo:[0,1] neg_hi:[0,1]' for h in range(2)]
        r2 = [f'  v_cvt_pk_bf16_f32 {v(X+j)}, 0, {v(X+j)}' for j in range(4)]
        r2 += [f'  v_pk_mul_f32 {v(X+2*h,2)}, {v(X+2*h,2)}, {sc[h]} {smod}'.rstrip() for h in range(2)]
        return r, r2
    def kreduce(ss):
        d = S + (ss & 1)
        q = lambda j: f'quad_perm:[{j},{j},{j},{j}] row_mask:0xf bank_mask:0xf'
        r = [f'  v_mov_b32_dpp {v(X0)}, {v(SD)} {q(0)}',
             f'  v_mov_b32_dpp {v(X1)}, {v(SD+2)} {q(2)}',
             f'  v_add_f32_dpp {v(X0)}, {v(SD+1)}, {v(X0)} {q(1)}',
             f'  v_add_f32_dpp {v(X1)}, {v(SD+3)}, {v(X1)} {q(3)}',
             f'  v_add_f32 {v(d)}, {v(X0)}, {v(X1)}']
        if ss == 0: r.append(f'  v_cndmask_b32 {v(d)}, {v(d)}, {v(VNI)}, {s(sL0,2)}')
        if ss == 10: r.append(f'  v_cndmask_b32 {v(d)}, {v(d)}, {v(VNI)}, {s(sL10,2)}')
        if ss & 1 or ss == 10:
            r += [f'  v_cvt_pk_bf16_f32 {v(S)}, 0, {v(S)}',
                  f'  v_cvt_pk_bf16_f32 {v(S+1)}, 0, {v(S+1)}',
                  f'  v_pk_mul_f32 {v(S,2)}, {v(S,2)}, {s(sSCL,2)}',
                  f'  v_cvt_pk_bf16_f32 {v(LG+(ss>>1))}, {v(S)}, {v(S+1)}']
        return r
    def lds_word(dst, addr):
        A(f'  v_mov_b32 {v(X0)}, {addr}')
        A(f'  ds_read_b32 {v(X0)}, {v(X0)}')
        A('  s_waitcnt lgkmcnt(0)')
        A(f'  v_readfirstlane_b32 {s(dst)}, {v(X0)}')

    mf32 = f'  v_mfma_f32_16x16x32_bf16 {v(SD,4)}, {v(KA,4)}, {v(QB,4)}, 0'
    mf16 = f'  v_mfma_f32_16x16x16_bf16 {v(SD,4)}, {v(KA+4,2)}, {v(QB+4,2)}, {v(SD,4)}'
    def diag_mark(tag, base_):
        if diagat < 0: return
        A(f'  s_and_b32 {s(sT)}, {s(sF)}, -4')
        A(f'  s_cmp_lg_u32 {s(sT)}, {diagat - base_}')
        A(f'  s_cbranch_scc1 L_dm{tag}')
        A('  s_memrealtime s[6:7]')
        A('  s_waitcnt lgkmcnt(0)')
        A(f'L_dm{tag}:')
    def k_unit(u):
        o = NST * u
        if u == 0: diag_mark('k', 0)
        if u == 0: stamp()
        short_masks(DOWN, sL0, sL10, sLOW + 2)
        A(f'  s_mov_b32 {s(sG)}, {s(sF)}')
        A(f'  s_add_u32 {s(sF)}, {s(sF)}, {W}')
        for k in range(NST):
            ss, i = divmod(k, 3)
            mode(k)
            if k == SW:
                if u == U - 1:
                    C('the last K unit prefetches the first V unit')
                    A(f'  s_cmp_lt_u32 {s(sF)}, {NF}')
                    A('  s_cbranch_scc1 L_k_keep')
                    map_unit(3, 1)
                    A(f'  s_mov_b32 {s(SI)}, {s(SV)}')
                    A(f'  s_mov_b32 {s(SI+1)}, {s(SV+1)}')
                    vscale_loads()
                    A(f'  v_mov_b32 {v(ICON)}, {v(DCON)}')
                    A('L_k_keep:')
                offsets(ICON)
            wait_step(k, 6, f'kw{u}_{k}', PSK)
            A(main_load(o + k + D, SK, sCUR) if k < SW else main_load(o + k + D, SI, sNXT))
            if i == 2: A(mf32)
            if i == 0 and ss > 0: A(mf16)
            if ss == 0:
                for raw, dst in ((KZR, KZ), (KSR, KS)):
                    for h in range(2):
                        A(f'  v_lshlrev_b32 {v(dst+4*i+2*h)}, 16, {v(raw+2*i+h)}')
                        A(f'  v_and_b32 {v(dst+4*i+2*h+1)}, {s(sMSK)}, {v(raw+2*i+h)}')
                for h in range(2):
                    A(f'  v_mov_b32 {v(QB+2*i+h)}, {v(QN+2*i+h)}')
            c, rest = dequant(T, slot(o + k), (v(KZ+4*i,2), v(KZ+4*i+2,2)), (v(KS+4*i,2), v(KS+4*i+2,2)), '', '')
            for x in c: A(x)
            if k == PSK:
                C('next unit: class (needs the vote once), scales, q on a head change')
                A(f'  s_cmp_lt_u32 {s(sF)}, {s(sGATE)}')
                A(f'  s_cbranch_scc1 L_k_known{u}')
                A(f'L_k_spin{u}:')
                lds_word(sDEC, F_DEC)
                A(f'  s_cmp_eq_u32 {s(sDEC)}, 0')
                A(f'  s_cbranch_scc1 L_k_spin{u}')
                A(f'  s_mov_b32 {s(sGATE)}, -1')
                A(f'L_k_known{u}:')
                map_unit(sF, 0)
                A(f'  s_cmp_eq_u32 {s(sHN)}, {s(sHC)}')
                A(f'  s_cbranch_scc1 L_k_sameq{u}')
                q_loads()
                A(f'  s_mov_b32 {s(sHC)}, {s(sHN)}')
                A(f'L_k_sameq{u}:')
                kscale_loads()
            rest += [f'  v_cvt_pk_bf16_f32 {v(KA+2*i)}, {v(T)}, {v(T+1)}',
                     f'  v_cvt_pk_bf16_f32 {v(KA+2*i+1)}, {v(T+2)}, {v(T+3)}']
            if i == 1 and ss > 0:
                r = kreduce(ss - 1)
                rest = r[:2] + rest[:2] + r[2:4] + rest[2:4] + r[4:5] + rest[4:]
                pend = r[5:]
            elif i == 2 and ss > 0:
                rest = merge(rest, pend)
            for x in rest: A(x)
        A(f'  s_mov_b32 {s(sCUR)}, {s(sNXT)}')
        A(f'  v_mov_b32 {v(AL)}, {s(sF)}')
        A(mf16)
        A(f'  ds_write_b128 {v(VL1)}, {v(LG,4)}')
        A(f'  v_add_u32 {v(VL1)}, {384 * W}, {v(VL1)}')
        for x in kreduce(10): A(x)
        A(f'  ds_write_b64 {v(VL2)}, {v(LG+4,2)} offset:256')
        A(f'  ds_write_b32 {v(VPR)}, {v(AL)}')
        A(f'  v_add_u32 {v(VL2)}, {384 * W}, {v(VL2)}')
    C('---------------- K loop: two units per trip')
    A('L_k:')
    for u in range(U): k_unit(u)
    A(f'  s_cmp_lt_u32 {s(sF)}, {NF}')
    A('  s_cbranch_scc1 L_k')

    def flush():
        C('park the partial result of the finished head segment in slot 2*(head&1) + (segment ends the head)')
        A(f'  s_and_b32 {s(sT)}, {s(sQC)}, 15')
        A(f'  s_cmp_ge_u32 {s(sT)}, 12')
        A(f'  s_cselect_b32 {s(sT)}, {SEG}, 0')
        A(f'  s_bitcmp1_b32 {s(sQC)}, 4')
        A(f'  s_cselect_b32 {s(sT+1)}, {2 * SEG}, 0')
        A(f'  s_add_u32 {s(sT)}, {s(sT)}, {s(sT+1)}')
        A(f'  v_mov_b32 {v(X1)}, {v(LS)}')
        A(f'  v_add_u32 {v(X0)}, {s(sT)}, {v(VFL)}')
        A(f'  v_add_u32 {v(ALQ)}, {s(sT)}, {v(VST)}')
        A(f'  v_permlane32_swap_b32 {v(LS)}, {v(X1)}')
        A(f'  v_add_f32 {v(LS)}, {v(LS)}, {v(X1)}')
        A(f'  v_mov_b32 {v(X1)}, {v(LS)}')
        for i in range(3):
            A(f'  ds_write_b128 {v(X0)}, {v(ACC+4*i,4)} offset:{1024*i}')
        A(f'  v_permlane16_swap_b32 {v(LS)}, {v(X1)}')
        A(f'  v_add_f32 {v(LS)}, {v(LS)}, {v(X1)}')
        A(f'  ds_write_b64 {v(ALQ)}, {v(NB,2)}')
    def import_gate(tag):
        A(f'  s_cmp_lt_u32 {s(sF)}, {s(sGATE)}')
        A(f'  s_cbranch_scc1 L_{tag}_ok')
        A(f'L_{tag}_spin:')
        lds_word(sGATE, F_IMP)
        A(f'  s_cmp_lt_u32 {s(sF)}, {s(sGATE)}')
        A(f'  s_cbranch_scc0 L_{tag}_spin')
        A(f'L_{tag}_ok:')

    C('---------------- V loop: two units per trip')
    A(f'  v_subrev_u32 {v(VL1)}, {IMG - 32 * 384 * kord}, {v(VL1)}')
    A(f'  v_subrev_u32 {v(VL2)}, {IMG - 32 * 384 * kord}, {v(VL2)}')
    A(f'  s_mov_b32 {s(sF)}, s3')
    A(f'  s_mov_b32 {s(sHC)}, {s(sHN)}')
    A(f'  s_mov_b32 {s(sGATE)}, 0')
    A(f'  s_mov_b32 {s(SQ)}, {s(sOUT)}')
    A(f'  s_and_b32 {s(SQ+1)}, {s(sOUT+1)}, 0xffff')
    import_gate('v0')
    A(f'  ds_read_b128 {v(LG,4)}, {v(VL1)}')
    A(f'  ds_read_b64 {v(LG+4,2)}, {v(VL2)} offset:256')
    reset_state()
    def v_unit(u):
        o = NST * u
        A(f'L_v{u}:')
        if u == 0: diag_mark('v', NF)
        if u == 0: stamp()
        A(f'  s_add_u32 {s(sG)}, {s(sF)}, {NF}')
        A(f'  v_mov_b32 {v(AL)}, {s(sG)}')
        A(f'  s_mov_b32 {s(sQC)}, {s(sQ3)}')
        A(f'  ds_write_b32 {v(VPR)}, {v(AL)}')
        A(f'  s_add_u32 {s(sF)}, {s(sF)}, {W}')
        import_gate(f'v1{u}')
        map_unit(sF, 1)
        A(f'  s_cmp_lt_u32 {s(sF)}, {NF}')
        A(f'  s_cselect_b32 {s(sNXT)}, {s(sNXT)}, {TOTAL}')
        stp = 384 * W
        if kord and u == U - 1:
            stp = s(sL0)
            A(f'  s_lshr_b32 {s(sT)}, {s(sF)}, 1')
            A(f'  s_cmp_eq_u32 {s(sT)}, 32')
            A(f'  s_cselect_b32 {stp}, {384 * W - IMG}, {s(s768)}')
        prep = []
        for k in range(11):
            prep.append(f'  v_lshlrev_b32 {v(E+k)}, 16, {v(LG+k//2)}' if k % 2 == 0 else f'  v_and_b32 {v(E+k)}, {s(sMSK)}, {v(LG+k//2)}')
        prep += [f'  v_add_u32 {v(VL1)}, {stp}, {v(VL1)}',
                 f'  v_add_u32 {v(VL2)}, {stp}, {v(VL2)}',
                 f'  v_max3_f32 {v(X0)}, {v(E)}, {v(E+1)}, {v(E+2)}',
                 f'  ds_read_b128 {v(LG,4)}, {v(VL1)}',
                 f'  ds_read_b64 {v(LG+4,2)}, {v(VL2)} offset:256',
                 f'  v_max3_f32 {v(X1)}, {v(E+3)}, {v(E+4)}, {v(E+5)}',
                 f'  v_max3_f32 {v(X0)}, {v(X0)}, {v(E+6)}, {v(E+7)}',
                 f'  v_max3_f32 {v(X1)}, {v(X1)}, {v(E+8)}, {v(E+9)}',
                 f'  v_max3_f32 {v(X0)}, {v(X0)}, {v(E+10)}, {v(M)}',
                 f'  v_max_f32 {v(X0)}, {v(X0)}, {v(X1)}',
                 f'  v_mov_b32 {v(X1)}, {v(X0)}',
                 f'  v_permlane32_swap_b32 {v(X0)}, {v(X1)}',
                 f'  v_max_f32 {v(X0)}, {v(X0)}, {v(X1)}',
                 f'  v_mov_b32 {v(X1)}, {v(X0)}',
                 f'  v_permlane16_swap_b32 {v(X0)}, {v(X1)}',
                 f'  v_max_f32 {v(M)}, {v(X0)}, {v(X1)}',
                 f'  v_mul_f32 {v(X0)}, {s(sL2E)}, {v(M)}',
                 f'  v_add_f32 {v(AL)}, {v(X0)}, {v(NB)}',
                 f'  v_sub_f32 {v(NB)}, 0, {v(X0)}',
                 f'  v_exp_f32 {v(AL)}, -{v(AL)}',
                 f'  ds_bpermute_b32 {v(ALQ)}, {v(VBP)}, {v(AL)}']
        for k in range(11):
            prep += [f'  v_fma_f32 {v(E+k)}, {v(E+k)}, {s(sL2E)}, {v(NB)}', f'  v_exp_f32 {v(E+k)}, {v(E+k)}']
        prep += [f'  v_add_f32 {v(X0)}, {v(E)}, {v(E+1)}', f'  v_add_f32 {v(X1)}, {v(E+2)}, {v(E+3)}']
        for k in range(4, 11):
            x = X0 if k % 2 == 0 else X1
            prep.append(f'  v_add_f32 {v(x)}, {v(x)}, {v(E+k)}')
        prep += [f'  v_add_f32 {v(X0)}, {v(X0)}, {v(X1)}',
                 f'  v_fma_f32 {v(LS)}, {v(LS)}, {v(AL)}, {v(X0)}']
        for k in range(6):
            prep.append(f'  v_cvt_pk_bf16_f32 {v(PP+k)}, {v(E+2*k)}, {v(E+2*k+1) if k < 5 else 0}')
        for j in range(4):
            for k in range(4):
                prep.append(f'  v_cndmask_b32 {v(AJ+4*j+k)}, 0, {v(PP+k)}, {s(sMJ+2*j,2)}')
        prep.append('  s_waitcnt lgkmcnt(0)')
        for k in range(12):
            prep.append(f'  v_mul_f32 {v(ACC+k)}, {v(ALQ)}, {v(ACC+k)}')
        prep2 = [f'  v_cndmask_b32 {v(AK+2*j+k)}, 0, {v(PP+4+k)}, {s(sMJ+2*j,2)}' for j in range(4) for k in range(2)]
        for k in range(NST):
            ss, i = divmod(k, 3)
            mode(k)
            if k == SW: offsets(DCON)
            wait_step(k, 2, f'vw{u}_{k}', PSV)
            A(main_load(o + k + D, SV, sCUR if k < SW else sNXT))
            if k == 0:
                A(f'  v_mov_b32 {v(ZC)}, {v(ZN)}')
                A(f'  v_mov_b32 {v(SC)}, {v(SN)}')
            X = TV + 4 * i if ss % 2 == 0 else T
            c, rest = dequant(X, slot(o + k), (v(ZS,2), v(ZS,2)), (v(ZS,2), v(ZS,2)), 'op_sel_hi:[1,0] ', 'op_sel:[0,1]')
            if i == 0:
                c[2:2] = [f'  v_mov_b32_dpp {v(ZS)}, {v(ZC)} row_newbcast:{ss} row_mask:0xf bank_mask:0xf',
                          f'  v_mov_b32_dpp {v(ZS+1)}, {v(SC)} row_newbcast:{ss} row_mask:0xf bank_mask:0xf']
            for x in c: A(x)
            if k == PSV: vscale_loads()
            if ss % 2 == 1:
                rest += [f'  v_cvt_pk_bf16_f32 {v(BV+16*i+4*j+((ss>>1)&3))}, {v(TV+4*i+j)}, {v(T+j)}' for j in range(4)]
            if ss == 10:
                rest += [f'  v_cvt_pk_bf16_f32 {v(BV+16*i+4*j+1)}, {v(TV+4*i+j)}, 0' for j in range(4)]
            side = []
            if k >= 1: side, prep = prep[:5], prep[5:]
            if k == 20: assert not prep
            if k == 23: prep = prep2
            for x in merge(rest, side): A(x)
            if ss == 7:
                for j in range(4):
                    A(f'  v_mfma_f32_16x16x32_bf16 {v(ACC+4*i,4)}, {v(AJ+4*j,4)}, {v(BV+16*i+4*j,4)}, {v(ACC+4*i,4)}')
            if ss == 10:
                assert not prep
                for j in range(4):
                    A(f'  v_mfma_f32_16x16x16_bf16 {v(ACC+4*i,4)}, {v(AK+2*j,2)}, {v(BV+16*i+4*j,2)}, {v(ACC+4*i,4)}')
        A(f'  s_mov_b32 {s(sCUR)}, {s(sNXT)}')
        if u == U - 1:
            A(f'  s_cmp_ge_u32 {s(sF)}, {NF}')
            A('  s_cbranch_scc1 L_v_done')
            A(f'  s_cmp_eq_u32 {s(sHN)}, {s(sHC)}')
            A('  s_cbranch_scc1 L_v0')
            A(f'  s_mov_b32 {s(sHC)}, {s(sHN)}')
            flush()
            A('  s_waitcnt lgkmcnt(0)')
            reset_state()
            A('  s_branch L_v0')
    assert 16 % (W * U) == 0
    for u in range(U): v_unit(u)
    A('L_v_done:')
    stamp()
    flush()
    C('---------------- all three waves: wave i finishes dims 64i..64i+63 of the four segments')
    A('L_finish:')
    AC = (base + 3) // 4 * 4
    OF = AC; ST = AC + 8; PA = ST + 16; FR = PA + 32
    nv = max(nv, FR + 24)
    TB, VA, VS_, VG, VH = E, E + 4, E + 6, E + 8, E + 9
    TAG = OF + 7
    A(f'  v_mov_b32 {v(X0)}, {F_END}')
    A(f'  ds_read_b128 {v(OF,4)}, {v(X0)}')
    A(f'  ds_read_b128 {v(OF+4,4)}, {v(X0)} offset:16')
    A(f'  s_mul_i32 {s(sT)}, {s(sRO)}, {SEG}')
    A(f'  s_lshl_b32 {s(sT+1)}, s3, 10')
    A(f'  v_lshl_add_u32 {v(VA)}, v0, 4, {s(sT+1)}')
    A(f'  v_lshrrev_b32 {v(X1)}, 4, v0')
    A(f'  v_lshlrev_b32 {v(VS_)}, 3, {v(X1)}')
    A(f'  v_add_u32 {v(VS_)}, {LDS_ACC + W * 3072}, {v(VS_)}')
    A(f'  s_sub_u32 {s(sG)}, {SEG}, {s(sT)}')
    A(f'  v_add_u32 {v(VA+1)}, {s(sG)}, {v(VA)}')
    A(f'  v_add_u32 {v(M)}, {s(sT)}, {v(VA)}')
    A(f'  s_sub_u32 {s(sG)}, {2 * SEG}, {s(sT)}')
    A(f'  v_add_u32 {v(ZN)}, {s(sG)}, {v(VS_)}')
    A(f'  s_add_u32 {s(sG)}, {s(sT)}, {SEG}')
    A(f'  v_add_u32 {v(SN)}, {s(sG)}, {v(VS_)}')
    A(f'  v_add_u32 {v(VS_+1)}, {3 * SEG}, {v(VS_)}')
    A(f'  s_mul_i32 {s(sT)}, s3, {PIECE}')
    A(f'  v_lshl_add_u32 {v(VG)}, v0, 4, {s(sT)}')
    A(f'  v_lshl_add_u32 {v(VH)}, {v(X1)}, 4, {s(sT)}')
    A(f'  v_mul_u32_u24 {v(AL)}, 384, {v(X1)}')
    A(f'  v_and_b32 {v(X1)}, 15, v0')
    A(f'  v_lshl_add_u32 {v(AL)}, {v(X1)}, 3, {v(AL)}')
    A(f'  s_movk_i32 {s(sMSK)}, 0xff00')
    A(f'  s_mov_b32 {s(sL0)}, 0x10001')
    A(f'  s_mov_b32 {s(sL0+1)}, 0x10001')
    A(f'  s_mov_b32 {s(sL10)}, 0x0c0c0400')
    A(f'  s_mov_b32 {s(sL10+1)}, 0x05040100')
    A(f'  s_mov_b32 {s(sF)}, 0')
    A('  s_waitcnt vmcnt(0) lgkmcnt(0)')
    sO = 72
    def fetch(r):
        A(f'  buffer_load_dwordx4 {v(FR+8*r,4)}, {v(VG)}, {s(SWS,4)}, {s(sO+3+r)} offen sc1')
        A(f'  buffer_load_dwordx4 {v(FR+8*r+4,4)}, {v(VH)}, {s(SWS,4)}, {s(sO+3+r)} offen offset:1024 sc1')
    A('  s_barrier')
    slots = ((VA, 0, VS_), (VA, 3, VS_ + 1), (VA + 1, 1, ZN), (M, 1, SN))
    for j, (va_, sl, vs_) in enumerate(slots):
        A(f'  ds_read2_b64 {v(ST+4*j,4)}, {v(vs_)} offset1:4')
        for w in range(W):
            A(f'  ds_read_b128 {v(PA+8*j+4*w,4)}, {v(va_)} offset:{LDS_ACC + sl * SEG + 3072*w}')
    for k in range(7): A(f'  v_readfirstlane_b32 {s(sO+k)}, {v(OF+k)}')
    for k in range(4): A(f'  v_bfe_u32 {v(TB+k)}, {v(TAG)}, {8 * k}, 8')
    C('three segments are published, the fourth belongs to the head this workgroup owns')
    for j in range(4):
        st = ST + 4 * j; pa = PA + 8 * j
        A(f'  s_waitcnt lgkmcnt({3 * (3 - j)})')
        A(f'  v_min_f32 {v(X0)}, {v(st)}, {v(st+2)}')
        for w in range(2): A(f'  v_sub_f32 {v(st+2*w)}, {v(X0)}, {v(st+2*w)}')
        for w in range(2): A(f'  v_exp_f32 {v(st+2*w)}, {v(st+2*w)}')
        A(f'  v_mul_f32 {v(X1)}, {v(st)}, {v(st+1)}')
        for h in range(2): A(f'  v_pk_mul_f32 {v(pa+2*h,2)}, {v(pa+2*h,2)}, {v(st,2)} op_sel_hi:[1,0]')
        for h in range(2): A(f'  v_pk_fma_f32 {v(pa+2*h,2)}, {v(pa+4+2*h,2)}, {v(st+2,2)}, {v(pa+2*h,2)} op_sel_hi:[1,0,1]')
        A(f'  v_fma_f32 {v(pa+5)}, {v(st+2)}, {v(st+3)}, {v(X1)}')
        A(f'  v_mov_b32 {v(pa+4)}, {v(X0)}')
        if j < 3:
            for x in range(4): A(f'  v_and_or_b32 {v(pa+x)}, {v(pa+x)}, {s(sMSK)}, {v(TB+x)}')
            A(f'  v_mov_b32 {v(pa+7)}, {v(TAG)}')
            A(f'  buffer_store_dwordx4 {v(pa,4)}, {v(VG)}, {s(SWS,4)}, {s(sO+j)} offen sc1')
            A(f'  s_mov_b64 exec, {s(sL0,2)}')
            A(f'  buffer_store_dwordx4 {v(pa+4,4)}, {v(VH)}, {s(SWS,4)}, {s(sO+j)} offen offset:1024 sc1')
            A('  s_mov_b64 exec, -1')
        if j == 2:
            stamp()
            for r in range(3): fetch(r)
    A('  s_branch L_check')
    C('gather the three foreign records of the owned head; a granule counts once it carries this launch\'s tag')
    A('L_gather:')
    A(f'  s_add_u32 {s(sF)}, {s(sF)}, 1')
    A(f'  s_cmp_gt_u32 {s(sF)}, 200000')
    A('  s_cbranch_scc1 L_end')
    for r in range(3):
        A(f'  s_bitcmp0_b32 {s(sMISS)}, {r}')
        A(f'  s_cbranch_scc1 L_have{r}')
        fetch(r)
        A(f'L_have{r}:')
    A('L_check:')
    A(f'  s_mov_b32 {s(sMISS)}, 0')
    A('  s_waitcnt vmcnt(0)')
    for r in range(3):
        b = FR + 8 * r
        A(f'  v_perm_b32 {v(X0)}, {v(b+1)}, {v(b)}, {s(sL10)}')
        A(f'  v_perm_b32 {v(X1)}, {v(b+3)}, {v(b+2)}, {s(sL10)}')
        A(f'  v_cmp_ne_u32 vcc, {v(TAG)}, {v(b+7)}')
        A(f'  v_perm_b32 {v(X0)}, {v(X1)}, {v(X0)}, {s(sL10+1)}')
        A(f'  v_cmp_ne_u32 {s(sT,2)}, {v(TAG)}, {v(X0)}')
        A(f'  s_or_b64 {s(sT,2)}, {s(sT,2)}, vcc')
        A(f'  s_cselect_b32 {s(sT)}, {1 << r}, 0')
        A(f'  s_or_b32 {s(sMISS)}, {s(sMISS)}, {s(sT)}')
    A('  s_cbranch_scc1 L_gather')
    stamp()
    C('(own + partner) + (neighbour pair): products are rounded separately, so the sum does not depend on who had which class')
    B4 = [PA + 24, FR, FR + 8, FR + 16]
    A(f'  v_min_f32 {v(X0)}, {v(B4[0]+4)}, {v(B4[1]+4)}')
    A(f'  v_min3_f32 {v(X0)}, {v(X0)}, {v(B4[2]+4)}, {v(B4[3]+4)}')
    for b in B4: A(f'  v_sub_f32 {v(b+4)}, {v(X0)}, {v(b+4)}')
    for b in B4: A(f'  v_exp_f32 {v(b+4)}, {v(b+4)}')
    for b in B4:
        for x in range(4): A(f'  v_and_b32 {v(b+x)}, {s(sMSK)}, {v(b+x)}')
    for b in B4: A(f'  v_mul_f32 {v(b+5)}, {v(b+4)}, {v(b+5)}')
    A(f'  v_add_f32 {v(B4[0]+5)}, {v(B4[0]+5)}, {v(B4[1]+5)}')
    A(f'  v_add_f32 {v(B4[2]+5)}, {v(B4[2]+5)}, {v(B4[3]+5)}')
    A(f'  v_add_f32 {v(X0)}, {v(B4[0]+5)}, {v(B4[2]+5)}')
    A(f'  v_rcp_f32 {v(X0)}, {v(X0)}')
    A(f'  s_lshl_b32 {s(sT)}, s3, 7')
    A(f'  s_add_u32 {s(sT)}, {s(sT)}, {s(sO+6)}')
    for x in (0, 2):
        for b in B4: A(f'  v_pk_mul_f32 {v(b+x,2)}, {v(b+x,2)}, {v(b+4,2)} op_sel_hi:[1,0]')
        A(f'  v_pk_add_f32 {v(B4[0]+x,2)}, {v(B4[0]+x,2)}, {v(B4[1]+x,2)}')
        A(f'  v_pk_add_f32 {v(B4[2]+x,2)}, {v(B4[2]+x,2)}, {v(B4[3]+x,2)}')
        A(f'  v_pk_add_f32 {v(B4[0]+x,2)}, {v(B4[0]+x,2)}, {v(B4[2]+x,2)}')
        A(f'  v_pk_mul_f32 {v(B4[0]+x,2)}, {v(B4[0]+x,2)}, {v(X0,2)} op_sel_hi:[1,0]')
        A(f'  v_cvt_pk_bf16_f32 {v(ACC+x//2)}, {v(B4[0]+x)}, {v(B4[0]+x+1)}')
    A(f'  buffer_store_dwordx2 {v(ACC,2)}, {v(AL)}, {s(SQ,4)}, {s(sT)} offen')
    A('L_fin:')
    if diagpad:
        A('L_diag:')
        A(f'  s_memrealtime {s(sBIG,2)}')
        A('  s_waitcnt lgkmcnt(0)')
        A(f'  s_sub_u32 {s(sBIG)}, {s(sBIG)}, s6')
        A(f'  s_cmp_lt_u32 {s(sBIG)}, {diagpad * 100}')
        A('  s_cbranch_scc1 L_diag')
    if tl:
        A(f'  s_mul_i32 {s(sT)}, s2, {W+1}')
        A(f'  s_add_u32 {s(sT)}, {s(sT)}, s3')
        A(f'  s_lshl_b32 {s(sT)}, {s(sT)}, 8')
        A(f'  s_add_u32 {s(sT)}, {s(sT)}, 0x10000')
        A(f'  v_lshl_add_u32 {v(E)}, v0, 2, {s(sT)}')
        A(f'  global_store_dword {v(E)}, {v(TL)}, {s(sWS,2)}')
    if stamps:
        A('  s_waitcnt vmcnt(0)')
        A(f'  s_memrealtime {s(sBIG,2)}')
        A(f'  s_getreg_b32 {s(sSM)}, hwreg(HW_REG_XCC_ID)')
        A(f'  s_mul_i32 {s(sT)}, s2, {W+1}')
        A(f'  s_add_u32 {s(sT)}, {s(sT)}, s3')
        A(f'  s_lshl_b32 {s(sT)}, {s(sT)}, 4')
        A('  s_waitcnt lgkmcnt(0)')
        A(f'  v_mov_b32 {v(RING)}, s6')
        A(f'  v_mov_b32 {v(RING+1)}, {s(sBIG)}')
        A(f'  v_mov_b32 {v(RING+2)}, {s(sSM)}')
        A(f'  v_mov_b32 {v(RING+3)}, {s(sDEC)}')
        A(f'  v_mov_b32 {v(X0)}, {s(sT)}')
        A('  s_mov_b64 exec, 1')
        A(f'  global_store_dwordx4 {v(X0)}, {v(RING,4)}, {s(sWS,2)}')
    A('L_end:')
    A('  s_endpgm')

    C('================= helper wave')
    A('L_helper:')
    if tl:
        A(f'  s_mov_b32 {s(sTL)}, 0')
        A(f'  v_mov_b32 {v(TL)}, 0')
    hA, hZ, hO, h1, h2, h3, hD = 1, 2, 3, 4, 5, 6, 8
    hP, hQ, hC, hX, hW, hU, hT = hD + 96, hD + 97, hD + 98, hD + 100, hD + 104, hD + 105, hD + 106
    assert hT + 1 < TL
    A(f'  v_lshlrev_b32 {v(hA)}, 2, v0')
    A(f'  v_add_u32 {v(hA)}, {LDS_F}, {v(hA)}')
    A(f'  v_mov_b32 {v(hZ)}, 0')
    A('  s_mov_b64 exec, 0xff')
    A(f'  ds_write_b32 {v(hA)}, {v(hZ)}')
    A('  s_mov_b64 exec, -1')
    A('  s_waitcnt lgkmcnt(0)')
    make_srds(4, 9)
    A(f'  s_mov_b32 {s(SQ)}, {s(PT+14)}')
    A(f'  s_and_b32 {s(SQ+1)}, {s(PT+15)}, 0xffff')
    A('  s_barrier')
    sOF, sN0, sV0, sJ, sSF, sA, sB, sX, sCNT, sME, sPA, sFA, sFS, sQD = 44, 45, 48, 50, 52, 54, 56, 58, 59, 60, 61, 62, 63, 64
    sT0, sNON, sCP, sCA, sUP, sRET, sSUB = 72, 74, 76, 77, 78, 84, 86
    A(f'  s_memrealtime {s(sT0,2)}')
    def code_touch(tag):
        A(f'  s_lshr_b32 {s(sT)}, s2, 3')
        A(f'  s_cmp_lt_u32 {s(sT)}, (L_code_end - L_k) / 1024')
        A(f'  s_cbranch_scc0 L_h_ct{tag}')
        A(f'  global_load_dwordx4 {v(hX,4)}, {v(hC,2)}, off')
        A(f'L_h_ct{tag}:')
    C('workgroup i reads kilobyte i/8 of this kernel\'s code so that first instruction fetches hit L2')
    A(f'  s_getpc_b64 {s(sA,2)}')
    A('L_h_pc:')
    A(f'  s_add_u32 {s(sSUB)}, {s(sA)}, L_h_cp - L_h_pc')
    A(f'  s_addc_u32 {s(sSUB+1)}, {s(sA+1)}, 0')
    A(f'  s_sub_u32 {s(sA)}, {s(sA)}, L_h_pc - L_k')
    A(f'  s_subb_u32 {s(sA+1)}, {s(sA+1)}, 0')
    A(f'  s_and_b32 {s(sA)}, {s(sA)}, -16')
    A(f'  s_lshr_b32 {s(sT)}, s2, 3')
    A(f'  s_lshl_b32 {s(sT)}, {s(sT)}, 10')
    A(f'  v_lshl_add_u32 {v(hC)}, v0, 4, {s(sT)}')
    A(f'  v_mov_b32 {v(hC+1)}, {s(sA+1)}')
    A(f'  v_add_co_u32 {v(hC)}, vcc, {s(sA)}, {v(hC)}')
    A(f'  v_addc_co_u32 {v(hC+1)}, vcc, 0, {v(hC+1)}, vcc')
    code_touch('a')
    A(f'  s_lshr_b32 {s(sT)}, s2, 4')
    A(f'  s_and_b32 {s(sT)}, {s(sT)}, 8')
    A(f'  s_and_b32 {s(sT+1)}, s2, 7')
    A(f'  s_add_u32 {s(sT)}, {s(sT)}, {s(sT+1)}')
    A(f'  s_lshl_b32 {s(sT)}, {s(sT)}, 4')
    A(f'  v_lshl_add_u32 {v(hP)}, v0, 3, {s(sT)}')
    A(f'  v_and_b32 {v(hQ)}, 31, v0')
    A(f'  v_lshlrev_b32 {v(hQ)}, 3, {v(hQ)}')
    A(f'  v_and_b32 {v(hW)}, 1, v0')
    A(f'  v_lshlrev_b32 {v(hW)}, 2, {v(hW)}')
    A(f'  v_add_u32 {v(hW)}, {F_PRG}, {v(hW)}')
    A(f'  v_mov_b32 {v(hU)}, 0')
    A(f'  v_lshlrev_b32 {v(hO)}, 4, v0')
    A(f'  s_mov_b32 {s(sCP)}, {cp0}')
    A(f'  s_mov_b32 {s(sCA)}, {WS_CP}')
    def wait_progress(tag, lim, slp):
        A(f'L_h_prog{tag}:')
        A(f'  s_sleep {slp}')
        A(f'  ds_read_b32 {v(hD)}, {v(hW)}')
        A('  s_waitcnt lgkmcnt(0)')
        A(f'  v_cmp_gt_u32 vcc, {lim}, {v(hD)}')
        A('  s_cmp_lg_u32 vcc_lo, 0')
        A(f'  s_cbranch_scc1 L_h_prog{tag}')
    def lds_set(addr, val):
        A(f'  v_mov_b32 {v(hA)}, {addr}')
        A(f'  v_mov_b32 {v(h2)}, {val}')
        A(f'  ds_write_b32 {v(hA)}, {v(h2)}')
    C('vote word in d_debug: six 6-bit tallies (class near die 0 in even pages, per slab of qk and qv), four 4-bit tallies')
    C(f'(die of role 0 per wg&3) and the voter count in the top 12 bits; {7 * NV} workgroups vote')
    A(f'  s_getreg_b32 {s(sJ)}, hwreg(HW_REG_XCC_ID)')
    A(f'  s_bfe_u32 {s(sJ)}, {s(sJ)}, 0x10002')
    A(f'  s_bfe_u32 {s(sSF)}, s2, 0x30003')
    A(f'  s_cmp_eq_u32 {s(sSF)}, 7')
    A('  s_cbranch_scc1 L_h_voted')
    A(f'  s_lshr_b32 {s(sT)}, s2, 6')
    A(f'  s_xor_b32 {s(sT)}, {s(sT)}, s2')
    A(f'  s_and_b32 {s(sT)}, {s(sT)}, {32 // NV - 1}')
    A('  s_cbranch_scc1 L_h_voted')
    A(f'  s_cmp_eq_u32 {s(sSF)}, 6')
    A('  s_cbranch_scc0 L_h_probe')
    A(f'  s_xor_b32 {s(sV0)}, {s(sJ)}, {s(sRO)}')
    A(f'  s_and_b32 {s(sSF)}, s2, 3')
    A(f'  s_lshl2_add_u32 {s(sSF)}, {s(sSF)}, 36')
    A('  s_branch L_h_vote')
    A('L_h_probe:')
    A(f'  s_cmp_ge_u32 {s(sSF)}, 3')
    A(f'  s_cselect_b32 {s(SI)}, {s(SV)}, {s(SK)}')
    A(f'  s_cselect_b32 {s(SI+1)}, {s(SV+1)}, {s(SK+1)}')
    A(f'  s_cselect_b32 {s(sT)}, 3, 0')
    A(f'  s_sub_u32 {s(sT)}, {s(sSF)}, {s(sT)}')
    A(f'  s_lshl_b32 {s(sT)}, {s(sT)}, 28')
    A(f'  s_add_u32 {s(sOF)}, {s(sPB)}, {s(sRO)}')
    A(f'  s_lshl_b32 {s(sOF)}, {s(sOF)}, 16')
    A(f'  s_add_u32 {s(sOF)}, {s(sOF)}, {s(sT)}')
    A(f'  s_add_u32 {s(sOF)}, {s(sOF)}, 0x1c0000')
    A(f'  s_mul_i32 {s(sT)}, s2, 0x2a95')
    A(f'  s_and_b32 {s(sT)}, {s(sT)}, 0x7f80')
    A(f'  s_add_u32 {s(sOF)}, {s(sOF)}, {s(sT)}')
    A(f'  s_add_u32 {s(sT)}, {s(sOF)}, 0x8000')
    A(f'  s_buffer_load_dword {s(sX)}, {s(SI,4)}, {s(sT)}')
    A(f'  s_mov_b32 {s(sN0)}, -1')
    A(f'  s_mov_b32 {s(sN0+1)}, -1')
    A(f'  s_mul_i32 {s(sSF)}, {s(sSF)}, 6')
    wait_progress('p', 1, 2)
    for k in range(NS):
        for c in ((0, 1) if k % 2 == 0 else (1, 0)):
            o = (((k & 1) << 14) | ((k >> 1 & 1) << 12) | ((k * 0x380) & 0xfff)) ^ (c << 13)
            A(f'  s_xor_b32 {s(sT)}, {s(sOF)}, {o}')
            A(f'  s_memtime {s(sA,2)}')
            A('  s_waitcnt lgkmcnt(0)')
            A(f'  s_buffer_load_dword {s(sX)}, {s(SI,4)}, {s(sT)}')
            A('  s_waitcnt lgkmcnt(0)')
            A(f'  s_memtime {s(sB,2)}')
            A('  s_waitcnt lgkmcnt(0)')
            A(f'  s_sub_u32 {s(sB)}, {s(sB)}, {s(sA)}')
            A(f'  s_min_u32 {s(sN0+c)}, {s(sN0+c)}, {s(sB)}')
    A(f'  s_cmp_lt_u32 {s(sN0+1)}, {s(sN0)}')
    A(f'  s_cselect_b32 {s(sV0)}, 1, 0')
    A(f'  s_lshr_b32 {s(sT)}, {s(sOF)}, 13')
    A(f'  s_xor_b32 {s(sT)}, {s(sT)}, s2')
    A(f'  s_xor_b32 {s(sT)}, {s(sT)}, {s(sJ)}')
    A(f'  s_and_b32 {s(sT)}, {s(sT)}, 1')
    A(f'  s_xor_b32 {s(sV0)}, {s(sV0)}, {s(sT)}')
    A('L_h_vote:')
    A(f'  s_mov_b32 {s(sV0+1)}, 0')
    A(f'  s_lshl_b64 {s(sV0,2)}, {s(sV0,2)}, {s(sSF)}')
    A(f'  s_or_b32 {s(sV0+1)}, {s(sV0+1)}, 0x100000')
    A(f'  s_atomic_add_x2 {s(sV0,2)}, {s(sDBG,2)}, 0')
    A('L_h_voted:')
    A('  s_waitcnt lgkmcnt(0)')
    C('launch nonce (tells this launch\'s hand-offs in ws from older contents)')
    A('  s_cmp_lg_u32 s2, 56')
    A('  s_cbranch_scc1 L_h_nonce')
    A(f'  s_lshl_b64 {s(sA,2)}, {s(sT0,2)}, 2')
    A(f'  s_atomic_add_x2 {s(sA,2)}, {s(sDBG,2)}, 8')
    A('  s_waitcnt lgkmcnt(0)')
    A('L_h_nonce:')
    stamp()
    def checkpoints(upto):
        A(f'  s_mov_b32 {s(sUP)}, {min(upto, last) - dly}')
        A(f'  s_swappc_b64 {s(sRET,2)}, {s(sSUB,2)}')
    def bounded(label, n):
        A(f'  s_add_u32 {s(sCNT)}, {s(sCNT)}, 1')
        A(f'  s_cmp_gt_u32 {s(sCNT)}, {n}')
        A(f'  s_cbranch_scc1 {label}')
    wait_progress('v', NWU - W, 8)
    A(f'  s_load_dwordx2 {s(sV0,2)}, {s(sDBG,2)}, 0')
    A(f'  s_mov_b32 {s(sCNT)}, 0')
    A('L_h_votes:')
    A('  s_waitcnt lgkmcnt(0)')
    A(f'  s_lshr_b32 {s(sT)}, {s(sV0+1)}, 20')
    A(f'  s_cmp_ge_u32 {s(sT)}, {7 * NV}')
    A('  s_cbranch_scc1 L_h_votes_done')
    bounded('L_h_votes_done', 8000)
    A('  s_sleep 64')
    A(f'  s_mov_b64 {s(sV0,2)}, 0')
    A(f'  s_atomic_or_x2 {s(sV0,2)}, {s(sDBG,2)}, 0 glc')
    A('  s_branch L_h_votes')
    A('L_h_votes_done:')
    A(f'  s_mov_b32 {s(sDEC)}, 0x80')
    for j in range(6):
        A(f'  s_bfe_u64 {s(sA,2)}, {s(sV0,2)}, {hex(0x60000 | (6 * j))}')
        A(f'  s_cmp_gt_u32 {s(sA)}, {NV // 2}')
        A(f'  s_cselect_b32 {s(sB)}, {1 << j}, 0')
        A(f'  s_or_b32 {s(sDEC)}, {s(sDEC)}, {s(sB)}')
    if force >= 0: A(f'  s_mov_b32 {s(sDEC)}, {0x80 | force}')
    A(f'  s_and_b32 {s(sT)}, s2, 3')
    A(f'  s_lshl2_add_u32 {s(sT)}, {s(sT)}, {4 + (NV // 4).bit_length() - 1}')
    A(f'  s_lshr_b32 {s(sA)}, {s(sV0+1)}, {s(sT)}')
    A(f'  s_xor_b32 {s(sA)}, {s(sA)}, s2')
    A(f'  s_xor_b32 {s(sA)}, {s(sA)}, {s(sRO)}')
    A(f'  s_and_b32 {s(sA)}, {s(sA)}, 1')
    A(f'  s_mul_i32 {s(sA)}, {s(sA)}, 63')
    A(f'  s_xor_b32 {s(sDEC)}, {s(sDEC)}, {s(sA)}')
    lds_set(F_DEC, s(sDEC))
    stamp()
    A(f'  s_load_dwordx2 {s(sNON,2)}, {s(sDBG,2)}, 8')
    A(f'  s_mov_b32 {s(sCNT)}, 0')
    A('L_h_getnonce:')
    A('  s_waitcnt lgkmcnt(0)')
    A(f'  s_cmp_lg_u64 {s(sNON,2)}, 0')
    A('  s_cbranch_scc1 L_h_gotnonce')
    bounded('L_h_gotnonce', 8000)
    A('  s_sleep 64')
    A(f'  s_atomic_or_x2 {s(sNON,2)}, {s(sDBG,2)}, 8 glc')
    A('  s_branch L_h_getnonce')
    A('L_h_gotnonce:')
    A(f'  s_lshr_b64 {s(sA,2)}, {s(sNON,2)}, 2')
    C('table for the finish: ws offsets of the records to publish (slots 0, 3, 2-role) and to gather, output offset, tag.')
    C('record = 8*(page/3) + 2*slot + class; the page of type t = page%3 lies in slab (2t + pair) % 3')
    A(f'  v_writelane_b32 {v(hD)}, {s(sA)}, 7')
    A(f'  s_lshr_b32 {s(sQD)}, {s(sPB)}, 5')
    A(f'  s_mov_b32 {s(sJ)}, 0xaaaaaaab')
    def rec_base(t):
        A(f'  s_add_u32 {s(sA)}, {s(sQD)}, {2 * t}')
        A(f'  s_mul_hi_u32 {s(sB)}, {s(sA)}, {s(sJ)}')
        A(f'  s_lshr_b32 {s(sB)}, {s(sB)}, 1')
        A(f'  s_mul_i32 {s(sB)}, {s(sB)}, 3')
        A(f'  s_sub_u32 {s(sA)}, {s(sA)}, {s(sB)}')
        A(f'  s_lshr_b32 {s(sB)}, {s(sDEC)}, {s(sA)}')
        A(f'  s_bfe_u32 {s(sB)}, {s(sB)}, 0x10003')
        A(f'  s_lshl_b32 {s(sA)}, {s(sA)}, 7')
        A(f'  s_add_u32 {s(sA)}, {s(sA)}, {s(sQD)}')
        A(f'  s_mul_hi_u32 {s(sA)}, {s(sA)}, {s(sJ)}')
        A(f'  s_lshr_b32 {s(sA)}, {s(sA)}, 1')
        A(f'  s_lshl3_add_u32 {s(sA)}, {s(sA)}, {s(sB)}')
    def put(lane, reg):
        A(f'  s_mul_i32 {s(sT)}, {s(reg)}, {REC}')
        A(f'  s_add_u32 {s(sT)}, {s(sT)}, {WS_REC}')
        A(f'  v_writelane_b32 {v(hD)}, {s(sT)}, {lane}')
    rec_base(0)
    put(0, sA)
    rec_base(2)
    A(f'  s_add_u32 {s(sA)}, {s(sA)}, 6')
    put(1, sA)
    rec_base(1)
    A(f'  s_lshl_b32 {s(sB)}, {s(sRO)}, 1')
    A(f'  s_sub_u32 {s(sB+1)}, {s(sA)}, {s(sB)}')
    A(f'  s_add_u32 {s(sB+1)}, {s(sB+1)}, 4')
    put(2, sB + 1)
    A(f'  s_add_u32 {s(sA)}, {s(sA)}, {s(sB)}')
    A(f'  s_add_u32 {s(sA)}, {s(sA)}, 2')
    A(f'  s_xor_b32 {s(sB)}, {s(sA)}, 1')
    put(3, sB)
    A(f'  s_andn2_b32 {s(sB)}, {s(sA)}, 1')
    A(f'  s_xor_b32 {s(sB)}, {s(sB)}, 2')
    put(4, sB)
    A(f'  s_add_u32 {s(sB)}, {s(sB)}, 1')
    put(5, sB)
    A(f'  s_lshr_b32 {s(sA)}, {s(sA)}, 2')
    A(f'  s_mul_i32 {s(sA)}, {s(sA)}, 1536')
    A(f'  v_writelane_b32 {v(hD)}, {s(sA)}, 6')
    A(f'  v_lshlrev_b32 {v(hA)}, 2, v0')
    A('  s_mov_b64 exec, 0xff')
    A(f'  ds_write_b32 {v(hA)}, {v(hD)} offset:{F_END}')
    A('  s_mov_b64 exec, -1')
    C('logit swap: flag word per workgroup; image q = 2*pair + role keeps kilobyte k at')
    C('region(q>>5) + (k<<15) + ((q&31 ^ comp(k)) << 10), which stays inside four memory channels')
    A(f'  s_lshl_b32 {s(sFA)}, s2, 8')
    A(f'  s_add_u32 {s(sFA)}, {s(sFA)}, {WS_FLAG}')
    A(f'  s_xor_b32 {s(sFS)}, {s(sFA)}, 1024')
    A(f'  s_lshr_b32 {s(sX)}, {s(sDEC)}, 3')
    A(f'  s_xor_b32 {s(sX)}, {s(sX)}, {s(sDEC)}')
    A(f'  s_lshr_b32 {s(sT)}, {s(sPB)}, 4')
    A(f'  s_lshr_b32 {s(sOF)}, {s(sT)}, 5')
    A(f'  s_lshl_b32 {s(sOF)}, {s(sOF)}, 21')
    A(f'  s_add_u32 {s(sOF)}, {s(sOF)}, {WS_IMG}')
    A(f'  s_and_b32 {s(sQD)}, {s(sT)}, 31')
    A(f'  s_add_u32 {s(sT)}, {s(sQD)}, {s(sRO)}')
    A(f'  s_lshl_b32 {s(sT)}, {s(sT)}, 10')
    A(f'  s_add_u32 {s(sME)}, {s(sOF)}, {s(sT)}')
    A(f'  s_xor_b32 {s(sPA)}, {s(sME)}, 1024')
    def pxor(k):
        h = k >> 2
        c = (h & 3) ^ (((h >> 2) & 1) * 17) ^ (((h >> 3) & 1) * 4)
        return (k << 15) | (c << 10)
    NW = NWU * 384 // 1024
    def reg(k): return hD + 4 * (k % 24)
    def export(lo, hi):
        for k in range(lo, hi): A(f'  ds_read_b128 {v(reg(k),4)}, {v(hO)} offset:{1024*k}')
        A('  s_waitcnt lgkmcnt(0)')
        for k in range(lo, hi):
            A(f'  s_xor_b32 {s(sT)}, {s(sME)}, {pxor(k)}')
            A(f'  buffer_store_dwordx4 {v(reg(k),4)}, {v(hO)}, {s(SWS,4)}, {s(sT)} offen sc1')
    def imp(lo, hi):
        for k in range(lo, hi):
            A(f'  s_xor_b32 {s(sT)}, {s(sPA)}, {pxor(k)}')
            A(f'  buffer_load_dwordx4 {v(reg(k),4)}, {v(hO)}, {s(SWS,4)}, {s(sT)} offen sc1')
        A('  s_waitcnt vmcnt(0)')
        for k in range(lo, hi): A(f'  ds_write_b128 {v(hO)}, {v(reg(k),4)} offset:{1024*k}')
    def cond(bit, tag, fn):
        A(f'  s_bitcmp0_b32 {s(sX)}, {bit}')
        A(f'  s_cbranch_scc1 L_h_{tag}')
        fn()
        A(f'L_h_{tag}:')
    def handshake(tag, level):
        A(f'  s_add_u32 {s(sA)}, {s(sNON)}, {level}')
        A(f'  v_mov_b32 {v(h2)}, 0')
        A('  s_waitcnt vmcnt(0)')
        A(f'  v_mov_b32 {v(hD)}, {s(sA)}')
        A(f'  v_mov_b32 {v(hD+1)}, {s(sNON+1)}')
        A('  s_mov_b64 exec, 1')
        A(f'  buffer_store_dwordx2 {v(hD,2)}, {v(h2)}, {s(SWS,4)}, {s(sFA)} offen sc1')
        A(f'  s_mov_b32 {s(sCNT)}, 0')
        A(f'L_h_flag{tag}:')
        A(f'  buffer_load_dwordx2 {v(hD+2,2)}, {v(h2)}, {s(SWS,4)}, {s(sFS)} offen sc1')
        A('  s_waitcnt vmcnt(0)')
        A(f'  v_readfirstlane_b32 {s(sB)}, {v(hD+2)}')
        A(f'  v_readfirstlane_b32 {s(sB+1)}, {v(hD+3)}')
        A(f'  s_sub_u32 {s(sB)}, {s(sB)}, {s(sA)}')
        A(f'  s_xor_b32 {s(sB+1)}, {s(sB+1)}, {s(sNON+1)}')
        A(f'  s_lshr_b32 {s(sB)}, {s(sB)}, 1')
        A(f'  s_or_b32 {s(sB)}, {s(sB)}, {s(sB+1)}')
        A(f'  s_cbranch_scc0 L_h_flag{tag}_done')
        bounded(f'L_h_flag{tag}_done', 100000)
        A('  s_sleep 8')
        A(f'  s_branch L_h_flag{tag}')
        A(f'L_h_flag{tag}_done:')
        A('  s_mov_b64 exec, -1')
    pg = (2, 0, 1) if kord else (0, 1, 2)
    checkpoints(64)
    wait_progress('a', 64, 4)
    stamp()
    export(0, NW)
    cond(pg[0], 'e0', lambda: export(NW, 12))
    cond(pg[1], 'e1', lambda: export(12, 24))
    handshake('a', 1)
    stamp()
    C('first units: slot f comes from the image of role f&1, slot (f&~1) + V class of that page')
    A(f'  s_bfe_u32 {s(sA)}, {s(sDEC)}, {hex(0x10003 + pg[0])}')
    A(f'  s_mul_i32 {s(sA)}, {s(sA)}, 384')
    A(f'  v_lshrrev_b32 {v(h1)}, 3, v0')
    for k in range(NW):
        A(f'  v_add_u32 {v(h2)}, {8 * k}, {v(h1)}')
        A(f'  v_mul_u32_u24 {v(h2)}, 21846, {v(h2)}')
        A(f'  v_bfe_u32 {v(h2)}, {v(h2)}, 16, 1')
        A(f'  v_mul_u32_u24 {v(h3)}, 384, {v(h2)}')
        A(f'  v_sub_u32 {v(h3)}, {v(hO)}, {v(h3)}')
        A(f'  v_add_u32 {v(h3)}, {s(sA)}, {v(h3)}')
        A(f'  v_add_u32 {v(h3)}, {1024 * k}, {v(h3)}')
        A(f'  v_add_u32 {v(h2)}, {s(sQD)}, {v(h2)}')
        A(f'  v_lshrrev_b32 {v(hZ)}, 12, {v(h3)}')
        A(f'  v_xor_b32 {v(h2)}, {v(h2)}, {v(hZ)}')
        A(f'  v_lshrrev_b32 {v(hZ)}, 10, {v(h3)}')
        A(f'  v_lshl_add_u32 {v(h2)}, {v(hZ)}, 5, {v(h2)}')
        A(f'  v_and_b32 {v(h3)}, 1023, {v(h3)}')
        A(f'  v_lshl_add_u32 {v(h2)}, {v(h2)}, 10, {v(h3)}')
        A(f'  buffer_load_dwordx4 {v(reg(k),4)}, {v(h2)}, {s(SWS,4)}, {s(sOF)} offen sc1')
    cond(pg[0], 'i0', lambda: imp(NW, 12))
    cond(pg[1], 'i1', lambda: imp(12, 24))
    A('  s_waitcnt vmcnt(0)')
    for k in range(NW): A(f'  ds_write_b128 {v(hO)}, {v(reg(k),4)} offset:{1024*k}')
    stamp()
    A(f'  s_bitcmp0_b32 {s(sX)}, {pg[2]}')
    A(f'  s_cselect_b32 {s(sT)}, 255, {32 * pg[2]}')
    lds_set(F_IMP, s(sT))
    checkpoints(NF)
    A(f'  s_bitcmp0_b32 {s(sX)}, {pg[2]}')
    A('  s_cbranch_scc1 L_h_all')
    wait_progress('b', NF, 4)
    export(24, 36)
    handshake('b', 2)
    imp(24, 36)
    lds_set(F_IMP, 255)
    A('L_h_all:')
    checkpoints(999)
    C('the last unit runs with the deep queue')
    wait_progress('t', 2 * NF - 2 * W, 4)
    A(f'  v_mov_b32 {v(hD)}, 255')
    A(f'  ds_write_b32 {v(hW)}, {v(hD)} offset:{F_BST - F_PRG}')
    A('  s_branch L_finish')

    C(f'check points every {step} units up to unit s{sUP}: lane w (mod 2) follows wave w. Arrival times of 16 workgroups go to ws;')
    C(f'{dly} units later the entries stamped inside this launch give the mean, and a late wave gets a catch-up limit in LDS')
    A('L_h_cp:')
    A(f'  s_cmp_gt_u32 {s(sCP)}, {s(sUP)}')
    A('  s_cbranch_scc0 L_h_cpgo')
    A(f'  s_setpc_b64 {s(sRET,2)}')
    A('L_h_cpgo:')
    A(f'  ds_read_b32 {v(hD)}, {v(hW)}')
    A('  s_waitcnt lgkmcnt(0)')
    A(f'  v_cmp_gt_u32 vcc, {s(sCP)}, {v(hD)}')
    A('  s_cmp_eq_u32 vcc_lo, 0')
    A('  s_cbranch_scc1 L_h_cpnext')
    A('L_h_first:')
    A('  s_sleep 2')
    A(f'  ds_read_b32 {v(hD)}, {v(hW)}')
    A('  s_waitcnt lgkmcnt(0)')
    A(f'  v_cmp_gt_u32 {s(sV0,2)}, {s(sCP)}, {v(hD)}')
    A(f'  s_cmp_eq_u32 {s(sV0)}, -1')
    A('  s_cbranch_scc1 L_h_first')
    A(f'  s_memrealtime {s(sA,2)}')
    wait_progress('m', s(sCP), 2)
    A(f'  s_memrealtime {s(sB,2)}')
    A(f'  v_mov_b32 {v(hT)}, {s(sA)}')
    A(f'  v_mov_b32 {v(hT+1)}, {s(sA+1)}')
    A(f'  s_mov_b64 exec, {s(sV0,2)}')
    A('  s_waitcnt lgkmcnt(0)')
    A(f'  v_mov_b32 {v(hT)}, {s(sB)}')
    A(f'  v_mov_b32 {v(hT+1)}, {s(sB+1)}')
    A('  s_mov_b64 exec, -1')
    A(f'  s_and_b32 {s(sT)}, s2, 0x78')
    A('  s_cbranch_scc1 L_h_np')
    A('  s_mov_b64 exec, 3')
    A(f'  buffer_store_dwordx2 {v(hT,2)}, {v(hP)}, {s(SWS,4)}, {s(sCA)} offen sc1')
    A('  s_mov_b64 exec, -1')
    A('L_h_np:')
    A(f'  s_add_u32 {s(sJ)}, {s(sCP)}, {dly}')
    wait_progress('c', s(sJ), 4)
    A(f'  buffer_load_dwordx2 {v(hD,2)}, {v(hQ)}, {s(SWS,4)}, {s(sCA)} offen')
    A(f'  v_mov_b32 {v(hD+2)}, {s(sT0+1)}')
    A('  s_waitcnt vmcnt(0)')
    A(f'  ds_read_b32 {v(hD+4)}, {v(hW)}')
    A(f'  v_subrev_co_u32 {v(hD)}, vcc, {s(sT0)}, {v(hD)}')
    A(f'  v_subb_co_u32 {v(hD+1)}, vcc, {v(hD+1)}, {v(hD+2)}, vcc')
    A(f'  v_lshrrev_b32 {v(hD+2)}, 24, {v(hD)}')
    A(f'  v_or_b32 {v(hD+1)}, {v(hD+1)}, {v(hD+2)}')
    A(f'  v_cmp_eq_u32 vcc, 0, {v(hD+1)}')
    A(f'  v_cndmask_b32 {v(hD)}, 0, {v(hD)}, vcc')
    A(f'  s_bcnt1_i32_b32 {s(sB)}, vcc_lo')
    for r in (8, 4, 2, 1):
        A(f'  v_add_u32_dpp {v(hD)}, {v(hD)}, {v(hD)} row_ror:{r} row_mask:0xf bank_mask:0xf')
    A(f'  v_readlane_b32 {s(sA)}, {v(hD)}, 0')
    A(f'  v_readlane_b32 {s(sT)}, {v(hD)}, 16')
    A(f'  v_subrev_u32 {v(hD)}, {s(sT0)}, {v(hT)}')
    A(f'  v_mul_lo_u32 {v(hD)}, {v(hD)}, {s(sB)}')
    A(f'  s_add_u32 {s(sA)}, {s(sA)}, {s(sT)}')
    A(f'  s_max_u32 {s(sB)}, {s(sB)}, 1')
    A(f'  v_subrev_u32 {v(hD)}, {s(sA)}, {v(hD)}')
    A(f'  v_cvt_f32_u32 {v(hD+1)}, {s(sB)}')
    A(f'  v_cvt_f32_i32 {v(hD)}, {v(hD)}')
    A(f'  v_rcp_f32 {v(hD+1)}, {v(hD+1)}')
    A(f'  v_mul_f32 {v(hD)}, {v(hD)}, {v(hD+1)}')
    A(f'  v_cvt_i32_f32 {v(hD)}, {v(hD)}')
    A('  s_waitcnt lgkmcnt(0)')
    A(f'  v_add_u32 {v(hD+4)}, {W}, {v(hD+4)}')
    C('subtract what the running catch-up gains between the check point and the first unit that sees the new limit')
    A(f'  v_min_u32 {v(hD+1)}, {v(hU)}, {v(hD+4)}')
    A(f'  v_subrev_u32 {v(hD+1)}, {s(sCP)}, {v(hD+1)}')
    A(f'  v_max_i32 {v(hD+1)}, 0, {v(hD+1)}')
    A(f'  v_lshrrev_b32 {v(hD+1)}, 1, {v(hD+1)}')
    A(f'  v_mul_u32_u24 {v(hD+1)}, {gain}, {v(hD+1)}')
    A(f'  v_sub_u32 {v(hD)}, {v(hD)}, {v(hD+1)}')
    A(f'  v_add_u32 {v(hD+1)}, {gain // 2 - dead}, {v(hD)}')
    A(f'  v_max_i32 {v(hD+1)}, 0, {v(hD+1)}')
    A(f'  v_min_i32 {v(hD+1)}, 2000, {v(hD+1)}')
    A(f'  v_mul_u32_u24 {v(hD+1)}, {65536 // gain}, {v(hD+1)}')
    A(f'  v_lshrrev_b32 {v(hD+1)}, 16, {v(hD+1)}')
    A(f'  v_cmp_ne_u32 vcc, 0, {v(hD+1)}')
    A(f'  v_lshl_add_u32 {v(hD+1)}, {v(hD+1)}, 1, {v(hD+4)}')
    A(f'  v_cndmask_b32 {v(hU)}, 0, {v(hD+1)}, vcc')
    A(f'  ds_write_b32 {v(hW)}, {v(hU)} offset:{F_BST - F_PRG}')
    A('L_h_cpnext:')
    A(f'  s_add_u32 {s(sCP)}, {s(sCP)}, {step}')
    A(f'  s_add_u32 {s(sCA)}, {s(sCA)}, 256')
    A('  s_branch L_h_cp')
    A('L_code_end:')
    body = pad(L)

    nva = (nv + 7) // 8 * 8
    out = HDR + f'; @launch grid=(256,1,1) block=({64*(W+1)},1,1) lds={lds}\n' + NOTES
    out += '.amdgcn_target "amdgcn-amd-amdhsa--gfx950"\n.text\n'
    out += f'.globl {NAME}\n.p2align 8\n.type {NAME},@function\n'
    out += '\n'.join(body) + '\n'
    out += f'''.section .rodata,"a"
.p2align 6
.amdhsa_kernel {NAME}
  .amdhsa_next_free_vgpr {nva}
  .amdhsa_next_free_sgpr 102
  .amdhsa_accum_offset {nva}
  .amdhsa_group_segment_fixed_size 0
  .amdhsa_kernarg_size 80
  .amdhsa_user_sgpr_count 2
  .amdhsa_user_sgpr_kernarg_segment_ptr 1
  .amdhsa_system_sgpr_workgroup_id_x 1
  .amdhsa_float_denorm_mode_32 3
.end_amdhsa_kernel
'''
    return out

if __name__ == '__main__':
    kw = {}
    for x in sys.argv[2:]:
        k, val = x.split('=')
        kw[k] = int(val)
    open(sys.argv[1], 'w').write(gen(**kw))
```

```python
import sys, os
sys.path.insert(0, os.path.dirname(os.path.abspath(__file__)))
from asmlib import pad
NAME = 'standalone__kv_cache_quant_int4_int2_kv_with_per_channel_or_per_token_scales__sampling_kernel'
TOTAL = 256 * 4096 * 768
PIECE = 1152
REC = 3 * PIECE
WS_REC = 1 << 20
WS_CP = 7 << 20
WS_FLAG = 6 << 20
WS_IMG = 8 << 20
WS_END = WS_IMG + (16 << 20)
IMG = 96 * 384
OOB = 0x7ffffff0
HDR = open(os.path.join(os.path.dirname(os.path.abspath(__file__)), 'header.txt')).read()
assert all(((32 * c + 1) * 21846) >> 16 == (32 * c + 1) // 3 for c in range(25))
assert all((c * 43) >> 8 == c // 6 for c in range(24))
assert all((x * 21846) >> 16 == x // 3 for x in range(100))

NOTES = """\
"""

class Alloc:
    def __init__(self, start): self.n = start
    def __call__(self, k, align=1):
        self.n = (self.n + align - 1) // align * align
        r = self.n; self.n += k
        return r

def v(r, k=1): return f'v{r}' if k == 1 else f'v[{r}:{r+k-1}]'
def s(r, k=1): return f's{r}' if k == 1 else f's[{r}:{r+k-1}]'

def merge(main, side):
    out = []; side = list(side)
    for m in main:
        out.append(m)
        if side: out.append(side.pop(0))
    return out + side

def gen(DN=10, D=15, bev=3, NWU=8, NS=3, NV=8, pfw=16, PSK=17, gain=28, dly=4, dead=0, cp0=12, step=8, last=186,
        force=-1, stamps=0, tl=0, diagpad=0, diagat=-1, kord=1, cps=10, cpst=0, cpld=0, npub=16, cpx=0, fullw=0, fullf=0, fulls=0):
    W, U, NST, NF, PSV = 2, 2, 33, 96, 3
    R = 11 * U
    SW = NST - D
    assert DN <= D < R and NWU % 8 == 0 and PSV < SW and 3 <= PSK < SW
    L = []
    A = L.append
    C = lambda t: L.append('; ' + t)
    va = Alloc(1)
    DUP = va(1); DOWN = va(1); DCON = va(1)
    RING = va(4 * R, 4); VO = va(4)
    ICV = va(1); TU = va(1); VVS = va(1); VL1 = va(1); VL2 = va(1); VBP = va(1); VFL = va(1); VST = va(1); VPR = va(1)
    VOOB = va(1); VBS = va(1)
    T = va(4, 2); ZN = va(1); SN = va(1); ZC = va(1); SC = va(1); ZS = va(2, 2)
    LG = va(6, 4); ACC = va(12, 4); M = va(1); NB = va(2, 2); LS = NB + 1
    X0 = va(2, 2); X1 = X0 + 1; AL = va(1); ALQ = va(1); E = va(11); PP = va(6); TL = va(1)
    base = va.n
    QB = va(6, 4); QN = va(6, 2); KSR = va(6, 2); KZR = va(6, 2); KS = va(12, 2); KZ = va(12, 2); KA = va(6, 4); SD = va(4, 4); S = va(2, 2)
    IUP = va(1); IOWN = va(1); ICON = va(1); VKS0 = va(1); VKS = va(1); VQ = va(1); VNI = va(1)
    kend = va.n
    va.n = base
    AJ = va(16, 4); AK = va(8, 2); TV = va(12, 2); BV = va(48, 4)
    nv = max(va.n, kend)
    sRO, sPB = 4, 5
    SK, SV, SI, SKS, SKZ, SVS, SVZ, SQ, SWS = 8, 12, 16, 20, 24, 28, 32, 36, 40
    PT = 44
    sOUT, sL0, sL10, sM0, sM10, sLOW = 46, 48, 50, 52, 54, 56
    sCUR, sNXT, sSO, s768, sF, sMSK, sL2E, sTL, sSCL, sT = 60, 61, 62, 63, 64, 65, 66, 67, 68, 70
    sMJ = 72
    sDBG, sWS = 80, 82
    sQ3, sC, sQC, sMISS, sHC, sHN, sDIV, sSH = 84, 85, 86, 87, 88, 89, 90, 91
    sBIG, sSM = 92, 94
    sDEC, sG, sGATE = 96, 97, 99
    SEG = W * 3072 + W * 32
    LDS_ACC = IMG
    LDS_F = LDS_ACC + 4 * SEG
    F_DEC, F_IMP, F_PRG, F_BST, F_END = LDS_F, LDS_F + 4, LDS_F + 16, LDS_F + 24, LDS_F + 32
    lds = 62464
    assert LDS_F + 64 <= lds and F_END % 16 == 0

    A(f'{NAME}:')
    A('  s_cmp_ge_u32 s2, 256')
    A('  s_cbranch_scc1 L_end')
    A(f'  s_load_dwordx16 {s(PT,16)}, s[0:1], 0')
    A(f'  s_load_dwordx4 {s(sDBG,4)}, s[0:1], 64')
    if stamps or diagpad: A('  s_memrealtime s[6:7]')
    C('s3 = wave, s4 = role in the pair, s5 = 32 * pair (first block of the first page)')
    A('  v_lshrrev_b32 v1, 6, v0')
    A('  v_and_b32 v0, 63, v0')
    A('  v_readfirstlane_b32 s3, v1')
    A(f'  s_bfe_u32 {s(sRO)}, s2, 0x10002')
    A(f'  s_lshr_b32 {s(sPB)}, s2, 3')
    A(f'  s_lshl_b32 {s(sPB)}, {s(sPB)}, 2')
    A(f'  s_and_b32 {s(sT)}, s2, 3')
    A(f'  s_add_u32 {s(sPB)}, {s(sPB)}, {s(sT)}')
    A(f'  s_lshl_b32 {s(sPB)}, {s(sPB)}, 5')
    SRDS = ((SKS, PT + 6, 256 * 24576), (SKZ, PT + 8, 256 * 24576), (SVS, PT + 10, 256 * 8192), (SVZ, PT + 12, 256 * 8192),
            (SK, PT + 2, TOTAL), (SQ, PT, 256 * 1536), (SI, PT + 2, TOTAL), (SV, PT + 4, TOTAL), (SWS, sWS, WS_END))
    for srd, p, nb in SRDS:
        A(f'  s_mov_b32 {s(srd+2)}, {nb}')
        A(f'  s_mov_b32 {s(srd+3)}, 0x20000')
    def make_srds(lo, hi):
        for srd, p, nb in SRDS[lo:hi]:
            A(f'  s_mov_b32 {s(srd)}, {s(p)}')
            A(f'  s_and_b32 {s(srd+1)}, {s(p+1)}, 0xffff')
    A(f'  s_cmp_eq_u32 s3, {W}')
    A('  s_cbranch_scc1 L_helper')

    C('================= streaming waves')
    cls, a, g, n = T, T + 1, T + 2, T + 3
    A(f'  v_and_b32 {v(cls)}, 3, v0')
    A(f'  v_bfe_u32 {v(a)}, v0, 2, 2')
    A(f'  v_lshrrev_b32 {v(g)}, 4, v0')
    A(f'  v_and_b32 {v(n)}, 15, v0')
    def stream_consts(x, up, own, con, lanepart):
        A(f'  v_and_b32 {v(own)}, 2, {v(x)}')
        A(f'  v_lshlrev_b32 {v(up)}, 5, {v(own)}')
        A(f'  v_add_u32 {v(up)}, 129, {v(up)}')
        A(f'  v_and_b32 {v(X1)}, 1, {v(x)}')
        A(f'  v_lshl_add_u32 {v(own)}, {v(X1)}, 2, {v(own)}')
        A(f'  v_mul_u32_u24 {v(X1)}, {43 * 768}, {v(X1)}')
        A(f'  v_add_u32 {v(con)}, {v(lanepart)}, {v(X1)}')
        A(f'  v_subrev_u32 {v(con)}, {43 * 768}, {v(con)}')
    A(f'  v_lshlrev_b32 {v(X0)}, 4, {v(cls)}')
    A(f'  v_lshl_add_u32 {v(X0)}, {v(g)}, 6, {v(X0)}')
    A(f'  v_lshrrev_b32 {v(VKS0)}, 1, {v(X0)}')
    stream_consts(a, IUP, IOWN, ICON, X0)
    A(f'  v_mul_u32_u24 {v(X1)}, 384, {v(a)}')
    A(f'  v_add_u32 {v(VQ)}, {v(X1)}, {v(VKS0)}')
    A(f'  v_mov_b32 {v(VOOB)}, {OOB}')
    A(f'  s_mov_b32 {s(sDIV)}, 0xaaaaaaab')
    A(f'  s_mov_b32 {s(sSH)}, 0x492492')
    A(f'  s_movk_i32 {s(s768)}, 768')
    def slot(k): return RING + 4 * (k % R)
    def main_load(k, srd, so):
        ss, i = divmod(k % NST, 3)
        r, k0 = (0, 0) if ss == 0 else (1, 1) if ss <= 5 else (2, 6) if ss <= 9 else (3, 10)
        return f'  buffer_load_dwordx4 {v(slot(k),4)}, {v(VO+r)}, {s(srd,4)}, {s(so)} offen offset:{768*(ss-k0) + 256*i} nt'
    def kscale_loads():
        A(f'  s_mul_i32 {s(sSO)}, {s(sQ3)}, 1536')
        for i in range(3):
            A(f'  buffer_load_dwordx2 {v(KSR+2*i,2)}, {v(VKS)}, {s(SKS,4)}, {s(sSO)} offen offset:{128*i}')
            A(f'  buffer_load_dwordx2 {v(KZR+2*i,2)}, {v(VKS)}, {s(SKZ,4)}, {s(sSO)} offen offset:{128*i}')
    def vscale_loads():
        A(f'  s_lshl_b32 {s(sSO)}, {s(sQ3)}, 9')
        A(f'  v_lshl_add_u32 {v(VVS)}, {v(TU)}, 1, {v(ICV)}')
        A(f'  buffer_load_short_d16_hi {v(ZN)}, {v(VVS)}, {s(SVZ,4)}, {s(sSO)} offen')
        A(f'  buffer_load_short_d16_hi {v(SN)}, {v(VVS)}, {s(SVS,4)}, {s(sSO)} offen')
    def q_loads():
        A(f'  s_mul_i32 {s(sT)}, {s(sHN)}, 1536')
        for i in range(3): A(f'  buffer_load_dwordx2 {v(QN+2*i,2)}, {v(VQ)}, {s(SQ,4)}, {s(sT)} offen offset:{128*i}')
    def short_masks(own, m0, m10, low):
        A(f'  v_add_u32 {v(X0)}, {s(sC)}, {v(own)}')
        A(f'  v_lshrrev_b32 {v(X1)}, {v(X0)}, {s(sSH)}')
        A(f'  v_and_b32 {v(X1)}, 1, {v(X1)}')
        A(f'  v_cmp_eq_u32 {s(m10,2)}, 1, {v(X1)}')
        A(f'  s_and_b64 {s(m0,2)}, {s(m10,2)}, {s(low,2)}')
        A(f'  s_andn2_b64 {s(m10,2)}, {s(m10,2)}, {s(low,2)}')
    def map_unit(f, isv):
        if kord and not isv:
            A(f'  s_lshr_b32 {s(sT+1)}, {s(f)}, 4')
            A(f'  s_andn2_b32 {s(sT+1)}, {s(sT+1)}, 1')
            A(f'  s_lshr_b32 {s(sT+1)}, 0x12, {s(sT+1)}')
            A(f'  s_and_b32 {s(sT+1)}, {s(sT+1)}, 3')
        else:
            A(f'  s_lshr_b32 {s(sT+1)}, {s(f)}, 5')
        A(f'  s_lshr_b32 {s(sC)}, {s(sDEC)}, {s(sT+1)}')
        if isv:
            A(f'  s_bfe_u32 {s(sC)}, {s(sC)}, 0x10003')
            A(f'  s_and_b32 {s(sT)}, {s(f)}, 31')
        else:
            A(f'  s_andn2_b32 {s(sT)}, {s(f)}, 1')
            A(f'  s_or_b32 {s(sT)}, {s(sT)}, {s(sRO)}')
            A(f'  s_cmp_lt_u32 {s(f)}, {NWU}')
            A(f'  s_cselect_b32 {s(sT)}, {s(sT)}, {s(f)}')
            A(f'  s_cselect_b32 {s(sC)}, {s(f)}, {s(sC)}')
            A(f'  s_and_b32 {s(sC)}, {s(sC)}, 1')
            A(f'  s_and_b32 {s(sT)}, {s(sT)}, 31')
        A(f'  s_lshl_b32 {s(sT+1)}, {s(sT+1)}, 12')
        A(f'  s_add_u32 {s(sT)}, {s(sT)}, {s(sPB)}')
        A(f'  s_add_u32 {s(sT)}, {s(sT)}, {s(sT+1)}')
        A(f'  s_mul_hi_u32 {s(sQ3)}, {s(sT)}, {s(sDIV)}')
        A(f'  s_lshr_b32 {s(sQ3)}, {s(sQ3)}, 1')
        A(f'  s_mul_i32 {s(sT+1)}, {s(sQ3)}, 3')
        A(f'  s_sub_u32 {s(sT)}, {s(sT)}, {s(sT+1)}')
        A(f'  s_lshl3_add_u32 {s(sC)}, {s(sT)}, {s(sC)}')
        A(f'  s_mul_i32 {s(sNXT)}, {s(sQ3)}, 196608')
        A(f'  s_lshr_b32 {s(sHN)}, {s(sQ3)}, 4')
        A(f'  s_lshl_b32 {s(sT)}, {s(sC)}, 5')
        A(f'  v_add_u32 {v(TU)}, {s(sT)}, {v(DUP if isv else IUP)}')
        A(f'  v_mul_u32_u24 {v(TU)}, 21846, {v(TU)}')
        A(f'  v_lshrrev_b32 {v(TU)}, 16, {v(TU)}')
        short_masks(DOWN if isv else IOWN, sM0, sM10, sLOW + 2 * isv)
        if not isv:
            A(f'  v_mul_u32_u24 {v(X0)}, 43, {v(X0)}')
            A(f'  v_lshrrev_b32 {v(X0)}, 8, {v(X0)}')
            A(f'  v_mul_u32_u24 {v(X0)}, 384, {v(X0)}')
            A(f'  v_add_u32 {v(VKS)}, {v(X0)}, {v(VKS0)}')
    def offsets(con):
        A(f'  v_mad_u32_u24 {v(VO)}, {v(TU)}, {s(s768)}, {v(con)}')
        A(f'  v_add_u32 {v(VO+1)}, 768, {v(VO)}')
        A(f'  v_add_u32 {v(VO+2)}, {6 * 768}, {v(VO)}')
        A(f'  v_add_u32 {v(VO+3)}, {10 * 768}, {v(VO)}')
        A(f'  v_cndmask_b32 {v(VO)}, {v(VO)}, {v(VOOB)}, {s(sM0,2)}')
        A(f'  v_cndmask_b32 {v(VO+3)}, {v(VO+3)}, {v(VOOB)}, {s(sM10,2)}')
    def stamp():
        if tl:
            A(f'  s_memrealtime {s(sT,2)}')
            A('  s_waitcnt lgkmcnt(0)')
            A(f'  s_min_u32 m0, {s(sTL)}, 63')
            A(f'  v_writelane_b32 {v(TL)}, {s(sT)}, m0')
            A(f'  s_add_u32 {s(sTL)}, {s(sTL)}, 1')
    def reset_state():
        for k in range(12): A(f'  v_mov_b32 {v(ACC+k)}, 0')
        A(f'  v_mov_b32 {v(M)}, 0xff800000')
        A(f'  v_mov_b32 {v(NB)}, 0x7f800000')
        A(f'  v_mov_b32 {v(LS)}, 0')
    A(f'  s_mov_b32 {s(sF)}, s3')
    A(f'  s_mov_b32 {s(sGATE)}, {NWU}')
    A(f'  s_mov_b32 {s(sDEC)}, 0')
    C('one bulk pass pulls the scale/zero arrays into the memory-side cache (1/512 per wave); later reads of them stay off DRAM')
    A(f'  v_lshlrev_b32 {v(ZC)}, 4, v0')
    sPK, sPV = sQC, sHC
    A(f'  s_lshl1_add_u32 {s(sT)}, s2, s3')
    A(f'  s_mul_i32 {s(sPV)}, {s(sT)}, {8192 // W}')
    A(f'  s_mul_i32 {s(sPK)}, {s(sT)}, {24576 // W}')
    line = lambda srd, so, k: f'  buffer_load_dwordx4 {v(ACC,4)}, {v(ZC)}, {s(srd,4)}, {s(so)} offen offset:{(k % 4) * 1024}'
    pfl = []
    for k in range(24 // W):
        if k % 4 == 0 and k: pfl.append(f'  s_add_u32 {s(sPK)}, {s(sPK)}, 4096')
        pfl += [line(SKS, sPK, k), line(SKZ, sPK, k)]
        if k < 8 // W: pfl += [line(SVS, sPV, k), line(SVZ, sPV, k)]
    nissued = [0]
    def issue_pf(cnt):
        while pfl and cnt > 0:
            x = pfl.pop(0)
            if 'buffer_load' in x:
                if nissued[0] >= pfw: A(f'  s_waitcnt vmcnt({pfw - 1})')
                nissued[0] += 1; cnt -= 1
            A(x)
    A('  s_waitcnt lgkmcnt(0)')
    make_srds(0, 4)
    issue_pf(8)
    make_srds(4, 9)
    A(f'  s_mov_b64 {s(sOUT,2)}, {s(PT+14,2)}')
    A(f'  s_mov_b32 {s(sLOW)}, 0x0f0f0f0f')
    A(f'  s_mov_b32 {s(sLOW+1)}, 0x0f0f0f0f')
    A(f'  s_mov_b32 {s(sLOW+2)}, 0xffff')
    A(f'  s_mov_b32 {s(sLOW+3)}, 0xffff')
    map_unit(sF, 0)
    offsets(ICON)
    A(f'  s_mov_b32 {s(sCUR)}, {s(sNXT)}')
    q_loads()
    A(main_load(0, SK, sCUR))
    issue_pf(pfw - nissued[0])
    A('  s_barrier')
    A('  s_mov_b64 vcc, 0')
    A(f'  v_lshlrev_b32 {v(X0)}, 4, {v(n)}')
    stream_consts(g, DUP, DOWN, DCON, X0)
    A(f'  v_and_b32 {v(X1)}, 1, {v(g)}')
    A(f'  v_mul_u32_u24 {v(X1)}, 86, {v(X1)}')
    A(f'  v_lshl_add_u32 {v(ICV)}, {v(n)}, 1, {v(X1)}')
    A(f'  v_subrev_u32 {v(ICV)}, 86, {v(ICV)}')
    A(f'  v_lshlrev_b32 {v(VBP)}, 4, {v(g)}')
    A(f'  v_lshrrev_b32 {v(X0)}, 2, v0')
    A(f'  s_mul_i32 {s(sT)}, s3, 384')
    A(f'  v_lshl_add_u32 {v(VL1)}, {v(X0)}, 4, {s(sT)}')
    A(f'  v_lshl_add_u32 {v(VL2)}, {v(X0)}, 3, {s(sT)}')
    A(f'  s_mul_i32 {s(sT)}, s3, 3072')
    A(f'  s_add_u32 {s(sT)}, {s(sT)}, {LDS_ACC}')
    A(f'  v_lshl_add_u32 {v(VFL)}, v0, 4, {s(sT)}')
    A(f'  s_lshl_b32 {s(sT)}, s3, 5')
    A(f'  s_add_u32 {s(sT)}, {s(sT)}, {LDS_ACC + W * 3072}')
    A(f'  v_lshl_add_u32 {v(VST)}, {v(a)}, 3, {s(sT)}')
    A(f'  s_lshl2_add_u32 {s(sT)}, s3, {F_PRG}')
    A(f'  v_mov_b32 {v(VPR)}, {s(sT)}')
    A(f'  v_mov_b32 {v(ZN)}, 0')
    A(f'  v_mov_b32 {v(SN)}, 0')
    A(f'  v_mov_b32 {v(VNI)}, 0xff800000')
    A(f'  v_mov_b32 {v(AL)}, 1')
    A(f'  s_mov_b32 {s(sMSK)}, 0xffff0000')
    A(f'  s_mov_b32 {s(sL2E)}, 0x3fb8aa3b')
    for h in range(2):
        A(f'  s_mov_b32 {s(sSCL+h)}, 0x3d93cd3a')
    for j in range(4):
        A(f'  s_mov_b32 {s(sMJ+2*j)}, {hex(0x11111111 << j)}')
        A(f'  s_mov_b32 {s(sMJ+2*j+1)}, {hex(0x11111111 << j)}')
    if tl:
        A(f'  s_mov_b32 {s(sTL)}, 0')
        A(f'  v_mov_b32 {v(TL)}, 0')
    issue_pf(99)
    A(f'  s_mov_b32 {s(sHC)}, {s(sHN)}')
    kscale_loads()
    for k in range(1, D):
        A(f'  s_waitcnt vmcnt({max(DN, k) - 1 + 6})')
        A(main_load(k, SK, sCUR))
    A(f'  s_waitcnt vmcnt({D - 1})')
    A(f'  ds_write_b32 {v(VPR)}, {v(AL)}')

    def wait_step(k, nsmall, tag, ps):
        cnt = lambda d: d - 1 + (nsmall if k - d <= ps < k else 0)
        A(f'  s_waitcnt vmcnt({cnt(D)})')
        if k % bev == 0:
            A(f'  s_cbranch_vccnz L_{tag}')
            A(f'  s_waitcnt vmcnt({cnt(DN)})')
            A(f'L_{tag}:')
    def mode(k):
        if k == 0: A(f'  ds_read_b32 {v(VBS)}, {v(VPR)} offset:{F_BST - F_PRG}')
        if k == 1:
            A('  s_waitcnt lgkmcnt(0)')
            A(f'  v_cmp_lt_u32 vcc, {s(sG)}, {v(VBS)}')
    def dequant(X, src, z, sc, zmod, smod):
        r = [f'  v_cvt_f32_i32 {v(X+j)}, {v(src+j)}' for j in range(4)]
        r += [f'  v_pk_add_f32 {v(X+2*h,2)}, {v(X+2*h,2)}, {z[h]} {zmod}neg_lo:[0,1] neg_hi:[0,1]' for h in range(2)]
        r2 = [f'  v_cvt_pk_bf16_f32 {v(X+j)}, 0, {v(X+j)}' for j in range(4)]
        r2 += [f'  v_pk_mul_f32 {v(X+2*h,2)}, {v(X+2*h,2)}, {sc[h]} {smod}'.rstrip() for h in range(2)]
        return r, r2
    def kreduce(ss):
        d = S + (ss & 1)
        q = lambda j: f'quad_perm:[{j},{j},{j},{j}] row_mask:0xf bank_mask:0xf'
        r = [f'  v_mov_b32_dpp {v(X0)}, {v(SD)} {q(0)}',
             f'  v_mov_b32_dpp {v(X1)}, {v(SD+2)} {q(2)}',
             f'  v_add_f32_dpp {v(X0)}, {v(SD+1)}, {v(X0)} {q(1)}',
             f'  v_add_f32_dpp {v(X1)}, {v(SD+3)}, {v(X1)} {q(3)}',
             f'  v_add_f32 {v(d)}, {v(X0)}, {v(X1)}']
        if ss == 0: r.append(f'  v_cndmask_b32 {v(d)}, {v(d)}, {v(VNI)}, {s(sL0,2)}')
        if ss == 10: r.append(f'  v_cndmask_b32 {v(d)}, {v(d)}, {v(VNI)}, {s(sL10,2)}')
        if ss & 1 or ss == 10:
            r += [f'  v_cvt_pk_bf16_f32 {v(S)}, 0, {v(S)}',
                  f'  v_cvt_pk_bf16_f32 {v(S+1)}, 0, {v(S+1)}',
                  f'  v_pk_mul_f32 {v(S,2)}, {v(S,2)}, {s(sSCL,2)}',
                  f'  v_cvt_pk_bf16_f32 {v(LG+(ss>>1))}, {v(S)}, {v(S+1)}']
        return r
    def lds_word(dst, addr):
        A(f'  v_mov_b32 {v(X0)}, {addr}')
        A(f'  ds_read_b32 {v(X0)}, {v(X0)}')
        A('  s_waitcnt lgkmcnt(0)')
        A(f'  v_readfirstlane_b32 {s(dst)}, {v(X0)}')

    mf32 = f'  v_mfma_f32_16x16x32_bf16 {v(SD,4)}, {v(KA,4)}, {v(QB,4)}, 0'
    mf16 = f'  v_mfma_f32_16x16x16_bf16 {v(SD,4)}, {v(KA+4,2)}, {v(QB+4,2)}, {v(SD,4)}'
    def diag_mark(tag, base_):
        if diagat < 0: return
        A(f'  s_and_b32 {s(sT)}, {s(sF)}, -4')
        A(f'  s_cmp_lg_u32 {s(sT)}, {diagat - base_}')
        A(f'  s_cbranch_scc1 L_dm{tag}')
        A('  s_memrealtime s[6:7]')
        A('  s_waitcnt lgkmcnt(0)')
        A(f'L_dm{tag}:')
    def k_unit(u):
        o = NST * u
        if u == 0: diag_mark('k', 0)
        if u == 0: stamp()
        short_masks(DOWN, sL0, sL10, sLOW + 2)
        A(f'  s_mov_b32 {s(sG)}, {s(sF)}')
        A(f'  s_add_u32 {s(sF)}, {s(sF)}, {W}')
        for k in range(NST):
            ss, i = divmod(k, 3)
            mode(k)
            if k == SW:
                if u == U - 1:
                    C('the last K unit prefetches the first V unit')
                    A(f'  s_cmp_lt_u32 {s(sF)}, {NF}')
                    A('  s_cbranch_scc1 L_k_keep')
                    map_unit(3, 1)
                    A(f'  s_mov_b32 {s(SI)}, {s(SV)}')
                    A(f'  s_mov_b32 {s(SI+1)}, {s(SV+1)}')
                    vscale_loads()
                    A(f'  v_mov_b32 {v(ICON)}, {v(DCON)}')
                    A('L_k_keep:')
                offsets(ICON)
            wait_step(k, 6, f'kw{u}_{k}', PSK)
            A(main_load(o + k + D, SK, sCUR) if k < SW else main_load(o + k + D, SI, sNXT))
            if i == 2: A(mf32)
            if i == 0 and ss > 0: A(mf16)
            if ss == 0:
                for raw, dst in ((KZR, KZ), (KSR, KS)):
                    for h in range(2):
                        A(f'  v_lshlrev_b32 {v(dst+4*i+2*h)}, 16, {v(raw+2*i+h)}')
                        A(f'  v_and_b32 {v(dst+4*i+2*h+1)}, {s(sMSK)}, {v(raw+2*i+h)}')
                for h in range(2):
                    A(f'  v_mov_b32 {v(QB+2*i+h)}, {v(QN+2*i+h)}')
            c, rest = dequant(T, slot(o + k), (v(KZ+4*i,2), v(KZ+4*i+2,2)), (v(KS+4*i,2), v(KS+4*i+2,2)), '', '')
            for x in c: A(x)
            if k == PSK:
                C('next unit: class (needs the vote once), scales, q on a head change')
                A(f'  s_cmp_lt_u32 {s(sF)}, {s(sGATE)}')
                A(f'  s_cbranch_scc1 L_k_known{u}')
                A(f'L_k_spin{u}:')
                lds_word(sDEC, F_DEC)
                A(f'  s_cmp_eq_u32 {s(sDEC)}, 0')
                A(f'  s_cbranch_scc1 L_k_spin{u}')
                A(f'  s_mov_b32 {s(sGATE)}, -1')
                A(f'L_k_known{u}:')
                map_unit(sF, 0)
                A(f'  s_cmp_eq_u32 {s(sHN)}, {s(sHC)}')
                A(f'  s_cbranch_scc1 L_k_sameq{u}')
                q_loads()
                A(f'  s_mov_b32 {s(sHC)}, {s(sHN)}')
                A(f'L_k_sameq{u}:')
                kscale_loads()
            rest += [f'  v_cvt_pk_bf16_f32 {v(KA+2*i)}, {v(T)}, {v(T+1)}',
                     f'  v_cvt_pk_bf16_f32 {v(KA+2*i+1)}, {v(T+2)}, {v(T+3)}']
            if i == 1 and ss > 0:
                r = kreduce(ss - 1)
                rest = r[:2] + rest[:2] + r[2:4] + rest[2:4] + r[4:5] + rest[4:]
                pend = r[5:]
            elif i == 2 and ss > 0:
                rest = merge(rest, pend)
            for x in rest: A(x)
        A(f'  s_mov_b32 {s(sCUR)}, {s(sNXT)}')
        A(f'  v_mov_b32 {v(AL)}, {s(sF)}')
        A(mf16)
        A(f'  ds_write_b128 {v(VL1)}, {v(LG,4)}')
        A(f'  v_add_u32 {v(VL1)}, {384 * W}, {v(VL1)}')
        for x in kreduce(10): A(x)
        A(f'  ds_write_b64 {v(VL2)}, {v(LG+4,2)} offset:256')
        A(f'  ds_write_b32 {v(VPR)}, {v(AL)}')
        A(f'  v_add_u32 {v(VL2)}, {384 * W}, {v(VL2)}')
    C('---------------- K loop: two units per trip')
    A('L_k:')
    for u in range(U): k_unit(u)
    A(f'  s_cmp_lt_u32 {s(sF)}, {NF}')
    A('  s_cbranch_scc1 L_k')

    def flush():
        C('park the partial result of the finished head segment in slot 2*(head&1) + (segment ends the head)')
        A(f'  s_and_b32 {s(sT)}, {s(sQC)}, 15')
        A(f'  s_cmp_ge_u32 {s(sT)}, 12')
        A(f'  s_cselect_b32 {s(sT)}, {SEG}, 0')
        A(f'  s_bitcmp1_b32 {s(sQC)}, 4')
        A(f'  s_cselect_b32 {s(sT+1)}, {2 * SEG}, 0')
        A(f'  s_add_u32 {s(sT)}, {s(sT)}, {s(sT+1)}')
        A(f'  v_mov_b32 {v(X1)}, {v(LS)}')
        A(f'  v_add_u32 {v(X0)}, {s(sT)}, {v(VFL)}')
        A(f'  v_add_u32 {v(ALQ)}, {s(sT)}, {v(VST)}')
        A(f'  v_permlane32_swap_b32 {v(LS)}, {v(X1)}')
        A(f'  v_add_f32 {v(LS)}, {v(LS)}, {v(X1)}')
        A(f'  v_mov_b32 {v(X1)}, {v(LS)}')
        for i in range(3):
            A(f'  ds_write_b128 {v(X0)}, {v(ACC+4*i,4)} offset:{1024*i}')
        A(f'  v_permlane16_swap_b32 {v(LS)}, {v(X1)}')
        A(f'  v_add_f32 {v(LS)}, {v(LS)}, {v(X1)}')
        A(f'  ds_write_b64 {v(ALQ)}, {v(NB,2)}')
    def import_gate(tag):
        A(f'  s_cmp_lt_u32 {s(sF)}, {s(sGATE)}')
        A(f'  s_cbranch_scc1 L_{tag}_ok')
        A(f'L_{tag}_spin:')
        lds_word(sGATE, F_IMP)
        A(f'  s_cmp_lt_u32 {s(sF)}, {s(sGATE)}')
        A(f'  s_cbranch_scc0 L_{tag}_spin')
        A(f'L_{tag}_ok:')

    C('---------------- V loop: two units per trip')
    A(f'  v_subrev_u32 {v(VL1)}, {IMG - 32 * 384 * kord}, {v(VL1)}')
    A(f'  v_subrev_u32 {v(VL2)}, {IMG - 32 * 384 * kord}, {v(VL2)}')
    A(f'  s_mov_b32 {s(sF)}, s3')
    A(f'  s_mov_b32 {s(sHC)}, {s(sHN)}')
    A(f'  s_mov_b32 {s(sGATE)}, 0')
    A(f'  s_mov_b32 {s(SQ)}, {s(sOUT)}')
    A(f'  s_and_b32 {s(SQ+1)}, {s(sOUT+1)}, 0xffff')
    import_gate('v0')
    A(f'  ds_read_b128 {v(LG,4)}, {v(VL1)}')
    A(f'  ds_read_b64 {v(LG+4,2)}, {v(VL2)} offset:256')
    reset_state()
    def v_unit(u):
        o = NST * u
        A(f'L_v{u}:')
        if u == 0: diag_mark('v', NF)
        if u == 0: stamp()
        A(f'  s_add_u32 {s(sG)}, {s(sF)}, {NF}')
        A(f'  v_mov_b32 {v(AL)}, {s(sG)}')
        A(f'  s_mov_b32 {s(sQC)}, {s(sQ3)}')
        A(f'  ds_write_b32 {v(VPR)}, {v(AL)}')
        A(f'  s_add_u32 {s(sF)}, {s(sF)}, {W}')
        import_gate(f'v1{u}')
        map_unit(sF, 1)
        A(f'  s_cmp_lt_u32 {s(sF)}, {NF}')
        A(f'  s_cselect_b32 {s(sNXT)}, {s(sNXT)}, {TOTAL}')
        stp = 384 * W
        if kord and u == U - 1:
            stp = s(sL0)
            A(f'  s_lshr_b32 {s(sT)}, {s(sF)}, 1')
            A(f'  s_cmp_eq_u32 {s(sT)}, 32')
            A(f'  s_cselect_b32 {stp}, {384 * W - IMG}, {s(s768)}')
        prep = []
        for k in range(11):
            prep.append(f'  v_lshlrev_b32 {v(E+k)}, 16, {v(LG+k//2)}' if k % 2 == 0 else f'  v_and_b32 {v(E+k)}, {s(sMSK)}, {v(LG+k//2)}')
        prep += [f'  v_add_u32 {v(VL1)}, {stp}, {v(VL1)}',
                 f'  v_add_u32 {v(VL2)}, {stp}, {v(VL2)}',
                 f'  v_max3_f32 {v(X0)}, {v(E)}, {v(E+1)}, {v(E+2)}',
                 f'  ds_read_b128 {v(LG,4)}, {v(VL1)}',
                 f'  ds_read_b64 {v(LG+4,2)}, {v(VL2)} offset:256',
                 f'  v_max3_f32 {v(X1)}, {v(E+3)}, {v(E+4)}, {v(E+5)}',
                 f'  v_max3_f32 {v(X0)}, {v(X0)}, {v(E+6)}, {v(E+7)}',
                 f'  v_max3_f32 {v(X1)}, {v(X1)}, {v(E+8)}, {v(E+9)}',
                 f'  v_max3_f32 {v(X0)}, {v(X0)}, {v(E+10)}, {v(M)}',
                 f'  v_max_f32 {v(X0)}, {v(X0)}, {v(X1)}',
                 f'  v_mov_b32 {v(X1)}, {v(X0)}',
                 f'  v_permlane32_swap_b32 {v(X0)}, {v(X1)}',
                 f'  v_max_f32 {v(X0)}, {v(X0)}, {v(X1)}',
                 f'  v_mov_b32 {v(X1)}, {v(X0)}',
                 f'  v_permlane16_swap_b32 {v(X0)}, {v(X1)}',
                 f'  v_max_f32 {v(M)}, {v(X0)}, {v(X1)}',
                 f'  v_mul_f32 {v(X0)}, {s(sL2E)}, {v(M)}',
                 f'  v_add_f32 {v(AL)}, {v(X0)}, {v(NB)}',
                 f'  v_sub_f32 {v(NB)}, 0, {v(X0)}',
                 f'  v_exp_f32 {v(AL)}, -{v(AL)}',
                 f'  ds_bpermute_b32 {v(ALQ)}, {v(VBP)}, {v(AL)}']
        for k in range(11):
            prep += [f'  v_fma_f32 {v(E+k)}, {v(E+k)}, {s(sL2E)}, {v(NB)}', f'  v_exp_f32 {v(E+k)}, {v(E+k)}']
        prep += [f'  v_add_f32 {v(X0)}, {v(E)}, {v(E+1)}', f'  v_add_f32 {v(X1)}, {v(E+2)}, {v(E+3)}']
        for k in range(4, 11):
            x = X0 if k % 2 == 0 else X1
            prep.append(f'  v_add_f32 {v(x)}, {v(x)}, {v(E+k)}')
        prep += [f'  v_add_f32 {v(X0)}, {v(X0)}, {v(X1)}',
                 f'  v_fma_f32 {v(LS)}, {v(LS)}, {v(AL)}, {v(X0)}']
        for k in range(6):
            prep.append(f'  v_cvt_pk_bf16_f32 {v(PP+k)}, {v(E+2*k)}, {v(E+2*k+1) if k < 5 else 0}')
        for j in range(4):
            for k in range(4):
                prep.append(f'  v_cndmask_b32 {v(AJ+4*j+k)}, 0, {v(PP+k)}, {s(sMJ+2*j,2)}')
        prep.append('  s_waitcnt lgkmcnt(0)')
        for k in range(12):
            prep.append(f'  v_mul_f32 {v(ACC+k)}, {v(ALQ)}, {v(ACC+k)}')
        prep2 = [f'  v_cndmask_b32 {v(AK+2*j+k)}, 0, {v(PP+4+k)}, {s(sMJ+2*j,2)}' for j in range(4) for k in range(2)]
        for k in range(NST):
            ss, i = divmod(k, 3)
            mode(k)
            if k == SW: offsets(DCON)
            wait_step(k, 2, f'vw{u}_{k}', PSV)
            A(main_load(o + k + D, SV, sCUR if k < SW else sNXT))
            if k == 0:
                A(f'  v_mov_b32 {v(ZC)}, {v(ZN)}')
                A(f'  v_mov_b32 {v(SC)}, {v(SN)}')
            X = TV + 4 * i if ss % 2 == 0 else T
            c, rest = dequant(X, slot(o + k), (v(ZS,2), v(ZS,2)), (v(ZS,2), v(ZS,2)), 'op_sel_hi:[1,0] ', 'op_sel:[0,1]')
            if i == 0:
                c[2:2] = [f'  v_mov_b32_dpp {v(ZS)}, {v(ZC)} row_newbcast:{ss} row_mask:0xf bank_mask:0xf',
                          f'  v_mov_b32_dpp {v(ZS+1)}, {v(SC)} row_newbcast:{ss} row_mask:0xf bank_mask:0xf']
            for x in c: A(x)
            if k == PSV: vscale_loads()
            if ss % 2 == 1:
                rest += [f'  v_cvt_pk_bf16_f32 {v(BV+16*i+4*j+((ss>>1)&3))}, {v(TV+4*i+j)}, {v(T+j)}' for j in range(4)]
            if ss == 10:
                rest += [f'  v_cvt_pk_bf16_f32 {v(BV+16*i+4*j+1)}, {v(TV+4*i+j)}, 0' for j in range(4)]
            side = []
            if k >= 1: side, prep = prep[:5], prep[5:]
            if k == 20: assert not prep
            if k == 23: prep = prep2
            for x in merge(rest, side): A(x)
            if ss == 7:
                for j in range(4):
                    A(f'  v_mfma_f32_16x16x32_bf16 {v(ACC+4*i,4)}, {v(AJ+4*j,4)}, {v(BV+16*i+4*j,4)}, {v(ACC+4*i,4)}')
            if ss == 10:
                assert not prep
                for j in range(4):
                    A(f'  v_mfma_f32_16x16x16_bf16 {v(ACC+4*i,4)}, {v(AK+2*j,2)}, {v(BV+16*i+4*j,2)}, {v(ACC+4*i,4)}')
        A(f'  s_mov_b32 {s(sCUR)}, {s(sNXT)}')
        if u == U - 1:
            A(f'  s_cmp_ge_u32 {s(sF)}, {NF}')
            A('  s_cbranch_scc1 L_v_done')
            A(f'  s_cmp_eq_u32 {s(sHN)}, {s(sHC)}')
            A('  s_cbranch_scc1 L_v0')
            A(f'  s_mov_b32 {s(sHC)}, {s(sHN)}')
            flush()
            A('  s_waitcnt lgkmcnt(0)')
            reset_state()
            A('  s_branch L_v0')
    assert 16 % (W * U) == 0
    for u in range(U): v_unit(u)
    A('L_v_done:')
    stamp()
    flush()
    C('---------------- all three waves: wave i finishes dims 64i..64i+63 of the four segments')
    A('L_finish:')
    AC = (base + 3) // 4 * 4
    OF = AC; ST = AC + 8; PA = ST + 16; FR = PA + 32
    nv = max(nv, FR + 24)
    TB, VA, VS_, VG, VH = E, E + 4, E + 6, E + 8, E + 9
    TAG = OF + 7
    A(f'  v_mov_b32 {v(X0)}, {F_END}')
    A(f'  ds_read_b128 {v(OF,4)}, {v(X0)}')
    A(f'  ds_read_b128 {v(OF+4,4)}, {v(X0)} offset:16')
    A(f'  s_mul_i32 {s(sT)}, {s(sRO)}, {SEG}')
    A(f'  s_lshl_b32 {s(sT+1)}, s3, 10')
    A(f'  v_lshl_add_u32 {v(VA)}, v0, 4, {s(sT+1)}')
    A(f'  v_lshrrev_b32 {v(X1)}, 4, v0')
    A(f'  v_lshlrev_b32 {v(VS_)}, 3, {v(X1)}')
    A(f'  v_add_u32 {v(VS_)}, {LDS_ACC + W * 3072}, {v(VS_)}')
    A(f'  s_sub_u32 {s(sG)}, {SEG}, {s(sT)}')
    A(f'  v_add_u32 {v(VA+1)}, {s(sG)}, {v(VA)}')
    A(f'  v_add_u32 {v(M)}, {s(sT)}, {v(VA)}')
    A(f'  s_sub_u32 {s(sG)}, {2 * SEG}, {s(sT)}')
    A(f'  v_add_u32 {v(ZN)}, {s(sG)}, {v(VS_)}')
    A(f'  s_add_u32 {s(sG)}, {s(sT)}, {SEG}')
    A(f'  v_add_u32 {v(SN)}, {s(sG)}, {v(VS_)}')
    A(f'  v_add_u32 {v(VS_+1)}, {3 * SEG}, {v(VS_)}')
    A(f'  s_mul_i32 {s(sT)}, s3, {PIECE}')
    A(f'  v_lshl_add_u32 {v(VG)}, v0, 4, {s(sT)}')
    A(f'  v_lshl_add_u32 {v(VH)}, {v(X1)}, {5 if fulls else 4}, {s(sT)}')
    if fulls:
        A(f'  v_and_b32 {v(AL)}, 1, v0')
        A(f'  v_lshl_add_u32 {v(VH)}, {v(AL)}, 4, {v(VH)}')
    A(f'  v_mul_u32_u24 {v(AL)}, 384, {v(X1)}')
    A(f'  v_and_b32 {v(X1)}, 15, v0')
    A(f'  v_lshl_add_u32 {v(AL)}, {v(X1)}, 3, {v(AL)}')
    A(f'  s_movk_i32 {s(sMSK)}, 0xff00')
    A(f'  s_mov_b32 {s(sL0)}, {"0x30003" if fulls else "0x10001"}')
    A(f'  s_mov_b32 {s(sL0+1)}, {"0x30003" if fulls else "0x10001"}')
    A(f'  s_mov_b32 {s(sL10)}, 0x0c0c0400')
    A(f'  s_mov_b32 {s(sL10+1)}, 0x05040100')
    A(f'  s_mov_b32 {s(sF)}, 0')
    A('  s_waitcnt vmcnt(0) lgkmcnt(0)')
    sO = 72
    def fetch(r):
        A(f'  buffer_load_dwordx4 {v(FR+8*r,4)}, {v(VG)}, {s(SWS,4)}, {s(sO+3+r)} offen sc1')
        A(f'  buffer_load_dwordx4 {v(FR+8*r+4,4)}, {v(VH)}, {s(SWS,4)}, {s(sO+3+r)} offen offset:1024 sc1')
    A('  s_barrier')
    slots = ((VA, 0, VS_), (VA, 3, VS_ + 1), (VA + 1, 1, ZN), (M, 1, SN))
    for j, (va_, sl, vs_) in enumerate(slots):
        A(f'  ds_read2_b64 {v(ST+4*j,4)}, {v(vs_)} offset1:4')
        for w in range(W):
            A(f'  ds_read_b128 {v(PA+8*j+4*w,4)}, {v(va_)} offset:{LDS_ACC + sl * SEG + 3072*w}')
    for k in range(7): A(f'  v_readfirstlane_b32 {s(sO+k)}, {v(OF+k)}')
    for k in range(4): A(f'  v_bfe_u32 {v(TB+k)}, {v(TAG)}, {8 * k}, 8')
    C('three segments are published, the fourth belongs to the head this workgroup owns')
    for j in range(4):
        st = ST + 4 * j; pa = PA + 8 * j
        A(f'  s_waitcnt lgkmcnt({3 * (3 - j)})')
        A(f'  v_min_f32 {v(X0)}, {v(st)}, {v(st+2)}')
        for w in range(2): A(f'  v_sub_f32 {v(st+2*w)}, {v(X0)}, {v(st+2*w)}')
        for w in range(2): A(f'  v_exp_f32 {v(st+2*w)}, {v(st+2*w)}')
        A(f'  v_mul_f32 {v(X1)}, {v(st)}, {v(st+1)}')
        for h in range(2): A(f'  v_pk_mul_f32 {v(pa+2*h,2)}, {v(pa+2*h,2)}, {v(st,2)} op_sel_hi:[1,0]')
        for h in range(2): A(f'  v_pk_fma_f32 {v(pa+2*h,2)}, {v(pa+4+2*h,2)}, {v(st+2,2)}, {v(pa+2*h,2)} op_sel_hi:[1,0,1]')
        A(f'  v_fma_f32 {v(pa+5)}, {v(st+2)}, {v(st+3)}, {v(X1)}')
        A(f'  v_mov_b32 {v(pa+4)}, {v(X0)}')
        if j < 3:
            for x in range(4): A(f'  v_and_or_b32 {v(pa+x)}, {v(pa+x)}, {s(sMSK)}, {v(TB+x)}')
            A(f'  v_mov_b32 {v(pa+7)}, {v(TAG)}')
            A(f'  buffer_store_dwordx4 {v(pa,4)}, {v(VG)}, {s(SWS,4)}, {s(sO+j)} offen sc1')
            A(f'  s_mov_b64 exec, {s(sL0,2)}')
            A(f'  buffer_store_dwordx4 {v(pa+4,4)}, {v(VH)}, {s(SWS,4)}, {s(sO+j)} offen offset:1024 sc1')
            A('  s_mov_b64 exec, -1')
        if j == 2:
            stamp()
            for r in range(3): fetch(r)
    A('  s_branch L_check')
    C('gather the three foreign records of the owned head; a granule counts once it carries this launch\'s tag')
    A('L_gather:')
    A(f'  s_add_u32 {s(sF)}, {s(sF)}, 1')
    A(f'  s_cmp_gt_u32 {s(sF)}, 200000')
    A('  s_cbranch_scc1 L_end')
    for r in range(3):
        A(f'  s_bitcmp0_b32 {s(sMISS)}, {r}')
        A(f'  s_cbranch_scc1 L_have{r}')
        fetch(r)
        A(f'L_have{r}:')
    A('L_check:')
    A(f'  s_mov_b32 {s(sMISS)}, 0')
    A('  s_waitcnt vmcnt(0)')
    for r in range(3):
        b = FR + 8 * r
        A(f'  v_perm_b32 {v(X0)}, {v(b+1)}, {v(b)}, {s(sL10)}')
        A(f'  v_perm_b32 {v(X1)}, {v(b+3)}, {v(b+2)}, {s(sL10)}')
        A(f'  v_cmp_ne_u32 vcc, {v(TAG)}, {v(b+7)}')
        A(f'  v_perm_b32 {v(X0)}, {v(X1)}, {v(X0)}, {s(sL10+1)}')
        A(f'  v_cmp_ne_u32 {s(sT,2)}, {v(TAG)}, {v(X0)}')
        A(f'  s_or_b64 {s(sT,2)}, {s(sT,2)}, vcc')
        A(f'  s_cselect_b32 {s(sT)}, {1 << r}, 0')
        A(f'  s_or_b32 {s(sMISS)}, {s(sMISS)}, {s(sT)}')
    A('  s_cbranch_scc1 L_gather')
    stamp()
    C('(own + partner) + (neighbour pair): products are rounded separately, so the sum does not depend on who had which class')
    B4 = [PA + 24, FR, FR + 8, FR + 16]
    A(f'  v_min_f32 {v(X0)}, {v(B4[0]+4)}, {v(B4[1]+4)}')
    A(f'  v_min3_f32 {v(X0)}, {v(X0)}, {v(B4[2]+4)}, {v(B4[3]+4)}')
    for b in B4: A(f'  v_sub_f32 {v(b+4)}, {v(X0)}, {v(b+4)}')
    for b in B4: A(f'  v_exp_f32 {v(b+4)}, {v(b+4)}')
    for b in B4:
        for x in range(4): A(f'  v_and_b32 {v(b+x)}, {s(sMSK)}, {v(b+x)}')
    for b in B4: A(f'  v_mul_f32 {v(b+5)}, {v(b+4)}, {v(b+5)}')
    A(f'  v_add_f32 {v(B4[0]+5)}, {v(B4[0]+5)}, {v(B4[1]+5)}')
    A(f'  v_add_f32 {v(B4[2]+5)}, {v(B4[2]+5)}, {v(B4[3]+5)}')
    A(f'  v_add_f32 {v(X0)}, {v(B4[0]+5)}, {v(B4[2]+5)}')
    A(f'  v_rcp_f32 {v(X0)}, {v(X0)}')
    A(f'  s_lshl_b32 {s(sT)}, s3, 7')
    A(f'  s_add_u32 {s(sT)}, {s(sT)}, {s(sO+6)}')
    for x in (0, 2):
        for b in B4: A(f'  v_pk_mul_f32 {v(b+x,2)}, {v(b+x,2)}, {v(b+4,2)} op_sel_hi:[1,0]')
        A(f'  v_pk_add_f32 {v(B4[0]+x,2)}, {v(B4[0]+x,2)}, {v(B4[1]+x,2)}')
        A(f'  v_pk_add_f32 {v(B4[2]+x,2)}, {v(B4[2]+x,2)}, {v(B4[3]+x,2)}')
        A(f'  v_pk_add_f32 {v(B4[0]+x,2)}, {v(B4[0]+x,2)}, {v(B4[2]+x,2)}')
        A(f'  v_pk_mul_f32 {v(B4[0]+x,2)}, {v(B4[0]+x,2)}, {v(X0,2)} op_sel_hi:[1,0]')
        A(f'  v_cvt_pk_bf16_f32 {v(ACC+x//2)}, {v(B4[0]+x)}, {v(B4[0]+x+1)}')
    A(f'  buffer_store_dwordx2 {v(ACC,2)}, {v(AL)}, {s(SQ,4)}, {s(sT)} offen')
    A('L_fin:')
    if diagpad:
        A('L_diag:')
        A(f'  s_memrealtime {s(sBIG,2)}')
        A('  s_waitcnt lgkmcnt(0)')
        A(f'  s_sub_u32 {s(sBIG)}, {s(sBIG)}, s6')
        A(f'  s_cmp_lt_u32 {s(sBIG)}, {diagpad * 100}')
        A('  s_cbranch_scc1 L_diag')
    if tl:
        A(f'  s_mul_i32 {s(sT)}, s2, {W+1}')
        A(f'  s_add_u32 {s(sT)}, {s(sT)}, s3')
        A(f'  s_lshl_b32 {s(sT)}, {s(sT)}, 8')
        A(f'  s_add_u32 {s(sT)}, {s(sT)}, 0x10000')
        A(f'  v_lshl_add_u32 {v(E)}, v0, 2, {s(sT)}')
        A(f'  global_store_dword {v(E)}, {v(TL)}, {s(sWS,2)}')
    if stamps:
        A('  s_waitcnt vmcnt(0)')
        A(f'  s_memrealtime {s(sBIG,2)}')
        A(f'  s_getreg_b32 {s(sSM)}, hwreg(HW_REG_XCC_ID)')
        A(f'  s_mul_i32 {s(sT)}, s2, {W+1}')
        A(f'  s_add_u32 {s(sT)}, {s(sT)}, s3')
        A(f'  s_lshl_b32 {s(sT)}, {s(sT)}, 4')
        A('  s_waitcnt lgkmcnt(0)')
        A(f'  v_mov_b32 {v(RING)}, s6')
        A(f'  v_mov_b32 {v(RING+1)}, {s(sBIG)}')
        A(f'  v_mov_b32 {v(RING+2)}, {s(sSM)}')
        A(f'  v_mov_b32 {v(RING+3)}, {s(sDEC)}')
        A(f'  v_mov_b32 {v(X0)}, {s(sT)}')
        A('  s_mov_b64 exec, 1')
        A(f'  global_store_dwordx4 {v(X0)}, {v(RING,4)}, {s(sWS,2)}')
    A('L_end:')
    A('  s_endpgm')

    C('================= helper wave')
    A('L_helper:')
    if tl:
        A(f'  s_mov_b32 {s(sTL)}, 0')
        A(f'  v_mov_b32 {v(TL)}, 0')
    hA, hZ, hO, h1, h2, h3, hD = 1, 2, 3, 4, 5, 6, 8
    hP, hQ, hC, hX, hW, hU, hT = hD + 96, hD + 97, hD + 98, hD + 100, hD + 104, hD + 105, hD + 106
    assert hT + 1 < TL
    A(f'  v_lshlrev_b32 {v(hA)}, 2, v0')
    A(f'  v_add_u32 {v(hA)}, {LDS_F}, {v(hA)}')
    A(f'  v_mov_b32 {v(hZ)}, 0')
    A('  s_mov_b64 exec, 0xff')
    A(f'  ds_write_b32 {v(hA)}, {v(hZ)}')
    A('  s_mov_b64 exec, -1')
    A('  s_waitcnt lgkmcnt(0)')
    make_srds(4, 9)
    A(f'  s_mov_b32 {s(SQ)}, {s(PT+14)}')
    A(f'  s_and_b32 {s(SQ+1)}, {s(PT+15)}, 0xffff')
    A('  s_barrier')
    sOF, sN0, sV0, sJ, sSF, sA, sB, sX, sCNT, sME, sPA, sFA, sFS, sQD = 44, 45, 48, 50, 52, 54, 56, 58, 59, 60, 61, 62, 63, 64
    sT0, sNON, sCP, sCA, sUP, sRET, sSUB = 72, 74, 76, 77, 78, 84, 86
    A(f'  s_memrealtime {s(sT0,2)}')
    def code_touch(tag):
        A(f'  s_lshr_b32 {s(sT)}, s2, 3')
        A(f'  s_cmp_lt_u32 {s(sT)}, (L_code_end - L_k) / 1024')
        A(f'  s_cbranch_scc0 L_h_ct{tag}')
        A(f'  global_load_dwordx4 {v(hX,4)}, {v(hC,2)}, off')
        A(f'L_h_ct{tag}:')
    C('workgroup i reads kilobyte i/8 of this kernel\'s code so that first instruction fetches hit L2')
    A(f'  s_getpc_b64 {s(sA,2)}')
    A('L_h_pc:')
    A(f'  s_add_u32 {s(sSUB)}, {s(sA)}, L_h_cp - L_h_pc')
    A(f'  s_addc_u32 {s(sSUB+1)}, {s(sA+1)}, 0')
    A(f'  s_sub_u32 {s(sA)}, {s(sA)}, L_h_pc - L_k')
    A(f'  s_subb_u32 {s(sA+1)}, {s(sA+1)}, 0')
    A(f'  s_and_b32 {s(sA)}, {s(sA)}, -16')
    A(f'  s_lshr_b32 {s(sT)}, s2, 3')
    A(f'  s_lshl_b32 {s(sT)}, {s(sT)}, 10')
    A(f'  v_lshl_add_u32 {v(hC)}, v0, 4, {s(sT)}')
    A(f'  v_mov_b32 {v(hC+1)}, {s(sA+1)}')
    A(f'  v_add_co_u32 {v(hC)}, vcc, {s(sA)}, {v(hC)}')
    A(f'  v_addc_co_u32 {v(hC+1)}, vcc, 0, {v(hC+1)}, vcc')
    code_touch('a')
    A(f'  s_lshr_b32 {s(sT)}, s2, 4')
    A(f'  s_and_b32 {s(sT)}, {s(sT)}, 8')
    A(f'  s_and_b32 {s(sT+1)}, s2, 7')
    A(f'  s_add_u32 {s(sT)}, {s(sT)}, {s(sT+1)}')
    A(f'  s_lshl_b32 {s(sT)}, {s(sT)}, {cps}')
    A(f'  v_lshl_add_u32 {v(hP)}, v0, 3, {s(sT)}')
    A(f'  v_bfe_u32 {v(hQ)}, v0, 1, {4 if npub == 16 else 3}')
    A(f'  v_lshlrev_b32 {v(hQ)}, {cps}, {v(hQ)}')
    A(f'  v_and_b32 {v(hW)}, 1, v0')
    A(f'  v_lshl_add_u32 {v(hQ)}, {v(hW)}, 3, {v(hQ)}')
    if cpx:
        assert cps == 7
        for r_ in (hP, hQ):
            A(f'  v_lshrrev_b32 {v(h1)}, 8, {v(r_)}')
            A(f'  v_and_b32 {v(h1)}, 7, {v(h1)}')
            A(f'  v_lshl_add_u32 {v(r_)}, {v(h1)}, 15, {v(r_)}')
    A(f'  v_and_b32 {v(hW)}, 1, v0')
    A(f'  v_lshlrev_b32 {v(hW)}, 2, {v(hW)}')
    A(f'  v_add_u32 {v(hW)}, {F_PRG}, {v(hW)}')
    A(f'  v_mov_b32 {v(hU)}, 0')
    A(f'  v_lshlrev_b32 {v(hO)}, 4, v0')
    A(f'  s_mov_b32 {s(sCP)}, {cp0}')
    A(f'  s_mov_b32 {s(sCA)}, {WS_CP}')
    sCI = 79
    if cpx: A(f'  s_mov_b32 {s(sCI)}, 0')
    def wait_progress(tag, lim, slp):
        A(f'L_h_prog{tag}:')
        A(f'  s_sleep {slp}')
        A(f'  ds_read_b32 {v(hD)}, {v(hW)}')
        A('  s_waitcnt lgkmcnt(0)')
        A(f'  v_cmp_gt_u32 vcc, {lim}, {v(hD)}')
        A('  s_cmp_lg_u32 vcc_lo, 0')
        A(f'  s_cbranch_scc1 L_h_prog{tag}')
    def lds_set(addr, val):
        A(f'  v_mov_b32 {v(hA)}, {addr}')
        A(f'  v_mov_b32 {v(h2)}, {val}')
        A(f'  ds_write_b32 {v(hA)}, {v(h2)}')
    C('vote word in d_debug: six 6-bit tallies (class near die 0 in even pages, per slab of qk and qv), four 4-bit tallies')
    C(f'(die of role 0 per wg&3) and the voter count in the top 12 bits; {7 * NV} workgroups vote')
    A(f'  s_getreg_b32 {s(sJ)}, hwreg(HW_REG_XCC_ID)')
    A(f'  s_bfe_u32 {s(sJ)}, {s(sJ)}, 0x10002')
    A(f'  s_bfe_u32 {s(sSF)}, s2, 0x30003')
    A(f'  s_cmp_eq_u32 {s(sSF)}, 7')
    A('  s_cbranch_scc1 L_h_voted')
    A(f'  s_lshr_b32 {s(sT)}, s2, 6')
    A(f'  s_xor_b32 {s(sT)}, {s(sT)}, s2')
    A(f'  s_and_b32 {s(sT)}, {s(sT)}, {32 // NV - 1}')
    A('  s_cbranch_scc1 L_h_voted')
    A(f'  s_cmp_eq_u32 {s(sSF)}, 6')
    A('  s_cbranch_scc0 L_h_probe')
    A(f'  s_xor_b32 {s(sV0)}, {s(sJ)}, {s(sRO)}')
    A(f'  s_and_b32 {s(sSF)}, s2, 3')
    A(f'  s_lshl2_add_u32 {s(sSF)}, {s(sSF)}, 36')
    A('  s_branch L_h_vote')
    A('L_h_probe:')
    A(f'  s_cmp_ge_u32 {s(sSF)}, 3')
    A(f'  s_cselect_b32 {s(SI)}, {s(SV)}, {s(SK)}')
    A(f'  s_cselect_b32 {s(SI+1)}, {s(SV+1)}, {s(SK+1)}')
    A(f'  s_cselect_b32 {s(sT)}, 3, 0')
    A(f'  s_sub_u32 {s(sT)}, {s(sSF)}, {s(sT)}')
    A(f'  s_lshl_b32 {s(sT)}, {s(sT)}, 28')
    A(f'  s_add_u32 {s(sOF)}, {s(sPB)}, {s(sRO)}')
    A(f'  s_lshl_b32 {s(sOF)}, {s(sOF)}, 16')
    A(f'  s_add_u32 {s(sOF)}, {s(sOF)}, {s(sT)}')
    A(f'  s_add_u32 {s(sOF)}, {s(sOF)}, 0x1c0000')
    A(f'  s_mul_i32 {s(sT)}, s2, 0x2a95')
    A(f'  s_and_b32 {s(sT)}, {s(sT)}, 0x7f80')
    A(f'  s_add_u32 {s(sOF)}, {s(sOF)}, {s(sT)}')
    A(f'  s_add_u32 {s(sT)}, {s(sOF)}, 0x8000')
    A(f'  s_buffer_load_dword {s(sX)}, {s(SI,4)}, {s(sT)}')
    A(f'  s_mov_b32 {s(sN0)}, -1')
    A(f'  s_mov_b32 {s(sN0+1)}, -1')
    A(f'  s_mul_i32 {s(sSF)}, {s(sSF)}, 6')
    wait_progress('p', 1, 2)
    for k in range(NS):
        for c in ((0, 1) if k % 2 == 0 else (1, 0)):
            o = (((k & 1) << 14) | ((k >> 1 & 1) << 12) | ((k * 0x380) & 0xfff)) ^ (c << 13)
            A(f'  s_xor_b32 {s(sT)}, {s(sOF)}, {o}')
            A(f'  s_memtime {s(sA,2)}')
            A('  s_waitcnt lgkmcnt(0)')
            A(f'  s_buffer_load_dword {s(sX)}, {s(SI,4)}, {s(sT)}')
            A('  s_waitcnt lgkmcnt(0)')
            A(f'  s_memtime {s(sB,2)}')
            A('  s_waitcnt lgkmcnt(0)')
            A(f'  s_sub_u32 {s(sB)}, {s(sB)}, {s(sA)}')
            A(f'  s_min_u32 {s(sN0+c)}, {s(sN0+c)}, {s(sB)}')
    A(f'  s_cmp_lt_u32 {s(sN0+1)}, {s(sN0)}')
    A(f'  s_cselect_b32 {s(sV0)}, 1, 0')
    A(f'  s_lshr_b32 {s(sT)}, {s(sOF)}, 13')
    A(f'  s_xor_b32 {s(sT)}, {s(sT)}, s2')
    A(f'  s_xor_b32 {s(sT)}, {s(sT)}, {s(sJ)}')
    A(f'  s_and_b32 {s(sT)}, {s(sT)}, 1')
    A(f'  s_xor_b32 {s(sV0)}, {s(sV0)}, {s(sT)}')
    A('L_h_vote:')
    A(f'  s_mov_b32 {s(sV0+1)}, 0')
    A(f'  s_lshl_b64 {s(sV0,2)}, {s(sV0,2)}, {s(sSF)}')
    A(f'  s_or_b32 {s(sV0+1)}, {s(sV0+1)}, 0x100000')
    A(f'  s_atomic_add_x2 {s(sV0,2)}, {s(sDBG,2)}, 0')
    A('L_h_voted:')
    A('  s_waitcnt lgkmcnt(0)')
    C('launch nonce (tells this launch\'s hand-offs in ws from older contents)')
    A('  s_cmp_lg_u32 s2, 56')
    A('  s_cbranch_scc1 L_h_nonce')
    A(f'  s_lshl_b64 {s(sA,2)}, {s(sT0,2)}, 2')
    A(f'  s_atomic_add_x2 {s(sA,2)}, {s(sDBG,2)}, 8')
    A('  s_waitcnt lgkmcnt(0)')
    A('L_h_nonce:')
    stamp()
    def checkpoints(upto):
        A(f'  s_mov_b32 {s(sUP)}, {min(upto, last) - dly}')
        A(f'  s_swappc_b64 {s(sRET,2)}, {s(sSUB,2)}')
    def bounded(label, n):
        A(f'  s_add_u32 {s(sCNT)}, {s(sCNT)}, 1')
        A(f'  s_cmp_gt_u32 {s(sCNT)}, {n}')
        A(f'  s_cbranch_scc1 {label}')
    wait_progress('v', NWU - W, 8)
    A(f'  s_load_dwordx2 {s(sV0,2)}, {s(sDBG,2)}, 0')
    A(f'  s_mov_b32 {s(sCNT)}, 0')
    A('L_h_votes:')
    A('  s_waitcnt lgkmcnt(0)')
    A(f'  s_lshr_b32 {s(sT)}, {s(sV0+1)}, 20')
    A(f'  s_cmp_ge_u32 {s(sT)}, {7 * NV}')
    A('  s_cbranch_scc1 L_h_votes_done')
    bounded('L_h_votes_done', 8000)
    A('  s_sleep 64')
    A(f'  s_mov_b64 {s(sV0,2)}, 0')
    A(f'  s_atomic_or_x2 {s(sV0,2)}, {s(sDBG,2)}, 0 glc')
    A('  s_branch L_h_votes')
    A('L_h_votes_done:')
    A(f'  s_mov_b32 {s(sDEC)}, 0x80')
    for j in range(6):
        A(f'  s_bfe_u64 {s(sA,2)}, {s(sV0,2)}, {hex(0x60000 | (6 * j))}')
        A(f'  s_cmp_gt_u32 {s(sA)}, {NV // 2}')
        A(f'  s_cselect_b32 {s(sB)}, {1 << j}, 0')
        A(f'  s_or_b32 {s(sDEC)}, {s(sDEC)}, {s(sB)}')
    if force >= 0: A(f'  s_mov_b32 {s(sDEC)}, {0x80 | force}')
    A(f'  s_and_b32 {s(sT)}, s2, 3')
    A(f'  s_lshl2_add_u32 {s(sT)}, {s(sT)}, {4 + (NV // 4).bit_length() - 1}')
    A(f'  s_lshr_b32 {s(sA)}, {s(sV0+1)}, {s(sT)}')
    A(f'  s_xor_b32 {s(sA)}, {s(sA)}, s2')
    A(f'  s_xor_b32 {s(sA)}, {s(sA)}, {s(sRO)}')
    A(f'  s_and_b32 {s(sA)}, {s(sA)}, 1')
    A(f'  s_mul_i32 {s(sA)}, {s(sA)}, 63')
    A(f'  s_xor_b32 {s(sDEC)}, {s(sDEC)}, {s(sA)}')
    lds_set(F_DEC, s(sDEC))
    stamp()
    A(f'  s_load_dwordx2 {s(sNON,2)}, {s(sDBG,2)}, 8')
    A(f'  s_mov_b32 {s(sCNT)}, 0')
    A('L_h_getnonce:')
    A('  s_waitcnt lgkmcnt(0)')
    A(f'  s_cmp_lg_u64 {s(sNON,2)}, 0')
    A('  s_cbranch_scc1 L_h_gotnonce')
    bounded('L_h_gotnonce', 8000)
    A('  s_sleep 64')
    A(f'  s_atomic_or_x2 {s(sNON,2)}, {s(sDBG,2)}, 8 glc')
    A('  s_branch L_h_getnonce')
    A('L_h_gotnonce:')
    A(f'  s_lshr_b64 {s(sA,2)}, {s(sNON,2)}, 2')
    C('table for the finish: ws offsets of the records to publish (slots 0, 3, 2-role) and to gather, output offset, tag.')
    C('record = 8*(page/3) + 2*slot + class; the page of type t = page%3 lies in slab (2t + pair) % 3')
    A(f'  v_writelane_b32 {v(hD)}, {s(sA)}, 7')
    A(f'  s_lshr_b32 {s(sQD)}, {s(sPB)}, 5')
    A(f'  s_mov_b32 {s(sJ)}, 0xaaaaaaab')
    def rec_base(t):
        A(f'  s_add_u32 {s(sA)}, {s(sQD)}, {2 * t}')
        A(f'  s_mul_hi_u32 {s(sB)}, {s(sA)}, {s(sJ)}')
        A(f'  s_lshr_b32 {s(sB)}, {s(sB)}, 1')
        A(f'  s_mul_i32 {s(sB)}, {s(sB)}, 3')
        A(f'  s_sub_u32 {s(sA)}, {s(sA)}, {s(sB)}')
        A(f'  s_lshr_b32 {s(sB)}, {s(sDEC)}, {s(sA)}')
        A(f'  s_bfe_u32 {s(sB)}, {s(sB)}, 0x10003')
        A(f'  s_lshl_b32 {s(sA)}, {s(sA)}, 7')
        A(f'  s_add_u32 {s(sA)}, {s(sA)}, {s(sQD)}')
        A(f'  s_mul_hi_u32 {s(sA)}, {s(sA)}, {s(sJ)}')
        A(f'  s_lshr_b32 {s(sA)}, {s(sA)}, 1')
        A(f'  s_lshl3_add_u32 {s(sA)}, {s(sA)}, {s(sB)}')
    def put(lane, reg):
        A(f'  s_mul_i32 {s(sT)}, {s(reg)}, {REC}')
        A(f'  s_add_u32 {s(sT)}, {s(sT)}, {WS_REC}')
        A(f'  v_writelane_b32 {v(hD)}, {s(sT)}, {lane}')
    rec_base(0)
    put(0, sA)
    rec_base(2)
    A(f'  s_add_u32 {s(sA)}, {s(sA)}, 6')
    put(1, sA)
    rec_base(1)
    A(f'  s_lshl_b32 {s(sB)}, {s(sRO)}, 1')
    A(f'  s_sub_u32 {s(sB+1)}, {s(sA)}, {s(sB)}')
    A(f'  s_add_u32 {s(sB+1)}, {s(sB+1)}, 4')
    put(2, sB + 1)
    A(f'  s_add_u32 {s(sA)}, {s(sA)}, {s(sB)}')
    A(f'  s_add_u32 {s(sA)}, {s(sA)}, 2')
    A(f'  s_xor_b32 {s(sB)}, {s(sA)}, 1')
    put(3, sB)
    A(f'  s_andn2_b32 {s(sB)}, {s(sA)}, 1')
    A(f'  s_xor_b32 {s(sB)}, {s(sB)}, 2')
    put(4, sB)
    A(f'  s_add_u32 {s(sB)}, {s(sB)}, 1')
    put(5, sB)
    A(f'  s_lshr_b32 {s(sA)}, {s(sA)}, 2')
    A(f'  s_mul_i32 {s(sA)}, {s(sA)}, 1536')
    A(f'  v_writelane_b32 {v(hD)}, {s(sA)}, 6')
    A(f'  v_lshlrev_b32 {v(hA)}, 2, v0')
    A('  s_mov_b64 exec, 0xff')
    A(f'  ds_write_b32 {v(hA)}, {v(hD)} offset:{F_END}')
    A('  s_mov_b64 exec, -1')
    C('logit swap: flag word per workgroup; image q = 2*pair + role keeps kilobyte k at')
    C('region(q>>5) + (k<<15) + ((q&31 ^ comp(k)) << 10), which stays inside four memory channels')
    A(f'  s_lshl_b32 {s(sFA)}, s2, 8')
    A(f'  s_add_u32 {s(sFA)}, {s(sFA)}, {WS_FLAG}')
    A(f'  s_xor_b32 {s(sFS)}, {s(sFA)}, 1024')
    A(f'  s_lshr_b32 {s(sX)}, {s(sDEC)}, 3')
    A(f'  s_xor_b32 {s(sX)}, {s(sX)}, {s(sDEC)}')
    A(f'  s_lshr_b32 {s(sT)}, {s(sPB)}, 4')
    A(f'  s_lshr_b32 {s(sOF)}, {s(sT)}, 5')
    A(f'  s_lshl_b32 {s(sOF)}, {s(sOF)}, 21')
    A(f'  s_add_u32 {s(sOF)}, {s(sOF)}, {WS_IMG}')
    A(f'  s_and_b32 {s(sQD)}, {s(sT)}, 31')
    A(f'  s_add_u32 {s(sT)}, {s(sQD)}, {s(sRO)}')
    A(f'  s_lshl_b32 {s(sT)}, {s(sT)}, 10')
    A(f'  s_add_u32 {s(sME)}, {s(sOF)}, {s(sT)}')
    A(f'  s_xor_b32 {s(sPA)}, {s(sME)}, 1024')
    def pxor(k):
        h = k >> 2
        c = (h & 3) ^ (((h >> 2) & 1) * 17) ^ (((h >> 3) & 1) * 4)
        return (k << 15) | (c << 10)
    NW = NWU * 384 // 1024
    def reg(k): return hD + 4 * (k % 24)
    def export(lo, hi):
        for k in range(lo, hi): A(f'  ds_read_b128 {v(reg(k),4)}, {v(hO)} offset:{1024*k}')
        A('  s_waitcnt lgkmcnt(0)')
        for k in range(lo, hi):
            A(f'  s_xor_b32 {s(sT)}, {s(sME)}, {pxor(k)}')
            A(f'  buffer_store_dwordx4 {v(reg(k),4)}, {v(hO)}, {s(SWS,4)}, {s(sT)} offen sc1')
    def imp(lo, hi):
        for k in range(lo, hi):
            A(f'  s_xor_b32 {s(sT)}, {s(sPA)}, {pxor(k)}')
            A(f'  buffer_load_dwordx4 {v(reg(k),4)}, {v(hO)}, {s(SWS,4)}, {s(sT)} offen sc1')
        A('  s_waitcnt vmcnt(0)')
        for k in range(lo, hi): A(f'  ds_write_b128 {v(hO)}, {v(reg(k),4)} offset:{1024*k}')
    def cond(bit, tag, fn):
        A(f'  s_bitcmp0_b32 {s(sX)}, {bit}')
        A(f'  s_cbranch_scc1 L_h_{tag}')
        fn()
        A(f'L_h_{tag}:')
    def handshake(tag, level):
        A(f'  s_add_u32 {s(sA)}, {s(sNON)}, {level}')
        A(f'  v_mov_b32 {v(h2)}, 0')
        A('  s_waitcnt vmcnt(0)')
        A(f'  v_mov_b32 {v(hD)}, {s(sA)}')
        A(f'  v_mov_b32 {v(hD+1)}, {s(sNON+1)}')
        if fullf:
            A(f'  v_lshlrev_b32 {v(h3)}, 3, v0')
            A('  s_mov_b64 exec, 0xffff')
            A(f'  buffer_store_dwordx2 {v(hD,2)}, {v(h3)}, {s(SWS,4)}, {s(sFA)} offen sc1')
        A('  s_mov_b64 exec, 1')
        if not fullf: A(f'  buffer_store_dwordx2 {v(hD,2)}, {v(h2)}, {s(SWS,4)}, {s(sFA)} offen sc1')
        A(f'  s_mov_b32 {s(sCNT)}, 0')
        A(f'L_h_flag{tag}:')
        A(f'  buffer_load_dwordx2 {v(hD+2,2)}, {v(h2)}, {s(SWS,4)}, {s(sFS)} offen sc1')
        A('  s_waitcnt vmcnt(0)')
        A(f'  v_readfirstlane_b32 {s(sB)}, {v(hD+2)}')
        A(f'  v_readfirstlane_b32 {s(sB+1)}, {v(hD+3)}')
        A(f'  s_sub_u32 {s(sB)}, {s(sB)}, {s(sA)}')
        A(f'  s_xor_b32 {s(sB+1)}, {s(sB+1)}, {s(sNON+1)}')
        A(f'  s_lshr_b32 {s(sB)}, {s(sB)}, 1')
        A(f'  s_or_b32 {s(sB)}, {s(sB)}, {s(sB+1)}')
        A(f'  s_cbranch_scc0 L_h_flag{tag}_done')
        bounded(f'L_h_flag{tag}_done', 100000)
        A('  s_sleep 8')
        A(f'  s_branch L_h_flag{tag}')
        A(f'L_h_flag{tag}_done:')
        A('  s_mov_b64 exec, -1')
    pg = (2, 0, 1) if kord else (0, 1, 2)
    checkpoints(64)
    wait_progress('a', 64, 4)
    stamp()
    export(0, NW)
    cond(pg[0], 'e0', lambda: export(NW, 12))
    cond(pg[1], 'e1', lambda: export(12, 24))
    handshake('a', 1)
    stamp()
    C('first units: slot f comes from the image of role f&1, slot (f&~1) + V class of that page')
    A(f'  s_bfe_u32 {s(sA)}, {s(sDEC)}, {hex(0x10003 + pg[0])}')
    A(f'  s_mul_i32 {s(sA)}, {s(sA)}, 384')
    A(f'  v_lshrrev_b32 {v(h1)}, 3, v0')
    for k in range(NW):
        A(f'  v_add_u32 {v(h2)}, {8 * k}, {v(h1)}')
        A(f'  v_mul_u32_u24 {v(h2)}, 21846, {v(h2)}')
        A(f'  v_bfe_u32 {v(h2)}, {v(h2)}, 16, 1')
        A(f'  v_mul_u32_u24 {v(h3)}, 384, {v(h2)}')
        A(f'  v_sub_u32 {v(h3)}, {v(hO)}, {v(h3)}')
        A(f'  v_add_u32 {v(h3)}, {s(sA)}, {v(h3)}')
        A(f'  v_add_u32 {v(h3)}, {1024 * k}, {v(h3)}')
        A(f'  v_add_u32 {v(h2)}, {s(sQD)}, {v(h2)}')
        A(f'  v_lshrrev_b32 {v(hZ)}, 12, {v(h3)}')
        A(f'  v_xor_b32 {v(h2)}, {v(h2)}, {v(hZ)}')
        A(f'  v_lshrrev_b32 {v(hZ)}, 10, {v(h3)}')
        A(f'  v_lshl_add_u32 {v(h2)}, {v(hZ)}, 5, {v(h2)}')
        A(f'  v_and_b32 {v(h3)}, 1023, {v(h3)}')
        A(f'  v_lshl_add_u32 {v(h2)}, {v(h2)}, 10, {v(h3)}')
        A(f'  buffer_load_dwordx4 {v(reg(k),4)}, {v(h2)}, {s(SWS,4)}, {s(sOF)} offen sc1')
    cond(pg[0], 'i0', lambda: imp(NW, 12))
    cond(pg[1], 'i1', lambda: imp(12, 24))
    A('  s_waitcnt vmcnt(0)')
    for k in range(NW): A(f'  ds_write_b128 {v(hO)}, {v(reg(k),4)} offset:{1024*k}')
    stamp()
    A(f'  s_bitcmp0_b32 {s(sX)}, {pg[2]}')
    A(f'  s_cselect_b32 {s(sT)}, 255, {32 * pg[2]}')
    lds_set(F_IMP, s(sT))
    checkpoints(NF)
    A(f'  s_bitcmp0_b32 {s(sX)}, {pg[2]}')
    A('  s_cbranch_scc1 L_h_all')
    wait_progress('b', NF, 4)
    export(24, 36)
    handshake('b', 2)
    imp(24, 36)
    lds_set(F_IMP, 255)
    A('L_h_all:')
    checkpoints(999)
    C('the last unit runs with the deep queue')
    wait_progress('t', 2 * NF - 2 * W, 4)
    A(f'  v_mov_b32 {v(hD)}, 255')
    A(f'  ds_write_b32 {v(hW)}, {v(hD)} offset:{F_BST - F_PRG}')
    A('  s_branch L_finish')

    C(f'check points every {step} units up to unit s{sUP}: lane w (mod 2) follows wave w. Arrival times of 16 workgroups go to ws;')
    C(f'{dly} units later the entries stamped inside this launch give the mean, and a late wave gets a catch-up limit in LDS')
    A('L_h_cp:')
    A(f'  s_cmp_gt_u32 {s(sCP)}, {s(sUP)}')
    A('  s_cbranch_scc0 L_h_cpgo')
    A(f'  s_setpc_b64 {s(sRET,2)}')
    A('L_h_cpgo:')
    A(f'  ds_read_b32 {v(hD)}, {v(hW)}')
    A('  s_waitcnt lgkmcnt(0)')
    A(f'  v_cmp_gt_u32 vcc, {s(sCP)}, {v(hD)}')
    A('  s_cmp_eq_u32 vcc_lo, 0')
    A('  s_cbranch_scc1 L_h_cpnext')
    A('L_h_first:')
    A('  s_sleep 2')
    A(f'  ds_read_b32 {v(hD)}, {v(hW)}')
    A('  s_waitcnt lgkmcnt(0)')
    A(f'  v_cmp_gt_u32 {s(sV0,2)}, {s(sCP)}, {v(hD)}')
    A(f'  s_cmp_eq_u32 {s(sV0)}, -1')
    A('  s_cbranch_scc1 L_h_first')
    A(f'  s_memrealtime {s(sA,2)}')
    wait_progress('m', s(sCP), 2)
    A(f'  s_memrealtime {s(sB,2)}')
    A(f'  v_mov_b32 {v(hT)}, {s(sA)}')
    A(f'  v_mov_b32 {v(hT+1)}, {s(sA+1)}')
    A(f'  s_mov_b64 exec, {s(sV0,2)}')
    A('  s_waitcnt lgkmcnt(0)')
    A(f'  v_mov_b32 {v(hT)}, {s(sB)}')
    A(f'  v_mov_b32 {v(hT+1)}, {s(sB+1)}')
    A('  s_mov_b64 exec, -1')
    A(f'  s_and_b32 {s(sT)}, s2, {0x78 if npub == 16 else 0xf8}')
    A('  s_cbranch_scc1 L_h_np')
    A(f'  s_mov_b64 exec, {hex((1 << (min(1 << cps, 128) // 8)) - 1) if fullw else 3}')
    A(f'  buffer_store_dwordx2 {v(hT,2)}, {v(hP)}, {s(SWS,4)}, {s(sCA)} offen ' + ('sc1', 'sc1 nt', 'sc0 sc1')[cpst])
    A('  s_mov_b64 exec, -1')
    A('L_h_np:')
    A(f'  s_add_u32 {s(sJ)}, {s(sCP)}, {dly}')
    wait_progress('c', s(sJ), 4)
    A(f'  buffer_load_dwordx2 {v(hD,2)}, {v(hQ)}, {s(SWS,4)}, {s(sCA)} offen ' + ('', 'nt', 'sc1', 'sc1 nt')[cpld])
    A(f'  v_mov_b32 {v(hD+2)}, {s(sT0+1)}')
    A('  s_waitcnt vmcnt(0)')
    A(f'  ds_read_b32 {v(hD+4)}, {v(hW)}')
    A(f'  v_subrev_co_u32 {v(hD)}, vcc, {s(sT0)}, {v(hD)}')
    A(f'  v_subb_co_u32 {v(hD+1)}, vcc, {v(hD+1)}, {v(hD+2)}, vcc')
    A(f'  v_lshrrev_b32 {v(hD+2)}, 24, {v(hD)}')
    A(f'  v_or_b32 {v(hD+1)}, {v(hD+1)}, {v(hD+2)}')
    A(f'  v_cmp_eq_u32 vcc, 0, {v(hD+1)}')
    A(f'  v_cndmask_b32 {v(hD)}, 0, {v(hD)}, vcc')
    A(f'  s_bcnt1_i32_b32 {s(sB)}, vcc_lo')
    for r in (8, 4, 2, 1):
        A(f'  v_add_u32_dpp {v(hD)}, {v(hD)}, {v(hD)} row_ror:{r} row_mask:0xf bank_mask:0xf')
    A(f'  v_readlane_b32 {s(sA)}, {v(hD)}, 0')
    A(f'  v_readlane_b32 {s(sT)}, {v(hD)}, 16')
    A(f'  v_subrev_u32 {v(hD)}, {s(sT0)}, {v(hT)}')
    A(f'  v_mul_lo_u32 {v(hD)}, {v(hD)}, {s(sB)}')
    A(f'  s_add_u32 {s(sA)}, {s(sA)}, {s(sT)}')
    A(f'  s_max_u32 {s(sB)}, {s(sB)}, 1')
    A(f'  v_subrev_u32 {v(hD)}, {s(sA)}, {v(hD)}')
    A(f'  v_cvt_f32_u32 {v(hD+1)}, {s(sB)}')
    A(f'  v_cvt_f32_i32 {v(hD)}, {v(hD)}')
    A(f'  v_rcp_f32 {v(hD+1)}, {v(hD+1)}')
    A(f'  v_mul_f32 {v(hD)}, {v(hD)}, {v(hD+1)}')
    A(f'  v_cvt_i32_f32 {v(hD)}, {v(hD)}')
    A('  s_waitcnt lgkmcnt(0)')
    A(f'  v_add_u32 {v(hD+4)}, {W}, {v(hD+4)}')
    C('subtract what the running catch-up gains between the check point and the first unit that sees the new limit')
    A(f'  v_min_u32 {v(hD+1)}, {v(hU)}, {v(hD+4)}')
    A(f'  v_subrev_u32 {v(hD+1)}, {s(sCP)}, {v(hD+1)}')
    A(f'  v_max_i32 {v(hD+1)}, 0, {v(hD+1)}')
    A(f'  v_lshrrev_b32 {v(hD+1)}, 1, {v(hD+1)}')
    A(f'  v_mul_u32_u24 {v(hD+1)}, {gain}, {v(hD+1)}')
    A(f'  v_sub_u32 {v(hD)}, {v(hD)}, {v(hD+1)}')
    A(f'  v_add_u32 {v(hD+1)}, {gain // 2 - dead}, {v(hD)}')
    A(f'  v_max_i32 {v(hD+1)}, 0, {v(hD+1)}')
    A(f'  v_min_i32 {v(hD+1)}, 2000, {v(hD+1)}')
    A(f'  v_mul_u32_u24 {v(hD+1)}, {65536 // gain}, {v(hD+1)}')
    A(f'  v_lshrrev_b32 {v(hD+1)}, 16, {v(hD+1)}')
    A(f'  v_cmp_ne_u32 vcc, 0, {v(hD+1)}')
    A(f'  v_lshl_add_u32 {v(hD+1)}, {v(hD+1)}, 1, {v(hD+4)}')
    A(f'  v_cndmask_b32 {v(hU)}, 0, {v(hD+1)}, vcc')
    A(f'  ds_write_b32 {v(hW)}, {v(hU)} offset:{F_BST - F_PRG}')
    A('L_h_cpnext:')
    A(f'  s_add_u32 {s(sCP)}, {s(sCP)}, {step}')
    if cpx:
        A(f'  s_add_u32 {s(sCI)}, {s(sCI)}, 1')
        A(f'  s_ff1_i32_b32 {s(sT)}, {s(sCI)}')
        A(f'  s_lshl_b32 {s(sT)}, 256, {s(sT)}')
        A(f'  v_xor_b32 {v(hP)}, {s(sT)}, {v(hP)}')
        A(f'  v_xor_b32 {v(hQ)}, {s(sT)}, {v(hQ)}')
    else:
        A(f'  s_add_u32 {s(sCA)}, {s(sCA)}, {max(256, npub << cps)}')
    A('  s_branch L_h_cp')
    A('L_code_end:')
    body = pad(L)

    nva = (nv + 7) // 8 * 8
    out = HDR + f'; @launch grid=(256,1,1) block=({64*(W+1)},1,1) lds={lds}\n' + NOTES
    out += '.amdgcn_target "amdgcn-amd-amdhsa--gfx950"\n.text\n'
    out += f'.globl {NAME}\n.p2align 8\n.type {NAME},@function\n'
    out += '\n'.join(body) + '\n'
    out += f'''.section .rodata,"a"
.p2align 6
.amdhsa_kernel {NAME}
  .amdhsa_next_free_vgpr {nva}
  .amdhsa_next_free_sgpr 102
  .amdhsa_accum_offset {nva}
  .amdhsa_group_segment_fixed_size 0
  .amdhsa_kernarg_size 80
  .amdhsa_user_sgpr_count 2
  .amdhsa_user_sgpr_kernarg_segment_ptr 1
  .amdhsa_system_sgpr_workgroup_id_x 1
  .amdhsa_float_denorm_mode_32 3
.end_amdhsa_kernel
'''
    return out

if __name__ == '__main__':
    kw = {}
    for x in sys.argv[2:]:
        k, val = x.split('=')
        kw[k] = int(val)
    open(sys.argv[1], 'w').write(gen(**kw))
```

```python
import sys, os
sys.path.insert(0, os.path.dirname(os.path.abspath(__file__)))
from asmlib import pad
NAME = 'standalone__kv_cache_quant_int4_int2_kv_with_per_channel_or_per_token_scales__sampling_kernel'
TOTAL = 256 * 4096 * 768
PIECE = 1152
REC = 3 * PIECE
WS_REC = 1 << 20
WS_CP = 7 << 20
WS_FLAG = 6 << 20
WS_IMG = 16 << 20
WS_END = WS_IMG + (16 << 20)
IMG = 96 * 384
OOB = 0x7ffffff0
HDR = open(os.path.join(os.path.dirname(os.path.abspath(__file__)), 'header.txt')).read()
assert all(((32 * c + 1) * 21846) >> 16 == (32 * c + 1) // 3 for c in range(25))
assert all((c * 43) >> 8 == c // 6 for c in range(24))
assert all((x * 21846) >> 16 == x // 3 for x in range(100))

NOTES = """\
"""

class Alloc:
    def __init__(self, start): self.n = start
    def __call__(self, k, align=1):
        self.n = (self.n + align - 1) // align * align
        r = self.n; self.n += k
        return r

def v(r, k=1): return f'v{r}' if k == 1 else f'v[{r}:{r+k-1}]'
def s(r, k=1): return f's{r}' if k == 1 else f's[{r}:{r+k-1}]'

def merge(main, side):
    out = []; side = list(side)
    for m in main:
        out.append(m)
        if side: out.append(side.pop(0))
    return out + side

def gen(DN=10, D=15, bev=3, NWU=8, NS=3, NV=8, pfw=24, PSK=17, gain=32, dly=2, dead=-30, cp0=10, step=4, last=188,
        force=-1, stamps=0, tl=0, diagpad=0, diagat=-1, kord=1):
    W, U, NST, NF, PSV = 2, 2, 33, 96, 3
    R = 11 * U
    SW = NST - D
    assert DN <= D < R and NWU % 8 == 0 and PSV < SW and 3 <= PSK < SW
    L = []
    A = L.append
    C = lambda t: L.append('; ' + t)
    va = Alloc(1)
    DUP = va(1); DOWN = va(1); DCON = va(1)
    RING = va(4 * R, 4); VO = va(4)
    ICV = va(1); TU = va(1); VVS = va(1); VL1 = va(1); VL2 = va(1); VBP = va(1); VFL = va(1); VST = va(1); VPR = va(1)
    VOOB = va(1); VBS = va(1)
    T = va(4, 2); ZN = va(1); SN = va(1); ZC = va(1); SC = va(1); ZS = va(2, 2)
    LG = va(6, 4); ACC = va(12, 4); M = va(1); NB = va(2, 2); LS = NB + 1
    X0 = va(2, 2); X1 = X0 + 1; AL = va(1); ALQ = va(1); E = va(11); PP = va(6); TL = va(1)
    base = va.n
    QB = va(6, 4); QN = va(6, 2); KSR = va(6, 2); KZR = va(6, 2); KS = va(12, 2); KZ = va(12, 2); KA = va(6, 4); SD = va(4, 4); S = va(2, 2)
    IUP = va(1); IOWN = va(1); ICON = va(1); VKS0 = va(1); VKS = va(1); VQ = va(1); VNI = va(1)
    kend = va.n
    va.n = base
    AJ = va(16, 4); AK = va(8, 2); TV = va(12, 2); BV = va(48, 4)
    nv = max(va.n, kend)
    sRO, sPB = 4, 5
    SK, SV, SI, SKS, SKZ, SVS, SVZ, SQ, SWS = 8, 12, 16, 20, 24, 28, 32, 36, 40
    PT = 44
    sOUT, sL0, sL10, sM0, sM10, sLOW = 46, 48, 50, 52, 54, 56
    sCUR, sNXT, sSO, s768, sF, sMSK, sL2E, sTL, sSCL, sT = 60, 61, 62, 63, 64, 65, 66, 67, 68, 70
    sMJ = 72
    sDBG, sWS = 80, 82
    sQ3, sC, sQC, sMISS, sHC, sHN, sDIV, sSH = 84, 85, 86, 87, 88, 89, 90, 91
    sBIG, sSM = 92, 94
    sDEC, sG, sGATE = 96, 97, 99
    SEG = W * 3072 + W * 32
    LDS_ACC = IMG
    LDS_F = LDS_ACC + 4 * SEG
    F_DEC, F_IMP, F_PRG, F_BST, F_END = LDS_F, LDS_F + 4, LDS_F + 16, LDS_F + 24, LDS_F + 32
    lds = 62464
    assert LDS_F + 64 <= lds and F_END % 16 == 0

    A(f'{NAME}:')
    A('  s_cmp_ge_u32 s2, 256')
    A('  s_cbranch_scc1 L_end')
    A(f'  s_load_dwordx16 {s(PT,16)}, s[0:1], 0')
    A(f'  s_load_dwordx4 {s(sDBG,4)}, s[0:1], 64')
    if stamps or diagpad: A('  s_memrealtime s[6:7]')
    C('s3 = wave, s4 = role in the pair, s5 = 32 * pair (first block of the first page)')
    A('  v_lshrrev_b32 v1, 6, v0')
    A('  v_and_b32 v0, 63, v0')
    A('  v_readfirstlane_b32 s3, v1')
    A(f'  s_bfe_u32 {s(sRO)}, s2, 0x10002')
    A(f'  s_lshr_b32 {s(sPB)}, s2, 3')
    A(f'  s_lshl_b32 {s(sPB)}, {s(sPB)}, 2')
    A(f'  s_and_b32 {s(sT)}, s2, 3')
    A(f'  s_add_u32 {s(sPB)}, {s(sPB)}, {s(sT)}')
    A(f'  s_lshl_b32 {s(sPB)}, {s(sPB)}, 5')
    SRDS = ((SKS, PT + 6, 256 * 24576), (SKZ, PT + 8, 256 * 24576), (SVS, PT + 10, 256 * 8192), (SVZ, PT + 12, 256 * 8192),
            (SK, PT + 2, TOTAL), (SQ, PT, 256 * 1536), (SI, PT + 2, TOTAL), (SV, PT + 4, TOTAL), (SWS, sWS, WS_END))
    for srd, p, nb in SRDS:
        A(f'  s_mov_b32 {s(srd+2)}, {nb}')
        A(f'  s_mov_b32 {s(srd+3)}, 0x20000')
    def make_srds(lo, hi):
        for srd, p, nb in SRDS[lo:hi]:
            A(f'  s_mov_b32 {s(srd)}, {s(p)}')
            A(f'  s_and_b32 {s(srd+1)}, {s(p+1)}, 0xffff')
    A(f'  s_cmp_eq_u32 s3, {W}')
    A('  s_cbranch_scc1 L_helper')

    C('================= streaming waves')
    cls, a, g, n = T, T + 1, T + 2, T + 3
    A(f'  v_and_b32 {v(cls)}, 3, v0')
    A(f'  v_bfe_u32 {v(a)}, v0, 2, 2')
    A(f'  v_lshrrev_b32 {v(g)}, 4, v0')
    A(f'  v_and_b32 {v(n)}, 15, v0')
    def stream_consts(x, up, own, con, lanepart):
        A(f'  v_and_b32 {v(own)}, 2, {v(x)}')
        A(f'  v_lshlrev_b32 {v(up)}, 5, {v(own)}')
        A(f'  v_add_u32 {v(up)}, 129, {v(up)}')
        A(f'  v_and_b32 {v(X1)}, 1, {v(x)}')
        A(f'  v_lshl_add_u32 {v(own)}, {v(X1)}, 2, {v(own)}')
        A(f'  v_mul_u32_u24 {v(X1)}, {43 * 768}, {v(X1)}')
        A(f'  v_add_u32 {v(con)}, {v(lanepart)}, {v(X1)}')
        A(f'  v_subrev_u32 {v(con)}, {43 * 768}, {v(con)}')
    A(f'  v_lshlrev_b32 {v(X0)}, 4, {v(cls)}')
    A(f'  v_lshl_add_u32 {v(X0)}, {v(g)}, 6, {v(X0)}')
    A(f'  v_lshrrev_b32 {v(VKS0)}, 1, {v(X0)}')
    stream_consts(a, IUP, IOWN, ICON, X0)
    A(f'  v_mul_u32_u24 {v(X1)}, 384, {v(a)}')
    A(f'  v_add_u32 {v(VQ)}, {v(X1)}, {v(VKS0)}')
    A(f'  v_mov_b32 {v(VOOB)}, {OOB}')
    A(f'  s_mov_b32 {s(sDIV)}, 0xaaaaaaab')
    A(f'  s_mov_b32 {s(sSH)}, 0x492492')
    A(f'  s_movk_i32 {s(s768)}, 768')
    def slot(k): return RING + 4 * (k % R)
    def main_load(k, srd, so):
        ss, i = divmod(k % NST, 3)
        r, k0 = (0, 0) if ss == 0 else (1, 1) if ss <= 5 else (2, 6) if ss <= 9 else (3, 10)
        return f'  buffer_load_dwordx4 {v(slot(k),4)}, {v(VO+r)}, {s(srd,4)}, {s(so)} offen offset:{768*(ss-k0) + 256*i} nt'
    def kscale_loads():
        A(f'  s_mul_i32 {s(sSO)}, {s(sQ3)}, 1536')
        for i in range(3):
            A(f'  buffer_load_dwordx2 {v(KSR+2*i,2)}, {v(VKS)}, {s(SKS,4)}, {s(sSO)} offen offset:{128*i}')
            A(f'  buffer_load_dwordx2 {v(KZR+2*i,2)}, {v(VKS)}, {s(SKZ,4)}, {s(sSO)} offen offset:{128*i}')
    def vscale_loads():
        A(f'  s_lshl_b32 {s(sSO)}, {s(sQ3)}, 9')
        A(f'  v_lshl_add_u32 {v(VVS)}, {v(TU)}, 1, {v(ICV)}')
        A(f'  buffer_load_short_d16_hi {v(ZN)}, {v(VVS)}, {s(SVZ,4)}, {s(sSO)} offen')
        A(f'  buffer_load_short_d16_hi {v(SN)}, {v(VVS)}, {s(SVS,4)}, {s(sSO)} offen')
    def q_loads():
        A(f'  s_mul_i32 {s(sT)}, {s(sHN)}, 1536')
        for i in range(3): A(f'  buffer_load_dwordx2 {v(QN+2*i,2)}, {v(VQ)}, {s(SQ,4)}, {s(sT)} offen offset:{128*i}')
    def short_masks(own, m0, m10, low):
        A(f'  v_add_u32 {v(X0)}, {s(sC)}, {v(own)}')
        A(f'  v_lshrrev_b32 {v(X1)}, {v(X0)}, {s(sSH)}')
        A(f'  v_and_b32 {v(X1)}, 1, {v(X1)}')
        A(f'  v_cmp_eq_u32 {s(m10,2)}, 1, {v(X1)}')
        A(f'  s_and_b64 {s(m0,2)}, {s(m10,2)}, {s(low,2)}')
        A(f'  s_andn2_b64 {s(m10,2)}, {s(m10,2)}, {s(low,2)}')
    def map_unit(f, isv):
        if kord and not isv:
            A(f'  s_lshr_b32 {s(sT+1)}, {s(f)}, 4')
            A(f'  s_andn2_b32 {s(sT+1)}, {s(sT+1)}, 1')
            A(f'  s_lshr_b32 {s(sT+1)}, 0x12, {s(sT+1)}')
            A(f'  s_and_b32 {s(sT+1)}, {s(sT+1)}, 3')
        else:
            A(f'  s_lshr_b32 {s(sT+1)}, {s(f)}, 5')
        A(f'  s_lshr_b32 {s(sC)}, {s(sDEC)}, {s(sT+1)}')
        if isv:
            A(f'  s_bfe_u32 {s(sC)}, {s(sC)}, 0x10003')
            A(f'  s_and_b32 {s(sT)}, {s(f)}, 31')
        else:
            A(f'  s_andn2_b32 {s(sT)}, {s(f)}, 1')
            A(f'  s_or_b32 {s(sT)}, {s(sT)}, {s(sRO)}')
            A(f'  s_cmp_lt_u32 {s(f)}, {NWU}')
            A(f'  s_cselect_b32 {s(sT)}, {s(sT)}, {s(f)}')
            A(f'  s_cselect_b32 {s(sC)}, {s(f)}, {s(sC)}')
            A(f'  s_and_b32 {s(sC)}, {s(sC)}, 1')
            A(f'  s_and_b32 {s(sT)}, {s(sT)}, 31')
        A(f'  s_lshl_b32 {s(sT+1)}, {s(sT+1)}, 12')
        A(f'  s_add_u32 {s(sT)}, {s(sT)}, {s(sPB)}')
        A(f'  s_add_u32 {s(sT)}, {s(sT)}, {s(sT+1)}')
        A(f'  s_mul_hi_u32 {s(sQ3)}, {s(sT)}, {s(sDIV)}')
        A(f'  s_lshr_b32 {s(sQ3)}, {s(sQ3)}, 1')
        A(f'  s_mul_i32 {s(sT+1)}, {s(sQ3)}, 3')
        A(f'  s_sub_u32 {s(sT)}, {s(sT)}, {s(sT+1)}')
        A(f'  s_lshl3_add_u32 {s(sC)}, {s(sT)}, {s(sC)}')
        A(f'  s_mul_i32 {s(sNXT)}, {s(sQ3)}, 196608')
        A(f'  s_lshr_b32 {s(sHN)}, {s(sQ3)}, 4')
        A(f'  s_lshl_b32 {s(sT)}, {s(sC)}, 5')
        A(f'  v_add_u32 {v(TU)}, {s(sT)}, {v(DUP if isv else IUP)}')
        A(f'  v_mul_u32_u24 {v(TU)}, 21846, {v(TU)}')
        A(f'  v_lshrrev_b32 {v(TU)}, 16, {v(TU)}')
        short_masks(DOWN if isv else IOWN, sM0, sM10, sLOW + 2 * isv)
        if not isv:
            A(f'  v_mul_u32_u24 {v(X0)}, 43, {v(X0)}')
            A(f'  v_lshrrev_b32 {v(X0)}, 8, {v(X0)}')
            A(f'  v_mul_u32_u24 {v(X0)}, 384, {v(X0)}')
            A(f'  v_add_u32 {v(VKS)}, {v(X0)}, {v(VKS0)}')
    def offsets(con):
        A(f'  v_mad_u32_u24 {v(VO)}, {v(TU)}, {s(s768)}, {v(con)}')
        A(f'  v_add_u32 {v(VO+1)}, 768, {v(VO)}')
        A(f'  v_add_u32 {v(VO+2)}, {6 * 768}, {v(VO)}')
        A(f'  v_add_u32 {v(VO+3)}, {10 * 768}, {v(VO)}')
        A(f'  v_cndmask_b32 {v(VO)}, {v(VO)}, {v(VOOB)}, {s(sM0,2)}')
        A(f'  v_cndmask_b32 {v(VO+3)}, {v(VO+3)}, {v(VOOB)}, {s(sM10,2)}')
    def stamp():
        if tl:
            A(f'  s_memrealtime {s(sT,2)}')
            A('  s_waitcnt lgkmcnt(0)')
            A(f'  s_min_u32 m0, {s(sTL)}, 63')
            A(f'  v_writelane_b32 {v(TL)}, {s(sT)}, m0')
            A(f'  s_add_u32 {s(sTL)}, {s(sTL)}, 1')
    def reset_state():
        for k in range(12): A(f'  v_mov_b32 {v(ACC+k)}, 0')
        A(f'  v_mov_b32 {v(M)}, 0xff800000')
        A(f'  v_mov_b32 {v(NB)}, 0x7f800000')
        A(f'  v_mov_b32 {v(LS)}, 0')
    A(f'  s_mov_b32 {s(sF)}, s3')
    A(f'  s_mov_b32 {s(sGATE)}, {NWU}')
    A(f'  s_mov_b32 {s(sDEC)}, 0')
    C('one bulk pass pulls the scale/zero arrays into the memory-side cache (1/512 per wave); later reads of them stay off DRAM')
    A(f'  v_lshlrev_b32 {v(ZC)}, 4, v0')
    sPK, sPV = sQC, sHC
    A(f'  s_lshl1_add_u32 {s(sT)}, s2, s3')
    A(f'  s_mul_i32 {s(sPV)}, {s(sT)}, {8192 // W}')
    A(f'  s_mul_i32 {s(sPK)}, {s(sT)}, {24576 // W}')
    line = lambda srd, so, k: f'  buffer_load_dwordx4 {v(ACC,4)}, {v(ZC)}, {s(srd,4)}, {s(so)} offen offset:{(k % 4) * 1024}'
    pfl = []
    for k in range(24 // W):
        if k % 4 == 0 and k: pfl.append(f'  s_add_u32 {s(sPK)}, {s(sPK)}, 4096')
        pfl += [line(SKS, sPK, k), line(SKZ, sPK, k)]
        if k < 8 // W: pfl += [line(SVS, sPV, k), line(SVZ, sPV, k)]
    nissued = [0]
    def issue_pf(cnt):
        while pfl and cnt > 0:
            x = pfl.pop(0)
            if 'buffer_load' in x:
                if nissued[0] >= pfw: A(f'  s_waitcnt vmcnt({pfw - 1})')
                nissued[0] += 1; cnt -= 1
            A(x)
    A('  s_waitcnt lgkmcnt(0)')
    make_srds(0, 4)
    issue_pf(8)
    make_srds(4, 9)
    A(f'  s_mov_b64 {s(sOUT,2)}, {s(PT+14,2)}')
    A(f'  s_mov_b32 {s(sLOW)}, 0x0f0f0f0f')
    A(f'  s_mov_b32 {s(sLOW+1)}, 0x0f0f0f0f')
    A(f'  s_mov_b32 {s(sLOW+2)}, 0xffff')
    A(f'  s_mov_b32 {s(sLOW+3)}, 0xffff')
    map_unit(sF, 0)
    offsets(ICON)
    A(f'  s_mov_b32 {s(sCUR)}, {s(sNXT)}')
    q_loads()
    A(main_load(0, SK, sCUR))
    issue_pf(pfw - nissued[0])
    A('  s_barrier')
    A('  s_mov_b64 vcc, 0')
    A(f'  v_lshlrev_b32 {v(X0)}, 4, {v(n)}')
    stream_consts(g, DUP, DOWN, DCON, X0)
    A(f'  v_and_b32 {v(X1)}, 1, {v(g)}')
    A(f'  v_mul_u32_u24 {v(X1)}, 86, {v(X1)}')
    A(f'  v_lshl_add_u32 {v(ICV)}, {v(n)}, 1, {v(X1)}')
    A(f'  v_subrev_u32 {v(ICV)}, 86, {v(ICV)}')
    A(f'  v_lshlrev_b32 {v(VBP)}, 4, {v(g)}')
    A(f'  v_lshrrev_b32 {v(X0)}, 2, v0')
    A(f'  s_mul_i32 {s(sT)}, s3, 384')
    A(f'  v_lshl_add_u32 {v(VL1)}, {v(X0)}, 4, {s(sT)}')
    A(f'  v_lshl_add_u32 {v(VL2)}, {v(X0)}, 3, {s(sT)}')
    A(f'  s_mul_i32 {s(sT)}, s3, 3072')
    A(f'  s_add_u32 {s(sT)}, {s(sT)}, {LDS_ACC}')
    A(f'  v_lshl_add_u32 {v(VFL)}, v0, 4, {s(sT)}')
    A(f'  s_lshl_b32 {s(sT)}, s3, 5')
    A(f'  s_add_u32 {s(sT)}, {s(sT)}, {LDS_ACC + W * 3072}')
    A(f'  v_lshl_add_u32 {v(VST)}, {v(a)}, 3, {s(sT)}')
    A(f'  s_lshl2_add_u32 {s(sT)}, s3, {F_PRG}')
    A(f'  v_mov_b32 {v(VPR)}, {s(sT)}')
    A(f'  v_mov_b32 {v(ZN)}, 0')
    A(f'  v_mov_b32 {v(SN)}, 0')
    A(f'  v_mov_b32 {v(VNI)}, 0xff800000')
    A(f'  v_mov_b32 {v(AL)}, 1')
    A(f'  s_mov_b32 {s(sMSK)}, 0xffff0000')
    A(f'  s_mov_b32 {s(sL2E)}, 0x3fb8aa3b')
    for h in range(2):
        A(f'  s_mov_b32 {s(sSCL+h)}, 0x3d93cd3a')
    for j in range(4):
        A(f'  s_mov_b32 {s(sMJ+2*j)}, {hex(0x11111111 << j)}')
        A(f'  s_mov_b32 {s(sMJ+2*j+1)}, {hex(0x11111111 << j)}')
    if tl:
        A(f'  s_mov_b32 {s(sTL)}, 0')
        A(f'  v_mov_b32 {v(TL)}, 0')
    issue_pf(99)
    A(f'  s_mov_b32 {s(sHC)}, {s(sHN)}')
    kscale_loads()
    for k in range(1, D):
        A(f'  s_waitcnt vmcnt({max(DN, k) - 1 + 6})')
        A(main_load(k, SK, sCUR))
    A(f'  s_waitcnt vmcnt({D - 1})')
    A(f'  ds_write_b32 {v(VPR)}, {v(AL)}')

    def wait_step(k, nsmall, tag, ps):
        cnt = lambda d: d - 1 + (nsmall if k - d <= ps < k else 0)
        A(f'  s_waitcnt vmcnt({cnt(D)})')
        if k % bev == 0:
            A(f'  s_cbranch_vccnz L_{tag}')
            A(f'  s_waitcnt vmcnt({cnt(DN)})')
            A(f'L_{tag}:')
    def mode(k):
        if k == 0: A(f'  ds_read_b32 {v(VBS)}, {v(VPR)} offset:{F_BST - F_PRG}')
        if k == 1:
            A('  s_waitcnt lgkmcnt(0)')
            A(f'  v_cmp_lt_u32 vcc, {s(sG)}, {v(VBS)}')
    def dequant(X, src, z, sc, zmod, smod):
        r = [f'  v_cvt_f32_i32 {v(X+j)}, {v(src+j)}' for j in range(4)]
        r += [f'  v_pk_add_f32 {v(X+2*h,2)}, {v(X+2*h,2)}, {z[h]} {zmod}neg_lo:[0,1] neg_hi:[0,1]' for h in range(2)]
        r2 = [f'  v_cvt_pk_bf16_f32 {v(X+j)}, 0, {v(X+j)}' for j in range(4)]
        r2 += [f'  v_pk_mul_f32 {v(X+2*h,2)}, {v(X+2*h,2)}, {sc[h]} {smod}'.rstrip() for h in range(2)]
        return r, r2
    def kreduce(ss):
        d = S + (ss & 1)
        q = lambda j: f'quad_perm:[{j},{j},{j},{j}] row_mask:0xf bank_mask:0xf'
        r = [f'  v_mov_b32_dpp {v(X0)}, {v(SD)} {q(0)}',
             f'  v_mov_b32_dpp {v(X1)}, {v(SD+2)} {q(2)}',
             f'  v_add_f32_dpp {v(X0)}, {v(SD+1)}, {v(X0)} {q(1)}',
             f'  v_add_f32_dpp {v(X1)}, {v(SD+3)}, {v(X1)} {q(3)}',
             f'  v_add_f32 {v(d)}, {v(X0)}, {v(X1)}']
        if ss == 0: r.append(f'  v_cndmask_b32 {v(d)}, {v(d)}, {v(VNI)}, {s(sL0,2)}')
        if ss == 10: r.append(f'  v_cndmask_b32 {v(d)}, {v(d)}, {v(VNI)}, {s(sL10,2)}')
        if ss & 1 or ss == 10:
            r += [f'  v_cvt_pk_bf16_f32 {v(S)}, 0, {v(S)}',
                  f'  v_cvt_pk_bf16_f32 {v(S+1)}, 0, {v(S+1)}',
                  f'  v_pk_mul_f32 {v(S,2)}, {v(S,2)}, {s(sSCL,2)}',
                  f'  v_cvt_pk_bf16_f32 {v(LG+(ss>>1))}, {v(S)}, {v(S+1)}']
        return r
    def lds_word(dst, addr):
        A(f'  v_mov_b32 {v(X0)}, {addr}')
        A(f'  ds_read_b32 {v(X0)}, {v(X0)}')
        A('  s_waitcnt lgkmcnt(0)')
        A(f'  v_readfirstlane_b32 {s(dst)}, {v(X0)}')

    mf32 = f'  v_mfma_f32_16x16x32_bf16 {v(SD,4)}, {v(KA,4)}, {v(QB,4)}, 0'
    mf16 = f'  v_mfma_f32_16x16x16_bf16 {v(SD,4)}, {v(KA+4,2)}, {v(QB+4,2)}, {v(SD,4)}'
    def diag_mark(tag, base_):
        if diagat < 0: return
        A(f'  s_and_b32 {s(sT)}, {s(sF)}, -4')
        A(f'  s_cmp_lg_u32 {s(sT)}, {diagat - base_}')
        A(f'  s_cbranch_scc1 L_dm{tag}')
        A('  s_memrealtime s[6:7]')
        A('  s_waitcnt lgkmcnt(0)')
        A(f'L_dm{tag}:')
    def k_unit(u):
        o = NST * u
        if u == 0: diag_mark('k', 0)
        if u == 0: stamp()
        short_masks(DOWN, sL0, sL10, sLOW + 2)
        A(f'  s_mov_b32 {s(sG)}, {s(sF)}')
        A(f'  s_add_u32 {s(sF)}, {s(sF)}, {W}')
        for k in range(NST):
            ss, i = divmod(k, 3)
            mode(k)
            if k == SW:
                if u == U - 1:
                    C('the last K unit prefetches the first V unit')
                    A(f'  s_cmp_lt_u32 {s(sF)}, {NF}')
                    A('  s_cbranch_scc1 L_k_keep')
                    map_unit(3, 1)
                    A(f'  s_mov_b32 {s(SI)}, {s(SV)}')
                    A(f'  s_mov_b32 {s(SI+1)}, {s(SV+1)}')
                    vscale_loads()
                    A(f'  v_mov_b32 {v(ICON)}, {v(DCON)}')
                    A('L_k_keep:')
                offsets(ICON)
            wait_step(k, 6, f'kw{u}_{k}', PSK)
            A(main_load(o + k + D, SK, sCUR) if k < SW else main_load(o + k + D, SI, sNXT))
            if i == 2: A(mf32)
            if i == 0 and ss > 0: A(mf16)
            if ss == 0:
                for raw, dst in ((KZR, KZ), (KSR, KS)):
                    for h in range(2):
                        A(f'  v_lshlrev_b32 {v(dst+4*i+2*h)}, 16, {v(raw+2*i+h)}')
                        A(f'  v_and_b32 {v(dst+4*i+2*h+1)}, {s(sMSK)}, {v(raw+2*i+h)}')
                for h in range(2):
                    A(f'  v_mov_b32 {v(QB+2*i+h)}, {v(QN+2*i+h)}')
            c, rest = dequant(T, slot(o + k), (v(KZ+4*i,2), v(KZ+4*i+2,2)), (v(KS+4*i,2), v(KS+4*i+2,2)), '', '')
            for x in c: A(x)
            if k == PSK:
                C('next unit: class (needs the vote once), scales, q on a head change')
                A(f'  s_cmp_lt_u32 {s(sF)}, {s(sGATE)}')
                A(f'  s_cbranch_scc1 L_k_known{u}')
                A(f'L_k_spin{u}:')
                lds_word(sDEC, F_DEC)
                A(f'  s_cmp_eq_u32 {s(sDEC)}, 0')
                A(f'  s_cbranch_scc1 L_k_spin{u}')
                A(f'  s_mov_b32 {s(sGATE)}, -1')
                A(f'L_k_known{u}:')
                map_unit(sF, 0)
                A(f'  s_cmp_eq_u32 {s(sHN)}, {s(sHC)}')
                A(f'  s_cbranch_scc1 L_k_sameq{u}')
                q_loads()
                A(f'  s_mov_b32 {s(sHC)}, {s(sHN)}')
                A(f'L_k_sameq{u}:')
                kscale_loads()
            rest += [f'  v_cvt_pk_bf16_f32 {v(KA+2*i)}, {v(T)}, {v(T+1)}',
                     f'  v_cvt_pk_bf16_f32 {v(KA+2*i+1)}, {v(T+2)}, {v(T+3)}']
            if i == 1 and ss > 0:
                r = kreduce(ss - 1)
                rest = r[:2] + rest[:2] + r[2:4] + rest[2:4] + r[4:5] + rest[4:]
                pend = r[5:]
            elif i == 2 and ss > 0:
                rest = merge(rest, pend)
            for x in rest: A(x)
        A(f'  s_mov_b32 {s(sCUR)}, {s(sNXT)}')
        A(f'  v_mov_b32 {v(AL)}, {s(sF)}')
        A(mf16)
        A(f'  ds_write_b128 {v(VL1)}, {v(LG,4)}')
        A(f'  v_add_u32 {v(VL1)}, {384 * W}, {v(VL1)}')
        for x in kreduce(10): A(x)
        A(f'  ds_write_b64 {v(VL2)}, {v(LG+4,2)} offset:256')
        A(f'  ds_write_b32 {v(VPR)}, {v(AL)}')
        A(f'  v_add_u32 {v(VL2)}, {384 * W}, {v(VL2)}')
    C('---------------- K loop: two units per trip')
    A('L_k:')
    for u in range(U): k_unit(u)
    A(f'  s_cmp_lt_u32 {s(sF)}, {NF}')
    A('  s_cbranch_scc1 L_k')

    def flush():
        C('park the partial result of the finished head segment in slot 2*(head&1) + (segment ends the head)')
        A(f'  s_and_b32 {s(sT)}, {s(sQC)}, 15')
        A(f'  s_cmp_ge_u32 {s(sT)}, 12')
        A(f'  s_cselect_b32 {s(sT)}, {SEG}, 0')
        A(f'  s_bitcmp1_b32 {s(sQC)}, 4')
        A(f'  s_cselect_b32 {s(sT+1)}, {2 * SEG}, 0')
        A(f'  s_add_u32 {s(sT)}, {s(sT)}, {s(sT+1)}')
        A(f'  v_mov_b32 {v(X1)}, {v(LS)}')
        A(f'  v_add_u32 {v(X0)}, {s(sT)}, {v(VFL)}')
        A(f'  v_add_u32 {v(ALQ)}, {s(sT)}, {v(VST)}')
        A(f'  v_permlane32_swap_b32 {v(LS)}, {v(X1)}')
        A(f'  v_add_f32 {v(LS)}, {v(LS)}, {v(X1)}')
        A(f'  v_mov_b32 {v(X1)}, {v(LS)}')
        for i in range(3):
            A(f'  ds_write_b128 {v(X0)}, {v(ACC+4*i,4)} offset:{1024*i}')
        A(f'  v_permlane16_swap_b32 {v(LS)}, {v(X1)}')
        A(f'  v_add_f32 {v(LS)}, {v(LS)}, {v(X1)}')
        A(f'  ds_write_b64 {v(ALQ)}, {v(NB,2)}')
    def import_gate(tag):
        A(f'  s_cmp_lt_u32 {s(sF)}, {s(sGATE)}')
        A(f'  s_cbranch_scc1 L_{tag}_ok')
        A(f'L_{tag}_spin:')
        lds_word(sGATE, F_IMP)
        A(f'  s_cmp_lt_u32 {s(sF)}, {s(sGATE)}')
        A(f'  s_cbranch_scc0 L_{tag}_spin')
        A(f'L_{tag}_ok:')

    C('---------------- V loop: two units per trip')
    A(f'  v_subrev_u32 {v(VL1)}, {IMG - 32 * 384 * kord}, {v(VL1)}')
    A(f'  v_subrev_u32 {v(VL2)}, {IMG - 32 * 384 * kord}, {v(VL2)}')
    A(f'  s_mov_b32 {s(sF)}, s3')
    A(f'  s_mov_b32 {s(sHC)}, {s(sHN)}')
    A(f'  s_mov_b32 {s(sGATE)}, 0')
    A(f'  s_mov_b32 {s(SQ)}, {s(sOUT)}')
    A(f'  s_and_b32 {s(SQ+1)}, {s(sOUT+1)}, 0xffff')
    import_gate('v0')
    A(f'  ds_read_b128 {v(LG,4)}, {v(VL1)}')
    A(f'  ds_read_b64 {v(LG+4,2)}, {v(VL2)} offset:256')
    reset_state()
    def v_unit(u):
        o = NST * u
        A(f'L_v{u}:')
        if u == 0: diag_mark('v', NF)
        if u == 0: stamp()
        A(f'  s_add_u32 {s(sG)}, {s(sF)}, {NF}')
        A(f'  v_mov_b32 {v(AL)}, {s(sG)}')
        A(f'  s_mov_b32 {s(sQC)}, {s(sQ3)}')
        A(f'  ds_write_b32 {v(VPR)}, {v(AL)}')
        A(f'  s_add_u32 {s(sF)}, {s(sF)}, {W}')
        import_gate(f'v1{u}')
        map_unit(sF, 1)
        A(f'  s_cmp_lt_u32 {s(sF)}, {NF}')
        A(f'  s_cselect_b32 {s(sNXT)}, {s(sNXT)}, {TOTAL}')
        stp = 384 * W
        if kord and u == U - 1:
            stp = s(sL0)
            A(f'  s_lshr_b32 {s(sT)}, {s(sF)}, 1')
            A(f'  s_cmp_eq_u32 {s(sT)}, 32')
            A(f'  s_cselect_b32 {stp}, {384 * W - IMG}, {s(s768)}')
        prep = []
        for k in range(11):
            prep.append(f'  v_lshlrev_b32 {v(E+k)}, 16, {v(LG+k//2)}' if k % 2 == 0 else f'  v_and_b32 {v(E+k)}, {s(sMSK)}, {v(LG+k//2)}')
        prep += [f'  v_add_u32 {v(VL1)}, {stp}, {v(VL1)}',
                 f'  v_add_u32 {v(VL2)}, {stp}, {v(VL2)}',
                 f'  v_max3_f32 {v(X0)}, {v(E)}, {v(E+1)}, {v(E+2)}',
                 f'  ds_read_b128 {v(LG,4)}, {v(VL1)}',
                 f'  ds_read_b64 {v(LG+4,2)}, {v(VL2)} offset:256',
                 f'  v_max3_f32 {v(X1)}, {v(E+3)}, {v(E+4)}, {v(E+5)}',
                 f'  v_max3_f32 {v(X0)}, {v(X0)}, {v(E+6)}, {v(E+7)}',
                 f'  v_max3_f32 {v(X1)}, {v(X1)}, {v(E+8)}, {v(E+9)}',
                 f'  v_max3_f32 {v(X0)}, {v(X0)}, {v(E+10)}, {v(M)}',
                 f'  v_max_f32 {v(X0)}, {v(X0)}, {v(X1)}',
                 f'  v_mov_b32 {v(X1)}, {v(X0)}',
                 f'  v_permlane32_swap_b32 {v(X0)}, {v(X1)}',
                 f'  v_max_f32 {v(X0)}, {v(X0)}, {v(X1)}',
                 f'  v_mov_b32 {v(X1)}, {v(X0)}',
                 f'  v_permlane16_swap_b32 {v(X0)}, {v(X1)}',
                 f'  v_max_f32 {v(M)}, {v(X0)}, {v(X1)}',
                 f'  v_mul_f32 {v(X0)}, {s(sL2E)}, {v(M)}',
                 f'  v_add_f32 {v(AL)}, {v(X0)}, {v(NB)}',
                 f'  v_sub_f32 {v(NB)}, 0, {v(X0)}',
                 f'  v_exp_f32 {v(AL)}, -{v(AL)}',
                 f'  ds_bpermute_b32 {v(ALQ)}, {v(VBP)}, {v(AL)}']
        for k in range(11):
            prep += [f'  v_fma_f32 {v(E+k)}, {v(E+k)}, {s(sL2E)}, {v(NB)}', f'  v_exp_f32 {v(E+k)}, {v(E+k)}']
        prep += [f'  v_add_f32 {v(X0)}, {v(E)}, {v(E+1)}', f'  v_add_f32 {v(X1)}, {v(E+2)}, {v(E+3)}']
        for k in range(4, 11):
            x = X0 if k % 2 == 0 else X1
            prep.append(f'  v_add_f32 {v(x)}, {v(x)}, {v(E+k)}')
        prep += [f'  v_add_f32 {v(X0)}, {v(X0)}, {v(X1)}',
                 f'  v_fma_f32 {v(LS)}, {v(LS)}, {v(AL)}, {v(X0)}']
        for k in range(6):
            prep.append(f'  v_cvt_pk_bf16_f32 {v(PP+k)}, {v(E+2*k)}, {v(E+2*k+1) if k < 5 else 0}')
        for j in range(4):
            for k in range(4):
                prep.append(f'  v_cndmask_b32 {v(AJ+4*j+k)}, 0, {v(PP+k)}, {s(sMJ+2*j,2)}')
        prep.append('  s_waitcnt lgkmcnt(0)')
        for k in range(12):
            prep.append(f'  v_mul_f32 {v(ACC+k)}, {v(ALQ)}, {v(ACC+k)}')
        prep2 = [f'  v_cndmask_b32 {v(AK+2*j+k)}, 0, {v(PP+4+k)}, {s(sMJ+2*j,2)}' for j in range(4) for k in range(2)]
        for k in range(NST):
            ss, i = divmod(k, 3)
            mode(k)
            if k == SW: offsets(DCON)
            wait_step(k, 2, f'vw{u}_{k}', PSV)
            A(main_load(o + k + D, SV, sCUR if k < SW else sNXT))
            if k == 0:
                A(f'  v_mov_b32 {v(ZC)}, {v(ZN)}')
                A(f'  v_mov_b32 {v(SC)}, {v(SN)}')
            X = TV + 4 * i if ss % 2 == 0 else T
            c, rest = dequant(X, slot(o + k), (v(ZS,2), v(ZS,2)), (v(ZS,2), v(ZS,2)), 'op_sel_hi:[1,0] ', 'op_sel:[0,1]')
            if i == 0:
                c[2:2] = [f'  v_mov_b32_dpp {v(ZS)}, {v(ZC)} row_newbcast:{ss} row_mask:0xf bank_mask:0xf',
                          f'  v_mov_b32_dpp {v(ZS+1)}, {v(SC)} row_newbcast:{ss} row_mask:0xf bank_mask:0xf']
            for x in c: A(x)
            if k == PSV: vscale_loads()
            if ss % 2 == 1:
                rest += [f'  v_cvt_pk_bf16_f32 {v(BV+16*i+4*j+((ss>>1)&3))}, {v(TV+4*i+j)}, {v(T+j)}' for j in range(4)]
            if ss == 10:
                rest += [f'  v_cvt_pk_bf16_f32 {v(BV+16*i+4*j+1)}, {v(TV+4*i+j)}, 0' for j in range(4)]
            side = []
            if k >= 1: side, prep = prep[:5], prep[5:]
            if k == 20: assert not prep
            if k == 23: prep = prep2
            for x in merge(rest, side): A(x)
            if ss == 7:
                for j in range(4):
                    A(f'  v_mfma_f32_16x16x32_bf16 {v(ACC+4*i,4)}, {v(AJ+4*j,4)}, {v(BV+16*i+4*j,4)}, {v(ACC+4*i,4)}')
            if ss == 10:
                assert not prep
                for j in range(4):
                    A(f'  v_mfma_f32_16x16x16_bf16 {v(ACC+4*i,4)}, {v(AK+2*j,2)}, {v(BV+16*i+4*j,2)}, {v(ACC+4*i,4)}')
        A(f'  s_mov_b32 {s(sCUR)}, {s(sNXT)}')
        if u == U - 1:
            A(f'  s_cmp_ge_u32 {s(sF)}, {NF}')
            A('  s_cbranch_scc1 L_v_done')
            A(f'  s_cmp_eq_u32 {s(sHN)}, {s(sHC)}')
            A('  s_cbranch_scc1 L_v0')
            A(f'  s_mov_b32 {s(sHC)}, {s(sHN)}')
            flush()
            A('  s_waitcnt lgkmcnt(0)')
            reset_state()
            A('  s_branch L_v0')
    assert 16 % (W * U) == 0
    for u in range(U): v_unit(u)
    A('L_v_done:')
    stamp()
    flush()
    C('---------------- all three waves: wave i finishes dims 64i..64i+63 of the four segments')
    A('L_finish:')
    AC = (base + 3) // 4 * 4
    OF = AC; ST = AC + 8; PA = ST + 16; FR = PA + 32
    nv = max(nv, FR + 24)
    TB, VA, VS_, VG, VH = E, E + 4, E + 6, E + 8, E + 9
    TAG = OF + 7
    A(f'  v_mov_b32 {v(X0)}, {F_END}')
    A(f'  ds_read_b128 {v(OF,4)}, {v(X0)}')
    A(f'  ds_read_b128 {v(OF+4,4)}, {v(X0)} offset:16')
    A(f'  s_mul_i32 {s(sT)}, {s(sRO)}, {SEG}')
    A(f'  s_lshl_b32 {s(sT+1)}, s3, 10')
    A(f'  v_lshl_add_u32 {v(VA)}, v0, 4, {s(sT+1)}')
    A(f'  v_lshrrev_b32 {v(X1)}, 4, v0')
    A(f'  v_lshlrev_b32 {v(VS_)}, 3, {v(X1)}')
    A(f'  v_add_u32 {v(VS_)}, {LDS_ACC + W * 3072}, {v(VS_)}')
    A(f'  s_sub_u32 {s(sG)}, {SEG}, {s(sT)}')
    A(f'  v_add_u32 {v(VA+1)}, {s(sG)}, {v(VA)}')
    A(f'  v_add_u32 {v(M)}, {s(sT)}, {v(VA)}')
    A(f'  s_sub_u32 {s(sG)}, {2 * SEG}, {s(sT)}')
    A(f'  v_add_u32 {v(ZN)}, {s(sG)}, {v(VS_)}')
    A(f'  s_add_u32 {s(sG)}, {s(sT)}, {SEG}')
    A(f'  v_add_u32 {v(SN)}, {s(sG)}, {v(VS_)}')
    A(f'  v_add_u32 {v(VS_+1)}, {3 * SEG}, {v(VS_)}')
    A(f'  s_mul_i32 {s(sT)}, s3, {PIECE}')
    A(f'  v_lshl_add_u32 {v(VG)}, v0, 4, {s(sT)}')
    A(f'  v_lshl_add_u32 {v(VH)}, {v(X1)}, 5, {s(sT)}')
    A(f'  v_and_b32 {v(AL)}, 1, v0')
    A(f'  v_lshl_add_u32 {v(VH)}, {v(AL)}, 4, {v(VH)}')
    A(f'  v_mul_u32_u24 {v(AL)}, 384, {v(X1)}')
    A(f'  v_and_b32 {v(X1)}, 15, v0')
    A(f'  v_lshl_add_u32 {v(AL)}, {v(X1)}, 3, {v(AL)}')
    A(f'  s_movk_i32 {s(sMSK)}, 0xff00')
    A(f'  s_mov_b32 {s(sL0)}, 0x30003')
    A(f'  s_mov_b32 {s(sL0+1)}, 0x30003')
    A(f'  s_mov_b32 {s(sL10)}, 0x0c0c0400')
    A(f'  s_mov_b32 {s(sL10+1)}, 0x05040100')
    A(f'  s_mov_b32 {s(sF)}, 0')
    A('  s_waitcnt vmcnt(0) lgkmcnt(0)')
    sO = 72
    def fetch(r):
        A(f'  buffer_load_dwordx4 {v(FR+8*r,4)}, {v(VG)}, {s(SWS,4)}, {s(sO+3+r)} offen sc1')
        A(f'  buffer_load_dwordx4 {v(FR+8*r+4,4)}, {v(VH)}, {s(SWS,4)}, {s(sO+3+r)} offen offset:1024 sc1')
    A('  s_barrier')
    slots = ((VA, 0, VS_), (VA, 3, VS_ + 1), (VA + 1, 1, ZN), (M, 1, SN))
    for j, (va_, sl, vs_) in enumerate(slots):
        A(f'  ds_read2_b64 {v(ST+4*j,4)}, {v(vs_)} offset1:4')
        for w in range(W):
            A(f'  ds_read_b128 {v(PA+8*j+4*w,4)}, {v(va_)} offset:{LDS_ACC + sl * SEG + 3072*w}')
    for k in range(7): A(f'  v_readfirstlane_b32 {s(sO+k)}, {v(OF+k)}')
    for k in range(4): A(f'  v_bfe_u32 {v(TB+k)}, {v(TAG)}, {8 * k}, 8')
    C('three segments are published, the fourth belongs to the head this workgroup owns')
    for j in range(4):
        st = ST + 4 * j; pa = PA + 8 * j
        A(f'  s_waitcnt lgkmcnt({3 * (3 - j)})')
        A(f'  v_min_f32 {v(X0)}, {v(st)}, {v(st+2)}')
        for w in range(2): A(f'  v_sub_f32 {v(st+2*w)}, {v(X0)}, {v(st+2*w)}')
        for w in range(2): A(f'  v_exp_f32 {v(st+2*w)}, {v(st+2*w)}')
        A(f'  v_mul_f32 {v(X1)}, {v(st)}, {v(st+1)}')
        for h in range(2): A(f'  v_pk_mul_f32 {v(pa+2*h,2)}, {v(pa+2*h,2)}, {v(st,2)} op_sel_hi:[1,0]')
        for h in range(2): A(f'  v_pk_fma_f32 {v(pa+2*h,2)}, {v(pa+4+2*h,2)}, {v(st+2,2)}, {v(pa+2*h,2)} op_sel_hi:[1,0,1]')
        A(f'  v_fma_f32 {v(pa+5)}, {v(st+2)}, {v(st+3)}, {v(X1)}')
        A(f'  v_mov_b32 {v(pa+4)}, {v(X0)}')
        if j < 3:
            for x in range(4): A(f'  v_and_or_b32 {v(pa+x)}, {v(pa+x)}, {s(sMSK)}, {v(TB+x)}')
            A(f'  v_mov_b32 {v(pa+7)}, {v(TAG)}')
            A(f'  buffer_store_dwordx4 {v(pa,4)}, {v(VG)}, {s(SWS,4)}, {s(sO+j)} offen sc1')
            A(f'  s_mov_b64 exec, {s(sL0,2)}')
            A(f'  buffer_store_dwordx4 {v(pa+4,4)}, {v(VH)}, {s(SWS,4)}, {s(sO+j)} offen offset:1024 sc1')
            A('  s_mov_b64 exec, -1')
        if j == 2:
            stamp()
            for r in range(3): fetch(r)
    A('  s_branch L_check')
    C('gather the three foreign records of the owned head; a granule counts once it carries this launch\'s tag')
    A('L_gather:')
    A(f'  s_add_u32 {s(sF)}, {s(sF)}, 1')
    A(f'  s_cmp_gt_u32 {s(sF)}, 200000')
    A('  s_cbranch_scc1 L_end')
    for r in range(3):
        A(f'  s_bitcmp0_b32 {s(sMISS)}, {r}')
        A(f'  s_cbranch_scc1 L_have{r}')
        fetch(r)
        A(f'L_have{r}:')
    A('L_check:')
    A(f'  s_mov_b32 {s(sMISS)}, 0')
    A('  s_waitcnt vmcnt(0)')
    for r in range(3):
        b = FR + 8 * r
        A(f'  v_perm_b32 {v(X0)}, {v(b+1)}, {v(b)}, {s(sL10)}')
        A(f'  v_perm_b32 {v(X1)}, {v(b+3)}, {v(b+2)}, {s(sL10)}')
        A(f'  v_cmp_ne_u32 vcc, {v(TAG)}, {v(b+7)}')
        A(f'  v_perm_b32 {v(X0)}, {v(X1)}, {v(X0)}, {s(sL10+1)}')
        A(f'  v_cmp_ne_u32 {s(sT,2)}, {v(TAG)}, {v(X0)}')
        A(f'  s_or_b64 {s(sT,2)}, {s(sT,2)}, vcc')
        A(f'  s_cselect_b32 {s(sT)}, {1 << r}, 0')
        A(f'  s_or_b32 {s(sMISS)}, {s(sMISS)}, {s(sT)}')
    A('  s_cbranch_scc1 L_gather')
    stamp()
    C('(own + partner) + (neighbour pair): products are rounded separately, so the sum does not depend on who had which class')
    B4 = [PA + 24, FR, FR + 8, FR + 16]
    A(f'  v_min_f32 {v(X0)}, {v(B4[0]+4)}, {v(B4[1]+4)}')
    A(f'  v_min3_f32 {v(X0)}, {v(X0)}, {v(B4[2]+4)}, {v(B4[3]+4)}')
    for b in B4: A(f'  v_sub_f32 {v(b+4)}, {v(X0)}, {v(b+4)}')
    for b in B4: A(f'  v_exp_f32 {v(b+4)}, {v(b+4)}')
    for b in B4:
        for x in range(4): A(f'  v_and_b32 {v(b+x)}, {s(sMSK)}, {v(b+x)}')
    for b in B4: A(f'  v_mul_f32 {v(b+5)}, {v(b+4)}, {v(b+5)}')
    A(f'  v_add_f32 {v(B4[0]+5)}, {v(B4[0]+5)}, {v(B4[1]+5)}')
    A(f'  v_add_f32 {v(B4[2]+5)}, {v(B4[2]+5)}, {v(B4[3]+5)}')
    A(f'  v_add_f32 {v(X0)}, {v(B4[0]+5)}, {v(B4[2]+5)}')
    A(f'  v_rcp_f32 {v(X0)}, {v(X0)}')
    A(f'  s_lshl_b32 {s(sT)}, s3, 7')
    A(f'  s_add_u32 {s(sT)}, {s(sT)}, {s(sO+6)}')
    for x in (0, 2):
        for b in B4: A(f'  v_pk_mul_f32 {v(b+x,2)}, {v(b+x,2)}, {v(b+4,2)} op_sel_hi:[1,0]')
        A(f'  v_pk_add_f32 {v(B4[0]+x,2)}, {v(B4[0]+x,2)}, {v(B4[1]+x,2)}')
        A(f'  v_pk_add_f32 {v(B4[2]+x,2)}, {v(B4[2]+x,2)}, {v(B4[3]+x,2)}')
        A(f'  v_pk_add_f32 {v(B4[0]+x,2)}, {v(B4[0]+x,2)}, {v(B4[2]+x,2)}')
        A(f'  v_pk_mul_f32 {v(B4[0]+x,2)}, {v(B4[0]+x,2)}, {v(X0,2)} op_sel_hi:[1,0]')
        A(f'  v_cvt_pk_bf16_f32 {v(ACC+x//2)}, {v(B4[0]+x)}, {v(B4[0]+x+1)}')
    A(f'  buffer_store_dwordx2 {v(ACC,2)}, {v(AL)}, {s(SQ,4)}, {s(sT)} offen')
    A('L_fin:')
    if diagpad:
        A('L_diag:')
        A(f'  s_memrealtime {s(sBIG,2)}')
        A('  s_waitcnt lgkmcnt(0)')
        A(f'  s_sub_u32 {s(sBIG)}, {s(sBIG)}, s6')
        A(f'  s_cmp_lt_u32 {s(sBIG)}, {diagpad * 100}')
        A('  s_cbranch_scc1 L_diag')
    if tl:
        A(f'  s_mul_i32 {s(sT)}, s2, {W+1}')
        A(f'  s_add_u32 {s(sT)}, {s(sT)}, s3')
        A(f'  s_lshl_b32 {s(sT)}, {s(sT)}, 8')
        A(f'  s_add_u32 {s(sT)}, {s(sT)}, 0x10000')
        A(f'  v_lshl_add_u32 {v(E)}, v0, 2, {s(sT)}')
        A(f'  global_store_dword {v(E)}, {v(TL)}, {s(sWS,2)}')
    if stamps:
        A('  s_waitcnt vmcnt(0)')
        A(f'  s_memrealtime {s(sBIG,2)}')
        A(f'  s_getreg_b32 {s(sSM)}, hwreg(HW_REG_XCC_ID)')
        A(f'  s_mul_i32 {s(sT)}, s2, {W+1}')
        A(f'  s_add_u32 {s(sT)}, {s(sT)}, s3')
        A(f'  s_lshl_b32 {s(sT)}, {s(sT)}, 4')
        A('  s_waitcnt lgkmcnt(0)')
        A(f'  v_mov_b32 {v(RING)}, s6')
        A(f'  v_mov_b32 {v(RING+1)}, {s(sBIG)}')
        A(f'  v_mov_b32 {v(RING+2)}, {s(sSM)}')
        A(f'  v_mov_b32 {v(RING+3)}, {s(sDEC)}')
        A(f'  v_mov_b32 {v(X0)}, {s(sT)}')
        A('  s_mov_b64 exec, 1')
        A(f'  global_store_dwordx4 {v(X0)}, {v(RING,4)}, {s(sWS,2)}')
    A('L_end:')
    A('  s_endpgm')

    C('================= helper wave')
    A('L_helper:')
    if tl:
        A(f'  s_mov_b32 {s(sTL)}, 0')
        A(f'  v_mov_b32 {v(TL)}, 0')
    hA, hZ, hO, h1, h2, h3, hD = 1, 2, 3, 4, 5, 6, 8
    hP, hQ, hC, hX, hW, hU, hT = hD + 96, hD + 97, hD + 98, hD + 100, hD + 104, hD + 105, hD + 106
    assert hT + 1 < TL
    A(f'  v_lshlrev_b32 {v(hA)}, 2, v0')
    A(f'  v_add_u32 {v(hA)}, {LDS_F}, {v(hA)}')
    A(f'  v_mov_b32 {v(hZ)}, 0')
    A('  s_mov_b64 exec, 0xff')
    A(f'  ds_write_b32 {v(hA)}, {v(hZ)}')
    A('  s_mov_b64 exec, -1')
    A('  s_waitcnt lgkmcnt(0)')
    make_srds(4, 9)
    A(f'  s_mov_b32 {s(SQ)}, {s(PT+14)}')
    A(f'  s_and_b32 {s(SQ+1)}, {s(PT+15)}, 0xffff')
    A('  s_barrier')
    sOF, sN0, sV0, sJ, sSF, sA, sB, sX, sCNT, sME, sPA, sFA, sFS, sQD = 44, 45, 48, 50, 52, 54, 56, 58, 59, 60, 61, 62, 63, 64
    sT0, sNON, sCP, sCA, sUP, sRET, sSUB = 72, 74, 76, 77, 78, 84, 86
    A(f'  s_memrealtime {s(sT0,2)}')
    def code_touch(tag):
        A(f'  s_lshr_b32 {s(sT)}, s2, 3')
        A(f'  s_cmp_lt_u32 {s(sT)}, (L_code_end - L_k) / 1024')
        A(f'  s_cbranch_scc0 L_h_ct{tag}')
        A(f'  global_load_dwordx4 {v(hX,4)}, {v(hC,2)}, off')
        A(f'L_h_ct{tag}:')
    C('workgroup i reads kilobyte i/8 of this kernel\'s code so that first instruction fetches hit L2')
    A(f'  s_getpc_b64 {s(sA,2)}')
    A('L_h_pc:')
    A(f'  s_add_u32 {s(sSUB)}, {s(sA)}, L_h_cp - L_h_pc')
    A(f'  s_addc_u32 {s(sSUB+1)}, {s(sA+1)}, 0')
    A(f'  s_sub_u32 {s(sA)}, {s(sA)}, L_h_pc - L_k')
    A(f'  s_subb_u32 {s(sA+1)}, {s(sA+1)}, 0')
    A(f'  s_and_b32 {s(sA)}, {s(sA)}, -16')
    A(f'  s_lshr_b32 {s(sT)}, s2, 3')
    A(f'  s_lshl_b32 {s(sT)}, {s(sT)}, 10')
    A(f'  v_lshl_add_u32 {v(hC)}, v0, 4, {s(sT)}')
    A(f'  v_mov_b32 {v(hC+1)}, {s(sA+1)}')
    A(f'  v_add_co_u32 {v(hC)}, vcc, {s(sA)}, {v(hC)}')
    A(f'  v_addc_co_u32 {v(hC+1)}, vcc, 0, {v(hC+1)}, vcc')
    code_touch('a')
    A(f'  s_lshl_b32 {s(sT)}, s2, 6')
    A(f'  v_lshl_add_u32 {v(hP)}, v0, 3, {s(sT)}')
    A(f'  v_bfe_u32 {v(hQ)}, v0, 1, 3')
    A(f'  v_lshlrev_b32 {v(hQ)}, 6, {v(hQ)}')
    A(f'  v_and_b32 {v(hW)}, 1, v0')
    A(f'  v_lshl_add_u32 {v(hQ)}, {v(hW)}, 3, {v(hQ)}')
    A(f'  v_lshlrev_b32 {v(hW)}, 2, {v(hW)}')
    A(f'  v_add_u32 {v(hW)}, {F_PRG}, {v(hW)}')
    A(f'  v_mov_b32 {v(hU)}, 0')
    A(f'  v_lshlrev_b32 {v(hO)}, 4, v0')
    A(f'  s_mov_b32 {s(sCP)}, {cp0}')
    A(f'  s_mov_b32 {s(sCA)}, {WS_CP}')
    def wait_progress(tag, lim, slp):
        A(f'L_h_prog{tag}:')
        A(f'  s_sleep {slp}')
        A(f'  ds_read_b32 {v(hD)}, {v(hW)}')
        A('  s_waitcnt lgkmcnt(0)')
        A(f'  v_cmp_gt_u32 vcc, {lim}, {v(hD)}')
        A('  s_cmp_lg_u32 vcc_lo, 0')
        A(f'  s_cbranch_scc1 L_h_prog{tag}')
    def lds_set(addr, val):
        A(f'  v_mov_b32 {v(hA)}, {addr}')
        A(f'  v_mov_b32 {v(h2)}, {val}')
        A(f'  ds_write_b32 {v(hA)}, {v(h2)}')
    C('vote word in d_debug: six 6-bit tallies (class near die 0 in even pages, per slab of qk and qv), four 4-bit tallies')
    C(f'(die of role 0 per wg&3) and the voter count in the top 12 bits; {7 * NV} workgroups vote')
    A(f'  s_getreg_b32 {s(sJ)}, hwreg(HW_REG_XCC_ID)')
    A(f'  s_bfe_u32 {s(sJ)}, {s(sJ)}, 0x10002')
    A(f'  s_bfe_u32 {s(sSF)}, s2, 0x30003')
    A(f'  s_cmp_eq_u32 {s(sSF)}, 7')
    A('  s_cbranch_scc1 L_h_voted')
    A(f'  s_lshr_b32 {s(sT)}, s2, 6')
    A(f'  s_xor_b32 {s(sT)}, {s(sT)}, s2')
    A(f'  s_and_b32 {s(sT)}, {s(sT)}, {32 // NV - 1}')
    A('  s_cbranch_scc1 L_h_voted')
    A(f'  s_cmp_eq_u32 {s(sSF)}, 6')
    A('  s_cbranch_scc0 L_h_probe')
    A(f'  s_xor_b32 {s(sV0)}, {s(sJ)}, {s(sRO)}')
    A(f'  s_and_b32 {s(sSF)}, s2, 3')
    A(f'  s_lshl2_add_u32 {s(sSF)}, {s(sSF)}, 36')
    A('  s_branch L_h_vote')
    A('L_h_probe:')
    A(f'  s_cmp_ge_u32 {s(sSF)}, 3')
    A(f'  s_cselect_b32 {s(SI)}, {s(SV)}, {s(SK)}')
    A(f'  s_cselect_b32 {s(SI+1)}, {s(SV+1)}, {s(SK+1)}')
    A(f'  s_cselect_b32 {s(sT)}, 3, 0')
    A(f'  s_sub_u32 {s(sT)}, {s(sSF)}, {s(sT)}')
    A(f'  s_lshl_b32 {s(sT)}, {s(sT)}, 28')
    A(f'  s_add_u32 {s(sOF)}, {s(sPB)}, {s(sRO)}')
    A(f'  s_lshl_b32 {s(sOF)}, {s(sOF)}, 16')
    A(f'  s_add_u32 {s(sOF)}, {s(sOF)}, {s(sT)}')
    A(f'  s_add_u32 {s(sOF)}, {s(sOF)}, 0x1c0000')
    A(f'  s_mul_i32 {s(sT)}, s2, 0x2a95')
    A(f'  s_and_b32 {s(sT)}, {s(sT)}, 0x7f80')
    A(f'  s_add_u32 {s(sOF)}, {s(sOF)}, {s(sT)}')
    A(f'  s_add_u32 {s(sT)}, {s(sOF)}, 0x8000')
    A(f'  s_buffer_load_dword {s(sX)}, {s(SI,4)}, {s(sT)}')
    A(f'  s_mov_b32 {s(sN0)}, -1')
    A(f'  s_mov_b32 {s(sN0+1)}, -1')
    A(f'  s_mul_i32 {s(sSF)}, {s(sSF)}, 6')
    wait_progress('p', 1, 2)
    for k in range(NS):
        for c in ((0, 1) if k % 2 == 0 else (1, 0)):
            o = (((k & 1) << 14) | ((k >> 1 & 1) << 12) | ((k * 0x380) & 0xfff)) ^ (c << 13)
            A(f'  s_xor_b32 {s(sT)}, {s(sOF)}, {o}')
            A(f'  s_memtime {s(sA,2)}')
            A('  s_waitcnt lgkmcnt(0)')
            A(f'  s_buffer_load_dword {s(sX)}, {s(SI,4)}, {s(sT)}')
            A('  s_waitcnt lgkmcnt(0)')
            A(f'  s_memtime {s(sB,2)}')
            A('  s_waitcnt lgkmcnt(0)')
            A(f'  s_sub_u32 {s(sB)}, {s(sB)}, {s(sA)}')
            A(f'  s_min_u32 {s(sN0+c)}, {s(sN0+c)}, {s(sB)}')
    A(f'  s_cmp_lt_u32 {s(sN0+1)}, {s(sN0)}')
    A(f'  s_cselect_b32 {s(sV0)}, 1, 0')
    A(f'  s_lshr_b32 {s(sT)}, {s(sOF)}, 13')
    A(f'  s_xor_b32 {s(sT)}, {s(sT)}, s2')
    A(f'  s_xor_b32 {s(sT)}, {s(sT)}, {s(sJ)}')
    A(f'  s_and_b32 {s(sT)}, {s(sT)}, 1')
    A(f'  s_xor_b32 {s(sV0)}, {s(sV0)}, {s(sT)}')
    A('L_h_vote:')
    A(f'  s_mov_b32 {s(sV0+1)}, 0')
    A(f'  s_lshl_b64 {s(sV0,2)}, {s(sV0,2)}, {s(sSF)}')
    A(f'  s_or_b32 {s(sV0+1)}, {s(sV0+1)}, 0x100000')
    A(f'  s_atomic_add_x2 {s(sV0,2)}, {s(sDBG,2)}, 0')
    A('L_h_voted:')
    A('  s_waitcnt lgkmcnt(0)')
    C('launch nonce (tells this launch\'s hand-offs in ws from older contents)')
    A('  s_cmp_lg_u32 s2, 56')
    A('  s_cbranch_scc1 L_h_nonce')
    A(f'  s_lshl_b64 {s(sA,2)}, {s(sT0,2)}, 2')
    A(f'  s_atomic_add_x2 {s(sA,2)}, {s(sDBG,2)}, 8')
    A('  s_waitcnt lgkmcnt(0)')
    A('L_h_nonce:')
    stamp()
    def checkpoints(upto):
        A(f'  s_mov_b32 {s(sUP)}, {min(upto, last) - dly}')
        A(f'  s_swappc_b64 {s(sRET,2)}, {s(sSUB,2)}')
    def bounded(label, n):
        A(f'  s_add_u32 {s(sCNT)}, {s(sCNT)}, 1')
        A(f'  s_cmp_gt_u32 {s(sCNT)}, {n}')
        A(f'  s_cbranch_scc1 {label}')
    wait_progress('v', NWU - W, 8)
    A(f'  s_load_dwordx2 {s(sV0,2)}, {s(sDBG,2)}, 0')
    A(f'  s_mov_b32 {s(sCNT)}, 0')
    A('L_h_votes:')
    A('  s_waitcnt lgkmcnt(0)')
    A(f'  s_lshr_b32 {s(sT)}, {s(sV0+1)}, 20')
    A(f'  s_cmp_ge_u32 {s(sT)}, {7 * NV}')
    A('  s_cbranch_scc1 L_h_votes_done')
    bounded('L_h_votes_done', 8000)
    A('  s_sleep 64')
    A(f'  s_mov_b64 {s(sV0,2)}, 0')
    A(f'  s_atomic_or_x2 {s(sV0,2)}, {s(sDBG,2)}, 0 glc')
    A('  s_branch L_h_votes')
    A('L_h_votes_done:')
    A(f'  s_mov_b32 {s(sDEC)}, 0x80')
    for j in range(6):
        A(f'  s_bfe_u64 {s(sA,2)}, {s(sV0,2)}, {hex(0x60000 | (6 * j))}')
        A(f'  s_cmp_gt_u32 {s(sA)}, {NV // 2}')
        A(f'  s_cselect_b32 {s(sB)}, {1 << j}, 0')
        A(f'  s_or_b32 {s(sDEC)}, {s(sDEC)}, {s(sB)}')
    if force >= 0: A(f'  s_mov_b32 {s(sDEC)}, {0x80 | force}')
    A(f'  s_and_b32 {s(sT)}, s2, 3')
    A(f'  s_lshl2_add_u32 {s(sT)}, {s(sT)}, {4 + (NV // 4).bit_length() - 1}')
    A(f'  s_lshr_b32 {s(sA)}, {s(sV0+1)}, {s(sT)}')
    A(f'  s_xor_b32 {s(sA)}, {s(sA)}, s2')
    A(f'  s_xor_b32 {s(sA)}, {s(sA)}, {s(sRO)}')
    A(f'  s_and_b32 {s(sA)}, {s(sA)}, 1')
    A(f'  s_mul_i32 {s(sA)}, {s(sA)}, 63')
    A(f'  s_xor_b32 {s(sDEC)}, {s(sDEC)}, {s(sA)}')
    lds_set(F_DEC, s(sDEC))
    stamp()
    A(f'  s_load_dwordx2 {s(sNON,2)}, {s(sDBG,2)}, 8')
    A(f'  s_mov_b32 {s(sCNT)}, 0')
    A('L_h_getnonce:')
    A('  s_waitcnt lgkmcnt(0)')
    A(f'  s_cmp_lg_u64 {s(sNON,2)}, 0')
    A('  s_cbranch_scc1 L_h_gotnonce')
    bounded('L_h_gotnonce', 8000)
    A('  s_sleep 64')
    A(f'  s_atomic_or_x2 {s(sNON,2)}, {s(sDBG,2)}, 8 glc')
    A('  s_branch L_h_getnonce')
    A('L_h_gotnonce:')
    A(f'  s_lshr_b64 {s(sA,2)}, {s(sNON,2)}, 2')
    C('table for the finish: ws offsets of the records to publish (slots 0, 3, 2-role) and to gather, output offset, tag.')
    C('record = 8*(page/3) + 2*slot + class; the page of type t = page%3 lies in slab (2t + pair) % 3')
    A(f'  v_writelane_b32 {v(hD)}, {s(sA)}, 7')
    A(f'  s_lshr_b32 {s(sQD)}, {s(sPB)}, 5')
    A(f'  s_mov_b32 {s(sJ)}, 0xaaaaaaab')
    def rec_base(t):
        A(f'  s_add_u32 {s(sA)}, {s(sQD)}, {2 * t}')
        A(f'  s_mul_hi_u32 {s(sB)}, {s(sA)}, {s(sJ)}')
        A(f'  s_lshr_b32 {s(sB)}, {s(sB)}, 1')
        A(f'  s_mul_i32 {s(sB)}, {s(sB)}, 3')
        A(f'  s_sub_u32 {s(sA)}, {s(sA)}, {s(sB)}')
        A(f'  s_lshr_b32 {s(sB)}, {s(sDEC)}, {s(sA)}')
        A(f'  s_bfe_u32 {s(sB)}, {s(sB)}, 0x10003')
        A(f'  s_lshl_b32 {s(sA)}, {s(sA)}, 7')
        A(f'  s_add_u32 {s(sA)}, {s(sA)}, {s(sQD)}')
        A(f'  s_mul_hi_u32 {s(sA)}, {s(sA)}, {s(sJ)}')
        A(f'  s_lshr_b32 {s(sA)}, {s(sA)}, 1')
        A(f'  s_lshl3_add_u32 {s(sA)}, {s(sA)}, {s(sB)}')
    def put(lane, reg):
        A(f'  s_mul_i32 {s(sT)}, {s(reg)}, {REC}')
        A(f'  s_add_u32 {s(sT)}, {s(sT)}, {WS_REC}')
        A(f'  v_writelane_b32 {v(hD)}, {s(sT)}, {lane}')
    rec_base(0)
    put(0, sA)
    rec_base(2)
    A(f'  s_add_u32 {s(sA)}, {s(sA)}, 6')
    put(1, sA)
    rec_base(1)
    A(f'  s_lshl_b32 {s(sB)}, {s(sRO)}, 1')
    A(f'  s_sub_u32 {s(sB+1)}, {s(sA)}, {s(sB)}')
    A(f'  s_add_u32 {s(sB+1)}, {s(sB+1)}, 4')
    put(2, sB + 1)
    A(f'  s_add_u32 {s(sA)}, {s(sA)}, {s(sB)}')
    A(f'  s_add_u32 {s(sA)}, {s(sA)}, 2')
    A(f'  s_xor_b32 {s(sB)}, {s(sA)}, 1')
    put(3, sB)
    A(f'  s_andn2_b32 {s(sB)}, {s(sA)}, 1')
    A(f'  s_xor_b32 {s(sB)}, {s(sB)}, 2')
    put(4, sB)
    A(f'  s_add_u32 {s(sB)}, {s(sB)}, 1')
    put(5, sB)
    A(f'  s_lshr_b32 {s(sA)}, {s(sA)}, 2')
    A(f'  s_mul_i32 {s(sA)}, {s(sA)}, 1536')
    A(f'  v_writelane_b32 {v(hD)}, {s(sA)}, 6')
    A(f'  v_lshlrev_b32 {v(hA)}, 2, v0')
    A('  s_mov_b64 exec, 0xff')
    A(f'  ds_write_b32 {v(hA)}, {v(hD)} offset:{F_END}')
    A('  s_mov_b64 exec, -1')
    C('logit swap: flag line per workgroup; image q = 2*pair + role keeps kilobyte k at g(q) xor f(k), both xor-linear:')
    C('pairs of kilobytes share DRAM rows, the rest spreads over the channels')
    A(f'  s_lshl_b32 {s(sFA)}, s2, 8')
    A(f'  s_add_u32 {s(sFA)}, {s(sFA)}, {WS_FLAG}')
    A(f'  s_xor_b32 {s(sFS)}, {s(sFA)}, 1024')
    A(f'  s_lshr_b32 {s(sX)}, {s(sDEC)}, 3')
    A(f'  s_xor_b32 {s(sX)}, {s(sX)}, {s(sDEC)}')
    B_ = lambda *bits: sum(1 << b for b in bits)
    QV = [B_(b) for b in (10, 11, 12, 13, 14, 21, 22, 23)]
    KV = [B_(15), B_(16, 11), B_(17, 10, 12), B_(18, 11, 13), B_(19, 10), B_(20, 12)]
    def lin(vecs, x):
        r = 0
        for b, w in enumerate(vecs):
            if x >> b & 1: r ^= w
        return r
    pxor = lambda k: lin(KV, k)
    assert len({lin(QV, q) ^ pxor(k) for q in range(256) for k in range(36)}) == 256 * 36
    A(f'  s_mov_b32 {s(sOF)}, {WS_IMG}')
    for b_ in range(1, 8):
        A(f'  s_bitcmp1_b32 {s(sPB)}, {4 + b_}')
        A(f'  s_cselect_b32 {s(sT)}, {QV[b_]}, 0')
        A(f'  s_xor_b32 {s(sOF)}, {s(sOF)}, {s(sT)}')
    A(f'  s_mul_i32 {s(sT)}, {s(sRO)}, {QV[0]}')
    A(f'  s_xor_b32 {s(sME)}, {s(sOF)}, {s(sT)}')
    A(f'  s_xor_b32 {s(sPA)}, {s(sME)}, {QV[0]}')
    NW = NWU * 384 // 1024
    def reg(k): return hD + 4 * (k % 24)
    def export(lo, hi):
        for k in range(lo, hi): A(f'  ds_read_b128 {v(reg(k),4)}, {v(hO)} offset:{1024*k}')
        A('  s_waitcnt lgkmcnt(0)')
        for k in range(lo, hi):
            A(f'  s_xor_b32 {s(sT)}, {s(sME)}, {pxor(k)}')
            A(f'  buffer_store_dwordx4 {v(reg(k),4)}, {v(hO)}, {s(SWS,4)}, {s(sT)} offen sc1')
    def imp(lo, hi):
        for k in range(lo, hi):
            A(f'  s_xor_b32 {s(sT)}, {s(sPA)}, {pxor(k)}')
            A(f'  buffer_load_dwordx4 {v(reg(k),4)}, {v(hO)}, {s(SWS,4)}, {s(sT)} offen sc1')
        A('  s_waitcnt vmcnt(0)')
        for k in range(lo, hi): A(f'  ds_write_b128 {v(hO)}, {v(reg(k),4)} offset:{1024*k}')
    def cond(bit, tag, fn):
        A(f'  s_bitcmp0_b32 {s(sX)}, {bit}')
        A(f'  s_cbranch_scc1 L_h_{tag}')
        fn()
        A(f'L_h_{tag}:')
    def handshake(tag, level):
        A(f'  s_add_u32 {s(sA)}, {s(sNON)}, {level}')
        A(f'  v_lshlrev_b32 {v(h2)}, 3, v0')
        A('  s_waitcnt vmcnt(0)')
        A(f'  v_mov_b32 {v(hD)}, {s(sA)}')
        A(f'  v_mov_b32 {v(hD+1)}, {s(sNON+1)}')
        A('  s_mov_b64 exec, 0xffff')
        A(f'  buffer_store_dwordx2 {v(hD,2)}, {v(h2)}, {s(SWS,4)}, {s(sFA)} offen sc1')
        A('  s_mov_b64 exec, 1')
        A(f'  s_mov_b32 {s(sCNT)}, 0')
        A(f'L_h_flag{tag}:')
        A(f'  buffer_load_dwordx2 {v(hD+2,2)}, {v(h2)}, {s(SWS,4)}, {s(sFS)} offen sc1')
        A('  s_waitcnt vmcnt(0)')
        A(f'  v_readfirstlane_b32 {s(sB)}, {v(hD+2)}')
        A(f'  v_readfirstlane_b32 {s(sB+1)}, {v(hD+3)}')
        A(f'  s_sub_u32 {s(sB)}, {s(sB)}, {s(sA)}')
        A(f'  s_xor_b32 {s(sB+1)}, {s(sB+1)}, {s(sNON+1)}')
        A(f'  s_lshr_b32 {s(sB)}, {s(sB)}, 1')
        A(f'  s_or_b32 {s(sB)}, {s(sB)}, {s(sB+1)}')
        A(f'  s_cbranch_scc0 L_h_flag{tag}_done')
        bounded(f'L_h_flag{tag}_done', 100000)
        A('  s_sleep 8')
        A(f'  s_branch L_h_flag{tag}')
        A(f'L_h_flag{tag}_done:')
        A('  s_mov_b64 exec, -1')
    pg = (2, 0, 1) if kord else (0, 1, 2)
    checkpoints(64)
    wait_progress('a', 64, 4)
    stamp()
    export(0, NW)
    cond(pg[0], 'e0', lambda: export(NW, 12))
    cond(pg[1], 'e1', lambda: export(12, 24))
    handshake('a', 1)
    stamp()
    C('first units: slot f comes from the image of role f&1, slot (f&~1) + V class of that page')
    A(f'  s_bfe_u32 {s(sA)}, {s(sDEC)}, {hex(0x10003 + pg[0])}')
    A(f'  s_mul_i32 {s(sA)}, {s(sA)}, 384')
    A(f'  v_lshrrev_b32 {v(h1)}, 3, v0')
    for k in range(NW):
        A(f'  v_add_u32 {v(h2)}, {8 * k}, {v(h1)}')
        A(f'  v_mul_u32_u24 {v(h2)}, 21846, {v(h2)}')
        A(f'  v_bfe_u32 {v(h2)}, {v(h2)}, 16, 1')
        A(f'  v_mul_u32_u24 {v(h3)}, 384, {v(h2)}')
        A(f'  v_sub_u32 {v(h3)}, {v(hO)}, {v(h3)}')
        A(f'  v_add_u32 {v(h3)}, {s(sA)}, {v(h3)}')
        A(f'  v_add_u32 {v(h3)}, {1024 * k}, {v(h3)}')
        assert NW <= 4
        A(f'  v_mul_u32_u24 {v(h2)}, {QV[0]}, {v(h2)}')
        A(f'  v_xor_b32 {v(h2)}, {s(sOF)}, {v(h2)}')
        for b_ in range(2):
            A(f'  v_bfe_u32 {v(hZ)}, {v(h3)}, {10 + b_}, 1')
            A(f'  v_mul_u32_u24 {v(hZ)}, {pxor(1 << b_)}, {v(hZ)}')
            A(f'  v_xor_b32 {v(h2)}, {v(h2)}, {v(hZ)}')
        A(f'  v_and_b32 {v(h3)}, 1023, {v(h3)}')
        A(f'  v_add_u32 {v(h2)}, {v(h2)}, {v(h3)}')
        A(f'  buffer_load_dwordx4 {v(reg(k),4)}, {v(h2)}, {s(SWS,4)}, 0 offen sc1')
    cond(pg[0], 'i0', lambda: imp(NW, 12))
    cond(pg[1], 'i1', lambda: imp(12, 24))
    A('  s_waitcnt vmcnt(0)')
    for k in range(NW): A(f'  ds_write_b128 {v(hO)}, {v(reg(k),4)} offset:{1024*k}')
    stamp()
    A(f'  s_bitcmp0_b32 {s(sX)}, {pg[2]}')
    A(f'  s_cselect_b32 {s(sT)}, 255, {32 * pg[2]}')
    lds_set(F_IMP, s(sT))
    checkpoints(NF)
    A(f'  s_bitcmp0_b32 {s(sX)}, {pg[2]}')
    A('  s_cbranch_scc1 L_h_all')
    wait_progress('b', NF, 4)
    export(24, 36)
    handshake('b', 2)
    imp(24, 36)
    lds_set(F_IMP, 255)
    A('L_h_all:')
    checkpoints(999)
    C('the last unit runs with the deep queue')
    wait_progress('t', 2 * NF - 2 * W, 4)
    A(f'  v_mov_b32 {v(hD)}, 255')
    A(f'  ds_write_b32 {v(hW)}, {v(hD)} offset:{F_BST - F_PRG}')
    A('  s_branch L_finish')

    C(f'check points every {step} units up to unit s{sUP}: lane w (mod 2) follows wave w. Arrival times of 8 workgroups go to ws;')
    C(f'{dly} units later the entries stamped inside this launch give the mean, and a late wave gets a catch-up limit in LDS')
    A('L_h_cp:')
    A(f'  s_cmp_gt_u32 {s(sCP)}, {s(sUP)}')
    A('  s_cbranch_scc0 L_h_cpgo')
    A(f'  s_setpc_b64 {s(sRET,2)}')
    A('L_h_cpgo:')
    A(f'  ds_read_b32 {v(hD)}, {v(hW)}')
    A('  s_waitcnt lgkmcnt(0)')
    A(f'  v_cmp_gt_u32 vcc, {s(sCP)}, {v(hD)}')
    A('  s_cmp_eq_u32 vcc_lo, 0')
    A('  s_cbranch_scc1 L_h_cpnext')
    A('L_h_first:')
    A('  s_sleep 2')
    A(f'  ds_read_b32 {v(hD)}, {v(hW)}')
    A('  s_waitcnt lgkmcnt(0)')
    A(f'  v_cmp_gt_u32 {s(sV0,2)}, {s(sCP)}, {v(hD)}')
    A(f'  s_cmp_eq_u32 {s(sV0)}, -1')
    A('  s_cbranch_scc1 L_h_first')
    A(f'  s_memrealtime {s(sA,2)}')
    wait_progress('m', s(sCP), 2)
    A(f'  s_memrealtime {s(sB,2)}')
    A(f'  v_mov_b32 {v(hT)}, {s(sA)}')
    A(f'  v_mov_b32 {v(hT+1)}, {s(sA+1)}')
    A(f'  s_mov_b64 exec, {s(sV0,2)}')
    A('  s_waitcnt lgkmcnt(0)')
    A(f'  v_mov_b32 {v(hT)}, {s(sB)}')
    A(f'  v_mov_b32 {v(hT+1)}, {s(sB+1)}')
    A('  s_mov_b64 exec, -1')
    A('  s_cmp_ge_u32 s2, 8')
    A('  s_cbranch_scc1 L_h_np')
    A('  s_mov_b64 exec, 0xff')
    A(f'  buffer_store_dwordx2 {v(hT,2)}, {v(hP)}, {s(SWS,4)}, {s(sCA)} offen sc1')
    A('  s_mov_b64 exec, -1')
    A('L_h_np:')
    A(f'  s_add_u32 {s(sJ)}, {s(sCP)}, {dly}')
    wait_progress('c', s(sJ), 4)
    A(f'  buffer_load_dwordx2 {v(hD,2)}, {v(hQ)}, {s(SWS,4)}, {s(sCA)} offen')
    A(f'  v_mov_b32 {v(hD+2)}, {s(sT0+1)}')
    A('  s_waitcnt vmcnt(0)')
    A(f'  ds_read_b32 {v(hD+4)}, {v(hW)}')
    A(f'  v_subrev_co_u32 {v(hD)}, vcc, {s(sT0)}, {v(hD)}')
    A(f'  v_subb_co_u32 {v(hD+1)}, vcc, {v(hD+1)}, {v(hD+2)}, vcc')
    A(f'  v_lshrrev_b32 {v(hD+2)}, 24, {v(hD)}')
    A(f'  v_or_b32 {v(hD+1)}, {v(hD+1)}, {v(hD+2)}')
    A(f'  v_cmp_eq_u32 vcc, 0, {v(hD+1)}')
    A(f'  v_cndmask_b32 {v(hD)}, 0, {v(hD)}, vcc')
    A(f'  s_and_b32 {s(sB)}, vcc_lo, 0xffff')
    A(f'  s_bcnt1_i32_b32 {s(sB)}, {s(sB)}')
    for r in (8, 4, 2, 1):
        A(f'  v_add_u32_dpp {v(hD)}, {v(hD)}, {v(hD)} row_ror:{r} row_mask:0xf bank_mask:0xf')
    A(f'  v_subrev_u32 {v(hD+1)}, {s(sT0)}, {v(hT)}')
    A(f'  v_mul_lo_u32 {v(hD+1)}, {v(hD+1)}, {s(sB)}')
    A(f'  s_max_u32 {s(sB)}, {s(sB)}, 1')
    A(f'  v_sub_u32 {v(hD)}, {v(hD+1)}, {v(hD)}')
    A(f'  v_cvt_f32_u32 {v(hD+1)}, {s(sB)}')
    A(f'  v_cvt_f32_i32 {v(hD)}, {v(hD)}')
    A(f'  v_rcp_f32 {v(hD+1)}, {v(hD+1)}')
    A(f'  v_mul_f32 {v(hD)}, {v(hD)}, {v(hD+1)}')
    A(f'  v_cvt_i32_f32 {v(hD)}, {v(hD)}')
    A('  s_waitcnt lgkmcnt(0)')
    A(f'  v_add_u32 {v(hD+4)}, {W}, {v(hD+4)}')
    C('subtract what the running catch-up gains between the check point and the first unit that sees the new limit')
    A(f'  v_min_u32 {v(hD+1)}, {v(hU)}, {v(hD+4)}')
    A(f'  v_subrev_u32 {v(hD+1)}, {s(sCP)}, {v(hD+1)}')
    A(f'  v_max_i32 {v(hD+1)}, 0, {v(hD+1)}')
    A(f'  v_lshrrev_b32 {v(hD+1)}, 1, {v(hD+1)}')
    A(f'  v_mul_u32_u24 {v(hD+1)}, {gain}, {v(hD+1)}')
    A(f'  v_sub_u32 {v(hD)}, {v(hD)}, {v(hD+1)}')
    A(f'  v_add_u32 {v(hD+1)}, {gain // 2 - dead}, {v(hD)}')
    A(f'  v_max_i32 {v(hD+1)}, 0, {v(hD+1)}')
    A(f'  v_min_i32 {v(hD+1)}, 2000, {v(hD+1)}')
    A(f'  v_mul_u32_u24 {v(hD+1)}, {65536 // gain}, {v(hD+1)}')
    A(f'  v_lshrrev_b32 {v(hD+1)}, 16, {v(hD+1)}')
    A(f'  v_cmp_ne_u32 vcc, 0, {v(hD+1)}')
    A(f'  v_lshl_add_u32 {v(hD+1)}, {v(hD+1)}, 1, {v(hD+4)}')
    A(f'  v_cndmask_b32 {v(hU)}, 0, {v(hD+1)}, vcc')
    A(f'  ds_write_b32 {v(hW)}, {v(hU)} offset:{F_BST - F_PRG}')
    A('L_h_cpnext:')
    A(f'  s_add_u32 {s(sCP)}, {s(sCP)}, {step}')
    A(f'  s_add_u32 {s(sCA)}, {s(sCA)}, 512')
    A('  s_branch L_h_cp')
    A('L_code_end:')
    body = pad(L)

    nva = (nv + 7) // 8 * 8
    out = HDR + f'; @launch grid=(256,1,1) block=({64*(W+1)},1,1) lds={lds}\n' + NOTES
    out += '.amdgcn_target "amdgcn-amd-amdhsa--gfx950"\n.text\n'
    out += f'.globl {NAME}\n.p2align 8\n.type {NAME},@function\n'
    out += '\n'.join(body) + '\n'
    out += f'''.section .rodata,"a"
.p2align 6
.amdhsa_kernel {NAME}
  .amdhsa_next_free_vgpr {nva}
  .amdhsa_next_free_sgpr 102
  .amdhsa_accum_offset {nva}
  .amdhsa_group_segment_fixed_size 0
  .amdhsa_kernarg_size 80
  .amdhsa_user_sgpr_count 2
  .amdhsa_user_sgpr_kernarg_segment_ptr 1
  .amdhsa_system_sgpr_workgroup_id_x 1
  .amdhsa_float_denorm_mode_32 3
.end_amdhsa_kernel
'''
    return out

if __name__ == '__main__':
    kw = {}
    for x in sys.argv[2:]:
        k, val = x.split('=')
        kw[k] = int(val)
    open(sys.argv[1], 'w').write(gen(**kw))
```

```python
import sys, os
sys.path.insert(0, os.path.dirname(os.path.abspath(__file__)))
from asmlib import pad
NAME = 'standalone__kv_cache_quant_int4_int2_kv_with_per_channel_or_per_token_scales__sampling_kernel'
TOTAL = 256 * 4096 * 768
PIECE = 1152
REC = 3 * PIECE
WS_REC = 1 << 20
WS_CP = 7 << 20
WS_FLAG = 6 << 20
WS_IMG = 16 << 20
WS_END = WS_IMG + (16 << 20)
IMG = 96 * 384
OOB = 0x7ffffff0
HDR = open(os.path.join(os.path.dirname(os.path.abspath(__file__)), 'header.txt')).read()
assert all(((32 * c + 1) * 21846) >> 16 == (32 * c + 1) // 3 for c in range(25))
assert all((c * 43) >> 8 == c // 6 for c in range(24))
assert all((x * 21846) >> 16 == x // 3 for x in range(100))

NOTES = """\
"""

class Alloc:
    def __init__(self, start): self.n = start
    def __call__(self, k, align=1):
        self.n = (self.n + align - 1) // align * align
        r = self.n; self.n += k
        return r

def v(r, k=1): return f'v{r}' if k == 1 else f'v[{r}:{r+k-1}]'
def s(r, k=1): return f's{r}' if k == 1 else f's[{r}:{r+k-1}]'

def merge(main, side):
    out = []; side = list(side)
    for m in main:
        out.append(m)
        if side: out.append(side.pop(0))
    return out + side

def gen(DN=10, D=15, bev=3, NWU=8, NS=3, NV=8, pfw=24, PSK=17, gain=32, dly=2, dead=-30, cp0=10, step=4, last=188,
        force=-1, stamps=0, tl=0, diagpad=0, diagat=-1, kord=1):
    W, U, NST, NF, PSV = 2, 2, 33, 96, 3
    R = 11 * U
    SW = NST - D
    assert DN <= D < R and NWU % 8 == 0 and PSV < SW and 3 <= PSK < SW
    L = []
    A = L.append
    C = lambda t: L.append('; ' + t)
    va = Alloc(1)
    DUP = va(1); DOWN = va(1); DCON = va(1)
    RING = va(4 * R, 4); VO = va(4)
    ICV = va(1); TU = va(1); VVS = va(1); VL1 = va(1); VL2 = va(1); VBP = va(1); VFL = va(1); VST = va(1); VPR = va(1)
    VOOB = va(1); VBS = va(1)
    T = va(4, 2); ZN = va(1); SN = va(1); ZC = va(1); SC = va(1); ZS = va(2, 2)
    LG = va(6, 4); ACC = va(12, 4); M = va(1); NB = va(2, 2); LS = NB + 1
    X0 = va(2, 2); X1 = X0 + 1; AL = va(1); ALQ = va(1); E = va(11); PP = va(6); TL = va(1)
    base = va.n
    QB = va(6, 4); QN = va(6, 2); KSR = va(6, 2); KZR = va(6, 2); KS = va(12, 2); KZ = va(12, 2); KA = va(6, 4); SD = va(4, 4); S = va(2, 2)
    IUP = va(1); IOWN = va(1); ICON = va(1); VKS0 = va(1); VKS = va(1); VQ = va(1); VNI = va(1)
    kend = va.n
    va.n = base
    AJ = va(16, 4); AK = va(8, 2); TV = va(12, 2); BV = va(48, 4)
    nv = max(va.n, kend)
    sRO, sPB = 4, 5
    SK, SV, SI, SKS, SKZ, SVS, SVZ, SQ, SWS = 8, 12, 16, 20, 24, 28, 32, 36, 40
    PT = 44
    sOUT, sL0, sL10, sM0, sM10, sLOW = 46, 48, 50, 52, 54, 56
    sCUR, sNXT, sSO, s768, sF, sMSK, sL2E, sTL, sSCL, sT = 60, 61, 62, 63, 64, 65, 66, 67, 68, 70
    sMJ = 72
    sDBG, sWS = 80, 82
    sQ3, sC, sQC, sMISS, sHC, sHN, sDIV, sSH = 84, 85, 86, 87, 88, 89, 90, 91
    sBIG, sSM = 92, 94
    sDEC, sG, sGATE = 96, 97, 99
    SEG = W * 3072 + W * 32
    LDS_ACC = IMG
    LDS_F = LDS_ACC + 4 * SEG
    F_DEC, F_IMP, F_PRG, F_BST, F_END = LDS_F, LDS_F + 4, LDS_F + 16, LDS_F + 24, LDS_F + 32
    lds = 62464
    assert LDS_F + 64 <= lds and F_END % 16 == 0

    A(f'{NAME}:')
    A('  s_cmp_ge_u32 s2, 256')
    A('  s_cbranch_scc1 L_end')
    A(f'  s_load_dwordx16 {s(PT,16)}, s[0:1], 0')
    A(f'  s_load_dwordx4 {s(sDBG,4)}, s[0:1], 64')
    if stamps or diagpad: A('  s_memrealtime s[6:7]')
    C('s3 = wave, s4 = role in the pair, s5 = 32 * pair (first block of the first page)')
    A('  v_lshrrev_b32 v1, 6, v0')
    A('  v_and_b32 v0, 63, v0')
    A('  v_readfirstlane_b32 s3, v1')
    A(f'  s_bfe_u32 {s(sRO)}, s2, 0x10002')
    A(f'  s_lshr_b32 {s(sPB)}, s2, 3')
    A(f'  s_lshl_b32 {s(sPB)}, {s(sPB)}, 2')
    A(f'  s_and_b32 {s(sT)}, s2, 3')
    A(f'  s_add_u32 {s(sPB)}, {s(sPB)}, {s(sT)}')
    A(f'  s_lshl_b32 {s(sPB)}, {s(sPB)}, 5')
    SRDS = ((SKS, PT + 6, 256 * 24576), (SKZ, PT + 8, 256 * 24576), (SVS, PT + 10, 256 * 8192), (SVZ, PT + 12, 256 * 8192),
            (SK, PT + 2, TOTAL), (SQ, PT, 256 * 1536), (SI, PT + 2, TOTAL), (SV, PT + 4, TOTAL), (SWS, sWS, WS_END))
    for srd, p, nb in SRDS:
        A(f'  s_mov_b32 {s(srd+2)}, {nb}')
        A(f'  s_mov_b32 {s(srd+3)}, 0x20000')
    def make_srds(lo, hi):
        for srd, p, nb in SRDS[lo:hi]:
            A(f'  s_mov_b32 {s(srd)}, {s(p)}')
            A(f'  s_and_b32 {s(srd+1)}, {s(p+1)}, 0xffff')
    A(f'  s_cmp_eq_u32 s3, {W}')
    A('  s_cbranch_scc1 L_helper')

    C('================= streaming waves')
    cls, a, g, n = T, T + 1, T + 2, T + 3
    A(f'  v_and_b32 {v(cls)}, 3, v0')
    A(f'  v_bfe_u32 {v(a)}, v0, 2, 2')
    A(f'  v_lshrrev_b32 {v(g)}, 4, v0')
    A(f'  v_and_b32 {v(n)}, 15, v0')
    def stream_consts(x, up, own, con, lanepart):
        A(f'  v_and_b32 {v(own)}, 2, {v(x)}')
        A(f'  v_lshlrev_b32 {v(up)}, 5, {v(own)}')
        A(f'  v_add_u32 {v(up)}, 129, {v(up)}')
        A(f'  v_and_b32 {v(X1)}, 1, {v(x)}')
        A(f'  v_lshl_add_u32 {v(own)}, {v(X1)}, 2, {v(own)}')
        A(f'  v_mul_u32_u24 {v(X1)}, {43 * 768}, {v(X1)}')
        A(f'  v_add_u32 {v(con)}, {v(lanepart)}, {v(X1)}')
        A(f'  v_subrev_u32 {v(con)}, {43 * 768}, {v(con)}')
    A(f'  v_lshlrev_b32 {v(X0)}, 4, {v(cls)}')
    A(f'  v_lshl_add_u32 {v(X0)}, {v(g)}, 6, {v(X0)}')
    A(f'  v_lshrrev_b32 {v(VKS0)}, 1, {v(X0)}')
    stream_consts(a, IUP, IOWN, ICON, X0)
    A(f'  v_mul_u32_u24 {v(X1)}, 384, {v(a)}')
    A(f'  v_add_u32 {v(VQ)}, {v(X1)}, {v(VKS0)}')
    A(f'  v_mov_b32 {v(VOOB)}, {OOB}')
    A(f'  s_mov_b32 {s(sDIV)}, 0xaaaaaaab')
    A(f'  s_mov_b32 {s(sSH)}, 0x492492')
    A(f'  s_movk_i32 {s(s768)}, 768')
    def slot(k): return RING + 4 * (k % R)
    def main_load(k, srd, so):
        ss, i = divmod(k % NST, 3)
        r, k0 = (0, 0) if ss == 0 else (1, 1) if ss <= 5 else (2, 6) if ss <= 9 else (3, 10)
        return f'  buffer_load_dwordx4 {v(slot(k),4)}, {v(VO+r)}, {s(srd,4)}, {s(so)} offen offset:{768*(ss-k0) + 256*i} nt'
    def kscale_loads():
        A(f'  s_mul_i32 {s(sSO)}, {s(sQ3)}, 1536')
        for i in range(3):
            A(f'  buffer_load_dwordx2 {v(KSR+2*i,2)}, {v(VKS)}, {s(SKS,4)}, {s(sSO)} offen offset:{128*i}')
            A(f'  buffer_load_dwordx2 {v(KZR+2*i,2)}, {v(VKS)}, {s(SKZ,4)}, {s(sSO)} offen offset:{128*i}')
    def vscale_loads():
        A(f'  s_lshl_b32 {s(sSO)}, {s(sQ3)}, 9')
        A(f'  v_lshl_add_u32 {v(VVS)}, {v(TU)}, 1, {v(ICV)}')
        A(f'  buffer_load_short_d16_hi {v(ZN)}, {v(VVS)}, {s(SVZ,4)}, {s(sSO)} offen')
        A(f'  buffer_load_short_d16_hi {v(SN)}, {v(VVS)}, {s(SVS,4)}, {s(sSO)} offen')
    def q_loads():
        A(f'  s_mul_i32 {s(sT)}, {s(sHN)}, 1536')
        for i in range(3): A(f'  buffer_load_dwordx2 {v(QN+2*i,2)}, {v(VQ)}, {s(SQ,4)}, {s(sT)} offen offset:{128*i}')
    def short_masks(own, m0, m10, low):
        A(f'  v_add_u32 {v(X0)}, {s(sC)}, {v(own)}')
        A(f'  v_lshrrev_b32 {v(X1)}, {v(X0)}, {s(sSH)}')
        A(f'  v_and_b32 {v(X1)}, 1, {v(X1)}')
        A(f'  v_cmp_eq_u32 {s(m10,2)}, 1, {v(X1)}')
        A(f'  s_and_b64 {s(m0,2)}, {s(m10,2)}, {s(low,2)}')
        A(f'  s_andn2_b64 {s(m10,2)}, {s(m10,2)}, {s(low,2)}')
    def map_unit(f, isv):
        if kord and not isv:
            A(f'  s_lshr_b32 {s(sT+1)}, {s(f)}, 4')
            A(f'  s_andn2_b32 {s(sT+1)}, {s(sT+1)}, 1')
            A(f'  s_lshr_b32 {s(sT+1)}, 0x12, {s(sT+1)}')
            A(f'  s_and_b32 {s(sT+1)}, {s(sT+1)}, 3')
        else:
            A(f'  s_lshr_b32 {s(sT+1)}, {s(f)}, 5')
        A(f'  s_lshr_b32 {s(sC)}, {s(sDEC)}, {s(sT+1)}')
        if isv:
            A(f'  s_bfe_u32 {s(sC)}, {s(sC)}, 0x10003')
            A(f'  s_and_b32 {s(sT)}, {s(f)}, 31')
        else:
            A(f'  s_andn2_b32 {s(sT)}, {s(f)}, 1')
            A(f'  s_or_b32 {s(sT)}, {s(sT)}, {s(sRO)}')
            A(f'  s_cmp_lt_u32 {s(f)}, {NWU}')
            A(f'  s_cselect_b32 {s(sT)}, {s(sT)}, {s(f)}')
            A(f'  s_cselect_b32 {s(sC)}, {s(f)}, {s(sC)}')
            A(f'  s_and_b32 {s(sC)}, {s(sC)}, 1')
            A(f'  s_and_b32 {s(sT)}, {s(sT)}, 31')
        A(f'  s_lshl_b32 {s(sT+1)}, {s(sT+1)}, 12')
        A(f'  s_add_u32 {s(sT)}, {s(sT)}, {s(sPB)}')
        A(f'  s_add_u32 {s(sT)}, {s(sT)}, {s(sT+1)}')
        A(f'  s_mul_hi_u32 {s(sQ3)}, {s(sT)}, {s(sDIV)}')
        A(f'  s_lshr_b32 {s(sQ3)}, {s(sQ3)}, 1')
        A(f'  s_mul_i32 {s(sT+1)}, {s(sQ3)}, 3')
        A(f'  s_sub_u32 {s(sT)}, {s(sT)}, {s(sT+1)}')
        A(f'  s_lshl3_add_u32 {s(sC)}, {s(sT)}, {s(sC)}')
        A(f'  s_mul_i32 {s(sNXT)}, {s(sQ3)}, 196608')
        A(f'  s_lshr_b32 {s(sHN)}, {s(sQ3)}, 4')
        A(f'  s_lshl_b32 {s(sT)}, {s(sC)}, 5')
        A(f'  v_add_u32 {v(TU)}, {s(sT)}, {v(DUP if isv else IUP)}')
        A(f'  v_mul_u32_u24 {v(TU)}, 21846, {v(TU)}')
        A(f'  v_lshrrev_b32 {v(TU)}, 16, {v(TU)}')
        short_masks(DOWN if isv else IOWN, sM0, sM10, sLOW + 2 * isv)
        if not isv:
            A(f'  v_mul_u32_u24 {v(X0)}, 43, {v(X0)}')
            A(f'  v_lshrrev_b32 {v(X0)}, 8, {v(X0)}')
            A(f'  v_mul_u32_u24 {v(X0)}, 384, {v(X0)}')
            A(f'  v_add_u32 {v(VKS)}, {v(X0)}, {v(VKS0)}')
    def offsets(con):
        A(f'  v_mad_u32_u24 {v(VO)}, {v(TU)}, {s(s768)}, {v(con)}')
        A(f'  v_add_u32 {v(VO+1)}, 768, {v(VO)}')
        A(f'  v_add_u32 {v(VO+2)}, {6 * 768}, {v(VO)}')
        A(f'  v_add_u32 {v(VO+3)}, {10 * 768}, {v(VO)}')
        A(f'  v_cndmask_b32 {v(VO)}, {v(VO)}, {v(VOOB)}, {s(sM0,2)}')
        A(f'  v_cndmask_b32 {v(VO+3)}, {v(VO+3)}, {v(VOOB)}, {s(sM10,2)}')
    def stamp():
        if tl:
            A(f'  s_memrealtime {s(sT,2)}')
            A('  s_waitcnt lgkmcnt(0)')
            A(f'  s_min_u32 m0, {s(sTL)}, 63')
            A(f'  v_writelane_b32 {v(TL)}, {s(sT)}, m0')
            A(f'  s_add_u32 {s(sTL)}, {s(sTL)}, 1')
    def reset_state():
        for k in range(12): A(f'  v_mov_b32 {v(ACC+k)}, 0')
        A(f'  v_mov_b32 {v(M)}, 0xff800000')
        A(f'  v_mov_b32 {v(NB)}, 0x7f800000')
        A(f'  v_mov_b32 {v(LS)}, 0')
    A(f'  s_mov_b32 {s(sF)}, s3')
    A(f'  s_mov_b32 {s(sGATE)}, {NWU}')
    A(f'  s_mov_b32 {s(sDEC)}, 0')
    C('one bulk pass pulls the scale/zero arrays into the caches, so that the small reads of them later stay off DRAM:')
    C('role 0 takes the scales, role 1 the zeros of the pair\'s own pages')
    A(f'  v_lshlrev_b32 {v(ZC)}, 4, v0')
    sPK, sPV = sQC, sHC
    line = lambda srd, so, k: f'  buffer_load_dwordx4 {v(ACC,4)}, {v(ZC)}, {s(srd,4)}, {s(so)} offen offset:{(k % 4) * 1024}'
    pfl = []
    SA, SB, sPW = sMJ, sMJ + 4, sSCL
    A(f'  s_lshl_b32 {s(sPK)}, {s(sPB)}, 9')
    A(f'  s_mul_i32 {s(sT)}, s3, 3072')
    for j in range(3):
        A(f'  s_add_u32 {s(sT+1)}, {s(sPK)}, {j << 21}')
        A(f'  s_mul_hi_u32 {s(sT+1)}, {s(sT+1)}, {s(sDIV)}')
        A(f'  s_lshr_b32 {s(sT+1)}, {s(sT+1)}, 8')
        A(f'  s_lshl_b32 {s(sT+1)}, {s(sT+1)}, 7')
        A(f'  s_add_u32 {s((sPV, sPW, sPW + 1)[j])}, {s(sT+1)}, {s(sT)}')
    A(f'  s_lshl_b32 {s(sT)}, s3, 13')
    A(f'  s_add_u32 {s(sPK)}, {s(sPK)}, {s(sT)}')
    for srd, nb in ((SA, 256 * 24576), (SB, 256 * 8192)):
        A(f'  s_mov_b32 {s(srd+2)}, {nb}')
        A(f'  s_mov_b32 {s(srd+3)}, 0x20000')
    for k in range(24):
        if k % 4 == 0 and k: pfl.append(f'  s_add_u32 {s(sPK)}, {s(sPK)}, {4096 if k % 8 else (1 << 21) - 4096}')
        pfl.append(line(SA, sPK, k))
        if k < 9: pfl.append(line(SB, (sPV, sPW, sPW + 1)[k // 3], k % 3))
    nissued = [0]
    def issue_pf(cnt):
        while pfl and cnt > 0:
            x = pfl.pop(0)
            if 'buffer_load' in x:
                if nissued[0] >= pfw: A(f'  s_waitcnt vmcnt({pfw - 1})')
                nissued[0] += 1; cnt -= 1
            A(x)
    A('  s_waitcnt lgkmcnt(0)')
    A(f'  s_cmp_eq_u32 {s(sRO)}, 0')
    A(f'  s_cselect_b64 {s(SA,2)}, {s(PT+6,2)}, {s(PT+8,2)}')
    A(f'  s_cselect_b64 {s(SB,2)}, {s(PT+10,2)}, {s(PT+12,2)}')
    A(f'  s_and_b32 {s(SA+1)}, {s(SA+1)}, 0xffff')
    A(f'  s_and_b32 {s(SB+1)}, {s(SB+1)}, 0xffff')
    issue_pf(8)
    make_srds(0, 9)
    A(f'  s_mov_b64 {s(sOUT,2)}, {s(PT+14,2)}')
    A(f'  s_mov_b32 {s(sLOW)}, 0x0f0f0f0f')
    A(f'  s_mov_b32 {s(sLOW+1)}, 0x0f0f0f0f')
    A(f'  s_mov_b32 {s(sLOW+2)}, 0xffff')
    A(f'  s_mov_b32 {s(sLOW+3)}, 0xffff')
    map_unit(sF, 0)
    offsets(ICON)
    A(f'  s_mov_b32 {s(sCUR)}, {s(sNXT)}')
    q_loads()
    A(main_load(0, SK, sCUR))
    issue_pf(pfw - nissued[0])
    A('  s_barrier')
    A('  s_mov_b64 vcc, 0')
    A(f'  v_lshlrev_b32 {v(X0)}, 4, {v(n)}')
    stream_consts(g, DUP, DOWN, DCON, X0)
    A(f'  v_and_b32 {v(X1)}, 1, {v(g)}')
    A(f'  v_mul_u32_u24 {v(X1)}, 86, {v(X1)}')
    A(f'  v_lshl_add_u32 {v(ICV)}, {v(n)}, 1, {v(X1)}')
    A(f'  v_subrev_u32 {v(ICV)}, 86, {v(ICV)}')
    A(f'  v_lshlrev_b32 {v(VBP)}, 4, {v(g)}')
    A(f'  v_lshrrev_b32 {v(X0)}, 2, v0')
    A(f'  s_mul_i32 {s(sT)}, s3, 384')
    A(f'  v_lshl_add_u32 {v(VL1)}, {v(X0)}, 4, {s(sT)}')
    A(f'  v_lshl_add_u32 {v(VL2)}, {v(X0)}, 3, {s(sT)}')
    A(f'  s_mul_i32 {s(sT)}, s3, 3072')
    A(f'  s_add_u32 {s(sT)}, {s(sT)}, {LDS_ACC}')
    A(f'  v_lshl_add_u32 {v(VFL)}, v0, 4, {s(sT)}')
    A(f'  s_lshl_b32 {s(sT)}, s3, 5')
    A(f'  s_add_u32 {s(sT)}, {s(sT)}, {LDS_ACC + W * 3072}')
    A(f'  v_lshl_add_u32 {v(VST)}, {v(a)}, 3, {s(sT)}')
    A(f'  s_lshl2_add_u32 {s(sT)}, s3, {F_PRG}')
    A(f'  v_mov_b32 {v(VPR)}, {s(sT)}')
    A(f'  v_mov_b32 {v(ZN)}, 0')
    A(f'  v_mov_b32 {v(SN)}, 0')
    A(f'  v_mov_b32 {v(VNI)}, 0xff800000')
    A(f'  v_mov_b32 {v(AL)}, 1')
    A(f'  s_mov_b32 {s(sMSK)}, 0xffff0000')
    A(f'  s_mov_b32 {s(sL2E)}, 0x3fb8aa3b')
    if tl:
        A(f'  s_mov_b32 {s(sTL)}, 0')
        A(f'  v_mov_b32 {v(TL)}, 0')
    issue_pf(99)
    for h in range(2):
        A(f'  s_mov_b32 {s(sSCL+h)}, 0x3d93cd3a')
    for j in range(4):
        A(f'  s_mov_b32 {s(sMJ+2*j)}, {hex(0x11111111 << j)}')
        A(f'  s_mov_b32 {s(sMJ+2*j+1)}, {hex(0x11111111 << j)}')
    A(f'  ds_write_b32 {v(VPR)}, {v(AL)}')
    A(f'  s_mov_b32 {s(sHC)}, {s(sHN)}')
    kscale_loads()
    for k in range(1, D):
        A(f'  s_waitcnt vmcnt({max(DN, k) - 1 + 6})')
        A(main_load(k, SK, sCUR))
    A(f'  s_waitcnt vmcnt({D - 1})')

    def wait_step(k, nsmall, tag, ps):
        cnt = lambda d: d - 1 + (nsmall if k - d <= ps < k else 0)
        A(f'  s_waitcnt vmcnt({cnt(D)})')
        if k % bev == 0:
            A(f'  s_cbranch_vccnz L_{tag}')
            A(f'  s_waitcnt vmcnt({cnt(DN)})')
            A(f'L_{tag}:')
    def mode(k):
        if k == 0: A(f'  ds_read_b32 {v(VBS)}, {v(VPR)} offset:{F_BST - F_PRG}')
        if k == 1:
            A('  s_waitcnt lgkmcnt(0)')
            A(f'  v_cmp_lt_u32 vcc, {s(sG)}, {v(VBS)}')
    def dequant(X, src, z, sc, zmod, smod):
        r = [f'  v_cvt_f32_i32 {v(X+j)}, {v(src+j)}' for j in range(4)]
        r += [f'  v_pk_add_f32 {v(X+2*h,2)}, {v(X+2*h,2)}, {z[h]} {zmod}neg_lo:[0,1] neg_hi:[0,1]' for h in range(2)]
        r2 = [f'  v_cvt_pk_bf16_f32 {v(X+j)}, 0, {v(X+j)}' for j in range(4)]
        r2 += [f'  v_pk_mul_f32 {v(X+2*h,2)}, {v(X+2*h,2)}, {sc[h]} {smod}'.rstrip() for h in range(2)]
        return r, r2
    def kreduce(ss):
        d = S + (ss & 1)
        q = lambda j: f'quad_perm:[{j},{j},{j},{j}] row_mask:0xf bank_mask:0xf'
        r = [f'  v_mov_b32_dpp {v(X0)}, {v(SD)} {q(0)}',
             f'  v_mov_b32_dpp {v(X1)}, {v(SD+2)} {q(2)}',
             f'  v_add_f32_dpp {v(X0)}, {v(SD+1)}, {v(X0)} {q(1)}',
             f'  v_add_f32_dpp {v(X1)}, {v(SD+3)}, {v(X1)} {q(3)}',
             f'  v_add_f32 {v(d)}, {v(X0)}, {v(X1)}']
        if ss == 0: r.append(f'  v_cndmask_b32 {v(d)}, {v(d)}, {v(VNI)}, {s(sL0,2)}')
        if ss == 10: r.append(f'  v_cndmask_b32 {v(d)}, {v(d)}, {v(VNI)}, {s(sL10,2)}')
        if ss & 1 or ss == 10:
            r += [f'  v_cvt_pk_bf16_f32 {v(S)}, 0, {v(S)}',
                  f'  v_cvt_pk_bf16_f32 {v(S+1)}, 0, {v(S+1)}',
                  f'  v_pk_mul_f32 {v(S,2)}, {v(S,2)}, {s(sSCL,2)}',
                  f'  v_cvt_pk_bf16_f32 {v(LG+(ss>>1))}, {v(S)}, {v(S+1)}']
        return r
    def lds_word(dst, addr):
        A(f'  v_mov_b32 {v(X0)}, {addr}')
        A(f'  ds_read_b32 {v(X0)}, {v(X0)}')
        A('  s_waitcnt lgkmcnt(0)')
        A(f'  v_readfirstlane_b32 {s(dst)}, {v(X0)}')

    mf32 = f'  v_mfma_f32_16x16x32_bf16 {v(SD,4)}, {v(KA,4)}, {v(QB,4)}, 0'
    mf16 = f'  v_mfma_f32_16x16x16_bf16 {v(SD,4)}, {v(KA+4,2)}, {v(QB+4,2)}, {v(SD,4)}'
    def diag_mark(tag, base_):
        if diagat < 0: return
        A(f'  s_and_b32 {s(sT)}, {s(sF)}, -4')
        A(f'  s_cmp_lg_u32 {s(sT)}, {diagat - base_}')
        A(f'  s_cbranch_scc1 L_dm{tag}')
        A('  s_memrealtime s[6:7]')
        A('  s_waitcnt lgkmcnt(0)')
        A(f'L_dm{tag}:')
    def k_unit(u):
        o = NST * u
        if u == 0: diag_mark('k', 0)
        if u == 0: stamp()
        short_masks(DOWN, sL0, sL10, sLOW + 2)
        A(f'  s_mov_b32 {s(sG)}, {s(sF)}')
        A(f'  s_add_u32 {s(sF)}, {s(sF)}, {W}')
        for k in range(NST):
            ss, i = divmod(k, 3)
            mode(k)
            if k == SW:
                if u == U - 1:
                    C('the last K unit prefetches the first V unit')
                    A(f'  s_cmp_lt_u32 {s(sF)}, {NF}')
                    A('  s_cbranch_scc1 L_k_keep')
                    map_unit(3, 1)
                    A(f'  s_mov_b32 {s(SI)}, {s(SV)}')
                    A(f'  s_mov_b32 {s(SI+1)}, {s(SV+1)}')
                    vscale_loads()
                    A(f'  v_mov_b32 {v(ICON)}, {v(DCON)}')
                    A('L_k_keep:')
                offsets(ICON)
            wait_step(k, 6, f'kw{u}_{k}', PSK)
            A(main_load(o + k + D, SK, sCUR) if k < SW else main_load(o + k + D, SI, sNXT))
            if i == 2: A(mf32)
            if i == 0 and ss > 0: A(mf16)
            if ss == 0:
                for raw, dst in ((KZR, KZ), (KSR, KS)):
                    for h in range(2):
                        A(f'  v_lshlrev_b32 {v(dst+4*i+2*h)}, 16, {v(raw+2*i+h)}')
                        A(f'  v_and_b32 {v(dst+4*i+2*h+1)}, {s(sMSK)}, {v(raw+2*i+h)}')
                for h in range(2):
                    A(f'  v_mov_b32 {v(QB+2*i+h)}, {v(QN+2*i+h)}')
            c, rest = dequant(T, slot(o + k), (v(KZ+4*i,2), v(KZ+4*i+2,2)), (v(KS+4*i,2), v(KS+4*i+2,2)), '', '')
            for x in c: A(x)
            if k == PSK:
                C('next unit: class (needs the vote once), scales, q on a head change')
                A(f'  s_cmp_lt_u32 {s(sF)}, {s(sGATE)}')
                A(f'  s_cbranch_scc1 L_k_known{u}')
                A(f'L_k_spin{u}:')
                lds_word(sDEC, F_DEC)
                A(f'  s_cmp_eq_u32 {s(sDEC)}, 0')
                A(f'  s_cbranch_scc1 L_k_spin{u}')
                A(f'  s_mov_b32 {s(sGATE)}, -1')
                A(f'L_k_known{u}:')
                map_unit(sF, 0)
                A(f'  s_cmp_eq_u32 {s(sHN)}, {s(sHC)}')
                A(f'  s_cbranch_scc1 L_k_sameq{u}')
                q_loads()
                A(f'  s_mov_b32 {s(sHC)}, {s(sHN)}')
                A(f'L_k_sameq{u}:')
                kscale_loads()
            rest += [f'  v_cvt_pk_bf16_f32 {v(KA+2*i)}, {v(T)}, {v(T+1)}',
                     f'  v_cvt_pk_bf16_f32 {v(KA+2*i+1)}, {v(T+2)}, {v(T+3)}']
            if i == 1 and ss > 0:
                r = kreduce(ss - 1)
                rest = r[:2] + rest[:2] + r[2:4] + rest[2:4] + r[4:5] + rest[4:]
                pend = r[5:]
            elif i == 2 and ss > 0:
                rest = merge(rest, pend)
            for x in rest: A(x)
        A(f'  s_mov_b32 {s(sCUR)}, {s(sNXT)}')
        A(f'  v_mov_b32 {v(AL)}, {s(sF)}')
        A(mf16)
        A(f'  ds_write_b128 {v(VL1)}, {v(LG,4)}')
        A(f'  v_add_u32 {v(VL1)}, {384 * W}, {v(VL1)}')
        for x in kreduce(10): A(x)
        A(f'  ds_write_b64 {v(VL2)}, {v(LG+4,2)} offset:256')
        A(f'  ds_write_b32 {v(VPR)}, {v(AL)}')
        A(f'  v_add_u32 {v(VL2)}, {384 * W}, {v(VL2)}')
    C('---------------- K loop: two units per trip')
    A('L_k:')
    for u in range(U): k_unit(u)
    A(f'  s_cmp_lt_u32 {s(sF)}, {NF}')
    A('  s_cbranch_scc1 L_k')

    def flush():
        C('park the partial result of the finished head segment in slot 2*(head&1) + (segment ends the head)')
        A(f'  s_and_b32 {s(sT)}, {s(sQC)}, 15')
        A(f'  s_cmp_ge_u32 {s(sT)}, 12')
        A(f'  s_cselect_b32 {s(sT)}, {SEG}, 0')
        A(f'  s_bitcmp1_b32 {s(sQC)}, 4')
        A(f'  s_cselect_b32 {s(sT+1)}, {2 * SEG}, 0')
        A(f'  s_add_u32 {s(sT)}, {s(sT)}, {s(sT+1)}')
        A(f'  v_mov_b32 {v(X1)}, {v(LS)}')
        A(f'  v_add_u32 {v(X0)}, {s(sT)}, {v(VFL)}')
        A(f'  v_add_u32 {v(ALQ)}, {s(sT)}, {v(VST)}')
        A(f'  v_permlane32_swap_b32 {v(LS)}, {v(X1)}')
        A(f'  v_add_f32 {v(LS)}, {v(LS)}, {v(X1)}')
        A(f'  v_mov_b32 {v(X1)}, {v(LS)}')
        for i in range(3):
            A(f'  ds_write_b128 {v(X0)}, {v(ACC+4*i,4)} offset:{1024*i}')
        A(f'  v_permlane16_swap_b32 {v(LS)}, {v(X1)}')
        A(f'  v_add_f32 {v(LS)}, {v(LS)}, {v(X1)}')
        A(f'  ds_write_b64 {v(ALQ)}, {v(NB,2)}')
    def import_gate(tag):
        A(f'  s_cmp_lt_u32 {s(sF)}, {s(sGATE)}')
        A(f'  s_cbranch_scc1 L_{tag}_ok')
        A(f'L_{tag}_spin:')
        lds_word(sGATE, F_IMP)
        A(f'  s_cmp_lt_u32 {s(sF)}, {s(sGATE)}')
        A(f'  s_cbranch_scc0 L_{tag}_spin')
        A(f'L_{tag}_ok:')

    C('---------------- V loop: two units per trip')
    A(f'  v_subrev_u32 {v(VL1)}, {IMG - 32 * 384 * kord}, {v(VL1)}')
    A(f'  v_subrev_u32 {v(VL2)}, {IMG - 32 * 384 * kord}, {v(VL2)}')
    A(f'  s_mov_b32 {s(sF)}, s3')
    A(f'  s_mov_b32 {s(sHC)}, {s(sHN)}')
    A(f'  s_mov_b32 {s(sGATE)}, 0')
    A(f'  s_mov_b32 {s(SQ)}, {s(sOUT)}')
    A(f'  s_and_b32 {s(SQ+1)}, {s(sOUT+1)}, 0xffff')
    import_gate('v0')
    A(f'  ds_read_b128 {v(LG,4)}, {v(VL1)}')
    A(f'  ds_read_b64 {v(LG+4,2)}, {v(VL2)} offset:256')
    reset_state()
    def v_unit(u):
        o = NST * u
        A(f'L_v{u}:')
        if u == 0: diag_mark('v', NF)
        if u == 0: stamp()
        A(f'  s_add_u32 {s(sG)}, {s(sF)}, {NF}')
        A(f'  v_mov_b32 {v(AL)}, {s(sG)}')
        A(f'  s_mov_b32 {s(sQC)}, {s(sQ3)}')
        A(f'  ds_write_b32 {v(VPR)}, {v(AL)}')
        A(f'  s_add_u32 {s(sF)}, {s(sF)}, {W}')
        import_gate(f'v1{u}')
        map_unit(sF, 1)
        A(f'  s_cmp_lt_u32 {s(sF)}, {NF}')
        A(f'  s_cselect_b32 {s(sNXT)}, {s(sNXT)}, {TOTAL}')
        stp = 384 * W
        if kord and u == U - 1:
            stp = s(sL0)
            A(f'  s_lshr_b32 {s(sT)}, {s(sF)}, 1')
            A(f'  s_cmp_eq_u32 {s(sT)}, 32')
            A(f'  s_cselect_b32 {stp}, {384 * W - IMG}, {s(s768)}')
        prep = []
        for k in range(11):
            prep.append(f'  v_lshlrev_b32 {v(E+k)}, 16, {v(LG+k//2)}' if k % 2 == 0 else f'  v_and_b32 {v(E+k)}, {s(sMSK)}, {v(LG+k//2)}')
        prep += [f'  v_add_u32 {v(VL1)}, {stp}, {v(VL1)}',
                 f'  v_add_u32 {v(VL2)}, {stp}, {v(VL2)}',
                 f'  v_max3_f32 {v(X0)}, {v(E)}, {v(E+1)}, {v(E+2)}',
                 f'  ds_read_b128 {v(LG,4)}, {v(VL1)}',
                 f'  ds_read_b64 {v(LG+4,2)}, {v(VL2)} offset:256',
                 f'  v_max3_f32 {v(X1)}, {v(E+3)}, {v(E+4)}, {v(E+5)}',
                 f'  v_max3_f32 {v(X0)}, {v(X0)}, {v(E+6)}, {v(E+7)}',
                 f'  v_max3_f32 {v(X1)}, {v(X1)}, {v(E+8)}, {v(E+9)}',
                 f'  v_max3_f32 {v(X0)}, {v(X0)}, {v(E+10)}, {v(M)}',
                 f'  v_max_f32 {v(X0)}, {v(X0)}, {v(X1)}',
                 f'  v_mov_b32 {v(X1)}, {v(X0)}',
                 f'  v_permlane32_swap_b32 {v(X0)}, {v(X1)}',
                 f'  v_max_f32 {v(X0)}, {v(X0)}, {v(X1)}',
                 f'  v_mov_b32 {v(X1)}, {v(X0)}',
                 f'  v_permlane16_swap_b32 {v(X0)}, {v(X1)}',
                 f'  v_max_f32 {v(M)}, {v(X0)}, {v(X1)}',
                 f'  v_mul_f32 {v(X0)}, {s(sL2E)}, {v(M)}',
                 f'  v_add_f32 {v(AL)}, {v(X0)}, {v(NB)}',
                 f'  v_sub_f32 {v(NB)}, 0, {v(X0)}',
                 f'  v_exp_f32 {v(AL)}, -{v(AL)}',
                 f'  ds_bpermute_b32 {v(ALQ)}, {v(VBP)}, {v(AL)}']
        for k in range(11):
            prep += [f'  v_fma_f32 {v(E+k)}, {v(E+k)}, {s(sL2E)}, {v(NB)}', f'  v_exp_f32 {v(E+k)}, {v(E+k)}']
        prep += [f'  v_add_f32 {v(X0)}, {v(E)}, {v(E+1)}', f'  v_add_f32 {v(X1)}, {v(E+2)}, {v(E+3)}']
        for k in range(4, 11):
            x = X0 if k % 2 == 0 else X1
            prep.append(f'  v_add_f32 {v(x)}, {v(x)}, {v(E+k)}')
        prep += [f'  v_add_f32 {v(X0)}, {v(X0)}, {v(X1)}',
                 f'  v_fma_f32 {v(LS)}, {v(LS)}, {v(AL)}, {v(X0)}']
        for k in range(6):
            prep.append(f'  v_cvt_pk_bf16_f32 {v(PP+k)}, {v(E+2*k)}, {v(E+2*k+1) if k < 5 else 0}')
        for j in range(4):
            for k in range(4):
                prep.append(f'  v_cndmask_b32 {v(AJ+4*j+k)}, 0, {v(PP+k)}, {s(sMJ+2*j,2)}')
        prep.append('  s_waitcnt lgkmcnt(0)')
        for k in range(12):
            prep.append(f'  v_mul_f32 {v(ACC+k)}, {v(ALQ)}, {v(ACC+k)}')
        prep2 = [f'  v_cndmask_b32 {v(AK+2*j+k)}, 0, {v(PP+4+k)}, {s(sMJ+2*j,2)}' for j in range(4) for k in range(2)]
        for k in range(NST):
            ss, i = divmod(k, 3)
            mode(k)
            if k == SW: offsets(DCON)
            wait_step(k, 2, f'vw{u}_{k}', PSV)
            A(main_load(o + k + D, SV, sCUR if k < SW else sNXT))
            if k == 0:
                A(f'  v_mov_b32 {v(ZC)}, {v(ZN)}')
                A(f'  v_mov_b32 {v(SC)}, {v(SN)}')
            X = TV + 4 * i if ss % 2 == 0 else T
            c, rest = dequant(X, slot(o + k), (v(ZS,2), v(ZS,2)), (v(ZS,2), v(ZS,2)), 'op_sel_hi:[1,0] ', 'op_sel:[0,1]')
            if i == 0:
                c[2:2] = [f'  v_mov_b32_dpp {v(ZS)}, {v(ZC)} row_newbcast:{ss} row_mask:0xf bank_mask:0xf',
                          f'  v_mov_b32_dpp {v(ZS+1)}, {v(SC)} row_newbcast:{ss} row_mask:0xf bank_mask:0xf']
            for x in c: A(x)
            if k == PSV: vscale_loads()
            if ss % 2 == 1:
                rest += [f'  v_cvt_pk_bf16_f32 {v(BV+16*i+4*j+((ss>>1)&3))}, {v(TV+4*i+j)}, {v(T+j)}' for j in range(4)]
            if ss == 10:
                rest += [f'  v_cvt_pk_bf16_f32 {v(BV+16*i+4*j+1)}, {v(TV+4*i+j)}, 0' for j in range(4)]
            side = []
            if k >= 1: side, prep = prep[:5], prep[5:]
            if k == 20: assert not prep
            if k == 23: prep = prep2
            for x in merge(rest, side): A(x)
            if ss == 7:
                for j in range(4):
                    A(f'  v_mfma_f32_16x16x32_bf16 {v(ACC+4*i,4)}, {v(AJ+4*j,4)}, {v(BV+16*i+4*j,4)}, {v(ACC+4*i,4)}')
            if ss == 10:
                assert not prep
                for j in range(4):
                    A(f'  v_mfma_f32_16x16x16_bf16 {v(ACC+4*i,4)}, {v(AK+2*j,2)}, {v(BV+16*i+4*j,2)}, {v(ACC+4*i,4)}')
        A(f'  s_mov_b32 {s(sCUR)}, {s(sNXT)}')
        if u == U - 1:
            A(f'  s_cmp_ge_u32 {s(sF)}, {NF}')
            A('  s_cbranch_scc1 L_v_done')
            A(f'  s_cmp_eq_u32 {s(sHN)}, {s(sHC)}')
            A('  s_cbranch_scc1 L_v0')
            A(f'  s_mov_b32 {s(sHC)}, {s(sHN)}')
            flush()
            A('  s_waitcnt lgkmcnt(0)')
            reset_state()
            A('  s_branch L_v0')
    assert 16 % (W * U) == 0
    for u in range(U): v_unit(u)
    A('L_v_done:')
    stamp()
    flush()
    C('---------------- all three waves: wave i finishes dims 64i..64i+63 of the four segments')
    A('L_finish:')
    AC = (base + 3) // 4 * 4
    OF = AC; ST = AC + 8; PA = ST + 16; FR = PA + 32
    nv = max(nv, FR + 24)
    TB, VA, VS_, VG, VH = E, E + 4, E + 6, E + 8, E + 9
    TAG = OF + 7
    A(f'  v_mov_b32 {v(X0)}, {F_END}')
    A(f'  ds_read_b128 {v(OF,4)}, {v(X0)}')
    A(f'  ds_read_b128 {v(OF+4,4)}, {v(X0)} offset:16')
    A(f'  s_mul_i32 {s(sT)}, {s(sRO)}, {SEG}')
    A(f'  s_lshl_b32 {s(sT+1)}, s3, 10')
    A(f'  v_lshl_add_u32 {v(VA)}, v0, 4, {s(sT+1)}')
    A(f'  v_lshrrev_b32 {v(X1)}, 4, v0')
    A(f'  v_lshlrev_b32 {v(VS_)}, 3, {v(X1)}')
    A(f'  v_add_u32 {v(VS_)}, {LDS_ACC + W * 3072}, {v(VS_)}')
    A(f'  s_sub_u32 {s(sG)}, {SEG}, {s(sT)}')
    A(f'  v_add_u32 {v(VA+1)}, {s(sG)}, {v(VA)}')
    A(f'  v_add_u32 {v(M)}, {s(sT)}, {v(VA)}')
    A(f'  s_sub_u32 {s(sG)}, {2 * SEG}, {s(sT)}')
    A(f'  v_add_u32 {v(ZN)}, {s(sG)}, {v(VS_)}')
    A(f'  s_add_u32 {s(sG)}, {s(sT)}, {SEG}')
    A(f'  v_add_u32 {v(SN)}, {s(sG)}, {v(VS_)}')
    A(f'  v_add_u32 {v(VS_+1)}, {3 * SEG}, {v(VS_)}')
    A(f'  s_mul_i32 {s(sT)}, s3, {PIECE}')
    A(f'  v_lshl_add_u32 {v(VG)}, v0, 4, {s(sT)}')
    A(f'  v_lshl_add_u32 {v(VH)}, {v(X1)}, 5, {s(sT)}')
    A(f'  v_and_b32 {v(AL)}, 1, v0')
    A(f'  v_lshl_add_u32 {v(VH)}, {v(AL)}, 4, {v(VH)}')
    A(f'  v_mul_u32_u24 {v(AL)}, 384, {v(X1)}')
    A(f'  v_and_b32 {v(X1)}, 15, v0')
    A(f'  v_lshl_add_u32 {v(AL)}, {v(X1)}, 3, {v(AL)}')
    A(f'  s_movk_i32 {s(sMSK)}, 0xff00')
    A(f'  s_mov_b32 {s(sL0)}, 0x30003')
    A(f'  s_mov_b32 {s(sL0+1)}, 0x30003')
    A(f'  s_mov_b32 {s(sL10)}, 0x0c0c0400')
    A(f'  s_mov_b32 {s(sL10+1)}, 0x05040100')
    A(f'  s_mov_b32 {s(sF)}, 0')
    A('  s_waitcnt vmcnt(0) lgkmcnt(0)')
    sO = 72
    def fetch(r):
        A(f'  buffer_load_dwordx4 {v(FR+8*r,4)}, {v(VG)}, {s(SWS,4)}, {s(sO+3+r)} offen sc1')
        A(f'  buffer_load_dwordx4 {v(FR+8*r+4,4)}, {v(VH)}, {s(SWS,4)}, {s(sO+3+r)} offen offset:1024 sc1')
    A('  s_barrier')
    slots = ((VA, 0, VS_), (VA, 3, VS_ + 1), (VA + 1, 1, ZN), (M, 1, SN))
    for j, (va_, sl, vs_) in enumerate(slots):
        A(f'  ds_read2_b64 {v(ST+4*j,4)}, {v(vs_)} offset1:4')
        for w in range(W):
            A(f'  ds_read_b128 {v(PA+8*j+4*w,4)}, {v(va_)} offset:{LDS_ACC + sl * SEG + 3072*w}')
    for k in range(7): A(f'  v_readfirstlane_b32 {s(sO+k)}, {v(OF+k)}')
    for k in range(4): A(f'  v_bfe_u32 {v(TB+k)}, {v(TAG)}, {8 * k}, 8')
    C('three segments are published, the fourth belongs to the head this workgroup owns')
    for j in range(4):
        st = ST + 4 * j; pa = PA + 8 * j
        A(f'  s_waitcnt lgkmcnt({3 * (3 - j)})')
        A(f'  v_min_f32 {v(X0)}, {v(st)}, {v(st+2)}')
        for w in range(2): A(f'  v_sub_f32 {v(st+2*w)}, {v(X0)}, {v(st+2*w)}')
        for w in range(2): A(f'  v_exp_f32 {v(st+2*w)}, {v(st+2*w)}')
        A(f'  v_mul_f32 {v(X1)}, {v(st)}, {v(st+1)}')
        for h in range(2): A(f'  v_pk_mul_f32 {v(pa+2*h,2)}, {v(pa+2*h,2)}, {v(st,2)} op_sel_hi:[1,0]')
        for h in range(2): A(f'  v_pk_fma_f32 {v(pa+2*h,2)}, {v(pa+4+2*h,2)}, {v(st+2,2)}, {v(pa+2*h,2)} op_sel_hi:[1,0,1]')
        A(f'  v_fma_f32 {v(pa+5)}, {v(st+2)}, {v(st+3)}, {v(X1)}')
        A(f'  v_mov_b32 {v(pa+4)}, {v(X0)}')
        if j < 3:
            for x in range(4): A(f'  v_and_or_b32 {v(pa+x)}, {v(pa+x)}, {s(sMSK)}, {v(TB+x)}')
            A(f'  v_mov_b32 {v(pa+7)}, {v(TAG)}')
            A(f'  buffer_store_dwordx4 {v(pa,4)}, {v(VG)}, {s(SWS,4)}, {s(sO+j)} offen sc1')
            A(f'  s_mov_b64 exec, {s(sL0,2)}')
            A(f'  buffer_store_dwordx4 {v(pa+4,4)}, {v(VH)}, {s(SWS,4)}, {s(sO+j)} offen offset:1024 sc1')
            A('  s_mov_b64 exec, -1')
        if j == 2:
            stamp()
            for r in range(3): fetch(r)
    A('  s_branch L_check')
    C('gather the three foreign records of the owned head; a granule counts once it carries this launch\'s tag')
    A('L_gather:')
    A(f'  s_add_u32 {s(sF)}, {s(sF)}, 1')
    A(f'  s_cmp_gt_u32 {s(sF)}, 200000')
    A('  s_cbranch_scc1 L_end')
    for r in range(3):
        A(f'  s_bitcmp0_b32 {s(sMISS)}, {r}')
        A(f'  s_cbranch_scc1 L_have{r}')
        fetch(r)
        A(f'L_have{r}:')
    A('L_check:')
    A(f'  s_mov_b32 {s(sMISS)}, 0')
    A('  s_waitcnt vmcnt(0)')
    for r in range(3):
        b = FR + 8 * r
        A(f'  v_perm_b32 {v(X0)}, {v(b+1)}, {v(b)}, {s(sL10)}')
        A(f'  v_perm_b32 {v(X1)}, {v(b+3)}, {v(b+2)}, {s(sL10)}')
        A(f'  v_cmp_ne_u32 vcc, {v(TAG)}, {v(b+7)}')
        A(f'  v_perm_b32 {v(X0)}, {v(X1)}, {v(X0)}, {s(sL10+1)}')
        A(f'  v_cmp_ne_u32 {s(sT,2)}, {v(TAG)}, {v(X0)}')
        A(f'  s_or_b64 {s(sT,2)}, {s(sT,2)}, vcc')
        A(f'  s_cselect_b32 {s(sT)}, {1 << r}, 0')
        A(f'  s_or_b32 {s(sMISS)}, {s(sMISS)}, {s(sT)}')
    A('  s_cbranch_scc1 L_gather')
    stamp()
    C('(own + partner) + (neighbour pair): products are rounded separately, so the sum does not depend on who had which class')
    B4 = [PA + 24, FR, FR + 8, FR + 16]
    A(f'  v_min_f32 {v(X0)}, {v(B4[0]+4)}, {v(B4[1]+4)}')
    A(f'  v_min3_f32 {v(X0)}, {v(X0)}, {v(B4[2]+4)}, {v(B4[3]+4)}')
    for b in B4: A(f'  v_sub_f32 {v(b+4)}, {v(X0)}, {v(b+4)}')
    for b in B4: A(f'  v_exp_f32 {v(b+4)}, {v(b+4)}')
    for b in B4:
        for x in range(4): A(f'  v_and_b32 {v(b+x)}, {s(sMSK)}, {v(b+x)}')
    for b in B4: A(f'  v_mul_f32 {v(b+5)}, {v(b+4)}, {v(b+5)}')
    A(f'  v_add_f32 {v(B4[0]+5)}, {v(B4[0]+5)}, {v(B4[1]+5)}')
    A(f'  v_add_f32 {v(B4[2]+5)}, {v(B4[2]+5)}, {v(B4[3]+5)}')
    A(f'  v_add_f32 {v(X0)}, {v(B4[0]+5)}, {v(B4[2]+5)}')
    A(f'  v_rcp_f32 {v(X0)}, {v(X0)}')
    A(f'  s_lshl_b32 {s(sT)}, s3, 7')
    A(f'  s_add_u32 {s(sT)}, {s(sT)}, {s(sO+6)}')
    for x in (0, 2):
        for b in B4: A(f'  v_pk_mul_f32 {v(b+x,2)}, {v(b+x,2)}, {v(b+4,2)} op_sel_hi:[1,0]')
        A(f'  v_pk_add_f32 {v(B4[0]+x,2)}, {v(B4[0]+x,2)}, {v(B4[1]+x,2)}')
        A(f'  v_pk_add_f32 {v(B4[2]+x,2)}, {v(B4[2]+x,2)}, {v(B4[3]+x,2)}')
        A(f'  v_pk_add_f32 {v(B4[0]+x,2)}, {v(B4[0]+x,2)}, {v(B4[2]+x,2)}')
        A(f'  v_pk_mul_f32 {v(B4[0]+x,2)}, {v(B4[0]+x,2)}, {v(X0,2)} op_sel_hi:[1,0]')
        A(f'  v_cvt_pk_bf16_f32 {v(ACC+x//2)}, {v(B4[0]+x)}, {v(B4[0]+x+1)}')
    A(f'  buffer_store_dwordx2 {v(ACC,2)}, {v(AL)}, {s(SQ,4)}, {s(sT)} offen')
    A('L_fin:')
    if diagpad:
        A('L_diag:')
        A(f'  s_memrealtime {s(sBIG,2)}')
        A('  s_waitcnt lgkmcnt(0)')
        A(f'  s_sub_u32 {s(sBIG)}, {s(sBIG)}, s6')
        A(f'  s_cmp_lt_u32 {s(sBIG)}, {diagpad * 100}')
        A('  s_cbranch_scc1 L_diag')
    if tl:
        A(f'  s_mul_i32 {s(sT)}, s2, {W+1}')
        A(f'  s_add_u32 {s(sT)}, {s(sT)}, s3')
        A(f'  s_lshl_b32 {s(sT)}, {s(sT)}, 8')
        A(f'  s_add_u32 {s(sT)}, {s(sT)}, 0x10000')
        A(f'  v_lshl_add_u32 {v(E)}, v0, 2, {s(sT)}')
        A(f'  global_store_dword {v(E)}, {v(TL)}, {s(sWS,2)}')
    if stamps:
        A('  s_waitcnt vmcnt(0)')
        A(f'  s_memrealtime {s(sBIG,2)}')
        A(f'  s_getreg_b32 {s(sSM)}, hwreg(HW_REG_XCC_ID)')
        A(f'  s_mul_i32 {s(sT)}, s2, {W+1}')
        A(f'  s_add_u32 {s(sT)}, {s(sT)}, s3')
        A(f'  s_lshl_b32 {s(sT)}, {s(sT)}, 4')
        A('  s_waitcnt lgkmcnt(0)')
        A(f'  v_mov_b32 {v(RING)}, s6')
        A(f'  v_mov_b32 {v(RING+1)}, {s(sBIG)}')
        A(f'  v_mov_b32 {v(RING+2)}, {s(sSM)}')
        A(f'  v_mov_b32 {v(RING+3)}, {s(sDEC)}')
        A(f'  v_mov_b32 {v(X0)}, {s(sT)}')
        A('  s_mov_b64 exec, 1')
        A(f'  global_store_dwordx4 {v(X0)}, {v(RING,4)}, {s(sWS,2)}')
    A('L_end:')
    A('  s_endpgm')

    C('================= helper wave')
    A('L_helper:')
    if tl:
        A(f'  s_mov_b32 {s(sTL)}, 0')
        A(f'  v_mov_b32 {v(TL)}, 0')
    hA, hZ, hO, h1, h2, h3, hD = 1, 2, 3, 4, 5, 6, 8
    hP, hQ, hC, hX, hW, hU, hT = hD + 96, hD + 97, hD + 98, hD + 100, hD + 104, hD + 105, hD + 106
    assert hT + 1 < TL
    A(f'  v_lshlrev_b32 {v(hA)}, 2, v0')
    A(f'  v_add_u32 {v(hA)}, {LDS_F}, {v(hA)}')
    A(f'  v_mov_b32 {v(hZ)}, 0')
    A('  s_mov_b64 exec, 0xff')
    A(f'  ds_write_b32 {v(hA)}, {v(hZ)}')
    A('  s_mov_b64 exec, -1')
    A('  s_waitcnt lgkmcnt(0)')
    make_srds(4, 9)
    A(f'  s_mov_b32 {s(SQ)}, {s(PT+14)}')
    A(f'  s_and_b32 {s(SQ+1)}, {s(PT+15)}, 0xffff')
    A('  s_barrier')
    sOF, sN0, sV0, sJ, sSF, sA, sB, sX, sCNT, sME, sPA, sFA, sFS, sQD = 44, 45, 48, 50, 52, 54, 56, 58, 59, 60, 61, 62, 63, 64
    sT0, sNON, sCP, sCA, sUP, sRET, sSUB = 72, 74, 76, 77, 78, 84, 86
    A(f'  s_memrealtime {s(sT0,2)}')
    C('first touch of the d_debug page (an unused word of the other cache line)')
    A(f'  s_load_dword {s(sCNT)}, {s(sDBG,2)}, 192')
    def code_touch(tag):
        A(f'  s_lshr_b32 {s(sT)}, s2, 3')
        A(f'  s_cmp_lt_u32 {s(sT)}, (L_code_end - L_k) / 1024')
        A(f'  s_cbranch_scc0 L_h_ct{tag}')
        A(f'  global_load_dwordx4 {v(hX,4)}, {v(hC,2)}, off')
        A(f'L_h_ct{tag}:')
    C('workgroup i reads kilobyte i/8 of this kernel\'s code so that first instruction fetches hit L2')
    A(f'  s_getpc_b64 {s(sA,2)}')
    A('L_h_pc:')
    A(f'  s_add_u32 {s(sSUB)}, {s(sA)}, L_h_cp - L_h_pc')
    A(f'  s_addc_u32 {s(sSUB+1)}, {s(sA+1)}, 0')
    A(f'  s_sub_u32 {s(sA)}, {s(sA)}, L_h_pc - L_k')
    A(f'  s_subb_u32 {s(sA+1)}, {s(sA+1)}, 0')
    A(f'  s_and_b32 {s(sA)}, {s(sA)}, -16')
    A(f'  s_lshr_b32 {s(sT)}, s2, 3')
    A(f'  s_lshl_b32 {s(sT)}, {s(sT)}, 10')
    A(f'  v_lshl_add_u32 {v(hC)}, v0, 4, {s(sT)}')
    A(f'  v_mov_b32 {v(hC+1)}, {s(sA+1)}')
    A(f'  v_add_co_u32 {v(hC)}, vcc, {s(sA)}, {v(hC)}')
    A(f'  v_addc_co_u32 {v(hC+1)}, vcc, 0, {v(hC+1)}, vcc')
    code_touch('a')
    A(f'  s_lshl_b32 {s(sT)}, s2, 6')
    A(f'  v_lshl_add_u32 {v(hP)}, v0, 3, {s(sT)}')
    A(f'  v_bfe_u32 {v(hQ)}, v0, 1, 3')
    A(f'  v_lshlrev_b32 {v(hQ)}, 6, {v(hQ)}')
    A(f'  v_and_b32 {v(hW)}, 1, v0')
    A(f'  v_lshl_add_u32 {v(hQ)}, {v(hW)}, 3, {v(hQ)}')
    A(f'  v_lshlrev_b32 {v(hW)}, 2, {v(hW)}')
    A(f'  v_add_u32 {v(hW)}, {F_PRG}, {v(hW)}')
    A(f'  v_mov_b32 {v(hU)}, 0')
    A(f'  v_lshlrev_b32 {v(hO)}, 4, v0')
    A(f'  s_mov_b32 {s(sCP)}, {cp0}')
    A(f'  s_mov_b32 {s(sCA)}, {WS_CP}')
    def wait_progress(tag, lim, slp):
        A(f'L_h_prog{tag}:')
        A(f'  s_sleep {slp}')
        A(f'  ds_read_b32 {v(hD)}, {v(hW)}')
        A('  s_waitcnt lgkmcnt(0)')
        A(f'  v_cmp_gt_u32 vcc, {lim}, {v(hD)}')
        A('  s_cmp_lg_u32 vcc_lo, 0')
        A(f'  s_cbranch_scc1 L_h_prog{tag}')
    def lds_set(addr, val):
        A(f'  v_mov_b32 {v(hA)}, {addr}')
        A(f'  v_mov_b32 {v(h2)}, {val}')
        A(f'  ds_write_b32 {v(hA)}, {v(h2)}')
    C('vote word in d_debug: six 6-bit tallies (class near die 0 in even pages, per slab of qk and qv), four 4-bit tallies')
    C(f'(die of role 0 per wg&3) and the voter count in the top 12 bits; {7 * NV} workgroups vote')
    A(f'  s_getreg_b32 {s(sJ)}, hwreg(HW_REG_XCC_ID)')
    A(f'  s_bfe_u32 {s(sJ)}, {s(sJ)}, 0x10002')
    A(f'  s_bfe_u32 {s(sSF)}, s2, 0x30003')
    A(f'  s_cmp_eq_u32 {s(sSF)}, 7')
    A('  s_cbranch_scc1 L_h_voted')
    A(f'  s_lshr_b32 {s(sT)}, s2, 6')
    A(f'  s_xor_b32 {s(sT)}, {s(sT)}, s2')
    A(f'  s_and_b32 {s(sT)}, {s(sT)}, {32 // NV - 1}')
    A('  s_cbranch_scc1 L_h_voted')
    A(f'  s_cmp_eq_u32 {s(sSF)}, 6')
    A('  s_cbranch_scc0 L_h_probe')
    A(f'  s_xor_b32 {s(sV0)}, {s(sJ)}, {s(sRO)}')
    A(f'  s_and_b32 {s(sSF)}, s2, 3')
    A(f'  s_lshl2_add_u32 {s(sSF)}, {s(sSF)}, 36')
    A('  s_branch L_h_vote')
    A('L_h_probe:')
    A(f'  s_cmp_ge_u32 {s(sSF)}, 3')
    A(f'  s_cselect_b32 {s(SI)}, {s(SV)}, {s(SK)}')
    A(f'  s_cselect_b32 {s(SI+1)}, {s(SV+1)}, {s(SK+1)}')
    A(f'  s_cselect_b32 {s(sT)}, 3, 0')
    A(f'  s_sub_u32 {s(sT)}, {s(sSF)}, {s(sT)}')
    A(f'  s_lshl_b32 {s(sT)}, {s(sT)}, 28')
    A(f'  s_add_u32 {s(sOF)}, {s(sPB)}, {s(sRO)}')
    A(f'  s_lshl_b32 {s(sOF)}, {s(sOF)}, 16')
    A(f'  s_add_u32 {s(sOF)}, {s(sOF)}, {s(sT)}')
    A(f'  s_add_u32 {s(sOF)}, {s(sOF)}, 0x1c0000')
    A(f'  s_mul_i32 {s(sT)}, s2, 0x2a95')
    A(f'  s_and_b32 {s(sT)}, {s(sT)}, 0x7f80')
    A(f'  s_add_u32 {s(sOF)}, {s(sOF)}, {s(sT)}')
    A(f'  s_add_u32 {s(sT)}, {s(sOF)}, 0x8000')
    A(f'  s_buffer_load_dword {s(sX)}, {s(SI,4)}, {s(sT)}')
    A(f'  s_mov_b32 {s(sN0)}, -1')
    A(f'  s_mov_b32 {s(sN0+1)}, -1')
    A(f'  s_mul_i32 {s(sSF)}, {s(sSF)}, 6')
    wait_progress('p', 1, 2)
    for k in range(NS):
        for c in ((0, 1) if k % 2 == 0 else (1, 0)):
            o = (((k & 1) << 14) | ((k >> 1 & 1) << 12) | ((k * 0x380) & 0xfff)) ^ (c << 13)
            A(f'  s_xor_b32 {s(sT)}, {s(sOF)}, {o}')
            A(f'  s_memtime {s(sA,2)}')
            A('  s_waitcnt lgkmcnt(0)')
            A(f'  s_buffer_load_dword {s(sX)}, {s(SI,4)}, {s(sT)}')
            A('  s_waitcnt lgkmcnt(0)')
            A(f'  s_memtime {s(sB,2)}')
            A('  s_waitcnt lgkmcnt(0)')
            A(f'  s_sub_u32 {s(sB)}, {s(sB)}, {s(sA)}')
            A(f'  s_min_u32 {s(sN0+c)}, {s(sN0+c)}, {s(sB)}')
    A(f'  s_cmp_lt_u32 {s(sN0+1)}, {s(sN0)}')
    A(f'  s_cselect_b32 {s(sV0)}, 1, 0')
    A(f'  s_lshr_b32 {s(sT)}, {s(sOF)}, 13')
    A(f'  s_xor_b32 {s(sT)}, {s(sT)}, s2')
    A(f'  s_xor_b32 {s(sT)}, {s(sT)}, {s(sJ)}')
    A(f'  s_and_b32 {s(sT)}, {s(sT)}, 1')
    A(f'  s_xor_b32 {s(sV0)}, {s(sV0)}, {s(sT)}')
    A('L_h_vote:')
    A(f'  s_mov_b32 {s(sV0+1)}, 0')
    A(f'  s_lshl_b64 {s(sV0,2)}, {s(sV0,2)}, {s(sSF)}')
    A(f'  s_or_b32 {s(sV0+1)}, {s(sV0+1)}, 0x100000')
    A(f'  s_atomic_add_x2 {s(sV0,2)}, {s(sDBG,2)}, 0')
    A('L_h_voted:')
    A('  s_waitcnt lgkmcnt(0)')
    C('launch nonce (tells this launch\'s hand-offs in ws from older contents)')
    A('  s_cmp_lg_u32 s2, 56')
    A('  s_cbranch_scc1 L_h_nonce')
    A(f'  s_lshl_b64 {s(sA,2)}, {s(sT0,2)}, 2')
    A(f'  s_atomic_add_x2 {s(sA,2)}, {s(sDBG,2)}, 8')
    A('  s_waitcnt lgkmcnt(0)')
    A('L_h_nonce:')
    stamp()
    def checkpoints(upto):
        A(f'  s_mov_b32 {s(sUP)}, {min(upto, last) - dly}')
        A(f'  s_swappc_b64 {s(sRET,2)}, {s(sSUB,2)}')
    def bounded(label, n):
        A(f'  s_add_u32 {s(sCNT)}, {s(sCNT)}, 1')
        A(f'  s_cmp_gt_u32 {s(sCNT)}, {n}')
        A(f'  s_cbranch_scc1 {label}')
    wait_progress('v', NWU - W, 4)
    A(f'  s_load_dwordx2 {s(sV0,2)}, {s(sDBG,2)}, 0')
    A(f'  s_mov_b32 {s(sCNT)}, 0')
    A('L_h_votes:')
    A('  s_waitcnt lgkmcnt(0)')
    A(f'  s_lshr_b32 {s(sT)}, {s(sV0+1)}, 20')
    A(f'  s_cmp_ge_u32 {s(sT)}, {7 * NV}')
    A('  s_cbranch_scc1 L_h_votes_done')
    bounded('L_h_votes_done', 8000)
    A('  s_sleep 64')
    A(f'  s_mov_b64 {s(sV0,2)}, 0')
    A(f'  s_atomic_or_x2 {s(sV0,2)}, {s(sDBG,2)}, 0 glc')
    A('  s_branch L_h_votes')
    A('L_h_votes_done:')
    A(f'  s_mov_b32 {s(sDEC)}, 0x80')
    for j in range(6):
        A(f'  s_bfe_u64 {s(sA,2)}, {s(sV0,2)}, {hex(0x60000 | (6 * j))}')
        A(f'  s_cmp_gt_u32 {s(sA)}, {NV // 2}')
        A(f'  s_cselect_b32 {s(sB)}, {1 << j}, 0')
        A(f'  s_or_b32 {s(sDEC)}, {s(sDEC)}, {s(sB)}')
    if force >= 0: A(f'  s_mov_b32 {s(sDEC)}, {0x80 | force}')
    A(f'  s_and_b32 {s(sT)}, s2, 3')
    A(f'  s_lshl2_add_u32 {s(sT)}, {s(sT)}, {4 + (NV // 4).bit_length() - 1}')
    A(f'  s_lshr_b32 {s(sA)}, {s(sV0+1)}, {s(sT)}')
    A(f'  s_xor_b32 {s(sA)}, {s(sA)}, s2')
    A(f'  s_xor_b32 {s(sA)}, {s(sA)}, {s(sRO)}')
    A(f'  s_and_b32 {s(sA)}, {s(sA)}, 1')
    A(f'  s_mul_i32 {s(sA)}, {s(sA)}, 63')
    A(f'  s_xor_b32 {s(sDEC)}, {s(sDEC)}, {s(sA)}')
    lds_set(F_DEC, s(sDEC))
    stamp()
    A(f'  s_load_dwordx2 {s(sNON,2)}, {s(sDBG,2)}, 8')
    A(f'  s_mov_b32 {s(sCNT)}, 0')
    A('L_h_getnonce:')
    A('  s_waitcnt lgkmcnt(0)')
    A(f'  s_cmp_lg_u64 {s(sNON,2)}, 0')
    A('  s_cbranch_scc1 L_h_gotnonce')
    bounded('L_h_gotnonce', 8000)
    A('  s_sleep 64')
    A(f'  s_atomic_or_x2 {s(sNON,2)}, {s(sDBG,2)}, 8 glc')
    A('  s_branch L_h_getnonce')
    A('L_h_gotnonce:')
    A(f'  s_lshr_b64 {s(sA,2)}, {s(sNON,2)}, 2')
    C('table for the finish: ws offsets of the records to publish (slots 0, 3, 2-role) and to gather, output offset, tag.')
    C('record = 8*(page/3) + 2*slot + class; the page of type t = page%3 lies in slab (2t + pair) % 3')
    A(f'  v_writelane_b32 {v(hD)}, {s(sA)}, 7')
    A(f'  s_lshr_b32 {s(sQD)}, {s(sPB)}, 5')
    A(f'  s_mov_b32 {s(sJ)}, 0xaaaaaaab')
    def rec_base(t):
        A(f'  s_add_u32 {s(sA)}, {s(sQD)}, {2 * t}')
        A(f'  s_mul_hi_u32 {s(sB)}, {s(sA)}, {s(sJ)}')
        A(f'  s_lshr_b32 {s(sB)}, {s(sB)}, 1')
        A(f'  s_mul_i32 {s(sB)}, {s(sB)}, 3')
        A(f'  s_sub_u32 {s(sA)}, {s(sA)}, {s(sB)}')
        A(f'  s_lshr_b32 {s(sB)}, {s(sDEC)}, {s(sA)}')
        A(f'  s_bfe_u32 {s(sB)}, {s(sB)}, 0x10003')
        A(f'  s_lshl_b32 {s(sA)}, {s(sA)}, 7')
        A(f'  s_add_u32 {s(sA)}, {s(sA)}, {s(sQD)}')
        A(f'  s_mul_hi_u32 {s(sA)}, {s(sA)}, {s(sJ)}')
        A(f'  s_lshr_b32 {s(sA)}, {s(sA)}, 1')
        A(f'  s_lshl3_add_u32 {s(sA)}, {s(sA)}, {s(sB)}')
    def put(lane, reg):
        A(f'  s_mul_i32 {s(sT)}, {s(reg)}, {REC}')
        A(f'  s_add_u32 {s(sT)}, {s(sT)}, {WS_REC}')
        A(f'  v_writelane_b32 {v(hD)}, {s(sT)}, {lane}')
    rec_base(0)
    put(0, sA)
    rec_base(2)
    A(f'  s_add_u32 {s(sA)}, {s(sA)}, 6')
    put(1, sA)
    rec_base(1)
    A(f'  s_lshl_b32 {s(sB)}, {s(sRO)}, 1')
    A(f'  s_sub_u32 {s(sB+1)}, {s(sA)}, {s(sB)}')
    A(f'  s_add_u32 {s(sB+1)}, {s(sB+1)}, 4')
    put(2, sB + 1)
    A(f'  s_add_u32 {s(sA)}, {s(sA)}, {s(sB)}')
    A(f'  s_add_u32 {s(sA)}, {s(sA)}, 2')
    A(f'  s_xor_b32 {s(sB)}, {s(sA)}, 1')
    put(3, sB)
    A(f'  s_andn2_b32 {s(sB)}, {s(sA)}, 1')
    A(f'  s_xor_b32 {s(sB)}, {s(sB)}, 2')
    put(4, sB)
    A(f'  s_add_u32 {s(sB)}, {s(sB)}, 1')
    put(5, sB)
    A(f'  s_lshr_b32 {s(sA)}, {s(sA)}, 2')
    A(f'  s_mul_i32 {s(sA)}, {s(sA)}, 1536')
    A(f'  v_writelane_b32 {v(hD)}, {s(sA)}, 6')
    A(f'  v_lshlrev_b32 {v(hA)}, 2, v0')
    A('  s_mov_b64 exec, 0xff')
    A(f'  ds_write_b32 {v(hA)}, {v(hD)} offset:{F_END}')
    A('  s_mov_b64 exec, -1')
    C('logit swap: flag line per workgroup; image q = 2*pair + role keeps kilobyte k at g(q) xor f(k), both xor-linear:')
    C('pairs of kilobytes share DRAM rows, the rest spreads over the channels')
    A(f'  s_lshl_b32 {s(sFA)}, s2, 8')
    A(f'  s_add_u32 {s(sFA)}, {s(sFA)}, {WS_FLAG}')
    A(f'  s_xor_b32 {s(sFS)}, {s(sFA)}, 1024')
    A(f'  s_lshr_b32 {s(sX)}, {s(sDEC)}, 3')
    A(f'  s_xor_b32 {s(sX)}, {s(sX)}, {s(sDEC)}')
    B_ = lambda *bits: sum(1 << b for b in bits)
    QV = [B_(b) for b in (10, 11, 12, 13, 14, 21, 22, 23)]
    KV = [B_(15), B_(16, 11), B_(17, 10, 12), B_(18, 11, 13), B_(19, 10), B_(20, 12)]
    def lin(vecs, x):
        r = 0
        for b, w in enumerate(vecs):
            if x >> b & 1: r ^= w
        return r
    pxor = lambda k: lin(KV, k)
    assert len({lin(QV, q) ^ pxor(k) for q in range(256) for k in range(36)}) == 256 * 36
    A(f'  s_mov_b32 {s(sOF)}, {WS_IMG}')
    for b_ in range(1, 8):
        A(f'  s_bitcmp1_b32 {s(sPB)}, {4 + b_}')
        A(f'  s_cselect_b32 {s(sT)}, {QV[b_]}, 0')
        A(f'  s_xor_b32 {s(sOF)}, {s(sOF)}, {s(sT)}')
    A(f'  s_mul_i32 {s(sT)}, {s(sRO)}, {QV[0]}')
    A(f'  s_xor_b32 {s(sME)}, {s(sOF)}, {s(sT)}')
    A(f'  s_xor_b32 {s(sPA)}, {s(sME)}, {QV[0]}')
    NW = NWU * 384 // 1024
    def reg(k): return hD + 4 * (k % 24)
    def export(lo, hi):
        for k in range(lo, hi): A(f'  ds_read_b128 {v(reg(k),4)}, {v(hO)} offset:{1024*k}')
        A('  s_waitcnt lgkmcnt(0)')
        for k in range(lo, hi):
            A(f'  s_xor_b32 {s(sT)}, {s(sME)}, {pxor(k)}')
            A(f'  buffer_store_dwordx4 {v(reg(k),4)}, {v(hO)}, {s(SWS,4)}, {s(sT)} offen sc1')
    def imp(lo, hi):
        for k in range(lo, hi):
            A(f'  s_xor_b32 {s(sT)}, {s(sPA)}, {pxor(k)}')
            A(f'  buffer_load_dwordx4 {v(reg(k),4)}, {v(hO)}, {s(SWS,4)}, {s(sT)} offen sc1')
        A('  s_waitcnt vmcnt(0)')
        for k in range(lo, hi): A(f'  ds_write_b128 {v(hO)}, {v(reg(k),4)} offset:{1024*k}')
    def cond(bit, tag, fn):
        A(f'  s_bitcmp0_b32 {s(sX)}, {bit}')
        A(f'  s_cbranch_scc1 L_h_{tag}')
        fn()
        A(f'L_h_{tag}:')
    def handshake(tag, level):
        A(f'  s_add_u32 {s(sA)}, {s(sNON)}, {level}')
        A(f'  v_lshlrev_b32 {v(h2)}, 3, v0')
        A('  s_waitcnt vmcnt(0)')
        A(f'  v_mov_b32 {v(hD)}, {s(sA)}')
        A(f'  v_mov_b32 {v(hD+1)}, {s(sNON+1)}')
        A('  s_mov_b64 exec, 0xffff')
        A(f'  buffer_store_dwordx2 {v(hD,2)}, {v(h2)}, {s(SWS,4)}, {s(sFA)} offen sc1')
        A('  s_mov_b64 exec, 1')
        A(f'  s_mov_b32 {s(sCNT)}, 0')
        A(f'L_h_flag{tag}:')
        A(f'  buffer_load_dwordx2 {v(hD+2,2)}, {v(h2)}, {s(SWS,4)}, {s(sFS)} offen sc1')
        A('  s_waitcnt vmcnt(0)')
        A(f'  v_readfirstlane_b32 {s(sB)}, {v(hD+2)}')
        A(f'  v_readfirstlane_b32 {s(sB+1)}, {v(hD+3)}')
        A(f'  s_sub_u32 {s(sB)}, {s(sB)}, {s(sA)}')
        A(f'  s_xor_b32 {s(sB+1)}, {s(sB+1)}, {s(sNON+1)}')
        A(f'  s_lshr_b32 {s(sB)}, {s(sB)}, 1')
        A(f'  s_or_b32 {s(sB)}, {s(sB)}, {s(sB+1)}')
        A(f'  s_cbranch_scc0 L_h_flag{tag}_done')
        bounded(f'L_h_flag{tag}_done', 100000)
        A('  s_sleep 8')
        A(f'  s_branch L_h_flag{tag}')
        A(f'L_h_flag{tag}_done:')
        A('  s_mov_b64 exec, -1')
    pg = (2, 0, 1) if kord else (0, 1, 2)
    checkpoints(64)
    wait_progress('a', 64, 4)
    stamp()
    export(0, NW)
    cond(pg[0], 'e0', lambda: export(NW, 12))
    cond(pg[1], 'e1', lambda: export(12, 24))
    handshake('a', 1)
    stamp()
    C('first units: slot f comes from the image of role f&1, slot (f&~1) + V class of that page')
    A(f'  s_bfe_u32 {s(sA)}, {s(sDEC)}, {hex(0x10003 + pg[0])}')
    A(f'  s_mul_i32 {s(sA)}, {s(sA)}, 384')
    A(f'  v_lshrrev_b32 {v(h1)}, 3, v0')
    for k in range(NW):
        A(f'  v_add_u32 {v(h2)}, {8 * k}, {v(h1)}')
        A(f'  v_mul_u32_u24 {v(h2)}, 21846, {v(h2)}')
        A(f'  v_bfe_u32 {v(h2)}, {v(h2)}, 16, 1')
        A(f'  v_mul_u32_u24 {v(h3)}, 384, {v(h2)}')
        A(f'  v_sub_u32 {v(h3)}, {v(hO)}, {v(h3)}')
        A(f'  v_add_u32 {v(h3)}, {s(sA)}, {v(h3)}')
        A(f'  v_add_u32 {v(h3)}, {1024 * k}, {v(h3)}')
        assert NW <= 4
        A(f'  v_mul_u32_u24 {v(h2)}, {QV[0]}, {v(h2)}')
        A(f'  v_xor_b32 {v(h2)}, {s(sOF)}, {v(h2)}')
        for b_ in range(2):
            A(f'  v_bfe_u32 {v(hZ)}, {v(h3)}, {10 + b_}, 1')
            A(f'  v_mul_u32_u24 {v(hZ)}, {pxor(1 << b_)}, {v(hZ)}')
            A(f'  v_xor_b32 {v(h2)}, {v(h2)}, {v(hZ)}')
        A(f'  v_and_b32 {v(h3)}, 1023, {v(h3)}')
        A(f'  v_add_u32 {v(h2)}, {v(h2)}, {v(h3)}')
        A(f'  buffer_load_dwordx4 {v(reg(k),4)}, {v(h2)}, {s(SWS,4)}, 0 offen sc1')
    cond(pg[0], 'i0', lambda: imp(NW, 12))
    cond(pg[1], 'i1', lambda: imp(12, 24))
    A('  s_waitcnt vmcnt(0)')
    for k in range(NW): A(f'  ds_write_b128 {v(hO)}, {v(reg(k),4)} offset:{1024*k}')
    stamp()
    A(f'  s_bitcmp0_b32 {s(sX)}, {pg[2]}')
    A(f'  s_cselect_b32 {s(sT)}, 255, {32 * pg[2]}')
    lds_set(F_IMP, s(sT))
    checkpoints(NF)
    A(f'  s_bitcmp0_b32 {s(sX)}, {pg[2]}')
    A('  s_cbranch_scc1 L_h_all')
    wait_progress('b', NF, 4)
    export(24, 36)
    handshake('b', 2)
    imp(24, 36)
    lds_set(F_IMP, 255)
    A('L_h_all:')
    checkpoints(999)
    C('the last unit runs with the deep queue')
    wait_progress('t', 2 * NF - 2 * W, 4)
    A(f'  v_mov_b32 {v(hD)}, 255')
    A(f'  ds_write_b32 {v(hW)}, {v(hD)} offset:{F_BST - F_PRG}')
    A('  s_branch L_finish')

    C(f'check points every {step} units up to unit s{sUP}: lane w (mod 2) follows wave w. Arrival times of 8 workgroups go to ws;')
    C(f'{dly} units later the entries stamped inside this launch give the mean, and a late wave gets a catch-up limit in LDS')
    A('L_h_cp:')
    A(f'  s_cmp_gt_u32 {s(sCP)}, {s(sUP)}')
    A('  s_cbranch_scc0 L_h_cpgo')
    A(f'  s_setpc_b64 {s(sRET,2)}')
    A('L_h_cpgo:')
    A(f'  ds_read_b32 {v(hD)}, {v(hW)}')
    A('  s_waitcnt lgkmcnt(0)')
    A(f'  v_cmp_gt_u32 vcc, {s(sCP)}, {v(hD)}')
    A('  s_cmp_eq_u32 vcc_lo, 0')
    A('  s_cbranch_scc1 L_h_cpnext')
    A('L_h_first:')
    A('  s_sleep 2')
    A(f'  ds_read_b32 {v(hD)}, {v(hW)}')
    A('  s_waitcnt lgkmcnt(0)')
    A(f'  v_cmp_gt_u32 {s(sV0,2)}, {s(sCP)}, {v(hD)}')
    A(f'  s_cmp_eq_u32 {s(sV0)}, -1')
    A('  s_cbranch_scc1 L_h_first')
    A(f'  s_memrealtime {s(sA,2)}')
    wait_progress('m', s(sCP), 2)
    A(f'  s_memrealtime {s(sB,2)}')
    A(f'  v_mov_b32 {v(hT)}, {s(sA)}')
    A(f'  v_mov_b32 {v(hT+1)}, {s(sA+1)}')
    A(f'  s_mov_b64 exec, {s(sV0,2)}')
    A('  s_waitcnt lgkmcnt(0)')
    A(f'  v_mov_b32 {v(hT)}, {s(sB)}')
    A(f'  v_mov_b32 {v(hT+1)}, {s(sB+1)}')
    A('  s_mov_b64 exec, -1')
    A('  s_cmp_ge_u32 s2, 8')
    A('  s_cbranch_scc1 L_h_np')
    A('  s_mov_b64 exec, 0xff')
    A(f'  buffer_store_dwordx2 {v(hT,2)}, {v(hP)}, {s(SWS,4)}, {s(sCA)} offen sc1')
    A('  s_mov_b64 exec, -1')
    A('L_h_np:')
    A(f'  s_add_u32 {s(sJ)}, {s(sCP)}, {dly}')
    wait_progress('c', s(sJ), 4)
    A(f'  buffer_load_dwordx2 {v(hD,2)}, {v(hQ)}, {s(SWS,4)}, {s(sCA)} offen')
    A(f'  v_mov_b32 {v(hD+2)}, {s(sT0+1)}')
    A('  s_waitcnt vmcnt(0)')
    A(f'  ds_read_b32 {v(hD+4)}, {v(hW)}')
    A(f'  v_subrev_co_u32 {v(hD)}, vcc, {s(sT0)}, {v(hD)}')
    A(f'  v_subb_co_u32 {v(hD+1)}, vcc, {v(hD+1)}, {v(hD+2)}, vcc')
    A(f'  v_lshrrev_b32 {v(hD+2)}, 24, {v(hD)}')
    A(f'  v_or_b32 {v(hD+1)}, {v(hD+1)}, {v(hD+2)}')
    A(f'  v_cmp_eq_u32 vcc, 0, {v(hD+1)}')
    A(f'  v_cndmask_b32 {v(hD)}, 0, {v(hD)}, vcc')
    A(f'  s_and_b32 {s(sB)}, vcc_lo, 0xffff')
    A(f'  s_bcnt1_i32_b32 {s(sB)}, {s(sB)}')
    for r in (8, 4, 2, 1):
        A(f'  v_add_u32_dpp {v(hD)}, {v(hD)}, {v(hD)} row_ror:{r} row_mask:0xf bank_mask:0xf')
    A(f'  v_subrev_u32 {v(hD+1)}, {s(sT0)}, {v(hT)}')
    A(f'  v_mul_lo_u32 {v(hD+1)}, {v(hD+1)}, {s(sB)}')
    A(f'  s_max_u32 {s(sB)}, {s(sB)}, 1')
    A(f'  v_sub_u32 {v(hD)}, {v(hD+1)}, {v(hD)}')
    A(f'  v_cvt_f32_u32 {v(hD+1)}, {s(sB)}')
    A(f'  v_cvt_f32_i32 {v(hD)}, {v(hD)}')
    A(f'  v_rcp_f32 {v(hD+1)}, {v(hD+1)}')
    A(f'  v_mul_f32 {v(hD)}, {v(hD)}, {v(hD+1)}')
    A(f'  v_cvt_i32_f32 {v(hD)}, {v(hD)}')
    A('  s_waitcnt lgkmcnt(0)')
    A(f'  v_add_u32 {v(hD+4)}, {W}, {v(hD+4)}')
    C('subtract what the running catch-up gains between the check point and the first unit that sees the new limit')
    A(f'  v_min_u32 {v(hD+1)}, {v(hU)}, {v(hD+4)}')
    A(f'  v_subrev_u32 {v(hD+1)}, {s(sCP)}, {v(hD+1)}')
    A(f'  v_max_i32 {v(hD+1)}, 0, {v(hD+1)}')
    A(f'  v_lshrrev_b32 {v(hD+1)}, 1, {v(hD+1)}')
    A(f'  v_mul_u32_u24 {v(hD+1)}, {gain}, {v(hD+1)}')
    A(f'  v_sub_u32 {v(hD)}, {v(hD)}, {v(hD+1)}')
    A(f'  v_add_u32 {v(hD+1)}, {gain // 2 - dead}, {v(hD)}')
    A(f'  v_max_i32 {v(hD+1)}, 0, {v(hD+1)}')
    A(f'  v_min_i32 {v(hD+1)}, 2000, {v(hD+1)}')
    A(f'  v_mul_u32_u24 {v(hD+1)}, {65536 // gain}, {v(hD+1)}')
    A(f'  v_lshrrev_b32 {v(hD+1)}, 16, {v(hD+1)}')
    A(f'  v_cmp_ne_u32 vcc, 0, {v(hD+1)}')
    A(f'  v_lshl_add_u32 {v(hD+1)}, {v(hD+1)}, 1, {v(hD+4)}')
    A(f'  v_cndmask_b32 {v(hU)}, 0, {v(hD+1)}, vcc')
    A(f'  ds_write_b32 {v(hW)}, {v(hU)} offset:{F_BST - F_PRG}')
    A('L_h_cpnext:')
    A(f'  s_add_u32 {s(sCP)}, {s(sCP)}, {step}')
    A(f'  s_add_u32 {s(sCA)}, {s(sCA)}, 512')
    A('  s_branch L_h_cp')
    A('L_code_end:')
    body = pad(L)

    nva = (nv + 7) // 8 * 8
    out = HDR + f'; @launch grid=(256,1,1) block=({64*(W+1)},1,1) lds={lds}\n' + NOTES
    out += '.amdgcn_target "amdgcn-amd-amdhsa--gfx950"\n.text\n'
    out += f'.globl {NAME}\n.p2align 8\n.type {NAME},@function\n'
    out += '\n'.join(body) + '\n'
    out += f'''.section .rodata,"a"
.p2align 6
.amdhsa_kernel {NAME}
  .amdhsa_next_free_vgpr {nva}
  .amdhsa_next_free_sgpr 102
  .amdhsa_accum_offset {nva}
  .amdhsa_group_segment_fixed_size 0
  .amdhsa_kernarg_size 80
  .amdhsa_user_sgpr_count 2
  .amdhsa_user_sgpr_kernarg_segment_ptr 1
  .amdhsa_system_sgpr_workgroup_id_x 1
  .amdhsa_float_denorm_mode_32 3
.end_amdhsa_kernel
'''
    return out

if __name__ == '__main__':
    kw = {}
    for x in sys.argv[2:]:
        k, val = x.split('=')
        kw[k] = int(val)
    open(sys.argv[1], 'w').write(gen(**kw))
```

```python
import sys, os
sys.path.insert(0, os.path.dirname(os.path.abspath(__file__)))
from asmlib import pad
NAME = 'standalone__kv_cache_quant_int4_int2_kv_with_per_channel_or_per_token_scales__sampling_kernel'
TOTAL = 256 * 4096 * 768
PIECE = 1152
REC = 3 * PIECE
WS_REC = 1 << 20
WS_CP = 7 << 20
WS_FLAG = 6 << 20
WS_IMG = 16 << 20
WS_END = WS_IMG + (16 << 20)
IMG = 96 * 384
OOB = 0x7ffffff0
HDR = open(os.path.join(os.path.dirname(os.path.abspath(__file__)), 'header.txt')).read()
assert all(((32 * c + 1) * 21846) >> 16 == (32 * c + 1) // 3 for c in range(25))
assert all((c * 43) >> 8 == c // 6 for c in range(24))
assert all((x * 21846) >> 16 == x // 3 for x in range(100))

NOTES = """\
"""

class Alloc:
    def __init__(self, start): self.n = start
    def __call__(self, k, align=1):
        self.n = (self.n + align - 1) // align * align
        r = self.n; self.n += k
        return r

def v(r, k=1): return f'v{r}' if k == 1 else f'v[{r}:{r+k-1}]'
def s(r, k=1): return f's{r}' if k == 1 else f's[{r}:{r+k-1}]'

def merge(main, side):
    out = []; side = list(side)
    for m in main:
        out.append(m)
        if side: out.append(side.pop(0))
    return out + side

def gen(DN=10, D=15, bev=3, NWU=8, NS=3, NV=8, pfw=24, PSK=17, gain=32, dly=2, dead=-30, cp0=10, step=4, last=188,
        force=-1, stamps=0, tl=0, diagpad=0, diagat=-1, kord=1):
    W, U, NST, NF, PSV = 2, 2, 33, 96, 3
    R = 11 * U
    SW = NST - D
    assert DN <= D < R and NWU % 8 == 0 and PSV < SW and 3 <= PSK < SW
    L = []
    A = L.append
    C = lambda t: L.append('; ' + t)
    va = Alloc(1)
    DUP = va(1); DOWN = va(1); DCON = va(1)
    RING = va(4 * R, 4); VO = va(4)
    ICV = va(1); TU = va(1); VVS = va(1); VL1 = va(1); VL2 = va(1); VBP = va(1); VFL = va(1); VST = va(1); VPR = va(1)
    VOOB = va(1); VBS = va(1)
    T = va(4, 2); ZN = va(1); SN = va(1); ZC = va(1); SC = va(1); ZS = va(2, 2)
    LG = va(6, 4); ACC = va(12, 4); M = va(1); NB = va(2, 2); LS = NB + 1
    X0 = va(2, 2); X1 = X0 + 1; AL = va(1); ALQ = va(1); E = va(11); PP = va(6); TL = va(1)
    base = va.n
    QB = va(6, 4); QN = va(6, 2); KSR = va(6, 2); KZR = va(6, 2); KS = va(12, 2); KZ = va(12, 2); KA = va(6, 4); SD = va(4, 4); S = va(2, 2)
    IUP = va(1); IOWN = va(1); ICON = va(1); VKS0 = va(1); VKS = va(1); VQ = va(1); VNI = va(1)
    kend = va.n
    va.n = base
    AJ = va(16, 4); AK = va(8, 2); TV = va(12, 2); BV = va(48, 4)
    nv = max(va.n, kend)
    sRO, sPB = 4, 5
    SK, SV, SI, SKS, SKZ, SVS, SVZ, SQ, SWS = 8, 12, 16, 20, 24, 28, 32, 36, 40
    PT = 44
    sOUT, sL0, sL10, sM0, sM10, sLOW = 46, 48, 50, 52, 54, 56
    sCUR, sNXT, sSO, s768, sF, sMSK, sL2E, sTL, sSCL, sT = 60, 61, 62, 63, 64, 65, 66, 67, 68, 70
    sMJ = 72
    sDBG, sWS = 80, 82
    sQ3, sC, sQC, sMISS, sHC, sHN, sDIV, sSH = 84, 85, 86, 87, 88, 89, 90, 91
    sBIG, sSM = 92, 94
    sDEC, sG, sGATE = 96, 97, 99
    SEG = W * 3072 + W * 32
    LDS_ACC = IMG
    LDS_F = LDS_ACC + 4 * SEG
    F_DEC, F_IMP, F_PRG, F_BST, F_END = LDS_F, LDS_F + 4, LDS_F + 16, LDS_F + 24, LDS_F + 32
    lds = 62464
    assert LDS_F + 64 <= lds and F_END % 16 == 0

    A(f'{NAME}:')
    A('  s_cmp_ge_u32 s2, 256')
    A('  s_cbranch_scc1 L_end')
    A(f'  s_load_dwordx16 {s(PT,16)}, s[0:1], 0')
    A(f'  s_load_dwordx4 {s(sDBG,4)}, s[0:1], 64')
    if stamps or diagpad: A('  s_memrealtime s[6:7]')
    C('s3 = wave, s4 = role in the pair, s5 = 32 * pair (first block of the first page)')
    A('  v_lshrrev_b32 v1, 6, v0')
    A('  v_and_b32 v0, 63, v0')
    A('  v_readfirstlane_b32 s3, v1')
    A(f'  s_bfe_u32 {s(sRO)}, s2, 0x10002')
    A(f'  s_lshr_b32 {s(sPB)}, s2, 3')
    A(f'  s_lshl_b32 {s(sPB)}, {s(sPB)}, 2')
    A(f'  s_and_b32 {s(sT)}, s2, 3')
    A(f'  s_add_u32 {s(sPB)}, {s(sPB)}, {s(sT)}')
    A(f'  s_lshl_b32 {s(sPB)}, {s(sPB)}, 5')
    SRDS = ((SKS, PT + 6, 256 * 24576), (SKZ, PT + 8, 256 * 24576), (SVS, PT + 10, 256 * 8192), (SVZ, PT + 12, 256 * 8192),
            (SK, PT + 2, TOTAL), (SQ, PT, 256 * 1536), (SI, PT + 2, TOTAL), (SV, PT + 4, TOTAL), (SWS, sWS, WS_END))
    for srd, p, nb in SRDS:
        A(f'  s_mov_b32 {s(srd+2)}, {nb}')
        A(f'  s_mov_b32 {s(srd+3)}, 0x20000')
    def make_srds(lo, hi):
        for srd, p, nb in SRDS[lo:hi]:
            A(f'  s_mov_b32 {s(srd)}, {s(p)}')
            A(f'  s_and_b32 {s(srd+1)}, {s(p+1)}, 0xffff')
    A(f'  s_cmp_eq_u32 s3, {W}')
    A('  s_cbranch_scc1 L_helper')

    C('================= streaming waves')
    cls, a, g, n = T, T + 1, T + 2, T + 3
    A(f'  v_and_b32 {v(cls)}, 3, v0')
    A(f'  v_bfe_u32 {v(a)}, v0, 2, 2')
    A(f'  v_lshrrev_b32 {v(g)}, 4, v0')
    A(f'  v_and_b32 {v(n)}, 15, v0')
    def stream_consts(x, up, own, con, lanepart):
        A(f'  v_and_b32 {v(own)}, 2, {v(x)}')
        A(f'  v_lshlrev_b32 {v(up)}, 5, {v(own)}')
        A(f'  v_add_u32 {v(up)}, 129, {v(up)}')
        A(f'  v_and_b32 {v(X1)}, 1, {v(x)}')
        A(f'  v_lshl_add_u32 {v(own)}, {v(X1)}, 2, {v(own)}')
        A(f'  v_mul_u32_u24 {v(X1)}, {43 * 768}, {v(X1)}')
        A(f'  v_add_u32 {v(con)}, {v(lanepart)}, {v(X1)}')
        A(f'  v_subrev_u32 {v(con)}, {43 * 768}, {v(con)}')
    A(f'  v_lshlrev_b32 {v(X0)}, 4, {v(cls)}')
    A(f'  v_lshl_add_u32 {v(X0)}, {v(g)}, 6, {v(X0)}')
    A(f'  v_lshrrev_b32 {v(VKS0)}, 1, {v(X0)}')
    stream_consts(a, IUP, IOWN, ICON, X0)
    A(f'  v_mul_u32_u24 {v(X1)}, 384, {v(a)}')
    A(f'  v_add_u32 {v(VQ)}, {v(X1)}, {v(VKS0)}')
    A(f'  v_mov_b32 {v(VOOB)}, {OOB}')
    A(f'  s_mov_b32 {s(sDIV)}, 0xaaaaaaab')
    A(f'  s_mov_b32 {s(sSH)}, 0x492492')
    A(f'  s_movk_i32 {s(s768)}, 768')
    def slot(k): return RING + 4 * (k % R)
    def main_load(k, srd, so):
        ss, i = divmod(k % NST, 3)
        r, k0 = (0, 0) if ss == 0 else (1, 1) if ss <= 5 else (2, 6) if ss <= 9 else (3, 10)
        return f'  buffer_load_dwordx4 {v(slot(k),4)}, {v(VO+r)}, {s(srd,4)}, {s(so)} offen offset:{768*(ss-k0) + 256*i} nt'
    def kscale_loads():
        A(f'  s_mul_i32 {s(sSO)}, {s(sQ3)}, 1536')
        for i in range(3):
            A(f'  buffer_load_dwordx2 {v(KSR+2*i,2)}, {v(VKS)}, {s(SKS,4)}, {s(sSO)} offen offset:{128*i}')
            A(f'  buffer_load_dwordx2 {v(KZR+2*i,2)}, {v(VKS)}, {s(SKZ,4)}, {s(sSO)} offen offset:{128*i}')
    def vscale_loads():
        A(f'  s_lshl_b32 {s(sSO)}, {s(sQ3)}, 9')
        A(f'  v_lshl_add_u32 {v(VVS)}, {v(TU)}, 1, {v(ICV)}')
        A(f'  buffer_load_short_d16_hi {v(ZN)}, {v(VVS)}, {s(SVZ,4)}, {s(sSO)} offen')
        A(f'  buffer_load_short_d16_hi {v(SN)}, {v(VVS)}, {s(SVS,4)}, {s(sSO)} offen')
    def q_loads():
        A(f'  s_mul_i32 {s(sT)}, {s(sHN)}, 1536')
        for i in range(3): A(f'  buffer_load_dwordx2 {v(QN+2*i,2)}, {v(VQ)}, {s(SQ,4)}, {s(sT)} offen offset:{128*i}')
    def short_masks(own, m0, m10, low):
        A(f'  v_add_u32 {v(X0)}, {s(sC)}, {v(own)}')
        A(f'  v_lshrrev_b32 {v(X1)}, {v(X0)}, {s(sSH)}')
        A(f'  v_and_b32 {v(X1)}, 1, {v(X1)}')
        A(f'  v_cmp_eq_u32 {s(m10,2)}, 1, {v(X1)}')
        A(f'  s_and_b64 {s(m0,2)}, {s(m10,2)}, {s(low,2)}')
        A(f'  s_andn2_b64 {s(m10,2)}, {s(m10,2)}, {s(low,2)}')
    def map_unit(f, isv):
        if kord and not isv:
            A(f'  s_lshr_b32 {s(sT+1)}, {s(f)}, 4')
            A(f'  s_andn2_b32 {s(sT+1)}, {s(sT+1)}, 1')
            A(f'  s_lshr_b32 {s(sT+1)}, 0x12, {s(sT+1)}')
            A(f'  s_and_b32 {s(sT+1)}, {s(sT+1)}, 3')
        else:
            A(f'  s_lshr_b32 {s(sT+1)}, {s(f)}, 5')
        A(f'  s_lshr_b32 {s(sC)}, {s(sDEC)}, {s(sT+1)}')
        if isv:
            A(f'  s_bfe_u32 {s(sC)}, {s(sC)}, 0x10003')
            A(f'  s_and_b32 {s(sT)}, {s(f)}, 31')
        else:
            A(f'  s_andn2_b32 {s(sT)}, {s(f)}, 1')
            A(f'  s_or_b32 {s(sT)}, {s(sT)}, {s(sRO)}')
            A(f'  s_cmp_lt_u32 {s(f)}, {NWU}')
            A(f'  s_cselect_b32 {s(sT)}, {s(sT)}, {s(f)}')
            A(f'  s_cselect_b32 {s(sC)}, {s(f)}, {s(sC)}')
            A(f'  s_and_b32 {s(sC)}, {s(sC)}, 1')
            A(f'  s_and_b32 {s(sT)}, {s(sT)}, 31')
        A(f'  s_lshl_b32 {s(sT+1)}, {s(sT+1)}, 12')
        A(f'  s_add_u32 {s(sT)}, {s(sT)}, {s(sPB)}')
        A(f'  s_add_u32 {s(sT)}, {s(sT)}, {s(sT+1)}')
        A(f'  s_mul_hi_u32 {s(sQ3)}, {s(sT)}, {s(sDIV)}')
        A(f'  s_lshr_b32 {s(sQ3)}, {s(sQ3)}, 1')
        A(f'  s_mul_i32 {s(sT+1)}, {s(sQ3)}, 3')
        A(f'  s_sub_u32 {s(sT)}, {s(sT)}, {s(sT+1)}')
        A(f'  s_lshl3_add_u32 {s(sC)}, {s(sT)}, {s(sC)}')
        A(f'  s_mul_i32 {s(sNXT)}, {s(sQ3)}, 196608')
        A(f'  s_lshr_b32 {s(sHN)}, {s(sQ3)}, 4')
        A(f'  s_lshl_b32 {s(sT)}, {s(sC)}, 5')
        A(f'  v_add_u32 {v(TU)}, {s(sT)}, {v(DUP if isv else IUP)}')
        A(f'  v_mul_u32_u24 {v(TU)}, 21846, {v(TU)}')
        A(f'  v_lshrrev_b32 {v(TU)}, 16, {v(TU)}')
        short_masks(DOWN if isv else IOWN, sM0, sM10, sLOW + 2 * isv)
        if not isv:
            A(f'  v_mul_u32_u24 {v(X0)}, 43, {v(X0)}')
            A(f'  v_lshrrev_b32 {v(X0)}, 8, {v(X0)}')
            A(f'  v_mul_u32_u24 {v(X0)}, 384, {v(X0)}')
            A(f'  v_add_u32 {v(VKS)}, {v(X0)}, {v(VKS0)}')
    def offsets(con):
        A(f'  v_mad_u32_u24 {v(VO)}, {v(TU)}, {s(s768)}, {v(con)}')
        A(f'  v_add_u32 {v(VO+1)}, 768, {v(VO)}')
        A(f'  v_add_u32 {v(VO+2)}, {6 * 768}, {v(VO)}')
        A(f'  v_add_u32 {v(VO+3)}, {10 * 768}, {v(VO)}')
        A(f'  v_cndmask_b32 {v(VO)}, {v(VO)}, {v(VOOB)}, {s(sM0,2)}')
        A(f'  v_cndmask_b32 {v(VO+3)}, {v(VO+3)}, {v(VOOB)}, {s(sM10,2)}')
    def stamp():
        if tl:
            A(f'  s_memrealtime {s(sT,2)}')
            A('  s_waitcnt lgkmcnt(0)')
            A(f'  s_min_u32 m0, {s(sTL)}, 63')
            A(f'  v_writelane_b32 {v(TL)}, {s(sT)}, m0')
            A(f'  s_add_u32 {s(sTL)}, {s(sTL)}, 1')
    def reset_state():
        for k in range(12): A(f'  v_mov_b32 {v(ACC+k)}, 0')
        A(f'  v_mov_b32 {v(M)}, 0xff800000')
        A(f'  v_mov_b32 {v(NB)}, 0x7f800000')
        A(f'  v_mov_b32 {v(LS)}, 0')
    A(f'  s_mov_b32 {s(sF)}, s3')
    A(f'  s_mov_b32 {s(sGATE)}, {NWU}')
    A(f'  s_mov_b32 {s(sDEC)}, 0')
    C('one bulk pass pulls the scale/zero arrays into the caches, so that the small reads of them later stay off DRAM:')
    C('role 0 takes the scales, role 1 the zeros of the pair\'s own pages')
    A(f'  v_lshlrev_b32 {v(ZC)}, 4, v0')
    sPK, sPV = sQC, sHC
    line = lambda srd, so, k: f'  buffer_load_dwordx4 {v(ACC,4)}, {v(ZC)}, {s(srd,4)}, {s(so)} offen offset:{(k % 4) * 1024}'
    pfl = []
    SA, SB, sPW = sMJ, sMJ + 4, sSCL
    A(f'  s_lshl_b32 {s(sPK)}, {s(sPB)}, 9')
    A(f'  s_mul_i32 {s(sT)}, s3, 3072')
    for j in range(3):
        A(f'  s_add_u32 {s(sT+1)}, {s(sPK)}, {j << 21}')
        A(f'  s_mul_hi_u32 {s(sT+1)}, {s(sT+1)}, {s(sDIV)}')
        A(f'  s_lshr_b32 {s(sT+1)}, {s(sT+1)}, 8')
        A(f'  s_lshl_b32 {s(sT+1)}, {s(sT+1)}, 7')
        A(f'  s_add_u32 {s((sPV, sPW, sPW + 1)[j])}, {s(sT+1)}, {s(sT)}')
    A(f'  s_lshl_b32 {s(sT)}, s3, 13')
    A(f'  s_add_u32 {s(sPK)}, {s(sPK)}, {s(sT)}')
    for srd, nb in ((SA, 256 * 24576), (SB, 256 * 8192)):
        A(f'  s_mov_b32 {s(srd+2)}, {nb}')
        A(f'  s_mov_b32 {s(srd+3)}, 0x20000')
    for k in range(24):
        if k % 4 == 0 and k: pfl.append(f'  s_add_u32 {s(sPK)}, {s(sPK)}, {4096 if k % 8 else (1 << 21) - 4096}')
        pfl.append(line(SA, sPK, k))
        if k < 9: pfl.append(line(SB, (sPV, sPW, sPW + 1)[k // 3], k % 3))
    nissued = [0]
    def issue_pf(cnt):
        while pfl and cnt > 0:
            x = pfl.pop(0)
            if 'buffer_load' in x:
                if nissued[0] >= pfw: A(f'  s_waitcnt vmcnt({pfw - 1})')
                nissued[0] += 1; cnt -= 1
            A(x)
    A('  s_waitcnt lgkmcnt(0)')
    A(f'  s_cmp_eq_u32 {s(sRO)}, 0')
    A(f'  s_cselect_b64 {s(SA,2)}, {s(PT+6,2)}, {s(PT+8,2)}')
    A(f'  s_cselect_b64 {s(SB,2)}, {s(PT+10,2)}, {s(PT+12,2)}')
    A(f'  s_and_b32 {s(SA+1)}, {s(SA+1)}, 0xffff')
    A(f'  s_and_b32 {s(SB+1)}, {s(SB+1)}, 0xffff')
    issue_pf(8)
    make_srds(0, 9)
    A(f'  s_mov_b64 {s(sOUT,2)}, {s(PT+14,2)}')
    A(f'  s_mov_b32 {s(sLOW)}, 0x0f0f0f0f')
    A(f'  s_mov_b32 {s(sLOW+1)}, 0x0f0f0f0f')
    A(f'  s_mov_b32 {s(sLOW+2)}, 0xffff')
    A(f'  s_mov_b32 {s(sLOW+3)}, 0xffff')
    map_unit(sF, 0)
    offsets(ICON)
    A(f'  s_mov_b32 {s(sCUR)}, {s(sNXT)}')
    q_loads()
    A(main_load(0, SK, sCUR))
    issue_pf(pfw - nissued[0])
    A('  s_barrier')
    A('  s_mov_b64 vcc, 0')
    A(f'  v_lshlrev_b32 {v(X0)}, 4, {v(n)}')
    stream_consts(g, DUP, DOWN, DCON, X0)
    A(f'  v_and_b32 {v(X1)}, 1, {v(g)}')
    A(f'  v_mul_u32_u24 {v(X1)}, 86, {v(X1)}')
    A(f'  v_lshl_add_u32 {v(ICV)}, {v(n)}, 1, {v(X1)}')
    A(f'  v_subrev_u32 {v(ICV)}, 86, {v(ICV)}')
    A(f'  v_lshlrev_b32 {v(VBP)}, 4, {v(g)}')
    A(f'  v_lshrrev_b32 {v(X0)}, 2, v0')
    A(f'  s_mul_i32 {s(sT)}, s3, 384')
    A(f'  v_lshl_add_u32 {v(VL1)}, {v(X0)}, 4, {s(sT)}')
    A(f'  v_lshl_add_u32 {v(VL2)}, {v(X0)}, 3, {s(sT)}')
    A(f'  s_mul_i32 {s(sT)}, s3, 3072')
    A(f'  s_add_u32 {s(sT)}, {s(sT)}, {LDS_ACC}')
    A(f'  v_lshl_add_u32 {v(VFL)}, v0, 4, {s(sT)}')
    A(f'  s_lshl_b32 {s(sT)}, s3, 5')
    A(f'  s_add_u32 {s(sT)}, {s(sT)}, {LDS_ACC + W * 3072}')
    A(f'  v_lshl_add_u32 {v(VST)}, {v(a)}, 3, {s(sT)}')
    A(f'  s_lshl2_add_u32 {s(sT)}, s3, {F_PRG}')
    A(f'  v_mov_b32 {v(VPR)}, {s(sT)}')
    A(f'  v_mov_b32 {v(ZN)}, 0')
    A(f'  v_mov_b32 {v(SN)}, 0')
    A(f'  v_mov_b32 {v(VNI)}, 0xff800000')
    A(f'  v_mov_b32 {v(AL)}, 1')
    A(f'  s_mov_b32 {s(sMSK)}, 0xffff0000')
    A(f'  s_mov_b32 {s(sL2E)}, 0x3fb8aa3b')
    if tl:
        A(f'  s_mov_b32 {s(sTL)}, 0')
        A(f'  v_mov_b32 {v(TL)}, 0')
    issue_pf(99)
    for h in range(2):
        A(f'  s_mov_b32 {s(sSCL+h)}, 0x3d93cd3a')
    for j in range(4):
        A(f'  s_mov_b32 {s(sMJ+2*j)}, {hex(0x11111111 << j)}')
        A(f'  s_mov_b32 {s(sMJ+2*j+1)}, {hex(0x11111111 << j)}')
    A(f'  ds_write_b32 {v(VPR)}, {v(AL)}')
    A(f'  s_mov_b32 {s(sHC)}, {s(sHN)}')
    kscale_loads()
    for k in range(1, D):
        A(f'  s_waitcnt vmcnt({max(DN, k) - 1 + 6})')
        A(main_load(k, SK, sCUR))
    A(f'  s_waitcnt vmcnt({D - 1})')

    def wait_step(k, nsmall, tag, ps):
        cnt = lambda d: d - 1 + (nsmall if k - d <= ps < k else 0)
        A(f'  s_waitcnt vmcnt({cnt(D)})')
        if k % bev == 0:
            A(f'  s_cbranch_vccnz L_{tag}')
            A(f'  s_waitcnt vmcnt({cnt(DN)})')
            A(f'L_{tag}:')
    def mode(k):
        if k == 0: A(f'  ds_read_b32 {v(VBS)}, {v(VPR)} offset:{F_BST - F_PRG}')
        if k == 1:
            A('  s_waitcnt lgkmcnt(0)')
            A(f'  v_cmp_lt_u32 vcc, {s(sG)}, {v(VBS)}')
    def dequant(X, src, z, sc, zmod, smod):
        r = [f'  v_cvt_f32_i32 {v(X+j)}, {v(src+j)}' for j in range(4)]
        r += [f'  v_pk_add_f32 {v(X+2*h,2)}, {v(X+2*h,2)}, {z[h]} {zmod}neg_lo:[0,1] neg_hi:[0,1]' for h in range(2)]
        r2 = [f'  v_cvt_pk_bf16_f32 {v(X+j)}, 0, {v(X+j)}' for j in range(4)]
        r2 += [f'  v_pk_mul_f32 {v(X+2*h,2)}, {v(X+2*h,2)}, {sc[h]} {smod}'.rstrip() for h in range(2)]
        return r, r2
    def kreduce(ss):
        d = S + (ss & 1)
        q = lambda j: f'quad_perm:[{j},{j},{j},{j}] row_mask:0xf bank_mask:0xf'
        r = [f'  v_mov_b32_dpp {v(X0)}, {v(SD)} {q(0)}',
             f'  v_mov_b32_dpp {v(X1)}, {v(SD+2)} {q(2)}',
             f'  v_add_f32_dpp {v(X0)}, {v(SD+1)}, {v(X0)} {q(1)}',
             f'  v_add_f32_dpp {v(X1)}, {v(SD+3)}, {v(X1)} {q(3)}',
             f'  v_add_f32 {v(d)}, {v(X0)}, {v(X1)}']
        if ss == 0: r.append(f'  v_cndmask_b32 {v(d)}, {v(d)}, {v(VNI)}, {s(sL0,2)}')
        if ss == 10: r.append(f'  v_cndmask_b32 {v(d)}, {v(d)}, {v(VNI)}, {s(sL10,2)}')
        if ss & 1 or ss == 10:
            r += [f'  v_cvt_pk_bf16_f32 {v(S)}, 0, {v(S)}',
                  f'  v_cvt_pk_bf16_f32 {v(S+1)}, 0, {v(S+1)}',
                  f'  v_pk_mul_f32 {v(S,2)}, {v(S,2)}, {s(sSCL,2)}',
                  f'  v_cvt_pk_bf16_f32 {v(LG+(ss>>1))}, {v(S)}, {v(S+1)}']
        return r
    def lds_word(dst, addr):
        A(f'  v_mov_b32 {v(X0)}, {addr}')
        A(f'  ds_read_b32 {v(X0)}, {v(X0)}')
        A('  s_waitcnt lgkmcnt(0)')
        A(f'  v_readfirstlane_b32 {s(dst)}, {v(X0)}')

    mf32 = f'  v_mfma_f32_16x16x32_bf16 {v(SD,4)}, {v(KA,4)}, {v(QB,4)}, 0'
    mf16 = f'  v_mfma_f32_16x16x16_bf16 {v(SD,4)}, {v(KA+4,2)}, {v(QB+4,2)}, {v(SD,4)}'
    def diag_mark(tag, base_):
        if diagat < 0: return
        A(f'  s_and_b32 {s(sT)}, {s(sF)}, -4')
        A(f'  s_cmp_lg_u32 {s(sT)}, {diagat - base_}')
        A(f'  s_cbranch_scc1 L_dm{tag}')
        A('  s_memrealtime s[6:7]')
        A('  s_waitcnt lgkmcnt(0)')
        A(f'L_dm{tag}:')
    def k_unit(u):
        o = NST * u
        if u == 0: diag_mark('k', 0)
        if u == 0: stamp()
        short_masks(DOWN, sL0, sL10, sLOW + 2)
        A(f'  s_mov_b32 {s(sG)}, {s(sF)}')
        A(f'  s_add_u32 {s(sF)}, {s(sF)}, {W}')
        for k in range(NST):
            ss, i = divmod(k, 3)
            mode(k)
            if k == SW:
                if u == U - 1:
                    C('the last K unit prefetches the first V unit')
                    A(f'  s_cmp_lt_u32 {s(sF)}, {NF}')
                    A('  s_cbranch_scc1 L_k_keep')
                    map_unit(3, 1)
                    A(f'  s_mov_b32 {s(SI)}, {s(SV)}')
                    A(f'  s_mov_b32 {s(SI+1)}, {s(SV+1)}')
                    vscale_loads()
                    A(f'  v_mov_b32 {v(ICON)}, {v(DCON)}')
                    A('L_k_keep:')
                offsets(ICON)
            wait_step(k, 6, f'kw{u}_{k}', PSK)
            A(main_load(o + k + D, SK, sCUR) if k < SW else main_load(o + k + D, SI, sNXT))
            if i == 2: A(mf32)
            if i == 0 and ss > 0: A(mf16)
            if ss == 0:
                for raw, dst in ((KZR, KZ), (KSR, KS)):
                    for h in range(2):
                        A(f'  v_lshlrev_b32 {v(dst+4*i+2*h)}, 16, {v(raw+2*i+h)}')
                        A(f'  v_and_b32 {v(dst+4*i+2*h+1)}, {s(sMSK)}, {v(raw+2*i+h)}')
                for h in range(2):
                    A(f'  v_mov_b32 {v(QB+2*i+h)}, {v(QN+2*i+h)}')
            c, rest = dequant(T, slot(o + k), (v(KZ+4*i,2), v(KZ+4*i+2,2)), (v(KS+4*i,2), v(KS+4*i+2,2)), '', '')
            for x in c: A(x)
            if k == PSK:
                C('next unit: class (needs the vote once), scales, q on a head change')
                A(f'  s_cmp_lt_u32 {s(sF)}, {s(sGATE)}')
                A(f'  s_cbranch_scc1 L_k_known{u}')
                A(f'L_k_spin{u}:')
                lds_word(sDEC, F_DEC)
                A(f'  s_cmp_eq_u32 {s(sDEC)}, 0')
                A(f'  s_cbranch_scc1 L_k_spin{u}')
                A(f'  s_mov_b32 {s(sGATE)}, -1')
                A(f'L_k_known{u}:')
                map_unit(sF, 0)
                A(f'  s_cmp_eq_u32 {s(sHN)}, {s(sHC)}')
                A(f'  s_cbranch_scc1 L_k_sameq{u}')
                q_loads()
                A(f'  s_mov_b32 {s(sHC)}, {s(sHN)}')
                A(f'L_k_sameq{u}:')
                kscale_loads()
            rest += [f'  v_cvt_pk_bf16_f32 {v(KA+2*i)}, {v(T)}, {v(T+1)}',
                     f'  v_cvt_pk_bf16_f32 {v(KA+2*i+1)}, {v(T+2)}, {v(T+3)}']
            if i == 1 and ss > 0:
                r = kreduce(ss - 1)
                rest = r[:2] + rest[:2] + r[2:4] + rest[2:4] + r[4:5] + rest[4:]
                pend = r[5:]
            elif i == 2 and ss > 0:
                rest = merge(rest, pend)
            for x in rest: A(x)
        A(f'  s_mov_b32 {s(sCUR)}, {s(sNXT)}')
        A(f'  v_mov_b32 {v(AL)}, {s(sF)}')
        A(mf16)
        A(f'  ds_write_b128 {v(VL1)}, {v(LG,4)}')
        A(f'  v_add_u32 {v(VL1)}, {384 * W}, {v(VL1)}')
        for x in kreduce(10): A(x)
        A(f'  ds_write_b64 {v(VL2)}, {v(LG+4,2)} offset:256')
        A(f'  ds_write_b32 {v(VPR)}, {v(AL)}')
        A(f'  v_add_u32 {v(VL2)}, {384 * W}, {v(VL2)}')
    C('---------------- K loop: two units per trip')
    A('L_k:')
    for u in range(U): k_unit(u)
    A(f'  s_cmp_lt_u32 {s(sF)}, {NF}')
    A('  s_cbranch_scc1 L_k')

    def flush():
        C('park the partial result of the finished head segment in slot 2*(head&1) + (segment ends the head)')
        A(f'  s_and_b32 {s(sT)}, {s(sQC)}, 15')
        A(f'  s_cmp_ge_u32 {s(sT)}, 12')
        A(f'  s_cselect_b32 {s(sT)}, {SEG}, 0')
        A(f'  s_bitcmp1_b32 {s(sQC)}, 4')
        A(f'  s_cselect_b32 {s(sT+1)}, {2 * SEG}, 0')
        A(f'  s_add_u32 {s(sT)}, {s(sT)}, {s(sT+1)}')
        A(f'  v_mov_b32 {v(X1)}, {v(LS)}')
        A(f'  v_add_u32 {v(X0)}, {s(sT)}, {v(VFL)}')
        A(f'  v_add_u32 {v(ALQ)}, {s(sT)}, {v(VST)}')
        A(f'  v_permlane32_swap_b32 {v(LS)}, {v(X1)}')
        A(f'  v_add_f32 {v(LS)}, {v(LS)}, {v(X1)}')
        A(f'  v_mov_b32 {v(X1)}, {v(LS)}')
        for i in range(3):
            A(f'  ds_write_b128 {v(X0)}, {v(ACC+4*i,4)} offset:{1024*i}')
        A(f'  v_permlane16_swap_b32 {v(LS)}, {v(X1)}')
        A(f'  v_add_f32 {v(LS)}, {v(LS)}, {v(X1)}')
        A(f'  ds_write_b64 {v(ALQ)}, {v(NB,2)}')
    def import_gate(tag):
        A(f'  s_cmp_lt_u32 {s(sF)}, {s(sGATE)}')
        A(f'  s_cbranch_scc1 L_{tag}_ok')
        A(f'L_{tag}_spin:')
        lds_word(sGATE, F_IMP)
        A(f'  s_cmp_lt_u32 {s(sF)}, {s(sGATE)}')
        A(f'  s_cbranch_scc0 L_{tag}_spin')
        A(f'L_{tag}_ok:')

    C('---------------- V loop: two units per trip')
    A(f'  v_subrev_u32 {v(VL1)}, {IMG - 32 * 384 * kord}, {v(VL1)}')
    A(f'  v_subrev_u32 {v(VL2)}, {IMG - 32 * 384 * kord}, {v(VL2)}')
    A(f'  s_mov_b32 {s(sF)}, s3')
    A(f'  s_mov_b32 {s(sHC)}, {s(sHN)}')
    A(f'  s_mov_b32 {s(sGATE)}, 0')
    A(f'  s_mov_b32 {s(SQ)}, {s(sOUT)}')
    A(f'  s_and_b32 {s(SQ+1)}, {s(sOUT+1)}, 0xffff')
    import_gate('v0')
    A(f'  ds_read_b128 {v(LG,4)}, {v(VL1)}')
    A(f'  ds_read_b64 {v(LG+4,2)}, {v(VL2)} offset:256')
    reset_state()
    def v_unit(u):
        o = NST * u
        A(f'L_v{u}:')
        if u == 0: diag_mark('v', NF)
        if u == 0: stamp()
        A(f'  s_add_u32 {s(sG)}, {s(sF)}, {NF}')
        A(f'  v_mov_b32 {v(AL)}, {s(sG)}')
        A(f'  s_mov_b32 {s(sQC)}, {s(sQ3)}')
        A(f'  ds_write_b32 {v(VPR)}, {v(AL)}')
        A(f'  s_add_u32 {s(sF)}, {s(sF)}, {W}')
        import_gate(f'v1{u}')
        map_unit(sF, 1)
        A(f'  s_cmp_lt_u32 {s(sF)}, {NF}')
        A(f'  s_cselect_b32 {s(sNXT)}, {s(sNXT)}, {TOTAL}')
        stp = 384 * W
        if kord and u == U - 1:
            stp = s(sL0)
            A(f'  s_lshr_b32 {s(sT)}, {s(sF)}, 1')
            A(f'  s_cmp_eq_u32 {s(sT)}, 32')
            A(f'  s_cselect_b32 {stp}, {384 * W - IMG}, {s(s768)}')
        prep = []
        for k in range(11):
            prep.append(f'  v_lshlrev_b32 {v(E+k)}, 16, {v(LG+k//2)}' if k % 2 == 0 else f'  v_and_b32 {v(E+k)}, {s(sMSK)}, {v(LG+k//2)}')
        prep += [f'  v_add_u32 {v(VL1)}, {stp}, {v(VL1)}',
                 f'  v_add_u32 {v(VL2)}, {stp}, {v(VL2)}',
                 f'  v_max3_f32 {v(X0)}, {v(E)}, {v(E+1)}, {v(E+2)}',
                 f'  ds_read_b128 {v(LG,4)}, {v(VL1)}',
                 f'  ds_read_b64 {v(LG+4,2)}, {v(VL2)} offset:256',
                 f'  v_max3_f32 {v(X1)}, {v(E+3)}, {v(E+4)}, {v(E+5)}',
                 f'  v_max3_f32 {v(X0)}, {v(X0)}, {v(E+6)}, {v(E+7)}',
                 f'  v_max3_f32 {v(X1)}, {v(X1)}, {v(E+8)}, {v(E+9)}',
                 f'  v_max3_f32 {v(X0)}, {v(X0)}, {v(E+10)}, {v(M)}',
                 f'  v_max_f32 {v(X0)}, {v(X0)}, {v(X1)}',
                 f'  v_mov_b32 {v(X1)}, {v(X0)}',
                 f'  v_permlane32_swap_b32 {v(X0)}, {v(X1)}',
                 f'  v_max_f32 {v(X0)}, {v(X0)}, {v(X1)}',
                 f'  v_mov_b32 {v(X1)}, {v(X0)}',
                 f'  v_permlane16_swap_b32 {v(X0)}, {v(X1)}',
                 f'  v_max_f32 {v(M)}, {v(X0)}, {v(X1)}',
                 f'  v_mul_f32 {v(X0)}, {s(sL2E)}, {v(M)}',
                 f'  v_add_f32 {v(AL)}, {v(X0)}, {v(NB)}',
                 f'  v_sub_f32 {v(NB)}, 0, {v(X0)}',
                 f'  v_exp_f32 {v(AL)}, -{v(AL)}',
                 f'  ds_bpermute_b32 {v(ALQ)}, {v(VBP)}, {v(AL)}']
        for k in range(11):
            prep += [f'  v_fma_f32 {v(E+k)}, {v(E+k)}, {s(sL2E)}, {v(NB)}', f'  v_exp_f32 {v(E+k)}, {v(E+k)}']
        prep += [f'  v_add_f32 {v(X0)}, {v(E)}, {v(E+1)}', f'  v_add_f32 {v(X1)}, {v(E+2)}, {v(E+3)}']
        for k in range(4, 11):
            x = X0 if k % 2 == 0 else X1
            prep.append(f'  v_add_f32 {v(x)}, {v(x)}, {v(E+k)}')
        prep += [f'  v_add_f32 {v(X0)}, {v(X0)}, {v(X1)}',
                 f'  v_fma_f32 {v(LS)}, {v(LS)}, {v(AL)}, {v(X0)}']
        for k in range(6):
            prep.append(f'  v_cvt_pk_bf16_f32 {v(PP+k)}, {v(E+2*k)}, {v(E+2*k+1) if k < 5 else 0}')
        for j in range(4):
            for k in range(4):
                prep.append(f'  v_cndmask_b32 {v(AJ+4*j+k)}, 0, {v(PP+k)}, {s(sMJ+2*j,2)}')
        prep.append('  s_waitcnt lgkmcnt(0)')
        for k in range(12):
            prep.append(f'  v_mul_f32 {v(ACC+k)}, {v(ALQ)}, {v(ACC+k)}')
        prep2 = [f'  v_cndmask_b32 {v(AK+2*j+k)}, 0, {v(PP+4+k)}, {s(sMJ+2*j,2)}' for j in range(4) for k in range(2)]
        for k in range(NST):
            ss, i = divmod(k, 3)
            mode(k)
            if k == SW: offsets(DCON)
            wait_step(k, 2, f'vw{u}_{k}', PSV)
            A(main_load(o + k + D, SV, sCUR if k < SW else sNXT))
            if k == 0:
                A(f'  v_mov_b32 {v(ZC)}, {v(ZN)}')
                A(f'  v_mov_b32 {v(SC)}, {v(SN)}')
            X = TV + 4 * i if ss % 2 == 0 else T
            c, rest = dequant(X, slot(o + k), (v(ZS,2), v(ZS,2)), (v(ZS,2), v(ZS,2)), 'op_sel_hi:[1,0] ', 'op_sel:[0,1]')
            if i == 0:
                c[2:2] = [f'  v_mov_b32_dpp {v(ZS)}, {v(ZC)} row_newbcast:{ss} row_mask:0xf bank_mask:0xf',
                          f'  v_mov_b32_dpp {v(ZS+1)}, {v(SC)} row_newbcast:{ss} row_mask:0xf bank_mask:0xf']
            for x in c: A(x)
            if k == PSV: vscale_loads()
            if ss % 2 == 1:
                rest += [f'  v_cvt_pk_bf16_f32 {v(BV+16*i+4*j+((ss>>1)&3))}, {v(TV+4*i+j)}, {v(T+j)}' for j in range(4)]
            if ss == 10:
                rest += [f'  v_cvt_pk_bf16_f32 {v(BV+16*i+4*j+1)}, {v(TV+4*i+j)}, 0' for j in range(4)]
            side = []
            if k >= 1: side, prep = prep[:5], prep[5:]
            if k == 20: assert not prep
            if k == 23: prep = prep2
            for x in merge(rest, side): A(x)
            if ss == 7:
                for j in range(4):
                    A(f'  v_mfma_f32_16x16x32_bf16 {v(ACC+4*i,4)}, {v(AJ+4*j,4)}, {v(BV+16*i+4*j,4)}, {v(ACC+4*i,4)}')
            if ss == 10:
                assert not prep
                for j in range(4):
                    A(f'  v_mfma_f32_16x16x16_bf16 {v(ACC+4*i,4)}, {v(AK+2*j,2)}, {v(BV+16*i+4*j,2)}, {v(ACC+4*i,4)}')
        A(f'  s_mov_b32 {s(sCUR)}, {s(sNXT)}')
        if u == U - 1:
            A(f'  s_cmp_ge_u32 {s(sF)}, {NF}')
            A('  s_cbranch_scc1 L_v_done')
            A(f'  s_cmp_eq_u32 {s(sHN)}, {s(sHC)}')
            A('  s_cbranch_scc1 L_v0')
            A(f'  s_mov_b32 {s(sHC)}, {s(sHN)}')
            flush()
            A('  s_waitcnt lgkmcnt(0)')
            reset_state()
            A('  s_branch L_v0')
    assert 16 % (W * U) == 0
    for u in range(U): v_unit(u)
    A('L_v_done:')
    stamp()
    flush()
    C('---------------- all three waves: wave i finishes dims 64i..64i+63 of the four segments')
    A('L_finish:')
    AC = (base + 3) // 4 * 4
    OF = AC; ST = AC + 8; PA = ST + 16; FR = PA + 32
    nv = max(nv, FR + 24)
    TB, VA, VS_, VG, VH = E, E + 4, E + 6, E + 8, E + 9
    TAG = OF + 7
    A(f'  v_mov_b32 {v(X0)}, {F_END}')
    A(f'  ds_read_b128 {v(OF,4)}, {v(X0)}')
    A(f'  ds_read_b128 {v(OF+4,4)}, {v(X0)} offset:16')
    A(f'  s_mul_i32 {s(sT)}, {s(sRO)}, {SEG}')
    A(f'  s_lshl_b32 {s(sT+1)}, s3, 10')
    A(f'  v_lshl_add_u32 {v(VA)}, v0, 4, {s(sT+1)}')
    A(f'  v_lshrrev_b32 {v(X1)}, 4, v0')
    A(f'  v_lshlrev_b32 {v(VS_)}, 3, {v(X1)}')
    A(f'  v_add_u32 {v(VS_)}, {LDS_ACC + W * 3072}, {v(VS_)}')
    A(f'  s_sub_u32 {s(sG)}, {SEG}, {s(sT)}')
    A(f'  v_add_u32 {v(VA+1)}, {s(sG)}, {v(VA)}')
    A(f'  v_add_u32 {v(M)}, {s(sT)}, {v(VA)}')
    A(f'  s_sub_u32 {s(sG)}, {2 * SEG}, {s(sT)}')
    A(f'  v_add_u32 {v(ZN)}, {s(sG)}, {v(VS_)}')
    A(f'  s_add_u32 {s(sG)}, {s(sT)}, {SEG}')
    A(f'  v_add_u32 {v(SN)}, {s(sG)}, {v(VS_)}')
    A(f'  v_add_u32 {v(VS_+1)}, {3 * SEG}, {v(VS_)}')
    A(f'  s_mul_i32 {s(sT)}, s3, {PIECE}')
    A(f'  v_lshl_add_u32 {v(VG)}, v0, 4, {s(sT)}')
    A(f'  v_lshl_add_u32 {v(VH)}, {v(X1)}, 5, {s(sT)}')
    A(f'  v_and_b32 {v(AL)}, 1, v0')
    A(f'  v_lshl_add_u32 {v(VH)}, {v(AL)}, 4, {v(VH)}')
    A(f'  v_mul_u32_u24 {v(AL)}, 384, {v(X1)}')
    A(f'  v_and_b32 {v(X1)}, 15, v0')
    A(f'  v_lshl_add_u32 {v(AL)}, {v(X1)}, 3, {v(AL)}')
    A(f'  s_movk_i32 {s(sMSK)}, 0xff00')
    A(f'  s_mov_b32 {s(sL0)}, 0x30003')
    A(f'  s_mov_b32 {s(sL0+1)}, 0x30003')
    A(f'  s_mov_b32 {s(sL10)}, 0x0c0c0400')
    A(f'  s_mov_b32 {s(sL10+1)}, 0x05040100')
    A(f'  s_mov_b32 {s(sF)}, 0')
    A('  s_waitcnt vmcnt(0) lgkmcnt(0)')
    sO = 72
    def fetch(r):
        A(f'  buffer_load_dwordx4 {v(FR+8*r,4)}, {v(VG)}, {s(SWS,4)}, {s(sO+3+r)} offen sc1')
        A(f'  buffer_load_dwordx4 {v(FR+8*r+4,4)}, {v(VH)}, {s(SWS,4)}, {s(sO+3+r)} offen offset:1024 sc1')
    A('  s_barrier')
    slots = ((VA, 0, VS_), (VA, 3, VS_ + 1), (VA + 1, 1, ZN), (M, 1, SN))
    for j, (va_, sl, vs_) in enumerate(slots):
        A(f'  ds_read2_b64 {v(ST+4*j,4)}, {v(vs_)} offset1:4')
        for w in range(W):
            A(f'  ds_read_b128 {v(PA+8*j+4*w,4)}, {v(va_)} offset:{LDS_ACC + sl * SEG + 3072*w}')
    for k in range(7): A(f'  v_readfirstlane_b32 {s(sO+k)}, {v(OF+k)}')
    for k in range(4): A(f'  v_bfe_u32 {v(TB+k)}, {v(TAG)}, {8 * k}, 8')
    C('three segments are published, the fourth belongs to the head this workgroup owns')
    for j in range(4):
        st = ST + 4 * j; pa = PA + 8 * j
        A(f'  s_waitcnt lgkmcnt({3 * (3 - j)})')
        A(f'  v_min_f32 {v(X0)}, {v(st)}, {v(st+2)}')
        for w in range(2): A(f'  v_sub_f32 {v(st+2*w)}, {v(X0)}, {v(st+2*w)}')
        for w in range(2): A(f'  v_exp_f32 {v(st+2*w)}, {v(st+2*w)}')
        A(f'  v_mul_f32 {v(X1)}, {v(st)}, {v(st+1)}')
        for h in range(2): A(f'  v_pk_mul_f32 {v(pa+2*h,2)}, {v(pa+2*h,2)}, {v(st,2)} op_sel_hi:[1,0]')
        for h in range(2): A(f'  v_pk_fma_f32 {v(pa+2*h,2)}, {v(pa+4+2*h,2)}, {v(st+2,2)}, {v(pa+2*h,2)} op_sel_hi:[1,0,1]')
        A(f'  v_fma_f32 {v(pa+5)}, {v(st+2)}, {v(st+3)}, {v(X1)}')
        A(f'  v_mov_b32 {v(pa+4)}, {v(X0)}')
        if j < 3:
            for x in range(4): A(f'  v_and_or_b32 {v(pa+x)}, {v(pa+x)}, {s(sMSK)}, {v(TB+x)}')
            A(f'  v_mov_b32 {v(pa+7)}, {v(TAG)}')
            A(f'  buffer_store_dwordx4 {v(pa,4)}, {v(VG)}, {s(SWS,4)}, {s(sO+j)} offen sc1')
            A(f'  s_mov_b64 exec, {s(sL0,2)}')
            A(f'  buffer_store_dwordx4 {v(pa+4,4)}, {v(VH)}, {s(SWS,4)}, {s(sO+j)} offen offset:1024 sc1')
            A('  s_mov_b64 exec, -1')
        if j == 2:
            stamp()
            for r in range(3): fetch(r)
    A('  s_branch L_check')
    C('gather the three foreign records of the owned head; a granule counts once it carries this launch\'s tag')
    A('L_gather:')
    A(f'  s_add_u32 {s(sF)}, {s(sF)}, 1')
    A(f'  s_cmp_gt_u32 {s(sF)}, 200000')
    A('  s_cbranch_scc1 L_end')
    for r in range(3):
        A(f'  s_bitcmp0_b32 {s(sMISS)}, {r}')
        A(f'  s_cbranch_scc1 L_have{r}')
        fetch(r)
        A(f'L_have{r}:')
    A('L_check:')
    A(f'  s_mov_b32 {s(sMISS)}, 0')
    A('  s_waitcnt vmcnt(0)')
    for r in range(3):
        b = FR + 8 * r
        A(f'  v_perm_b32 {v(X0)}, {v(b+1)}, {v(b)}, {s(sL10)}')
        A(f'  v_perm_b32 {v(X1)}, {v(b+3)}, {v(b+2)}, {s(sL10)}')
        A(f'  v_cmp_ne_u32 vcc, {v(TAG)}, {v(b+7)}')
        A(f'  v_perm_b32 {v(X0)}, {v(X1)}, {v(X0)}, {s(sL10+1)}')
        A(f'  v_cmp_ne_u32 {s(sT,2)}, {v(TAG)}, {v(X0)}')
        A(f'  s_or_b64 {s(sT,2)}, {s(sT,2)}, vcc')
        A(f'  s_cselect_b32 {s(sT)}, {1 << r}, 0')
        A(f'  s_or_b32 {s(sMISS)}, {s(sMISS)}, {s(sT)}')
    A('  s_cbranch_scc1 L_gather')
    stamp()
    C('(own + partner) + (neighbour pair): products are rounded separately, so the sum does not depend on who had which class')
    B4 = [PA + 24, FR, FR + 8, FR + 16]
    A(f'  v_min_f32 {v(X0)}, {v(B4[0]+4)}, {v(B4[1]+4)}')
    A(f'  v_min3_f32 {v(X0)}, {v(X0)}, {v(B4[2]+4)}, {v(B4[3]+4)}')
    for b in B4: A(f'  v_sub_f32 {v(b+4)}, {v(X0)}, {v(b+4)}')
    for b in B4: A(f'  v_exp_f32 {v(b+4)}, {v(b+4)}')
    for b in B4:
        for x in range(4): A(f'  v_and_b32 {v(b+x)}, {s(sMSK)}, {v(b+x)}')
    for b in B4: A(f'  v_mul_f32 {v(b+5)}, {v(b+4)}, {v(b+5)}')
    A(f'  v_add_f32 {v(B4[0]+5)}, {v(B4[0]+5)}, {v(B4[1]+5)}')
    A(f'  v_add_f32 {v(B4[2]+5)}, {v(B4[2]+5)}, {v(B4[3]+5)}')
    A(f'  v_add_f32 {v(X0)}, {v(B4[0]+5)}, {v(B4[2]+5)}')
    A(f'  v_rcp_f32 {v(X0)}, {v(X0)}')
    A(f'  s_lshl_b32 {s(sT)}, s3, 7')
    A(f'  s_add_u32 {s(sT)}, {s(sT)}, {s(sO+6)}')
    for x in (0, 2):
        for b in B4: A(f'  v_pk_mul_f32 {v(b+x,2)}, {v(b+x,2)}, {v(b+4,2)} op_sel_hi:[1,0]')
        A(f'  v_pk_add_f32 {v(B4[0]+x,2)}, {v(B4[0]+x,2)}, {v(B4[1]+x,2)}')
        A(f'  v_pk_add_f32 {v(B4[2]+x,2)}, {v(B4[2]+x,2)}, {v(B4[3]+x,2)}')
        A(f'  v_pk_add_f32 {v(B4[0]+x,2)}, {v(B4[0]+x,2)}, {v(B4[2]+x,2)}')
        A(f'  v_pk_mul_f32 {v(B4[0]+x,2)}, {v(B4[0]+x,2)}, {v(X0,2)} op_sel_hi:[1,0]')
        A(f'  v_cvt_pk_bf16_f32 {v(ACC+x//2)}, {v(B4[0]+x)}, {v(B4[0]+x+1)}')
    A(f'  buffer_store_dwordx2 {v(ACC,2)}, {v(AL)}, {s(SQ,4)}, {s(sT)} offen')
    A('L_fin:')
    if diagpad:
        A('L_diag:')
        A(f'  s_memrealtime {s(sBIG,2)}')
        A('  s_waitcnt lgkmcnt(0)')
        A(f'  s_sub_u32 {s(sBIG)}, {s(sBIG)}, s6')
        A(f'  s_cmp_lt_u32 {s(sBIG)}, {diagpad * 100}')
        A('  s_cbranch_scc1 L_diag')
    if tl:
        A(f'  s_mul_i32 {s(sT)}, s2, {W+1}')
        A(f'  s_add_u32 {s(sT)}, {s(sT)}, s3')
        A(f'  s_lshl_b32 {s(sT)}, {s(sT)}, 8')
        A(f'  s_add_u32 {s(sT)}, {s(sT)}, 0x10000')
        A(f'  v_lshl_add_u32 {v(E)}, v0, 2, {s(sT)}')
        A(f'  global_store_dword {v(E)}, {v(TL)}, {s(sWS,2)}')
    if stamps:
        A('  s_waitcnt vmcnt(0)')
        A(f'  s_memrealtime {s(sBIG,2)}')
        A(f'  s_getreg_b32 {s(sSM)}, hwreg(HW_REG_XCC_ID)')
        A(f'  s_mul_i32 {s(sT)}, s2, {W+1}')
        A(f'  s_add_u32 {s(sT)}, {s(sT)}, s3')
        A(f'  s_lshl_b32 {s(sT)}, {s(sT)}, 4')
        A('  s_waitcnt lgkmcnt(0)')
        A(f'  v_mov_b32 {v(RING)}, s6')
        A(f'  v_mov_b32 {v(RING+1)}, {s(sBIG)}')
        A(f'  v_mov_b32 {v(RING+2)}, {s(sSM)}')
        A(f'  v_mov_b32 {v(RING+3)}, {s(sDEC)}')
        A(f'  v_mov_b32 {v(X0)}, {s(sT)}')
        A('  s_mov_b64 exec, 1')
        A(f'  global_store_dwordx4 {v(X0)}, {v(RING,4)}, {s(sWS,2)}')
    A('L_end:')
    A('  s_endpgm')

    C('================= helper wave')
    A('L_helper:')
    if tl:
        A(f'  s_mov_b32 {s(sTL)}, 0')
        A(f'  v_mov_b32 {v(TL)}, 0')
    hA, hZ, hO, h1, h2, h3, hD = 1, 2, 3, 4, 5, 6, 8
    hP, hQ, hC, hX, hW, hU, hT = hD + 96, hD + 97, hD + 98, hD + 100, hD + 104, hD + 105, hD + 106
    assert hT + 1 < TL
    A(f'  v_lshlrev_b32 {v(hA)}, 2, v0')
    A(f'  v_add_u32 {v(hA)}, {LDS_F}, {v(hA)}')
    A(f'  v_mov_b32 {v(hZ)}, 0')
    A('  s_mov_b64 exec, 0xff')
    A(f'  ds_write_b32 {v(hA)}, {v(hZ)}')
    A('  s_mov_b64 exec, -1')
    A('  s_waitcnt lgkmcnt(0)')
    make_srds(4, 9)
    A(f'  s_mov_b32 {s(SQ)}, {s(PT+14)}')
    A(f'  s_and_b32 {s(SQ+1)}, {s(PT+15)}, 0xffff')
    A('  s_barrier')
    sOF, sN0, sV0, sJ, sSF, sA, sB, sX, sCNT, sME, sPA, sFA, sFS, sQD = 44, 45, 48, 50, 52, 54, 56, 58, 59, 60, 61, 62, 63, 64
    sT0, sNON, sCP, sCA, sUP, sRET, sSUB = 72, 74, 76, 77, 78, 84, 86
    A(f'  s_memrealtime {s(sT0,2)}')
    C('first touch of the d_debug page (an unused word of the other cache line)')
    A(f'  s_load_dword {s(sCNT)}, {s(sDBG,2)}, 192')
    def code_touch(tag):
        A(f'  s_lshr_b32 {s(sT)}, s2, 3')
        A(f'  s_cmp_lt_u32 {s(sT)}, (L_code_end - L_k) / 1024')
        A(f'  s_cbranch_scc0 L_h_ct{tag}')
        A(f'  global_load_dwordx4 {v(hX,4)}, {v(hC,2)}, off')
        A(f'L_h_ct{tag}:')
    C('workgroup i reads kilobyte i/8 of this kernel\'s code so that first instruction fetches hit L2')
    A(f'  s_getpc_b64 {s(sA,2)}')
    A('L_h_pc:')
    A(f'  s_add_u32 {s(sSUB)}, {s(sA)}, L_h_cp - L_h_pc')
    A(f'  s_addc_u32 {s(sSUB+1)}, {s(sA+1)}, 0')
    A(f'  s_sub_u32 {s(sA)}, {s(sA)}, L_h_pc - L_k')
    A(f'  s_subb_u32 {s(sA+1)}, {s(sA+1)}, 0')
    A(f'  s_and_b32 {s(sA)}, {s(sA)}, -16')
    A(f'  s_lshr_b32 {s(sT)}, s2, 3')
    A(f'  s_lshl_b32 {s(sT)}, {s(sT)}, 10')
    A(f'  v_lshl_add_u32 {v(hC)}, v0, 4, {s(sT)}')
    A(f'  v_mov_b32 {v(hC+1)}, {s(sA+1)}')
    A(f'  v_add_co_u32 {v(hC)}, vcc, {s(sA)}, {v(hC)}')
    A(f'  v_addc_co_u32 {v(hC+1)}, vcc, 0, {v(hC+1)}, vcc')
    code_touch('a')
    A(f'  s_lshl_b32 {s(sT)}, s2, 6')
    A(f'  v_lshl_add_u32 {v(hP)}, v0, 3, {s(sT)}')
    A(f'  v_bfe_u32 {v(hQ)}, v0, 1, 3')
    A(f'  v_lshlrev_b32 {v(hQ)}, 6, {v(hQ)}')
    A(f'  v_and_b32 {v(hW)}, 1, v0')
    A(f'  v_lshl_add_u32 {v(hQ)}, {v(hW)}, 3, {v(hQ)}')
    A(f'  v_lshlrev_b32 {v(hW)}, 2, {v(hW)}')
    A(f'  v_add_u32 {v(hW)}, {F_PRG}, {v(hW)}')
    A(f'  v_mov_b32 {v(hU)}, 0')
    A(f'  v_lshlrev_b32 {v(hO)}, 4, v0')
    A(f'  s_mov_b32 {s(sCP)}, {cp0}')
    A(f'  s_mov_b32 {s(sCA)}, {WS_CP}')
    def wait_progress(tag, lim, slp):
        A(f'L_h_prog{tag}:')
        A(f'  s_sleep {slp}')
        A(f'  ds_read_b32 {v(hD)}, {v(hW)}')
        A('  s_waitcnt lgkmcnt(0)')
        A(f'  v_cmp_gt_u32 vcc, {lim}, {v(hD)}')
        A('  s_cmp_lg_u32 vcc_lo, 0')
        A(f'  s_cbranch_scc1 L_h_prog{tag}')
    def lds_set(addr, val):
        A(f'  v_mov_b32 {v(hA)}, {addr}')
        A(f'  v_mov_b32 {v(h2)}, {val}')
        A(f'  ds_write_b32 {v(hA)}, {v(h2)}')
    C('vote word in d_debug: six 6-bit tallies (class near die 0 in even pages, per slab of qk and qv), four 4-bit tallies')
    C(f'(die of role 0 per wg&3) and the voter count in the top 12 bits; {7 * NV} workgroups vote')
    A(f'  s_getreg_b32 {s(sJ)}, hwreg(HW_REG_XCC_ID)')
    A(f'  s_bfe_u32 {s(sJ)}, {s(sJ)}, 0x10002')
    A(f'  s_bfe_u32 {s(sSF)}, s2, 0x30003')
    A(f'  s_cmp_eq_u32 {s(sSF)}, 7')
    A('  s_cbranch_scc1 L_h_voted')
    A(f'  s_lshr_b32 {s(sT)}, s2, 6')
    A(f'  s_xor_b32 {s(sT)}, {s(sT)}, s2')
    A(f'  s_and_b32 {s(sT)}, {s(sT)}, {32 // NV - 1}')
    A('  s_cbranch_scc1 L_h_voted')
    A(f'  s_cmp_eq_u32 {s(sSF)}, 6')
    A('  s_cbranch_scc0 L_h_probe')
    A(f'  s_xor_b32 {s(sV0)}, {s(sJ)}, {s(sRO)}')
    A(f'  s_and_b32 {s(sSF)}, s2, 3')
    A(f'  s_lshl2_add_u32 {s(sSF)}, {s(sSF)}, 36')
    A('  s_branch L_h_vote')
    A('L_h_probe:')
    A(f'  s_cmp_ge_u32 {s(sSF)}, 3')
    A(f'  s_cselect_b32 {s(SI)}, {s(SV)}, {s(SK)}')
    A(f'  s_cselect_b32 {s(SI+1)}, {s(SV+1)}, {s(SK+1)}')
    A(f'  s_cselect_b32 {s(sT)}, 3, 0')
    A(f'  s_sub_u32 {s(sT)}, {s(sSF)}, {s(sT)}')
    A(f'  s_lshl_b32 {s(sT)}, {s(sT)}, 28')
    A(f'  s_add_u32 {s(sOF)}, {s(sPB)}, {s(sRO)}')
    A(f'  s_lshl_b32 {s(sOF)}, {s(sOF)}, 16')
    A(f'  s_add_u32 {s(sOF)}, {s(sOF)}, {s(sT)}')
    A(f'  s_add_u32 {s(sOF)}, {s(sOF)}, 0x1c0000')
    A(f'  s_mul_i32 {s(sT)}, s2, 0x2a95')
    A(f'  s_and_b32 {s(sT)}, {s(sT)}, 0x7f80')
    A(f'  s_add_u32 {s(sOF)}, {s(sOF)}, {s(sT)}')
    A(f'  s_add_u32 {s(sT)}, {s(sOF)}, 0x8000')
    A(f'  s_buffer_load_dword {s(sX)}, {s(SI,4)}, {s(sT)}')
    A(f'  s_mov_b32 {s(sN0)}, -1')
    A(f'  s_mov_b32 {s(sN0+1)}, -1')
    A(f'  s_mul_i32 {s(sSF)}, {s(sSF)}, 6')
    wait_progress('p', 1, 2)
    for k in range(NS):
        for c in ((0, 1) if k % 2 == 0 else (1, 0)):
            o = (((k & 1) << 14) | ((k >> 1 & 1) << 12) | ((k * 0x380) & 0xfff)) ^ (c << 13)
            A(f'  s_xor_b32 {s(sT)}, {s(sOF)}, {o}')
            A(f'  s_memtime {s(sA,2)}')
            A('  s_waitcnt lgkmcnt(0)')
            A(f'  s_buffer_load_dword {s(sX)}, {s(SI,4)}, {s(sT)}')
            A('  s_waitcnt lgkmcnt(0)')
            A(f'  s_memtime {s(sB,2)}')
            A('  s_waitcnt lgkmcnt(0)')
            A(f'  s_sub_u32 {s(sB)}, {s(sB)}, {s(sA)}')
            A(f'  s_min_u32 {s(sN0+c)}, {s(sN0+c)}, {s(sB)}')
    A(f'  s_cmp_lt_u32 {s(sN0+1)}, {s(sN0)}')
    A(f'  s_cselect_b32 {s(sV0)}, 1, 0')
    A(f'  s_lshr_b32 {s(sT)}, {s(sOF)}, 13')
    A(f'  s_xor_b32 {s(sT)}, {s(sT)}, s2')
    A(f'  s_xor_b32 {s(sT)}, {s(sT)}, {s(sJ)}')
    A(f'  s_and_b32 {s(sT)}, {s(sT)}, 1')
    A(f'  s_xor_b32 {s(sV0)}, {s(sV0)}, {s(sT)}')
    A('L_h_vote:')
    A(f'  s_mov_b32 {s(sV0+1)}, 0')
    A(f'  s_lshl_b64 {s(sV0,2)}, {s(sV0,2)}, {s(sSF)}')
    A(f'  s_or_b32 {s(sV0+1)}, {s(sV0+1)}, 0x100000')
    A(f'  s_atomic_add_x2 {s(sV0,2)}, {s(sDBG,2)}, 0')
    A('L_h_voted:')
    A('  s_waitcnt lgkmcnt(0)')
    C('launch nonce (tells this launch\'s hand-offs in ws from older contents)')
    A('  s_cmp_lg_u32 s2, 56')
    A('  s_cbranch_scc1 L_h_nonce')
    A(f'  s_lshl_b64 {s(sA,2)}, {s(sT0,2)}, 2')
    A(f'  s_atomic_add_x2 {s(sA,2)}, {s(sDBG,2)}, 8')
    A('  s_waitcnt lgkmcnt(0)')
    A('L_h_nonce:')
    stamp()
    def checkpoints(upto):
        A(f'  s_mov_b32 {s(sUP)}, {min(upto, last) - dly}')
        A(f'  s_swappc_b64 {s(sRET,2)}, {s(sSUB,2)}')
    def bounded(label, n):
        A(f'  s_add_u32 {s(sCNT)}, {s(sCNT)}, 1')
        A(f'  s_cmp_gt_u32 {s(sCNT)}, {n}')
        A(f'  s_cbranch_scc1 {label}')
    wait_progress('v', NWU - W, 4)
    A(f'  s_load_dwordx2 {s(sV0,2)}, {s(sDBG,2)}, 0')
    A(f'  s_mov_b32 {s(sCNT)}, 0')
    A('L_h_votes:')
    A('  s_waitcnt lgkmcnt(0)')
    A(f'  s_lshr_b32 {s(sT)}, {s(sV0+1)}, 20')
    A(f'  s_cmp_ge_u32 {s(sT)}, {7 * NV}')
    A('  s_cbranch_scc1 L_h_votes_done')
    bounded('L_h_votes_done', 8000)
    A('  s_sleep 64')
    A(f'  s_mov_b64 {s(sV0,2)}, 0')
    A(f'  s_atomic_or_x2 {s(sV0,2)}, {s(sDBG,2)}, 0 glc')
    A('  s_branch L_h_votes')
    A('L_h_votes_done:')
    A(f'  s_mov_b32 {s(sDEC)}, 0x80')
    for j in range(6):
        A(f'  s_bfe_u64 {s(sA,2)}, {s(sV0,2)}, {hex(0x60000 | (6 * j))}')
        A(f'  s_cmp_gt_u32 {s(sA)}, {NV // 2}')
        A(f'  s_cselect_b32 {s(sB)}, {1 << j}, 0')
        A(f'  s_or_b32 {s(sDEC)}, {s(sDEC)}, {s(sB)}')
    if force >= 0: A(f'  s_mov_b32 {s(sDEC)}, {0x80 | force}')
    A(f'  s_and_b32 {s(sT)}, s2, 3')
    A(f'  s_lshl2_add_u32 {s(sT)}, {s(sT)}, {4 + (NV // 4).bit_length() - 1}')
    A(f'  s_lshr_b32 {s(sA)}, {s(sV0+1)}, {s(sT)}')
    A(f'  s_xor_b32 {s(sA)}, {s(sA)}, s2')
    A(f'  s_xor_b32 {s(sA)}, {s(sA)}, {s(sRO)}')
    A(f'  s_and_b32 {s(sA)}, {s(sA)}, 1')
    A(f'  s_mul_i32 {s(sA)}, {s(sA)}, 63')
    A(f'  s_xor_b32 {s(sDEC)}, {s(sDEC)}, {s(sA)}')
    lds_set(F_DEC, s(sDEC))
    stamp()
    A(f'  s_load_dwordx2 {s(sNON,2)}, {s(sDBG,2)}, 8')
    A(f'  s_mov_b32 {s(sCNT)}, 0')
    A('L_h_getnonce:')
    A('  s_waitcnt lgkmcnt(0)')
    A(f'  s_cmp_lg_u64 {s(sNON,2)}, 0')
    A('  s_cbranch_scc1 L_h_gotnonce')
    bounded('L_h_gotnonce', 8000)
    A('  s_sleep 64')
    A(f'  s_atomic_or_x2 {s(sNON,2)}, {s(sDBG,2)}, 8 glc')
    A('  s_branch L_h_getnonce')
    A('L_h_gotnonce:')
    A(f'  s_lshr_b64 {s(sA,2)}, {s(sNON,2)}, 4')
    A(f'  s_mul_i32 {s(sA)}, {s(sA)}, 0x9e3779b1')
    C('table for the finish: ws offsets of the records to publish (slots 0, 3, 2-role) and to gather, output offset, tag.')
    C('record = 8*(page/3) + 2*slot + class; the page of type t = page%3 lies in slab (2t + pair) % 3')
    A(f'  v_writelane_b32 {v(hD)}, {s(sA)}, 7')
    A(f'  s_lshr_b32 {s(sQD)}, {s(sPB)}, 5')
    A(f'  s_mov_b32 {s(sJ)}, 0xaaaaaaab')
    def rec_base(t):
        A(f'  s_add_u32 {s(sA)}, {s(sQD)}, {2 * t}')
        A(f'  s_mul_hi_u32 {s(sB)}, {s(sA)}, {s(sJ)}')
        A(f'  s_lshr_b32 {s(sB)}, {s(sB)}, 1')
        A(f'  s_mul_i32 {s(sB)}, {s(sB)}, 3')
        A(f'  s_sub_u32 {s(sA)}, {s(sA)}, {s(sB)}')
        A(f'  s_lshr_b32 {s(sB)}, {s(sDEC)}, {s(sA)}')
        A(f'  s_bfe_u32 {s(sB)}, {s(sB)}, 0x10003')
        A(f'  s_lshl_b32 {s(sA)}, {s(sA)}, 7')
        A(f'  s_add_u32 {s(sA)}, {s(sA)}, {s(sQD)}')
        A(f'  s_mul_hi_u32 {s(sA)}, {s(sA)}, {s(sJ)}')
        A(f'  s_lshr_b32 {s(sA)}, {s(sA)}, 1')
        A(f'  s_lshl3_add_u32 {s(sA)}, {s(sA)}, {s(sB)}')
    def put(lane, reg):
        A(f'  s_mul_i32 {s(sT)}, {s(reg)}, {REC}')
        A(f'  s_add_u32 {s(sT)}, {s(sT)}, {WS_REC}')
        A(f'  v_writelane_b32 {v(hD)}, {s(sT)}, {lane}')
    rec_base(0)
    put(0, sA)
    rec_base(2)
    A(f'  s_add_u32 {s(sA)}, {s(sA)}, 6')
    put(1, sA)
    rec_base(1)
    A(f'  s_lshl_b32 {s(sB)}, {s(sRO)}, 1')
    A(f'  s_sub_u32 {s(sB+1)}, {s(sA)}, {s(sB)}')
    A(f'  s_add_u32 {s(sB+1)}, {s(sB+1)}, 4')
    put(2, sB + 1)
    A(f'  s_add_u32 {s(sA)}, {s(sA)}, {s(sB)}')
    A(f'  s_add_u32 {s(sA)}, {s(sA)}, 2')
    A(f'  s_xor_b32 {s(sB)}, {s(sA)}, 1')
    put(3, sB)
    A(f'  s_andn2_b32 {s(sB)}, {s(sA)}, 1')
    A(f'  s_xor_b32 {s(sB)}, {s(sB)}, 2')
    put(4, sB)
    A(f'  s_add_u32 {s(sB)}, {s(sB)}, 1')
    put(5, sB)
    A(f'  s_lshr_b32 {s(sA)}, {s(sA)}, 2')
    A(f'  s_mul_i32 {s(sA)}, {s(sA)}, 1536')
    A(f'  v_writelane_b32 {v(hD)}, {s(sA)}, 6')
    A(f'  v_lshlrev_b32 {v(hA)}, 2, v0')
    A('  s_mov_b64 exec, 0xff')
    A(f'  ds_write_b32 {v(hA)}, {v(hD)} offset:{F_END}')
    A('  s_mov_b64 exec, -1')
    C('logit swap: flag line per workgroup; image q = 2*pair + role keeps kilobyte k at g(q) xor f(k), both xor-linear:')
    C('pairs of kilobytes share DRAM rows, the rest spreads over the channels')
    A(f'  s_lshl_b32 {s(sFA)}, s2, 8')
    A(f'  s_add_u32 {s(sFA)}, {s(sFA)}, {WS_FLAG}')
    A(f'  s_xor_b32 {s(sFS)}, {s(sFA)}, 1024')
    A(f'  s_lshr_b32 {s(sX)}, {s(sDEC)}, 3')
    A(f'  s_xor_b32 {s(sX)}, {s(sX)}, {s(sDEC)}')
    B_ = lambda *bits: sum(1 << b for b in bits)
    QV = [B_(b) for b in (10, 11, 12, 13, 14, 21, 22, 23)]
    KV = [B_(15), B_(16, 11), B_(17, 10, 12), B_(18, 11, 13), B_(19, 10), B_(20, 12)]
    def lin(vecs, x):
        r = 0
        for b, w in enumerate(vecs):
            if x >> b & 1: r ^= w
        return r
    pxor = lambda k: lin(KV, k)
    assert len({lin(QV, q) ^ pxor(k) for q in range(256) for k in range(36)}) == 256 * 36
    A(f'  s_mov_b32 {s(sOF)}, {WS_IMG}')
    for b_ in range(1, 8):
        A(f'  s_bitcmp1_b32 {s(sPB)}, {4 + b_}')
        A(f'  s_cselect_b32 {s(sT)}, {QV[b_]}, 0')
        A(f'  s_xor_b32 {s(sOF)}, {s(sOF)}, {s(sT)}')
    A(f'  s_mul_i32 {s(sT)}, {s(sRO)}, {QV[0]}')
    A(f'  s_xor_b32 {s(sME)}, {s(sOF)}, {s(sT)}')
    A(f'  s_xor_b32 {s(sPA)}, {s(sME)}, {QV[0]}')
    NW = NWU * 384 // 1024
    def reg(k): return hD + 4 * (k % 24)
    def export(lo, hi):
        for k in range(lo, hi): A(f'  ds_read_b128 {v(reg(k),4)}, {v(hO)} offset:{1024*k}')
        A('  s_waitcnt lgkmcnt(0)')
        for k in range(lo, hi):
            A(f'  s_xor_b32 {s(sT)}, {s(sME)}, {pxor(k)}')
            A(f'  buffer_store_dwordx4 {v(reg(k),4)}, {v(hO)}, {s(SWS,4)}, {s(sT)} offen sc1')
    def imp(lo, hi):
        for k in range(lo, hi):
            A(f'  s_xor_b32 {s(sT)}, {s(sPA)}, {pxor(k)}')
            A(f'  buffer_load_dwordx4 {v(reg(k),4)}, {v(hO)}, {s(SWS,4)}, {s(sT)} offen sc1')
        A('  s_waitcnt vmcnt(0)')
        for k in range(lo, hi): A(f'  ds_write_b128 {v(hO)}, {v(reg(k),4)} offset:{1024*k}')
    def cond(bit, tag, fn):
        A(f'  s_bitcmp0_b32 {s(sX)}, {bit}')
        A(f'  s_cbranch_scc1 L_h_{tag}')
        fn()
        A(f'L_h_{tag}:')
    def handshake(tag, level):
        A(f'  s_add_u32 {s(sA)}, {s(sNON)}, {level}')
        A(f'  v_lshlrev_b32 {v(h2)}, 3, v0')
        A('  s_waitcnt vmcnt(0)')
        A(f'  v_mov_b32 {v(hD)}, {s(sA)}')
        A(f'  v_mov_b32 {v(hD+1)}, {s(sNON+1)}')
        A('  s_mov_b64 exec, 0xffff')
        A(f'  buffer_store_dwordx2 {v(hD,2)}, {v(h2)}, {s(SWS,4)}, {s(sFA)} offen sc1')
        A('  s_mov_b64 exec, 1')
        A(f'  s_mov_b32 {s(sCNT)}, 0')
        A(f'L_h_flag{tag}:')
        A(f'  buffer_load_dwordx2 {v(hD+2,2)}, {v(h2)}, {s(SWS,4)}, {s(sFS)} offen sc1')
        A('  s_waitcnt vmcnt(0)')
        A(f'  v_readfirstlane_b32 {s(sB)}, {v(hD+2)}')
        A(f'  v_readfirstlane_b32 {s(sB+1)}, {v(hD+3)}')
        A(f'  s_sub_u32 {s(sB)}, {s(sB)}, {s(sA)}')
        A(f'  s_xor_b32 {s(sB+1)}, {s(sB+1)}, {s(sNON+1)}')
        A(f'  s_lshr_b32 {s(sB)}, {s(sB)}, 1')
        A(f'  s_or_b32 {s(sB)}, {s(sB)}, {s(sB+1)}')
        A(f'  s_cbranch_scc0 L_h_flag{tag}_done')
        bounded(f'L_h_flag{tag}_done', 100000)
        A('  s_sleep 8')
        A(f'  s_branch L_h_flag{tag}')
        A(f'L_h_flag{tag}_done:')
        A('  s_mov_b64 exec, -1')
    pg = (2, 0, 1) if kord else (0, 1, 2)
    checkpoints(64)
    wait_progress('a', 64, 4)
    stamp()
    export(0, NW)
    cond(pg[0], 'e0', lambda: export(NW, 12))
    cond(pg[1], 'e1', lambda: export(12, 24))
    handshake('a', 1)
    stamp()
    C('first units: slot f comes from the image of role f&1, slot (f&~1) + V class of that page')
    A(f'  s_bfe_u32 {s(sA)}, {s(sDEC)}, {hex(0x10003 + pg[0])}')
    A(f'  s_mul_i32 {s(sA)}, {s(sA)}, 384')
    A(f'  v_lshrrev_b32 {v(h1)}, 3, v0')
    for k in range(NW):
        A(f'  v_add_u32 {v(h2)}, {8 * k}, {v(h1)}')
        A(f'  v_mul_u32_u24 {v(h2)}, 21846, {v(h2)}')
        A(f'  v_bfe_u32 {v(h2)}, {v(h2)}, 16, 1')
        A(f'  v_mul_u32_u24 {v(h3)}, 384, {v(h2)}')
        A(f'  v_sub_u32 {v(h3)}, {v(hO)}, {v(h3)}')
        A(f'  v_add_u32 {v(h3)}, {s(sA)}, {v(h3)}')
        A(f'  v_add_u32 {v(h3)}, {1024 * k}, {v(h3)}')
        assert NW <= 4
        A(f'  v_mul_u32_u24 {v(h2)}, {QV[0]}, {v(h2)}')
        A(f'  v_xor_b32 {v(h2)}, {s(sOF)}, {v(h2)}')
        for b_ in range(2):
            A(f'  v_bfe_u32 {v(hZ)}, {v(h3)}, {10 + b_}, 1')
            A(f'  v_mul_u32_u24 {v(hZ)}, {pxor(1 << b_)}, {v(hZ)}')
            A(f'  v_xor_b32 {v(h2)}, {v(h2)}, {v(hZ)}')
        A(f'  v_and_b32 {v(h3)}, 1023, {v(h3)}')
        A(f'  v_add_u32 {v(h2)}, {v(h2)}, {v(h3)}')
        A(f'  buffer_load_dwordx4 {v(reg(k),4)}, {v(h2)}, {s(SWS,4)}, 0 offen sc1')
    cond(pg[0], 'i0', lambda: imp(NW, 12))
    cond(pg[1], 'i1', lambda: imp(12, 24))
    A('  s_waitcnt vmcnt(0)')
    for k in range(NW): A(f'  ds_write_b128 {v(hO)}, {v(reg(k),4)} offset:{1024*k}')
    stamp()
    A(f'  s_bitcmp0_b32 {s(sX)}, {pg[2]}')
    A(f'  s_cselect_b32 {s(sT)}, 255, {32 * pg[2]}')
    lds_set(F_IMP, s(sT))
    checkpoints(NF)
    A(f'  s_bitcmp0_b32 {s(sX)}, {pg[2]}')
    A('  s_cbranch_scc1 L_h_all')
    wait_progress('b', NF, 4)
    export(24, 36)
    handshake('b', 2)
    imp(24, 36)
    lds_set(F_IMP, 255)
    A('L_h_all:')
    checkpoints(999)
    A('  s_branch L_finish')

    C(f'check points every {step} units up to unit s{sUP}: lane w (mod 2) follows wave w. Arrival times of 8 workgroups go to ws;')
    C(f'{dly} units later the entries stamped inside this launch give the mean, and a late wave gets a catch-up limit in LDS')
    A('L_h_cp:')
    A(f'  s_cmp_gt_u32 {s(sCP)}, {s(sUP)}')
    A('  s_cbranch_scc0 L_h_cpgo')
    A(f'  s_setpc_b64 {s(sRET,2)}')
    A('L_h_cpgo:')
    A(f'  ds_read_b32 {v(hD)}, {v(hW)}')
    A('  s_waitcnt lgkmcnt(0)')
    A(f'  v_cmp_gt_u32 vcc, {s(sCP)}, {v(hD)}')
    A('  s_cmp_eq_u32 vcc_lo, 0')
    A('  s_cbranch_scc1 L_h_cpnext')
    A('L_h_first:')
    A('  s_sleep 2')
    A(f'  ds_read_b32 {v(hD)}, {v(hW)}')
    A('  s_waitcnt lgkmcnt(0)')
    A(f'  v_cmp_gt_u32 {s(sV0,2)}, {s(sCP)}, {v(hD)}')
    A(f'  s_cmp_eq_u32 {s(sV0)}, -1')
    A('  s_cbranch_scc1 L_h_first')
    A(f'  s_memrealtime {s(sA,2)}')
    wait_progress('m', s(sCP), 2)
    A(f'  s_memrealtime {s(sB,2)}')
    A(f'  v_mov_b32 {v(hT)}, {s(sA)}')
    A(f'  v_mov_b32 {v(hT+1)}, {s(sA+1)}')
    A(f'  s_mov_b64 exec, {s(sV0,2)}')
    A('  s_waitcnt lgkmcnt(0)')
    A(f'  v_mov_b32 {v(hT)}, {s(sB)}')
    A(f'  v_mov_b32 {v(hT+1)}, {s(sB+1)}')
    A('  s_mov_b64 exec, -1')
    A('  s_cmp_ge_u32 s2, 8')
    A('  s_cbranch_scc1 L_h_np')
    A('  s_mov_b64 exec, 0xff')
    A(f'  buffer_store_dwordx2 {v(hT,2)}, {v(hP)}, {s(SWS,4)}, {s(sCA)} offen sc1')
    A('  s_mov_b64 exec, -1')
    A('L_h_np:')
    A(f'  s_add_u32 {s(sJ)}, {s(sCP)}, {dly}')
    wait_progress('c', s(sJ), 4)
    A(f'  buffer_load_dwordx2 {v(hD,2)}, {v(hQ)}, {s(SWS,4)}, {s(sCA)} offen')
    A(f'  v_mov_b32 {v(hD+2)}, {s(sT0+1)}')
    A('  s_waitcnt vmcnt(0)')
    A(f'  ds_read_b32 {v(hD+4)}, {v(hW)}')
    A(f'  v_subrev_co_u32 {v(hD)}, vcc, {s(sT0)}, {v(hD)}')
    A(f'  v_subb_co_u32 {v(hD+1)}, vcc, {v(hD+1)}, {v(hD+2)}, vcc')
    A(f'  v_lshrrev_b32 {v(hD+2)}, 24, {v(hD)}')
    A(f'  v_or_b32 {v(hD+1)}, {v(hD+1)}, {v(hD+2)}')
    A(f'  v_cmp_eq_u32 vcc, 0, {v(hD+1)}')
    A(f'  v_cndmask_b32 {v(hD)}, 0, {v(hD)}, vcc')
    A(f'  s_and_b32 {s(sB)}, vcc_lo, 0xffff')
    A(f'  s_bcnt1_i32_b32 {s(sB)}, {s(sB)}')
    for r in (8, 4, 2, 1):
        A(f'  v_add_u32_dpp {v(hD)}, {v(hD)}, {v(hD)} row_ror:{r} row_mask:0xf bank_mask:0xf')
    A(f'  v_subrev_u32 {v(hD+1)}, {s(sT0)}, {v(hT)}')
    A(f'  v_mul_lo_u32 {v(hD+1)}, {v(hD+1)}, {s(sB)}')
    A(f'  s_max_u32 {s(sB)}, {s(sB)}, 1')
    A(f'  v_sub_u32 {v(hD)}, {v(hD+1)}, {v(hD)}')
    A(f'  v_cvt_f32_u32 {v(hD+1)}, {s(sB)}')
    A(f'  v_cvt_f32_i32 {v(hD)}, {v(hD)}')
    A(f'  v_rcp_f32 {v(hD+1)}, {v(hD+1)}')
    A(f'  v_mul_f32 {v(hD)}, {v(hD)}, {v(hD+1)}')
    A(f'  v_cvt_i32_f32 {v(hD)}, {v(hD)}')
    A('  s_waitcnt lgkmcnt(0)')
    A(f'  v_add_u32 {v(hD+4)}, {W}, {v(hD+4)}')
    C('subtract what the running catch-up gains between the check point and the first unit that sees the new limit')
    A(f'  v_min_u32 {v(hD+1)}, {v(hU)}, {v(hD+4)}')
    A(f'  v_subrev_u32 {v(hD+1)}, {s(sCP)}, {v(hD+1)}')
    A(f'  v_max_i32 {v(hD+1)}, 0, {v(hD+1)}')
    A(f'  v_lshrrev_b32 {v(hD+1)}, 1, {v(hD+1)}')
    A(f'  v_mul_u32_u24 {v(hD+1)}, {gain}, {v(hD+1)}')
    A(f'  v_sub_u32 {v(hD)}, {v(hD)}, {v(hD+1)}')
    A(f'  v_add_u32 {v(hD+1)}, {gain // 2 - dead}, {v(hD)}')
    A(f'  v_max_i32 {v(hD+1)}, 0, {v(hD+1)}')
    A(f'  v_min_i32 {v(hD+1)}, 2000, {v(hD+1)}')
    A(f'  v_mul_u32_u24 {v(hD+1)}, {65536 // gain}, {v(hD+1)}')
    A(f'  v_lshrrev_b32 {v(hD+1)}, 16, {v(hD+1)}')
    A(f'  v_cmp_ne_u32 vcc, 0, {v(hD+1)}')
    A(f'  v_lshl_add_u32 {v(hD+1)}, {v(hD+1)}, 1, {v(hD+4)}')
    A(f'  v_cndmask_b32 {v(hU)}, 0, {v(hD+1)}, vcc')
    A(f'  ds_write_b32 {v(hW)}, {v(hU)} offset:{F_BST - F_PRG}')
    A('L_h_cpnext:')
    A(f'  s_add_u32 {s(sCP)}, {s(sCP)}, {step}')
    A(f'  s_add_u32 {s(sCA)}, {s(sCA)}, 512')
    A('  s_branch L_h_cp')
    A('L_code_end:')
    body = pad(L)

    nva = (nv + 7) // 8 * 8
    out = HDR + f'; @launch grid=(256,1,1) block=({64*(W+1)},1,1) lds={lds}\n' + NOTES
    out += '.amdgcn_target "amdgcn-amd-amdhsa--gfx950"\n.text\n'
    out += f'.globl {NAME}\n.p2align 8\n.type {NAME},@function\n'
    out += '\n'.join(body) + '\n'
    out += f'''.section .rodata,"a"
.p2align 6
.amdhsa_kernel {NAME}
  .amdhsa_next_free_vgpr {nva}
  .amdhsa_next_free_sgpr 102
  .amdhsa_accum_offset {nva}
  .amdhsa_group_segment_fixed_size 0
  .amdhsa_kernarg_size 80
  .amdhsa_user_sgpr_count 2
  .amdhsa_user_sgpr_kernarg_segment_ptr 1
  .amdhsa_system_sgpr_workgroup_id_x 1
  .amdhsa_float_denorm_mode_32 3
.end_amdhsa_kernel
'''
    return out

if __name__ == '__main__':
    kw = {}
    for x in sys.argv[2:]:
        k, val = x.split('=')
        kw[k] = int(val)
    open(sys.argv[1], 'w').write(gen(**kw))
```
